```python
import torch

def _softmax(x, axis=-1):
    return torch.softmax(x, dim=axis)
def _gelu(x):
    return torch.nn.functional.gelu(x, approximate="tanh")
def _silu(x):
    return torch.nn.functional.silu(x)
def _sigmoid(x):
    return torch.sigmoid(x)
def _layernorm(x, axis=-1, eps=1e-5):
    m = x.mean(dim=axis, keepdim=True)
    v = x.var(dim=axis, keepdim=True, unbiased=False)
    return (x - m) / torch.sqrt(v + eps)
def _scatter_add(tgt, idx, src, axis=0):
    return tgt.clone().index_add_(axis, idx, src)
def _segment_sum(src, seg, n):
    out = torch.zeros((n,) + src.shape[1:], dtype=src.dtype)
    return out.index_add_(0, seg, src)
def _pad(x, pw):
    flat = tuple(v for pair in reversed(pw) for v in pair)
    return torch.nn.functional.pad(x, flat)

kernel_name = 'concat_heads__grouped_kv_mqa__spectral_fnet__prompt'

def setup_inputs():

    _w = (lambda a: (lambda t: t.to(torch.bfloat16) if t.is_floating_point() else t)(torch.as_tensor(a)))
    def _A_setup():
        B, S, D, H = 1, 2048, 512, 32
        Dh = D // H
        return {
            "x": _w((lambda *s: torch.randn(*s, dtype=torch.bfloat16) * 0.05)(B, S, D)),
            "wq": _w((lambda *s: torch.randn(*s, dtype=torch.bfloat16) * 3.2)(D, H * Dh)),
            "wk": _w((lambda *s: torch.randn(*s, dtype=torch.bfloat16) * 3.2)(D, Dh)),
            "wv": _w((lambda *s: torch.randn(*s, dtype=torch.bfloat16) * 1.6)(D, Dh)),
            "wo": _w((lambda *s: torch.randn(*s, dtype=torch.bfloat16) * 1.6)(H * Dh, D)),
        }
    _A_in = _A_setup()

    def _B_setup():
        B, S, D = 1, 2048, 512
        ns = torch.arange(S)[:, None] * torch.arange(S)[None, :]
        nd = torch.arange(D)[:, None] * torch.arange(D)[None, :]
        Ws_re = torch.cos(-2.0 * torch.pi * ns / S).to(float)
        Ws_im = torch.sin(-2.0 * torch.pi * ns / S).to(float)
        Wd_re = torch.cos(-2.0 * torch.pi * nd / D).to(float)
        Wd_im = torch.sin(-2.0 * torch.pi * nd / D).to(float)
        return {
            "x": _w((lambda *s: torch.randn(*s, dtype=torch.bfloat16) * 0.05)(B, S, D)),
            "dft_seq_re": _w(Ws_re),
            "dft_seq_im": _w(Ws_im),
            "dft_hid_re": _w(Wd_re),
            "dft_hid_im": _w(Wd_im),
        }
    _B_in = _B_setup()

    return {
        "A_x": _A_in["x"],
        "A_wq": _A_in["wq"],
        "A_wk": _A_in["wk"],
        "A_wv": _A_in["wv"],
        "A_wo": _A_in["wo"],
        "B_x": _B_in["x"],
        "B_dft_seq_re": _B_in["dft_seq_re"],
        "B_dft_seq_im": _B_in["dft_seq_im"],
        "B_dft_hid_re": _B_in["dft_hid_re"],
        "B_dft_hid_im": _B_in["dft_hid_im"],
    }

def reference(A_x, A_wq, A_wk, A_wv, A_wo, B_x, B_dft_seq_re, B_dft_seq_im, B_dft_hid_re, B_dft_hid_im):
    def _A_ref(x, wq, wk, wv, wo):
        B, S, D = x.shape
        H = 32
        Dh = D // H
        q = (lambda x, *d: x.permute(*d))((x @ wq).reshape(B, S, H, Dh), 0, 2, 1, 3)
        k = x @ wk
        v = x @ wv
        scores = torch.einsum("bhqd,bkd->bhqk", q, k) * (Dh ** -0.5)
        p = _softmax(scores, axis=-1)
        o = torch.einsum("bhqk,bkd->bhqd", p, v)
        return (lambda x, *d: x.permute(*d))(o, 0, 2, 1, 3).reshape(B, S, H * Dh) @ wo

    def _B_ref(x, dft_seq_re, dft_seq_im, dft_hid_re, dft_hid_im):
        a = torch.einsum("bsd,ed->bse", x, dft_hid_re)
        b = torch.einsum("bsd,ed->bse", x, dft_hid_im)
        y = torch.einsum("ts,bse->bte", dft_seq_re, a) - torch.einsum("ts,bse->bte", dft_seq_im, b)
        return y

    a = _A_ref(A_x, A_wq, A_wk, A_wv, A_wo)
    b = _B_ref(B_x, B_dft_seq_re, B_dft_seq_im, B_dft_hid_re, B_dft_hid_im)
    return torch.concatenate([a, b], axis=-1)
```

```python
import re, sys

def regs(tok):
    tok = tok.strip()
    neg = tok.lstrip('-')
    m = re.fullmatch(r'(?:abs\()?([vas])\[(\d+):(\d+)\]\)?', neg)
    if m: return {(m.group(1), i) for i in range(int(m.group(2)), int(m.group(3))+1)}
    m = re.fullmatch(r'(?:abs\()?([vas])(\d+)\)?', neg)
    if m: return {(m.group(1), int(m.group(2)))}
    if neg == 'vcc': return {('s','vcc')}
    if neg == 'exec': return {('s','exec')}
    if neg == 'm0': return {('s','m0')}
    return set()

TRANS = ('v_exp_','v_log_','v_rcp_','v_rsq_','v_sqrt_','v_sin_','v_cos_')
class I:
    def __init__(s, line, n):
        s.line=line; s.n=n
        t=line.split(None,1); s.mn=t[0]; rest=t[1] if len(t)>1 else ''
        rest=re.sub(r'\s+(op_sel|op_sel_hi|neg_lo|neg_hi):\[[^\]]*\]','',rest)
        ops=[]; depth=0; cur=''
        for ch in rest:
            if ch=='[': depth+=1
            if ch==']': depth-=1
            if ch==',' and depth==0: ops.append(cur.strip()); cur=''
            else: cur+=ch
        if cur.strip(): ops.append(cur.strip())
        if ops:
            parts=ops[-1].split()
            s.mods=parts[1:]; ops[-1]=parts[0]
        else: s.mods=[]
        s.ops=ops
        mn=s.mn
        s.mfma = mn.startswith('v_mfma') or mn.startswith('v_smfmac')
        s.valu = mn.startswith('v_') and not s.mfma
        s.trans = mn.startswith(TRANS)
        s.vmem = mn.startswith(('buffer_','global_'))
        s.ds = mn.startswith('ds_')
        s.salu = mn.startswith('s_')
        s.dma = s.vmem and ('lds' in s.mods or '_lds_' in mn)
        R=[regs(o) for o in ops]
        s.w=set(); s.r=set(); s.srcc=set(); s.ab=set(); s.stdata=set()
        if s.mfma:
            s.w=R[0]; s.ab=R[1]|R[2]
            if mn.startswith('v_smfmac'): s.srcc=R[0]; s.ab|=R[3]
            else: s.srcc=R[3]
            s.r=s.ab|s.srcc
            s.passes = 8 if '32x32' in mn else 4
        elif s.valu:
            if mn.startswith('v_cmp'):
                s.w=R[0]; s.r=set().union(*R[1:])
            elif mn.startswith('v_permlane') and 'swap' in mn:
                s.w=R[0]|R[1]; s.r=R[0]|R[1]
            elif mn.startswith(('v_add_co','v_addc_co','v_sub_co')):
                s.w=R[0]|R[1]; s.r=set().union(*R[2:])
            else:
                s.w=R[0]; s.r=set().union(*R[1:]) if len(R)>1 else set()
                if mn.startswith(('v_fmac','v_mac')): s.r|=R[0]
                if mn.startswith('v_cndmask') and len(R)==3: s.r|={('s','vcc')}
        elif s.vmem:
            if 'store' in mn or 'atomic' in mn:
                if mn.startswith('buffer_'): s.stdata=R[0]; s.r=set().union(*R)
                else: s.stdata=R[1]; s.r=set().union(*R)
            elif s.dma: s.r=set().union(*R)|{('s','m0')}
            elif mn in('buffer_wbl2','buffer_inv'): pass
            else: s.w=R[0]; s.r=set().union(*R[1:])
        elif s.ds:
            if mn.startswith('ds_read') or '_rtn' in mn or 'permute' in mn: s.w=R[0]; s.r=set().union(*R[1:])
            else: s.r=set().union(*R)
        elif s.salu:
            if mn.startswith(('s_cmp','s_cbranch','s_branch','s_waitcnt','s_nop','s_barrier','s_sleep','s_setprio','s_endpgm')):
                s.r=set().union(*R) if R else set()
            else:
                s.w=R[0] if R else set(); s.r=set().union(*R[1:]) if len(R)>1 else set()
        s.states = 1
        if mn=='s_nop': s.states=int(ops[0],0)+1

def need(p, c):
    n=0; why=''
    def up(k,w):
        nonlocal n,why
        if k>n: n,why=k,w
    vw={x for x in p.w if x[0] in 'va'}; sw={x for x in p.w if x[0]=='s'}
    if p.valu:
        if c.mfma and vw & c.r: up(2,'VALU->MFMA')
        if c.mn.startswith(('v_readfirstlane','v_readlane')) and vw & c.r: up(1,'VALU->readlane')
        if c.mn.startswith('v_permlane') and vw & c.r: up(2,'VALU->permlane')
        if p.trans and c.valu and not c.trans and vw & c.r: up(1,'trans->VALU')
        if p.trans and (c.mfma) and vw & c.r: up(2,'trans->MFMA')
        if sw:
            if c.vmem and sw & c.r: up(5,'VALU sgpr->VMEM')
            if c.valu and sw & c.r: up(2,'VALU sgpr->VALU')
            if c.salu and sw & c.r: up(1,'VALU sgpr->SALU (own pad)')
        if ('s','exec') in sw and c.mfma: up(4,'exec->mfma')
        if 'dpp' in c.line and vw & c.r: up(2,'VALU->DPP')
    if p.mfma:
        big = {8:12,4:8}[p.passes]
        if c.mfma:
            if p.w & c.ab: up(big,'MFMA D->MFMA AB')
            if p.w & c.srcc and not (p.w==c.srcc and p.passes==c.passes): up({8:10,4:6}[p.passes],'MFMA D->C overlap')
            if p.w & c.w and not (p.w==c.srcc) and not (p.w==c.w): up({8:10,4:6}[p.passes],'MFMA WAW partial')
        elif (c.valu or c.vmem or c.ds):
            if p.w & (c.r|c.w): up(big,'MFMA D->VALU/mem')
            if c.valu and (p.srcc & c.w): up({8:7,4:3}[p.passes],'MFMA srcC WAR')
    if p.vmem and p.stdata and len(p.stdata)>=3:
        if c.valu and p.stdata & c.w: up(2,'store WAR')
        elif p.stdata & c.w: up(1,'store WAR')
    if p.salu and ('s','m0') in p.w and c.dma: up(1,'m0->DMA')
    return n,why

def check(text, verbose=True):
    ins=[]; labels={}
    for n,l in enumerate(text.split('\n'),1):
        l=l.split(';')[0].strip()
        if not l or l.startswith('.') : continue
        if l.endswith(':'): labels[l[:-1]]=len(ins); continue
        ins.append(I(l,n))
    def succ(i):
        x=ins[i]
        if x.mn=='s_endpgm': return []
        if x.mn=='s_branch': return [labels[x.ops[0]]]
        if x.mn=='s_cbranch_execz' and ('L_pad' in x.ops[0] or 'lwarm' in x.ops[0]): return [i+1]
        if x.mn.startswith('s_cbranch'): return [i+1, labels[x.ops[0]]]
        return [i+1] if i+1<len(ins) else []
    bad=set()
    for i,p in enumerate(ins):
        if not (p.valu or p.mfma or (p.vmem and p.stdata) or ('s','m0') in p.w): continue
        st=[(j,0) for j in succ(i)]; seen={}
        while st:
            j,d=st.pop()
            if j>=len(ins) or d>=12 or seen.get(j,99)<=d: continue
            seen[j]=d
            c=ins[j]
            k,why=need(p,c)
            if k>d: bad.add((p.n,c.n,why,k,d,p.line,c.line))
            for t in succ(j): st.append((t,d+c.states))
    for b in sorted(bad):
        if verbose: print(f"HAZARD {b[2]} need {b[3]} have {b[4]}: L{b[0]} '{b[5]}' -> L{b[1]} '{b[6]}'")
    return len(bad)
if __name__=='__main__':
    print(check(open(sys.argv[1]).read()), "hazards")
```

```python
import sys, struct
NAME = "concat_heads__grouped_kv_mqa__spectral_fnet__prompt"
opt = dict(stamps=0, stop=99, prio=1, force_fb=0)
for a in sys.argv[2:]:
    k, v = a.split('='); opt[k] = int(v)

L = []
def e(s=""): L.append("    " + s)
def lab(s): L.append(s + ":")
def cm(s): L.append("    ; " + s)
def vr(a, n): return f"v[{a}:{a+n-1}]" if n > 1 else f"v{a}"
def sr(a, n): return f"s[{a}:{a+n-1}]" if n > 1 else f"s{a}"
def nop(n):
    while n > 0:
        k = min(n, 16); e(f"s_nop {k-1}"); n -= k
def f2u(x): return struct.unpack('<I', struct.pack('<f', x))[0]

X_OFF, XROW = 0, 1040
WQ_OFF = 66560
W_OFF = 132096
ONES_OFF = 148480
MISC = 156672
WO_STG = 114688
LDS_BYTES = 156800
WS_KV, WS_O, WS_H, WS_FL = 0, 0x40000, 0x240000, 0x480000
FL_KV, FL_H, FL_O = WS_FL, WS_FL + 0x4000, WS_FL + 0xC000
WS_STAMP = 0x4A0000
WS_SIZE = 0x500000
HROW = 1056
SPIN = 400000
P_XA, P_WQ, P_WK, P_WV, P_WO, P_XB, P_SRE, P_SIM = 4, 6, 8, 10, 12, 14, 16, 18
P_HRE, P_HIM, P_OUT, P_DBG, P_WS = 20, 22, 24, 26, 28
R_XA, R_WQ, R_W, R_WS, R_WO, R_XB, R_SRE, R_SIM, R_OUT, R_DBG = 32, 36, 40, 44, 48, 52, 56, 60, 64, 68
sW, sXCD, sJ, sTB, sHG, sTHP, sA = 72, 73, 74, 75, 76, 77, 78
sT0, sT1, sT2, sT3, sT4 = 80, 81, 82, 83, 84
sNON = 86
sIT, sINC, sFB, sSPIN = 88, 89, 90, 91
sX = 92
sST = 94
sBARN = 96

def srd(r, p, size):
    e(f"s_mov_b32 s{r}, s{p}")
    e(f"s_and_b32 s{r+1}, s{p+1}, 0xffff")
    e(f"s_mov_b32 s{r+2}, {hex(size)}")
    e(f"s_mov_b32 s{r+3}, 0x20000")

vL = 1
def stamp(idx):
    if not opt['stamps']: return
    e(f"s_memrealtime {sr(sST,2)}")
    e("s_waitcnt lgkmcnt(0)")
    e(f"v_mov_b32 v254, s{sST}")
    e(f"s_lshl_b32 s{sST}, s2, 3")
    e(f"s_add_u32 s{sST}, s{sST}, s{sW}")
    e(f"s_lshl_b32 s{sST}, s{sST}, 6")
    e(f"s_add_u32 s{sST}, s{sST}, {WS_STAMP + idx*4}")
    e(f"v_mov_b32 v255, 0")
    e(f"s_mov_b64 {sr(sX,2)}, exec")
    e("s_mov_b64 exec, 1")
    e(f"buffer_store_dword v254, v255, {sr(R_WS,4)}, s{sST} offen")
    e(f"s_mov_b64 exec, {sr(sX,2)}")
STAMP_VM = 1 if opt['stamps'] else 0

def dma(voff, srdr, soff, ldsaddr_s, extra=""):
    e(f"s_mov_b32 m0, s{ldsaddr_s}")
    e("s_nop 0")
    e(f"buffer_load_dwordx4 v{voff}, {sr(srdr,4)}, s{soff} offen {extra}lds")

def poll(name, nloads, voff, dst, soffs, maskall=True):
    e(f"s_mov_b32 s{sSPIN}, {SPIN}")
    lab(name)
    for i in range(nloads):
        e(f"buffer_load_dwordx2 {vr(dst+2*i,2)}, v{voff}, {sr(R_WS,4)}, s{soffs[i]} offen sc1")
    e(f"s_sub_u32 s{sSPIN}, s{sSPIN}, 1")
    e(f"s_cmp_eq_u32 s{sSPIN}, 0")
    e(f"s_cbranch_scc1 {name}_done")
    e("s_waitcnt vmcnt(0)")
    e(f"v_cmp_ne_u64 vcc, {sr(sNON,2)}, {vr(dst,2)}")
    for i in range(1, nloads):
        e(f"v_cmp_ne_u64 {sr(sX,2)}, {sr(sNON,2)}, {vr(dst+2*i,2)}")
        e("s_nop 0")
        e(f"s_or_b64 vcc, vcc, {sr(sX,2)}")
    e("s_nop 0")
    e("s_cmp_eq_u64 vcc, 0")
    e(f"s_cbranch_scc0 {name}")
    lab(name + "_done")
    e("s_waitcnt vmcnt(0)")

def signal(name, ctr_off, last, flag_soff_s, tmp):
    e(f"v_mov_b32 v{tmp}, {MISC + ctr_off}")
    e(f"v_mov_b32 v{tmp+1}, 1")
    e(f"s_mov_b64 exec, 1")
    e(f"ds_add_rtn_u32 v{tmp+1}, v{tmp}, v{tmp+1}")
    e("s_waitcnt lgkmcnt(0)")
    e(f"v_readfirstlane_b32 s{sT4}, v{tmp+1}")
    e(f"v_mov_b32 v{tmp}, 0")
    e(f"v_mov_b32 v{tmp+2}, s{sNON}")
    e(f"v_mov_b32 v{tmp+3}, s{sNON+1}")
    e(f"s_cmp_eq_u32 s{sT4}, {last}")
    e(f"s_cbranch_scc0 {name}_nf")
    e(f"buffer_store_dwordx2 {vr(tmp+2,2)}, v{tmp}, {sr(R_WS,4)}, s{flag_soff_s} offen sc1")
    lab(name + "_nf")
    e("s_mov_b64 exec, -1")

hdr = open(f"cdna_kernels/{NAME}.s.ref").read().split("; Override launch")[0]
L.append(hdr.rstrip())
L.append(f"; @launch grid=(256,1,1) block=(512,1,1) lds={LDS_BYTES}")
L.append('.amdgcn_target "amdgcn-amd-amdhsa--gfx950"')
L.append(".text")
L.append(f".globl {NAME}_kernel")
L.append(".p2align 8")
L.append(f".type {NAME}_kernel,@function")
lab(f"{NAME}_kernel")
e("s_cmp_ge_u32 s2, 256")
e("s_cbranch_scc1 L_end")
e("s_load_dwordx16 s[4:19], s[0:1], 0")
e("s_load_dwordx8 s[20:27], s[0:1], 64")
e("s_load_dwordx2 s[28:29], s[0:1], 96")
e(f"s_memrealtime {sr(sNON,2)}")
e("v_lshrrev_b32 v2, 6, v0")
e(f"v_and_b32 v{vL}, 63, v0")
e(f"v_readfirstlane_b32 s{sW}, v2")
e(f"s_and_b32 s{sXCD}, s2, 7")
e(f"s_lshr_b32 s{sJ}, s2, 3")
e(f"s_and_b32 s{sT0}, s{sJ}, 3")
e(f"s_lshl_b32 s{sTB}, s{sXCD}, 2")
e(f"s_add_u32 s{sTB}, s{sTB}, s{sT0}")
e(f"s_lshr_b32 s{sHG}, s{sJ}, 2")
e(f"s_bfe_u32 s{sTHP}, s{sHG}, 0x10001")
e(f"s_and_b32 s{sA}, s{sW}, 3")
cm("LDS init: ones window (512 x 16 B) and the counters")
e("v_mov_b32 v4, 0x3f803f80")
e("v_mov_b32 v5, v4")
e("v_mov_b32 v6, v4")
e("v_mov_b32 v7, v4")
e(f"v_lshlrev_b32 v3, 4, v0")
e(f"v_add_u32 v3, {ONES_OFF}, v3")
e("ds_write_b128 v3, v[4:7]")
e("v_mov_b32 v8, 0")
e("v_mov_b32 v9, 0")
e("v_mov_b32 v10, 0")
e("v_mov_b32 v11, 0")
e(f"v_mov_b32 v12, {MISC}")
e("ds_write_b128 v12, v[8:11]")
e(f"v_lshlrev_b32 v2, 4, v{vL}          ; v2 = lane*16")
e("s_waitcnt lgkmcnt(0)")
srd(R_XA, P_XA, 2097152)
srd(R_WS, P_WS, WS_SIZE)
srd(R_DBG, P_DBG, 256)
cm("producer weight: wk (hg even) or wv (hg odd)")
e(f"s_bitcmp1_b32 s{sHG}, 0")
e(f"s_cselect_b32 s{R_W}, s{P_WV}, s{P_WK}")
e(f"s_cselect_b32 s{R_W+1}, s{P_WV+1}, s{P_WK+1}")
e(f"s_and_b32 s{R_W+1}, s{R_W+1}, 0xffff")
e(f"s_mov_b32 s{R_W+2}, 16384")
e(f"s_mov_b32 s{R_W+3}, 0x20000")
stamp(0)
cm("workgroup 0, wave 4 publishes this launch's hand-off tag")
e(f"s_or_b32 s{sNON}, s{sNON}, 1")
e(f"s_lshl_b32 s{sT0}, s2, 3")
e(f"s_add_u32 s{sT0}, s{sT0}, s{sW}")
e(f"s_cmp_eq_u32 s{sT0}, 4")
e("s_cbranch_scc0 L_notag")
e(f"v_mov_b32 v4, s{sNON}")
e(f"v_mov_b32 v5, s{sNON+1}")
e("v_mov_b32 v6, 0")
e("s_mov_b64 exec, 1")
e(f"buffer_store_dwordx2 v[4:5], v6, {sr(R_DBG,4)}, 0 offen sc1")
e("s_mov_b64 exec, -1")
lab("L_notag")
cm("critical DMA: x rows 32*thp + 4w + i, and 2 KB of the producer weight")
e(f"s_lshl_b32 s{sT0}, s{sTHP}, 5")
e(f"s_lshl_b32 s{sT1}, s{sW}, 2")
e(f"s_add_u32 s{sT0}, s{sT0}, s{sT1}")
e(f"s_mul_i32 s{sT1}, s{sT0}, {XROW}")
e(f"s_lshl_b32 s{sT2}, s{sTB}, 6")
e(f"s_add_u32 s{sT2}, s{sT2}, s{sT0}")
e(f"s_lshl_b32 s{sT2}, s{sT2}, 10")
for i in range(4):
    dma(2, R_XA, sT2, sT1)
    if i < 3:
        e(f"s_add_u32 s{sT1}, s{sT1}, {XROW}")
        e(f"s_add_u32 s{sT2}, s{sT2}, 1024")
e(f"s_cmp_lt_u32 s{sHG}, 4")
e("s_cbranch_scc0 L_now")
e(f"s_lshl_b32 s{sT2}, s{sW}, 11")
e(f"s_add_u32 s{sT1}, s{sT2}, {W_OFF}")
dma(2, R_W, sT2, sT1)
e(f"buffer_load_dwordx4 v2, {sr(R_W,4)}, s{sT2} offen offset:1024 lds")
lab("L_now")
e(f"s_cmp_ge_u32 s{sW}, 4")
e("s_cbranch_scc1 L_aux")

srd(R_WQ, P_WQ, 524288)
cm("other half of the x tile: rows 32*(1-thp) + 8w + i")
e(f"s_xor_b32 s{sT0}, s{sTHP}, 1")
e(f"s_lshl_b32 s{sT0}, s{sT0}, 5")
e(f"s_lshl_b32 s{sT1}, s{sW}, 3")
e(f"s_add_u32 s{sT0}, s{sT0}, s{sT1}")
e(f"s_mul_i32 s{sT1}, s{sT0}, {XROW}")
e(f"s_lshl_b32 s{sT2}, s{sTB}, 6")
e(f"s_add_u32 s{sT2}, s{sT2}, s{sT0}")
e(f"s_lshl_b32 s{sT2}, s{sT2}, 10")
for i in range(8):
    dma(2, R_XA, sT2, sT1)
    if i < 7:
        e(f"s_add_u32 s{sT1}, s{sT1}, {XROW}")
        e(f"s_add_u32 s{sT2}, s{sT2}, 1024")
cm("wq slice: k rows 128w.., 8 rows x 128 B per instruction, 16-B chunks swizzled by row bit 1")
e(f"v_lshrrev_b32 v3, 3, v{vL}          ; r")
e(f"v_and_b32 v4, 7, v{vL}")
e(f"v_bfe_u32 v5, v{vL}, 4, 1           ; (r>>1)&1")
e("v_lshlrev_b32 v5, 2, v5")
e("v_xor_b32 v4, v4, v5")
e("v_lshlrev_b32 v4, 4, v4")
e("v_lshl_add_u32 v3, v3, 10, v4")
e(f"s_lshl_b32 s{sT2}, s{sW}, 17")
e(f"s_lshl_b32 s{sT0}, s{sHG}, 7")
e(f"s_add_u32 s{sT2}, s{sT2}, s{sT0}")
e(f"s_lshl_b32 s{sT1}, s{sW}, 14")
e(f"s_add_u32 s{sT1}, s{sT1}, {WQ_OFF}")
for i in range(16):
    dma(3, R_WQ, sT2, sT1)
    if i < 15:
        e(f"s_add_u32 s{sT1}, s{sT1}, 1024")
        e(f"s_add_u32 s{sT2}, s{sT2}, 8192")
e("s_waitcnt vmcnt(24)")
e("s_barrier")
SA, SB, OA, OB, CA, CB = 16, 32, 48, 64, 80, 96
QA, QB, K0, K1, V0, V1 = 112, 116, 120, 124, 128, 136
vIDX, vK, vV, vM01 = 144, 145, 146, 147
vXA, vWA = 148, 149
FB = 152
cm("Q-projection addresses")
e(f"s_and_b32 s{sT0}, s{sW}, 1            ; th")
e(f"s_lshr_b32 s{sT1}, s{sW}, 1           ; hp")
e(f"v_and_b32 v3, 31, v{vL}")
e(f"s_lshl_b32 s{sT2}, s{sT0}, 5")
e(f"v_add_u32 v3, s{sT2}, v3")
e(f"v_mul_u32_u24 v3, {XROW}, v3")
e(f"v_lshrrev_b32 v4, 5, v{vL}           ; h")
e(f"v_lshl_add_u32 v{vXA}, v4, 4, v3")
e(f"v_bfe_u32 v5, v{vL}, 2, 2            ; r")
e("v_lshl_add_u32 v6, v4, 3, v5          ; 8h + r")
e("v_lshlrev_b32 v6, 7, v6")
e(f"v_bfe_u32 v7, v{vL}, 4, 1            ; g")
e(f"v_and_b32 v8, 1, v{vL}")
e("v_lshl_add_u32 v7, v7, 1, v8          ; 2g + (cc&1)")
e(f"s_lshl_b32 s{sT2}, s{sT1}, 2")
e(f"v_add_u32 v7, s{sT2}, v7")
e(f"v_bfe_u32 v8, v{vL}, 3, 1            ; (r>>1)&1")
e("v_lshlrev_b32 v8, 2, v8")
e("v_xor_b32 v7, v7, v8")
e("v_lshl_add_u32 v6, v7, 4, v6")
e(f"v_bfe_u32 v8, v{vL}, 1, 1")
e("v_lshl_add_u32 v6, v8, 3, v6")
e(f"v_add_u32 v{vWA}, {WQ_OFF}, v6")
cm("attention LDS addresses")
e(f"v_mov_b32 v{vIDX}, 0xdddddddd")
e(f"v_bfe_u32 v5, v{vL}, 4, 1")
e(f"v_xor_b32 v{vM01}, 1, v5")
e("s_waitcnt vmcnt(0)")
stamp(1)
e("s_barrier")
def qload(ks):
    b = FB + 8*(ks % 4)
    e(f"ds_read_b64_tr_b16 {vr(b,2)}, v{vWA} offset:{ks*2048}")
    e(f"ds_read_b64_tr_b16 {vr(b+2,2)}, v{vWA} offset:{ks*2048+512}")
    e(f"ds_read_b128 {vr(b+4,4)}, v{vXA} offset:{ks*32}")
for ks in range(3): qload(ks)
for ks in range(32):
    b = FB + 8*(ks % 4)
    if ks + 3 < 32:
        qload(ks + 3); e("s_waitcnt lgkmcnt(9)")
    else:
        e(f"s_waitcnt lgkmcnt({3*(31-ks)})")
    c = "0" if ks == 0 else vr(SA, 16)
    e(f"v_mfma_f32_32x32x16_bf16 {vr(SA,16)}, {vr(b,4)}, {vr(b+4,4)}, {c}")
e("s_barrier")
e(f"s_mov_b32 s{sT0}, {hex(f2u(0.25*1.4426950408889634))}")
nop(10)
for i in range(16): e(f"v_mul_f32 v{SA+i}, s{sT0}, v{SA+i}")
for i in range(8): e(f"v_cvt_pk_bf16_f32 v{QA+i}, v{SA+2*i}, v{SA+2*i+1}")
e(f"s_mov_b32 s{sFB}, 0")
e(f"s_mov_b32 s{sBARN}, 3")
if opt['prio']: e(f"s_setprio {opt['prio']}")
stamp(2)
e("s_barrier")
stamp(3)
cm("stand-in for the row max: max over key tile 0 (checked after the loop; fallback = true max)")
e(f"v_add_u32 v{vK}, {W_OFF}, v2")
e(f"ds_read_b128 {vr(K0,4)}, v{vK}")
e("s_waitcnt lgkmcnt(0)")
e(f"v_mfma_f32_32x32x16_bf16 {vr(SA,16)}, {vr(K0,4)}, {vr(QA,4)}, 0")
e(f"v_mfma_f32_32x32x16_bf16 {vr(SB,16)}, {vr(K0,4)}, {vr(QB,4)}, 0")
nop(11)
def max16(dst, s, acc=None):
    if acc is None:
        e(f"v_max3_f32 v{dst}, v{s}, v{s+1}, v{s+2}"); i = 3
        while i + 1 < 16:
            e(f"v_max3_f32 v{dst}, v{dst}, v{s+i}, v{s+i+1}"); i += 2
        e(f"v_max_f32 v{dst}, v{dst}, v{s+15}")
    else:
        for i in range(0, 16, 2): e(f"v_max3_f32 v{dst}, v{dst}, v{s+i}, v{s+i+1}")
max16(4, SA); max16(5, SB)
lab("L_setmax")
cm("v4 / v5 = per-lane max for tiles A / B; combine the two half-waves, C = -(max + 32)")
e("v_mov_b32 v6, v4")
e("v_mov_b32 v7, v5")
e(f"v_add_u32 v{vK}, {W_OFF}, v2")
e(f"v_and_b32 v8, 15, v{vL}")
e("v_permlane32_swap_b32 v4, v6")
e("v_permlane32_swap_b32 v5, v7")
e(f"ds_read_b128 {vr(K0,4)}, v{vK}")
e(f"ds_read_b128 {vr(K1,4)}, v{vK} offset:2048")
e("v_max_f32 v4, v4, v6")
e("v_max_f32 v5, v5, v7")
e(f"v_sub_f32 v{CA}, {hex(f2u(-32.0))}, v4")
e(f"v_sub_f32 v{CB}, {hex(f2u(-32.0))}, v5")
cm("V address: rows 0..15 -> tile data; lanes 16..31 -> ones window")
e(f"v_lshrrev_b32 v9, 5, v{vL}")
e("v_lshlrev_b32 v9, 8, v9")
e("v_lshl_add_u32 v8, v8, 4, v9")
e(f"v_add_u32 v8, {W_OFF}, v8")
e(f"v_and_b32 v9, 31, v{vL}")
e("v_add_u32 v9, -20, v9")
e("v_cmp_gt_u32 vcc, 8, v9")
e(f"v_mov_b32 v9, {ONES_OFF - 1024}")
e(f"v_mov_b32 v10, {ONES_OFF - 1024 + 64}")
e("v_cndmask_b32 v9, v9, v10, vcc")
e(f"v_cmp_eq_u32 vcc, 1, v{vM01}")
for i in range(1, 16):
    e(f"v_mov_b32 v{CA+i}, v{CA}");
e(f"v_cndmask_b32 v{vV}, v9, v8, vcc")
for i in range(1, 16): e(f"v_mov_b32 v{CB+i}, v{CB}")
e(f"ds_read_b128 {vr(V0,4)}, v{vV} offset:1024")
e(f"ds_read_b128 {vr(V0+4,4)}, v{vV} offset:1536")
e("s_waitcnt lgkmcnt(2)")
e(f"v_mfma_f32_32x32x16_bf16 {vr(SA,16)}, {vr(K0,4)}, {vr(QA,4)}, {vr(CA,16)}")
for i in range(16): e(f"v_mov_b32 v{OA+i}, 0")
for i in range(16): e(f"v_mov_b32 v{OB+i}, 0")
for i in range(8): e(f"v_mov_b32 v{SB+8+i}, 0")
for i in range(4): e(f"v_mov_b32 v{V1+4+i}, 0")
e(f"s_mov_b32 s{sIT}, 0")
e("s_waitcnt lgkmcnt(0)")
e(f"s_mov_b32 s{sINC}, 8192")
def SM(o, a, b): e(f"v_smfmac_f32_32x32x32_bf16 {vr(o,16)}, {vr(a,4)}, {vr(b,8)}, v{vIDX}")
def QK(d, k, q, c): e(f"v_mfma_f32_32x32x16_bf16 {vr(d,16)}, {vr(k,4)}, {vr(q,4)}, {vr(c,16)}")
def EX(s, a, b):
    for i in range(a, b): e(f"v_exp_f32 v{s+i}, v{s+i}")
L.append(".p2align 6")
lab("L_att_loop")
for u in range(4):
    kc, kn = (K0, K1) if u % 2 == 0 else (K1, K0)
    vc, vp = (V0, V1) if u % 2 == 0 else (V1, V0)
    voffs = ((u + 1) % 4) * 2048 + 1024
    koffs = ((u + 2) % 4) * 2048
    EX(SA, 0, 2)
    SM(OB, vp + 4, SB + 8)
    e("s_waitcnt lgkmcnt(1)")
    EX(SA, 2, 5)
    QK(SB, kc, QB, CB)
    if u == 3: pass
    e(f"ds_read_b128 {vr(vp,4)}, v{vV} offset:{voffs}")
    EX(SA, 5, 10)
    SM(OA, vc, SA)
    e(f"ds_read_b128 {vr(vp+4,4)}, v{vV} offset:{voffs+512}")
    EX(SA, 10, 16)
    EX(SB, 0, 2)
    SM(OA, vc + 4, SA + 8)
    e("s_waitcnt lgkmcnt(2)")
    if u == 1:
        cm("next group of 4 key tiles: address step, and (first 3 trips) the barrier that publishes it")
        e(f"s_cmp_eq_u32 s{sIT}, 1")
        e(f"s_cselect_b32 s{sINC}, {hex((-(W_OFF + 8192)) & 0xffffffff)}, 8192" if False else f"s_cselect_b32 s{sINC}, s{sT2}, s{sT3}")
        e(f"s_cmp_eq_u32 s{sIT}, 15")
        e(f"s_cselect_b32 s{sINC}, 0, s{sINC}")
    EX(SB, 2, 5)
    QK(SA, kn, QA, CA)
    e(f"ds_read_b128 {vr(kc,4)}, v{vK} offset:{koffs}")
    EX(SB, 5, 10)
    SM(OB, vc, SB)
    if u == 1:
        e(f"s_cmp_lt_u32 s{sIT}, s{sBARN}")
        e("s_cbranch_scc0 L_nobar")
        e("s_barrier")
        lab("L_nobar")
        e(f"v_add_u32 v{vK}, s{sINC}, v{vK}")
    if u == 2:
        e(f"v_mad_i32_i24 v{vV}, s{sINC}, v{vM01}, v{vV}")
    if u == 3:
        e(f"s_add_u32 s{sIT}, s{sIT}, 1")
        e(f"s_cmp_lt_u32 s{sIT}, 16")
    EX(SB, 10, 16)
e("s_cbranch_scc1 L_att_loop")
idx = L.index(f"    s_mov_b32 s{sINC}, 8192")
L[idx] = f"    s_mov_b32 s{sT2}, {hex((-(W_OFF + 8192)) & 0xffffffff)}\n    s_mov_b32 s{sT3}, 8192"
nop(2)
SM(OB, V1 + 4, SB + 8)
e("s_waitcnt lgkmcnt(0)")
nop(12)
cm("run-time check of the stand-in: l must be finite and <= 2^100, else redo with the true row max")
e(f"s_mov_b32 s{sT0}, {hex(f2u(2.0**100) if not opt['force_fb'] else f2u(2.0**-20))}")
e(f"v_cmp_nle_f32 vcc, v{OA+8}, s{sT0}" .replace("v_cmp_nle_f32 vcc", "v_cmp_nle_f32_e64 vcc"))
e(f"v_cmp_nle_f32_e64 {sr(sX,2)}, v{OB+8}, s{sT0}")
e("s_nop 1")
e(f"s_or_b64 vcc, vcc, {sr(sX,2)}")
e("s_cmp_eq_u64 vcc, 0")
e("s_cbranch_scc1 L_att_done")
e(f"s_cmp_eq_u32 s{sFB}, 0")
e("s_cbranch_scc0 L_att_done")
cm("fallback: exact row max over all 64 key tiles, then repeat the main loop")
e(f"s_mov_b32 s{sFB}, 1")
e(f"s_mov_b32 s{sBARN}, 0")
e(f"v_mov_b32 v4, 0xff800000")
e(f"v_mov_b32 v5, 0xff800000")
e(f"v_add_u32 v{vK}, {W_OFF}, v2")
e(f"s_mov_b32 s{sIT}, 0")
lab("L_fb_loop")
e(f"ds_read_b128 {vr(K0,4)}, v{vK}")
e("s_waitcnt lgkmcnt(0)")
e(f"v_mfma_f32_32x32x16_bf16 {vr(SA,16)}, {vr(K0,4)}, {vr(QA,4)}, 0")
e(f"v_mfma_f32_32x32x16_bf16 {vr(SB,16)}, {vr(K0,4)}, {vr(QB,4)}, 0")
e(f"s_cmp_eq_u32 s{sIT}, 7")
e(f"s_cselect_b32 s{sINC}, {hex((-(W_OFF + 7*2048)) & 0xffffffff)}, 2048".replace(", 2048", f", s{sT1}"))
L.insert(len(L)-2, f"    s_mov_b32 s{sT1}, 2048")
e(f"v_add_u32 v{vK}, s{sINC}, v{vK}")
nop(10)
max16(4, SA, 1); max16(5, SB, 1)
e(f"s_add_u32 s{sIT}, s{sIT}, 1")
e(f"s_cmp_lt_u32 s{sIT}, 64")
e("s_cbranch_scc1 L_fb_loop")
e("s_branch L_setmax")
lab("L_att_done")
e("s_barrier")
stamp(4)
cm("normalise, publish O fragments")
e(f"v_rcp_f32 v4, v{OA+8}")
e(f"v_rcp_f32 v5, v{OB+8}")
e(f"v_mov_b32 v6, {MISC+16}")
e(f"ds_read_b64 v[8:9], v6")
e(f"s_and_b32 s{sT0}, s{sW}, 1")
e(f"s_lshl_b32 s{sT1}, s{sTB}, 1")
e(f"s_add_u32 s{sT0}, s{sT0}, s{sT1}")
e(f"s_lshl_b32 s{sT0}, s{sT0}, 5          ; (tb*2+th)*32")
e(f"s_lshl_b32 s{sT1}, s{sHG}, 2")
e(f"s_add_u32 s{sT0}, s{sT0}, s{sT1}")
e(f"s_and_b32 s{sT1}, s{sW}, 2")
e(f"s_add_u32 s{sT0}, s{sT0}, s{sT1}")
e(f"s_lshl_b32 s{sT0}, s{sT0}, 10")
e(f"s_add_u32 s{sT0}, s{sT0}, {WS_O}")
for i in range(8): e(f"v_mul_f32 v{OA+i}, v4, v{OA+i}")
for i in range(4): e(f"v_cvt_pk_bf16_f32 v{SA+i}, v{OA+2*i}, v{OA+2*i+1}")
e(f"buffer_store_dwordx4 {vr(SA,4)}, v2, {sr(R_WS,4)}, s{sT0} offen sc1")
for i in range(8): e(f"v_mul_f32 v{OB+i}, v5, v{OB+i}")
for i in range(4): e(f"v_cvt_pk_bf16_f32 v{SA+4+i}, v{OB+2*i}, v{OB+2*i+1}")
e(f"buffer_store_dwordx4 {vr(SA+4,4)}, v2, {sr(R_WS,4)}, s{sT0} offen offset:1024 sc1")
e("s_waitcnt lgkmcnt(0)")
e(f"v_readfirstlane_b32 s{sNON}, v8")
e(f"v_readfirstlane_b32 s{sNON+1}, v9")
e(f"s_lshl_b32 s{sT1}, s{sTB}, 3")
e(f"s_add_u32 s{sT1}, s{sT1}, s{sHG}")
e(f"s_lshl_b32 s{sT1}, s{sT1}, 7")
e(f"s_add_u32 s{sT1}, s{sT1}, {FL_O}")
e("s_waitcnt vmcnt(0)")
signal("L_sigO", 8, 3, sT1, 4)
stamp(5)
e("s_endpgm")

lab("L_aux")
srd(R_SRE, P_SRE, 8388608)
srd(R_SIM, P_SIM, 8388608)
srd(R_XB, P_XB, 2097152)
srd(R_WO, P_WO, 524288)
srd(R_OUT, P_OUT, 4194304)
BUF = 16
BP = 144
FR = 176
ACC = 192
D1, D2 = 208, 224
vT = 240
e("s_waitcnt vmcnt(0)")
stamp(1)
e("s_barrier                             ; B1")
cm("K / V projection: workgroups hg<4, aux waves 0,1 (16 tokens each)")
e(f"s_cmp_lt_u32 s{sHG}, 4")
e("s_cbranch_scc0 L_noprod")
e(f"s_cmp_lt_u32 s{sA}, 2")
e("s_cbranch_scc0 L_noprod")
e(f"v_and_b32 v3, 15, v{vL}")
e(f"v_lshrrev_b32 v4, 4, v{vL}           ; q")
e(f"s_lshl_b32 s{sT0}, s{sTHP}, 5")
e(f"s_lshl_b32 s{sT1}, s{sA}, 4")
e(f"s_add_u32 s{sT0}, s{sT0}, s{sT1}")
e(f"v_add_u32 v5, s{sT0}, v3")
e(f"v_mul_u32_u24 v5, {XROW}, v5")
e("v_lshl_add_u32 v5, v4, 4, v5")
e(f"v_bfe_u32 v6, v{vL}, 2, 2            ; r")
e("v_lshl_add_u32 v6, v4, 3, v6")
e("v_lshlrev_b32 v6, 5, v6")
e(f"v_add_u32 v6, {W_OFF}, v6")
e(f"v_and_b32 v7, 3, v{vL}               ; cc")
e(f"s_lshl_b32 s{sT2}, s{sTB}, 1")
e(f"s_add_u32 s{sT2}, s{sT2}, s{sTHP}")
e(f"s_lshl_b32 s{sT3}, s{sT2}, 11")
def kvchain(isV):
    for ks in range(16):
        b = BUF + 8*ks
        e(f"ds_read_b64_tr_b16 {vr(b,2)}, v6 offset:{ks*1024}")
        e(f"ds_read_b64_tr_b16 {vr(b+2,2)}, v6 offset:{ks*1024+128}")
        e(f"ds_read_b128 {vr(b+4,4)}, v5 offset:{ks*64}")
        if ks >= 3:
            k2 = ks - 3; b2 = BUF + 8*k2
            e("s_waitcnt lgkmcnt(9)")
            a, bb = (b2+4, b2) if isV else (b2, b2+4)
            e(f"v_mfma_f32_16x16x32_bf16 {vr(ACC,4)}, {vr(a,4)}, {vr(bb,4)}, {'0' if k2==0 else vr(ACC,4)}")
    for k2 in range(13, 16):
        b2 = BUF + 8*k2
        e(f"s_waitcnt lgkmcnt({3*(15-k2)})")
        a, bb = (b2+4, b2) if isV else (b2, b2+4)
        e(f"v_mfma_f32_16x16x32_bf16 {vr(ACC,4)}, {vr(a,4)}, {vr(bb,4)}, {vr(ACC,4)}")
e(f"s_bitcmp1_b32 s{sHG}, 0")
e("s_cbranch_scc1 L_prodV")
e("v_lshl_add_u32 v6, v7, 3, v6")
kvchain(False)
cm("K: (q>>1)*512 + (16b+n)*16 + (q&1)*8")
e("v_lshrrev_b32 v8, 1, v4")
e("v_lshlrev_b32 v8, 9, v8")
e(f"s_lshl_b32 s{sT1}, s{sA}, 8")
e("s_branch L_prodS")
lab("L_prodV")
e("v_and_b32 v8, 1, v7")
e("v_lshl_add_u32 v6, v8, 4, v6")
e("v_lshrrev_b32 v8, 1, v7")
e("v_lshl_add_u32 v6, v8, 3, v6")
kvchain(True)
cm("V: 1024 + b*512 + (q>>1)*256 + n*16 + (q&1)*8")
e("v_lshrrev_b32 v8, 1, v4")
e("v_lshlrev_b32 v8, 8, v8")
e(f"s_lshl_b32 s{sT1}, s{sA}, 9")
e(f"s_add_u32 s{sT1}, s{sT1}, 1024")
lab("L_prodS")
e("v_lshl_add_u32 v8, v3, 4, v8")
e("v_and_b32 v9, 1, v4")
e("v_lshl_add_u32 v8, v9, 3, v8")
e(f"s_add_u32 s{sT3}, s{sT3}, s{sT1}")
nop(4)
e(f"v_cvt_pk_bf16_f32 v10, v{ACC}, v{ACC+1}")
e(f"v_cvt_pk_bf16_f32 v11, v{ACC+2}, v{ACC+3}")
e(f"buffer_store_dwordx2 v[10:11], v8, {sr(R_WS,4)}, s{sT3} offen sc1")
lab("L_noprod")
cm("fetch this launch's hand-off tag (bounded spin)")
e(f"s_mov_b32 s{sSPIN}, {SPIN}")
e("v_mov_b32 v12, 0")
lab("L_tag")
e(f"buffer_load_dwordx2 v[14:15], v12, {sr(R_DBG,4)}, 0 offen sc1")
e(f"s_sub_u32 s{sSPIN}, s{sSPIN}, 1")
e(f"s_cmp_eq_u32 s{sSPIN}, 0")
e("s_cbranch_scc1 L_tag_done")
e("s_waitcnt vmcnt(0)")
e("v_cmp_eq_u32 vcc, 0, v14")
e("s_nop 0")
e("s_cmp_eq_u64 vcc, 0")
e("s_cbranch_scc0 L_tag")
lab("L_tag_done")
e("s_waitcnt vmcnt(0)")
e(f"v_readfirstlane_b32 s{sNON}, v14")
e(f"v_readfirstlane_b32 s{sNON+1}, v15")
e(f"v_mov_b32 v12, {MISC+16}")
e("ds_write_b64 v12, v[14:15]")
e(f"s_cmp_lt_u32 s{sHG}, 4")
e("s_cbranch_scc0 L_noflag")
e(f"s_cmp_lt_u32 s{sA}, 2")
e("s_cbranch_scc0 L_noflag")
e(f"s_lshl_b32 s{sT1}, s{sT2}, 1")
e(f"s_and_b32 s{sT0}, s{sHG}, 1")
e(f"s_add_u32 s{sT1}, s{sT1}, s{sT0}")
e(f"s_lshl_b32 s{sT1}, s{sT1}, 7")
e(f"s_add_u32 s{sT1}, s{sT1}, {FL_KV}")
signal("L_sigKV", 0, 1, sT1, 4)
lab("L_noflag")
stamp(2)
cm("constant operands of the spectral part: rows of the sequence DFT matrices")
sT1S, sEB, sTT, sS2, sCB = 98, 99, 100, 101, 79
e(f"s_and_b32 s{sT0}, s{sJ}, 3")
e(f"s_lshl_b32 s{sT1S}, s{sXCD}, 2")
e(f"s_add_u32 s{sT1S}, s{sT1S}, s{sT0}       ; t1s")
e(f"s_lshr_b32 s{sT0}, s{sJ}, 2")
e(f"s_lshl_b32 s{sT0}, s{sT0}, 1")
e(f"s_lshr_b32 s{sEB}, s{sA}, 1")
e(f"s_add_u32 s{sEB}, s{sEB}, s{sT0}         ; eb")
e(f"s_and_b32 s{sTT}, s{sA}, 1               ; tt")
e(f"s_and_b32 s{sT0}, s{sJ}, 7")
e(f"s_lshl_b32 s{sS2}, s{sXCD}, 3")
e(f"s_add_u32 s{sS2}, s{sS2}, s{sT0}         ; s2")
e(f"s_lshr_b32 s{sT0}, s{sJ}, 3")
e(f"s_lshl_b32 s{sCB}, s{sT0}, 2")
e(f"s_add_u32 s{sCB}, s{sCB}, s{sA}          ; cb")
e(f"v_and_b32 v3, 31, v{vL}                ; n")
e(f"v_lshrrev_b32 v4, 5, v{vL}             ; h")
e(f"s_lshl_b32 s{sT0}, s{sTT}, 5")
e(f"v_add_u32 v5, s{sT0}, v3")
e("v_lshlrev_b32 v5, 5, v5")
e(f"v_add_u32 v13, s{sT1S}, v5")
e("v_lshlrev_b32 v5, 12, v13")
e("v_lshl_add_u32 v5, v4, 6, v5")
for i in range(4): e(f"buffer_load_dwordx4 {vr(BUF+4*i,4)}, v5, {sr(R_SRE,4)}, 0 offen offset:{16*i}")
for i in range(4): e(f"buffer_load_dwordx4 {vr(BUF+16+4*i,4)}, v5, {sr(R_SIM,4)}, 0 offen offset:{16*i}")
e("v_lshlrev_b32 v6, 18, v3")
e("v_lshl_add_u32 v6, v4, 4, v6")
for kb in range(2): e(f"buffer_load_dwordx4 {vr(FR+4*kb,4)}, v6, {sr(R_SRE,4)}, 0 offen offset:{32*kb}")
for kb in range(2): e(f"buffer_load_dwordx4 {vr(FR+8+4*kb,4)}, v6, {sr(R_SIM,4)}, 0 offen offset:{32*kb}")
e("s_waitcnt lgkmcnt(0)")
e("s_barrier                             ; B2")
cm("wait for the K/V tiles a, a+4, ... (32 flags)")
e(f"v_lshrrev_b32 v5, 1, v3")
e("v_lshlrev_b32 v5, 3, v5               ; 2*4*(n>>1)")
e(f"v_and_b32 v6, 1, v3")
e("v_add_u32 v5, v5, v6")
e("v_lshlrev_b32 v5, 7, v5")
e(f"s_lshl_b32 s{sT0}, s{sA}, 8")
e(f"s_add_u32 s{sT0}, s{sT0}, {FL_KV}")
poll("L_pollKV", 1, 5, vT, [sT0])
stamp(3)
e(f"s_lshl_b32 s{sT2}, s{sA}, 11")
e(f"s_add_u32 s{sT1}, s{sT2}, {W_OFF}")
def kvdma():
    dma(2, R_WS, sT2, sT1, "sc1 ")
    e(f"buffer_load_dwordx4 v2, {sr(R_WS,4)}, s{sT2} offen offset:1024 sc1 lds")
kvdma()
e(f"s_add_u32 s{sT1}, s{sT1}, 8192")
e(f"s_add_u32 s{sT2}, s{sT2}, 8192")
kvdma()
e("s_barrier                             ; B3")
e(f"s_lshl_b32 s{sT1}, s{sA}, 11")
for g in range(2, 16):
    e(f"s_add_u32 s{sT2}, s{sT2}, 8192")
    kvdma()
    if g < 15: e(f"s_add_u32 s{sT1}, s{sT1}, 8192")
e(f"s_mov_b32 s{sT0}, 0x05040100")
e(f"s_mov_b32 s{sT3}, 0x07060302")
e(f"s_waitcnt vmcnt(30)")
e("s_barrier                             ; BA")
for i in range(16):
    e(f"v_perm_b32 v{BP+2*i}, v{BUF+16+i}, v{BUF+i}, s{sT0}")
    e(f"v_perm_b32 v{BP+2*i+1}, v{BUF+16+i}, v{BUF+i}, s{sT3}")
cm("B1 operand addresses: x_B rows 64*s1(m)+s2, hidden-DFT rows per column type")
def bitswap23(dst, src, t):
    e(f"v_and_b32 v{dst}, 0x13, v{src}")
    e(f"v_bfe_u32 v{t}, v{src}, 2, 1")
    e(f"v_lshl_add_u32 v{dst}, v{t}, 3, v{dst}")
    e(f"v_bfe_u32 v{t}, v{src}, 3, 1")
    e(f"v_lshl_add_u32 v{dst}, v{t}, 2, v{dst}")
bitswap23(5, 3, 6)
e("v_lshlrev_b32 v7, 16, v5")
e("v_lshl_add_u32 v7, v4, 4, v7")
e(f"s_lshl_b32 s{sT4}, s{sS2}, 10")
e("v_and_b32 v8, 15, v5                    ; e local")
e(f"s_lshl_b32 s{sT0}, s{sCB}, 4")
e(f"v_add_u32 v8, s{sT0}, v8               ; e")
e("v_cmp_gt_u32 vcc, 16, v5")
e("v_lshl_add_u32 v9, v8, 4, v5")
e(f"v_cmp_eq_u32 {sr(sX,2)}, 16, v9")
e("v_mov_b32 v9, 256")
e("s_nop 0")
e(f"v_cndmask_b32 v8, v8, v9, {sr(sX,2)}")
e(f"s_or_b64 vcc, vcc, {sr(sX,2)}")
e(f"v_mov_b32 v10, s{P_HIM}")
e(f"v_mov_b32 v11, s{P_HIM+1}")
e(f"v_mov_b32 v9, s{P_HRE}")
e("v_cndmask_b32 v10, v10, v9, vcc")
e(f"v_mov_b32 v9, s{P_HRE+1}")
e("v_cndmask_b32 v11, v11, v9, vcc")
e("v_lshlrev_b32 v8, 10, v8")
e("v_lshl_add_u32 v8, v4, 4, v8")
e("v_add_co_u32 v10, vcc, v10, v8")
e("s_nop 1")
e("v_addc_co_u32 v11, vcc, 0, v11, vcc")
def b1load(ks):
    b = BUF + 8*(ks % 16)
    e(f"buffer_load_dwordx4 {vr(b,4)}, v7, {sr(R_XB,4)}, s{sT4} offen offset:{32*ks}")
    e(f"global_load_dwordx4 {vr(b+4,4)}, v[10:11], off offset:{32*ks}")
e("s_waitcnt vmcnt(28)")
e("s_barrier                             ; BB")
for ks in range(8): b1load(ks)
e("s_waitcnt vmcnt(42)")
e("s_barrier                             ; BC")
for ks in range(8, 16): b1load(ks)
e("s_waitcnt vmcnt(32)")
e("s_barrier                             ; BD")
stamp(4)
for ks in range(32):
    b = BUF + 8*(ks % 16)
    n = 30 if ks < 16 else 2*(31-ks)
    e(f"s_waitcnt vmcnt({n})")
    e(f"v_mfma_f32_32x32x16_bf16 {vr(ACC,16)}, {vr(b,4)}, {vr(b+4,4)}, {'0' if ks==0 else vr(ACC,16)}")
    if ks + 16 < 32: b1load(ks + 16)
cm("H address: (t1*64 + s2)*HROW + (16cb + 8h)*4")
e(f"v_mul_u32_u24 v5, {64*HROW}, v3")
e("v_lshl_add_u32 v5, v4, 5, v5")
e(f"s_mul_i32 s{sT0}, s{sS2}, {HROW}")
e(f"s_lshl_b32 s{sT1}, s{sCB}, 6")
e(f"s_add_u32 s{sT0}, s{sT0}, s{sT1}")
e(f"s_add_u32 s{sT0}, s{sT0}, {WS_H}")
nop(6)
for i in range(8): e(f"v_cvt_pk_bf16_f32 v{vT+i}, v{ACC+2*i}, v{ACC+2*i+1}")
nop(2)
e(f"v_mfma_f32_32x32x16_bf16 {vr(D1,16)}, {vr(vT,4)}, {vr(FR,4)}, 0")
e(f"v_mfma_f32_32x32x16_bf16 {vr(D2,16)}, {vr(vT,4)}, {vr(FR+8,4)}, 0")
e(f"v_mfma_f32_32x32x16_bf16 {vr(D1,16)}, {vr(vT+4,4)}, {vr(FR+4,4)}, {vr(D1,16)}")
e(f"v_mfma_f32_32x32x16_bf16 {vr(D2,16)}, {vr(vT+4,4)}, {vr(FR+12,4)}, {vr(D2,16)}")
nop(12)
for r in range(8):
    e(f"v_sub_f32 v{ACC+r}, v{D1+r}, v{D2+8+r}")
    e(f"v_add_f32 v{ACC+8+r}, -v{D2+r}, -v{D1+8+r}")
e(f"s_cmp_eq_u32 s{sCB}, 0")
e("s_cbranch_scc0 L_nospecial")
cm("columns e = 0 and e = 256 (both purely real rows): lanes 0..31, register 0")
e("s_mov_b32 exec_hi, 0")
e(f"v_mov_b32 v{ACC}, v{D1}")
e(f"v_sub_f32 v{ACC+8}, 0, v{D2}")
e(f"v_sub_f32 v6, 0, v{D2+8}")
e(f"v_cvt_pk_bf16_f32 v6, v{D1+8}, v6")
e(f"buffer_store_dword v6, v5, {sr(R_WS,4)}, s{sT0} offen offset:1024 sc1")
e("s_mov_b64 exec, -1")
lab("L_nospecial")
for r in range(8): e(f"v_cvt_pk_bf16_f32 v{vT+r}, v{ACC+r}, v{ACC+8+r}")
e(f"buffer_store_dwordx4 {vr(vT,4)}, v5, {sr(R_WS,4)}, s{sT0} offen sc1")
e(f"buffer_store_dwordx4 {vr(vT+4,4)}, v5, {sr(R_WS,4)}, s{sT0} offen offset:16 sc1")
cm("wo slice (512 x 32 columns) into the buffer registers, natural layout")
e(f"v_lshrrev_b32 v5, 2, v{vL}")
e(f"v_and_b32 v6, 3, v{vL}")
e("v_lshlrev_b32 v5, 10, v5")
e("v_lshl_add_u32 v5, v6, 4, v5")
e(f"s_lshl_b32 s{sT0}, s{sHG}, 7")
e(f"s_lshr_b32 s{sT1}, s{sA}, 1")
e(f"s_lshl_b32 s{sT1}, s{sT1}, 6")
e(f"s_add_u32 s{sT0}, s{sT0}, s{sT1}")
for i in range(32):
    e(f"buffer_load_dwordx4 {vr(BUF+4*i,4)}, v5, {sr(R_WO,4)}, s{sT0} offen")
    if i < 31: e(f"s_add_u32 s{sT0}, s{sT0}, 16384")
e(f"s_lshl_b32 s{sT1}, s2, 7")
e(f"s_add_u32 s{sT1}, s{sT1}, {FL_H}")
e("s_waitcnt vmcnt(32)")
signal("L_sigH", 4, 3, sT1, 8)
stamp(5)
cm("transpose wo through the wave's private 4 KB of LDS")
e(f"s_lshl_b32 s{sT0}, s{sA}, 12")
e(f"s_add_u32 s{sT0}, s{sT0}, {WO_STG}")
e(f"v_add_u32 v5, s{sT0}, v2")
e(f"v_bfe_u32 v6, v{vL}, 2, 2")
e("v_lshl_add_u32 v6, v4, 3, v6            ; 8h + r")
e("v_lshlrev_b32 v6, 6, v6")
e(f"v_and_b32 v7, 1, v{vL}")
e("v_lshl_add_u32 v6, v7, 5, v6")
e(f"v_bfe_u32 v7, v{vL}, 4, 1")
e("v_lshl_add_u32 v6, v7, 4, v6")
e(f"v_bfe_u32 v7, v{vL}, 1, 1")
e("v_lshl_add_u32 v6, v7, 3, v6")
e(f"v_add_u32 v6, s{sT0}, v6")
for R in range(8):
    e(f"s_waitcnt vmcnt({max(0, 28 - 4*R) + (1 if False else 0)})" if R < 7 else "s_waitcnt vmcnt(0)")
    for i in range(4): e(f"ds_write_b128 v5, {vr(BUF+16*R+4*i,4)} offset:{1024*i}")
    e("s_waitcnt lgkmcnt(0)")
    for i in range(4):
        e(f"ds_read_b64_tr_b16 {vr(BUF+16*R+4*i,2)}, v6 offset:{1024*i}")
        e(f"ds_read_b64_tr_b16 {vr(BUF+16*R+4*i+2,2)}, v6 offset:{1024*i+256}")
    e("s_waitcnt lgkmcnt(0)")
stamp(6)
cm("B2: wait for every workgroup's H rows")
e(f"v_lshlrev_b32 v5, 7, v{vL}")
for i in range(4): e(f"s_mov_b32 s{sT0+i}, {FL_H + i*8192}")
poll("L_pollH", 4, 5, vT, [sT0, sT0+1, sT0+2, sT0+3])
stamp(7)
cm("A rows: e(m) = 32eb + col(m) (eb<8) or 512 - that; col(m) = 16*b2 + 4*(m>>3) + (m&3)")
e("v_and_b32 v5, 3, v3")
e("v_bfe_u32 v6, v3, 2, 1")
e("v_lshl_add_u32 v5, v6, 4, v5")
e("v_lshrrev_b32 v6, 3, v3")
e("v_lshl_add_u32 v5, v6, 2, v5")
e(f"s_lshl_b32 s{sT0}, s{sEB}, 5")
e(f"v_add_u32 v5, s{sT0}, v5")
e("v_sub_u32 v6, 0x200, v5")
e("v_sub_u32 v7, 0x800, v13")
e("v_and_b32 v7, 0x7ff, v7")
e(f"s_cmp_lt_u32 s{sEB}, 8")
e("s_cselect_b64 vcc, 0, -1")
e("v_cndmask_b32 v5, v5, v6, vcc")
e("v_cndmask_b32 v7, v13, v7, vcc")
e(f"v_mul_u32_u24 v6, {32*HROW}, v4")
e("v_lshl_add_u32 v5, v5, 2, v6")
e(f"s_mul_i32 s{sT0}, s{sT1S}, {64*HROW}")
e(f"s_add_u32 s{sT0}, s{sT0}, {WS_H}")
AF = 208
for kb in range(8):
    for w in range(4): e(f"buffer_load_dword v{AF+4*kb+w}, v5, {sr(R_WS,4)}, s{sT0} offen offset:{w*HROW} sc1")
    if kb < 7: e(f"s_add_u32 s{sT0}, s{sT0}, {4*HROW}")
e("v_lshlrev_b32 v7, 11, v7")
e("v_lshl_add_u32 v7, v4, 5, v7")
e(f"s_lshl_b32 s{sT0}, s{sEB}, 6")
e(f"s_add_u32 s{sT0}, s{sT0}, 1024")
for kb in range(8):
    e(f"s_waitcnt vmcnt({28-4*kb})")
    e(f"v_mfma_f32_32x32x16_bf16 {vr(ACC,16)}, {vr(AF+4*kb,4)}, {vr(BP+4*kb,4)}, {'0' if kb==0 else vr(ACC,16)}")
nop(12)
for i in range(8): e(f"v_cvt_pk_bf16_f32 v{vT+i}, v{ACC+2*i}, v{ACC+2*i+1}")
e(f"buffer_store_dwordx4 {vr(vT,4)}, v7, {sr(R_OUT,4)}, s{sT0} offen")
e(f"buffer_store_dwordx4 {vr(vT+4,4)}, v7, {sr(R_OUT,4)}, s{sT0} offen offset:16")
cm("tail: output projection")
e(f"v_and_b32 v5, 1, v{vL}")
e("v_lshlrev_b32 v5, 7, v5")
e(f"s_lshl_b32 s{sT0}, s{sTB}, 3")
e(f"s_lshl_b32 s{sT1}, s{sA}, 1")
e(f"s_add_u32 s{sT0}, s{sT0}, s{sT1}")
e(f"s_lshl_b32 s{sT0}, s{sT0}, 7")
e(f"s_add_u32 s{sT0}, s{sT0}, {FL_O}")
e(f"s_lshl_b32 s{sT2}, s{sTB}, 16")
e(f"s_lshl_b32 s{sT1}, s{sA}, 13")
e(f"s_add_u32 s{sT2}, s{sT2}, s{sT1}")
e(f"s_add_u32 s{sT2}, s{sT2}, {WS_O}")
e(f"s_and_b32 s{sT3}, s{sA}, 1")
e(f"s_lshl_b32 s{sT3}, s{sT3}, 15")
e(f"v_add_u32 v6, s{sT3}, v2")
e(f"s_lshl_b32 s{sT3}, s{sTB}, 1")
e(f"s_and_b32 s{sT4}, s{sA}, 1")
e(f"s_add_u32 s{sT3}, s{sT3}, s{sT4}")
e(f"s_lshl_b32 s{sT3}, s{sT3}, 5")
e(f"v_add_u32 v7, s{sT3}, v3")
e("v_lshlrev_b32 v7, 11, v7")
e("v_lshl_add_u32 v7, v4, 5, v7")
stamp(8)
e("s_barrier                             ; B7")
stamp(9)
poll("L_pollO", 1, 5, vT+8, [sT0])
stamp(10)
for th in range(2):
    for q in range(2):
        e(f"s_mov_b32 m0, s{sT1}")
        e("s_nop 0")
        for i in range(4): e(f"buffer_load_dwordx4 v2, {sr(R_WS,4)}, s{sT2} offen offset:{1024*i} sc1 lds")
        d = 4096 if q == 0 else 32768 - 4096
        if not (th == 1 and q == 1):
            e(f"s_add_u32 s{sT1}, s{sT1}, {d}")
            e(f"s_add_u32 s{sT2}, s{sT2}, {d}")
e(f"s_lshl_b32 s{sT0}, s{sHG}, 7")
e(f"s_lshr_b32 s{sT1}, s{sA}, 1")
e(f"s_lshl_b32 s{sT1}, s{sT1}, 6")
e(f"s_add_u32 s{sT0}, s{sT0}, s{sT1}")
e("s_waitcnt vmcnt(0)")
stamp(11)
e("s_barrier                             ; B8")
OF = 144
for ks in range(7): e(f"ds_read_b128 {vr(OF+4*(ks%8),4)}, v6 offset:{1024*ks}")
for ks in range(32):
    if ks + 7 < 32:
        e(f"ds_read_b128 {vr(OF+4*((ks+7)%8),4)}, v6 offset:{1024*(ks+7)}")
        e("s_waitcnt lgkmcnt(7)")
    else:
        e(f"s_waitcnt lgkmcnt({31-ks})")
    e(f"v_mfma_f32_32x32x16_bf16 {vr(ACC,16)}, {vr(BUF+4*ks,4)}, {vr(OF+4*(ks%8),4)}, {'0' if ks==0 else vr(ACC,16)}")
nop(12)
for i in range(8): e(f"v_cvt_pk_bf16_f32 v{vT+i}, v{ACC+2*i}, v{ACC+2*i+1}")
e(f"buffer_store_dwordx4 {vr(vT,4)}, v7, {sr(R_OUT,4)}, s{sT0} offen")
e(f"buffer_store_dwordx4 {vr(vT+4,4)}, v7, {sr(R_OUT,4)}, s{sT0} offen offset:16")
stamp(12)
lab("L_end")
e("s_endpgm")
L.append(f""".section .rodata,"a"
.p2align 6
.amdhsa_kernel {NAME}_kernel
  .amdhsa_next_free_vgpr 256
  .amdhsa_next_free_sgpr 102
  .amdhsa_accum_offset 256
  .amdhsa_group_segment_fixed_size 0
  .amdhsa_kernarg_size 104
  .amdhsa_user_sgpr_count 2
  .amdhsa_user_sgpr_kernarg_segment_ptr 1
  .amdhsa_system_sgpr_workgroup_id_x 1
.end_amdhsa_kernel""")
txt = "\n".join(L) + "\n"
open(sys.argv[1], "w").write(txt)
import hazcheck
print(hazcheck.check(txt), "hazards;", len(txt), "bytes")
```

```python
import sys, struct
NAME = "concat_heads__grouped_kv_mqa__spectral_fnet__prompt"
opt = dict(stamps=0, stop=99, prio=1, force_fb=0)
for a in sys.argv[2:]:
    k, v = a.split('='); opt[k] = int(v)

L = []
def e(s=""): L.append("    " + s)
def lab(s): L.append(s + ":")
def cm(s): L.append("    ; " + s)
def vr(a, n): return f"v[{a}:{a+n-1}]" if n > 1 else f"v{a}"
def sr(a, n): return f"s[{a}:{a+n-1}]" if n > 1 else f"s{a}"
def nop(n):
    while n > 0:
        k = min(n, 16); e(f"s_nop {k-1}"); n -= k
def f2u(x): return struct.unpack('<I', struct.pack('<f', x))[0]

X_OFF, XROW = 0, 1040
WQ_OFF = 66560
W_OFF = 132096
ONES_OFF = 148480
MISC = 156672
WO_STG = 114688
LDS_BYTES = 156800
WS_KV, WS_O, WS_H, WS_FL = 0, 0x40000, 0x240000, 0x480000
FL_KV, FL_H, FL_O = WS_FL, WS_FL + 0x4000, WS_FL + 0xC000
WS_STAMP = 0x4A0000
WS_SIZE = 0x540000
HROW = 1056
SPIN = 400000
P_XA, P_WQ, P_WK, P_WV, P_WO, P_XB, P_SRE, P_SIM = 4, 6, 8, 10, 12, 14, 16, 18
P_HRE, P_HIM, P_OUT, P_DBG, P_WS = 20, 22, 24, 26, 28
R_XA, R_WQ, R_W, R_WS, R_WO, R_XB, R_SRE, R_SIM, R_OUT, R_DBG = 32, 36, 40, 44, 48, 52, 56, 60, 64, 68
sW, sXCD, sJ, sTB, sHG, sTHP, sA = 72, 73, 74, 75, 76, 77, 78
sT0, sT1, sT2, sT3, sT4 = 80, 81, 82, 83, 84
sNON = 86
sIT, sINC, sFB, sSPIN = 88, 89, 90, 91
sX = 92
sST = 94
sBARN = 96

def srd(r, p, size):
    e(f"s_mov_b32 s{r}, s{p}")
    e(f"s_and_b32 s{r+1}, s{p+1}, 0xffff")
    e(f"s_mov_b32 s{r+2}, {hex(size)}")
    e(f"s_mov_b32 s{r+3}, 0x20000")

vL = 1
def stamp(idx):
    if not opt['stamps']: return
    e(f"s_memrealtime {sr(sST,2)}")
    e(f"s_memtime {sr(sX,2)}")
    e("s_waitcnt lgkmcnt(0)")
    e(f"v_writelane_b32 v254, s{sST}, {idx}")
    e(f"v_writelane_b32 v255, s{sX}, {idx}")
def stamp_dump():
    if not opt['stamps']: return
    e(f"s_lshl_b32 s{sST}, s2, 3")
    e(f"s_add_u32 s{sST}, s{sST}, s{sW}")
    e(f"s_lshl_b32 s{sST}, s{sST}, 8")
    e(f"s_add_u32 s{sST}, s{sST}, {WS_STAMP}")
    e(f"v_lshlrev_b32 v253, 3, v{vL}")
    e("s_mov_b32 exec_hi, 0")
    e(f"buffer_store_dwordx2 v[254:255], v253, {sr(R_WS,4)}, s{sST} offen")
STAMP_VM = 1 if opt['stamps'] else 0

def dma(voff, srdr, soff, ldsaddr_s, extra=""):
    e(f"s_mov_b32 m0, s{ldsaddr_s}")
    e("s_nop 0")
    e(f"buffer_load_dwordx4 v{voff}, {sr(srdr,4)}, s{soff} offen {extra}lds")

def poll(name, nloads, voff, dst, soffs, maskall=True):
    e(f"s_mov_b32 s{sSPIN}, {SPIN}")
    lab(name)
    for i in range(nloads):
        e(f"buffer_load_dwordx2 {vr(dst+2*i,2)}, v{voff}, {sr(R_WS,4)}, s{soffs[i]} offen sc1")
    e(f"s_sub_u32 s{sSPIN}, s{sSPIN}, 1")
    e(f"s_cmp_eq_u32 s{sSPIN}, 0")
    e(f"s_cbranch_scc1 {name}_done")
    e("s_waitcnt vmcnt(0)")
    e(f"v_cmp_ne_u64 vcc, {sr(sNON,2)}, {vr(dst,2)}")
    for i in range(1, nloads):
        e(f"v_cmp_ne_u64 {sr(sX,2)}, {sr(sNON,2)}, {vr(dst+2*i,2)}")
        e("s_nop 0")
        e(f"s_or_b64 vcc, vcc, {sr(sX,2)}")
    e("s_nop 0")
    e("s_cmp_eq_u64 vcc, 0")
    e(f"s_cbranch_scc0 {name}")
    lab(name + "_done")
    e("s_waitcnt vmcnt(0)")

def signal(name, ctr_off, last, flag_soff_s, tmp):
    e(f"v_mov_b32 v{tmp}, {MISC + ctr_off}")
    e(f"v_mov_b32 v{tmp+1}, 1")
    e(f"s_mov_b64 exec, 1")
    e(f"ds_add_rtn_u32 v{tmp+1}, v{tmp}, v{tmp+1}")
    e("s_waitcnt lgkmcnt(0)")
    e(f"v_readfirstlane_b32 s{sT4}, v{tmp+1}")
    e(f"v_mov_b32 v{tmp}, 0")
    e(f"v_mov_b32 v{tmp+2}, s{sNON}")
    e(f"v_mov_b32 v{tmp+3}, s{sNON+1}")
    e(f"s_cmp_eq_u32 s{sT4}, {last}")
    e(f"s_cbranch_scc0 {name}_nf")
    e(f"buffer_store_dwordx2 {vr(tmp+2,2)}, v{tmp}, {sr(R_WS,4)}, s{flag_soff_s} offen sc1")
    lab(name + "_nf")
    e("s_mov_b64 exec, -1")

hdr = open(f"cdna_kernels/{NAME}.s.ref").read().split("; Override launch")[0]
L.append(hdr.rstrip())
L.append(f"; @launch grid=(256,1,1) block=(512,1,1) lds={LDS_BYTES}")
L.append('.amdgcn_target "amdgcn-amd-amdhsa--gfx950"')
L.append(".text")
L.append(f".globl {NAME}_kernel")
L.append(".p2align 8")
L.append(f".type {NAME}_kernel,@function")
lab(f"{NAME}_kernel")
e("s_cmp_ge_u32 s2, 256")
e("s_cbranch_scc1 L_end")
e("s_load_dwordx16 s[4:19], s[0:1], 0")
e("s_load_dwordx8 s[20:27], s[0:1], 64")
e("s_load_dwordx2 s[28:29], s[0:1], 96")
e(f"s_memrealtime {sr(sNON,2)}")
e("v_lshrrev_b32 v2, 6, v0")
e(f"v_and_b32 v{vL}, 63, v0")
e(f"v_readfirstlane_b32 s{sW}, v2")
e(f"s_and_b32 s{sXCD}, s2, 7")
e(f"s_lshr_b32 s{sJ}, s2, 3")
e(f"s_and_b32 s{sT0}, s{sJ}, 3")
e(f"s_lshl_b32 s{sTB}, s{sXCD}, 2")
e(f"s_add_u32 s{sTB}, s{sTB}, s{sT0}")
e(f"s_lshr_b32 s{sHG}, s{sJ}, 2")
e(f"s_bfe_u32 s{sTHP}, s{sHG}, 0x10001")
e(f"s_and_b32 s{sA}, s{sW}, 3")
cm("LDS init: ones window (512 x 16 B) and the counters")
e("v_and_b32 v4, 1, v0")
e("v_add_u32 v4, -1, v4")
e("v_and_b32 v4, 0x3f803f80, v4")
e("v_mov_b32 v5, v4")
e("v_mov_b32 v6, v4")
e("v_mov_b32 v7, v4")
e(f"v_lshlrev_b32 v3, 4, v0")
e(f"v_add_u32 v3, {ONES_OFF}, v3")
e("ds_write_b128 v3, v[4:7]")
e("v_mov_b32 v8, 0")
e("v_mov_b32 v9, 0")
e("v_mov_b32 v10, 0")
e("v_mov_b32 v11, 0")
e(f"v_mov_b32 v12, {MISC}")
e("ds_write_b128 v12, v[8:11]")
e("ds_write_b128 v12, v[8:11] offset:16")
e(f"v_lshlrev_b32 v2, 4, v{vL}          ; v2 = lane*16")
e("s_waitcnt lgkmcnt(0)")
srd(R_XA, P_XA, 2097152)
srd(R_WS, P_WS, WS_SIZE)
srd(R_DBG, P_DBG, 256)
cm("producer weight: wk (hg even) or wv (hg odd)")
e(f"s_bitcmp1_b32 s{sHG}, 0")
e(f"s_cselect_b32 s{R_W}, s{P_WV}, s{P_WK}")
e(f"s_cselect_b32 s{R_W+1}, s{P_WV+1}, s{P_WK+1}")
e(f"s_and_b32 s{R_W+1}, s{R_W+1}, 0xffff")
e(f"s_mov_b32 s{R_W+2}, 16384")
e(f"s_mov_b32 s{R_W+3}, 0x20000")
stamp(0)
cm("workgroup 0, wave 4 publishes this launch's hand-off tag")
e(f"s_or_b32 s{sNON}, s{sNON}, 1")
e(f"s_lshl_b32 s{sT0}, s2, 3")
e(f"s_add_u32 s{sT0}, s{sT0}, s{sW}")
e(f"s_cmp_eq_u32 s{sT0}, 4")
e("s_cbranch_scc0 L_notag")
e(f"v_mov_b32 v4, s{sNON}")
e(f"v_mov_b32 v5, s{sNON+1}")
e("v_mov_b32 v6, 0")
e("s_mov_b64 exec, 1")
e(f"buffer_store_dwordx2 v[4:5], v6, {sr(R_DBG,4)}, 0 offen sc1")
e("s_mov_b64 exec, -1")
lab("L_notag")
cm("critical DMA: 2 KB of the producer weight, x rows 32*thp + 4w + i")
e(f"s_cmp_lt_u32 s{sHG}, 4")
e("s_cbranch_scc0 L_now")
e(f"s_lshl_b32 s{sT2}, s{sW}, 11")
e(f"s_add_u32 s{sT1}, s{sT2}, {W_OFF}")
dma(2, R_W, sT2, sT1)
e(f"buffer_load_dwordx4 v2, {sr(R_W,4)}, s{sT2} offen offset:1024 lds")
lab("L_now")
e(f"s_lshl_b32 s{sT0}, s{sTHP}, 5")
e(f"s_lshl_b32 s{sT1}, s{sW}, 2")
e(f"s_add_u32 s{sT0}, s{sT0}, s{sT1}")
e(f"s_mul_i32 s{sT1}, s{sT0}, {XROW}")
e(f"s_lshl_b32 s{sT2}, s{sTB}, 6")
e(f"s_add_u32 s{sT2}, s{sT2}, s{sT0}")
e(f"s_lshl_b32 s{sT2}, s{sT2}, 10")
for i in range(4):
    dma(2, R_XA, sT2, sT1)
    if i < 3:
        e(f"s_add_u32 s{sT1}, s{sT1}, {XROW}")
        e(f"s_add_u32 s{sT2}, s{sT2}, 1024")
e(f"s_cmp_lt_u32 s{sHG}, 4")
e("s_cbranch_scc0 L_nob1")
e("s_waitcnt vmcnt(0)")
lab("L_nob1")
stamp(1)
e("s_barrier")
e(f"s_cmp_ge_u32 s{sW}, 4")
e("s_cbranch_scc1 L_aux")

srd(R_WQ, P_WQ, 524288)
cm("other half of the x tile: rows 32*(1-thp) + 8w + i")
e(f"s_xor_b32 s{sT0}, s{sTHP}, 1")
e(f"s_lshl_b32 s{sT0}, s{sT0}, 5")
e(f"s_lshl_b32 s{sT1}, s{sW}, 3")
e(f"s_add_u32 s{sT0}, s{sT0}, s{sT1}")
e(f"s_mul_i32 s{sT1}, s{sT0}, {XROW}")
e(f"s_lshl_b32 s{sT2}, s{sTB}, 6")
e(f"s_add_u32 s{sT2}, s{sT2}, s{sT0}")
e(f"s_lshl_b32 s{sT2}, s{sT2}, 10")
for i in range(8):
    dma(2, R_XA, sT2, sT1)
    if i < 7:
        e(f"s_add_u32 s{sT1}, s{sT1}, {XROW}")
        e(f"s_add_u32 s{sT2}, s{sT2}, 1024")
cm("wq slice: k rows 128w.., 8 rows x 128 B per instruction, 16-B chunks swizzled by row bit 1")
e(f"v_lshrrev_b32 v3, 3, v{vL}          ; r")
e(f"v_and_b32 v4, 7, v{vL}")
e(f"v_bfe_u32 v5, v{vL}, 4, 1           ; (r>>1)&1")
e("v_lshlrev_b32 v5, 2, v5")
e("v_xor_b32 v4, v4, v5")
e("v_lshlrev_b32 v4, 4, v4")
e("v_lshl_add_u32 v3, v3, 10, v4")
e(f"s_lshl_b32 s{sT2}, s{sW}, 17")
e(f"s_lshl_b32 s{sT0}, s{sHG}, 7")
e(f"s_add_u32 s{sT2}, s{sT2}, s{sT0}")
e(f"s_lshl_b32 s{sT1}, s{sW}, 14")
e(f"s_add_u32 s{sT1}, s{sT1}, {WQ_OFF}")
for i in range(16):
    dma(3, R_WQ, sT2, sT1)
    if i < 15:
        e(f"s_add_u32 s{sT1}, s{sT1}, 1024")
        e(f"s_add_u32 s{sT2}, s{sT2}, 8192")
stamp(7)
SA, SB, OA, OB, CA, CB = 16, 32, 48, 64, 80, 96
QA, QB, K0, K1, V0, V1 = 112, 116, 120, 124, 128, 136
vIDX, vK, vV, vM01 = 144, 145, 146, 147
vXA, vWA = 148, 149
FB = 152
cm("Q-projection addresses")
e(f"s_and_b32 s{sT0}, s{sW}, 1            ; th")
e(f"s_lshr_b32 s{sT1}, s{sW}, 1           ; hp")
e(f"v_and_b32 v3, 31, v{vL}")
e(f"s_lshl_b32 s{sT2}, s{sT0}, 5")
e(f"v_add_u32 v3, s{sT2}, v3")
e(f"v_mul_u32_u24 v3, {XROW}, v3")
e(f"v_lshrrev_b32 v4, 5, v{vL}           ; h")
e(f"v_lshl_add_u32 v{vXA}, v4, 4, v3")
e(f"v_bfe_u32 v5, v{vL}, 2, 2            ; r")
e("v_lshl_add_u32 v6, v4, 3, v5          ; 8h + r")
e("v_lshlrev_b32 v6, 7, v6")
e(f"v_bfe_u32 v7, v{vL}, 4, 1            ; g")
e(f"v_and_b32 v8, 1, v{vL}")
e("v_lshl_add_u32 v7, v7, 1, v8          ; 2g + (cc&1)")
e(f"s_lshl_b32 s{sT2}, s{sT1}, 2")
e(f"v_add_u32 v7, s{sT2}, v7")
e(f"v_bfe_u32 v8, v{vL}, 3, 1            ; (r>>1)&1")
e("v_lshlrev_b32 v8, 2, v8")
e("v_xor_b32 v7, v7, v8")
e("v_lshl_add_u32 v6, v7, 4, v6")
e(f"v_bfe_u32 v8, v{vL}, 1, 1")
e("v_lshl_add_u32 v6, v8, 3, v6")
e(f"v_add_u32 v{vWA}, {WQ_OFF}, v6")
cm("attention LDS addresses")
e(f"v_mov_b32 v{vIDX}, 0xdddddddd")
e(f"v_bfe_u32 v5, v{vL}, 4, 1")
e(f"v_xor_b32 v{vM01}, 1, v5")
e("s_waitcnt vmcnt(0)")
stamp(8)
e("s_barrier")
stamp(10)
def qload(ks):
    b = FB + 8*(ks % 4)
    e(f"ds_read_b64_tr_b16 {vr(b,2)}, v{vWA} offset:{ks*2048}")
    e(f"ds_read_b64_tr_b16 {vr(b+2,2)}, v{vWA} offset:{ks*2048+512}")
    e(f"ds_read_b128 {vr(b+4,4)}, v{vXA} offset:{ks*32}")
for ks in range(3): qload(ks)
for ks in range(32):
    b = FB + 8*(ks % 4)
    if ks + 3 < 32:
        qload(ks + 3); e("s_waitcnt lgkmcnt(9)")
    else:
        e(f"s_waitcnt lgkmcnt({3*(31-ks)})")
    c = "0" if ks == 0 else vr(SA, 16)
    e(f"v_mfma_f32_32x32x16_bf16 {vr(SA,16)}, {vr(b,4)}, {vr(b+4,4)}, {c}")
stamp(9)
e("s_barrier")
e(f"s_mov_b32 s{sT0}, {hex(f2u(0.25*1.4426950408889634))}")
nop(10)
for i in range(16): e(f"v_mul_f32 v{SA+i}, s{sT0}, v{SA+i}")
for i in range(8): e(f"v_cvt_pk_bf16_f32 v{QA+i}, v{SA+2*i}, v{SA+2*i+1}")
e(f"s_mov_b32 s{sFB}, 0")
e(f"s_mov_b32 s{sBARN}, 0x13")
if opt['prio']: e(f"s_setprio {opt['prio']}")
stamp(2)
e("s_barrier")
stamp(3)
cm("stand-in for the row max: max over key tile 0 (checked after the loop; fallback = true max)")
e(f"v_add_u32 v{vK}, {W_OFF}, v2")
e(f"ds_read_b128 {vr(K0,4)}, v{vK}")
e("s_waitcnt lgkmcnt(0)")
e(f"v_mfma_f32_32x32x16_bf16 {vr(SA,16)}, {vr(K0,4)}, {vr(QA,4)}, 0")
e(f"v_mfma_f32_32x32x16_bf16 {vr(SB,16)}, {vr(K0,4)}, {vr(QB,4)}, 0")
nop(11)
def max16(dst, s, acc=None):
    if acc is None:
        e(f"v_max3_f32 v{dst}, v{s}, v{s+1}, v{s+2}"); i = 3
        while i + 1 < 16:
            e(f"v_max3_f32 v{dst}, v{dst}, v{s+i}, v{s+i+1}"); i += 2
        e(f"v_max_f32 v{dst}, v{dst}, v{s+15}")
    else:
        for i in range(0, 16, 2): e(f"v_max3_f32 v{dst}, v{dst}, v{s+i}, v{s+i+1}")
max16(4, SA); max16(5, SB)
lab("L_setmax")
cm("v4 / v5 = per-lane max for tiles A / B; combine the two half-waves, C = -(max + 32)")
e("v_mov_b32 v6, v4")
e("v_mov_b32 v7, v5")
e(f"v_add_u32 v{vK}, {W_OFF}, v2")
e(f"v_and_b32 v8, 15, v{vL}")
e("v_permlane32_swap_b32 v4, v6")
e("v_permlane32_swap_b32 v5, v7")
e(f"ds_read_b128 {vr(K0,4)}, v{vK}")
e(f"ds_read_b128 {vr(K1,4)}, v{vK} offset:2048")
e("v_max_f32 v4, v4, v6")
e("v_max_f32 v5, v5, v7")
e(f"v_sub_f32 v{CA}, {hex(f2u(-32.0))}, v4")
e(f"v_sub_f32 v{CB}, {hex(f2u(-32.0))}, v5")
cm("V address: rows 0..15 -> tile data; lanes 16..31 -> ones window")
e(f"v_lshrrev_b32 v9, 5, v{vL}")
e("v_lshlrev_b32 v9, 8, v9")
e("v_lshl_add_u32 v8, v8, 4, v9")
e(f"v_add_u32 v8, {W_OFF}, v8")
e(f"v_and_b32 v9, 31, v{vL}")
e("v_add_u32 v10, -20, v9")
e("v_cmp_gt_u32 vcc, 8, v10")
e("v_and_b32 v9, 11, v9")
e("v_min_u32 v9, 1, v9")
e("v_cndmask_b32 v10, 0, 64, vcc")
e("v_lshl_add_u32 v9, v9, 4, v10")
e(f"v_add_u32 v9, {ONES_OFF - 1024}, v9")
e(f"v_cmp_eq_u32 vcc, 1, v{vM01}")
for i in range(1, 16):
    e(f"v_mov_b32 v{CA+i}, v{CA}");
e(f"v_cndmask_b32 v{vV}, v9, v8, vcc")
for i in range(1, 16): e(f"v_mov_b32 v{CB+i}, v{CB}")
e(f"ds_read_b128 {vr(V0,4)}, v{vV} offset:1024")
e(f"ds_read_b128 {vr(V0+4,4)}, v{vV} offset:1536")
e("s_waitcnt lgkmcnt(2)")
e(f"v_mfma_f32_32x32x16_bf16 {vr(SA,16)}, {vr(K0,4)}, {vr(QA,4)}, {vr(CA,16)}")
for i in range(16): e(f"v_mov_b32 v{OA+i}, 0")
for i in range(16): e(f"v_mov_b32 v{OB+i}, 0")
for i in range(8): e(f"v_mov_b32 v{SB+8+i}, 0")
for i in range(4): e(f"v_mov_b32 v{V1+4+i}, 0")
e(f"s_mov_b32 s{sIT}, 0")
e("s_waitcnt lgkmcnt(0)")
e(f"s_mov_b32 s{sINC}, 8192")
def SM(o, a, b): e(f"v_smfmac_f32_32x32x32_bf16 {vr(o,16)}, {vr(a,4)}, {vr(b,8)}, v{vIDX}")
def QK(d, k, q, c): e(f"v_mfma_f32_32x32x16_bf16 {vr(d,16)}, {vr(k,4)}, {vr(q,4)}, {vr(c,16)}")
def EX(s, a, b):
    for i in range(a, b): e(f"v_exp_f32 v{s+i}, v{s+i}")
L.append(".p2align 6")
lab("L_att_loop")
for u in range(4):
    kc, kn = (K0, K1) if u % 2 == 0 else (K1, K0)
    vc, vp = (V0, V1) if u % 2 == 0 else (V1, V0)
    voffs = ((u + 1) % 4) * 2048 + 1024
    koffs = ((u + 2) % 4) * 2048
    EX(SA, 0, 2)
    SM(OB, vp + 4, SB + 8)
    e("s_waitcnt lgkmcnt(1)")
    EX(SA, 2, 5)
    QK(SB, kc, QB, CB)
    if u == 3: pass
    e(f"ds_read_b128 {vr(vp,4)}, v{vV} offset:{voffs}")
    EX(SA, 5, 10)
    SM(OA, vc, SA)
    e(f"ds_read_b128 {vr(vp+4,4)}, v{vV} offset:{voffs+512}")
    EX(SA, 10, 16)
    EX(SB, 0, 2)
    SM(OA, vc + 4, SA + 8)
    e("s_waitcnt lgkmcnt(2)")
    if u == 1:
        cm("next group of 4 key tiles: address step, and (first 3 trips) the barrier that publishes it")
        e(f"s_cmp_eq_u32 s{sIT}, 1")
        e(f"s_cselect_b32 s{sINC}, {hex((-(W_OFF + 8192)) & 0xffffffff)}, 8192" if False else f"s_cselect_b32 s{sINC}, s{sT2}, s{sT3}")
        e(f"s_cmp_eq_u32 s{sIT}, 15")
        e(f"s_cselect_b32 s{sINC}, 0, s{sINC}")
    EX(SB, 2, 5)
    QK(SA, kn, QA, CA)
    e(f"ds_read_b128 {vr(kc,4)}, v{vK} offset:{koffs}")
    EX(SB, 5, 10)
    SM(OB, vc, SB)
    if u == 1:
        e(f"s_bitcmp1_b32 s{sBARN}, s{sIT}")
        e("s_cbranch_scc0 L_nobar")
        e("s_barrier")
        lab("L_nobar")
        e(f"v_add_u32 v{vK}, s{sINC}, v{vK}")
    if u == 2:
        e(f"v_mad_i32_i24 v{vV}, s{sINC}, v{vM01}, v{vV}")
    if u == 3:
        e(f"s_add_u32 s{sIT}, s{sIT}, 1")
        e(f"s_cmp_lt_u32 s{sIT}, 16")
    EX(SB, 10, 16)
e("s_cbranch_scc1 L_att_loop")
idx = L.index(f"    s_mov_b32 s{sINC}, 8192")
L[idx] = f"    s_mov_b32 s{sT2}, {hex((-(W_OFF + 8192)) & 0xffffffff)}\n    s_mov_b32 s{sT3}, 8192"
nop(2)
SM(OB, V1 + 4, SB + 8)
e("s_waitcnt lgkmcnt(0)")
nop(12)
cm("run-time check of the stand-in: l must be finite and <= 2^100, else redo with the true row max")
e(f"s_mov_b32 s{sT0}, {hex(f2u(2.0**100) if not opt['force_fb'] else f2u(2.0**-20))}")
e(f"v_cmp_nle_f32 vcc, v{OA+8}, s{sT0}" .replace("v_cmp_nle_f32 vcc", "v_cmp_nle_f32_e64 vcc"))
e(f"v_cmp_nle_f32_e64 {sr(sX,2)}, v{OB+8}, s{sT0}")
e("s_nop 1")
e(f"s_or_b64 vcc, vcc, {sr(sX,2)}")
e("s_cmp_eq_u64 vcc, 0")
e("s_cbranch_scc1 L_att_done")
e(f"s_cmp_eq_u32 s{sFB}, 0")
e("s_cbranch_scc0 L_att_done")
cm("fallback: exact row max over all 64 key tiles, then repeat the main loop")
e(f"s_mov_b32 s{sFB}, 1")
e(f"s_mov_b32 s{sBARN}, 0")
e(f"v_mov_b32 v4, 0xff800000")
e(f"v_mov_b32 v5, 0xff800000")
e(f"v_add_u32 v{vK}, {W_OFF}, v2")
e(f"s_mov_b32 s{sIT}, 0")
lab("L_fb_loop")
e(f"ds_read_b128 {vr(K0,4)}, v{vK}")
e("s_waitcnt lgkmcnt(0)")
e(f"v_mfma_f32_32x32x16_bf16 {vr(SA,16)}, {vr(K0,4)}, {vr(QA,4)}, 0")
e(f"v_mfma_f32_32x32x16_bf16 {vr(SB,16)}, {vr(K0,4)}, {vr(QB,4)}, 0")
e(f"s_cmp_eq_u32 s{sIT}, 7")
e(f"s_cselect_b32 s{sINC}, {hex((-(W_OFF + 7*2048)) & 0xffffffff)}, 2048".replace(", 2048", f", s{sT1}"))
L.insert(len(L)-2, f"    s_mov_b32 s{sT1}, 2048")
e(f"v_add_u32 v{vK}, s{sINC}, v{vK}")
nop(10)
max16(4, SA, 1); max16(5, SB, 1)
e(f"s_add_u32 s{sIT}, s{sIT}, 1")
e(f"s_cmp_lt_u32 s{sIT}, 64")
e("s_cbranch_scc1 L_fb_loop")
e("s_branch L_setmax")
lab("L_att_done")
stamp(6)
cm("normalise, publish O fragments")
e(f"v_rcp_f32 v4, v{OA+8}")
e(f"v_rcp_f32 v5, v{OB+8}")
e(f"v_mov_b32 v6, {MISC+16}")
e(f"ds_read_b64 v[8:9], v6")
e(f"s_and_b32 s{sT0}, s{sW}, 1")
e(f"s_lshl_b32 s{sT1}, s{sTB}, 1")
e(f"s_add_u32 s{sT0}, s{sT0}, s{sT1}")
e(f"s_lshl_b32 s{sT0}, s{sT0}, 5          ; (tb*2+th)*32")
e(f"s_lshl_b32 s{sT1}, s{sHG}, 2")
e(f"s_add_u32 s{sT0}, s{sT0}, s{sT1}")
e(f"s_and_b32 s{sT1}, s{sW}, 2")
e(f"s_add_u32 s{sT0}, s{sT0}, s{sT1}")
e(f"s_lshl_b32 s{sT0}, s{sT0}, 10")
e(f"s_add_u32 s{sT0}, s{sT0}, {WS_O}")
for i in range(8): e(f"v_mul_f32 v{OA+i}, v4, v{OA+i}")
for i in range(4): e(f"v_cvt_pk_bf16_f32 v{SA+i}, v{OA+2*i}, v{OA+2*i+1}")
e(f"buffer_store_dwordx4 {vr(SA,4)}, v2, {sr(R_WS,4)}, s{sT0} offen sc1")
for i in range(8): e(f"v_mul_f32 v{OB+i}, v5, v{OB+i}")
for i in range(4): e(f"v_cvt_pk_bf16_f32 v{SA+4+i}, v{OB+2*i}, v{OB+2*i+1}")
e(f"buffer_store_dwordx4 {vr(SA+4,4)}, v2, {sr(R_WS,4)}, s{sT0} offen offset:1024 sc1")
e("s_waitcnt lgkmcnt(0)")
e("s_barrier")
stamp(4)
e(f"v_readfirstlane_b32 s{sNON}, v8")
e(f"v_readfirstlane_b32 s{sNON+1}, v9")
e(f"s_lshl_b32 s{sT1}, s{sTB}, 3")
e(f"s_add_u32 s{sT1}, s{sT1}, s{sHG}")
e(f"s_lshl_b32 s{sT1}, s{sT1}, 7")
e(f"s_add_u32 s{sT1}, s{sT1}, {FL_O}")
e("s_waitcnt vmcnt(0)")
signal("L_sigO", 8, 3, sT1, 4)
stamp(5)
stamp_dump()
e("s_endpgm")

lab("L_aux")
srd(R_SRE, P_SRE, 8388608)
srd(R_SIM, P_SIM, 8388608)
srd(R_XB, P_XB, 2097152)
srd(R_WO, P_WO, 524288)
srd(R_OUT, P_OUT, 4194304)
BUF = 16
BP = 144
FR = 176
ACC = 192
D1, D2 = 208, 224
vT = 240
cm("K / V projection: workgroups hg<4, aux waves 0,1 (16 tokens each)")
e(f"s_cmp_lt_u32 s{sHG}, 4")
e("s_cbranch_scc0 L_noprod")
e(f"s_cmp_lt_u32 s{sA}, 2")
e("s_cbranch_scc0 L_noprod")
e(f"v_and_b32 v3, 15, v{vL}")
e(f"v_lshrrev_b32 v4, 4, v{vL}           ; q")
e(f"s_lshl_b32 s{sT0}, s{sTHP}, 5")
e(f"s_lshl_b32 s{sT1}, s{sA}, 4")
e(f"s_add_u32 s{sT0}, s{sT0}, s{sT1}")
e(f"v_add_u32 v5, s{sT0}, v3")
e(f"v_mul_u32_u24 v5, {XROW}, v5")
e("v_lshl_add_u32 v5, v4, 4, v5")
e(f"v_bfe_u32 v6, v{vL}, 2, 2            ; r")
e("v_lshl_add_u32 v6, v4, 3, v6")
e("v_lshlrev_b32 v6, 5, v6")
e(f"v_add_u32 v6, {W_OFF}, v6")
e(f"v_and_b32 v7, 3, v{vL}               ; cc")
e(f"s_lshl_b32 s{sT2}, s{sTB}, 1")
e(f"s_add_u32 s{sT2}, s{sT2}, s{sTHP}")
e(f"s_lshl_b32 s{sT3}, s{sT2}, 11")
def kvchain(isV):
    for ks in range(16):
        b = BUF + 8*ks
        e(f"ds_read_b64_tr_b16 {vr(b,2)}, v6 offset:{ks*1024}")
        e(f"ds_read_b64_tr_b16 {vr(b+2,2)}, v6 offset:{ks*1024+128}")
        e(f"ds_read_b128 {vr(b+4,4)}, v5 offset:{ks*64}")
        if ks >= 3:
            k2 = ks - 3; b2 = BUF + 8*k2
            e("s_waitcnt lgkmcnt(9)")
            a, bb = (b2+4, b2) if isV else (b2, b2+4)
            e(f"v_mfma_f32_16x16x32_bf16 {vr(ACC,4)}, {vr(a,4)}, {vr(bb,4)}, {'0' if k2==0 else vr(ACC,4)}")
    for k2 in range(13, 16):
        b2 = BUF + 8*k2
        e(f"s_waitcnt lgkmcnt({3*(15-k2)})")
        a, bb = (b2+4, b2) if isV else (b2, b2+4)
        e(f"v_mfma_f32_16x16x32_bf16 {vr(ACC,4)}, {vr(a,4)}, {vr(bb,4)}, {vr(ACC,4)}")
e(f"s_bitcmp1_b32 s{sHG}, 0")
e("s_cbranch_scc1 L_prodV")
e("v_lshl_add_u32 v6, v7, 3, v6")
kvchain(False)
cm("K: (q>>1)*512 + (16b+n)*16 + (q&1)*8")
e("v_lshrrev_b32 v8, 1, v4")
e("v_lshlrev_b32 v8, 9, v8")
e(f"s_lshl_b32 s{sT1}, s{sA}, 8")
e("s_branch L_prodS")
lab("L_prodV")
e("v_and_b32 v8, 1, v7")
e("v_lshl_add_u32 v6, v8, 4, v6")
e("v_lshrrev_b32 v8, 1, v7")
e("v_lshl_add_u32 v6, v8, 3, v6")
kvchain(True)
cm("V: 1024 + b*512 + (q>>1)*256 + n*16 + (q&1)*8")
e("v_lshrrev_b32 v8, 1, v4")
e("v_lshlrev_b32 v8, 8, v8")
e(f"s_lshl_b32 s{sT1}, s{sA}, 9")
e(f"s_add_u32 s{sT1}, s{sT1}, 1024")
lab("L_prodS")
e("v_lshl_add_u32 v8, v3, 4, v8")
e("v_and_b32 v9, 1, v4")
e("v_lshl_add_u32 v8, v9, 3, v8")
e(f"s_add_u32 s{sT3}, s{sT3}, s{sT1}")
nop(4)
e(f"v_cvt_pk_bf16_f32 v10, v{ACC}, v{ACC+1}")
e(f"v_cvt_pk_bf16_f32 v11, v{ACC+2}, v{ACC+3}")
e(f"buffer_store_dwordx2 v[10:11], v8, {sr(R_WS,4)}, s{sT3} offen sc1")
stamp(14)
e("s_waitcnt vmcnt(0)")
stamp(15)
cm("tag from LDS (written by aux wave 3), bounded spin")
e(f"s_mov_b32 s{sSPIN}, {SPIN*8}")
e(f"v_mov_b32 v12, {MISC+16}")
lab("L_tagl")
e("ds_read_b64 v[14:15], v12")
e(f"s_sub_u32 s{sSPIN}, s{sSPIN}, 1")
e(f"s_cmp_eq_u32 s{sSPIN}, 0")
e("s_cbranch_scc1 L_tagl_done")
e("s_waitcnt lgkmcnt(0)")
e("v_cmp_eq_u32 vcc, 0, v14")
e("s_nop 0")
e("s_cmp_eq_u64 vcc, 0")
e("s_cbranch_scc0 L_tagl")
lab("L_tagl_done")
e("s_waitcnt lgkmcnt(0)")
e(f"v_readfirstlane_b32 s{sNON}, v14")
e(f"v_readfirstlane_b32 s{sNON+1}, v15")
cm("flag slot of (tile j, kind): line (j&3)*8 + (j>>3), slot ((j>>2)&1)*2 + kind")
e(f"s_and_b32 s{sT1}, s{sT2}, 3")
e(f"s_lshl_b32 s{sT1}, s{sT1}, 3")
e(f"s_lshr_b32 s{sT0}, s{sT2}, 3")
e(f"s_add_u32 s{sT1}, s{sT1}, s{sT0}")
e(f"s_lshl_b32 s{sT1}, s{sT1}, 7")
e(f"s_bfe_u32 s{sT0}, s{sT2}, 0x10002")
e(f"s_lshl_b32 s{sT0}, s{sT0}, 6")
e(f"s_add_u32 s{sT1}, s{sT1}, s{sT0}")
e(f"s_and_b32 s{sT0}, s{sHG}, 1")
e(f"s_lshl_b32 s{sT0}, s{sT0}, 5")
e(f"s_add_u32 s{sT1}, s{sT1}, s{sT0}")
e(f"s_add_u32 s{sT1}, s{sT1}, {FL_KV}")
signal("L_sigKV", 0, 1, sT1, 4)
e("s_branch L_tagged")
lab("L_noprod")
e(f"s_cmp_eq_u32 s{sA}, 3")
e("s_cbranch_scc0 L_tagged")
cm("aux wave 3 fetches this launch's hand-off tag (bounded spin) and posts it in LDS")
e(f"s_mov_b32 s{sSPIN}, {SPIN}")
e("v_mov_b32 v12, 0")
lab("L_tag")
e(f"buffer_load_dwordx2 v[14:15], v12, {sr(R_DBG,4)}, 0 offen sc1")
e(f"s_sub_u32 s{sSPIN}, s{sSPIN}, 1")
e(f"s_cmp_eq_u32 s{sSPIN}, 0")
e("s_cbranch_scc1 L_tag_done")
e("s_waitcnt vmcnt(0)")
e("v_cmp_eq_u32 vcc, 0, v14")
e("s_nop 0")
e("s_cmp_eq_u64 vcc, 0")
e("s_cbranch_scc0 L_tag")
lab("L_tag_done")
e("s_waitcnt vmcnt(0)")
e(f"v_mov_b32 v12, {MISC+16}")
e("ds_write_b64 v12, v[14:15]")
lab("L_tagged")
stamp(2)
sT1S, sEB, sTT, sS2, sCB = 98, 99, 100, 101, 79
R_HRE, R_HIM = R_XA, R_W
e(f"s_and_b32 s{sT0}, s{sJ}, 3")
e(f"s_lshl_b32 s{sT1S}, s{sXCD}, 2")
e(f"s_add_u32 s{sT1S}, s{sT1S}, s{sT0}       ; t1s")
e(f"s_lshr_b32 s{sT0}, s{sJ}, 2")
e(f"s_lshl_b32 s{sT0}, s{sT0}, 1")
e(f"s_lshr_b32 s{sEB}, s{sA}, 1")
e(f"s_add_u32 s{sEB}, s{sEB}, s{sT0}         ; eb")
e(f"s_and_b32 s{sTT}, s{sA}, 1               ; tt")
e(f"s_and_b32 s{sT0}, s{sJ}, 7")
e(f"s_lshl_b32 s{sS2}, s{sXCD}, 3")
e(f"s_add_u32 s{sS2}, s{sS2}, s{sT0}         ; s2")
e(f"s_lshr_b32 s{sT0}, s{sJ}, 3")
e(f"s_lshl_b32 s{sCB}, s{sT0}, 2")
e(f"s_add_u32 s{sCB}, s{sCB}, s{sA}          ; cb")
srd(R_HRE, P_HRE, 524288)
srd(R_HIM, P_HIM, 524288)
e(f"v_and_b32 v3, 31, v{vL}                ; n")
e(f"v_lshrrev_b32 v4, 5, v{vL}             ; h")
e(f"s_lshl_b32 s{sT0}, s{sTT}, 5")
e(f"v_add_u32 v5, s{sT0}, v3")
e("v_lshlrev_b32 v5, 5, v5")
e(f"v_add_u32 v13, s{sT1S}, v5")
cm("B1 load addresses (8 rows x 128 B per instruction, chunk swizzle on the source side)")
vXE, vXO, vWE, vWO_, vG, vRD = 176+16+48, 241, 242, 243, 244, 246
e(f"v_lshrrev_b32 v5, 3, v{vL}             ; r")
e("v_and_b32 v6, 3, v5")
e("v_lshrrev_b32 v7, 2, v5")
e("v_lshl_add_u32 v6, v7, 3, v6            ; 8*(r>>2) + (r&3)")
e("v_lshrrev_b32 v7, 1, v5")
e(f"v_and_b32 v8, 7, v{vL}")
e("v_xor_b32 v7, v7, v8")
e("v_lshlrev_b32 v7, 4, v7")
e("v_xor_b32 v8, 64, v7")
e(f"v_lshl_add_u32 v{vXE}, v6, 16, v7")
e(f"v_lshl_add_u32 v{vXO}, v6, 16, v8")
e(f"v_lshl_add_u32 v{vWE}, v6, 10, v7")
e(f"v_lshl_add_u32 v{vWO_}, v6, 10, v8")
cm("instruction 2 of W (im rows e = 16cb + {0..3, 8..11}); for cb = 0 row e = 0 is replaced by cos row 256")
e(f"s_lshl_b32 s{sT0}, s{sCB}, 14")
e(f"v_add_u32 v9, s{sT0}, v{vWE}")
e("v_cmp_gt_u32 vcc, 0x80, v9")
e(f"v_mov_b32 v{vG}, s{P_HIM}")
e(f"v_mov_b32 v{vG+1}, s{P_HIM+1}")
e(f"v_mov_b32 v10, s{P_HRE}")
e(f"v_mov_b32 v11, s{P_HRE+1}")
e(f"v_cndmask_b32 v{vG}, v{vG}, v10, vcc")
e(f"v_cndmask_b32 v{vG+1}, v{vG+1}, v11, vcc")
e("v_add_u32 v10, 0x40000, v9")
e("v_cndmask_b32 v9, v9, v10, vcc")
e(f"v_add_co_u32 v{vG}, vcc, v{vG}, v9")
e("s_nop 1")
e(f"v_addc_co_u32 v{vG+1}, vcc, 0, v{vG+1}, vcc")
cm("staging read addresses: row m, chunk (2s+h) ^ ((m>>1)&7)")
e(f"s_lshl_b32 s{sT0}, s{sA}, 12")
e(f"s_add_u32 s{sT0}, s{sT0}, {WO_STG}")
e("v_bfe_u32 v5, v3, 1, 3")
e("v_xor_b32 v5, v5, v4")
e("v_lshlrev_b32 v5, 4, v5")
e("v_lshl_add_u32 v5, v3, 7, v5")
e(f"v_add_u32 v{vRD}, s{sT0}, v5")
for s_ in range(1, 4): e(f"v_xor_b32 v{vRD+s_}, {32*s_}, v{vRD}")
e(f"v_add_u32 v250, s{sT0}, v2")
cm("flags of the K/V tiles a, a+4, ...: 8 lines x 4 slots")
e(f"v_lshlrev_b32 v5, 5, v3")
e(f"s_lshl_b32 s{sT0}, s{sA}, 10")
e(f"s_add_u32 s{sT0}, s{sT0}, {FL_KV}")
e("s_waitcnt vmcnt(0) lgkmcnt(0)")
e("s_barrier                             ; B2")
stamp(16)
e(f"v_mov_b32 v12, {MISC+16}")
e("ds_read_b64 v[14:15], v12")
e("s_waitcnt lgkmcnt(0)")
e(f"v_readfirstlane_b32 s{sNON}, v14")
e(f"v_readfirstlane_b32 s{sNON+1}, v15")
e("s_nop 1")
poll("L_pollKV", 1, 5, 14, [sT0])
stamp(3)
e(f"s_lshl_b32 s{sT2}, s{sA}, 11")
e(f"s_add_u32 s{sT1}, s{sT2}, {W_OFF}")
def kvdma(g):
    dma(2, R_WS, sT2, sT1, "sc1 ")
    e(f"buffer_load_dwordx4 v2, {sr(R_WS,4)}, s{sT2} offen offset:1024 sc1 lds")
    if g == 1: e(f"s_lshl_b32 s{sT1}, s{sA}, 11")
    elif g < 15: e(f"s_add_u32 s{sT1}, s{sT1}, 8192")
    if g < 15: e(f"s_add_u32 s{sT2}, s{sT2}, 8192")
kvdma(0); kvdma(1)
e("s_barrier                             ; B3")
e("s_waitcnt vmcnt(2)")
stamp(18)
e("s_barrier                             ; BA")
for g in range(2, 5): kvdma(g)
e("s_waitcnt vmcnt(6)")
e("s_barrier")
for g in range(5, 11): kvdma(g)
e("s_waitcnt vmcnt(12)")
e("s_barrier")
for g in range(11, 16): kvdma(g)
stamp(17)
sXS, sWS_ = sT3, sT4
e(f"s_lshl_b32 s{sXS}, s{sS2}, 10")
e(f"s_lshl_b32 s{sWS_}, s{sCB}, 14")
e(f"s_add_u32 s{sT0}, s{sXS}, {4*65536}")
e(f"s_add_u32 s{sT1}, s{sXS}, {16*65536}")
e(f"s_add_u32 s{sT2}, s{sXS}, {20*65536}")
e(f"s_add_u32 s{sINC}, s{sWS_}, 4096")
def b1load(c):
    b = BUF + 32*(c % 4); o = 128*c
    e(f"buffer_load_dwordx4 {vr(b,4)}, v{vXE}, {sr(R_XB,4)}, s{sXS} offen offset:{o}")
    e(f"buffer_load_dwordx4 {vr(b+4,4)}, v{vXO}, {sr(R_XB,4)}, s{sT0} offen offset:{o}")
    e(f"buffer_load_dwordx4 {vr(b+8,4)}, v{vXE}, {sr(R_XB,4)}, s{sT1} offen offset:{o}")
    e(f"buffer_load_dwordx4 {vr(b+12,4)}, v{vXO}, {sr(R_XB,4)}, s{sT2} offen offset:{o}")
    e(f"buffer_load_dwordx4 {vr(b+16,4)}, v{vWE}, {sr(R_HRE,4)}, s{sWS_} offen offset:{o}")
    e(f"buffer_load_dwordx4 {vr(b+20,4)}, v{vWO_}, {sr(R_HRE,4)}, s{sINC} offen offset:{o}")
    e(f"global_load_dwordx4 {vr(b+24,4)}, {vr(vG,2)}, off offset:{o}")
    e(f"buffer_load_dwordx4 {vr(b+28,4)}, v{vWO_}, {sr(R_HIM,4)}, s{sINC} offen offset:{o}")
for c in range(4): b1load(c)
cm("DFT-32 fragments")
e("v_lshlrev_b32 v6, 18, v3")
e("v_lshl_add_u32 v6, v4, 4, v6")
for kb in range(2): e(f"buffer_load_dwordx4 {vr(FR+4*kb,4)}, v6, {sr(R_SRE,4)}, 0 offen offset:{32*kb}")
for kb in range(2): e(f"buffer_load_dwordx4 {vr(FR+8+4*kb,4)}, v6, {sr(R_SIM,4)}, 0 offen offset:{32*kb}")
stamp(20)
e("s_waitcnt vmcnt(36)")
stamp(21)
e("s_barrier")
stamp(4)
XF, WF = D1, D2
for c in range(8):
    b = BUF + 32*(c % 4)
    rest = [8*min(3, 7-c) + (4 if c < 4 else 0)]
    e(f"s_waitcnt vmcnt({rest[0] + 4})")
    for i in range(4): e(f"ds_write_b128 v250, {vr(b+4*i,4)} offset:{1024*i}")
    e("s_waitcnt lgkmcnt(0)")
    for s_ in range(4): e(f"ds_read_b128 {vr(XF+4*s_,4)}, v{vRD+s_}")
    e(f"s_waitcnt vmcnt({rest[0]}) lgkmcnt(0)")
    for i in range(4): e(f"ds_write_b128 v250, {vr(b+16+4*i,4)} offset:{1024*i}")
    e("s_waitcnt lgkmcnt(0)")
    for s_ in range(4): e(f"ds_read_b128 {vr(WF+4*s_,4)}, v{vRD+s_}")
    if c + 4 < 8: b1load(c + 4)
    for s_ in range(4):
        e(f"s_waitcnt lgkmcnt({3-s_})")
        e(f"v_mfma_f32_32x32x16_bf16 {vr(ACC,16)}, {vr(XF+4*s_,4)}, {vr(WF+4*s_,4)}, {'0' if c==0 and s_==0 else vr(ACC,16)}")
stamp(22)
cm("rows of the sequence DFT matrices for B2 (requested now, used later)")
e("v_lshlrev_b32 v5, 12, v13")
e("v_lshl_add_u32 v5, v4, 6, v5")
for i in range(4): e(f"buffer_load_dwordx4 {vr(BUF+4*i,4)}, v5, {sr(R_SRE,4)}, 0 offen offset:{16*i}")
for i in range(4): e(f"buffer_load_dwordx4 {vr(BUF+16+4*i,4)}, v5, {sr(R_SIM,4)}, 0 offen offset:{16*i}")
cm("H address: (t1*64 + s2)*HROW + (16cb + 8h)*4")
e(f"v_mul_u32_u24 v5, {64*HROW}, v3")
e("v_lshl_add_u32 v5, v4, 5, v5")
e(f"s_mul_i32 s{sT0}, s{sS2}, {HROW}")
e(f"s_lshl_b32 s{sT1}, s{sCB}, 6")
e(f"s_add_u32 s{sT0}, s{sT0}, s{sT1}")
e(f"s_add_u32 s{sT0}, s{sT0}, {WS_H}")
vZ = BP
for i in range(8): e(f"v_cvt_pk_bf16_f32 v{vZ+i}, v{ACC+2*i}, v{ACC+2*i+1}")
nop(2)
e(f"v_mfma_f32_32x32x16_bf16 {vr(D1,16)}, {vr(vZ,4)}, {vr(FR,4)}, 0")
e(f"v_mfma_f32_32x32x16_bf16 {vr(D2,16)}, {vr(vZ,4)}, {vr(FR+8,4)}, 0")
e(f"v_mfma_f32_32x32x16_bf16 {vr(D1,16)}, {vr(vZ+4,4)}, {vr(FR+4,4)}, {vr(D1,16)}")
e(f"v_mfma_f32_32x32x16_bf16 {vr(D2,16)}, {vr(vZ+4,4)}, {vr(FR+12,4)}, {vr(D2,16)}")
nop(12)
for r in range(8):
    e(f"v_sub_f32 v{ACC+r}, v{D1+r}, v{D2+8+r}")
    e(f"v_add_f32 v{ACC+8+r}, -v{D2+r}, -v{D1+8+r}")
e(f"s_cmp_eq_u32 s{sCB}, 0")
e("s_cbranch_scc0 L_nospecial")
cm("columns e = 0 and e = 256 (both purely real rows): lanes 0..31, register 0")
e("s_mov_b32 exec_hi, 0")
e(f"v_mov_b32 v{ACC}, v{D1}")
e(f"v_sub_f32 v{ACC+8}, 0, v{D2}")
e(f"v_sub_f32 v6, 0, v{D2+8}")
e(f"v_cvt_pk_bf16_f32 v6, v{D1+8}, v6")
e(f"buffer_store_dword v6, v5, {sr(R_WS,4)}, s{sT0} offen offset:1024 sc1")
e("s_mov_b64 exec, -1")
lab("L_nospecial")
for r in range(8): e(f"v_cvt_pk_bf16_f32 v{vZ+r}, v{ACC+r}, v{ACC+8+r}")
e(f"buffer_store_dwordx4 {vr(vZ,4)}, v5, {sr(R_WS,4)}, s{sT0} offen sc1")
e(f"buffer_store_dwordx4 {vr(vZ+4,4)}, v5, {sr(R_WS,4)}, s{sT0} offen offset:16 sc1")
e(f"s_lshl_b32 s{sT1}, s2, 5")
e(f"s_add_u32 s{sT1}, s{sT1}, {FL_H}")
e(f"s_mov_b32 s{sT0}, 0x05040100")
e(f"s_mov_b32 s{sT3}, 0x07060302")
e("s_waitcnt vmcnt(0)")
signal("L_sigH", 4, 3, sT1, 8)
stamp(5)
for i in range(16):
    e(f"v_perm_b32 v{BP+2*i}, v{BUF+16+i}, v{BUF+i}, s{sT0}")
    e(f"v_perm_b32 v{BP+2*i+1}, v{BUF+16+i}, v{BUF+i}, s{sT3}")
cm("pull the wo slice of this workgroup towards L2 (one dword per 128-B line)")
e(f"v_lshlrev_b32 v5, 10, v{vL}")
e(f"s_lshl_b32 s{sT0}, s{sA}, 17")
e(f"s_lshl_b32 s{sT1}, s{sHG}, 7")
e(f"s_add_u32 s{sT0}, s{sT0}, s{sT1}")
e(f"s_add_u32 s{sT1}, s{sT0}, 65536")
e(f"buffer_load_dword v6, v5, {sr(R_WO,4)}, s{sT0} offen")
e(f"buffer_load_dword v7, v5, {sr(R_WO,4)}, s{sT1} offen")
cm("B2: wait for every workgroup's H rows (aux wave a polls 64 flags would not do: all 256 are needed)")
e(f"v_lshlrev_b32 v5, 5, v{vL}")
for i in range(4): e(f"s_mov_b32 s{sT0+i}, {FL_H + i*2048}")
poll("L_pollH", 4, 5, BUF, [sT0, sT0+1, sT0+2, sT0+3])
stamp(7)
cm("A rows: e(m) = 32eb + col(m) (eb<8) or 512 - that; col(m) = 16*b2 + 4*(m>>3) + (m&3)")
e("v_and_b32 v5, 3, v3")
e("v_bfe_u32 v6, v3, 2, 1")
e("v_lshl_add_u32 v5, v6, 4, v5")
e("v_lshrrev_b32 v6, 3, v3")
e("v_lshl_add_u32 v5, v6, 2, v5")
e(f"s_lshl_b32 s{sT0}, s{sEB}, 5")
e(f"v_add_u32 v5, s{sT0}, v5")
e("v_sub_u32 v6, 0x200, v5")
e("v_sub_u32 v7, 0x800, v13")
e("v_and_b32 v7, 0x7ff, v7")
e(f"s_cmp_lt_u32 s{sEB}, 8")
e("s_cselect_b64 vcc, 0, -1")
e("v_cndmask_b32 v5, v5, v6, vcc")
e("v_cndmask_b32 v7, v13, v7, vcc")
e(f"v_mul_u32_u24 v6, {32*HROW}, v4")
e("v_lshl_add_u32 v5, v5, 2, v6")
e(f"s_mul_i32 s{sT0}, s{sT1S}, {64*HROW}")
e(f"s_add_u32 s{sT0}, s{sT0}, {WS_H}")
AF = 208
for kb in range(8):
    for w in range(4): e(f"buffer_load_dword v{AF+4*kb+w}, v5, {sr(R_WS,4)}, s{sT0} offen offset:{w*HROW} sc1")
    if kb < 7: e(f"s_add_u32 s{sT0}, s{sT0}, {4*HROW}")
e("v_lshlrev_b32 v7, 11, v7")
e("v_lshl_add_u32 v7, v4, 5, v7")
e(f"s_lshl_b32 s{sT0}, s{sEB}, 6")
e(f"s_add_u32 s{sT0}, s{sT0}, 1024")
for kb in range(8):
    e(f"s_waitcnt vmcnt({28-4*kb})")
    e(f"v_mfma_f32_32x32x16_bf16 {vr(ACC,16)}, {vr(AF+4*kb,4)}, {vr(BP+4*kb,4)}, {'0' if kb==0 else vr(ACC,16)}")
nop(12)
for i in range(8): e(f"v_cvt_pk_bf16_f32 v{BUF+i}, v{ACC+2*i}, v{ACC+2*i+1}")
e(f"buffer_store_dwordx4 {vr(BUF,4)}, v7, {sr(R_OUT,4)}, s{sT0} offen")
e(f"buffer_store_dwordx4 {vr(BUF+4,4)}, v7, {sr(R_OUT,4)}, s{sT0} offen offset:16")
cm("tail: output projection; wo slice -> LDS 64K.., O tile -> LDS 0..")
WO_OFF = 65536
e(f"v_lshrrev_b32 v8, 3, v{vL}          ; r")
e(f"v_and_b32 v9, 7, v{vL}")
e(f"v_bfe_u32 v10, v{vL}, 4, 1")
e("v_lshlrev_b32 v10, 2, v10")
e("v_xor_b32 v9, v9, v10")
e("v_lshlrev_b32 v9, 4, v9")
e("v_lshl_add_u32 v8, v8, 10, v9")
cm("transposing read: row 8h+r, 16-B chunk 4cbk + 2(cc&1) + g, byte 8(cc>>1)")
e(f"v_bfe_u32 v9, v{vL}, 2, 2")
e("v_lshl_add_u32 v9, v4, 3, v9")
e("v_lshlrev_b32 v9, 7, v9")
e(f"v_and_b32 v10, 1, v{vL}")
e(f"v_bfe_u32 v11, v{vL}, 4, 1")
e("v_lshl_add_u32 v10, v10, 1, v11")
e(f"s_lshr_b32 s{sT0}, s{sA}, 1")
e(f"s_lshl_b32 s{sT0}, s{sT0}, 2")
e(f"v_add_u32 v10, s{sT0}, v10")
e(f"v_bfe_u32 v11, v{vL}, 3, 1")
e("v_lshlrev_b32 v11, 2, v11")
e("v_xor_b32 v10, v10, v11")
e("v_lshl_add_u32 v9, v10, 4, v9")
e(f"v_bfe_u32 v11, v{vL}, 1, 1")
e("v_lshl_add_u32 v9, v11, 3, v9")
e(f"v_add_u32 v9, {WO_OFF}, v9")
e(f"v_and_b32 v5, 1, v{vL}")
e("v_lshlrev_b32 v5, 7, v5")
e(f"s_and_b32 s{sT3}, s{sA}, 1")
e(f"s_lshl_b32 s{sT3}, s{sT3}, 15")
e(f"v_add_u32 v6, s{sT3}, v2")
e(f"s_lshl_b32 s{sT3}, s{sTB}, 1")
e(f"s_and_b32 s{sT4}, s{sA}, 1")
e(f"s_add_u32 s{sT3}, s{sT3}, s{sT4}")
e(f"s_lshl_b32 s{sT3}, s{sT3}, 5")
e(f"v_add_u32 v7, s{sT3}, v3")
e("v_lshlrev_b32 v7, 11, v7")
e("v_lshl_add_u32 v7, v4, 5, v7")
e(f"s_lshl_b32 s{sT2}, s{sA}, 17")
e(f"s_lshl_b32 s{sT0}, s{sHG}, 7")
e(f"s_add_u32 s{sT2}, s{sT2}, s{sT0}")
e(f"s_lshl_b32 s{sT1}, s{sA}, 14")
e(f"s_add_u32 s{sT1}, s{sT1}, {WO_OFF}")
stamp(8)
e("s_barrier                             ; B7")
stamp(9)
for i in range(16):
    dma(8, R_WO, sT2, sT1)
    if i < 15:
        e(f"s_add_u32 s{sT1}, s{sT1}, 1024")
        e(f"s_add_u32 s{sT2}, s{sT2}, 8192")
e(f"s_lshl_b32 s{sT0}, s{sTB}, 3")
e(f"s_lshl_b32 s{sT1}, s{sA}, 1")
e(f"s_add_u32 s{sT0}, s{sT0}, s{sT1}")
e(f"s_lshl_b32 s{sT0}, s{sT0}, 7")
e(f"s_add_u32 s{sT0}, s{sT0}, {FL_O}")
e(f"s_lshl_b32 s{sT2}, s{sTB}, 16")
e(f"s_lshl_b32 s{sT1}, s{sA}, 13")
e(f"s_add_u32 s{sT2}, s{sT2}, s{sT1}")
e(f"s_add_u32 s{sT2}, s{sT2}, {WS_O}")
stamp(6)
poll("L_pollO", 1, 5, 14, [sT0])
stamp(10)
for th in range(2):
    for q in range(2):
        e(f"s_mov_b32 m0, s{sT1}")
        e("s_nop 0")
        for i in range(4): e(f"buffer_load_dwordx4 v2, {sr(R_WS,4)}, s{sT2} offen offset:{1024*i} sc1 lds")
        d = 4096 if q == 0 else 32768 - 4096
        if not (th == 1 and q == 1):
            e(f"s_add_u32 s{sT1}, s{sT1}, {d}")
            e(f"s_add_u32 s{sT2}, s{sT2}, {d}")
e(f"s_lshl_b32 s{sT0}, s{sHG}, 7")
e(f"s_lshr_b32 s{sT1}, s{sA}, 1")
e(f"s_lshl_b32 s{sT1}, s{sT1}, 6")
e(f"s_add_u32 s{sT0}, s{sT0}, s{sT1}")
e("s_waitcnt vmcnt(0)")
stamp(11)
e("s_barrier                             ; B8")
def oload(ks):
    b = BUF + 8*(ks % 4)
    e(f"ds_read_b64_tr_b16 {vr(b,2)}, v9 offset:{ks*2048}")
    e(f"ds_read_b64_tr_b16 {vr(b+2,2)}, v9 offset:{ks*2048+512}")
    e(f"ds_read_b128 {vr(b+4,4)}, v6 offset:{ks*1024}")
for ks in range(3): oload(ks)
for ks in range(32):
    b = BUF + 8*(ks % 4)
    if ks + 3 < 32:
        oload(ks + 3); e("s_waitcnt lgkmcnt(9)")
    else:
        e(f"s_waitcnt lgkmcnt({3*(31-ks)})")
    e(f"v_mfma_f32_32x32x16_bf16 {vr(ACC,16)}, {vr(b,4)}, {vr(b+4,4)}, {'0' if ks==0 else vr(ACC,16)}")
nop(12)
for i in range(8): e(f"v_cvt_pk_bf16_f32 v{BP+i}, v{ACC+2*i}, v{ACC+2*i+1}")
e(f"buffer_store_dwordx4 {vr(BP,4)}, v7, {sr(R_OUT,4)}, s{sT0} offen")
e(f"buffer_store_dwordx4 {vr(BP+4,4)}, v7, {sr(R_OUT,4)}, s{sT0} offen offset:16")
stamp(12)
if opt['stamps']: e("s_waitcnt vmcnt(0)")
stamp(13)
stamp_dump()
lab("L_end")
e("s_endpgm")
L.append(f""".section .rodata,"a"
.p2align 6
.amdhsa_kernel {NAME}_kernel
  .amdhsa_next_free_vgpr 256
  .amdhsa_next_free_sgpr 102
  .amdhsa_accum_offset 256
  .amdhsa_group_segment_fixed_size 0
  .amdhsa_kernarg_size 104
  .amdhsa_user_sgpr_count 2
  .amdhsa_user_sgpr_kernarg_segment_ptr 1
  .amdhsa_system_sgpr_workgroup_id_x 1
.end_amdhsa_kernel""")
txt = "\n".join(L) + "\n"
open(sys.argv[1], "w").write(txt)
import hazcheck
print(hazcheck.check(txt), "hazards;", len(txt), "bytes")
```

```python
import sys, struct
NAME = "concat_heads__grouped_kv_mqa__spectral_fnet__prompt"
opt = dict(stamps=0, stop=99, prio=1, force_fb=0, dbgt=0)
for a in sys.argv[2:]:
    k, v = a.split('='); opt[k] = int(v)

L = []
def e(s=""): L.append("    " + s)
def lab(s): L.append(s + ":")
def cm(s): L.append("    ; " + s)
def vr(a, n): return f"v[{a}:{a+n-1}]" if n > 1 else f"v{a}"
def sr(a, n): return f"s[{a}:{a+n-1}]" if n > 1 else f"s{a}"
def nop(n):
    while n > 0:
        k = min(n, 16); e(f"s_nop {k-1}"); n -= k
def f2u(x): return struct.unpack('<I', struct.pack('<f', x))[0]

X_OFF, XROW = 0, 1040
WQ_OFF = 66560
W_OFF = 132096
ONES_OFF = 148480
MISC = 156672
WO_STG = 114688
LDS_BYTES = 156800
WS_KV, WS_O, WS_H, WS_FL = 0, 0x40000, 0x240000, 0x480000
FL_KV, FL_H, FL_O = WS_FL, WS_FL + 0x4000, WS_FL + 0xC000
WS_STAMP = 0x4A0000
WS_SIZE = 0x540000
HROW = 1056
SPIN = 400000
P_XA, P_WQ, P_WK, P_WV, P_WO, P_XB, P_SRE, P_SIM = 4, 6, 8, 10, 12, 14, 16, 18
P_HRE, P_HIM, P_OUT, P_DBG, P_WS = 20, 22, 24, 26, 28
R_XA, R_WQ, R_W, R_WS, R_WO, R_XB, R_SRE, R_SIM, R_OUT, R_DBG = 32, 36, 40, 44, 48, 52, 56, 60, 64, 68
sW, sXCD, sJ, sTB, sHG, sTHP, sA = 72, 73, 74, 75, 76, 77, 78
sT0, sT1, sT2, sT3, sT4 = 80, 81, 82, 83, 84
sNON = 86
sIT, sINC, sFB, sSPIN = 88, 89, 90, 91
sX = 92
sST = 94
sBARN = 96

def srd(r, p, size):
    e(f"s_mov_b32 s{r}, s{p}")
    e(f"s_and_b32 s{r+1}, s{p+1}, 0xffff")
    e(f"s_mov_b32 s{r+2}, {hex(size)}")
    e(f"s_mov_b32 s{r+3}, 0x20000")

vL = 1
def stamp(idx):
    if not opt['stamps']: return
    e(f"s_memrealtime {sr(sST,2)}")
    e(f"s_memtime {sr(sX,2)}")
    e("s_waitcnt lgkmcnt(0)")
    e(f"v_writelane_b32 v254, s{sST}, {idx}")
    e(f"v_writelane_b32 v255, s{sX}, {idx}")
def stamp_dump():
    if not opt['stamps']: return
    e(f"s_lshl_b32 s{sST}, s2, 3")
    e(f"s_add_u32 s{sST}, s{sST}, s{sW}")
    e(f"s_lshl_b32 s{sST}, s{sST}, 8")
    e(f"s_add_u32 s{sST}, s{sST}, {WS_STAMP}")
    e(f"v_lshlrev_b32 v253, 3, v{vL}")
    e("s_mov_b32 exec_hi, 0")
    e(f"buffer_store_dwordx2 v[254:255], v253, {sr(R_WS,4)}, s{sST} offen")
STAMP_VM = 1 if opt['stamps'] else 0

def dma(voff, srdr, soff, ldsaddr_s, extra=""):
    e(f"s_mov_b32 m0, s{ldsaddr_s}")
    e("s_nop 0")
    e(f"buffer_load_dwordx4 v{voff}, {sr(srdr,4)}, s{soff} offen {extra}lds")

def poll(name, nloads, voff, dst, soffs, maskall=True):
    e(f"s_mov_b32 s{sSPIN}, {SPIN}")
    lab(name)
    for i in range(nloads):
        e(f"buffer_load_dwordx2 {vr(dst+2*i,2)}, v{voff}, {sr(R_WS,4)}, s{soffs[i]} offen sc1")
    e(f"s_sub_u32 s{sSPIN}, s{sSPIN}, 1")
    e(f"s_cmp_eq_u32 s{sSPIN}, 0")
    e(f"s_cbranch_scc1 {name}_done")
    e("s_waitcnt vmcnt(0)")
    e(f"v_cmp_ne_u64 vcc, {sr(sNON,2)}, {vr(dst,2)}")
    for i in range(1, nloads):
        e(f"v_cmp_ne_u64 {sr(sX,2)}, {sr(sNON,2)}, {vr(dst+2*i,2)}")
        e("s_nop 0")
        e(f"s_or_b64 vcc, vcc, {sr(sX,2)}")
    e("s_nop 0")
    e("s_cmp_eq_u64 vcc, 0")
    e(f"s_cbranch_scc0 {name}")
    lab(name + "_done")
    e("s_waitcnt vmcnt(0)")

def signal(name, ctr_off, last, flag_soff_s, tmp):
    e(f"v_mov_b32 v{tmp}, {MISC + ctr_off}")
    e(f"v_mov_b32 v{tmp+1}, 1")
    e(f"s_mov_b64 exec, 1")
    e(f"ds_add_rtn_u32 v{tmp+1}, v{tmp}, v{tmp+1}")
    e("s_waitcnt lgkmcnt(0)")
    e(f"v_readfirstlane_b32 s{sT4}, v{tmp+1}")
    e(f"v_mov_b32 v{tmp}, 0")
    e(f"v_mov_b32 v{tmp+2}, s{sNON}")
    e(f"v_mov_b32 v{tmp+3}, s{sNON+1}")
    e(f"s_cmp_eq_u32 s{sT4}, {last}")
    e(f"s_cbranch_scc0 {name}_nf")
    e(f"buffer_store_dwordx2 {vr(tmp+2,2)}, v{tmp}, {sr(R_WS,4)}, s{flag_soff_s} offen sc1")
    lab(name + "_nf")
    e("s_mov_b64 exec, -1")

hdr = open(f"cdna_kernels/{NAME}.s.ref").read().split("; Override launch")[0]
L.append(hdr.rstrip())
L.append(f"; @launch grid=(256,1,1) block=(512,1,1) lds={LDS_BYTES}")
L.append('.amdgcn_target "amdgcn-amd-amdhsa--gfx950"')
L.append(".text")
L.append(f".globl {NAME}_kernel")
L.append(".p2align 8")
L.append(f".type {NAME}_kernel,@function")
lab(f"{NAME}_kernel")
e("s_cmp_ge_u32 s2, 256")
e("s_cbranch_scc1 L_end")
e("s_load_dwordx16 s[4:19], s[0:1], 0")
e("s_load_dwordx8 s[20:27], s[0:1], 64")
e("s_load_dwordx2 s[28:29], s[0:1], 96")
e(f"s_memrealtime {sr(sNON,2)}")
e("v_lshrrev_b32 v2, 6, v0")
e(f"v_and_b32 v{vL}, 63, v0")
e(f"v_readfirstlane_b32 s{sW}, v2")
e(f"s_and_b32 s{sXCD}, s2, 7")
e(f"s_lshr_b32 s{sJ}, s2, 3")
e(f"s_and_b32 s{sT0}, s{sJ}, 3")
e(f"s_lshl_b32 s{sTB}, s{sXCD}, 2")
e(f"s_add_u32 s{sTB}, s{sTB}, s{sT0}")
e(f"s_lshr_b32 s{sHG}, s{sJ}, 2")
e(f"s_bfe_u32 s{sTHP}, s{sHG}, 0x10001")
e(f"s_and_b32 s{sA}, s{sW}, 3")
cm("LDS init: ones window (512 x 16 B) and the counters")
e("v_and_b32 v4, 1, v0")
e("v_add_u32 v4, -1, v4")
e("v_and_b32 v4, 0x3f803f80, v4")
e("v_mov_b32 v5, v4")
e("v_mov_b32 v6, v4")
e("v_mov_b32 v7, v4")
e(f"v_lshlrev_b32 v3, 4, v0")
e(f"v_add_u32 v3, {ONES_OFF}, v3")
e("ds_write_b128 v3, v[4:7]")
e("v_mov_b32 v8, 0")
e("v_mov_b32 v9, 0")
e("v_mov_b32 v10, 0")
e("v_mov_b32 v11, 0")
e(f"v_mov_b32 v12, {MISC}")
e("ds_write_b128 v12, v[8:11]")
e("ds_write_b128 v12, v[8:11] offset:16")
e(f"v_lshlrev_b32 v2, 4, v{vL}          ; v2 = lane*16")
e("s_waitcnt lgkmcnt(0)")
srd(R_XA, P_XA, 2097152)
srd(R_WS, P_WS, WS_SIZE)
srd(R_DBG, P_DBG, 256)
cm("producer weight: wk (hg even) or wv (hg odd)")
e(f"s_bitcmp1_b32 s{sHG}, 0")
e(f"s_cselect_b32 s{R_W}, s{P_WV}, s{P_WK}")
e(f"s_cselect_b32 s{R_W+1}, s{P_WV+1}, s{P_WK+1}")
e(f"s_and_b32 s{R_W+1}, s{R_W+1}, 0xffff")
e(f"s_mov_b32 s{R_W+2}, 16384")
e(f"s_mov_b32 s{R_W+3}, 0x20000")
stamp(0)
if opt['dbgt']:
    e(f"s_cmp_lt_u32 s2, 8")
    e("s_cbranch_scc0 L_nodbg0")
    e(f"s_cmp_eq_u32 s{sW}, 5")
    e("s_cbranch_scc0 L_nodbg0")
    e(f"v_mov_b32 v4, s{sNON}")
    e(f"s_lshl_b32 s{sT0}, s2, 2")
    e(f"s_add_u32 s{sT0}, s{sT0}, 8")
    e("s_mov_b64 exec, 1")
    e(f"buffer_store_dword v4, off, {sr(R_DBG,4)}, s{sT0}")
    e("s_mov_b64 exec, -1")
    lab("L_nodbg0")
cm("workgroup 0, wave 4 publishes this launch's hand-off tag")
e(f"s_or_b32 s{sNON}, s{sNON}, 1")
e(f"s_lshl_b32 s{sT0}, s2, 3")
e(f"s_add_u32 s{sT0}, s{sT0}, s{sW}")
e(f"s_cmp_eq_u32 s{sT0}, 4")
e("s_cbranch_scc0 L_notag")
e(f"v_mov_b32 v4, s{sNON}")
e(f"v_mov_b32 v5, s{sNON+1}")
e("v_mov_b32 v6, 0")
e("s_mov_b64 exec, 1")
e(f"buffer_store_dwordx2 v[4:5], v6, {sr(R_DBG,4)}, 0 offen sc1")
e("s_mov_b64 exec, -1")
lab("L_notag")
cm("critical DMA: 2 KB of the producer weight, x rows 32*thp + 4w + i")
e(f"s_cmp_lt_u32 s{sHG}, 4")
e("s_cbranch_scc0 L_now")
e(f"s_lshl_b32 s{sT2}, s{sW}, 11")
e(f"s_add_u32 s{sT1}, s{sT2}, {W_OFF}")
dma(2, R_W, sT2, sT1)
e(f"buffer_load_dwordx4 v2, {sr(R_W,4)}, s{sT2} offen offset:1024 lds")
lab("L_now")
e(f"s_lshl_b32 s{sT0}, s{sTHP}, 5")
e(f"s_lshl_b32 s{sT1}, s{sW}, 2")
e(f"s_add_u32 s{sT0}, s{sT0}, s{sT1}")
e(f"s_mul_i32 s{sT1}, s{sT0}, {XROW}")
e(f"s_lshl_b32 s{sT2}, s{sTB}, 6")
e(f"s_add_u32 s{sT2}, s{sT2}, s{sT0}")
e(f"s_lshl_b32 s{sT2}, s{sT2}, 10")
for i in range(4):
    dma(2, R_XA, sT2, sT1)
    if i < 3:
        e(f"s_add_u32 s{sT1}, s{sT1}, {XROW}")
        e(f"s_add_u32 s{sT2}, s{sT2}, 1024")
e(f"s_cmp_lt_u32 s{sHG}, 4")
e("s_cbranch_scc0 L_nob1")
e("s_waitcnt vmcnt(0)")
lab("L_nob1")
stamp(1)
e("s_barrier")
e(f"s_cmp_ge_u32 s{sW}, 4")
e("s_cbranch_scc1 L_aux")

srd(R_WQ, P_WQ, 524288)
cm("other half of the x tile: rows 32*(1-thp) + 8w + i")
e(f"s_xor_b32 s{sT0}, s{sTHP}, 1")
e(f"s_lshl_b32 s{sT0}, s{sT0}, 5")
e(f"s_lshl_b32 s{sT1}, s{sW}, 3")
e(f"s_add_u32 s{sT0}, s{sT0}, s{sT1}")
e(f"s_mul_i32 s{sT1}, s{sT0}, {XROW}")
e(f"s_lshl_b32 s{sT2}, s{sTB}, 6")
e(f"s_add_u32 s{sT2}, s{sT2}, s{sT0}")
e(f"s_lshl_b32 s{sT2}, s{sT2}, 10")
for i in range(8):
    dma(2, R_XA, sT2, sT1)
    if i < 7:
        e(f"s_add_u32 s{sT1}, s{sT1}, {XROW}")
        e(f"s_add_u32 s{sT2}, s{sT2}, 1024")
cm("wq slice: k rows 128w.., 8 rows x 128 B per instruction, 16-B chunks swizzled by row bit 1")
e(f"v_lshrrev_b32 v3, 3, v{vL}          ; r")
e(f"v_and_b32 v4, 7, v{vL}")
e(f"v_bfe_u32 v5, v{vL}, 4, 1           ; (r>>1)&1")
e("v_lshlrev_b32 v5, 2, v5")
e("v_xor_b32 v4, v4, v5")
e("v_lshlrev_b32 v4, 4, v4")
e("v_lshl_add_u32 v3, v3, 10, v4")
e(f"s_lshl_b32 s{sT2}, s{sW}, 17")
e(f"s_lshl_b32 s{sT0}, s{sHG}, 7")
e(f"s_add_u32 s{sT2}, s{sT2}, s{sT0}")
e(f"s_lshl_b32 s{sT1}, s{sW}, 14")
e(f"s_add_u32 s{sT1}, s{sT1}, {WQ_OFF}")
for i in range(16):
    dma(3, R_WQ, sT2, sT1)
    if i < 15:
        e(f"s_add_u32 s{sT1}, s{sT1}, 1024")
        e(f"s_add_u32 s{sT2}, s{sT2}, 8192")
stamp(7)
SA, SB, OA, OB, CA, CB = 16, 32, 48, 64, 80, 96
QA, QB, K0, K1, V0, V1 = 112, 116, 120, 124, 128, 136
vIDX, vK, vV, vM01 = 144, 145, 146, 147
vXA, vWA = 148, 149
FB = 152
cm("Q-projection addresses")
e(f"s_and_b32 s{sT0}, s{sW}, 1            ; th")
e(f"s_lshr_b32 s{sT1}, s{sW}, 1           ; hp")
e(f"v_and_b32 v3, 31, v{vL}")
e(f"s_lshl_b32 s{sT2}, s{sT0}, 5")
e(f"v_add_u32 v3, s{sT2}, v3")
e(f"v_mul_u32_u24 v3, {XROW}, v3")
e(f"v_lshrrev_b32 v4, 5, v{vL}           ; h")
e(f"v_lshl_add_u32 v{vXA}, v4, 4, v3")
e(f"v_bfe_u32 v5, v{vL}, 2, 2            ; r")
e("v_lshl_add_u32 v6, v4, 3, v5          ; 8h + r")
e("v_lshlrev_b32 v6, 7, v6")
e(f"v_bfe_u32 v7, v{vL}, 4, 1            ; g")
e(f"v_and_b32 v8, 1, v{vL}")
e("v_lshl_add_u32 v7, v7, 1, v8          ; 2g + (cc&1)")
e(f"s_lshl_b32 s{sT2}, s{sT1}, 2")
e(f"v_add_u32 v7, s{sT2}, v7")
e(f"v_bfe_u32 v8, v{vL}, 3, 1            ; (r>>1)&1")
e("v_lshlrev_b32 v8, 2, v8")
e("v_xor_b32 v7, v7, v8")
e("v_lshl_add_u32 v6, v7, 4, v6")
e(f"v_bfe_u32 v8, v{vL}, 1, 1")
e("v_lshl_add_u32 v6, v8, 3, v6")
e(f"v_add_u32 v{vWA}, {WQ_OFF}, v6")
cm("attention LDS addresses")
e(f"v_mov_b32 v{vIDX}, 0xdddddddd")
e(f"v_bfe_u32 v5, v{vL}, 4, 1")
e(f"v_xor_b32 v{vM01}, 1, v5")
e("s_waitcnt vmcnt(0)")
stamp(8)
e("s_barrier")
stamp(10)
def qload(ks):
    b = FB + 8*(ks % 4)
    e(f"ds_read_b64_tr_b16 {vr(b,2)}, v{vWA} offset:{ks*2048}")
    e(f"ds_read_b64_tr_b16 {vr(b+2,2)}, v{vWA} offset:{ks*2048+512}")
    e(f"ds_read_b128 {vr(b+4,4)}, v{vXA} offset:{ks*32}")
for ks in range(3): qload(ks)
for ks in range(32):
    b = FB + 8*(ks % 4)
    if ks + 3 < 32:
        qload(ks + 3); e("s_waitcnt lgkmcnt(9)")
    else:
        e(f"s_waitcnt lgkmcnt({3*(31-ks)})")
    c = "0" if ks == 0 else vr(SA, 16)
    e(f"v_mfma_f32_32x32x16_bf16 {vr(SA,16)}, {vr(b,4)}, {vr(b+4,4)}, {c}")
stamp(9)
e("s_barrier")
e(f"s_mov_b32 s{sT0}, {hex(f2u(0.25*1.4426950408889634))}")
nop(10)
for i in range(16): e(f"v_mul_f32 v{SA+i}, s{sT0}, v{SA+i}")
for i in range(8): e(f"v_cvt_pk_bf16_f32 v{QA+i}, v{SA+2*i}, v{SA+2*i+1}")
e(f"s_mov_b32 s{sFB}, 0")
e(f"s_mov_b32 s{sBARN}, 0x13")
if opt['prio']: e(f"s_setprio {opt['prio']}")
stamp(2)
e("s_barrier")
stamp(3)
cm("stand-in for the row max: max over key tile 0 (checked after the loop; fallback = true max)")
e(f"v_add_u32 v{vK}, {W_OFF}, v2")
e(f"ds_read_b128 {vr(K0,4)}, v{vK}")
e("s_waitcnt lgkmcnt(0)")
e(f"v_mfma_f32_32x32x16_bf16 {vr(SA,16)}, {vr(K0,4)}, {vr(QA,4)}, 0")
e(f"v_mfma_f32_32x32x16_bf16 {vr(SB,16)}, {vr(K0,4)}, {vr(QB,4)}, 0")
nop(11)
def max16(dst, s, acc=None):
    if acc is None:
        e(f"v_max3_f32 v{dst}, v{s}, v{s+1}, v{s+2}"); i = 3
        while i + 1 < 16:
            e(f"v_max3_f32 v{dst}, v{dst}, v{s+i}, v{s+i+1}"); i += 2
        e(f"v_max_f32 v{dst}, v{dst}, v{s+15}")
    else:
        for i in range(0, 16, 2): e(f"v_max3_f32 v{dst}, v{dst}, v{s+i}, v{s+i+1}")
max16(4, SA); max16(5, SB)
lab("L_setmax")
cm("v4 / v5 = per-lane max for tiles A / B; combine the two half-waves, C = -(max + 32)")
e("v_mov_b32 v6, v4")
e("v_mov_b32 v7, v5")
e(f"v_add_u32 v{vK}, {W_OFF}, v2")
e(f"v_and_b32 v8, 15, v{vL}")
e("v_permlane32_swap_b32 v4, v6")
e("v_permlane32_swap_b32 v5, v7")
e(f"ds_read_b128 {vr(K0,4)}, v{vK}")
e(f"ds_read_b128 {vr(K1,4)}, v{vK} offset:2048")
e("v_max_f32 v4, v4, v6")
e("v_max_f32 v5, v5, v7")
e(f"v_sub_f32 v{CA}, {hex(f2u(-32.0))}, v4")
e(f"v_sub_f32 v{CB}, {hex(f2u(-32.0))}, v5")
cm("V address: rows 0..15 -> tile data; lanes 16..31 -> ones window")
e(f"v_lshrrev_b32 v9, 5, v{vL}")
e("v_lshlrev_b32 v9, 8, v9")
e("v_lshl_add_u32 v8, v8, 4, v9")
e(f"v_add_u32 v8, {W_OFF}, v8")
e(f"v_and_b32 v9, 31, v{vL}")
e("v_add_u32 v10, -20, v9")
e("v_cmp_gt_u32 vcc, 8, v10")
e("v_and_b32 v9, 11, v9")
e("v_min_u32 v9, 1, v9")
e("v_cndmask_b32 v10, 0, 64, vcc")
e("v_lshl_add_u32 v9, v9, 4, v10")
e(f"v_add_u32 v9, {ONES_OFF - 1024}, v9")
e(f"v_cmp_eq_u32 vcc, 1, v{vM01}")
for i in range(1, 16):
    e(f"v_mov_b32 v{CA+i}, v{CA}");
e(f"v_cndmask_b32 v{vV}, v9, v8, vcc")
for i in range(1, 16): e(f"v_mov_b32 v{CB+i}, v{CB}")
e(f"ds_read_b128 {vr(V0,4)}, v{vV} offset:1024")
e(f"ds_read_b128 {vr(V0+4,4)}, v{vV} offset:1536")
e("s_waitcnt lgkmcnt(2)")
e(f"v_mfma_f32_32x32x16_bf16 {vr(SA,16)}, {vr(K0,4)}, {vr(QA,4)}, {vr(CA,16)}")
for i in range(16): e(f"v_mov_b32 v{OA+i}, 0")
for i in range(16): e(f"v_mov_b32 v{OB+i}, 0")
for i in range(8): e(f"v_mov_b32 v{SB+8+i}, 0")
for i in range(4): e(f"v_mov_b32 v{V1+4+i}, 0")
e(f"s_mov_b32 s{sIT}, 0")
e("s_waitcnt lgkmcnt(0)")
e(f"s_mov_b32 s{sINC}, 8192")
def SM(o, a, b): e(f"v_smfmac_f32_32x32x32_bf16 {vr(o,16)}, {vr(a,4)}, {vr(b,8)}, v{vIDX}")
def QK(d, k, q, c): e(f"v_mfma_f32_32x32x16_bf16 {vr(d,16)}, {vr(k,4)}, {vr(q,4)}, {vr(c,16)}")
def EX(s, a, b):
    for i in range(a, b): e(f"v_exp_f32 v{s+i}, v{s+i}")
L.append(".p2align 6")
lab("L_att_loop")
for u in range(4):
    kc, kn = (K0, K1) if u % 2 == 0 else (K1, K0)
    vc, vp = (V0, V1) if u % 2 == 0 else (V1, V0)
    voffs = ((u + 1) % 4) * 2048 + 1024
    koffs = ((u + 2) % 4) * 2048
    EX(SA, 0, 2)
    SM(OB, vp + 4, SB + 8)
    e("s_waitcnt lgkmcnt(1)")
    EX(SA, 2, 5)
    QK(SB, kc, QB, CB)
    if u == 3: pass
    e(f"ds_read_b128 {vr(vp,4)}, v{vV} offset:{voffs}")
    EX(SA, 5, 10)
    SM(OA, vc, SA)
    e(f"ds_read_b128 {vr(vp+4,4)}, v{vV} offset:{voffs+512}")
    EX(SA, 10, 16)
    EX(SB, 0, 2)
    SM(OA, vc + 4, SA + 8)
    e("s_waitcnt lgkmcnt(2)")
    if u == 1:
        cm("next group of 4 key tiles: address step, and (first 3 trips) the barrier that publishes it")
        e(f"s_cmp_eq_u32 s{sIT}, 1")
        e(f"s_cselect_b32 s{sINC}, {hex((-(W_OFF + 8192)) & 0xffffffff)}, 8192" if False else f"s_cselect_b32 s{sINC}, s{sT2}, s{sT3}")
        e(f"s_cmp_eq_u32 s{sIT}, 15")
        e(f"s_cselect_b32 s{sINC}, 0, s{sINC}")
    EX(SB, 2, 5)
    QK(SA, kn, QA, CA)
    e(f"ds_read_b128 {vr(kc,4)}, v{vK} offset:{koffs}")
    EX(SB, 5, 10)
    SM(OB, vc, SB)
    if u == 1:
        e(f"s_bitcmp1_b32 s{sBARN}, s{sIT}")
        e("s_cbranch_scc0 L_nobar")
        e("s_barrier")
        lab("L_nobar")
        e(f"v_add_u32 v{vK}, s{sINC}, v{vK}")
    if u == 2:
        e(f"v_mad_i32_i24 v{vV}, s{sINC}, v{vM01}, v{vV}")
    if u == 3:
        e(f"s_add_u32 s{sIT}, s{sIT}, 1")
        e(f"s_cmp_lt_u32 s{sIT}, 16")
    EX(SB, 10, 16)
e("s_cbranch_scc1 L_att_loop")
idx = L.index(f"    s_mov_b32 s{sINC}, 8192")
L[idx] = f"    s_mov_b32 s{sT2}, {hex((-(W_OFF + 8192)) & 0xffffffff)}\n    s_mov_b32 s{sT3}, 8192"
nop(2)
SM(OB, V1 + 4, SB + 8)
e("s_waitcnt lgkmcnt(0)")
nop(12)
cm("run-time check of the stand-in: l must be finite and <= 2^100, else redo with the true row max")
e(f"s_mov_b32 s{sT0}, {hex(f2u(2.0**100) if not opt['force_fb'] else f2u(2.0**-20))}")
e(f"v_cmp_nle_f32 vcc, v{OA+8}, s{sT0}" .replace("v_cmp_nle_f32 vcc", "v_cmp_nle_f32_e64 vcc"))
e(f"v_cmp_nle_f32_e64 {sr(sX,2)}, v{OB+8}, s{sT0}")
e("s_nop 1")
e(f"s_or_b64 vcc, vcc, {sr(sX,2)}")
e("s_cmp_eq_u64 vcc, 0")
e("s_cbranch_scc1 L_att_done")
e(f"s_cmp_eq_u32 s{sFB}, 0")
e("s_cbranch_scc0 L_att_done")
cm("fallback: exact row max over all 64 key tiles, then repeat the main loop")
e(f"s_mov_b32 s{sFB}, 1")
e(f"s_mov_b32 s{sBARN}, 0")
e(f"v_mov_b32 v4, 0xff800000")
e(f"v_mov_b32 v5, 0xff800000")
e(f"v_add_u32 v{vK}, {W_OFF}, v2")
e(f"s_mov_b32 s{sIT}, 0")
lab("L_fb_loop")
e(f"ds_read_b128 {vr(K0,4)}, v{vK}")
e("s_waitcnt lgkmcnt(0)")
e(f"v_mfma_f32_32x32x16_bf16 {vr(SA,16)}, {vr(K0,4)}, {vr(QA,4)}, 0")
e(f"v_mfma_f32_32x32x16_bf16 {vr(SB,16)}, {vr(K0,4)}, {vr(QB,4)}, 0")
e(f"s_cmp_eq_u32 s{sIT}, 7")
e(f"s_cselect_b32 s{sINC}, {hex((-(W_OFF + 7*2048)) & 0xffffffff)}, 2048".replace(", 2048", f", s{sT1}"))
L.insert(len(L)-2, f"    s_mov_b32 s{sT1}, 2048")
e(f"v_add_u32 v{vK}, s{sINC}, v{vK}")
nop(10)
max16(4, SA, 1); max16(5, SB, 1)
e(f"s_add_u32 s{sIT}, s{sIT}, 1")
e(f"s_cmp_lt_u32 s{sIT}, 64")
e("s_cbranch_scc1 L_fb_loop")
e("s_branch L_setmax")
lab("L_att_done")
stamp(6)
cm("normalise, publish O fragments")
e(f"v_rcp_f32 v4, v{OA+8}")
e(f"v_rcp_f32 v5, v{OB+8}")
e(f"v_mov_b32 v6, {MISC+16}")
e(f"ds_read_b64 v[8:9], v6")
e(f"s_and_b32 s{sT0}, s{sW}, 1")
e(f"s_lshl_b32 s{sT1}, s{sTB}, 1")
e(f"s_add_u32 s{sT0}, s{sT0}, s{sT1}")
e(f"s_lshl_b32 s{sT0}, s{sT0}, 5          ; (tb*2+th)*32")
e(f"s_lshl_b32 s{sT1}, s{sHG}, 2")
e(f"s_add_u32 s{sT0}, s{sT0}, s{sT1}")
e(f"s_and_b32 s{sT1}, s{sW}, 2")
e(f"s_add_u32 s{sT0}, s{sT0}, s{sT1}")
e(f"s_lshl_b32 s{sT0}, s{sT0}, 10")
e(f"s_add_u32 s{sT0}, s{sT0}, {WS_O}")
for i in range(8): e(f"v_mul_f32 v{OA+i}, v4, v{OA+i}")
for i in range(4): e(f"v_cvt_pk_bf16_f32 v{SA+i}, v{OA+2*i}, v{OA+2*i+1}")
e(f"buffer_store_dwordx4 {vr(SA,4)}, v2, {sr(R_WS,4)}, s{sT0} offen sc1")
for i in range(8): e(f"v_mul_f32 v{OB+i}, v5, v{OB+i}")
for i in range(4): e(f"v_cvt_pk_bf16_f32 v{SA+4+i}, v{OB+2*i}, v{OB+2*i+1}")
e(f"buffer_store_dwordx4 {vr(SA+4,4)}, v2, {sr(R_WS,4)}, s{sT0} offen offset:1024 sc1")
e("s_waitcnt lgkmcnt(0)")
e("s_barrier")
stamp(4)
e(f"v_readfirstlane_b32 s{sNON}, v8")
e(f"v_readfirstlane_b32 s{sNON+1}, v9")
e(f"s_lshl_b32 s{sT1}, s{sTB}, 3")
e(f"s_add_u32 s{sT1}, s{sT1}, s{sHG}")
e(f"s_lshl_b32 s{sT1}, s{sT1}, 7")
e(f"s_add_u32 s{sT1}, s{sT1}, {FL_O}")
e("s_waitcnt vmcnt(0)")
signal("L_sigO", 8, 3, sT1, 4)
stamp(5)
stamp_dump()
e("s_endpgm")

lab("L_aux")
srd(R_SRE, P_SRE, 8388608)
srd(R_SIM, P_SIM, 8388608)
srd(R_XB, P_XB, 2097152)
srd(R_WO, P_WO, 524288)
srd(R_OUT, P_OUT, 4194304)
BUF = 16
BP = 144
FR = 176
ACC = 192
D1, D2 = 208, 224
vT = 240
cm("K / V projection: workgroups hg<4, aux waves 0,1 (16 tokens each)")
e(f"s_cmp_lt_u32 s{sHG}, 4")
e("s_cbranch_scc0 L_noprod")
e(f"s_cmp_lt_u32 s{sA}, 2")
e("s_cbranch_scc0 L_noprod")
e(f"v_and_b32 v3, 15, v{vL}")
e(f"v_lshrrev_b32 v4, 4, v{vL}           ; q")
e(f"s_lshl_b32 s{sT0}, s{sTHP}, 5")
e(f"s_lshl_b32 s{sT1}, s{sA}, 4")
e(f"s_add_u32 s{sT0}, s{sT0}, s{sT1}")
e(f"v_add_u32 v5, s{sT0}, v3")
e(f"v_mul_u32_u24 v5, {XROW}, v5")
e("v_lshl_add_u32 v5, v4, 4, v5")
e(f"v_bfe_u32 v6, v{vL}, 2, 2            ; r")
e("v_lshl_add_u32 v6, v4, 3, v6")
e("v_lshlrev_b32 v6, 5, v6")
e(f"v_add_u32 v6, {W_OFF}, v6")
e(f"v_and_b32 v7, 3, v{vL}               ; cc")
e(f"s_lshl_b32 s{sT2}, s{sTB}, 1")
e(f"s_add_u32 s{sT2}, s{sT2}, s{sTHP}")
e(f"s_lshl_b32 s{sT3}, s{sT2}, 11")
def kvchain(isV):
    for ks in range(16):
        b = BUF + 8*ks
        e(f"ds_read_b64_tr_b16 {vr(b,2)}, v6 offset:{ks*1024}")
        e(f"ds_read_b64_tr_b16 {vr(b+2,2)}, v6 offset:{ks*1024+128}")
        e(f"ds_read_b128 {vr(b+4,4)}, v5 offset:{ks*64}")
        if ks >= 3:
            k2 = ks - 3; b2 = BUF + 8*k2
            e("s_waitcnt lgkmcnt(9)")
            a, bb = (b2+4, b2) if isV else (b2, b2+4)
            e(f"v_mfma_f32_16x16x32_bf16 {vr(ACC,4)}, {vr(a,4)}, {vr(bb,4)}, {'0' if k2==0 else vr(ACC,4)}")
    for k2 in range(13, 16):
        b2 = BUF + 8*k2
        e(f"s_waitcnt lgkmcnt({3*(15-k2)})")
        a, bb = (b2+4, b2) if isV else (b2, b2+4)
        e(f"v_mfma_f32_16x16x32_bf16 {vr(ACC,4)}, {vr(a,4)}, {vr(bb,4)}, {vr(ACC,4)}")
e(f"s_bitcmp1_b32 s{sHG}, 0")
e("s_cbranch_scc1 L_prodV")
e("v_lshl_add_u32 v6, v7, 3, v6")
kvchain(False)
cm("K: (q>>1)*512 + (16b+n)*16 + (q&1)*8")
e("v_lshrrev_b32 v8, 1, v4")
e("v_lshlrev_b32 v8, 9, v8")
e(f"s_lshl_b32 s{sT1}, s{sA}, 8")
e("s_branch L_prodS")
lab("L_prodV")
e("v_and_b32 v8, 1, v7")
e("v_lshl_add_u32 v6, v8, 4, v6")
e("v_lshrrev_b32 v8, 1, v7")
e("v_lshl_add_u32 v6, v8, 3, v6")
kvchain(True)
cm("V: 1024 + b*512 + (q>>1)*256 + n*16 + (q&1)*8")
e("v_lshrrev_b32 v8, 1, v4")
e("v_lshlrev_b32 v8, 8, v8")
e(f"s_lshl_b32 s{sT1}, s{sA}, 9")
e(f"s_add_u32 s{sT1}, s{sT1}, 1024")
lab("L_prodS")
e("v_lshl_add_u32 v8, v3, 4, v8")
e("v_and_b32 v9, 1, v4")
e("v_lshl_add_u32 v8, v9, 3, v8")
e(f"s_add_u32 s{sT3}, s{sT3}, s{sT1}")
nop(4)
e(f"v_cvt_pk_bf16_f32 v10, v{ACC}, v{ACC+1}")
e(f"v_cvt_pk_bf16_f32 v11, v{ACC+2}, v{ACC+3}")
e(f"buffer_store_dwordx2 v[10:11], v8, {sr(R_WS,4)}, s{sT3} offen sc1")
stamp(14)
e("s_waitcnt vmcnt(0)")
stamp(15)
cm("tag from LDS (written by aux wave 3), bounded spin")
e(f"s_mov_b32 s{sSPIN}, {SPIN*8}")
e(f"v_mov_b32 v12, {MISC+16}")
lab("L_tagl")
e("ds_read_b64 v[14:15], v12")
e(f"s_sub_u32 s{sSPIN}, s{sSPIN}, 1")
e(f"s_cmp_eq_u32 s{sSPIN}, 0")
e("s_cbranch_scc1 L_tagl_done")
e("s_waitcnt lgkmcnt(0)")
e("v_cmp_eq_u32 vcc, 0, v14")
e("s_nop 0")
e("s_cmp_eq_u64 vcc, 0")
e("s_cbranch_scc0 L_tagl")
lab("L_tagl_done")
e("s_waitcnt lgkmcnt(0)")
e(f"v_readfirstlane_b32 s{sNON}, v14")
e(f"v_readfirstlane_b32 s{sNON+1}, v15")
cm("flag slot of (tile j, kind): line (j&3)*8 + (j>>3), slot ((j>>2)&1)*2 + kind")
e(f"s_and_b32 s{sT1}, s{sT2}, 3")
e(f"s_lshl_b32 s{sT1}, s{sT1}, 3")
e(f"s_lshr_b32 s{sT0}, s{sT2}, 3")
e(f"s_add_u32 s{sT1}, s{sT1}, s{sT0}")
e(f"s_lshl_b32 s{sT1}, s{sT1}, 7")
e(f"s_bfe_u32 s{sT0}, s{sT2}, 0x10002")
e(f"s_lshl_b32 s{sT0}, s{sT0}, 6")
e(f"s_add_u32 s{sT1}, s{sT1}, s{sT0}")
e(f"s_and_b32 s{sT0}, s{sHG}, 1")
e(f"s_lshl_b32 s{sT0}, s{sT0}, 5")
e(f"s_add_u32 s{sT1}, s{sT1}, s{sT0}")
e(f"s_add_u32 s{sT1}, s{sT1}, {FL_KV}")
signal("L_sigKV", 0, 1, sT1, 4)
e("s_branch L_tagged")
lab("L_noprod")
e(f"s_cmp_eq_u32 s{sA}, 3")
e("s_cbranch_scc0 L_tagged")
cm("aux wave 3 fetches this launch's hand-off tag (bounded spin) and posts it in LDS")
e(f"s_mov_b32 s{sSPIN}, {SPIN}")
e("v_mov_b32 v12, 0")
lab("L_tag")
e(f"buffer_load_dwordx2 v[14:15], v12, {sr(R_DBG,4)}, 0 offen sc1")
e(f"s_sub_u32 s{sSPIN}, s{sSPIN}, 1")
e(f"s_cmp_eq_u32 s{sSPIN}, 0")
e("s_cbranch_scc1 L_tag_done")
e("s_waitcnt vmcnt(0)")
e("v_cmp_eq_u32 vcc, 0, v14")
e("s_nop 0")
e("s_cmp_eq_u64 vcc, 0")
e("s_cbranch_scc0 L_tag")
lab("L_tag_done")
e("s_waitcnt vmcnt(0)")
e(f"v_mov_b32 v12, {MISC+16}")
e("ds_write_b64 v12, v[14:15]")
lab("L_tagged")
stamp(2)
sT1S, sEB, sTT, sS2, sCB = 98, 99, 100, 101, 79
R_HRE, R_HIM = R_XA, R_W
e(f"s_and_b32 s{sT0}, s{sJ}, 3")
e(f"s_lshl_b32 s{sT1S}, s{sXCD}, 2")
e(f"s_add_u32 s{sT1S}, s{sT1S}, s{sT0}       ; t1s")
e(f"s_lshr_b32 s{sT0}, s{sJ}, 2")
e(f"s_lshl_b32 s{sT0}, s{sT0}, 1")
e(f"s_lshr_b32 s{sEB}, s{sA}, 1")
e(f"s_add_u32 s{sEB}, s{sEB}, s{sT0}         ; eb")
e(f"s_and_b32 s{sTT}, s{sA}, 1               ; tt")
e(f"s_and_b32 s{sT0}, s{sJ}, 7")
e(f"s_lshl_b32 s{sS2}, s{sXCD}, 3")
e(f"s_add_u32 s{sS2}, s{sS2}, s{sT0}         ; s2")
e(f"s_lshr_b32 s{sT0}, s{sJ}, 3")
e(f"s_lshl_b32 s{sCB}, s{sT0}, 2")
e(f"s_add_u32 s{sCB}, s{sCB}, s{sA}          ; cb")
srd(R_HRE, P_HRE, 524288)
srd(R_HIM, P_HIM, 524288)
e(f"v_and_b32 v3, 31, v{vL}                ; n")
e(f"v_lshrrev_b32 v4, 5, v{vL}             ; h")
e(f"s_lshl_b32 s{sT0}, s{sTT}, 5")
e(f"v_add_u32 v5, s{sT0}, v3")
e("v_lshlrev_b32 v5, 5, v5")
e(f"v_add_u32 v13, s{sT1S}, v5")
cm("B1 load addresses (8 rows x 128 B per instruction, chunk swizzle on the source side)")
vXE, vXO, vWE, vWO_, vG, vRD = 176+16+48, 241, 242, 243, 244, 246
e(f"v_lshrrev_b32 v5, 3, v{vL}             ; r")
e("v_and_b32 v6, 3, v5")
e("v_lshrrev_b32 v7, 2, v5")
e("v_lshl_add_u32 v6, v7, 3, v6            ; 8*(r>>2) + (r&3)")
e("v_lshrrev_b32 v7, 1, v5")
e(f"v_and_b32 v8, 7, v{vL}")
e("v_xor_b32 v7, v7, v8")
e("v_lshlrev_b32 v7, 4, v7")
e("v_xor_b32 v8, 64, v7")
e(f"v_lshl_add_u32 v{vXE}, v6, 16, v7")
e(f"v_lshl_add_u32 v{vXO}, v6, 16, v8")
e(f"v_lshl_add_u32 v{vWE}, v6, 10, v7")
e(f"v_lshl_add_u32 v{vWO_}, v6, 10, v8")
cm("instruction 2 of W (im rows e = 16cb + {0..3, 8..11}); for cb = 0 row e = 0 is replaced by cos row 256")
e(f"s_lshl_b32 s{sT0}, s{sCB}, 14")
e(f"v_add_u32 v9, s{sT0}, v{vWE}")
e("v_cmp_gt_u32 vcc, 0x80, v9")
e(f"v_mov_b32 v{vG}, s{P_HIM}")
e(f"v_mov_b32 v{vG+1}, s{P_HIM+1}")
e(f"v_mov_b32 v10, s{P_HRE}")
e(f"v_mov_b32 v11, s{P_HRE+1}")
e(f"v_cndmask_b32 v{vG}, v{vG}, v10, vcc")
e(f"v_cndmask_b32 v{vG+1}, v{vG+1}, v11, vcc")
e("v_add_u32 v10, 0x40000, v9")
e("v_cndmask_b32 v9, v9, v10, vcc")
e(f"v_add_co_u32 v{vG}, vcc, v{vG}, v9")
e("s_nop 1")
e(f"v_addc_co_u32 v{vG+1}, vcc, 0, v{vG+1}, vcc")
cm("staging read addresses: row m, chunk (2s+h) ^ ((m>>1)&7)")
e(f"s_lshl_b32 s{sT0}, s{sA}, 12")
e(f"s_add_u32 s{sT0}, s{sT0}, {WO_STG}")
e("v_bfe_u32 v5, v3, 1, 3")
e("v_xor_b32 v5, v5, v4")
e("v_lshlrev_b32 v5, 4, v5")
e("v_lshl_add_u32 v5, v3, 7, v5")
e(f"v_add_u32 v{vRD}, s{sT0}, v5")
for s_ in range(1, 4): e(f"v_xor_b32 v{vRD+s_}, {32*s_}, v{vRD}")
e(f"v_add_u32 v250, s{sT0}, v2")
cm("flags of the K/V tiles a, a+4, ...: 8 lines x 4 slots")
e(f"v_lshlrev_b32 v5, 5, v3")
e(f"s_lshl_b32 s{sT0}, s{sA}, 10")
e(f"s_add_u32 s{sT0}, s{sT0}, {FL_KV}")
e("s_waitcnt vmcnt(0) lgkmcnt(0)")
e("s_barrier                             ; B2")
stamp(16)
e(f"v_mov_b32 v12, {MISC+16}")
e("ds_read_b64 v[14:15], v12")
e("s_waitcnt lgkmcnt(0)")
e(f"v_readfirstlane_b32 s{sNON}, v14")
e(f"v_readfirstlane_b32 s{sNON+1}, v15")
e("s_nop 1")
poll("L_pollKV", 1, 5, 14, [sT0])
stamp(3)
e(f"s_lshl_b32 s{sT2}, s{sA}, 11")
e(f"s_add_u32 s{sT1}, s{sT2}, {W_OFF}")
def kvdma(g):
    dma(2, R_WS, sT2, sT1, "sc1 ")
    e(f"buffer_load_dwordx4 v2, {sr(R_WS,4)}, s{sT2} offen offset:1024 sc1 lds")
    if g == 1: e(f"s_lshl_b32 s{sT1}, s{sA}, 11")
    elif g < 15: e(f"s_add_u32 s{sT1}, s{sT1}, 8192")
    if g < 15: e(f"s_add_u32 s{sT2}, s{sT2}, 8192")
kvdma(0); kvdma(1)
e("s_barrier                             ; B3")
e("s_waitcnt vmcnt(2)")
stamp(18)
e("s_barrier                             ; BA")
for g in range(2, 5): kvdma(g)
e("s_waitcnt vmcnt(6)")
e("s_barrier")
for g in range(5, 11): kvdma(g)
e("s_waitcnt vmcnt(12)")
e("s_barrier")
for g in range(11, 16): kvdma(g)
stamp(17)
sXS, sWS_ = sT3, sT4
e(f"s_lshl_b32 s{sXS}, s{sS2}, 10")
e(f"s_lshl_b32 s{sWS_}, s{sCB}, 14")
e(f"s_add_u32 s{sT0}, s{sXS}, {4*65536}")
e(f"s_add_u32 s{sT1}, s{sXS}, {16*65536}")
e(f"s_add_u32 s{sT2}, s{sXS}, {20*65536}")
e(f"s_add_u32 s{sINC}, s{sWS_}, 4096")
def b1load(c):
    b = BUF + 32*(c % 4); o = 128*c
    e(f"buffer_load_dwordx4 {vr(b,4)}, v{vXE}, {sr(R_XB,4)}, s{sXS} offen offset:{o}")
    e(f"buffer_load_dwordx4 {vr(b+4,4)}, v{vXO}, {sr(R_XB,4)}, s{sT0} offen offset:{o}")
    e(f"buffer_load_dwordx4 {vr(b+8,4)}, v{vXE}, {sr(R_XB,4)}, s{sT1} offen offset:{o}")
    e(f"buffer_load_dwordx4 {vr(b+12,4)}, v{vXO}, {sr(R_XB,4)}, s{sT2} offen offset:{o}")
    e(f"buffer_load_dwordx4 {vr(b+16,4)}, v{vWE}, {sr(R_HRE,4)}, s{sWS_} offen offset:{o}")
    e(f"buffer_load_dwordx4 {vr(b+20,4)}, v{vWO_}, {sr(R_HRE,4)}, s{sINC} offen offset:{o}")
    e(f"global_load_dwordx4 {vr(b+24,4)}, {vr(vG,2)}, off offset:{o}")
    e(f"buffer_load_dwordx4 {vr(b+28,4)}, v{vWO_}, {sr(R_HIM,4)}, s{sINC} offen offset:{o}")
for c in range(4): b1load(c)
cm("DFT-32 fragments")
e("v_lshlrev_b32 v6, 18, v3")
e("v_lshl_add_u32 v6, v4, 4, v6")
for kb in range(2): e(f"buffer_load_dwordx4 {vr(FR+4*kb,4)}, v6, {sr(R_SRE,4)}, 0 offen offset:{32*kb}")
for kb in range(2): e(f"buffer_load_dwordx4 {vr(FR+8+4*kb,4)}, v6, {sr(R_SIM,4)}, 0 offen offset:{32*kb}")
stamp(20)
e("s_waitcnt vmcnt(36)")
stamp(21)
e("s_barrier")
stamp(4)
XF, WF = D1, D2
for c in range(8):
    b = BUF + 32*(c % 4)
    rest = [8*min(3, 7-c) + (4 if c < 4 else 0)]
    e(f"s_waitcnt vmcnt({rest[0] + 4})")
    for i in range(4): e(f"ds_write_b128 v250, {vr(b+4*i,4)} offset:{1024*i}")
    e("s_waitcnt lgkmcnt(0)")
    for s_ in range(4): e(f"ds_read_b128 {vr(XF+4*s_,4)}, v{vRD+s_}")
    e(f"s_waitcnt vmcnt({rest[0]}) lgkmcnt(0)")
    for i in range(4): e(f"ds_write_b128 v250, {vr(b+16+4*i,4)} offset:{1024*i}")
    e("s_waitcnt lgkmcnt(0)")
    for s_ in range(4): e(f"ds_read_b128 {vr(WF+4*s_,4)}, v{vRD+s_}")
    if c + 4 < 8: b1load(c + 4)
    for s_ in range(4):
        e(f"s_waitcnt lgkmcnt({3-s_})")
        e(f"v_mfma_f32_32x32x16_bf16 {vr(ACC,16)}, {vr(XF+4*s_,4)}, {vr(WF+4*s_,4)}, {'0' if c==0 and s_==0 else vr(ACC,16)}")
stamp(22)
cm("rows of the sequence DFT matrices for B2 (requested now, used later)")
e("v_lshlrev_b32 v5, 12, v13")
e("v_lshl_add_u32 v5, v4, 6, v5")
for i in range(4): e(f"buffer_load_dwordx4 {vr(BUF+4*i,4)}, v5, {sr(R_SRE,4)}, 0 offen offset:{16*i}")
for i in range(4): e(f"buffer_load_dwordx4 {vr(BUF+16+4*i,4)}, v5, {sr(R_SIM,4)}, 0 offen offset:{16*i}")
cm("H address: (t1*64 + s2)*HROW + (16cb + 8h)*4")
e(f"v_mul_u32_u24 v5, {64*HROW}, v3")
e("v_lshl_add_u32 v5, v4, 5, v5")
e(f"s_mul_i32 s{sT0}, s{sS2}, {HROW}")
e(f"s_lshl_b32 s{sT1}, s{sCB}, 6")
e(f"s_add_u32 s{sT0}, s{sT0}, s{sT1}")
e(f"s_add_u32 s{sT0}, s{sT0}, {WS_H}")
vZ = BP
for i in range(8): e(f"v_cvt_pk_bf16_f32 v{vZ+i}, v{ACC+2*i}, v{ACC+2*i+1}")
nop(2)
e(f"v_mfma_f32_32x32x16_bf16 {vr(D1,16)}, {vr(vZ,4)}, {vr(FR,4)}, 0")
e(f"v_mfma_f32_32x32x16_bf16 {vr(D2,16)}, {vr(vZ,4)}, {vr(FR+8,4)}, 0")
e(f"v_mfma_f32_32x32x16_bf16 {vr(D1,16)}, {vr(vZ+4,4)}, {vr(FR+4,4)}, {vr(D1,16)}")
e(f"v_mfma_f32_32x32x16_bf16 {vr(D2,16)}, {vr(vZ+4,4)}, {vr(FR+12,4)}, {vr(D2,16)}")
nop(12)
for r in range(8):
    e(f"v_sub_f32 v{ACC+r}, v{D1+r}, v{D2+8+r}")
    e(f"v_add_f32 v{ACC+8+r}, -v{D2+r}, -v{D1+8+r}")
e(f"s_cmp_eq_u32 s{sCB}, 0")
e("s_cbranch_scc0 L_nospecial")
cm("columns e = 0 and e = 256 (both purely real rows): lanes 0..31, register 0")
e("s_mov_b32 exec_hi, 0")
e(f"v_mov_b32 v{ACC}, v{D1}")
e(f"v_sub_f32 v{ACC+8}, 0, v{D2}")
e(f"v_sub_f32 v6, 0, v{D2+8}")
e(f"v_cvt_pk_bf16_f32 v6, v{D1+8}, v6")
e(f"buffer_store_dword v6, v5, {sr(R_WS,4)}, s{sT0} offen offset:1024 sc1")
e("s_mov_b64 exec, -1")
lab("L_nospecial")
for r in range(8): e(f"v_cvt_pk_bf16_f32 v{vZ+r}, v{ACC+r}, v{ACC+8+r}")
e(f"buffer_store_dwordx4 {vr(vZ,4)}, v5, {sr(R_WS,4)}, s{sT0} offen sc1")
e(f"buffer_store_dwordx4 {vr(vZ+4,4)}, v5, {sr(R_WS,4)}, s{sT0} offen offset:16 sc1")
e(f"s_lshl_b32 s{sT1}, s2, 5")
e(f"s_add_u32 s{sT1}, s{sT1}, {FL_H}")
e(f"s_mov_b32 s{sT0}, 0x05040100")
e(f"s_mov_b32 s{sT3}, 0x07060302")
e("s_waitcnt vmcnt(0)")
signal("L_sigH", 4, 3, sT1, 8)
stamp(5)
for i in range(16):
    e(f"v_perm_b32 v{BP+2*i}, v{BUF+16+i}, v{BUF+i}, s{sT0}")
    e(f"v_perm_b32 v{BP+2*i+1}, v{BUF+16+i}, v{BUF+i}, s{sT3}")
cm("pull the wo slice of this workgroup towards L2 (one dword per 128-B line)")
e(f"v_lshlrev_b32 v5, 10, v{vL}")
e(f"s_lshl_b32 s{sT0}, s{sA}, 17")
e(f"s_lshl_b32 s{sT1}, s{sHG}, 7")
e(f"s_add_u32 s{sT0}, s{sT0}, s{sT1}")
e(f"s_add_u32 s{sT1}, s{sT0}, 65536")
e(f"buffer_load_dword v6, v5, {sr(R_WO,4)}, s{sT0} offen")
e(f"buffer_load_dword v7, v5, {sr(R_WO,4)}, s{sT1} offen")
cm("B2: wait for every workgroup's H rows (aux wave a polls 64 flags would not do: all 256 are needed)")
e(f"v_lshlrev_b32 v5, 5, v{vL}")
for i in range(4): e(f"s_mov_b32 s{sT0+i}, {FL_H + i*2048}")
poll("L_pollH", 4, 5, BUF, [sT0, sT0+1, sT0+2, sT0+3])
stamp(7)
cm("A rows: e(m) = 32eb + col(m) (eb<8) or 512 - that; col(m) = 16*b2 + 4*(m>>3) + (m&3)")
e("v_and_b32 v5, 3, v3")
e("v_bfe_u32 v6, v3, 2, 1")
e("v_lshl_add_u32 v5, v6, 4, v5")
e("v_lshrrev_b32 v6, 3, v3")
e("v_lshl_add_u32 v5, v6, 2, v5")
e(f"s_lshl_b32 s{sT0}, s{sEB}, 5")
e(f"v_add_u32 v5, s{sT0}, v5")
e("v_sub_u32 v6, 0x200, v5")
e("v_sub_u32 v7, 0x800, v13")
e("v_and_b32 v7, 0x7ff, v7")
e(f"s_cmp_lt_u32 s{sEB}, 8")
e("s_cselect_b64 vcc, 0, -1")
e("v_cndmask_b32 v5, v5, v6, vcc")
e("v_cndmask_b32 v7, v13, v7, vcc")
e(f"v_mul_u32_u24 v6, {32*HROW}, v4")
e("v_lshl_add_u32 v5, v5, 2, v6")
e(f"s_mul_i32 s{sT0}, s{sT1S}, {64*HROW}")
e(f"s_add_u32 s{sT0}, s{sT0}, {WS_H}")
AF = 208
for kb in range(8):
    for w in range(4): e(f"buffer_load_dword v{AF+4*kb+w}, v5, {sr(R_WS,4)}, s{sT0} offen offset:{w*HROW} sc1")
    if kb < 7: e(f"s_add_u32 s{sT0}, s{sT0}, {4*HROW}")
e("v_lshlrev_b32 v7, 11, v7")
e("v_lshl_add_u32 v7, v4, 5, v7")
e(f"s_lshl_b32 s{sT0}, s{sEB}, 6")
e(f"s_add_u32 s{sT0}, s{sT0}, 1024")
for kb in range(8):
    e(f"s_waitcnt vmcnt({28-4*kb})")
    e(f"v_mfma_f32_32x32x16_bf16 {vr(ACC,16)}, {vr(AF+4*kb,4)}, {vr(BP+4*kb,4)}, {'0' if kb==0 else vr(ACC,16)}")
nop(12)
for i in range(8): e(f"v_cvt_pk_bf16_f32 v{BUF+i}, v{ACC+2*i}, v{ACC+2*i+1}")
e(f"buffer_store_dwordx4 {vr(BUF,4)}, v7, {sr(R_OUT,4)}, s{sT0} offen")
e(f"buffer_store_dwordx4 {vr(BUF+4,4)}, v7, {sr(R_OUT,4)}, s{sT0} offen offset:16")
cm("tail: output projection; wo slice -> LDS 64K.., O tile -> LDS 0..")
WO_OFF = 65536
e(f"v_lshrrev_b32 v8, 3, v{vL}          ; r")
e(f"v_and_b32 v9, 7, v{vL}")
e(f"v_bfe_u32 v10, v{vL}, 4, 1")
e("v_lshlrev_b32 v10, 2, v10")
e("v_xor_b32 v9, v9, v10")
e("v_lshlrev_b32 v9, 4, v9")
e("v_lshl_add_u32 v8, v8, 10, v9")
cm("transposing read: row 8h+r, 16-B chunk 4cbk + 2(cc&1) + g, byte 8(cc>>1)")
e(f"v_bfe_u32 v9, v{vL}, 2, 2")
e("v_lshl_add_u32 v9, v4, 3, v9")
e("v_lshlrev_b32 v9, 7, v9")
e(f"v_and_b32 v10, 1, v{vL}")
e(f"v_bfe_u32 v11, v{vL}, 4, 1")
e("v_lshl_add_u32 v10, v10, 1, v11")
e(f"s_lshr_b32 s{sT0}, s{sA}, 1")
e(f"s_lshl_b32 s{sT0}, s{sT0}, 2")
e(f"v_add_u32 v10, s{sT0}, v10")
e(f"v_bfe_u32 v11, v{vL}, 3, 1")
e("v_lshlrev_b32 v11, 2, v11")
e("v_xor_b32 v10, v10, v11")
e("v_lshl_add_u32 v9, v10, 4, v9")
e(f"v_bfe_u32 v11, v{vL}, 1, 1")
e("v_lshl_add_u32 v9, v11, 3, v9")
e(f"v_add_u32 v9, {WO_OFF}, v9")
e(f"v_and_b32 v5, 1, v{vL}")
e("v_lshlrev_b32 v5, 7, v5")
e(f"s_and_b32 s{sT3}, s{sA}, 1")
e(f"s_lshl_b32 s{sT3}, s{sT3}, 15")
e(f"v_add_u32 v6, s{sT3}, v2")
e(f"s_lshl_b32 s{sT3}, s{sTB}, 1")
e(f"s_and_b32 s{sT4}, s{sA}, 1")
e(f"s_add_u32 s{sT3}, s{sT3}, s{sT4}")
e(f"s_lshl_b32 s{sT3}, s{sT3}, 5")
e(f"v_add_u32 v7, s{sT3}, v3")
e("v_lshlrev_b32 v7, 11, v7")
e("v_lshl_add_u32 v7, v4, 5, v7")
e(f"s_lshl_b32 s{sT2}, s{sA}, 17")
e(f"s_lshl_b32 s{sT0}, s{sHG}, 7")
e(f"s_add_u32 s{sT2}, s{sT2}, s{sT0}")
e(f"s_lshl_b32 s{sT1}, s{sA}, 14")
e(f"s_add_u32 s{sT1}, s{sT1}, {WO_OFF}")
stamp(8)
e("s_barrier                             ; B7")
stamp(9)
for i in range(16):
    dma(8, R_WO, sT2, sT1)
    if i < 15:
        e(f"s_add_u32 s{sT1}, s{sT1}, 1024")
        e(f"s_add_u32 s{sT2}, s{sT2}, 8192")
e(f"s_lshl_b32 s{sT0}, s{sTB}, 3")
e(f"s_lshl_b32 s{sT1}, s{sA}, 1")
e(f"s_add_u32 s{sT0}, s{sT0}, s{sT1}")
e(f"s_lshl_b32 s{sT0}, s{sT0}, 7")
e(f"s_add_u32 s{sT0}, s{sT0}, {FL_O}")
e(f"s_lshl_b32 s{sT2}, s{sTB}, 16")
e(f"s_lshl_b32 s{sT1}, s{sA}, 13")
e(f"s_add_u32 s{sT2}, s{sT2}, s{sT1}")
e(f"s_add_u32 s{sT2}, s{sT2}, {WS_O}")
stamp(6)
poll("L_pollO", 1, 5, 14, [sT0])
stamp(10)
for th in range(2):
    for q in range(2):
        e(f"s_mov_b32 m0, s{sT1}")
        e("s_nop 0")
        for i in range(4): e(f"buffer_load_dwordx4 v2, {sr(R_WS,4)}, s{sT2} offen offset:{1024*i} sc1 lds")
        d = 4096 if q == 0 else 32768 - 4096
        if not (th == 1 and q == 1):
            e(f"s_add_u32 s{sT1}, s{sT1}, {d}")
            e(f"s_add_u32 s{sT2}, s{sT2}, {d}")
e(f"s_lshl_b32 s{sT0}, s{sHG}, 7")
e(f"s_lshr_b32 s{sT1}, s{sA}, 1")
e(f"s_lshl_b32 s{sT1}, s{sT1}, 6")
e(f"s_add_u32 s{sT0}, s{sT0}, s{sT1}")
e("s_waitcnt vmcnt(0)")
stamp(11)
e("s_barrier                             ; B8")
def oload(ks):
    b = BUF + 8*(ks % 4)
    e(f"ds_read_b64_tr_b16 {vr(b,2)}, v9 offset:{ks*2048}")
    e(f"ds_read_b64_tr_b16 {vr(b+2,2)}, v9 offset:{ks*2048+512}")
    e(f"ds_read_b128 {vr(b+4,4)}, v6 offset:{ks*1024}")
for ks in range(3): oload(ks)
for ks in range(32):
    b = BUF + 8*(ks % 4)
    if ks + 3 < 32:
        oload(ks + 3); e("s_waitcnt lgkmcnt(9)")
    else:
        e(f"s_waitcnt lgkmcnt({3*(31-ks)})")
    e(f"v_mfma_f32_32x32x16_bf16 {vr(ACC,16)}, {vr(b,4)}, {vr(b+4,4)}, {'0' if ks==0 else vr(ACC,16)}")
nop(12)
for i in range(8): e(f"v_cvt_pk_bf16_f32 v{BP+i}, v{ACC+2*i}, v{ACC+2*i+1}")
e(f"buffer_store_dwordx4 {vr(BP,4)}, v7, {sr(R_OUT,4)}, s{sT0} offen")
e(f"buffer_store_dwordx4 {vr(BP+4,4)}, v7, {sr(R_OUT,4)}, s{sT0} offen offset:16")
if opt['dbgt']:
    e(f"s_cmp_lt_u32 s2, 6")
    e("s_cbranch_scc0 L_end")
    e(f"s_cmp_eq_u32 s{sW}, 4")
    e("s_cbranch_scc0 L_end")
    e("s_waitcnt vmcnt(0)")
    e(f"s_memrealtime {sr(sST,2)}")
    e("s_waitcnt lgkmcnt(0)")
    e(f"v_mov_b32 v4, s{sST}")
    e(f"s_lshl_b32 s{sT0}, s2, 2")
    e(f"s_add_u32 s{sT0}, s{sT0}, 40")
    e("s_mov_b64 exec, 1")
    e(f"buffer_store_dword v4, off, {sr(R_DBG,4)}, s{sT0}")
stamp(12)
if opt['stamps']: e("s_waitcnt vmcnt(0)")
stamp(13)
stamp_dump()
lab("L_end")
e("s_endpgm")
L.append(f""".section .rodata,"a"
.p2align 6
.amdhsa_kernel {NAME}_kernel
  .amdhsa_next_free_vgpr 256
  .amdhsa_next_free_sgpr 102
  .amdhsa_accum_offset 256
  .amdhsa_group_segment_fixed_size 0
  .amdhsa_kernarg_size 104
  .amdhsa_user_sgpr_count 2
  .amdhsa_user_sgpr_kernarg_segment_ptr 1
  .amdhsa_system_sgpr_workgroup_id_x 1
.end_amdhsa_kernel""")
txt = "\n".join(L) + "\n"
open(sys.argv[1], "w").write(txt)
import hazcheck
print(hazcheck.check(txt), "hazards;", len(txt), "bytes")
```

```python
import sys, struct
NAME = "concat_heads__grouped_kv_mqa__spectral_fnet__prompt"
opt = dict(stamps=0, prioA=1, prioX=2, boost=1, force_fb=0, dbgt=0, dry=1, codepf=1, shift=98, outsc1=0, cluster=1, fast=1, nob=0, l2pf=1)
for a in sys.argv[2:]:
    k, v = a.split('='); opt[k] = int(v)

L = []
def e(s=""): L.append("    " + s)
def lab(s): L.append(s + ":")
def cm(s): L.append("    ; " + s)
def vr(a, n): return f"v[{a}:{a+n-1}]" if n > 1 else f"v{a}"
def sr(a, n): return f"s[{a}:{a+n-1}]" if n > 1 else f"s{a}"
def nop(n):
    while n > 0:
        k = min(n, 16); e(f"s_nop {k-1}"); n -= k
def f2u(x): return struct.unpack('<I', struct.pack('<f', x))[0]
OSC = " sc1" if opt['outsc1'] else ""

X_OFF, XROW = 0, 1040
WQ_OFF = 66560
W_OFF = 132096
ONES_OFF = 148480
MISC = 156672
STG = 114688
WO_OFF = 65536
LDS_BYTES = 156800
WS_KV, WS_O, WS_H, WS_FL = 0, 0x40000, 0x240000, 0x480000
FL_KV, FL_H, FL_O, FL_X = WS_FL, WS_FL + 0x4000, WS_FL + 0xC000, WS_FL + 0x14000
WS_STAMP = 0x4A0000
WS_SIZE = 0x540000
HROW = 1056
SPIN = 400000
VSCALE = 64
P_XA, P_WQ, P_WK, P_WV, P_WO, P_XB, P_SRE, P_SIM = 4, 6, 8, 10, 12, 14, 16, 18
P_HRE, P_HIM, P_OUT, P_DBG, P_WS = 20, 22, 24, 26, 28
R_XA, R_WQ, R_W, R_WS, R_WO, R_XB, R_SRE, R_SIM, R_OUT, R_DBG = 32, 36, 40, 44, 48, 52, 56, 60, 64, 68
sW, sXCD, sJ, sTB, sHG, sTHP, sA = 72, 73, 74, 75, 76, 77, 78
sT0, sT1, sT2, sT3, sT4 = 80, 81, 82, 83, 84
sDRY = 85
sNON = 86
sIT, sINC, sFB, sSPIN = 88, 89, 90, 91
sX = 92
sST = 94
sBARN = 96

def srd(r, p, size):
    e(f"s_mov_b32 s{r}, s{p}")
    e(f"s_and_b32 s{r+1}, s{p+1}, 0xffff")
    e(f"s_mov_b32 s{r+2}, {hex(size)}")
    e(f"s_mov_b32 s{r+3}, 0x20000")

LOW = [False]
vL = 1
def stamp(idx):
    if not opt['stamps']: return
    e(f"s_memrealtime {sr(sST,2)}")
    e(f"s_memtime {sr(sX,2)}")
    e("s_waitcnt lgkmcnt(0)")
    if LOW[0]: e("s_setprio 2")
    e(f"v_writelane_b32 v254, s{sST}, {idx}")
    e(f"v_writelane_b32 v255, s{sX}, {idx}")
    if LOW[0]: e("s_setprio 0")
def stamp_dump():
    if not opt['stamps']: return
    e(f"s_lshl_b32 s{sST}, s2, 3")
    e(f"s_add_u32 s{sST}, s{sST}, s{sW}")
    e(f"s_lshl_b32 s{sST}, s{sST}, 8")
    e(f"s_add_u32 s{sST}, s{sST}, {WS_STAMP}")
    e(f"v_lshlrev_b32 v253, 3, v{vL}")
    e("s_mov_b32 exec_hi, 0")
    e(f"buffer_store_dwordx2 v[254:255], v253, {sr(R_WS,4)}, s{sST} offen")

def dma(voff, srdr, soff, ldsaddr_s, extra=""):
    e(f"s_mov_b32 m0, s{ldsaddr_s}")
    e("s_nop 0")
    e(f"buffer_load_dwordx4 v{voff}, {sr(srdr,4)}, s{soff} offen {extra}lds")
def dma_run(n, voff, srdr, soff, lds_s, dsrc, dlds, extra=""):
    for i in range(n):
        e(f"s_mov_b32 m0, s{lds_s}")
        if i < n - 1: e(f"s_add_u32 s{lds_s}, s{lds_s}, {dlds}")
        else: e("s_nop 0")
        e(f"buffer_load_dwordx4 v{voff}, {sr(srdr,4)}, s{soff} offen {extra}lds")
        if i < n - 1: e(f"s_add_u32 s{soff}, s{soff}, {dsrc}")

def poll(name, nloads, voff, dst, soffs, sleep=0):
    e(f"s_mov_b32 s{sSPIN}, {SPIN}")
    lab(name)
    for i in range(nloads):
        e(f"buffer_load_dwordx2 {vr(dst+2*i,2)}, v{voff}, {sr(R_WS,4)}, s{soffs[i]} offen sc1")
    e(f"s_sub_u32 s{sSPIN}, s{sSPIN}, 1")
    e(f"s_cmp_eq_u32 s{sSPIN}, 0")
    e(f"s_cbranch_scc1 {name}_done")
    e("s_waitcnt vmcnt(0)")
    e(f"v_cmp_ne_u64 vcc, {sr(sNON,2)}, {vr(dst,2)}")
    for i in range(1, nloads):
        e(f"v_cmp_ne_u64 {sr(sX,2)}, {sr(sNON,2)}, {vr(dst+2*i,2)}")
        e("s_nop 0")
        e(f"s_or_b64 vcc, vcc, {sr(sX,2)}")
    e("s_nop 0")
    e("s_cmp_eq_u64 vcc, 0")
    if sleep:
        e(f"s_cbranch_scc1 {name}_done")
        e(f"s_sleep {sleep}")
        e(f"s_branch {name}")
    else:
        e(f"s_cbranch_scc0 {name}")
    lab(name + "_done")
    e("s_waitcnt vmcnt(0)")

def lds_wait(name, off, value, tmp, sleep=0):
    e(f"s_mov_b32 s{sSPIN}, {SPIN*8}")
    e(f"v_mov_b32 v{tmp}, {MISC + off}")
    lab(name)
    e(f"ds_read_b32 v{tmp+1}, v{tmp}")
    e(f"s_sub_u32 s{sSPIN}, s{sSPIN}, 1")
    e(f"s_cmp_eq_u32 s{sSPIN}, 0")
    e(f"s_cbranch_scc1 {name}_done")
    e("s_waitcnt lgkmcnt(0)")
    e(f"v_readfirstlane_b32 s{sT4}, v{tmp+1}")
    e("s_nop 0")
    e(f"s_cmp_ge_u32 s{sT4}, {value}")
    if sleep:
        e(f"s_cbranch_scc1 {name}_done")
        e(f"s_sleep {sleep}")
        e(f"s_branch {name}")
    else:
        e(f"s_cbranch_scc0 {name}")
    lab(name + "_done")
    e("s_waitcnt lgkmcnt(0)")
def lds_add(off, tmp):
    e(f"v_mov_b32 v{tmp}, {MISC + off}")
    e(f"v_mov_b32 v{tmp+1}, 1")
    e("s_mov_b64 exec, 1")
    e(f"ds_add_u32 v{tmp}, v{tmp+1}")
    e("s_mov_b64 exec, -1")
def tag_from_lds(name, tmp):
    e(f"s_mov_b32 s{sSPIN}, {SPIN*8}")
    e(f"v_mov_b32 v{tmp}, {MISC+16}")
    lab(name)
    e(f"ds_read_b64 {vr(tmp+2,2)}, v{tmp}")
    e(f"s_sub_u32 s{sSPIN}, s{sSPIN}, 1")
    e(f"s_cmp_eq_u32 s{sSPIN}, 0")
    e(f"s_cbranch_scc1 {name}_done")
    e("s_waitcnt lgkmcnt(0)")
    e(f"v_readfirstlane_b32 s{sNON}, v{tmp+2}")
    e(f"v_readfirstlane_b32 s{sNON+1}, v{tmp+3}")
    e(f"s_cmp_eq_u32 s{sNON}, 0")
    e(f"s_cbranch_scc1 {name}")
    lab(name + "_done")
    e("s_waitcnt lgkmcnt(0)")

def signal(name, ctr_off, last, flag_soff_s, tmp, lo=None, plain_if=None):
    e(f"v_mov_b32 v{tmp}, {MISC + ctr_off}")
    e(f"v_mov_b32 v{tmp+1}, 1")
    e(f"s_mov_b64 exec, 1")
    e(f"ds_add_rtn_u32 v{tmp+1}, v{tmp}, v{tmp+1}")
    e(f"v_mov_b32 v{tmp+2}, s{sNON if lo is None else lo}")
    e(f"v_mov_b32 v{tmp+3}, s{sNON+1}")
    e("s_waitcnt lgkmcnt(0)")
    e(f"v_readfirstlane_b32 s{sT4}, v{tmp+1}")
    e("s_nop 0")
    e(f"s_cmp_eq_u32 s{sT4}, {last}")
    e(f"s_cbranch_scc0 {name}_nf")
    if plain_if is not None:
        e(f"s_cmp_eq_u32 s{plain_if}, 0")
        e(f"s_cbranch_scc1 {name}_wt")
        e(f"buffer_store_dwordx2 {vr(tmp+2,2)}, off, {sr(R_WS,4)}, s{flag_soff_s}")
        e(f"s_branch {name}_nf")
        lab(name + "_wt")
    e(f"buffer_store_dwordx2 {vr(tmp+2,2)}, off, {sr(R_WS,4)}, s{flag_soff_s} sc1")
    lab(name + "_nf")
    e("s_mov_b64 exec, -1")

hdr = open(f"cdna_kernels/{NAME}.s.ref").read().split("; Override launch")[0]
L.append(hdr.rstrip())
L.append(f"; @launch grid=(256,1,1) block=(512,1,1) lds={LDS_BYTES}")
L.append('.amdgcn_target "amdgcn-amd-amdhsa--gfx950"')
L.append(".text")
L.append(f".globl {NAME}_kernel")
L.append(".p2align 8")
L.append(f".type {NAME}_kernel,@function")
lab(f"{NAME}_kernel")
e("s_cmp_ge_u32 s2, 256")
e("s_cbranch_scc1 L_end")
e("s_load_dwordx16 s[4:19], s[0:1], 0")
e("s_load_dwordx8 s[20:27], s[0:1], 64")
e("s_load_dwordx2 s[28:29], s[0:1], 96")
e(f"s_memrealtime {sr(sNON,2)}")
e("v_lshrrev_b32 v2, 6, v0")
e(f"v_and_b32 v{vL}, 63, v0")
e(f"v_readfirstlane_b32 s{sW}, v2")
e(f"s_and_b32 s{sXCD}, s2, 7")
e(f"s_lshr_b32 s{sJ}, s2, 3")
e(f"s_and_b32 s{sT0}, s{sJ}, 3")
e(f"s_lshl_b32 s{sTB}, s{sXCD}, 2")
e(f"s_add_u32 s{sTB}, s{sTB}, s{sT0}")
e(f"s_lshr_b32 s{sHG}, s{sJ}, 2")
e(f"s_bfe_u32 s{sTHP}, s{sHG}, 0x10001")
e(f"s_and_b32 s{sA}, s{sW}, 3")
e(f"v_lshlrev_b32 v2, 4, v{vL}          ; v2 = lane*16")
cm("critical rows: 32*thp + 4w + i")
e(f"s_lshl_b32 s{sT0}, s{sTHP}, 5")
e(f"s_lshl_b32 s{sT1}, s{sW}, 2")
e(f"s_add_u32 s{sT0}, s{sT0}, s{sT1}")
e(f"s_mul_i32 s{sT1}, s{sT0}, {XROW}")
e(f"s_lshl_b32 s{sT2}, s{sTB}, 6")
e(f"s_add_u32 s{sT2}, s{sT2}, s{sT0}")
e(f"s_lshl_b32 s{sT2}, s{sT2}, 10")
e(f"s_lshl_b32 s{sT3}, s{sW}, 11")
e(f"s_add_u32 s{sT4}, s{sT3}, {W_OFF}")
e(f"s_mov_b32 s{R_XA+2}, 0x200000")
e(f"s_mov_b32 s{R_XA+3}, 0x20000")
e(f"s_mov_b32 s{R_W+2}, 16384")
e(f"s_mov_b32 s{R_W+3}, 0x20000")
e(f"s_mov_b32 m0, s{sT4}")
e(f"s_bitcmp1_b32 s{sHG}, 0")
e("s_waitcnt lgkmcnt(0)")
cm("producer weight: wk (hg even) or wv (hg odd)")
e(f"s_cselect_b32 s{R_W}, s{P_WV}, s{P_WK}")
e(f"s_cselect_b32 s{R_W+1}, s{P_WV+1}, s{P_WK+1}")
e(f"s_and_b32 s{R_W+1}, s{R_W+1}, 0xffff")
e(f"s_mov_b32 s{R_XA}, s{P_XA}")
e(f"s_and_b32 s{R_XA+1}, s{P_XA+1}, 0xffff")
e(f"s_cmp_lt_u32 s{sHG}, 4")
e("s_cbranch_scc0 L_now")
e(f"buffer_load_dwordx4 v2, {sr(R_W,4)}, s{sT3} offen lds")
e(f"buffer_load_dwordx4 v2, {sr(R_W,4)}, s{sT3} offen offset:1024 lds")
lab("L_now")
dma_run(4, 2, R_XA, sT2, sT1, 1024, XROW)
cm("wq slice, quarter tb&3 first (distinct among the 4 workgroups that share the slice on this XCD)")
srd(R_WQ, P_WQ, 524288)
e(f"v_lshrrev_b32 v3, 3, v{vL}          ; r")
e(f"v_and_b32 v4, 7, v{vL}")
e(f"v_bfe_u32 v5, v{vL}, 4, 1           ; (r>>1)&1")
e("v_lshlrev_b32 v5, 2, v5")
e("v_xor_b32 v4, v4, v5")
e("v_lshlrev_b32 v4, 4, v4")
e("v_lshl_add_u32 v13, v3, 10, v4")
e(f"s_and_b32 s{sT0}, s{sJ}, 3")
e(f"s_lshl_b32 s{sT0}, s{sT0}, 3")
e(f"s_add_u32 s{sT0}, s{sT0}, s{sW}")
e(f"s_lshl_b32 s{sT2}, s{sT0}, 14")
e(f"s_lshl_b32 s{sT1}, s{sHG}, 7")
e(f"s_add_u32 s{sT2}, s{sT2}, s{sT1}")
e(f"s_lshl_b32 s{sT1}, s{sT0}, 11")
e(f"s_add_u32 s{sT1}, s{sT1}, {WQ_OFF}")
dma_run(2, 13, R_WQ, sT2, sT1, 8192, 1024)
stamp(0)
srd(R_DBG, P_DBG, 256)
cm("workgroup 0, wave 4 publishes this launch's hand-off tag")
e(f"s_or_b32 s{sNON}, s{sNON}, 16")
e(f"s_and_b32 s{sNON}, s{sNON}, -16")
e(f"s_lshl_b32 s{sT0}, s2, 3")
e(f"s_add_u32 s{sT0}, s{sT0}, s{sW}")
e(f"s_cmp_eq_u32 s{sT0}, 4")
e("s_cbranch_scc0 L_notag")
e(f"v_mov_b32 v4, s{sNON}")
e(f"v_mov_b32 v5, s{sNON+1}")
e("s_mov_b64 exec, 1")
e(f"buffer_store_dwordx2 v[4:5], off, {sr(R_DBG,4)}, 0 sc1")
e("s_mov_b64 exec, -1")
lab("L_notag")
if opt['dbgt']:
    e(f"s_cmp_lt_u32 s2, 8")
    e("s_cbranch_scc0 L_nodbg0")
    e(f"s_cmp_eq_u32 s{sW}, 5")
    e("s_cbranch_scc0 L_nodbg0")
    e(f"v_mov_b32 v4, s{sNON}")
    e(f"s_lshl_b32 s{sT0}, s2, 2")
    e(f"s_add_u32 s{sT0}, s{sT0}, 8")
    e("s_mov_b64 exec, 1")
    e(f"buffer_store_dword v4, off, {sr(R_DBG,4)}, s{sT0}")
    e("s_mov_b64 exec, -1")
    lab("L_nodbg0")
srd(R_WS, P_WS, WS_SIZE)
cm("LDS init: ones / zeros window (even 16-B chunks 2^64, odd chunks 0) and the counters")
ONE = (127 + VSCALE) << 7
e("v_and_b32 v4, 1, v0")
e("v_add_u32 v4, -1, v4")
e(f"v_and_b32 v4, {hex(ONE << 16 | ONE)}, v4")
e("v_mov_b32 v5, v4")
e("v_mov_b32 v6, v4")
e("v_mov_b32 v7, v4")
e(f"v_lshlrev_b32 v3, 4, v0")
e(f"v_add_u32 v3, {ONES_OFF}, v3")
e("ds_write_b128 v3, v[4:7]")
e("v_mov_b32 v8, 0")
e("v_mov_b32 v9, 0")
e("v_mov_b32 v10, 0")
e("v_mov_b32 v11, 0")
e(f"v_mov_b32 v12, {MISC}")
e("ds_write_b128 v12, v[8:11]")
e("ds_write_b128 v12, v[8:11] offset:16")
e("ds_write_b128 v12, v[8:11] offset:32")
e(f"s_cmp_ge_u32 s{sW}, 4")
e("s_cbranch_scc1 L_aux")

cm("other half of the x tile: rows 32*(1-thp) + 8w + i")
e(f"s_xor_b32 s{sT0}, s{sTHP}, 1")
e(f"s_lshl_b32 s{sT0}, s{sT0}, 5")
e(f"s_lshl_b32 s{sT1}, s{sW}, 3")
e(f"s_add_u32 s{sT0}, s{sT0}, s{sT1}")
e(f"s_mul_i32 s{sT1}, s{sT0}, {XROW}")
e(f"s_lshl_b32 s{sT2}, s{sTB}, 6")
e(f"s_add_u32 s{sT2}, s{sT2}, s{sT0}")
e(f"s_lshl_b32 s{sT2}, s{sT2}, 10")
e(f"s_cmp_lt_u32 s{sHG}, 4")
e("s_cbranch_scc0 L_nob1")
e("s_waitcnt vmcnt(2)")
lab("L_nob1")
e("s_waitcnt lgkmcnt(0)")
stamp(1)
e("s_barrier")
dma_run(8, 2, R_XA, sT2, sT1, 1024, XROW)
cm("remaining three quarters: wave w takes rows 32w.. of each")
for q in range(1, 4):
    e(f"s_add_u32 s{sT0}, s{sJ}, {q}")
    e(f"s_and_b32 s{sT0}, s{sT0}, 3")
    e(f"s_lshl_b32 s{sT0}, s{sT0}, 2")
    e(f"s_add_u32 s{sT0}, s{sT0}, s{sW}")
    e(f"s_lshl_b32 s{sT2}, s{sT0}, 15")
    e(f"s_lshl_b32 s{sT1}, s{sHG}, 7")
    e(f"s_add_u32 s{sT2}, s{sT2}, s{sT1}")
    e(f"s_lshl_b32 s{sT1}, s{sT0}, 12")
    e(f"s_add_u32 s{sT1}, s{sT1}, {WQ_OFF}")
    dma_run(4, 13, R_WQ, sT2, sT1, 8192, 1024)
stamp(7)
SA, SB, OA, OB, CA, CB = 16, 32, 48, 64, 80, 96
QA, QB, K0, K1, V0, V1 = 112, 116, 120, 124, 128, 136
vIDX, vK, vV, vM01 = 144, 145, 146, 147
vXA, vWA, vV0, vSAME = 148, 149, 150, 151
FB = 152
cm("Q-projection addresses")
e(f"s_and_b32 s{sT0}, s{sW}, 1            ; th")
e(f"s_lshr_b32 s{sT1}, s{sW}, 1           ; hp")
e(f"v_and_b32 v3, 31, v{vL}")
e(f"s_lshl_b32 s{sT2}, s{sT0}, 5")
e(f"v_add_u32 v3, s{sT2}, v3")
e(f"v_mul_u32_u24 v3, {XROW}, v3")
e(f"v_lshrrev_b32 v4, 5, v{vL}           ; h")
e(f"v_lshl_add_u32 v{vXA}, v4, 4, v3")
e(f"v_bfe_u32 v5, v{vL}, 2, 2            ; r")
e("v_lshl_add_u32 v6, v4, 3, v5          ; 8h + r")
e("v_lshlrev_b32 v6, 7, v6")
e(f"v_bfe_u32 v7, v{vL}, 4, 1            ; g")
e(f"v_and_b32 v8, 1, v{vL}")
e("v_lshl_add_u32 v7, v7, 1, v8          ; 2g + (cc&1)")
e(f"s_lshl_b32 s{sT2}, s{sT1}, 2")
e(f"v_add_u32 v7, s{sT2}, v7")
e(f"v_bfe_u32 v8, v{vL}, 3, 1            ; (r>>1)&1")
e("v_lshlrev_b32 v8, 2, v8")
e("v_xor_b32 v7, v7, v8")
e("v_lshl_add_u32 v6, v7, 4, v6")
e(f"v_bfe_u32 v8, v{vL}, 1, 1")
e("v_lshl_add_u32 v6, v8, 3, v6")
e(f"v_add_u32 v{vWA}, {WQ_OFF}, v6")
cm("attention LDS addresses; V: rows 0..15 -> tile data, lanes 16,20 -> 2^64, other lanes -> 0")
e(f"v_mov_b32 v{vIDX}, 0xdddddddd")
e(f"v_bfe_u32 v5, v{vL}, 4, 1")
e(f"v_xor_b32 v{vM01}, 1, v5")
e(f"v_and_b32 v8, 15, v{vL}")
e("v_lshlrev_b32 v9, 8, v4")
e("v_lshl_add_u32 v8, v8, 4, v9")
e(f"v_add_u32 v8, {W_OFF}, v8")
e(f"v_and_b32 v9, 31, v{vL}")
e("v_add_u32 v10, -20, v9")
e("v_cmp_gt_u32 vcc, 8, v10")
e("v_and_b32 v9, 11, v9")
e("v_min_u32 v9, 1, v9")
e("v_cndmask_b32 v10, 0, 64, vcc")
e(f"v_cmp_eq_u32 vcc, 1, v{vM01}")
e("v_lshl_add_u32 v9, v9, 4, v10")
e(f"v_add_u32 v9, {ONES_OFF - 1024}, v9")
e(f"v_cndmask_b32 v{vV0}, v9, v8, vcc")
cm("O fragment destination and flag slot")
sOD, sOF = 97, 98
e(f"s_and_b32 s{sT0}, s{sW}, 1")
e(f"s_lshl_b32 s{sT1}, s{sTB}, 1")
e(f"s_add_u32 s{sT0}, s{sT0}, s{sT1}")
e(f"s_lshl_b32 s{sT0}, s{sT0}, 5          ; (tb*2+th)*32")
e(f"s_lshl_b32 s{sT1}, s{sHG}, 2")
e(f"s_add_u32 s{sT0}, s{sT0}, s{sT1}")
e(f"s_and_b32 s{sT1}, s{sW}, 2")
e(f"s_add_u32 s{sT0}, s{sT0}, s{sT1}")
e(f"s_lshl_b32 s{sT0}, s{sT0}, 10")
e(f"s_add_u32 s{sOD}, s{sT0}, {WS_O}")
e(f"s_lshl_b32 s{sT1}, s{sTB}, 3")
e(f"s_add_u32 s{sT1}, s{sT1}, s{sHG}")
e(f"s_lshl_b32 s{sT1}, s{sT1}, 7")
e(f"s_add_u32 s{sOF}, s{sT1}, {FL_O}")
e(f"s_mov_b32 s{sFB}, 0")
e(f"s_mov_b32 s{sBARN}, 0xa")
e(f"v_mov_b32 v{vSAME}, {MISC+28}")
sPF, sOL, sOS, vPO = 100, 101, 79, 184
e(f"s_lshl_b32 s{sT0}, s{sTB}, 3")
e(f"s_lshl_b32 s{sT1}, s{sW}, 1")
e(f"s_add_u32 s{sT0}, s{sT0}, s{sT1}")
e(f"s_lshl_b32 s{sT0}, s{sT0}, 7")
e(f"s_add_u32 s{sPF}, s{sT0}, {FL_O}")
e(f"s_lshl_b32 s{sT2}, s{sTB}, 16")
e(f"s_lshl_b32 s{sOL}, s{sW}, 13")
e(f"s_add_u32 s{sT2}, s{sT2}, s{sOL}")
e(f"s_add_u32 s{sOS}, s{sT2}, {WS_O}")
e(f"v_and_b32 v8, 1, v{vL}")
e(f"v_lshlrev_b32 v{vPO}, 7, v8")
e("s_waitcnt vmcnt(0)")
stamp(8)
lds_add(12, 4)
if opt['l2pf']:
    cm("pull this workgroup's 1/32 share of what its XCD reads for the spectral part towards L2")
    cm("wave 0: 64 lines of x_B (rows 64*s1 + 8*xcd + (0..7), s1 = j); waves 1,2: cos / sin rows 8j..8j+7; wave 3: DFT rows")
    R_PF = R_W
    e(f"s_cmp_eq_u32 s{sW}, 1")
    e(f"s_cselect_b32 s{R_PF}, s{P_HRE}, s{P_HIM}")
    e(f"s_cselect_b32 s{R_PF+1}, s{P_HRE+1}, s{P_HIM+1}")
    e(f"s_cmp_eq_u32 s{sW}, 0")
    e(f"s_cselect_b32 s{R_PF}, s{P_XB}, s{R_PF}")
    e(f"s_cselect_b32 s{R_PF+1}, s{P_XB+1}, s{R_PF+1}")
    e(f"s_cselect_b32 s{R_PF+2}, 0x200000, s{sBARN}")
    e(f"s_cselect_b32 s{sT0}, 1, 0")
    e(f"s_and_b32 s{R_PF+1}, s{R_PF+1}, 0xffff")
    e(f"s_cmp_eq_u32 s{sT0}, 1")
    e(f"s_cbranch_scc1 L_pf_x")
    e(f"s_mov_b32 s{R_PF+2}, 0x80000")
    e(f"s_lshl_b32 s{sT0}, s{sJ}, 13")
    e("s_branch L_pf_go")
    lab("L_pf_x")
    e(f"s_lshl_b32 s{sT0}, s{sJ}, 16")
    e(f"s_lshl_b32 s{sT1}, s{sXCD}, 13")
    e(f"s_add_u32 s{sT0}, s{sT0}, s{sT1}")
    lab("L_pf_go")
    e(f"v_lshlrev_b32 v6, 7, v{vL}")
    e(f"s_cmp_eq_u32 s{sW}, 3")
    e("s_cbranch_scc1 L_pf_done")
    e(f"buffer_load_dword v185, v6, {sr(R_PF,4)}, s{sT0} offen")
    lab("L_pf_done")
lds_wait("L_wxl", 12, 8, 4)
stamp(10)
def qload(ks):
    b = FB + 8*(ks % 4)
    e(f"ds_read_b64_tr_b16 {vr(b,2)}, v{vWA} offset:{ks*2048}")
    e(f"ds_read_b64_tr_b16 {vr(b+2,2)}, v{vWA} offset:{ks*2048+512}")
    e(f"ds_read_b128 {vr(b+4,4)}, v{vXA} offset:{ks*32}")
for ks in range(3): qload(ks)
for ks in range(32):
    b = FB + 8*(ks % 4)
    if ks + 3 < 32:
        qload(ks + 3); e("s_waitcnt lgkmcnt(9)")
    else:
        e(f"s_waitcnt lgkmcnt({3*(31-ks)})")
    c = "0" if ks == 0 else vr(SA, 16)
    e(f"v_mfma_f32_32x32x16_bf16 {vr(SA,16)}, {vr(b,4)}, {vr(b+4,4)}, {c}")
stamp(9)
e(f"s_mov_b32 s{sT0}, {hex(f2u(0.25*1.4426950408889634))}")
for i in range(16): e(f"v_mov_b32 v{OA+i}, 0")
for i in range(16): e(f"v_mul_f32 v{SA+i}, s{sT0}, v{SA+i}")
for i in range(8): e(f"v_cvt_pk_bf16_f32 v{QA+i}, v{SA+2*i}, v{SA+2*i+1}")
tag_from_lds("L_taga", 4)
for i in range(16): e(f"v_mov_b32 v{OB+i}, 0")
for i in range(4): e(f"v_mov_b32 v{V1+4+i}, 0")
e(f"v_add_u32 v{vK}, {W_OFF}, v2")
e(f"v_mov_b32 v{vV}, v{vV0}")
if opt['prioA']: e(f"s_setprio {opt['prioA']}")
stamp(2)
e("s_barrier")
stamp(3)
cm("stand-in for the row max: max over key tile 0 (checked after the loop; fallback = true max)")
e(f"ds_read_b128 {vr(K0,4)}, v{vK}")
e(f"ds_read_b128 {vr(K1,4)}, v{vK} offset:2048")
e(f"ds_read_b128 {vr(V0,4)}, v{vV} offset:1024")
e(f"ds_read_b128 {vr(V0+4,4)}, v{vV} offset:1536")
e("s_waitcnt lgkmcnt(3)")
e(f"v_mfma_f32_32x32x16_bf16 {vr(SA,16)}, {vr(K0,4)}, {vr(QA,4)}, 0")
e(f"v_mfma_f32_32x32x16_bf16 {vr(SB,16)}, {vr(K0,4)}, {vr(QB,4)}, 0")
nop(11)
def max16(dst, s, acc=None):
    if acc is None:
        e(f"v_max3_f32 v{dst}, v{s}, v{s+1}, v{s+2}"); i = 3
        while i + 1 < 16:
            e(f"v_max3_f32 v{dst}, v{dst}, v{s+i}, v{s+i+1}"); i += 2
        e(f"v_max_f32 v{dst}, v{dst}, v{s+15}")
    else:
        for i in range(0, 16, 2): e(f"v_max3_f32 v{dst}, v{dst}, v{s+i}, v{s+i+1}")
max16(4, SA); max16(5, SB)
lab("L_setmax")
cm(f"v4 / v5 = per-lane max for tiles A / B; combine the two half-waves, C = -(max + {opt['shift']})")
e("v_mov_b32 v6, v4")
e("v_mov_b32 v7, v5")
e(f"s_mov_b32 s{sIT}, 0")
e(f"s_mov_b32 s{sT2}, {hex((-(W_OFF + 8192)) & 0xffffffff)}")
e("v_permlane32_swap_b32 v4, v6")
e("v_permlane32_swap_b32 v5, v7")
e(f"s_mov_b32 s{sT3}, 8192")
e("v_max_f32 v4, v4, v6")
e("v_max_f32 v5, v5, v7")
for i in range(16): e(f"v_sub_f32 v{CA+i}, {hex(f2u(-float(opt['shift'])))}, v4")
e(f"v_sub_f32 v{CB}, {hex(f2u(-float(opt['shift'])))}, v5")
e("s_waitcnt lgkmcnt(0)")
e(f"v_mfma_f32_32x32x16_bf16 {vr(SA,16)}, {vr(K0,4)}, {vr(QA,4)}, {vr(CA,16)}")
for i in range(1, 16): e(f"v_mov_b32 v{CB+i}, v{CB}")
for i in range(8): e(f"v_mov_b32 v{SB+8+i}, 0")
def SM(o, a, b): e(f"v_smfmac_f32_32x32x32_bf16 {vr(o,16)}, {vr(a,4)}, {vr(b,8)}, v{vIDX}")
def QK(d, k, q, c): e(f"v_mfma_f32_32x32x16_bf16 {vr(d,16)}, {vr(k,4)}, {vr(q,4)}, {vr(c,16)}")
def EX(s, a, b):
    for i in range(a, b): e(f"v_exp_f32 v{s+i}, v{s+i}")
L.append(".p2align 6")
lab("L_att_loop")
for u in range(4):
    kc, kn = (K0, K1) if u % 2 == 0 else (K1, K0)
    vc, vp = (V0, V1) if u % 2 == 0 else (V1, V0)
    voffs = ((u + 1) % 4) * 2048 + 1024
    koffs = ((u + 2) % 4) * 2048
    p0, p1, p2 = (4, 7, 10) if opt['cluster'] else (2, 5, 10)
    EX(SA, 0, p0)
    SM(OB, vp + 4, SB + 8)
    e("s_waitcnt lgkmcnt(1)")
    EX(SA, p0, p1)
    QK(SB, kc, QB, CB)
    e(f"ds_read_b128 {vr(vp,4)}, v{vV} offset:{voffs}")
    EX(SA, p1, p2)
    SM(OA, vc, SA)
    e(f"ds_read_b128 {vr(vp+4,4)}, v{vV} offset:{voffs+512}")
    EX(SA, p2, 16)
    EX(SB, 0, p0)
    SM(OA, vc + 4, SA + 8)
    e("s_waitcnt lgkmcnt(2)")
    if u == 1:
        cm("next group of 4 key tiles: address step, and (trips 1, 3) the hand-off that publishes groups")
        e(f"s_cmp_eq_u32 s{sIT}, 1")
        e(f"s_cselect_b32 s{sINC}, s{sT2}, s{sT3}")
        e(f"s_cmp_eq_u32 s{sIT}, 15")
        e(f"s_cselect_b32 s{sINC}, 0, s{sINC}")
    EX(SB, p0, p1)
    QK(SA, kn, QA, CA)
    e(f"ds_read_b128 {vr(kc,4)}, v{vK} offset:{koffs}")
    EX(SB, p1, p2)
    SM(OB, vc, SB)
    if u == 1:
        e(f"s_bitcmp1_b32 s{sBARN}, s{sIT}")
        e("s_cbranch_scc1 L_sync")
        lab("L_nobar")
        e(f"v_add_u32 v{vK}, s{sINC}, v{vK}")
    if u == 2:
        e(f"v_mad_i32_i24 v{vV}, s{sINC}, v{vM01}, v{vV}")
    if u == 3:
        e(f"s_add_u32 s{sIT}, s{sIT}, 1")
        e(f"s_cmp_lt_u32 s{sIT}, 16")
    if u == 0 and opt['cluster']: e("s_nop 0")
    EX(SB, p2, 16)
e("s_cbranch_scc1 L_att_loop")
e(f"s_mov_b32 s{sT0}, {hex(f2u(2.0**100) if not opt['force_fb'] else f2u(2.0**-30))}")
e(f"v_rcp_f32 v4, v{OA+8}")
SM(OB, V1 + 4, SB + 8)
e(f"ds_read_b32 v7, v{vSAME}")
cm("run-time check of the stand-in: l*2^64 must be finite and <= 2^100, else redo with the true row max")
e(f"v_cmp_nle_f32_e64 vcc, v{OA+8}, s{sT0}")
for i in range(8): e(f"v_mul_f32 v{SA+i}, v4, v{OA+i}")
for i in range(4): e(f"v_cvt_pk_bf16_f32 v{SA+i}, v{SA+2*i}, v{SA+2*i+1}")
e(f"v_rcp_f32 v5, v{OB+8}")
e(f"v_cmp_nle_f32_e64 {sr(sX,2)}, v{OB+8}, s{sT0}")
e("s_waitcnt lgkmcnt(0)")
e(f"s_or_b64 vcc, vcc, {sr(sX,2)}")
e("s_cmp_eq_u64 vcc, 0")
e("s_cbranch_scc0 L_fallback")
lab("L_att_done")
stamp(6)
cm("plain stores only when every workgroup of this token block reported the same XCD; else write-through")
sSAME = 99
e(f"v_readfirstlane_b32 s{sSAME}, v7")
for i in range(8): e(f"v_mul_f32 v{OB+i}, v5, v{OB+i}")
for i in range(4): e(f"v_cvt_pk_bf16_f32 v{SA+4+i}, v{OB+2*i}, v{OB+2*i+1}")
e(f"s_cmp_eq_u32 s{sSAME}, 0")
e("s_cbranch_scc1 L_ost_wt")
e(f"buffer_store_dwordx4 {vr(SA,4)}, v2, {sr(R_WS,4)}, s{sOD} offen")
e(f"buffer_store_dwordx4 {vr(SA+4,4)}, v2, {sr(R_WS,4)}, s{sOD} offen offset:1024")
lab("L_ost_done")
e("s_barrier")
stamp(4)
e("s_waitcnt vmcnt(0)")
signal("L_sigO", 8, 3, sOF, 4, plain_if=sSAME)
stamp(5)
cm("gather the O tile of this token block: wave w takes producers 2w, 2w+1 (first / second half)")
poll("L_pollO", 1, vPO, 8, [sPF])
stamp(11)
def odma(sc):
    for q in range(2):
        for th in range(2):
            e(f"s_mov_b32 m0, s{sOL}")
            e("s_nop 0")
            for i in range(4): e(f"buffer_load_dwordx4 v2, {sr(R_WS,4)}, s{sOS} offen offset:{1024*i} {sc}lds")
            if not (th == 1 and q == 1):
                op = "s_add_u32" if th == 0 else "s_sub_u32"
                d = 32768 if th == 0 else 32768 - 4096
                e(f"{op} s{sOL}, s{sOL}, {d}")
                e(f"{op} s{sOS}, s{sOS}, {d}")
e(f"s_cmp_eq_u32 s{sSAME}, 0")
e("s_cbranch_scc1 L_odma_c")
odma("")
lab("L_odma_done")
e("s_waitcnt vmcnt(8)")
stamp(12)
e("s_barrier")
e("s_waitcnt vmcnt(0)")
e("s_barrier")
stamp_dump()
e("s_endpgm")
lab("L_odma_c")
odma("sc1 ")
e("s_branch L_odma_done")
lab("L_ost_wt")
e(f"buffer_store_dwordx4 {vr(SA,4)}, v2, {sr(R_WS,4)}, s{sOD} offen sc1")
e(f"buffer_store_dwordx4 {vr(SA+4,4)}, v2, {sr(R_WS,4)}, s{sOD} offen offset:1024 sc1")
e("s_branch L_ost_done")
lab("L_sync")
e(f"s_cmp_eq_u32 s{sIT}, 1")
e("s_cbranch_scc0 L_sync3")
e("s_barrier")
e("s_branch L_nobar")
lab("L_sync3")
lds_wait("L_wkvl", 36, 256, 4)
e("s_branch L_nobar")
lab("L_fallback")
e(f"s_cmp_eq_u32 s{sFB}, 0")
e("s_cbranch_scc0 L_att_done")
cm("fallback: exact row max over all 64 key tiles, then repeat the main loop")
e(f"s_mov_b32 s{sFB}, 1")
e(f"s_mov_b32 s{sBARN}, 0")
e(f"v_mov_b32 v4, 0xff800000")
e(f"v_mov_b32 v5, 0xff800000")
e(f"v_add_u32 v{vK}, {W_OFF}, v2")
e(f"s_mov_b32 s{sIT}, 0")
e(f"s_mov_b32 s{sT1}, 2048")
lab("L_fb_loop")
e(f"ds_read_b128 {vr(K0,4)}, v{vK}")
e("s_waitcnt lgkmcnt(0)")
e(f"v_mfma_f32_32x32x16_bf16 {vr(SA,16)}, {vr(K0,4)}, {vr(QA,4)}, 0")
e(f"v_mfma_f32_32x32x16_bf16 {vr(SB,16)}, {vr(K0,4)}, {vr(QB,4)}, 0")
e(f"s_cmp_eq_u32 s{sIT}, 7")
e(f"s_cselect_b32 s{sINC}, {hex((-(W_OFF + 7*2048)) & 0xffffffff)}, s{sT1}")
e(f"v_add_u32 v{vK}, s{sINC}, v{vK}")
nop(10)
max16(4, SA, 1); max16(5, SB, 1)
e(f"s_add_u32 s{sIT}, s{sIT}, 1")
e(f"s_cmp_lt_u32 s{sIT}, 64")
e("s_cbranch_scc1 L_fb_loop")
e(f"v_add_u32 v{vK}, {W_OFF}, v2")
e(f"v_mov_b32 v{vV}, v{vV0}")
for i in range(16): e(f"v_mov_b32 v{OA+i}, 0")
for i in range(16): e(f"v_mov_b32 v{OB+i}, 0")
for i in range(4): e(f"v_mov_b32 v{V1+4+i}, 0")
e(f"ds_read_b128 {vr(K0,4)}, v{vK}")
e(f"ds_read_b128 {vr(K1,4)}, v{vK} offset:2048")
e(f"ds_read_b128 {vr(V0,4)}, v{vV} offset:1024")
e(f"ds_read_b128 {vr(V0+4,4)}, v{vV} offset:1536")
e("s_branch L_setmax")

lab("L_aux")
BUF = 16
BP = 144
FR = 176
ACC = 192
D1, D2 = 208, 224
if opt['prioX']: e(f"s_setprio {opt['prioX']}")
cm("K / V projection: workgroups hg<4, aux waves 0,1 (16 tokens each)")
e(f"s_cmp_lt_u32 s{sHG}, 4")
e("s_cbranch_scc0 L_npwg")
e(f"s_cmp_lt_u32 s{sA}, 2")
e("s_cbranch_scc0 L_npwave")
e(f"v_and_b32 v3, 15, v{vL}")
e(f"v_lshrrev_b32 v4, 4, v{vL}           ; q")
e(f"s_lshl_b32 s{sT0}, s{sTHP}, 5")
e(f"s_lshl_b32 s{sT1}, s{sA}, 4")
e(f"s_add_u32 s{sT0}, s{sT0}, s{sT1}")
e(f"v_add_u32 v5, s{sT0}, v3")
e(f"v_mul_u32_u24 v5, {XROW}, v5")
e("v_lshl_add_u32 v5, v4, 4, v5")
e(f"v_bfe_u32 v6, v{vL}, 2, 2            ; r")
e("v_lshl_add_u32 v6, v4, 3, v6")
e("v_lshlrev_b32 v6, 5, v6")
e(f"v_add_u32 v6, {W_OFF}, v6")
e(f"v_and_b32 v7, 3, v{vL}               ; cc")
e(f"s_lshl_b32 s{sT2}, s{sTB}, 1")
e(f"s_add_u32 s{sT2}, s{sT2}, s{sTHP}")
sKF, sKD = 97, 98
e(f"s_lshl_b32 s{sT1}, s{sT2}, 1")
e(f"s_and_b32 s{sT0}, s{sHG}, 1")
e(f"s_add_u32 s{sT1}, s{sT1}, s{sT0}")
e(f"s_lshl_b32 s{sT1}, s{sT1}, 7")
e(f"s_add_u32 s{sKF}, s{sT1}, {FL_KV}")
e(f"s_lshl_b32 s{sKD}, s{sT2}, 11")
e("v_and_b32 v9, 1, v4")
e("v_lshlrev_b32 v9, 3, v9")
e("v_lshl_add_u32 v9, v3, 4, v9          ; n*16 + (q&1)*8")
e("v_lshrrev_b32 v8, 1, v4")
e(f"s_mov_b32 s{sDRY}, {1 if opt['dry'] else 0}")
def kvchain(isV):
    for ks in range(16):
        b = BUF + 8*ks
        e(f"ds_read_b64_tr_b16 {vr(b,2)}, v6 offset:{ks*1024}")
        e(f"ds_read_b64_tr_b16 {vr(b+2,2)}, v6 offset:{ks*1024+128}")
        e(f"ds_read_b128 {vr(b+4,4)}, v5 offset:{ks*64}")
        if ks >= 3:
            k2 = ks - 3; b2 = BUF + 8*k2
            e("s_waitcnt lgkmcnt(9)")
            a, bb = (b2+4, b2) if isV else (b2, b2+4)
            e(f"v_mfma_f32_16x16x32_bf16 {vr(ACC,4)}, {vr(a,4)}, {vr(bb,4)}, {'0' if k2==0 else vr(ACC,4)}")
    for k2 in range(13, 16):
        b2 = BUF + 8*k2
        e(f"s_waitcnt lgkmcnt({3*(15-k2)})")
        a, bb = (b2+4, b2) if isV else (b2, b2+4)
        e(f"v_mfma_f32_16x16x32_bf16 {vr(ACC,4)}, {vr(a,4)}, {vr(bb,4)}, {vr(ACC,4)}")
def kv_b1(tagname):
    if not opt['dry']:
        e("s_waitcnt vmcnt(2) lgkmcnt(0)"); stamp(1); e("s_barrier ; B1")
    lab(tagname)
def kv_b2(tagname):
    if opt['dry']:
        e(f"s_cmp_eq_u32 s{sDRY}, 0")
        e(f"s_cbranch_scc1 {tagname}_go")
        e(f"s_mov_b32 s{sDRY}, 0")
        e("s_waitcnt vmcnt(2) lgkmcnt(0)")
        stamp(1)
        e("s_barrier                             ; B1")
        e(f"s_branch {tagname}")
        lab(tagname + "_go")
e(f"s_bitcmp1_b32 s{sHG}, 0")
e("s_cbranch_scc1 L_prodV")
cm("K: (q>>1)*512 + (16b+n)*16 + (q&1)*8")
e("v_lshl_add_u32 v6, v7, 3, v6")
e("v_lshl_add_u32 v8, v8, 9, v9")
e(f"s_lshl_b32 s{sT1}, s{sA}, 8")
e(f"s_add_u32 s{sKD}, s{sKD}, s{sT1}")
kv_b1("L_chK"); kvchain(False); kv_b2("L_chK")
nop(6 if opt['dry'] else 8)
e("s_branch L_prodS")
lab("L_prodV")
cm("V: 1024 + b*512 + (q>>1)*256 + n*16 + (q&1)*8")
e("v_lshl_add_u32 v8, v8, 8, v9")
e("v_and_b32 v9, 1, v7")
e("v_lshl_add_u32 v6, v9, 4, v6")
e("v_lshrrev_b32 v9, 1, v7")
e("v_lshl_add_u32 v6, v9, 3, v6")
e(f"s_lshl_b32 s{sT1}, s{sA}, 9")
e(f"s_add_u32 s{sKD}, s{sKD}, s{sT1}")
e(f"s_add_u32 s{sKD}, s{sKD}, 1024")
kv_b1("L_chV"); kvchain(True); kv_b2("L_chV")
e(f"s_mov_b32 s{sT0}, {hex(f2u(2.0**VSCALE))}")
nop(6 if opt['dry'] else 8)
for i in range(4): e(f"v_mul_f32 v{ACC+i}, s{sT0}, v{ACC+i}")
lab("L_prodS")
e(f"v_cvt_pk_bf16_f32 v10, v{ACC}, v{ACC+1}")
e(f"v_cvt_pk_bf16_f32 v11, v{ACC+2}, v{ACC+3}")
e(f"buffer_store_dwordx2 v[10:11], v8, {sr(R_WS,4)}, s{sKD} offen sc1")
stamp(14)
e("s_waitcnt vmcnt(1)")
lds_add(12, 4)
tag_from_lds("L_tagp", 4)
e("s_waitcnt vmcnt(0)")
stamp(15)
signal("L_sigKV", 0, 1, sKF, 4)
e("s_branch L_tagged")
lab("L_npwave")
e("s_waitcnt vmcnt(2)")
lab("L_npwg")
e("s_waitcnt lgkmcnt(0)")
stamp(1)
e("s_barrier                             ; B1")
if opt['codepf']:
    cm("aux wave 2 pulls this kernel's code towards L2 (reads only)")
    e(f"s_cmp_eq_u32 s{sA}, 2")
    e("s_cbranch_scc0 L_nopf")
    e(f"s_getpc_b64 {sr(sX,2)}")
    lab("L_pc")
    e(f"v_lshlrev_b32 v4, 7, v{vL}")
    e(f"s_sub_u32 s{sX}, s{sX}, L_pc-{NAME}_kernel")
    e(f"s_subb_u32 s{sX+1}, s{sX+1}, 0")
    e(f"v_mov_b32 v5, s{sX+1}")
    e(f"v_add_co_u32 v4, vcc, s{sX}, v4")
    e("s_nop 1")
    e("v_addc_co_u32 v5, vcc, 0, v5, vcc")
    e("CODEPF")
    lab("L_nopf")
e("s_waitcnt vmcnt(0)")
lds_add(12, 4)
e(f"s_cmp_eq_u32 s{sA}, 3")
e("s_cbranch_scc0 L_tagged")
cm("aux wave 3 fetches this launch's hand-off tag (bounded spin) and posts it in LDS")
e(f"s_mov_b32 s{sSPIN}, {SPIN}")
lab("L_tag")
e(f"buffer_load_dwordx2 v[14:15], off, {sr(R_DBG,4)}, 0 sc1")
e(f"s_sub_u32 s{sSPIN}, s{sSPIN}, 1")
e(f"s_cmp_eq_u32 s{sSPIN}, 0")
e("s_cbranch_scc1 L_tag_done")
e("s_waitcnt vmcnt(0)")
e("v_cmp_eq_u32 vcc, 0, v14")
e("s_nop 0")
e("s_cmp_eq_u64 vcc, 0")
e("s_cbranch_scc0 L_tag")
lab("L_tag_done")
e("s_waitcnt vmcnt(0)")
e(f"v_mov_b32 v12, {MISC+16}")
e("ds_write_b64 v12, v[14:15]")
cm("report this workgroup's XCD id (tag | id)")
e(f"s_getreg_b32 s{sT2}, hwreg(HW_REG_XCC_ID, 0, 4)")
e(f"s_lshl_b32 s{sT1}, s2, 7")
e(f"s_add_u32 s{sT1}, s{sT1}, {FL_X}")
e(f"v_or_b32 v14, s{sT2}, v14")
e("s_mov_b64 exec, 1")
e(f"buffer_store_dwordx2 v[14:15], off, {sr(R_WS,4)}, s{sT1} sc1")
e("s_mov_b64 exec, -1")
lab("L_tagged")
stamp(2)
srd(R_SRE, P_SRE, 8388608)
srd(R_SIM, P_SIM, 8388608)
srd(R_XB, P_XB, 2097152)
srd(R_WO, P_WO, 524288)
srd(R_OUT, P_OUT, 4194304)
sT1S, sEB, sTT, sS2, sCB = 98, 99, 100, 101, 79
R_HRE, R_HIM = R_XA, R_W
e(f"s_and_b32 s{sT0}, s{sJ}, 3")
e(f"s_lshl_b32 s{sT1S}, s{sXCD}, 2")
e(f"s_add_u32 s{sT1S}, s{sT1S}, s{sT0}       ; t1s")
e(f"s_lshr_b32 s{sT0}, s{sJ}, 2")
e(f"s_lshl_b32 s{sT0}, s{sT0}, 1")
e(f"s_lshr_b32 s{sEB}, s{sA}, 1")
e(f"s_add_u32 s{sEB}, s{sEB}, s{sT0}         ; eb")
e(f"s_and_b32 s{sTT}, s{sA}, 1               ; tt")
e(f"s_and_b32 s{sT0}, s{sJ}, 7")
e(f"s_lshl_b32 s{sS2}, s{sXCD}, 3")
e(f"s_add_u32 s{sS2}, s{sS2}, s{sT0}         ; s2")
e(f"s_lshr_b32 s{sT0}, s{sJ}, 3")
e(f"s_lshl_b32 s{sCB}, s{sT0}, 2")
e(f"s_add_u32 s{sCB}, s{sCB}, s{sA}          ; cb")
srd(R_HRE, P_HRE, 524288)
srd(R_HIM, P_HIM, 524288)
e(f"v_and_b32 v3, 31, v{vL}                ; n")
e(f"v_lshrrev_b32 v4, 5, v{vL}             ; h")
e(f"s_lshl_b32 s{sT0}, s{sTT}, 5")
e(f"v_add_u32 v5, s{sT0}, v3")
e("v_lshlrev_b32 v5, 5, v5")
e(f"v_add_u32 v13, s{sT1S}, v5")
vXE, vXO, vWE, vWO_, vG, vRD = 240, 241, 242, 243, 244, 246
vSW, vDRE, vDIM = 250, 251, 252
vB2A, vB2O, vHA, vWOD, vWOT, vOF, vOUT, vPH, vPK, vF = 4, 3, 15, 14, 0, 5, 6, 7, 12, 13
cm("B1 load addresses (8 rows x 128 B per instruction, chunk swizzle on the source side)")
e(f"v_lshrrev_b32 v5, 3, v{vL}             ; r")
e("v_and_b32 v6, 3, v5")
e("v_lshrrev_b32 v7, 2, v5")
e("v_lshl_add_u32 v6, v7, 3, v6            ; 8*(r>>2) + (r&3)")
e("v_lshrrev_b32 v7, 1, v5")
e(f"v_and_b32 v8, 7, v{vL}")
e("v_xor_b32 v7, v7, v8")
e("v_lshlrev_b32 v7, 4, v7")
e("v_xor_b32 v8, 64, v7")
e(f"v_lshl_add_u32 v{vXE}, v6, 16, v7")
e(f"v_lshl_add_u32 v{vXO}, v6, 16, v8")
e(f"v_lshl_add_u32 v{vWE}, v6, 10, v7")
e(f"v_lshl_add_u32 v{vWO_}, v6, 10, v8")
cm("instruction 2 of W (im rows e = 16cb + {0..3, 8..11}); for cb = 0 row e = 0 is replaced by cos row 256")
e(f"s_lshl_b32 s{sT0}, s{sCB}, 14")
e(f"v_add_u32 v9, s{sT0}, v{vWE}")
e("v_cmp_gt_u32 vcc, 0x80, v9")
e(f"v_mov_b32 v{vG}, s{P_HIM}")
e(f"v_mov_b32 v{vG+1}, s{P_HIM+1}")
e(f"v_mov_b32 v10, s{P_HRE}")
e(f"v_mov_b32 v11, s{P_HRE+1}")
e(f"v_cndmask_b32 v{vG}, v{vG}, v10, vcc")
e(f"v_cndmask_b32 v{vG+1}, v{vG+1}, v11, vcc")
e("v_add_u32 v10, 0x40000, v9")
e("v_cndmask_b32 v9, v9, v10, vcc")
e(f"v_add_co_u32 v{vG}, vcc, v{vG}, v9")
e("s_nop 1")
e(f"v_addc_co_u32 v{vG+1}, vcc, 0, v{vG+1}, vcc")
cm("staging read addresses: row m, chunk (2s+h) ^ ((m>>1)&7)")
e(f"s_lshl_b32 s{sT0}, s{sA}, 12")
e(f"s_add_u32 s{sT0}, s{sT0}, {STG}")
e("v_bfe_u32 v5, v3, 1, 3")
e("v_xor_b32 v5, v5, v4")
e("v_lshlrev_b32 v5, 4, v5")
e("v_lshl_add_u32 v5, v3, 7, v5")
e(f"v_add_u32 v{vRD}, s{sT0}, v5")
for s_ in range(1, 4): e(f"v_xor_b32 v{vRD+s_}, {32*s_}, v{vRD}")
e(f"v_add_u32 v{vSW}, s{sT0}, v2")
cm("H store address: t1*64*HROW + 8h*4")
e(f"v_mul_u32_u24 v8, {64*HROW}, v3")
e(f"v_lshl_add_u32 v{vHA}, v4, 5, v8")
cm("wo: DMA source offset and transposing read: row 8h+r, 16-B chunk 4cbk + 2(cc&1) + g, byte 8(cc>>1)")
e(f"v_lshrrev_b32 v8, 3, v{vL}")
e(f"v_and_b32 v9, 7, v{vL}")
e(f"v_bfe_u32 v10, v{vL}, 4, 1")
e("v_lshlrev_b32 v10, 2, v10")
e("v_xor_b32 v9, v9, v10")
e("v_lshlrev_b32 v9, 4, v9")
e(f"v_lshl_add_u32 v{vWOD}, v8, 10, v9")
e(f"v_bfe_u32 v9, v{vL}, 2, 2")
e("v_lshl_add_u32 v9, v4, 3, v9")
e("v_lshlrev_b32 v9, 7, v9")
e(f"v_and_b32 v10, 1, v{vL}")
e(f"v_bfe_u32 v11, v{vL}, 4, 1")
e("v_lshl_add_u32 v10, v10, 1, v11")
e(f"s_lshr_b32 s{sT0}, s{sA}, 1")
e(f"s_lshl_b32 s{sT0}, s{sT0}, 2")
e(f"v_add_u32 v10, s{sT0}, v10")
e(f"v_bfe_u32 v11, v{vL}, 3, 1")
e("v_lshlrev_b32 v11, 2, v11")
e("v_xor_b32 v10, v10, v11")
e("v_lshl_add_u32 v9, v10, 4, v9")
e(f"v_bfe_u32 v11, v{vL}, 1, 1")
e("v_lshl_add_u32 v9, v11, 3, v9")
e(f"v_add_u32 v{vWOT}, {WO_OFF}, v9")
cm("output projection: out offset, O fragment address")
e(f"s_lshl_b32 s{sT3}, s{sTB}, 1")
e(f"s_and_b32 s{sT4}, s{sA}, 1")
e(f"s_add_u32 s{sT3}, s{sT3}, s{sT4}")
e(f"s_lshl_b32 s{sT3}, s{sT3}, 5")
e(f"v_add_u32 v8, s{sT3}, v3")
e("v_lshlrev_b32 v8, 11, v8")
e(f"v_lshl_add_u32 v{vOUT}, v4, 5, v8")
e(f"s_lshl_b32 s{sT3}, s{sT4}, 15")
e(f"v_add_u32 v{vOF}, s{sT3}, v2")
e(f"v_lshlrev_b32 v{vPH}, 7, v{vL}")
cm("B2 A rows: e(m) = 32eb + col(m) (eb<8) or 512 - that; col(m) = 16*b2 + 4*(m>>3) + (m&3)")
e("v_and_b32 v8, 3, v3")
e("v_bfe_u32 v9, v3, 2, 1")
e("v_lshl_add_u32 v8, v9, 4, v8")
e("v_lshrrev_b32 v9, 3, v3")
e("v_lshl_add_u32 v8, v9, 2, v8")
e(f"s_lshl_b32 s{sT0}, s{sEB}, 5")
e(f"v_add_u32 v8, s{sT0}, v8")
e("v_sub_u32 v9, 0x200, v8")
e("v_sub_u32 v10, 0x800, v13")
e("v_and_b32 v10, 0x7ff, v10               ; (2048 - ts) & 2047")
e(f"s_cmp_lt_u32 s{sEB}, 8")
e("s_cselect_b64 vcc, 0, -1")
e("v_cndmask_b32 v8, v8, v9, vcc")
e("v_cndmask_b32 v11, v13, v10, vcc")
e("v_lshlrev_b32 v10, 12, v10")
e(f"v_lshl_add_u32 v{vDIM}, v4, 6, v10")
e("v_lshlrev_b32 v10, 12, v13")
e(f"v_lshl_add_u32 v{vDRE}, v4, 6, v10")
e("v_lshlrev_b32 v10, 18, v3")
e(f"v_lshl_add_u32 v{vF}, v4, 4, v10")
cm("wave a covers tiles 8g + 2a, 8g + 2a + 1: flags 16g + 4a + (0..3)")
e(f"v_lshrrev_b32 v10, 2, v3")
e("v_lshlrev_b32 v10, 4, v10")
e("v_and_b32 v9, 3, v3")
e("v_add_u32 v10, v10, v9")
e(f"v_lshlrev_b32 v{vPK}, 7, v10")
e("v_lshlrev_b32 v11, 11, v11")
e(f"v_lshl_add_u32 v{vB2O}, v4, 5, v11")
e(f"v_mul_u32_u24 v9, {32*HROW}, v4")
e(f"v_lshl_add_u32 v{vB2A}, v8, 2, v9")
tag_from_lds("L_tagx", 8)
cm("in a producer workgroup the weight region is reused only after both projection waves are done")
e(f"s_cmp_lt_u32 s{sHG}, 4")
e("s_cbranch_scc0 L_nowkv")
lds_wait("L_wkv", 0, 2, 8)
lab("L_nowkv")
cm("start polling once this workgroup's own loads have landed; flags of the K/V tiles a, a+4, ...")
lds_wait("L_wxl2", 12, 8, 8, sleep=1)
e(f"v_mov_b32 v{ACC}, {MISC+36}")
e(f"v_mov_b32 v{ACC+1}, 1")
e(f"s_lshl_b32 s{sT0}, s{sA}, 9")
e(f"s_add_u32 s{sT0}, s{sT0}, {FL_KV}")
e(f"s_lshl_b32 s{sT2}, s{sA}, 12")
e(f"s_add_u32 s{sT1}, s{sT2}, {W_OFF}")
stamp(16)
poll("L_pollKV", 1, vPK, 8, [sT0])
stamp(3)
def kvdma(G):
    e(f"s_mov_b32 m0, s{sT1}")
    if G == 0: e(f"s_lshl_b32 s{sT1}, s{sA}, 12")
    else: e(f"s_add_u32 s{sT1}, s{sT1}, 16384")
    for i in range(4): e(f"buffer_load_dwordx4 v2, {sr(R_WS,4)}, s{sT2} offen offset:{1024*i} sc1 lds")
    if G < 7: e(f"s_add_u32 s{sT2}, s{sT2}, 16384")
kvdma(0)
e("s_waitcnt vmcnt(0)")
stamp(18)
e("s_barrier")
e("s_setprio 0")
LOW[0] = True
for G in range(1, 8): kvdma(G)
e("s_waitcnt vmcnt(24)")
e("s_barrier")
stamp(17)
sXS, sWS_ = sT3, sT4
e(f"s_lshl_b32 s{sXS}, s{sS2}, 10")
e(f"s_lshl_b32 s{sWS_}, s{sCB}, 14")
e(f"s_add_u32 s{sT0}, s{sXS}, {4*65536}")
e(f"s_add_u32 s{sT1}, s{sXS}, {16*65536}")
e(f"s_add_u32 s{sT2}, s{sXS}, {20*65536}")
e(f"s_add_u32 s{sINC}, s{sWS_}, 4096")
def b1load(c):
    b = BUF + 32*(c % 4); o = 128*c
    e(f"buffer_load_dwordx4 {vr(b,4)}, v{vXE}, {sr(R_XB,4)}, s{sXS} offen offset:{o}")
    e(f"buffer_load_dwordx4 {vr(b+4,4)}, v{vXO}, {sr(R_XB,4)}, s{sT0} offen offset:{o}")
    e(f"buffer_load_dwordx4 {vr(b+8,4)}, v{vXE}, {sr(R_XB,4)}, s{sT1} offen offset:{o}")
    e(f"buffer_load_dwordx4 {vr(b+12,4)}, v{vXO}, {sr(R_XB,4)}, s{sT2} offen offset:{o}")
    e(f"buffer_load_dwordx4 {vr(b+16,4)}, v{vWE}, {sr(R_HRE,4)}, s{sWS_} offen offset:{o}")
    e(f"buffer_load_dwordx4 {vr(b+20,4)}, v{vWO_}, {sr(R_HRE,4)}, s{sINC} offen offset:{o}")
    e(f"global_load_dwordx4 {vr(b+24,4)}, {vr(vG,2)}, off offset:{o}")
    e(f"buffer_load_dwordx4 {vr(b+28,4)}, v{vWO_}, {sr(R_HIM,4)}, s{sINC} offen offset:{o}")
for c in range(2): b1load(c)
e("s_waitcnt vmcnt(16)")
e(f"ds_add_u32 v{ACC}, v{ACC+1}")
stamp(21)
if opt["nob"]: e("s_branch L_tailprep")
XF, WF = D1, D2
issued = 16
def order(c):
    extra = 4 if c >= 4 else 0
    return 8*c + 4 + extra, 8*c + 8 + extra
for c in range(8):
    b = BUF + 32*(c % 4)
    px, pw = order(c)
    e(f"s_waitcnt vmcnt({issued - px})")
    for i in range(4): e(f"ds_write_b128 v{vSW}, {vr(b+4*i,4)} offset:{1024*i}")
    if c == 0:
        b1load(2); issued += 8
    e("s_waitcnt lgkmcnt(0)")
    for s_ in range(4): e(f"ds_read_b128 {vr(XF+4*s_,4)}, v{vRD+s_}")
    e(f"s_waitcnt vmcnt({issued - pw}) lgkmcnt(0)")
    for i in range(4): e(f"ds_write_b128 v{vSW}, {vr(b+16+4*i,4)} offset:{1024*i}")
    if c == 0:
        b1load(3); issued += 8
        for kb in range(2): e(f"buffer_load_dwordx4 {vr(FR+4*kb,4)}, v{vF}, {sr(R_SRE,4)}, 0 offen offset:{32*kb}")
        for kb in range(2): e(f"buffer_load_dwordx4 {vr(FR+8+4*kb,4)}, v{vF}, {sr(R_SIM,4)}, 0 offen offset:{32*kb}")
        issued += 4
    e("s_waitcnt lgkmcnt(0)")
    for s_ in range(4): e(f"ds_read_b128 {vr(WF+4*s_,4)}, v{vRD+s_}")
    if c + 4 < 8:
        b1load(c + 4); issued += 8
    for s_ in range(4):
        e(f"s_waitcnt lgkmcnt({3-s_})")
        e(f"v_mfma_f32_32x32x16_bf16 {vr(ACC,16)}, {vr(XF+4*s_,4)}, {vr(WF+4*s_,4)}, {'0' if c==0 and s_==0 else vr(ACC,16)}")
stamp(22)
e(f"s_mul_i32 s{sT0}, s{sS2}, {HROW}")
e(f"s_lshl_b32 s{sT1}, s{sCB}, 6")
e(f"s_add_u32 s{sT0}, s{sT0}, s{sT1}")
e(f"s_add_u32 s{sT0}, s{sT0}, {WS_H}")
nop(7)
vZ = BP
def boost(on):
    e(f"s_setprio {2 if on else 0}"); LOW[0] = not on
boost(1)
for i in range(8): e(f"v_cvt_pk_bf16_f32 v{vZ+i}, v{ACC+2*i}, v{ACC+2*i+1}")
boost(0)
nop(1)
e(f"v_mfma_f32_32x32x16_bf16 {vr(D1,16)}, {vr(vZ,4)}, {vr(FR,4)}, 0")
e(f"v_mfma_f32_32x32x16_bf16 {vr(D2,16)}, {vr(vZ,4)}, {vr(FR+8,4)}, 0")
e(f"v_mfma_f32_32x32x16_bf16 {vr(D1,16)}, {vr(vZ+4,4)}, {vr(FR+4,4)}, {vr(D1,16)}")
e(f"v_mfma_f32_32x32x16_bf16 {vr(D2,16)}, {vr(vZ+4,4)}, {vr(FR+12,4)}, {vr(D2,16)}")
nop(11)
boost(1)
for r in range(8):
    e(f"v_sub_f32 v{ACC+r}, v{D1+r}, v{D2+8+r}")
    e(f"v_add_f32 v{ACC+8+r}, v{D2+r}, v{D1+8+r}")
e(f"s_cmp_eq_u32 s{sCB}, 0")
e("s_cbranch_scc0 L_nospecial")
cm("columns e = 0 and e = 256 (both purely real rows): lanes 0..31, register 0")
e("s_mov_b32 exec_hi, 0")
e(f"v_mov_b32 v{ACC}, v{D1}")
e(f"v_mov_b32 v{ACC+8}, v{D2}")
e(f"v_cvt_pk_bf16_f32 v8, v{D1+8}, v{D2+8}")
e(f"buffer_store_dword v8, v{vHA}, {sr(R_WS,4)}, s{sT0} offen offset:1024 sc1")
e("s_mov_b64 exec, -1")
lab("L_nospecial")
for r in range(8): e(f"v_cvt_pk_bf16_f32 v{vZ+r}, v{ACC+r}, v{ACC+8+r}")
e(f"buffer_store_dwordx4 {vr(vZ,4)}, v{vHA}, {sr(R_WS,4)}, s{sT0} offen sc1")
e(f"buffer_store_dwordx4 {vr(vZ+4,4)}, v{vHA}, {sr(R_WS,4)}, s{sT0} offen offset:16 sc1")
e(f"s_lshl_b32 s{sT1}, s2, 7")
e(f"s_add_u32 s{sT1}, s{sT1}, {FL_H}")
e("s_waitcnt vmcnt(0)")
signal("L_sigH", 4, 3, sT1, 8)
stamp(5)
cm("rows of the sequence DFT matrices for B2")
RAW = BUF
for i in range(4): e(f"buffer_load_dwordx4 {vr(RAW+4*i,4)}, v{vDRE}, {sr(R_SRE,4)}, 0 offen offset:{16*i}")
for i in range(4): e(f"buffer_load_dwordx4 {vr(RAW+16+4*i,4)}, v{vDIM}, {sr(R_SIM,4)}, 0 offen offset:{16*i}")
lab("L_tailprep")
cm("pull the wo slice of this workgroup towards L2 (one dword per 128-B line)")
e(f"v_lshlrev_b32 v8, 3, v{vPH}")
e(f"s_lshl_b32 s{sT0}, s{sA}, 17")
e(f"s_lshl_b32 s{sT1}, s{sHG}, 7")
e(f"s_add_u32 s{sT0}, s{sT0}, s{sT1}")
e(f"s_add_u32 s{sT1}, s{sT0}, 65536")
e(f"buffer_load_dword v12, v8, {sr(R_WO,4)}, s{sT0} offen")
e(f"buffer_load_dword v13, v8, {sr(R_WO,4)}, s{sT1} offen")
e(f"s_mov_b32 s{sT0}, 0x05040100")
e(f"s_mov_b32 s{sT3}, 0x07060302")
e("s_waitcnt vmcnt(2)")
for i in range(16):
    e(f"v_perm_b32 v{BP+2*i}, v{RAW+16+i}, v{RAW+i}, s{sT0}")
    e(f"v_perm_b32 v{BP+2*i+1}, v{RAW+16+i}, v{RAW+i}, s{sT3}")
stamp(6)
cm("aux wave 1: XCD ids of the 8 workgroups of this token block: ids 32*hg + (id & 31)")
e(f"s_cmp_eq_u32 s{sA}, 1")
e("s_cbranch_scc0 L_nosame")
e(f"v_and_b32 v8, 7, v{vL}")
e("v_lshlrev_b32 v8, 12, v8")
e(f"s_and_b32 s{sT0}, s2, 31")
e(f"s_lshl_b32 s{sT0}, s{sT0}, 7")
e(f"s_add_u32 s{sT0}, s{sT0}, {FL_X}")
e(f"buffer_load_dwordx2 v[10:11], v8, {sr(R_WS,4)}, s{sT0} offen sc1")
e(f"s_getreg_b32 s{sX}, hwreg(HW_REG_XCC_ID, 0, 4)")
e(f"s_or_b32 s{sX}, s{sX}, s{sNON}")
e(f"s_mov_b32 s{sX+1}, s{sNON+1}")
e(f"v_mov_b32 v9, {MISC+28}")
e("s_waitcnt vmcnt(0)")
e(f"v_cmp_ne_u64 vcc, {sr(sX,2)}, v[10:11]")
e("s_nop 0")
e("s_cmp_eq_u64 vcc, 0")
e(f"s_cselect_b32 s{sT0}, {1 if opt['fast'] else 0}, 0")
e(f"v_mov_b32 v11, s{sT0}")
e("ds_write_b32 v9, v11")
lab("L_nosame")
if opt['nob']: e("s_branch L_b2done")
cm("B2: wait for the H rows it reads: column groups ebg (direct) or 7-ebg and (8-ebg)&3 (mirrored)")
e(f"s_cmp_eq_u32 s{sA}, 0")
e("s_cbranch_scc0 L_hwait")
e(f"s_lshr_b32 s{sT2}, s{sJ}, 2              ; ebg")
e(f"s_sub_u32 s{sT0}, 7, s{sT2}")
e(f"s_sub_u32 s{sT1}, 8, s{sT2}")
e(f"s_and_b32 s{sT1}, s{sT1}, 3")
e(f"s_cmp_lt_u32 s{sT2}, 4")
e(f"s_cselect_b32 s{sT0}, s{sT2}, s{sT0}")
e(f"s_cselect_b32 s{sT1}, s{sT2}, s{sT1}")
e(f"s_lshl_b32 s{sT0}, s{sT0}, 13")
e(f"s_lshl_b32 s{sT1}, s{sT1}, 13")
e(f"s_add_u32 s{sT0}, s{sT0}, {FL_H}")
e(f"s_add_u32 s{sT1}, s{sT1}, {FL_H}")
poll("L_pollH", 2, vPH, 8, [sT0, sT1], sleep=8)
e(f"v_mov_b32 v10, {MISC+24}")
e("v_mov_b32 v11, 1")
e("ds_write_b32 v10, v11")
e("s_branch L_hok")
lab("L_hwait")
lds_wait("L_hw", 24, 1, 10, sleep=8)
lab("L_hok")
boost(0)
stamp(7)
e(f"s_mul_i32 s{sT0}, s{sT1S}, {64*HROW}")
e(f"s_add_u32 s{sT0}, s{sT0}, {WS_H}")
AF = 208
for kb in range(8):
    for w in range(4): e(f"buffer_load_dword v{AF+4*kb+w}, v{vB2A}, {sr(R_WS,4)}, s{sT0} offen offset:{w*HROW} sc1")
    if kb < 7: e(f"s_add_u32 s{sT0}, s{sT0}, {4*HROW}")
e(f"s_lshl_b32 s{sT0}, s{sEB}, 6")
e(f"s_add_u32 s{sT0}, s{sT0}, 1024")
for kb in range(8):
    e(f"s_waitcnt vmcnt({28-4*kb})")
    e(f"v_mfma_f32_32x32x16_bf16 {vr(ACC,16)}, {vr(AF+4*kb,4)}, {vr(BP+4*kb,4)}, {'0' if kb==0 else vr(ACC,16)}")
nop(11)
boost(1)
for i in range(8): e(f"v_cvt_pk_bf16_f32 v{FR+i}, v{ACC+2*i}, v{ACC+2*i+1}")
e(f"buffer_store_dwordx4 {vr(FR,4)}, v{vB2O}, {sr(R_OUT,4)}, s{sT0} offen{OSC}")
e(f"buffer_store_dwordx4 {vr(FR+4,4)}, v{vB2O}, {sr(R_OUT,4)}, s{sT0} offen offset:16{OSC}")
lab("L_b2done")
cm("tail: wo slice -> LDS 64K.. -> registers; the attention waves bring the O tile -> LDS 0..")
e(f"s_lshl_b32 s{sT2}, s{sA}, 17")
e(f"s_lshl_b32 s{sT0}, s{sHG}, 7")
e(f"s_add_u32 s{sT2}, s{sT2}, s{sT0}")
e(f"s_lshl_b32 s{sT1}, s{sA}, 14")
e(f"s_add_u32 s{sT1}, s{sT1}, {WO_OFF}")
stamp(8)
e("s_barrier                             ; B7")
e("s_setprio 0")
LOW[0] = False
stamp(9)
dma_run(16, vWOD, R_WO, sT2, sT1, 8192, 1024)
e(f"s_lshl_b32 s{sT0}, s{sHG}, 7")
e(f"s_lshr_b32 s{sT1}, s{sA}, 1")
e(f"s_lshl_b32 s{sT1}, s{sT1}, 6")
e(f"s_add_u32 s{sT0}, s{sT0}, s{sT1}")
e("s_waitcnt vmcnt(0)")
lds_add(32, 8)
lds_wait("L_wwo", 32, 4, 8)
stamp(10)
for ks in range(32):
    if ks % 6 == 1 and ks > 1: e("s_waitcnt lgkmcnt(2)")
    e(f"ds_read_b64_tr_b16 {vr(BUF+4*ks,2)}, v{vWOT} offset:{ks*2048}")
    e(f"ds_read_b64_tr_b16 {vr(BUF+4*ks+2,2)}, v{vWOT} offset:{ks*2048+512}")
e("s_waitcnt lgkmcnt(0)")
stamp(11)
e("s_barrier                             ; B8a")
OF = 144
korder = [h for h in range(32) if h % 8 < 4] + [h for h in range(32) if h % 8 >= 4]
def ofrag(n): e(f"ds_read_b128 {vr(OF+4*(n%8),4)}, v{vOF} offset:{1024*korder[n]}")
for n in range(7): ofrag(n)
for n in range(32):
    if n + 7 == 16:
        e("s_barrier                             ; B8b")
    if n + 7 < 32:
        ofrag(n + 7)
        e("s_waitcnt lgkmcnt(7)")
    else:
        e(f"s_waitcnt lgkmcnt({31-n})")
    e(f"v_mfma_f32_32x32x16_bf16 {vr(ACC,16)}, {vr(BUF+4*korder[n],4)}, {vr(OF+4*(n%8),4)}, {'0' if n==0 else vr(ACC,16)}")
nop(12)
for i in range(8): e(f"v_cvt_pk_bf16_f32 v{D1+i}, v{ACC+2*i}, v{ACC+2*i+1}")
e(f"buffer_store_dwordx4 {vr(D1,4)}, v{vOUT}, {sr(R_OUT,4)}, s{sT0} offen{OSC}")
e(f"buffer_store_dwordx4 {vr(D1+4,4)}, v{vOUT}, {sr(R_OUT,4)}, s{sT0} offen offset:16{OSC}")
if opt['dbgt']:
    e(f"s_cmp_lt_u32 s2, 6")
    e("s_cbranch_scc0 L_end")
    e(f"s_cmp_eq_u32 s{sW}, 4")
    e("s_cbranch_scc0 L_end")
    e("s_waitcnt vmcnt(0)")
    e(f"s_memrealtime {sr(sST,2)}")
    e("s_waitcnt lgkmcnt(0)")
    e(f"v_mov_b32 v4, s{sST}")
    e(f"s_lshl_b32 s{sT0}, s2, 2")
    e(f"s_add_u32 s{sT0}, s{sT0}, 40")
    e("s_mov_b64 exec, 1")
    e(f"buffer_store_dword v4, off, {sr(R_DBG,4)}, s{sT0}")
stamp(12)
if opt['stamps']: e("s_waitcnt vmcnt(0)")
stamp(13)
stamp_dump()
lab("L_end")
e("s_endpgm")
lab("L_codeend")
L.append(f""".section .rodata,"a"
.p2align 6
.amdhsa_kernel {NAME}_kernel
  .amdhsa_next_free_vgpr 256
  .amdhsa_next_free_sgpr 102
  .amdhsa_accum_offset 256
  .amdhsa_group_segment_fixed_size 0
  .amdhsa_kernarg_size 104
  .amdhsa_user_sgpr_count 2
  .amdhsa_user_sgpr_kernarg_segment_ptr 1
  .amdhsa_system_sgpr_workgroup_id_x 1
.end_amdhsa_kernel""")

def finish(lines, ncode):
    out = []
    for l in lines:
        if l.strip() == "CODEPF":
            for i in range(ncode // 8192):
                out.append(f"    global_load_dword v6, v[4:5], off")
                out.append(f"    v_add_co_u32 v4, vcc, 0x2000, v4")
                out.append(f"    s_nop 1")
                out.append(f"    v_addc_co_u32 v5, vcc, 0, v5, vcc")
            rem = (ncode % 8192) // 128
            if rem:
                out.append(f"    v_cmp_gt_u32 vcc, {rem}, v{vL}")
                out.append(f"    s_nop 0")
                out.append(f"    s_and_saveexec_b64 {sr(sX,2)}, vcc")
                out.append(f"    global_load_dword v6, v[4:5], off")
                out.append(f"    s_mov_b64 exec, -1")
        else: out.append(l)
    return "\n".join(out) + "\n"
import subprocess, os, hazcheck
ncode = 16384
for _ in range(3):
    txt = finish(L, ncode)
    open("_g.s", "w").write(txt)
    r = subprocess.run(["clang", "-x", "assembler", "-target", "amdgcn-amd-amdhsa", "-mcpu=gfx950", "-c", "_g.s", "-o", "_g.o"], capture_output=True, text=True)
    if r.returncode: print(r.stderr[:3000]); sys.exit(1)
    sz = subprocess.run(["llvm-objdump", "-h", "_g.o"], capture_output=True, text=True).stdout
    n = [int(x.split()[2], 16) for x in sz.splitlines() if " .text " in x][0]
    if n // 128 * 128 == ncode: break
    ncode = n // 128 * 128
open(sys.argv[1], "w").write(txt)
print(hazcheck.check(txt), "hazards; code bytes", n)
```

```python
import sys, struct
NAME = "concat_heads__grouped_kv_mqa__spectral_fnet__prompt"
opt = dict(stamps=0, prioA=1, prioX=2, boost=1, force_fb=0, dbgt=0, dry=1, codepf=1, shift=98, outsc1=0, cluster=1, fast=1, nob=0, l2pf=0, wo1=4, hold=1, pre=1, pads=1)
for a in sys.argv[2:]:
    k, v = a.split('='); opt[k] = int(v)

L = []
def e(s=""): L.append("    " + s)
def lab(s): L.append(s + ":")
def cm(s): L.append("    ; " + s)
def vr(a, n): return f"v[{a}:{a+n-1}]" if n > 1 else f"v{a}"
def sr(a, n): return f"s[{a}:{a+n-1}]" if n > 1 else f"s{a}"
def nop(n):
    while n > 0:
        k = min(n, 16); e(f"s_nop {k-1}"); n -= k
def f2u(x): return struct.unpack('<I', struct.pack('<f', x))[0]
OSC = " sc1" if opt['outsc1'] else ""

W_OFF = 0
X_OFF, XROW = 16384, 1040
WQ_OFF = 82944
ONES_OFF = 148480
MISC = 156672
STG = 131072
LDS_BYTES = 156800
C_KV, C_H, C_O, C_TAG, C_HOK, C_SAME, C_CR, C_QA, C_QB, C_G1, C_KVL = 0, 4, 8, 16, 24, 28, 32, 36, 40, 44, 48
WS_KV, WS_O, WS_H, WS_FL = 0, 0x40000, 0x240000, 0x480000
FL_KV, FL_H, FL_O, FL_X = WS_FL, WS_FL + 0x8000, WS_FL + 0x10000, WS_FL + 0x18000
WS_STAMP = 0x4A0000
WS_SIZE = 0x540000
HROW = 1056
SPIN = 400000
VSCALE = 64
P_XA, P_WQ, P_WK, P_WV, P_WO, P_XB, P_SRE, P_SIM = 4, 6, 8, 10, 12, 14, 16, 18
P_HRE, P_HIM, P_OUT, P_DBG, P_WS = 20, 22, 24, 26, 28
R_XA, R_WQ, R_W, R_WS, R_WO, R_XB, R_SRE, R_SIM, R_OUT, R_DBG = 32, 36, 40, 44, 48, 52, 56, 60, 64, 68
sW, sXCD, sJ, sTB, sHG, sTHP, sA = 72, 73, 74, 75, 76, 77, 78
sT0, sT1, sT2, sT3, sT4 = 80, 81, 82, 83, 84
sDRY = 85
sNON = 86
sIT, sINC, sFB, sSPIN = 88, 89, 90, 91
sX = 92
sST = 94
sBARN = 96
sRET = 90

def srd(r, p, size):
    e(f"s_mov_b32 s{r}, s{p}")
    e(f"s_and_b32 s{r+1}, s{p+1}, 0xffff")
    e(f"s_mov_b32 s{r+2}, {hex(size)}")
    e(f"s_mov_b32 s{r+3}, 0x20000")

LOW = [False]
vL = 1
def stamp(idx):
    if not opt['stamps']: return
    e(f"s_memrealtime {sr(sST,2)}")
    e(f"s_memtime {sr(sX,2)}")
    e("s_waitcnt lgkmcnt(0)")
    if LOW[0]: e("s_setprio 2")
    e(f"v_writelane_b32 v254, s{sST}, {idx}")
    e(f"v_writelane_b32 v255, s{sX}, {idx}")
    if LOW[0]: e("s_setprio 0")
def stamp_dump():
    if not opt['stamps']: return
    e(f"s_lshl_b32 s{sST}, s2, 3")
    e(f"s_add_u32 s{sST}, s{sST}, s{sW}")
    e(f"s_lshl_b32 s{sST}, s{sST}, 8")
    e(f"s_add_u32 s{sST}, s{sST}, {WS_STAMP}")
    e(f"v_lshlrev_b32 v253, 3, v{vL}")
    e("s_mov_b32 exec_hi, 0")
    e(f"buffer_store_dwordx2 v[254:255], v253, {sr(R_WS,4)}, s{sST} offen")

PADS = {}
def pad_begin(name): PADS[name] = len(L)
def isize(l):
    t = l.strip()
    if not t or t.startswith((';', '.')) or t.endswith(':'): return 0
    t = t.split(';')[0]
    mn = t.split()[0]
    if mn.startswith(('buffer_', 'global_', 'ds_', 'v_mfma', 'v_smfmac', 's_load', 's_mem')): return 8
    if mn.startswith('v_') and (mn.endswith('_e64') or mn in ('v_lshl_add_u32', 'v_bfe_u32', 'v_perm_b32', 'v_max3_f32', 'v_cvt_pk_bf16_f32', 'v_writelane_b32', 'v_mul_u32_u24', 'v_cmp_ne_u64')): return 8
    import re as _r
    for o in _r.findall(r'(?<![\w\[:])(-?0x[0-9a-f]+|-?\d+)(?![\w\]:])', (t.split(None, 1) + [''])[1]):
        v = int(o, 0)
        if not mn.startswith(('s_waitcnt', 's_nop', 's_sleep', 's_setprio')) and not -16 <= v <= 64: return 8
    return 4
def pad_end(name, ret):
    a = PADS[name]
    if not opt['pads']:
        L.insert(a, f"{name}_0:"); L.insert(a + 1, f"    s_cbranch_execz {ret}"); return
    body = L[a:]; del L[a:]
    n = 0; acc = 0
    L.append(f"{name}_0:"); L.append(f"    s_cbranch_execz {name}_1")
    for l in body:
        z = isize(l)
        prev = L[-1].strip()
        if acc + z > 56 and not prev.startswith(('s_mov_b32 m0', 's_add_u32 m0')):
            n += 1; L.append(f"{name}_{n}:"); L.append(f"    s_cbranch_execz {name}_{n+1}"); acc = 0
        L.append(l); acc += z
    n += 1
    L.append(f"{name}_{n}:"); L.append(f"    s_cbranch_execz {ret}")
def warm(name, ret):
    e("s_mov_b64 exec, 0")
    e(f"s_branch {name}_0")
    lab(ret)
    e("s_mov_b64 exec, -1")

def dma(voff, srdr, soff, ldsaddr_s, extra=""):
    e(f"s_mov_b32 m0, s{ldsaddr_s}")
    e("s_nop 0")
    e(f"buffer_load_dwordx4 v{voff}, {sr(srdr,4)}, s{soff} offen {extra}lds")
def dma_run(n, voff, srdr, soff, lds_s, dsrc, dlds, extra=""):
    for i in range(n):
        e(f"s_mov_b32 m0, s{lds_s}")
        if i < n - 1: e(f"s_add_u32 s{lds_s}, s{lds_s}, {dlds}")
        else: e("s_nop 0")
        e(f"buffer_load_dwordx4 v{voff}, {sr(srdr,4)}, s{soff} offen {extra}lds")
        if i < n - 1: e(f"s_add_u32 s{soff}, s{soff}, {dsrc}")

def poll(name, nloads, voff, dst, soffs, sleep=0):
    e(f"s_mov_b32 s{sSPIN}, {SPIN}")
    lab(name)
    for i in range(nloads):
        e(f"buffer_load_dwordx2 {vr(dst+2*i,2)}, v{voff}, {sr(R_WS,4)}, s{soffs[i]} offen sc1")
    e(f"s_sub_u32 s{sSPIN}, s{sSPIN}, 1")
    e(f"s_cmp_eq_u32 s{sSPIN}, 0")
    e(f"s_cbranch_scc1 {name}_done")
    e("s_waitcnt vmcnt(0)")
    e(f"v_cmp_ne_u64 vcc, {sr(sNON,2)}, {vr(dst,2)}")
    for i in range(1, nloads):
        e(f"v_cmp_ne_u64 {sr(sX,2)}, {sr(sNON,2)}, {vr(dst+2*i,2)}")
        e("s_nop 0")
        e(f"s_or_b64 vcc, vcc, {sr(sX,2)}")
    e("s_nop 0")
    e("s_cmp_eq_u64 vcc, 0")
    if sleep:
        e(f"s_cbranch_scc1 {name}_done")
        e(f"s_sleep {sleep}")
        e(f"s_branch {name}")
    else:
        e(f"s_cbranch_scc0 {name}")
    lab(name + "_done")
    e("s_waitcnt vmcnt(0)")

def lds_wait(name, off, value, tmp, sleep=0):
    e(f"s_mov_b32 s{sSPIN}, {SPIN*8}")
    e(f"v_mov_b32 v{tmp}, {MISC + off}")
    lab(name)
    e(f"ds_read_b32 v{tmp+1}, v{tmp}")
    e(f"s_sub_u32 s{sSPIN}, s{sSPIN}, 1")
    e(f"s_cmp_eq_u32 s{sSPIN}, 0")
    e(f"s_cbranch_scc1 {name}_done")
    e("s_waitcnt lgkmcnt(0)")
    e(f"v_readfirstlane_b32 s{sT4}, v{tmp+1}")
    e("s_nop 0")
    e(f"s_cmp_ge_u32 s{sT4}, {value}")
    if sleep:
        e(f"s_cbranch_scc1 {name}_done")
        e(f"s_sleep {sleep}")
        e(f"s_branch {name}")
    else:
        e(f"s_cbranch_scc0 {name}")
    lab(name + "_done")
    e("s_waitcnt lgkmcnt(0)")
def lds_add(off, tmp):
    e(f"v_mov_b32 v{tmp}, {MISC + off}")
    e(f"v_mov_b32 v{tmp+1}, 1")
    e("s_mov_b64 exec, 1")
    e(f"ds_add_u32 v{tmp}, v{tmp+1}")
    e("s_mov_b64 exec, -1")
def tag_from_lds(name, tmp):
    e(f"s_mov_b32 s{sSPIN}, {SPIN*8}")
    e(f"v_mov_b32 v{tmp}, {MISC+C_TAG}")
    lab(name)
    e(f"ds_read_b64 {vr(tmp+2,2)}, v{tmp}")
    e(f"s_sub_u32 s{sSPIN}, s{sSPIN}, 1")
    e(f"s_cmp_eq_u32 s{sSPIN}, 0")
    e(f"s_cbranch_scc1 {name}_done")
    e("s_waitcnt lgkmcnt(0)")
    e(f"v_readfirstlane_b32 s{sNON}, v{tmp+2}")
    e(f"v_readfirstlane_b32 s{sNON+1}, v{tmp+3}")
    e(f"s_cmp_lg_u32 s{sNON}, 0")
    e(f"s_cbranch_scc1 {name}_done")
    e("s_sleep 1")
    e(f"s_branch {name}")
    lab(name + "_done")
    e("s_waitcnt lgkmcnt(0)")

def signal(name, ctr_off, last, flag_soff_s, tmp, lo=None, plain_if=None):
    e(f"v_mov_b32 v{tmp}, {MISC + ctr_off}")
    e(f"v_mov_b32 v{tmp+1}, 1")
    e(f"s_mov_b64 exec, 1")
    e(f"ds_add_rtn_u32 v{tmp+1}, v{tmp}, v{tmp+1}")
    e(f"v_mov_b32 v{tmp+2}, s{sNON if lo is None else lo}")
    e(f"v_mov_b32 v{tmp+3}, s{sNON+1}")
    e("s_waitcnt lgkmcnt(0)")
    e(f"v_readfirstlane_b32 s{sT4}, v{tmp+1}")
    e("s_nop 0")
    e(f"s_cmp_eq_u32 s{sT4}, {last}")
    e(f"s_cbranch_scc0 {name}_nf")
    if plain_if is not None:
        e(f"s_cmp_eq_u32 s{plain_if}, 0")
        e(f"s_cbranch_scc1 {name}_wt")
        e(f"buffer_store_dwordx2 {vr(tmp+2,2)}, off, {sr(R_WS,4)}, s{flag_soff_s}")
        e(f"s_branch {name}_nf")
        lab(name + "_wt")
    e(f"buffer_store_dwordx2 {vr(tmp+2,2)}, off, {sr(R_WS,4)}, s{flag_soff_s} sc1")
    lab(name + "_nf")
    e("s_mov_b64 exec, -1")

hdr = open(f"cdna_kernels/{NAME}.s.ref").read().split("; Override launch")[0]
L.append(hdr.rstrip())
L.append(f"; @launch grid=(256,1,1) block=(512,1,1) lds={LDS_BYTES}")
L.append('.amdgcn_target "amdgcn-amd-amdhsa--gfx950"')
L.append(".text")
L.append(f".globl {NAME}_kernel")
L.append(".p2align 8")
L.append(f".type {NAME}_kernel,@function")
lab(f"{NAME}_kernel")
e("s_cmp_ge_u32 s2, 256")
e("s_cbranch_scc1 L_end")
e("s_load_dwordx16 s[4:19], s[0:1], 0")
e("s_load_dwordx8 s[20:27], s[0:1], 64")
e("s_load_dwordx2 s[28:29], s[0:1], 96")
e(f"s_memrealtime {sr(sNON,2)}")
e("v_lshrrev_b32 v2, 6, v0")
e(f"v_and_b32 v{vL}, 63, v0")
e(f"v_readfirstlane_b32 s{sW}, v2")
e(f"s_and_b32 s{sXCD}, s2, 7")
e(f"s_lshr_b32 s{sJ}, s2, 3")
e(f"s_and_b32 s{sT0}, s{sJ}, 3")
e(f"s_lshl_b32 s{sTB}, s{sXCD}, 2")
e(f"s_add_u32 s{sTB}, s{sTB}, s{sT0}")
e(f"s_lshr_b32 s{sHG}, s{sJ}, 2")
e(f"s_bfe_u32 s{sTHP}, s{sHG}, 0x10001")
e(f"s_and_b32 s{sA}, s{sW}, 3")
e(f"v_lshlrev_b32 v2, 4, v{vL}          ; v2 = lane*16")
cm("LDS init while the kernel arguments load: ones / zeros window (even 16-B chunks 2^64, odd chunks 0), counters")
ONE = (127 + VSCALE) << 7
e("v_and_b32 v4, 1, v0")
e("v_add_u32 v4, -1, v4")
e(f"v_and_b32 v4, {hex(ONE << 16 | ONE)}, v4")
e("v_mov_b32 v5, v4")
e("v_mov_b32 v6, v4")
e("v_mov_b32 v7, v4")
e(f"v_lshlrev_b32 v3, 4, v0")
e(f"v_add_u32 v3, {ONES_OFF}, v3")
e("ds_write_b128 v3, v[4:7]")
e("v_mov_b32 v8, 0")
e(f"v_lshlrev_b32 v9, 1, v{vL}")
e("v_and_b32 v9, 0x7c, v9")
e(f"v_add_u32 v9, {MISC}, v9")
e("ds_write_b32 v9, v8")
e(f"s_mov_b32 s{R_XA+2}, 0x200000")
e(f"s_mov_b32 s{R_XA+3}, 0x20000")
e(f"s_cmp_ge_u32 s{sW}, 4")
e("s_cbranch_scc1 L_aux")

cm("wq slice (8 rows x 128 B per load, 16-B chunks swizzled by row bit 1); quarter tb&3 first: distinct among its 4 sharers")
e(f"v_lshrrev_b32 v3, 3, v{vL}          ; r")
e(f"v_and_b32 v4, 7, v{vL}")
e(f"v_bfe_u32 v5, v{vL}, 4, 1           ; (r>>1)&1")
e("v_lshlrev_b32 v5, 2, v5")
e("v_xor_b32 v4, v4, v5")
e("v_lshlrev_b32 v4, 4, v4")
e("v_lshl_add_u32 v13, v3, 10, v4")
e(f"s_mov_b32 s{R_WQ+2}, 0x80000")
e(f"s_mov_b32 s{R_WQ+3}, 0x20000")
def wq_addr(q):
    e(f"s_add_u32 s{sT0}, s{sJ}, {q}")
    e(f"s_and_b32 s{sT0}, s{sT0}, 3")
    e(f"s_lshl_b32 s{sT0}, s{sT0}, 2")
    e(f"s_add_u32 s{sT0}, s{sT0}, s{sW}")
    e(f"s_lshl_b32 s{sT2}, s{sT0}, 15")
    e(f"s_lshl_b32 s{sT1}, s{sHG}, 7")
    e(f"s_add_u32 s{sT2}, s{sT2}, s{sT1}")
    e(f"s_lshl_b32 s{sT1}, s{sT0}, 12")
    e(f"s_add_u32 s{sT1}, s{sT1}, {WQ_OFF}")
wq_addr(0)
e("s_waitcnt lgkmcnt(0)")
e(f"s_mov_b32 s{R_WQ}, s{P_WQ}")
e(f"s_and_b32 s{R_WQ+1}, s{P_WQ+1}, 0xffff")
e(f"s_mov_b32 s{R_XA}, s{P_XA}")
e(f"s_and_b32 s{R_XA+1}, s{P_XA+1}, 0xffff")
stamp(0)
e("s_barrier")
dma_run(4, 13, R_WQ, sT2, sT1, 8192, 1024)
cm("the half of the x tile the aux waves do not load: rows 32*(1-thp) + 8w + i")
e(f"s_xor_b32 s{sT0}, s{sTHP}, 1")
e(f"s_lshl_b32 s{sT0}, s{sT0}, 5")
e(f"s_lshl_b32 s{sT1}, s{sW}, 3")
e(f"s_add_u32 s{sT0}, s{sT0}, s{sT1}")
e(f"s_mul_i32 s{sT1}, s{sT0}, {XROW}")
e(f"s_add_u32 s{sT1}, s{sT1}, {X_OFF}")
e(f"s_lshl_b32 s{sT2}, s{sTB}, 6")
e(f"s_add_u32 s{sT2}, s{sT2}, s{sT0}")
e(f"s_lshl_b32 s{sT2}, s{sT2}, 10")
dma_run(8, 2, R_XA, sT2, sT1, 1024, XROW)
for q in range(1, 4):
    wq_addr(q)
    dma_run(4, 13, R_WQ, sT2, sT1, 8192, 1024)
stamp(7)
srd(R_WS, P_WS, WS_SIZE)
SA, SB, OA, OB, CA, CB = 16, 32, 48, 64, 80, 96
QA, QB, K0, K1, V0, V1 = 112, 116, 120, 124, 128, 136
vIDX, vK, vV = 144, 145, 146
vINC, vV0, vSAME = 147, 150, 151
vXA, vWA = 148, 149
FB = 152
cm("Q-projection addresses")
e(f"s_and_b32 s{sT0}, s{sW}, 1            ; th")
e(f"s_lshr_b32 s{sT1}, s{sW}, 1           ; hp")
e(f"v_and_b32 v3, 31, v{vL}")
e(f"s_lshl_b32 s{sT2}, s{sT0}, 5")
e(f"v_add_u32 v3, s{sT2}, v3")
e(f"v_mul_u32_u24 v3, {XROW}, v3")
e(f"v_lshrrev_b32 v4, 5, v{vL}           ; h")
e(f"v_lshl_add_u32 v14, v4, 4, v3")
e(f"v_bfe_u32 v5, v{vL}, 2, 2            ; r")
e("v_lshl_add_u32 v6, v4, 3, v5          ; 8h + r")
e("v_lshlrev_b32 v6, 7, v6")
e(f"v_bfe_u32 v7, v{vL}, 4, 1            ; g")
e(f"v_and_b32 v8, 1, v{vL}")
e("v_lshl_add_u32 v7, v7, 1, v8          ; 2g + (cc&1)")
e(f"s_lshl_b32 s{sT2}, s{sT1}, 2")
e(f"v_add_u32 v7, s{sT2}, v7")
e(f"v_bfe_u32 v8, v{vL}, 3, 1            ; (r>>1)&1")
e("v_lshlrev_b32 v8, 2, v8")
e("v_xor_b32 v7, v7, v8")
e("v_lshl_add_u32 v6, v7, 4, v6")
e(f"v_bfe_u32 v8, v{vL}, 1, 1")
e("v_lshl_add_u32 v6, v8, 3, v6")
e(f"v_add_u32 v{vWA}, {WQ_OFF}, v6")
e(f"v_add_u32 v{vXA}, {X_OFF}, v14")
cm("attention LDS addresses; V: rows 0..15 -> tile data, lanes 16,20 -> 2^64, other lanes -> 0")
e(f"v_mov_b32 v{vIDX}, 0xdddddddd")
e(f"v_bfe_u32 v5, v{vL}, 4, 1")
e(f"v_xor_b32 v5, 1, v5")
e(f"v_lshlrev_b32 v{vINC}, 13, v5")
e(f"v_and_b32 v8, 15, v{vL}")
e("v_lshlrev_b32 v9, 8, v4")
e("v_lshl_add_u32 v8, v8, 4, v9")
e(f"v_and_b32 v9, 31, v{vL}")
e("v_add_u32 v10, -20, v9")
e("v_cmp_gt_u32 vcc, 8, v10")
e("v_and_b32 v9, 11, v9")
e("v_min_u32 v9, 1, v9")
e("v_cndmask_b32 v10, 0, 64, vcc")
e(f"v_cmp_eq_u32 vcc, 1, v5")
e("v_lshl_add_u32 v9, v9, 4, v10")
e(f"v_add_u32 v9, {ONES_OFF - 1024}, v9")
e(f"v_cndmask_b32 v{vV0}, v9, v8, vcc")
cm("O fragment destination and flag slot")
sOD, sOF = 97, 98
e(f"s_and_b32 s{sT0}, s{sW}, 1")
e(f"s_lshl_b32 s{sT1}, s{sTB}, 1")
e(f"s_add_u32 s{sT0}, s{sT0}, s{sT1}")
e(f"s_lshl_b32 s{sT0}, s{sT0}, 5          ; (tb*2+th)*32")
e(f"s_lshl_b32 s{sT1}, s{sHG}, 2")
e(f"s_add_u32 s{sT0}, s{sT0}, s{sT1}")
e(f"s_and_b32 s{sT1}, s{sW}, 2")
e(f"s_add_u32 s{sT0}, s{sT0}, s{sT1}")
e(f"s_lshl_b32 s{sT0}, s{sT0}, 10")
e(f"s_add_u32 s{sOD}, s{sT0}, {WS_O}")
e(f"s_lshl_b32 s{sT1}, s{sTB}, 3")
e(f"s_add_u32 s{sT1}, s{sT1}, s{sHG}")
e(f"s_lshl_b32 s{sT1}, s{sT1}, 7")
e(f"s_add_u32 s{sOF}, s{sT1}, {FL_O}")
e(f"s_mov_b32 s{sFB}, 0")
e(f"s_mov_b32 s{sBARN}, 0xa")
e(f"v_mov_b32 v{vSAME}, {MISC}")
sPF, sOL, sOS, vPO = 100, 101, 79, 184
e(f"s_lshl_b32 s{sT0}, s{sTB}, 3")
e(f"s_lshl_b32 s{sT1}, s{sW}, 1")
e(f"s_add_u32 s{sT0}, s{sT0}, s{sT1}")
e(f"s_lshl_b32 s{sT0}, s{sT0}, 7")
e(f"s_add_u32 s{sPF}, s{sT0}, {FL_O}")
e(f"s_lshl_b32 s{sT2}, s{sTB}, 16")
e(f"s_lshl_b32 s{sOL}, s{sW}, 13")
e(f"s_add_u32 s{sT2}, s{sT2}, s{sOL}")
e(f"s_add_u32 s{sOS}, s{sT2}, {WS_O}")
e(f"v_and_b32 v8, 1, v{vL}")
e(f"v_lshlrev_b32 v{vPO}, 7, v8")
for i in range(16): e(f"v_mov_b32 v{OA+i}, 0")
for i in range(16): e(f"v_mov_b32 v{OB+i}, 0")
for i in range(4): e(f"v_mov_b32 v{V1+4+i}, 0")
e(f"v_mov_b32 v{vK}, v2")
e(f"v_mov_b32 v{vV}, v{vV0}")
e(f"s_mov_b32 s{sT0}, {hex(f2u(0.25*1.4426950408889634))}")
warm("L_padq", "L_padq_ret")
e("s_waitcnt vmcnt(0)")
stamp(8)
e("s_barrier")
stamp(10)
pad_begin("L_padq")
def qload(ks):
    b = FB + 8*(ks % 4)
    e(f"ds_read_b64_tr_b16 {vr(b,2)}, v{vWA} offset:{ks*2048}")
    e(f"ds_read_b64_tr_b16 {vr(b+2,2)}, v{vWA} offset:{ks*2048+512}")
    e(f"ds_read_b128 {vr(b+4,4)}, v{vXA} offset:{ks*32}")
for ks in range(3): qload(ks)
for ks in range(32):
    b = FB + 8*(ks % 4)
    if ks + 3 < 32:
        qload(ks + 3); e("s_waitcnt lgkmcnt(9)")
    else:
        e(f"s_waitcnt lgkmcnt({3*(31-ks)})")
    c = "0" if ks == 0 else vr(SA, 16)
    e(f"v_mfma_f32_32x32x16_bf16 {vr(SA,16)}, {vr(b,4)}, {vr(b+4,4)}, {c}")
stamp(9)
nop(12)
for i in range(16): e(f"v_mul_f32 v{SA+i}, s{sT0}, v{SA+i}")
for i in range(8): e(f"v_cvt_pk_bf16_f32 v{QA+i}, v{SA+2*i}, v{SA+2*i+1}")
if opt['prioA']: e(f"s_setprio {opt['prioA']}")
stamp(2)
e("s_barrier")
stamp(3)
cm("stand-in for the row max: max over key tile 0 (checked after the loop; fallback = true max)")
e(f"ds_read_b128 {vr(K0,4)}, v{vK}")
e(f"ds_read_b128 {vr(K1,4)}, v{vK} offset:2048")
e(f"ds_read_b128 {vr(V0,4)}, v{vV} offset:1024")
e(f"ds_read_b128 {vr(V0+4,4)}, v{vV} offset:1536")
e("s_waitcnt lgkmcnt(3)")
e(f"v_mfma_f32_32x32x16_bf16 {vr(SA,16)}, {vr(K0,4)}, {vr(QA,4)}, 0")
e(f"v_mfma_f32_32x32x16_bf16 {vr(SB,16)}, {vr(K0,4)}, {vr(QB,4)}, 0")
nop(11)
def max16(dst, s, acc=None):
    if acc is None:
        e(f"v_max3_f32 v{dst}, v{s}, v{s+1}, v{s+2}"); i = 3
        while i + 1 < 16:
            e(f"v_max3_f32 v{dst}, v{dst}, v{s+i}, v{s+i+1}"); i += 2
        e(f"v_max_f32 v{dst}, v{dst}, v{s+15}")
    else:
        for i in range(0, 16, 2): e(f"v_max3_f32 v{dst}, v{dst}, v{s+i}, v{s+i+1}")
max16(4, SA); max16(5, SB)
lab("L_setmax")
cm(f"v4 / v5 = per-lane max for tiles A / B; combine the two half-waves, C = -(max + {opt['shift']})")
e("v_mov_b32 v6, v4")
e("v_mov_b32 v7, v5")
e(f"s_mov_b32 s{sIT}, 0")
e("s_nop 0")
e("v_permlane32_swap_b32 v4, v6")
e("v_permlane32_swap_b32 v5, v7")
e("v_max_f32 v4, v4, v6")
e("v_max_f32 v5, v5, v7")
for i in range(16): e(f"v_sub_f32 v{CA+i}, {hex(f2u(-float(opt['shift'])))}, v4")
e(f"v_sub_f32 v{CB}, {hex(f2u(-float(opt['shift'])))}, v5")
e("s_waitcnt lgkmcnt(0)")
e(f"v_mfma_f32_32x32x16_bf16 {vr(SA,16)}, {vr(K0,4)}, {vr(QA,4)}, {vr(CA,16)}")
for i in range(1, 16): e(f"v_mov_b32 v{CB+i}, v{CB}")
for i in range(8): e(f"v_mov_b32 v{SB+8+i}, 0")
def SM(o, a, b): e(f"v_smfmac_f32_32x32x32_bf16 {vr(o,16)}, {vr(a,4)}, {vr(b,8)}, v{vIDX}")
def QK(d, k, q, c): e(f"v_mfma_f32_32x32x16_bf16 {vr(d,16)}, {vr(k,4)}, {vr(q,4)}, {vr(c,16)}")
def EX(s, a, b):
    for i in range(a, b): e(f"v_exp_f32 v{s+i}, v{s+i}")
pad_end("L_padq", "L_padq_ret")
L.append(".p2align 6")
lab("L_att_loop")
for u in range(4):
    kc, kn = (K0, K1) if u % 2 == 0 else (K1, K0)
    vc, vp = (V0, V1) if u % 2 == 0 else (V1, V0)
    voffs = ((u + 1) % 4) * 2048 + 1024
    koffs = ((u + 2) % 4) * 2048
    p0, p1, p2 = (4, 7, 10) if opt['cluster'] else (2, 5, 10)
    EX(SA, 0, p0)
    SM(OB, vp + 4, SB + 8)
    e("s_waitcnt lgkmcnt(1)")
    EX(SA, p0, p1)
    QK(SB, kc, QB, CB)
    e(f"ds_read_b128 {vr(vp,4)}, v{vV} offset:{voffs}")
    EX(SA, p1, p2)
    SM(OA, vc, SA)
    e(f"ds_read_b128 {vr(vp+4,4)}, v{vV} offset:{voffs+512}")
    EX(SA, p2, 16)
    EX(SB, 0, p0)
    SM(OA, vc + 4, SA + 8)
    e("s_waitcnt lgkmcnt(2)")
    if u == 1:
        pass
    EX(SB, p0, p1)
    QK(SA, kn, QA, CA)
    e(f"ds_read_b128 {vr(kc,4)}, v{vK} offset:{koffs}")
    EX(SB, p1, p2)
    SM(OB, vc, SB)
    if u == 1:
        e(f"s_bitcmp1_b32 s{sBARN}, s{sIT}")
        e("s_cbranch_scc1 L_sync")
        lab("L_nobar")
        e(f"v_add_u32 v{vK}, 0x2000, v{vK}")
    if u == 2:
        e(f"v_add_u32 v{vV}, v{vINC}, v{vV}")
    if u == 3:
        e(f"s_add_u32 s{sIT}, s{sIT}, 1")
        e(f"s_cmp_lt_u32 s{sIT}, 16")
    if u == 0 and opt['cluster']: e("s_nop 0")
    EX(SB, p2, 16)
e("s_cbranch_scc1 L_att_loop")
pad_begin("L_padt")
e(f"s_mov_b32 s{sT0}, {hex(f2u(2.0**100) if not opt['force_fb'] else f2u(2.0**-30))}")
e(f"v_rcp_f32 v4, v{OA+8}")
SM(OB, V1 + 4, SB + 8)
e(f"ds_read_b32 v7, v{vSAME} offset:{C_SAME}")
e(f"ds_read_b64 v[8:9], v{vSAME} offset:{C_TAG}")
cm("run-time check of the stand-in: l*2^64 must be finite and <= 2^100, else redo with the true row max")
e(f"v_cmp_nle_f32_e64 vcc, v{OA+8}, s{sT0}")
for i in range(8): e(f"v_mul_f32 v{SA+i}, v4, v{OA+i}")
for i in range(4): e(f"v_cvt_pk_bf16_f32 v{SA+i}, v{SA+2*i}, v{SA+2*i+1}")
e(f"v_rcp_f32 v5, v{OB+8}")
e(f"v_cmp_nle_f32_e64 {sr(sX,2)}, v{OB+8}, s{sT0}")
e("s_waitcnt lgkmcnt(0)")
e(f"s_or_b64 vcc, vcc, {sr(sX,2)}")
e("s_cmp_eq_u64 vcc, 0")
e("s_cbranch_scc0 L_fallback")
lab("L_att_done")
stamp(6)
cm("plain stores only when every workgroup of this token block reported the same XCD; else write-through")
sSAME = 99
e(f"v_readfirstlane_b32 s{sSAME}, v7")
e(f"v_readfirstlane_b32 s{sNON}, v8")
e(f"v_readfirstlane_b32 s{sNON+1}, v9")
for i in range(8): e(f"v_mul_f32 v{OB+i}, v5, v{OB+i}")
for i in range(4): e(f"v_cvt_pk_bf16_f32 v{SA+4+i}, v{OB+2*i}, v{OB+2*i+1}")
e(f"s_cmp_eq_u32 s{sSAME}, 0")
e("s_cbranch_scc1 L_ost_wt")
e(f"buffer_store_dwordx4 {vr(SA,4)}, v2, {sr(R_WS,4)}, s{sOD} offen")
e(f"buffer_store_dwordx4 {vr(SA+4,4)}, v2, {sr(R_WS,4)}, s{sOD} offen offset:1024")
lab("L_ost_done")
e("s_barrier")
stamp(4)
e("s_waitcnt vmcnt(0)")
signal("L_sigO", C_O, 3, sOF, 4, plain_if=sSAME)
stamp(5)
cm("gather the O tile of this token block: wave w takes producers 2w, 2w+1 (first / second half)")
poll("L_pollO", 1, vPO, 8, [sPF])
stamp(11)
def odma(sc):
    for q in range(2):
        for th in range(2):
            e(f"s_mov_b32 m0, s{sOL}")
            e("s_nop 0")
            for i in range(4): e(f"buffer_load_dwordx4 v2, {sr(R_WS,4)}, s{sOS} offen offset:{1024*i} {sc}lds")
            if not (th == 1 and q == 1):
                op = "s_add_u32" if th == 0 else "s_sub_u32"
                d = 32768 if th == 0 else 32768 - 4096
                e(f"{op} s{sOL}, s{sOL}, {d}")
                e(f"{op} s{sOS}, s{sOS}, {d}")
odma("sc1 ")
pad_end("L_padt", "L_pado_0")
e("s_waitcnt vmcnt(8)")
stamp(12)
e("s_barrier")
e("s_waitcnt vmcnt(0)")
e("s_barrier")
stamp_dump()
e("s_endpgm")
lab("L_ost_wt")
e(f"buffer_store_dwordx4 {vr(SA,4)}, v2, {sr(R_WS,4)}, s{sOD} offen sc1")
e(f"buffer_store_dwordx4 {vr(SA+4,4)}, v2, {sr(R_WS,4)}, s{sOD} offen offset:1024 sc1")
e("s_branch L_ost_done")
lab("L_sync")
e(f"s_cmp_eq_u32 s{sIT}, 1")
e("s_cbranch_scc0 L_sync3")
lds_wait("L_wg1", C_G1, 256, 4)
e("s_branch L_nobar")
lab("L_sync3")
lds_wait("L_wkvl", C_KVL, 256, 4)
e("s_branch L_nobar")
lab("L_fallback")
e(f"s_cmp_eq_u32 s{sFB}, 0")
e("s_cbranch_scc0 L_att_done")
cm("fallback: exact row max over all 64 key tiles, then repeat the main loop")
e(f"s_mov_b32 s{sFB}, 1")
e(f"s_mov_b32 s{sBARN}, 0")
e(f"v_mov_b32 v4, 0xff800000")
e(f"v_mov_b32 v5, 0xff800000")
e(f"v_mov_b32 v{vK}, v2")
e(f"s_mov_b32 s{sIT}, 0")
lab("L_fb_loop")
e(f"ds_read_b128 {vr(K0,4)}, v{vK}")
e("s_waitcnt lgkmcnt(0)")
e(f"v_mfma_f32_32x32x16_bf16 {vr(SA,16)}, {vr(K0,4)}, {vr(QA,4)}, 0")
e(f"v_mfma_f32_32x32x16_bf16 {vr(SB,16)}, {vr(K0,4)}, {vr(QB,4)}, 0")
e(f"v_add_u32 v{vK}, 0x800, v{vK}")
nop(11)
max16(4, SA, 1); max16(5, SB, 1)
e(f"s_add_u32 s{sIT}, s{sIT}, 1")
e(f"s_cmp_lt_u32 s{sIT}, 64")
e("s_cbranch_scc1 L_fb_loop")
e(f"v_mov_b32 v{vK}, v2")
e(f"v_mov_b32 v{vV}, v{vV0}")
for i in range(16): e(f"v_mov_b32 v{OA+i}, 0")
for i in range(16): e(f"v_mov_b32 v{OB+i}, 0")
for i in range(4): e(f"v_mov_b32 v{V1+4+i}, 0")
e(f"ds_read_b128 {vr(K0,4)}, v{vK}")
e(f"ds_read_b128 {vr(K1,4)}, v{vK} offset:2048")
e(f"ds_read_b128 {vr(V0,4)}, v{vV} offset:1024")
e(f"ds_read_b128 {vr(V0+4,4)}, v{vV} offset:1536")
e("s_branch L_setmax")

lab("L_aux")
BUF = 16
BP = 144
FR = 176
ACC = 192
D1, D2 = 208, 224
if opt['prioX']: e(f"s_setprio {opt['prioX']}")
cm("critical loads: producer weight (wk for even hg, wv for odd), x rows 32*thp + 8a + i")
e(f"s_lshl_b32 s{sT0}, s{sTHP}, 5")
e(f"s_lshl_b32 s{sT1}, s{sA}, 3")
e(f"s_add_u32 s{sT0}, s{sT0}, s{sT1}")
e(f"s_mul_i32 s{sT1}, s{sT0}, {XROW}")
e(f"s_add_u32 s{sT1}, s{sT1}, {X_OFF}")
e(f"s_lshl_b32 s{sT2}, s{sTB}, 6")
e(f"s_add_u32 s{sT2}, s{sT2}, s{sT0}")
e(f"s_lshl_b32 s{sT2}, s{sT2}, 10")
e(f"s_lshl_b32 s{sT3}, s{sA}, 12")
e(f"s_mov_b32 s{R_W+2}, 16384")
e(f"s_mov_b32 s{R_W+3}, 0x20000")
e(f"s_mov_b32 m0, s{sT3}")
e(f"s_bitcmp1_b32 s{sHG}, 0")
e("s_waitcnt lgkmcnt(0)")
e(f"s_cselect_b32 s{R_W}, s{P_WV}, s{P_WK}")
e(f"s_cselect_b32 s{R_W+1}, s{P_WV+1}, s{P_WK+1}")
e(f"s_and_b32 s{R_W+1}, s{R_W+1}, 0xffff")
e(f"s_mov_b32 s{R_XA}, s{P_XA}")
e(f"s_and_b32 s{R_XA+1}, s{P_XA+1}, 0xffff")
srd(R_DBG, P_DBG, 256)
cm("workgroup 0, aux wave 3 publishes this launch's hand-off tag")
e(f"s_or_b32 s{sNON}, s{sNON}, 16")
e(f"s_and_b32 s{sNON}, s{sNON}, -16")
e(f"s_lshl_b32 s{sT0}, s2, 3")
e(f"s_add_u32 s{sT0}, s{sT0}, s{sW}")
e(f"s_cmp_eq_u32 s{sT0}, 7")
e("s_cbranch_scc0 L_notag")
e(f"v_mov_b32 v4, s{sNON}")
e(f"v_mov_b32 v5, s{sNON+1}")
e("s_mov_b64 exec, 1")
e(f"buffer_store_dwordx2 v[4:5], off, {sr(R_DBG,4)}, 0 sc1")
e("s_mov_b64 exec, -1")
lab("L_notag")
e(f"s_cmp_lt_u32 s{sHG}, 4")
e("s_cbranch_scc0 L_now")
for i in range(4): e(f"buffer_load_dwordx4 v2, {sr(R_W,4)}, s{sT3} offen offset:{1024*i} lds")
lab("L_now")
dma_run(8, 2, R_XA, sT2, sT1, 1024, XROW)
stamp(0)
srd(R_WS, P_WS, WS_SIZE)
if opt['dbgt']:
    e(f"s_cmp_lt_u32 s2, 8")
    e("s_cbranch_scc0 L_nodbg0")
    e(f"s_cmp_eq_u32 s{sW}, 6")
    e("s_cbranch_scc0 L_nodbg0")
    e(f"v_mov_b32 v4, s{sNON}")
    e(f"s_lshl_b32 s{sT0}, s2, 2")
    e(f"s_add_u32 s{sT0}, s{sT0}, 8")
    e("s_mov_b64 exec, 1")
    e(f"buffer_store_dword v4, off, {sr(R_DBG,4)}, s{sT0}")
    e("s_mov_b64 exec, -1")
    lab("L_nodbg0")
e("s_barrier                             ; B1")
KV0 = len(L)
e(f"v_mov_b32 v14, {MISC+C_CR}")
e(f"v_mov_b32 v15, 1")
cm("K / V projection: workgroups hg<4, aux waves 0,1 (16 tokens each)")
e(f"s_cmp_lt_u32 s{sHG}, 4")
e("s_cbranch_scc0 L_np")
e(f"s_cmp_lt_u32 s{sA}, 2")
e("s_cbranch_scc0 L_np")
e(f"v_and_b32 v3, 15, v{vL}")
e(f"v_lshrrev_b32 v4, 4, v{vL}           ; q")
e(f"s_lshl_b32 s{sT0}, s{sTHP}, 5")
e(f"s_lshl_b32 s{sT1}, s{sA}, 4")
e(f"s_add_u32 s{sT0}, s{sT0}, s{sT1}")
e(f"v_add_u32 v5, s{sT0}, v3")
e(f"v_mul_u32_u24 v5, {XROW}, v5")
e("v_lshl_add_u32 v5, v4, 4, v5")
e(f"v_add_u32 v5, {X_OFF}, v5")
e(f"v_bfe_u32 v6, v{vL}, 2, 2            ; r")
e("v_lshl_add_u32 v6, v4, 3, v6")
e("v_lshlrev_b32 v6, 5, v6")
e(f"v_and_b32 v7, 3, v{vL}               ; cc")
e(f"s_lshl_b32 s{sT2}, s{sTB}, 1")
e(f"s_add_u32 s{sT2}, s{sT2}, s{sTHP}")
sKF, sKD = 97, 96
e(f"s_lshl_b32 s{sT1}, s{sT2}, 1")
e(f"s_and_b32 s{sT0}, s{sHG}, 1")
e(f"s_add_u32 s{sT1}, s{sT1}, s{sT0}")
e(f"s_lshl_b32 s{sT1}, s{sT1}, 1")
e(f"s_add_u32 s{sT1}, s{sT1}, s{sA}")
e(f"s_lshl_b32 s{sT1}, s{sT1}, 7")
e(f"s_add_u32 s{sKF}, s{sT1}, {FL_KV}")
e(f"s_lshl_b32 s{sKD}, s{sT2}, 11")
e("v_and_b32 v9, 1, v4")
e("v_lshlrev_b32 v9, 3, v9")
e("v_lshl_add_u32 v9, v3, 4, v9          ; n*16 + (q&1)*8")
e("v_lshrrev_b32 v8, 1, v4")
e(f"s_mov_b32 s{sDRY}, {1 if opt['dry'] else 0}")
if opt['pre']:
    cm("touch the lines this wave will publish (tile and flag), so the write-through stores find them resident")
    e(f"v_and_b32 v12, 15, v{vL}")
    e("v_lshlrev_b32 v12, 7, v12")
    e(f"buffer_load_dword v201, v12, {sr(R_WS,4)}, s{sKD} offen sc1")
    e(f"buffer_load_dword v202, off, {sr(R_WS,4)}, s{sKF} sc1")
def kvchain(isV):
    for ks in range(16):
        b = BUF + 8*ks
        e(f"ds_read_b64_tr_b16 {vr(b,2)}, v6 offset:{ks*1024}")
        e(f"ds_read_b64_tr_b16 {vr(b+2,2)}, v6 offset:{ks*1024+128}")
        e(f"ds_read_b128 {vr(b+4,4)}, v5 offset:{ks*64}")
        if ks >= 3:
            k2 = ks - 3; b2 = BUF + 8*k2
            e("s_waitcnt lgkmcnt(9)")
            a, bb = (b2+4, b2) if isV else (b2, b2+4)
            e(f"v_mfma_f32_16x16x32_bf16 {vr(ACC,4)}, {vr(a,4)}, {vr(bb,4)}, {'0' if k2==0 else vr(ACC,4)}")
    for k2 in range(13, 16):
        b2 = BUF + 8*k2
        e(f"s_waitcnt lgkmcnt({3*(15-k2)})")
        a, bb = (b2+4, b2) if isV else (b2, b2+4)
        e(f"v_mfma_f32_16x16x32_bf16 {vr(ACC,4)}, {vr(a,4)}, {vr(bb,4)}, {vr(ACC,4)}")
def kv_wait(tagname):
    e(f"s_waitcnt vmcnt({2 if opt['pre'] else 0})")
    stamp(1)
    e("ds_add_u32 v14, v15")
    lds_wait(tagname + "_w", C_CR, 256, 10, sleep=1)
def kv_b1(tagname):
    if not opt['dry']: kv_wait(tagname)
    lab(tagname)
def kv_b2(tagname):
    if opt['dry']:
        e(f"s_cmp_eq_u32 s{sDRY}, 0")
        e(f"s_cbranch_scc1 {tagname}_go")
        e(f"s_mov_b32 s{sDRY}, 0")
        kv_wait(tagname)
        e(f"s_branch {tagname}")
        lab(tagname + "_go")
e(f"s_bitcmp1_b32 s{sHG}, 0")
e("s_cbranch_scc1 L_prodV")
cm("K: (q>>1)*512 + (16b+n)*16 + (q&1)*8")
e("v_lshl_add_u32 v6, v7, 3, v6")
e("v_lshl_add_u32 v8, v8, 9, v9")
e(f"s_lshl_b32 s{sT1}, s{sA}, 8")
e(f"s_add_u32 s{sKD}, s{sKD}, s{sT1}")
kv_b1("L_chK"); kvchain(False); kv_b2("L_chK")
nop(6 if opt['dry'] else 8)
e("s_branch L_prodS")
lab("L_prodV")
cm("V: 1024 + b*512 + (q>>1)*256 + n*16 + (q&1)*8")
e("v_lshl_add_u32 v8, v8, 8, v9")
e("v_and_b32 v9, 1, v7")
e("v_lshl_add_u32 v6, v9, 4, v6")
e("v_lshrrev_b32 v9, 1, v7")
e("v_lshl_add_u32 v6, v9, 3, v6")
e(f"s_lshl_b32 s{sT1}, s{sA}, 9")
e(f"s_add_u32 s{sKD}, s{sKD}, s{sT1}")
e(f"s_add_u32 s{sKD}, s{sKD}, 1024")
kv_b1("L_chV"); kvchain(True); kv_b2("L_chV")
e(f"s_mov_b32 s{sT0}, {hex(f2u(2.0**VSCALE))}")
nop(6 if opt['dry'] else 8)
for i in range(4): e(f"v_mul_f32 v{ACC+i}, s{sT0}, v{ACC+i}")
lab("L_prodS")
e(f"v_cvt_pk_bf16_f32 v10, v{ACC}, v{ACC+1}")
e(f"v_cvt_pk_bf16_f32 v11, v{ACC+2}, v{ACC+3}")
e(f"buffer_store_dwordx2 v[10:11], v8, {sr(R_WS,4)}, s{sKD} offen sc1")
stamp(14)
e("ds_add_u32 v14, v15 offset:%d             ; this wave is done with the weight region" % (C_KV - C_CR + 65536) if False else f"v_mov_b32 v13, {MISC+C_KV}")
e("ds_add_u32 v13, v15")
tag_from_lds("L_tagp", 4)
e(f"v_mov_b32 v6, s{sNON}")
e(f"v_mov_b32 v7, s{sNON+1}")
e("s_mov_b64 exec, 1")
e("s_waitcnt vmcnt(0)")
e(f"buffer_store_dwordx2 v[6:7], off, {sr(R_WS,4)}, s{sKF} sc1")
e("s_mov_b64 exec, -1")
stamp(15)
e(f"s_mov_b32 s{sRET}, 1")
e("s_branch L_tagged")
lab("L_np")
e("s_waitcnt vmcnt(0)")
stamp(1)
e("ds_add_u32 v14, v15")
if opt['codepf']:
    cm("aux wave 2 pulls this kernel's code towards L2 (reads only)")
    e(f"s_cmp_eq_u32 s{sA}, 2")
    e("s_cbranch_scc0 L_nopf")
    e(f"s_getpc_b64 {sr(sX,2)}")
    lab("L_pc")
    e(f"v_lshlrev_b32 v4, 7, v{vL}")
    e(f"s_sub_u32 s{sX}, s{sX}, L_pc-{NAME}_kernel")
    e(f"s_subb_u32 s{sX+1}, s{sX+1}, 0")
    e(f"v_mov_b32 v5, s{sX+1}")
    e(f"v_add_co_u32 v4, vcc, s{sX}, v4")
    e("s_nop 1")
    e("v_addc_co_u32 v5, vcc, 0, v5, vcc")
    e("CODEPF")
    lab("L_nopf")
e(f"s_cmp_eq_u32 s{sA}, 3")
e("s_cbranch_scc0 L_tagged0")
cm("aux wave 3 fetches this launch's hand-off tag (bounded spin) and posts it in LDS")
e(f"s_mov_b32 s{sSPIN}, {SPIN}")
lab("L_tag")
e(f"buffer_load_dwordx2 v[14:15], off, {sr(R_DBG,4)}, 0 sc1")
e(f"s_sub_u32 s{sSPIN}, s{sSPIN}, 1")
e(f"s_cmp_eq_u32 s{sSPIN}, 0")
e("s_cbranch_scc1 L_tag_done")
e("s_waitcnt vmcnt(0)")
e("v_cmp_eq_u32 vcc, 0, v14")
e("s_nop 0")
e("s_cmp_eq_u64 vcc, 0")
e("s_cbranch_scc0 L_tag")
lab("L_tag_done")
e("s_waitcnt vmcnt(0)")
e(f"v_mov_b32 v12, {MISC+C_TAG}")
e("ds_write_b64 v12, v[14:15]")
cm("report this workgroup's XCD id (tag | id)")
e(f"s_getreg_b32 s{sT2}, hwreg(HW_REG_XCC_ID, 0, 4)")
e(f"s_lshl_b32 s{sT1}, s2, 7")
e(f"s_add_u32 s{sT1}, s{sT1}, {FL_X}")
e(f"v_or_b32 v14, s{sT2}, v14")
e("s_mov_b64 exec, 1")
e(f"buffer_store_dwordx2 v[14:15], off, {sr(R_WS,4)}, s{sT1} sc1")
e("s_mov_b64 exec, -1")
import re
def ren(m):
    n = int(m.group(1)); return f"v{208+n}" if 3 <= n <= 15 else m.group(0)
def ren2(m):
    a, b = int(m.group(1)), int(m.group(2)); return f"v[{208+a}:{208+b}]" if 3 <= a <= 15 else m.group(0)
for k in range(KV0, len(L)):
    L[k] = re.sub(r"v\[(\d+):(\d+)\]", ren2, re.sub(r"\bv(\d+)\b", ren, L[k]))
e(f"s_mov_b32 s{sRET}, 0") if False else None
lab("L_tagged0")
e(f"s_mov_b32 s{sRET}, 0")
e("s_branch L_addr")
lab("L_tagged")
stamp(2)
tag_from_lds("L_tagx", 8)
cm("in a producer workgroup the weight region is reused only after both projection waves are done")
e(f"s_cmp_lt_u32 s{sHG}, 4")
e("s_cbranch_scc0 L_nowkv")
lds_wait("L_wkv", C_KV, 128, 8, sleep=1)
lab("L_nowkv")
cm("key tiles in rotated order (own XCD's tiles first); wave a covers tiles 8g + 2a, 8g + 2a + 1: flags 32g + 8a + (0..7)")
vCNT = 10
sKG, sKL, sKS, sKP = 97, 85, 88, 96
e(f"v_and_b32 v{ACC+2}, 7, v{vL}")
e(f"v_lshlrev_b32 v{ACC+2}, 7, v{ACC+2}")
e(f"s_lshl_b32 s{sKP}, s{sA}, 10")
e(f"s_add_u32 s{sKP}, s{sKP}, {FL_KV}")
e(f"s_lshl_b32 s{sT1}, s{sXCD}, 12")
e(f"s_add_u32 s{sT1}, s{sT1}, s{sKP}")
e(f"s_lshl_b32 s{sKL}, s{sA}, 12")
e(f"s_lshl_b32 s{sKG}, s{sXCD}, 14")
e("s_barrier                             ; B2")
stamp(16)
poll("L_pollK0", 1, ACC+2, 8, [sT1])
stamp(3)
def kvdma(G):
    e(f"s_add_u32 m0, s{sKL}, {16384*G}")
    e(f"s_add_u32 s{sKS}, s{sKG}, s{sKL}")
    for i in range(4): e(f"buffer_load_dwordx4 v2, {sr(R_WS,4)}, s{sKS} offen offset:{1024*i} sc1 lds")
    if G < 7:
        e(f"s_add_u32 s{sKG}, s{sKG}, 16384")
        e(f"s_and_b32 s{sKG}, s{sKG}, 0x1ffff")
kvdma(0)
e(f"s_cmp_eq_u32 s{sRET}, 1")
e("s_cbranch_scc0 L_addr_2")
lab("L_addr")
srd(R_SRE, P_SRE, 8388608)
srd(R_SIM, P_SIM, 8388608)
srd(R_XB, P_XB, 2097152)
srd(R_WO, P_WO, 524288)
srd(R_OUT, P_OUT, 4194304)
sT1S, sEB, sTT, sS2, sCB = 98, 99, 100, 101, 79
R_HRE, R_HIM = R_XA, R_W
e(f"s_and_b32 s{sT0}, s{sJ}, 3")
e(f"s_lshl_b32 s{sT1S}, s{sXCD}, 2")
e(f"s_add_u32 s{sT1S}, s{sT1S}, s{sT0}       ; t1s")
e(f"s_lshr_b32 s{sT0}, s{sJ}, 2")
e(f"s_lshl_b32 s{sT0}, s{sT0}, 1")
e(f"s_lshr_b32 s{sEB}, s{sA}, 1")
e(f"s_add_u32 s{sEB}, s{sEB}, s{sT0}         ; eb")
e(f"s_and_b32 s{sTT}, s{sA}, 1               ; tt")
e(f"s_and_b32 s{sT0}, s{sJ}, 7")
e(f"s_lshl_b32 s{sS2}, s{sXCD}, 3")
e(f"s_add_u32 s{sS2}, s{sS2}, s{sT0}         ; s2")
e(f"s_lshr_b32 s{sT0}, s{sJ}, 3")
e(f"s_lshl_b32 s{sCB}, s{sT0}, 2")
e(f"s_add_u32 s{sCB}, s{sCB}, s{sA}          ; cb")
srd(R_HRE, P_HRE, 524288)
srd(R_HIM, P_HIM, 524288)
e(f"v_and_b32 v3, 31, v{vL}                ; n")
e(f"v_lshrrev_b32 v4, 5, v{vL}             ; h")
e(f"s_lshl_b32 s{sT0}, s{sTT}, 5")
e(f"v_add_u32 v5, s{sT0}, v3")
e("v_lshlrev_b32 v5, 5, v5")
e(f"v_add_u32 v13, s{sT1S}, v5")
vXE, vXO, vWE, vWO_, vG, vRD = 240, 241, 242, 243, 244, 246
vSW, vDRE, vDIM = 250, 251, 252
vB2A, vB2O, vHA, vWOD, vWOT, vOF, vOUT, vPH, vPK, vF = 4, 3, 15, 14, 0, 5, 6, 7, 12, 13
cm("B1 load addresses (8 rows x 128 B per instruction, chunk swizzle on the source side)")
e(f"v_lshrrev_b32 v5, 3, v{vL}             ; r")
e("v_and_b32 v6, 3, v5")
e("v_lshrrev_b32 v7, 2, v5")
e("v_lshl_add_u32 v6, v7, 3, v6            ; 8*(r>>2) + (r&3)")
e("v_lshrrev_b32 v7, 1, v5")
e(f"v_and_b32 v8, 7, v{vL}")
e("v_xor_b32 v7, v7, v8")
e("v_lshlrev_b32 v7, 4, v7")
e("v_xor_b32 v8, 64, v7")
e(f"v_lshl_add_u32 v{vXE}, v6, 16, v7")
e(f"v_lshl_add_u32 v{vXO}, v6, 16, v8")
e(f"v_lshl_add_u32 v{vWE}, v6, 10, v7")
e(f"v_lshl_add_u32 v{vWO_}, v6, 10, v8")
cm("instruction 2 of W (im rows e = 16cb + {0..3, 8..11}); for cb = 0 row e = 0 is replaced by cos row 256")
e(f"s_lshl_b32 s{sT0}, s{sCB}, 14")
e(f"v_add_u32 v9, s{sT0}, v{vWE}")
e("v_cmp_gt_u32 vcc, 0x80, v9")
e(f"v_mov_b32 v{vG}, s{P_HIM}")
e(f"v_mov_b32 v{vG+1}, s{P_HIM+1}")
e(f"v_mov_b32 v10, s{P_HRE}")
e(f"v_mov_b32 v11, s{P_HRE+1}")
e(f"v_cndmask_b32 v{vG}, v{vG}, v10, vcc")
e(f"v_cndmask_b32 v{vG+1}, v{vG+1}, v11, vcc")
e("v_add_u32 v10, 0x40000, v9")
e("v_cndmask_b32 v9, v9, v10, vcc")
e(f"v_add_co_u32 v{vG}, vcc, v{vG}, v9")
e("s_nop 1")
e(f"v_addc_co_u32 v{vG+1}, vcc, 0, v{vG+1}, vcc")
cm("staging read addresses: row m, chunk (2s+h) ^ ((m>>1)&7)")
e(f"s_lshl_b32 s{sT0}, s{sA}, 12")
e(f"s_add_u32 s{sT0}, s{sT0}, {STG}")
e("v_bfe_u32 v5, v3, 1, 3")
e("v_xor_b32 v5, v5, v4")
e("v_lshlrev_b32 v5, 4, v5")
e("v_lshl_add_u32 v5, v3, 7, v5")
e(f"v_add_u32 v{vRD}, s{sT0}, v5")
for s_ in range(1, 4): e(f"v_xor_b32 v{vRD+s_}, {32*s_}, v{vRD}")
e(f"v_add_u32 v{vSW}, s{sT0}, v2")
cm("H store address: t1*64*HROW + 8h*4")
e(f"v_mul_u32_u24 v8, {64*HROW}, v3")
e(f"v_lshl_add_u32 v{vHA}, v4, 5, v8")
cm("wo: DMA source (16 rows x 64 B per load) and the transposing read from the staging area")
e(f"v_bfe_u32 v8, v{vL}, 2, 2")
e("v_lshl_add_u32 v8, v4, 3, v8            ; 8h + r")
e("v_lshlrev_b32 v8, 6, v8")
e(f"v_and_b32 v9, 1, v{vL}")
e("v_lshl_add_u32 v8, v9, 5, v8")
e(f"v_bfe_u32 v9, v{vL}, 4, 1")
e("v_lshl_add_u32 v8, v9, 4, v8")
e(f"v_bfe_u32 v9, v{vL}, 1, 1")
e("v_lshl_add_u32 v8, v9, 3, v8")
e(f"v_add_u32 v{vWOT}, s{sT0}, v8")
e(f"v_lshrrev_b32 v8, 2, v{vL}")
e(f"v_and_b32 v9, 3, v{vL}")
e("v_lshlrev_b32 v8, 10, v8")
e(f"v_lshl_add_u32 v{vWOD}, v9, 4, v8")
cm("output projection: out offset, O fragment address")
e(f"s_lshl_b32 s{sT3}, s{sTB}, 1")
e(f"s_and_b32 s{sT4}, s{sA}, 1")
e(f"s_add_u32 s{sT3}, s{sT3}, s{sT4}")
e(f"s_lshl_b32 s{sT3}, s{sT3}, 5")
e(f"v_add_u32 v8, s{sT3}, v3")
e("v_lshlrev_b32 v8, 11, v8")
e(f"v_lshl_add_u32 v{vOUT}, v4, 5, v8")
e(f"s_lshl_b32 s{sT3}, s{sT4}, 15")
e(f"v_add_u32 v{vOF}, s{sT3}, v2")
e(f"v_lshlrev_b32 v{vPH}, 7, v{vL}")
vPW = 253
e(f"v_lshlrev_b32 v{vPW}, 10, v{vL}")
cm("B2 A rows: e(m) = 32eb + col(m) (eb<8) or 512 - that; col(m) = 16*b2 + 4*(m>>3) + (m&3)")
e("v_and_b32 v8, 3, v3")
e("v_bfe_u32 v9, v3, 2, 1")
e("v_lshl_add_u32 v8, v9, 4, v8")
e("v_lshrrev_b32 v9, 3, v3")
e("v_lshl_add_u32 v8, v9, 2, v8")
e(f"s_lshl_b32 s{sT0}, s{sEB}, 5")
e(f"v_add_u32 v8, s{sT0}, v8")
e("v_sub_u32 v9, 0x200, v8")
e("v_sub_u32 v10, 0x800, v13")
e("v_and_b32 v10, 0x7ff, v10               ; (2048 - ts) & 2047")
e(f"s_cmp_lt_u32 s{sEB}, 8")
e("s_cselect_b64 vcc, 0, -1")
e("v_cndmask_b32 v8, v8, v9, vcc")
e("v_cndmask_b32 v11, v13, v10, vcc")
e("v_lshlrev_b32 v10, 12, v10")
e(f"v_lshl_add_u32 v{vDIM}, v4, 6, v10")
e("v_lshlrev_b32 v10, 12, v13")
e(f"v_lshl_add_u32 v{vDRE}, v4, 6, v10")
e("v_lshlrev_b32 v10, 18, v3")
e(f"v_lshl_add_u32 v{vF}, v4, 4, v10")
e(f"v_lshrrev_b32 v10, 3, v{vL}")
e("v_lshlrev_b32 v10, 5, v10")
e(f"v_and_b32 v9, 7, v{vL}")
e("v_add_u32 v10, v10, v9")
e(f"v_lshlrev_b32 v{vPK}, 7, v10             ; K/V flags 32g + (0..7)")
e("v_lshlrev_b32 v11, 11, v11")
e(f"v_lshl_add_u32 v{vB2O}, v4, 5, v11")
e(f"v_mul_u32_u24 v9, {32*HROW}, v4")
e(f"v_lshl_add_u32 v{vB2A}, v8, 2, v9")
e(f"s_cmp_eq_u32 s{sRET}, 0")
e(f"s_mov_b32 s{sRET}, 2")
e("s_cbranch_scc1 L_tagged")
lab("L_addr_2")
e(f"v_mov_b32 v{vCNT}, {MISC+C_G1}")
e(f"v_mov_b32 v{vCNT+1}, 1")
e("s_waitcnt vmcnt(0)")
stamp(18)
e("s_barrier")
poll("L_pollKV", 1, vPK, 8, [sKP], sleep=1)
stamp(4)
e("s_setprio 0")
LOW[0] = True
sXS, sWS_ = sT3, sT4
e(f"s_lshl_b32 s{sXS}, s{sS2}, 10")
e(f"s_lshl_b32 s{sWS_}, s{sCB}, 14")
e(f"s_add_u32 s{sT0}, s{sXS}, {4*65536}")
e(f"s_add_u32 s{sT1}, s{sXS}, {16*65536}")
e(f"s_add_u32 s{sT2}, s{sXS}, {20*65536}")
e(f"s_add_u32 s{sINC}, s{sWS_}, 4096")
def b1load(c):
    b = BUF + 32*(c % 4); o = 128*c
    e(f"buffer_load_dwordx4 {vr(b,4)}, v{vXE}, {sr(R_XB,4)}, s{sXS} offen offset:{o}")
    e(f"buffer_load_dwordx4 {vr(b+4,4)}, v{vXO}, {sr(R_XB,4)}, s{sT0} offen offset:{o}")
    e(f"buffer_load_dwordx4 {vr(b+8,4)}, v{vXE}, {sr(R_XB,4)}, s{sT1} offen offset:{o}")
    e(f"buffer_load_dwordx4 {vr(b+12,4)}, v{vXO}, {sr(R_XB,4)}, s{sT2} offen offset:{o}")
    e(f"buffer_load_dwordx4 {vr(b+16,4)}, v{vWE}, {sr(R_HRE,4)}, s{sWS_} offen offset:{o}")
    e(f"buffer_load_dwordx4 {vr(b+20,4)}, v{vWO_}, {sr(R_HRE,4)}, s{sINC} offen offset:{o}")
    e(f"global_load_dwordx4 {vr(b+24,4)}, {vr(vG,2)}, off offset:{o}")
    e(f"buffer_load_dwordx4 {vr(b+28,4)}, v{vWO_}, {sr(R_HIM,4)}, s{sINC} offen offset:{o}")
for G in range(1, 3): kvdma(G)
e("s_waitcnt vmcnt(4)")
e(f"ds_add_u32 v{vCNT}, v{vCNT+1}")
for G in range(3, 8): kvdma(G)
b1load(0); b1load(1)
stamp(17)
e("s_waitcnt vmcnt(16)")
e(f"ds_add_u32 v{vCNT}, v{vCNT+1} offset:4")
stamp(21)
if opt["nob"]:
    e("s_branch L_tailprep")
XF, WF = D1, D2
RAW = BP
issued = 16
def order(c):
    extra = 4 if c >= 4 else 0
    return 8*c + 4 + extra, 8*c + 8 + extra
def b1mfma(c):
    for s_ in range(4):
        e(f"v_mfma_f32_32x32x16_bf16 {vr(ACC,16)}, {vr(XF+4*s_,4)}, {vr(WF+4*s_,4)}, {'0' if c==0 and s_==0 else vr(ACC,16)}")
for c in range(8):
    b = BUF + 32*(c % 4)
    px, pw = order(c)
    e(f"s_waitcnt vmcnt({issued - px}) lgkmcnt(0)")
    for i in range(4): e(f"ds_write_b128 v{vSW}, {vr(b+4*i,4)} offset:{1024*i}")
    if c == 0:
        b1load(2); issued += 8
    else: b1mfma(c - 1)
    e("s_waitcnt lgkmcnt(0)")
    for s_ in range(4): e(f"ds_read_b128 {vr(XF+4*s_,4)}, v{vRD+s_}")
    e(f"s_waitcnt vmcnt({issued - pw}) lgkmcnt(0)")
    for i in range(4): e(f"ds_write_b128 v{vSW}, {vr(b+16+4*i,4)} offset:{1024*i}")
    if c == 0:
        b1load(3); issued += 8
        for kb in range(2): e(f"buffer_load_dwordx4 {vr(FR+4*kb,4)}, v{vF}, {sr(R_SRE,4)}, 0 offen offset:{32*kb}")
        for kb in range(2): e(f"buffer_load_dwordx4 {vr(FR+8+4*kb,4)}, v{vF}, {sr(R_SIM,4)}, 0 offen offset:{32*kb}")
        issued += 4
    e("s_waitcnt lgkmcnt(0)")
    for s_ in range(4): e(f"ds_read_b128 {vr(WF+4*s_,4)}, v{vRD+s_}")
    if c + 4 < 8:
        b1load(c + 4); issued += 8
    if c == 4:
        cm("rows of the sequence DFT matrices for B2")
        for i in range(4): e(f"buffer_load_dwordx4 {vr(RAW+4*i,4)}, v{vDRE}, {sr(R_SRE,4)}, 0 offen offset:{16*i}")
        for i in range(4): e(f"buffer_load_dwordx4 {vr(RAW+16+4*i,4)}, v{vDIM}, {sr(R_SIM,4)}, 0 offen offset:{16*i}")
        issued += 8
    if c == 5:
        cm("pull this wave's quarter of the wo slice towards L2 (one dword per 128-B line)")
        e(f"s_lshl_b32 s{sT0}, s{sA}, 17")
        e(f"s_lshl_b32 s{sT1}, s{sHG}, 7")
        e(f"s_add_u32 s{sT0}, s{sT0}, s{sT1}")
        e(f"s_add_u32 s{sT1}, s{sT0}, 65536")
        e(f"buffer_load_dword v{vPK}, v{vPW}, {sr(R_WO,4)}, s{sT0} offen")
        e(f"buffer_load_dword v{vF}, v{vPW}, {sr(R_WO,4)}, s{sT1} offen")
        issued += 2
e("s_waitcnt lgkmcnt(0)")
b1mfma(7)
stamp(22)
e(f"s_mul_i32 s{sT0}, s{sS2}, {HROW}")
e(f"s_lshl_b32 s{sT1}, s{sCB}, 6")
e(f"s_add_u32 s{sT0}, s{sT0}, s{sT1}")
e(f"s_add_u32 s{sT0}, s{sT0}, {WS_H}")
nop(7)
vZ = BUF
def boost(on):
    e(f"s_setprio {2 if on else 0}"); LOW[0] = not on
boost(1)
for i in range(8): e(f"v_cvt_pk_bf16_f32 v{vZ+i}, v{ACC+2*i}, v{ACC+2*i+1}")
boost(0)
nop(1)
e(f"v_mfma_f32_32x32x16_bf16 {vr(D1,16)}, {vr(vZ,4)}, {vr(FR,4)}, 0")
e(f"v_mfma_f32_32x32x16_bf16 {vr(D2,16)}, {vr(vZ,4)}, {vr(FR+8,4)}, 0")
e(f"v_mfma_f32_32x32x16_bf16 {vr(D1,16)}, {vr(vZ+4,4)}, {vr(FR+4,4)}, {vr(D1,16)}")
e(f"v_mfma_f32_32x32x16_bf16 {vr(D2,16)}, {vr(vZ+4,4)}, {vr(FR+12,4)}, {vr(D2,16)}")
nop(11)
boost(1)
for r in range(8):
    e(f"v_sub_f32 v{ACC+r}, v{D1+r}, v{D2+8+r}")
    e(f"v_add_f32 v{ACC+8+r}, v{D2+r}, v{D1+8+r}")
e(f"s_cmp_eq_u32 s{sCB}, 0")
e("s_cbranch_scc0 L_nospecial")
cm("columns e = 0 and e = 256 (both purely real rows): lanes 0..31, register 0")
e("s_mov_b32 exec_hi, 0")
e(f"v_mov_b32 v{ACC}, v{D1}")
e(f"v_mov_b32 v{ACC+8}, v{D2}")
e(f"v_cvt_pk_bf16_f32 v8, v{D1+8}, v{D2+8}")
e(f"buffer_store_dword v8, v{vHA}, {sr(R_WS,4)}, s{sT0} offen offset:1024 sc1")
e("s_mov_b64 exec, -1")
lab("L_nospecial")
for r in range(8): e(f"v_cvt_pk_bf16_f32 v{vZ+r}, v{ACC+r}, v{ACC+8+r}")
e(f"buffer_store_dwordx4 {vr(vZ,4)}, v{vHA}, {sr(R_WS,4)}, s{sT0} offen sc1")
e(f"buffer_store_dwordx4 {vr(vZ+4,4)}, v{vHA}, {sr(R_WS,4)}, s{sT0} offen offset:16 sc1")
e(f"s_lshl_b32 s{sT1}, s2, 7")
e(f"s_add_u32 s{sT1}, s{sT1}, {FL_H}")
e("s_waitcnt vmcnt(0)")
signal("L_sigH", C_H, 3, sT1, 8)
stamp(5)
e(f"s_mov_b32 s{sT0}, 0x05040100")
e(f"s_mov_b32 s{sT3}, 0x07060302")
def bploc(o): return FR + o if o < 16 else (RAW + o - 16 if o < 24 else RAW + 16 + o - 24)
for i in range(16):
    e(f"v_perm_b32 v{bploc(2*i)}, v{RAW+16+i}, v{RAW+i}, s{sT0}")
    e(f"v_perm_b32 v{bploc(2*i+1)}, v{RAW+16+i}, v{RAW+i}, s{sT3}")
lab("L_tailprep")
boost(0)
sWOS, sWOL = 97, 85
e(f"s_lshl_b32 s{sWOS}, s{sHG}, 7")
e(f"s_lshr_b32 s{sT1}, s{sA}, 1")
e(f"s_lshl_b32 s{sT1}, s{sT1}, 6")
e(f"s_add_u32 s{sWOS}, s{sWOS}, s{sT1}")
e(f"s_lshl_b32 s{sWOL}, s{sA}, 12")
e(f"s_add_u32 s{sWOL}, s{sWOL}, {STG}")
def wo_round(R):
    for i in range(4):
        e(f"s_add_u32 m0, s{sWOL}, {1024*i}")
        e(f"s_add_u32 s{sT1}, s{sWOS}, {65536*R + 16384*i}")
        e(f"buffer_load_dwordx4 v{vWOD}, {sr(R_WO,4)}, s{sT1} offen lds")
    e("s_waitcnt vmcnt(0)")
    for i in range(4):
        e(f"ds_read_b64_tr_b16 {vr(BUF+16*R+4*i,2)}, v{vWOT} offset:{1024*i}")
        e(f"ds_read_b64_tr_b16 {vr(BUF+16*R+4*i+2,2)}, v{vWOT} offset:{1024*i+256}")
    e("s_waitcnt lgkmcnt(0)")
for R in range(opt['wo1']): wo_round(R)
stamp(6)
boost(1)
if opt['pre']:
    cm("aux wave 2 touches the O lines this workgroup will write and the 8 flags of its token block")
    e(f"s_cmp_eq_u32 s{sA}, 2")
    e("s_cbranch_scc0 L_nopre")
    e(f"v_lshrrev_b32 v8, 5, v{vL}")
    e(f"v_and_b32 v9, 31, v{vL}")
    e("v_lshlrev_b32 v9, 7, v9")
    e("v_lshl_add_u32 v8, v8, 15, v9")
    e(f"s_lshl_b32 s{sT0}, s{sTB}, 16")
    e(f"s_lshl_b32 s{sT1}, s{sHG}, 12")
    e(f"s_add_u32 s{sT0}, s{sT0}, s{sT1}")
    e(f"s_add_u32 s{sT0}, s{sT0}, {WS_O}")
    e(f"buffer_load_dword v10, v8, {sr(R_WS,4)}, s{sT0} offen sc1")
    e(f"v_and_b32 v9, 0x380, v{vPH}")
    e(f"s_lshl_b32 s{sT0}, s{sTB}, 10")
    e(f"s_add_u32 s{sT0}, s{sT0}, {FL_O}")
    e(f"buffer_load_dword v11, v9, {sr(R_WS,4)}, s{sT0} offen sc1")
    e("s_waitcnt vmcnt(0)")
    lab("L_nopre")
cm("aux wave 1: XCD ids of the 8 workgroups of this token block: ids 32*hg + (id & 31)")
e(f"s_cmp_eq_u32 s{sA}, 1")
e("s_cbranch_scc0 L_nosame")
e(f"v_and_b32 v8, 7, v{vL}")
e("v_lshlrev_b32 v8, 12, v8")
e(f"s_and_b32 s{sT0}, s2, 31")
e(f"s_lshl_b32 s{sT0}, s{sT0}, 7")
e(f"s_add_u32 s{sT0}, s{sT0}, {FL_X}")
e(f"buffer_load_dwordx2 v[10:11], v8, {sr(R_WS,4)}, s{sT0} offen sc1")
e(f"s_getreg_b32 s{sX}, hwreg(HW_REG_XCC_ID, 0, 4)")
e(f"s_or_b32 s{sX}, s{sX}, s{sNON}")
e(f"s_mov_b32 s{sX+1}, s{sNON+1}")
e(f"v_mov_b32 v9, {MISC+C_SAME}")
e("s_waitcnt vmcnt(0)")
e(f"v_cmp_ne_u64 vcc, {sr(sX,2)}, v[10:11]")
e("s_nop 0")
e("s_cmp_eq_u64 vcc, 0")
e(f"s_cselect_b32 s{sT0}, {1 if opt['fast'] else 0}, 0")
e(f"v_mov_b32 v11, s{sT0}")
e("ds_write_b32 v9, v11")
lab("L_nosame")
if opt['nob']: e("s_branch L_b2done")
cm("B2: wait for the H rows it reads: column groups ebg (direct) or 7-ebg and (8-ebg)&3 (mirrored)")
e(f"s_cmp_eq_u32 s{sA}, 0")
e("s_cbranch_scc0 L_hwait")
e(f"s_lshr_b32 s{sT2}, s{sJ}, 2              ; ebg")
e(f"s_sub_u32 s{sT0}, 7, s{sT2}")
e(f"s_sub_u32 s{sT1}, 8, s{sT2}")
e(f"s_and_b32 s{sT1}, s{sT1}, 3")
e(f"s_cmp_lt_u32 s{sT2}, 4")
e(f"s_cselect_b32 s{sT0}, s{sT2}, s{sT0}")
e(f"s_cselect_b32 s{sT1}, s{sT2}, s{sT1}")
e(f"s_lshl_b32 s{sT0}, s{sT0}, 13")
e(f"s_lshl_b32 s{sT1}, s{sT1}, 13")
e(f"s_add_u32 s{sT0}, s{sT0}, {FL_H}")
e(f"s_add_u32 s{sT1}, s{sT1}, {FL_H}")
poll("L_pollH", 2, vPH, 8, [sT0, sT1], sleep=8)
e(f"v_mov_b32 v10, {MISC+C_HOK}")
e("v_mov_b32 v11, 1")
e("ds_write_b32 v10, v11")
e("s_branch L_hok")
lab("L_hwait")
lds_wait("L_hw", C_HOK, 1, 10, sleep=8)
lab("L_hok")
boost(0)
stamp(7)
e(f"s_mul_i32 s{sT0}, s{sT1S}, {64*HROW}")
e(f"s_add_u32 s{sT0}, s{sT0}, {WS_H}")
AF = 208
for kb in range(8):
    for w in range(4): e(f"buffer_load_dword v{AF+4*kb+w}, v{vB2A}, {sr(R_WS,4)}, s{sT0} offen offset:{w*HROW} sc1")
    if kb < 7: e(f"s_add_u32 s{sT0}, s{sT0}, {4*HROW}")
e(f"s_lshl_b32 s{sT0}, s{sEB}, 6")
e(f"s_add_u32 s{sT0}, s{sT0}, 1024")
for kb in range(8):
    e(f"s_waitcnt vmcnt({28-4*kb})")
    e(f"v_mfma_f32_32x32x16_bf16 {vr(ACC,16)}, {vr(AF+4*kb,4)}, {vr(bploc(4*kb),4)}, {'0' if kb==0 else vr(ACC,16)}")
nop(11)
boost(1)
for i in range(8): e(f"v_cvt_pk_bf16_f32 v{AF+i}, v{ACC+2*i}, v{ACC+2*i+1}")
e(f"buffer_store_dwordx4 {vr(AF,4)}, v{vB2O}, {sr(R_OUT,4)}, s{sT0} offen{OSC}")
e(f"buffer_store_dwordx4 {vr(AF+4,4)}, v{vB2O}, {sr(R_OUT,4)}, s{sT0} offen offset:16{OSC}")
lab("L_b2done")
boost(0)
stamp(8)
for R in range(opt['wo1'], 8): wo_round(R)
e(f"s_mov_b32 s{sT0}, s{sWOS}")
stamp(10)
warm("L_padt", "L_pado_ret")
cm("tail: the attention waves bring the O tile -> LDS 0..")
e("s_barrier                             ; B7")
LOW[0] = False
stamp(9)
e("s_barrier                             ; B8a")
pad_begin("L_pado")
OF = 144
korder = [h for h in range(32) if h % 8 < 4] + [h for h in range(32) if h % 8 >= 4]
def ofrag(n): e(f"ds_read_b128 {vr(OF+4*(n%8),4)}, v{vOF} offset:{1024*korder[n]}")
for n in range(7): ofrag(n)
for n in range(32):
    if n + 7 == 16:
        e("s_barrier                             ; B8b")
    if n + 7 < 32:
        ofrag(n + 7)
        e("s_waitcnt lgkmcnt(7)")
    else:
        e(f"s_waitcnt lgkmcnt({31-n})")
    e(f"v_mfma_f32_32x32x16_bf16 {vr(ACC,16)}, {vr(BUF+4*korder[n],4)}, {vr(OF+4*(n%8),4)}, {'0' if n==0 else vr(ACC,16)}")
nop(12)
for i in range(8): e(f"v_cvt_pk_bf16_f32 v{D1+i}, v{ACC+2*i}, v{ACC+2*i+1}")
e(f"buffer_store_dwordx4 {vr(D1,4)}, v{vOUT}, {sr(R_OUT,4)}, s{sT0} offen{OSC}")
e(f"buffer_store_dwordx4 {vr(D1+4,4)}, v{vOUT}, {sr(R_OUT,4)}, s{sT0} offen offset:16{OSC}")
pad_end("L_pado", "L_pado_ret")
if opt['dbgt']:
    e(f"s_cmp_lt_u32 s2, 6")
    e("s_cbranch_scc0 L_end")
    e(f"s_cmp_eq_u32 s{sW}, 4")
    e("s_cbranch_scc0 L_end")
    e("s_waitcnt vmcnt(0)")
    e(f"s_memrealtime {sr(sST,2)}")
    e("s_waitcnt lgkmcnt(0)")
    e(f"v_mov_b32 v4, s{sST}")
    e(f"s_lshl_b32 s{sT0}, s2, 2")
    e(f"s_add_u32 s{sT0}, s{sT0}, 40")
    e("s_mov_b64 exec, 1")
    e(f"buffer_store_dword v4, off, {sr(R_DBG,4)}, s{sT0}")
stamp(12)
if opt['stamps']: e("s_waitcnt vmcnt(0)")
stamp(13)
stamp_dump()
lab("L_end")
e("s_endpgm")
lab("L_codeend")
L.append(f""".section .rodata,"a"
.p2align 6
.amdhsa_kernel {NAME}_kernel
  .amdhsa_next_free_vgpr 256
  .amdhsa_next_free_sgpr 102
  .amdhsa_accum_offset 256
  .amdhsa_group_segment_fixed_size 0
  .amdhsa_kernarg_size 104
  .amdhsa_user_sgpr_count 2
  .amdhsa_user_sgpr_kernarg_segment_ptr 1
  .amdhsa_system_sgpr_workgroup_id_x 1
.end_amdhsa_kernel""")

def finish(lines, ncode):
    out = []
    for l in lines:
        if l.strip() == "CODEPF":
            for i in range(ncode // 8192):
                out.append(f"    global_load_dword v200, v[212:213], off")
                out.append(f"    v_add_co_u32 v212, vcc, 0x2000, v212")
                out.append(f"    s_nop 1")
                out.append(f"    v_addc_co_u32 v213, vcc, 0, v213, vcc")
            rem = (ncode % 8192) // 128
            if rem:
                out.append(f"    v_cmp_gt_u32 vcc, {rem}, v{vL}")
                out.append(f"    s_nop 0")
                out.append(f"    s_and_saveexec_b64 {sr(sX,2)}, vcc")
                out.append(f"    global_load_dword v200, v[212:213], off")
                out.append(f"    s_mov_b64 exec, -1")
        else: out.append(l)
    return "\n".join(out) + "\n"
import subprocess, os, hazcheck
ncode = 16384
for _ in range(3):
    txt = finish(L, ncode)
    open("_g.s", "w").write(txt)
    r = subprocess.run(["clang", "-x", "assembler", "-target", "amdgcn-amd-amdhsa", "-mcpu=gfx950", "-c", "_g.s", "-o", "_g.o"], capture_output=True, text=True)
    if r.returncode: print(r.stderr[:3000]); sys.exit(1)
    sz = subprocess.run(["llvm-objdump", "-h", "_g.o"], capture_output=True, text=True).stdout
    n = [int(x.split()[2], 16) for x in sz.splitlines() if " .text " in x][0]
    if n // 128 * 128 == ncode: break
    ncode = n // 128 * 128
open(sys.argv[1], "w").write(txt)
print(hazcheck.check(txt), "hazards; code bytes", n)
```

```python
import sys, struct
NAME = "concat_heads__grouped_kv_mqa__spectral_fnet__prompt"
opt = dict(stamps=0, prioA=1, prioX=2, boost=1, force_fb=0, dbgt=0, dry=1, codepf=1, shift=98, outsc1=0, cluster=1, fast=1, nob=0, l2pf=0, wo1=4, hold=1, pre=1, pads=1, dxcc=-1, dus=300)
for a in sys.argv[2:]:
    k, v = a.split('='); opt[k] = int(v)

L = []
def e(s=""): L.append("    " + s)
def lab(s): L.append(s + ":")
def cm(s): L.append("    ; " + s)
def vr(a, n): return f"v[{a}:{a+n-1}]" if n > 1 else f"v{a}"
def sr(a, n): return f"s[{a}:{a+n-1}]" if n > 1 else f"s{a}"
def nop(n):
    while n > 0:
        k = min(n, 16); e(f"s_nop {k-1}"); n -= k
def f2u(x): return struct.unpack('<I', struct.pack('<f', x))[0]
OSC = " sc1" if opt['outsc1'] else ""

W_OFF = 0
X_OFF, XROW = 16384, 1040
WQ_OFF = 82944
ONES_OFF = 148480
MISC = 156672
STG = 131072
LDS_BYTES = 156800
C_KV, C_H, C_O, C_TAG, C_HOK, C_SAME, C_CR, C_QA, C_QB, C_G1, C_KVL = 0, 4, 8, 16, 24, 28, 32, 36, 40, 44, 48
WS_KV, WS_O, WS_H, WS_FL = 0, 0x40000, 0x240000, 0x480000
FL_KV, FL_H, FL_O, FL_X = WS_FL, WS_FL + 0x8000, WS_FL + 0x10000, WS_FL + 0x18000
WS_STAMP = 0x4A0000
WS_SIZE = 0x540000
HROW = 1056
SPIN = 400000
VSCALE = 64
P_XA, P_WQ, P_WK, P_WV, P_WO, P_XB, P_SRE, P_SIM = 4, 6, 8, 10, 12, 14, 16, 18
P_HRE, P_HIM, P_OUT, P_DBG, P_WS = 20, 22, 24, 26, 28
R_XA, R_WQ, R_W, R_WS, R_WO, R_XB, R_SRE, R_SIM, R_OUT, R_DBG = 32, 36, 40, 44, 48, 52, 56, 60, 64, 68
sW, sXCD, sJ, sTB, sHG, sTHP, sA = 72, 73, 74, 75, 76, 77, 78
sT0, sT1, sT2, sT3, sT4 = 80, 81, 82, 83, 84
sDRY = 85
sNON = 86
sIT, sINC, sFB, sSPIN = 88, 89, 90, 91
sX = 92
sST = 94
sBARN = 96
sRET = 90

def srd(r, p, size):
    e(f"s_mov_b32 s{r}, s{p}")
    e(f"s_and_b32 s{r+1}, s{p+1}, 0xffff")
    e(f"s_mov_b32 s{r+2}, {hex(size)}")
    e(f"s_mov_b32 s{r+3}, 0x20000")

LOW = [False]
vL = 1
def stamp(idx):
    if not opt['stamps']: return
    e(f"s_memrealtime {sr(sST,2)}")
    e(f"s_memtime {sr(sX,2)}")
    e("s_waitcnt lgkmcnt(0)")
    if LOW[0]: e("s_setprio 2")
    e(f"v_writelane_b32 v254, s{sST}, {idx}")
    e(f"v_writelane_b32 v255, s{sX}, {idx}")
    if LOW[0]: e("s_setprio 0")
def stamp_dump():
    if not opt['stamps']: return
    e(f"s_lshl_b32 s{sST}, s2, 3")
    e(f"s_add_u32 s{sST}, s{sST}, s{sW}")
    e(f"s_lshl_b32 s{sST}, s{sST}, 8")
    e(f"s_add_u32 s{sST}, s{sST}, {WS_STAMP}")
    e(f"v_lshlrev_b32 v253, 3, v{vL}")
    e("s_mov_b32 exec_hi, 0")
    e(f"buffer_store_dwordx2 v[254:255], v253, {sr(R_WS,4)}, s{sST} offen")

PADS = {}
def pad_begin(name): PADS[name] = len(L)
def isize(l):
    t = l.strip()
    if not t or t.startswith((';', '.')) or t.endswith(':'): return 0
    t = t.split(';')[0]
    mn = t.split()[0]
    if mn.startswith(('buffer_', 'global_', 'ds_', 'v_mfma', 'v_smfmac', 's_load', 's_mem')): return 8
    if mn.startswith('v_') and (mn.endswith('_e64') or mn in ('v_lshl_add_u32', 'v_bfe_u32', 'v_perm_b32', 'v_max3_f32', 'v_cvt_pk_bf16_f32', 'v_writelane_b32', 'v_mul_u32_u24', 'v_cmp_ne_u64')): return 8
    import re as _r
    for o in _r.findall(r'(?<![\w\[:])(-?0x[0-9a-f]+|-?\d+)(?![\w\]:])', (t.split(None, 1) + [''])[1]):
        v = int(o, 0)
        if not mn.startswith(('s_waitcnt', 's_nop', 's_sleep', 's_setprio')) and not -16 <= v <= 64: return 8
    return 4
def pad_end(name, ret):
    a = PADS[name]
    if not opt['pads']:
        L.insert(a, f"{name}_0:"); L.insert(a + 1, f"    s_cbranch_execz {ret}"); return
    body = L[a:]; del L[a:]
    n = 0; acc = 0
    L.append(f"{name}_0:"); L.append(f"    s_cbranch_execz {name}_1")
    for l in body:
        z = isize(l)
        prev = L[-1].strip()
        if acc + z > 56 and not prev.startswith(('s_mov_b32 m0', 's_add_u32 m0')):
            n += 1; L.append(f"{name}_{n}:"); L.append(f"    s_cbranch_execz {name}_{n+1}"); acc = 0
        L.append(l); acc += z
    n += 1
    L.append(f"{name}_{n}:"); L.append(f"    s_cbranch_execz {ret}")
def warm(name, ret):
    e("s_mov_b64 exec, 0")
    e(f"s_branch {name}_0")
    lab(ret)
    e("s_mov_b64 exec, -1")

def dma(voff, srdr, soff, ldsaddr_s, extra=""):
    e(f"s_mov_b32 m0, s{ldsaddr_s}")
    e("s_nop 0")
    e(f"buffer_load_dwordx4 v{voff}, {sr(srdr,4)}, s{soff} offen {extra}lds")
def dma_run(n, voff, srdr, soff, lds_s, dsrc, dlds, extra=""):
    for i in range(n):
        e(f"s_mov_b32 m0, s{lds_s}")
        if i < n - 1: e(f"s_add_u32 s{lds_s}, s{lds_s}, {dlds}")
        else: e("s_nop 0")
        e(f"buffer_load_dwordx4 v{voff}, {sr(srdr,4)}, s{soff} offen {extra}lds")
        if i < n - 1: e(f"s_add_u32 s{soff}, s{soff}, {dsrc}")

def poll(name, nloads, voff, dst, soffs, sleep=0):
    e(f"s_mov_b32 s{sSPIN}, {SPIN}")
    lab(name)
    for i in range(nloads):
        e(f"buffer_load_dwordx2 {vr(dst+2*i,2)}, v{voff}, {sr(R_WS,4)}, s{soffs[i]} offen sc1")
    e(f"s_sub_u32 s{sSPIN}, s{sSPIN}, 1")
    e(f"s_cmp_eq_u32 s{sSPIN}, 0")
    e(f"s_cbranch_scc1 {name}_done")
    e("s_waitcnt vmcnt(0)")
    e(f"v_cmp_ne_u64 vcc, {sr(sNON,2)}, {vr(dst,2)}")
    for i in range(1, nloads):
        e(f"v_cmp_ne_u64 {sr(sX,2)}, {sr(sNON,2)}, {vr(dst+2*i,2)}")
        e("s_nop 0")
        e(f"s_or_b64 vcc, vcc, {sr(sX,2)}")
    e("s_nop 0")
    e("s_cmp_eq_u64 vcc, 0")
    if sleep:
        e(f"s_cbranch_scc1 {name}_done")
        e(f"s_sleep {sleep}")
        e(f"s_branch {name}")
    else:
        e(f"s_cbranch_scc0 {name}")
    lab(name + "_done")
    e("s_waitcnt vmcnt(0)")

def lds_wait(name, off, value, tmp, sleep=0):
    e(f"s_mov_b32 s{sSPIN}, {SPIN*8}")
    e(f"v_mov_b32 v{tmp}, {MISC + off}")
    lab(name)
    e(f"ds_read_b32 v{tmp+1}, v{tmp}")
    e(f"s_sub_u32 s{sSPIN}, s{sSPIN}, 1")
    e(f"s_cmp_eq_u32 s{sSPIN}, 0")
    e(f"s_cbranch_scc1 {name}_done")
    e("s_waitcnt lgkmcnt(0)")
    e(f"v_readfirstlane_b32 s{sT4}, v{tmp+1}")
    e("s_nop 0")
    e(f"s_cmp_ge_u32 s{sT4}, {value}")
    if sleep:
        e(f"s_cbranch_scc1 {name}_done")
        e(f"s_sleep {sleep}")
        e(f"s_branch {name}")
    else:
        e(f"s_cbranch_scc0 {name}")
    lab(name + "_done")
    e("s_waitcnt lgkmcnt(0)")
def lds_add(off, tmp):
    e(f"v_mov_b32 v{tmp}, {MISC + off}")
    e(f"v_mov_b32 v{tmp+1}, 1")
    e("s_mov_b64 exec, 1")
    e(f"ds_add_u32 v{tmp}, v{tmp+1}")
    e("s_mov_b64 exec, -1")
def tag_from_lds(name, tmp):
    e(f"s_mov_b32 s{sSPIN}, {SPIN*8}")
    e(f"v_mov_b32 v{tmp}, {MISC+C_TAG}")
    lab(name)
    e(f"ds_read_b64 {vr(tmp+2,2)}, v{tmp}")
    e(f"s_sub_u32 s{sSPIN}, s{sSPIN}, 1")
    e(f"s_cmp_eq_u32 s{sSPIN}, 0")
    e(f"s_cbranch_scc1 {name}_done")
    e("s_waitcnt lgkmcnt(0)")
    e(f"v_readfirstlane_b32 s{sNON}, v{tmp+2}")
    e(f"v_readfirstlane_b32 s{sNON+1}, v{tmp+3}")
    e(f"s_cmp_lg_u32 s{sNON}, 0")
    e(f"s_cbranch_scc1 {name}_done")
    e("s_sleep 1")
    e(f"s_branch {name}")
    lab(name + "_done")
    e("s_waitcnt lgkmcnt(0)")

def signal(name, ctr_off, last, flag_soff_s, tmp, lo=None, plain_if=None):
    e(f"v_mov_b32 v{tmp}, {MISC + ctr_off}")
    e(f"v_mov_b32 v{tmp+1}, 1")
    e(f"s_mov_b64 exec, 1")
    e(f"ds_add_rtn_u32 v{tmp+1}, v{tmp}, v{tmp+1}")
    e(f"v_mov_b32 v{tmp+2}, s{sNON if lo is None else lo}")
    e(f"v_mov_b32 v{tmp+3}, s{sNON+1}")
    e("s_waitcnt lgkmcnt(0)")
    e(f"v_readfirstlane_b32 s{sT4}, v{tmp+1}")
    e("s_nop 0")
    e(f"s_cmp_eq_u32 s{sT4}, {last}")
    e(f"s_cbranch_scc0 {name}_nf")
    if plain_if is not None:
        e(f"s_cmp_eq_u32 s{plain_if}, 0")
        e(f"s_cbranch_scc1 {name}_wt")
        e(f"buffer_store_dwordx2 {vr(tmp+2,2)}, off, {sr(R_WS,4)}, s{flag_soff_s}")
        e(f"s_branch {name}_nf")
        lab(name + "_wt")
    e(f"buffer_store_dwordx2 {vr(tmp+2,2)}, off, {sr(R_WS,4)}, s{flag_soff_s} sc1")
    lab(name + "_nf")
    e("s_mov_b64 exec, -1")

hdr = open(f"cdna_kernels/{NAME}.s.ref").read().split("; Override launch")[0]
L.append(hdr.rstrip())
L.append(f"; @launch grid=(256,1,1) block=(512,1,1) lds={LDS_BYTES}")
L.append('.amdgcn_target "amdgcn-amd-amdhsa--gfx950"')
L.append(".text")
L.append(f".globl {NAME}_kernel")
L.append(".p2align 8")
L.append(f".type {NAME}_kernel,@function")
lab(f"{NAME}_kernel")
e("s_cmp_ge_u32 s2, 256")
e("s_cbranch_scc1 L_end")
e("s_load_dwordx16 s[4:19], s[0:1], 0")
e("s_load_dwordx8 s[20:27], s[0:1], 64")
e("s_load_dwordx2 s[28:29], s[0:1], 96")
e(f"s_memrealtime {sr(sNON,2)}")
if opt['dxcc'] >= 0:
    e(f"s_getreg_b32 s{sT0}, hwreg(HW_REG_XCC_ID, 0, 4)")
    e(f"s_cmp_eq_u32 s{sT0}, {opt['dxcc']}") if opt['dxcc'] < 8 else e(f"s_cmp_eq_u32 s{sT0}, s{sT0}")
    e("s_cbranch_scc0 L_nodelay")
    e("s_waitcnt lgkmcnt(0)")
    lab("L_delay")
    e(f"s_memrealtime {sr(sX,2)}")
    e("s_waitcnt lgkmcnt(0)")
    e(f"s_sub_u32 s{sX}, s{sX}, s{sNON}")
    e(f"s_cmp_lt_u32 s{sX}, {opt['dus']}")
    e("s_cbranch_scc1 L_delay")
    lab("L_nodelay")
e("v_lshrrev_b32 v2, 6, v0")
e(f"v_and_b32 v{vL}, 63, v0")
e(f"v_readfirstlane_b32 s{sW}, v2")
e(f"s_and_b32 s{sXCD}, s2, 7")
e(f"s_lshr_b32 s{sJ}, s2, 3")
e(f"s_and_b32 s{sT0}, s{sJ}, 3")
e(f"s_lshl_b32 s{sTB}, s{sXCD}, 2")
e(f"s_add_u32 s{sTB}, s{sTB}, s{sT0}")
e(f"s_lshr_b32 s{sHG}, s{sJ}, 2")
e(f"s_bfe_u32 s{sTHP}, s{sHG}, 0x10001")
e(f"s_and_b32 s{sA}, s{sW}, 3")
e(f"v_lshlrev_b32 v2, 4, v{vL}          ; v2 = lane*16")
cm("LDS init while the kernel arguments load: ones / zeros window (even 16-B chunks 2^64, odd chunks 0), counters")
ONE = (127 + VSCALE) << 7
e("v_and_b32 v4, 1, v0")
e("v_add_u32 v4, -1, v4")
e(f"v_and_b32 v4, {hex(ONE << 16 | ONE)}, v4")
e("v_mov_b32 v5, v4")
e("v_mov_b32 v6, v4")
e("v_mov_b32 v7, v4")
e(f"v_lshlrev_b32 v3, 4, v0")
e(f"v_add_u32 v3, {ONES_OFF}, v3")
e("ds_write_b128 v3, v[4:7]")
e("v_mov_b32 v8, 0")
e(f"v_lshlrev_b32 v9, 1, v{vL}")
e("v_and_b32 v9, 0x7c, v9")
e(f"v_add_u32 v9, {MISC}, v9")
e("ds_write_b32 v9, v8")
e(f"s_mov_b32 s{R_XA+2}, 0x200000")
e(f"s_mov_b32 s{R_XA+3}, 0x20000")
e(f"s_cmp_ge_u32 s{sW}, 4")
e("s_cbranch_scc1 L_aux")

cm("wq slice (8 rows x 128 B per load, 16-B chunks swizzled by row bit 1); quarter tb&3 first: distinct among its 4 sharers")
e(f"v_lshrrev_b32 v3, 3, v{vL}          ; r")
e(f"v_and_b32 v4, 7, v{vL}")
e(f"v_bfe_u32 v5, v{vL}, 4, 1           ; (r>>1)&1")
e("v_lshlrev_b32 v5, 2, v5")
e("v_xor_b32 v4, v4, v5")
e("v_lshlrev_b32 v4, 4, v4")
e("v_lshl_add_u32 v13, v3, 10, v4")
e(f"s_mov_b32 s{R_WQ+2}, 0x80000")
e(f"s_mov_b32 s{R_WQ+3}, 0x20000")
def wq_addr(q):
    e(f"s_add_u32 s{sT0}, s{sJ}, {q}")
    e(f"s_and_b32 s{sT0}, s{sT0}, 3")
    e(f"s_lshl_b32 s{sT0}, s{sT0}, 2")
    e(f"s_add_u32 s{sT0}, s{sT0}, s{sW}")
    e(f"s_lshl_b32 s{sT2}, s{sT0}, 15")
    e(f"s_lshl_b32 s{sT1}, s{sHG}, 7")
    e(f"s_add_u32 s{sT2}, s{sT2}, s{sT1}")
    e(f"s_lshl_b32 s{sT1}, s{sT0}, 12")
    e(f"s_add_u32 s{sT1}, s{sT1}, {WQ_OFF}")
wq_addr(0)
e("s_waitcnt lgkmcnt(0)")
e(f"s_mov_b32 s{R_WQ}, s{P_WQ}")
e(f"s_and_b32 s{R_WQ+1}, s{P_WQ+1}, 0xffff")
e(f"s_mov_b32 s{R_XA}, s{P_XA}")
e(f"s_and_b32 s{R_XA+1}, s{P_XA+1}, 0xffff")
stamp(0)
e("s_barrier")
dma_run(4, 13, R_WQ, sT2, sT1, 8192, 1024)
cm("the half of the x tile the aux waves do not load: rows 32*(1-thp) + 8w + i")
e(f"s_xor_b32 s{sT0}, s{sTHP}, 1")
e(f"s_lshl_b32 s{sT0}, s{sT0}, 5")
e(f"s_lshl_b32 s{sT1}, s{sW}, 3")
e(f"s_add_u32 s{sT0}, s{sT0}, s{sT1}")
e(f"s_mul_i32 s{sT1}, s{sT0}, {XROW}")
e(f"s_add_u32 s{sT1}, s{sT1}, {X_OFF}")
e(f"s_lshl_b32 s{sT2}, s{sTB}, 6")
e(f"s_add_u32 s{sT2}, s{sT2}, s{sT0}")
e(f"s_lshl_b32 s{sT2}, s{sT2}, 10")
dma_run(8, 2, R_XA, sT2, sT1, 1024, XROW)
for q in range(1, 4):
    wq_addr(q)
    dma_run(4, 13, R_WQ, sT2, sT1, 8192, 1024)
stamp(7)
srd(R_WS, P_WS, WS_SIZE)
SA, SB, OA, OB, CA, CB = 16, 32, 48, 64, 80, 96
QA, QB, K0, K1, V0, V1 = 112, 116, 120, 124, 128, 136
vIDX, vK, vV = 144, 145, 146
vINC, vV0, vSAME = 147, 150, 151
vXA, vWA = 148, 149
FB = 152
cm("Q-projection addresses")
e(f"s_and_b32 s{sT0}, s{sW}, 1            ; th")
e(f"s_lshr_b32 s{sT1}, s{sW}, 1           ; hp")
e(f"v_and_b32 v3, 31, v{vL}")
e(f"s_lshl_b32 s{sT2}, s{sT0}, 5")
e(f"v_add_u32 v3, s{sT2}, v3")
e(f"v_mul_u32_u24 v3, {XROW}, v3")
e(f"v_lshrrev_b32 v4, 5, v{vL}           ; h")
e(f"v_lshl_add_u32 v14, v4, 4, v3")
e(f"v_bfe_u32 v5, v{vL}, 2, 2            ; r")
e("v_lshl_add_u32 v6, v4, 3, v5          ; 8h + r")
e("v_lshlrev_b32 v6, 7, v6")
e(f"v_bfe_u32 v7, v{vL}, 4, 1            ; g")
e(f"v_and_b32 v8, 1, v{vL}")
e("v_lshl_add_u32 v7, v7, 1, v8          ; 2g + (cc&1)")
e(f"s_lshl_b32 s{sT2}, s{sT1}, 2")
e(f"v_add_u32 v7, s{sT2}, v7")
e(f"v_bfe_u32 v8, v{vL}, 3, 1            ; (r>>1)&1")
e("v_lshlrev_b32 v8, 2, v8")
e("v_xor_b32 v7, v7, v8")
e("v_lshl_add_u32 v6, v7, 4, v6")
e(f"v_bfe_u32 v8, v{vL}, 1, 1")
e("v_lshl_add_u32 v6, v8, 3, v6")
e(f"v_add_u32 v{vWA}, {WQ_OFF}, v6")
e(f"v_add_u32 v{vXA}, {X_OFF}, v14")
cm("attention LDS addresses; V: rows 0..15 -> tile data, lanes 16,20 -> 2^64, other lanes -> 0")
e(f"v_mov_b32 v{vIDX}, 0xdddddddd")
e(f"v_bfe_u32 v5, v{vL}, 4, 1")
e(f"v_xor_b32 v5, 1, v5")
e(f"v_lshlrev_b32 v{vINC}, 13, v5")
e(f"v_and_b32 v8, 15, v{vL}")
e("v_lshlrev_b32 v9, 8, v4")
e("v_lshl_add_u32 v8, v8, 4, v9")
e(f"v_and_b32 v9, 31, v{vL}")
e("v_add_u32 v10, -20, v9")
e("v_cmp_gt_u32 vcc, 8, v10")
e("v_and_b32 v9, 11, v9")
e("v_min_u32 v9, 1, v9")
e("v_cndmask_b32 v10, 0, 64, vcc")
e(f"v_cmp_eq_u32 vcc, 1, v5")
e("v_lshl_add_u32 v9, v9, 4, v10")
e(f"v_add_u32 v9, {ONES_OFF - 1024}, v9")
e(f"v_cndmask_b32 v{vV0}, v9, v8, vcc")
cm("O fragment destination and flag slot")
sOD, sOF = 97, 98
e(f"s_and_b32 s{sT0}, s{sW}, 1")
e(f"s_lshl_b32 s{sT1}, s{sTB}, 1")
e(f"s_add_u32 s{sT0}, s{sT0}, s{sT1}")
e(f"s_lshl_b32 s{sT0}, s{sT0}, 5          ; (tb*2+th)*32")
e(f"s_lshl_b32 s{sT1}, s{sHG}, 2")
e(f"s_add_u32 s{sT0}, s{sT0}, s{sT1}")
e(f"s_and_b32 s{sT1}, s{sW}, 2")
e(f"s_add_u32 s{sT0}, s{sT0}, s{sT1}")
e(f"s_lshl_b32 s{sT0}, s{sT0}, 10")
e(f"s_add_u32 s{sOD}, s{sT0}, {WS_O}")
e(f"s_lshl_b32 s{sT1}, s{sTB}, 3")
e(f"s_add_u32 s{sT1}, s{sT1}, s{sHG}")
e(f"s_lshl_b32 s{sT1}, s{sT1}, 7")
e(f"s_add_u32 s{sOF}, s{sT1}, {FL_O}")
e(f"s_mov_b32 s{sFB}, 0")
e(f"s_mov_b32 s{sBARN}, 0xa")
e(f"v_mov_b32 v{vSAME}, {MISC}")
sPF, sOL, sOS, vPO = 100, 101, 79, 184
e(f"s_lshl_b32 s{sT0}, s{sTB}, 3")
e(f"s_lshl_b32 s{sT1}, s{sW}, 1")
e(f"s_add_u32 s{sT0}, s{sT0}, s{sT1}")
e(f"s_lshl_b32 s{sT0}, s{sT0}, 7")
e(f"s_add_u32 s{sPF}, s{sT0}, {FL_O}")
e(f"s_lshl_b32 s{sT2}, s{sTB}, 16")
e(f"s_lshl_b32 s{sOL}, s{sW}, 13")
e(f"s_add_u32 s{sT2}, s{sT2}, s{sOL}")
e(f"s_add_u32 s{sOS}, s{sT2}, {WS_O}")
e(f"v_and_b32 v8, 1, v{vL}")
e(f"v_lshlrev_b32 v{vPO}, 7, v8")
for i in range(16): e(f"v_mov_b32 v{OA+i}, 0")
for i in range(16): e(f"v_mov_b32 v{OB+i}, 0")
for i in range(4): e(f"v_mov_b32 v{V1+4+i}, 0")
e(f"v_mov_b32 v{vK}, v2")
e(f"v_mov_b32 v{vV}, v{vV0}")
e(f"s_mov_b32 s{sT0}, {hex(f2u(0.25*1.4426950408889634))}")
warm("L_padq", "L_padq_ret")
e("s_waitcnt vmcnt(0)")
stamp(8)
e("s_barrier")
stamp(10)
pad_begin("L_padq")
def qload(ks):
    b = FB + 8*(ks % 4)
    e(f"ds_read_b64_tr_b16 {vr(b,2)}, v{vWA} offset:{ks*2048}")
    e(f"ds_read_b64_tr_b16 {vr(b+2,2)}, v{vWA} offset:{ks*2048+512}")
    e(f"ds_read_b128 {vr(b+4,4)}, v{vXA} offset:{ks*32}")
for ks in range(3): qload(ks)
for ks in range(32):
    b = FB + 8*(ks % 4)
    if ks + 3 < 32:
        qload(ks + 3); e("s_waitcnt lgkmcnt(9)")
    else:
        e(f"s_waitcnt lgkmcnt({3*(31-ks)})")
    c = "0" if ks == 0 else vr(SA, 16)
    e(f"v_mfma_f32_32x32x16_bf16 {vr(SA,16)}, {vr(b,4)}, {vr(b+4,4)}, {c}")
stamp(9)
nop(12)
for i in range(16): e(f"v_mul_f32 v{SA+i}, s{sT0}, v{SA+i}")
for i in range(8): e(f"v_cvt_pk_bf16_f32 v{QA+i}, v{SA+2*i}, v{SA+2*i+1}")
if opt['prioA']: e(f"s_setprio {opt['prioA']}")
stamp(2)
e("s_barrier")
stamp(3)
cm("stand-in for the row max: max over key tile 0 (checked after the loop; fallback = true max)")
e(f"ds_read_b128 {vr(K0,4)}, v{vK}")
e(f"ds_read_b128 {vr(K1,4)}, v{vK} offset:2048")
e(f"ds_read_b128 {vr(V0,4)}, v{vV} offset:1024")
e(f"ds_read_b128 {vr(V0+4,4)}, v{vV} offset:1536")
e("s_waitcnt lgkmcnt(3)")
e(f"v_mfma_f32_32x32x16_bf16 {vr(SA,16)}, {vr(K0,4)}, {vr(QA,4)}, 0")
e(f"v_mfma_f32_32x32x16_bf16 {vr(SB,16)}, {vr(K0,4)}, {vr(QB,4)}, 0")
nop(11)
def max16(dst, s, acc=None):
    if acc is None:
        e(f"v_max3_f32 v{dst}, v{s}, v{s+1}, v{s+2}"); i = 3
        while i + 1 < 16:
            e(f"v_max3_f32 v{dst}, v{dst}, v{s+i}, v{s+i+1}"); i += 2
        e(f"v_max_f32 v{dst}, v{dst}, v{s+15}")
    else:
        for i in range(0, 16, 2): e(f"v_max3_f32 v{dst}, v{dst}, v{s+i}, v{s+i+1}")
max16(4, SA); max16(5, SB)
lab("L_setmax")
cm(f"v4 / v5 = per-lane max for tiles A / B; combine the two half-waves, C = -(max + {opt['shift']})")
e("v_mov_b32 v6, v4")
e("v_mov_b32 v7, v5")
e(f"s_mov_b32 s{sIT}, 0")
e("s_nop 0")
e("v_permlane32_swap_b32 v4, v6")
e("v_permlane32_swap_b32 v5, v7")
e("v_max_f32 v4, v4, v6")
e("v_max_f32 v5, v5, v7")
for i in range(16): e(f"v_sub_f32 v{CA+i}, {hex(f2u(-float(opt['shift'])))}, v4")
e(f"v_sub_f32 v{CB}, {hex(f2u(-float(opt['shift'])))}, v5")
e("s_waitcnt lgkmcnt(0)")
e(f"v_mfma_f32_32x32x16_bf16 {vr(SA,16)}, {vr(K0,4)}, {vr(QA,4)}, {vr(CA,16)}")
for i in range(1, 16): e(f"v_mov_b32 v{CB+i}, v{CB}")
for i in range(8): e(f"v_mov_b32 v{SB+8+i}, 0")
def SM(o, a, b): e(f"v_smfmac_f32_32x32x32_bf16 {vr(o,16)}, {vr(a,4)}, {vr(b,8)}, v{vIDX}")
def QK(d, k, q, c): e(f"v_mfma_f32_32x32x16_bf16 {vr(d,16)}, {vr(k,4)}, {vr(q,4)}, {vr(c,16)}")
def EX(s, a, b):
    for i in range(a, b): e(f"v_exp_f32 v{s+i}, v{s+i}")
pad_end("L_padq", "L_padq_ret")
L.append(".p2align 6")
lab("L_att_loop")
for u in range(4):
    kc, kn = (K0, K1) if u % 2 == 0 else (K1, K0)
    vc, vp = (V0, V1) if u % 2 == 0 else (V1, V0)
    voffs = ((u + 1) % 4) * 2048 + 1024
    koffs = ((u + 2) % 4) * 2048
    p0, p1, p2 = (4, 7, 10) if opt['cluster'] else (2, 5, 10)
    EX(SA, 0, p0)
    SM(OB, vp + 4, SB + 8)
    e("s_waitcnt lgkmcnt(1)")
    EX(SA, p0, p1)
    QK(SB, kc, QB, CB)
    e(f"ds_read_b128 {vr(vp,4)}, v{vV} offset:{voffs}")
    EX(SA, p1, p2)
    SM(OA, vc, SA)
    e(f"ds_read_b128 {vr(vp+4,4)}, v{vV} offset:{voffs+512}")
    EX(SA, p2, 16)
    EX(SB, 0, p0)
    SM(OA, vc + 4, SA + 8)
    e("s_waitcnt lgkmcnt(2)")
    if u == 1:
        pass
    EX(SB, p0, p1)
    QK(SA, kn, QA, CA)
    e(f"ds_read_b128 {vr(kc,4)}, v{vK} offset:{koffs}")
    EX(SB, p1, p2)
    SM(OB, vc, SB)
    if u == 1:
        e(f"s_bitcmp1_b32 s{sBARN}, s{sIT}")
        e("s_cbranch_scc1 L_sync")
        lab("L_nobar")
        e(f"v_add_u32 v{vK}, 0x2000, v{vK}")
    if u == 2:
        e(f"v_add_u32 v{vV}, v{vINC}, v{vV}")
    if u == 3:
        e(f"s_add_u32 s{sIT}, s{sIT}, 1")
        e(f"s_cmp_lt_u32 s{sIT}, 16")
    if u == 0 and opt['cluster']: e("s_nop 0")
    EX(SB, p2, 16)
e("s_cbranch_scc1 L_att_loop")
pad_begin("L_padt")
e(f"s_mov_b32 s{sT0}, {hex(f2u(2.0**100) if not opt['force_fb'] else f2u(2.0**-30))}")
e(f"v_rcp_f32 v4, v{OA+8}")
SM(OB, V1 + 4, SB + 8)
e(f"ds_read_b32 v7, v{vSAME} offset:{C_SAME}")
e(f"ds_read_b64 v[8:9], v{vSAME} offset:{C_TAG}")
cm("run-time check of the stand-in: l*2^64 must be finite and <= 2^100, else redo with the true row max")
e(f"v_cmp_nle_f32_e64 vcc, v{OA+8}, s{sT0}")
for i in range(8): e(f"v_mul_f32 v{SA+i}, v4, v{OA+i}")
for i in range(4): e(f"v_cvt_pk_bf16_f32 v{SA+i}, v{SA+2*i}, v{SA+2*i+1}")
e(f"v_rcp_f32 v5, v{OB+8}")
e(f"v_cmp_nle_f32_e64 {sr(sX,2)}, v{OB+8}, s{sT0}")
e("s_waitcnt lgkmcnt(0)")
e(f"s_or_b64 vcc, vcc, {sr(sX,2)}")
e("s_cmp_eq_u64 vcc, 0")
e("s_cbranch_scc0 L_fallback")
lab("L_att_done")
stamp(6)
cm("plain stores only when every workgroup of this token block reported the same XCD; else write-through")
sSAME = 99
e(f"v_readfirstlane_b32 s{sSAME}, v7")
e(f"v_readfirstlane_b32 s{sNON}, v8")
e(f"v_readfirstlane_b32 s{sNON+1}, v9")
for i in range(8): e(f"v_mul_f32 v{OB+i}, v5, v{OB+i}")
for i in range(4): e(f"v_cvt_pk_bf16_f32 v{SA+4+i}, v{OB+2*i}, v{OB+2*i+1}")
e(f"s_cmp_eq_u32 s{sSAME}, 0")
e("s_cbranch_scc1 L_ost_wt")
e(f"buffer_store_dwordx4 {vr(SA,4)}, v2, {sr(R_WS,4)}, s{sOD} offen")
e(f"buffer_store_dwordx4 {vr(SA+4,4)}, v2, {sr(R_WS,4)}, s{sOD} offen offset:1024")
lab("L_ost_done")
e("s_barrier")
stamp(4)
e("s_waitcnt vmcnt(0)")
signal("L_sigO", C_O, 3, sOF, 4, plain_if=sSAME)
stamp(5)
cm("gather the O tile of this token block: wave w takes producers 2w, 2w+1 (first / second half)")
poll("L_pollO", 1, vPO, 8, [sPF])
stamp(11)
def odma(sc):
    for q in range(2):
        for th in range(2):
            e(f"s_mov_b32 m0, s{sOL}")
            e("s_nop 0")
            for i in range(4): e(f"buffer_load_dwordx4 v2, {sr(R_WS,4)}, s{sOS} offen offset:{1024*i} {sc}lds")
            if not (th == 1 and q == 1):
                op = "s_add_u32" if th == 0 else "s_sub_u32"
                d = 32768 if th == 0 else 32768 - 4096
                e(f"{op} s{sOL}, s{sOL}, {d}")
                e(f"{op} s{sOS}, s{sOS}, {d}")
odma("sc1 ")
pad_end("L_padt", "L_pado_0")
e("s_waitcnt vmcnt(8)")
stamp(12)
e("s_barrier")
e("s_waitcnt vmcnt(0)")
e("s_barrier")
stamp_dump()
e("s_endpgm")
lab("L_ost_wt")
e(f"buffer_store_dwordx4 {vr(SA,4)}, v2, {sr(R_WS,4)}, s{sOD} offen sc1")
e(f"buffer_store_dwordx4 {vr(SA+4,4)}, v2, {sr(R_WS,4)}, s{sOD} offen offset:1024 sc1")
e("s_branch L_ost_done")
lab("L_sync")
e(f"s_cmp_eq_u32 s{sIT}, 1")
e("s_cbranch_scc0 L_sync3")
lds_wait("L_wg1", C_G1, 256, 4)
e("s_branch L_nobar")
lab("L_sync3")
lds_wait("L_wkvl", C_KVL, 256, 4)
e("s_branch L_nobar")
lab("L_fallback")
e(f"s_cmp_eq_u32 s{sFB}, 0")
e("s_cbranch_scc0 L_att_done")
cm("fallback: exact row max over all 64 key tiles, then repeat the main loop")
e(f"s_mov_b32 s{sFB}, 1")
e(f"s_mov_b32 s{sBARN}, 0")
e(f"v_mov_b32 v4, 0xff800000")
e(f"v_mov_b32 v5, 0xff800000")
e(f"v_mov_b32 v{vK}, v2")
e(f"s_mov_b32 s{sIT}, 0")
lab("L_fb_loop")
e(f"ds_read_b128 {vr(K0,4)}, v{vK}")
e("s_waitcnt lgkmcnt(0)")
e(f"v_mfma_f32_32x32x16_bf16 {vr(SA,16)}, {vr(K0,4)}, {vr(QA,4)}, 0")
e(f"v_mfma_f32_32x32x16_bf16 {vr(SB,16)}, {vr(K0,4)}, {vr(QB,4)}, 0")
e(f"v_add_u32 v{vK}, 0x800, v{vK}")
nop(11)
max16(4, SA, 1); max16(5, SB, 1)
e(f"s_add_u32 s{sIT}, s{sIT}, 1")
e(f"s_cmp_lt_u32 s{sIT}, 64")
e("s_cbranch_scc1 L_fb_loop")
e(f"v_mov_b32 v{vK}, v2")
e(f"v_mov_b32 v{vV}, v{vV0}")
for i in range(16): e(f"v_mov_b32 v{OA+i}, 0")
for i in range(16): e(f"v_mov_b32 v{OB+i}, 0")
for i in range(4): e(f"v_mov_b32 v{V1+4+i}, 0")
e(f"ds_read_b128 {vr(K0,4)}, v{vK}")
e(f"ds_read_b128 {vr(K1,4)}, v{vK} offset:2048")
e(f"ds_read_b128 {vr(V0,4)}, v{vV} offset:1024")
e(f"ds_read_b128 {vr(V0+4,4)}, v{vV} offset:1536")
e("s_branch L_setmax")

lab("L_aux")
BUF = 16
BP = 144
FR = 176
ACC = 192
D1, D2 = 208, 224
if opt['prioX']: e(f"s_setprio {opt['prioX']}")
cm("critical loads: producer weight (wk for even hg, wv for odd), x rows 32*thp + 8a + i")
e(f"s_lshl_b32 s{sT0}, s{sTHP}, 5")
e(f"s_lshl_b32 s{sT1}, s{sA}, 3")
e(f"s_add_u32 s{sT0}, s{sT0}, s{sT1}")
e(f"s_mul_i32 s{sT1}, s{sT0}, {XROW}")
e(f"s_add_u32 s{sT1}, s{sT1}, {X_OFF}")
e(f"s_lshl_b32 s{sT2}, s{sTB}, 6")
e(f"s_add_u32 s{sT2}, s{sT2}, s{sT0}")
e(f"s_lshl_b32 s{sT2}, s{sT2}, 10")
e(f"s_lshl_b32 s{sT3}, s{sA}, 12")
e(f"s_mov_b32 s{R_W+2}, 16384")
e(f"s_mov_b32 s{R_W+3}, 0x20000")
e(f"s_mov_b32 m0, s{sT3}")
e(f"s_bitcmp1_b32 s{sHG}, 0")
e("s_waitcnt lgkmcnt(0)")
e(f"s_cselect_b32 s{R_W}, s{P_WV}, s{P_WK}")
e(f"s_cselect_b32 s{R_W+1}, s{P_WV+1}, s{P_WK+1}")
e(f"s_and_b32 s{R_W+1}, s{R_W+1}, 0xffff")
e(f"s_mov_b32 s{R_XA}, s{P_XA}")
e(f"s_and_b32 s{R_XA+1}, s{P_XA+1}, 0xffff")
srd(R_DBG, P_DBG, 256)
cm("workgroup 0, aux wave 3 publishes this launch's hand-off tag")
e(f"s_or_b32 s{sNON}, s{sNON}, 16")
e(f"s_and_b32 s{sNON}, s{sNON}, -16")
e(f"s_lshl_b32 s{sT0}, s2, 3")
e(f"s_add_u32 s{sT0}, s{sT0}, s{sW}")
e(f"s_cmp_eq_u32 s{sT0}, 7")
e("s_cbranch_scc0 L_notag")
e(f"v_mov_b32 v4, s{sNON}")
e(f"v_mov_b32 v5, s{sNON+1}")
e("s_mov_b64 exec, 1")
e(f"buffer_store_dwordx2 v[4:5], off, {sr(R_DBG,4)}, 0 sc1")
e("s_mov_b64 exec, -1")
lab("L_notag")
e(f"s_cmp_lt_u32 s{sHG}, 4")
e("s_cbranch_scc0 L_now")
for i in range(4): e(f"buffer_load_dwordx4 v2, {sr(R_W,4)}, s{sT3} offen offset:{1024*i} lds")
lab("L_now")
dma_run(8, 2, R_XA, sT2, sT1, 1024, XROW)
stamp(0)
srd(R_WS, P_WS, WS_SIZE)
if opt['dbgt']:
    e(f"s_cmp_lt_u32 s2, 8")
    e("s_cbranch_scc0 L_nodbg0")
    e(f"s_cmp_eq_u32 s{sW}, 6")
    e("s_cbranch_scc0 L_nodbg0")
    e(f"v_mov_b32 v4, s{sNON}")
    e(f"s_lshl_b32 s{sT0}, s2, 2")
    e(f"s_add_u32 s{sT0}, s{sT0}, 8")
    e("s_mov_b64 exec, 1")
    e(f"buffer_store_dword v4, off, {sr(R_DBG,4)}, s{sT0}")
    e("s_mov_b64 exec, -1")
    lab("L_nodbg0")
e("s_barrier                             ; B1")
KV0 = len(L)
e(f"v_mov_b32 v14, {MISC+C_CR}")
e(f"v_mov_b32 v15, 1")
cm("K / V projection: workgroups hg<4, aux waves 0,1 (16 tokens each)")
e(f"s_cmp_lt_u32 s{sHG}, 4")
e("s_cbranch_scc0 L_np")
e(f"s_cmp_lt_u32 s{sA}, 2")
e("s_cbranch_scc0 L_np")
e(f"v_and_b32 v3, 15, v{vL}")
e(f"v_lshrrev_b32 v4, 4, v{vL}           ; q")
e(f"s_lshl_b32 s{sT0}, s{sTHP}, 5")
e(f"s_lshl_b32 s{sT1}, s{sA}, 4")
e(f"s_add_u32 s{sT0}, s{sT0}, s{sT1}")
e(f"v_add_u32 v5, s{sT0}, v3")
e(f"v_mul_u32_u24 v5, {XROW}, v5")
e("v_lshl_add_u32 v5, v4, 4, v5")
e(f"v_add_u32 v5, {X_OFF}, v5")
e(f"v_bfe_u32 v6, v{vL}, 2, 2            ; r")
e("v_lshl_add_u32 v6, v4, 3, v6")
e("v_lshlrev_b32 v6, 5, v6")
e(f"v_and_b32 v7, 3, v{vL}               ; cc")
e(f"s_lshl_b32 s{sT2}, s{sTB}, 1")
e(f"s_add_u32 s{sT2}, s{sT2}, s{sTHP}")
sKF, sKD = 97, 96
e(f"s_lshl_b32 s{sT1}, s{sT2}, 1")
e(f"s_and_b32 s{sT0}, s{sHG}, 1")
e(f"s_add_u32 s{sT1}, s{sT1}, s{sT0}")
e(f"s_lshl_b32 s{sT1}, s{sT1}, 1")
e(f"s_add_u32 s{sT1}, s{sT1}, s{sA}")
e(f"s_lshl_b32 s{sT1}, s{sT1}, 7")
e(f"s_add_u32 s{sKF}, s{sT1}, {FL_KV}")
e(f"s_lshl_b32 s{sKD}, s{sT2}, 11")
e("v_and_b32 v9, 1, v4")
e("v_lshlrev_b32 v9, 3, v9")
e("v_lshl_add_u32 v9, v3, 4, v9          ; n*16 + (q&1)*8")
e("v_lshrrev_b32 v8, 1, v4")
e(f"s_mov_b32 s{sDRY}, {1 if opt['dry'] else 0}")
if opt['pre']:
    cm("touch the lines this wave will publish (tile and flag), so the write-through stores find them resident")
    e(f"v_and_b32 v12, 15, v{vL}")
    e("v_lshlrev_b32 v12, 7, v12")
    e(f"buffer_load_dword v201, v12, {sr(R_WS,4)}, s{sKD} offen sc1")
    e(f"buffer_load_dword v202, off, {sr(R_WS,4)}, s{sKF} sc1")
def kvchain(isV):
    for ks in range(16):
        b = BUF + 8*ks
        e(f"ds_read_b64_tr_b16 {vr(b,2)}, v6 offset:{ks*1024}")
        e(f"ds_read_b64_tr_b16 {vr(b+2,2)}, v6 offset:{ks*1024+128}")
        e(f"ds_read_b128 {vr(b+4,4)}, v5 offset:{ks*64}")
        if ks >= 3:
            k2 = ks - 3; b2 = BUF + 8*k2
            e("s_waitcnt lgkmcnt(9)")
            a, bb = (b2+4, b2) if isV else (b2, b2+4)
            e(f"v_mfma_f32_16x16x32_bf16 {vr(ACC,4)}, {vr(a,4)}, {vr(bb,4)}, {'0' if k2==0 else vr(ACC,4)}")
    for k2 in range(13, 16):
        b2 = BUF + 8*k2
        e(f"s_waitcnt lgkmcnt({3*(15-k2)})")
        a, bb = (b2+4, b2) if isV else (b2, b2+4)
        e(f"v_mfma_f32_16x16x32_bf16 {vr(ACC,4)}, {vr(a,4)}, {vr(bb,4)}, {vr(ACC,4)}")
def kv_wait(tagname):
    e(f"s_waitcnt vmcnt({2 if opt['pre'] else 0})")
    stamp(1)
    e("ds_add_u32 v14, v15")
    lds_wait(tagname + "_w", C_CR, 256, 10, sleep=1)
def kv_b1(tagname):
    if not opt['dry']: kv_wait(tagname)
    lab(tagname)
def kv_b2(tagname):
    if opt['dry']:
        e(f"s_cmp_eq_u32 s{sDRY}, 0")
        e(f"s_cbranch_scc1 {tagname}_go")
        e(f"s_mov_b32 s{sDRY}, 0")
        kv_wait(tagname)
        e(f"s_branch {tagname}")
        lab(tagname + "_go")
e(f"s_bitcmp1_b32 s{sHG}, 0")
e("s_cbranch_scc1 L_prodV")
cm("K: (q>>1)*512 + (16b+n)*16 + (q&1)*8")
e("v_lshl_add_u32 v6, v7, 3, v6")
e("v_lshl_add_u32 v8, v8, 9, v9")
e(f"s_lshl_b32 s{sT1}, s{sA}, 8")
e(f"s_add_u32 s{sKD}, s{sKD}, s{sT1}")
kv_b1("L_chK"); kvchain(False); kv_b2("L_chK")
nop(6 if opt['dry'] else 8)
e("s_branch L_prodS")
lab("L_prodV")
cm("V: 1024 + b*512 + (q>>1)*256 + n*16 + (q&1)*8")
e("v_lshl_add_u32 v8, v8, 8, v9")
e("v_and_b32 v9, 1, v7")
e("v_lshl_add_u32 v6, v9, 4, v6")
e("v_lshrrev_b32 v9, 1, v7")
e("v_lshl_add_u32 v6, v9, 3, v6")
e(f"s_lshl_b32 s{sT1}, s{sA}, 9")
e(f"s_add_u32 s{sKD}, s{sKD}, s{sT1}")
e(f"s_add_u32 s{sKD}, s{sKD}, 1024")
kv_b1("L_chV"); kvchain(True); kv_b2("L_chV")
e(f"s_mov_b32 s{sT0}, {hex(f2u(2.0**VSCALE))}")
nop(6 if opt['dry'] else 8)
for i in range(4): e(f"v_mul_f32 v{ACC+i}, s{sT0}, v{ACC+i}")
lab("L_prodS")
e(f"v_cvt_pk_bf16_f32 v10, v{ACC}, v{ACC+1}")
e(f"v_cvt_pk_bf16_f32 v11, v{ACC+2}, v{ACC+3}")
e(f"buffer_store_dwordx2 v[10:11], v8, {sr(R_WS,4)}, s{sKD} offen sc1")
stamp(14)
e("ds_add_u32 v14, v15 offset:%d             ; this wave is done with the weight region" % (C_KV - C_CR + 65536) if False else f"v_mov_b32 v13, {MISC+C_KV}")
e("ds_add_u32 v13, v15")
tag_from_lds("L_tagp", 4)
e(f"v_mov_b32 v6, s{sNON}")
e(f"v_mov_b32 v7, s{sNON+1}")
e("s_mov_b64 exec, 1")
e("s_waitcnt vmcnt(0)")
e(f"buffer_store_dwordx2 v[6:7], off, {sr(R_WS,4)}, s{sKF} sc1")
e("s_mov_b64 exec, -1")
stamp(15)
e(f"s_mov_b32 s{sRET}, 1")
e("s_branch L_tagged")
lab("L_np")
e("s_waitcnt vmcnt(0)")
stamp(1)
e("ds_add_u32 v14, v15")
if opt['codepf']:
    cm("aux wave 2 pulls this kernel's code towards L2 (reads only)")
    e(f"s_cmp_eq_u32 s{sA}, 2")
    e("s_cbranch_scc0 L_nopf")
    e(f"s_getpc_b64 {sr(sX,2)}")
    lab("L_pc")
    e(f"v_lshlrev_b32 v4, 7, v{vL}")
    e(f"s_sub_u32 s{sX}, s{sX}, L_pc-{NAME}_kernel")
    e(f"s_subb_u32 s{sX+1}, s{sX+1}, 0")
    e(f"v_mov_b32 v5, s{sX+1}")
    e(f"v_add_co_u32 v4, vcc, s{sX}, v4")
    e("s_nop 1")
    e("v_addc_co_u32 v5, vcc, 0, v5, vcc")
    e("CODEPF")
    lab("L_nopf")
e(f"s_cmp_eq_u32 s{sA}, 3")
e("s_cbranch_scc0 L_tagged0")
cm("aux wave 3 fetches this launch's hand-off tag (bounded spin) and posts it in LDS")
e(f"s_mov_b32 s{sSPIN}, {SPIN}")
lab("L_tag")
e(f"buffer_load_dwordx2 v[14:15], off, {sr(R_DBG,4)}, 0 sc1")
e(f"s_sub_u32 s{sSPIN}, s{sSPIN}, 1")
e(f"s_cmp_eq_u32 s{sSPIN}, 0")
e("s_cbranch_scc1 L_tag_done")
e("s_waitcnt vmcnt(0)")
e("v_cmp_eq_u32 vcc, 0, v14")
e("s_nop 0")
e("s_cmp_eq_u64 vcc, 0")
e("s_cbranch_scc0 L_tag")
lab("L_tag_done")
e("s_waitcnt vmcnt(0)")
e(f"v_mov_b32 v12, {MISC+C_TAG}")
e("ds_write_b64 v12, v[14:15]")
cm("report this workgroup's XCD id (tag | id)")
e(f"s_getreg_b32 s{sT2}, hwreg(HW_REG_XCC_ID, 0, 4)")
e(f"s_lshl_b32 s{sT1}, s2, 7")
e(f"s_add_u32 s{sT1}, s{sT1}, {FL_X}")
e(f"v_or_b32 v14, s{sT2}, v14")
e("s_mov_b64 exec, 1")
e(f"buffer_store_dwordx2 v[14:15], off, {sr(R_WS,4)}, s{sT1} sc1")
e("s_mov_b64 exec, -1")
import re
def ren(m):
    n = int(m.group(1)); return f"v{208+n}" if 3 <= n <= 15 else m.group(0)
def ren2(m):
    a, b = int(m.group(1)), int(m.group(2)); return f"v[{208+a}:{208+b}]" if 3 <= a <= 15 else m.group(0)
for k in range(KV0, len(L)):
    L[k] = re.sub(r"v\[(\d+):(\d+)\]", ren2, re.sub(r"\bv(\d+)\b", ren, L[k]))
e(f"s_mov_b32 s{sRET}, 0") if False else None
lab("L_tagged0")
e(f"s_mov_b32 s{sRET}, 0")
e("s_branch L_addr")
lab("L_tagged")
stamp(2)
tag_from_lds("L_tagx", 8)
cm("in a producer workgroup the weight region is reused only after both projection waves are done")
e(f"s_cmp_lt_u32 s{sHG}, 4")
e("s_cbranch_scc0 L_nowkv")
lds_wait("L_wkv", C_KV, 128, 8, sleep=1)
lab("L_nowkv")
cm("key tiles in rotated order (own XCD's tiles first); wave a covers tiles 8g + 2a, 8g + 2a + 1: flags 32g + 8a + (0..7)")
vCNT = 10
sKG, sKL, sKS, sKP = 97, 85, 88, 96
e(f"v_and_b32 v{ACC+2}, 7, v{vL}")
e(f"v_lshlrev_b32 v{ACC+2}, 7, v{ACC+2}")
e(f"s_lshl_b32 s{sKP}, s{sA}, 10")
e(f"s_add_u32 s{sKP}, s{sKP}, {FL_KV}")
e(f"s_lshl_b32 s{sT1}, s{sXCD}, 12")
e(f"s_add_u32 s{sT1}, s{sT1}, s{sKP}")
e(f"s_lshl_b32 s{sKL}, s{sA}, 12")
e(f"s_lshl_b32 s{sKG}, s{sXCD}, 14")
e("s_barrier                             ; B2")
stamp(16)
poll("L_pollK0", 1, ACC+2, 8, [sT1])
stamp(3)
def kvdma(G):
    e(f"s_add_u32 m0, s{sKL}, {16384*G}")
    e(f"s_add_u32 s{sKS}, s{sKG}, s{sKL}")
    for i in range(4): e(f"buffer_load_dwordx4 v2, {sr(R_WS,4)}, s{sKS} offen offset:{1024*i} sc1 lds")
    if G < 7:
        e(f"s_add_u32 s{sKG}, s{sKG}, 16384")
        e(f"s_and_b32 s{sKG}, s{sKG}, 0x1ffff")
kvdma(0)
e(f"s_cmp_eq_u32 s{sRET}, 1")
e("s_cbranch_scc0 L_addr_2")
lab("L_addr")
srd(R_SRE, P_SRE, 8388608)
srd(R_SIM, P_SIM, 8388608)
srd(R_XB, P_XB, 2097152)
srd(R_WO, P_WO, 524288)
srd(R_OUT, P_OUT, 4194304)
sT1S, sEB, sTT, sS2, sCB = 98, 99, 100, 101, 79
R_HRE, R_HIM = R_XA, R_W
e(f"s_and_b32 s{sT0}, s{sJ}, 3")
e(f"s_lshl_b32 s{sT1S}, s{sXCD}, 2")
e(f"s_add_u32 s{sT1S}, s{sT1S}, s{sT0}       ; t1s")
e(f"s_lshr_b32 s{sT0}, s{sJ}, 2")
e(f"s_lshl_b32 s{sT0}, s{sT0}, 1")
e(f"s_lshr_b32 s{sEB}, s{sA}, 1")
e(f"s_add_u32 s{sEB}, s{sEB}, s{sT0}         ; eb")
e(f"s_and_b32 s{sTT}, s{sA}, 1               ; tt")
e(f"s_and_b32 s{sT0}, s{sJ}, 7")
e(f"s_lshl_b32 s{sS2}, s{sXCD}, 3")
e(f"s_add_u32 s{sS2}, s{sS2}, s{sT0}         ; s2")
e(f"s_lshr_b32 s{sT0}, s{sJ}, 3")
e(f"s_lshl_b32 s{sCB}, s{sT0}, 2")
e(f"s_add_u32 s{sCB}, s{sCB}, s{sA}          ; cb")
srd(R_HRE, P_HRE, 524288)
srd(R_HIM, P_HIM, 524288)
e(f"v_and_b32 v3, 31, v{vL}                ; n")
e(f"v_lshrrev_b32 v4, 5, v{vL}             ; h")
e(f"s_lshl_b32 s{sT0}, s{sTT}, 5")
e(f"v_add_u32 v5, s{sT0}, v3")
e("v_lshlrev_b32 v5, 5, v5")
e(f"v_add_u32 v13, s{sT1S}, v5")
vXE, vXO, vWE, vWO_, vG, vRD = 240, 241, 242, 243, 244, 246
vSW, vDRE, vDIM = 250, 251, 252
vB2A, vB2O, vHA, vWOD, vWOT, vOF, vOUT, vPH, vPK, vF = 4, 3, 15, 14, 0, 5, 6, 7, 12, 13
cm("B1 load addresses (8 rows x 128 B per instruction, chunk swizzle on the source side)")
e(f"v_lshrrev_b32 v5, 3, v{vL}             ; r")
e("v_and_b32 v6, 3, v5")
e("v_lshrrev_b32 v7, 2, v5")
e("v_lshl_add_u32 v6, v7, 3, v6            ; 8*(r>>2) + (r&3)")
e("v_lshrrev_b32 v7, 1, v5")
e(f"v_and_b32 v8, 7, v{vL}")
e("v_xor_b32 v7, v7, v8")
e("v_lshlrev_b32 v7, 4, v7")
e("v_xor_b32 v8, 64, v7")
e(f"v_lshl_add_u32 v{vXE}, v6, 16, v7")
e(f"v_lshl_add_u32 v{vXO}, v6, 16, v8")
e(f"v_lshl_add_u32 v{vWE}, v6, 10, v7")
e(f"v_lshl_add_u32 v{vWO_}, v6, 10, v8")
cm("instruction 2 of W (im rows e = 16cb + {0..3, 8..11}); for cb = 0 row e = 0 is replaced by cos row 256")
e(f"s_lshl_b32 s{sT0}, s{sCB}, 14")
e(f"v_add_u32 v9, s{sT0}, v{vWE}")
e("v_cmp_gt_u32 vcc, 0x80, v9")
e(f"v_mov_b32 v{vG}, s{P_HIM}")
e(f"v_mov_b32 v{vG+1}, s{P_HIM+1}")
e(f"v_mov_b32 v10, s{P_HRE}")
e(f"v_mov_b32 v11, s{P_HRE+1}")
e(f"v_cndmask_b32 v{vG}, v{vG}, v10, vcc")
e(f"v_cndmask_b32 v{vG+1}, v{vG+1}, v11, vcc")
e("v_add_u32 v10, 0x40000, v9")
e("v_cndmask_b32 v9, v9, v10, vcc")
e(f"v_add_co_u32 v{vG}, vcc, v{vG}, v9")
e("s_nop 1")
e(f"v_addc_co_u32 v{vG+1}, vcc, 0, v{vG+1}, vcc")
cm("staging read addresses: row m, chunk (2s+h) ^ ((m>>1)&7)")
e(f"s_lshl_b32 s{sT0}, s{sA}, 12")
e(f"s_add_u32 s{sT0}, s{sT0}, {STG}")
e("v_bfe_u32 v5, v3, 1, 3")
e("v_xor_b32 v5, v5, v4")
e("v_lshlrev_b32 v5, 4, v5")
e("v_lshl_add_u32 v5, v3, 7, v5")
e(f"v_add_u32 v{vRD}, s{sT0}, v5")
for s_ in range(1, 4): e(f"v_xor_b32 v{vRD+s_}, {32*s_}, v{vRD}")
e(f"v_add_u32 v{vSW}, s{sT0}, v2")
cm("H store address: t1*64*HROW + 8h*4")
e(f"v_mul_u32_u24 v8, {64*HROW}, v3")
e(f"v_lshl_add_u32 v{vHA}, v4, 5, v8")
cm("wo: DMA source (16 rows x 64 B per load) and the transposing read from the staging area")
e(f"v_bfe_u32 v8, v{vL}, 2, 2")
e("v_lshl_add_u32 v8, v4, 3, v8            ; 8h + r")
e("v_lshlrev_b32 v8, 6, v8")
e(f"v_and_b32 v9, 1, v{vL}")
e("v_lshl_add_u32 v8, v9, 5, v8")
e(f"v_bfe_u32 v9, v{vL}, 4, 1")
e("v_lshl_add_u32 v8, v9, 4, v8")
e(f"v_bfe_u32 v9, v{vL}, 1, 1")
e("v_lshl_add_u32 v8, v9, 3, v8")
e(f"v_add_u32 v{vWOT}, s{sT0}, v8")
e(f"v_lshrrev_b32 v8, 2, v{vL}")
e(f"v_and_b32 v9, 3, v{vL}")
e("v_lshlrev_b32 v8, 10, v8")
e(f"v_lshl_add_u32 v{vWOD}, v9, 4, v8")
cm("output projection: out offset, O fragment address")
e(f"s_lshl_b32 s{sT3}, s{sTB}, 1")
e(f"s_and_b32 s{sT4}, s{sA}, 1")
e(f"s_add_u32 s{sT3}, s{sT3}, s{sT4}")
e(f"s_lshl_b32 s{sT3}, s{sT3}, 5")
e(f"v_add_u32 v8, s{sT3}, v3")
e("v_lshlrev_b32 v8, 11, v8")
e(f"v_lshl_add_u32 v{vOUT}, v4, 5, v8")
e(f"s_lshl_b32 s{sT3}, s{sT4}, 15")
e(f"v_add_u32 v{vOF}, s{sT3}, v2")
e(f"v_lshlrev_b32 v{vPH}, 7, v{vL}")
vPW = 253
e(f"v_lshlrev_b32 v{vPW}, 10, v{vL}")
cm("B2 A rows: e(m) = 32eb + col(m) (eb<8) or 512 - that; col(m) = 16*b2 + 4*(m>>3) + (m&3)")
e("v_and_b32 v8, 3, v3")
e("v_bfe_u32 v9, v3, 2, 1")
e("v_lshl_add_u32 v8, v9, 4, v8")
e("v_lshrrev_b32 v9, 3, v3")
e("v_lshl_add_u32 v8, v9, 2, v8")
e(f"s_lshl_b32 s{sT0}, s{sEB}, 5")
e(f"v_add_u32 v8, s{sT0}, v8")
e("v_sub_u32 v9, 0x200, v8")
e("v_sub_u32 v10, 0x800, v13")
e("v_and_b32 v10, 0x7ff, v10               ; (2048 - ts) & 2047")
e(f"s_cmp_lt_u32 s{sEB}, 8")
e("s_cselect_b64 vcc, 0, -1")
e("v_cndmask_b32 v8, v8, v9, vcc")
e("v_cndmask_b32 v11, v13, v10, vcc")
e("v_lshlrev_b32 v10, 12, v10")
e(f"v_lshl_add_u32 v{vDIM}, v4, 6, v10")
e("v_lshlrev_b32 v10, 12, v13")
e(f"v_lshl_add_u32 v{vDRE}, v4, 6, v10")
e("v_lshlrev_b32 v10, 18, v3")
e(f"v_lshl_add_u32 v{vF}, v4, 4, v10")
e(f"v_lshrrev_b32 v10, 3, v{vL}")
e("v_lshlrev_b32 v10, 5, v10")
e(f"v_and_b32 v9, 7, v{vL}")
e("v_add_u32 v10, v10, v9")
e(f"v_lshlrev_b32 v{vPK}, 7, v10             ; K/V flags 32g + (0..7)")
e("v_lshlrev_b32 v11, 11, v11")
e(f"v_lshl_add_u32 v{vB2O}, v4, 5, v11")
e(f"v_mul_u32_u24 v9, {32*HROW}, v4")
e(f"v_lshl_add_u32 v{vB2A}, v8, 2, v9")
e(f"s_cmp_eq_u32 s{sRET}, 0")
e(f"s_mov_b32 s{sRET}, 2")
e("s_cbranch_scc1 L_tagged")
lab("L_addr_2")
e(f"v_mov_b32 v{vCNT}, {MISC+C_G1}")
e(f"v_mov_b32 v{vCNT+1}, 1")
e("s_waitcnt vmcnt(0)")
stamp(18)
e("s_barrier")
poll("L_pollKV", 1, vPK, 8, [sKP], sleep=1)
stamp(4)
e("s_setprio 0")
LOW[0] = True
sXS, sWS_ = sT3, sT4
e(f"s_lshl_b32 s{sXS}, s{sS2}, 10")
e(f"s_lshl_b32 s{sWS_}, s{sCB}, 14")
e(f"s_add_u32 s{sT0}, s{sXS}, {4*65536}")
e(f"s_add_u32 s{sT1}, s{sXS}, {16*65536}")
e(f"s_add_u32 s{sT2}, s{sXS}, {20*65536}")
e(f"s_add_u32 s{sINC}, s{sWS_}, 4096")
def b1load(c):
    b = BUF + 32*(c % 4); o = 128*c
    e(f"buffer_load_dwordx4 {vr(b,4)}, v{vXE}, {sr(R_XB,4)}, s{sXS} offen offset:{o}")
    e(f"buffer_load_dwordx4 {vr(b+4,4)}, v{vXO}, {sr(R_XB,4)}, s{sT0} offen offset:{o}")
    e(f"buffer_load_dwordx4 {vr(b+8,4)}, v{vXE}, {sr(R_XB,4)}, s{sT1} offen offset:{o}")
    e(f"buffer_load_dwordx4 {vr(b+12,4)}, v{vXO}, {sr(R_XB,4)}, s{sT2} offen offset:{o}")
    e(f"buffer_load_dwordx4 {vr(b+16,4)}, v{vWE}, {sr(R_HRE,4)}, s{sWS_} offen offset:{o}")
    e(f"buffer_load_dwordx4 {vr(b+20,4)}, v{vWO_}, {sr(R_HRE,4)}, s{sINC} offen offset:{o}")
    e(f"global_load_dwordx4 {vr(b+24,4)}, {vr(vG,2)}, off offset:{o}")
    e(f"buffer_load_dwordx4 {vr(b+28,4)}, v{vWO_}, {sr(R_HIM,4)}, s{sINC} offen offset:{o}")
for G in range(1, 3): kvdma(G)
e("s_waitcnt vmcnt(4)")
e(f"ds_add_u32 v{vCNT}, v{vCNT+1}")
for G in range(3, 8): kvdma(G)
b1load(0); b1load(1)
stamp(17)
e("s_waitcnt vmcnt(16)")
e(f"ds_add_u32 v{vCNT}, v{vCNT+1} offset:4")
stamp(21)
if opt["nob"]:
    e("s_branch L_tailprep")
XF, WF = D1, D2
RAW = BP
issued = 16
def order(c):
    extra = 4 if c >= 4 else 0
    return 8*c + 4 + extra, 8*c + 8 + extra
def b1mfma(c):
    for s_ in range(4):
        e(f"v_mfma_f32_32x32x16_bf16 {vr(ACC,16)}, {vr(XF+4*s_,4)}, {vr(WF+4*s_,4)}, {'0' if c==0 and s_==0 else vr(ACC,16)}")
for c in range(8):
    b = BUF + 32*(c % 4)
    px, pw = order(c)
    e(f"s_waitcnt vmcnt({issued - px}) lgkmcnt(0)")
    for i in range(4): e(f"ds_write_b128 v{vSW}, {vr(b+4*i,4)} offset:{1024*i}")
    if c == 0:
        b1load(2); issued += 8
    else: b1mfma(c - 1)
    e("s_waitcnt lgkmcnt(0)")
    for s_ in range(4): e(f"ds_read_b128 {vr(XF+4*s_,4)}, v{vRD+s_}")
    e(f"s_waitcnt vmcnt({issued - pw}) lgkmcnt(0)")
    for i in range(4): e(f"ds_write_b128 v{vSW}, {vr(b+16+4*i,4)} offset:{1024*i}")
    if c == 0:
        b1load(3); issued += 8
        for kb in range(2): e(f"buffer_load_dwordx4 {vr(FR+4*kb,4)}, v{vF}, {sr(R_SRE,4)}, 0 offen offset:{32*kb}")
        for kb in range(2): e(f"buffer_load_dwordx4 {vr(FR+8+4*kb,4)}, v{vF}, {sr(R_SIM,4)}, 0 offen offset:{32*kb}")
        issued += 4
    e("s_waitcnt lgkmcnt(0)")
    for s_ in range(4): e(f"ds_read_b128 {vr(WF+4*s_,4)}, v{vRD+s_}")
    if c + 4 < 8:
        b1load(c + 4); issued += 8
    if c == 4:
        cm("rows of the sequence DFT matrices for B2")
        for i in range(4): e(f"buffer_load_dwordx4 {vr(RAW+4*i,4)}, v{vDRE}, {sr(R_SRE,4)}, 0 offen offset:{16*i}")
        for i in range(4): e(f"buffer_load_dwordx4 {vr(RAW+16+4*i,4)}, v{vDIM}, {sr(R_SIM,4)}, 0 offen offset:{16*i}")
        issued += 8
    if c == 5:
        cm("pull this wave's quarter of the wo slice towards L2 (one dword per 128-B line)")
        e(f"s_lshl_b32 s{sT0}, s{sA}, 17")
        e(f"s_lshl_b32 s{sT1}, s{sHG}, 7")
        e(f"s_add_u32 s{sT0}, s{sT0}, s{sT1}")
        e(f"s_add_u32 s{sT1}, s{sT0}, 65536")
        e(f"buffer_load_dword v{vPK}, v{vPW}, {sr(R_WO,4)}, s{sT0} offen")
        e(f"buffer_load_dword v{vF}, v{vPW}, {sr(R_WO,4)}, s{sT1} offen")
        issued += 2
e("s_waitcnt lgkmcnt(0)")
b1mfma(7)
stamp(22)
e(f"s_mul_i32 s{sT0}, s{sS2}, {HROW}")
e(f"s_lshl_b32 s{sT1}, s{sCB}, 6")
e(f"s_add_u32 s{sT0}, s{sT0}, s{sT1}")
e(f"s_add_u32 s{sT0}, s{sT0}, {WS_H}")
nop(7)
vZ = BUF
def boost(on):
    e(f"s_setprio {2 if on else 0}"); LOW[0] = not on
boost(1)
for i in range(8): e(f"v_cvt_pk_bf16_f32 v{vZ+i}, v{ACC+2*i}, v{ACC+2*i+1}")
boost(0)
nop(1)
e(f"v_mfma_f32_32x32x16_bf16 {vr(D1,16)}, {vr(vZ,4)}, {vr(FR,4)}, 0")
e(f"v_mfma_f32_32x32x16_bf16 {vr(D2,16)}, {vr(vZ,4)}, {vr(FR+8,4)}, 0")
e(f"v_mfma_f32_32x32x16_bf16 {vr(D1,16)}, {vr(vZ+4,4)}, {vr(FR+4,4)}, {vr(D1,16)}")
e(f"v_mfma_f32_32x32x16_bf16 {vr(D2,16)}, {vr(vZ+4,4)}, {vr(FR+12,4)}, {vr(D2,16)}")
nop(11)
boost(1)
for r in range(8):
    e(f"v_sub_f32 v{ACC+r}, v{D1+r}, v{D2+8+r}")
    e(f"v_add_f32 v{ACC+8+r}, v{D2+r}, v{D1+8+r}")
e(f"s_cmp_eq_u32 s{sCB}, 0")
e("s_cbranch_scc0 L_nospecial")
cm("columns e = 0 and e = 256 (both purely real rows): lanes 0..31, register 0")
e("s_mov_b32 exec_hi, 0")
e(f"v_mov_b32 v{ACC}, v{D1}")
e(f"v_mov_b32 v{ACC+8}, v{D2}")
e(f"v_cvt_pk_bf16_f32 v8, v{D1+8}, v{D2+8}")
e(f"buffer_store_dword v8, v{vHA}, {sr(R_WS,4)}, s{sT0} offen offset:1024 sc1")
e("s_mov_b64 exec, -1")
lab("L_nospecial")
for r in range(8): e(f"v_cvt_pk_bf16_f32 v{vZ+r}, v{ACC+r}, v{ACC+8+r}")
e(f"buffer_store_dwordx4 {vr(vZ,4)}, v{vHA}, {sr(R_WS,4)}, s{sT0} offen sc1")
e(f"buffer_store_dwordx4 {vr(vZ+4,4)}, v{vHA}, {sr(R_WS,4)}, s{sT0} offen offset:16 sc1")
e(f"s_lshl_b32 s{sT1}, s2, 7")
e(f"s_add_u32 s{sT1}, s{sT1}, {FL_H}")
e("s_waitcnt vmcnt(0)")
signal("L_sigH", C_H, 3, sT1, 8)
stamp(5)
e(f"s_mov_b32 s{sT0}, 0x05040100")
e(f"s_mov_b32 s{sT3}, 0x07060302")
def bploc(o): return FR + o if o < 16 else (RAW + o - 16 if o < 24 else RAW + 16 + o - 24)
for i in range(16):
    e(f"v_perm_b32 v{bploc(2*i)}, v{RAW+16+i}, v{RAW+i}, s{sT0}")
    e(f"v_perm_b32 v{bploc(2*i+1)}, v{RAW+16+i}, v{RAW+i}, s{sT3}")
lab("L_tailprep")
boost(0)
sWOS, sWOL = 97, 85
e(f"s_lshl_b32 s{sWOS}, s{sHG}, 7")
e(f"s_lshr_b32 s{sT1}, s{sA}, 1")
e(f"s_lshl_b32 s{sT1}, s{sT1}, 6")
e(f"s_add_u32 s{sWOS}, s{sWOS}, s{sT1}")
e(f"s_lshl_b32 s{sWOL}, s{sA}, 12")
e(f"s_add_u32 s{sWOL}, s{sWOL}, {STG}")
def wo_round(R):
    for i in range(4):
        e(f"s_add_u32 m0, s{sWOL}, {1024*i}")
        e(f"s_add_u32 s{sT1}, s{sWOS}, {65536*R + 16384*i}")
        e(f"buffer_load_dwordx4 v{vWOD}, {sr(R_WO,4)}, s{sT1} offen lds")
    e("s_waitcnt vmcnt(0)")
    for i in range(4):
        e(f"ds_read_b64_tr_b16 {vr(BUF+16*R+4*i,2)}, v{vWOT} offset:{1024*i}")
        e(f"ds_read_b64_tr_b16 {vr(BUF+16*R+4*i+2,2)}, v{vWOT} offset:{1024*i+256}")
    e("s_waitcnt lgkmcnt(0)")
for R in range(opt['wo1']): wo_round(R)
stamp(6)
boost(1)
if opt['pre']:
    cm("aux wave 2 touches the O lines this workgroup will write and the 8 flags of its token block")
    e(f"s_cmp_eq_u32 s{sA}, 2")
    e("s_cbranch_scc0 L_nopre")
    e(f"v_lshrrev_b32 v8, 5, v{vL}")
    e(f"v_and_b32 v9, 31, v{vL}")
    e("v_lshlrev_b32 v9, 7, v9")
    e("v_lshl_add_u32 v8, v8, 15, v9")
    e(f"s_lshl_b32 s{sT0}, s{sTB}, 16")
    e(f"s_lshl_b32 s{sT1}, s{sHG}, 12")
    e(f"s_add_u32 s{sT0}, s{sT0}, s{sT1}")
    e(f"s_add_u32 s{sT0}, s{sT0}, {WS_O}")
    e(f"buffer_load_dword v10, v8, {sr(R_WS,4)}, s{sT0} offen sc1")
    e(f"v_and_b32 v9, 0x380, v{vPH}")
    e(f"s_lshl_b32 s{sT0}, s{sTB}, 10")
    e(f"s_add_u32 s{sT0}, s{sT0}, {FL_O}")
    e(f"buffer_load_dword v11, v9, {sr(R_WS,4)}, s{sT0} offen sc1")
    e("s_waitcnt vmcnt(0)")
    lab("L_nopre")
cm("aux wave 1: XCD ids of the 8 workgroups of this token block: ids 32*hg + (id & 31)")
e(f"s_cmp_eq_u32 s{sA}, 1")
e("s_cbranch_scc0 L_nosame")
e(f"v_and_b32 v8, 7, v{vL}")
e("v_lshlrev_b32 v8, 12, v8")
e(f"s_and_b32 s{sT0}, s2, 31")
e(f"s_lshl_b32 s{sT0}, s{sT0}, 7")
e(f"s_add_u32 s{sT0}, s{sT0}, {FL_X}")
e(f"buffer_load_dwordx2 v[10:11], v8, {sr(R_WS,4)}, s{sT0} offen sc1")
e(f"s_getreg_b32 s{sX}, hwreg(HW_REG_XCC_ID, 0, 4)")
e(f"s_or_b32 s{sX}, s{sX}, s{sNON}")
e(f"s_mov_b32 s{sX+1}, s{sNON+1}")
e(f"v_mov_b32 v9, {MISC+C_SAME}")
e("s_waitcnt vmcnt(0)")
e(f"v_cmp_ne_u64 vcc, {sr(sX,2)}, v[10:11]")
e("s_nop 0")
e("s_cmp_eq_u64 vcc, 0")
e(f"s_cselect_b32 s{sT0}, {1 if opt['fast'] else 0}, 0")
e(f"v_mov_b32 v11, s{sT0}")
e("ds_write_b32 v9, v11")
lab("L_nosame")
if opt['nob']: e("s_branch L_b2done")
cm("B2: wait for the H rows it reads: column groups ebg (direct) or 7-ebg and (8-ebg)&3 (mirrored)")
e(f"s_cmp_eq_u32 s{sA}, 0")
e("s_cbranch_scc0 L_hwait")
e(f"s_lshr_b32 s{sT2}, s{sJ}, 2              ; ebg")
e(f"s_sub_u32 s{sT0}, 7, s{sT2}")
e(f"s_sub_u32 s{sT1}, 8, s{sT2}")
e(f"s_and_b32 s{sT1}, s{sT1}, 3")
e(f"s_cmp_lt_u32 s{sT2}, 4")
e(f"s_cselect_b32 s{sT0}, s{sT2}, s{sT0}")
e(f"s_cselect_b32 s{sT1}, s{sT2}, s{sT1}")
e(f"s_lshl_b32 s{sT0}, s{sT0}, 13")
e(f"s_lshl_b32 s{sT1}, s{sT1}, 13")
e(f"s_add_u32 s{sT0}, s{sT0}, {FL_H}")
e(f"s_add_u32 s{sT1}, s{sT1}, {FL_H}")
poll("L_pollH", 2, vPH, 8, [sT0, sT1], sleep=8)
e(f"v_mov_b32 v10, {MISC+C_HOK}")
e("v_mov_b32 v11, 1")
e("ds_write_b32 v10, v11")
e("s_branch L_hok")
lab("L_hwait")
lds_wait("L_hw", C_HOK, 1, 10, sleep=8)
lab("L_hok")
boost(0)
stamp(7)
e(f"s_mul_i32 s{sT0}, s{sT1S}, {64*HROW}")
e(f"s_add_u32 s{sT0}, s{sT0}, {WS_H}")
AF = 208
for kb in range(8):
    for w in range(4): e(f"buffer_load_dword v{AF+4*kb+w}, v{vB2A}, {sr(R_WS,4)}, s{sT0} offen offset:{w*HROW} sc1")
    if kb < 7: e(f"s_add_u32 s{sT0}, s{sT0}, {4*HROW}")
e(f"s_lshl_b32 s{sT0}, s{sEB}, 6")
e(f"s_add_u32 s{sT0}, s{sT0}, 1024")
for kb in range(8):
    e(f"s_waitcnt vmcnt({28-4*kb})")
    e(f"v_mfma_f32_32x32x16_bf16 {vr(ACC,16)}, {vr(AF+4*kb,4)}, {vr(bploc(4*kb),4)}, {'0' if kb==0 else vr(ACC,16)}")
nop(11)
boost(1)
for i in range(8): e(f"v_cvt_pk_bf16_f32 v{AF+i}, v{ACC+2*i}, v{ACC+2*i+1}")
e(f"buffer_store_dwordx4 {vr(AF,4)}, v{vB2O}, {sr(R_OUT,4)}, s{sT0} offen{OSC}")
e(f"buffer_store_dwordx4 {vr(AF+4,4)}, v{vB2O}, {sr(R_OUT,4)}, s{sT0} offen offset:16{OSC}")
lab("L_b2done")
boost(0)
stamp(8)
for R in range(opt['wo1'], 8): wo_round(R)
e(f"s_mov_b32 s{sT0}, s{sWOS}")
stamp(10)
warm("L_padt", "L_pado_ret")
cm("tail: the attention waves bring the O tile -> LDS 0..")
e("s_barrier                             ; B7")
LOW[0] = False
stamp(9)
e("s_barrier                             ; B8a")
pad_begin("L_pado")
OF = 144
korder = [h for h in range(32) if h % 8 < 4] + [h for h in range(32) if h % 8 >= 4]
def ofrag(n): e(f"ds_read_b128 {vr(OF+4*(n%8),4)}, v{vOF} offset:{1024*korder[n]}")
for n in range(7): ofrag(n)
for n in range(32):
    if n + 7 == 16:
        e("s_barrier                             ; B8b")
    if n + 7 < 32:
        ofrag(n + 7)
        e("s_waitcnt lgkmcnt(7)")
    else:
        e(f"s_waitcnt lgkmcnt({31-n})")
    e(f"v_mfma_f32_32x32x16_bf16 {vr(ACC,16)}, {vr(BUF+4*korder[n],4)}, {vr(OF+4*(n%8),4)}, {'0' if n==0 else vr(ACC,16)}")
nop(12)
for i in range(8): e(f"v_cvt_pk_bf16_f32 v{D1+i}, v{ACC+2*i}, v{ACC+2*i+1}")
e(f"buffer_store_dwordx4 {vr(D1,4)}, v{vOUT}, {sr(R_OUT,4)}, s{sT0} offen{OSC}")
e(f"buffer_store_dwordx4 {vr(D1+4,4)}, v{vOUT}, {sr(R_OUT,4)}, s{sT0} offen offset:16{OSC}")
pad_end("L_pado", "L_pado_ret")
if opt['dbgt']:
    e(f"s_cmp_lt_u32 s2, 6")
    e("s_cbranch_scc0 L_end")
    e(f"s_cmp_eq_u32 s{sW}, 4")
    e("s_cbranch_scc0 L_end")
    e("s_waitcnt vmcnt(0)")
    e(f"s_memrealtime {sr(sST,2)}")
    e("s_waitcnt lgkmcnt(0)")
    e(f"v_mov_b32 v4, s{sST}")
    e(f"s_lshl_b32 s{sT0}, s2, 2")
    e(f"s_add_u32 s{sT0}, s{sT0}, 40")
    e("s_mov_b64 exec, 1")
    e(f"buffer_store_dword v4, off, {sr(R_DBG,4)}, s{sT0}")
stamp(12)
if opt['stamps']: e("s_waitcnt vmcnt(0)")
stamp(13)
stamp_dump()
lab("L_end")
e("s_endpgm")
lab("L_codeend")
L.append(f""".section .rodata,"a"
.p2align 6
.amdhsa_kernel {NAME}_kernel
  .amdhsa_next_free_vgpr 256
  .amdhsa_next_free_sgpr 102
  .amdhsa_accum_offset 256
  .amdhsa_group_segment_fixed_size 0
  .amdhsa_kernarg_size 104
  .amdhsa_user_sgpr_count 2
  .amdhsa_user_sgpr_kernarg_segment_ptr 1
  .amdhsa_system_sgpr_workgroup_id_x 1
.end_amdhsa_kernel""")

def finish(lines, ncode):
    out = []
    for l in lines:
        if l.strip() == "CODEPF":
            for i in range(ncode // 8192):
                out.append(f"    global_load_dword v200, v[212:213], off")
                out.append(f"    v_add_co_u32 v212, vcc, 0x2000, v212")
                out.append(f"    s_nop 1")
                out.append(f"    v_addc_co_u32 v213, vcc, 0, v213, vcc")
            rem = (ncode % 8192) // 128
            if rem:
                out.append(f"    v_cmp_gt_u32 vcc, {rem}, v{vL}")
                out.append(f"    s_nop 0")
                out.append(f"    s_and_saveexec_b64 {sr(sX,2)}, vcc")
                out.append(f"    global_load_dword v200, v[212:213], off")
                out.append(f"    s_mov_b64 exec, -1")
        else: out.append(l)
    return "\n".join(out) + "\n"
import subprocess, os, hazcheck
ncode = 16384
for _ in range(3):
    txt = finish(L, ncode)
    open("_g.s", "w").write(txt)
    r = subprocess.run(["clang", "-x", "assembler", "-target", "amdgcn-amd-amdhsa", "-mcpu=gfx950", "-c", "_g.s", "-o", "_g.o"], capture_output=True, text=True)
    if r.returncode: print(r.stderr[:3000]); sys.exit(1)
    sz = subprocess.run(["llvm-objdump", "-h", "_g.o"], capture_output=True, text=True).stdout
    n = [int(x.split()[2], 16) for x in sz.splitlines() if " .text " in x][0]
    if n // 128 * 128 == ncode: break
    ncode = n // 128 * 128
open(sys.argv[1], "w").write(txt)
print(hazcheck.check(txt), "hazards; code bytes", n)
```

```python
import sys, struct
NAME = "concat_heads__grouped_kv_mqa__spectral_fnet__prompt"
opt = dict(stamps=0, prioA=1, prioX=2, boost=1, force_fb=0, dbgt=0, dry=1, codepf=1, shift=98, outsc1=0, cluster=1, fast=1, nob=0, l2pf=0, wo1=4, hold=1, pre=1, pads=1, dxcc=-1, dus=300, endat=0)
for a in sys.argv[2:]:
    k, v = a.split('='); opt[k] = int(v)

L = []
def e(s=""): L.append("    " + s)
def lab(s): L.append(s + ":")
def cm(s): L.append("    ; " + s)
def vr(a, n): return f"v[{a}:{a+n-1}]" if n > 1 else f"v{a}"
def sr(a, n): return f"s[{a}:{a+n-1}]" if n > 1 else f"s{a}"
def nop(n):
    while n > 0:
        k = min(n, 16); e(f"s_nop {k-1}"); n -= k
def f2u(x): return struct.unpack('<I', struct.pack('<f', x))[0]
OSC = " sc1" if opt['outsc1'] else ""

W_OFF = 0
X_OFF, XROW = 16384, 1040
WQ_OFF = 82944
ONES_OFF = 148480
MISC = 156672
STG = 131072
LDS_BYTES = 156800
C_KV, C_H, C_O, C_TAG, C_HOK, C_SAME, C_CR, C_QA, C_QB, C_G1, C_KVL = 0, 4, 8, 16, 24, 28, 32, 36, 40, 44, 48
WS_KV, WS_O, WS_H, WS_FL = 0, 0x40000, 0x240000, 0x480000
FL_KV, FL_H, FL_O, FL_X = WS_FL, WS_FL + 0x8000, WS_FL + 0x10000, WS_FL + 0x18000
WS_STAMP = 0x4A0000
WS_SIZE = 0x540000
HROW = 1056
SPIN = 400000
VSCALE = 64
P_XA, P_WQ, P_WK, P_WV, P_WO, P_XB, P_SRE, P_SIM = 4, 6, 8, 10, 12, 14, 16, 18
P_HRE, P_HIM, P_OUT, P_DBG, P_WS = 20, 22, 24, 26, 28
R_XA, R_WQ, R_W, R_WS, R_WO, R_XB, R_SRE, R_SIM, R_OUT, R_DBG = 32, 36, 40, 44, 48, 52, 56, 60, 64, 68
sW, sXCD, sJ, sTB, sHG, sTHP, sA = 72, 73, 74, 75, 76, 77, 78
sT0, sT1, sT2, sT3, sT4 = 80, 81, 82, 83, 84
sDRY = 85
sNON = 86
sIT, sINC, sFB, sSPIN = 88, 89, 90, 91
sX = 92
sST = 94
sBARN = 96
sRET = 90

def srd(r, p, size):
    e(f"s_mov_b32 s{r}, s{p}")
    e(f"s_and_b32 s{r+1}, s{p+1}, 0xffff")
    e(f"s_mov_b32 s{r+2}, {hex(size)}")
    e(f"s_mov_b32 s{r+3}, 0x20000")

LOW = [False]
vL = 1
def stamp(idx):
    if not opt['stamps']: return
    e(f"s_memrealtime {sr(sST,2)}")
    e(f"s_memtime {sr(sX,2)}")
    e("s_waitcnt lgkmcnt(0)")
    if LOW[0]: e("s_setprio 2")
    e(f"v_writelane_b32 v254, s{sST}, {idx}")
    e(f"v_writelane_b32 v255, s{sX}, {idx}")
    if LOW[0]: e("s_setprio 0")
def stamp_dump():
    if not opt['stamps']: return
    e(f"s_lshl_b32 s{sST}, s2, 3")
    e(f"s_add_u32 s{sST}, s{sST}, s{sW}")
    e(f"s_lshl_b32 s{sST}, s{sST}, 8")
    e(f"s_add_u32 s{sST}, s{sST}, {WS_STAMP}")
    e(f"v_lshlrev_b32 v253, 3, v{vL}")
    e("s_mov_b32 exec_hi, 0")
    e(f"buffer_store_dwordx2 v[254:255], v253, {sr(R_WS,4)}, s{sST} offen")

PADS = {}
def pad_begin(name): PADS[name] = len(L)
def isize(l):
    t = l.strip()
    if not t or t.startswith((';', '.')) or t.endswith(':'): return 0
    t = t.split(';')[0]
    mn = t.split()[0]
    if mn.startswith(('buffer_', 'global_', 'ds_', 'v_mfma', 'v_smfmac', 's_load', 's_mem')): return 8
    if mn.startswith('v_') and (mn.endswith('_e64') or mn in ('v_lshl_add_u32', 'v_bfe_u32', 'v_perm_b32', 'v_max3_f32', 'v_cvt_pk_bf16_f32', 'v_writelane_b32', 'v_mul_u32_u24', 'v_cmp_ne_u64')): return 8
    import re as _r
    for o in _r.findall(r'(?<![\w\[:])(-?0x[0-9a-f]+|-?\d+)(?![\w\]:])', (t.split(None, 1) + [''])[1]):
        v = int(o, 0)
        if not mn.startswith(('s_waitcnt', 's_nop', 's_sleep', 's_setprio')) and not -16 <= v <= 64: return 8
    return 4
def pad_end(name, ret):
    a = PADS[name]
    if not opt['pads']:
        L.insert(a, f"{name}_0:"); L.insert(a + 1, f"    s_cbranch_execz {ret}"); return
    body = L[a:]; del L[a:]
    n = 0; acc = 0
    L.append(f"{name}_0:"); L.append(f"    s_cbranch_execz {name}_1")
    for l in body:
        z = isize(l)
        prev = L[-1].strip()
        if acc + z > 56 and not prev.startswith(('s_mov_b32 m0', 's_add_u32 m0')):
            n += 1; L.append(f"{name}_{n}:"); L.append(f"    s_cbranch_execz {name}_{n+1}"); acc = 0
        L.append(l); acc += z
    n += 1
    L.append(f"{name}_{n}:"); L.append(f"    s_cbranch_execz {ret}")
def warm(name, ret):
    e("s_mov_b64 exec, 0")
    e(f"s_branch {name}_0")
    lab(ret)
    e("s_mov_b64 exec, -1")

def dma(voff, srdr, soff, ldsaddr_s, extra=""):
    e(f"s_mov_b32 m0, s{ldsaddr_s}")
    e("s_nop 0")
    e(f"buffer_load_dwordx4 v{voff}, {sr(srdr,4)}, s{soff} offen {extra}lds")
def dma_run(n, voff, srdr, soff, lds_s, dsrc, dlds, extra=""):
    for i in range(n):
        e(f"s_mov_b32 m0, s{lds_s}")
        if i < n - 1: e(f"s_add_u32 s{lds_s}, s{lds_s}, {dlds}")
        else: e("s_nop 0")
        e(f"buffer_load_dwordx4 v{voff}, {sr(srdr,4)}, s{soff} offen {extra}lds")
        if i < n - 1: e(f"s_add_u32 s{soff}, s{soff}, {dsrc}")

def poll(name, nloads, voff, dst, soffs, sleep=0):
    e(f"s_mov_b32 s{sSPIN}, {SPIN}")
    lab(name)
    for i in range(nloads):
        e(f"buffer_load_dwordx2 {vr(dst+2*i,2)}, v{voff}, {sr(R_WS,4)}, s{soffs[i]} offen sc1")
    e(f"s_sub_u32 s{sSPIN}, s{sSPIN}, 1")
    e(f"s_cmp_eq_u32 s{sSPIN}, 0")
    e(f"s_cbranch_scc1 {name}_done")
    e("s_waitcnt vmcnt(0)")
    e(f"v_cmp_ne_u64 vcc, {sr(sNON,2)}, {vr(dst,2)}")
    for i in range(1, nloads):
        e(f"v_cmp_ne_u64 {sr(sX,2)}, {sr(sNON,2)}, {vr(dst+2*i,2)}")
        e("s_nop 0")
        e(f"s_or_b64 vcc, vcc, {sr(sX,2)}")
    e("s_nop 0")
    e("s_cmp_eq_u64 vcc, 0")
    if sleep:
        e(f"s_cbranch_scc1 {name}_done")
        e(f"s_sleep {sleep}")
        e(f"s_branch {name}")
    else:
        e(f"s_cbranch_scc0 {name}")
    lab(name + "_done")
    e("s_waitcnt vmcnt(0)")

def lds_wait(name, off, value, tmp, sleep=0):
    e(f"s_mov_b32 s{sSPIN}, {SPIN*8}")
    e(f"v_mov_b32 v{tmp}, {MISC + off}")
    lab(name)
    e(f"ds_read_b32 v{tmp+1}, v{tmp}")
    e(f"s_sub_u32 s{sSPIN}, s{sSPIN}, 1")
    e(f"s_cmp_eq_u32 s{sSPIN}, 0")
    e(f"s_cbranch_scc1 {name}_done")
    e("s_waitcnt lgkmcnt(0)")
    e(f"v_readfirstlane_b32 s{sT4}, v{tmp+1}")
    e("s_nop 0")
    e(f"s_cmp_ge_u32 s{sT4}, {value}")
    if sleep:
        e(f"s_cbranch_scc1 {name}_done")
        e(f"s_sleep {sleep}")
        e(f"s_branch {name}")
    else:
        e(f"s_cbranch_scc0 {name}")
    lab(name + "_done")
    e("s_waitcnt lgkmcnt(0)")
def lds_add(off, tmp):
    e(f"v_mov_b32 v{tmp}, {MISC + off}")
    e(f"v_mov_b32 v{tmp+1}, 1")
    e("s_mov_b64 exec, 1")
    e(f"ds_add_u32 v{tmp}, v{tmp+1}")
    e("s_mov_b64 exec, -1")
def tag_from_lds(name, tmp):
    e(f"s_mov_b32 s{sSPIN}, {SPIN*8}")
    e(f"v_mov_b32 v{tmp}, {MISC+C_TAG}")
    lab(name)
    e(f"ds_read_b64 {vr(tmp+2,2)}, v{tmp}")
    e(f"s_sub_u32 s{sSPIN}, s{sSPIN}, 1")
    e(f"s_cmp_eq_u32 s{sSPIN}, 0")
    e(f"s_cbranch_scc1 {name}_done")
    e("s_waitcnt lgkmcnt(0)")
    e(f"v_readfirstlane_b32 s{sNON}, v{tmp+2}")
    e(f"v_readfirstlane_b32 s{sNON+1}, v{tmp+3}")
    e(f"s_cmp_lg_u32 s{sNON}, 0")
    e(f"s_cbranch_scc1 {name}_done")
    e("s_sleep 1")
    e(f"s_branch {name}")
    lab(name + "_done")
    e("s_waitcnt lgkmcnt(0)")

def signal(name, ctr_off, last, flag_soff_s, tmp, lo=None, plain_if=None):
    e(f"v_mov_b32 v{tmp}, {MISC + ctr_off}")
    e(f"v_mov_b32 v{tmp+1}, 1")
    e(f"s_mov_b64 exec, 1")
    e(f"ds_add_rtn_u32 v{tmp+1}, v{tmp}, v{tmp+1}")
    e(f"v_mov_b32 v{tmp+2}, s{sNON if lo is None else lo}")
    e(f"v_mov_b32 v{tmp+3}, s{sNON+1}")
    e("s_waitcnt lgkmcnt(0)")
    e(f"v_readfirstlane_b32 s{sT4}, v{tmp+1}")
    e("s_nop 0")
    e(f"s_cmp_eq_u32 s{sT4}, {last}")
    e(f"s_cbranch_scc0 {name}_nf")
    if plain_if is not None:
        e(f"s_cmp_eq_u32 s{plain_if}, 0")
        e(f"s_cbranch_scc1 {name}_wt")
        e(f"buffer_store_dwordx2 {vr(tmp+2,2)}, off, {sr(R_WS,4)}, s{flag_soff_s}")
        e(f"s_branch {name}_nf")
        lab(name + "_wt")
    e(f"buffer_store_dwordx2 {vr(tmp+2,2)}, off, {sr(R_WS,4)}, s{flag_soff_s} sc1")
    lab(name + "_nf")
    e("s_mov_b64 exec, -1")

hdr = open(f"cdna_kernels/{NAME}.s.ref").read().split("; Override launch")[0]
L.append(hdr.rstrip())
L.append(f"; @launch grid=(256,1,1) block=(512,1,1) lds={LDS_BYTES}")
L.append('.amdgcn_target "amdgcn-amd-amdhsa--gfx950"')
L.append(".text")
L.append(f".globl {NAME}_kernel")
L.append(".p2align 8")
L.append(f".type {NAME}_kernel,@function")
lab(f"{NAME}_kernel")
e("s_cmp_ge_u32 s2, 256")
e("s_cbranch_scc1 L_end")
e("s_load_dwordx16 s[4:19], s[0:1], 0")
e("s_load_dwordx8 s[20:27], s[0:1], 64")
e("s_load_dwordx2 s[28:29], s[0:1], 96")
e(f"s_memrealtime {sr(sNON,2)}")
if opt['endat']:
    e("s_waitcnt lgkmcnt(0)")
    e(f"s_mov_b32 s30, s{sNON}")
if opt['dxcc'] >= 0:
    e(f"s_getreg_b32 s{sT0}, hwreg(HW_REG_XCC_ID, 0, 4)")
    e(f"s_cmp_eq_u32 s{sT0}, {opt['dxcc']}") if opt['dxcc'] < 8 else e(f"s_cmp_eq_u32 s{sT0}, s{sT0}")
    e("s_cbranch_scc0 L_nodelay")
    e("s_waitcnt lgkmcnt(0)")
    lab("L_delay")
    e(f"s_memrealtime {sr(sX,2)}")
    e("s_waitcnt lgkmcnt(0)")
    e(f"s_sub_u32 s{sX}, s{sX}, s{sNON}")
    e(f"s_cmp_lt_u32 s{sX}, {opt['dus']}")
    e("s_cbranch_scc1 L_delay")
    lab("L_nodelay")
e("v_lshrrev_b32 v2, 6, v0")
e(f"v_and_b32 v{vL}, 63, v0")
e(f"v_readfirstlane_b32 s{sW}, v2")
e(f"s_and_b32 s{sXCD}, s2, 7")
e(f"s_lshr_b32 s{sJ}, s2, 3")
e(f"s_and_b32 s{sT0}, s{sJ}, 3")
e(f"s_lshl_b32 s{sTB}, s{sXCD}, 2")
e(f"s_add_u32 s{sTB}, s{sTB}, s{sT0}")
e(f"s_lshr_b32 s{sHG}, s{sJ}, 2")
e(f"s_bfe_u32 s{sTHP}, s{sHG}, 0x10001")
e(f"s_and_b32 s{sA}, s{sW}, 3")
e(f"v_lshlrev_b32 v2, 4, v{vL}          ; v2 = lane*16")
cm("LDS init while the kernel arguments load: ones / zeros window (even 16-B chunks 2^64, odd chunks 0), counters")
ONE = (127 + VSCALE) << 7
e("v_and_b32 v4, 1, v0")
e("v_add_u32 v4, -1, v4")
e(f"v_and_b32 v4, {hex(ONE << 16 | ONE)}, v4")
e("v_mov_b32 v5, v4")
e("v_mov_b32 v6, v4")
e("v_mov_b32 v7, v4")
e(f"v_lshlrev_b32 v3, 4, v0")
e(f"v_add_u32 v3, {ONES_OFF}, v3")
e("ds_write_b128 v3, v[4:7]")
e("v_mov_b32 v8, 0")
e(f"v_lshlrev_b32 v9, 1, v{vL}")
e("v_and_b32 v9, 0x7c, v9")
e(f"v_add_u32 v9, {MISC}, v9")
e("ds_write_b32 v9, v8")
e(f"s_mov_b32 s{R_XA+2}, 0x200000")
e(f"s_mov_b32 s{R_XA+3}, 0x20000")
e(f"s_cmp_ge_u32 s{sW}, 4")
e("s_cbranch_scc1 L_aux")

cm("wq slice (8 rows x 128 B per load, 16-B chunks swizzled by row bit 1); quarter tb&3 first: distinct among its 4 sharers")
e(f"v_lshrrev_b32 v3, 3, v{vL}          ; r")
e(f"v_and_b32 v4, 7, v{vL}")
e(f"v_bfe_u32 v5, v{vL}, 4, 1           ; (r>>1)&1")
e("v_lshlrev_b32 v5, 2, v5")
e("v_xor_b32 v4, v4, v5")
e("v_lshlrev_b32 v4, 4, v4")
e("v_lshl_add_u32 v13, v3, 10, v4")
e(f"s_mov_b32 s{R_WQ+2}, 0x80000")
e(f"s_mov_b32 s{R_WQ+3}, 0x20000")
def wq_addr(q):
    e(f"s_add_u32 s{sT0}, s{sJ}, {q}")
    e(f"s_and_b32 s{sT0}, s{sT0}, 3")
    e(f"s_lshl_b32 s{sT0}, s{sT0}, 2")
    e(f"s_add_u32 s{sT0}, s{sT0}, s{sW}")
    e(f"s_lshl_b32 s{sT2}, s{sT0}, 15")
    e(f"s_lshl_b32 s{sT1}, s{sHG}, 7")
    e(f"s_add_u32 s{sT2}, s{sT2}, s{sT1}")
    e(f"s_lshl_b32 s{sT1}, s{sT0}, 12")
    e(f"s_add_u32 s{sT1}, s{sT1}, {WQ_OFF}")
wq_addr(0)
e("s_waitcnt lgkmcnt(0)")
e(f"s_mov_b32 s{R_WQ}, s{P_WQ}")
e(f"s_and_b32 s{R_WQ+1}, s{P_WQ+1}, 0xffff")
e(f"s_mov_b32 s{R_XA}, s{P_XA}")
e(f"s_and_b32 s{R_XA+1}, s{P_XA+1}, 0xffff")
stamp(0)
e("s_barrier")
dma_run(4, 13, R_WQ, sT2, sT1, 8192, 1024)
cm("the half of the x tile the aux waves do not load: rows 32*(1-thp) + 8w + i")
e(f"s_xor_b32 s{sT0}, s{sTHP}, 1")
e(f"s_lshl_b32 s{sT0}, s{sT0}, 5")
e(f"s_lshl_b32 s{sT1}, s{sW}, 3")
e(f"s_add_u32 s{sT0}, s{sT0}, s{sT1}")
e(f"s_mul_i32 s{sT1}, s{sT0}, {XROW}")
e(f"s_add_u32 s{sT1}, s{sT1}, {X_OFF}")
e(f"s_lshl_b32 s{sT2}, s{sTB}, 6")
e(f"s_add_u32 s{sT2}, s{sT2}, s{sT0}")
e(f"s_lshl_b32 s{sT2}, s{sT2}, 10")
dma_run(8, 2, R_XA, sT2, sT1, 1024, XROW)
for q in range(1, 4):
    wq_addr(q)
    dma_run(4, 13, R_WQ, sT2, sT1, 8192, 1024)
stamp(7)
srd(R_WS, P_WS, WS_SIZE)
SA, SB, OA, OB, CA, CB = 16, 32, 48, 64, 80, 96
QA, QB, K0, K1, V0, V1 = 112, 116, 120, 124, 128, 136
vIDX, vK, vV = 144, 145, 146
vINC, vV0, vSAME = 147, 150, 151
vXA, vWA = 148, 149
FB = 152
cm("Q-projection addresses")
e(f"s_and_b32 s{sT0}, s{sW}, 1            ; th")
e(f"s_lshr_b32 s{sT1}, s{sW}, 1           ; hp")
e(f"v_and_b32 v3, 31, v{vL}")
e(f"s_lshl_b32 s{sT2}, s{sT0}, 5")
e(f"v_add_u32 v3, s{sT2}, v3")
e(f"v_mul_u32_u24 v3, {XROW}, v3")
e(f"v_lshrrev_b32 v4, 5, v{vL}           ; h")
e(f"v_lshl_add_u32 v14, v4, 4, v3")
e(f"v_bfe_u32 v5, v{vL}, 2, 2            ; r")
e("v_lshl_add_u32 v6, v4, 3, v5          ; 8h + r")
e("v_lshlrev_b32 v6, 7, v6")
e(f"v_bfe_u32 v7, v{vL}, 4, 1            ; g")
e(f"v_and_b32 v8, 1, v{vL}")
e("v_lshl_add_u32 v7, v7, 1, v8          ; 2g + (cc&1)")
e(f"s_lshl_b32 s{sT2}, s{sT1}, 2")
e(f"v_add_u32 v7, s{sT2}, v7")
e(f"v_bfe_u32 v8, v{vL}, 3, 1            ; (r>>1)&1")
e("v_lshlrev_b32 v8, 2, v8")
e("v_xor_b32 v7, v7, v8")
e("v_lshl_add_u32 v6, v7, 4, v6")
e(f"v_bfe_u32 v8, v{vL}, 1, 1")
e("v_lshl_add_u32 v6, v8, 3, v6")
e(f"v_add_u32 v{vWA}, {WQ_OFF}, v6")
e(f"v_add_u32 v{vXA}, {X_OFF}, v14")
cm("attention LDS addresses; V: rows 0..15 -> tile data, lanes 16,20 -> 2^64, other lanes -> 0")
e(f"v_mov_b32 v{vIDX}, 0xdddddddd")
e(f"v_bfe_u32 v5, v{vL}, 4, 1")
e(f"v_xor_b32 v5, 1, v5")
e(f"v_lshlrev_b32 v{vINC}, 13, v5")
e(f"v_and_b32 v8, 15, v{vL}")
e("v_lshlrev_b32 v9, 8, v4")
e("v_lshl_add_u32 v8, v8, 4, v9")
e(f"v_and_b32 v9, 31, v{vL}")
e("v_add_u32 v10, -20, v9")
e("v_cmp_gt_u32 vcc, 8, v10")
e("v_and_b32 v9, 11, v9")
e("v_min_u32 v9, 1, v9")
e("v_cndmask_b32 v10, 0, 64, vcc")
e(f"v_cmp_eq_u32 vcc, 1, v5")
e("v_lshl_add_u32 v9, v9, 4, v10")
e(f"v_add_u32 v9, {ONES_OFF - 1024}, v9")
e(f"v_cndmask_b32 v{vV0}, v9, v8, vcc")
cm("O fragment destination and flag slot")
sOD, sOF = 97, 98
e(f"s_and_b32 s{sT0}, s{sW}, 1")
e(f"s_lshl_b32 s{sT1}, s{sTB}, 1")
e(f"s_add_u32 s{sT0}, s{sT0}, s{sT1}")
e(f"s_lshl_b32 s{sT0}, s{sT0}, 5          ; (tb*2+th)*32")
e(f"s_lshl_b32 s{sT1}, s{sHG}, 2")
e(f"s_add_u32 s{sT0}, s{sT0}, s{sT1}")
e(f"s_and_b32 s{sT1}, s{sW}, 2")
e(f"s_add_u32 s{sT0}, s{sT0}, s{sT1}")
e(f"s_lshl_b32 s{sT0}, s{sT0}, 10")
e(f"s_add_u32 s{sOD}, s{sT0}, {WS_O}")
e(f"s_lshl_b32 s{sT1}, s{sTB}, 3")
e(f"s_add_u32 s{sT1}, s{sT1}, s{sHG}")
e(f"s_lshl_b32 s{sT1}, s{sT1}, 7")
e(f"s_add_u32 s{sOF}, s{sT1}, {FL_O}")
e(f"s_mov_b32 s{sFB}, 0")
e(f"s_mov_b32 s{sBARN}, 0xa")
e(f"v_mov_b32 v{vSAME}, {MISC}")
sPF, sOL, sOS, vPO = 100, 101, 79, 184
e(f"s_lshl_b32 s{sT0}, s{sTB}, 3")
e(f"s_lshl_b32 s{sT1}, s{sW}, 1")
e(f"s_add_u32 s{sT0}, s{sT0}, s{sT1}")
e(f"s_lshl_b32 s{sT0}, s{sT0}, 7")
e(f"s_add_u32 s{sPF}, s{sT0}, {FL_O}")
e(f"s_lshl_b32 s{sT2}, s{sTB}, 16")
e(f"s_lshl_b32 s{sOL}, s{sW}, 13")
e(f"s_add_u32 s{sT2}, s{sT2}, s{sOL}")
e(f"s_add_u32 s{sOS}, s{sT2}, {WS_O}")
e(f"v_and_b32 v8, 1, v{vL}")
e(f"v_lshlrev_b32 v{vPO}, 7, v8")
for i in range(16): e(f"v_mov_b32 v{OA+i}, 0")
for i in range(16): e(f"v_mov_b32 v{OB+i}, 0")
for i in range(4): e(f"v_mov_b32 v{V1+4+i}, 0")
e(f"v_mov_b32 v{vK}, v2")
e(f"v_mov_b32 v{vV}, v{vV0}")
e(f"s_mov_b32 s{sT0}, {hex(f2u(0.25*1.4426950408889634))}")
warm("L_padq", "L_padq_ret")
e("s_waitcnt vmcnt(0)")
stamp(8)
e("s_barrier")
stamp(10)
pad_begin("L_padq")
def qload(ks):
    b = FB + 8*(ks % 4)
    e(f"ds_read_b64_tr_b16 {vr(b,2)}, v{vWA} offset:{ks*2048}")
    e(f"ds_read_b64_tr_b16 {vr(b+2,2)}, v{vWA} offset:{ks*2048+512}")
    e(f"ds_read_b128 {vr(b+4,4)}, v{vXA} offset:{ks*32}")
for ks in range(3): qload(ks)
for ks in range(32):
    b = FB + 8*(ks % 4)
    if ks + 3 < 32:
        qload(ks + 3); e("s_waitcnt lgkmcnt(9)")
    else:
        e(f"s_waitcnt lgkmcnt({3*(31-ks)})")
    c = "0" if ks == 0 else vr(SA, 16)
    e(f"v_mfma_f32_32x32x16_bf16 {vr(SA,16)}, {vr(b,4)}, {vr(b+4,4)}, {c}")
stamp(9)
nop(12)
for i in range(16): e(f"v_mul_f32 v{SA+i}, s{sT0}, v{SA+i}")
for i in range(8): e(f"v_cvt_pk_bf16_f32 v{QA+i}, v{SA+2*i}, v{SA+2*i+1}")
if opt['prioA']: e(f"s_setprio {opt['prioA']}")
stamp(2)
e("s_barrier")
stamp(3)
cm("stand-in for the row max: max over key tile 0 (checked after the loop; fallback = true max)")
e(f"ds_read_b128 {vr(K0,4)}, v{vK}")
e(f"ds_read_b128 {vr(K1,4)}, v{vK} offset:2048")
e(f"ds_read_b128 {vr(V0,4)}, v{vV} offset:1024")
e(f"ds_read_b128 {vr(V0+4,4)}, v{vV} offset:1536")
e("s_waitcnt lgkmcnt(3)")
e(f"v_mfma_f32_32x32x16_bf16 {vr(SA,16)}, {vr(K0,4)}, {vr(QA,4)}, 0")
e(f"v_mfma_f32_32x32x16_bf16 {vr(SB,16)}, {vr(K0,4)}, {vr(QB,4)}, 0")
nop(11)
def max16(dst, s, acc=None):
    if acc is None:
        e(f"v_max3_f32 v{dst}, v{s}, v{s+1}, v{s+2}"); i = 3
        while i + 1 < 16:
            e(f"v_max3_f32 v{dst}, v{dst}, v{s+i}, v{s+i+1}"); i += 2
        e(f"v_max_f32 v{dst}, v{dst}, v{s+15}")
    else:
        for i in range(0, 16, 2): e(f"v_max3_f32 v{dst}, v{dst}, v{s+i}, v{s+i+1}")
max16(4, SA); max16(5, SB)
lab("L_setmax")
cm(f"v4 / v5 = per-lane max for tiles A / B; combine the two half-waves, C = -(max + {opt['shift']})")
e("v_mov_b32 v6, v4")
e("v_mov_b32 v7, v5")
e(f"s_mov_b32 s{sIT}, 0")
e("s_nop 0")
e("v_permlane32_swap_b32 v4, v6")
e("v_permlane32_swap_b32 v5, v7")
e("v_max_f32 v4, v4, v6")
e("v_max_f32 v5, v5, v7")
for i in range(16): e(f"v_sub_f32 v{CA+i}, {hex(f2u(-float(opt['shift'])))}, v4")
e(f"v_sub_f32 v{CB}, {hex(f2u(-float(opt['shift'])))}, v5")
e("s_waitcnt lgkmcnt(0)")
e(f"v_mfma_f32_32x32x16_bf16 {vr(SA,16)}, {vr(K0,4)}, {vr(QA,4)}, {vr(CA,16)}")
for i in range(1, 16): e(f"v_mov_b32 v{CB+i}, v{CB}")
for i in range(8): e(f"v_mov_b32 v{SB+8+i}, 0")
def SM(o, a, b): e(f"v_smfmac_f32_32x32x32_bf16 {vr(o,16)}, {vr(a,4)}, {vr(b,8)}, v{vIDX}")
def QK(d, k, q, c): e(f"v_mfma_f32_32x32x16_bf16 {vr(d,16)}, {vr(k,4)}, {vr(q,4)}, {vr(c,16)}")
def EX(s, a, b):
    for i in range(a, b): e(f"v_exp_f32 v{s+i}, v{s+i}")
pad_end("L_padq", "L_padq_ret")
L.append(".p2align 6")
lab("L_att_loop")
for u in range(4):
    kc, kn = (K0, K1) if u % 2 == 0 else (K1, K0)
    vc, vp = (V0, V1) if u % 2 == 0 else (V1, V0)
    voffs = ((u + 1) % 4) * 2048 + 1024
    koffs = ((u + 2) % 4) * 2048
    p0, p1, p2 = (4, 7, 10) if opt['cluster'] else (2, 5, 10)
    EX(SA, 0, p0)
    SM(OB, vp + 4, SB + 8)
    e("s_waitcnt lgkmcnt(1)")
    EX(SA, p0, p1)
    QK(SB, kc, QB, CB)
    e(f"ds_read_b128 {vr(vp,4)}, v{vV} offset:{voffs}")
    EX(SA, p1, p2)
    SM(OA, vc, SA)
    e(f"ds_read_b128 {vr(vp+4,4)}, v{vV} offset:{voffs+512}")
    EX(SA, p2, 16)
    EX(SB, 0, p0)
    SM(OA, vc + 4, SA + 8)
    e("s_waitcnt lgkmcnt(2)")
    if u == 1:
        pass
    EX(SB, p0, p1)
    QK(SA, kn, QA, CA)
    e(f"ds_read_b128 {vr(kc,4)}, v{vK} offset:{koffs}")
    EX(SB, p1, p2)
    SM(OB, vc, SB)
    if u == 1:
        e(f"s_bitcmp1_b32 s{sBARN}, s{sIT}")
        e("s_cbranch_scc1 L_sync")
        lab("L_nobar")
        e(f"v_add_u32 v{vK}, 0x2000, v{vK}")
    if u == 2:
        e(f"v_add_u32 v{vV}, v{vINC}, v{vV}")
    if u == 3:
        e(f"s_add_u32 s{sIT}, s{sIT}, 1")
        e(f"s_cmp_lt_u32 s{sIT}, 16")
    if u == 0 and opt['cluster']: e("s_nop 0")
    EX(SB, p2, 16)
e("s_cbranch_scc1 L_att_loop")
pad_begin("L_padt")
e(f"s_mov_b32 s{sT0}, {hex(f2u(2.0**100) if not opt['force_fb'] else f2u(2.0**-30))}")
e(f"v_rcp_f32 v4, v{OA+8}")
SM(OB, V1 + 4, SB + 8)
e(f"ds_read_b32 v7, v{vSAME} offset:{C_SAME}")
e(f"ds_read_b64 v[8:9], v{vSAME} offset:{C_TAG}")
cm("run-time check of the stand-in: l*2^64 must be finite and <= 2^100, else redo with the true row max")
e(f"v_cmp_nle_f32_e64 vcc, v{OA+8}, s{sT0}")
for i in range(8): e(f"v_mul_f32 v{SA+i}, v4, v{OA+i}")
for i in range(4): e(f"v_cvt_pk_bf16_f32 v{SA+i}, v{SA+2*i}, v{SA+2*i+1}")
e(f"v_rcp_f32 v5, v{OB+8}")
e(f"v_cmp_nle_f32_e64 {sr(sX,2)}, v{OB+8}, s{sT0}")
e("s_waitcnt lgkmcnt(0)")
e(f"s_or_b64 vcc, vcc, {sr(sX,2)}")
e("s_cmp_eq_u64 vcc, 0")
e("s_cbranch_scc0 L_fallback")
lab("L_att_done")
stamp(6)
cm("plain stores only when every workgroup of this token block reported the same XCD; else write-through")
sSAME = 99
e(f"v_readfirstlane_b32 s{sSAME}, v7")
e(f"v_readfirstlane_b32 s{sNON}, v8")
e(f"v_readfirstlane_b32 s{sNON+1}, v9")
for i in range(8): e(f"v_mul_f32 v{OB+i}, v5, v{OB+i}")
for i in range(4): e(f"v_cvt_pk_bf16_f32 v{SA+4+i}, v{OB+2*i}, v{OB+2*i+1}")
e(f"s_cmp_eq_u32 s{sSAME}, 0")
e("s_cbranch_scc1 L_ost_wt")
e(f"buffer_store_dwordx4 {vr(SA,4)}, v2, {sr(R_WS,4)}, s{sOD} offen")
e(f"buffer_store_dwordx4 {vr(SA+4,4)}, v2, {sr(R_WS,4)}, s{sOD} offen offset:1024")
lab("L_ost_done")
e("s_barrier")
stamp(4)
e("s_waitcnt vmcnt(0)")
signal("L_sigO", C_O, 3, sOF, 4, plain_if=sSAME)
stamp(5)
cm("gather the O tile of this token block: wave w takes producers 2w, 2w+1 (first / second half)")
poll("L_pollO", 1, vPO, 8, [sPF])
stamp(11)
def odma(sc):
    for q in range(2):
        for th in range(2):
            e(f"s_mov_b32 m0, s{sOL}")
            e("s_nop 0")
            for i in range(4): e(f"buffer_load_dwordx4 v2, {sr(R_WS,4)}, s{sOS} offen offset:{1024*i} {sc}lds")
            if not (th == 1 and q == 1):
                op = "s_add_u32" if th == 0 else "s_sub_u32"
                d = 32768 if th == 0 else 32768 - 4096
                e(f"{op} s{sOL}, s{sOL}, {d}")
                e(f"{op} s{sOS}, s{sOS}, {d}")
odma("sc1 ")
pad_end("L_padt", "L_pado_0")
e("s_waitcnt vmcnt(8)")
stamp(12)
e("s_barrier")
e("s_waitcnt vmcnt(0)")
e("s_barrier")
stamp_dump()
e("s_endpgm")
lab("L_ost_wt")
e(f"buffer_store_dwordx4 {vr(SA,4)}, v2, {sr(R_WS,4)}, s{sOD} offen sc1")
e(f"buffer_store_dwordx4 {vr(SA+4,4)}, v2, {sr(R_WS,4)}, s{sOD} offen offset:1024 sc1")
e("s_branch L_ost_done")
lab("L_sync")
e(f"s_cmp_eq_u32 s{sIT}, 1")
e("s_cbranch_scc0 L_sync3")
lds_wait("L_wg1", C_G1, 256, 4)
e("s_branch L_nobar")
lab("L_sync3")
lds_wait("L_wkvl", C_KVL, 256, 4)
e("s_branch L_nobar")
lab("L_fallback")
e(f"s_cmp_eq_u32 s{sFB}, 0")
e("s_cbranch_scc0 L_att_done")
cm("fallback: exact row max over all 64 key tiles, then repeat the main loop")
e(f"s_mov_b32 s{sFB}, 1")
e(f"s_mov_b32 s{sBARN}, 0")
e(f"v_mov_b32 v4, 0xff800000")
e(f"v_mov_b32 v5, 0xff800000")
e(f"v_mov_b32 v{vK}, v2")
e(f"s_mov_b32 s{sIT}, 0")
lab("L_fb_loop")
e(f"ds_read_b128 {vr(K0,4)}, v{vK}")
e("s_waitcnt lgkmcnt(0)")
e(f"v_mfma_f32_32x32x16_bf16 {vr(SA,16)}, {vr(K0,4)}, {vr(QA,4)}, 0")
e(f"v_mfma_f32_32x32x16_bf16 {vr(SB,16)}, {vr(K0,4)}, {vr(QB,4)}, 0")
e(f"v_add_u32 v{vK}, 0x800, v{vK}")
nop(11)
max16(4, SA, 1); max16(5, SB, 1)
e(f"s_add_u32 s{sIT}, s{sIT}, 1")
e(f"s_cmp_lt_u32 s{sIT}, 64")
e("s_cbranch_scc1 L_fb_loop")
e(f"v_mov_b32 v{vK}, v2")
e(f"v_mov_b32 v{vV}, v{vV0}")
for i in range(16): e(f"v_mov_b32 v{OA+i}, 0")
for i in range(16): e(f"v_mov_b32 v{OB+i}, 0")
for i in range(4): e(f"v_mov_b32 v{V1+4+i}, 0")
e(f"ds_read_b128 {vr(K0,4)}, v{vK}")
e(f"ds_read_b128 {vr(K1,4)}, v{vK} offset:2048")
e(f"ds_read_b128 {vr(V0,4)}, v{vV} offset:1024")
e(f"ds_read_b128 {vr(V0+4,4)}, v{vV} offset:1536")
e("s_branch L_setmax")

lab("L_aux")
BUF = 16
BP = 144
FR = 176
ACC = 192
D1, D2 = 208, 224
if opt['prioX']: e(f"s_setprio {opt['prioX']}")
cm("critical loads: producer weight (wk for even hg, wv for odd), x rows 32*thp + 8a + i")
e(f"s_lshl_b32 s{sT0}, s{sTHP}, 5")
e(f"s_lshl_b32 s{sT1}, s{sA}, 3")
e(f"s_add_u32 s{sT0}, s{sT0}, s{sT1}")
e(f"s_mul_i32 s{sT1}, s{sT0}, {XROW}")
e(f"s_add_u32 s{sT1}, s{sT1}, {X_OFF}")
e(f"s_lshl_b32 s{sT2}, s{sTB}, 6")
e(f"s_add_u32 s{sT2}, s{sT2}, s{sT0}")
e(f"s_lshl_b32 s{sT2}, s{sT2}, 10")
e(f"s_lshl_b32 s{sT3}, s{sA}, 12")
e(f"s_mov_b32 s{R_W+2}, 16384")
e(f"s_mov_b32 s{R_W+3}, 0x20000")
e(f"s_mov_b32 m0, s{sT3}")
e(f"s_bitcmp1_b32 s{sHG}, 0")
e("s_waitcnt lgkmcnt(0)")
e(f"s_cselect_b32 s{R_W}, s{P_WV}, s{P_WK}")
e(f"s_cselect_b32 s{R_W+1}, s{P_WV+1}, s{P_WK+1}")
e(f"s_and_b32 s{R_W+1}, s{R_W+1}, 0xffff")
e(f"s_mov_b32 s{R_XA}, s{P_XA}")
e(f"s_and_b32 s{R_XA+1}, s{P_XA+1}, 0xffff")
srd(R_DBG, P_DBG, 256)
cm("workgroup 0, aux wave 3 publishes this launch's hand-off tag")
e(f"s_or_b32 s{sNON}, s{sNON}, 16")
e(f"s_and_b32 s{sNON}, s{sNON}, -16")
e(f"s_lshl_b32 s{sT0}, s2, 3")
e(f"s_add_u32 s{sT0}, s{sT0}, s{sW}")
e(f"s_cmp_eq_u32 s{sT0}, 7")
e("s_cbranch_scc0 L_notag")
e(f"v_mov_b32 v4, s{sNON}")
e(f"v_mov_b32 v5, s{sNON+1}")
e("s_mov_b64 exec, 1")
e(f"buffer_store_dwordx2 v[4:5], off, {sr(R_DBG,4)}, 0 sc1")
e("s_mov_b64 exec, -1")
lab("L_notag")
e(f"s_cmp_lt_u32 s{sHG}, 4")
e("s_cbranch_scc0 L_now")
for i in range(4): e(f"buffer_load_dwordx4 v2, {sr(R_W,4)}, s{sT3} offen offset:{1024*i} lds")
lab("L_now")
dma_run(8, 2, R_XA, sT2, sT1, 1024, XROW)
stamp(0)
srd(R_WS, P_WS, WS_SIZE)
if opt['dbgt']:
    e(f"s_cmp_lt_u32 s2, 8")
    e("s_cbranch_scc0 L_nodbg0")
    e(f"s_cmp_eq_u32 s{sW}, 6")
    e("s_cbranch_scc0 L_nodbg0")
    e(f"v_mov_b32 v4, s{sNON}")
    e(f"s_lshl_b32 s{sT0}, s2, 2")
    e(f"s_add_u32 s{sT0}, s{sT0}, 8")
    e("s_mov_b64 exec, 1")
    e(f"buffer_store_dword v4, off, {sr(R_DBG,4)}, s{sT0}")
    e("s_mov_b64 exec, -1")
    lab("L_nodbg0")
e("s_barrier                             ; B1")
KV0 = len(L)
e(f"v_mov_b32 v14, {MISC+C_CR}")
e(f"v_mov_b32 v15, 1")
cm("K / V projection: workgroups hg<4, aux waves 0,1 (16 tokens each)")
e(f"s_cmp_lt_u32 s{sHG}, 4")
e("s_cbranch_scc0 L_np")
e(f"s_cmp_lt_u32 s{sA}, 2")
e("s_cbranch_scc0 L_np")
e(f"v_and_b32 v3, 15, v{vL}")
e(f"v_lshrrev_b32 v4, 4, v{vL}           ; q")
e(f"s_lshl_b32 s{sT0}, s{sTHP}, 5")
e(f"s_lshl_b32 s{sT1}, s{sA}, 4")
e(f"s_add_u32 s{sT0}, s{sT0}, s{sT1}")
e(f"v_add_u32 v5, s{sT0}, v3")
e(f"v_mul_u32_u24 v5, {XROW}, v5")
e("v_lshl_add_u32 v5, v4, 4, v5")
e(f"v_add_u32 v5, {X_OFF}, v5")
e(f"v_bfe_u32 v6, v{vL}, 2, 2            ; r")
e("v_lshl_add_u32 v6, v4, 3, v6")
e("v_lshlrev_b32 v6, 5, v6")
e(f"v_and_b32 v7, 3, v{vL}               ; cc")
e(f"s_lshl_b32 s{sT2}, s{sTB}, 1")
e(f"s_add_u32 s{sT2}, s{sT2}, s{sTHP}")
sKF, sKD = 97, 96
e(f"s_lshl_b32 s{sT1}, s{sT2}, 1")
e(f"s_and_b32 s{sT0}, s{sHG}, 1")
e(f"s_add_u32 s{sT1}, s{sT1}, s{sT0}")
e(f"s_lshl_b32 s{sT1}, s{sT1}, 1")
e(f"s_add_u32 s{sT1}, s{sT1}, s{sA}")
e(f"s_lshl_b32 s{sT1}, s{sT1}, 7")
e(f"s_add_u32 s{sKF}, s{sT1}, {FL_KV}")
e(f"s_lshl_b32 s{sKD}, s{sT2}, 11")
e("v_and_b32 v9, 1, v4")
e("v_lshlrev_b32 v9, 3, v9")
e("v_lshl_add_u32 v9, v3, 4, v9          ; n*16 + (q&1)*8")
e("v_lshrrev_b32 v8, 1, v4")
e(f"s_mov_b32 s{sDRY}, {1 if opt['dry'] else 0}")
if opt['pre']:
    cm("touch the lines this wave will publish (tile and flag), so the write-through stores find them resident")
    e(f"v_and_b32 v12, 15, v{vL}")
    e("v_lshlrev_b32 v12, 7, v12")
    e(f"buffer_load_dword v201, v12, {sr(R_WS,4)}, s{sKD} offen sc1")
    e(f"buffer_load_dword v202, off, {sr(R_WS,4)}, s{sKF} sc1")
def kvchain(isV):
    for ks in range(16):
        b = BUF + 8*ks
        e(f"ds_read_b64_tr_b16 {vr(b,2)}, v6 offset:{ks*1024}")
        e(f"ds_read_b64_tr_b16 {vr(b+2,2)}, v6 offset:{ks*1024+128}")
        e(f"ds_read_b128 {vr(b+4,4)}, v5 offset:{ks*64}")
        if ks >= 3:
            k2 = ks - 3; b2 = BUF + 8*k2
            e("s_waitcnt lgkmcnt(9)")
            a, bb = (b2+4, b2) if isV else (b2, b2+4)
            e(f"v_mfma_f32_16x16x32_bf16 {vr(ACC,4)}, {vr(a,4)}, {vr(bb,4)}, {'0' if k2==0 else vr(ACC,4)}")
    for k2 in range(13, 16):
        b2 = BUF + 8*k2
        e(f"s_waitcnt lgkmcnt({3*(15-k2)})")
        a, bb = (b2+4, b2) if isV else (b2, b2+4)
        e(f"v_mfma_f32_16x16x32_bf16 {vr(ACC,4)}, {vr(a,4)}, {vr(bb,4)}, {vr(ACC,4)}")
def kv_wait(tagname):
    e(f"s_waitcnt vmcnt({2 if opt['pre'] else 0})")
    stamp(1)
    e("ds_add_u32 v14, v15")
    lds_wait(tagname + "_w", C_CR, 256, 10, sleep=1)
def kv_b1(tagname):
    if not opt['dry']: kv_wait(tagname)
    lab(tagname)
def kv_b2(tagname):
    if opt['dry']:
        e(f"s_cmp_eq_u32 s{sDRY}, 0")
        e(f"s_cbranch_scc1 {tagname}_go")
        e(f"s_mov_b32 s{sDRY}, 0")
        kv_wait(tagname)
        e(f"s_branch {tagname}")
        lab(tagname + "_go")
e(f"s_bitcmp1_b32 s{sHG}, 0")
e("s_cbranch_scc1 L_prodV")
cm("K: (q>>1)*512 + (16b+n)*16 + (q&1)*8")
e("v_lshl_add_u32 v6, v7, 3, v6")
e("v_lshl_add_u32 v8, v8, 9, v9")
e(f"s_lshl_b32 s{sT1}, s{sA}, 8")
e(f"s_add_u32 s{sKD}, s{sKD}, s{sT1}")
kv_b1("L_chK"); kvchain(False); kv_b2("L_chK")
nop(6 if opt['dry'] else 8)
e("s_branch L_prodS")
lab("L_prodV")
cm("V: 1024 + b*512 + (q>>1)*256 + n*16 + (q&1)*8")
e("v_lshl_add_u32 v8, v8, 8, v9")
e("v_and_b32 v9, 1, v7")
e("v_lshl_add_u32 v6, v9, 4, v6")
e("v_lshrrev_b32 v9, 1, v7")
e("v_lshl_add_u32 v6, v9, 3, v6")
e(f"s_lshl_b32 s{sT1}, s{sA}, 9")
e(f"s_add_u32 s{sKD}, s{sKD}, s{sT1}")
e(f"s_add_u32 s{sKD}, s{sKD}, 1024")
kv_b1("L_chV"); kvchain(True); kv_b2("L_chV")
e(f"s_mov_b32 s{sT0}, {hex(f2u(2.0**VSCALE))}")
nop(6 if opt['dry'] else 8)
for i in range(4): e(f"v_mul_f32 v{ACC+i}, s{sT0}, v{ACC+i}")
lab("L_prodS")
e(f"v_cvt_pk_bf16_f32 v10, v{ACC}, v{ACC+1}")
e(f"v_cvt_pk_bf16_f32 v11, v{ACC+2}, v{ACC+3}")
e(f"buffer_store_dwordx2 v[10:11], v8, {sr(R_WS,4)}, s{sKD} offen sc1")
stamp(14)
e("ds_add_u32 v14, v15 offset:%d             ; this wave is done with the weight region" % (C_KV - C_CR + 65536) if False else f"v_mov_b32 v13, {MISC+C_KV}")
e("ds_add_u32 v13, v15")
tag_from_lds("L_tagp", 4)
e(f"v_mov_b32 v6, s{sNON}")
e(f"v_mov_b32 v7, s{sNON+1}")
e("s_mov_b64 exec, 1")
e("s_waitcnt vmcnt(0)")
e(f"buffer_store_dwordx2 v[6:7], off, {sr(R_WS,4)}, s{sKF} sc1")
e("s_mov_b64 exec, -1")
stamp(15)
e(f"s_mov_b32 s{sRET}, 1")
e("s_branch L_tagged")
lab("L_np")
e("s_waitcnt vmcnt(0)")
stamp(1)
e("ds_add_u32 v14, v15")
if opt['codepf']:
    cm("aux wave 2 pulls this kernel's code towards L2 (reads only)")
    e(f"s_cmp_eq_u32 s{sA}, 2")
    e("s_cbranch_scc0 L_nopf")
    e(f"s_getpc_b64 {sr(sX,2)}")
    lab("L_pc")
    e(f"v_lshlrev_b32 v4, 7, v{vL}")
    e(f"s_sub_u32 s{sX}, s{sX}, L_pc-{NAME}_kernel")
    e(f"s_subb_u32 s{sX+1}, s{sX+1}, 0")
    e(f"v_mov_b32 v5, s{sX+1}")
    e(f"v_add_co_u32 v4, vcc, s{sX}, v4")
    e("s_nop 1")
    e("v_addc_co_u32 v5, vcc, 0, v5, vcc")
    e("CODEPF")
    lab("L_nopf")
e(f"s_cmp_eq_u32 s{sA}, 3")
e("s_cbranch_scc0 L_tagged0")
cm("aux wave 3 fetches this launch's hand-off tag (bounded spin) and posts it in LDS")
e(f"s_mov_b32 s{sSPIN}, {SPIN}")
lab("L_tag")
e(f"buffer_load_dwordx2 v[14:15], off, {sr(R_DBG,4)}, 0 sc1")
e(f"s_sub_u32 s{sSPIN}, s{sSPIN}, 1")
e(f"s_cmp_eq_u32 s{sSPIN}, 0")
e("s_cbranch_scc1 L_tag_done")
e("s_waitcnt vmcnt(0)")
e("v_cmp_eq_u32 vcc, 0, v14")
e("s_nop 0")
e("s_cmp_eq_u64 vcc, 0")
e("s_cbranch_scc0 L_tag")
lab("L_tag_done")
e("s_waitcnt vmcnt(0)")
e(f"v_mov_b32 v12, {MISC+C_TAG}")
e("ds_write_b64 v12, v[14:15]")
cm("report this workgroup's XCD id (tag | id)")
e(f"s_getreg_b32 s{sT2}, hwreg(HW_REG_XCC_ID, 0, 4)")
e(f"s_lshl_b32 s{sT1}, s2, 7")
e(f"s_add_u32 s{sT1}, s{sT1}, {FL_X}")
e(f"v_or_b32 v14, s{sT2}, v14")
e("s_mov_b64 exec, 1")
e(f"buffer_store_dwordx2 v[14:15], off, {sr(R_WS,4)}, s{sT1} sc1")
e("s_mov_b64 exec, -1")
import re
def ren(m):
    n = int(m.group(1)); return f"v{208+n}" if 3 <= n <= 15 else m.group(0)
def ren2(m):
    a, b = int(m.group(1)), int(m.group(2)); return f"v[{208+a}:{208+b}]" if 3 <= a <= 15 else m.group(0)
for k in range(KV0, len(L)):
    L[k] = re.sub(r"v\[(\d+):(\d+)\]", ren2, re.sub(r"\bv(\d+)\b", ren, L[k]))
e(f"s_mov_b32 s{sRET}, 0") if False else None
lab("L_tagged0")
e(f"s_mov_b32 s{sRET}, 0")
e("s_branch L_addr")
lab("L_tagged")
stamp(2)
tag_from_lds("L_tagx", 8)
cm("in a producer workgroup the weight region is reused only after both projection waves are done")
e(f"s_cmp_lt_u32 s{sHG}, 4")
e("s_cbranch_scc0 L_nowkv")
lds_wait("L_wkv", C_KV, 128, 8, sleep=1)
lab("L_nowkv")
cm("key tiles in rotated order (own XCD's tiles first); wave a covers tiles 8g + 2a, 8g + 2a + 1: flags 32g + 8a + (0..7)")
vCNT = 10
sKG, sKL, sKS, sKP = 97, 85, 88, 96
e(f"v_and_b32 v{ACC+2}, 7, v{vL}")
e(f"v_lshlrev_b32 v{ACC+2}, 7, v{ACC+2}")
e(f"s_lshl_b32 s{sKP}, s{sA}, 10")
e(f"s_add_u32 s{sKP}, s{sKP}, {FL_KV}")
e(f"s_lshl_b32 s{sT1}, s{sXCD}, 12")
e(f"s_add_u32 s{sT1}, s{sT1}, s{sKP}")
e(f"s_lshl_b32 s{sKL}, s{sA}, 12")
e(f"s_lshl_b32 s{sKG}, s{sXCD}, 14")
e("s_barrier                             ; B2")
stamp(16)
poll("L_pollK0", 1, ACC+2, 8, [sT1])
stamp(3)
def kvdma(G):
    e(f"s_add_u32 m0, s{sKL}, {16384*G}")
    e(f"s_add_u32 s{sKS}, s{sKG}, s{sKL}")
    for i in range(4): e(f"buffer_load_dwordx4 v2, {sr(R_WS,4)}, s{sKS} offen offset:{1024*i} sc1 lds")
    if G < 7:
        e(f"s_add_u32 s{sKG}, s{sKG}, 16384")
        e(f"s_and_b32 s{sKG}, s{sKG}, 0x1ffff")
kvdma(0)
e(f"s_cmp_eq_u32 s{sRET}, 1")
e("s_cbranch_scc0 L_addr_2")
lab("L_addr")
srd(R_SRE, P_SRE, 8388608)
srd(R_SIM, P_SIM, 8388608)
srd(R_XB, P_XB, 2097152)
srd(R_WO, P_WO, 524288)
srd(R_OUT, P_OUT, 4194304)
sT1S, sEB, sTT, sS2, sCB = 98, 99, 100, 101, 79
R_HRE, R_HIM = R_XA, R_W
e(f"s_and_b32 s{sT0}, s{sJ}, 3")
e(f"s_lshl_b32 s{sT1S}, s{sXCD}, 2")
e(f"s_add_u32 s{sT1S}, s{sT1S}, s{sT0}       ; t1s")
e(f"s_lshr_b32 s{sT0}, s{sJ}, 2")
e(f"s_lshl_b32 s{sT0}, s{sT0}, 1")
e(f"s_lshr_b32 s{sEB}, s{sA}, 1")
e(f"s_add_u32 s{sEB}, s{sEB}, s{sT0}         ; eb")
e(f"s_and_b32 s{sTT}, s{sA}, 1               ; tt")
e(f"s_and_b32 s{sT0}, s{sJ}, 7")
e(f"s_lshl_b32 s{sS2}, s{sXCD}, 3")
e(f"s_add_u32 s{sS2}, s{sS2}, s{sT0}         ; s2")
e(f"s_lshr_b32 s{sT0}, s{sJ}, 3")
e(f"s_lshl_b32 s{sCB}, s{sT0}, 2")
e(f"s_add_u32 s{sCB}, s{sCB}, s{sA}          ; cb")
srd(R_HRE, P_HRE, 524288)
srd(R_HIM, P_HIM, 524288)
e(f"v_and_b32 v3, 31, v{vL}                ; n")
e(f"v_lshrrev_b32 v4, 5, v{vL}             ; h")
e(f"s_lshl_b32 s{sT0}, s{sTT}, 5")
e(f"v_add_u32 v5, s{sT0}, v3")
e("v_lshlrev_b32 v5, 5, v5")
e(f"v_add_u32 v13, s{sT1S}, v5")
vXE, vXO, vWE, vWO_, vG, vRD = 240, 241, 242, 243, 244, 246
vSW, vDRE, vDIM = 250, 251, 252
vB2A, vB2O, vHA, vWOD, vWOT, vOF, vOUT, vPH, vPK, vF = 4, 3, 15, 14, 0, 5, 6, 7, 12, 13
cm("B1 load addresses (8 rows x 128 B per instruction, chunk swizzle on the source side)")
e(f"v_lshrrev_b32 v5, 3, v{vL}             ; r")
e("v_and_b32 v6, 3, v5")
e("v_lshrrev_b32 v7, 2, v5")
e("v_lshl_add_u32 v6, v7, 3, v6            ; 8*(r>>2) + (r&3)")
e("v_lshrrev_b32 v7, 1, v5")
e(f"v_and_b32 v8, 7, v{vL}")
e("v_xor_b32 v7, v7, v8")
e("v_lshlrev_b32 v7, 4, v7")
e("v_xor_b32 v8, 64, v7")
e(f"v_lshl_add_u32 v{vXE}, v6, 16, v7")
e(f"v_lshl_add_u32 v{vXO}, v6, 16, v8")
e(f"v_lshl_add_u32 v{vWE}, v6, 10, v7")
e(f"v_lshl_add_u32 v{vWO_}, v6, 10, v8")
cm("instruction 2 of W (im rows e = 16cb + {0..3, 8..11}); for cb = 0 row e = 0 is replaced by cos row 256")
e(f"s_lshl_b32 s{sT0}, s{sCB}, 14")
e(f"v_add_u32 v9, s{sT0}, v{vWE}")
e("v_cmp_gt_u32 vcc, 0x80, v9")
e(f"v_mov_b32 v{vG}, s{P_HIM}")
e(f"v_mov_b32 v{vG+1}, s{P_HIM+1}")
e(f"v_mov_b32 v10, s{P_HRE}")
e(f"v_mov_b32 v11, s{P_HRE+1}")
e(f"v_cndmask_b32 v{vG}, v{vG}, v10, vcc")
e(f"v_cndmask_b32 v{vG+1}, v{vG+1}, v11, vcc")
e("v_add_u32 v10, 0x40000, v9")
e("v_cndmask_b32 v9, v9, v10, vcc")
e(f"v_add_co_u32 v{vG}, vcc, v{vG}, v9")
e("s_nop 1")
e(f"v_addc_co_u32 v{vG+1}, vcc, 0, v{vG+1}, vcc")
cm("staging read addresses: row m, chunk (2s+h) ^ ((m>>1)&7)")
e(f"s_lshl_b32 s{sT0}, s{sA}, 12")
e(f"s_add_u32 s{sT0}, s{sT0}, {STG}")
e("v_bfe_u32 v5, v3, 1, 3")
e("v_xor_b32 v5, v5, v4")
e("v_lshlrev_b32 v5, 4, v5")
e("v_lshl_add_u32 v5, v3, 7, v5")
e(f"v_add_u32 v{vRD}, s{sT0}, v5")
for s_ in range(1, 4): e(f"v_xor_b32 v{vRD+s_}, {32*s_}, v{vRD}")
e(f"v_add_u32 v{vSW}, s{sT0}, v2")
cm("H store address: t1*64*HROW + 8h*4")
e(f"v_mul_u32_u24 v8, {64*HROW}, v3")
e(f"v_lshl_add_u32 v{vHA}, v4, 5, v8")
cm("wo: DMA source (16 rows x 64 B per load) and the transposing read from the staging area")
e(f"v_bfe_u32 v8, v{vL}, 2, 2")
e("v_lshl_add_u32 v8, v4, 3, v8            ; 8h + r")
e("v_lshlrev_b32 v8, 6, v8")
e(f"v_and_b32 v9, 1, v{vL}")
e("v_lshl_add_u32 v8, v9, 5, v8")
e(f"v_bfe_u32 v9, v{vL}, 4, 1")
e("v_lshl_add_u32 v8, v9, 4, v8")
e(f"v_bfe_u32 v9, v{vL}, 1, 1")
e("v_lshl_add_u32 v8, v9, 3, v8")
e(f"v_add_u32 v{vWOT}, s{sT0}, v8")
e(f"v_lshrrev_b32 v8, 2, v{vL}")
e(f"v_and_b32 v9, 3, v{vL}")
e("v_lshlrev_b32 v8, 10, v8")
e(f"v_lshl_add_u32 v{vWOD}, v9, 4, v8")
cm("output projection: out offset, O fragment address")
e(f"s_lshl_b32 s{sT3}, s{sTB}, 1")
e(f"s_and_b32 s{sT4}, s{sA}, 1")
e(f"s_add_u32 s{sT3}, s{sT3}, s{sT4}")
e(f"s_lshl_b32 s{sT3}, s{sT3}, 5")
e(f"v_add_u32 v8, s{sT3}, v3")
e("v_lshlrev_b32 v8, 11, v8")
e(f"v_lshl_add_u32 v{vOUT}, v4, 5, v8")
e(f"s_lshl_b32 s{sT3}, s{sT4}, 15")
e(f"v_add_u32 v{vOF}, s{sT3}, v2")
e(f"v_lshlrev_b32 v{vPH}, 7, v{vL}")
vPW = 253
e(f"v_lshlrev_b32 v{vPW}, 10, v{vL}")
cm("B2 A rows: e(m) = 32eb + col(m) (eb<8) or 512 - that; col(m) = 16*b2 + 4*(m>>3) + (m&3)")
e("v_and_b32 v8, 3, v3")
e("v_bfe_u32 v9, v3, 2, 1")
e("v_lshl_add_u32 v8, v9, 4, v8")
e("v_lshrrev_b32 v9, 3, v3")
e("v_lshl_add_u32 v8, v9, 2, v8")
e(f"s_lshl_b32 s{sT0}, s{sEB}, 5")
e(f"v_add_u32 v8, s{sT0}, v8")
e("v_sub_u32 v9, 0x200, v8")
e("v_sub_u32 v10, 0x800, v13")
e("v_and_b32 v10, 0x7ff, v10               ; (2048 - ts) & 2047")
e(f"s_cmp_lt_u32 s{sEB}, 8")
e("s_cselect_b64 vcc, 0, -1")
e("v_cndmask_b32 v8, v8, v9, vcc")
e("v_cndmask_b32 v11, v13, v10, vcc")
e("v_lshlrev_b32 v10, 12, v10")
e(f"v_lshl_add_u32 v{vDIM}, v4, 6, v10")
e("v_lshlrev_b32 v10, 12, v13")
e(f"v_lshl_add_u32 v{vDRE}, v4, 6, v10")
e("v_lshlrev_b32 v10, 18, v3")
e(f"v_lshl_add_u32 v{vF}, v4, 4, v10")
e(f"v_lshrrev_b32 v10, 3, v{vL}")
e("v_lshlrev_b32 v10, 5, v10")
e(f"v_and_b32 v9, 7, v{vL}")
e("v_add_u32 v10, v10, v9")
e(f"v_lshlrev_b32 v{vPK}, 7, v10             ; K/V flags 32g + (0..7)")
e("v_lshlrev_b32 v11, 11, v11")
e(f"v_lshl_add_u32 v{vB2O}, v4, 5, v11")
e(f"v_mul_u32_u24 v9, {32*HROW}, v4")
e(f"v_lshl_add_u32 v{vB2A}, v8, 2, v9")
e(f"s_cmp_eq_u32 s{sRET}, 0")
e(f"s_mov_b32 s{sRET}, 2")
e("s_cbranch_scc1 L_tagged")
lab("L_addr_2")
e(f"v_mov_b32 v{vCNT}, {MISC+C_G1}")
e(f"v_mov_b32 v{vCNT+1}, 1")
e("s_waitcnt vmcnt(0)")
stamp(18)
e("s_barrier")
poll("L_pollKV", 1, vPK, 8, [sKP], sleep=1)
stamp(4)
e("s_setprio 0")
LOW[0] = True
sXS, sWS_ = sT3, sT4
e(f"s_lshl_b32 s{sXS}, s{sS2}, 10")
e(f"s_lshl_b32 s{sWS_}, s{sCB}, 14")
e(f"s_add_u32 s{sT0}, s{sXS}, {4*65536}")
e(f"s_add_u32 s{sT1}, s{sXS}, {16*65536}")
e(f"s_add_u32 s{sT2}, s{sXS}, {20*65536}")
e(f"s_add_u32 s{sINC}, s{sWS_}, 4096")
def b1load(c):
    b = BUF + 32*(c % 4); o = 128*c
    e(f"buffer_load_dwordx4 {vr(b,4)}, v{vXE}, {sr(R_XB,4)}, s{sXS} offen offset:{o}")
    e(f"buffer_load_dwordx4 {vr(b+4,4)}, v{vXO}, {sr(R_XB,4)}, s{sT0} offen offset:{o}")
    e(f"buffer_load_dwordx4 {vr(b+8,4)}, v{vXE}, {sr(R_XB,4)}, s{sT1} offen offset:{o}")
    e(f"buffer_load_dwordx4 {vr(b+12,4)}, v{vXO}, {sr(R_XB,4)}, s{sT2} offen offset:{o}")
    e(f"buffer_load_dwordx4 {vr(b+16,4)}, v{vWE}, {sr(R_HRE,4)}, s{sWS_} offen offset:{o}")
    e(f"buffer_load_dwordx4 {vr(b+20,4)}, v{vWO_}, {sr(R_HRE,4)}, s{sINC} offen offset:{o}")
    e(f"global_load_dwordx4 {vr(b+24,4)}, {vr(vG,2)}, off offset:{o}")
    e(f"buffer_load_dwordx4 {vr(b+28,4)}, v{vWO_}, {sr(R_HIM,4)}, s{sINC} offen offset:{o}")
for G in range(1, 3): kvdma(G)
e("s_waitcnt vmcnt(4)")
e(f"ds_add_u32 v{vCNT}, v{vCNT+1}")
for G in range(3, 8): kvdma(G)
b1load(0); b1load(1)
stamp(17)
e("s_waitcnt vmcnt(16)")
e(f"ds_add_u32 v{vCNT}, v{vCNT+1} offset:4")
stamp(21)
if opt["nob"]:
    e("s_branch L_tailprep")
XF, WF = D1, D2
RAW = BP
issued = 16
def order(c):
    extra = 4 if c >= 4 else 0
    return 8*c + 4 + extra, 8*c + 8 + extra
def b1mfma(c):
    for s_ in range(4):
        e(f"v_mfma_f32_32x32x16_bf16 {vr(ACC,16)}, {vr(XF+4*s_,4)}, {vr(WF+4*s_,4)}, {'0' if c==0 and s_==0 else vr(ACC,16)}")
for c in range(8):
    b = BUF + 32*(c % 4)
    px, pw = order(c)
    e(f"s_waitcnt vmcnt({issued - px}) lgkmcnt(0)")
    for i in range(4): e(f"ds_write_b128 v{vSW}, {vr(b+4*i,4)} offset:{1024*i}")
    if c == 0:
        b1load(2); issued += 8
    else: b1mfma(c - 1)
    e("s_waitcnt lgkmcnt(0)")
    for s_ in range(4): e(f"ds_read_b128 {vr(XF+4*s_,4)}, v{vRD+s_}")
    e(f"s_waitcnt vmcnt({issued - pw}) lgkmcnt(0)")
    for i in range(4): e(f"ds_write_b128 v{vSW}, {vr(b+16+4*i,4)} offset:{1024*i}")
    if c == 0:
        b1load(3); issued += 8
        for kb in range(2): e(f"buffer_load_dwordx4 {vr(FR+4*kb,4)}, v{vF}, {sr(R_SRE,4)}, 0 offen offset:{32*kb}")
        for kb in range(2): e(f"buffer_load_dwordx4 {vr(FR+8+4*kb,4)}, v{vF}, {sr(R_SIM,4)}, 0 offen offset:{32*kb}")
        issued += 4
    e("s_waitcnt lgkmcnt(0)")
    for s_ in range(4): e(f"ds_read_b128 {vr(WF+4*s_,4)}, v{vRD+s_}")
    if c + 4 < 8:
        b1load(c + 4); issued += 8
    if c == 4:
        cm("rows of the sequence DFT matrices for B2")
        for i in range(4): e(f"buffer_load_dwordx4 {vr(RAW+4*i,4)}, v{vDRE}, {sr(R_SRE,4)}, 0 offen offset:{16*i}")
        for i in range(4): e(f"buffer_load_dwordx4 {vr(RAW+16+4*i,4)}, v{vDIM}, {sr(R_SIM,4)}, 0 offen offset:{16*i}")
        issued += 8
    if c == 5:
        cm("pull this wave's quarter of the wo slice towards L2 (one dword per 128-B line)")
        e(f"s_lshl_b32 s{sT0}, s{sA}, 17")
        e(f"s_lshl_b32 s{sT1}, s{sHG}, 7")
        e(f"s_add_u32 s{sT0}, s{sT0}, s{sT1}")
        e(f"s_add_u32 s{sT1}, s{sT0}, 65536")
        e(f"buffer_load_dword v{vPK}, v{vPW}, {sr(R_WO,4)}, s{sT0} offen")
        e(f"buffer_load_dword v{vF}, v{vPW}, {sr(R_WO,4)}, s{sT1} offen")
        issued += 2
e("s_waitcnt lgkmcnt(0)")
b1mfma(7)
stamp(22)
e(f"s_mul_i32 s{sT0}, s{sS2}, {HROW}")
e(f"s_lshl_b32 s{sT1}, s{sCB}, 6")
e(f"s_add_u32 s{sT0}, s{sT0}, s{sT1}")
e(f"s_add_u32 s{sT0}, s{sT0}, {WS_H}")
nop(7)
vZ = BUF
def boost(on):
    e(f"s_setprio {2 if on else 0}"); LOW[0] = not on
boost(1)
for i in range(8): e(f"v_cvt_pk_bf16_f32 v{vZ+i}, v{ACC+2*i}, v{ACC+2*i+1}")
boost(0)
nop(1)
e(f"v_mfma_f32_32x32x16_bf16 {vr(D1,16)}, {vr(vZ,4)}, {vr(FR,4)}, 0")
e(f"v_mfma_f32_32x32x16_bf16 {vr(D2,16)}, {vr(vZ,4)}, {vr(FR+8,4)}, 0")
e(f"v_mfma_f32_32x32x16_bf16 {vr(D1,16)}, {vr(vZ+4,4)}, {vr(FR+4,4)}, {vr(D1,16)}")
e(f"v_mfma_f32_32x32x16_bf16 {vr(D2,16)}, {vr(vZ+4,4)}, {vr(FR+12,4)}, {vr(D2,16)}")
nop(11)
boost(1)
for r in range(8):
    e(f"v_sub_f32 v{ACC+r}, v{D1+r}, v{D2+8+r}")
    e(f"v_add_f32 v{ACC+8+r}, v{D2+r}, v{D1+8+r}")
e(f"s_cmp_eq_u32 s{sCB}, 0")
e("s_cbranch_scc0 L_nospecial")
cm("columns e = 0 and e = 256 (both purely real rows): lanes 0..31, register 0")
e("s_mov_b32 exec_hi, 0")
e(f"v_mov_b32 v{ACC}, v{D1}")
e(f"v_mov_b32 v{ACC+8}, v{D2}")
e(f"v_cvt_pk_bf16_f32 v8, v{D1+8}, v{D2+8}")
e(f"buffer_store_dword v8, v{vHA}, {sr(R_WS,4)}, s{sT0} offen offset:1024 sc1")
e("s_mov_b64 exec, -1")
lab("L_nospecial")
for r in range(8): e(f"v_cvt_pk_bf16_f32 v{vZ+r}, v{ACC+r}, v{ACC+8+r}")
e(f"buffer_store_dwordx4 {vr(vZ,4)}, v{vHA}, {sr(R_WS,4)}, s{sT0} offen sc1")
e(f"buffer_store_dwordx4 {vr(vZ+4,4)}, v{vHA}, {sr(R_WS,4)}, s{sT0} offen offset:16 sc1")
e(f"s_lshl_b32 s{sT1}, s2, 7")
e(f"s_add_u32 s{sT1}, s{sT1}, {FL_H}")
e("s_waitcnt vmcnt(0)")
signal("L_sigH", C_H, 3, sT1, 8)
stamp(5)
e(f"s_mov_b32 s{sT0}, 0x05040100")
e(f"s_mov_b32 s{sT3}, 0x07060302")
def bploc(o): return FR + o if o < 16 else (RAW + o - 16 if o < 24 else RAW + 16 + o - 24)
for i in range(16):
    e(f"v_perm_b32 v{bploc(2*i)}, v{RAW+16+i}, v{RAW+i}, s{sT0}")
    e(f"v_perm_b32 v{bploc(2*i+1)}, v{RAW+16+i}, v{RAW+i}, s{sT3}")
lab("L_tailprep")
boost(0)
sWOS, sWOL = 97, 85
e(f"s_lshl_b32 s{sWOS}, s{sHG}, 7")
e(f"s_lshr_b32 s{sT1}, s{sA}, 1")
e(f"s_lshl_b32 s{sT1}, s{sT1}, 6")
e(f"s_add_u32 s{sWOS}, s{sWOS}, s{sT1}")
e(f"s_lshl_b32 s{sWOL}, s{sA}, 12")
e(f"s_add_u32 s{sWOL}, s{sWOL}, {STG}")
def wo_round(R):
    for i in range(4):
        e(f"s_add_u32 m0, s{sWOL}, {1024*i}")
        e(f"s_add_u32 s{sT1}, s{sWOS}, {65536*R + 16384*i}")
        e(f"buffer_load_dwordx4 v{vWOD}, {sr(R_WO,4)}, s{sT1} offen lds")
    e("s_waitcnt vmcnt(0)")
    for i in range(4):
        e(f"ds_read_b64_tr_b16 {vr(BUF+16*R+4*i,2)}, v{vWOT} offset:{1024*i}")
        e(f"ds_read_b64_tr_b16 {vr(BUF+16*R+4*i+2,2)}, v{vWOT} offset:{1024*i+256}")
    e("s_waitcnt lgkmcnt(0)")
for R in range(opt['wo1']): wo_round(R)
stamp(6)
boost(1)
if opt['pre']:
    cm("aux wave 2 touches the O lines this workgroup will write and the 8 flags of its token block")
    e(f"s_cmp_eq_u32 s{sA}, 2")
    e("s_cbranch_scc0 L_nopre")
    e(f"v_lshrrev_b32 v8, 5, v{vL}")
    e(f"v_and_b32 v9, 31, v{vL}")
    e("v_lshlrev_b32 v9, 7, v9")
    e("v_lshl_add_u32 v8, v8, 15, v9")
    e(f"s_lshl_b32 s{sT0}, s{sTB}, 16")
    e(f"s_lshl_b32 s{sT1}, s{sHG}, 12")
    e(f"s_add_u32 s{sT0}, s{sT0}, s{sT1}")
    e(f"s_add_u32 s{sT0}, s{sT0}, {WS_O}")
    e(f"buffer_load_dword v10, v8, {sr(R_WS,4)}, s{sT0} offen sc1")
    e(f"v_and_b32 v9, 0x380, v{vPH}")
    e(f"s_lshl_b32 s{sT0}, s{sTB}, 10")
    e(f"s_add_u32 s{sT0}, s{sT0}, {FL_O}")
    e(f"buffer_load_dword v11, v9, {sr(R_WS,4)}, s{sT0} offen sc1")
    e("s_waitcnt vmcnt(0)")
    lab("L_nopre")
cm("aux wave 1: XCD ids of the 8 workgroups of this token block: ids 32*hg + (id & 31)")
e(f"s_cmp_eq_u32 s{sA}, 1")
e("s_cbranch_scc0 L_nosame")
e(f"v_and_b32 v8, 7, v{vL}")
e("v_lshlrev_b32 v8, 12, v8")
e(f"s_and_b32 s{sT0}, s2, 31")
e(f"s_lshl_b32 s{sT0}, s{sT0}, 7")
e(f"s_add_u32 s{sT0}, s{sT0}, {FL_X}")
e(f"buffer_load_dwordx2 v[10:11], v8, {sr(R_WS,4)}, s{sT0} offen sc1")
e(f"s_getreg_b32 s{sX}, hwreg(HW_REG_XCC_ID, 0, 4)")
e(f"s_or_b32 s{sX}, s{sX}, s{sNON}")
e(f"s_mov_b32 s{sX+1}, s{sNON+1}")
e(f"v_mov_b32 v9, {MISC+C_SAME}")
e("s_waitcnt vmcnt(0)")
e(f"v_cmp_ne_u64 vcc, {sr(sX,2)}, v[10:11]")
e("s_nop 0")
e("s_cmp_eq_u64 vcc, 0")
e(f"s_cselect_b32 s{sT0}, {1 if opt['fast'] else 0}, 0")
e(f"v_mov_b32 v11, s{sT0}")
e("ds_write_b32 v9, v11")
lab("L_nosame")
if opt['nob']: e("s_branch L_b2done")
cm("B2: wait for the H rows it reads: column groups ebg (direct) or 7-ebg and (8-ebg)&3 (mirrored)")
e(f"s_cmp_eq_u32 s{sA}, 0")
e("s_cbranch_scc0 L_hwait")
e(f"s_lshr_b32 s{sT2}, s{sJ}, 2              ; ebg")
e(f"s_sub_u32 s{sT0}, 7, s{sT2}")
e(f"s_sub_u32 s{sT1}, 8, s{sT2}")
e(f"s_and_b32 s{sT1}, s{sT1}, 3")
e(f"s_cmp_lt_u32 s{sT2}, 4")
e(f"s_cselect_b32 s{sT0}, s{sT2}, s{sT0}")
e(f"s_cselect_b32 s{sT1}, s{sT2}, s{sT1}")
e(f"s_lshl_b32 s{sT0}, s{sT0}, 13")
e(f"s_lshl_b32 s{sT1}, s{sT1}, 13")
e(f"s_add_u32 s{sT0}, s{sT0}, {FL_H}")
e(f"s_add_u32 s{sT1}, s{sT1}, {FL_H}")
poll("L_pollH", 2, vPH, 8, [sT0, sT1], sleep=8)
e(f"v_mov_b32 v10, {MISC+C_HOK}")
e("v_mov_b32 v11, 1")
e("ds_write_b32 v10, v11")
e("s_branch L_hok")
lab("L_hwait")
lds_wait("L_hw", C_HOK, 1, 10, sleep=8)
lab("L_hok")
boost(0)
stamp(7)
e(f"s_mul_i32 s{sT0}, s{sT1S}, {64*HROW}")
e(f"s_add_u32 s{sT0}, s{sT0}, {WS_H}")
AF = 208
for kb in range(8):
    for w in range(4): e(f"buffer_load_dword v{AF+4*kb+w}, v{vB2A}, {sr(R_WS,4)}, s{sT0} offen offset:{w*HROW} sc1")
    if kb < 7: e(f"s_add_u32 s{sT0}, s{sT0}, {4*HROW}")
e(f"s_lshl_b32 s{sT0}, s{sEB}, 6")
e(f"s_add_u32 s{sT0}, s{sT0}, 1024")
for kb in range(8):
    e(f"s_waitcnt vmcnt({28-4*kb})")
    e(f"v_mfma_f32_32x32x16_bf16 {vr(ACC,16)}, {vr(AF+4*kb,4)}, {vr(bploc(4*kb),4)}, {'0' if kb==0 else vr(ACC,16)}")
nop(11)
boost(1)
for i in range(8): e(f"v_cvt_pk_bf16_f32 v{AF+i}, v{ACC+2*i}, v{ACC+2*i+1}")
e(f"buffer_store_dwordx4 {vr(AF,4)}, v{vB2O}, {sr(R_OUT,4)}, s{sT0} offen{OSC}")
e(f"buffer_store_dwordx4 {vr(AF+4,4)}, v{vB2O}, {sr(R_OUT,4)}, s{sT0} offen offset:16{OSC}")
lab("L_b2done")
boost(0)
stamp(8)
for R in range(opt['wo1'], 8): wo_round(R)
e(f"s_mov_b32 s{sT0}, s{sWOS}")
stamp(10)
warm("L_padt", "L_pado_ret")
cm("tail: the attention waves bring the O tile -> LDS 0..")
e("s_barrier                             ; B7")
LOW[0] = False
stamp(9)
e("s_barrier                             ; B8a")
pad_begin("L_pado")
OF = 144
korder = [h for h in range(32) if h % 8 < 4] + [h for h in range(32) if h % 8 >= 4]
def ofrag(n): e(f"ds_read_b128 {vr(OF+4*(n%8),4)}, v{vOF} offset:{1024*korder[n]}")
for n in range(7): ofrag(n)
for n in range(32):
    if n + 7 == 16:
        e("s_barrier                             ; B8b")
    if n + 7 < 32:
        ofrag(n + 7)
        e("s_waitcnt lgkmcnt(7)")
    else:
        e(f"s_waitcnt lgkmcnt({31-n})")
    e(f"v_mfma_f32_32x32x16_bf16 {vr(ACC,16)}, {vr(BUF+4*korder[n],4)}, {vr(OF+4*(n%8),4)}, {'0' if n==0 else vr(ACC,16)}")
nop(12)
for i in range(8): e(f"v_cvt_pk_bf16_f32 v{D1+i}, v{ACC+2*i}, v{ACC+2*i+1}")
e(f"buffer_store_dwordx4 {vr(D1,4)}, v{vOUT}, {sr(R_OUT,4)}, s{sT0} offen{OSC}")
e(f"buffer_store_dwordx4 {vr(D1+4,4)}, v{vOUT}, {sr(R_OUT,4)}, s{sT0} offen offset:16{OSC}")
pad_end("L_pado", "L_pado_ret")
if opt['dbgt']:
    e(f"s_cmp_lt_u32 s2, 6")
    e("s_cbranch_scc0 L_end")
    e(f"s_cmp_eq_u32 s{sW}, 4")
    e("s_cbranch_scc0 L_end")
    e("s_waitcnt vmcnt(0)")
    e(f"s_memrealtime {sr(sST,2)}")
    e("s_waitcnt lgkmcnt(0)")
    e(f"v_mov_b32 v4, s{sST}")
    e(f"s_lshl_b32 s{sT0}, s2, 2")
    e(f"s_add_u32 s{sT0}, s{sT0}, 40")
    e("s_mov_b64 exec, 1")
    e(f"buffer_store_dword v4, off, {sr(R_DBG,4)}, s{sT0}")
if opt['endat']:
    lab("L_endat")
    e(f"s_memrealtime {sr(sX,2)}")
    e("s_waitcnt lgkmcnt(0)")
    e(f"s_sub_u32 s{sX}, s{sX}, s30")
    e(f"s_cmp_lt_u32 s{sX}, {opt['endat']}")
    e("s_cbranch_scc1 L_endat")
stamp(12)
if opt['stamps']: e("s_waitcnt vmcnt(0)")
stamp(13)
stamp_dump()
lab("L_end")
e("s_endpgm")
lab("L_codeend")
L.append(f""".section .rodata,"a"
.p2align 6
.amdhsa_kernel {NAME}_kernel
  .amdhsa_next_free_vgpr 256
  .amdhsa_next_free_sgpr 102
  .amdhsa_accum_offset 256
  .amdhsa_group_segment_fixed_size 0
  .amdhsa_kernarg_size 104
  .amdhsa_user_sgpr_count 2
  .amdhsa_user_sgpr_kernarg_segment_ptr 1
  .amdhsa_system_sgpr_workgroup_id_x 1
.end_amdhsa_kernel""")

def finish(lines, ncode):
    out = []
    for l in lines:
        if l.strip() == "CODEPF":
            for i in range(ncode // 8192):
                out.append(f"    global_load_dword v200, v[212:213], off")
                out.append(f"    v_add_co_u32 v212, vcc, 0x2000, v212")
                out.append(f"    s_nop 1")
                out.append(f"    v_addc_co_u32 v213, vcc, 0, v213, vcc")
            rem = (ncode % 8192) // 128
            if rem:
                out.append(f"    v_cmp_gt_u32 vcc, {rem}, v{vL}")
                out.append(f"    s_nop 0")
                out.append(f"    s_and_saveexec_b64 {sr(sX,2)}, vcc")
                out.append(f"    global_load_dword v200, v[212:213], off")
                out.append(f"    s_mov_b64 exec, -1")
        else: out.append(l)
    return "\n".join(out) + "\n"
import subprocess, os, hazcheck
ncode = 16384
for _ in range(3):
    txt = finish(L, ncode)
    open("_g.s", "w").write(txt)
    r = subprocess.run(["clang", "-x", "assembler", "-target", "amdgcn-amd-amdhsa", "-mcpu=gfx950", "-c", "_g.s", "-o", "_g.o"], capture_output=True, text=True)
    if r.returncode: print(r.stderr[:3000]); sys.exit(1)
    sz = subprocess.run(["llvm-objdump", "-h", "_g.o"], capture_output=True, text=True).stdout
    n = [int(x.split()[2], 16) for x in sz.splitlines() if " .text " in x][0]
    if n // 128 * 128 == ncode: break
    ncode = n // 128 * 128
open(sys.argv[1], "w").write(txt)
print(hazcheck.check(txt), "hazards; code bytes", n)
```

```python
import sys, struct
NAME = "concat_heads__grouped_kv_mqa__spectral_fnet__prompt"
opt = dict(stamps=0, prioA=1, prioX=2, boost=1, force_fb=0, dbgt=0, dry=1, codepf=1, shift=98, outsc1=0, cluster=1, fast=1, nob=0, l2pf=0, wo1=4, hold=1, pre=1, pads=1, dxcc=-1, dus=300, endat=0, omode=1)
for a in sys.argv[2:]:
    k, v = a.split('='); opt[k] = int(v)

L = []
def e(s=""): L.append("    " + s)
def lab(s): L.append(s + ":")
def cm(s): L.append("    ; " + s)
def vr(a, n): return f"v[{a}:{a+n-1}]" if n > 1 else f"v{a}"
def sr(a, n): return f"s[{a}:{a+n-1}]" if n > 1 else f"s{a}"
def nop(n):
    while n > 0:
        k = min(n, 16); e(f"s_nop {k-1}"); n -= k
def f2u(x): return struct.unpack('<I', struct.pack('<f', x))[0]
OSC = " sc1" if opt['outsc1'] else ""

W_OFF = 0
X_OFF, XROW = 16384, 1040
WQ_OFF = 82944
ONES_OFF = 148480
MISC = 156672
STG = 131072
LDS_BYTES = 156800
C_KV, C_H, C_O, C_TAG, C_HOK, C_SAME, C_CR, C_QA, C_QB, C_G1, C_KVL = 0, 4, 8, 16, 24, 28, 32, 36, 40, 44, 48
WS_KV, WS_O, WS_H, WS_FL = 0, 0x40000, 0x240000, 0x480000
FL_KV, FL_H, FL_O, FL_X = WS_FL, WS_FL + 0x8000, WS_FL + 0x10000, WS_FL + 0x18000
WS_STAMP = 0x4A0000
WS_SIZE = 0x540000
HROW = 1056
SPIN = 400000
VSCALE = 64
P_XA, P_WQ, P_WK, P_WV, P_WO, P_XB, P_SRE, P_SIM = 4, 6, 8, 10, 12, 14, 16, 18
P_HRE, P_HIM, P_OUT, P_DBG, P_WS = 20, 22, 24, 26, 28
R_XA, R_WQ, R_W, R_WS, R_WO, R_XB, R_SRE, R_SIM, R_OUT, R_DBG = 32, 36, 40, 44, 48, 52, 56, 60, 64, 68
sW, sXCD, sJ, sTB, sHG, sTHP, sA = 72, 73, 74, 75, 76, 77, 78
sT0, sT1, sT2, sT3, sT4 = 80, 81, 82, 83, 84
sDRY = 85
sNON = 86
sIT, sINC, sFB, sSPIN = 88, 89, 90, 91
sX = 92
sST = 94
sBARN = 96
sRET = 90

def srd(r, p, size):
    e(f"s_mov_b32 s{r}, s{p}")
    e(f"s_and_b32 s{r+1}, s{p+1}, 0xffff")
    e(f"s_mov_b32 s{r+2}, {hex(size)}")
    e(f"s_mov_b32 s{r+3}, 0x20000")

LOW = [False]
vL = 1
def stamp(idx):
    if not opt['stamps']: return
    e(f"s_memrealtime {sr(sST,2)}")
    e(f"s_memtime {sr(sX,2)}")
    e("s_waitcnt lgkmcnt(0)")
    if LOW[0]: e("s_setprio 2")
    e(f"v_writelane_b32 v254, s{sST}, {idx}")
    e(f"v_writelane_b32 v255, s{sX}, {idx}")
    if LOW[0]: e("s_setprio 0")
def stamp_dump():
    if not opt['stamps']: return
    e(f"s_lshl_b32 s{sST}, s2, 3")
    e(f"s_add_u32 s{sST}, s{sST}, s{sW}")
    e(f"s_lshl_b32 s{sST}, s{sST}, 8")
    e(f"s_add_u32 s{sST}, s{sST}, {WS_STAMP}")
    e(f"v_lshlrev_b32 v253, 3, v{vL}")
    e("s_mov_b32 exec_hi, 0")
    e(f"buffer_store_dwordx2 v[254:255], v253, {sr(R_WS,4)}, s{sST} offen")

PADS = {}
def pad_begin(name): PADS[name] = len(L)
def isize(l):
    t = l.strip()
    if not t or t.startswith((';', '.')) or t.endswith(':'): return 0
    t = t.split(';')[0]
    mn = t.split()[0]
    if mn.startswith(('buffer_', 'global_', 'ds_', 'v_mfma', 'v_smfmac', 's_load', 's_mem')): return 8
    if mn.startswith('v_') and (mn.endswith('_e64') or mn in ('v_lshl_add_u32', 'v_bfe_u32', 'v_perm_b32', 'v_max3_f32', 'v_cvt_pk_bf16_f32', 'v_writelane_b32', 'v_mul_u32_u24', 'v_cmp_ne_u64')): return 8
    import re as _r
    for o in _r.findall(r'(?<![\w\[:])(-?0x[0-9a-f]+|-?\d+)(?![\w\]:])', (t.split(None, 1) + [''])[1]):
        v = int(o, 0)
        if not mn.startswith(('s_waitcnt', 's_nop', 's_sleep', 's_setprio')) and not -16 <= v <= 64: return 8
    return 4
def pad_end(name, ret):
    a = PADS[name]
    if not opt['pads']:
        L.insert(a, f"{name}_0:"); L.insert(a + 1, f"    s_cbranch_execz {ret}"); return
    body = L[a:]; del L[a:]
    n = 0; acc = 0
    L.append(f"{name}_0:"); L.append(f"    s_cbranch_execz {name}_1")
    for l in body:
        z = isize(l)
        prev = L[-1].strip()
        if acc + z > 56 and not prev.startswith(('s_mov_b32 m0', 's_add_u32 m0')):
            n += 1; L.append(f"{name}_{n}:"); L.append(f"    s_cbranch_execz {name}_{n+1}"); acc = 0
        L.append(l); acc += z
    n += 1
    L.append(f"{name}_{n}:"); L.append(f"    s_cbranch_execz {ret}")
def warm(name, ret):
    e("s_mov_b64 exec, 0")
    e(f"s_branch {name}_0")
    lab(ret)
    e("s_mov_b64 exec, -1")

def dma(voff, srdr, soff, ldsaddr_s, extra=""):
    e(f"s_mov_b32 m0, s{ldsaddr_s}")
    e("s_nop 0")
    e(f"buffer_load_dwordx4 v{voff}, {sr(srdr,4)}, s{soff} offen {extra}lds")
def dma_run(n, voff, srdr, soff, lds_s, dsrc, dlds, extra=""):
    for i in range(n):
        e(f"s_mov_b32 m0, s{lds_s}")
        if i < n - 1: e(f"s_add_u32 s{lds_s}, s{lds_s}, {dlds}")
        else: e("s_nop 0")
        e(f"buffer_load_dwordx4 v{voff}, {sr(srdr,4)}, s{soff} offen {extra}lds")
        if i < n - 1: e(f"s_add_u32 s{soff}, s{soff}, {dsrc}")

def poll(name, nloads, voff, dst, soffs, sleep=0):
    e(f"s_mov_b32 s{sSPIN}, {SPIN}")
    lab(name)
    for i in range(nloads):
        e(f"buffer_load_dwordx2 {vr(dst+2*i,2)}, v{voff}, {sr(R_WS,4)}, s{soffs[i]} offen sc1")
    e(f"s_sub_u32 s{sSPIN}, s{sSPIN}, 1")
    e(f"s_cmp_eq_u32 s{sSPIN}, 0")
    e(f"s_cbranch_scc1 {name}_done")
    e("s_waitcnt vmcnt(0)")
    e(f"v_cmp_ne_u64 vcc, {sr(sNON,2)}, {vr(dst,2)}")
    for i in range(1, nloads):
        e(f"v_cmp_ne_u64 {sr(sX,2)}, {sr(sNON,2)}, {vr(dst+2*i,2)}")
        e("s_nop 0")
        e(f"s_or_b64 vcc, vcc, {sr(sX,2)}")
    e("s_nop 0")
    e("s_cmp_eq_u64 vcc, 0")
    if sleep:
        e(f"s_cbranch_scc1 {name}_done")
        e(f"s_sleep {sleep}")
        e(f"s_branch {name}")
    else:
        e(f"s_cbranch_scc0 {name}")
    lab(name + "_done")
    e("s_waitcnt vmcnt(0)")

def lds_wait(name, off, value, tmp, sleep=0):
    e(f"s_mov_b32 s{sSPIN}, {SPIN*8}")
    e(f"v_mov_b32 v{tmp}, {MISC + off}")
    lab(name)
    e(f"ds_read_b32 v{tmp+1}, v{tmp}")
    e(f"s_sub_u32 s{sSPIN}, s{sSPIN}, 1")
    e(f"s_cmp_eq_u32 s{sSPIN}, 0")
    e(f"s_cbranch_scc1 {name}_done")
    e("s_waitcnt lgkmcnt(0)")
    e(f"v_readfirstlane_b32 s{sT4}, v{tmp+1}")
    e("s_nop 0")
    e(f"s_cmp_ge_u32 s{sT4}, {value}")
    if sleep:
        e(f"s_cbranch_scc1 {name}_done")
        e(f"s_sleep {sleep}")
        e(f"s_branch {name}")
    else:
        e(f"s_cbranch_scc0 {name}")
    lab(name + "_done")
    e("s_waitcnt lgkmcnt(0)")
def lds_add(off, tmp):
    e(f"v_mov_b32 v{tmp}, {MISC + off}")
    e(f"v_mov_b32 v{tmp+1}, 1")
    e("s_mov_b64 exec, 1")
    e(f"ds_add_u32 v{tmp}, v{tmp+1}")
    e("s_mov_b64 exec, -1")
def tag_from_lds(name, tmp):
    e(f"s_mov_b32 s{sSPIN}, {SPIN*8}")
    e(f"v_mov_b32 v{tmp}, {MISC+C_TAG}")
    lab(name)
    e(f"ds_read_b64 {vr(tmp+2,2)}, v{tmp}")
    e(f"s_sub_u32 s{sSPIN}, s{sSPIN}, 1")
    e(f"s_cmp_eq_u32 s{sSPIN}, 0")
    e(f"s_cbranch_scc1 {name}_done")
    e("s_waitcnt lgkmcnt(0)")
    e(f"v_readfirstlane_b32 s{sNON}, v{tmp+2}")
    e(f"v_readfirstlane_b32 s{sNON+1}, v{tmp+3}")
    e(f"s_cmp_lg_u32 s{sNON}, 0")
    e(f"s_cbranch_scc1 {name}_done")
    e("s_sleep 1")
    e(f"s_branch {name}")
    lab(name + "_done")
    e("s_waitcnt lgkmcnt(0)")

def signal(name, ctr_off, last, flag_soff_s, tmp, lo=None, plain_if=None):
    e(f"v_mov_b32 v{tmp}, {MISC + ctr_off}")
    e(f"v_mov_b32 v{tmp+1}, 1")
    e(f"s_mov_b64 exec, 1")
    e(f"ds_add_rtn_u32 v{tmp+1}, v{tmp}, v{tmp+1}")
    e(f"v_mov_b32 v{tmp+2}, s{sNON if lo is None else lo}")
    e(f"v_mov_b32 v{tmp+3}, s{sNON+1}")
    e("s_waitcnt lgkmcnt(0)")
    e(f"v_readfirstlane_b32 s{sT4}, v{tmp+1}")
    e("s_nop 0")
    e(f"s_cmp_eq_u32 s{sT4}, {last}")
    e(f"s_cbranch_scc0 {name}_nf")
    if plain_if is not None:
        e(f"s_cmp_eq_u32 s{plain_if}, 0")
        e(f"s_cbranch_scc1 {name}_wt")
        e(f"buffer_store_dwordx2 {vr(tmp+2,2)}, off, {sr(R_WS,4)}, s{flag_soff_s}")
        if opt['omode'] < 2: e(f"s_branch {name}_nf")
        lab(name + "_wt")
    e(f"buffer_store_dwordx2 {vr(tmp+2,2)}, off, {sr(R_WS,4)}, s{flag_soff_s} sc1")
    lab(name + "_nf")
    e("s_mov_b64 exec, -1")

hdr = open(f"cdna_kernels/{NAME}.s.ref").read().split("; Override launch")[0]
L.append(hdr.rstrip())
L.append(f"; @launch grid=(256,1,1) block=(512,1,1) lds={LDS_BYTES}")
L.append('.amdgcn_target "amdgcn-amd-amdhsa--gfx950"')
L.append(".text")
L.append(f".globl {NAME}_kernel")
L.append(".p2align 8")
L.append(f".type {NAME}_kernel,@function")
lab(f"{NAME}_kernel")
e("s_cmp_ge_u32 s2, 256")
e("s_cbranch_scc1 L_end")
e("s_load_dwordx16 s[4:19], s[0:1], 0")
e("s_load_dwordx8 s[20:27], s[0:1], 64")
e("s_load_dwordx2 s[28:29], s[0:1], 96")
e(f"s_memrealtime {sr(sNON,2)}")
if opt['endat']:
    e("s_waitcnt lgkmcnt(0)")
    e(f"s_mov_b32 s30, s{sNON}")
if opt['dxcc'] >= 0:
    e(f"s_getreg_b32 s{sT0}, hwreg(HW_REG_XCC_ID, 0, 4)")
    e(f"s_cmp_eq_u32 s{sT0}, {opt['dxcc']}") if opt['dxcc'] < 8 else e(f"s_cmp_eq_u32 s{sT0}, s{sT0}")
    e("s_cbranch_scc0 L_nodelay")
    e("s_waitcnt lgkmcnt(0)")
    lab("L_delay")
    e(f"s_memrealtime {sr(sX,2)}")
    e("s_waitcnt lgkmcnt(0)")
    e(f"s_sub_u32 s{sX}, s{sX}, s{sNON}")
    e(f"s_cmp_lt_u32 s{sX}, {opt['dus']}")
    e("s_cbranch_scc1 L_delay")
    lab("L_nodelay")
e("v_lshrrev_b32 v2, 6, v0")
e(f"v_and_b32 v{vL}, 63, v0")
e(f"v_readfirstlane_b32 s{sW}, v2")
e(f"s_and_b32 s{sXCD}, s2, 7")
e(f"s_lshr_b32 s{sJ}, s2, 3")
e(f"s_and_b32 s{sT0}, s{sJ}, 3")
e(f"s_lshl_b32 s{sTB}, s{sXCD}, 2")
e(f"s_add_u32 s{sTB}, s{sTB}, s{sT0}")
e(f"s_lshr_b32 s{sHG}, s{sJ}, 2")
e(f"s_bfe_u32 s{sTHP}, s{sHG}, 0x10001")
e(f"s_and_b32 s{sA}, s{sW}, 3")
e(f"v_lshlrev_b32 v2, 4, v{vL}          ; v2 = lane*16")
cm("LDS init while the kernel arguments load: ones / zeros window (even 16-B chunks 2^64, odd chunks 0), counters")
ONE = (127 + VSCALE) << 7
e("v_and_b32 v4, 1, v0")
e("v_add_u32 v4, -1, v4")
e(f"v_and_b32 v4, {hex(ONE << 16 | ONE)}, v4")
e("v_mov_b32 v5, v4")
e("v_mov_b32 v6, v4")
e("v_mov_b32 v7, v4")
e(f"v_lshlrev_b32 v3, 4, v0")
e(f"v_add_u32 v3, {ONES_OFF}, v3")
e("ds_write_b128 v3, v[4:7]")
e("v_mov_b32 v8, 0")
e(f"v_lshlrev_b32 v9, 1, v{vL}")
e("v_and_b32 v9, 0x7c, v9")
e(f"v_add_u32 v9, {MISC}, v9")
e("ds_write_b32 v9, v8")
e(f"s_mov_b32 s{R_XA+2}, 0x200000")
e(f"s_mov_b32 s{R_XA+3}, 0x20000")
e(f"s_cmp_ge_u32 s{sW}, 4")
e("s_cbranch_scc1 L_aux")

cm("wq slice (8 rows x 128 B per load, 16-B chunks swizzled by row bit 1); quarter tb&3 first: distinct among its 4 sharers")
e(f"v_lshrrev_b32 v3, 3, v{vL}          ; r")
e(f"v_and_b32 v4, 7, v{vL}")
e(f"v_bfe_u32 v5, v{vL}, 4, 1           ; (r>>1)&1")
e("v_lshlrev_b32 v5, 2, v5")
e("v_xor_b32 v4, v4, v5")
e("v_lshlrev_b32 v4, 4, v4")
e("v_lshl_add_u32 v13, v3, 10, v4")
e(f"s_mov_b32 s{R_WQ+2}, 0x80000")
e(f"s_mov_b32 s{R_WQ+3}, 0x20000")
def wq_addr(q):
    e(f"s_add_u32 s{sT0}, s{sJ}, {q}")
    e(f"s_and_b32 s{sT0}, s{sT0}, 3")
    e(f"s_lshl_b32 s{sT0}, s{sT0}, 2")
    e(f"s_add_u32 s{sT0}, s{sT0}, s{sW}")
    e(f"s_lshl_b32 s{sT2}, s{sT0}, 15")
    e(f"s_lshl_b32 s{sT1}, s{sHG}, 7")
    e(f"s_add_u32 s{sT2}, s{sT2}, s{sT1}")
    e(f"s_lshl_b32 s{sT1}, s{sT0}, 12")
    e(f"s_add_u32 s{sT1}, s{sT1}, {WQ_OFF}")
wq_addr(0)
e("s_waitcnt lgkmcnt(0)")
e(f"s_mov_b32 s{R_WQ}, s{P_WQ}")
e(f"s_and_b32 s{R_WQ+1}, s{P_WQ+1}, 0xffff")
e(f"s_mov_b32 s{R_XA}, s{P_XA}")
e(f"s_and_b32 s{R_XA+1}, s{P_XA+1}, 0xffff")
stamp(0)
e("s_barrier")
dma_run(4, 13, R_WQ, sT2, sT1, 8192, 1024)
cm("the half of the x tile the aux waves do not load: rows 32*(1-thp) + 8w + i")
e(f"s_xor_b32 s{sT0}, s{sTHP}, 1")
e(f"s_lshl_b32 s{sT0}, s{sT0}, 5")
e(f"s_lshl_b32 s{sT1}, s{sW}, 3")
e(f"s_add_u32 s{sT0}, s{sT0}, s{sT1}")
e(f"s_mul_i32 s{sT1}, s{sT0}, {XROW}")
e(f"s_add_u32 s{sT1}, s{sT1}, {X_OFF}")
e(f"s_lshl_b32 s{sT2}, s{sTB}, 6")
e(f"s_add_u32 s{sT2}, s{sT2}, s{sT0}")
e(f"s_lshl_b32 s{sT2}, s{sT2}, 10")
dma_run(8, 2, R_XA, sT2, sT1, 1024, XROW)
for q in range(1, 4):
    wq_addr(q)
    dma_run(4, 13, R_WQ, sT2, sT1, 8192, 1024)
stamp(7)
srd(R_WS, P_WS, WS_SIZE)
SA, SB, OA, OB, CA, CB = 16, 32, 48, 64, 80, 96
QA, QB, K0, K1, V0, V1 = 112, 116, 120, 124, 128, 136
vIDX, vK, vV = 144, 145, 146
vINC, vV0, vSAME = 147, 150, 151
vXA, vWA = 148, 149
FB = 152
cm("Q-projection addresses")
e(f"s_and_b32 s{sT0}, s{sW}, 1            ; th")
e(f"s_lshr_b32 s{sT1}, s{sW}, 1           ; hp")
e(f"v_and_b32 v3, 31, v{vL}")
e(f"s_lshl_b32 s{sT2}, s{sT0}, 5")
e(f"v_add_u32 v3, s{sT2}, v3")
e(f"v_mul_u32_u24 v3, {XROW}, v3")
e(f"v_lshrrev_b32 v4, 5, v{vL}           ; h")
e(f"v_lshl_add_u32 v14, v4, 4, v3")
e(f"v_bfe_u32 v5, v{vL}, 2, 2            ; r")
e("v_lshl_add_u32 v6, v4, 3, v5          ; 8h + r")
e("v_lshlrev_b32 v6, 7, v6")
e(f"v_bfe_u32 v7, v{vL}, 4, 1            ; g")
e(f"v_and_b32 v8, 1, v{vL}")
e("v_lshl_add_u32 v7, v7, 1, v8          ; 2g + (cc&1)")
e(f"s_lshl_b32 s{sT2}, s{sT1}, 2")
e(f"v_add_u32 v7, s{sT2}, v7")
e(f"v_bfe_u32 v8, v{vL}, 3, 1            ; (r>>1)&1")
e("v_lshlrev_b32 v8, 2, v8")
e("v_xor_b32 v7, v7, v8")
e("v_lshl_add_u32 v6, v7, 4, v6")
e(f"v_bfe_u32 v8, v{vL}, 1, 1")
e("v_lshl_add_u32 v6, v8, 3, v6")
e(f"v_add_u32 v{vWA}, {WQ_OFF}, v6")
e(f"v_add_u32 v{vXA}, {X_OFF}, v14")
cm("attention LDS addresses; V: rows 0..15 -> tile data, lanes 16,20 -> 2^64, other lanes -> 0")
e(f"v_mov_b32 v{vIDX}, 0xdddddddd")
e(f"v_bfe_u32 v5, v{vL}, 4, 1")
e(f"v_xor_b32 v5, 1, v5")
e(f"v_lshlrev_b32 v{vINC}, 13, v5")
e(f"v_and_b32 v8, 15, v{vL}")
e("v_lshlrev_b32 v9, 8, v4")
e("v_lshl_add_u32 v8, v8, 4, v9")
e(f"v_and_b32 v9, 31, v{vL}")
e("v_add_u32 v10, -20, v9")
e("v_cmp_gt_u32 vcc, 8, v10")
e("v_and_b32 v9, 11, v9")
e("v_min_u32 v9, 1, v9")
e("v_cndmask_b32 v10, 0, 64, vcc")
e(f"v_cmp_eq_u32 vcc, 1, v5")
e("v_lshl_add_u32 v9, v9, 4, v10")
e(f"v_add_u32 v9, {ONES_OFF - 1024}, v9")
e(f"v_cndmask_b32 v{vV0}, v9, v8, vcc")
cm("O fragment destination and flag slot")
sOD, sOF = 97, 98
e(f"s_and_b32 s{sT0}, s{sW}, 1")
e(f"s_lshl_b32 s{sT1}, s{sTB}, 1")
e(f"s_add_u32 s{sT0}, s{sT0}, s{sT1}")
e(f"s_lshl_b32 s{sT0}, s{sT0}, 5          ; (tb*2+th)*32")
e(f"s_lshl_b32 s{sT1}, s{sHG}, 2")
e(f"s_add_u32 s{sT0}, s{sT0}, s{sT1}")
e(f"s_and_b32 s{sT1}, s{sW}, 2")
e(f"s_add_u32 s{sT0}, s{sT0}, s{sT1}")
e(f"s_lshl_b32 s{sT0}, s{sT0}, 10")
e(f"s_add_u32 s{sOD}, s{sT0}, {WS_O}")
e(f"s_lshl_b32 s{sT1}, s{sTB}, 3")
e(f"s_add_u32 s{sT1}, s{sT1}, s{sHG}")
e(f"s_lshl_b32 s{sT1}, s{sT1}, 7")
e(f"s_add_u32 s{sOF}, s{sT1}, {FL_O}")
e(f"s_mov_b32 s{sFB}, 0")
e(f"s_mov_b32 s{sBARN}, 0xa")
e(f"v_mov_b32 v{vSAME}, {MISC}")
sPF, sOL, sOS, vPO = 100, 101, 79, 184
e(f"s_lshl_b32 s{sT0}, s{sTB}, 3")
e(f"s_lshl_b32 s{sT1}, s{sW}, 1")
e(f"s_add_u32 s{sT0}, s{sT0}, s{sT1}")
e(f"s_lshl_b32 s{sT0}, s{sT0}, 7")
e(f"s_add_u32 s{sPF}, s{sT0}, {FL_O}")
e(f"s_lshl_b32 s{sT2}, s{sTB}, 16")
e(f"s_lshl_b32 s{sOL}, s{sW}, 13")
e(f"s_add_u32 s{sT2}, s{sT2}, s{sOL}")
e(f"s_add_u32 s{sOS}, s{sT2}, {WS_O}")
e(f"v_and_b32 v8, 1, v{vL}")
e(f"v_lshlrev_b32 v{vPO}, 7, v8")
for i in range(16): e(f"v_mov_b32 v{OA+i}, 0")
for i in range(16): e(f"v_mov_b32 v{OB+i}, 0")
for i in range(4): e(f"v_mov_b32 v{V1+4+i}, 0")
e(f"v_mov_b32 v{vK}, v2")
e(f"v_mov_b32 v{vV}, v{vV0}")
e(f"s_mov_b32 s{sT0}, {hex(f2u(0.25*1.4426950408889634))}")
warm("L_padq", "L_padq_ret")
e("s_waitcnt vmcnt(0)")
stamp(8)
e("s_barrier")
stamp(10)
pad_begin("L_padq")
def qload(ks):
    b = FB + 8*(ks % 4)
    e(f"ds_read_b64_tr_b16 {vr(b,2)}, v{vWA} offset:{ks*2048}")
    e(f"ds_read_b64_tr_b16 {vr(b+2,2)}, v{vWA} offset:{ks*2048+512}")
    e(f"ds_read_b128 {vr(b+4,4)}, v{vXA} offset:{ks*32}")
for ks in range(3): qload(ks)
for ks in range(32):
    b = FB + 8*(ks % 4)
    if ks + 3 < 32:
        qload(ks + 3); e("s_waitcnt lgkmcnt(9)")
    else:
        e(f"s_waitcnt lgkmcnt({3*(31-ks)})")
    c = "0" if ks == 0 else vr(SA, 16)
    e(f"v_mfma_f32_32x32x16_bf16 {vr(SA,16)}, {vr(b,4)}, {vr(b+4,4)}, {c}")
stamp(9)
nop(12)
for i in range(16): e(f"v_mul_f32 v{SA+i}, s{sT0}, v{SA+i}")
for i in range(8): e(f"v_cvt_pk_bf16_f32 v{QA+i}, v{SA+2*i}, v{SA+2*i+1}")
if opt['prioA']: e(f"s_setprio {opt['prioA']}")
stamp(2)
e("s_barrier")
stamp(3)
cm("stand-in for the row max: max over key tile 0 (checked after the loop; fallback = true max)")
e(f"ds_read_b128 {vr(K0,4)}, v{vK}")
e(f"ds_read_b128 {vr(K1,4)}, v{vK} offset:2048")
e(f"ds_read_b128 {vr(V0,4)}, v{vV} offset:1024")
e(f"ds_read_b128 {vr(V0+4,4)}, v{vV} offset:1536")
e("s_waitcnt lgkmcnt(3)")
e(f"v_mfma_f32_32x32x16_bf16 {vr(SA,16)}, {vr(K0,4)}, {vr(QA,4)}, 0")
e(f"v_mfma_f32_32x32x16_bf16 {vr(SB,16)}, {vr(K0,4)}, {vr(QB,4)}, 0")
nop(11)
def max16(dst, s, acc=None):
    if acc is None:
        e(f"v_max3_f32 v{dst}, v{s}, v{s+1}, v{s+2}"); i = 3
        while i + 1 < 16:
            e(f"v_max3_f32 v{dst}, v{dst}, v{s+i}, v{s+i+1}"); i += 2
        e(f"v_max_f32 v{dst}, v{dst}, v{s+15}")
    else:
        for i in range(0, 16, 2): e(f"v_max3_f32 v{dst}, v{dst}, v{s+i}, v{s+i+1}")
max16(4, SA); max16(5, SB)
lab("L_setmax")
cm(f"v4 / v5 = per-lane max for tiles A / B; combine the two half-waves, C = -(max + {opt['shift']})")
e("v_mov_b32 v6, v4")
e("v_mov_b32 v7, v5")
e(f"s_mov_b32 s{sIT}, 0")
e("s_nop 0")
e("v_permlane32_swap_b32 v4, v6")
e("v_permlane32_swap_b32 v5, v7")
e("v_max_f32 v4, v4, v6")
e("v_max_f32 v5, v5, v7")
for i in range(16): e(f"v_sub_f32 v{CA+i}, {hex(f2u(-float(opt['shift'])))}, v4")
e(f"v_sub_f32 v{CB}, {hex(f2u(-float(opt['shift'])))}, v5")
e("s_waitcnt lgkmcnt(0)")
e(f"v_mfma_f32_32x32x16_bf16 {vr(SA,16)}, {vr(K0,4)}, {vr(QA,4)}, {vr(CA,16)}")
for i in range(1, 16): e(f"v_mov_b32 v{CB+i}, v{CB}")
for i in range(8): e(f"v_mov_b32 v{SB+8+i}, 0")
def SM(o, a, b): e(f"v_smfmac_f32_32x32x32_bf16 {vr(o,16)}, {vr(a,4)}, {vr(b,8)}, v{vIDX}")
def QK(d, k, q, c): e(f"v_mfma_f32_32x32x16_bf16 {vr(d,16)}, {vr(k,4)}, {vr(q,4)}, {vr(c,16)}")
def EX(s, a, b):
    for i in range(a, b): e(f"v_exp_f32 v{s+i}, v{s+i}")
pad_end("L_padq", "L_padq_ret")
L.append(".p2align 6")
lab("L_att_loop")
for u in range(4):
    kc, kn = (K0, K1) if u % 2 == 0 else (K1, K0)
    vc, vp = (V0, V1) if u % 2 == 0 else (V1, V0)
    voffs = ((u + 1) % 4) * 2048 + 1024
    koffs = ((u + 2) % 4) * 2048
    p0, p1, p2 = (4, 7, 10) if opt['cluster'] else (2, 5, 10)
    EX(SA, 0, p0)
    SM(OB, vp + 4, SB + 8)
    e("s_waitcnt lgkmcnt(1)")
    EX(SA, p0, p1)
    QK(SB, kc, QB, CB)
    e(f"ds_read_b128 {vr(vp,4)}, v{vV} offset:{voffs}")
    EX(SA, p1, p2)
    SM(OA, vc, SA)
    e(f"ds_read_b128 {vr(vp+4,4)}, v{vV} offset:{voffs+512}")
    EX(SA, p2, 16)
    EX(SB, 0, p0)
    SM(OA, vc + 4, SA + 8)
    e("s_waitcnt lgkmcnt(2)")
    if u == 1:
        pass
    EX(SB, p0, p1)
    QK(SA, kn, QA, CA)
    e(f"ds_read_b128 {vr(kc,4)}, v{vK} offset:{koffs}")
    EX(SB, p1, p2)
    SM(OB, vc, SB)
    if u == 1:
        e(f"s_bitcmp1_b32 s{sBARN}, s{sIT}")
        e("s_cbranch_scc1 L_sync")
        lab("L_nobar")
        e(f"v_add_u32 v{vK}, 0x2000, v{vK}")
    if u == 2:
        e(f"v_add_u32 v{vV}, v{vINC}, v{vV}")
    if u == 3:
        e(f"s_add_u32 s{sIT}, s{sIT}, 1")
        e(f"s_cmp_lt_u32 s{sIT}, 16")
    if u == 0 and opt['cluster']: e("s_nop 0")
    EX(SB, p2, 16)
e("s_cbranch_scc1 L_att_loop")
pad_begin("L_padt")
e(f"s_mov_b32 s{sT0}, {hex(f2u(2.0**100) if not opt['force_fb'] else f2u(2.0**-30))}")
e(f"v_rcp_f32 v4, v{OA+8}")
SM(OB, V1 + 4, SB + 8)
e(f"ds_read_b32 v7, v{vSAME} offset:{C_SAME}")
e(f"ds_read_b64 v[8:9], v{vSAME} offset:{C_TAG}")
cm("run-time check of the stand-in: l*2^64 must be finite and <= 2^100, else redo with the true row max")
e(f"v_cmp_nle_f32_e64 vcc, v{OA+8}, s{sT0}")
for i in range(8): e(f"v_mul_f32 v{SA+i}, v4, v{OA+i}")
for i in range(4): e(f"v_cvt_pk_bf16_f32 v{SA+i}, v{SA+2*i}, v{SA+2*i+1}")
e(f"v_rcp_f32 v5, v{OB+8}")
e(f"v_cmp_nle_f32_e64 {sr(sX,2)}, v{OB+8}, s{sT0}")
e("s_waitcnt lgkmcnt(0)")
e(f"s_or_b64 vcc, vcc, {sr(sX,2)}")
e("s_cmp_eq_u64 vcc, 0")
e("s_cbranch_scc0 L_fallback")
lab("L_att_done")
stamp(6)
cm("plain stores only when every workgroup of this token block reported the same XCD; else write-through")
sSAME = 99
e(f"v_readfirstlane_b32 s{sSAME}, v7")
e(f"v_readfirstlane_b32 s{sNON}, v8")
e(f"v_readfirstlane_b32 s{sNON+1}, v9")
for i in range(8): e(f"v_mul_f32 v{OB+i}, v5, v{OB+i}")
for i in range(4): e(f"v_cvt_pk_bf16_f32 v{SA+4+i}, v{OB+2*i}, v{OB+2*i+1}")
e(f"s_cmp_eq_u32 s{sSAME}, 0")
e("s_cbranch_scc1 L_ost_wt") if opt['omode'] != 2 else e("s_branch L_ost_wt")
e(f"buffer_store_dwordx4 {vr(SA,4)}, v2, {sr(R_WS,4)}, s{sOD} offen")
e(f"buffer_store_dwordx4 {vr(SA+4,4)}, v2, {sr(R_WS,4)}, s{sOD} offen offset:1024")
lab("L_ost_done")
e("s_barrier")
stamp(4)
e("s_waitcnt vmcnt(0)")
signal("L_sigO", C_O, 3, sOF, 4, plain_if=sSAME)
stamp(5)
cm("gather the O tile of this token block: wave w takes producers 2w, 2w+1 (first / second half)")
poll("L_pollO", 1, vPO, 8, [sPF])
stamp(11)
def odma(sc):
    for q in range(2):
        for th in range(2):
            e(f"s_mov_b32 m0, s{sOL}")
            e("s_nop 0")
            for i in range(4): e(f"buffer_load_dwordx4 v2, {sr(R_WS,4)}, s{sOS} offen offset:{1024*i} {sc}lds")
            if not (th == 1 and q == 1):
                op = "s_add_u32" if th == 0 else "s_sub_u32"
                d = 32768 if th == 0 else 32768 - 4096
                e(f"{op} s{sOL}, s{sOL}, {d}")
                e(f"{op} s{sOS}, s{sOS}, {d}")
odma("sc1 ")
pad_end("L_padt", "L_pado_0")
e("s_waitcnt vmcnt(8)")
stamp(12)
e("s_barrier")
e("s_waitcnt vmcnt(0)")
e("s_barrier")
if opt['omode'] == 3:
    cm("write the O lines through as well, so that no dirty line is left for the end of the kernel")
    e(f"buffer_store_dwordx4 {vr(SA,4)}, v2, {sr(R_WS,4)}, s{sOD} offen sc1")
    e(f"buffer_store_dwordx4 {vr(SA+4,4)}, v2, {sr(R_WS,4)}, s{sOD} offen offset:1024 sc1")
stamp_dump()
e("s_endpgm")
lab("L_ost_wt")
e(f"buffer_store_dwordx4 {vr(SA,4)}, v2, {sr(R_WS,4)}, s{sOD} offen sc1")
e(f"buffer_store_dwordx4 {vr(SA+4,4)}, v2, {sr(R_WS,4)}, s{sOD} offen offset:1024 sc1")
e("s_branch L_ost_done")
lab("L_sync")
e(f"s_cmp_eq_u32 s{sIT}, 1")
e("s_cbranch_scc0 L_sync3")
lds_wait("L_wg1", C_G1, 256, 4)
e("s_branch L_nobar")
lab("L_sync3")
lds_wait("L_wkvl", C_KVL, 256, 4)
e("s_branch L_nobar")
lab("L_fallback")
e(f"s_cmp_eq_u32 s{sFB}, 0")
e("s_cbranch_scc0 L_att_done")
cm("fallback: exact row max over all 64 key tiles, then repeat the main loop")
e(f"s_mov_b32 s{sFB}, 1")
e(f"s_mov_b32 s{sBARN}, 0")
e(f"v_mov_b32 v4, 0xff800000")
e(f"v_mov_b32 v5, 0xff800000")
e(f"v_mov_b32 v{vK}, v2")
e(f"s_mov_b32 s{sIT}, 0")
lab("L_fb_loop")
e(f"ds_read_b128 {vr(K0,4)}, v{vK}")
e("s_waitcnt lgkmcnt(0)")
e(f"v_mfma_f32_32x32x16_bf16 {vr(SA,16)}, {vr(K0,4)}, {vr(QA,4)}, 0")
e(f"v_mfma_f32_32x32x16_bf16 {vr(SB,16)}, {vr(K0,4)}, {vr(QB,4)}, 0")
e(f"v_add_u32 v{vK}, 0x800, v{vK}")
nop(11)
max16(4, SA, 1); max16(5, SB, 1)
e(f"s_add_u32 s{sIT}, s{sIT}, 1")
e(f"s_cmp_lt_u32 s{sIT}, 64")
e("s_cbranch_scc1 L_fb_loop")
e(f"v_mov_b32 v{vK}, v2")
e(f"v_mov_b32 v{vV}, v{vV0}")
for i in range(16): e(f"v_mov_b32 v{OA+i}, 0")
for i in range(16): e(f"v_mov_b32 v{OB+i}, 0")
for i in range(4): e(f"v_mov_b32 v{V1+4+i}, 0")
e(f"ds_read_b128 {vr(K0,4)}, v{vK}")
e(f"ds_read_b128 {vr(K1,4)}, v{vK} offset:2048")
e(f"ds_read_b128 {vr(V0,4)}, v{vV} offset:1024")
e(f"ds_read_b128 {vr(V0+4,4)}, v{vV} offset:1536")
e("s_branch L_setmax")

lab("L_aux")
BUF = 16
BP = 144
FR = 176
ACC = 192
D1, D2 = 208, 224
if opt['prioX']: e(f"s_setprio {opt['prioX']}")
cm("critical loads: producer weight (wk for even hg, wv for odd), x rows 32*thp + 8a + i")
e(f"s_lshl_b32 s{sT0}, s{sTHP}, 5")
e(f"s_lshl_b32 s{sT1}, s{sA}, 3")
e(f"s_add_u32 s{sT0}, s{sT0}, s{sT1}")
e(f"s_mul_i32 s{sT1}, s{sT0}, {XROW}")
e(f"s_add_u32 s{sT1}, s{sT1}, {X_OFF}")
e(f"s_lshl_b32 s{sT2}, s{sTB}, 6")
e(f"s_add_u32 s{sT2}, s{sT2}, s{sT0}")
e(f"s_lshl_b32 s{sT2}, s{sT2}, 10")
e(f"s_lshl_b32 s{sT3}, s{sA}, 12")
e(f"s_mov_b32 s{R_W+2}, 16384")
e(f"s_mov_b32 s{R_W+3}, 0x20000")
e(f"s_mov_b32 m0, s{sT3}")
e(f"s_bitcmp1_b32 s{sHG}, 0")
e("s_waitcnt lgkmcnt(0)")
e(f"s_cselect_b32 s{R_W}, s{P_WV}, s{P_WK}")
e(f"s_cselect_b32 s{R_W+1}, s{P_WV+1}, s{P_WK+1}")
e(f"s_and_b32 s{R_W+1}, s{R_W+1}, 0xffff")
e(f"s_mov_b32 s{R_XA}, s{P_XA}")
e(f"s_and_b32 s{R_XA+1}, s{P_XA+1}, 0xffff")
srd(R_DBG, P_DBG, 256)
cm("workgroup 0, aux wave 3 publishes this launch's hand-off tag")
e(f"s_or_b32 s{sNON}, s{sNON}, 16")
e(f"s_and_b32 s{sNON}, s{sNON}, -16")
e(f"s_lshl_b32 s{sT0}, s2, 3")
e(f"s_add_u32 s{sT0}, s{sT0}, s{sW}")
e(f"s_cmp_eq_u32 s{sT0}, 7")
e("s_cbranch_scc0 L_notag")
e(f"v_mov_b32 v4, s{sNON}")
e(f"v_mov_b32 v5, s{sNON+1}")
e("s_mov_b64 exec, 1")
e(f"buffer_store_dwordx2 v[4:5], off, {sr(R_DBG,4)}, 0 sc1")
e("s_mov_b64 exec, -1")
lab("L_notag")
e(f"s_cmp_lt_u32 s{sHG}, 4")
e("s_cbranch_scc0 L_now")
for i in range(4): e(f"buffer_load_dwordx4 v2, {sr(R_W,4)}, s{sT3} offen offset:{1024*i} lds")
lab("L_now")
dma_run(8, 2, R_XA, sT2, sT1, 1024, XROW)
stamp(0)
srd(R_WS, P_WS, WS_SIZE)
if opt['dbgt']:
    e(f"s_cmp_lt_u32 s2, 8")
    e("s_cbranch_scc0 L_nodbg0")
    e(f"s_cmp_eq_u32 s{sW}, 6")
    e("s_cbranch_scc0 L_nodbg0")
    e(f"v_mov_b32 v4, s{sNON}")
    e(f"s_lshl_b32 s{sT0}, s2, 2")
    e(f"s_add_u32 s{sT0}, s{sT0}, 8")
    e("s_mov_b64 exec, 1")
    e(f"buffer_store_dword v4, off, {sr(R_DBG,4)}, s{sT0}")
    e("s_mov_b64 exec, -1")
    lab("L_nodbg0")
e("s_barrier                             ; B1")
KV0 = len(L)
e(f"v_mov_b32 v14, {MISC+C_CR}")
e(f"v_mov_b32 v15, 1")
cm("K / V projection: workgroups hg<4, aux waves 0,1 (16 tokens each)")
e(f"s_cmp_lt_u32 s{sHG}, 4")
e("s_cbranch_scc0 L_np")
e(f"s_cmp_lt_u32 s{sA}, 2")
e("s_cbranch_scc0 L_np")
e(f"v_and_b32 v3, 15, v{vL}")
e(f"v_lshrrev_b32 v4, 4, v{vL}           ; q")
e(f"s_lshl_b32 s{sT0}, s{sTHP}, 5")
e(f"s_lshl_b32 s{sT1}, s{sA}, 4")
e(f"s_add_u32 s{sT0}, s{sT0}, s{sT1}")
e(f"v_add_u32 v5, s{sT0}, v3")
e(f"v_mul_u32_u24 v5, {XROW}, v5")
e("v_lshl_add_u32 v5, v4, 4, v5")
e(f"v_add_u32 v5, {X_OFF}, v5")
e(f"v_bfe_u32 v6, v{vL}, 2, 2            ; r")
e("v_lshl_add_u32 v6, v4, 3, v6")
e("v_lshlrev_b32 v6, 5, v6")
e(f"v_and_b32 v7, 3, v{vL}               ; cc")
e(f"s_lshl_b32 s{sT2}, s{sTB}, 1")
e(f"s_add_u32 s{sT2}, s{sT2}, s{sTHP}")
sKF, sKD = 97, 96
e(f"s_lshl_b32 s{sT1}, s{sT2}, 1")
e(f"s_and_b32 s{sT0}, s{sHG}, 1")
e(f"s_add_u32 s{sT1}, s{sT1}, s{sT0}")
e(f"s_lshl_b32 s{sT1}, s{sT1}, 1")
e(f"s_add_u32 s{sT1}, s{sT1}, s{sA}")
e(f"s_lshl_b32 s{sT1}, s{sT1}, 7")
e(f"s_add_u32 s{sKF}, s{sT1}, {FL_KV}")
e(f"s_lshl_b32 s{sKD}, s{sT2}, 11")
e("v_and_b32 v9, 1, v4")
e("v_lshlrev_b32 v9, 3, v9")
e("v_lshl_add_u32 v9, v3, 4, v9          ; n*16 + (q&1)*8")
e("v_lshrrev_b32 v8, 1, v4")
e(f"s_mov_b32 s{sDRY}, {1 if opt['dry'] else 0}")
if opt['pre']:
    cm("touch the lines this wave will publish (tile and flag), so the write-through stores find them resident")
    e(f"v_and_b32 v12, 15, v{vL}")
    e("v_lshlrev_b32 v12, 7, v12")
    e(f"buffer_load_dword v201, v12, {sr(R_WS,4)}, s{sKD} offen sc1")
    e(f"buffer_load_dword v202, off, {sr(R_WS,4)}, s{sKF} sc1")
def kvchain(isV):
    for ks in range(16):
        b = BUF + 8*ks
        e(f"ds_read_b64_tr_b16 {vr(b,2)}, v6 offset:{ks*1024}")
        e(f"ds_read_b64_tr_b16 {vr(b+2,2)}, v6 offset:{ks*1024+128}")
        e(f"ds_read_b128 {vr(b+4,4)}, v5 offset:{ks*64}")
        if ks >= 3:
            k2 = ks - 3; b2 = BUF + 8*k2
            e("s_waitcnt lgkmcnt(9)")
            a, bb = (b2+4, b2) if isV else (b2, b2+4)
            e(f"v_mfma_f32_16x16x32_bf16 {vr(ACC,4)}, {vr(a,4)}, {vr(bb,4)}, {'0' if k2==0 else vr(ACC,4)}")
    for k2 in range(13, 16):
        b2 = BUF + 8*k2
        e(f"s_waitcnt lgkmcnt({3*(15-k2)})")
        a, bb = (b2+4, b2) if isV else (b2, b2+4)
        e(f"v_mfma_f32_16x16x32_bf16 {vr(ACC,4)}, {vr(a,4)}, {vr(bb,4)}, {vr(ACC,4)}")
def kv_wait(tagname):
    e(f"s_waitcnt vmcnt({2 if opt['pre'] else 0})")
    stamp(1)
    e("ds_add_u32 v14, v15")
    lds_wait(tagname + "_w", C_CR, 256, 10, sleep=1)
def kv_b1(tagname):
    if not opt['dry']: kv_wait(tagname)
    lab(tagname)
def kv_b2(tagname):
    if opt['dry']:
        e(f"s_cmp_eq_u32 s{sDRY}, 0")
        e(f"s_cbranch_scc1 {tagname}_go")
        e(f"s_mov_b32 s{sDRY}, 0")
        kv_wait(tagname)
        e(f"s_branch {tagname}")
        lab(tagname + "_go")
e(f"s_bitcmp1_b32 s{sHG}, 0")
e("s_cbranch_scc1 L_prodV")
cm("K: (q>>1)*512 + (16b+n)*16 + (q&1)*8")
e("v_lshl_add_u32 v6, v7, 3, v6")
e("v_lshl_add_u32 v8, v8, 9, v9")
e(f"s_lshl_b32 s{sT1}, s{sA}, 8")
e(f"s_add_u32 s{sKD}, s{sKD}, s{sT1}")
kv_b1("L_chK"); kvchain(False); kv_b2("L_chK")
nop(6 if opt['dry'] else 8)
e("s_branch L_prodS")
lab("L_prodV")
cm("V: 1024 + b*512 + (q>>1)*256 + n*16 + (q&1)*8")
e("v_lshl_add_u32 v8, v8, 8, v9")
e("v_and_b32 v9, 1, v7")
e("v_lshl_add_u32 v6, v9, 4, v6")
e("v_lshrrev_b32 v9, 1, v7")
e("v_lshl_add_u32 v6, v9, 3, v6")
e(f"s_lshl_b32 s{sT1}, s{sA}, 9")
e(f"s_add_u32 s{sKD}, s{sKD}, s{sT1}")
e(f"s_add_u32 s{sKD}, s{sKD}, 1024")
kv_b1("L_chV"); kvchain(True); kv_b2("L_chV")
e(f"s_mov_b32 s{sT0}, {hex(f2u(2.0**VSCALE))}")
nop(6 if opt['dry'] else 8)
for i in range(4): e(f"v_mul_f32 v{ACC+i}, s{sT0}, v{ACC+i}")
lab("L_prodS")
e(f"v_cvt_pk_bf16_f32 v10, v{ACC}, v{ACC+1}")
e(f"v_cvt_pk_bf16_f32 v11, v{ACC+2}, v{ACC+3}")
e(f"buffer_store_dwordx2 v[10:11], v8, {sr(R_WS,4)}, s{sKD} offen sc1")
stamp(14)
e("ds_add_u32 v14, v15 offset:%d             ; this wave is done with the weight region" % (C_KV - C_CR + 65536) if False else f"v_mov_b32 v13, {MISC+C_KV}")
e("ds_add_u32 v13, v15")
tag_from_lds("L_tagp", 4)
e(f"v_mov_b32 v6, s{sNON}")
e(f"v_mov_b32 v7, s{sNON+1}")
e("s_mov_b64 exec, 1")
e("s_waitcnt vmcnt(0)")
e(f"buffer_store_dwordx2 v[6:7], off, {sr(R_WS,4)}, s{sKF} sc1")
e("s_mov_b64 exec, -1")
stamp(15)
e(f"s_mov_b32 s{sRET}, 1")
e("s_branch L_tagged")
lab("L_np")
e("s_waitcnt vmcnt(0)")
stamp(1)
e("ds_add_u32 v14, v15")
if opt['codepf']:
    cm("aux wave 2 pulls this kernel's code towards L2 (reads only)")
    e(f"s_cmp_eq_u32 s{sA}, 2")
    e("s_cbranch_scc0 L_nopf")
    e(f"s_getpc_b64 {sr(sX,2)}")
    lab("L_pc")
    e(f"v_lshlrev_b32 v4, 7, v{vL}")
    e(f"s_sub_u32 s{sX}, s{sX}, L_pc-{NAME}_kernel")
    e(f"s_subb_u32 s{sX+1}, s{sX+1}, 0")
    e(f"v_mov_b32 v5, s{sX+1}")
    e(f"v_add_co_u32 v4, vcc, s{sX}, v4")
    e("s_nop 1")
    e("v_addc_co_u32 v5, vcc, 0, v5, vcc")
    e("CODEPF")
    lab("L_nopf")
e(f"s_cmp_eq_u32 s{sA}, 3")
e("s_cbranch_scc0 L_tagged0")
cm("aux wave 3 fetches this launch's hand-off tag (bounded spin) and posts it in LDS")
e(f"s_mov_b32 s{sSPIN}, {SPIN}")
lab("L_tag")
e(f"buffer_load_dwordx2 v[14:15], off, {sr(R_DBG,4)}, 0 sc1")
e(f"s_sub_u32 s{sSPIN}, s{sSPIN}, 1")
e(f"s_cmp_eq_u32 s{sSPIN}, 0")
e("s_cbranch_scc1 L_tag_done")
e("s_waitcnt vmcnt(0)")
e("v_cmp_eq_u32 vcc, 0, v14")
e("s_nop 0")
e("s_cmp_eq_u64 vcc, 0")
e("s_cbranch_scc0 L_tag")
lab("L_tag_done")
e("s_waitcnt vmcnt(0)")
e(f"v_mov_b32 v12, {MISC+C_TAG}")
e("ds_write_b64 v12, v[14:15]")
cm("report this workgroup's XCD id (tag | id)")
e(f"s_getreg_b32 s{sT2}, hwreg(HW_REG_XCC_ID, 0, 4)")
e(f"s_lshl_b32 s{sT1}, s2, 7")
e(f"s_add_u32 s{sT1}, s{sT1}, {FL_X}")
e(f"v_or_b32 v14, s{sT2}, v14")
e("s_mov_b64 exec, 1")
e(f"buffer_store_dwordx2 v[14:15], off, {sr(R_WS,4)}, s{sT1} sc1")
e("s_mov_b64 exec, -1")
import re
def ren(m):
    n = int(m.group(1)); return f"v{208+n}" if 3 <= n <= 15 else m.group(0)
def ren2(m):
    a, b = int(m.group(1)), int(m.group(2)); return f"v[{208+a}:{208+b}]" if 3 <= a <= 15 else m.group(0)
for k in range(KV0, len(L)):
    L[k] = re.sub(r"v\[(\d+):(\d+)\]", ren2, re.sub(r"\bv(\d+)\b", ren, L[k]))
e(f"s_mov_b32 s{sRET}, 0") if False else None
lab("L_tagged0")
e(f"s_mov_b32 s{sRET}, 0")
e("s_branch L_addr")
lab("L_tagged")
stamp(2)
tag_from_lds("L_tagx", 8)
cm("in a producer workgroup the weight region is reused only after both projection waves are done")
e(f"s_cmp_lt_u32 s{sHG}, 4")
e("s_cbranch_scc0 L_nowkv")
lds_wait("L_wkv", C_KV, 128, 8, sleep=1)
lab("L_nowkv")
cm("key tiles in rotated order (own XCD's tiles first); wave a covers tiles 8g + 2a, 8g + 2a + 1: flags 32g + 8a + (0..7)")
vCNT = 10
sKG, sKL, sKS, sKP = 97, 85, 88, 96
e(f"v_and_b32 v{ACC+2}, 7, v{vL}")
e(f"v_lshlrev_b32 v{ACC+2}, 7, v{ACC+2}")
e(f"s_lshl_b32 s{sKP}, s{sA}, 10")
e(f"s_add_u32 s{sKP}, s{sKP}, {FL_KV}")
e(f"s_lshl_b32 s{sT1}, s{sXCD}, 12")
e(f"s_add_u32 s{sT1}, s{sT1}, s{sKP}")
e(f"s_lshl_b32 s{sKL}, s{sA}, 12")
e(f"s_lshl_b32 s{sKG}, s{sXCD}, 14")
e("s_barrier                             ; B2")
stamp(16)
poll("L_pollK0", 1, ACC+2, 8, [sT1])
stamp(3)
def kvdma(G):
    e(f"s_add_u32 m0, s{sKL}, {16384*G}")
    e(f"s_add_u32 s{sKS}, s{sKG}, s{sKL}")
    for i in range(4): e(f"buffer_load_dwordx4 v2, {sr(R_WS,4)}, s{sKS} offen offset:{1024*i} sc1 lds")
    if G < 7:
        e(f"s_add_u32 s{sKG}, s{sKG}, 16384")
        e(f"s_and_b32 s{sKG}, s{sKG}, 0x1ffff")
kvdma(0)
e(f"s_cmp_eq_u32 s{sRET}, 1")
e("s_cbranch_scc0 L_addr_2")
lab("L_addr")
srd(R_SRE, P_SRE, 8388608)
srd(R_SIM, P_SIM, 8388608)
srd(R_XB, P_XB, 2097152)
srd(R_WO, P_WO, 524288)
srd(R_OUT, P_OUT, 4194304)
sT1S, sEB, sTT, sS2, sCB = 98, 99, 100, 101, 79
R_HRE, R_HIM = R_XA, R_W
e(f"s_and_b32 s{sT0}, s{sJ}, 3")
e(f"s_lshl_b32 s{sT1S}, s{sXCD}, 2")
e(f"s_add_u32 s{sT1S}, s{sT1S}, s{sT0}       ; t1s")
e(f"s_lshr_b32 s{sT0}, s{sJ}, 2")
e(f"s_lshl_b32 s{sT0}, s{sT0}, 1")
e(f"s_lshr_b32 s{sEB}, s{sA}, 1")
e(f"s_add_u32 s{sEB}, s{sEB}, s{sT0}         ; eb")
e(f"s_and_b32 s{sTT}, s{sA}, 1               ; tt")
e(f"s_and_b32 s{sT0}, s{sJ}, 7")
e(f"s_lshl_b32 s{sS2}, s{sXCD}, 3")
e(f"s_add_u32 s{sS2}, s{sS2}, s{sT0}         ; s2")
e(f"s_lshr_b32 s{sT0}, s{sJ}, 3")
e(f"s_lshl_b32 s{sCB}, s{sT0}, 2")
e(f"s_add_u32 s{sCB}, s{sCB}, s{sA}          ; cb")
srd(R_HRE, P_HRE, 524288)
srd(R_HIM, P_HIM, 524288)
e(f"v_and_b32 v3, 31, v{vL}                ; n")
e(f"v_lshrrev_b32 v4, 5, v{vL}             ; h")
e(f"s_lshl_b32 s{sT0}, s{sTT}, 5")
e(f"v_add_u32 v5, s{sT0}, v3")
e("v_lshlrev_b32 v5, 5, v5")
e(f"v_add_u32 v13, s{sT1S}, v5")
vXE, vXO, vWE, vWO_, vG, vRD = 240, 241, 242, 243, 244, 246
vSW, vDRE, vDIM = 250, 251, 252
vB2A, vB2O, vHA, vWOD, vWOT, vOF, vOUT, vPH, vPK, vF = 4, 3, 15, 14, 0, 5, 6, 7, 12, 13
cm("B1 load addresses (8 rows x 128 B per instruction, chunk swizzle on the source side)")
e(f"v_lshrrev_b32 v5, 3, v{vL}             ; r")
e("v_and_b32 v6, 3, v5")
e("v_lshrrev_b32 v7, 2, v5")
e("v_lshl_add_u32 v6, v7, 3, v6            ; 8*(r>>2) + (r&3)")
e("v_lshrrev_b32 v7, 1, v5")
e(f"v_and_b32 v8, 7, v{vL}")
e("v_xor_b32 v7, v7, v8")
e("v_lshlrev_b32 v7, 4, v7")
e("v_xor_b32 v8, 64, v7")
e(f"v_lshl_add_u32 v{vXE}, v6, 16, v7")
e(f"v_lshl_add_u32 v{vXO}, v6, 16, v8")
e(f"v_lshl_add_u32 v{vWE}, v6, 10, v7")
e(f"v_lshl_add_u32 v{vWO_}, v6, 10, v8")
cm("instruction 2 of W (im rows e = 16cb + {0..3, 8..11}); for cb = 0 row e = 0 is replaced by cos row 256")
e(f"s_lshl_b32 s{sT0}, s{sCB}, 14")
e(f"v_add_u32 v9, s{sT0}, v{vWE}")
e("v_cmp_gt_u32 vcc, 0x80, v9")
e(f"v_mov_b32 v{vG}, s{P_HIM}")
e(f"v_mov_b32 v{vG+1}, s{P_HIM+1}")
e(f"v_mov_b32 v10, s{P_HRE}")
e(f"v_mov_b32 v11, s{P_HRE+1}")
e(f"v_cndmask_b32 v{vG}, v{vG}, v10, vcc")
e(f"v_cndmask_b32 v{vG+1}, v{vG+1}, v11, vcc")
e("v_add_u32 v10, 0x40000, v9")
e("v_cndmask_b32 v9, v9, v10, vcc")
e(f"v_add_co_u32 v{vG}, vcc, v{vG}, v9")
e("s_nop 1")
e(f"v_addc_co_u32 v{vG+1}, vcc, 0, v{vG+1}, vcc")
cm("staging read addresses: row m, chunk (2s+h) ^ ((m>>1)&7)")
e(f"s_lshl_b32 s{sT0}, s{sA}, 12")
e(f"s_add_u32 s{sT0}, s{sT0}, {STG}")
e("v_bfe_u32 v5, v3, 1, 3")
e("v_xor_b32 v5, v5, v4")
e("v_lshlrev_b32 v5, 4, v5")
e("v_lshl_add_u32 v5, v3, 7, v5")
e(f"v_add_u32 v{vRD}, s{sT0}, v5")
for s_ in range(1, 4): e(f"v_xor_b32 v{vRD+s_}, {32*s_}, v{vRD}")
e(f"v_add_u32 v{vSW}, s{sT0}, v2")
cm("H store address: t1*64*HROW + 8h*4")
e(f"v_mul_u32_u24 v8, {64*HROW}, v3")
e(f"v_lshl_add_u32 v{vHA}, v4, 5, v8")
cm("wo: DMA source (16 rows x 64 B per load) and the transposing read from the staging area")
e(f"v_bfe_u32 v8, v{vL}, 2, 2")
e("v_lshl_add_u32 v8, v4, 3, v8            ; 8h + r")
e("v_lshlrev_b32 v8, 6, v8")
e(f"v_and_b32 v9, 1, v{vL}")
e("v_lshl_add_u32 v8, v9, 5, v8")
e(f"v_bfe_u32 v9, v{vL}, 4, 1")
e("v_lshl_add_u32 v8, v9, 4, v8")
e(f"v_bfe_u32 v9, v{vL}, 1, 1")
e("v_lshl_add_u32 v8, v9, 3, v8")
e(f"v_add_u32 v{vWOT}, s{sT0}, v8")
e(f"v_lshrrev_b32 v8, 2, v{vL}")
e(f"v_and_b32 v9, 3, v{vL}")
e("v_lshlrev_b32 v8, 10, v8")
e(f"v_lshl_add_u32 v{vWOD}, v9, 4, v8")
cm("output projection: out offset, O fragment address")
e(f"s_lshl_b32 s{sT3}, s{sTB}, 1")
e(f"s_and_b32 s{sT4}, s{sA}, 1")
e(f"s_add_u32 s{sT3}, s{sT3}, s{sT4}")
e(f"s_lshl_b32 s{sT3}, s{sT3}, 5")
e(f"v_add_u32 v8, s{sT3}, v3")
e("v_lshlrev_b32 v8, 11, v8")
e(f"v_lshl_add_u32 v{vOUT}, v4, 5, v8")
e(f"s_lshl_b32 s{sT3}, s{sT4}, 15")
e(f"v_add_u32 v{vOF}, s{sT3}, v2")
e(f"v_lshlrev_b32 v{vPH}, 7, v{vL}")
vPW = 253
e(f"v_lshlrev_b32 v{vPW}, 10, v{vL}")
cm("B2 A rows: e(m) = 32eb + col(m) (eb<8) or 512 - that; col(m) = 16*b2 + 4*(m>>3) + (m&3)")
e("v_and_b32 v8, 3, v3")
e("v_bfe_u32 v9, v3, 2, 1")
e("v_lshl_add_u32 v8, v9, 4, v8")
e("v_lshrrev_b32 v9, 3, v3")
e("v_lshl_add_u32 v8, v9, 2, v8")
e(f"s_lshl_b32 s{sT0}, s{sEB}, 5")
e(f"v_add_u32 v8, s{sT0}, v8")
e("v_sub_u32 v9, 0x200, v8")
e("v_sub_u32 v10, 0x800, v13")
e("v_and_b32 v10, 0x7ff, v10               ; (2048 - ts) & 2047")
e(f"s_cmp_lt_u32 s{sEB}, 8")
e("s_cselect_b64 vcc, 0, -1")
e("v_cndmask_b32 v8, v8, v9, vcc")
e("v_cndmask_b32 v11, v13, v10, vcc")
e("v_lshlrev_b32 v10, 12, v10")
e(f"v_lshl_add_u32 v{vDIM}, v4, 6, v10")
e("v_lshlrev_b32 v10, 12, v13")
e(f"v_lshl_add_u32 v{vDRE}, v4, 6, v10")
e("v_lshlrev_b32 v10, 18, v3")
e(f"v_lshl_add_u32 v{vF}, v4, 4, v10")
e(f"v_lshrrev_b32 v10, 3, v{vL}")
e("v_lshlrev_b32 v10, 5, v10")
e(f"v_and_b32 v9, 7, v{vL}")
e("v_add_u32 v10, v10, v9")
e(f"v_lshlrev_b32 v{vPK}, 7, v10             ; K/V flags 32g + (0..7)")
e("v_lshlrev_b32 v11, 11, v11")
e(f"v_lshl_add_u32 v{vB2O}, v4, 5, v11")
e(f"v_mul_u32_u24 v9, {32*HROW}, v4")
e(f"v_lshl_add_u32 v{vB2A}, v8, 2, v9")
e(f"s_cmp_eq_u32 s{sRET}, 0")
e(f"s_mov_b32 s{sRET}, 2")
e("s_cbranch_scc1 L_tagged")
lab("L_addr_2")
e(f"v_mov_b32 v{vCNT}, {MISC+C_G1}")
e(f"v_mov_b32 v{vCNT+1}, 1")
e("s_waitcnt vmcnt(0)")
stamp(18)
e("s_barrier")
poll("L_pollKV", 1, vPK, 8, [sKP], sleep=1)
stamp(4)
e("s_setprio 0")
LOW[0] = True
sXS, sWS_ = sT3, sT4
e(f"s_lshl_b32 s{sXS}, s{sS2}, 10")
e(f"s_lshl_b32 s{sWS_}, s{sCB}, 14")
e(f"s_add_u32 s{sT0}, s{sXS}, {4*65536}")
e(f"s_add_u32 s{sT1}, s{sXS}, {16*65536}")
e(f"s_add_u32 s{sT2}, s{sXS}, {20*65536}")
e(f"s_add_u32 s{sINC}, s{sWS_}, 4096")
def b1load(c):
    b = BUF + 32*(c % 4); o = 128*c
    e(f"buffer_load_dwordx4 {vr(b,4)}, v{vXE}, {sr(R_XB,4)}, s{sXS} offen offset:{o}")
    e(f"buffer_load_dwordx4 {vr(b+4,4)}, v{vXO}, {sr(R_XB,4)}, s{sT0} offen offset:{o}")
    e(f"buffer_load_dwordx4 {vr(b+8,4)}, v{vXE}, {sr(R_XB,4)}, s{sT1} offen offset:{o}")
    e(f"buffer_load_dwordx4 {vr(b+12,4)}, v{vXO}, {sr(R_XB,4)}, s{sT2} offen offset:{o}")
    e(f"buffer_load_dwordx4 {vr(b+16,4)}, v{vWE}, {sr(R_HRE,4)}, s{sWS_} offen offset:{o}")
    e(f"buffer_load_dwordx4 {vr(b+20,4)}, v{vWO_}, {sr(R_HRE,4)}, s{sINC} offen offset:{o}")
    e(f"global_load_dwordx4 {vr(b+24,4)}, {vr(vG,2)}, off offset:{o}")
    e(f"buffer_load_dwordx4 {vr(b+28,4)}, v{vWO_}, {sr(R_HIM,4)}, s{sINC} offen offset:{o}")
for G in range(1, 3): kvdma(G)
e("s_waitcnt vmcnt(4)")
e(f"ds_add_u32 v{vCNT}, v{vCNT+1}")
for G in range(3, 8): kvdma(G)
b1load(0); b1load(1)
stamp(17)
e("s_waitcnt vmcnt(16)")
e(f"ds_add_u32 v{vCNT}, v{vCNT+1} offset:4")
stamp(21)
if opt["nob"]:
    e("s_branch L_tailprep")
XF, WF = D1, D2
RAW = BP
issued = 16
def order(c):
    extra = 4 if c >= 4 else 0
    return 8*c + 4 + extra, 8*c + 8 + extra
def b1mfma(c):
    for s_ in range(4):
        e(f"v_mfma_f32_32x32x16_bf16 {vr(ACC,16)}, {vr(XF+4*s_,4)}, {vr(WF+4*s_,4)}, {'0' if c==0 and s_==0 else vr(ACC,16)}")
for c in range(8):
    b = BUF + 32*(c % 4)
    px, pw = order(c)
    e(f"s_waitcnt vmcnt({issued - px}) lgkmcnt(0)")
    for i in range(4): e(f"ds_write_b128 v{vSW}, {vr(b+4*i,4)} offset:{1024*i}")
    if c == 0:
        b1load(2); issued += 8
    else: b1mfma(c - 1)
    e("s_waitcnt lgkmcnt(0)")
    for s_ in range(4): e(f"ds_read_b128 {vr(XF+4*s_,4)}, v{vRD+s_}")
    e(f"s_waitcnt vmcnt({issued - pw}) lgkmcnt(0)")
    for i in range(4): e(f"ds_write_b128 v{vSW}, {vr(b+16+4*i,4)} offset:{1024*i}")
    if c == 0:
        b1load(3); issued += 8
        for kb in range(2): e(f"buffer_load_dwordx4 {vr(FR+4*kb,4)}, v{vF}, {sr(R_SRE,4)}, 0 offen offset:{32*kb}")
        for kb in range(2): e(f"buffer_load_dwordx4 {vr(FR+8+4*kb,4)}, v{vF}, {sr(R_SIM,4)}, 0 offen offset:{32*kb}")
        issued += 4
    e("s_waitcnt lgkmcnt(0)")
    for s_ in range(4): e(f"ds_read_b128 {vr(WF+4*s_,4)}, v{vRD+s_}")
    if c + 4 < 8:
        b1load(c + 4); issued += 8
    if c == 4:
        cm("rows of the sequence DFT matrices for B2")
        for i in range(4): e(f"buffer_load_dwordx4 {vr(RAW+4*i,4)}, v{vDRE}, {sr(R_SRE,4)}, 0 offen offset:{16*i}")
        for i in range(4): e(f"buffer_load_dwordx4 {vr(RAW+16+4*i,4)}, v{vDIM}, {sr(R_SIM,4)}, 0 offen offset:{16*i}")
        issued += 8
    if c == 5:
        cm("pull this wave's quarter of the wo slice towards L2 (one dword per 128-B line)")
        e(f"s_lshl_b32 s{sT0}, s{sA}, 17")
        e(f"s_lshl_b32 s{sT1}, s{sHG}, 7")
        e(f"s_add_u32 s{sT0}, s{sT0}, s{sT1}")
        e(f"s_add_u32 s{sT1}, s{sT0}, 65536")
        e(f"buffer_load_dword v{vPK}, v{vPW}, {sr(R_WO,4)}, s{sT0} offen")
        e(f"buffer_load_dword v{vF}, v{vPW}, {sr(R_WO,4)}, s{sT1} offen")
        issued += 2
e("s_waitcnt lgkmcnt(0)")
b1mfma(7)
stamp(22)
e(f"s_mul_i32 s{sT0}, s{sS2}, {HROW}")
e(f"s_lshl_b32 s{sT1}, s{sCB}, 6")
e(f"s_add_u32 s{sT0}, s{sT0}, s{sT1}")
e(f"s_add_u32 s{sT0}, s{sT0}, {WS_H}")
nop(7)
vZ = BUF
def boost(on):
    e(f"s_setprio {2 if on else 0}"); LOW[0] = not on
boost(1)
for i in range(8): e(f"v_cvt_pk_bf16_f32 v{vZ+i}, v{ACC+2*i}, v{ACC+2*i+1}")
boost(0)
nop(1)
e(f"v_mfma_f32_32x32x16_bf16 {vr(D1,16)}, {vr(vZ,4)}, {vr(FR,4)}, 0")
e(f"v_mfma_f32_32x32x16_bf16 {vr(D2,16)}, {vr(vZ,4)}, {vr(FR+8,4)}, 0")
e(f"v_mfma_f32_32x32x16_bf16 {vr(D1,16)}, {vr(vZ+4,4)}, {vr(FR+4,4)}, {vr(D1,16)}")
e(f"v_mfma_f32_32x32x16_bf16 {vr(D2,16)}, {vr(vZ+4,4)}, {vr(FR+12,4)}, {vr(D2,16)}")
nop(11)
boost(1)
for r in range(8):
    e(f"v_sub_f32 v{ACC+r}, v{D1+r}, v{D2+8+r}")
    e(f"v_add_f32 v{ACC+8+r}, v{D2+r}, v{D1+8+r}")
e(f"s_cmp_eq_u32 s{sCB}, 0")
e("s_cbranch_scc0 L_nospecial")
cm("columns e = 0 and e = 256 (both purely real rows): lanes 0..31, register 0")
e("s_mov_b32 exec_hi, 0")
e(f"v_mov_b32 v{ACC}, v{D1}")
e(f"v_mov_b32 v{ACC+8}, v{D2}")
e(f"v_cvt_pk_bf16_f32 v8, v{D1+8}, v{D2+8}")
e(f"buffer_store_dword v8, v{vHA}, {sr(R_WS,4)}, s{sT0} offen offset:1024 sc1")
e("s_mov_b64 exec, -1")
lab("L_nospecial")
for r in range(8): e(f"v_cvt_pk_bf16_f32 v{vZ+r}, v{ACC+r}, v{ACC+8+r}")
e(f"buffer_store_dwordx4 {vr(vZ,4)}, v{vHA}, {sr(R_WS,4)}, s{sT0} offen sc1")
e(f"buffer_store_dwordx4 {vr(vZ+4,4)}, v{vHA}, {sr(R_WS,4)}, s{sT0} offen offset:16 sc1")
e(f"s_lshl_b32 s{sT1}, s2, 7")
e(f"s_add_u32 s{sT1}, s{sT1}, {FL_H}")
e("s_waitcnt vmcnt(0)")
signal("L_sigH", C_H, 3, sT1, 8)
stamp(5)
e(f"s_mov_b32 s{sT0}, 0x05040100")
e(f"s_mov_b32 s{sT3}, 0x07060302")
def bploc(o): return FR + o if o < 16 else (RAW + o - 16 if o < 24 else RAW + 16 + o - 24)
for i in range(16):
    e(f"v_perm_b32 v{bploc(2*i)}, v{RAW+16+i}, v{RAW+i}, s{sT0}")
    e(f"v_perm_b32 v{bploc(2*i+1)}, v{RAW+16+i}, v{RAW+i}, s{sT3}")
lab("L_tailprep")
boost(0)
sWOS, sWOL = 97, 85
e(f"s_lshl_b32 s{sWOS}, s{sHG}, 7")
e(f"s_lshr_b32 s{sT1}, s{sA}, 1")
e(f"s_lshl_b32 s{sT1}, s{sT1}, 6")
e(f"s_add_u32 s{sWOS}, s{sWOS}, s{sT1}")
e(f"s_lshl_b32 s{sWOL}, s{sA}, 12")
e(f"s_add_u32 s{sWOL}, s{sWOL}, {STG}")
def wo_round(R):
    for i in range(4):
        e(f"s_add_u32 m0, s{sWOL}, {1024*i}")
        e(f"s_add_u32 s{sT1}, s{sWOS}, {65536*R + 16384*i}")
        e(f"buffer_load_dwordx4 v{vWOD}, {sr(R_WO,4)}, s{sT1} offen lds")
    e("s_waitcnt vmcnt(0)")
    for i in range(4):
        e(f"ds_read_b64_tr_b16 {vr(BUF+16*R+4*i,2)}, v{vWOT} offset:{1024*i}")
        e(f"ds_read_b64_tr_b16 {vr(BUF+16*R+4*i+2,2)}, v{vWOT} offset:{1024*i+256}")
    e("s_waitcnt lgkmcnt(0)")
for R in range(opt['wo1']): wo_round(R)
stamp(6)
boost(1)
if opt['pre']:
    cm("aux wave 2 touches the O lines this workgroup will write and the 8 flags of its token block")
    e(f"s_cmp_eq_u32 s{sA}, 2")
    e("s_cbranch_scc0 L_nopre")
    e(f"v_lshrrev_b32 v8, 5, v{vL}")
    e(f"v_and_b32 v9, 31, v{vL}")
    e("v_lshlrev_b32 v9, 7, v9")
    e("v_lshl_add_u32 v8, v8, 15, v9")
    e(f"s_lshl_b32 s{sT0}, s{sTB}, 16")
    e(f"s_lshl_b32 s{sT1}, s{sHG}, 12")
    e(f"s_add_u32 s{sT0}, s{sT0}, s{sT1}")
    e(f"s_add_u32 s{sT0}, s{sT0}, {WS_O}")
    e(f"buffer_load_dword v10, v8, {sr(R_WS,4)}, s{sT0} offen sc1")
    e(f"v_and_b32 v9, 0x380, v{vPH}")
    e(f"s_lshl_b32 s{sT0}, s{sTB}, 10")
    e(f"s_add_u32 s{sT0}, s{sT0}, {FL_O}")
    e(f"buffer_load_dword v11, v9, {sr(R_WS,4)}, s{sT0} offen sc1")
    e("s_waitcnt vmcnt(0)")
    lab("L_nopre")
cm("aux wave 1: XCD ids of the 8 workgroups of this token block: ids 32*hg + (id & 31)")
e(f"s_cmp_eq_u32 s{sA}, 1")
e("s_cbranch_scc0 L_nosame")
e(f"v_and_b32 v8, 7, v{vL}")
e("v_lshlrev_b32 v8, 12, v8")
e(f"s_and_b32 s{sT0}, s2, 31")
e(f"s_lshl_b32 s{sT0}, s{sT0}, 7")
e(f"s_add_u32 s{sT0}, s{sT0}, {FL_X}")
e(f"buffer_load_dwordx2 v[10:11], v8, {sr(R_WS,4)}, s{sT0} offen sc1")
e(f"s_getreg_b32 s{sX}, hwreg(HW_REG_XCC_ID, 0, 4)")
e(f"s_or_b32 s{sX}, s{sX}, s{sNON}")
e(f"s_mov_b32 s{sX+1}, s{sNON+1}")
e(f"v_mov_b32 v9, {MISC+C_SAME}")
e("s_waitcnt vmcnt(0)")
e(f"v_cmp_ne_u64 vcc, {sr(sX,2)}, v[10:11]")
e("s_nop 0")
e("s_cmp_eq_u64 vcc, 0")
e(f"s_cselect_b32 s{sT0}, {1 if opt['fast'] else 0}, 0")
e(f"v_mov_b32 v11, s{sT0}")
e("ds_write_b32 v9, v11")
lab("L_nosame")
if opt['nob']: e("s_branch L_b2done")
cm("B2: wait for the H rows it reads: column groups ebg (direct) or 7-ebg and (8-ebg)&3 (mirrored)")
e(f"s_cmp_eq_u32 s{sA}, 0")
e("s_cbranch_scc0 L_hwait")
e(f"s_lshr_b32 s{sT2}, s{sJ}, 2              ; ebg")
e(f"s_sub_u32 s{sT0}, 7, s{sT2}")
e(f"s_sub_u32 s{sT1}, 8, s{sT2}")
e(f"s_and_b32 s{sT1}, s{sT1}, 3")
e(f"s_cmp_lt_u32 s{sT2}, 4")
e(f"s_cselect_b32 s{sT0}, s{sT2}, s{sT0}")
e(f"s_cselect_b32 s{sT1}, s{sT2}, s{sT1}")
e(f"s_lshl_b32 s{sT0}, s{sT0}, 13")
e(f"s_lshl_b32 s{sT1}, s{sT1}, 13")
e(f"s_add_u32 s{sT0}, s{sT0}, {FL_H}")
e(f"s_add_u32 s{sT1}, s{sT1}, {FL_H}")
poll("L_pollH", 2, vPH, 8, [sT0, sT1], sleep=8)
e(f"v_mov_b32 v10, {MISC+C_HOK}")
e("v_mov_b32 v11, 1")
e("ds_write_b32 v10, v11")
e("s_branch L_hok")
lab("L_hwait")
lds_wait("L_hw", C_HOK, 1, 10, sleep=8)
lab("L_hok")
boost(0)
stamp(7)
e(f"s_mul_i32 s{sT0}, s{sT1S}, {64*HROW}")
e(f"s_add_u32 s{sT0}, s{sT0}, {WS_H}")
AF = 208
for kb in range(8):
    for w in range(4): e(f"buffer_load_dword v{AF+4*kb+w}, v{vB2A}, {sr(R_WS,4)}, s{sT0} offen offset:{w*HROW} sc1")
    if kb < 7: e(f"s_add_u32 s{sT0}, s{sT0}, {4*HROW}")
e(f"s_lshl_b32 s{sT0}, s{sEB}, 6")
e(f"s_add_u32 s{sT0}, s{sT0}, 1024")
for kb in range(8):
    e(f"s_waitcnt vmcnt({28-4*kb})")
    e(f"v_mfma_f32_32x32x16_bf16 {vr(ACC,16)}, {vr(AF+4*kb,4)}, {vr(bploc(4*kb),4)}, {'0' if kb==0 else vr(ACC,16)}")
nop(11)
boost(1)
for i in range(8): e(f"v_cvt_pk_bf16_f32 v{AF+i}, v{ACC+2*i}, v{ACC+2*i+1}")
e(f"buffer_store_dwordx4 {vr(AF,4)}, v{vB2O}, {sr(R_OUT,4)}, s{sT0} offen{OSC}")
e(f"buffer_store_dwordx4 {vr(AF+4,4)}, v{vB2O}, {sr(R_OUT,4)}, s{sT0} offen offset:16{OSC}")
lab("L_b2done")
boost(0)
stamp(8)
for R in range(opt['wo1'], 8): wo_round(R)
e(f"s_mov_b32 s{sT0}, s{sWOS}")
stamp(10)
warm("L_padt", "L_pado_ret")
cm("tail: the attention waves bring the O tile -> LDS 0..")
e("s_barrier                             ; B7")
LOW[0] = False
stamp(9)
e("s_barrier                             ; B8a")
pad_begin("L_pado")
OF = 144
korder = [h for h in range(32) if h % 8 < 4] + [h for h in range(32) if h % 8 >= 4]
def ofrag(n): e(f"ds_read_b128 {vr(OF+4*(n%8),4)}, v{vOF} offset:{1024*korder[n]}")
for n in range(7): ofrag(n)
for n in range(32):
    if n + 7 == 16:
        e("s_barrier                             ; B8b")
    if n + 7 < 32:
        ofrag(n + 7)
        e("s_waitcnt lgkmcnt(7)")
    else:
        e(f"s_waitcnt lgkmcnt({31-n})")
    e(f"v_mfma_f32_32x32x16_bf16 {vr(ACC,16)}, {vr(BUF+4*korder[n],4)}, {vr(OF+4*(n%8),4)}, {'0' if n==0 else vr(ACC,16)}")
nop(12)
for i in range(8): e(f"v_cvt_pk_bf16_f32 v{D1+i}, v{ACC+2*i}, v{ACC+2*i+1}")
e(f"buffer_store_dwordx4 {vr(D1,4)}, v{vOUT}, {sr(R_OUT,4)}, s{sT0} offen{OSC}")
e(f"buffer_store_dwordx4 {vr(D1+4,4)}, v{vOUT}, {sr(R_OUT,4)}, s{sT0} offen offset:16{OSC}")
pad_end("L_pado", "L_pado_ret")
if opt['dbgt']:
    e(f"s_cmp_lt_u32 s2, 6")
    e("s_cbranch_scc0 L_end")
    e(f"s_cmp_eq_u32 s{sW}, 4")
    e("s_cbranch_scc0 L_end")
    e("s_waitcnt vmcnt(0)")
    e(f"s_memrealtime {sr(sST,2)}")
    e("s_waitcnt lgkmcnt(0)")
    e(f"v_mov_b32 v4, s{sST}")
    e(f"s_lshl_b32 s{sT0}, s2, 2")
    e(f"s_add_u32 s{sT0}, s{sT0}, 40")
    e("s_mov_b64 exec, 1")
    e(f"buffer_store_dword v4, off, {sr(R_DBG,4)}, s{sT0}")
if opt['endat']:
    lab("L_endat")
    e(f"s_memrealtime {sr(sX,2)}")
    e("s_waitcnt lgkmcnt(0)")
    e(f"s_sub_u32 s{sX}, s{sX}, s30")
    e(f"s_cmp_lt_u32 s{sX}, {opt['endat']}")
    e("s_cbranch_scc1 L_endat")
stamp(12)
if opt['stamps']: e("s_waitcnt vmcnt(0)")
stamp(13)
stamp_dump()
lab("L_end")
e("s_endpgm")
lab("L_codeend")
L.append(f""".section .rodata,"a"
.p2align 6
.amdhsa_kernel {NAME}_kernel
  .amdhsa_next_free_vgpr 256
  .amdhsa_next_free_sgpr 102
  .amdhsa_accum_offset 256
  .amdhsa_group_segment_fixed_size 0
  .amdhsa_kernarg_size 104
  .amdhsa_user_sgpr_count 2
  .amdhsa_user_sgpr_kernarg_segment_ptr 1
  .amdhsa_system_sgpr_workgroup_id_x 1
.end_amdhsa_kernel""")

def finish(lines, ncode):
    out = []
    for l in lines:
        if l.strip() == "CODEPF":
            for i in range(ncode // 8192):
                out.append(f"    global_load_dword v200, v[212:213], off")
                out.append(f"    v_add_co_u32 v212, vcc, 0x2000, v212")
                out.append(f"    s_nop 1")
                out.append(f"    v_addc_co_u32 v213, vcc, 0, v213, vcc")
            rem = (ncode % 8192) // 128
            if rem:
                out.append(f"    v_cmp_gt_u32 vcc, {rem}, v{vL}")
                out.append(f"    s_nop 0")
                out.append(f"    s_and_saveexec_b64 {sr(sX,2)}, vcc")
                out.append(f"    global_load_dword v200, v[212:213], off")
                out.append(f"    s_mov_b64 exec, -1")
        else: out.append(l)
    return "\n".join(out) + "\n"
import subprocess, os, hazcheck
ncode = 16384
for _ in range(3):
    txt = finish(L, ncode)
    open("_g.s", "w").write(txt)
    r = subprocess.run(["clang", "-x", "assembler", "-target", "amdgcn-amd-amdhsa", "-mcpu=gfx950", "-c", "_g.s", "-o", "_g.o"], capture_output=True, text=True)
    if r.returncode: print(r.stderr[:3000]); sys.exit(1)
    sz = subprocess.run(["llvm-objdump", "-h", "_g.o"], capture_output=True, text=True).stdout
    n = [int(x.split()[2], 16) for x in sz.splitlines() if " .text " in x][0]
    if n // 128 * 128 == ncode: break
    ncode = n // 128 * 128
open(sys.argv[1], "w").write(txt)
print(hazcheck.check(txt), "hazards; code bytes", n)
```

```python
import sys, struct
NAME = "concat_heads__grouped_kv_mqa__spectral_fnet__prompt"
opt = dict(stamps=0, prioA=1, prioX=2, boost=1, force_fb=0, dbgt=0, dry=0, codepf=0, shift=98, outsc1=0, cluster=1, fast=1, nob=0, l2pf=0, wo1=4, hold=1, pre=1, pads=0, dxcc=-1, dus=300, endat=0, omode=1, b2tail=1, kvd=3, h1=1, h2=4, fs=3, ntc=1)
for a in sys.argv[2:]:
    k, v = a.split('='); opt[k] = int(v)

L = []
def e(s=""): L.append("    " + s)
def lab(s): L.append(s + ":")
def cm(s): L.append("    ; " + s)
def vr(a, n): return f"v[{a}:{a+n-1}]" if n > 1 else f"v{a}"
def sr(a, n): return f"s[{a}:{a+n-1}]" if n > 1 else f"s{a}"
def nop(n):
    while n > 0:
        k = min(n, 16); e(f"s_nop {k-1}"); n -= k
def f2u(x): return struct.unpack('<I', struct.pack('<f', x))[0]
OSC = " sc1" if opt['outsc1'] else ""

W_OFF = 0
X_OFF, XROW = 16384, 1040
WQ_OFF = 82944
ONES_OFF = 148480
MISC = 156672
STG = 131072
LDS_BYTES = 156800
C_KV, C_H, C_O, C_TAG, C_HOK, C_SAME, C_CR, C_QA, C_QB, C_G1, C_KVL = 0, 4, 8, 16, 24, 28, 32, 36, 40, 44, 48
WS_KV, WS_O, WS_H, WS_FL = 0, 0x40000, 0x240000, 0x480000
FL_KV, FL_H, FL_O, FL_X = WS_FL, WS_FL + 0x8000, WS_FL + 0x10000, WS_FL + 0x18000
WS_STAMP = 0x4A0000
WS_SIZE = 0x540000
HROW = 1056
SPIN = 400000
VSCALE = 64
P_XA, P_WQ, P_WK, P_WV, P_WO, P_XB, P_SRE, P_SIM = 4, 6, 8, 10, 12, 14, 16, 18
P_HRE, P_HIM, P_OUT, P_DBG, P_WS = 20, 22, 24, 26, 28
R_XA, R_WQ, R_W, R_WS, R_WO, R_XB, R_SRE, R_SIM, R_OUT, R_DBG = 32, 36, 40, 44, 48, 52, 56, 60, 64, 68
sW, sXCD, sJ, sTB, sHG, sTHP, sA = 72, 73, 74, 75, 76, 77, 78
sT0, sT1, sT2, sT3, sT4 = 80, 81, 82, 83, 84
sDRY = 85
sNON = 86
sIT, sINC, sFB, sSPIN = 88, 89, 90, 91
sX = 92
sST = 94
sBARN = 96
sRET = 90

def srd(r, p, size):
    e(f"s_mov_b32 s{r}, s{p}")
    e(f"s_and_b32 s{r+1}, s{p+1}, 0xffff")
    e(f"s_mov_b32 s{r+2}, {hex(size)}")
    e(f"s_mov_b32 s{r+3}, 0x20000")

LOW = [False]
vL = 1
def stamp(idx):
    if not opt['stamps']: return
    e(f"s_memrealtime {sr(sST,2)}")
    e(f"s_memtime {sr(sX,2)}")
    e("s_waitcnt lgkmcnt(0)")
    if LOW[0]: e("s_setprio 2")
    e(f"v_writelane_b32 v254, s{sST}, {idx}")
    e(f"v_writelane_b32 v255, s{sX}, {idx}")
    if LOW[0]: e("s_setprio 0")
def stamp_dump():
    if not opt['stamps']: return
    e(f"s_lshl_b32 s{sST}, s2, 3")
    e(f"s_add_u32 s{sST}, s{sST}, s{sW}")
    e(f"s_lshl_b32 s{sST}, s{sST}, 8")
    e(f"s_add_u32 s{sST}, s{sST}, {WS_STAMP}")
    e(f"v_lshlrev_b32 v253, 3, v{vL}")
    e("s_mov_b32 exec_hi, 0")
    e(f"buffer_store_dwordx2 v[254:255], v253, {sr(R_WS,4)}, s{sST} offen")

PADS = {}
def pad_begin(name): PADS[name] = len(L)
def isize(l):
    t = l.strip()
    if not t or t.startswith((';', '.')) or t.endswith(':'): return 0
    t = t.split(';')[0]
    mn = t.split()[0]
    if mn.startswith(('buffer_', 'global_', 'ds_', 'v_mfma', 'v_smfmac', 's_load', 's_mem')): return 8
    if mn.startswith('v_') and (mn.endswith('_e64') or mn in ('v_lshl_add_u32', 'v_bfe_u32', 'v_perm_b32', 'v_max3_f32', 'v_cvt_pk_bf16_f32', 'v_writelane_b32', 'v_mul_u32_u24', 'v_cmp_ne_u64')): return 8
    import re as _r
    for o in _r.findall(r'(?<![\w\[:])(-?0x[0-9a-f]+|-?\d+)(?![\w\]:])', (t.split(None, 1) + [''])[1]):
        v = int(o, 0)
        if not mn.startswith(('s_waitcnt', 's_nop', 's_sleep', 's_setprio')) and not -16 <= v <= 64: return 8
    return 4
def pad_end(name, ret):
    a = PADS[name]
    if not opt['pads']:
        L.insert(a, f"{name}_0:"); L.insert(a + 1, f"    s_cbranch_execz {ret}"); return
    body = L[a:]; del L[a:]
    n = 0; acc = 0
    L.append(f"{name}_0:"); L.append(f"    s_cbranch_execz {name}_1")
    for l in body:
        z = isize(l)
        prev = L[-1].strip()
        if acc + z > 56 and not prev.startswith(('s_mov_b32 m0', 's_add_u32 m0')):
            n += 1; L.append(f"{name}_{n}:"); L.append(f"    s_cbranch_execz {name}_{n+1}"); acc = 0
        L.append(l); acc += z
    n += 1
    L.append(f"{name}_{n}:"); L.append(f"    s_cbranch_execz {ret}")
def warm(name, ret):
    e("s_mov_b64 exec, 0")
    e(f"s_branch {name}_0")
    lab(ret)
    e("s_mov_b64 exec, -1")

def dma(voff, srdr, soff, ldsaddr_s, extra=""):
    e(f"s_mov_b32 m0, s{ldsaddr_s}")
    e("s_nop 0")
    e(f"buffer_load_dwordx4 v{voff}, {sr(srdr,4)}, s{soff} offen {extra}lds")
def dma_run(n, voff, srdr, soff, lds_s, dsrc, dlds, extra=""):
    for i in range(n):
        e(f"s_mov_b32 m0, s{lds_s}")
        if i < n - 1: e(f"s_add_u32 s{lds_s}, s{lds_s}, {dlds}")
        else: e("s_nop 0")
        e(f"buffer_load_dwordx4 v{voff}, {sr(srdr,4)}, s{soff} offen {extra}lds")
        if i < n - 1: e(f"s_add_u32 s{soff}, s{soff}, {dsrc}")

def poll(name, nloads, voff, dst, soffs, sleep=0):
    e(f"s_mov_b32 s{sSPIN}, {SPIN}")
    lab(name)
    for i in range(nloads):
        e(f"buffer_load_dwordx2 {vr(dst+2*i,2)}, v{voff}, {sr(R_WS,4)}, s{soffs[i]} offen sc1")
    e(f"s_sub_u32 s{sSPIN}, s{sSPIN}, 1")
    e(f"s_cmp_eq_u32 s{sSPIN}, 0")
    e(f"s_cbranch_scc1 {name}_done")
    e("s_waitcnt vmcnt(0)")
    e(f"v_cmp_ne_u64 vcc, {sr(sNON,2)}, {vr(dst,2)}")
    for i in range(1, nloads):
        e(f"v_cmp_ne_u64 {sr(sX,2)}, {sr(sNON,2)}, {vr(dst+2*i,2)}")
        e("s_nop 0")
        e(f"s_or_b64 vcc, vcc, {sr(sX,2)}")
    e("s_nop 0")
    e("s_cmp_eq_u64 vcc, 0")
    if sleep:
        e(f"s_cbranch_scc1 {name}_done")
        e(f"s_sleep {sleep}")
        e(f"s_branch {name}")
    else:
        e(f"s_cbranch_scc0 {name}")
    lab(name + "_done")
    e("s_waitcnt vmcnt(0)")

def lds_wait(name, off, value, tmp, sleep=0):
    e(f"s_mov_b32 s{sSPIN}, {SPIN*8}")
    e(f"v_mov_b32 v{tmp}, {MISC + off}")
    lab(name)
    e(f"ds_read_b32 v{tmp+1}, v{tmp}")
    e(f"s_sub_u32 s{sSPIN}, s{sSPIN}, 1")
    e(f"s_cmp_eq_u32 s{sSPIN}, 0")
    e(f"s_cbranch_scc1 {name}_done")
    e("s_waitcnt lgkmcnt(0)")
    e(f"v_readfirstlane_b32 s{sT4}, v{tmp+1}")
    e("s_nop 0")
    e(f"s_cmp_ge_u32 s{sT4}, {value}")
    if sleep:
        e(f"s_cbranch_scc1 {name}_done")
        e(f"s_sleep {sleep}")
        e(f"s_branch {name}")
    else:
        e(f"s_cbranch_scc0 {name}")
    lab(name + "_done")
    e("s_waitcnt lgkmcnt(0)")
def lds_add(off, tmp):
    e(f"v_mov_b32 v{tmp}, {MISC + off}")
    e(f"v_mov_b32 v{tmp+1}, 1")
    e("s_mov_b64 exec, 1")
    e(f"ds_add_u32 v{tmp}, v{tmp+1}")
    e("s_mov_b64 exec, -1")
def tag_from_lds(name, tmp):
    e(f"s_mov_b32 s{sSPIN}, {SPIN*8}")
    e(f"v_mov_b32 v{tmp}, {MISC+C_TAG}")
    lab(name)
    e(f"ds_read_b64 {vr(tmp+2,2)}, v{tmp}")
    e(f"s_sub_u32 s{sSPIN}, s{sSPIN}, 1")
    e(f"s_cmp_eq_u32 s{sSPIN}, 0")
    e(f"s_cbranch_scc1 {name}_done")
    e("s_waitcnt lgkmcnt(0)")
    e(f"v_readfirstlane_b32 s{sNON}, v{tmp+2}")
    e(f"v_readfirstlane_b32 s{sNON+1}, v{tmp+3}")
    e(f"s_cmp_lg_u32 s{sNON}, 0")
    e(f"s_cbranch_scc1 {name}_done")
    e(f"s_sleep {opt['fs']}")
    e(f"s_branch {name}")
    lab(name + "_done")
    e("s_waitcnt lgkmcnt(0)")

def signal(name, ctr_off, last, flag_soff_s, tmp, lo=None, plain_if=None):
    e(f"v_mov_b32 v{tmp}, {MISC + ctr_off}")
    e(f"v_mov_b32 v{tmp+1}, 1")
    e(f"s_mov_b64 exec, 1")
    e(f"ds_add_rtn_u32 v{tmp+1}, v{tmp}, v{tmp+1}")
    e(f"v_mov_b32 v{tmp+2}, s{sNON if lo is None else lo}")
    e(f"v_mov_b32 v{tmp+3}, s{sNON+1}")
    e("s_waitcnt lgkmcnt(0)")
    e(f"v_readfirstlane_b32 s{sT4}, v{tmp+1}")
    e("s_nop 0")
    e(f"s_cmp_eq_u32 s{sT4}, {last}")
    e(f"s_cbranch_scc0 {name}_nf")
    if plain_if is not None:
        e(f"s_cmp_eq_u32 s{plain_if}, 0")
        e(f"s_cbranch_scc1 {name}_wt")
        e(f"buffer_store_dwordx2 {vr(tmp+2,2)}, off, {sr(R_WS,4)}, s{flag_soff_s}")
        if opt['omode'] < 2: e(f"s_branch {name}_nf")
        lab(name + "_wt")
    e(f"buffer_store_dwordx2 {vr(tmp+2,2)}, off, {sr(R_WS,4)}, s{flag_soff_s} sc1")
    lab(name + "_nf")
    e("s_mov_b64 exec, -1")

hdr = open(f"cdna_kernels/{NAME}.s.ref").read().split("; Override launch")[0]
L.append(hdr.rstrip())
L.append(f"; @launch grid=(256,1,1) block=(512,1,1) lds={LDS_BYTES}")
L.append('.amdgcn_target "amdgcn-amd-amdhsa--gfx950"')
L.append(".text")
L.append(f".globl {NAME}_kernel")
L.append(".p2align 8")
L.append(f".type {NAME}_kernel,@function")
lab(f"{NAME}_kernel")
e("s_cmp_ge_u32 s2, 256")
e("s_cbranch_scc1 L_end")
e("s_load_dwordx16 s[4:19], s[0:1], 0")
e("s_load_dwordx8 s[20:27], s[0:1], 64")
e("s_load_dwordx2 s[28:29], s[0:1], 96")
e(f"s_memrealtime {sr(sNON,2)}")
if opt['endat']:
    e("s_waitcnt lgkmcnt(0)")
    e(f"s_mov_b32 s30, s{sNON}")
if opt['dxcc'] >= 0:
    e(f"s_getreg_b32 s{sT0}, hwreg(HW_REG_XCC_ID, 0, 4)")
    e(f"s_cmp_eq_u32 s{sT0}, {opt['dxcc']}") if opt['dxcc'] < 8 else e(f"s_cmp_eq_u32 s{sT0}, s{sT0}")
    e("s_cbranch_scc0 L_nodelay")
    e("s_waitcnt lgkmcnt(0)")
    lab("L_delay")
    e(f"s_memrealtime {sr(sX,2)}")
    e("s_waitcnt lgkmcnt(0)")
    e(f"s_sub_u32 s{sX}, s{sX}, s{sNON}")
    e(f"s_cmp_lt_u32 s{sX}, {opt['dus']}")
    e("s_cbranch_scc1 L_delay")
    lab("L_nodelay")
e("v_lshrrev_b32 v2, 6, v0")
e(f"v_and_b32 v{vL}, 63, v0")
e(f"v_readfirstlane_b32 s{sW}, v2")
e(f"s_and_b32 s{sXCD}, s2, 7")
e(f"s_lshr_b32 s{sJ}, s2, 3")
e(f"s_and_b32 s{sT0}, s{sJ}, 3")
e(f"s_lshl_b32 s{sTB}, s{sXCD}, 2")
e(f"s_add_u32 s{sTB}, s{sTB}, s{sT0}")
e(f"s_lshr_b32 s{sHG}, s{sJ}, 2")
e(f"s_lshr_b32 s{sTHP}, s{sHG}, 1")
e(f"s_and_b32 s{sA}, s{sW}, 3")
e(f"v_lshlrev_b32 v2, 4, v{vL}          ; v2 = lane*16")
cm("LDS init while the kernel arguments load: ones / zeros window (even 16-B chunks 2^64, odd chunks 0), counters")
ONE = (127 + VSCALE) << 7
e("v_and_b32 v4, 1, v0")
e("v_add_u32 v4, -1, v4")
e(f"v_and_b32 v4, {hex(ONE << 16 | ONE)}, v4")
e("v_mov_b32 v5, v4")
e("v_mov_b32 v6, v4")
e("v_mov_b32 v7, v4")
e(f"v_lshlrev_b32 v3, 4, v0")
e(f"v_add_u32 v3, {ONES_OFF}, v3")
e("ds_write_b128 v3, v[4:7]")
e("v_mov_b32 v8, 0")
e(f"v_lshlrev_b32 v9, 1, v{vL}")
e("v_and_b32 v9, 0x7c, v9")
e(f"v_add_u32 v9, {MISC}, v9")
e("ds_write_b32 v9, v8")
e(f"s_mov_b32 s{R_XA+2}, 0x200000")
e(f"s_mov_b32 s{R_XA+3}, 0x20000")
e(f"s_cmp_ge_u32 s{sW}, 4")
e("s_cbranch_scc1 L_aux")

cm("wq slice (8 rows x 128 B per load, 16-B chunks swizzled by row bit 1); quarter tb&3 first: distinct among its 4 sharers")
e(f"v_lshrrev_b32 v3, 3, v{vL}          ; r")
e(f"v_and_b32 v4, 7, v{vL}")
e(f"v_bfe_u32 v5, v{vL}, 4, 1           ; (r>>1)&1")
e("v_lshlrev_b32 v5, 2, v5")
e("v_xor_b32 v4, v4, v5")
e("v_lshlrev_b32 v4, 4, v4")
e("v_lshl_add_u32 v13, v3, 10, v4")
e(f"s_mov_b32 s{R_WQ+2}, 0x80000")
e(f"s_mov_b32 s{R_WQ+3}, 0x20000")
def wq_addr(q):
    e(f"s_add_u32 s{sT0}, s{sJ}, {q}")
    e(f"s_and_b32 s{sT0}, s{sT0}, 3")
    e(f"s_lshl_b32 s{sT0}, s{sT0}, 2")
    e(f"s_add_u32 s{sT0}, s{sT0}, s{sW}")
    e(f"s_lshl_b32 s{sT2}, s{sT0}, 15")
    e(f"s_lshl_b32 s{sT1}, s{sHG}, 7")
    e(f"s_add_u32 s{sT2}, s{sT2}, s{sT1}")
    e(f"s_lshl_b32 s{sT1}, s{sT0}, 12")
    e(f"s_add_u32 s{sT1}, s{sT1}, {WQ_OFF}")
wq_addr(0)
e("s_waitcnt lgkmcnt(0)")
e(f"s_mov_b32 s{R_WQ}, s{P_WQ}")
e(f"s_and_b32 s{R_WQ+1}, s{P_WQ+1}, 0xffff")
e(f"s_mov_b32 s{R_XA}, s{P_XA}")
e(f"s_and_b32 s{R_XA+1}, s{P_XA+1}, 0xffff")
stamp(0)
e("s_barrier")
NT = lambda b: "nt " if opt['ntc'] >> b & 1 else ""
dma_run(4, 13, R_WQ, sT2, sT1, 8192, 1024, NT(2))
cm("the 48 rows of the x tile the aux waves do not load: blocks blk+1, blk+2, blk+3 (mod 4), 4 rows per wave each")
def x_addr(d):
    e(f"s_add_u32 s{sT0}, s{sTHP}, {d}")
    e(f"s_and_b32 s{sT0}, s{sT0}, 3")
    e(f"s_lshl_b32 s{sT0}, s{sT0}, 2")
    e(f"s_add_u32 s{sT0}, s{sT0}, s{sW}")
    e(f"s_lshl_b32 s{sT0}, s{sT0}, 2")
    e(f"s_mul_i32 s{sT1}, s{sT0}, {XROW}")
    e(f"s_add_u32 s{sT1}, s{sT1}, {X_OFF}")
    e(f"s_lshl_b32 s{sT2}, s{sTB}, 6")
    e(f"s_add_u32 s{sT2}, s{sT2}, s{sT0}")
    e(f"s_lshl_b32 s{sT2}, s{sT2}, 10")
def hold(name, ctr, val):
    lds_wait(name, ctr, val, 8, sleep=opt['fs'])
seq = [('x', 1), ('x', 2), ('x', 3), ('q', 1), ('q', 2), ('q', 3)]
for n, (kind, d) in enumerate(seq):
    (x_addr if kind == 'x' else wq_addr)(d)
    if n == opt['h1']: hold("L_hold1", C_CR, 256)
    if n == opt['h2']: hold("L_hold2", C_KV, 64)
    if kind == 'x': dma_run(4, 2, R_XA, sT2, sT1, 1024, XROW, NT(3))
    else: dma_run(4, 13, R_WQ, sT2, sT1, 8192, 1024, NT(4))
stamp(7)
srd(R_WS, P_WS, WS_SIZE)
SA, SB, OA, OB, CA, CB = 16, 32, 48, 64, 80, 96
QA, QB, K0, K1, V0, V1 = 112, 116, 120, 124, 128, 136
vIDX, vK, vV = 144, 145, 146
vINC, vV0, vSAME = 147, 150, 151
vXA, vWA = 148, 149
FB = 152
cm("Q-projection addresses")
e(f"s_and_b32 s{sT0}, s{sW}, 1            ; th")
e(f"s_lshr_b32 s{sT1}, s{sW}, 1           ; hp")
e(f"v_and_b32 v3, 31, v{vL}")
e(f"s_lshl_b32 s{sT2}, s{sT0}, 5")
e(f"v_add_u32 v3, s{sT2}, v3")
e(f"v_mul_u32_u24 v3, {XROW}, v3")
e(f"v_lshrrev_b32 v4, 5, v{vL}           ; h")
e(f"v_lshl_add_u32 v14, v4, 4, v3")
e(f"v_bfe_u32 v5, v{vL}, 2, 2            ; r")
e("v_lshl_add_u32 v6, v4, 3, v5          ; 8h + r")
e("v_lshlrev_b32 v6, 7, v6")
e(f"v_bfe_u32 v7, v{vL}, 4, 1            ; g")
e(f"v_and_b32 v8, 1, v{vL}")
e("v_lshl_add_u32 v7, v7, 1, v8          ; 2g + (cc&1)")
e(f"s_lshl_b32 s{sT2}, s{sT1}, 2")
e(f"v_add_u32 v7, s{sT2}, v7")
e(f"v_bfe_u32 v8, v{vL}, 3, 1            ; (r>>1)&1")
e("v_lshlrev_b32 v8, 2, v8")
e("v_xor_b32 v7, v7, v8")
e("v_lshl_add_u32 v6, v7, 4, v6")
e(f"v_bfe_u32 v8, v{vL}, 1, 1")
e("v_lshl_add_u32 v6, v8, 3, v6")
e(f"v_add_u32 v{vWA}, {WQ_OFF}, v6")
e(f"v_add_u32 v{vXA}, {X_OFF}, v14")
cm("attention LDS addresses; V: rows 0..15 -> tile data, lanes 16,20 -> 2^64, other lanes -> 0")
e(f"v_mov_b32 v{vIDX}, 0xdddddddd")
e(f"v_bfe_u32 v5, v{vL}, 4, 1")
e(f"v_xor_b32 v5, 1, v5")
e(f"v_lshlrev_b32 v{vINC}, 13, v5")
e(f"v_and_b32 v8, 15, v{vL}")
e("v_lshlrev_b32 v9, 8, v4")
e("v_lshl_add_u32 v8, v8, 4, v9")
e(f"v_and_b32 v9, 31, v{vL}")
e("v_add_u32 v10, -20, v9")
e("v_cmp_gt_u32 vcc, 8, v10")
e("v_and_b32 v9, 11, v9")
e("v_min_u32 v9, 1, v9")
e("v_cndmask_b32 v10, 0, 64, vcc")
e(f"v_cmp_eq_u32 vcc, 1, v5")
e("v_lshl_add_u32 v9, v9, 4, v10")
e(f"v_add_u32 v9, {ONES_OFF - 1024}, v9")
e(f"v_cndmask_b32 v{vV0}, v9, v8, vcc")
cm("O fragment destination and flag slot")
sOD, sOF = 97, 98
e(f"s_and_b32 s{sT0}, s{sW}, 1")
e(f"s_lshl_b32 s{sT1}, s{sTB}, 1")
e(f"s_add_u32 s{sT0}, s{sT0}, s{sT1}")
e(f"s_lshl_b32 s{sT0}, s{sT0}, 5          ; (tb*2+th)*32")
e(f"s_lshl_b32 s{sT1}, s{sHG}, 2")
e(f"s_add_u32 s{sT0}, s{sT0}, s{sT1}")
e(f"s_and_b32 s{sT1}, s{sW}, 2")
e(f"s_add_u32 s{sT0}, s{sT0}, s{sT1}")
e(f"s_lshl_b32 s{sT0}, s{sT0}, 10")
e(f"s_add_u32 s{sOD}, s{sT0}, {WS_O}")
e(f"s_lshl_b32 s{sT1}, s{sTB}, 3")
e(f"s_add_u32 s{sT1}, s{sT1}, s{sHG}")
e(f"s_lshl_b32 s{sT1}, s{sT1}, 7")
e(f"s_add_u32 s{sOF}, s{sT1}, {FL_O}")
e(f"s_mov_b32 s{sFB}, 0")
e(f"s_mov_b32 s{sBARN}, 0xa")
e(f"v_mov_b32 v{vSAME}, {MISC}")
sPF, sOL, sOS, vPO = 100, 101, 79, 184
e(f"s_lshl_b32 s{sT0}, s{sTB}, 3")
e(f"s_lshl_b32 s{sT1}, s{sW}, 1")
e(f"s_add_u32 s{sT0}, s{sT0}, s{sT1}")
e(f"s_lshl_b32 s{sT0}, s{sT0}, 7")
e(f"s_add_u32 s{sPF}, s{sT0}, {FL_O}")
e(f"s_lshl_b32 s{sT2}, s{sTB}, 16")
e(f"s_lshl_b32 s{sOL}, s{sW}, 13")
e(f"s_add_u32 s{sT2}, s{sT2}, s{sOL}")
e(f"s_add_u32 s{sOS}, s{sT2}, {WS_O}")
e(f"v_and_b32 v8, 1, v{vL}")
e(f"v_lshlrev_b32 v{vPO}, 7, v8")
for i in range(16): e(f"v_mov_b32 v{OA+i}, 0")
for i in range(16): e(f"v_mov_b32 v{OB+i}, 0")
for i in range(4): e(f"v_mov_b32 v{V1+4+i}, 0")
e(f"v_mov_b32 v{vK}, v2")
e(f"v_mov_b32 v{vV}, v{vV0}")
e(f"s_mov_b32 s{sT0}, {hex(f2u(0.25*1.4426950408889634))}")
warm("L_padq", "L_padq_ret")
e("s_waitcnt vmcnt(0)")
stamp(8)
e("s_barrier")
stamp(10)
pad_begin("L_padq")
def qload(ks):
    b = FB + 8*(ks % 4)
    e(f"ds_read_b64_tr_b16 {vr(b,2)}, v{vWA} offset:{ks*2048}")
    e(f"ds_read_b64_tr_b16 {vr(b+2,2)}, v{vWA} offset:{ks*2048+512}")
    e(f"ds_read_b128 {vr(b+4,4)}, v{vXA} offset:{ks*32}")
for ks in range(3): qload(ks)
for ks in range(32):
    b = FB + 8*(ks % 4)
    if ks + 3 < 32:
        qload(ks + 3); e("s_waitcnt lgkmcnt(9)")
    else:
        e(f"s_waitcnt lgkmcnt({3*(31-ks)})")
    c = "0" if ks == 0 else vr(SA, 16)
    e(f"v_mfma_f32_32x32x16_bf16 {vr(SA,16)}, {vr(b,4)}, {vr(b+4,4)}, {c}")
stamp(9)
nop(12)
for i in range(16): e(f"v_mul_f32 v{SA+i}, s{sT0}, v{SA+i}")
for i in range(8): e(f"v_cvt_pk_bf16_f32 v{QA+i}, v{SA+2*i}, v{SA+2*i+1}")
if opt['prioA']: e(f"s_setprio {opt['prioA']}")
stamp(2)
e("s_barrier")
stamp(3)
cm("stand-in for the row max: max over key tile 0 (checked after the loop; fallback = true max)")
e(f"ds_read_b128 {vr(K0,4)}, v{vK}")
e(f"ds_read_b128 {vr(K1,4)}, v{vK} offset:2048")
e(f"ds_read_b128 {vr(V0,4)}, v{vV} offset:1024")
e(f"ds_read_b128 {vr(V0+4,4)}, v{vV} offset:1536")
e("s_waitcnt lgkmcnt(3)")
e(f"v_mfma_f32_32x32x16_bf16 {vr(SA,16)}, {vr(K0,4)}, {vr(QA,4)}, 0")
e(f"v_mfma_f32_32x32x16_bf16 {vr(SB,16)}, {vr(K0,4)}, {vr(QB,4)}, 0")
nop(11)
def max16(dst, s, acc=None):
    if acc is None:
        e(f"v_max3_f32 v{dst}, v{s}, v{s+1}, v{s+2}"); i = 3
        while i + 1 < 16:
            e(f"v_max3_f32 v{dst}, v{dst}, v{s+i}, v{s+i+1}"); i += 2
        e(f"v_max_f32 v{dst}, v{dst}, v{s+15}")
    else:
        for i in range(0, 16, 2): e(f"v_max3_f32 v{dst}, v{dst}, v{s+i}, v{s+i+1}")
max16(4, SA); max16(5, SB)
lab("L_setmax")
cm(f"v4 / v5 = per-lane max for tiles A / B; combine the two half-waves, C = -(max + {opt['shift']})")
e("v_mov_b32 v6, v4")
e("v_mov_b32 v7, v5")
e(f"s_mov_b32 s{sIT}, 0")
e("s_nop 0")
e("v_permlane32_swap_b32 v4, v6")
e("v_permlane32_swap_b32 v5, v7")
e("v_max_f32 v4, v4, v6")
e("v_max_f32 v5, v5, v7")
for i in range(16): e(f"v_sub_f32 v{CA+i}, {hex(f2u(-float(opt['shift'])))}, v4")
e(f"v_sub_f32 v{CB}, {hex(f2u(-float(opt['shift'])))}, v5")
e("s_waitcnt lgkmcnt(0)")
e(f"v_mfma_f32_32x32x16_bf16 {vr(SA,16)}, {vr(K0,4)}, {vr(QA,4)}, {vr(CA,16)}")
for i in range(1, 16): e(f"v_mov_b32 v{CB+i}, v{CB}")
for i in range(8): e(f"v_mov_b32 v{SB+8+i}, 0")
def SM(o, a, b): e(f"v_smfmac_f32_32x32x32_bf16 {vr(o,16)}, {vr(a,4)}, {vr(b,8)}, v{vIDX}")
def QK(d, k, q, c): e(f"v_mfma_f32_32x32x16_bf16 {vr(d,16)}, {vr(k,4)}, {vr(q,4)}, {vr(c,16)}")
def EX(s, a, b):
    for i in range(a, b): e(f"v_exp_f32 v{s+i}, v{s+i}")
pad_end("L_padq", "L_padq_ret")
L.append(".p2align 6")
lab("L_att_loop")
for u in range(4):
    kc, kn = (K0, K1) if u % 2 == 0 else (K1, K0)
    vc, vp = (V0, V1) if u % 2 == 0 else (V1, V0)
    voffs = ((u + 1) % 4) * 2048 + 1024
    koffs = ((u + 2) % 4) * 2048
    p0, p1, p2 = (4, 7, 10) if opt['cluster'] else (2, 5, 10)
    EX(SA, 0, p0)
    SM(OB, vp + 4, SB + 8)
    e("s_waitcnt lgkmcnt(1)")
    EX(SA, p0, p1)
    QK(SB, kc, QB, CB)
    e(f"ds_read_b128 {vr(vp,4)}, v{vV} offset:{voffs}")
    EX(SA, p1, p2)
    SM(OA, vc, SA)
    e(f"ds_read_b128 {vr(vp+4,4)}, v{vV} offset:{voffs+512}")
    EX(SA, p2, 16)
    EX(SB, 0, p0)
    SM(OA, vc + 4, SA + 8)
    e("s_waitcnt lgkmcnt(2)")
    if u == 1:
        pass
    EX(SB, p0, p1)
    QK(SA, kn, QA, CA)
    e(f"ds_read_b128 {vr(kc,4)}, v{vK} offset:{koffs}")
    EX(SB, p1, p2)
    SM(OB, vc, SB)
    if u == 1:
        e(f"s_bitcmp1_b32 s{sBARN}, s{sIT}")
        e("s_cbranch_scc1 L_sync")
        lab("L_nobar")
        e(f"v_add_u32 v{vK}, 0x2000, v{vK}")
    if u == 2:
        e(f"v_add_u32 v{vV}, v{vINC}, v{vV}")
    if u == 3:
        e(f"s_add_u32 s{sIT}, s{sIT}, 1")
        e(f"s_cmp_lt_u32 s{sIT}, 16")
    if u == 0 and opt['cluster']: e("s_nop 0")
    EX(SB, p2, 16)
e("s_cbranch_scc1 L_att_loop")
pad_begin("L_padt")
e(f"s_mov_b32 s{sT0}, {hex(f2u(2.0**100) if not opt['force_fb'] else f2u(2.0**-30))}")
e(f"v_rcp_f32 v4, v{OA+8}")
SM(OB, V1 + 4, SB + 8)
e(f"ds_read_b32 v7, v{vSAME} offset:{C_SAME}")
e(f"ds_read_b64 v[8:9], v{vSAME} offset:{C_TAG}")
cm("run-time check of the stand-in: l*2^64 must be finite and <= 2^100, else redo with the true row max")
e(f"v_cmp_nle_f32_e64 vcc, v{OA+8}, s{sT0}")
for i in range(8): e(f"v_mul_f32 v{SA+i}, v4, v{OA+i}")
for i in range(4): e(f"v_cvt_pk_bf16_f32 v{SA+i}, v{SA+2*i}, v{SA+2*i+1}")
e(f"v_rcp_f32 v5, v{OB+8}")
e(f"v_cmp_nle_f32_e64 {sr(sX,2)}, v{OB+8}, s{sT0}")
e("s_waitcnt lgkmcnt(0)")
e(f"s_or_b64 vcc, vcc, {sr(sX,2)}")
e("s_cmp_eq_u64 vcc, 0")
e("s_cbranch_scc0 L_fallback")
lab("L_att_done")
stamp(6)
cm("plain stores only when every workgroup of this token block reported the same XCD; else write-through")
sSAME = 99
e(f"v_readfirstlane_b32 s{sSAME}, v7")
e(f"v_readfirstlane_b32 s{sNON}, v8")
e(f"v_readfirstlane_b32 s{sNON+1}, v9")
for i in range(8): e(f"v_mul_f32 v{OB+i}, v5, v{OB+i}")
for i in range(4): e(f"v_cvt_pk_bf16_f32 v{SA+4+i}, v{OB+2*i}, v{OB+2*i+1}")
e(f"s_cmp_eq_u32 s{sSAME}, 0")
e("s_cbranch_scc1 L_ost_wt") if opt['omode'] != 2 else e("s_branch L_ost_wt")
e(f"buffer_store_dwordx4 {vr(SA,4)}, v2, {sr(R_WS,4)}, s{sOD} offen")
e(f"buffer_store_dwordx4 {vr(SA+4,4)}, v2, {sr(R_WS,4)}, s{sOD} offen offset:1024")
lab("L_ost_done")
e("s_barrier")
stamp(4)
e("s_waitcnt vmcnt(0)")
signal("L_sigO", C_O, 3, sOF, 4, plain_if=sSAME)
stamp(5)
cm("gather the O tile of this token block: wave w takes producers 2w, 2w+1 (first / second half)")
poll("L_pollO", 1, vPO, 8, [sPF])
stamp(11)
def odma(sc):
    for q in range(2):
        for th in range(2):
            e(f"s_mov_b32 m0, s{sOL}")
            e("s_nop 0")
            for i in range(4): e(f"buffer_load_dwordx4 v2, {sr(R_WS,4)}, s{sOS} offen offset:{1024*i} {sc}lds")
            if not (th == 1 and q == 1):
                op = "s_add_u32" if th == 0 else "s_sub_u32"
                d = 32768 if th == 0 else 32768 - 4096
                e(f"{op} s{sOL}, s{sOL}, {d}")
                e(f"{op} s{sOS}, s{sOS}, {d}")
odma("sc1 ")
pad_end("L_padt", "L_pado_0")
e("s_waitcnt vmcnt(8)")
stamp(12)
e("s_barrier")
e("s_waitcnt vmcnt(0)")
e("s_barrier")
if opt['omode'] == 3:
    cm("write the O lines through as well, so that no dirty line is left for the end of the kernel")
    e(f"buffer_store_dwordx4 {vr(SA,4)}, v2, {sr(R_WS,4)}, s{sOD} offen sc1")
    e(f"buffer_store_dwordx4 {vr(SA+4,4)}, v2, {sr(R_WS,4)}, s{sOD} offen offset:1024 sc1")
stamp_dump()
e("s_endpgm")
lab("L_ost_wt")
e(f"buffer_store_dwordx4 {vr(SA,4)}, v2, {sr(R_WS,4)}, s{sOD} offen sc1")
e(f"buffer_store_dwordx4 {vr(SA+4,4)}, v2, {sr(R_WS,4)}, s{sOD} offen offset:1024 sc1")
e("s_branch L_ost_done")
lab("L_sync")
e(f"s_cmp_eq_u32 s{sIT}, 1")
e("s_cbranch_scc0 L_sync3")
lds_wait("L_wg1", C_G1, 256, 4)
e("s_branch L_nobar")
lab("L_sync3")
lds_wait("L_wkvl", C_KVL, 256, 4)
e("s_branch L_nobar")
lab("L_fallback")
e(f"s_cmp_eq_u32 s{sFB}, 0")
e("s_cbranch_scc0 L_att_done")
cm("fallback: exact row max over all 64 key tiles, then repeat the main loop")
e(f"s_mov_b32 s{sFB}, 1")
e(f"s_mov_b32 s{sBARN}, 0")
e(f"v_mov_b32 v4, 0xff800000")
e(f"v_mov_b32 v5, 0xff800000")
e(f"v_mov_b32 v{vK}, v2")
e(f"s_mov_b32 s{sIT}, 0")
lab("L_fb_loop")
e(f"ds_read_b128 {vr(K0,4)}, v{vK}")
e("s_waitcnt lgkmcnt(0)")
e(f"v_mfma_f32_32x32x16_bf16 {vr(SA,16)}, {vr(K0,4)}, {vr(QA,4)}, 0")
e(f"v_mfma_f32_32x32x16_bf16 {vr(SB,16)}, {vr(K0,4)}, {vr(QB,4)}, 0")
e(f"v_add_u32 v{vK}, 0x800, v{vK}")
nop(11)
max16(4, SA, 1); max16(5, SB, 1)
e(f"s_add_u32 s{sIT}, s{sIT}, 1")
e(f"s_cmp_lt_u32 s{sIT}, 64")
e("s_cbranch_scc1 L_fb_loop")
e(f"v_mov_b32 v{vK}, v2")
e(f"v_mov_b32 v{vV}, v{vV0}")
for i in range(16): e(f"v_mov_b32 v{OA+i}, 0")
for i in range(16): e(f"v_mov_b32 v{OB+i}, 0")
for i in range(4): e(f"v_mov_b32 v{V1+4+i}, 0")
e(f"ds_read_b128 {vr(K0,4)}, v{vK}")
e(f"ds_read_b128 {vr(K1,4)}, v{vK} offset:2048")
e(f"ds_read_b128 {vr(V0,4)}, v{vV} offset:1024")
e(f"ds_read_b128 {vr(V0+4,4)}, v{vV} offset:1536")
e("s_branch L_setmax")

lab("L_aux")
BUF = 16
BP = 144
FR = 176
ACC = 192
D1, D2 = 208, 224
if opt['prioX']: e(f"s_setprio {opt['prioX']}")
cm("critical loads: projection weight (wk for even hg, wv for odd), x rows 16*blk + 4a + i")
e(f"s_lshl_b32 s{sT0}, s{sTHP}, 4")
e(f"s_lshl_b32 s{sT1}, s{sA}, 2")
e(f"s_add_u32 s{sT0}, s{sT0}, s{sT1}")
e(f"s_mul_i32 s{sT1}, s{sT0}, {XROW}")
e(f"s_add_u32 s{sT1}, s{sT1}, {X_OFF}")
e(f"s_lshl_b32 s{sT2}, s{sTB}, 6")
e(f"s_add_u32 s{sT2}, s{sT2}, s{sT0}")
e(f"s_lshl_b32 s{sT2}, s{sT2}, 10")
e(f"s_lshl_b32 s{sT3}, s{sA}, 12")
e(f"s_mov_b32 s{R_W+2}, 16384")
e(f"s_mov_b32 s{R_W+3}, 0x20000")
e(f"s_mov_b32 m0, s{sT3}")
e(f"s_bitcmp1_b32 s{sHG}, 0")
e("s_waitcnt lgkmcnt(0)")
e(f"s_cselect_b32 s{R_W}, s{P_WV}, s{P_WK}")
e(f"s_cselect_b32 s{R_W+1}, s{P_WV+1}, s{P_WK+1}")
e(f"s_and_b32 s{R_W+1}, s{R_W+1}, 0xffff")
e(f"s_mov_b32 s{R_XA}, s{P_XA}")
e(f"s_and_b32 s{R_XA+1}, s{P_XA+1}, 0xffff")
srd(R_DBG, P_DBG, 256)
cm("workgroup 0, aux wave 3 publishes this launch's hand-off tag")
e(f"s_or_b32 s{sNON}, s{sNON}, 16")
e(f"s_and_b32 s{sNON}, s{sNON}, -16")
e(f"s_lshl_b32 s{sT0}, s2, 3")
e(f"s_add_u32 s{sT0}, s{sT0}, s{sW}")
e(f"s_cmp_eq_u32 s{sT0}, 7")
e("s_cbranch_scc0 L_notag")
e(f"v_mov_b32 v4, s{sNON}")
e(f"v_mov_b32 v5, s{sNON+1}")
e("s_mov_b64 exec, 1")
e(f"buffer_store_dwordx2 v[4:5], off, {sr(R_DBG,4)}, 0 sc1")
e("s_mov_b64 exec, -1")
lab("L_notag")
NT = lambda b: "nt " if opt['ntc'] >> b & 1 else ""
for i in range(4): e(f"buffer_load_dwordx4 v2, {sr(R_W,4)}, s{sT3} offen offset:{1024*i} {NT(1)}lds")
dma_run(4, 2, R_XA, sT2, sT1, 1024, XROW, NT(0))
stamp(0)
srd(R_WS, P_WS, WS_SIZE)
if opt['dbgt']:
    e(f"s_cmp_lt_u32 s2, 8")
    e("s_cbranch_scc0 L_nodbg0")
    e(f"s_cmp_eq_u32 s{sW}, 6")
    e("s_cbranch_scc0 L_nodbg0")
    e(f"v_mov_b32 v4, s{sNON}")
    e(f"s_lshl_b32 s{sT0}, s2, 2")
    e(f"s_add_u32 s{sT0}, s{sT0}, 8")
    e("s_mov_b64 exec, 1")
    e(f"buffer_store_dword v4, off, {sr(R_DBG,4)}, s{sT0}")
    e("s_mov_b64 exec, -1")
    lab("L_nodbg0")
e("s_barrier                             ; B1")
KV0 = len(L)
e(f"v_mov_b32 v14, {MISC+C_CR}")
e(f"v_mov_b32 v15, 1")
cm("K / V projection of 16 tokens: aux wave 0")
e(f"s_cmp_eq_u32 s{sA}, 0")
e("s_cbranch_scc0 L_np")
e(f"v_and_b32 v3, 15, v{vL}")
e(f"v_lshrrev_b32 v4, 4, v{vL}           ; q")
e(f"s_lshl_b32 s{sT0}, s{sTHP}, 4")
e(f"v_add_u32 v5, s{sT0}, v3")
e(f"v_mul_u32_u24 v5, {XROW}, v5")
e("v_lshl_add_u32 v5, v4, 4, v5")
e(f"v_add_u32 v5, {X_OFF}, v5")
e(f"v_bfe_u32 v6, v{vL}, 2, 2            ; r")
e("v_lshl_add_u32 v6, v4, 3, v6")
e("v_lshlrev_b32 v6, 5, v6")
e(f"v_and_b32 v7, 3, v{vL}               ; cc")
sB = sT3
e(f"s_and_b32 s{sB}, s{sTHP}, 1            ; b")
e(f"s_lshr_b32 s{sT0}, s{sTHP}, 1")
e(f"s_lshl_b32 s{sT2}, s{sTB}, 1")
e(f"s_add_u32 s{sT2}, s{sT2}, s{sT0}")
sKF, sKD = 97, 96
e(f"s_lshl_b32 s{sT1}, s{sT2}, 1")
e(f"s_and_b32 s{sT0}, s{sHG}, 1")
e(f"s_add_u32 s{sT1}, s{sT1}, s{sT0}")
e(f"s_lshl_b32 s{sT1}, s{sT1}, 1")
e(f"s_add_u32 s{sT1}, s{sT1}, s{sB}")
e(f"s_lshl_b32 s{sT1}, s{sT1}, 7")
e(f"s_add_u32 s{sKF}, s{sT1}, {FL_KV}")
e(f"s_lshl_b32 s{sKD}, s{sT2}, 11")
e("v_and_b32 v9, 1, v4")
e("v_lshlrev_b32 v9, 3, v9")
e("v_lshl_add_u32 v9, v3, 4, v9          ; n*16 + (q&1)*8")
e("v_lshrrev_b32 v8, 1, v4")
e(f"s_mov_b32 s{sDRY}, {1 if opt['dry'] else 0}")
if opt['pre']:
    cm("touch the lines this wave will publish (tile and flag), so the write-through stores find them resident")
    e(f"v_and_b32 v12, 15, v{vL}")
    e("v_lshlrev_b32 v12, 7, v12")
    e(f"buffer_load_dword v201, v12, {sr(R_WS,4)}, s{sKD} offen sc1")
    e(f"buffer_load_dword v202, off, {sr(R_WS,4)}, s{sKF} sc1")
def kvchain(isV):
    D = opt['kvd']
    def mf(k2):
        b2 = BUF + 8*k2
        a, bb = (b2+4, b2) if isV else (b2, b2+4)
        e(f"v_mfma_f32_16x16x32_bf16 {vr(ACC,4)}, {vr(a,4)}, {vr(bb,4)}, {'0' if k2==0 else vr(ACC,4)}")
    for ks in range(16):
        b = BUF + 8*ks
        e(f"ds_read_b64_tr_b16 {vr(b,2)}, v6 offset:{ks*1024}")
        e(f"ds_read_b64_tr_b16 {vr(b+2,2)}, v6 offset:{ks*1024+128}")
        e(f"ds_read_b128 {vr(b+4,4)}, v5 offset:{ks*64}")
        if ks >= D:
            e(f"s_waitcnt lgkmcnt({3*D})"); mf(ks - D)
    for k2 in range(16 - D, 16):
        e(f"s_waitcnt lgkmcnt({3*(15-k2)})"); mf(k2)
def kv_wait(tagname):
    e(f"s_waitcnt vmcnt({2 if opt['pre'] else 0})")
    stamp(1)
    e("ds_add_u32 v14, v15")
    lds_wait(tagname + "_w", C_CR, 256, 10, sleep=1)
def kv_b1(tagname):
    if not opt['dry']: kv_wait(tagname)
    lab(tagname)
def kv_b2(tagname):
    if opt['dry']:
        e(f"s_cmp_eq_u32 s{sDRY}, 0")
        e(f"s_cbranch_scc1 {tagname}_go")
        e(f"s_mov_b32 s{sDRY}, 0")
        kv_wait(tagname)
        e(f"s_branch {tagname}")
        lab(tagname + "_go")
e(f"s_bitcmp1_b32 s{sHG}, 0")
e("s_cbranch_scc1 L_prodV")
cm("K: (q>>1)*512 + (16b+n)*16 + (q&1)*8")
e("v_lshl_add_u32 v6, v7, 3, v6")
e("v_lshl_add_u32 v8, v8, 9, v9")
e(f"s_lshl_b32 s{sT1}, s{sB}, 8")
e(f"s_add_u32 s{sKD}, s{sKD}, s{sT1}")
kv_b1("L_chK"); kvchain(False); kv_b2("L_chK")
nop(6 if opt['dry'] else 8)
e("s_branch L_prodS")
lab("L_prodV")
cm("V: 1024 + b*512 + (q>>1)*256 + n*16 + (q&1)*8")
e("v_lshl_add_u32 v8, v8, 8, v9")
e("v_and_b32 v9, 1, v7")
e("v_lshl_add_u32 v6, v9, 4, v6")
e("v_lshrrev_b32 v9, 1, v7")
e("v_lshl_add_u32 v6, v9, 3, v6")
e(f"s_lshl_b32 s{sT1}, s{sB}, 9")
e(f"s_add_u32 s{sKD}, s{sKD}, s{sT1}")
e(f"s_add_u32 s{sKD}, s{sKD}, 1024")
kv_b1("L_chV"); kvchain(True); kv_b2("L_chV")
e(f"s_mov_b32 s{sT0}, {hex(f2u(2.0**VSCALE))}")
nop(6 if opt['dry'] else 8)
for i in range(4): e(f"v_mul_f32 v{ACC+i}, s{sT0}, v{ACC+i}")
lab("L_prodS")
e(f"v_cvt_pk_bf16_f32 v10, v{ACC}, v{ACC+1}")
e(f"v_cvt_pk_bf16_f32 v11, v{ACC+2}, v{ACC+3}")
e(f"buffer_store_dwordx2 v[10:11], v8, {sr(R_WS,4)}, s{sKD} offen sc1")
stamp(14)
e("ds_add_u32 v14, v15 offset:%d             ; this wave is done with the weight region" % (C_KV - C_CR + 65536) if False else f"v_mov_b32 v13, {MISC+C_KV}")
e("ds_add_u32 v13, v15")
tag_from_lds("L_tagp", 4)
e(f"v_mov_b32 v6, s{sNON}")
e(f"v_mov_b32 v7, s{sNON+1}")
e("s_mov_b64 exec, 1")
e("s_waitcnt vmcnt(0)")
e(f"buffer_store_dwordx2 v[6:7], off, {sr(R_WS,4)}, s{sKF} sc1")
e("s_mov_b64 exec, -1")
stamp(15)
e(f"s_mov_b32 s{sRET}, 1")
e("s_branch L_tagged")
lab("L_np")
e("s_waitcnt vmcnt(0)")
stamp(1)
e("ds_add_u32 v14, v15")
if opt['codepf']:
    cm("aux wave 2 pulls this kernel's code towards L2 (reads only)")
    e(f"s_cmp_eq_u32 s{sA}, 2")
    e("s_cbranch_scc0 L_nopf")
    e(f"s_getpc_b64 {sr(sX,2)}")
    lab("L_pc")
    e(f"v_lshlrev_b32 v4, 7, v{vL}")
    e(f"s_sub_u32 s{sX}, s{sX}, L_pc-{NAME}_kernel")
    e(f"s_subb_u32 s{sX+1}, s{sX+1}, 0")
    e(f"v_mov_b32 v5, s{sX+1}")
    e(f"v_add_co_u32 v4, vcc, s{sX}, v4")
    e("s_nop 1")
    e("v_addc_co_u32 v5, vcc, 0, v5, vcc")
    e("CODEPF")
    lab("L_nopf")
e(f"s_cmp_eq_u32 s{sA}, 3")
e("s_cbranch_scc0 L_tagged0")
cm("aux wave 3 fetches this launch's hand-off tag (bounded spin) and posts it in LDS")
e(f"s_mov_b32 s{sSPIN}, {SPIN}")
lab("L_tag")
e(f"buffer_load_dwordx2 v[14:15], off, {sr(R_DBG,4)}, 0 sc1")
e(f"s_sub_u32 s{sSPIN}, s{sSPIN}, 1")
e(f"s_cmp_eq_u32 s{sSPIN}, 0")
e("s_cbranch_scc1 L_tag_done")
e("s_waitcnt vmcnt(0)")
e("v_cmp_eq_u32 vcc, 0, v14")
e("s_nop 0")
e("s_cmp_eq_u64 vcc, 0")
e("s_cbranch_scc0 L_tag")
lab("L_tag_done")
e("s_waitcnt vmcnt(0)")
e(f"v_mov_b32 v12, {MISC+C_TAG}")
e("ds_write_b64 v12, v[14:15]")
cm("report this workgroup's XCD id (tag | id)")
e(f"s_getreg_b32 s{sT2}, hwreg(HW_REG_XCC_ID, 0, 4)")
e(f"s_lshl_b32 s{sT1}, s2, 7")
e(f"s_add_u32 s{sT1}, s{sT1}, {FL_X}")
e(f"v_or_b32 v14, s{sT2}, v14")
e("s_mov_b64 exec, 1")
e(f"buffer_store_dwordx2 v[14:15], off, {sr(R_WS,4)}, s{sT1} sc1")
e("s_mov_b64 exec, -1")
import re
def ren(m):
    n = int(m.group(1)); return f"v{208+n}" if 3 <= n <= 15 else m.group(0)
def ren2(m):
    a, b = int(m.group(1)), int(m.group(2)); return f"v[{208+a}:{208+b}]" if 3 <= a <= 15 else m.group(0)
for k in range(KV0, len(L)):
    L[k] = re.sub(r"v\[(\d+):(\d+)\]", ren2, re.sub(r"\bv(\d+)\b", ren, L[k]))
e(f"s_mov_b32 s{sRET}, 0") if False else None
lab("L_tagged0")
e(f"s_mov_b32 s{sRET}, 0")
e("s_branch L_addr")
lab("L_tagged")
stamp(2)
tag_from_lds("L_tagx", 8)
cm("the weight region is reused only after the projection wave is done with it")
lds_wait("L_wkv", C_KV, 64, 8, sleep=opt['fs'])
cm("key tiles in rotated order (own XCD's tiles first); wave a covers tiles 8g + 2a, 8g + 2a + 1: flags 32g + 8a + (0..7)")
vCNT = 10
sKG, sKL, sKS, sKP = 97, 85, 88, 96
e(f"v_and_b32 v{ACC+2}, 7, v{vL}")
e(f"v_lshlrev_b32 v{ACC+2}, 7, v{ACC+2}")
e(f"s_lshl_b32 s{sKP}, s{sA}, 10")
e(f"s_add_u32 s{sKP}, s{sKP}, {FL_KV}")
e(f"s_lshl_b32 s{sT1}, s{sXCD}, 12")
e(f"s_add_u32 s{sT1}, s{sT1}, s{sKP}")
e(f"s_lshl_b32 s{sKL}, s{sA}, 12")
e(f"s_lshl_b32 s{sKG}, s{sXCD}, 14")
e("s_barrier                             ; B2")
stamp(16)
poll("L_pollK0", 1, ACC+2, 8, [sT1])
stamp(3)
def kvdma(G):
    e(f"s_add_u32 m0, s{sKL}, {16384*G}")
    e(f"s_add_u32 s{sKS}, s{sKG}, s{sKL}")
    for i in range(4): e(f"buffer_load_dwordx4 v2, {sr(R_WS,4)}, s{sKS} offen offset:{1024*i} sc1 lds")
    if G < 7:
        e(f"s_add_u32 s{sKG}, s{sKG}, 16384")
        e(f"s_and_b32 s{sKG}, s{sKG}, 0x1ffff")
kvdma(0)
e(f"s_cmp_eq_u32 s{sRET}, 1")
e("s_cbranch_scc0 L_addr_2")
lab("L_addr")
srd(R_SRE, P_SRE, 8388608)
srd(R_SIM, P_SIM, 8388608)
srd(R_XB, P_XB, 2097152)
srd(R_WO, P_WO, 524288)
srd(R_OUT, P_OUT, 4194304)
sT1S, sEB, sTT, sS2, sCB = 98, 99, 100, 101, 79
R_HRE, R_HIM = R_XA, R_W
e(f"s_and_b32 s{sT0}, s{sJ}, 3")
e(f"s_lshl_b32 s{sT1S}, s{sXCD}, 2")
e(f"s_add_u32 s{sT1S}, s{sT1S}, s{sT0}       ; t1s")
e(f"s_lshr_b32 s{sT0}, s{sJ}, 2")
e(f"s_lshl_b32 s{sT0}, s{sT0}, 1")
e(f"s_lshr_b32 s{sEB}, s{sA}, 1")
e(f"s_add_u32 s{sEB}, s{sEB}, s{sT0}         ; eb")
e(f"s_and_b32 s{sTT}, s{sA}, 1               ; tt")
e(f"s_and_b32 s{sT0}, s{sJ}, 7")
e(f"s_lshl_b32 s{sS2}, s{sXCD}, 3")
e(f"s_add_u32 s{sS2}, s{sS2}, s{sT0}         ; s2")
e(f"s_lshr_b32 s{sT0}, s{sJ}, 3")
e(f"s_lshl_b32 s{sCB}, s{sT0}, 2")
e(f"s_add_u32 s{sCB}, s{sCB}, s{sA}          ; cb")
srd(R_HRE, P_HRE, 524288)
srd(R_HIM, P_HIM, 524288)
e(f"v_and_b32 v3, 31, v{vL}                ; n")
e(f"v_lshrrev_b32 v4, 5, v{vL}             ; h")
e(f"s_lshl_b32 s{sT0}, s{sTT}, 5")
e(f"v_add_u32 v5, s{sT0}, v3")
e("v_lshlrev_b32 v5, 5, v5")
e(f"v_add_u32 v13, s{sT1S}, v5")
vXE, vXO, vWE, vWO_, vG, vRD = 240, 241, 242, 243, 244, 246
vSW, vDRE, vDIM = 250, 251, 252
vB2A, vB2O, vHA, vWOD, vWOT, vOF, vOUT, vPH, vPK, vF = 4, 3, 15, 14, 0, 5, 6, 7, 12, 13
cm("B1 load addresses (8 rows x 128 B per instruction, chunk swizzle on the source side)")
e(f"v_lshrrev_b32 v5, 3, v{vL}             ; r")
e("v_and_b32 v6, 3, v5")
e("v_lshrrev_b32 v7, 2, v5")
e("v_lshl_add_u32 v6, v7, 3, v6            ; 8*(r>>2) + (r&3)")
e("v_lshrrev_b32 v7, 1, v5")
e(f"v_and_b32 v8, 7, v{vL}")
e("v_xor_b32 v7, v7, v8")
e("v_lshlrev_b32 v7, 4, v7")
e("v_xor_b32 v8, 64, v7")
e(f"v_lshl_add_u32 v{vXE}, v6, 16, v7")
e(f"v_lshl_add_u32 v{vXO}, v6, 16, v8")
e(f"v_lshl_add_u32 v{vWE}, v6, 10, v7")
e(f"v_lshl_add_u32 v{vWO_}, v6, 10, v8")
cm("instruction 2 of W (im rows e = 16cb + {0..3, 8..11}); for cb = 0 row e = 0 is replaced by cos row 256")
e(f"s_lshl_b32 s{sT0}, s{sCB}, 14")
e(f"v_add_u32 v9, s{sT0}, v{vWE}")
e("v_cmp_gt_u32 vcc, 0x80, v9")
e(f"v_mov_b32 v{vG}, s{P_HIM}")
e(f"v_mov_b32 v{vG+1}, s{P_HIM+1}")
e(f"v_mov_b32 v10, s{P_HRE}")
e(f"v_mov_b32 v11, s{P_HRE+1}")
e(f"v_cndmask_b32 v{vG}, v{vG}, v10, vcc")
e(f"v_cndmask_b32 v{vG+1}, v{vG+1}, v11, vcc")
e("v_add_u32 v10, 0x40000, v9")
e("v_cndmask_b32 v9, v9, v10, vcc")
e(f"v_add_co_u32 v{vG}, vcc, v{vG}, v9")
e("s_nop 1")
e(f"v_addc_co_u32 v{vG+1}, vcc, 0, v{vG+1}, vcc")
cm("staging read addresses: row m, chunk (2s+h) ^ ((m>>1)&7)")
e(f"s_lshl_b32 s{sT0}, s{sA}, 12")
e(f"s_add_u32 s{sT0}, s{sT0}, {STG}")
e("v_bfe_u32 v5, v3, 1, 3")
e("v_xor_b32 v5, v5, v4")
e("v_lshlrev_b32 v5, 4, v5")
e("v_lshl_add_u32 v5, v3, 7, v5")
e(f"v_add_u32 v{vRD}, s{sT0}, v5")
for s_ in range(1, 4): e(f"v_xor_b32 v{vRD+s_}, {32*s_}, v{vRD}")
e(f"v_add_u32 v{vSW}, s{sT0}, v2")
cm("H store address: t1*64*HROW + 8h*4")
e(f"v_mul_u32_u24 v8, {64*HROW}, v3")
e(f"v_lshl_add_u32 v{vHA}, v4, 5, v8")
cm("wo: DMA source (16 rows x 64 B per load) and the transposing read from the staging area")
e(f"v_bfe_u32 v8, v{vL}, 2, 2")
e("v_lshl_add_u32 v8, v4, 3, v8            ; 8h + r")
e("v_lshlrev_b32 v8, 6, v8")
e(f"v_and_b32 v9, 1, v{vL}")
e("v_lshl_add_u32 v8, v9, 5, v8")
e(f"v_bfe_u32 v9, v{vL}, 4, 1")
e("v_lshl_add_u32 v8, v9, 4, v8")
e(f"v_bfe_u32 v9, v{vL}, 1, 1")
e("v_lshl_add_u32 v8, v9, 3, v8")
e(f"v_add_u32 v{vWOT}, s{sT0}, v8")
e(f"v_lshrrev_b32 v8, 2, v{vL}")
e(f"v_and_b32 v9, 3, v{vL}")
e("v_lshlrev_b32 v8, 10, v8")
e(f"v_lshl_add_u32 v{vWOD}, v9, 4, v8")
cm("output projection: out offset, O fragment address")
e(f"s_lshl_b32 s{sT3}, s{sTB}, 1")
e(f"s_and_b32 s{sT4}, s{sA}, 1")
e(f"s_add_u32 s{sT3}, s{sT3}, s{sT4}")
e(f"s_lshl_b32 s{sT3}, s{sT3}, 5")
e(f"v_add_u32 v8, s{sT3}, v3")
e("v_lshlrev_b32 v8, 11, v8")
e(f"v_lshl_add_u32 v{vOUT}, v4, 5, v8")
e(f"s_lshl_b32 s{sT3}, s{sT4}, 15")
e(f"v_add_u32 v{vOF}, s{sT3}, v2")
e(f"v_lshlrev_b32 v{vPH}, 7, v{vL}")
vPW = 253
e(f"v_lshlrev_b32 v{vPW}, 10, v{vL}")
cm("B2 A rows: e(m) = 32eb + col(m) (eb<8) or 512 - that; col(m) = 16*b2 + 4*(m>>3) + (m&3)")
e("v_and_b32 v8, 3, v3")
e("v_bfe_u32 v9, v3, 2, 1")
e("v_lshl_add_u32 v8, v9, 4, v8")
e("v_lshrrev_b32 v9, 3, v3")
e("v_lshl_add_u32 v8, v9, 2, v8")
e(f"s_lshl_b32 s{sT0}, s{sEB}, 5")
e(f"v_add_u32 v8, s{sT0}, v8")
e("v_sub_u32 v9, 0x200, v8")
e("v_sub_u32 v10, 0x800, v13")
e("v_and_b32 v10, 0x7ff, v10               ; (2048 - ts) & 2047")
e(f"s_cmp_lt_u32 s{sEB}, 8")
e("s_cselect_b64 vcc, 0, -1")
e("v_cndmask_b32 v8, v8, v9, vcc")
e("v_cndmask_b32 v11, v13, v10, vcc")
e("v_lshlrev_b32 v10, 12, v10")
e(f"v_lshl_add_u32 v{vDIM}, v4, 6, v10")
e("v_lshlrev_b32 v10, 12, v13")
e(f"v_lshl_add_u32 v{vDRE}, v4, 6, v10")
e("v_lshlrev_b32 v10, 18, v3")
e(f"v_lshl_add_u32 v{vF}, v4, 4, v10")
e(f"v_lshrrev_b32 v10, 3, v{vL}")
e("v_lshlrev_b32 v10, 5, v10")
e(f"v_and_b32 v9, 7, v{vL}")
e("v_add_u32 v10, v10, v9")
e(f"v_lshlrev_b32 v{vPK}, 7, v10             ; K/V flags 32g + (0..7)")
e("v_lshlrev_b32 v11, 11, v11")
e(f"v_lshl_add_u32 v{vB2O}, v4, 5, v11")
e(f"v_mul_u32_u24 v9, {32*HROW}, v4")
e(f"v_lshl_add_u32 v{vB2A}, v8, 2, v9")
e(f"s_cmp_eq_u32 s{sRET}, 0")
e(f"s_mov_b32 s{sRET}, 2")
e("s_cbranch_scc1 L_tagged")
lab("L_addr_2")
e(f"v_mov_b32 v{vCNT}, {MISC+C_G1}")
e(f"v_mov_b32 v{vCNT+1}, 1")
e("s_waitcnt vmcnt(0)")
stamp(18)
e("s_barrier")
poll("L_pollKV", 1, vPK, 8, [sKP], sleep=1)
stamp(4)
e("s_setprio 0")
LOW[0] = True
sXS, sWS_ = sT3, sT4
e(f"s_lshl_b32 s{sXS}, s{sS2}, 10")
e(f"s_lshl_b32 s{sWS_}, s{sCB}, 14")
e(f"s_add_u32 s{sT0}, s{sXS}, {4*65536}")
e(f"s_add_u32 s{sT1}, s{sXS}, {16*65536}")
e(f"s_add_u32 s{sT2}, s{sXS}, {20*65536}")
e(f"s_add_u32 s{sINC}, s{sWS_}, 4096")
def b1load(c):
    b = BUF + 32*(c % 4); o = 128*c
    e(f"buffer_load_dwordx4 {vr(b,4)}, v{vXE}, {sr(R_XB,4)}, s{sXS} offen offset:{o}")
    e(f"buffer_load_dwordx4 {vr(b+4,4)}, v{vXO}, {sr(R_XB,4)}, s{sT0} offen offset:{o}")
    e(f"buffer_load_dwordx4 {vr(b+8,4)}, v{vXE}, {sr(R_XB,4)}, s{sT1} offen offset:{o}")
    e(f"buffer_load_dwordx4 {vr(b+12,4)}, v{vXO}, {sr(R_XB,4)}, s{sT2} offen offset:{o}")
    e(f"buffer_load_dwordx4 {vr(b+16,4)}, v{vWE}, {sr(R_HRE,4)}, s{sWS_} offen offset:{o}")
    e(f"buffer_load_dwordx4 {vr(b+20,4)}, v{vWO_}, {sr(R_HRE,4)}, s{sINC} offen offset:{o}")
    e(f"global_load_dwordx4 {vr(b+24,4)}, {vr(vG,2)}, off offset:{o}")
    e(f"buffer_load_dwordx4 {vr(b+28,4)}, v{vWO_}, {sr(R_HIM,4)}, s{sINC} offen offset:{o}")
for G in range(1, 3): kvdma(G)
e("s_waitcnt vmcnt(4)")
e(f"ds_add_u32 v{vCNT}, v{vCNT+1}")
for G in range(3, 8): kvdma(G)
b1load(0); b1load(1)
stamp(17)
e("s_waitcnt vmcnt(16)")
e(f"ds_add_u32 v{vCNT}, v{vCNT+1} offset:4")
stamp(21)
if opt["nob"]:
    e("s_branch L_tailprep")
XF, WF = D1, D2
RAW = BP
issued = 16
def order(c):
    extra = 4 if c >= 4 else 0
    return 8*c + 4 + extra, 8*c + 8 + extra
def b1mfma(c):
    for s_ in range(4):
        e(f"v_mfma_f32_32x32x16_bf16 {vr(ACC,16)}, {vr(XF+4*s_,4)}, {vr(WF+4*s_,4)}, {'0' if c==0 and s_==0 else vr(ACC,16)}")
for c in range(8):
    b = BUF + 32*(c % 4)
    px, pw = order(c)
    e(f"s_waitcnt vmcnt({issued - px}) lgkmcnt(0)")
    for i in range(4): e(f"ds_write_b128 v{vSW}, {vr(b+4*i,4)} offset:{1024*i}")
    if c == 0:
        b1load(2); issued += 8
    else: b1mfma(c - 1)
    e("s_waitcnt lgkmcnt(0)")
    for s_ in range(4): e(f"ds_read_b128 {vr(XF+4*s_,4)}, v{vRD+s_}")
    e(f"s_waitcnt vmcnt({issued - pw}) lgkmcnt(0)")
    for i in range(4): e(f"ds_write_b128 v{vSW}, {vr(b+16+4*i,4)} offset:{1024*i}")
    if c == 0:
        b1load(3); issued += 8
        for kb in range(2): e(f"buffer_load_dwordx4 {vr(FR+4*kb,4)}, v{vF}, {sr(R_SRE,4)}, 0 offen offset:{32*kb}")
        for kb in range(2): e(f"buffer_load_dwordx4 {vr(FR+8+4*kb,4)}, v{vF}, {sr(R_SIM,4)}, 0 offen offset:{32*kb}")
        issued += 4
    e("s_waitcnt lgkmcnt(0)")
    for s_ in range(4): e(f"ds_read_b128 {vr(WF+4*s_,4)}, v{vRD+s_}")
    if c + 4 < 8:
        b1load(c + 4); issued += 8
    if c == 4:
        cm("rows of the sequence DFT matrices for B2")
        for i in range(4): e(f"buffer_load_dwordx4 {vr(RAW+4*i,4)}, v{vDRE}, {sr(R_SRE,4)}, 0 offen offset:{16*i}")
        for i in range(4): e(f"buffer_load_dwordx4 {vr(RAW+16+4*i,4)}, v{vDIM}, {sr(R_SIM,4)}, 0 offen offset:{16*i}")
        issued += 8
    if c == 5:
        cm("pull this wave's quarter of the wo slice towards L2 (one dword per 128-B line)")
        e(f"s_lshl_b32 s{sT0}, s{sA}, 17")
        e(f"s_lshl_b32 s{sT1}, s{sHG}, 7")
        e(f"s_add_u32 s{sT0}, s{sT0}, s{sT1}")
        e(f"s_add_u32 s{sT1}, s{sT0}, 65536")
        e(f"buffer_load_dword v{vPK}, v{vPW}, {sr(R_WO,4)}, s{sT0} offen")
        e(f"buffer_load_dword v{vF}, v{vPW}, {sr(R_WO,4)}, s{sT1} offen")
        issued += 2
e("s_waitcnt lgkmcnt(0)")
b1mfma(7)
stamp(22)
e(f"s_mul_i32 s{sT0}, s{sS2}, {HROW}")
e(f"s_lshl_b32 s{sT1}, s{sCB}, 6")
e(f"s_add_u32 s{sT0}, s{sT0}, s{sT1}")
e(f"s_add_u32 s{sT0}, s{sT0}, {WS_H}")
nop(7)
vZ = BUF
def boost(on):
    e(f"s_setprio {2 if on else 0}"); LOW[0] = not on
boost(1)
for i in range(8): e(f"v_cvt_pk_bf16_f32 v{vZ+i}, v{ACC+2*i}, v{ACC+2*i+1}")
boost(0)
nop(1)
e(f"v_mfma_f32_32x32x16_bf16 {vr(D1,16)}, {vr(vZ,4)}, {vr(FR,4)}, 0")
e(f"v_mfma_f32_32x32x16_bf16 {vr(D2,16)}, {vr(vZ,4)}, {vr(FR+8,4)}, 0")
e(f"v_mfma_f32_32x32x16_bf16 {vr(D1,16)}, {vr(vZ+4,4)}, {vr(FR+4,4)}, {vr(D1,16)}")
e(f"v_mfma_f32_32x32x16_bf16 {vr(D2,16)}, {vr(vZ+4,4)}, {vr(FR+12,4)}, {vr(D2,16)}")
nop(11)
boost(1)
for r in range(8):
    e(f"v_sub_f32 v{ACC+r}, v{D1+r}, v{D2+8+r}")
    e(f"v_add_f32 v{ACC+8+r}, v{D2+r}, v{D1+8+r}")
e(f"s_cmp_eq_u32 s{sCB}, 0")
e("s_cbranch_scc0 L_nospecial")
cm("columns e = 0 and e = 256 (both purely real rows): lanes 0..31, register 0")
e("s_mov_b32 exec_hi, 0")
e(f"v_mov_b32 v{ACC}, v{D1}")
e(f"v_mov_b32 v{ACC+8}, v{D2}")
e(f"v_cvt_pk_bf16_f32 v8, v{D1+8}, v{D2+8}")
e(f"buffer_store_dword v8, v{vHA}, {sr(R_WS,4)}, s{sT0} offen offset:1024 sc1")
e("s_mov_b64 exec, -1")
lab("L_nospecial")
for r in range(8): e(f"v_cvt_pk_bf16_f32 v{vZ+r}, v{ACC+r}, v{ACC+8+r}")
e(f"buffer_store_dwordx4 {vr(vZ,4)}, v{vHA}, {sr(R_WS,4)}, s{sT0} offen sc1")
e(f"buffer_store_dwordx4 {vr(vZ+4,4)}, v{vHA}, {sr(R_WS,4)}, s{sT0} offen offset:16 sc1")
e(f"s_lshl_b32 s{sT1}, s2, 7")
e(f"s_add_u32 s{sT1}, s{sT1}, {FL_H}")
e("s_waitcnt vmcnt(0)")
signal("L_sigH", C_H, 3, sT1, 8)
stamp(5)
def bploc(o): return FR + o if o < 16 else (RAW + o - 16 if o < 24 else RAW + 16 + o - 24)
def perms():
    e(f"s_mov_b32 s{sT2}, 0x05040100")
    e(f"s_mov_b32 s{sT3}, 0x07060302")
    for i in range(16):
        e(f"v_perm_b32 v{bploc(2*i)}, v{RAW+16+i}, v{RAW+i}, s{sT2}")
        e(f"v_perm_b32 v{bploc(2*i+1)}, v{RAW+16+i}, v{RAW+i}, s{sT3}")
if not opt['b2tail']: perms()
lab("L_tailprep")
boost(0)
sWOS, sWOL = 97, 85
e(f"s_lshl_b32 s{sWOS}, s{sHG}, 7")
e(f"s_lshr_b32 s{sT1}, s{sA}, 1")
e(f"s_lshl_b32 s{sT1}, s{sT1}, 6")
e(f"s_add_u32 s{sWOS}, s{sWOS}, s{sT1}")
e(f"s_lshl_b32 s{sWOL}, s{sA}, 12")
e(f"s_add_u32 s{sWOL}, s{sWOL}, {STG}")
def wo_round(R):
    for i in range(4):
        e(f"s_add_u32 m0, s{sWOL}, {1024*i}")
        e(f"s_add_u32 s{sT1}, s{sWOS}, {65536*R + 16384*i}")
        e(f"buffer_load_dwordx4 v{vWOD}, {sr(R_WO,4)}, s{sT1} offen lds")
    e("s_waitcnt vmcnt(0)")
    for i in range(4):
        e(f"ds_read_b64_tr_b16 {vr(BUF+16*R+4*i,2)}, v{vWOT} offset:{1024*i}")
        e(f"ds_read_b64_tr_b16 {vr(BUF+16*R+4*i+2,2)}, v{vWOT} offset:{1024*i+256}")
    e("s_waitcnt lgkmcnt(0)")
for R in range(opt['wo1']): wo_round(R)
stamp(6)
boost(1)
if opt['pre']:
    cm("aux wave 2 touches the O lines this workgroup will write and the 8 flags of its token block")
    e(f"s_cmp_eq_u32 s{sA}, 2")
    e("s_cbranch_scc0 L_nopre")
    e(f"v_lshrrev_b32 v8, 5, v{vL}")
    e(f"v_and_b32 v9, 31, v{vL}")
    e("v_lshlrev_b32 v9, 7, v9")
    e("v_lshl_add_u32 v8, v8, 15, v9")
    e(f"s_lshl_b32 s{sT0}, s{sTB}, 16")
    e(f"s_lshl_b32 s{sT1}, s{sHG}, 12")
    e(f"s_add_u32 s{sT0}, s{sT0}, s{sT1}")
    e(f"s_add_u32 s{sT0}, s{sT0}, {WS_O}")
    e(f"buffer_load_dword v10, v8, {sr(R_WS,4)}, s{sT0} offen sc1")
    e(f"v_and_b32 v9, 0x380, v{vPH}")
    e(f"s_lshl_b32 s{sT0}, s{sTB}, 10")
    e(f"s_add_u32 s{sT0}, s{sT0}, {FL_O}")
    e(f"buffer_load_dword v11, v9, {sr(R_WS,4)}, s{sT0} offen sc1")
    e("s_waitcnt vmcnt(0)")
    lab("L_nopre")
cm("aux wave 1: XCD ids of the 8 workgroups of this token block: ids 32*hg + (id & 31)")
e(f"s_cmp_eq_u32 s{sA}, 1")
e("s_cbranch_scc0 L_nosame")
e(f"v_and_b32 v8, 7, v{vL}")
e("v_lshlrev_b32 v8, 12, v8")
e(f"s_and_b32 s{sT0}, s2, 31")
e(f"s_lshl_b32 s{sT0}, s{sT0}, 7")
e(f"s_add_u32 s{sT0}, s{sT0}, {FL_X}")
e(f"buffer_load_dwordx2 v[10:11], v8, {sr(R_WS,4)}, s{sT0} offen sc1")
e(f"s_getreg_b32 s{sX}, hwreg(HW_REG_XCC_ID, 0, 4)")
e(f"s_or_b32 s{sX}, s{sX}, s{sNON}")
e(f"s_mov_b32 s{sX+1}, s{sNON+1}")
e(f"v_mov_b32 v9, {MISC+C_SAME}")
e("s_waitcnt vmcnt(0)")
e(f"v_cmp_ne_u64 vcc, {sr(sX,2)}, v[10:11]")
e("s_nop 0")
e("s_cmp_eq_u64 vcc, 0")
e(f"s_cselect_b32 s{sT0}, {1 if opt['fast'] else 0}, 0")
e(f"v_mov_b32 v11, s{sT0}")
e("ds_write_b32 v9, v11")
lab("L_nosame")
if opt['nob']: e("s_branch L_b2done")
cm("B2: wait for the H rows it reads: column groups ebg (direct) or 7-ebg and (8-ebg)&3 (mirrored)")
e(f"s_cmp_eq_u32 s{sA}, 0")
e("s_cbranch_scc0 L_hwait")
e(f"s_lshr_b32 s{sT2}, s{sJ}, 2              ; ebg")
e(f"s_sub_u32 s{sT0}, 7, s{sT2}")
e(f"s_sub_u32 s{sT1}, 8, s{sT2}")
e(f"s_and_b32 s{sT1}, s{sT1}, 3")
e(f"s_cmp_lt_u32 s{sT2}, 4")
e(f"s_cselect_b32 s{sT0}, s{sT2}, s{sT0}")
e(f"s_cselect_b32 s{sT1}, s{sT2}, s{sT1}")
e(f"s_lshl_b32 s{sT0}, s{sT0}, 13")
e(f"s_lshl_b32 s{sT1}, s{sT1}, 13")
e(f"s_add_u32 s{sT0}, s{sT0}, {FL_H}")
e(f"s_add_u32 s{sT1}, s{sT1}, {FL_H}")
poll("L_pollH", 2, vPH, 8, [sT0, sT1], sleep=8)
e(f"v_mov_b32 v10, {MISC+C_HOK}")
e("v_mov_b32 v11, 1")
e("ds_write_b32 v10, v11")
e("s_branch L_hok")
lab("L_hwait")
lds_wait("L_hw", C_HOK, 1, 10, sleep=8)
lab("L_hok")
boost(0)
stamp(7)
e(f"s_mul_i32 s{sT0}, s{sT1S}, {64*HROW}")
e(f"s_add_u32 s{sT0}, s{sT0}, {WS_H}")
AF = 208
for kb in range(8):
    for w in range(4): e(f"buffer_load_dword v{AF+4*kb+w}, v{vB2A}, {sr(R_WS,4)}, s{sT0} offen offset:{w*HROW} sc1")
    if kb < 7: e(f"s_add_u32 s{sT0}, s{sT0}, {4*HROW}")
sB2 = 88
def b2compute(low):
    e(f"s_lshl_b32 s{sB2}, s{sEB}, 6")
    e(f"s_add_u32 s{sB2}, s{sB2}, 1024")
    for kb in range(8):
        if low: e(f"s_waitcnt vmcnt({28-4*kb})")
        e(f"v_mfma_f32_32x32x16_bf16 {vr(ACC,16)}, {vr(AF+4*kb,4)}, {vr(bploc(4*kb),4)}, {'0' if kb==0 else vr(ACC,16)}")
    nop(11 if low else 12)
    if low: boost(1)
    for i in range(8): e(f"v_cvt_pk_bf16_f32 v{AF+8+i}, v{ACC+2*i}, v{ACC+2*i+1}")
    if low: b2store()
def b2store():
    e(f"buffer_store_dwordx4 {vr(AF+8,4)}, v{vB2O}, {sr(R_OUT,4)}, s{sB2} offen{OSC}")
    e(f"buffer_store_dwordx4 {vr(AF+12,4)}, v{vB2O}, {sr(R_OUT,4)}, s{sB2} offen offset:16{OSC}")
if not opt['b2tail']: b2compute(True)
lab("L_b2done")
boost(0)
stamp(8)
for R in range(opt['wo1'], 8): wo_round(R)
stamp(10)
warm("L_padt", "L_pado_ret")
cm("tail: the attention waves bring the O tile -> LDS 0..")
e("s_barrier                             ; B7")
LOW[0] = False
stamp(9)
if opt['b2tail'] and not opt['nob']:
    cm("second spectral stage: operands are in registers, the matrix pipe is free until the O tile lands")
    perms()
    b2compute(False)
e(f"s_mov_b32 s{sT0}, s{sWOS}")
stamp(11)
e("s_barrier                             ; B8a")
pad_begin("L_pado")
OF = 144
korder = [h for h in range(32) if h % 8 < 4] + [h for h in range(32) if h % 8 >= 4]
def ofrag(n): e(f"ds_read_b128 {vr(OF+4*(n%8),4)}, v{vOF} offset:{1024*korder[n]}")
for n in range(7): ofrag(n)
for n in range(32):
    if n + 7 == 16:
        e("s_barrier                             ; B8b")
        if opt['b2tail'] and not opt['nob']: b2store()
    if n + 7 < 32:
        ofrag(n + 7)
        e("s_waitcnt lgkmcnt(7)")
    else:
        e(f"s_waitcnt lgkmcnt({31-n})")
    e(f"v_mfma_f32_32x32x16_bf16 {vr(ACC,16)}, {vr(BUF+4*korder[n],4)}, {vr(OF+4*(n%8),4)}, {'0' if n==0 else vr(ACC,16)}")
nop(12)
for i in range(8): e(f"v_cvt_pk_bf16_f32 v{D1+i}, v{ACC+2*i}, v{ACC+2*i+1}")
e(f"buffer_store_dwordx4 {vr(D1,4)}, v{vOUT}, {sr(R_OUT,4)}, s{sT0} offen{OSC}")
e(f"buffer_store_dwordx4 {vr(D1+4,4)}, v{vOUT}, {sr(R_OUT,4)}, s{sT0} offen offset:16{OSC}")
pad_end("L_pado", "L_pado_ret")
if opt['dbgt']:
    e(f"s_cmp_lt_u32 s2, 6")
    e("s_cbranch_scc0 L_end")
    e(f"s_cmp_eq_u32 s{sW}, 4")
    e("s_cbranch_scc0 L_end")
    e("s_waitcnt vmcnt(0)")
    e(f"s_memrealtime {sr(sST,2)}")
    e("s_waitcnt lgkmcnt(0)")
    e(f"v_mov_b32 v4, s{sST}")
    e(f"s_lshl_b32 s{sT0}, s2, 2")
    e(f"s_add_u32 s{sT0}, s{sT0}, 40")
    e("s_mov_b64 exec, 1")
    e(f"buffer_store_dword v4, off, {sr(R_DBG,4)}, s{sT0}")
if opt['endat']:
    lab("L_endat")
    e(f"s_memrealtime {sr(sX,2)}")
    e("s_waitcnt lgkmcnt(0)")
    e(f"s_sub_u32 s{sX}, s{sX}, s30")
    e(f"s_cmp_lt_u32 s{sX}, {opt['endat']}")
    e("s_cbranch_scc1 L_endat")
stamp(12)
if opt['stamps']: e("s_waitcnt vmcnt(0)")
stamp(13)
stamp_dump()
lab("L_end")
e("s_endpgm")
lab("L_codeend")
L.append(f""".section .rodata,"a"
.p2align 6
.amdhsa_kernel {NAME}_kernel
  .amdhsa_next_free_vgpr 256
  .amdhsa_next_free_sgpr 102
  .amdhsa_accum_offset 256
  .amdhsa_group_segment_fixed_size 0
  .amdhsa_kernarg_size 104
  .amdhsa_user_sgpr_count 2
  .amdhsa_user_sgpr_kernarg_segment_ptr 1
  .amdhsa_system_sgpr_workgroup_id_x 1
.end_amdhsa_kernel""")

def finish(lines, ncode):
    out = []
    for l in lines:
        if l.strip() == "CODEPF":
            for i in range(ncode // 8192):
                out.append(f"    global_load_dword v200, v[212:213], off")
                out.append(f"    v_add_co_u32 v212, vcc, 0x2000, v212")
                out.append(f"    s_nop 1")
                out.append(f"    v_addc_co_u32 v213, vcc, 0, v213, vcc")
            rem = (ncode % 8192) // 128
            if rem:
                out.append(f"    v_cmp_gt_u32 vcc, {rem}, v{vL}")
                out.append(f"    s_nop 0")
                out.append(f"    s_and_saveexec_b64 {sr(sX,2)}, vcc")
                out.append(f"    global_load_dword v200, v[212:213], off")
                out.append(f"    s_mov_b64 exec, -1")
        else: out.append(l)
    return "\n".join(out) + "\n"
import subprocess, os, hazcheck
ncode = 16384
for _ in range(3):
    txt = finish(L, ncode)
    open("_g.s", "w").write(txt)
    r = subprocess.run(["clang", "-x", "assembler", "-target", "amdgcn-amd-amdhsa", "-mcpu=gfx950", "-c", "_g.s", "-o", "_g.o"], capture_output=True, text=True)
    if r.returncode: print(r.stderr[:3000]); sys.exit(1)
    sz = subprocess.run(["llvm-objdump", "-h", "_g.o"], capture_output=True, text=True).stdout
    n = [int(x.split()[2], 16) for x in sz.splitlines() if " .text " in x][0]
    if n // 128 * 128 == ncode: break
    ncode = n // 128 * 128
open(sys.argv[1], "w").write(txt)
print(hazcheck.check(txt), "hazards; code bytes", n)
```

```python
import sys, struct
NAME = "concat_heads__grouped_kv_mqa__spectral_fnet__prompt"
opt = dict(stamps=0, prioA=1, prioX=2, boost=1, force_fb=0, dbgt=0, dry=0, codepf=0, shift=98, outsc1=0, cluster=1, fast=1, nob=0, l2pf=0, wo1=4, hold=1, pre=1, pads=0, dxcc=-1, dus=300, endat=0, omode=1, b2tail=1, kvd=3, h1=1, h2=4, fs=3, ntc=9, nowo=0, nodsw=0, nomf=0, sp=1, ss=1, wsplit=8, attpf=0, rawlate=1, dftpf=1, fst=6, spw=0, eb=1)
for a in sys.argv[2:]:
    k, v = a.split('='); opt[k] = int(v)

L = []
def e(s=""): L.append("    " + s)
def lab(s): L.append(s + ":")
def cm(s): L.append("    ; " + s)
def vr(a, n): return f"v[{a}:{a+n-1}]" if n > 1 else f"v{a}"
def sr(a, n): return f"s[{a}:{a+n-1}]" if n > 1 else f"s{a}"
def nop(n):
    while n > 0:
        k = min(n, 16); e(f"s_nop {k-1}"); n -= k
def f2u(x): return struct.unpack('<I', struct.pack('<f', x))[0]
OSC = " sc1" if opt['outsc1'] else ""

W_OFF = 0
X_OFF, XROW = 16384, 1040
WQ_OFF = 82944
ONES_OFF = 155648
MISC = ONES_OFF + 1024
STG = 131072
LDS_BYTES = 163840
C_KV, C_H, C_O, C_TAG, C_HOK, C_SAME, C_CR, C_QA, C_QB, C_G1, C_KVL, C_ST = 0, 4, 8, 16, 24, 28, 32, 36, 40, 44, 48, 52
WS_KV, WS_O, WS_H, WS_FL = 0, 0x40000, 0x240000, 0x480000
FL_KV, FL_H, FL_O, FL_X = WS_FL, WS_FL + 0x8000, WS_FL + 0x10000, WS_FL + 0x18000
WS_STAMP = 0x4A0000
WS_SIZE = 0x540000
HROW = 1152
SPIN = 400000
VSCALE = 64
P_XA, P_WQ, P_WK, P_WV, P_WO, P_XB, P_SRE, P_SIM = 4, 6, 8, 10, 12, 14, 16, 18
P_HRE, P_HIM, P_OUT, P_DBG, P_WS = 20, 22, 24, 26, 28
R_XA, R_WQ, R_W, R_WS, R_WO, R_XB, R_SRE, R_SIM, R_OUT, R_DBG = 32, 36, 40, 44, 48, 52, 56, 60, 64, 68
sW, sXCD, sJ, sTB, sHG, sTHP, sA = 72, 73, 74, 75, 76, 77, 78
sT0, sT1, sT2, sT3, sT4 = 80, 81, 82, 83, 84
sDRY = 85
sNON = 86
sIT, sINC, sFB, sSPIN = 88, 89, 90, 91
sX = 92
sST = 94
sBARN = 96
sRET = 90

def srd(r, p, size):
    e(f"s_mov_b32 s{r}, s{p}")
    e(f"s_and_b32 s{r+1}, s{p+1}, 0xffff")
    e(f"s_mov_b32 s{r+2}, {hex(size)}")
    e(f"s_mov_b32 s{r+3}, 0x20000")

LOW = [False]
vL = 1
def stamp(idx):
    if not opt['stamps']: return
    e(f"s_memrealtime {sr(sST,2)}")
    e(f"s_memtime {sr(sX,2)}")
    e("s_waitcnt lgkmcnt(0)")
    if LOW[0]: e("s_setprio 2")
    e(f"v_writelane_b32 v254, s{sST}, {idx}")
    e(f"v_writelane_b32 v255, s{sX}, {idx}")
    if LOW[0]: e("s_setprio 0")
def stamp_dump():
    if not opt['stamps']: return
    e(f"s_lshl_b32 s{sST}, s2, 3")
    e(f"s_add_u32 s{sST}, s{sST}, s{sW}")
    e(f"s_lshl_b32 s{sST}, s{sST}, 8")
    e(f"s_add_u32 s{sST}, s{sST}, {WS_STAMP}")
    e(f"v_lshlrev_b32 v253, 3, v{vL}")
    e("s_mov_b32 exec_hi, 0")
    e(f"buffer_store_dwordx2 v[254:255], v253, {sr(R_WS,4)}, s{sST} offen")

PADS = {}
def pad_begin(name): PADS[name] = len(L)
def isize(l):
    t = l.strip()
    if not t or t.startswith((';', '.')) or t.endswith(':'): return 0
    t = t.split(';')[0]
    mn = t.split()[0]
    if mn.startswith(('buffer_', 'global_', 'ds_', 'v_mfma', 'v_smfmac', 's_load', 's_mem')): return 8
    if mn.startswith('v_') and (mn.endswith('_e64') or mn in ('v_lshl_add_u32', 'v_bfe_u32', 'v_perm_b32', 'v_max3_f32', 'v_cvt_pk_bf16_f32', 'v_writelane_b32', 'v_mul_u32_u24', 'v_cmp_ne_u64')): return 8
    import re as _r
    for o in _r.findall(r'(?<![\w\[:])(-?0x[0-9a-f]+|-?\d+)(?![\w\]:])', (t.split(None, 1) + [''])[1]):
        v = int(o, 0)
        if not mn.startswith(('s_waitcnt', 's_nop', 's_sleep', 's_setprio')) and not -16 <= v <= 64: return 8
    return 4
def pad_end(name, ret):
    a = PADS[name]
    if not opt['pads']:
        L.insert(a, f"{name}_0:"); L.insert(a + 1, f"    s_cbranch_execz {ret}"); return
    body = L[a:]; del L[a:]
    n = 0; acc = 0
    L.append(f"{name}_0:"); L.append(f"    s_cbranch_execz {name}_1")
    for l in body:
        z = isize(l)
        prev = L[-1].strip()
        if acc + z > 56 and not prev.startswith(('s_mov_b32 m0', 's_add_u32 m0')):
            n += 1; L.append(f"{name}_{n}:"); L.append(f"    s_cbranch_execz {name}_{n+1}"); acc = 0
        L.append(l); acc += z
    n += 1
    L.append(f"{name}_{n}:"); L.append(f"    s_cbranch_execz {ret}")
def warm(name, ret):
    e("s_mov_b64 exec, 0")
    e(f"s_branch {name}_0")
    lab(ret)
    e("s_mov_b64 exec, -1")

def dma(voff, srdr, soff, ldsaddr_s, extra=""):
    e(f"s_mov_b32 m0, s{ldsaddr_s}")
    e("s_nop 0")
    e(f"buffer_load_dwordx4 v{voff}, {sr(srdr,4)}, s{soff} offen {extra}lds")
def dma_run(n, voff, srdr, soff, lds_s, dsrc, dlds, extra=""):
    for i in range(n):
        e(f"s_mov_b32 m0, s{lds_s}")
        if i < n - 1: e(f"s_add_u32 s{lds_s}, s{lds_s}, {dlds}")
        else: e("s_nop 0")
        e(f"buffer_load_dwordx4 v{voff}, {sr(srdr,4)}, s{soff} offen {extra}lds")
        if i < n - 1: e(f"s_add_u32 s{soff}, s{soff}, {dsrc}")

def poll(name, nloads, voff, dst, soffs, sleep=0):
    e(f"s_mov_b32 s{sSPIN}, {SPIN}")
    lab(name)
    for i in range(nloads):
        e(f"buffer_load_dwordx2 {vr(dst+2*i,2)}, v{voff}, {sr(R_WS,4)}, s{soffs[i]} offen sc1")
    e(f"s_sub_u32 s{sSPIN}, s{sSPIN}, 1")
    e(f"s_cmp_eq_u32 s{sSPIN}, 0")
    e(f"s_cbranch_scc1 {name}_done")
    e("s_waitcnt vmcnt(0)")
    e(f"v_cmp_ne_u64 vcc, {sr(sNON,2)}, {vr(dst,2)}")
    for i in range(1, nloads):
        e(f"v_cmp_ne_u64 {sr(sX,2)}, {sr(sNON,2)}, {vr(dst+2*i,2)}")
        e("s_nop 0")
        e(f"s_or_b64 vcc, vcc, {sr(sX,2)}")
    e("s_nop 0")
    e("s_cmp_eq_u64 vcc, 0")
    if sleep:
        e(f"s_cbranch_scc1 {name}_done")
        e(f"s_sleep {sleep}")
        e(f"s_branch {name}")
    else:
        e(f"s_cbranch_scc0 {name}")
    lab(name + "_done")
    e("s_waitcnt vmcnt(0)")

def lds_wait(name, off, value, tmp, sleep=0):
    e(f"s_mov_b32 s{sSPIN}, {SPIN*8}")
    e(f"v_mov_b32 v{tmp}, {MISC + off}")
    lab(name)
    e(f"ds_read_b32 v{tmp+1}, v{tmp}")
    e(f"s_sub_u32 s{sSPIN}, s{sSPIN}, 1")
    e(f"s_cmp_eq_u32 s{sSPIN}, 0")
    e(f"s_cbranch_scc1 {name}_done")
    e("s_waitcnt lgkmcnt(0)")
    e(f"v_readfirstlane_b32 s{sT4}, v{tmp+1}")
    e("s_nop 0")
    e(f"s_cmp_ge_u32 s{sT4}, {value}")
    if sleep:
        e(f"s_cbranch_scc1 {name}_done")
        e(f"s_sleep {sleep}")
        e(f"s_branch {name}")
    else:
        e(f"s_cbranch_scc0 {name}")
    lab(name + "_done")
    e("s_waitcnt lgkmcnt(0)")
def lds_add(off, tmp):
    e(f"v_mov_b32 v{tmp}, {MISC + off}")
    e(f"v_mov_b32 v{tmp+1}, 1")
    e("s_mov_b64 exec, 1")
    e(f"ds_add_u32 v{tmp}, v{tmp+1}")
    e("s_mov_b64 exec, -1")
def tag_from_lds(name, tmp):
    e(f"s_mov_b32 s{sSPIN}, {SPIN*8}")
    e(f"v_mov_b32 v{tmp}, {MISC+C_TAG}")
    lab(name)
    e(f"ds_read_b64 {vr(tmp+2,2)}, v{tmp}")
    e(f"s_sub_u32 s{sSPIN}, s{sSPIN}, 1")
    e(f"s_cmp_eq_u32 s{sSPIN}, 0")
    e(f"s_cbranch_scc1 {name}_done")
    e("s_waitcnt lgkmcnt(0)")
    e(f"v_readfirstlane_b32 s{sNON}, v{tmp+2}")
    e(f"v_readfirstlane_b32 s{sNON+1}, v{tmp+3}")
    e(f"s_cmp_lg_u32 s{sNON}, 0")
    e(f"s_cbranch_scc1 {name}_done")
    e(f"s_sleep {opt['fs']}")
    e(f"s_branch {name}")
    lab(name + "_done")
    e("s_waitcnt lgkmcnt(0)")

def signal(name, ctr_off, last, flag_soff_s, tmp, lo=None, plain_if=None):
    e(f"v_mov_b32 v{tmp}, {MISC + ctr_off}")
    e(f"v_mov_b32 v{tmp+1}, 1")
    e(f"s_mov_b64 exec, 1")
    e(f"ds_add_rtn_u32 v{tmp+1}, v{tmp}, v{tmp+1}")
    e(f"v_mov_b32 v{tmp+2}, s{sNON if lo is None else lo}")
    e(f"v_mov_b32 v{tmp+3}, s{sNON+1}")
    e("s_waitcnt lgkmcnt(0)")
    e(f"v_readfirstlane_b32 s{sT4}, v{tmp+1}")
    e("s_nop 0")
    e(f"s_cmp_eq_u32 s{sT4}, {last}")
    e(f"s_cbranch_scc0 {name}_nf")
    if plain_if is not None:
        e(f"s_cmp_eq_u32 s{plain_if}, 0")
        e(f"s_cbranch_scc1 {name}_wt")
        e(f"buffer_store_dwordx2 {vr(tmp+2,2)}, off, {sr(R_WS,4)}, s{flag_soff_s}")
        if opt['omode'] < 2: e(f"s_branch {name}_nf")
        lab(name + "_wt")
    e(f"buffer_store_dwordx2 {vr(tmp+2,2)}, off, {sr(R_WS,4)}, s{flag_soff_s} sc1")
    lab(name + "_nf")
    e("s_mov_b64 exec, -1")

hdr = open(f"cdna_kernels/{NAME}.s.ref").read().split("; Override launch")[0]
L.append(hdr.rstrip())
L.append(f"; @launch grid=(256,1,1) block=(512,1,1) lds={LDS_BYTES}")
L.append('.amdgcn_target "amdgcn-amd-amdhsa--gfx950"')
L.append(".text")
L.append(f".globl {NAME}_kernel")
L.append(".p2align 8")
L.append(f".type {NAME}_kernel,@function")
lab(f"{NAME}_kernel")
e("s_cmp_ge_u32 s2, 256")
e("s_cbranch_scc1 L_end")
e("s_load_dwordx16 s[4:19], s[0:1], 0")
e("s_load_dwordx8 s[20:27], s[0:1], 64")
e("s_load_dwordx2 s[28:29], s[0:1], 96")
e(f"s_memrealtime {sr(sNON,2)}")
if opt['endat']:
    e("s_waitcnt lgkmcnt(0)")
    e(f"s_mov_b32 s30, s{sNON}")
if opt['dxcc'] >= 0:
    e(f"s_getreg_b32 s{sT0}, hwreg(HW_REG_XCC_ID, 0, 4)")
    e(f"s_cmp_eq_u32 s{sT0}, {opt['dxcc']}") if opt['dxcc'] < 8 else e(f"s_cmp_eq_u32 s{sT0}, s{sT0}")
    e("s_cbranch_scc0 L_nodelay")
    e("s_waitcnt lgkmcnt(0)")
    lab("L_delay")
    e(f"s_memrealtime {sr(sX,2)}")
    e("s_waitcnt lgkmcnt(0)")
    e(f"s_sub_u32 s{sX}, s{sX}, s{sNON}")
    e(f"s_cmp_lt_u32 s{sX}, {opt['dus']}")
    e("s_cbranch_scc1 L_delay")
    lab("L_nodelay")
e("v_lshrrev_b32 v2, 6, v0")
e(f"v_and_b32 v{vL}, 63, v0")
e(f"v_readfirstlane_b32 s{sW}, v2")
e(f"s_and_b32 s{sXCD}, s2, 7")
e(f"s_lshr_b32 s{sJ}, s2, 3")
e(f"s_and_b32 s{sT0}, s{sJ}, 3")
e(f"s_lshl_b32 s{sTB}, s{sXCD}, 2")
e(f"s_add_u32 s{sTB}, s{sTB}, s{sT0}")
e(f"s_lshr_b32 s{sHG}, s{sJ}, 2")
e(f"s_lshr_b32 s{sTHP}, s{sHG}, 1")
e(f"s_and_b32 s{sA}, s{sW}, 3")
e(f"v_lshlrev_b32 v2, 4, v{vL}          ; v2 = lane*16")
cm("LDS init while the kernel arguments load: ones / zeros window (even 16-B chunks 2^64, odd chunks 0), counters")
ONE = (127 + VSCALE) << 7
e("v_lshrrev_b32 v5, 3, v0")
e("v_cmp_ne_u32 vcc, 8, v5")
e("v_and_b32 v4, 1, v0")
e("v_add_u32 v4, -1, v4")
e(f"v_and_b32 v4, {hex(ONE << 16 | ONE)}, v4")
e("v_cndmask_b32 v4, 0, v4, vcc")
e(f"v_lshlrev_b32 v3, 4, v0")
e("v_mov_b32 v5, v4")
e("v_mov_b32 v6, v4")
e("v_mov_b32 v7, v4")
e(f"v_add_u32 v3, {ONES_OFF}, v3")
e("ds_write_b128 v3, v[4:7]")
e(f"s_mov_b32 s{R_XA+2}, 0x200000")
e(f"s_mov_b32 s{R_XA+3}, 0x20000")
e(f"s_cmp_ge_u32 s{sW}, 4")
e("s_cbranch_scc1 L_aux")

cm("wq slice (8 rows x 128 B per load, 16-B chunks swizzled by row bit 1); quarter tb&3 first: distinct among its 4 sharers")
e(f"v_lshrrev_b32 v3, 3, v{vL}          ; r")
e(f"v_and_b32 v4, 7, v{vL}")
e(f"v_bfe_u32 v5, v{vL}, 4, 1           ; (r>>1)&1")
e("v_lshlrev_b32 v5, 2, v5")
e("v_xor_b32 v4, v4, v5")
e("v_lshlrev_b32 v4, 4, v4")
e("v_lshl_add_u32 v13, v3, 10, v4")
e(f"s_mov_b32 s{R_WQ+2}, 0x80000")
e(f"s_mov_b32 s{R_WQ+3}, 0x20000")
def wq_addr(q):
    e(f"s_add_u32 s{sT0}, s{sJ}, {q}")
    e(f"s_and_b32 s{sT0}, s{sT0}, 3")
    e(f"s_lshl_b32 s{sT0}, s{sT0}, 2")
    e(f"s_add_u32 s{sT0}, s{sT0}, s{sW}")
    e(f"s_lshl_b32 s{sT2}, s{sT0}, 15")
    e(f"s_lshl_b32 s{sT1}, s{sHG}, 7")
    e(f"s_add_u32 s{sT2}, s{sT2}, s{sT1}")
    e(f"s_lshl_b32 s{sT1}, s{sT0}, 12")
    e(f"s_add_u32 s{sT1}, s{sT1}, {WQ_OFF}")
wq_addr(0)
e("s_waitcnt lgkmcnt(0)")
e(f"s_mov_b32 s{R_WQ}, s{P_WQ}")
e(f"s_and_b32 s{R_WQ+1}, s{P_WQ+1}, 0xffff")
e(f"s_mov_b32 s{R_XA}, s{P_XA}")
e(f"s_and_b32 s{R_XA+1}, s{P_XA+1}, 0xffff")
stamp(0)
e("s_barrier")
NT = lambda b: "nt " if opt['ntc'] >> b & 1 else ""
dma_run(4, 13, R_WQ, sT2, sT1, 8192, 1024, NT(2))
cm("the 48 rows of the x tile the aux waves do not load: blocks blk+1, blk+2, blk+3 (mod 4), 4 rows per wave each")
def x_addr(d):
    e(f"s_add_u32 s{sT0}, s{sTHP}, {d}")
    e(f"s_and_b32 s{sT0}, s{sT0}, 3")
    e(f"s_lshl_b32 s{sT0}, s{sT0}, 2")
    e(f"s_add_u32 s{sT0}, s{sT0}, s{sW}")
    e(f"s_lshl_b32 s{sT0}, s{sT0}, 2          ; first row")
    e(f"s_mul_i32 s{sT1}, s{sT0}, {XROW}")
    e(f"s_add_u32 s{sT1}, s{sT1}, {X_OFF}")
    e(f"s_lshl_b32 s{sT2}, s{sTB}, 6")
    e(f"s_add_u32 s{sT2}, s{sT2}, s{sT0}")
    e(f"s_lshl_b32 s{sT2}, s{sT2}, 10")
def hold(name, ctr, val):
    lds_wait(name, ctr, val, 8, sleep=opt['fs'])
seq = [('x', 1), ('x', 2), ('x', 3), ('q', 1), ('q', 2), ('q', 3)]
for n, (kind, d) in enumerate(seq):
    (x_addr if kind == 'x' else wq_addr)(d)
    if n == opt['h1']: hold("L_hold1", C_CR, 4)
    if n == opt['h2']: hold("L_hold2", C_KV, 1)
    if kind == 'x': dma_run(4, 2, R_XA, sT2, sT1, 1024, XROW, NT(3))
    else: dma_run(4, 13, R_WQ, sT2, sT1, 8192, 1024, NT(4))
stamp(7)
srd(R_WS, P_WS, WS_SIZE)
SA, SB, OA, OB, CA, CB = 16, 32, 48, 64, 80, 96
QA, QB, K0, K1, V0, V1 = 112, 116, 120, 124, 128, 136
vIDX, vK, vV = 144, 145, 146
vINC, vV0, vSAME = 147, 150, 151
vXA, vWA = 148, 149
FB = 152
cm("Q-projection addresses")
e(f"s_and_b32 s{sT0}, s{sW}, 1            ; th")
e(f"s_lshr_b32 s{sT1}, s{sW}, 1           ; hp")
e(f"v_and_b32 v3, 31, v{vL}")
e(f"s_lshl_b32 s{sT2}, s{sT0}, 5")
e(f"v_add_u32 v3, s{sT2}, v3")
e(f"v_mul_u32_u24 v3, {XROW}, v3")
e(f"v_lshrrev_b32 v4, 5, v{vL}           ; h")
e(f"v_lshl_add_u32 v14, v4, 4, v3")
e(f"v_bfe_u32 v5, v{vL}, 2, 2            ; r")
e("v_lshl_add_u32 v6, v4, 3, v5          ; 8h + r")
e("v_lshlrev_b32 v6, 7, v6")
e(f"v_bfe_u32 v7, v{vL}, 4, 1            ; g")
e(f"v_and_b32 v8, 1, v{vL}")
e("v_lshl_add_u32 v7, v7, 1, v8          ; 2g + (cc&1)")
e(f"s_lshl_b32 s{sT2}, s{sT1}, 2")
e(f"v_add_u32 v7, s{sT2}, v7")
e(f"v_bfe_u32 v8, v{vL}, 3, 1            ; (r>>1)&1")
e("v_lshlrev_b32 v8, 2, v8")
e("v_xor_b32 v7, v7, v8")
e("v_lshl_add_u32 v6, v7, 4, v6")
e(f"v_bfe_u32 v8, v{vL}, 1, 1")
e("v_lshl_add_u32 v6, v8, 3, v6")
e(f"v_add_u32 v{vWA}, {WQ_OFF}, v6")
e(f"v_add_u32 v{vXA}, {X_OFF}, v14")
cm("attention LDS addresses; V: rows 0..15 -> tile data, lanes 16,20 -> 2^64, other lanes -> 0")
e(f"v_mov_b32 v{vIDX}, 0xdddddddd")
e(f"v_bfe_u32 v5, v{vL}, 4, 1")
e(f"v_xor_b32 v5, 1, v5                   ; 1 for V rows, 0 for the constant lanes")
e(f"v_lshlrev_b32 v{vINC}, 13, v5")
e(f"v_and_b32 v8, 15, v{vL}")
e("v_lshlrev_b32 v9, 8, v4")
e("v_lshl_add_u32 v8, v8, 4, v9")
e(f"v_and_b32 v9, 31, v{vL}")
e("v_add_u32 v10, -20, v9")
e("v_cmp_gt_u32 vcc, 8, v10")
e("v_and_b32 v9, 11, v9")
e("v_min_u32 v9, 1, v9")
e("v_cndmask_b32 v10, 0, 64, vcc")
e(f"v_cmp_eq_u32 vcc, 1, v5")
e("v_lshl_add_u32 v9, v9, 4, v10")
e(f"v_add_u32 v9, {ONES_OFF - 1024}, v9")
e(f"v_cndmask_b32 v{vV0}, v9, v8, vcc")
cm("O fragment destination and flag slot")
sOD, sOF = 97, 98
e(f"s_and_b32 s{sT0}, s{sW}, 1")
e(f"s_lshl_b32 s{sT1}, s{sTB}, 1")
e(f"s_add_u32 s{sT0}, s{sT0}, s{sT1}")
e(f"s_lshl_b32 s{sT0}, s{sT0}, 5          ; (tb*2+th)*32")
e(f"s_lshl_b32 s{sT1}, s{sHG}, 2")
e(f"s_add_u32 s{sT0}, s{sT0}, s{sT1}")
e(f"s_and_b32 s{sT1}, s{sW}, 2")
e(f"s_add_u32 s{sT0}, s{sT0}, s{sT1}")
e(f"s_lshl_b32 s{sT0}, s{sT0}, 10")
e(f"s_add_u32 s{sOD}, s{sT0}, {WS_O}")
e(f"s_lshl_b32 s{sT1}, s{sTB}, 3")
e(f"s_add_u32 s{sT1}, s{sT1}, s{sHG}")
e(f"s_lshl_b32 s{sT1}, s{sT1}, 7")
e(f"s_add_u32 s{sOF}, s{sT1}, {FL_O}")
e(f"s_mov_b32 s{sFB}, 0")
e(f"s_mov_b32 s{sBARN}, 0xa")
e(f"v_mov_b32 v{vSAME}, {MISC}")
sPF, sOL, sOS, vPO = 100, 101, 79, 184
e(f"s_lshl_b32 s{sT0}, s{sTB}, 3")
e(f"s_lshl_b32 s{sT1}, s{sW}, 1")
e(f"s_add_u32 s{sT0}, s{sT0}, s{sT1}")
e(f"s_lshl_b32 s{sT0}, s{sT0}, 7")
e(f"s_add_u32 s{sPF}, s{sT0}, {FL_O}")
e(f"s_lshl_b32 s{sT2}, s{sTB}, 16")
e(f"s_lshl_b32 s{sOL}, s{sW}, 13")
e(f"s_add_u32 s{sT2}, s{sT2}, s{sOL}")
e(f"s_add_u32 s{sOS}, s{sT2}, {WS_O}")
e(f"v_and_b32 v8, 1, v{vL}")
e(f"v_lshlrev_b32 v{vPO}, 7, v8")
for i in range(16): e(f"v_mov_b32 v{OA+i}, 0")
for i in range(16): e(f"v_mov_b32 v{OB+i}, 0")
for i in range(4): e(f"v_mov_b32 v{V1+4+i}, 0")
e(f"v_mov_b32 v{vK}, v2")
e(f"v_mov_b32 v{vV}, v{vV0}")
if opt['dftpf']:
    cm("sequence-DFT rows the aux waves read later (pulled towards L2 from inside the loop):")
    cm("wave 0: cos rows t1s + 32l; wave 1: sin rows 2048 - that; waves 2, 3: cos / sin rows 64 (l & 31)")
    R_DP, vDP = R_XA, 187
    e(f"s_bitcmp1_b32 s{sW}, 0")
    e(f"s_cselect_b64 {sr(R_DP,2)}, {sr(P_SIM,2)}, {sr(P_SRE,2)}")
    e(f"s_and_b32 s{R_DP+1}, s{R_DP+1}, 0xffff")
    e(f"s_mov_b32 s{R_DP+2}, 0x800000")
    e(f"v_lshlrev_b32 v8, 5, v{vL}")
    e(f"v_add_u32 v8, s{sTB}, v8               ; t1s = tb")
    e("v_sub_u32 v9, 0x800, v8")
    e("v_and_b32 v9, 0x7ff, v9")
    e(f"v_lshlrev_b32 v10, 6, v{vL}")
    e("v_and_b32 v10, 0x7ff, v10")
    e(f"s_cmp_eq_u32 s{sW}, 1")
    e("s_cselect_b64 vcc, -1, 0")
    e("v_cndmask_b32 v8, v8, v9, vcc")
    e(f"s_cmp_ge_u32 s{sW}, 2")
    e("s_cselect_b64 vcc, -1, 0")
    e("v_cndmask_b32 v8, v8, v10, vcc")
    e(f"v_lshlrev_b32 v{vDP}, 12, v8")
e(f"s_mov_b32 s{sT0}, {hex(f2u(0.25*1.4426950408889634))}")
warm("L_padq", "L_padq_ret")
e("s_waitcnt vmcnt(0)")
stamp(8)
e("s_barrier")
stamp(10)
pad_begin("L_padq")
def qload(ks):
    b = FB + 8*(ks % 4)
    e(f"ds_read_b64_tr_b16 {vr(b,2)}, v{vWA} offset:{ks*2048}")
    e(f"ds_read_b64_tr_b16 {vr(b+2,2)}, v{vWA} offset:{ks*2048+512}")
    e(f"ds_read_b128 {vr(b+4,4)}, v{vXA} offset:{ks*32}")
for ks in range(3): qload(ks)
for ks in range(32):
    b = FB + 8*(ks % 4)
    if ks + 3 < 32:
        qload(ks + 3); e("s_waitcnt lgkmcnt(9)")
    else:
        e(f"s_waitcnt lgkmcnt({3*(31-ks)})")
    c = "0" if ks == 0 else vr(SA, 16)
    e(f"v_mfma_f32_32x32x16_bf16 {vr(SA,16)}, {vr(b,4)}, {vr(b+4,4)}, {c}")
stamp(9)
nop(12)
for i in range(16): e(f"v_mul_f32 v{SA+i}, s{sT0}, v{SA+i}")
for i in range(8): e(f"v_cvt_pk_bf16_f32 v{QA+i}, v{SA+2*i}, v{SA+2*i+1}")
if opt['prioA']: e(f"s_setprio {opt['prioA']}")
stamp(2)
if opt['attpf']:
    cm("after BA: pull this workgroup's 1/32 share of what its XCD reads later towards L2 (one dword per 128-B line)")
    cm("wave 0: x_B rows 64j + 8xcd + (0..7); waves 1, 2: hidden cos / sin rows 8j..8j+7; wave 3: wo rows 16j..16j+15")
    R_PF = R_WQ
    e(f"s_cmp_eq_u32 s{sW}, 1")
    e(f"s_cselect_b64 {sr(R_PF,2)}, {sr(P_HRE,2)}, {sr(P_HIM,2)}")
    e(f"s_lshl_b32 s{sT2}, s{sJ}, 13")
    e(f"s_cmp_eq_u32 s{sW}, 3")
    e(f"s_cselect_b64 {sr(R_PF,2)}, {sr(P_WO,2)}, {sr(R_PF,2)}")
    e(f"s_cselect_b32 s{sT3}, s{sT2}, 0")
    e(f"s_add_u32 s{sT2}, s{sT2}, s{sT3}")
    e(f"s_lshl_b32 s{sT3}, s{sJ}, 16")
    e(f"s_lshl_b32 s{sT1}, s{sXCD}, 13")
    e(f"s_add_u32 s{sT3}, s{sT3}, s{sT1}")
    e(f"s_cmp_eq_u32 s{sW}, 0")
    e(f"s_cselect_b64 {sr(R_PF,2)}, {sr(P_XB,2)}, {sr(R_PF,2)}")
    e(f"s_cselect_b32 s{sT2}, s{sT3}, s{sT2}")
    e(f"s_cselect_b32 s{R_PF+2}, 0x200000, s{R_PF+2}")
    e(f"s_and_b32 s{R_PF+1}, s{R_PF+1}, 0xffff")
    e(f"s_add_u32 s{sT3}, s{sT2}, 8192")
    e(f"v_lshlrev_b32 v6, 7, v{vL}")
e("s_barrier")
stamp(3)
PFLOAD = True
cm("stand-in for the row max: max over key tile 0 (checked after the loop; fallback = true max)")
e(f"ds_read_b128 {vr(K0,4)}, v{vK}")
e(f"ds_read_b128 {vr(K1,4)}, v{vK} offset:2048")
e(f"ds_read_b128 {vr(V0,4)}, v{vV} offset:1024")
e(f"ds_read_b128 {vr(V0+4,4)}, v{vV} offset:1536")
e("s_waitcnt lgkmcnt(3)")
e(f"v_mfma_f32_32x32x16_bf16 {vr(SA,16)}, {vr(K0,4)}, {vr(QA,4)}, 0")
e(f"v_mfma_f32_32x32x16_bf16 {vr(SB,16)}, {vr(K0,4)}, {vr(QB,4)}, 0")
if opt['attpf']:
    e(f"buffer_load_dword v185, v6, {sr(R_PF,4)}, s{sT2} offen")
    e(f"s_cmp_eq_u32 s{sW}, 3")
    e("s_cbranch_scc0 L_pf_one")
    e(f"buffer_load_dword v186, v6, {sr(R_PF,4)}, s{sT3} offen")
    lab("L_pf_one")
    nop(8)
else: nop(11)
def max16(dst, s, acc=None):
    if acc is None:
        e(f"v_max3_f32 v{dst}, v{s}, v{s+1}, v{s+2}"); i = 3
        while i + 1 < 16:
            e(f"v_max3_f32 v{dst}, v{dst}, v{s+i}, v{s+i+1}"); i += 2
        e(f"v_max_f32 v{dst}, v{dst}, v{s+15}")
    else:
        for i in range(0, 16, 2): e(f"v_max3_f32 v{dst}, v{dst}, v{s+i}, v{s+i+1}")
max16(4, SA); max16(5, SB)
lab("L_setmax")
cm(f"v4 / v5 = per-lane max for tiles A / B; combine the two half-waves, C = -(max + {opt['shift']})")
e("v_mov_b32 v6, v4")
e("v_mov_b32 v7, v5")
e(f"s_mov_b32 s{sIT}, 0")
e("s_nop 0")
e("v_permlane32_swap_b32 v4, v6")
e("v_permlane32_swap_b32 v5, v7")
e("v_max_f32 v4, v4, v6")
e("v_max_f32 v5, v5, v7")
for i in range(16): e(f"v_sub_f32 v{CA+i}, {hex(f2u(-float(opt['shift'])))}, v4")
e(f"v_sub_f32 v{CB}, {hex(f2u(-float(opt['shift'])))}, v5")
e("s_waitcnt lgkmcnt(0)")
e(f"v_mfma_f32_32x32x16_bf16 {vr(SA,16)}, {vr(K0,4)}, {vr(QA,4)}, {vr(CA,16)}")
for i in range(1, 16): e(f"v_mov_b32 v{CB+i}, v{CB}")
for i in range(8): e(f"v_mov_b32 v{SB+8+i}, 0")
def SM(o, a, b): e(f"v_smfmac_f32_32x32x32_bf16 {vr(o,16)}, {vr(a,4)}, {vr(b,8)}, v{vIDX}")
def QK(d, k, q, c): e(f"v_mfma_f32_32x32x16_bf16 {vr(d,16)}, {vr(k,4)}, {vr(q,4)}, {vr(c,16)}")
def EX(s, a, b):
    for i in range(a, b): e(f"v_exp_f32 v{s+i}, v{s+i}")
pad_end("L_padq", "L_padq_ret")
L.append(".p2align 6")
lab("L_att_loop")
for u in range(4):
    kc, kn = (K0, K1) if u % 2 == 0 else (K1, K0)
    vc, vp = (V0, V1) if u % 2 == 0 else (V1, V0)
    voffs = ((u + 1) % 4) * 2048 + 1024
    koffs = ((u + 2) % 4) * 2048
    p0, p1, p2 = (4, 7, 10) if opt['cluster'] else (2, 5, 10)
    EX(SA, 0, p0)
    SM(OB, vp + 4, SB + 8)
    e("s_waitcnt lgkmcnt(1)")
    EX(SA, p0, p1)
    QK(SB, kc, QB, CB)
    e(f"ds_read_b128 {vr(vp,4)}, v{vV} offset:{voffs}")
    EX(SA, p1, p2)
    SM(OA, vc, SA)
    e(f"ds_read_b128 {vr(vp+4,4)}, v{vV} offset:{voffs+512}")
    EX(SA, p2, 16)
    EX(SB, 0, p0)
    SM(OA, vc + 4, SA + 8)
    e("s_waitcnt lgkmcnt(2)")
    if u == 1:
        pass
    EX(SB, p0, p1)
    QK(SA, kn, QA, CA)
    e(f"ds_read_b128 {vr(kc,4)}, v{vK} offset:{koffs}")
    EX(SB, p1, p2)
    SM(OB, vc, SB)
    if u == 1:
        e(f"s_bitcmp1_b32 s{sBARN}, s{sIT}")
        e("s_cbranch_scc1 L_sync")
        lab("L_nobar")
        e(f"v_add_u32 v{vK}, 0x2000, v{vK}")
    if u == 2:
        e(f"v_add_u32 v{vV}, v{vINC}, v{vV}")
    if u == 3:
        e(f"s_add_u32 s{sIT}, s{sIT}, 1")
        e(f"s_cmp_lt_u32 s{sIT}, 16")
    if u == 0 and opt['cluster']: e("s_nop 0")
    EX(SB, p2, 16)
e("s_cbranch_scc1 L_att_loop")
pad_begin("L_padt")
e(f"s_mov_b32 s{sT0}, {hex(f2u(2.0**100) if not opt['force_fb'] else f2u(2.0**-30))}")
e(f"v_rcp_f32 v4, v{OA+8}")
SM(OB, V1 + 4, SB + 8)
e(f"ds_read_b32 v7, v{vSAME} offset:{C_SAME}")
e(f"ds_read_b64 v[8:9], v{vSAME} offset:{C_TAG}")
cm("run-time check of the stand-in: l*2^64 must be finite and <= 2^100, else redo with the true row max")
e(f"v_cmp_nle_f32_e64 vcc, v{OA+8}, s{sT0}")
for i in range(8): e(f"v_mul_f32 v{SA+i}, v4, v{OA+i}")
for i in range(4): e(f"v_cvt_pk_bf16_f32 v{SA+i}, v{SA+2*i}, v{SA+2*i+1}")
e(f"v_rcp_f32 v5, v{OB+8}")
e(f"v_cmp_nle_f32_e64 {sr(sX,2)}, v{OB+8}, s{sT0}")
e("s_waitcnt lgkmcnt(0)")
e(f"s_or_b64 vcc, vcc, {sr(sX,2)}")
e("s_cmp_eq_u64 vcc, 0")
e("s_cbranch_scc0 L_fallback")
lab("L_att_done")
stamp(6)
cm("plain stores only when every workgroup of this token block reported the same XCD; else write-through")
sSAME = 99
e(f"v_readfirstlane_b32 s{sSAME}, v7")
e(f"v_readfirstlane_b32 s{sNON}, v8")
e(f"v_readfirstlane_b32 s{sNON+1}, v9")
for i in range(8): e(f"v_mul_f32 v{OB+i}, v5, v{OB+i}")
for i in range(4): e(f"v_cvt_pk_bf16_f32 v{SA+4+i}, v{OB+2*i}, v{OB+2*i+1}")
e(f"s_cmp_eq_u32 s{sSAME}, 0")
e("s_cbranch_scc1 L_ost_wt") if opt['omode'] != 2 else e("s_branch L_ost_wt")
e(f"buffer_store_dwordx4 {vr(SA,4)}, v2, {sr(R_WS,4)}, s{sOD} offen")
e(f"buffer_store_dwordx4 {vr(SA+4,4)}, v2, {sr(R_WS,4)}, s{sOD} offen offset:1024")
lab("L_ost_done")
e("s_barrier")
stamp(4)
e("s_waitcnt vmcnt(0)")
signal("L_sigO", C_O, 3, sOF, 4, plain_if=sSAME)
stamp(5)
cm("gather the O tile of this token block: wave w takes producers 2w, 2w+1 (first / second half)")
poll("L_pollO", 1, vPO, 8, [sPF])
stamp(11)
def odma(sc):
    for q in range(2):
        for th in range(2):
            e(f"s_mov_b32 m0, s{sOL}")
            e("s_nop 0")
            for i in range(4): e(f"buffer_load_dwordx4 v2, {sr(R_WS,4)}, s{sOS} offen offset:{1024*i} {sc}lds")
            if not (th == 1 and q == 1):
                op = "s_add_u32" if th == 0 else "s_sub_u32"
                d = 32768 if th == 0 else 32768 - 4096
                e(f"{op} s{sOL}, s{sOL}, {d}")
                e(f"{op} s{sOS}, s{sOS}, {d}")
odma("sc1 ")
pad_end("L_padt", "L_pado_0")
e("s_waitcnt vmcnt(8)")
stamp(12)
e("s_barrier")
e("s_waitcnt vmcnt(0)")
e("s_barrier")
if opt['omode'] == 3:
    cm("write the O lines through as well, so that no dirty line is left for the end of the kernel")
    e(f"buffer_store_dwordx4 {vr(SA,4)}, v2, {sr(R_WS,4)}, s{sOD} offen sc1")
    e(f"buffer_store_dwordx4 {vr(SA+4,4)}, v2, {sr(R_WS,4)}, s{sOD} offen offset:1024 sc1")
stamp_dump()
e("s_endpgm")
lab("L_ost_wt")
e(f"buffer_store_dwordx4 {vr(SA,4)}, v2, {sr(R_WS,4)}, s{sOD} offen sc1")
e(f"buffer_store_dwordx4 {vr(SA+4,4)}, v2, {sr(R_WS,4)}, s{sOD} offen offset:1024 sc1")
e("s_branch L_ost_done")
lab("L_sync")
e(f"s_cmp_eq_u32 s{sIT}, 1")
e("s_cbranch_scc0 L_sync3")
lds_wait("L_wg1", C_G1, 4, 4)
e("s_branch L_nobar")
lab("L_sync3")
if opt['dftpf']: e(f"buffer_load_dword v185, v{vDP}, {sr(R_DP,4)}, 0 offen")
lds_wait("L_wkvl", C_KVL, 4, 4)
e("s_branch L_nobar")
lab("L_fallback")
e(f"s_cmp_eq_u32 s{sFB}, 0")
e("s_cbranch_scc0 L_att_done")
cm("fallback: exact row max over all 64 key tiles, then repeat the main loop")
e(f"s_mov_b32 s{sFB}, 1")
e(f"s_mov_b32 s{sBARN}, 0")
e(f"v_mov_b32 v4, 0xff800000")
e(f"v_mov_b32 v5, 0xff800000")
e(f"v_mov_b32 v{vK}, v2")
e(f"s_mov_b32 s{sIT}, 0")
lab("L_fb_loop")
e(f"ds_read_b128 {vr(K0,4)}, v{vK}")
e("s_waitcnt lgkmcnt(0)")
e(f"v_mfma_f32_32x32x16_bf16 {vr(SA,16)}, {vr(K0,4)}, {vr(QA,4)}, 0")
e(f"v_mfma_f32_32x32x16_bf16 {vr(SB,16)}, {vr(K0,4)}, {vr(QB,4)}, 0")
e(f"v_add_u32 v{vK}, 0x800, v{vK}")
nop(11)
max16(4, SA, 1); max16(5, SB, 1)
e(f"s_add_u32 s{sIT}, s{sIT}, 1")
e(f"s_cmp_lt_u32 s{sIT}, 64")
e("s_cbranch_scc1 L_fb_loop")
e(f"v_mov_b32 v{vK}, v2")
e(f"v_mov_b32 v{vV}, v{vV0}")
for i in range(16): e(f"v_mov_b32 v{OA+i}, 0")
for i in range(16): e(f"v_mov_b32 v{OB+i}, 0")
for i in range(4): e(f"v_mov_b32 v{V1+4+i}, 0")
e(f"ds_read_b128 {vr(K0,4)}, v{vK}")
e(f"ds_read_b128 {vr(K1,4)}, v{vK} offset:2048")
e(f"ds_read_b128 {vr(V0,4)}, v{vV} offset:1024")
e(f"ds_read_b128 {vr(V0+4,4)}, v{vV} offset:1536")
e("s_branch L_setmax")

lab("L_aux")
BUF = 16
BP = 144
FR = 176
ACC = 192
D1, D2 = 208, 224
if opt['prioX']: e(f"s_setprio {opt['prioX']}")
cm("critical loads: projection weight (wk for even hg, wv for odd), x rows 16*blk + 4a + i")
e(f"s_lshl_b32 s{sT0}, s{sTHP}, 4")
e(f"s_lshl_b32 s{sT1}, s{sA}, 2")
e(f"s_add_u32 s{sT0}, s{sT0}, s{sT1}")
e(f"s_mul_i32 s{sT1}, s{sT0}, {XROW}")
e(f"s_add_u32 s{sT1}, s{sT1}, {X_OFF}")
e(f"s_lshl_b32 s{sT2}, s{sTB}, 6")
e(f"s_add_u32 s{sT2}, s{sT2}, s{sT0}")
e(f"s_lshl_b32 s{sT2}, s{sT2}, 10")
e(f"s_lshl_b32 s{sT3}, s{sA}, 12")
e(f"s_mov_b32 s{R_W+2}, 16384")
e(f"s_mov_b32 s{R_W+3}, 0x20000")
e(f"s_mov_b32 m0, s{sT3}")
e(f"s_bitcmp1_b32 s{sHG}, 0")
e("s_waitcnt lgkmcnt(0)")
e(f"s_cselect_b32 s{R_W}, s{P_WV}, s{P_WK}")
e(f"s_cselect_b32 s{R_W+1}, s{P_WV+1}, s{P_WK+1}")
e(f"s_and_b32 s{R_W+1}, s{R_W+1}, 0xffff")
e(f"s_mov_b32 s{R_XA}, s{P_XA}")
e(f"s_and_b32 s{R_XA+1}, s{P_XA+1}, 0xffff")
srd(R_DBG, P_DBG, 256)
cm("workgroup 0, aux wave 3 publishes this launch's hand-off tag")
e(f"s_or_b32 s{sNON}, s{sNON}, 16")
e(f"s_and_b32 s{sNON}, s{sNON}, -16")
e(f"s_lshl_b32 s{sT0}, s2, 3")
e(f"s_add_u32 s{sT0}, s{sT0}, s{sW}")
e(f"s_cmp_eq_u32 s{sT0}, 7")
e("s_cbranch_scc0 L_notag")
e(f"v_mov_b32 v4, s{sNON}")
e(f"v_mov_b32 v5, s{sNON+1}")
e("s_mov_b64 exec, 1")
e(f"buffer_store_dwordx2 v[4:5], off, {sr(R_DBG,4)}, 0 sc1")
e("s_mov_b64 exec, -1")
lab("L_notag")
NT = lambda b: "nt " if opt['ntc'] >> b & 1 else ""
for i in range(4): e(f"buffer_load_dwordx4 v2, {sr(R_W,4)}, s{sT3} offen offset:{1024*i} {NT(1)}lds")
dma_run(4, 2, R_XA, sT2, sT1, 1024, XROW, NT(0))
stamp(0)
srd(R_WS, P_WS, WS_SIZE)
if opt['dbgt']:
    e(f"s_cmp_lt_u32 s2, 8")
    e("s_cbranch_scc0 L_nodbg0")
    e(f"s_cmp_eq_u32 s{sW}, 6")
    e("s_cbranch_scc0 L_nodbg0")
    e(f"v_mov_b32 v4, s{sNON}")
    e(f"s_lshl_b32 s{sT0}, s2, 2")
    e(f"s_add_u32 s{sT0}, s{sT0}, 8")
    e("s_mov_b64 exec, 1")
    e(f"buffer_store_dword v4, off, {sr(R_DBG,4)}, s{sT0}")
    e("s_mov_b64 exec, -1")
    lab("L_nodbg0")
e("s_barrier                             ; B1")
KV0 = len(L)
e(f"v_mov_b32 v14, {MISC+C_CR}")
e(f"v_mov_b32 v15, 1")
cm("K / V projection of 16 tokens: aux wave 0")
e(f"s_cmp_eq_u32 s{sA}, 0")
e("s_cbranch_scc0 L_np")
e(f"v_and_b32 v3, 15, v{vL}")
e(f"v_lshrrev_b32 v4, 4, v{vL}           ; q")
e(f"s_lshl_b32 s{sT0}, s{sTHP}, 4")
e(f"v_add_u32 v5, s{sT0}, v3")
e(f"v_mul_u32_u24 v5, {XROW}, v5")
e("v_lshl_add_u32 v5, v4, 4, v5")
e(f"v_add_u32 v5, {X_OFF}, v5")
e(f"v_bfe_u32 v6, v{vL}, 2, 2            ; r")
e("v_lshl_add_u32 v6, v4, 3, v6")
e("v_lshlrev_b32 v6, 5, v6")
e(f"v_and_b32 v7, 3, v{vL}               ; cc")
sB = sT3
e(f"s_and_b32 s{sB}, s{sTHP}, 1            ; b")
e(f"s_lshr_b32 s{sT0}, s{sTHP}, 1")
e(f"s_lshl_b32 s{sT2}, s{sTB}, 1")
e(f"s_add_u32 s{sT2}, s{sT2}, s{sT0}")
sKF, sKD = 97, 96
e(f"s_lshl_b32 s{sT1}, s{sT2}, 1")
e(f"s_and_b32 s{sT0}, s{sHG}, 1")
e(f"s_add_u32 s{sT1}, s{sT1}, s{sT0}")
e(f"s_lshl_b32 s{sT1}, s{sT1}, 1")
e(f"s_add_u32 s{sT1}, s{sT1}, s{sB}")
e(f"s_lshl_b32 s{sT1}, s{sT1}, 7")
e(f"s_add_u32 s{sKF}, s{sT1}, {FL_KV}")
e(f"s_lshl_b32 s{sKD}, s{sT2}, 11")
e("v_and_b32 v9, 1, v4")
e("v_lshlrev_b32 v9, 3, v9")
e("v_lshl_add_u32 v9, v3, 4, v9          ; n*16 + (q&1)*8")
e("v_lshrrev_b32 v8, 1, v4")
e(f"s_mov_b32 s{sDRY}, {1 if opt['dry'] else 0}")
if opt['pre']:
    cm("touch the lines this wave will publish (tile and flag), so the write-through stores find them resident")
    e(f"v_and_b32 v12, 15, v{vL}")
    e("v_lshlrev_b32 v12, 7, v12")
    e(f"buffer_load_dword v201, v12, {sr(R_WS,4)}, s{sKD} offen sc1")
    e(f"buffer_load_dword v202, off, {sr(R_WS,4)}, s{sKF} sc1")
def kvchain(isV):
    D = opt['kvd']
    def mf(k2):
        b2 = BUF + 8*k2
        a, bb = (b2+4, b2) if isV else (b2, b2+4)
        e(f"v_mfma_f32_16x16x32_bf16 {vr(ACC,4)}, {vr(a,4)}, {vr(bb,4)}, {'0' if k2==0 else vr(ACC,4)}")
    for ks in range(16):
        b = BUF + 8*ks
        e(f"ds_read_b64_tr_b16 {vr(b,2)}, v6 offset:{ks*1024}")
        e(f"ds_read_b64_tr_b16 {vr(b+2,2)}, v6 offset:{ks*1024+128}")
        e(f"ds_read_b128 {vr(b+4,4)}, v5 offset:{ks*64}")
        if ks >= D:
            e(f"s_waitcnt lgkmcnt({3*D})"); mf(ks - D)
    for k2 in range(16 - D, 16):
        e(f"s_waitcnt lgkmcnt({3*(15-k2)})"); mf(k2)
def kv_wait(tagname):
    e(f"s_waitcnt vmcnt({2 if opt['pre'] else 0})")
    stamp(1)
    e("s_mov_b64 exec, 1")
    e("ds_add_u32 v14, v15")
    e("s_mov_b64 exec, -1")
    lds_wait(tagname + "_w", C_CR, 4, 10, sleep=1)
def kv_b1(tagname):
    if not opt['dry']: kv_wait(tagname)
    lab(tagname)
def kv_b2(tagname):
    if opt['dry']:
        e(f"s_cmp_eq_u32 s{sDRY}, 0")
        e(f"s_cbranch_scc1 {tagname}_go")
        e(f"s_mov_b32 s{sDRY}, 0")
        kv_wait(tagname)
        e(f"s_branch {tagname}")
        lab(tagname + "_go")
e(f"s_bitcmp1_b32 s{sHG}, 0")
e("s_cbranch_scc1 L_prodV")
cm("K: (q>>1)*512 + (16b+n)*16 + (q&1)*8")
e("v_lshl_add_u32 v6, v7, 3, v6")
e("v_lshl_add_u32 v8, v8, 9, v9")
e(f"s_lshl_b32 s{sT1}, s{sB}, 8")
e(f"s_add_u32 s{sKD}, s{sKD}, s{sT1}")
kv_b1("L_chK"); kvchain(False); kv_b2("L_chK")
nop(6 if opt['dry'] else 8)
e("s_branch L_prodS")
lab("L_prodV")
cm("V: 1024 + b*512 + (q>>1)*256 + n*16 + (q&1)*8")
e("v_lshl_add_u32 v8, v8, 8, v9")
e("v_and_b32 v9, 1, v7")
e("v_lshl_add_u32 v6, v9, 4, v6")
e("v_lshrrev_b32 v9, 1, v7")
e("v_lshl_add_u32 v6, v9, 3, v6")
e(f"s_lshl_b32 s{sT1}, s{sB}, 9")
e(f"s_add_u32 s{sKD}, s{sKD}, s{sT1}")
e(f"s_add_u32 s{sKD}, s{sKD}, 1024")
kv_b1("L_chV"); kvchain(True); kv_b2("L_chV")
e(f"s_mov_b32 s{sT0}, {hex(f2u(2.0**VSCALE))}")
nop(6 if opt['dry'] else 8)
for i in range(4): e(f"v_mul_f32 v{ACC+i}, s{sT0}, v{ACC+i}")
lab("L_prodS")
e(f"v_cvt_pk_bf16_f32 v10, v{ACC}, v{ACC+1}")
e(f"v_cvt_pk_bf16_f32 v11, v{ACC+2}, v{ACC+3}")
e(f"buffer_store_dwordx2 v[10:11], v8, {sr(R_WS,4)}, s{sKD} offen sc1")
stamp(14)
e("ds_add_u32 v14, v15 offset:%d             ; this wave is done with the weight region" % (C_KV - C_CR + 65536) if False else f"v_mov_b32 v13, {MISC+C_KV}")
e("s_mov_b64 exec, 1")
e("ds_add_u32 v13, v15")
e("s_mov_b64 exec, -1")
tag_from_lds("L_tagp", 4)
e(f"v_mov_b32 v6, s{sNON}")
e(f"v_mov_b32 v7, s{sNON+1}")
e("s_mov_b64 exec, 1")
e("s_waitcnt vmcnt(0)")
e(f"buffer_store_dwordx2 v[6:7], off, {sr(R_WS,4)}, s{sKF} sc1")
e("s_mov_b64 exec, -1")
stamp(15)
e(f"s_mov_b32 s{sRET}, 1")
e("s_branch L_tagged")
lab("L_np")
e("s_waitcnt vmcnt(0)")
stamp(1)
e("s_mov_b64 exec, 1")
e("ds_add_u32 v14, v15")
e("s_mov_b64 exec, -1")
if opt['codepf']:
    cm("aux wave 2 pulls this kernel's code towards L2 (reads only)")
    e(f"s_cmp_eq_u32 s{sA}, 2")
    e("s_cbranch_scc0 L_nopf")
    e(f"s_getpc_b64 {sr(sX,2)}")
    lab("L_pc")
    e(f"v_lshlrev_b32 v4, 7, v{vL}")
    e(f"s_sub_u32 s{sX}, s{sX}, L_pc-{NAME}_kernel")
    e(f"s_subb_u32 s{sX+1}, s{sX+1}, 0")
    e(f"v_mov_b32 v5, s{sX+1}")
    e(f"v_add_co_u32 v4, vcc, s{sX}, v4")
    e("s_nop 1")
    e("v_addc_co_u32 v5, vcc, 0, v5, vcc")
    e("CODEPF")
    lab("L_nopf")
e(f"s_cmp_eq_u32 s{sA}, 3")
e("s_cbranch_scc0 L_tagged0")
cm("aux wave 3 fetches this launch's hand-off tag (bounded spin) and posts it in LDS")
e(f"s_mov_b32 s{sSPIN}, {SPIN}")
lab("L_tag")
e(f"buffer_load_dwordx2 v[14:15], off, {sr(R_DBG,4)}, 0 sc1")
e(f"s_sub_u32 s{sSPIN}, s{sSPIN}, 1")
e(f"s_cmp_eq_u32 s{sSPIN}, 0")
e("s_cbranch_scc1 L_tag_done")
e("s_waitcnt vmcnt(0)")
e("v_cmp_eq_u32 vcc, 0, v14")
e("s_nop 0")
e("s_cmp_eq_u64 vcc, 0")
e("s_cbranch_scc0 L_tag")
lab("L_tag_done")
e("s_waitcnt vmcnt(0)")
e(f"v_mov_b32 v12, {MISC+C_TAG}")
e("ds_write_b64 v12, v[14:15]")
cm("report this workgroup's XCD id (tag | id)")
e(f"s_getreg_b32 s{sT2}, hwreg(HW_REG_XCC_ID, 0, 4)")
e(f"s_lshl_b32 s{sT1}, s2, 7")
e(f"s_add_u32 s{sT1}, s{sT1}, {FL_X}")
e(f"v_or_b32 v14, s{sT2}, v14")
e("s_mov_b64 exec, 1")
e(f"buffer_store_dwordx2 v[14:15], off, {sr(R_WS,4)}, s{sT1} sc1")
e("s_mov_b64 exec, -1")
import re
def ren(m):
    n = int(m.group(1)); return f"v{208+n}" if 3 <= n <= 15 else m.group(0)
def ren2(m):
    a, b = int(m.group(1)), int(m.group(2)); return f"v[{208+a}:{208+b}]" if 3 <= a <= 15 else m.group(0)
for k in range(KV0, len(L)):
    L[k] = re.sub(r"v\[(\d+):(\d+)\]", ren2, re.sub(r"\bv(\d+)\b", ren, L[k]))
e(f"s_mov_b32 s{sRET}, 0") if False else None
lab("L_tagged0")
e(f"s_mov_b32 s{sRET}, 0")
e("s_branch L_addr")
lab("L_tagged")
stamp(2)
tag_from_lds("L_tagx", 8)
cm("the weight region is reused only after the projection wave is done with it")
lds_wait("L_wkv", C_KV, 1, 8, sleep=opt['fs'])
cm("key tiles in rotated order (own XCD's tiles first); wave a covers tiles 8g + 2a, 8g + 2a + 1: flags 32g + 8a + (0..7)")
vCNT = 248
sKG, sKL, sKS, sKP = 97, 85, 88, 96
e(f"v_and_b32 v{ACC+2}, 7, v{vL}")
e(f"v_lshlrev_b32 v{ACC+2}, 7, v{ACC+2}")
e(f"s_lshl_b32 s{sKP}, s{sA}, 10")
e(f"s_add_u32 s{sKP}, s{sKP}, {FL_KV}")
e(f"s_lshl_b32 s{sT1}, s{sXCD}, 12")
e(f"s_add_u32 s{sT1}, s{sT1}, s{sKP}")
e(f"s_lshl_b32 s{sKL}, s{sA}, 12")
e(f"s_lshl_b32 s{sKG}, s{sXCD}, 14")
e("s_barrier                             ; B2")
stamp(16)
poll("L_pollK0", 1, ACC+2, 8, [sT1])
stamp(3)
def kvdma(G):
    e(f"s_add_u32 m0, s{sKL}, {16384*G}")
    e(f"s_add_u32 s{sKS}, s{sKG}, s{sKL}")
    for i in range(4): e(f"buffer_load_dwordx4 v2, {sr(R_WS,4)}, s{sKS} offen offset:{1024*i} sc1 lds")
    if G < 7:
        e(f"s_add_u32 s{sKG}, s{sKG}, 16384")
        e(f"s_and_b32 s{sKG}, s{sKG}, 0x1ffff")
kvdma(0)
e(f"s_cmp_eq_u32 s{sRET}, 1")
e("s_cbranch_scc0 L_addr_2")
lab("L_addr")
srd(R_SRE, P_SRE, 8388608)
srd(R_SIM, P_SIM, 8388608)
srd(R_XB, P_XB, 2097152)
srd(R_WO, P_WO, 524288)
srd(R_OUT, P_OUT, 4194304)
sT1S, sEB, sTT, sS2, sCB = 98, 99, 100, 101, 79
R_HRE, R_HIM = R_XA, R_W
e(f"s_and_b32 s{sT0}, s{sJ}, 3")
e(f"s_lshl_b32 s{sT1S}, s{sXCD}, 2")
e(f"s_add_u32 s{sT1S}, s{sT1S}, s{sT0}       ; t1s")
e(f"s_lshr_b32 s{sT0}, s{sJ}, 2")
e(f"s_lshl_b32 s{sT0}, s{sT0}, 1")
e(f"s_lshr_b32 s{sEB}, s{sA}, 1")
e(f"s_add_u32 s{sEB}, s{sEB}, s{sT0}         ; eb")
e(f"s_and_b32 s{sTT}, s{sA}, 1               ; tt")
e(f"s_and_b32 s{sT0}, s{sJ}, 3")
e(f"s_lshl_b32 s{sT0}, s{sT0}, 1")
e(f"s_lshl_b32 s{sS2}, s{sXCD}, 3")
e(f"s_add_u32 s{sS2}, s{sS2}, s{sT0}")
e(f"s_add_u32 s{sS2}, s{sS2}, s{sTT}         ; s2 = 8 xcd + 2 (j&3) + (a&1)")
e(f"s_mov_b32 s{sCB}, s{sEB}                 ; cb = 2 (j>>2) + (a>>1)")
srd(R_HRE, P_HRE, 524288)
srd(R_HIM, P_HIM, 524288)
e(f"v_and_b32 v3, 31, v{vL}                ; n")
e(f"v_lshrrev_b32 v4, 5, v{vL}             ; h")
e(f"s_lshl_b32 s{sT0}, s{sTT}, 5")
e(f"v_add_u32 v5, s{sT0}, v3")
e("v_lshlrev_b32 v5, 5, v5")
e(f"v_add_u32 v13, s{sT1S}, v5")
vG0, vG1, vRX, vRW = 240, 242, 244, 246
vDRE, vDIM = 251, 252
vB2A, vB2O, vHA, vWOD, vWOT, vOF, vOUT, vPH, vPK, vF = 4, 3, 15, 14, 0, 5, 6, 7, 12, 13
cm("B1 staging, loader side: wave a fills block a (0,1: x_B rows of s2, s2+1; 2,3: DFT rows of cb, cb+1),")
cm("16 rows x 64 B per load, row r -> rho = 8*bit2 + 4*bit3 + (r&3), 16-B chunk (l&3) ^ ((l>>4)&3)")
e(f"v_bfe_u32 v5, v{vL}, 2, 2")
e(f"v_bfe_u32 v6, v{vL}, 4, 1")
e("v_lshl_add_u32 v5, v6, 3, v5")
e("v_lshl_add_u32 v5, v4, 2, v5            ; rho")
e(f"v_lshrrev_b32 v6, 4, v{vL}")
e(f"v_xor_b32 v6, v6, v{vL}")
e("v_and_b32 v6, 3, v6")
e("v_lshlrev_b32 v6, 4, v6                 ; chunk * 16")
e(f"s_and_b32 s{sT0}, s{sS2}, -2")
e(f"s_add_u32 s{sT0}, s{sT0}, s{sA}")
e(f"s_lshl_b32 s{sT0}, s{sT0}, 10")
e(f"s_and_b32 s{sT1}, s{sCB}, -2")
e(f"s_add_u32 s{sT1}, s{sT1}, s{sTT}")
e(f"s_lshl_b32 s{sT1}, s{sT1}, 14")
e(f"s_add_u32 s{sT2}, s{sT0}, 0x100000")
e(f"s_cmp_lt_u32 s{sA}, 2")
e(f"s_cselect_b32 s{sT3}, 16, 10")
e(f"s_cselect_b32 s{sT0}, s{sT0}, s{sT1}")
e(f"s_cselect_b32 s{sT2}, s{sT2}, s{sT1}")
e(f"s_cselect_b64 {sr(sX,2)}, {sr(P_XB,2)}, {sr(P_HRE,2)}")
e(f"s_cselect_b64 {sr(sST,2)}, {sr(P_XB,2)}, {sr(P_HIM,2)}")
e(f"v_lshlrev_b32 v5, s{sT3}, v5")
e("v_add_u32 v5, v5, v6")
e(f"v_add_u32 v7, s{sT0}, v5")
e(f"v_mov_b32 v{vG0+1}, s{sX+1}")
e(f"v_add_co_u32 v{vG0}, vcc, s{sX}, v7")
e(f"v_add_u32 v7, s{sT2}, v5")
e(f"v_mov_b32 v{vG1+1}, s{sST+1}")
e(f"v_addc_co_u32 v{vG0+1}, vcc, 0, v{vG0+1}, vcc")
e(f"v_add_co_u32 v{vG1}, vcc, s{sST}, v7")
e(f"s_lshl_b32 s{sT1}, s{sT1}, 2")
e(f"s_add_u32 s{sT1}, s{sT1}, s{sA}")
e(f"v_addc_co_u32 v{vG1+1}, vcc, 0, v{vG1+1}, vcc")
e(f"s_cmp_eq_u32 s{sT1}, 2")
e("s_cbranch_scc0 L_nospec0")
cm("cb = 0: the im slot of e = 0 (lanes 0..3 of the second load) carries cos row 256")
e("s_mov_b64 exec, 15")
e("v_add_u32 v7, 0x40000, v6")
e(f"v_mov_b32 v{vG1+1}, s{P_HRE+1}")
e(f"v_add_co_u32 v{vG1}, vcc, s{P_HRE}, v7")
e("s_nop 1")
e(f"v_addc_co_u32 v{vG1+1}, vcc, 0, v{vG1+1}, vcc")
e("s_mov_b64 exec, -1")
lab("L_nospec0")
cm("reader side: row m, chunk (2s+h) ^ ((m>>2)&3)")
e("v_bfe_u32 v5, v3, 2, 2")
e("v_xor_b32 v5, v5, v4")
e("v_lshlrev_b32 v5, 4, v5")
e("v_lshl_add_u32 v5, v3, 6, v5")
e(f"s_lshl_b32 s{sT0}, s{sTT}, 11")
e(f"s_add_u32 s{sT0}, s{sT0}, {STG}")
e(f"v_add_u32 v{vRX}, s{sT0}, v5")
e(f"v_xor_b32 v{vRX+1}, 32, v{vRX}")
e(f"s_lshr_b32 s{sT0}, s{sA}, 1")
e(f"s_lshl_b32 s{sT0}, s{sT0}, 11")
e(f"s_add_u32 s{sT0}, s{sT0}, {STG + 4096}")
e(f"v_add_u32 v{vRW}, s{sT0}, v5")
e(f"v_xor_b32 v{vRW+1}, 32, v{vRW}")
vHW, vHW1, vHR, vHS = 250, 253, BUF, BUF + 1
cm("H regrouping: write row t1, chunk (2h+i) ^ ((t1>>2)&3); read lane-linear; store row l>>2, chunk (l&3) ^ ((l>>4)&3)")
e(f"s_lshl_b32 s{sT0}, s{sA}, 11")
e(f"s_add_u32 s{sT0}, s{sT0}, {STG}")
e("v_bfe_u32 v5, v3, 2, 2")
e("v_lshlrev_b32 v7, 1, v4")
e("v_xor_b32 v5, v5, v7")
e("v_lshlrev_b32 v5, 4, v5")
e("v_lshl_add_u32 v5, v3, 6, v5")
e(f"v_add_u32 v{vHW}, s{sT0}, v5")
e(f"v_xor_b32 v{vHW1}, 16, v{vHW}")
e(f"v_add_u32 v{BUF}, s{sT0}, v2")
e(f"v_lshrrev_b32 v5, 2, v{vL}")
e(f"v_mul_u32_u24 v5, {64*HROW}, v5")
e(f"v_add_u32 v{BUF+1}, v5, v6")
cm("e = 256 store address: t1*64*HROW")
e(f"v_mul_u32_u24 v8, {64*HROW}, v3")
e(f"v_lshl_add_u32 v{vHA}, v4, 5, v8")
cm("wo: DMA source offset and transposing read: row 8h+r, 16-B chunk 4cbk + 2(cc&1) + g, byte 8(cc>>1)")
e(f"v_lshrrev_b32 v8, 3, v{vL}")
e(f"v_and_b32 v9, 7, v{vL}")
e(f"v_bfe_u32 v10, v{vL}, 4, 1")
e("v_lshlrev_b32 v10, 2, v10")
e("v_xor_b32 v9, v9, v10")
e("v_lshlrev_b32 v9, 4, v9")
e(f"v_lshl_add_u32 v{vWOD}, v8, 10, v9")
e(f"v_bfe_u32 v9, v{vL}, 2, 2")
e("v_lshl_add_u32 v9, v4, 3, v9")
e("v_lshlrev_b32 v9, 7, v9")
e(f"v_and_b32 v10, 1, v{vL}")
e(f"v_bfe_u32 v11, v{vL}, 4, 1")
e("v_lshl_add_u32 v10, v10, 1, v11")
e(f"s_lshr_b32 s{sT0}, s{sA}, 1")
e(f"s_lshl_b32 s{sT0}, s{sT0}, 2")
e(f"v_add_u32 v10, s{sT0}, v10")
e(f"v_bfe_u32 v11, v{vL}, 3, 1")
e("v_lshlrev_b32 v11, 2, v11")
e("v_xor_b32 v10, v10, v11")
e("v_lshl_add_u32 v9, v10, 4, v9")
e(f"v_bfe_u32 v11, v{vL}, 1, 1")
e("v_lshl_add_u32 v9, v11, 3, v9")
e(f"v_add_u32 v{vWOT}, {STG}, v9")
cm("output projection: out offset, O fragment address")
e(f"s_lshl_b32 s{sT3}, s{sTB}, 1")
e(f"s_and_b32 s{sT4}, s{sA}, 1")
e(f"s_add_u32 s{sT3}, s{sT3}, s{sT4}")
e(f"s_lshl_b32 s{sT3}, s{sT3}, 5")
e(f"v_add_u32 v8, s{sT3}, v3")
e("v_lshlrev_b32 v8, 11, v8")
e(f"v_lshl_add_u32 v{vOUT}, v4, 5, v8")
e(f"s_lshl_b32 s{sT3}, s{sT4}, 15")
e(f"v_add_u32 v{vOF}, s{sT3}, v2")
e(f"v_lshlrev_b32 v{vPH}, 7, v{vL}")

cm("B2 A rows: e(m) = 32eb + col(m) (eb<8) or 512 - that; col(m) = 16*b2 + 4*(m>>3) + (m&3)")
e("v_and_b32 v8, 3, v3")
e("v_bfe_u32 v9, v3, 2, 1")
e("v_lshl_add_u32 v8, v9, 4, v8")
e("v_lshrrev_b32 v9, 3, v3")
e("v_lshl_add_u32 v8, v9, 2, v8")
e(f"s_lshl_b32 s{sT0}, s{sEB}, 5")
e(f"v_add_u32 v8, s{sT0}, v8")
e("v_sub_u32 v9, 0x200, v8")
e("v_sub_u32 v10, 0x800, v13")
e("v_and_b32 v10, 0x7ff, v10               ; (2048 - ts) & 2047")
e(f"s_cmp_lt_u32 s{sEB}, 8")
e("s_cselect_b64 vcc, 0, -1")
e("v_cndmask_b32 v8, v8, v9, vcc")
e("v_cndmask_b32 v11, v13, v10, vcc")
e("v_lshlrev_b32 v10, 12, v10")
e(f"v_lshl_add_u32 v{vDIM}, v4, 6, v10")
e("v_lshlrev_b32 v10, 12, v13")
e(f"v_lshl_add_u32 v{vDRE}, v4, 6, v10")
e("v_lshlrev_b32 v10, 18, v3")
e(f"v_lshl_add_u32 v{vF}, v4, 4, v10")
e(f"v_lshrrev_b32 v10, 3, v{vL}")
e("v_lshlrev_b32 v10, 5, v10")
e(f"v_and_b32 v9, 7, v{vL}")
e("v_add_u32 v10, v10, v9")
e(f"v_lshlrev_b32 v{vPK}, 7, v10             ; K/V flags 32g + (0..7)")
e("v_lshlrev_b32 v11, 11, v11")
e(f"v_lshl_add_u32 v{vB2O}, v4, 5, v11")
e(f"v_mul_u32_u24 v9, {32*HROW}, v4")
e(f"v_lshl_add_u32 v{vB2A}, v8, 2, v9")
e(f"s_cmp_eq_u32 s{sRET}, 0")
e(f"s_mov_b32 s{sRET}, 2")
e("s_cbranch_scc1 L_tagged")
lab("L_addr_2")
e(f"v_mov_b32 v{vCNT}, {MISC+C_G1}")
e(f"v_mov_b32 v{vCNT+1}, 1")
e("s_waitcnt vmcnt(0)")
stamp(18)
e("s_barrier")
poll("L_pollKV", 1, vPK, 8, [sKP], sleep=1)
stamp(4)
e("s_setprio 0")
LOW[0] = True
for G in range(1, 3): kvdma(G)
e("s_waitcnt vmcnt(4)")
e("s_mov_b64 exec, 1")
e(f"ds_add_u32 v{vCNT}, v{vCNT+1}")
e("s_mov_b64 exec, -1")
for G in range(3, 8): kvdma(G)
XF, WF = D1, D1 + 8
cm("pull this workgroup's 1/32 share of what its XCD reads for the spectral part and of wo towards L2")
e(f"s_lshl_b32 s{sT0}, s{sJ}, 13")
e(f"s_cmp_eq_u32 s{sA}, 1")
e("s_cbranch_scc1 L_pf1")
e(f"s_cmp_eq_u32 s{sA}, 2")
e("s_cbranch_scc1 L_pf2")
e(f"s_cmp_eq_u32 s{sA}, 3")
e("s_cbranch_scc1 L_pf3")
e(f"s_lshl_b32 s{sT0}, s{sJ}, 16")
e(f"s_lshl_b32 s{sT1}, s{sXCD}, 13")
e(f"s_add_u32 s{sT0}, s{sT0}, s{sT1}")
e(f"buffer_load_dword v{D2+8}, v{vPH}, {sr(R_XB,4)}, s{sT0} offen")
e("s_branch L_pf4")
lab("L_pf1")
e(f"buffer_load_dword v{D2+8}, v{vPH}, {sr(R_HRE,4)}, s{sT0} offen")
e("s_branch L_pf4")
lab("L_pf2")
e(f"buffer_load_dword v{D2+8}, v{vPH}, {sr(R_HIM,4)}, s{sT0} offen")
e("s_branch L_pf4")
lab("L_pf3")
e(f"s_lshl_b32 s{sT0}, s{sJ}, 14")
e(f"buffer_load_dword v{D2+8}, v{vPH}, {sr(R_WO,4)}, s{sT0} offen")
lab("L_pf4")
sSL, sWOS, sWOB = 30, 31, 96
e(f"s_lshl_b32 s{sSL}, s{sA}, 11")
e(f"s_add_u32 s{sSL}, s{sSL}, {STG}")
e(f"s_lshl_b32 s{sWOS}, s{sHG}, 7")
e(f"s_lshl_b32 s{sT1}, s{sA}, 14")
e(f"s_add_u32 s{sWOB}, s{sWOS}, s{sT1}")
e(f"s_lshr_b32 s{sT1}, s{sA}, 1")
e(f"s_lshl_b32 s{sT1}, s{sT1}, 6")
e(f"s_add_u32 s{sWOS}, s{sWOS}, s{sT1}")
VM = []
def st_dma(n):
    if n >= 24: return
    for i in range(2):
        if n < 16:
            e(f"s_add_u32 m0, s{sSL}, {8192*(n%3) + 1024*i - 64*n}")
            e("s_nop 0")
            e(f"global_load_lds_dwordx4 {vr(vG0 + 2*i, 2)}, off offset:{64*n}")
        else:
            e(f"s_add_u32 m0, s{sSL}, {8192*(n%3) + 1024*i}")
            e(f"s_add_u32 s{sT1}, s{sWOB}, {65536*(n-16) + 8192*i}")
            e(f"buffer_load_dwordx4 v{vWOD}, {sr(R_WO,4)}, s{sT1} offen lds")
        VM.append(('st', n))
def st_sync(n, between=None):
    last = max(k for k, t in enumerate(VM) if t == ('st', n))
    e(f"s_waitcnt vmcnt({len(VM) - 1 - last}) lgkmcnt(0)")
    e("s_mov_b64 exec, 1")
    e(f"ds_add_u32 v{vCNT}, v{vCNT+1} offset:{C_ST - C_G1}")
    e("s_mov_b64 exec, -1")
    if between: between()
    e(f"s_mov_b32 s{sSPIN}, {SPIN*8}")
    lab(f"L_st{n}")
    e(f"ds_read_b32 v8, v{vCNT} offset:{C_ST - C_G1}")
    e(f"s_sub_u32 s{sSPIN}, s{sSPIN}, 1")
    e(f"s_cbranch_scc1 L_st{n}_done")
    e("s_waitcnt lgkmcnt(0)")
    if (opt['sp'] if n < 16 else opt['spw']): e("s_setprio 2")
    e(f"v_readfirstlane_b32 s{sT4}, v8")
    e("s_setprio 0")
    e(f"s_cmp_ge_u32 s{sT4}, {4*(n+1)}")
    if opt['ss']:
        e(f"s_cbranch_scc1 L_st{n}_done")
        e(f"s_sleep {opt['ss']}")
        e(f"s_branch L_st{n}")
    else: e(f"s_cbranch_scc0 L_st{n}")
    lab(f"L_st{n}_done")
st_dma(0); st_dma(1)
stamp(17)
e("s_waitcnt vmcnt(5)                    ; younger: one pull, two stages")
e("s_mov_b64 exec, 1")
e(f"ds_add_u32 v{vCNT}, v{vCNT+1} offset:4")
e("s_mov_b64 exec, -1")
e(f"s_cmp_eq_u32 s{sA}, 3")
e("s_cbranch_scc0 L_pf5")
e(f"s_add_u32 s{sT0}, s{sT0}, 8192")
e(f"buffer_load_dword v{D2+9}, v{vPH}, {sr(R_WO,4)}, s{sT0} offen     ; not counted below: only makes waits stricter")
lab("L_pf5")
stamp(21)
RAW = BP
def b1mfma(n):
    for s_ in range(2 if not opt['nomf'] else 0):
        e(f"v_mfma_f32_32x32x16_bf16 {vr(ACC,16)}, {vr(XF+4*s_,4)}, {vr(WF+4*s_,4)}, {'0' if n==0 and s_==0 else vr(ACC,16)}")
for n in range(16):
    st_sync(n, (lambda: b1mfma(n - 1)) if n else None)
    if n + 2 < 16: st_dma(n + 2)
    for s_ in range(2):
        e(f"ds_read_b128 {vr(XF+4*s_,4)}, v{vRX+s_} offset:{8192*(n%3)}")
        e(f"ds_read_b128 {vr(WF+4*s_,4)}, v{vRW+s_} offset:{8192*(n%3)}")
    if n == opt['fst']:
        for kb in range(2): e(f"buffer_load_dwordx4 {vr(FR+4*kb,4)}, v{vF}, {sr(R_SRE,4)}, 0 offen offset:{32*kb}")
        for kb in range(2): e(f"buffer_load_dwordx4 {vr(FR+8+4*kb,4)}, v{vF}, {sr(R_SIM,4)}, 0 offen offset:{32*kb}")
        VM += [('F', 0)]*4
e("s_waitcnt lgkmcnt(0)")
b1mfma(15)
stamp(22)
e(f"s_mul_i32 s{sT0}, s{sS2}, {HROW}")
e(f"s_lshl_b32 s{sT1}, s{sCB}, 6")
e(f"s_add_u32 s{sT0}, s{sT0}, s{sT1}")
e(f"s_add_u32 s{sT0}, s{sT0}, {WS_H}")
nop(7)
vZ = D2 + 8 if False else BP
def boost(on):
    e(f"s_setprio {2 if on else 0}"); LOW[0] = not on
boost(opt['eb'] & 1)
for i in range(8): e(f"v_cvt_pk_bf16_f32 v{vZ+i}, v{ACC+2*i}, v{ACC+2*i+1}")
boost(0)
nop(1)
e(f"v_mfma_f32_32x32x16_bf16 {vr(D1,16)}, {vr(vZ,4)}, {vr(FR,4)}, 0")
e(f"v_mfma_f32_32x32x16_bf16 {vr(D2,16)}, {vr(vZ,4)}, {vr(FR+8,4)}, 0")
e(f"v_mfma_f32_32x32x16_bf16 {vr(D1,16)}, {vr(vZ+4,4)}, {vr(FR+4,4)}, {vr(D1,16)}")
e(f"v_mfma_f32_32x32x16_bf16 {vr(D2,16)}, {vr(vZ+4,4)}, {vr(FR+12,4)}, {vr(D2,16)}")
nop(11)
boost(1)
for r in range(8):
    e(f"v_sub_f32 v{ACC+r}, v{D1+r}, v{D2+8+r}")
    e(f"v_add_f32 v{ACC+8+r}, v{D2+r}, v{D1+8+r}")
e(f"s_cmp_eq_u32 s{sCB}, 0")
e("s_cbranch_scc0 L_nospecial")
cm("columns e = 0 and e = 256 (both purely real rows): lanes 0..31, register 0")
e("s_mov_b32 exec_hi, 0")
e(f"v_mov_b32 v{ACC}, v{D1}")
e(f"v_mov_b32 v{ACC+8}, v{D2}")
e(f"v_cvt_pk_bf16_f32 v8, v{D1+8}, v{D2+8}")
e(f"buffer_store_dword v8, v{vHA}, {sr(R_WS,4)}, s{sT0} offen offset:1024 sc1")
e("s_mov_b64 exec, -1")
lab("L_nospecial")
for r in range(8): e(f"v_cvt_pk_bf16_f32 v{D1+r}, v{ACC+r}, v{ACC+8+r}")
boost(0)
cm("lane (t1, h) holds 32 B of row t1: regroup through LDS so that 4 adjacent lanes store one 64-B run")
e(f"ds_write_b128 v{vHW}, {vr(D1,4)} offset:8192")
e(f"ds_write_b128 v{vHW1}, {vr(D1+4,4)} offset:8192")
e("s_waitcnt lgkmcnt(0)")
e(f"ds_read_b128 {vr(D1+8,4)}, v{vHR} offset:8192")
e(f"ds_read_b128 {vr(D1+12,4)}, v{vHR} offset:9216")
e(f"s_add_u32 s{sT1}, s{sT0}, {16*64*HROW}")
e("s_waitcnt lgkmcnt(0)")
e(f"buffer_store_dwordx4 {vr(D1+8,4)}, v{vHS}, {sr(R_WS,4)}, s{sT0} offen sc1")
e(f"buffer_store_dwordx4 {vr(D1+12,4)}, v{vHS}, {sr(R_WS,4)}, s{sT1} offen sc1")
st_dma(16); st_dma(17)
def rawloads():
    global VM
    cm("rows of the sequence DFT matrices for B2")
    for i in range(4): e(f"buffer_load_dwordx4 {vr(RAW+4*i,4)}, v{vDRE}, {sr(R_SRE,4)}, 0 offen offset:{16*i}")
    for i in range(4): e(f"buffer_load_dwordx4 {vr(RAW+16+4*i,4)}, v{vDIM}, {sr(R_SIM,4)}, 0 offen offset:{16*i}")
    VM += [('raw', 0)]*8
if not opt['rawlate']: rawloads()
e(f"s_lshl_b32 s{sT1}, s2, 7")
e(f"s_add_u32 s{sT1}, s{sT1}, {FL_H}")
stamp(19)
e(f"s_waitcnt vmcnt({4 if opt['rawlate'] else 12})")
stamp(20)
boost(1)
signal("L_sigH", C_H, 3, sT1, 8)
stamp(5)
def bploc(o): return FR + o if o < 16 else (RAW + o - 16 if o < 24 else RAW + 16 + o - 24)
def perms():
    e(f"s_mov_b32 s{sT2}, 0x05040100")
    e(f"s_mov_b32 s{sT3}, 0x07060302")
    for i in range(16):
        e(f"v_perm_b32 v{bploc(2*i)}, v{RAW+16+i}, v{RAW+i}, s{sT2}")
        e(f"v_perm_b32 v{bploc(2*i+1)}, v{RAW+16+i}, v{RAW+i}, s{sT3}")
if not opt['b2tail']: perms()
boost(0)
if opt['rawlate']: rawloads()
def wo_stage(n):
    st_sync(n)
    st_dma(n + 2)
    for k in range(4):
        ks = 4*(n - 16) + k
        e(f"ds_read_b64_tr_b16 {vr(BUF+4*ks,2)}, v{vWOT} offset:{8192*(n%3) + 2048*k}")
        e(f"ds_read_b64_tr_b16 {vr(BUF+4*ks+2,2)}, v{vWOT} offset:{8192*(n%3) + 2048*k + 512}")
for n in range(16, 16 + opt['wsplit']): wo_stage(n)
stamp(6)
boost(1)
if opt['pre']:
    cm("aux wave 2 touches the O lines this workgroup will write and the 8 flags of its token block")
    e(f"s_cmp_eq_u32 s{sA}, 2")
    e("s_cbranch_scc0 L_nopre")
    e(f"v_lshrrev_b32 v8, 5, v{vL}")
    e(f"v_and_b32 v9, 31, v{vL}")
    e("v_lshlrev_b32 v9, 7, v9")
    e("v_lshl_add_u32 v8, v8, 15, v9")
    e(f"s_lshl_b32 s{sT0}, s{sTB}, 16")
    e(f"s_lshl_b32 s{sT1}, s{sHG}, 12")
    e(f"s_add_u32 s{sT0}, s{sT0}, s{sT1}")
    e(f"s_add_u32 s{sT0}, s{sT0}, {WS_O}")
    e(f"buffer_load_dword v10, v8, {sr(R_WS,4)}, s{sT0} offen sc1")
    e(f"v_and_b32 v9, 0x380, v{vPH}")
    e(f"s_lshl_b32 s{sT0}, s{sTB}, 10")
    e(f"s_add_u32 s{sT0}, s{sT0}, {FL_O}")
    e(f"buffer_load_dword v11, v9, {sr(R_WS,4)}, s{sT0} offen sc1")
    e("s_waitcnt vmcnt(0)")
    lab("L_nopre")
cm("aux wave 1: XCD ids of the 8 workgroups of this token block: ids 32*hg + (id & 31)")
e(f"s_cmp_eq_u32 s{sA}, 1")
e("s_cbranch_scc0 L_nosame")
e(f"v_and_b32 v8, 7, v{vL}")
e("v_lshlrev_b32 v8, 12, v8")
e(f"s_and_b32 s{sT0}, s2, 31")
e(f"s_lshl_b32 s{sT0}, s{sT0}, 7")
e(f"s_add_u32 s{sT0}, s{sT0}, {FL_X}")
e(f"buffer_load_dwordx2 v[10:11], v8, {sr(R_WS,4)}, s{sT0} offen sc1")
e(f"s_getreg_b32 s{sX}, hwreg(HW_REG_XCC_ID, 0, 4)")
e(f"s_or_b32 s{sX}, s{sX}, s{sNON}")
e(f"s_mov_b32 s{sX+1}, s{sNON+1}")
e(f"v_mov_b32 v9, {MISC+C_SAME}")
e("s_waitcnt vmcnt(0)")
e(f"v_cmp_ne_u64 vcc, {sr(sX,2)}, v[10:11]")
e("s_nop 0")
e("s_cmp_eq_u64 vcc, 0")
e(f"s_cselect_b32 s{sT0}, {1 if opt['fast'] else 0}, 0")
e(f"v_mov_b32 v11, s{sT0}")
e("ds_write_b32 v9, v11")
lab("L_nosame")
cm("B2: wait for the H rows it reads: column groups ebg (direct) or 7-ebg and (8-ebg)&3 (mirrored)")
e(f"s_cmp_eq_u32 s{sA}, 0")
e("s_cbranch_scc0 L_hwait")
e(f"s_lshr_b32 s{sT2}, s{sJ}, 2              ; ebg")
e(f"s_sub_u32 s{sT0}, 7, s{sT2}")
e(f"s_sub_u32 s{sT1}, 8, s{sT2}")
e(f"s_and_b32 s{sT1}, s{sT1}, 3")
e(f"s_cmp_lt_u32 s{sT2}, 4")
e(f"s_cselect_b32 s{sT0}, s{sT2}, s{sT0}")
e(f"s_cselect_b32 s{sT1}, s{sT2}, s{sT1}")
e(f"s_lshl_b32 s{sT0}, s{sT0}, 13")
e(f"s_lshl_b32 s{sT1}, s{sT1}, 13")
e(f"s_add_u32 s{sT0}, s{sT0}, {FL_H}")
e(f"s_add_u32 s{sT1}, s{sT1}, {FL_H}")
poll("L_pollH", 2, vPH, 8, [sT0, sT1], sleep=8)
e(f"v_mov_b32 v10, {MISC+C_HOK}")
e("v_mov_b32 v11, 1")
e("ds_write_b32 v10, v11")
e("s_branch L_hok")
lab("L_hwait")
lds_wait("L_hw", C_HOK, 1, 10, sleep=8)
lab("L_hok")
boost(0)
stamp(7)
e(f"s_mul_i32 s{sT0}, s{sT1S}, {64*HROW}")
e(f"s_add_u32 s{sT0}, s{sT0}, {WS_H}")
AF = 208
for kb in range(8):
    for w in range(4): e(f"buffer_load_dword v{AF+4*kb+w}, v{vB2A}, {sr(R_WS,4)}, s{sT0} offen offset:{w*HROW} sc1")
    if kb < 7: e(f"s_add_u32 s{sT0}, s{sT0}, {4*HROW}")
VM += [('A', 0)]*32
sB2 = 88
def b2compute(low):
    e(f"s_lshl_b32 s{sB2}, s{sEB}, 6")
    e(f"s_add_u32 s{sB2}, s{sB2}, 1024")
    for kb in range(8):
        if low: e(f"s_waitcnt vmcnt({28-4*kb})")
        e(f"v_mfma_f32_32x32x16_bf16 {vr(ACC,16)}, {vr(AF+4*kb,4)}, {vr(bploc(4*kb),4)}, {'0' if kb==0 else vr(ACC,16)}")
    nop(11 if low else 12)
    if low: boost(1)
    for i in range(8): e(f"v_cvt_pk_bf16_f32 v{AF+8+i}, v{ACC+2*i}, v{ACC+2*i+1}")
    if low: b2store()
def b2store():
    e(f"buffer_store_dwordx4 {vr(AF+8,4)}, v{vB2O}, {sr(R_OUT,4)}, s{sB2} offen{OSC}")
    e(f"buffer_store_dwordx4 {vr(AF+12,4)}, v{vB2O}, {sr(R_OUT,4)}, s{sB2} offen offset:16{OSC}")
if not opt['b2tail']: b2compute(True)
lab("L_b2done")
boost(0)
stamp(8)
for n in range(16 + opt['wsplit'], 24): wo_stage(n)
e("s_waitcnt vmcnt(0) lgkmcnt(0)")
stamp(10)
warm("L_padt", "L_pado_ret")
cm("tail: the attention waves bring the O tile -> LDS 0..")
e("s_barrier                             ; B7")
LOW[0] = False
stamp(9)
if opt['b2tail'] and not opt['nob']:
    cm("second spectral stage: operands are in registers, the matrix pipe is free until the O tile lands")
    perms()
    b2compute(False)
e(f"s_mov_b32 s{sT0}, s{sWOS}")
stamp(11)
e("s_barrier                             ; B8a")
pad_begin("L_pado")
OF = 144
korder = [h for h in range(32) if h % 8 < 4] + [h for h in range(32) if h % 8 >= 4]
def ofrag(n): e(f"ds_read_b128 {vr(OF+4*(n%8),4)}, v{vOF} offset:{1024*korder[n]}")
for n in range(7): ofrag(n)
for n in range(32):
    if n + 7 == 16:
        e("s_barrier                             ; B8b")
        if opt['b2tail'] and not opt['nob']: b2store()
    if n + 7 < 32:
        ofrag(n + 7)
        e("s_waitcnt lgkmcnt(7)")
    else:
        e(f"s_waitcnt lgkmcnt({31-n})")
    e(f"v_mfma_f32_32x32x16_bf16 {vr(ACC,16)}, {vr(BUF+4*korder[n],4)}, {vr(OF+4*(n%8),4)}, {'0' if n==0 else vr(ACC,16)}")
nop(12)
for i in range(8): e(f"v_cvt_pk_bf16_f32 v{D1+i}, v{ACC+2*i}, v{ACC+2*i+1}")
e(f"buffer_store_dwordx4 {vr(D1,4)}, v{vOUT}, {sr(R_OUT,4)}, s{sT0} offen{OSC}")
e(f"buffer_store_dwordx4 {vr(D1+4,4)}, v{vOUT}, {sr(R_OUT,4)}, s{sT0} offen offset:16{OSC}")
pad_end("L_pado", "L_pado_ret")
if opt['dbgt']:
    e(f"s_cmp_lt_u32 s2, 6")
    e("s_cbranch_scc0 L_end")
    e(f"s_cmp_eq_u32 s{sW}, 4")
    e("s_cbranch_scc0 L_end")
    e("s_waitcnt vmcnt(0)")
    e(f"s_memrealtime {sr(sST,2)}")
    e("s_waitcnt lgkmcnt(0)")
    e(f"v_mov_b32 v4, s{sST}")
    e(f"s_lshl_b32 s{sT0}, s2, 2")
    e(f"s_add_u32 s{sT0}, s{sT0}, 40")
    e("s_mov_b64 exec, 1")
    e(f"buffer_store_dword v4, off, {sr(R_DBG,4)}, s{sT0}")
if opt['endat']:
    lab("L_endat")
    e(f"s_memrealtime {sr(sX,2)}")
    e("s_waitcnt lgkmcnt(0)")
    e(f"s_sub_u32 s{sX}, s{sX}, s30")
    e(f"s_cmp_lt_u32 s{sX}, {opt['endat']}")
    e("s_cbranch_scc1 L_endat")
stamp(12)
if opt['stamps']: e("s_waitcnt vmcnt(0)")
stamp(13)
stamp_dump()
lab("L_end")
e("s_endpgm")
lab("L_codeend")
L.append(f""".section .rodata,"a"
.p2align 6
.amdhsa_kernel {NAME}_kernel
  .amdhsa_next_free_vgpr 256
  .amdhsa_next_free_sgpr 102
  .amdhsa_accum_offset 256
  .amdhsa_group_segment_fixed_size 0
  .amdhsa_kernarg_size 104
  .amdhsa_user_sgpr_count 2
  .amdhsa_user_sgpr_kernarg_segment_ptr 1
  .amdhsa_system_sgpr_workgroup_id_x 1
.end_amdhsa_kernel""")

def finish(lines, ncode):
    out = []
    for l in lines:
        if l.strip() == "CODEPF":
            for i in range(ncode // 8192):
                out.append(f"    global_load_dword v200, v[212:213], off")
                out.append(f"    v_add_co_u32 v212, vcc, 0x2000, v212")
                out.append(f"    s_nop 1")
                out.append(f"    v_addc_co_u32 v213, vcc, 0, v213, vcc")
            rem = (ncode % 8192) // 128
            if rem:
                out.append(f"    v_cmp_gt_u32 vcc, {rem}, v{vL}")
                out.append(f"    s_nop 0")
                out.append(f"    s_and_saveexec_b64 {sr(sX,2)}, vcc")
                out.append(f"    global_load_dword v200, v[212:213], off")
                out.append(f"    s_mov_b64 exec, -1")
        else: out.append(l)
    return "\n".join(out) + "\n"
import subprocess, os, hazcheck
ncode = 16384
for _ in range(3):
    txt = finish(L, ncode)
    open("_g.s", "w").write(txt)
    r = subprocess.run(["clang", "-x", "assembler", "-target", "amdgcn-amd-amdhsa", "-mcpu=gfx950", "-c", "_g.s", "-o", "_g.o"], capture_output=True, text=True)
    if r.returncode: print(r.stderr[:3000]); sys.exit(1)
    sz = subprocess.run(["llvm-objdump", "-h", "_g.o"], capture_output=True, text=True).stdout
    n = [int(x.split()[2], 16) for x in sz.splitlines() if " .text " in x][0]
    if n // 128 * 128 == ncode: break
    ncode = n // 128 * 128
open(sys.argv[1], "w").write(txt)
print(hazcheck.check(txt), "hazards; code bytes", n)
```

```python
import sys, struct
NAME = "concat_heads__grouped_kv_mqa__spectral_fnet__prompt"
opt = dict(stamps=0, prioA=1, prioX=2, boost=1, force_fb=0, dbgt=0, dry=0, codepf=0, shift=98, outsc1=0, cluster=1, fast=1, nob=0, l2pf=0, wo1=4, hold=1, pre=1, pads=0, dxcc=-1, dus=300, endat=0, omode=1, b2tail=1, kvd=3, h1=1, h2=4, fs=3, ntc=9, nowo=0, nodsw=0, nomf=0, sp=1, ss=1, wsplit=8, attpf=0, rawlate=1, dftpf=1, fst=6, spw=0, eb=1, qloop=0, padt=0, opd=4, b2at=8, abl=0)
for a in sys.argv[2:]:
    k, v = a.split('='); opt[k] = int(v)

L = []
def e(s=""): L.append("    " + s)
def lab(s): L.append(s + ":")
def cm(s): L.append("    ; " + s)
def vr(a, n): return f"v[{a}:{a+n-1}]" if n > 1 else f"v{a}"
def sr(a, n): return f"s[{a}:{a+n-1}]" if n > 1 else f"s{a}"
def nop(n):
    while n > 0:
        k = min(n, 16); e(f"s_nop {k-1}"); n -= k
def f2u(x): return struct.unpack('<I', struct.pack('<f', x))[0]
OSC = " sc1" if opt['outsc1'] else ""

W_OFF = 0
X_OFF, XROW = 16384, 1040
WQ_OFF = 82944
ONES_OFF = 155648
MISC = ONES_OFF + 1024
STG = 131072
LDS_BYTES = 163840
C_KV, C_H, C_O, C_TAG, C_HOK, C_SAME, C_CR, C_QA, C_QB, C_G1, C_KVL, C_ST = 0, 4, 8, 16, 24, 28, 32, 36, 40, 44, 48, 52
WS_KV, WS_O, WS_H, WS_FL = 0, 0x40000, 0x240000, 0x480000
FL_KV, FL_H, FL_X, FL_O = WS_FL, WS_FL + 0x8000, WS_FL + 0x10000, WS_FL + 0x20000
WS_STAMP = 0x4C0000
WS_SIZE = 0x560000
HROW = 1152
SPIN = 400000
VSCALE = 64
P_XA, P_WQ, P_WK, P_WV, P_WO, P_XB, P_SRE, P_SIM = 4, 6, 8, 10, 12, 14, 16, 18
P_HRE, P_HIM, P_OUT, P_DBG, P_WS = 20, 22, 24, 26, 28
R_XA, R_WQ, R_W, R_WS, R_WO, R_XB, R_SRE, R_SIM, R_OUT, R_DBG = 32, 36, 40, 44, 48, 52, 56, 60, 64, 68
sW, sXCD, sJ, sTB, sHG, sTHP, sA = 72, 73, 74, 75, 76, 77, 78
sT0, sT1, sT2, sT3, sT4 = 80, 81, 82, 83, 84
sDRY = 85
sNON = 86
sIT, sINC, sFB, sSPIN = 88, 89, 90, 91
sX = 92
sST = 94
sBARN = 96
sRET = 90

def srd(r, p, size):
    e(f"s_mov_b32 s{r}, s{p}")
    e(f"s_and_b32 s{r+1}, s{p+1}, 0xffff")
    e(f"s_mov_b32 s{r+2}, {hex(size)}")
    e(f"s_mov_b32 s{r+3}, 0x20000")

LOW = [False]
vL = 1
def stamp(idx):
    if not opt['stamps']: return
    e(f"s_memrealtime {sr(sST,2)}")
    e(f"s_memtime {sr(sX,2)}")
    e("s_waitcnt lgkmcnt(0)")
    if LOW[0]: e("s_setprio 2")
    e(f"v_writelane_b32 v254, s{sST}, {idx}")
    e(f"v_writelane_b32 v255, s{sX}, {idx}")
    if LOW[0]: e("s_setprio 0")
def stamp_dump():
    if not opt['stamps']: return
    e(f"s_lshl_b32 s{sST}, s2, 3")
    e(f"s_add_u32 s{sST}, s{sST}, s{sW}")
    e(f"s_lshl_b32 s{sST}, s{sST}, 8")
    e(f"s_add_u32 s{sST}, s{sST}, {WS_STAMP}")
    e(f"v_lshlrev_b32 v253, 3, v{vL}")
    e("s_mov_b32 exec_hi, 0")
    e(f"buffer_store_dwordx2 v[254:255], v253, {sr(R_WS,4)}, s{sST} offen")

PADS = {}
def pad_begin(name): PADS[name] = len(L)
def isize(l):
    t = l.strip()
    if not t or t.startswith((';', '.')) or t.endswith(':'): return 0
    t = t.split(';')[0]
    mn = t.split()[0]
    if mn.startswith(('buffer_', 'global_', 'ds_', 'v_mfma', 'v_smfmac', 's_load', 's_mem')): return 8
    if mn.startswith('v_') and (mn.endswith('_e64') or mn in ('v_lshl_add_u32', 'v_bfe_u32', 'v_perm_b32', 'v_max3_f32', 'v_cvt_pk_bf16_f32', 'v_writelane_b32', 'v_mul_u32_u24', 'v_cmp_ne_u64')): return 8
    import re as _r
    for o in _r.findall(r'(?<![\w\[:])(-?0x[0-9a-f]+|-?\d+)(?![\w\]:])', (t.split(None, 1) + [''])[1]):
        v = int(o, 0)
        if not mn.startswith(('s_waitcnt', 's_nop', 's_sleep', 's_setprio')) and not -16 <= v <= 64: return 8
    return 4
def pad_end(name, ret):
    a = PADS[name]
    if not (opt['pads'] if name == "L_padq" else opt['padt']):
        L.insert(a, f"{name}_0:"); L.insert(a + 1, f"    s_cbranch_execz {ret}"); return
    body = L[a:]; del L[a:]
    n = 0; acc = 0
    L.append(f"{name}_0:"); L.append(f"    s_cbranch_execz {name}_1")
    for l in body:
        z = isize(l)
        prev = L[-1].strip()
        if acc + z > 56 and not prev.startswith(('s_mov_b32 m0', 's_add_u32 m0')):
            n += 1; L.append(f"{name}_{n}:"); L.append(f"    s_cbranch_execz {name}_{n+1}"); acc = 0
        L.append(l); acc += z
    n += 1
    L.append(f"{name}_{n}:"); L.append(f"    s_cbranch_execz {ret}")
def warm(name, ret):
    e("s_mov_b64 exec, 0")
    e(f"s_branch {name}_0")
    lab(ret)
    e("s_mov_b64 exec, -1")

def dma(voff, srdr, soff, ldsaddr_s, extra=""):
    e(f"s_mov_b32 m0, s{ldsaddr_s}")
    e("s_nop 0")
    e(f"buffer_load_dwordx4 v{voff}, {sr(srdr,4)}, s{soff} offen {extra}lds")
def dma_run(n, voff, srdr, soff, lds_s, dsrc, dlds, extra=""):
    for i in range(n):
        e(f"s_mov_b32 m0, s{lds_s}")
        if i < n - 1: e(f"s_add_u32 s{lds_s}, s{lds_s}, {dlds}")
        else: e("s_nop 0")
        e(f"buffer_load_dwordx4 v{voff}, {sr(srdr,4)}, s{soff} offen {extra}lds")
        if i < n - 1: e(f"s_add_u32 s{soff}, s{soff}, {dsrc}")

def poll(name, nloads, voff, dst, soffs, sleep=0):
    e(f"s_mov_b32 s{sSPIN}, {SPIN}")
    lab(name)
    for i in range(nloads):
        e(f"buffer_load_dwordx2 {vr(dst+2*i,2)}, v{voff}, {sr(R_WS,4)}, s{soffs[i]} offen sc1")
    e(f"s_sub_u32 s{sSPIN}, s{sSPIN}, 1")
    e(f"s_cmp_eq_u32 s{sSPIN}, 0")
    e(f"s_cbranch_scc1 {name}_done")
    e("s_waitcnt vmcnt(0)")
    e(f"v_cmp_ne_u64 vcc, {sr(sNON,2)}, {vr(dst,2)}")
    for i in range(1, nloads):
        e(f"v_cmp_ne_u64 {sr(sX,2)}, {sr(sNON,2)}, {vr(dst+2*i,2)}")
        e("s_nop 0")
        e(f"s_or_b64 vcc, vcc, {sr(sX,2)}")
    e("s_nop 0")
    e("s_cmp_eq_u64 vcc, 0")
    if sleep:
        e(f"s_cbranch_scc1 {name}_done")
        e(f"s_sleep {sleep}")
        e(f"s_branch {name}")
    else:
        e(f"s_cbranch_scc0 {name}")
    lab(name + "_done")
    e("s_waitcnt vmcnt(0)")

def lds_wait(name, off, value, tmp, sleep=0):
    e(f"s_mov_b32 s{sSPIN}, {SPIN*8}")
    e(f"v_mov_b32 v{tmp}, {MISC + off}")
    lab(name)
    e(f"ds_read_b32 v{tmp+1}, v{tmp}")
    e(f"s_sub_u32 s{sSPIN}, s{sSPIN}, 1")
    e(f"s_cmp_eq_u32 s{sSPIN}, 0")
    e(f"s_cbranch_scc1 {name}_done")
    e("s_waitcnt lgkmcnt(0)")
    e(f"v_readfirstlane_b32 s{sT4}, v{tmp+1}")
    e("s_nop 0")
    e(f"s_cmp_ge_u32 s{sT4}, {value}")
    if sleep:
        e(f"s_cbranch_scc1 {name}_done")
        e(f"s_sleep {sleep}")
        e(f"s_branch {name}")
    else:
        e(f"s_cbranch_scc0 {name}")
    lab(name + "_done")
    e("s_waitcnt lgkmcnt(0)")
def lds_add(off, tmp):
    e(f"v_mov_b32 v{tmp}, {MISC + off}")
    e(f"v_mov_b32 v{tmp+1}, 1")
    e("s_mov_b64 exec, 1")
    e(f"ds_add_u32 v{tmp}, v{tmp+1}")
    e("s_mov_b64 exec, -1")
def tag_from_lds(name, tmp):
    e(f"s_mov_b32 s{sSPIN}, {SPIN*8}")
    e(f"v_mov_b32 v{tmp}, {MISC+C_TAG}")
    lab(name)
    e(f"ds_read_b64 {vr(tmp+2,2)}, v{tmp}")
    e(f"s_sub_u32 s{sSPIN}, s{sSPIN}, 1")
    e(f"s_cmp_eq_u32 s{sSPIN}, 0")
    e(f"s_cbranch_scc1 {name}_done")
    e("s_waitcnt lgkmcnt(0)")
    e(f"v_readfirstlane_b32 s{sNON}, v{tmp+2}")
    e(f"v_readfirstlane_b32 s{sNON+1}, v{tmp+3}")
    e(f"s_cmp_lg_u32 s{sNON}, 0")
    e(f"s_cbranch_scc1 {name}_done")
    e(f"s_sleep {opt['fs']}")
    e(f"s_branch {name}")
    lab(name + "_done")
    e("s_waitcnt lgkmcnt(0)")

def signal(name, ctr_off, last, flag_soff_s, tmp, lo=None, plain_if=None):
    e(f"v_mov_b32 v{tmp}, {MISC + ctr_off}")
    e(f"v_mov_b32 v{tmp+1}, 1")
    e(f"s_mov_b64 exec, 1")
    e(f"ds_add_rtn_u32 v{tmp+1}, v{tmp}, v{tmp+1}")
    e(f"v_mov_b32 v{tmp+2}, s{sNON if lo is None else lo}")
    e(f"v_mov_b32 v{tmp+3}, s{sNON+1}")
    e("s_waitcnt lgkmcnt(0)")
    e(f"v_readfirstlane_b32 s{sT4}, v{tmp+1}")
    e("s_nop 0")
    e(f"s_cmp_eq_u32 s{sT4}, {last}")
    e(f"s_cbranch_scc0 {name}_nf")
    if plain_if is not None:
        e(f"s_cmp_eq_u32 s{plain_if}, 0")
        e(f"s_cbranch_scc1 {name}_wt")
        e(f"buffer_store_dwordx2 {vr(tmp+2,2)}, off, {sr(R_WS,4)}, s{flag_soff_s}")
        if opt['omode'] < 2: e(f"s_branch {name}_nf")
        lab(name + "_wt")
    e(f"buffer_store_dwordx2 {vr(tmp+2,2)}, off, {sr(R_WS,4)}, s{flag_soff_s} sc1")
    lab(name + "_nf")
    e("s_mov_b64 exec, -1")

hdr = open(f"cdna_kernels/{NAME}.s.ref").read().split("; Override launch")[0]
L.append(hdr.rstrip())
L.append(f"; @launch grid=(256,1,1) block=(512,1,1) lds={LDS_BYTES}")
L.append('.amdgcn_target "amdgcn-amd-amdhsa--gfx950"')
L.append(".text")
L.append(f".globl {NAME}_kernel")
L.append(".p2align 8")
L.append(f".type {NAME}_kernel,@function")
lab(f"{NAME}_kernel")
e("s_cmp_ge_u32 s2, 256")
e("s_cbranch_scc1 L_end")
e("s_load_dwordx16 s[4:19], s[0:1], 0")
e("s_load_dwordx8 s[20:27], s[0:1], 64")
e("s_load_dwordx2 s[28:29], s[0:1], 96")
e(f"s_memrealtime {sr(sNON,2)}")
if opt['endat']:
    e("s_waitcnt lgkmcnt(0)")
    e(f"s_mov_b32 s30, s{sNON}")
if opt['dxcc'] >= 0:
    e(f"s_getreg_b32 s{sT0}, hwreg(HW_REG_XCC_ID, 0, 4)")
    e(f"s_cmp_eq_u32 s{sT0}, {opt['dxcc']}") if opt['dxcc'] < 8 else e(f"s_cmp_eq_u32 s{sT0}, s{sT0}")
    e("s_cbranch_scc0 L_nodelay")
    e("s_waitcnt lgkmcnt(0)")
    lab("L_delay")
    e(f"s_memrealtime {sr(sX,2)}")
    e("s_waitcnt lgkmcnt(0)")
    e(f"s_sub_u32 s{sX}, s{sX}, s{sNON}")
    e(f"s_cmp_lt_u32 s{sX}, {opt['dus']}")
    e("s_cbranch_scc1 L_delay")
    lab("L_nodelay")
e("v_lshrrev_b32 v2, 6, v0")
e(f"v_and_b32 v{vL}, 63, v0")
e(f"v_readfirstlane_b32 s{sW}, v2")
e(f"s_and_b32 s{sXCD}, s2, 7")
e(f"s_lshr_b32 s{sJ}, s2, 3")
e(f"s_and_b32 s{sT0}, s{sJ}, 3")
e(f"s_lshl_b32 s{sTB}, s{sXCD}, 2")
e(f"s_add_u32 s{sTB}, s{sTB}, s{sT0}")
e(f"s_lshr_b32 s{sHG}, s{sJ}, 2")
e(f"s_lshr_b32 s{sTHP}, s{sHG}, 1")
e(f"s_and_b32 s{sA}, s{sW}, 3")
e(f"v_lshlrev_b32 v2, 4, v{vL}          ; v2 = lane*16")
cm("LDS init while the kernel arguments load: ones / zeros window (even 16-B chunks 2^64, odd chunks 0), counters")
ONE = (127 + VSCALE) << 7
e("v_lshrrev_b32 v5, 3, v0")
e("v_cmp_ne_u32 vcc, 8, v5")
e("v_and_b32 v4, 1, v0")
e("v_add_u32 v4, -1, v4")
e(f"v_and_b32 v4, {hex(ONE << 16 | ONE)}, v4")
e("v_cndmask_b32 v4, 0, v4, vcc")
e(f"v_lshlrev_b32 v3, 4, v0")
e("v_mov_b32 v5, v4")
e("v_mov_b32 v6, v4")
e("v_mov_b32 v7, v4")
e(f"v_add_u32 v3, {ONES_OFF}, v3")
e("ds_write_b128 v3, v[4:7]")
e(f"s_mov_b32 s{R_XA+2}, 0x200000")
e(f"s_mov_b32 s{R_XA+3}, 0x20000")
e(f"s_cmp_ge_u32 s{sW}, 4")
e("s_cbranch_scc1 L_aux")

cm("wq slice (8 rows x 128 B per load, 16-B chunks swizzled by row bit 1); quarter tb&3 first: distinct among its 4 sharers")
e(f"v_lshrrev_b32 v3, 3, v{vL}          ; r")
e(f"v_and_b32 v4, 7, v{vL}")
e(f"v_bfe_u32 v5, v{vL}, 4, 1           ; (r>>1)&1")
e("v_lshlrev_b32 v5, 2, v5")
e("v_xor_b32 v4, v4, v5")
e("v_lshlrev_b32 v4, 4, v4")
e("v_lshl_add_u32 v13, v3, 10, v4")
e(f"s_mov_b32 s{R_WQ+2}, 0x80000")
e(f"s_mov_b32 s{R_WQ+3}, 0x20000")
def wq_addr(q):
    e(f"s_add_u32 s{sT0}, s{sJ}, {q}")
    e(f"s_and_b32 s{sT0}, s{sT0}, 3")
    e(f"s_lshl_b32 s{sT0}, s{sT0}, 2")
    e(f"s_add_u32 s{sT0}, s{sT0}, s{sW}")
    e(f"s_lshl_b32 s{sT2}, s{sT0}, 15")
    e(f"s_lshl_b32 s{sT1}, s{sHG}, 7")
    e(f"s_add_u32 s{sT2}, s{sT2}, s{sT1}")
    e(f"s_lshl_b32 s{sT1}, s{sT0}, 12")
    e(f"s_add_u32 s{sT1}, s{sT1}, {WQ_OFF}")
wq_addr(0)
e("s_waitcnt lgkmcnt(0)")
e(f"s_mov_b32 s{R_WQ}, s{P_WQ}")
e(f"s_and_b32 s{R_WQ+1}, s{P_WQ+1}, 0xffff")
e(f"s_mov_b32 s{R_XA}, s{P_XA}")
e(f"s_and_b32 s{R_XA+1}, s{P_XA+1}, 0xffff")
stamp(0)
e("s_barrier")
NT = lambda b: "nt " if opt['ntc'] >> b & 1 else ""
dma_run(4, 13, R_WQ, sT2, sT1, 8192, 1024, NT(2))
cm("the 48 rows of the x tile the aux waves do not load: blocks blk+1, blk+2, blk+3 (mod 4), 4 rows per wave each")
def x_addr(d):
    e(f"s_add_u32 s{sT0}, s{sTHP}, {d}")
    e(f"s_and_b32 s{sT0}, s{sT0}, 3")
    e(f"s_lshl_b32 s{sT0}, s{sT0}, 2")
    e(f"s_add_u32 s{sT0}, s{sT0}, s{sW}")
    e(f"s_lshl_b32 s{sT0}, s{sT0}, 2          ; first row")
    e(f"s_mul_i32 s{sT1}, s{sT0}, {XROW}")
    e(f"s_add_u32 s{sT1}, s{sT1}, {X_OFF}")
    e(f"s_lshl_b32 s{sT2}, s{sTB}, 6")
    e(f"s_add_u32 s{sT2}, s{sT2}, s{sT0}")
    e(f"s_lshl_b32 s{sT2}, s{sT2}, 10")
def hold(name, ctr, val):
    lds_wait(name, ctr, val, 8, sleep=opt['fs'])
seq = [('x', 1), ('x', 2), ('x', 3), ('q', 1), ('q', 2), ('q', 3)]
for n, (kind, d) in enumerate(seq):
    (x_addr if kind == 'x' else wq_addr)(d)
    if n == opt['h1']: hold("L_hold1", C_CR, 4)
    if n == opt['h2']: hold("L_hold2", C_KV, 1)
    if kind == 'x': dma_run(4, 2, R_XA, sT2, sT1, 1024, XROW, NT(3))
    else: dma_run(4, 13, R_WQ, sT2, sT1, 8192, 1024, NT(4))
stamp(7)
srd(R_WS, P_WS, WS_SIZE)
SA, SB, OA, OB, CA, CB = 16, 32, 48, 64, 80, 96
QA, QB, K0, K1, V0, V1 = 112, 116, 120, 124, 128, 136
vIDX, vK, vV = 144, 145, 146
vINC, vV0, vSAME = 147, 150, 151
vXA, vWA = 148, 149
FB = 152
cm("Q-projection addresses")
e(f"s_and_b32 s{sT0}, s{sW}, 1            ; th")
e(f"s_lshr_b32 s{sT1}, s{sW}, 1           ; hp")
e(f"v_and_b32 v3, 31, v{vL}")
e(f"s_lshl_b32 s{sT2}, s{sT0}, 5")
e(f"v_add_u32 v3, s{sT2}, v3")
e(f"v_mul_u32_u24 v3, {XROW}, v3")
e(f"v_lshrrev_b32 v4, 5, v{vL}           ; h")
e(f"v_lshl_add_u32 v14, v4, 4, v3")
e(f"v_bfe_u32 v5, v{vL}, 2, 2            ; r")
e("v_lshl_add_u32 v6, v4, 3, v5          ; 8h + r")
e("v_lshlrev_b32 v6, 7, v6")
e(f"v_bfe_u32 v7, v{vL}, 4, 1            ; g")
e(f"v_and_b32 v8, 1, v{vL}")
e("v_lshl_add_u32 v7, v7, 1, v8          ; 2g + (cc&1)")
e(f"s_lshl_b32 s{sT2}, s{sT1}, 2")
e(f"v_add_u32 v7, s{sT2}, v7")
e(f"v_bfe_u32 v8, v{vL}, 3, 1            ; (r>>1)&1")
e("v_lshlrev_b32 v8, 2, v8")
e("v_xor_b32 v7, v7, v8")
e("v_lshl_add_u32 v6, v7, 4, v6")
e(f"v_bfe_u32 v8, v{vL}, 1, 1")
e("v_lshl_add_u32 v6, v8, 3, v6")
e(f"v_add_u32 v{vWA}, {WQ_OFF}, v6")
e(f"v_add_u32 v{vXA}, {X_OFF}, v14")
cm("attention LDS addresses; V: rows 0..15 -> tile data, lanes 16,20 -> 2^64, other lanes -> 0")
e(f"v_mov_b32 v{vIDX}, 0xdddddddd")
e(f"v_bfe_u32 v5, v{vL}, 4, 1")
e(f"v_xor_b32 v5, 1, v5                   ; 1 for V rows, 0 for the constant lanes")
e(f"v_lshlrev_b32 v{vINC}, 13, v5")
e(f"v_and_b32 v8, 15, v{vL}")
e("v_lshlrev_b32 v9, 8, v4")
e("v_lshl_add_u32 v8, v8, 4, v9")
e(f"v_and_b32 v9, 31, v{vL}")
e("v_add_u32 v10, -20, v9")
e("v_cmp_gt_u32 vcc, 8, v10")
e("v_and_b32 v9, 11, v9")
e("v_min_u32 v9, 1, v9")
e("v_cndmask_b32 v10, 0, 64, vcc")
e(f"v_cmp_eq_u32 vcc, 1, v5")
e("v_lshl_add_u32 v9, v9, 4, v10")
e(f"v_add_u32 v9, {ONES_OFF - 1024}, v9")
e(f"v_cndmask_b32 v{vV0}, v9, v8, vcc")
cm("O fragment destination and flag slot")
sOD, sOF = 97, 98
e(f"s_and_b32 s{sT0}, s{sW}, 1")
e(f"s_lshl_b32 s{sT1}, s{sTB}, 1")
e(f"s_add_u32 s{sT0}, s{sT0}, s{sT1}")
e(f"s_lshl_b32 s{sT0}, s{sT0}, 5          ; (tb*2+th)*32")
e(f"s_lshl_b32 s{sT1}, s{sHG}, 2")
e(f"s_add_u32 s{sT0}, s{sT0}, s{sT1}")
e(f"s_and_b32 s{sT1}, s{sW}, 2")
e(f"s_add_u32 s{sT0}, s{sT0}, s{sT1}")
e(f"s_lshl_b32 s{sT0}, s{sT0}, 10")
e(f"s_add_u32 s{sOD}, s{sT0}, {WS_O}")
e(f"s_lshl_b32 s{sT1}, s{sTB}, 3")
e(f"s_add_u32 s{sT1}, s{sT1}, s{sHG}")
e(f"s_lshl_b32 s{sT1}, s{sT1}, 2")
e(f"s_add_u32 s{sT1}, s{sT1}, s{sW}")
e(f"s_lshl_b32 s{sT1}, s{sT1}, 7")
e(f"s_add_u32 s{sOF}, s{sT1}, {FL_O}")
e(f"s_mov_b32 s{sFB}, 0")
e(f"s_mov_b32 s{sBARN}, 0xa")
e(f"v_mov_b32 v{vSAME}, {MISC}")
sPF, sOL, sOS, vPO = 100, 101, 79, 184
e(f"s_lshl_b32 s{sT0}, s{sTB}, 3")
e(f"s_lshl_b32 s{sT1}, s{sW}, 1")
e(f"s_add_u32 s{sT0}, s{sT0}, s{sT1}")
e(f"s_lshl_b32 s{sT0}, s{sT0}, 9")
e(f"s_add_u32 s{sPF}, s{sT0}, {FL_O}")
e(f"s_lshl_b32 s{sT2}, s{sTB}, 16")
e(f"s_lshl_b32 s{sOL}, s{sW}, 13")
e(f"s_add_u32 s{sT2}, s{sT2}, s{sOL}")
e(f"s_add_u32 s{sOS}, s{sT2}, {WS_O}")
e(f"v_and_b32 v8, 7, v{vL}")
e(f"v_lshlrev_b32 v{vPO}, 7, v8")
for i in range(16): e(f"v_mov_b32 v{OA+i}, 0")
for i in range(16): e(f"v_mov_b32 v{OB+i}, 0")
for i in range(4): e(f"v_mov_b32 v{V1+4+i}, 0")
if opt['qloop']:
    for i in range(16): e(f"v_mov_b32 v{SA+i}, 0")
e(f"v_mov_b32 v{vK}, v2")
e(f"v_mov_b32 v{vV}, v{vV0}")
if opt['dftpf']:
    cm("sequence-DFT rows the aux waves read later (pulled towards L2 from inside the loop):")
    cm("wave 0: cos rows t1s + 32l; wave 1: sin rows 2048 - that; waves 2, 3: cos / sin rows 64 (l & 31)")
    R_DP, vDP = R_XA, 187
    e(f"s_bitcmp1_b32 s{sW}, 0")
    e(f"s_cselect_b64 {sr(R_DP,2)}, {sr(P_SIM,2)}, {sr(P_SRE,2)}")
    e(f"s_and_b32 s{R_DP+1}, s{R_DP+1}, 0xffff")
    e(f"s_mov_b32 s{R_DP+2}, 0x800000")
    e(f"v_lshlrev_b32 v8, 5, v{vL}")
    e(f"v_add_u32 v8, s{sTB}, v8               ; t1s = tb")
    e("v_sub_u32 v9, 0x800, v8")
    e("v_and_b32 v9, 0x7ff, v9")
    e(f"v_lshlrev_b32 v10, 6, v{vL}")
    e("v_and_b32 v10, 0x7ff, v10")
    e(f"s_cmp_eq_u32 s{sW}, 1")
    e("s_cselect_b64 vcc, -1, 0")
    e("v_cndmask_b32 v8, v8, v9, vcc")
    e(f"s_cmp_ge_u32 s{sW}, 2")
    e("s_cselect_b64 vcc, -1, 0")
    e("v_cndmask_b32 v8, v8, v10, vcc")
    e(f"v_lshlrev_b32 v{vDP}, 12, v8")
e(f"s_mov_b32 s{sT0}, {hex(f2u(0.25*1.4426950408889634))}")
warm("L_padq", "L_padq_ret")
e("s_waitcnt vmcnt(0)")
stamp(8)
e("s_barrier")
stamp(10)
pad_begin("L_padq")
def qload(ks):
    b = FB + 8*(ks % 4)
    e(f"ds_read_b64_tr_b16 {vr(b,2)}, v{vWA} offset:{ks*2048}")
    e(f"ds_read_b64_tr_b16 {vr(b+2,2)}, v{vWA} offset:{ks*2048+512}")
    e(f"ds_read_b128 {vr(b+4,4)}, v{vXA} offset:{ks*32}")
for ks in range(3): qload(ks)
if opt['qloop']:
    cm("4 trips of 8 k-steps; the last trip's look-ahead reads land in unused registers")
    e(f"s_mov_b32 s{sIT}, 0")
    lab("L_qloop")
    for ks in range(8):
        b = FB + 8*(ks % 4)
        qload(ks + 3); e("s_waitcnt lgkmcnt(9)")
        e(f"v_mfma_f32_32x32x16_bf16 {vr(SA,16)}, {vr(b,4)}, {vr(b+4,4)}, {vr(SA,16)}")
        if ks == 7:
            e(f"v_add_u32 v{vWA}, 0x4000, v{vWA}")
            e(f"v_add_u32 v{vXA}, 0x100, v{vXA}")
        if ks == 6:
            e(f"s_add_u32 s{sIT}, s{sIT}, 1")
            e(f"s_cmp_lt_u32 s{sIT}, 4")
    e("s_cbranch_scc1 L_qloop")
    e("s_waitcnt lgkmcnt(0)")
else:
    for ks in range(32):
        b = FB + 8*(ks % 4)
        if ks + 3 < 32:
            qload(ks + 3); e("s_waitcnt lgkmcnt(9)")
        else:
            e(f"s_waitcnt lgkmcnt({3*(31-ks)})")
        c = "0" if ks == 0 else vr(SA, 16)
        e(f"v_mfma_f32_32x32x16_bf16 {vr(SA,16)}, {vr(b,4)}, {vr(b+4,4)}, {c}")
stamp(9)
nop(8 if opt['qloop'] else 12)
for i in range(16): e(f"v_mul_f32 v{SA+i}, s{sT0}, v{SA+i}")
for i in range(8): e(f"v_cvt_pk_bf16_f32 v{QA+i}, v{SA+2*i}, v{SA+2*i+1}")
if opt['prioA']: e(f"s_setprio {opt['prioA']}")
stamp(2)
if opt['attpf']:
    cm("after BA: pull this workgroup's 1/32 share of what its XCD reads later towards L2 (one dword per 128-B line)")
    cm("wave 0: x_B rows 64j + 8xcd + (0..7); waves 1, 2: hidden cos / sin rows 8j..8j+7; wave 3: wo rows 16j..16j+15")
    R_PF = R_WQ
    e(f"s_cmp_eq_u32 s{sW}, 1")
    e(f"s_cselect_b64 {sr(R_PF,2)}, {sr(P_HRE,2)}, {sr(P_HIM,2)}")
    e(f"s_lshl_b32 s{sT2}, s{sJ}, 13")
    e(f"s_cmp_eq_u32 s{sW}, 3")
    e(f"s_cselect_b64 {sr(R_PF,2)}, {sr(P_WO,2)}, {sr(R_PF,2)}")
    e(f"s_cselect_b32 s{sT3}, s{sT2}, 0")
    e(f"s_add_u32 s{sT2}, s{sT2}, s{sT3}")
    e(f"s_lshl_b32 s{sT3}, s{sJ}, 16")
    e(f"s_lshl_b32 s{sT1}, s{sXCD}, 13")
    e(f"s_add_u32 s{sT3}, s{sT3}, s{sT1}")
    e(f"s_cmp_eq_u32 s{sW}, 0")
    e(f"s_cselect_b64 {sr(R_PF,2)}, {sr(P_XB,2)}, {sr(R_PF,2)}")
    e(f"s_cselect_b32 s{sT2}, s{sT3}, s{sT2}")
    e(f"s_cselect_b32 s{R_PF+2}, 0x200000, s{R_PF+2}")
    e(f"s_and_b32 s{R_PF+1}, s{R_PF+1}, 0xffff")
    e(f"s_add_u32 s{sT3}, s{sT2}, 8192")
    e(f"v_lshlrev_b32 v6, 7, v{vL}")
e("s_barrier")
stamp(3)
PFLOAD = True
cm("stand-in for the row max: max over key tile 0 (checked after the loop; fallback = true max)")
e(f"ds_read_b128 {vr(K0,4)}, v{vK}")
e(f"ds_read_b128 {vr(K1,4)}, v{vK} offset:2048")
e(f"ds_read_b128 {vr(V0,4)}, v{vV} offset:1024")
e(f"ds_read_b128 {vr(V0+4,4)}, v{vV} offset:1536")
e("s_waitcnt lgkmcnt(3)")
e(f"v_mfma_f32_32x32x16_bf16 {vr(SA,16)}, {vr(K0,4)}, {vr(QA,4)}, 0")
e(f"v_mfma_f32_32x32x16_bf16 {vr(SB,16)}, {vr(K0,4)}, {vr(QB,4)}, 0")
if opt['attpf']:
    e(f"buffer_load_dword v185, v6, {sr(R_PF,4)}, s{sT2} offen")
    e(f"s_cmp_eq_u32 s{sW}, 3")
    e("s_cbranch_scc0 L_pf_one")
    e(f"buffer_load_dword v186, v6, {sr(R_PF,4)}, s{sT3} offen")
    lab("L_pf_one")
    nop(8)
else: nop(11)
def max16(dst, s, acc=None):
    if acc is None:
        e(f"v_max3_f32 v{dst}, v{s}, v{s+1}, v{s+2}"); i = 3
        while i + 1 < 16:
            e(f"v_max3_f32 v{dst}, v{dst}, v{s+i}, v{s+i+1}"); i += 2
        e(f"v_max_f32 v{dst}, v{dst}, v{s+15}")
    else:
        for i in range(0, 16, 2): e(f"v_max3_f32 v{dst}, v{dst}, v{s+i}, v{s+i+1}")
max16(4, SA); max16(5, SB)
lab("L_setmax")
cm(f"v4 / v5 = per-lane max for tiles A / B; combine the two half-waves, C = -(max + {opt['shift']})")
e("v_mov_b32 v6, v4")
e("v_mov_b32 v7, v5")
e(f"s_mov_b32 s{sIT}, 0")
e("s_nop 0")
e("v_permlane32_swap_b32 v4, v6")
e("v_permlane32_swap_b32 v5, v7")
e("v_max_f32 v4, v4, v6")
e("v_max_f32 v5, v5, v7")
for i in range(16): e(f"v_sub_f32 v{CA+i}, {hex(f2u(-float(opt['shift'])))}, v4")
e(f"v_sub_f32 v{CB}, {hex(f2u(-float(opt['shift'])))}, v5")
e("s_waitcnt lgkmcnt(0)")
e(f"v_mfma_f32_32x32x16_bf16 {vr(SA,16)}, {vr(K0,4)}, {vr(QA,4)}, {vr(CA,16)}")
for i in range(1, 16): e(f"v_mov_b32 v{CB+i}, v{CB}")
for i in range(8): e(f"v_mov_b32 v{SB+8+i}, 0")
def SM(o, a, b): e(f"v_smfmac_f32_32x32x32_bf16 {vr(o,16)}, {vr(a,4)}, {vr(b,8)}, v{vIDX}")
def QK(d, k, q, c): e(f"v_mfma_f32_32x32x16_bf16 {vr(d,16)}, {vr(k,4)}, {vr(q,4)}, {vr(c,16)}")
def EX(s, a, b):
    for i in range(a, b): e(f"v_exp_f32 v{s+i}, v{s+i}")
pad_end("L_padq", "L_padq_ret")
L.append(".p2align 6")
lab("L_att_loop")
for u in range(4):
    kc, kn = (K0, K1) if u % 2 == 0 else (K1, K0)
    vc, vp = (V0, V1) if u % 2 == 0 else (V1, V0)
    voffs = ((u + 1) % 4) * 2048 + 1024
    koffs = ((u + 2) % 4) * 2048
    p0, p1, p2 = (4, 7, 10) if opt['cluster'] else (2, 5, 10)
    EX(SA, 0, p0)
    SM(OB, vp + 4, SB + 8)
    e("s_waitcnt lgkmcnt(1)")
    EX(SA, p0, p1)
    QK(SB, kc, QB, CB)
    e(f"ds_read_b128 {vr(vp,4)}, v{vV} offset:{voffs}")
    EX(SA, p1, p2)
    SM(OA, vc, SA)
    e(f"ds_read_b128 {vr(vp+4,4)}, v{vV} offset:{voffs+512}")
    EX(SA, p2, 16)
    EX(SB, 0, p0)
    SM(OA, vc + 4, SA + 8)
    e("s_waitcnt lgkmcnt(2)")
    if u == 1:
        pass
    EX(SB, p0, p1)
    QK(SA, kn, QA, CA)
    e(f"ds_read_b128 {vr(kc,4)}, v{vK} offset:{koffs}")
    EX(SB, p1, p2)
    SM(OB, vc, SB)
    if u == 1:
        e(f"s_bitcmp1_b32 s{sBARN}, s{sIT}")
        e("s_cbranch_scc1 L_sync")
        lab("L_nobar")
        e(f"v_add_u32 v{vK}, 0x2000, v{vK}")
    if u == 2:
        e(f"v_add_u32 v{vV}, v{vINC}, v{vV}")
    if u == 3:
        e(f"s_add_u32 s{sIT}, s{sIT}, 1")
        e(f"s_cmp_lt_u32 s{sIT}, 16")
    if u == 0 and opt['cluster']: e("s_nop 0")
    EX(SB, p2, 16)
e("s_cbranch_scc1 L_att_loop")
pad_begin("L_padt")
e(f"s_mov_b32 s{sT0}, {hex(f2u(2.0**100) if not opt['force_fb'] else f2u(2.0**-30))}")
e(f"v_rcp_f32 v4, v{OA+8}")
SM(OB, V1 + 4, SB + 8)
e(f"ds_read_b32 v7, v{vSAME} offset:{C_SAME}")
e(f"ds_read_b64 v[8:9], v{vSAME} offset:{C_TAG}")
cm("run-time check of the stand-in: l*2^64 must be finite and <= 2^100, else redo with the true row max")
e(f"v_cmp_nle_f32_e64 vcc, v{OA+8}, s{sT0}")
for i in range(8): e(f"v_mul_f32 v{SA+i}, v4, v{OA+i}")
for i in range(4): e(f"v_cvt_pk_bf16_f32 v{SA+i}, v{SA+2*i}, v{SA+2*i+1}")
sSAME = 99
e("s_waitcnt lgkmcnt(0)")
e(f"v_readfirstlane_b32 s{sSAME}, v7")
e(f"v_rcp_f32 v5, v{OB+8}")
e(f"v_cmp_nle_f32_e64 {sr(sX,2)}, v{OB+8}, s{sT0}")
cm("plain stores only when every workgroup of this token block reported the same XCD; else write-through")
e(f"s_cmp_eq_u32 s{sSAME}, 0")
e("s_cbranch_scc1 L_ostA_wt")
e(f"buffer_store_dwordx4 {vr(SA,4)}, v2, {sr(R_WS,4)}, s{sOD} offen")
lab("L_ostA_done")
for i in range(8): e(f"v_mul_f32 v{SB+i}, v5, v{OB+i}")
e(f"s_or_b64 vcc, vcc, {sr(sX,2)}")
for i in range(4): e(f"v_cvt_pk_bf16_f32 v{SA+4+i}, v{SB+2*i}, v{SB+2*i+1}")
e("s_cmp_eq_u64 vcc, 0")
e("s_cbranch_scc0 L_fallback")
lab("L_att_done")
e(f"s_cmp_eq_u32 s{sSAME}, 0")
e("s_cbranch_scc1 L_ost_wt")
e(f"buffer_store_dwordx4 {vr(SA+4,4)}, v2, {sr(R_WS,4)}, s{sOD} offen offset:1024")
stamp(6)
e(f"v_readfirstlane_b32 s{sNON}, v8")
e(f"v_readfirstlane_b32 s{sNON+1}, v9")
e("s_mov_b64 exec, 1")
e("s_waitcnt vmcnt(0)")
e(f"buffer_store_dwordx2 v[8:9], off, {sr(R_WS,4)}, s{sOF}")
lab("L_ost_done")
e("s_mov_b64 exec, -1")
stamp(5)
e("s_barrier")
stamp(4)
cm("gather the O tile of this token block: wave w takes producers 2w, 2w+1, in four steps of two heads")
poll("L_pollO", 1, vPO, 10, [sPF])
stamp(11)
for st in range(4):
    for th in range(2):
        e(f"s_add_u32 m0, s{sOL}, {2048*st + 32768*th}")
        e(f"s_add_u32 s{sT1}, s{sOS}, {2048*st + 32768*th}")
        for i in range(2): e(f"buffer_load_dwordx4 v2, {sr(R_WS,4)}, s{sT1} offen offset:{1024*i} sc1 lds")
pad_end("L_padt", "L_pado_0")
for st in range(4):
    e(f"s_waitcnt vmcnt({12 - 4*st})")
    if st == 0: stamp(12)
    e(f"s_barrier                             ; B8.{st}: heads 8w + {2*st}, {2*st+1} of every wave landed")
stamp_dump()
e("s_endpgm")
lab("L_ostA_wt")
e(f"buffer_store_dwordx4 {vr(SA,4)}, v2, {sr(R_WS,4)}, s{sOD} offen sc1")
e("s_branch L_ostA_done")
lab("L_ost_wt")
e(f"buffer_store_dwordx4 {vr(SA+4,4)}, v2, {sr(R_WS,4)}, s{sOD} offen offset:1024 sc1")
stamp(6)
e(f"v_readfirstlane_b32 s{sNON}, v8")
e(f"v_readfirstlane_b32 s{sNON+1}, v9")
e("s_mov_b64 exec, 1")
e("s_waitcnt vmcnt(0)")
e(f"buffer_store_dwordx2 v[8:9], off, {sr(R_WS,4)}, s{sOF} sc1")
e("s_branch L_ost_done")
lab("L_sync")
e(f"s_cmp_eq_u32 s{sIT}, 1")
e("s_cbranch_scc0 L_sync3")
lds_wait("L_wg1", C_G1, 4, 4)
e("s_branch L_nobar")
lab("L_sync3")
if opt['dftpf']: e(f"buffer_load_dword v185, v{vDP}, {sr(R_DP,4)}, 0 offen")
lds_wait("L_wkvl", C_KVL, 4, 4)
e("s_branch L_nobar")
lab("L_fallback")
e(f"s_cmp_eq_u32 s{sFB}, 0")
e("s_cbranch_scc0 L_att_done")
cm("fallback: exact row max over all 64 key tiles, then repeat the main loop")
e(f"s_mov_b32 s{sFB}, 1")
e(f"s_mov_b32 s{sBARN}, 0")
e(f"v_mov_b32 v4, 0xff800000")
e(f"v_mov_b32 v5, 0xff800000")
e(f"v_mov_b32 v{vK}, v2")
e(f"s_mov_b32 s{sIT}, 0")
lab("L_fb_loop")
e(f"ds_read_b128 {vr(K0,4)}, v{vK}")
e("s_waitcnt lgkmcnt(0)")
e(f"v_mfma_f32_32x32x16_bf16 {vr(SA,16)}, {vr(K0,4)}, {vr(QA,4)}, 0")
e(f"v_mfma_f32_32x32x16_bf16 {vr(SB,16)}, {vr(K0,4)}, {vr(QB,4)}, 0")
e(f"v_add_u32 v{vK}, 0x800, v{vK}")
nop(11)
max16(4, SA, 1); max16(5, SB, 1)
e(f"s_add_u32 s{sIT}, s{sIT}, 1")
e(f"s_cmp_lt_u32 s{sIT}, 64")
e("s_cbranch_scc1 L_fb_loop")
e(f"v_mov_b32 v{vK}, v2")
e(f"v_mov_b32 v{vV}, v{vV0}")
for i in range(16): e(f"v_mov_b32 v{OA+i}, 0")
for i in range(16): e(f"v_mov_b32 v{OB+i}, 0")
for i in range(4): e(f"v_mov_b32 v{V1+4+i}, 0")
e(f"ds_read_b128 {vr(K0,4)}, v{vK}")
e(f"ds_read_b128 {vr(K1,4)}, v{vK} offset:2048")
e(f"ds_read_b128 {vr(V0,4)}, v{vV} offset:1024")
e(f"ds_read_b128 {vr(V0+4,4)}, v{vV} offset:1536")
e("s_branch L_setmax")

lab("L_aux")
BUF = 16
BP = 144
FR = 176
ACC = 192
D1, D2 = 208, 224
if opt['prioX']: e(f"s_setprio {opt['prioX']}")
cm("critical loads: projection weight (wk for even hg, wv for odd), x rows 16*blk + 4a + i")
e(f"s_lshl_b32 s{sT0}, s{sTHP}, 4")
e(f"s_lshl_b32 s{sT1}, s{sA}, 2")
e(f"s_add_u32 s{sT0}, s{sT0}, s{sT1}")
e(f"s_mul_i32 s{sT1}, s{sT0}, {XROW}")
e(f"s_add_u32 s{sT1}, s{sT1}, {X_OFF}")
e(f"s_lshl_b32 s{sT2}, s{sTB}, 6")
e(f"s_add_u32 s{sT2}, s{sT2}, s{sT0}")
e(f"s_lshl_b32 s{sT2}, s{sT2}, 10")
e(f"s_lshl_b32 s{sT3}, s{sA}, 12")
e(f"s_mov_b32 s{R_W+2}, 16384")
e(f"s_mov_b32 s{R_W+3}, 0x20000")
e(f"s_mov_b32 m0, s{sT3}")
e(f"s_bitcmp1_b32 s{sHG}, 0")
e("s_waitcnt lgkmcnt(0)")
e(f"s_cselect_b32 s{R_W}, s{P_WV}, s{P_WK}")
e(f"s_cselect_b32 s{R_W+1}, s{P_WV+1}, s{P_WK+1}")
e(f"s_and_b32 s{R_W+1}, s{R_W+1}, 0xffff")
e(f"s_mov_b32 s{R_XA}, s{P_XA}")
e(f"s_and_b32 s{R_XA+1}, s{P_XA+1}, 0xffff")
srd(R_DBG, P_DBG, 256)
cm("workgroup 0, aux wave 3 publishes this launch's hand-off tag")
e(f"s_or_b32 s{sNON}, s{sNON}, 16")
e(f"s_and_b32 s{sNON}, s{sNON}, -16")
e(f"s_lshl_b32 s{sT0}, s2, 3")
e(f"s_add_u32 s{sT0}, s{sT0}, s{sW}")
e(f"s_cmp_eq_u32 s{sT0}, 7")
e("s_cbranch_scc0 L_notag")
e(f"v_mov_b32 v4, s{sNON}")
e(f"v_mov_b32 v5, s{sNON+1}")
e("s_mov_b64 exec, 1")
e(f"buffer_store_dwordx2 v[4:5], off, {sr(R_DBG,4)}, 0 sc1")
e("s_mov_b64 exec, -1")
lab("L_notag")
NT = lambda b: "nt " if opt['ntc'] >> b & 1 else ""
for i in range(4): e(f"buffer_load_dwordx4 v2, {sr(R_W,4)}, s{sT3} offen offset:{1024*i} {NT(1)}lds")
dma_run(4, 2, R_XA, sT2, sT1, 1024, XROW, NT(0))
stamp(0)
srd(R_WS, P_WS, WS_SIZE)
if opt['dbgt']:
    e(f"s_cmp_lt_u32 s2, 8")
    e("s_cbranch_scc0 L_nodbg0")
    e(f"s_cmp_eq_u32 s{sW}, 6")
    e("s_cbranch_scc0 L_nodbg0")
    e(f"v_mov_b32 v4, s{sNON}")
    e(f"s_lshl_b32 s{sT0}, s2, 2")
    e(f"s_add_u32 s{sT0}, s{sT0}, 8")
    e("s_mov_b64 exec, 1")
    e(f"buffer_store_dword v4, off, {sr(R_DBG,4)}, s{sT0}")
    e("s_mov_b64 exec, -1")
    lab("L_nodbg0")
e("s_barrier                             ; B1")
KV0 = len(L)
e(f"v_mov_b32 v14, {MISC+C_CR}")
e(f"v_mov_b32 v15, 1")
cm("K / V projection of 16 tokens: aux wave 0")
e(f"s_cmp_eq_u32 s{sA}, 0")
e("s_cbranch_scc0 L_np")
e(f"v_and_b32 v3, 15, v{vL}")
e(f"v_lshrrev_b32 v4, 4, v{vL}           ; q")
e(f"s_lshl_b32 s{sT0}, s{sTHP}, 4")
e(f"v_add_u32 v5, s{sT0}, v3")
e(f"v_mul_u32_u24 v5, {XROW}, v5")
e("v_lshl_add_u32 v5, v4, 4, v5")
e(f"v_add_u32 v5, {X_OFF}, v5")
e(f"v_bfe_u32 v6, v{vL}, 2, 2            ; r")
e("v_lshl_add_u32 v6, v4, 3, v6")
e("v_lshlrev_b32 v6, 5, v6")
e(f"v_and_b32 v7, 3, v{vL}               ; cc")
sB = sT3
e(f"s_and_b32 s{sB}, s{sTHP}, 1            ; b")
e(f"s_lshr_b32 s{sT0}, s{sTHP}, 1")
e(f"s_lshl_b32 s{sT2}, s{sTB}, 1")
e(f"s_add_u32 s{sT2}, s{sT2}, s{sT0}")
sKF, sKD = 97, 96
e(f"s_lshl_b32 s{sT1}, s{sT2}, 1")
e(f"s_and_b32 s{sT0}, s{sHG}, 1")
e(f"s_add_u32 s{sT1}, s{sT1}, s{sT0}")
e(f"s_lshl_b32 s{sT1}, s{sT1}, 1")
e(f"s_add_u32 s{sT1}, s{sT1}, s{sB}")
e(f"s_lshl_b32 s{sT1}, s{sT1}, 7")
e(f"s_add_u32 s{sKF}, s{sT1}, {FL_KV}")
e(f"s_lshl_b32 s{sKD}, s{sT2}, 11")
e("v_and_b32 v9, 1, v4")
e("v_lshlrev_b32 v9, 3, v9")
e("v_lshl_add_u32 v9, v3, 4, v9          ; n*16 + (q&1)*8")
e("v_lshrrev_b32 v8, 1, v4")
e(f"s_mov_b32 s{sDRY}, {1 if opt['dry'] else 0}")
if opt['pre']:
    cm("touch the lines this wave will publish (tile and flag), so the write-through stores find them resident")
    e(f"v_and_b32 v12, 15, v{vL}")
    e("v_lshlrev_b32 v12, 7, v12")
    e(f"buffer_load_dword v201, v12, {sr(R_WS,4)}, s{sKD} offen sc1")
    e(f"buffer_load_dword v202, off, {sr(R_WS,4)}, s{sKF} sc1")
def kvchain(isV):
    D = opt['kvd']
    def mf(k2):
        b2 = BUF + 8*k2
        a, bb = (b2+4, b2) if isV else (b2, b2+4)
        e(f"v_mfma_f32_16x16x32_bf16 {vr(ACC,4)}, {vr(a,4)}, {vr(bb,4)}, {'0' if k2==0 else vr(ACC,4)}")
    for ks in range(16):
        b = BUF + 8*ks
        e(f"ds_read_b64_tr_b16 {vr(b,2)}, v6 offset:{ks*1024}")
        e(f"ds_read_b64_tr_b16 {vr(b+2,2)}, v6 offset:{ks*1024+128}")
        e(f"ds_read_b128 {vr(b+4,4)}, v5 offset:{ks*64}")
        if ks >= D:
            e(f"s_waitcnt lgkmcnt({3*D})"); mf(ks - D)
    for k2 in range(16 - D, 16):
        e(f"s_waitcnt lgkmcnt({3*(15-k2)})"); mf(k2)
def kv_wait(tagname):
    e(f"s_waitcnt vmcnt({2 if opt['pre'] else 0})")
    stamp(1)
    e("s_mov_b64 exec, 1")
    e("ds_add_u32 v14, v15")
    e("s_mov_b64 exec, -1")
    lds_wait(tagname + "_w", C_CR, 4, 10, sleep=1)
def kv_b1(tagname):
    if not opt['dry']: kv_wait(tagname)
    lab(tagname)
def kv_b2(tagname):
    if opt['dry']:
        e(f"s_cmp_eq_u32 s{sDRY}, 0")
        e(f"s_cbranch_scc1 {tagname}_go")
        e(f"s_mov_b32 s{sDRY}, 0")
        kv_wait(tagname)
        e(f"s_branch {tagname}")
        lab(tagname + "_go")
e(f"s_bitcmp1_b32 s{sHG}, 0")
e("s_cbranch_scc1 L_prodV")
cm("K: (q>>1)*512 + (16b+n)*16 + (q&1)*8")
e("v_lshl_add_u32 v6, v7, 3, v6")
e("v_lshl_add_u32 v8, v8, 9, v9")
e(f"s_lshl_b32 s{sT1}, s{sB}, 8")
e(f"s_add_u32 s{sKD}, s{sKD}, s{sT1}")
kv_b1("L_chK"); kvchain(False); kv_b2("L_chK")
nop(6 if opt['dry'] else 8)
e("s_branch L_prodS")
lab("L_prodV")
cm("V: 1024 + b*512 + (q>>1)*256 + n*16 + (q&1)*8")
e("v_lshl_add_u32 v8, v8, 8, v9")
e("v_and_b32 v9, 1, v7")
e("v_lshl_add_u32 v6, v9, 4, v6")
e("v_lshrrev_b32 v9, 1, v7")
e("v_lshl_add_u32 v6, v9, 3, v6")
e(f"s_lshl_b32 s{sT1}, s{sB}, 9")
e(f"s_add_u32 s{sKD}, s{sKD}, s{sT1}")
e(f"s_add_u32 s{sKD}, s{sKD}, 1024")
kv_b1("L_chV"); kvchain(True); kv_b2("L_chV")
e(f"s_mov_b32 s{sT0}, {hex(f2u(2.0**VSCALE))}")
nop(6 if opt['dry'] else 8)
for i in range(4): e(f"v_mul_f32 v{ACC+i}, s{sT0}, v{ACC+i}")
lab("L_prodS")
e(f"v_cvt_pk_bf16_f32 v10, v{ACC}, v{ACC+1}")
e(f"v_cvt_pk_bf16_f32 v11, v{ACC+2}, v{ACC+3}")
e(f"buffer_store_dwordx2 v[10:11], v8, {sr(R_WS,4)}, s{sKD} offen sc1")
stamp(14)
e("ds_add_u32 v14, v15 offset:%d             ; this wave is done with the weight region" % (C_KV - C_CR + 65536) if False else f"v_mov_b32 v13, {MISC+C_KV}")
e("s_mov_b64 exec, 1")
e("ds_add_u32 v13, v15")
e("s_mov_b64 exec, -1")
tag_from_lds("L_tagp", 4)
e(f"v_mov_b32 v6, s{sNON}")
e(f"v_mov_b32 v7, s{sNON+1}")
e("s_mov_b64 exec, 1")
e("s_waitcnt vmcnt(0)")
e(f"buffer_store_dwordx2 v[6:7], off, {sr(R_WS,4)}, s{sKF} sc1")
e("s_mov_b64 exec, -1")
stamp(15)
e(f"s_mov_b32 s{sRET}, 1")
e("s_branch L_tagged")
lab("L_np")
e("s_waitcnt vmcnt(0)")
stamp(1)
e("s_mov_b64 exec, 1")
e("ds_add_u32 v14, v15")
e("s_mov_b64 exec, -1")
if opt['codepf']:
    cm("aux wave 2 pulls this kernel's code towards L2 (reads only)")
    e(f"s_cmp_eq_u32 s{sA}, 2")
    e("s_cbranch_scc0 L_nopf")
    e(f"s_getpc_b64 {sr(sX,2)}")
    lab("L_pc")
    e(f"v_lshlrev_b32 v4, 7, v{vL}")
    e(f"s_sub_u32 s{sX}, s{sX}, L_pc-{NAME}_kernel")
    e(f"s_subb_u32 s{sX+1}, s{sX+1}, 0")
    e(f"v_mov_b32 v5, s{sX+1}")
    e(f"v_add_co_u32 v4, vcc, s{sX}, v4")
    e("s_nop 1")
    e("v_addc_co_u32 v5, vcc, 0, v5, vcc")
    e("CODEPF")
    lab("L_nopf")
e(f"s_cmp_eq_u32 s{sA}, 3")
e("s_cbranch_scc0 L_tagged0")
cm("aux wave 3 fetches this launch's hand-off tag (bounded spin) and posts it in LDS")
e(f"s_mov_b32 s{sSPIN}, {SPIN}")
lab("L_tag")
e(f"buffer_load_dwordx2 v[14:15], off, {sr(R_DBG,4)}, 0 sc1")
e(f"s_sub_u32 s{sSPIN}, s{sSPIN}, 1")
e(f"s_cmp_eq_u32 s{sSPIN}, 0")
e("s_cbranch_scc1 L_tag_done")
e("s_waitcnt vmcnt(0)")
e("v_cmp_eq_u32 vcc, 0, v14")
e("s_nop 0")
e("s_cmp_eq_u64 vcc, 0")
e("s_cbranch_scc0 L_tag")
lab("L_tag_done")
e("s_waitcnt vmcnt(0)")
e(f"v_mov_b32 v12, {MISC+C_TAG}")
e("ds_write_b64 v12, v[14:15]")
cm("report this workgroup's XCD id (tag | id)")
e(f"s_getreg_b32 s{sT2}, hwreg(HW_REG_XCC_ID, 0, 4)")
e(f"s_lshl_b32 s{sT1}, s2, 7")
e(f"s_add_u32 s{sT1}, s{sT1}, {FL_X}")
e(f"v_or_b32 v14, s{sT2}, v14")
e("s_mov_b64 exec, 1")
e(f"buffer_store_dwordx2 v[14:15], off, {sr(R_WS,4)}, s{sT1} sc1")
e("s_mov_b64 exec, -1")
import re
def ren(m):
    n = int(m.group(1)); return f"v{208+n}" if 3 <= n <= 15 else m.group(0)
def ren2(m):
    a, b = int(m.group(1)), int(m.group(2)); return f"v[{208+a}:{208+b}]" if 3 <= a <= 15 else m.group(0)
for k in range(KV0, len(L)):
    L[k] = re.sub(r"v\[(\d+):(\d+)\]", ren2, re.sub(r"\bv(\d+)\b", ren, L[k]))
e(f"s_mov_b32 s{sRET}, 0") if False else None
lab("L_tagged0")
e(f"s_mov_b32 s{sRET}, 0")
e("s_branch L_addr")
lab("L_tagged")
stamp(2)
tag_from_lds("L_tagx", 8)
cm("the weight region is reused only after the projection wave is done with it")
lds_wait("L_wkv", C_KV, 1, 8, sleep=opt['fs'])
cm("key tiles in rotated order (own XCD's tiles first); wave a covers tiles 8g + 2a, 8g + 2a + 1: flags 32g + 8a + (0..7)")
vCNT = 248
sKG, sKL, sKS, sKP = 97, 85, 88, 96
e(f"v_and_b32 v{ACC+2}, 7, v{vL}")
e(f"v_lshlrev_b32 v{ACC+2}, 7, v{ACC+2}")
e(f"s_lshl_b32 s{sKP}, s{sA}, 10")
e(f"s_add_u32 s{sKP}, s{sKP}, {FL_KV}")
e(f"s_lshl_b32 s{sT1}, s{sXCD}, 12")
e(f"s_add_u32 s{sT1}, s{sT1}, s{sKP}")
e(f"s_lshl_b32 s{sKL}, s{sA}, 12")
e(f"s_lshl_b32 s{sKG}, s{sXCD}, 14")
e("s_barrier                             ; B2")
stamp(16)
poll("L_pollK0", 1, ACC+2, 8, [sT1])
stamp(3)
def kvdma(G):
    e(f"s_add_u32 m0, s{sKL}, {16384*G}")
    e(f"s_add_u32 s{sKS}, s{sKG}, s{sKL}")
    for i in range(4): e(f"buffer_load_dwordx4 v2, {sr(R_WS,4)}, s{sKS} offen offset:{1024*i} sc1 lds")
    if G < 7:
        e(f"s_add_u32 s{sKG}, s{sKG}, 16384")
        e(f"s_and_b32 s{sKG}, s{sKG}, 0x1ffff")
kvdma(0)
e(f"s_cmp_eq_u32 s{sRET}, 1")
e("s_cbranch_scc0 L_addr_2")
lab("L_addr")
srd(R_SRE, P_SRE, 8388608)
srd(R_SIM, P_SIM, 8388608)
srd(R_XB, P_XB, 2097152)
srd(R_WO, P_WO, 524288)
srd(R_OUT, P_OUT, 4194304)
sT1S, sEB, sTT, sS2, sCB = 98, 99, 100, 101, 79
R_HRE, R_HIM = R_XA, R_W
e(f"s_and_b32 s{sT0}, s{sJ}, 3")
e(f"s_lshl_b32 s{sT1S}, s{sXCD}, 2")
e(f"s_add_u32 s{sT1S}, s{sT1S}, s{sT0}       ; t1s")
e(f"s_lshr_b32 s{sT0}, s{sJ}, 2")
e(f"s_lshl_b32 s{sT0}, s{sT0}, 1")
e(f"s_lshr_b32 s{sEB}, s{sA}, 1")
e(f"s_add_u32 s{sEB}, s{sEB}, s{sT0}         ; eb")
e(f"s_and_b32 s{sTT}, s{sA}, 1               ; tt")
e(f"s_and_b32 s{sT0}, s{sJ}, 3")
e(f"s_lshl_b32 s{sT0}, s{sT0}, 1")
e(f"s_lshl_b32 s{sS2}, s{sXCD}, 3")
e(f"s_add_u32 s{sS2}, s{sS2}, s{sT0}")
e(f"s_add_u32 s{sS2}, s{sS2}, s{sTT}         ; s2 = 8 xcd + 2 (j&3) + (a&1)")
e(f"s_mov_b32 s{sCB}, s{sEB}                 ; cb = 2 (j>>2) + (a>>1)")
srd(R_HRE, P_HRE, 524288)
srd(R_HIM, P_HIM, 524288)
e(f"v_and_b32 v3, 31, v{vL}                ; n")
e(f"v_lshrrev_b32 v4, 5, v{vL}             ; h")
e(f"s_lshl_b32 s{sT0}, s{sTT}, 5")
e(f"v_add_u32 v5, s{sT0}, v3")
e("v_lshlrev_b32 v5, 5, v5")
e(f"v_add_u32 v13, s{sT1S}, v5")
vG0, vG1, vRX, vRW = 240, 242, 244, 246
vDRE, vDIM = 251, 252
vB2A, vB2O, vHA, vWOD, vWOT, vOF, vOUT, vPH, vPK, vF = 4, 3, 15, 14, 0, 5, 6, 7, 12, 13
cm("B1 staging, loader side: wave a fills block a (0,1: x_B rows of s2, s2+1; 2,3: DFT rows of cb, cb+1),")
cm("16 rows x 64 B per load, row r -> rho = 8*bit2 + 4*bit3 + (r&3), 16-B chunk (l&3) ^ ((l>>4)&3)")
e(f"v_bfe_u32 v5, v{vL}, 2, 2")
e(f"v_bfe_u32 v6, v{vL}, 4, 1")
e("v_lshl_add_u32 v5, v6, 3, v5")
e("v_lshl_add_u32 v5, v4, 2, v5            ; rho")
e(f"v_lshrrev_b32 v6, 4, v{vL}")
e(f"v_xor_b32 v6, v6, v{vL}")
e("v_and_b32 v6, 3, v6")
e("v_lshlrev_b32 v6, 4, v6                 ; chunk * 16")
e(f"s_and_b32 s{sT0}, s{sS2}, -2")
e(f"s_add_u32 s{sT0}, s{sT0}, s{sA}")
e(f"s_lshl_b32 s{sT0}, s{sT0}, 10")
e(f"s_and_b32 s{sT1}, s{sCB}, -2")
e(f"s_add_u32 s{sT1}, s{sT1}, s{sTT}")
e(f"s_lshl_b32 s{sT1}, s{sT1}, 14")
e(f"s_add_u32 s{sT2}, s{sT0}, 0x100000")
e(f"s_cmp_lt_u32 s{sA}, 2")
e(f"s_cselect_b32 s{sT3}, 16, 10")
e(f"s_cselect_b32 s{sT0}, s{sT0}, s{sT1}")
e(f"s_cselect_b32 s{sT2}, s{sT2}, s{sT1}")
e(f"s_cselect_b64 {sr(sX,2)}, {sr(P_XB,2)}, {sr(P_HRE,2)}")
e(f"s_cselect_b64 {sr(sST,2)}, {sr(P_XB,2)}, {sr(P_HIM,2)}")
e(f"v_lshlrev_b32 v5, s{sT3}, v5")
e("v_add_u32 v5, v5, v6")
e(f"v_add_u32 v7, s{sT0}, v5")
e(f"v_mov_b32 v{vG0+1}, s{sX+1}")
e(f"v_add_co_u32 v{vG0}, vcc, s{sX}, v7")
e(f"v_add_u32 v7, s{sT2}, v5")
e(f"v_mov_b32 v{vG1+1}, s{sST+1}")
e(f"v_addc_co_u32 v{vG0+1}, vcc, 0, v{vG0+1}, vcc")
e(f"v_add_co_u32 v{vG1}, vcc, s{sST}, v7")
e(f"s_lshl_b32 s{sT1}, s{sT1}, 2")
e(f"s_add_u32 s{sT1}, s{sT1}, s{sA}")
e(f"v_addc_co_u32 v{vG1+1}, vcc, 0, v{vG1+1}, vcc")
e(f"s_cmp_eq_u32 s{sT1}, 2")
e("s_cbranch_scc0 L_nospec0")
cm("cb = 0: the im slot of e = 0 (lanes 0..3 of the second load) carries cos row 256")
e("s_mov_b64 exec, 15")
e("v_add_u32 v7, 0x40000, v6")
e(f"v_mov_b32 v{vG1+1}, s{P_HRE+1}")
e(f"v_add_co_u32 v{vG1}, vcc, s{P_HRE}, v7")
e("s_nop 1")
e(f"v_addc_co_u32 v{vG1+1}, vcc, 0, v{vG1+1}, vcc")
e("s_mov_b64 exec, -1")
lab("L_nospec0")
cm("reader side: row m, chunk (2s+h) ^ ((m>>2)&3)")
e("v_bfe_u32 v5, v3, 2, 2")
e("v_xor_b32 v5, v5, v4")
e("v_lshlrev_b32 v5, 4, v5")
e("v_lshl_add_u32 v5, v3, 6, v5")
e(f"s_lshl_b32 s{sT0}, s{sTT}, 11")
e(f"s_add_u32 s{sT0}, s{sT0}, {STG}")
e(f"v_add_u32 v{vRX}, s{sT0}, v5")
e(f"v_xor_b32 v{vRX+1}, 32, v{vRX}")
e(f"s_lshr_b32 s{sT0}, s{sA}, 1")
e(f"s_lshl_b32 s{sT0}, s{sT0}, 11")
e(f"s_add_u32 s{sT0}, s{sT0}, {STG + 4096}")
e(f"v_add_u32 v{vRW}, s{sT0}, v5")
e(f"v_xor_b32 v{vRW+1}, 32, v{vRW}")
vHW, vHW1, vHR, vHS = 250, 253, BUF, BUF + 1
cm("H regrouping: write row t1, chunk (2h+i) ^ ((t1>>2)&3); read lane-linear; store row l>>2, chunk (l&3) ^ ((l>>4)&3)")
e(f"s_lshl_b32 s{sT0}, s{sA}, 11")
e(f"s_add_u32 s{sT0}, s{sT0}, {STG}")
e("v_bfe_u32 v5, v3, 2, 2")
e("v_lshlrev_b32 v7, 1, v4")
e("v_xor_b32 v5, v5, v7")
e("v_lshlrev_b32 v5, 4, v5")
e("v_lshl_add_u32 v5, v3, 6, v5")
e(f"v_add_u32 v{vHW}, s{sT0}, v5")
e(f"v_xor_b32 v{vHW1}, 16, v{vHW}")
e(f"v_add_u32 v{BUF}, s{sT0}, v2")
e(f"v_lshrrev_b32 v5, 2, v{vL}")
e(f"v_mul_u32_u24 v5, {64*HROW}, v5")
e(f"v_add_u32 v{BUF+1}, v5, v6")
cm("e = 256 store address: t1*64*HROW")
e(f"v_mul_u32_u24 v8, {64*HROW}, v3")
e(f"v_lshl_add_u32 v{vHA}, v4, 5, v8")
cm("wo: DMA source offset and transposing read: row 8h+r, 16-B chunk 4cbk + 2(cc&1) + g, byte 8(cc>>1)")
e(f"v_lshrrev_b32 v8, 3, v{vL}")
e(f"v_and_b32 v9, 7, v{vL}")
e(f"v_bfe_u32 v10, v{vL}, 4, 1")
e("v_lshlrev_b32 v10, 2, v10")
e("v_xor_b32 v9, v9, v10")
e("v_lshlrev_b32 v9, 4, v9")
e(f"v_lshl_add_u32 v{vWOD}, v8, 10, v9")
e(f"v_bfe_u32 v9, v{vL}, 2, 2")
e("v_lshl_add_u32 v9, v4, 3, v9")
e("v_lshlrev_b32 v9, 7, v9")
e(f"v_and_b32 v10, 1, v{vL}")
e(f"v_bfe_u32 v11, v{vL}, 4, 1")
e("v_lshl_add_u32 v10, v10, 1, v11")
e(f"s_lshr_b32 s{sT0}, s{sA}, 1")
e(f"s_lshl_b32 s{sT0}, s{sT0}, 2")
e(f"v_add_u32 v10, s{sT0}, v10")
e(f"v_bfe_u32 v11, v{vL}, 3, 1")
e("v_lshlrev_b32 v11, 2, v11")
e("v_xor_b32 v10, v10, v11")
e("v_lshl_add_u32 v9, v10, 4, v9")
e(f"v_bfe_u32 v11, v{vL}, 1, 1")
e("v_lshl_add_u32 v9, v11, 3, v9")
e(f"v_add_u32 v{vWOT}, {STG}, v9")
cm("output projection: out offset, O fragment address")
e(f"s_lshl_b32 s{sT3}, s{sTB}, 1")
e(f"s_and_b32 s{sT4}, s{sA}, 1")
e(f"s_add_u32 s{sT3}, s{sT3}, s{sT4}")
e(f"s_lshl_b32 s{sT3}, s{sT3}, 5")
e(f"v_add_u32 v8, s{sT3}, v3")
e("v_lshlrev_b32 v8, 11, v8")
e(f"v_lshl_add_u32 v{vOUT}, v4, 5, v8")
e(f"s_lshl_b32 s{sT3}, s{sT4}, 15")
e(f"v_add_u32 v{vOF}, s{sT3}, v2")
e(f"v_lshlrev_b32 v{vPH}, 7, v{vL}")

cm("B2 A rows: e(m) = 32eb + col(m) (eb<8) or 512 - that; col(m) = 16*b2 + 4*(m>>3) + (m&3)")
e("v_and_b32 v8, 3, v3")
e("v_bfe_u32 v9, v3, 2, 1")
e("v_lshl_add_u32 v8, v9, 4, v8")
e("v_lshrrev_b32 v9, 3, v3")
e("v_lshl_add_u32 v8, v9, 2, v8")
e(f"s_lshl_b32 s{sT0}, s{sEB}, 5")
e(f"v_add_u32 v8, s{sT0}, v8")
e("v_sub_u32 v9, 0x200, v8")
e("v_sub_u32 v10, 0x800, v13")
e("v_and_b32 v10, 0x7ff, v10               ; (2048 - ts) & 2047")
e(f"s_cmp_lt_u32 s{sEB}, 8")
e("s_cselect_b64 vcc, 0, -1")
e("v_cndmask_b32 v8, v8, v9, vcc")
e("v_cndmask_b32 v11, v13, v10, vcc")
e("v_lshlrev_b32 v10, 12, v10")
e(f"v_lshl_add_u32 v{vDIM}, v4, 6, v10")
e("v_lshlrev_b32 v10, 12, v13")
e(f"v_lshl_add_u32 v{vDRE}, v4, 6, v10")
e("v_lshlrev_b32 v10, 18, v3")
e(f"v_lshl_add_u32 v{vF}, v4, 4, v10")
e(f"v_lshrrev_b32 v10, 3, v{vL}")
e("v_lshlrev_b32 v10, 5, v10")
e(f"v_and_b32 v9, 7, v{vL}")
e("v_add_u32 v10, v10, v9")
e(f"v_lshlrev_b32 v{vPK}, 7, v10             ; K/V flags 32g + (0..7)")
e("v_lshlrev_b32 v11, 11, v11")
e(f"v_lshl_add_u32 v{vB2O}, v4, 5, v11")
e(f"v_mul_u32_u24 v9, {32*HROW}, v4")
e(f"v_lshl_add_u32 v{vB2A}, v8, 2, v9")
e(f"s_cmp_eq_u32 s{sRET}, 0")
e(f"s_mov_b32 s{sRET}, 2")
e("s_cbranch_scc1 L_tagged")
lab("L_addr_2")
e(f"v_mov_b32 v{vCNT}, {MISC+C_G1}")
e(f"v_mov_b32 v{vCNT+1}, 1")
e("s_waitcnt vmcnt(0)")
stamp(18)
e("s_barrier")
poll("L_pollKV", 1, vPK, 8, [sKP], sleep=1)
stamp(4)
e("s_setprio 0")
LOW[0] = True
for G in range(1, 3): kvdma(G)
e("s_waitcnt vmcnt(4)")
e("s_mov_b64 exec, 1")
e(f"ds_add_u32 v{vCNT}, v{vCNT+1}")
e("s_mov_b64 exec, -1")
for G in range(3, 8): kvdma(G)
XF, WF = D1, D1 + 8
cm("pull this workgroup's 1/32 share of what its XCD reads for the spectral part and of wo towards L2")
e(f"s_lshl_b32 s{sT0}, s{sJ}, 13")
e(f"s_cmp_eq_u32 s{sA}, 1")
e("s_cbranch_scc1 L_pf1")
e(f"s_cmp_eq_u32 s{sA}, 2")
e("s_cbranch_scc1 L_pf2")
e(f"s_cmp_eq_u32 s{sA}, 3")
e("s_cbranch_scc1 L_pf3")
e(f"s_lshl_b32 s{sT0}, s{sJ}, 16")
e(f"s_lshl_b32 s{sT1}, s{sXCD}, 13")
e(f"s_add_u32 s{sT0}, s{sT0}, s{sT1}")
e(f"buffer_load_dword v{D2+8}, v{vPH}, {sr(R_XB,4)}, s{sT0} offen")
e("s_branch L_pf4")
lab("L_pf1")
e(f"buffer_load_dword v{D2+8}, v{vPH}, {sr(R_HRE,4)}, s{sT0} offen")
e("s_branch L_pf4")
lab("L_pf2")
e(f"buffer_load_dword v{D2+8}, v{vPH}, {sr(R_HIM,4)}, s{sT0} offen")
e("s_branch L_pf4")
lab("L_pf3")
e(f"s_lshl_b32 s{sT0}, s{sJ}, 14")
e(f"buffer_load_dword v{D2+8}, v{vPH}, {sr(R_WO,4)}, s{sT0} offen")
lab("L_pf4")
sSL, sWOS, sWOB = 30, 31, 96
e(f"s_lshl_b32 s{sSL}, s{sA}, 11")
e(f"s_add_u32 s{sSL}, s{sSL}, {STG}")
e(f"s_lshl_b32 s{sWOS}, s{sHG}, 7")
e(f"s_lshl_b32 s{sT1}, s{sA}, 14")
e(f"s_add_u32 s{sWOB}, s{sWOS}, s{sT1}")
e(f"s_lshr_b32 s{sT1}, s{sA}, 1")
e(f"s_lshl_b32 s{sT1}, s{sT1}, 6")
e(f"s_add_u32 s{sWOS}, s{sWOS}, s{sT1}")
VM = []
def st_dma(n):
    if n >= 24: return
    for i in range(2):
        if n < 16:
            e(f"s_add_u32 m0, s{sSL}, {8192*(n%3) + 1024*i - 64*n}")
            e("s_nop 0")
            e(f"global_load_lds_dwordx4 {vr(vG0 + 2*i, 2)}, off offset:{64*n}" if not opt['abl'] & 2 else "s_nop 0")
        else:
            e(f"s_add_u32 m0, s{sSL}, {8192*(n%3) + 1024*i}")
            e(f"s_add_u32 s{sT1}, s{sWOB}, {65536*(n-16) + 8192*i}")
            e(f"buffer_load_dwordx4 v{vWOD}, {sr(R_WO,4)}, s{sT1} offen lds")
        VM.append(('st', n))
def st_sync(n, between=None):
    last = max(k for k, t in enumerate(VM) if t == ('st', n))
    e(f"s_waitcnt vmcnt({len(VM) - 1 - last}) lgkmcnt(0)")
    e("s_mov_b64 exec, 1")
    e(f"ds_add_u32 v{vCNT}, v{vCNT+1} offset:{C_ST - C_G1}")
    e("s_mov_b64 exec, -1")
    if between: between()
    e(f"s_mov_b32 s{sSPIN}, {SPIN*8}")
    lab(f"L_st{n}")
    e(f"ds_read_b32 v8, v{vCNT} offset:{C_ST - C_G1}")
    e(f"s_sub_u32 s{sSPIN}, s{sSPIN}, 1")
    e(f"s_cbranch_scc1 L_st{n}_done")
    e("s_waitcnt lgkmcnt(0)")
    if (opt['sp'] if n < 16 else opt['spw']): e("s_setprio 2")
    e(f"v_readfirstlane_b32 s{sT4}, v8")
    e("s_setprio 0")
    e(f"s_cmp_ge_u32 s{sT4}, {4*(n+1 - (16 if opt['nob'] else 0))}")
    if opt['ss']:
        e(f"s_cbranch_scc1 L_st{n}_done")
        e(f"s_sleep {opt['ss']}")
        e(f"s_branch L_st{n}")
    else: e(f"s_cbranch_scc0 L_st{n}")
    lab(f"L_st{n}_done")
if not opt['nob']: st_dma(0); st_dma(1)
stamp(17)
e("s_waitcnt vmcnt(5)                    ; younger: one pull, two stages" if not opt['nob'] else "s_waitcnt vmcnt(0)")
e("s_mov_b64 exec, 1")
e(f"ds_add_u32 v{vCNT}, v{vCNT+1} offset:4")
e("s_mov_b64 exec, -1")
e(f"s_cmp_eq_u32 s{sA}, 3")
e("s_cbranch_scc0 L_pf5")
e(f"s_add_u32 s{sT0}, s{sT0}, 8192")
e(f"buffer_load_dword v{D2+9}, v{vPH}, {sr(R_WO,4)}, s{sT0} offen     ; not counted below: only makes waits stricter")
lab("L_pf5")
stamp(21)
RAW = BP
def b1mfma(n):
    for s_ in range(2 if not opt['nomf'] else 0):
        e(f"v_mfma_f32_32x32x16_bf16 {vr(ACC,16)}, {vr(XF+4*s_,4)}, {vr(WF+4*s_,4)}, {'0' if n==0 and s_==0 else vr(ACC,16)}")
if opt['nob']:
    e("s_branch L_nob1")
NOB0 = len(L)
for n in range(16 if not opt['nob'] else 0):
    st_sync(n, (lambda: b1mfma(n - 1)) if n else None)
    if n + 2 < 16: st_dma(n + 2)
    for s_ in range(2 if not opt['abl'] & 1 else 0):
        e(f"ds_read_b128 {vr(XF+4*s_,4)}, v{vRX+s_} offset:{8192*(n%3)}")
        e(f"ds_read_b128 {vr(WF+4*s_,4)}, v{vRW+s_} offset:{8192*(n%3)}")
    if n == opt['fst']:
        for kb in range(2): e(f"buffer_load_dwordx4 {vr(FR+4*kb,4)}, v{vF}, {sr(R_SRE,4)}, 0 offen offset:{32*kb}")
        for kb in range(2): e(f"buffer_load_dwordx4 {vr(FR+8+4*kb,4)}, v{vF}, {sr(R_SIM,4)}, 0 offen offset:{32*kb}")
        VM += [('F', 0)]*4
e("s_waitcnt lgkmcnt(0)")
b1mfma(15)
stamp(22)
e(f"s_mul_i32 s{sT0}, s{sS2}, {HROW}")
e(f"s_lshl_b32 s{sT1}, s{sCB}, 6")
e(f"s_add_u32 s{sT0}, s{sT0}, s{sT1}")
e(f"s_add_u32 s{sT0}, s{sT0}, {WS_H}")
nop(7)
vZ = D2 + 8 if False else BP
def boost(on):
    e(f"s_setprio {2 if on else 0}"); LOW[0] = not on
boost(opt['eb'] & 1)
for i in range(8): e(f"v_cvt_pk_bf16_f32 v{vZ+i}, v{ACC+2*i}, v{ACC+2*i+1}")
boost(0)
nop(1)
e(f"v_mfma_f32_32x32x16_bf16 {vr(D1,16)}, {vr(vZ,4)}, {vr(FR,4)}, 0")
e(f"v_mfma_f32_32x32x16_bf16 {vr(D2,16)}, {vr(vZ,4)}, {vr(FR+8,4)}, 0")
e(f"v_mfma_f32_32x32x16_bf16 {vr(D1,16)}, {vr(vZ+4,4)}, {vr(FR+4,4)}, {vr(D1,16)}")
e(f"v_mfma_f32_32x32x16_bf16 {vr(D2,16)}, {vr(vZ+4,4)}, {vr(FR+12,4)}, {vr(D2,16)}")
nop(11)
boost(1)
for r in range(8):
    e(f"v_sub_f32 v{ACC+r}, v{D1+r}, v{D2+8+r}")
    e(f"v_add_f32 v{ACC+8+r}, v{D2+r}, v{D1+8+r}")
e(f"s_cmp_eq_u32 s{sCB}, 0")
e("s_cbranch_scc0 L_nospecial")
cm("columns e = 0 and e = 256 (both purely real rows): lanes 0..31, register 0")
e("s_mov_b32 exec_hi, 0")
e(f"v_mov_b32 v{ACC}, v{D1}")
e(f"v_mov_b32 v{ACC+8}, v{D2}")
e(f"v_cvt_pk_bf16_f32 v8, v{D1+8}, v{D2+8}")
e(f"buffer_store_dword v8, v{vHA}, {sr(R_WS,4)}, s{sT0} offen offset:1024 sc1")
e("s_mov_b64 exec, -1")
lab("L_nospecial")
for r in range(8): e(f"v_cvt_pk_bf16_f32 v{D1+r}, v{ACC+r}, v{ACC+8+r}")
boost(0)
cm("lane (t1, h) holds 32 B of row t1: regroup through LDS so that 4 adjacent lanes store one 64-B run")
e(f"ds_write_b128 v{vHW}, {vr(D1,4)} offset:8192")
e(f"ds_write_b128 v{vHW1}, {vr(D1+4,4)} offset:8192")
e("s_waitcnt lgkmcnt(0)")
e(f"ds_read_b128 {vr(D1+8,4)}, v{vHR} offset:8192")
e(f"ds_read_b128 {vr(D1+12,4)}, v{vHR} offset:9216")
e(f"s_add_u32 s{sT1}, s{sT0}, {16*64*HROW}")
e("s_waitcnt lgkmcnt(0)")
e(f"buffer_store_dwordx4 {vr(D1+8,4)}, v{vHS}, {sr(R_WS,4)}, s{sT0} offen sc1")
e(f"buffer_store_dwordx4 {vr(D1+12,4)}, v{vHS}, {sr(R_WS,4)}, s{sT1} offen sc1")
if opt['nob']: lab("L_nob1")
if not opt['nowo']: st_dma(16); st_dma(17)
if opt['nob']: e("s_branch L_nob2")
def rawloads():
    global VM
    cm("rows of the sequence DFT matrices for B2")
    for i in range(4): e(f"buffer_load_dwordx4 {vr(RAW+4*i,4)}, v{vDRE}, {sr(R_SRE,4)}, 0 offen offset:{16*i}")
    for i in range(4): e(f"buffer_load_dwordx4 {vr(RAW+16+4*i,4)}, v{vDIM}, {sr(R_SIM,4)}, 0 offen offset:{16*i}")
    VM += [('raw', 0)]*8
if not opt['rawlate']: rawloads()
e(f"s_lshl_b32 s{sT1}, s2, 7")
e(f"s_add_u32 s{sT1}, s{sT1}, {FL_H}")
stamp(19)
e(f"s_waitcnt vmcnt({4 if opt['rawlate'] else 12})")
stamp(20)
boost(1)
signal("L_sigH", C_H, 3, sT1, 8)
stamp(5)
def bploc(o): return FR + o if o < 16 else (RAW + o - 16 if o < 24 else RAW + 16 + o - 24)
def perms():
    e(f"s_mov_b32 s{sT2}, 0x05040100")
    e(f"s_mov_b32 s{sT3}, 0x07060302")
    for i in range(16):
        e(f"v_perm_b32 v{bploc(2*i)}, v{RAW+16+i}, v{RAW+i}, s{sT2}")
        e(f"v_perm_b32 v{bploc(2*i+1)}, v{RAW+16+i}, v{RAW+i}, s{sT3}")
if not opt['b2tail']: perms()
boost(0)
if opt['rawlate'] and not opt['abl'] & 4: rawloads()
if opt['nob']: lab("L_nob2")
def wo_stage(n):
    if opt['nowo']: return
    st_sync(n)
    st_dma(n + 2)
    for k in range(4):
        ks = 4*(n - 16) + k
        e(f"ds_read_b64_tr_b16 {vr(BUF+4*ks,2)}, v{vWOT} offset:{8192*(n%3) + 2048*k}")
        e(f"ds_read_b64_tr_b16 {vr(BUF+4*ks+2,2)}, v{vWOT} offset:{8192*(n%3) + 2048*k + 512}")
for n in range(16, 16 + opt['wsplit']): wo_stage(n)
stamp(6)
boost(1)
if opt['pre']:
    cm("aux wave 2 touches the O lines this workgroup will write and the 8 flags of its token block")
    e(f"s_cmp_eq_u32 s{sA}, 2")
    e("s_cbranch_scc0 L_nopre")
    e(f"v_lshrrev_b32 v8, 5, v{vL}")
    e(f"v_and_b32 v9, 31, v{vL}")
    e("v_lshlrev_b32 v9, 7, v9")
    e("v_lshl_add_u32 v8, v8, 15, v9")
    e(f"s_lshl_b32 s{sT0}, s{sTB}, 16")
    e(f"s_lshl_b32 s{sT1}, s{sHG}, 12")
    e(f"s_add_u32 s{sT0}, s{sT0}, s{sT1}")
    e(f"s_add_u32 s{sT0}, s{sT0}, {WS_O}")
    e(f"buffer_load_dword v10, v8, {sr(R_WS,4)}, s{sT0} offen sc1")
    e(f"v_and_b32 v9, 0xf80, v{vPH}")
    e(f"s_lshl_b32 s{sT0}, s{sTB}, 12")
    e(f"s_add_u32 s{sT0}, s{sT0}, {FL_O}")
    e(f"buffer_load_dword v11, v9, {sr(R_WS,4)}, s{sT0} offen sc1")
    e("s_waitcnt vmcnt(0)")
    lab("L_nopre")
cm("aux wave 1: XCD ids of the 8 workgroups of this token block: ids 32*hg + (id & 31)")
e(f"s_cmp_eq_u32 s{sA}, 1")
e("s_cbranch_scc0 L_nosame")
e(f"v_and_b32 v8, 7, v{vL}")
e("v_lshlrev_b32 v8, 12, v8")
e(f"s_and_b32 s{sT0}, s2, 31")
e(f"s_lshl_b32 s{sT0}, s{sT0}, 7")
e(f"s_add_u32 s{sT0}, s{sT0}, {FL_X}")
e(f"buffer_load_dwordx2 v[10:11], v8, {sr(R_WS,4)}, s{sT0} offen sc1")
e(f"s_getreg_b32 s{sX}, hwreg(HW_REG_XCC_ID, 0, 4)")
e(f"s_or_b32 s{sX}, s{sX}, s{sNON}")
e(f"s_mov_b32 s{sX+1}, s{sNON+1}")
e(f"v_mov_b32 v9, {MISC+C_SAME}")
e("s_waitcnt vmcnt(0)")
e(f"v_cmp_ne_u64 vcc, {sr(sX,2)}, v[10:11]")
e("s_nop 0")
e("s_cmp_eq_u64 vcc, 0")
e(f"s_cselect_b32 s{sT0}, {1 if opt['fast'] else 0}, 0")
e(f"v_mov_b32 v11, s{sT0}")
e("ds_write_b32 v9, v11")
lab("L_nosame")
if opt['nob'] or opt['abl'] & 4: e("s_branch L_b2done")
cm("B2: wait for the H rows it reads: column groups ebg (direct) or 7-ebg and (8-ebg)&3 (mirrored)")
e(f"s_cmp_eq_u32 s{sA}, 0")
e("s_cbranch_scc0 L_hwait")
e(f"s_lshr_b32 s{sT2}, s{sJ}, 2              ; ebg")
e(f"s_sub_u32 s{sT0}, 7, s{sT2}")
e(f"s_sub_u32 s{sT1}, 8, s{sT2}")
e(f"s_and_b32 s{sT1}, s{sT1}, 3")
e(f"s_cmp_lt_u32 s{sT2}, 4")
e(f"s_cselect_b32 s{sT0}, s{sT2}, s{sT0}")
e(f"s_cselect_b32 s{sT1}, s{sT2}, s{sT1}")
e(f"s_lshl_b32 s{sT0}, s{sT0}, 13")
e(f"s_lshl_b32 s{sT1}, s{sT1}, 13")
e(f"s_add_u32 s{sT0}, s{sT0}, {FL_H}")
e(f"s_add_u32 s{sT1}, s{sT1}, {FL_H}")
poll("L_pollH", 2, vPH, 8, [sT0, sT1], sleep=8)
e(f"v_mov_b32 v10, {MISC+C_HOK}")
e("v_mov_b32 v11, 1")
e("ds_write_b32 v10, v11")
e("s_branch L_hok")
lab("L_hwait")
lds_wait("L_hw", C_HOK, 1, 10, sleep=8)
lab("L_hok")
boost(0)
stamp(7)
e(f"s_mul_i32 s{sT0}, s{sT1S}, {64*HROW}")
e(f"s_add_u32 s{sT0}, s{sT0}, {WS_H}")
AF = 208
for kb in range(8):
    for w in range(4): e(f"buffer_load_dword v{AF+4*kb+w}, v{vB2A}, {sr(R_WS,4)}, s{sT0} offen offset:{w*HROW} sc1")
    if kb < 7: e(f"s_add_u32 s{sT0}, s{sT0}, {4*HROW}")
VM += [('A', 0)]*32
sB2 = 88
def b2compute(low):
    e(f"s_lshl_b32 s{sB2}, s{sEB}, 6")
    e(f"s_add_u32 s{sB2}, s{sB2}, 1024")
    for kb in range(8):
        if low: e(f"s_waitcnt vmcnt({28-4*kb})")
        e(f"v_mfma_f32_32x32x16_bf16 {vr(ACC,16)}, {vr(AF+4*kb,4)}, {vr(bploc(4*kb),4)}, {'0' if kb==0 else vr(ACC,16)}")
    nop(11 if low else 12)
    if low: boost(1)
    for i in range(8): e(f"v_cvt_pk_bf16_f32 v{AF+8+i}, v{ACC+2*i}, v{ACC+2*i+1}")
    if low: b2store()
def b2store():
    e(f"buffer_store_dwordx4 {vr(AF+8,4)}, v{vB2O}, {sr(R_OUT,4)}, s{sB2} offen{OSC}")
    e(f"buffer_store_dwordx4 {vr(AF+12,4)}, v{vB2O}, {sr(R_OUT,4)}, s{sB2} offen offset:16{OSC}")
if not opt['b2tail']: b2compute(True)
lab("L_b2done")
boost(0)
stamp(8)
for n in range(16 + opt['wsplit'], 24): wo_stage(n)
e("s_waitcnt vmcnt(0) lgkmcnt(0)")
stamp(10)
warm("L_padt", "L_pado_ret")
cm("tail: the attention waves bring the O tile -> LDS 0..")
e("s_barrier                             ; B7")
LOW[0] = False
stamp(9)
if opt['b2tail'] and not opt['nob'] and not opt['abl'] & 4:
    cm("second spectral stage: operands are in registers, the matrix pipe is free until the O tile lands")
    perms()
    b2compute(False)
e(f"s_mov_b32 s{sT0}, s{sWOS}")
stamp(11)
e("s_barrier                             ; B8a")
pad_begin("L_pado")
OF = 144
korder = [h for st in range(4) for h in range(32) if (h % 8) // 2 == st]
PD = opt['opd']
def ofrag(n): e(f"ds_read_b128 {vr(OF+4*(n%8),4)}, v{vOF} offset:{1024*korder[n]}")
for n in range(PD): ofrag(n)
if opt['b2at'] == 0 and opt['b2tail'] and not opt['nob'] and not opt['abl'] & 4: b2store()
for n in range(32):
    if n + PD in (8, 16, 24):
        e(f"s_barrier                             ; B8.{(n+PD)//8}")
        if n + PD == opt['b2at'] and opt['b2tail'] and not opt['nob'] and not opt['abl'] & 4: b2store()
    if n + PD < 32:
        ofrag(n + PD)
        e(f"s_waitcnt lgkmcnt({PD})")
    else:
        e(f"s_waitcnt lgkmcnt({31-n})")
    e(f"v_mfma_f32_32x32x16_bf16 {vr(ACC,16)}, {vr(BUF+4*korder[n],4)}, {vr(OF+4*(n%8),4)}, {'0' if n==0 else vr(ACC,16)}")
nop(12)
for i in range(8): e(f"v_cvt_pk_bf16_f32 v{D1+i}, v{ACC+2*i}, v{ACC+2*i+1}")
e(f"buffer_store_dwordx4 {vr(D1,4)}, v{vOUT}, {sr(R_OUT,4)}, s{sT0} offen{OSC}")
e(f"buffer_store_dwordx4 {vr(D1+4,4)}, v{vOUT}, {sr(R_OUT,4)}, s{sT0} offen offset:16{OSC}")
pad_end("L_pado", "L_pado_ret")
if opt['dbgt']:
    e(f"s_cmp_lt_u32 s2, 6")
    e("s_cbranch_scc0 L_end")
    e(f"s_cmp_eq_u32 s{sW}, 4")
    e("s_cbranch_scc0 L_end")
    e("s_waitcnt vmcnt(0)")
    e(f"s_memrealtime {sr(sST,2)}")
    e("s_waitcnt lgkmcnt(0)")
    e(f"v_mov_b32 v4, s{sST}")
    e(f"s_lshl_b32 s{sT0}, s2, 2")
    e(f"s_add_u32 s{sT0}, s{sT0}, 40")
    e("s_mov_b64 exec, 1")
    e(f"buffer_store_dword v4, off, {sr(R_DBG,4)}, s{sT0}")
if opt['endat']:
    lab("L_endat")
    e(f"s_memrealtime {sr(sX,2)}")
    e("s_waitcnt lgkmcnt(0)")
    e(f"s_sub_u32 s{sX}, s{sX}, s30")
    e(f"s_cmp_lt_u32 s{sX}, {opt['endat']}")
    e("s_cbranch_scc1 L_endat")
stamp(12)
if opt['stamps']: e("s_waitcnt vmcnt(0)")
stamp(13)
stamp_dump()
lab("L_end")
e("s_endpgm")
lab("L_codeend")
L.append(f""".section .rodata,"a"
.p2align 6
.amdhsa_kernel {NAME}_kernel
  .amdhsa_next_free_vgpr 256
  .amdhsa_next_free_sgpr 102
  .amdhsa_accum_offset 256
  .amdhsa_group_segment_fixed_size 0
  .amdhsa_kernarg_size 104
  .amdhsa_user_sgpr_count 2
  .amdhsa_user_sgpr_kernarg_segment_ptr 1
  .amdhsa_system_sgpr_workgroup_id_x 1
.end_amdhsa_kernel""")

def finish(lines, ncode):
    out = []
    for l in lines:
        if l.strip() == "CODEPF":
            for i in range(ncode // 8192):
                out.append(f"    global_load_dword v200, v[212:213], off")
                out.append(f"    v_add_co_u32 v212, vcc, 0x2000, v212")
                out.append(f"    s_nop 1")
                out.append(f"    v_addc_co_u32 v213, vcc, 0, v213, vcc")
            rem = (ncode % 8192) // 128
            if rem:
                out.append(f"    v_cmp_gt_u32 vcc, {rem}, v{vL}")
                out.append(f"    s_nop 0")
                out.append(f"    s_and_saveexec_b64 {sr(sX,2)}, vcc")
                out.append(f"    global_load_dword v200, v[212:213], off")
                out.append(f"    s_mov_b64 exec, -1")
        else: out.append(l)
    return "\n".join(out) + "\n"
import subprocess, os, hazcheck
ncode = 16384
for _ in range(3):
    txt = finish(L, ncode)
    open("_g.s", "w").write(txt)
    r = subprocess.run(["clang", "-x", "assembler", "-target", "amdgcn-amd-amdhsa", "-mcpu=gfx950", "-c", "_g.s", "-o", "_g.o"], capture_output=True, text=True)
    if r.returncode: print(r.stderr[:3000]); sys.exit(1)
    sz = subprocess.run(["llvm-objdump", "-h", "_g.o"], capture_output=True, text=True).stdout
    n = [int(x.split()[2], 16) for x in sz.splitlines() if " .text " in x][0]
    if n // 128 * 128 == ncode: break
    ncode = n // 128 * 128
open(sys.argv[1], "w").write(txt)
print(hazcheck.check(txt), "hazards; code bytes", n)
```

```python
import sys, struct
NAME = "concat_heads__grouped_kv_mqa__spectral_fnet__prompt"
opt = dict(stamps=0, prioA=1, prioX=2, boost=1, force_fb=0, dbgt=0, dry=0, codepf=0, shift=102, outsc1=0, cluster=1, fast=1, nob=0, l2pf=0, wo1=4, hold=1, pre=1, pads=0, dxcc=-1, dus=300, endat=0, omode=1, b2tail=1, kvd=3, h1=1, h2=4, fs=3, ntc=9, nowo=0, nodsw=0, nomf=0, sp=1, ss=1, wsplit=8, attpf=0, rawlate=1, dftpf=1, fst=6, spw=0, eb=1, qloop=0, padt=0, opd=4, b2at=8, abl=0, preo=0, rg=0, prepoll=0, lwarm=0, csync=0, bytef=0, first=1, b2s=0, mt=1)
for a in sys.argv[2:]:
    k, v = a.split('='); opt[k] = int(v)

L = []
def e(s=""): L.append("    " + s)
def lab(s): L.append(s + ":")
def cm(s): L.append("    ; " + s)
def vr(a, n): return f"v[{a}:{a+n-1}]" if n > 1 else f"v{a}"
def sr(a, n): return f"s[{a}:{a+n-1}]" if n > 1 else f"s{a}"
def nop(n):
    while n > 0:
        k = min(n, 16); e(f"s_nop {k-1}"); n -= k
def f2u(x): return struct.unpack('<I', struct.pack('<f', x))[0]
OSC = " sc1" if opt['outsc1'] else ""

W_OFF = 0
X_OFF, XROW = 16384, 1040
WQ_OFF = 82944
ONES_OFF = 155648
MISC = ONES_OFF + 1024
STG = 131072
LDS_BYTES = 163840
C_KV, C_H, C_O, C_TAG, C_HOK, C_SAME, C_CR, C_QA, C_QB, C_G1, C_KVL, C_ST = 0, 4, 8, 16, 24, 28, 32, 36, 40, 44, 48, 52
WS_KV, WS_O, WS_H, WS_FL = 0, 0x40000, 0x240000, 0x480000
FL_KV, FL_H, FL_X, FL_O = WS_FL, WS_FL + 0x8000, WS_FL + 0x10000, WS_FL + 0x20000
WS_STAMP = 0x4C0000
WS_SIZE = 0x560000
HROW = 1152
FOUR = 0x01010101 if opt['bytef'] else 4
SPIN = 400000
VSCALE = 64
P_XA, P_WQ, P_WK, P_WV, P_WO, P_XB, P_SRE, P_SIM = 4, 6, 8, 10, 12, 14, 16, 18
P_HRE, P_HIM, P_OUT, P_DBG, P_WS = 20, 22, 24, 26, 28
R_XA, R_WQ, R_W, R_WS, R_WO, R_XB, R_SRE, R_SIM, R_OUT, R_DBG = 32, 36, 40, 44, 48, 52, 56, 60, 64, 68
sW, sXCD, sJ, sTB, sHG, sTHP, sA = 72, 73, 74, 75, 76, 77, 78
sT0, sT1, sT2, sT3, sT4 = 80, 81, 82, 83, 84
sDRY = 85
sNON = 86
sIT, sINC, sFB, sSPIN = 88, 89, 90, 91
sX = 92
sST = 94
sBARN = 96
sRET = 90

def srd(r, p, size):
    e(f"s_mov_b32 s{r}, s{p}")
    e(f"s_and_b32 s{r+1}, s{p+1}, 0xffff")
    e(f"s_mov_b32 s{r+2}, {hex(size)}")
    e(f"s_mov_b32 s{r+3}, 0x20000")

LOW = [False]
vL = 1
def stamp(idx):
    if not opt['stamps']: return
    e(f"s_memrealtime {sr(sST,2)}")
    e(f"s_memtime {sr(sX,2)}")
    e("s_waitcnt lgkmcnt(0)")
    if LOW[0]: e("s_setprio 2")
    e(f"v_writelane_b32 v254, s{sST}, {idx}")
    e(f"v_writelane_b32 v255, s{sX}, {idx}")
    if LOW[0]: e("s_setprio 0")
def stamp_dump():
    if not opt['stamps']: return
    e(f"s_lshl_b32 s{sST}, s2, 3")
    e(f"s_add_u32 s{sST}, s{sST}, s{sW}")
    e(f"s_lshl_b32 s{sST}, s{sST}, 8")
    e(f"s_add_u32 s{sST}, s{sST}, {WS_STAMP}")
    e(f"v_lshlrev_b32 v253, 3, v{vL}")
    e("s_mov_b32 exec_hi, 0")
    e(f"buffer_store_dwordx2 v[254:255], v253, {sr(R_WS,4)}, s{sST} offen")

PADS = {}
def pad_begin(name): PADS[name] = len(L)
def isize(l):
    t = l.strip()
    if not t or t.startswith((';', '.')) or t.endswith(':'): return 0
    t = t.split(';')[0]
    mn = t.split()[0]
    if mn.startswith(('buffer_', 'global_', 'ds_', 'v_mfma', 'v_smfmac', 's_load', 's_mem')): return 8
    if mn.startswith('v_') and (mn.endswith('_e64') or mn in ('v_lshl_add_u32', 'v_bfe_u32', 'v_perm_b32', 'v_max3_f32', 'v_cvt_pk_bf16_f32', 'v_writelane_b32', 'v_mul_u32_u24', 'v_cmp_ne_u64')): return 8
    import re as _r
    for o in _r.findall(r'(?<![\w\[:])(-?0x[0-9a-f]+|-?\d+)(?![\w\]:])', (t.split(None, 1) + [''])[1]):
        v = int(o, 0)
        if not mn.startswith(('s_waitcnt', 's_nop', 's_sleep', 's_setprio')) and not -16 <= v <= 64: return 8
    return 4
def pad_end(name, ret):
    a = PADS[name]
    if not (opt['pads'] if name == "L_padq" else opt['padt']):
        L.insert(a, f"{name}_0:"); L.insert(a + 1, f"    s_cbranch_execz {ret}"); return
    body = L[a:]; del L[a:]
    n = 0; acc = 0
    L.append(f"{name}_0:"); L.append(f"    s_cbranch_execz {name}_1")
    for l in body:
        z = isize(l)
        prev = L[-1].strip()
        if acc + z > 56 and not prev.startswith(('s_mov_b32 m0', 's_add_u32 m0')):
            n += 1; L.append(f"{name}_{n}:"); L.append(f"    s_cbranch_execz {name}_{n+1}"); acc = 0
        L.append(l); acc += z
    n += 1
    L.append(f"{name}_{n}:"); L.append(f"    s_cbranch_execz {ret}")
def warm(name, ret):
    e("s_mov_b64 exec, 0")
    e(f"s_branch {name}_0")
    lab(ret)
    e("s_mov_b64 exec, -1")

def dma(voff, srdr, soff, ldsaddr_s, extra=""):
    e(f"s_mov_b32 m0, s{ldsaddr_s}")
    e("s_nop 0")
    e(f"buffer_load_dwordx4 v{voff}, {sr(srdr,4)}, s{soff} offen {extra}lds")
def dma_run(n, voff, srdr, soff, lds_s, dsrc, dlds, extra=""):
    for i in range(n):
        e(f"s_mov_b32 m0, s{lds_s}")
        if i < n - 1: e(f"s_add_u32 s{lds_s}, s{lds_s}, {dlds}")
        else: e("s_nop 0")
        e(f"buffer_load_dwordx4 v{voff}, {sr(srdr,4)}, s{soff} offen {extra}lds")
        if i < n - 1: e(f"s_add_u32 s{soff}, s{soff}, {dsrc}")

def poll(name, nloads, voff, dst, soffs, sleep=0):
    e(f"s_mov_b32 s{sSPIN}, {SPIN}")
    lab(name)
    for i in range(nloads):
        e(f"buffer_load_dwordx2 {vr(dst+2*i,2)}, v{voff}, {sr(R_WS,4)}, s{soffs[i]} offen sc1")
    e(f"s_sub_u32 s{sSPIN}, s{sSPIN}, 1")
    e(f"s_cmp_eq_u32 s{sSPIN}, 0")
    e(f"s_cbranch_scc1 {name}_done")
    e("s_waitcnt vmcnt(0)")
    e(f"v_cmp_ne_u64 vcc, {sr(sNON,2)}, {vr(dst,2)}")
    for i in range(1, nloads):
        e(f"v_cmp_ne_u64 {sr(sX,2)}, {sr(sNON,2)}, {vr(dst+2*i,2)}")
        e("s_nop 0")
        e(f"s_or_b64 vcc, vcc, {sr(sX,2)}")
    e("s_nop 0")
    e("s_cmp_eq_u64 vcc, 0")
    if sleep:
        e(f"s_cbranch_scc1 {name}_done")
        e(f"s_sleep {sleep}")
        e(f"s_branch {name}")
    else:
        e(f"s_cbranch_scc0 {name}")
    lab(name + "_done")
    e("s_waitcnt vmcnt(0)")

def lds_wait(name, off, value, tmp, sleep=0):
    e(f"s_mov_b32 s{sSPIN}, {SPIN*8}")
    e(f"v_mov_b32 v{tmp}, {MISC + off}")
    lab(name)
    e(f"ds_read_b32 v{tmp+1}, v{tmp}")
    e(f"s_sub_u32 s{sSPIN}, s{sSPIN}, 1")
    e(f"s_cmp_eq_u32 s{sSPIN}, 0")
    e(f"s_cbranch_scc1 {name}_done")
    e("s_waitcnt lgkmcnt(0)")
    e(f"v_readfirstlane_b32 s{sT4}, v{tmp+1}")
    e("s_nop 0")
    e(f"s_cmp_ge_u32 s{sT4}, {value}")
    if sleep:
        e(f"s_cbranch_scc1 {name}_done")
        e(f"s_sleep {sleep}")
        e(f"s_branch {name}")
    else:
        e(f"s_cbranch_scc0 {name}")
    lab(name + "_done")
    e("s_waitcnt lgkmcnt(0)")
def lds_add(off, tmp):
    e(f"v_mov_b32 v{tmp}, {MISC + off}")
    e(f"v_mov_b32 v{tmp+1}, 1")
    e("s_mov_b64 exec, 1")
    e(f"ds_add_u32 v{tmp}, v{tmp+1}")
    e("s_mov_b64 exec, -1")
def tag_from_lds(name, tmp):
    e(f"s_mov_b32 s{sSPIN}, {SPIN*8}")
    e(f"v_mov_b32 v{tmp}, {MISC+C_TAG}")
    lab(name)
    e(f"ds_read_b64 {vr(tmp+2,2)}, v{tmp}")
    e(f"s_sub_u32 s{sSPIN}, s{sSPIN}, 1")
    e(f"s_cmp_eq_u32 s{sSPIN}, 0")
    e(f"s_cbranch_scc1 {name}_done")
    e("s_waitcnt lgkmcnt(0)")
    e(f"v_readfirstlane_b32 s{sNON}, v{tmp+2}")
    e(f"v_readfirstlane_b32 s{sNON+1}, v{tmp+3}")
    e(f"s_cmp_lg_u32 s{sNON}, 0")
    e(f"s_cbranch_scc1 {name}_done")
    e(f"s_sleep {opt['fs']}")
    e(f"s_branch {name}")
    lab(name + "_done")
    e("s_waitcnt lgkmcnt(0)")

def signal(name, ctr_off, last, flag_soff_s, tmp, lo=None, plain_if=None):
    e(f"v_mov_b32 v{tmp}, {MISC + ctr_off}")
    e(f"v_mov_b32 v{tmp+1}, 1")
    e(f"s_mov_b64 exec, 1")
    e(f"ds_add_rtn_u32 v{tmp+1}, v{tmp}, v{tmp+1}")
    e(f"v_mov_b32 v{tmp+2}, s{sNON if lo is None else lo}")
    e(f"v_mov_b32 v{tmp+3}, s{sNON+1}")
    e("s_waitcnt lgkmcnt(0)")
    e(f"v_readfirstlane_b32 s{sT4}, v{tmp+1}")
    e("s_nop 0")
    e(f"s_cmp_eq_u32 s{sT4}, {last}")
    e(f"s_cbranch_scc0 {name}_nf")
    if plain_if is not None:
        e(f"s_cmp_eq_u32 s{plain_if}, 0")
        e(f"s_cbranch_scc1 {name}_wt")
        e(f"buffer_store_dwordx2 {vr(tmp+2,2)}, off, {sr(R_WS,4)}, s{flag_soff_s}")
        if opt['omode'] < 2: e(f"s_branch {name}_nf")
        lab(name + "_wt")
    e(f"buffer_store_dwordx2 {vr(tmp+2,2)}, off, {sr(R_WS,4)}, s{flag_soff_s} sc1")
    lab(name + "_nf")
    e("s_mov_b64 exec, -1")

hdr = open(f"cdna_kernels/{NAME}.s.ref").read().split("; Override launch")[0]
L.append(hdr.rstrip())
L.append(f"; @launch grid=(256,1,1) block=(512,1,1) lds={LDS_BYTES}")
L.append('.amdgcn_target "amdgcn-amd-amdhsa--gfx950"')
L.append(".text")
L.append(f".globl {NAME}_kernel")
L.append(".p2align 8")
L.append(f".type {NAME}_kernel,@function")
lab(f"{NAME}_kernel")
e("s_cmp_ge_u32 s2, 256")
e("s_cbranch_scc1 L_end")
e("s_load_dwordx16 s[4:19], s[0:1], 0")
e("s_load_dwordx8 s[20:27], s[0:1], 64")
e("s_load_dwordx2 s[28:29], s[0:1], 96")
e(f"s_memrealtime {sr(sNON,2)}")
if opt['endat']:
    e("s_waitcnt lgkmcnt(0)")
    e(f"s_mov_b32 s30, s{sNON}")
if opt['dxcc'] >= 0:
    e(f"s_getreg_b32 s{sT0}, hwreg(HW_REG_XCC_ID, 0, 4)")
    e(f"s_cmp_eq_u32 s{sT0}, {opt['dxcc']}") if opt['dxcc'] < 8 else e(f"s_cmp_eq_u32 s{sT0}, s{sT0}")
    e("s_cbranch_scc0 L_nodelay")
    e("s_waitcnt lgkmcnt(0)")
    lab("L_delay")
    e(f"s_memrealtime {sr(sX,2)}")
    e("s_waitcnt lgkmcnt(0)")
    e(f"s_sub_u32 s{sX}, s{sX}, s{sNON}")
    e(f"s_cmp_lt_u32 s{sX}, {opt['dus']}")
    e("s_cbranch_scc1 L_delay")
    lab("L_nodelay")
e("v_lshrrev_b32 v2, 6, v0")
e(f"v_and_b32 v{vL}, 63, v0")
e(f"v_readfirstlane_b32 s{sW}, v2")
e(f"s_and_b32 s{sXCD}, s2, 7")
e(f"s_lshr_b32 s{sJ}, s2, 3")
e(f"s_and_b32 s{sT0}, s{sJ}, 3")
e(f"s_lshl_b32 s{sTB}, s{sXCD}, 2")
e(f"s_add_u32 s{sTB}, s{sTB}, s{sT0}")
e(f"s_lshr_b32 s{sHG}, s{sJ}, 2")
e(f"s_lshr_b32 s{sTHP}, s{sHG}, 1")
e(f"s_and_b32 s{sA}, s{sW}, 3")
e(f"v_lshlrev_b32 v2, 4, v{vL}          ; v2 = lane*16")
cm("LDS init while the kernel arguments load: ones / zeros window (even 16-B chunks 2^64, odd chunks 0), counters")
ONE = (127 + VSCALE) << 7
e("v_lshrrev_b32 v5, 3, v0")
e("v_cmp_ne_u32 vcc, 8, v5")
e("v_and_b32 v4, 1, v0")
e("v_add_u32 v4, -1, v4")
e(f"v_and_b32 v4, {hex(ONE << 16 | ONE)}, v4")
e("v_cndmask_b32 v4, 0, v4, vcc")
e(f"v_lshlrev_b32 v3, 4, v0")
e("v_mov_b32 v5, v4")
e("v_mov_b32 v6, v4")
e("v_mov_b32 v7, v4")
e(f"v_add_u32 v3, {ONES_OFF}, v3")
e("ds_write_b128 v3, v[4:7]")
e(f"s_mov_b32 s{R_XA+2}, 0x200000")
e(f"s_mov_b32 s{R_XA+3}, 0x20000")
def aux_first():
    if opt['prioX']: e(f"s_setprio {opt['prioX']}")
    cm("critical loads: projection weight (wk for even hg, wv for odd), x rows 16*blk + 4a + i")
    e(f"s_lshl_b32 s{sT0}, s{sTHP}, 4")
    e(f"s_lshl_b32 s{sT1}, s{sA}, 2")
    e(f"s_add_u32 s{sT0}, s{sT0}, s{sT1}")
    e(f"s_mul_i32 s{sT1}, s{sT0}, {XROW}")
    e(f"s_add_u32 s{sT1}, s{sT1}, {X_OFF}")
    e(f"s_lshl_b32 s{sT2}, s{sTB}, 6")
    e(f"s_add_u32 s{sT2}, s{sT2}, s{sT0}")
    e(f"s_lshl_b32 s{sT2}, s{sT2}, 10")
    e(f"s_lshl_b32 s{sT3}, s{sA}, 12")
    e(f"s_mov_b32 s{R_W+2}, 16384")
    e(f"s_mov_b32 s{R_W+3}, 0x20000")
    e(f"s_mov_b32 m0, s{sT3}")
    e(f"s_bitcmp1_b32 s{sHG}, 0")
    e("s_waitcnt lgkmcnt(0)")
    e(f"s_cselect_b32 s{R_W}, s{P_WV}, s{P_WK}")
    e(f"s_cselect_b32 s{R_W+1}, s{P_WV+1}, s{P_WK+1}")
    e(f"s_and_b32 s{R_W+1}, s{R_W+1}, 0xffff")
    e(f"s_mov_b32 s{R_XA}, s{P_XA}")
    e(f"s_and_b32 s{R_XA+1}, s{P_XA+1}, 0xffff")
    srd(R_DBG, P_DBG, 256)
    cm("workgroup 0, aux wave 3 publishes this launch's hand-off tag")
    e(f"s_or_b32 s{sNON}, s{sNON}, 16")
    e(f"s_and_b32 s{sNON}, s{sNON}, -16")
    e(f"s_lshl_b32 s{sT0}, s2, 3")
    e(f"s_add_u32 s{sT0}, s{sT0}, s{sW}")
    e(f"s_cmp_eq_u32 s{sT0}, 7")
    e("s_cbranch_scc0 L_notag")
    e(f"v_mov_b32 v4, s{sNON}")
    e(f"v_mov_b32 v5, s{sNON+1}")
    e("s_mov_b64 exec, 1")
    e(f"buffer_store_dwordx2 v[4:5], off, {sr(R_DBG,4)}, 0 sc1")
    e("s_mov_b64 exec, -1")
    lab("L_notag")
    NT = lambda b: "nt " if opt['ntc'] >> b & 1 else ""
    for i in range(4): e(f"buffer_load_dwordx4 v2, {sr(R_W,4)}, s{sT3} offen offset:{1024*i} {NT(1)}lds")
    dma_run(4, 2, R_XA, sT2, sT1, 1024, XROW, NT(0))
    stamp(0)
    srd(R_WS, P_WS, WS_SIZE)
    if opt['dbgt']:
        e(f"s_cmp_lt_u32 s2, 8")
        e("s_cbranch_scc0 L_nodbg0")
        e(f"s_cmp_eq_u32 s{sW}, 6")
        e("s_cbranch_scc0 L_nodbg0")
        e(f"v_mov_b32 v4, s{sNON}")
        e(f"s_lshl_b32 s{sT0}, s2, 2")
        e(f"s_add_u32 s{sT0}, s{sT0}, 8")
        e("s_mov_b64 exec, 1")
        e(f"buffer_store_dword v4, off, {sr(R_DBG,4)}, s{sT0}")
        e("s_mov_b64 exec, -1")
        lab("L_nodbg0")
    e("s_barrier                             ; B1")
if opt['first']:
    cm("the aux waves' first loads are the longest dependency chain: their code directly follows the entry")
    e(f"s_cmp_lt_u32 s{sW}, 4")
    e("s_cbranch_scc1 L_att0")
    aux_first()
    e("s_branch L_aux")
    lab("L_att0")
else:
    e(f"s_cmp_ge_u32 s{sW}, 4")
    e("s_cbranch_scc1 L_aux")

cm("wq slice (8 rows x 128 B per load, 16-B chunks swizzled by row bit 1); quarter tb&3 first: distinct among its 4 sharers")
e(f"v_lshrrev_b32 v3, 3, v{vL}          ; r")
e(f"v_and_b32 v4, 7, v{vL}")
e(f"v_bfe_u32 v5, v{vL}, 4, 1           ; (r>>1)&1")
e("v_lshlrev_b32 v5, 2, v5")
e("v_xor_b32 v4, v4, v5")
e("v_lshlrev_b32 v4, 4, v4")
e("v_lshl_add_u32 v13, v3, 10, v4")
e(f"s_mov_b32 s{R_WQ+2}, 0x80000")
e(f"s_mov_b32 s{R_WQ+3}, 0x20000")
def wq_addr(q):
    e(f"s_add_u32 s{sT0}, s{sJ}, {q}")
    e(f"s_and_b32 s{sT0}, s{sT0}, 3")
    e(f"s_lshl_b32 s{sT0}, s{sT0}, 2")
    e(f"s_add_u32 s{sT0}, s{sT0}, s{sW}")
    e(f"s_lshl_b32 s{sT2}, s{sT0}, 15")
    e(f"s_lshl_b32 s{sT1}, s{sHG}, 7")
    e(f"s_add_u32 s{sT2}, s{sT2}, s{sT1}")
    e(f"s_lshl_b32 s{sT1}, s{sT0}, 12")
    e(f"s_add_u32 s{sT1}, s{sT1}, {WQ_OFF}")
wq_addr(0)
e("s_waitcnt lgkmcnt(0)")
e(f"s_mov_b32 s{R_WQ}, s{P_WQ}")
e(f"s_and_b32 s{R_WQ+1}, s{P_WQ+1}, 0xffff")
e(f"s_mov_b32 s{R_XA}, s{P_XA}")
e(f"s_and_b32 s{R_XA+1}, s{P_XA+1}, 0xffff")
stamp(0)
e("s_barrier")
NT = lambda b: "nt " if opt['ntc'] >> b & 1 else ""
dma_run(4, 13, R_WQ, sT2, sT1, 8192, 1024, NT(2))
cm("the 48 rows of the x tile the aux waves do not load: blocks blk+1, blk+2, blk+3 (mod 4), 4 rows per wave each")
def x_addr(d):
    e(f"s_add_u32 s{sT0}, s{sTHP}, {d}")
    e(f"s_and_b32 s{sT0}, s{sT0}, 3")
    e(f"s_lshl_b32 s{sT0}, s{sT0}, 2")
    e(f"s_add_u32 s{sT0}, s{sT0}, s{sW}")
    e(f"s_lshl_b32 s{sT0}, s{sT0}, 2          ; first row")
    e(f"s_mul_i32 s{sT1}, s{sT0}, {XROW}")
    e(f"s_add_u32 s{sT1}, s{sT1}, {X_OFF}")
    e(f"s_lshl_b32 s{sT2}, s{sTB}, 6")
    e(f"s_add_u32 s{sT2}, s{sT2}, s{sT0}")
    e(f"s_lshl_b32 s{sT2}, s{sT2}, 10")
def hold(name, ctr, val):
    lds_wait(name, ctr, val, 8, sleep=opt['fs'])
seq = [('x', 1), ('x', 2), ('x', 3), ('q', 1), ('q', 2), ('q', 3)]
for n, (kind, d) in enumerate(seq):
    (x_addr if kind == 'x' else wq_addr)(d)
    if n == opt['h1']: hold("L_hold1", C_CR, FOUR)
    if n == opt['h2']: hold("L_hold2", C_KV, 1)
    if kind == 'x': dma_run(4, 2, R_XA, sT2, sT1, 1024, XROW, NT(3))
    else: dma_run(4, 13, R_WQ, sT2, sT1, 8192, 1024, NT(4))
stamp(7)
srd(R_WS, P_WS, WS_SIZE)
SA, SB, OA, OB, CA, CB = 16, 32, 48, 64, 80, 96
QA, QB, K0, K1, V0, V1 = 112, 116, 120, 124, 128, 136
vIDX, vK, vV = 144, 145, 146
vINC, vV0, vSAME = 147, 150, 151
vXA, vWA = 148, 149
FB = 152
cm("Q-projection addresses")
e(f"s_and_b32 s{sT0}, s{sW}, 1            ; th")
e(f"s_lshr_b32 s{sT1}, s{sW}, 1           ; hp")
e(f"v_and_b32 v3, 31, v{vL}")
e(f"s_lshl_b32 s{sT2}, s{sT0}, 5")
e(f"v_add_u32 v3, s{sT2}, v3")
e(f"v_mul_u32_u24 v3, {XROW}, v3")
e(f"v_lshrrev_b32 v4, 5, v{vL}           ; h")
e(f"v_lshl_add_u32 v14, v4, 4, v3")
e(f"v_bfe_u32 v5, v{vL}, 2, 2            ; r")
e("v_lshl_add_u32 v6, v4, 3, v5          ; 8h + r")
e("v_lshlrev_b32 v6, 7, v6")
e(f"v_bfe_u32 v7, v{vL}, 4, 1            ; g")
e(f"v_and_b32 v8, 1, v{vL}")
e("v_lshl_add_u32 v7, v7, 1, v8          ; 2g + (cc&1)")
e(f"s_lshl_b32 s{sT2}, s{sT1}, 2")
e(f"v_add_u32 v7, s{sT2}, v7")
e(f"v_bfe_u32 v8, v{vL}, 3, 1            ; (r>>1)&1")
e("v_lshlrev_b32 v8, 2, v8")
e("v_xor_b32 v7, v7, v8")
e("v_lshl_add_u32 v6, v7, 4, v6")
e(f"v_bfe_u32 v8, v{vL}, 1, 1")
e("v_lshl_add_u32 v6, v8, 3, v6")
e(f"v_add_u32 v{vWA}, {WQ_OFF}, v6")
e(f"v_add_u32 v{vXA}, {X_OFF}, v14")
cm("attention LDS addresses; V: rows 0..15 -> tile data, lanes 16,20 -> 2^64, other lanes -> 0")
e(f"v_mov_b32 v{vIDX}, 0xdddddddd")
e(f"v_bfe_u32 v5, v{vL}, 4, 1")
e(f"v_xor_b32 v5, 1, v5                   ; 1 for V rows, 0 for the constant lanes")
e(f"v_lshlrev_b32 v{vINC}, 13, v5")
e(f"v_and_b32 v8, 15, v{vL}")
e("v_lshlrev_b32 v9, 8, v4")
e("v_lshl_add_u32 v8, v8, 4, v9")
e(f"v_and_b32 v9, 31, v{vL}")
e("v_add_u32 v10, -20, v9")
e("v_cmp_gt_u32 vcc, 8, v10")
e("v_and_b32 v9, 11, v9")
e("v_min_u32 v9, 1, v9")
e("v_cndmask_b32 v10, 0, 64, vcc")
e(f"v_cmp_eq_u32 vcc, 1, v5")
e("v_lshl_add_u32 v9, v9, 4, v10")
e(f"v_add_u32 v9, {ONES_OFF - 1024}, v9")
e(f"v_cndmask_b32 v{vV0}, v9, v8, vcc")
cm("O fragment destination and flag slot")
sOD, sOF = 97, 98
e(f"s_and_b32 s{sT0}, s{sW}, 1")
e(f"s_lshl_b32 s{sT1}, s{sTB}, 1")
e(f"s_add_u32 s{sT0}, s{sT0}, s{sT1}")
e(f"s_lshl_b32 s{sT0}, s{sT0}, 5          ; (tb*2+th)*32")
e(f"s_lshl_b32 s{sT1}, s{sHG}, 2")
e(f"s_add_u32 s{sT0}, s{sT0}, s{sT1}")
e(f"s_and_b32 s{sT1}, s{sW}, 2")
e(f"s_add_u32 s{sT0}, s{sT0}, s{sT1}")
e(f"s_lshl_b32 s{sT0}, s{sT0}, 10")
e(f"s_add_u32 s{sOD}, s{sT0}, {WS_O}")
e(f"s_lshl_b32 s{sT1}, s{sTB}, 3")
e(f"s_add_u32 s{sT1}, s{sT1}, s{sHG}")
e(f"s_lshl_b32 s{sT1}, s{sT1}, 2")
e(f"s_add_u32 s{sT1}, s{sT1}, s{sW}")
e(f"s_lshl_b32 s{sT1}, s{sT1}, 7")
e(f"s_add_u32 s{sOF}, s{sT1}, {FL_O}")
e(f"s_mov_b32 s{sFB}, 0")
e(f"s_mov_b32 s{sBARN}, 0xa")
e(f"v_mov_b32 v{vSAME}, {MISC}")
sPF, sOL, sOS, vPO = 100, 101, 79, 184
e(f"s_lshl_b32 s{sT0}, s{sTB}, 3")
e(f"s_lshl_b32 s{sT1}, s{sW}, 1")
e(f"s_add_u32 s{sT0}, s{sT0}, s{sT1}")
e(f"s_lshl_b32 s{sT0}, s{sT0}, 9")
e(f"s_add_u32 s{sPF}, s{sT0}, {FL_O}")
e(f"s_lshl_b32 s{sT2}, s{sTB}, 16")
e(f"s_lshl_b32 s{sOL}, s{sW}, 13")
e(f"s_add_u32 s{sT2}, s{sT2}, s{sOL}")
e(f"s_add_u32 s{sOS}, s{sT2}, {WS_O}")
e(f"v_and_b32 v8, 7, v{vL}")
e(f"v_lshlrev_b32 v{vPO}, 7, v8")
for i in range(16): e(f"v_mov_b32 v{OA+i}, 0")
for i in range(16): e(f"v_mov_b32 v{OB+i}, 0")
for i in range(4): e(f"v_mov_b32 v{V1+4+i}, 0")
if opt['qloop']:
    for i in range(16): e(f"v_mov_b32 v{SA+i}, 0")
e(f"v_mov_b32 v{vK}, v2")
e(f"v_mov_b32 v{vV}, v{vV0}")
if opt['dftpf']:
    cm("sequence-DFT rows the aux waves read later (pulled towards L2 from inside the loop):")
    cm("wave 0: cos rows t1s + 32l; wave 1: sin rows 2048 - that; waves 2, 3: cos / sin rows 64 (l & 31)")
    R_DP, vDP = R_XA, 187
    e(f"s_bitcmp1_b32 s{sW}, 0")
    e(f"s_cselect_b64 {sr(R_DP,2)}, {sr(P_SIM,2)}, {sr(P_SRE,2)}")
    e(f"s_and_b32 s{R_DP+1}, s{R_DP+1}, 0xffff")
    e(f"s_mov_b32 s{R_DP+2}, 0x800000")
    e(f"v_lshlrev_b32 v8, 5, v{vL}")
    e(f"v_add_u32 v8, s{sTB}, v8               ; t1s = tb")
    e("v_sub_u32 v9, 0x800, v8")
    e("v_and_b32 v9, 0x7ff, v9")
    e(f"v_lshlrev_b32 v10, 6, v{vL}")
    e("v_and_b32 v10, 0x7ff, v10")
    e(f"s_cmp_eq_u32 s{sW}, 1")
    e("s_cselect_b64 vcc, -1, 0")
    e("v_cndmask_b32 v8, v8, v9, vcc")
    e(f"s_cmp_ge_u32 s{sW}, 2")
    e("s_cselect_b64 vcc, -1, 0")
    e("v_cndmask_b32 v8, v8, v10, vcc")
    e(f"v_lshlrev_b32 v{vDP}, 12, v8")
if opt['preo']:
    cm("output lines this workgroup writes at the end (touched from inside the loop, values unused):")
    cm("waves 0, 2: rows 64tb + l, columns of hg; waves 1, 3: rows tb + 32l (mirrored for hg >= 4), spectral columns of hg")
    vOP, sOP = 186, 30
    srd(R_OUT, P_OUT, 4194304)
    e(f"v_lshlrev_b32 v8, 5, v{vL}")
    e(f"v_add_u32 v8, s{sTB}, v8")
    e("v_sub_u32 v9, 0x800, v8")
    e("v_and_b32 v9, 0x7ff, v9")
    e(f"s_cmp_ge_u32 s{sHG}, 4")
    e("s_cselect_b64 vcc, -1, 0")
    e("v_cndmask_b32 v8, v8, v9, vcc")
    e(f"s_lshl_b32 s{sT0}, s{sTB}, 6")
    e(f"v_add_u32 v9, s{sT0}, v{vL}")
    e(f"s_bitcmp1_b32 s{sW}, 0")
    e("s_cselect_b64 vcc, -1, 0")
    e(f"s_cselect_b32 s{sOP}, 0x400, 0")
    e("v_cndmask_b32 v8, v9, v8, vcc")
    e(f"v_lshlrev_b32 v{vOP}, 11, v8")
    e(f"s_lshl_b32 s{sT0}, s{sHG}, 7")
    e(f"s_add_u32 s{sOP}, s{sOP}, s{sT0}")
e(f"s_mov_b32 s{sT0}, {hex(f2u(0.25*1.4426950408889634))}")
warm("L_padq", "L_padq_ret")
e("s_waitcnt vmcnt(0)")
stamp(8)
e("s_barrier")
stamp(10)
pad_begin("L_padq")
def qload(ks):
    b = FB + 8*(ks % 4)
    e(f"ds_read_b64_tr_b16 {vr(b,2)}, v{vWA} offset:{ks*2048}")
    e(f"ds_read_b64_tr_b16 {vr(b+2,2)}, v{vWA} offset:{ks*2048+512}")
    e(f"ds_read_b128 {vr(b+4,4)}, v{vXA} offset:{ks*32}")
for ks in range(3): qload(ks)
if opt['qloop']:
    cm("4 trips of 8 k-steps; the last trip's look-ahead reads land in unused registers")
    e(f"s_mov_b32 s{sIT}, 0")
    lab("L_qloop")
    for ks in range(8):
        b = FB + 8*(ks % 4)
        qload(ks + 3); e("s_waitcnt lgkmcnt(9)")
        e(f"v_mfma_f32_32x32x16_bf16 {vr(SA,16)}, {vr(b,4)}, {vr(b+4,4)}, {vr(SA,16)}")
        if ks == 7:
            e(f"v_add_u32 v{vWA}, 0x4000, v{vWA}")
            e(f"v_add_u32 v{vXA}, 0x100, v{vXA}")
        if ks == 6:
            e(f"s_add_u32 s{sIT}, s{sIT}, 1")
            e(f"s_cmp_lt_u32 s{sIT}, 4")
    e("s_cbranch_scc1 L_qloop")
    e("s_waitcnt lgkmcnt(0)")
else:
    for ks in range(32):
        b = FB + 8*(ks % 4)
        if ks + 3 < 32:
            qload(ks + 3); e("s_waitcnt lgkmcnt(9)")
        else:
            e(f"s_waitcnt lgkmcnt({3*(31-ks)})")
        c = "0" if ks == 0 else vr(SA, 16)
        e(f"v_mfma_f32_32x32x16_bf16 {vr(SA,16)}, {vr(b,4)}, {vr(b+4,4)}, {c}")
stamp(9)
nop(8 if opt['qloop'] else 12)
for i in range(16): e(f"v_mul_f32 v{SA+i}, s{sT0}, v{SA+i}")
for i in range(8): e(f"v_cvt_pk_bf16_f32 v{QA+i}, v{SA+2*i}, v{SA+2*i+1}")
if opt['prioA']: e(f"s_setprio {opt['prioA']}")
stamp(2)
if opt['attpf']:
    cm("after BA: pull this workgroup's 1/32 share of what its XCD reads later towards L2 (one dword per 128-B line)")
    cm("wave 0: x_B rows 64j + 8xcd + (0..7); waves 1, 2: hidden cos / sin rows 8j..8j+7; wave 3: wo rows 16j..16j+15")
    R_PF = R_WQ
    e(f"s_cmp_eq_u32 s{sW}, 1")
    e(f"s_cselect_b64 {sr(R_PF,2)}, {sr(P_HRE,2)}, {sr(P_HIM,2)}")
    e(f"s_lshl_b32 s{sT2}, s{sJ}, 13")
    e(f"s_cmp_eq_u32 s{sW}, 3")
    e(f"s_cselect_b64 {sr(R_PF,2)}, {sr(P_WO,2)}, {sr(R_PF,2)}")
    e(f"s_cselect_b32 s{sT3}, s{sT2}, 0")
    e(f"s_add_u32 s{sT2}, s{sT2}, s{sT3}")
    e(f"s_lshl_b32 s{sT3}, s{sJ}, 16")
    e(f"s_lshl_b32 s{sT1}, s{sXCD}, 13")
    e(f"s_add_u32 s{sT3}, s{sT3}, s{sT1}")
    e(f"s_cmp_eq_u32 s{sW}, 0")
    e(f"s_cselect_b64 {sr(R_PF,2)}, {sr(P_XB,2)}, {sr(R_PF,2)}")
    e(f"s_cselect_b32 s{sT2}, s{sT3}, s{sT2}")
    e(f"s_cselect_b32 s{R_PF+2}, 0x200000, s{R_PF+2}")
    e(f"s_and_b32 s{R_PF+1}, s{R_PF+1}, 0xffff")
    e(f"s_add_u32 s{sT3}, s{sT2}, 8192")
    e(f"v_lshlrev_b32 v6, 7, v{vL}")
e("s_barrier")
stamp(3)
PFLOAD = True
MT = opt['mt']
cm(f"stand-in for the row max: max over the first {MT} key tile(s) (checked after the loop; fallback = true max)")
e(f"ds_read_b128 {vr(K0,4)}, v{vK}")
e(f"ds_read_b128 {vr(K1,4)}, v{vK} offset:2048")
KX = FB
for t in range(2, MT): e(f"ds_read_b128 {vr(KX+4*(t-2),4)}, v{vK} offset:{2048*t}")
e(f"ds_read_b128 {vr(V0,4)}, v{vV} offset:1024")
e(f"ds_read_b128 {vr(V0+4,4)}, v{vV} offset:1536")
def max16(dst, s, acc=None):
    if acc is None:
        e(f"v_max3_f32 v{dst}, v{s}, v{s+1}, v{s+2}"); i = 3
        while i + 1 < 16:
            e(f"v_max3_f32 v{dst}, v{dst}, v{s+i}, v{s+i+1}"); i += 2
        e(f"v_max_f32 v{dst}, v{dst}, v{s+15}")
    else:
        for i in range(0, 16, 2): e(f"v_max3_f32 v{dst}, v{dst}, v{s+i}, v{s+i+1}")
nrd = 4 + max(0, MT - 2)
e(f"s_waitcnt lgkmcnt({nrd - 1})")
e(f"v_mfma_f32_32x32x16_bf16 {vr(SA,16)}, {vr(K0,4)}, {vr(QA,4)}, 0")
e(f"v_mfma_f32_32x32x16_bf16 {vr(SB,16)}, {vr(K0,4)}, {vr(QB,4)}, 0")
if MT == 1:
    nop(11)
    max16(4, SA); max16(5, SB)
else:
    kreg = [K0, K1] + [KX + 4*t for t in range(2)]
    bufs = [(SA, SB), (CA, CB)]
    e(f"s_waitcnt lgkmcnt({nrd - 2})")
    e(f"v_mfma_f32_32x32x16_bf16 {vr(CA,16)}, {vr(K1,4)}, {vr(QA,4)}, 0")
    e(f"v_mfma_f32_32x32x16_bf16 {vr(CB,16)}, {vr(K1,4)}, {vr(QB,4)}, 0")
    e("s_waitcnt lgkmcnt(2)")
    nop(7)
    for t in range(MT):
        a, b = bufs[t % 2]
        max16(4, a, None if t == 0 else 1)
        if t + 2 < MT: e(f"v_mfma_f32_32x32x16_bf16 {vr(a,16)}, {vr(kreg[t+2],4)}, {vr(QA,4)}, 0")
        max16(5, b, None if t == 0 else 1)
        if t + 2 < MT: e(f"v_mfma_f32_32x32x16_bf16 {vr(b,16)}, {vr(kreg[t+2],4)}, {vr(QB,4)}, 0")
lab("L_setmax")
cm(f"v4 / v5 = per-lane max for tiles A / B; combine the two half-waves, C = -(max + {opt['shift']})")
e("v_mov_b32 v6, v4")
e("v_mov_b32 v7, v5")
e(f"s_mov_b32 s{sIT}, 0")
e("s_nop 0")
e("v_permlane32_swap_b32 v4, v6")
e("v_permlane32_swap_b32 v5, v7")
e("v_max_f32 v4, v4, v6")
e("v_max_f32 v5, v5, v7")
for i in range(16): e(f"v_sub_f32 v{CA+i}, {hex(f2u(-float(opt['shift'])))}, v4")
e(f"v_sub_f32 v{CB}, {hex(f2u(-float(opt['shift'])))}, v5")
e("s_waitcnt lgkmcnt(0)")
e(f"v_mfma_f32_32x32x16_bf16 {vr(SA,16)}, {vr(K0,4)}, {vr(QA,4)}, {vr(CA,16)}")
for i in range(1, 16): e(f"v_mov_b32 v{CB+i}, v{CB}")
for i in range(8): e(f"v_mov_b32 v{SB+8+i}, 0")
def SM(o, a, b): e(f"v_smfmac_f32_32x32x32_bf16 {vr(o,16)}, {vr(a,4)}, {vr(b,8)}, v{vIDX}")
def QK(d, k, q, c): e(f"v_mfma_f32_32x32x16_bf16 {vr(d,16)}, {vr(k,4)}, {vr(q,4)}, {vr(c,16)}")
def EX(s, a, b):
    for i in range(a, b): e(f"v_exp_f32 v{s+i}, v{s+i}")
pad_end("L_padq", "L_padq_ret")
stamp(13)
L.append(".p2align 6")
lab("L_att_loop")
for u in range(4):
    kc, kn = (K0, K1) if u % 2 == 0 else (K1, K0)
    vc, vp = (V0, V1) if u % 2 == 0 else (V1, V0)
    voffs = ((u + 1) % 4) * 2048 + 1024
    koffs = ((u + 2) % 4) * 2048
    p0, p1, p2 = (4, 7, 10) if opt['cluster'] else (2, 5, 10)
    EX(SA, 0, p0)
    SM(OB, vp + 4, SB + 8)
    e(f"s_waitcnt lgkmcnt({2 if u == 1 and opt['csync'] else 1})")
    EX(SA, p0, p1)
    QK(SB, kc, QB, CB)
    e(f"ds_read_b128 {vr(vp,4)}, v{vV} offset:{voffs}")
    EX(SA, p1, p2)
    SM(OA, vc, SA)
    e(f"ds_read_b128 {vr(vp+4,4)}, v{vV} offset:{voffs+512}")
    EX(SA, p2, 16)
    EX(SB, 0, p0)
    SM(OA, vc + 4, SA + 8)
    e("s_waitcnt lgkmcnt(2)")
    if u == 1:
        pass
    EX(SB, p0, p1)
    QK(SA, kn, QA, CA)
    e(f"ds_read_b128 {vr(kc,4)}, v{vK} offset:{koffs}")
    EX(SB, p1, p2)
    SM(OB, vc, SB)
    if u == 1:
        e(f"s_bitcmp1_b32 s{sBARN}, s{sIT}")
        e("s_cbranch_scc1 L_sync")
        lab("L_nobar")
        e(f"v_add_u32 v{vK}, 0x2000, v{vK}")
    if u == 2:
        e(f"v_add_u32 v{vV}, v{vINC}, v{vV}")
    if u == 3:
        e(f"s_add_u32 s{sIT}, s{sIT}, 1")
        e(f"s_cmp_lt_u32 s{sIT}, 16")
    if u == 0 and opt['csync']: e(f"ds_read_b64 v[4:5], v{vSAME} offset:{C_G1}")
    elif u == 0 and opt['cluster']: e("s_nop 0")
    EX(SB, p2, 16)
e("s_cbranch_scc1 L_att_loop")
if opt['lwarm']: e("s_cbranch_execz L_lwarm_ret           ; only the instruction-cache warm-up pass has EXEC = 0")
stamp(18)
pad_begin("L_padt")
e(f"s_mov_b32 s{sT0}, {hex(f2u(2.0**100) if not opt['force_fb'] else f2u(2.0**-30))}")
e(f"v_rcp_f32 v4, v{OA+8}")
SM(OB, V1 + 4, SB + 8)
e(f"ds_read_b32 v7, v{vSAME} offset:{C_SAME}")
e(f"ds_read_b64 v[8:9], v{vSAME} offset:{C_TAG}")
cm("run-time check of the stand-in: l*2^64 must be finite and <= 2^100, else redo with the true row max")
e(f"v_cmp_nle_f32_e64 vcc, v{OA+8}, s{sT0}")
for i in range(8): e(f"v_mul_f32 v{SA+i}, v4, v{OA+i}")
for i in range(4): e(f"v_cvt_pk_bf16_f32 v{SA+i}, v{SA+2*i}, v{SA+2*i+1}")
sSAME = 99
e("s_waitcnt lgkmcnt(0)")
e(f"v_readfirstlane_b32 s{sSAME}, v7")
e(f"v_rcp_f32 v5, v{OB+8}")
e(f"v_cmp_nle_f32_e64 {sr(sX,2)}, v{OB+8}, s{sT0}")
cm("plain stores only when every workgroup of this token block reported the same XCD; else write-through")
e(f"s_cmp_eq_u32 s{sSAME}, 0")
e("s_cbranch_scc1 L_ostA_wt")
OM = " sc1" if opt['omode'] >= 2 else ""
e(f"buffer_store_dwordx4 {vr(SA,4)}, v2, {sr(R_WS,4)}, s{sOD} offen{OM}")
lab("L_ostA_done")
for i in range(8): e(f"v_mul_f32 v{SB+i}, v5, v{OB+i}")
e(f"s_or_b64 vcc, vcc, {sr(sX,2)}")
for i in range(4): e(f"v_cvt_pk_bf16_f32 v{SA+4+i}, v{SB+2*i}, v{SB+2*i+1}")
e("s_cmp_eq_u64 vcc, 0")
e("s_cbranch_scc0 L_fallback")
lab("L_att_done")
e(f"s_cmp_eq_u32 s{sSAME}, 0")
e("s_cbranch_scc1 L_ost_wt")
e(f"buffer_store_dwordx4 {vr(SA+4,4)}, v2, {sr(R_WS,4)}, s{sOD} offen offset:1024{OM}")
stamp(6)
e(f"v_readfirstlane_b32 s{sNON}, v8")
e(f"v_readfirstlane_b32 s{sNON+1}, v9")
e("s_mov_b64 exec, 1")
e("s_waitcnt vmcnt(0)")
e(f"buffer_store_dwordx2 v[8:9], off, {sr(R_WS,4)}, s{sOF}")
if opt['omode'] == 3: e(f"buffer_store_dwordx2 v[8:9], off, {sr(R_WS,4)}, s{sOF} sc1")
lab("L_ost_done")
e("s_mov_b64 exec, -1")
stamp(5)
e("s_barrier")
stamp(4)
cm("gather the O tile of this token block: wave w takes producers 2w, 2w+1, in four steps of two heads")
poll("L_pollO", 1, vPO, 10, [sPF])
stamp(11)
for st in range(4):
    for th in range(2):
        e(f"s_add_u32 m0, s{sOL}, {2048*st + 32768*th}")
        e(f"s_add_u32 s{sT1}, s{sOS}, {2048*st + 32768*th}")
        for i in range(2): e(f"buffer_load_dwordx4 v2, {sr(R_WS,4)}, s{sT1} offen offset:{1024*i} sc1 lds")
pad_end("L_padt", "L_pado_0")
for st in range(4):
    e(f"s_waitcnt vmcnt({12 - 4*st})")
    if st == 0: stamp(12)
    e(f"s_barrier                             ; B8.{st}: heads 8w + {2*st}, {2*st+1} of every wave landed")
stamp_dump()
e("s_endpgm")
lab("L_ostA_wt")
e(f"buffer_store_dwordx4 {vr(SA,4)}, v2, {sr(R_WS,4)}, s{sOD} offen sc1")
e("s_branch L_ostA_done")
lab("L_ost_wt")
e(f"buffer_store_dwordx4 {vr(SA+4,4)}, v2, {sr(R_WS,4)}, s{sOD} offen offset:1024 sc1")
stamp(6)
e(f"v_readfirstlane_b32 s{sNON}, v8")
e(f"v_readfirstlane_b32 s{sNON+1}, v9")
e("s_mov_b64 exec, 1")
e("s_waitcnt vmcnt(0)")
e(f"buffer_store_dwordx2 v[8:9], off, {sr(R_WS,4)}, s{sOF} sc1")
e("s_branch L_ost_done")
lab("L_sync")
e(f"s_cmp_eq_u32 s{sIT}, 1")
e("s_cbranch_scc0 L_sync3")
stamp(14)
if opt['csync']:
    e(f"v_readfirstlane_b32 s{sT4}, v4")
    e("s_nop 0")
    e(f"s_cmp_ge_u32 s{sT4}, {FOUR}")
    e("s_cbranch_scc1 L_nobar") if not opt['stamps'] else e("s_cbranch_scc1 L_wg1_done")
lds_wait("L_wg1", C_G1, FOUR, 4)
stamp(15)
e("s_branch L_nobar")
lab("L_sync3")
if opt['dftpf']: e(f"buffer_load_dword v185, v{vDP}, {sr(R_DP,4)}, 0 offen")
if opt['preo']:
    e(f"s_cmp_lt_u32 s{sW}, 2")
    e("s_cbranch_scc0 L_nopo")
    e(f"buffer_load_dword v188, v{vOP}, {sr(R_OUT,4)}, s{sOP} offen{' sc1' if opt['preo'] == 1 else ''}")
    lab("L_nopo")
stamp(16)
if opt['csync']:
    e(f"v_readfirstlane_b32 s{sT4}, v5")
    e("s_nop 0")
    e(f"s_cmp_ge_u32 s{sT4}, {FOUR}")
    e("s_cbranch_scc1 L_nobar") if not opt['stamps'] else e("s_cbranch_scc1 L_wkvl_done")
lds_wait("L_wkvl", C_KVL, FOUR, 4)
stamp(17)
e("s_branch L_nobar")
lab("L_fallback")
e(f"s_cmp_eq_u32 s{sFB}, 0")
e("s_cbranch_scc0 L_att_done")
cm("fallback: exact row max over all 64 key tiles, then repeat the main loop")
e(f"s_mov_b32 s{sFB}, 1")
e(f"s_mov_b32 s{sBARN}, 0")
e(f"v_mov_b32 v4, 0xff800000")
e(f"v_mov_b32 v5, 0xff800000")
e(f"v_mov_b32 v{vK}, v2")
e(f"s_mov_b32 s{sIT}, 0")
lab("L_fb_loop")
e(f"ds_read_b128 {vr(K0,4)}, v{vK}")
e("s_waitcnt lgkmcnt(0)")
e(f"v_mfma_f32_32x32x16_bf16 {vr(SA,16)}, {vr(K0,4)}, {vr(QA,4)}, 0")
e(f"v_mfma_f32_32x32x16_bf16 {vr(SB,16)}, {vr(K0,4)}, {vr(QB,4)}, 0")
e(f"v_add_u32 v{vK}, 0x800, v{vK}")
nop(11)
max16(4, SA, 1); max16(5, SB, 1)
e(f"s_add_u32 s{sIT}, s{sIT}, 1")
e(f"s_cmp_lt_u32 s{sIT}, 64")
e("s_cbranch_scc1 L_fb_loop")
e(f"v_mov_b32 v{vK}, v2")
e(f"v_mov_b32 v{vV}, v{vV0}")
for i in range(16): e(f"v_mov_b32 v{OA+i}, 0")
for i in range(16): e(f"v_mov_b32 v{OB+i}, 0")
for i in range(4): e(f"v_mov_b32 v{V1+4+i}, 0")
e(f"ds_read_b128 {vr(K0,4)}, v{vK}")
e(f"ds_read_b128 {vr(K1,4)}, v{vK} offset:2048")
e(f"ds_read_b128 {vr(V0,4)}, v{vV} offset:1024")
e(f"ds_read_b128 {vr(V0+4,4)}, v{vV} offset:1536")
e("s_branch L_setmax")

lab("L_aux")
BUF = 16
BP = 144
FR = 176
ACC = 192
D1, D2 = 208, 224
if not opt['first']: aux_first()
KV0 = len(L)
e(f"v_mov_b32 v14, {MISC+C_CR}")
if opt['bytef']: e(f"v_add_u32 v14, s{sA}, v14")
e(f"v_mov_b32 v15, 1")
cm("K / V projection of 16 tokens: aux wave 0")
e(f"s_cmp_eq_u32 s{sA}, 0")
e("s_cbranch_scc0 L_np")
e(f"v_and_b32 v3, 15, v{vL}")
e(f"v_lshrrev_b32 v4, 4, v{vL}           ; q")
e(f"s_lshl_b32 s{sT0}, s{sTHP}, 4")
e(f"v_add_u32 v5, s{sT0}, v3")
e(f"v_mul_u32_u24 v5, {XROW}, v5")
e("v_lshl_add_u32 v5, v4, 4, v5")
e(f"v_add_u32 v5, {X_OFF}, v5")
e(f"v_bfe_u32 v6, v{vL}, 2, 2            ; r")
e("v_lshl_add_u32 v6, v4, 3, v6")
e("v_lshlrev_b32 v6, 5, v6")
e(f"v_and_b32 v7, 3, v{vL}               ; cc")
sB = sT3
e(f"s_and_b32 s{sB}, s{sTHP}, 1            ; b")
e(f"s_lshr_b32 s{sT0}, s{sTHP}, 1")
e(f"s_lshl_b32 s{sT2}, s{sTB}, 1")
e(f"s_add_u32 s{sT2}, s{sT2}, s{sT0}")
sKF, sKD = 97, 96
e(f"s_lshl_b32 s{sT1}, s{sT2}, 1")
e(f"s_and_b32 s{sT0}, s{sHG}, 1")
e(f"s_add_u32 s{sT1}, s{sT1}, s{sT0}")
e(f"s_lshl_b32 s{sT1}, s{sT1}, 1")
e(f"s_add_u32 s{sT1}, s{sT1}, s{sB}")
e(f"s_lshl_b32 s{sT1}, s{sT1}, 7")
e(f"s_add_u32 s{sKF}, s{sT1}, {FL_KV}")
e(f"s_lshl_b32 s{sKD}, s{sT2}, 11")
e("v_and_b32 v9, 1, v4")
e("v_lshlrev_b32 v9, 3, v9")
e("v_lshl_add_u32 v9, v3, 4, v9          ; n*16 + (q&1)*8")
e("v_lshrrev_b32 v8, 1, v4")
e(f"s_mov_b32 s{sDRY}, {1 if opt['dry'] else 0}")
if opt['pre']:
    cm("touch the lines this wave will publish (tile and flag), so the write-through stores find them resident")
    e(f"v_and_b32 v12, 15, v{vL}")
    e("v_lshlrev_b32 v12, 7, v12")
    e(f"buffer_load_dword v201, v12, {sr(R_WS,4)}, s{sKD} offen sc1")
    e(f"buffer_load_dword v202, off, {sr(R_WS,4)}, s{sKF} sc1")
def kvchain(isV):
    D = opt['kvd']
    def mf(k2):
        b2 = BUF + 8*k2
        a, bb = (b2+4, b2) if isV else (b2, b2+4)
        e(f"v_mfma_f32_16x16x32_bf16 {vr(ACC,4)}, {vr(a,4)}, {vr(bb,4)}, {'0' if k2==0 else vr(ACC,4)}")
    for ks in range(16):
        b = BUF + 8*ks
        e(f"ds_read_b64_tr_b16 {vr(b,2)}, v6 offset:{ks*1024}")
        e(f"ds_read_b64_tr_b16 {vr(b+2,2)}, v6 offset:{ks*1024+128}")
        e(f"ds_read_b128 {vr(b+4,4)}, v5 offset:{ks*64}")
        if ks >= D:
            e(f"s_waitcnt lgkmcnt({3*D})"); mf(ks - D)
    for k2 in range(16 - D, 16):
        e(f"s_waitcnt lgkmcnt({3*(15-k2)})"); mf(k2)
def kv_wait(tagname):
    e(f"s_waitcnt vmcnt({2 if opt['pre'] else 0})")
    stamp(1)
    e("s_mov_b64 exec, 1")
    e("ds_write_b8 v14, v15" if opt['bytef'] else "ds_add_u32 v14, v15")
    e("s_mov_b64 exec, -1")
    lds_wait(tagname + "_w", C_CR, FOUR, 10, sleep=1)
def kv_b1(tagname):
    if not opt['dry']: kv_wait(tagname)
    lab(tagname)
def kv_b2(tagname):
    if opt['dry']:
        e(f"s_cmp_eq_u32 s{sDRY}, 0")
        e(f"s_cbranch_scc1 {tagname}_go")
        e(f"s_mov_b32 s{sDRY}, 0")
        kv_wait(tagname)
        e(f"s_branch {tagname}")
        lab(tagname + "_go")
e(f"s_bitcmp1_b32 s{sHG}, 0")
e("s_cbranch_scc1 L_prodV")
cm("K: (q>>1)*512 + (16b+n)*16 + (q&1)*8")
e("v_lshl_add_u32 v6, v7, 3, v6")
e("v_lshl_add_u32 v8, v8, 9, v9")
e(f"s_lshl_b32 s{sT1}, s{sB}, 8")
e(f"s_add_u32 s{sKD}, s{sKD}, s{sT1}")
kv_b1("L_chK"); kvchain(False); kv_b2("L_chK")
nop(6 if opt['dry'] else 8)
e("s_branch L_prodS")
lab("L_prodV")
cm("V: 1024 + b*512 + (q>>1)*256 + n*16 + (q&1)*8")
e("v_lshl_add_u32 v8, v8, 8, v9")
e("v_and_b32 v9, 1, v7")
e("v_lshl_add_u32 v6, v9, 4, v6")
e("v_lshrrev_b32 v9, 1, v7")
e("v_lshl_add_u32 v6, v9, 3, v6")
e(f"s_lshl_b32 s{sT1}, s{sB}, 9")
e(f"s_add_u32 s{sKD}, s{sKD}, s{sT1}")
e(f"s_add_u32 s{sKD}, s{sKD}, 1024")
kv_b1("L_chV"); kvchain(True); kv_b2("L_chV")
e(f"s_mov_b32 s{sT0}, {hex(f2u(2.0**VSCALE))}")
nop(6 if opt['dry'] else 8)
for i in range(4): e(f"v_mul_f32 v{ACC+i}, s{sT0}, v{ACC+i}")
lab("L_prodS")
e(f"v_cvt_pk_bf16_f32 v10, v{ACC}, v{ACC+1}")
e(f"v_cvt_pk_bf16_f32 v11, v{ACC+2}, v{ACC+3}")
e(f"buffer_store_dwordx2 v[10:11], v8, {sr(R_WS,4)}, s{sKD} offen sc1")
stamp(14)
e("ds_add_u32 v14, v15 offset:%d             ; this wave is done with the weight region" % (C_KV - C_CR + 65536) if False else f"v_mov_b32 v13, {MISC+C_KV}")
e("s_mov_b64 exec, 1")
e("ds_write_b32 v13, v15")
e("s_mov_b64 exec, -1")
tag_from_lds("L_tagp", 4)
e(f"v_mov_b32 v6, s{sNON}")
e(f"v_mov_b32 v7, s{sNON+1}")
e("s_mov_b64 exec, 1")
e("s_waitcnt vmcnt(0)")
e(f"buffer_store_dwordx2 v[6:7], off, {sr(R_WS,4)}, s{sKF} sc1")
e("s_mov_b64 exec, -1")
stamp(15)
e(f"s_mov_b32 s{sRET}, 1")
e("s_branch L_tagged")
lab("L_np")
e("s_waitcnt vmcnt(0)")
stamp(1)
e("s_mov_b64 exec, 1")
e("ds_write_b8 v14, v15" if opt['bytef'] else "ds_add_u32 v14, v15")
e("s_mov_b64 exec, -1")
if opt['codepf']:
    cm("aux wave 2 pulls this kernel's code towards L2 (reads only)")
    e(f"s_cmp_eq_u32 s{sA}, 2")
    e("s_cbranch_scc0 L_nopf")
    e(f"s_getpc_b64 {sr(sX,2)}")
    lab("L_pc")
    e(f"v_lshlrev_b32 v4, 7, v{vL}")
    e(f"s_sub_u32 s{sX}, s{sX}, L_pc-{NAME}_kernel")
    e(f"s_subb_u32 s{sX+1}, s{sX+1}, 0")
    e(f"v_mov_b32 v5, s{sX+1}")
    e(f"v_add_co_u32 v4, vcc, s{sX}, v4")
    e("s_nop 1")
    e("v_addc_co_u32 v5, vcc, 0, v5, vcc")
    e("CODEPF")
    lab("L_nopf")
if opt['lwarm']:
    cm("aux wave 1 walks once through the attention loop with every lane off (LDS and register traffic only) to warm the instruction cache")
    e(f"s_cmp_eq_u32 s{sA}, 1")
    e("s_cbranch_scc0 L_nolw")
    e(f"s_mov_b32 s{sIT}, 15")
    e(f"s_mov_b32 s{sBARN}, 0")
    e("s_setprio 0")
    e("s_mov_b64 exec, 0")
    e("s_branch L_att_loop")
    lab("L_lwarm_ret")
    e("s_mov_b64 exec, -1")
    e(f"s_setprio {opt['prioX']}")
    lab("L_nolw")
e(f"s_cmp_eq_u32 s{sA}, 3")
e("s_cbranch_scc0 L_tagged0")
cm("aux wave 3 fetches this launch's hand-off tag (bounded spin) and posts it in LDS")
e(f"s_mov_b32 s{sSPIN}, {SPIN}")
lab("L_tag")
e(f"buffer_load_dwordx2 v[14:15], off, {sr(R_DBG,4)}, 0 sc1")
e(f"s_sub_u32 s{sSPIN}, s{sSPIN}, 1")
e(f"s_cmp_eq_u32 s{sSPIN}, 0")
e("s_cbranch_scc1 L_tag_done")
e("s_waitcnt vmcnt(0)")
e("v_cmp_eq_u32 vcc, 0, v14")
e("s_nop 0")
e("s_cmp_eq_u64 vcc, 0")
e("s_cbranch_scc0 L_tag")
lab("L_tag_done")
e("s_waitcnt vmcnt(0)")
e(f"v_mov_b32 v12, {MISC+C_TAG}")
e("ds_write_b64 v12, v[14:15]")
cm("report this workgroup's XCD id (tag | id)")
e(f"s_getreg_b32 s{sT2}, hwreg(HW_REG_XCC_ID, 0, 4)")
e(f"s_lshl_b32 s{sT1}, s2, 7")
e(f"s_add_u32 s{sT1}, s{sT1}, {FL_X}")
e(f"v_or_b32 v14, s{sT2}, v14")
e("s_mov_b64 exec, 1")
e(f"buffer_store_dwordx2 v[14:15], off, {sr(R_WS,4)}, s{sT1} sc1")
e("s_mov_b64 exec, -1")
import re
def ren(m):
    n = int(m.group(1)); return f"v{208+n}" if 3 <= n <= 15 else m.group(0)
def ren2(m):
    a, b = int(m.group(1)), int(m.group(2)); return f"v[{208+a}:{208+b}]" if 3 <= a <= 15 else m.group(0)
for k in range(KV0, len(L)):
    L[k] = re.sub(r"v\[(\d+):(\d+)\]", ren2, re.sub(r"\bv(\d+)\b", ren, L[k]))
e(f"s_mov_b32 s{sRET}, 0") if False else None
lab("L_tagged0")
e(f"s_mov_b32 s{sRET}, 0")
e("s_branch L_addr")
lab("L_tagged")
stamp(2)
tag_from_lds("L_tagx", 8)
cm("the weight region is reused only after the projection wave is done with it")
lds_wait("L_wkv", C_KV, 1, 8, sleep=opt['fs'])
cm("key tiles in rotated order (own XCD's tiles first); wave a covers tiles 8g + 2a, 8g + 2a + 1: flags 32g + 8a + (0..7)")
vCNT = 248
sKG, sKL, sKS, sKP = 97, 85, 88, 96
e(f"v_and_b32 v{ACC+2}, 7, v{vL}")
e(f"v_lshlrev_b32 v{ACC+2}, 7, v{ACC+2}")
e(f"s_lshl_b32 s{sKP}, s{sA}, 10")
e(f"s_add_u32 s{sKP}, s{sKP}, {FL_KV}")
e(f"s_lshl_b32 s{sT1}, s{sXCD}, 12")
e(f"s_add_u32 s{sT1}, s{sT1}, s{sKP}")
e(f"s_lshl_b32 s{sKL}, s{sA}, 12")
e(f"s_lshl_b32 s{sKG}, s{sXCD}, 14")
e("s_barrier                             ; B2")
stamp(16)
poll("L_pollK0", 1, ACC+2, 8, [sT1])
stamp(3)
def kvdma(G):
    e(f"s_add_u32 m0, s{sKL}, {16384*G}")
    e(f"s_add_u32 s{sKS}, s{sKG}, s{sKL}")
    for i in range(4): e(f"buffer_load_dwordx4 v2, {sr(R_WS,4)}, s{sKS} offen offset:{1024*i} sc1 lds")
    if G < 7:
        e(f"s_add_u32 s{sKG}, s{sKG}, 16384")
        e(f"s_and_b32 s{sKG}, s{sKG}, 0x1ffff")
kvdma(0)
if opt['prepoll']:
    cm("one early look at the flags of all other key tiles; its latency overlaps the first tiles' landing")
    e(f"v_lshrrev_b32 v{ACC+4}, 3, v{vL}")
    e(f"v_lshlrev_b32 v{ACC+4}, 12, v{ACC+4}")
    e(f"v_add_u32 v{ACC+4}, v{ACC+4}, v{ACC+2}")
    e(f"buffer_load_dwordx2 {vr(ACC+6,2)}, v{ACC+4}, {sr(R_WS,4)}, s{sKP} offen sc1")
e(f"s_cmp_eq_u32 s{sRET}, 1")
e("s_cbranch_scc0 L_addr_2")
lab("L_addr")
srd(R_SRE, P_SRE, 8388608)
srd(R_SIM, P_SIM, 8388608)
srd(R_XB, P_XB, 2097152)
srd(R_WO, P_WO, 524288)
srd(R_OUT, P_OUT, 4194304)
sT1S, sEB, sTT, sS2, sCB = 98, 99, 100, 101, 79
R_HRE, R_HIM = R_XA, R_W
e(f"s_and_b32 s{sT0}, s{sJ}, 3")
e(f"s_lshl_b32 s{sT1S}, s{sXCD}, 2")
e(f"s_add_u32 s{sT1S}, s{sT1S}, s{sT0}       ; t1s")
e(f"s_lshr_b32 s{sT0}, s{sJ}, 2")
e(f"s_lshl_b32 s{sT0}, s{sT0}, 1")
e(f"s_lshr_b32 s{sEB}, s{sA}, 1")
e(f"s_add_u32 s{sEB}, s{sEB}, s{sT0}         ; eb")
e(f"s_and_b32 s{sTT}, s{sA}, 1               ; tt")
e(f"s_and_b32 s{sT0}, s{sJ}, 3")
e(f"s_lshl_b32 s{sT0}, s{sT0}, 1")
e(f"s_lshl_b32 s{sS2}, s{sXCD}, 3")
e(f"s_add_u32 s{sS2}, s{sS2}, s{sT0}")
e(f"s_add_u32 s{sS2}, s{sS2}, s{sTT}         ; s2 = 8 xcd + 2 (j&3) + (a&1)")
e(f"s_mov_b32 s{sCB}, s{sEB}                 ; cb = 2 (j>>2) + (a>>1)")
srd(R_HRE, P_HRE, 524288)
srd(R_HIM, P_HIM, 524288)
e(f"v_and_b32 v3, 31, v{vL}                ; n")
e(f"v_lshrrev_b32 v4, 5, v{vL}             ; h")
e(f"s_lshl_b32 s{sT0}, s{sTT}, 5")
e(f"v_add_u32 v5, s{sT0}, v3")
e("v_lshlrev_b32 v5, 5, v5")
e(f"v_add_u32 v13, s{sT1S}, v5")
vG0, vG1, vRX, vRW = 240, 242, 244, 246
vDRE, vDIM = 251, 252
vB2A, vB2O, vHA, vWOD, vWOT, vOF, vOUT, vPH, vPK, vF = 4, 3, 15, 14, 0, 5, 6, 7, 12, 13
cm("B1 staging, loader side: wave a fills block a (0,1: x_B rows of s2, s2+1; 2,3: DFT rows of cb, cb+1),")
cm("16 rows x 64 B per load, row r -> rho = 8*bit2 + 4*bit3 + (r&3), 16-B chunk (l&3) ^ ((l>>4)&3)")
e(f"v_bfe_u32 v5, v{vL}, 2, 2")
e(f"v_bfe_u32 v6, v{vL}, 4, 1")
e("v_lshl_add_u32 v5, v6, 3, v5")
e("v_lshl_add_u32 v5, v4, 2, v5            ; rho")
e(f"v_lshrrev_b32 v6, 4, v{vL}")
e(f"v_xor_b32 v6, v6, v{vL}")
e("v_and_b32 v6, 3, v6")
e("v_lshlrev_b32 v6, 4, v6                 ; chunk * 16")
e(f"s_and_b32 s{sT0}, s{sS2}, -2")
e(f"s_add_u32 s{sT0}, s{sT0}, s{sA}")
e(f"s_lshl_b32 s{sT0}, s{sT0}, 10")
e(f"s_and_b32 s{sT1}, s{sCB}, -2")
e(f"s_add_u32 s{sT1}, s{sT1}, s{sTT}")
e(f"s_lshl_b32 s{sT1}, s{sT1}, 14")
e(f"s_add_u32 s{sT2}, s{sT0}, 0x100000")
e(f"s_cmp_lt_u32 s{sA}, 2")
e(f"s_cselect_b32 s{sT3}, 16, 10")
e(f"s_cselect_b32 s{sT0}, s{sT0}, s{sT1}")
e(f"s_cselect_b32 s{sT2}, s{sT2}, s{sT1}")
e(f"s_cselect_b64 {sr(sX,2)}, {sr(P_XB,2)}, {sr(P_HRE,2)}")
e(f"s_cselect_b64 {sr(sST,2)}, {sr(P_XB,2)}, {sr(P_HIM,2)}")
e(f"v_lshlrev_b32 v5, s{sT3}, v5")
e("v_add_u32 v5, v5, v6")
e(f"v_add_u32 v7, s{sT0}, v5")
e(f"v_mov_b32 v{vG0+1}, s{sX+1}")
e(f"v_add_co_u32 v{vG0}, vcc, s{sX}, v7")
e(f"v_add_u32 v7, s{sT2}, v5")
e(f"v_mov_b32 v{vG1+1}, s{sST+1}")
e(f"v_addc_co_u32 v{vG0+1}, vcc, 0, v{vG0+1}, vcc")
e(f"v_add_co_u32 v{vG1}, vcc, s{sST}, v7")
e(f"s_lshl_b32 s{sT1}, s{sT1}, 2")
e(f"s_add_u32 s{sT1}, s{sT1}, s{sA}")
e(f"v_addc_co_u32 v{vG1+1}, vcc, 0, v{vG1+1}, vcc")
e(f"s_cmp_eq_u32 s{sT1}, 2")
e("s_cbranch_scc0 L_nospec0")
cm("cb = 0: the im slot of e = 0 (lanes 0..3 of the second load) carries cos row 256")
e("s_mov_b64 exec, 15")
e("v_add_u32 v7, 0x40000, v6")
e(f"v_mov_b32 v{vG1+1}, s{P_HRE+1}")
e(f"v_add_co_u32 v{vG1}, vcc, s{P_HRE}, v7")
e("s_nop 1")
e(f"v_addc_co_u32 v{vG1+1}, vcc, 0, v{vG1+1}, vcc")
e("s_mov_b64 exec, -1")
lab("L_nospec0")
cm("reader side: row m, chunk (2s+h) ^ ((m>>2)&3)")
e("v_bfe_u32 v5, v3, 2, 2")
e("v_xor_b32 v5, v5, v4")
e("v_lshlrev_b32 v5, 4, v5")
e("v_lshl_add_u32 v5, v3, 6, v5")
e(f"s_lshl_b32 s{sT0}, s{sTT}, 11")
e(f"s_add_u32 s{sT0}, s{sT0}, {STG}")
e(f"v_add_u32 v{vRX}, s{sT0}, v5")
e(f"v_xor_b32 v{vRX+1}, 32, v{vRX}")
e(f"s_lshr_b32 s{sT0}, s{sA}, 1")
e(f"s_lshl_b32 s{sT0}, s{sT0}, 11")
e(f"s_add_u32 s{sT0}, s{sT0}, {STG + 4096}")
e(f"v_add_u32 v{vRW}, s{sT0}, v5")
e(f"v_xor_b32 v{vRW+1}, 32, v{vRW}")
vHW, vHW1, vHR, vHS = 250, 253, BUF, BUF + 1
cm("H regrouping: write row t1, chunk (2h+i) ^ ((t1>>2)&3); read lane-linear; store row l>>2, chunk (l&3) ^ ((l>>4)&3)")
e(f"s_lshl_b32 s{sT0}, s{sA}, 11")
e(f"s_add_u32 s{sT0}, s{sT0}, {STG}")
e("v_bfe_u32 v5, v3, 2, 2")
e("v_lshlrev_b32 v7, 1, v4")
e("v_xor_b32 v5, v5, v7")
e("v_lshlrev_b32 v5, 4, v5")
e("v_lshl_add_u32 v5, v3, 6, v5")
e(f"v_add_u32 v{vHW}, s{sT0}, v5")
e(f"v_xor_b32 v{vHW1}, 16, v{vHW}")
e(f"v_add_u32 v{BUF}, s{sT0}, v2")
e(f"v_lshrrev_b32 v5, 2, v{vL}")
e(f"v_mul_u32_u24 v5, {64*HROW}, v5")
e(f"v_add_u32 v{BUF+1}, v5, v6")
cm("e = 256 store address: t1*64*HROW")
e(f"v_mul_u32_u24 v8, {64*HROW}, v3")
e(f"v_lshl_add_u32 v{vHA}, v4, 5, v8")
cm("wo: DMA source offset and transposing read: row 8h+r, 16-B chunk 4cbk + 2(cc&1) + g, byte 8(cc>>1)")
e(f"v_lshrrev_b32 v8, 3, v{vL}")
e(f"v_and_b32 v9, 7, v{vL}")
e(f"v_bfe_u32 v10, v{vL}, 4, 1")
e("v_lshlrev_b32 v10, 2, v10")
e("v_xor_b32 v9, v9, v10")
e("v_lshlrev_b32 v9, 4, v9")
e(f"v_lshl_add_u32 v{vWOD}, v8, 10, v9")
e(f"v_bfe_u32 v9, v{vL}, 2, 2")
e("v_lshl_add_u32 v9, v4, 3, v9")
e("v_lshlrev_b32 v9, 7, v9")
e(f"v_and_b32 v10, 1, v{vL}")
e(f"v_bfe_u32 v11, v{vL}, 4, 1")
e("v_lshl_add_u32 v10, v10, 1, v11")
e(f"s_lshr_b32 s{sT0}, s{sA}, 1")
e(f"s_lshl_b32 s{sT0}, s{sT0}, 2")
e(f"v_add_u32 v10, s{sT0}, v10")
e(f"v_bfe_u32 v11, v{vL}, 3, 1")
e("v_lshlrev_b32 v11, 2, v11")
e("v_xor_b32 v10, v10, v11")
e("v_lshl_add_u32 v9, v10, 4, v9")
e(f"v_bfe_u32 v11, v{vL}, 1, 1")
e("v_lshl_add_u32 v9, v11, 3, v9")
e(f"v_add_u32 v{vWOT}, {STG}, v9")
cm("output projection: out offset, O fragment address")
e(f"s_lshl_b32 s{sT3}, s{sTB}, 1")
e(f"s_and_b32 s{sT4}, s{sA}, 1")
e(f"s_add_u32 s{sT3}, s{sT3}, s{sT4}")
e(f"s_lshl_b32 s{sT3}, s{sT3}, 5")
e(f"v_add_u32 v8, s{sT3}, v3")
e("v_lshlrev_b32 v8, 11, v8")
e(f"v_lshl_add_u32 v{vOUT}, v4, 5, v8")
e(f"s_lshl_b32 s{sT3}, s{sT4}, 15")
e(f"v_add_u32 v{vOF}, s{sT3}, v2")
e(f"v_lshlrev_b32 v{vPH}, 7, v{vL}")

cm("B2 A rows: e(m) = 32eb + col(m) (eb<8) or 512 - that; col(m) = 16*b2 + 4*(m>>3) + (m&3)")
e("v_and_b32 v8, 3, v3")
e("v_bfe_u32 v9, v3, 2, 1")
e("v_lshl_add_u32 v8, v9, 4, v8")
e("v_lshrrev_b32 v9, 3, v3")
e("v_lshl_add_u32 v8, v9, 2, v8")
e(f"s_lshl_b32 s{sT0}, s{sEB}, 5")
e(f"v_add_u32 v8, s{sT0}, v8")
e("v_sub_u32 v9, 0x200, v8")
e("v_sub_u32 v10, 0x800, v13")
e("v_and_b32 v10, 0x7ff, v10               ; (2048 - ts) & 2047")
e(f"s_cmp_lt_u32 s{sEB}, 8")
e("s_cselect_b64 vcc, 0, -1")
e("v_cndmask_b32 v8, v8, v9, vcc")
e("v_cndmask_b32 v11, v13, v10, vcc")
e("v_lshlrev_b32 v10, 12, v10")
e(f"v_lshl_add_u32 v{vDIM}, v4, 6, v10")
e("v_lshlrev_b32 v10, 12, v13")
e(f"v_lshl_add_u32 v{vDRE}, v4, 6, v10")
e("v_lshlrev_b32 v10, 18, v3")
e(f"v_lshl_add_u32 v{vF}, v4, 4, v10")
e(f"v_lshrrev_b32 v10, 3, v{vL}")
e("v_lshlrev_b32 v10, 5, v10")
e(f"v_and_b32 v9, 7, v{vL}")
e("v_add_u32 v10, v10, v9")
e(f"v_lshlrev_b32 v{vPK}, 7, v10             ; K/V flags 32g + (0..7)")
e("v_lshlrev_b32 v11, 11, v11")
e(f"v_lshl_add_u32 v{vB2O}, v4, 5, v11")
e(f"v_mul_u32_u24 v9, {32*HROW}, v4")
e(f"v_lshl_add_u32 v{vB2A}, v8, 2, v9")
e(f"s_cmp_eq_u32 s{sRET}, 0")
e(f"s_mov_b32 s{sRET}, 2")
e("s_cbranch_scc1 L_tagged")
lab("L_addr_2")
e(f"v_mov_b32 v{vCNT}, {MISC+C_G1}")
vCB = 11 if False else 249
if opt['bytef']: e(f"v_add_u32 v{vCNT+1}, s{sA}, v{vCNT}")
e(f"v_mov_b32 v{vCNT+1}, 1") if not opt['bytef'] else None
e("s_waitcnt vmcnt(0)")
stamp(18)
if opt['prepoll']:
    e(f"v_cmp_ne_u64 vcc, {sr(sNON,2)}, {vr(ACC+6,2)}")
e("s_barrier")
if opt['prepoll']:
    e("s_cmp_eq_u64 vcc, 0")
    e("s_cbranch_scc1 L_kv_all")
poll("L_pollKV", 1, vPK, 8, [sKP], sleep=1)
lab("L_kv_all")
stamp(4)
e("s_setprio 0")
LOW[0] = True
for G in range(1, 3): kvdma(G)
stamp(23)
e("s_waitcnt vmcnt(4)")
stamp(24)
e(f"s_mov_b64 exec, {hex(1 << (1)) if opt['bytef'] else 1}          ; lane {1} stores its lane id")
e(f"ds_write_b8 v{vCNT+1}, v{vL} offset:{0}" if opt['bytef'] else f"ds_add_u32 v{vCNT}, v{vCNT+1} offset:{0}")
e("s_mov_b64 exec, -1")
for G in range(3, 8): kvdma(G)
XF, WF = D1, D1 + 8
cm("pull this workgroup's 1/32 share of what its XCD reads for the spectral part and of wo towards L2")
e(f"s_lshl_b32 s{sT0}, s{sJ}, 13")
e(f"s_cmp_eq_u32 s{sA}, 1")
e("s_cbranch_scc1 L_pf1")
e(f"s_cmp_eq_u32 s{sA}, 2")
e("s_cbranch_scc1 L_pf2")
e(f"s_cmp_eq_u32 s{sA}, 3")
e("s_cbranch_scc1 L_pf3")
e(f"s_lshl_b32 s{sT0}, s{sJ}, 16")
e(f"s_lshl_b32 s{sT1}, s{sXCD}, 13")
e(f"s_add_u32 s{sT0}, s{sT0}, s{sT1}")
e(f"buffer_load_dword v{D2+8}, v{vPH}, {sr(R_XB,4)}, s{sT0} offen")
e("s_branch L_pf4")
lab("L_pf1")
e(f"buffer_load_dword v{D2+8}, v{vPH}, {sr(R_HRE,4)}, s{sT0} offen")
e("s_branch L_pf4")
lab("L_pf2")
e(f"buffer_load_dword v{D2+8}, v{vPH}, {sr(R_HIM,4)}, s{sT0} offen")
e("s_branch L_pf4")
lab("L_pf3")
e(f"s_lshl_b32 s{sT0}, s{sJ}, 14")
e(f"buffer_load_dword v{D2+8}, v{vPH}, {sr(R_WO,4)}, s{sT0} offen")
lab("L_pf4")
sSL, sWOS, sWOB = 30, 31, 96
e(f"s_lshl_b32 s{sSL}, s{sA}, 11")
e(f"s_add_u32 s{sSL}, s{sSL}, {STG}")
e(f"s_lshl_b32 s{sWOS}, s{sHG}, 7")
e(f"s_lshl_b32 s{sT1}, s{sA}, 14")
e(f"s_add_u32 s{sWOB}, s{sWOS}, s{sT1}")
e(f"s_lshr_b32 s{sT1}, s{sA}, 1")
e(f"s_lshl_b32 s{sT1}, s{sT1}, 6")
e(f"s_add_u32 s{sWOS}, s{sWOS}, s{sT1}")
VM = []
def st_dma(n):
    if n >= 24: return
    for i in range(2):
        if n < 16:
            e(f"s_add_u32 m0, s{sSL}, {8192*(n%3) + 1024*i - 64*n}")
            e("s_nop 0")
            e(f"global_load_lds_dwordx4 {vr(vG0 + 2*i, 2)}, off offset:{64*n}" if not opt['abl'] & 2 else "s_nop 0")
        else:
            e(f"s_add_u32 m0, s{sSL}, {8192*(n%3) + 1024*i}")
            e(f"s_add_u32 s{sT1}, s{sWOB}, {65536*(n-16) + 8192*i}")
            e(f"buffer_load_dwordx4 v{vWOD}, {sr(R_WO,4)}, s{sT1} offen lds")
        VM.append(('st', n))
def st_sync(n, between=None):
    last = max(k for k, t in enumerate(VM) if t == ('st', n))
    e(f"s_waitcnt vmcnt({len(VM) - 1 - last}) lgkmcnt(0)")
    e(f"s_mov_b64 exec, {hex(1 << (n + 1)) if opt['bytef'] else 1}          ; lane {n + 1} stores its lane id")
    e(f"ds_write_b8 v{vCNT+1}, v{vL} offset:{C_ST - C_G1}" if opt['bytef'] else f"ds_add_u32 v{vCNT}, v{vCNT+1} offset:{C_ST - C_G1}")
    e("s_mov_b64 exec, -1")
    if between: between()
    e(f"s_mov_b32 s{sSPIN}, {SPIN*8}")
    lab(f"L_st{n}")
    e(f"ds_read_b32 v8, v{vCNT} offset:{C_ST - C_G1}")
    e(f"s_sub_u32 s{sSPIN}, s{sSPIN}, 1")
    e(f"s_cbranch_scc1 L_st{n}_done")
    e("s_waitcnt lgkmcnt(0)")
    if (opt['sp'] if n < 16 else opt['spw']): e("s_setprio 2")
    e(f"v_readfirstlane_b32 s{sT4}, v8")
    e("s_setprio 0")
    if opt['bytef']:
        e(f"s_or_b32 s{sT4}, s{sT4}, 0x80808080")
        e(f"s_sub_u32 s{sT4}, s{sT4}, {hex(0x01010101*(n+1))}")
        e(f"s_and_b32 s{sT4}, s{sT4}, 0x80808080")
        e(f"s_cmp_eq_u32 s{sT4}, 0x80808080")
    else: e(f"s_cmp_ge_u32 s{sT4}, {4*(n+1 - (16 if opt['nob'] else 0))}")
    if opt['ss']:
        e(f"s_cbranch_scc1 L_st{n}_done")
        e(f"s_sleep {opt['ss']}")
        e(f"s_branch L_st{n}")
    else: e(f"s_cbranch_scc0 L_st{n}")
    lab(f"L_st{n}_done")
if not opt['nob']: st_dma(0); st_dma(1)
stamp(17)
e("s_waitcnt vmcnt(5)                    ; younger: one pull, two stages" if not opt['nob'] else "s_waitcnt vmcnt(0)")
e(f"s_mov_b64 exec, {hex(1 << (1)) if opt['bytef'] else 1}          ; lane {1} stores its lane id")
e(f"ds_write_b8 v{vCNT+1}, v{vL} offset:{4}" if opt['bytef'] else f"ds_add_u32 v{vCNT}, v{vCNT+1} offset:{4}")
e("s_mov_b64 exec, -1")
e(f"s_cmp_eq_u32 s{sA}, 3")
e("s_cbranch_scc0 L_pf5")
e(f"s_add_u32 s{sT0}, s{sT0}, 8192")
e(f"buffer_load_dword v{D2+9}, v{vPH}, {sr(R_WO,4)}, s{sT0} offen     ; not counted below: only makes waits stricter")
lab("L_pf5")
stamp(21)
RAW = BP
def b1mfma(n):
    for s_ in range(2 if not opt['nomf'] else 0):
        e(f"v_mfma_f32_32x32x16_bf16 {vr(ACC,16)}, {vr(XF+4*s_,4)}, {vr(WF+4*s_,4)}, {'0' if n==0 and s_==0 else vr(ACC,16)}")
if opt['nob']:
    e("s_branch L_nob1")
NOB0 = len(L)
for n in range(16 if not opt['nob'] else 0):
    st_sync(n, (lambda: b1mfma(n - 1)) if n else None)
    if n + 2 < 16: st_dma(n + 2)
    for s_ in range(2 if not opt['abl'] & 1 else 0):
        e(f"ds_read_b128 {vr(XF+4*s_,4)}, v{vRX+s_} offset:{8192*(n%3)}")
        e(f"ds_read_b128 {vr(WF+4*s_,4)}, v{vRW+s_} offset:{8192*(n%3)}")
    if n == opt['fst']:
        for kb in range(2): e(f"buffer_load_dwordx4 {vr(FR+4*kb,4)}, v{vF}, {sr(R_SRE,4)}, 0 offen offset:{32*kb}")
        for kb in range(2): e(f"buffer_load_dwordx4 {vr(FR+8+4*kb,4)}, v{vF}, {sr(R_SIM,4)}, 0 offen offset:{32*kb}")
        VM += [('F', 0)]*4
e("s_waitcnt lgkmcnt(0)")
b1mfma(15)
stamp(22)
e(f"s_mul_i32 s{sT0}, s{sS2}, {HROW}")
e(f"s_lshl_b32 s{sT1}, s{sCB}, 6")
e(f"s_add_u32 s{sT0}, s{sT0}, s{sT1}")
e(f"s_add_u32 s{sT0}, s{sT0}, {WS_H}")
nop(7)
vZ = D2 + 8 if False else BP
def boost(on):
    e(f"s_setprio {2 if on else 0}"); LOW[0] = not on
boost(opt['eb'] & 1)
for i in range(8): e(f"v_cvt_pk_bf16_f32 v{vZ+i}, v{ACC+2*i}, v{ACC+2*i+1}")
boost(0)
nop(1)
e(f"v_mfma_f32_32x32x16_bf16 {vr(D1,16)}, {vr(vZ,4)}, {vr(FR,4)}, 0")
e(f"v_mfma_f32_32x32x16_bf16 {vr(D2,16)}, {vr(vZ,4)}, {vr(FR+8,4)}, 0")
e(f"v_mfma_f32_32x32x16_bf16 {vr(D1,16)}, {vr(vZ+4,4)}, {vr(FR+4,4)}, {vr(D1,16)}")
e(f"v_mfma_f32_32x32x16_bf16 {vr(D2,16)}, {vr(vZ+4,4)}, {vr(FR+12,4)}, {vr(D2,16)}")
nop(11)
boost(1)
for r in range(8):
    e(f"v_sub_f32 v{ACC+r}, v{D1+r}, v{D2+8+r}")
    e(f"v_add_f32 v{ACC+8+r}, v{D2+r}, v{D1+8+r}")
e(f"s_cmp_eq_u32 s{sCB}, 0")
e("s_cbranch_scc0 L_nospecial")
cm("columns e = 0 and e = 256 (both purely real rows): lanes 0..31, register 0")
e("s_mov_b32 exec_hi, 0")
e(f"v_mov_b32 v{ACC}, v{D1}")
e(f"v_mov_b32 v{ACC+8}, v{D2}")
e(f"v_cvt_pk_bf16_f32 v8, v{D1+8}, v{D2+8}")
e(f"buffer_store_dword v8, v{vHA}, {sr(R_WS,4)}, s{sT0} offen offset:1024 sc1")
e("s_mov_b64 exec, -1")
lab("L_nospecial")
for r in range(8): e(f"v_cvt_pk_bf16_f32 v{D1+r}, v{ACC+r}, v{ACC+8+r}")
boost(0)
cm("lane (t1, h) holds 32 B of row t1: regroup through LDS so that 4 adjacent lanes store one 64-B run")
e(f"ds_write_b128 v{vHW}, {vr(D1,4)} offset:8192")
e(f"ds_write_b128 v{vHW1}, {vr(D1+4,4)} offset:8192")
e("s_waitcnt lgkmcnt(0)")
e(f"ds_read_b128 {vr(D1+8,4)}, v{vHR} offset:8192")
e(f"ds_read_b128 {vr(D1+12,4)}, v{vHR} offset:9216")
e(f"s_add_u32 s{sT1}, s{sT0}, {16*64*HROW}")
e("s_waitcnt lgkmcnt(0)")
e(f"buffer_store_dwordx4 {vr(D1+8,4)}, v{vHS}, {sr(R_WS,4)}, s{sT0} offen sc1")
e(f"buffer_store_dwordx4 {vr(D1+12,4)}, v{vHS}, {sr(R_WS,4)}, s{sT1} offen sc1")
if opt['nob']: lab("L_nob1")
if not opt['nowo']: st_dma(16); st_dma(17)
if opt['nob']: e("s_branch L_nob2")
def rawloads():
    global VM
    cm("rows of the sequence DFT matrices for B2")
    for i in range(4): e(f"buffer_load_dwordx4 {vr(RAW+4*i,4)}, v{vDRE}, {sr(R_SRE,4)}, 0 offen offset:{16*i}")
    for i in range(4): e(f"buffer_load_dwordx4 {vr(RAW+16+4*i,4)}, v{vDIM}, {sr(R_SIM,4)}, 0 offen offset:{16*i}")
    VM += [('raw', 0)]*8
if not opt['rawlate']: rawloads()
e(f"s_lshl_b32 s{sT1}, s2, 7")
e(f"s_add_u32 s{sT1}, s{sT1}, {FL_H}")
stamp(19)
e(f"s_waitcnt vmcnt({4 if opt['rawlate'] else 12})")
stamp(20)
boost(1)
signal("L_sigH", C_H, 3, sT1, 8)
stamp(5)
def bploc(o): return FR + o if o < 16 else (RAW + o - 16 if o < 24 else RAW + 16 + o - 24)
def perms():
    e(f"s_mov_b32 s{sT2}, 0x05040100")
    e(f"s_mov_b32 s{sT3}, 0x07060302")
    for i in range(16):
        e(f"v_perm_b32 v{bploc(2*i)}, v{RAW+16+i}, v{RAW+i}, s{sT2}")
        e(f"v_perm_b32 v{bploc(2*i+1)}, v{RAW+16+i}, v{RAW+i}, s{sT3}")
if not opt['b2tail']: perms()
boost(0)
if opt['rawlate'] and not opt['abl'] & 4: rawloads()
if opt['nob']: lab("L_nob2")
def wo_stage(n):
    if opt['nowo']: return
    st_sync(n)
    st_dma(n + 2)
    for k in range(4):
        ks = 4*(n - 16) + k
        e(f"ds_read_b64_tr_b16 {vr(BUF+4*ks,2)}, v{vWOT} offset:{8192*(n%3) + 2048*k}")
        e(f"ds_read_b64_tr_b16 {vr(BUF+4*ks+2,2)}, v{vWOT} offset:{8192*(n%3) + 2048*k + 512}")
for n in range(16, 16 + opt['wsplit']): wo_stage(n)
stamp(6)
boost(1)
if opt['pre']:
    cm("aux wave 2 touches the O lines this workgroup will write and the 8 flags of its token block")
    e(f"s_cmp_eq_u32 s{sA}, 2")
    e("s_cbranch_scc0 L_nopre")
    e(f"v_lshrrev_b32 v8, 5, v{vL}")
    e(f"v_and_b32 v9, 31, v{vL}")
    e("v_lshlrev_b32 v9, 7, v9")
    e("v_lshl_add_u32 v8, v8, 15, v9")
    e(f"s_lshl_b32 s{sT0}, s{sTB}, 16")
    e(f"s_lshl_b32 s{sT1}, s{sHG}, 12")
    e(f"s_add_u32 s{sT0}, s{sT0}, s{sT1}")
    e(f"s_add_u32 s{sT0}, s{sT0}, {WS_O}")
    e(f"buffer_load_dword v10, v8, {sr(R_WS,4)}, s{sT0} offen sc1")
    e(f"v_and_b32 v9, 0xf80, v{vPH}")
    e(f"s_lshl_b32 s{sT0}, s{sTB}, 12")
    e(f"s_add_u32 s{sT0}, s{sT0}, {FL_O}")
    e(f"buffer_load_dword v11, v9, {sr(R_WS,4)}, s{sT0} offen sc1")
    e("s_waitcnt vmcnt(0)")
    lab("L_nopre")
cm("aux wave 1: XCD ids of the 8 workgroups of this token block: ids 32*hg + (id & 31)")
e(f"s_cmp_eq_u32 s{sA}, 1")
e("s_cbranch_scc0 L_nosame")
e(f"v_and_b32 v8, 7, v{vL}")
e("v_lshlrev_b32 v8, 12, v8")
e(f"s_and_b32 s{sT0}, s2, 31")
e(f"s_lshl_b32 s{sT0}, s{sT0}, 7")
e(f"s_add_u32 s{sT0}, s{sT0}, {FL_X}")
e(f"buffer_load_dwordx2 v[10:11], v8, {sr(R_WS,4)}, s{sT0} offen sc1")
e(f"s_getreg_b32 s{sX}, hwreg(HW_REG_XCC_ID, 0, 4)")
e(f"s_or_b32 s{sX}, s{sX}, s{sNON}")
e(f"s_mov_b32 s{sX+1}, s{sNON+1}")
e(f"v_mov_b32 v9, {MISC+C_SAME}")
e("s_waitcnt vmcnt(0)")
e(f"v_cmp_ne_u64 vcc, {sr(sX,2)}, v[10:11]")
e("s_nop 0")
e("s_cmp_eq_u64 vcc, 0")
e(f"s_cselect_b32 s{sT0}, {1 if opt['fast'] else 0}, 0")
e(f"v_mov_b32 v11, s{sT0}")
e("ds_write_b32 v9, v11")
lab("L_nosame")
if opt['nob'] or opt['abl'] & 4: e("s_branch L_b2done")
cm("B2: wait for the H rows it reads: column groups ebg (direct) or 7-ebg and (8-ebg)&3 (mirrored)")
e(f"s_cmp_eq_u32 s{sA}, 0")
e("s_cbranch_scc0 L_hwait")
e(f"s_lshr_b32 s{sT2}, s{sJ}, 2              ; ebg")
e(f"s_sub_u32 s{sT0}, 7, s{sT2}")
e(f"s_sub_u32 s{sT1}, 8, s{sT2}")
e(f"s_and_b32 s{sT1}, s{sT1}, 3")
e(f"s_cmp_lt_u32 s{sT2}, 4")
e(f"s_cselect_b32 s{sT0}, s{sT2}, s{sT0}")
e(f"s_cselect_b32 s{sT1}, s{sT2}, s{sT1}")
e(f"s_lshl_b32 s{sT0}, s{sT0}, 13")
e(f"s_lshl_b32 s{sT1}, s{sT1}, 13")
e(f"s_add_u32 s{sT0}, s{sT0}, {FL_H}")
e(f"s_add_u32 s{sT1}, s{sT1}, {FL_H}")
poll("L_pollH", 2, vPH, 8, [sT0, sT1], sleep=8)
e(f"v_mov_b32 v10, {MISC+C_HOK}")
e("v_mov_b32 v11, 1")
e("ds_write_b32 v10, v11")
e("s_branch L_hok")
lab("L_hwait")
lds_wait("L_hw", C_HOK, 1, 10, sleep=8)
lab("L_hok")
boost(0)
stamp(7)
e(f"s_mul_i32 s{sT0}, s{sT1S}, {64*HROW}")
e(f"s_add_u32 s{sT0}, s{sT0}, {WS_H}")
AF = 208
for kb in range(8):
    for w in range(4): e(f"buffer_load_dword v{AF+4*kb+w}, v{vB2A}, {sr(R_WS,4)}, s{sT0} offen offset:{w*HROW} sc1")
    if kb < 7: e(f"s_add_u32 s{sT0}, s{sT0}, {4*HROW}")
VM += [('A', 0)]*32
sB2 = 88
def b2compute(low):
    e(f"s_lshl_b32 s{sB2}, s{sEB}, 6")
    e(f"s_add_u32 s{sB2}, s{sB2}, 1024")
    for kb in range(8):
        if low: e(f"s_waitcnt vmcnt({28-4*kb})")
        e(f"v_mfma_f32_32x32x16_bf16 {vr(ACC,16)}, {vr(AF+4*kb,4)}, {vr(bploc(4*kb),4)}, {'0' if kb==0 else vr(ACC,16)}")
    nop(11 if low else 12)
    if low: boost(1)
    for i in range(8): e(f"v_cvt_pk_bf16_f32 v{AF+8+i}, v{ACC+2*i}, v{ACC+2*i+1}")
    if low: b2store()
vRG, vS0, vS1, vO0 = 240, 241, 242, 243
def regroup(src, dst):
    e(f"ds_write_b128 v{vHW}, {vr(src,4)} offset:8192")
    e(f"ds_write_b128 v{vHW1}, {vr(src+4,4)} offset:8192")
    e("s_waitcnt lgkmcnt(0)")
    e(f"ds_read_b128 {vr(dst,4)}, v{vRG} offset:8192")
    e(f"ds_read_b128 {vr(dst+4,4)}, v{vRG} offset:9216")
def rg_addr():
    e(f"v_add_u32 v{vRG}, s{sSL}, v2")
    e(f"v_lshrrev_b32 v8, 4, v{vL}")
    e(f"v_xor_b32 v8, v8, v{vL}")
    e("v_and_b32 v8, 3, v8")
    e("v_lshlrev_b32 v8, 4, v8                 ; chunk * 16")
    e(f"v_lshrrev_b32 v9, 2, v{vL}              ; r")
    e(f"s_lshl_b32 s{sT3}, s{sTB}, 1")
    e(f"s_add_u32 s{sT3}, s{sT3}, s{sTT}")
    e(f"s_lshl_b32 s{sT3}, s{sT3}, 5")
    e(f"v_add_u32 v10, s{sT3}, v9")
    e("v_lshlrev_b32 v10, 11, v10")
    e(f"v_add_u32 v{vO0}, v10, v8")
    e(f"s_lshl_b32 s{sT3}, s{sTT}, 10")
    e(f"s_add_u32 s{sT3}, s{sT3}, s{sT1S}")
    e(f"v_lshl_add_u32 v9, v9, 5, s{sT3}         ; ts")
    e("v_add_u32 v10, 0x200, v9")
    e("v_sub_u32 v11, 0x800, v9")
    e("v_and_b32 v11, 0x7ff, v11")
    e(f"v_sub_u32 v{vS1}, 0x800, v10")
    e(f"s_cmp_lt_u32 s{sEB}, 8")
    e("s_cselect_b64 vcc, 0, -1")
    e("v_cndmask_b32 v9, v9, v11, vcc")
    e(f"v_cndmask_b32 v10, v10, v{vS1}, vcc")
    e(f"v_lshl_add_u32 v{vS0}, v9, 11, v8")
    e(f"v_lshl_add_u32 v{vS1}, v10, 11, v8")
def b2store():
    if opt['rg'] & 1:
        e(f"buffer_store_dwordx4 {vr(AF+16,4)}, v{vS0}, {sr(R_OUT,4)}, s{sB2} offen{OSC}")
        e(f"buffer_store_dwordx4 {vr(AF+20,4)}, v{vS1}, {sr(R_OUT,4)}, s{sB2} offen{OSC}")
        return
    e(f"buffer_store_dwordx4 {vr(AF+8,4)}, v{vB2O}, {sr(R_OUT,4)}, s{sB2} offen{OSC}")
    e(f"buffer_store_dwordx4 {vr(AF+12,4)}, v{vB2O}, {sr(R_OUT,4)}, s{sB2} offen offset:16{OSC}")
if not opt['b2tail']: b2compute(True)
lab("L_b2done")
boost(0)
stamp(8)
for n in range(16 + opt['wsplit'], 24): wo_stage(n)
e("s_waitcnt vmcnt(0) lgkmcnt(0)")
if opt['b2s']:
    boost(1)
    perms()
    rg_addr()
    boost(0)
    e(f"s_lshl_b32 s{sB2}, s{sEB}, 6")
    e(f"s_add_u32 s{sB2}, s{sB2}, 1024")
    for kb in range(8):
        e(f"v_mfma_f32_32x32x16_bf16 {vr(ACC,16)}, {vr(AF+4*kb,4)}, {vr(bploc(4*kb),4)}, {'0' if kb==0 else vr(ACC,16)}")
    nop(11)
    boost(1)
    for i in range(8): e(f"v_cvt_pk_bf16_f32 v{AF+8+i}, v{ACC+2*i}, v{ACC+2*i+1}")
    boost(0)
    regroup(AF+8, AF+16)
    e("s_waitcnt lgkmcnt(0)")
    sc = " sc1" if opt['b2s'] == 1 else ""
    e(f"buffer_store_dwordx4 {vr(AF+16,4)}, v{vS0}, {sr(R_OUT,4)}, s{sB2} offen{sc}")
    e(f"buffer_store_dwordx4 {vr(AF+20,4)}, v{vS1}, {sr(R_OUT,4)}, s{sB2} offen{sc}")
stamp(10)
warm("L_padt", "L_pado_ret")
cm("tail: the attention waves bring the O tile -> LDS 0..")
e("s_barrier                             ; B7")
LOW[0] = False
stamp(9)
if opt['b2tail'] and not opt['nob'] and not opt['abl'] & 20 and not opt['b2s']:
    cm("second spectral stage: operands are in registers, the matrix pipe is free until the O tile lands")
    perms()
    if opt['rg']: rg_addr()
    b2compute(False)
    if opt['rg'] & 1:
        regroup(AF+8, AF+16)
        e("s_waitcnt lgkmcnt(0)")
e(f"s_mov_b32 s{sT0}, s{sWOS}")
stamp(11)
e("s_barrier                             ; B8a")
pad_begin("L_pado")
OF = 144
korder = [h for st in range(4) for h in range(32) if (h % 8) // 2 == st]
PD = opt['opd']
def ofrag(n): e(f"ds_read_b128 {vr(OF+4*(n%8),4)}, v{vOF} offset:{1024*korder[n]}")
for n in range(PD): ofrag(n)
if opt['b2at'] == 0 and opt['b2tail'] and not opt['nob'] and not opt['abl'] & 28 and not opt['b2s']: b2store()
for n in range(32):
    if n + PD in (8, 16, 24):
        e(f"s_barrier                             ; B8.{(n+PD)//8}")
        if n + PD == opt['b2at'] and opt['b2tail'] and not opt['nob'] and not opt['abl'] & 28 and not opt['b2s']: b2store()
    if n + PD < 32:
        ofrag(n + PD)
        e(f"s_waitcnt lgkmcnt({PD})")
    else:
        e(f"s_waitcnt lgkmcnt({31-n})")
    e(f"v_mfma_f32_32x32x16_bf16 {vr(ACC,16)}, {vr(BUF+4*korder[n],4)}, {vr(OF+4*(n%8),4)}, {'0' if n==0 else vr(ACC,16)}")
nop(12)
for i in range(8): e(f"v_cvt_pk_bf16_f32 v{D1+i}, v{ACC+2*i}, v{ACC+2*i+1}")
if opt['rg'] & 2:
    regroup(D1, D1+8)
    e(f"s_add_u32 s{sT1}, s{sT0}, {16*2048}")
    e("s_waitcnt lgkmcnt(1)")
    e(f"buffer_store_dwordx4 {vr(D1+8,4)}, v{vO0}, {sr(R_OUT,4)}, s{sT0} offen{OSC}")
    e("s_waitcnt lgkmcnt(0)")
    e(f"buffer_store_dwordx4 {vr(D1+12,4)}, v{vO0}, {sr(R_OUT,4)}, s{sT1} offen{OSC}")
else:
    e(f"buffer_store_dwordx4 {vr(D1,4)}, v{vOUT}, {sr(R_OUT,4)}, s{sT0} offen{OSC}")
    e(f"buffer_store_dwordx4 {vr(D1+4,4)}, v{vOUT}, {sr(R_OUT,4)}, s{sT0} offen offset:16{OSC}")
pad_end("L_pado", "L_pado_ret")
if opt['dbgt']:
    e(f"s_cmp_lt_u32 s2, 6")
    e("s_cbranch_scc0 L_end")
    e(f"s_cmp_eq_u32 s{sW}, 4")
    e("s_cbranch_scc0 L_end")
    e("s_waitcnt vmcnt(0)")
    e(f"s_memrealtime {sr(sST,2)}")
    e("s_waitcnt lgkmcnt(0)")
    e(f"v_mov_b32 v4, s{sST}")
    e(f"s_lshl_b32 s{sT0}, s2, 2")
    e(f"s_add_u32 s{sT0}, s{sT0}, 40")
    e("s_mov_b64 exec, 1")
    e(f"buffer_store_dword v4, off, {sr(R_DBG,4)}, s{sT0}")
if opt['endat']:
    lab("L_endat")
    e(f"s_memrealtime {sr(sX,2)}")
    e("s_waitcnt lgkmcnt(0)")
    e(f"s_sub_u32 s{sX}, s{sX}, s30")
    e(f"s_cmp_lt_u32 s{sX}, {opt['endat']}")
    e("s_cbranch_scc1 L_endat")
stamp(12)
if opt['stamps']: e("s_waitcnt vmcnt(0)")
stamp(13)
stamp_dump()
lab("L_end")
e("s_endpgm")
lab("L_codeend")
L.append(f""".section .rodata,"a"
.p2align 6
.amdhsa_kernel {NAME}_kernel
  .amdhsa_next_free_vgpr 256
  .amdhsa_next_free_sgpr 102
  .amdhsa_accum_offset 256
  .amdhsa_group_segment_fixed_size 0
  .amdhsa_kernarg_size 104
  .amdhsa_user_sgpr_count 2
  .amdhsa_user_sgpr_kernarg_segment_ptr 1
  .amdhsa_system_sgpr_workgroup_id_x 1
.end_amdhsa_kernel""")

def finish(lines, ncode):
    out = []
    for l in lines:
        if l.strip() == "CODEPF":
            for i in range(ncode // 8192):
                out.append(f"    global_load_dword v200, v[212:213], off")
                out.append(f"    v_add_co_u32 v212, vcc, 0x2000, v212")
                out.append(f"    s_nop 1")
                out.append(f"    v_addc_co_u32 v213, vcc, 0, v213, vcc")
            rem = (ncode % 8192) // 128
            if rem:
                out.append(f"    v_cmp_gt_u32 vcc, {rem}, v{vL}")
                out.append(f"    s_nop 0")
                out.append(f"    s_and_saveexec_b64 {sr(sX,2)}, vcc")
                out.append(f"    global_load_dword v200, v[212:213], off")
                out.append(f"    s_mov_b64 exec, -1")
        else: out.append(l)
    return "\n".join(out) + "\n"
import subprocess, os, hazcheck
ncode = 16384
for _ in range(3):
    txt = finish(L, ncode)
    open("_g.s", "w").write(txt)
    r = subprocess.run(["clang", "-x", "assembler", "-target", "amdgcn-amd-amdhsa", "-mcpu=gfx950", "-c", "_g.s", "-o", "_g.o"], capture_output=True, text=True)
    if r.returncode: print(r.stderr[:3000]); sys.exit(1)
    sz = subprocess.run(["llvm-objdump", "-h", "_g.o"], capture_output=True, text=True).stdout
    n = [int(x.split()[2], 16) for x in sz.splitlines() if " .text " in x][0]
    if n // 128 * 128 == ncode: break
    ncode = n // 128 * 128
open(sys.argv[1], "w").write(txt)
print(hazcheck.check(txt), "hazards; code bytes", n)
```

```python
import sys, struct
NAME = "concat_heads__grouped_kv_mqa__spectral_fnet__prompt"
opt = dict(stamps=0, prioA=1, prioX=2, boost=1, force_fb=0, dbgt=0, dry=0, codepf=0, shift=102, outsc1=0, cluster=1, fast=1, nob=0, l2pf=0, wo1=4, hold=1, pre=1, pads=0, dxcc=-1, dus=300, endat=0, omode=1, b2tail=1, kvd=3, h1=1, h2=4, fs=3, ntc=9, nowo=0, nodsw=0, nomf=0, sp=1, ss=1, wsplit=8, attpf=0, rawlate=1, dftpf=1, fst=6, spw=0, eb=1, qloop=0, padt=0, opd=4, b2at=8, abl=0, preo=0, rg=0, prepoll=0, lwarm=0, csync=0, bytef=0, first=1, b2s=0, mt=1, win=8, win2=8, pa=0, baat=0)
for a in sys.argv[2:]:
    k, v = a.split('='); opt[k] = int(v)

L = []
DOC = '''; ---------------------------------------------------------------------------------------------------------------
; One persistent launch, 256 workgroups (one per CU) x 8 waves.  Workgroup id -> xcd = id & 7 (locality hint only),
;       S^T = K Q^T + C by MFMA (C = -(stand-in max + shift), scale folded into Q), v_exp_f32 in place, and
;       P V by the 2:4 sparse MFMA whose index picks the upper halves of the fp32 registers (bf16 by truncation);
;       a row of constants in the V operand yields the row sum.  The stand-in max is checked after the loop and
;   waves 4..7 ("aux"): K or V projection of 16 tokens, K/V streaming into LDS, the spectral part
; Hand-offs between workgroups go through d_ws: data stores, s_waitcnt, then a flag (one 128-B line each) holding
; flags from stale ones.  Stores are write-through (sc1) unless all workgroups of the hand-off reported the same XCD;
; ---------------------------------------------------------------------------------------------------------------'''
def e(s=""): L.append("    " + s)
def lab(s): L.append(s + ":")
def cm(s): L.append("    ; " + s)
def vr(a, n): return f"v[{a}:{a+n-1}]" if n > 1 else f"v{a}"
def sr(a, n): return f"s[{a}:{a+n-1}]" if n > 1 else f"s{a}"
def nop(n):
    while n > 0:
        k = min(n, 16); e(f"s_nop {k-1}"); n -= k
def f2u(x): return struct.unpack('<I', struct.pack('<f', x))[0]
OSC = " sc1" if opt['outsc1'] else ""

W_OFF = 0
X_OFF, XROW = 16384, 1040
WQ_OFF = 82944
ONES_OFF = 155648
MISC = ONES_OFF + 1024
STG = 131072
LDS_BYTES = 163840
C_KV, C_H, C_O, C_TAG, C_HOK, C_SAME, C_CR, C_QA, C_QB, C_G1, C_KVL, C_ST = 0, 4, 8, 16, 24, 28, 32, 36, 40, 44, 48, 52
WS_KV, WS_O, WS_H, WS_FL = 0, 0x40000, 0x240000, 0x480000
FL_KV, FL_H, FL_X, FL_O = WS_FL, WS_FL + 0x8000, WS_FL + 0x10000, WS_FL + 0x20000
WS_STAMP = 0x4C0000
WS_SIZE = 0x560000
HROW = 1152
FOUR = 0x01010101 if opt['bytef'] else 4
SPIN = 400000
VSCALE = 64
P_XA, P_WQ, P_WK, P_WV, P_WO, P_XB, P_SRE, P_SIM = 4, 6, 8, 10, 12, 14, 16, 18
P_HRE, P_HIM, P_OUT, P_DBG, P_WS = 20, 22, 24, 26, 28
R_XA, R_WQ, R_W, R_WS, R_WO, R_XB, R_SRE, R_SIM, R_OUT, R_DBG = 32, 36, 40, 44, 48, 52, 56, 60, 64, 68
sW, sXCD, sJ, sTB, sHG, sTHP, sA = 72, 73, 74, 75, 76, 77, 78
sT0, sT1, sT2, sT3, sT4 = 80, 81, 82, 83, 84
sDRY = 85
sNON = 86
sIT, sINC, sFB, sSPIN = 88, 89, 90, 91
sX = 92
sST = 94
sBARN = 96
sRET = 90

def srd(r, p, size):
    e(f"s_mov_b32 s{r}, s{p}")
    e(f"s_and_b32 s{r+1}, s{p+1}, 0xffff")
    e(f"s_mov_b32 s{r+2}, {hex(size)}")
    e(f"s_mov_b32 s{r+3}, 0x20000")

LOW = [False]
vL = 1
def stamp(idx):
    if not opt['stamps']: return
    e(f"s_memrealtime {sr(sST,2)}")
    e(f"s_memtime {sr(sX,2)}")
    e("s_waitcnt lgkmcnt(0)")
    if LOW[0]: e("s_setprio 2")
    e(f"v_writelane_b32 v254, s{sST}, {idx}")
    e(f"v_writelane_b32 v255, s{sX}, {idx}")
    if LOW[0]: e("s_setprio 0")
def stamp_dump():
    if not opt['stamps']: return
    e(f"s_lshl_b32 s{sST}, s2, 3")
    e(f"s_add_u32 s{sST}, s{sST}, s{sW}")
    e(f"s_lshl_b32 s{sST}, s{sST}, 8")
    e(f"s_add_u32 s{sST}, s{sST}, {WS_STAMP}")
    e(f"v_lshlrev_b32 v253, 3, v{vL}")
    e("s_mov_b32 exec_hi, 0")
    e(f"buffer_store_dwordx2 v[254:255], v253, {sr(R_WS,4)}, s{sST} offen")

PADS = {}
def pad_begin(name): PADS[name] = len(L)
def isize(l):
    t = l.strip()
    if not t or t.startswith((';', '.')) or t.endswith(':'): return 0
    t = t.split(';')[0]
    mn = t.split()[0]
    if mn.startswith(('buffer_', 'global_', 'ds_', 'v_mfma', 'v_smfmac', 's_load', 's_mem')): return 8
    if mn.startswith('v_') and (mn.endswith('_e64') or mn in ('v_lshl_add_u32', 'v_bfe_u32', 'v_perm_b32', 'v_max3_f32', 'v_cvt_pk_bf16_f32', 'v_writelane_b32', 'v_mul_u32_u24', 'v_cmp_ne_u64')): return 8
    import re as _r
    for o in _r.findall(r'(?<![\w\[:])(-?0x[0-9a-f]+|-?\d+)(?![\w\]:])', (t.split(None, 1) + [''])[1]):
        v = int(o, 0)
        if not mn.startswith(('s_waitcnt', 's_nop', 's_sleep', 's_setprio')) and not -16 <= v <= 64: return 8
    return 4
def pad_end(name, ret):
    a = PADS[name]
    if not (opt['pads'] if name == "L_padq" else opt['padt']):
        L.insert(a, f"{name}_0:"); L.insert(a + 1, f"    s_cbranch_execz {ret}"); return
    body = L[a:]; del L[a:]
    n = 0; acc = 0
    L.append(f"{name}_0:"); L.append(f"    s_cbranch_execz {name}_1")
    for l in body:
        z = isize(l)
        prev = L[-1].strip()
        if acc + z > 56 and not prev.startswith(('s_mov_b32 m0', 's_add_u32 m0')):
            n += 1; L.append(f"{name}_{n}:"); L.append(f"    s_cbranch_execz {name}_{n+1}"); acc = 0
        L.append(l); acc += z
    n += 1
    L.append(f"{name}_{n}:"); L.append(f"    s_cbranch_execz {ret}")
def warm(name, ret):
    e("s_mov_b64 exec, 0")
    e(f"s_branch {name}_0")
    lab(ret)
    e("s_mov_b64 exec, -1")

def dma(voff, srdr, soff, ldsaddr_s, extra=""):
    e(f"s_mov_b32 m0, s{ldsaddr_s}")
    e("s_nop 0")
    e(f"buffer_load_dwordx4 v{voff}, {sr(srdr,4)}, s{soff} offen {extra}lds")
def dma_run(n, voff, srdr, soff, lds_s, dsrc, dlds, extra=""):
    for i in range(n):
        e(f"s_mov_b32 m0, s{lds_s}")
        if i < n - 1: e(f"s_add_u32 s{lds_s}, s{lds_s}, {dlds}")
        else: e("s_nop 0")
        e(f"buffer_load_dwordx4 v{voff}, {sr(srdr,4)}, s{soff} offen {extra}lds")
        if i < n - 1: e(f"s_add_u32 s{soff}, s{soff}, {dsrc}")

def poll(name, nloads, voff, dst, soffs, sleep=0):
    e(f"s_mov_b32 s{sSPIN}, {SPIN}")
    lab(name)
    for i in range(nloads):
        e(f"buffer_load_dwordx2 {vr(dst+2*i,2)}, v{voff}, {sr(R_WS,4)}, s{soffs[i]} offen sc1")
    e(f"s_sub_u32 s{sSPIN}, s{sSPIN}, 1")
    e(f"s_cmp_eq_u32 s{sSPIN}, 0")
    e(f"s_cbranch_scc1 {name}_done")
    e("s_waitcnt vmcnt(0)")
    e(f"v_cmp_ne_u64 vcc, {sr(sNON,2)}, {vr(dst,2)}")
    for i in range(1, nloads):
        e(f"v_cmp_ne_u64 {sr(sX,2)}, {sr(sNON,2)}, {vr(dst+2*i,2)}")
        e("s_nop 0")
        e(f"s_or_b64 vcc, vcc, {sr(sX,2)}")
    e("s_nop 0")
    e("s_cmp_eq_u64 vcc, 0")
    if sleep:
        e(f"s_cbranch_scc1 {name}_done")
        e(f"s_sleep {sleep}")
        e(f"s_branch {name}")
    else:
        e(f"s_cbranch_scc0 {name}")
    lab(name + "_done")
    e("s_waitcnt vmcnt(0)")

def lds_wait(name, off, value, tmp, sleep=0):
    e(f"s_mov_b32 s{sSPIN}, {SPIN*8}")
    e(f"v_mov_b32 v{tmp}, {MISC + off}")
    lab(name)
    e(f"ds_read_b32 v{tmp+1}, v{tmp}")
    e(f"s_sub_u32 s{sSPIN}, s{sSPIN}, 1")
    e(f"s_cmp_eq_u32 s{sSPIN}, 0")
    e(f"s_cbranch_scc1 {name}_done")
    e("s_waitcnt lgkmcnt(0)")
    e(f"v_readfirstlane_b32 s{sT4}, v{tmp+1}")
    e("s_nop 0")
    e(f"s_cmp_ge_u32 s{sT4}, {value}")
    if sleep:
        e(f"s_cbranch_scc1 {name}_done")
        e(f"s_sleep {sleep}")
        e(f"s_branch {name}")
    else:
        e(f"s_cbranch_scc0 {name}")
    lab(name + "_done")
    e("s_waitcnt lgkmcnt(0)")
def lds_add(off, tmp):
    e(f"v_mov_b32 v{tmp}, {MISC + off}")
    e(f"v_mov_b32 v{tmp+1}, 1")
    e("s_mov_b64 exec, 1")
    e(f"ds_add_u32 v{tmp}, v{tmp+1}")
    e("s_mov_b64 exec, -1")
def tag_from_lds(name, tmp):
    e(f"s_mov_b32 s{sSPIN}, {SPIN*8}")
    e(f"v_mov_b32 v{tmp}, {MISC+C_TAG}")
    lab(name)
    e(f"ds_read_b64 {vr(tmp+2,2)}, v{tmp}")
    e(f"s_sub_u32 s{sSPIN}, s{sSPIN}, 1")
    e(f"s_cmp_eq_u32 s{sSPIN}, 0")
    e(f"s_cbranch_scc1 {name}_done")
    e("s_waitcnt lgkmcnt(0)")
    e(f"v_readfirstlane_b32 s{sNON}, v{tmp+2}")
    e(f"v_readfirstlane_b32 s{sNON+1}, v{tmp+3}")
    e(f"s_cmp_lg_u32 s{sNON}, 0")
    e(f"s_cbranch_scc1 {name}_done")
    e(f"s_sleep {opt['fs']}")
    e(f"s_branch {name}")
    lab(name + "_done")
    e("s_waitcnt lgkmcnt(0)")

def signal(name, ctr_off, last, flag_soff_s, tmp, lo=None, plain_if=None):
    e(f"v_mov_b32 v{tmp}, {MISC + ctr_off}")
    e(f"v_mov_b32 v{tmp+1}, 1")
    e(f"s_mov_b64 exec, 1")
    e(f"ds_add_rtn_u32 v{tmp+1}, v{tmp}, v{tmp+1}")
    e(f"v_mov_b32 v{tmp+2}, s{sNON if lo is None else lo}")
    e(f"v_mov_b32 v{tmp+3}, s{sNON+1}")
    e("s_waitcnt lgkmcnt(0)")
    e(f"v_readfirstlane_b32 s{sT4}, v{tmp+1}")
    e("s_nop 0")
    e(f"s_cmp_eq_u32 s{sT4}, {last}")
    e(f"s_cbranch_scc0 {name}_nf")
    if plain_if is not None:
        e(f"s_cmp_eq_u32 s{plain_if}, 0")
        e(f"s_cbranch_scc1 {name}_wt")
        e(f"buffer_store_dwordx2 {vr(tmp+2,2)}, off, {sr(R_WS,4)}, s{flag_soff_s}")
        if opt['omode'] < 2: e(f"s_branch {name}_nf")
        lab(name + "_wt")
    e(f"buffer_store_dwordx2 {vr(tmp+2,2)}, off, {sr(R_WS,4)}, s{flag_soff_s} sc1")
    lab(name + "_nf")
    e("s_mov_b64 exec, -1")

hdr = open(f"cdna_kernels/{NAME}.s.ref").read().split("; Override launch")[0]
L.append(hdr.rstrip())
L.append(f"; @launch grid=(256,1,1) block=(512,1,1) lds={LDS_BYTES}")
L.append('.amdgcn_target "amdgcn-amd-amdhsa--gfx950"')
L.append(DOC)
L.append(".text")
L.append(f".globl {NAME}_kernel")
L.append(".p2align 8")
L.append(f".type {NAME}_kernel,@function")
lab(f"{NAME}_kernel")
e("s_cmp_ge_u32 s2, 256")
e("s_cbranch_scc1 L_end")
e("s_load_dwordx16 s[4:19], s[0:1], 0")
e("s_load_dwordx8 s[20:27], s[0:1], 64")
e("s_load_dwordx2 s[28:29], s[0:1], 96")
e(f"s_memrealtime {sr(sNON,2)}")
if opt['endat'] or opt['baat']:
    e("s_waitcnt lgkmcnt(0)")
    e(f"s_mov_b32 s3, s{sNON}")
if opt['dxcc'] >= 0:
    e(f"s_getreg_b32 s{sT0}, hwreg(HW_REG_XCC_ID, 0, 4)")
    e(f"s_cmp_eq_u32 s{sT0}, {opt['dxcc']}") if opt['dxcc'] < 8 else e(f"s_cmp_eq_u32 s{sT0}, s{sT0}")
    e("s_cbranch_scc0 L_nodelay")
    e("s_waitcnt lgkmcnt(0)")
    lab("L_delay")
    e(f"s_memrealtime {sr(sX,2)}")
    e("s_waitcnt lgkmcnt(0)")
    e(f"s_sub_u32 s{sX}, s{sX}, s{sNON}")
    e(f"s_cmp_lt_u32 s{sX}, {opt['dus']}")
    e("s_cbranch_scc1 L_delay")
    lab("L_nodelay")
e("v_lshrrev_b32 v2, 6, v0")
e(f"v_and_b32 v{vL}, 63, v0")
e(f"v_readfirstlane_b32 s{sW}, v2")
e(f"s_and_b32 s{sXCD}, s2, 7")
e(f"s_lshr_b32 s{sJ}, s2, 3")
e(f"s_and_b32 s{sT0}, s{sJ}, 3")
e(f"s_lshl_b32 s{sTB}, s{sXCD}, 2")
e(f"s_add_u32 s{sTB}, s{sTB}, s{sT0}")
e(f"s_lshr_b32 s{sHG}, s{sJ}, 2")
e(f"s_lshr_b32 s{sTHP}, s{sHG}, 1")
e(f"s_and_b32 s{sA}, s{sW}, 3")
e(f"v_lshlrev_b32 v2, 4, v{vL}          ; v2 = lane*16")
cm("LDS init while the kernel arguments load: ones / zeros window (even 16-B chunks 2^64, odd chunks 0), counters")
ONE = (127 + VSCALE) << 7
e("v_lshrrev_b32 v5, 3, v0")
e("v_cmp_ne_u32 vcc, 8, v5")
e("v_and_b32 v4, 1, v0")
e("v_add_u32 v4, -1, v4")
e(f"v_and_b32 v4, {hex(ONE << 16 | ONE)}, v4")
e("v_cndmask_b32 v4, 0, v4, vcc")
e(f"v_lshlrev_b32 v3, 4, v0")
e("v_mov_b32 v5, v4")
e("v_mov_b32 v6, v4")
e("v_mov_b32 v7, v4")
e(f"v_add_u32 v3, {ONES_OFF}, v3")
e("ds_write_b128 v3, v[4:7]")
e(f"s_mov_b32 s{R_XA+2}, 0x200000")
e(f"s_mov_b32 s{R_XA+3}, 0x20000")
def aux_first():
    if opt['prioX']: e(f"s_setprio {opt['prioX']}")
    cm("critical loads: projection weight (wk for even hg, wv for odd), x rows 16*blk + 4a + i")
    e(f"s_lshl_b32 s{sT0}, s{sTHP}, 4")
    e(f"s_lshl_b32 s{sT1}, s{sA}, 2")
    e(f"s_add_u32 s{sT0}, s{sT0}, s{sT1}")
    e(f"s_mul_i32 s{sT1}, s{sT0}, {XROW}")
    e(f"s_add_u32 s{sT1}, s{sT1}, {X_OFF}")
    e(f"s_lshl_b32 s{sT2}, s{sTB}, 6")
    e(f"s_add_u32 s{sT2}, s{sT2}, s{sT0}")
    e(f"s_lshl_b32 s{sT2}, s{sT2}, 10")
    e(f"s_lshl_b32 s{sT3}, s{sA}, 12")
    e(f"s_mov_b32 s{R_W+2}, 16384")
    e(f"s_mov_b32 s{R_W+3}, 0x20000")
    e(f"s_mov_b32 m0, s{sT3}")
    e(f"s_bitcmp1_b32 s{sHG}, 0")
    e("s_waitcnt lgkmcnt(0)")
    e(f"s_cselect_b32 s{R_W}, s{P_WV}, s{P_WK}")
    e(f"s_cselect_b32 s{R_W+1}, s{P_WV+1}, s{P_WK+1}")
    e(f"s_and_b32 s{R_W+1}, s{R_W+1}, 0xffff")
    e(f"s_mov_b32 s{R_XA}, s{P_XA}")
    e(f"s_and_b32 s{R_XA+1}, s{P_XA+1}, 0xffff")
    srd(R_DBG, P_DBG, 256)
    cm("workgroup 0, aux wave 3 publishes this launch's hand-off tag")
    e(f"s_or_b32 s{sNON}, s{sNON}, 16")
    e(f"s_and_b32 s{sNON}, s{sNON}, -16")
    e(f"s_lshl_b32 s{sT0}, s2, 3")
    e(f"s_add_u32 s{sT0}, s{sT0}, s{sW}")
    e(f"s_cmp_eq_u32 s{sT0}, 7")
    e("s_cbranch_scc0 L_notag")
    e(f"v_mov_b32 v4, s{sNON}")
    e(f"v_mov_b32 v5, s{sNON+1}")
    e("s_mov_b64 exec, 1")
    e(f"buffer_store_dwordx2 v[4:5], off, {sr(R_DBG,4)}, 0 sc1")
    e("s_mov_b64 exec, -1")
    lab("L_notag")
    NT = lambda b: "nt " if opt['ntc'] >> b & 1 else ""
    for i in range(4): e(f"buffer_load_dwordx4 v2, {sr(R_W,4)}, s{sT3} offen offset:{1024*i} {NT(1)}lds")
    dma_run(4, 2, R_XA, sT2, sT1, 1024, XROW, NT(0))
    stamp(0)
    srd(R_WS, P_WS, WS_SIZE)
    if opt['dbgt']:
        e(f"s_cmp_lt_u32 s2, 8")
        e("s_cbranch_scc0 L_nodbg0")
        e(f"s_cmp_eq_u32 s{sW}, 6")
        e("s_cbranch_scc0 L_nodbg0")
        e(f"v_mov_b32 v4, s{sNON}")
        e(f"s_lshl_b32 s{sT0}, s2, 2")
        e(f"s_add_u32 s{sT0}, s{sT0}, 8")
        e("s_mov_b64 exec, 1")
        e(f"buffer_store_dword v4, off, {sr(R_DBG,4)}, s{sT0}")
        e("s_mov_b64 exec, -1")
        lab("L_nodbg0")
    e("s_barrier                             ; B1")
if opt['first']:
    cm("the aux waves' first loads are the longest dependency chain: their code directly follows the entry")
    e(f"s_cmp_lt_u32 s{sW}, 4")
    e("s_cbranch_scc1 L_att0")
    aux_first()
    e("s_branch L_aux")
    lab("L_att0")
else:
    e(f"s_cmp_ge_u32 s{sW}, 4")
    e("s_cbranch_scc1 L_aux")

cm("wq slice (8 rows x 128 B per load, 16-B chunks swizzled by row bit 1); quarter tb&3 first: distinct among its 4 sharers")
e(f"v_lshrrev_b32 v3, 3, v{vL}          ; r")
e(f"v_and_b32 v4, 7, v{vL}")
e(f"v_bfe_u32 v5, v{vL}, 4, 1           ; (r>>1)&1")
e("v_lshlrev_b32 v5, 2, v5")
e("v_xor_b32 v4, v4, v5")
e("v_lshlrev_b32 v4, 4, v4")
e("v_lshl_add_u32 v13, v3, 10, v4")
e(f"s_mov_b32 s{R_WQ+2}, 0x80000")
e(f"s_mov_b32 s{R_WQ+3}, 0x20000")
def wq_addr(q):
    e(f"s_add_u32 s{sT0}, s{sJ}, {q}")
    e(f"s_and_b32 s{sT0}, s{sT0}, 3")
    e(f"s_lshl_b32 s{sT0}, s{sT0}, 2")
    e(f"s_add_u32 s{sT0}, s{sT0}, s{sW}")
    e(f"s_lshl_b32 s{sT2}, s{sT0}, 15")
    e(f"s_lshl_b32 s{sT1}, s{sHG}, 7")
    e(f"s_add_u32 s{sT2}, s{sT2}, s{sT1}")
    e(f"s_lshl_b32 s{sT1}, s{sT0}, 12")
    e(f"s_add_u32 s{sT1}, s{sT1}, {WQ_OFF}")
wq_addr(0)
e("s_waitcnt lgkmcnt(0)")
e(f"s_mov_b32 s{R_WQ}, s{P_WQ}")
e(f"s_and_b32 s{R_WQ+1}, s{P_WQ+1}, 0xffff")
e(f"s_mov_b32 s{R_XA}, s{P_XA}")
e(f"s_and_b32 s{R_XA+1}, s{P_XA+1}, 0xffff")
stamp(0)
e("s_barrier")
NT = lambda b: "nt " if opt['ntc'] >> b & 1 else ""
dma_run(4, 13, R_WQ, sT2, sT1, 8192, 1024, NT(2))
cm("the 48 rows of the x tile the aux waves do not load: blocks blk+1, blk+2, blk+3 (mod 4), 4 rows per wave each")
def x_addr(d):
    e(f"s_add_u32 s{sT0}, s{sTHP}, {d}")
    e(f"s_and_b32 s{sT0}, s{sT0}, 3")
    e(f"s_lshl_b32 s{sT0}, s{sT0}, 2")
    e(f"s_add_u32 s{sT0}, s{sT0}, s{sW}")
    e(f"s_lshl_b32 s{sT0}, s{sT0}, 2          ; first row")
    e(f"s_mul_i32 s{sT1}, s{sT0}, {XROW}")
    e(f"s_add_u32 s{sT1}, s{sT1}, {X_OFF}")
    e(f"s_lshl_b32 s{sT2}, s{sTB}, 6")
    e(f"s_add_u32 s{sT2}, s{sT2}, s{sT0}")
    e(f"s_lshl_b32 s{sT2}, s{sT2}, 10")
def hold(name, ctr, val):
    lds_wait(name, ctr, val, 8, sleep=opt['fs'])
seq = [('x', 1), ('x', 2), ('x', 3), ('q', 1), ('q', 2), ('q', 3)]
for n, (kind, d) in enumerate(seq):
    (x_addr if kind == 'x' else wq_addr)(d)
    if opt['win']:
        W = opt['win'] if n < 2 else opt['win2']
        if 4*(n + 2) > W: e(f"s_waitcnt vmcnt({W - 4})")
    else:
        if n == opt['h1']: hold("L_hold1", C_CR, FOUR)
        if n == opt['h2']: hold("L_hold2", C_KV, 1)
    if kind == 'x': dma_run(4, 2, R_XA, sT2, sT1, 1024, XROW, NT(3))
    else: dma_run(4, 13, R_WQ, sT2, sT1, 8192, 1024, NT(4))
stamp(7)
srd(R_WS, P_WS, WS_SIZE)
SA, SB, OA, OB, CA, CB = 16, 32, 48, 64, 80, 96
QA, QB, K0, K1, V0, V1 = 112, 116, 120, 124, 128, 136
vIDX, vK, vV = 144, 145, 146
vINC, vV0, vSAME = 147, 150, 151
vXA, vWA = 148, 149
FB = 152
cm("Q-projection addresses")
e(f"s_and_b32 s{sT0}, s{sW}, 1            ; th")
e(f"s_lshr_b32 s{sT1}, s{sW}, 1           ; hp")
e(f"v_and_b32 v3, 31, v{vL}")
e(f"s_lshl_b32 s{sT2}, s{sT0}, 5")
e(f"v_add_u32 v3, s{sT2}, v3")
e(f"v_mul_u32_u24 v3, {XROW}, v3")
e(f"v_lshrrev_b32 v4, 5, v{vL}           ; h")
e(f"v_lshl_add_u32 v14, v4, 4, v3")
e(f"v_bfe_u32 v5, v{vL}, 2, 2            ; r")
e("v_lshl_add_u32 v6, v4, 3, v5          ; 8h + r")
e("v_lshlrev_b32 v6, 7, v6")
e(f"v_bfe_u32 v7, v{vL}, 4, 1            ; g")
e(f"v_and_b32 v8, 1, v{vL}")
e("v_lshl_add_u32 v7, v7, 1, v8          ; 2g + (cc&1)")
e(f"s_lshl_b32 s{sT2}, s{sT1}, 2")
e(f"v_add_u32 v7, s{sT2}, v7")
e(f"v_bfe_u32 v8, v{vL}, 3, 1            ; (r>>1)&1")
e("v_lshlrev_b32 v8, 2, v8")
e("v_xor_b32 v7, v7, v8")
e("v_lshl_add_u32 v6, v7, 4, v6")
e(f"v_bfe_u32 v8, v{vL}, 1, 1")
e("v_lshl_add_u32 v6, v8, 3, v6")
e(f"v_add_u32 v{vWA}, {WQ_OFF}, v6")
e(f"v_add_u32 v{vXA}, {X_OFF}, v14")
cm("attention LDS addresses; V: rows 0..15 -> tile data, lanes 16,20 -> 2^64, other lanes -> 0")
e(f"v_mov_b32 v{vIDX}, 0xdddddddd")
e(f"v_bfe_u32 v5, v{vL}, 4, 1")
e(f"v_xor_b32 v5, 1, v5                   ; 1 for V rows, 0 for the constant lanes")
e(f"v_lshlrev_b32 v{vINC}, 13, v5")
e(f"v_and_b32 v8, 15, v{vL}")
e("v_lshlrev_b32 v9, 8, v4")
e("v_lshl_add_u32 v8, v8, 4, v9")
e(f"v_and_b32 v9, 31, v{vL}")
e("v_add_u32 v10, -20, v9")
e("v_cmp_gt_u32 vcc, 8, v10")
e("v_and_b32 v9, 11, v9")
e("v_min_u32 v9, 1, v9")
e("v_cndmask_b32 v10, 0, 64, vcc")
e(f"v_cmp_eq_u32 vcc, 1, v5")
e("v_lshl_add_u32 v9, v9, 4, v10")
e(f"v_add_u32 v9, {ONES_OFF - 1024}, v9")
e(f"v_cndmask_b32 v{vV0}, v9, v8, vcc")
cm("O fragment destination and flag slot")
sOD, sOF = 97, 98
e(f"s_and_b32 s{sT0}, s{sW}, 1")
e(f"s_lshl_b32 s{sT1}, s{sTB}, 1")
e(f"s_add_u32 s{sT0}, s{sT0}, s{sT1}")
e(f"s_lshl_b32 s{sT0}, s{sT0}, 5          ; (tb*2+th)*32")
e(f"s_lshl_b32 s{sT1}, s{sHG}, 2")
e(f"s_add_u32 s{sT0}, s{sT0}, s{sT1}")
e(f"s_and_b32 s{sT1}, s{sW}, 2")
e(f"s_add_u32 s{sT0}, s{sT0}, s{sT1}")
e(f"s_lshl_b32 s{sT0}, s{sT0}, 10")
e(f"s_add_u32 s{sOD}, s{sT0}, {WS_O}")
e(f"s_lshl_b32 s{sT1}, s{sTB}, 3")
e(f"s_add_u32 s{sT1}, s{sT1}, s{sHG}")
e(f"s_lshl_b32 s{sT1}, s{sT1}, 2")
e(f"s_add_u32 s{sT1}, s{sT1}, s{sW}")
e(f"s_lshl_b32 s{sT1}, s{sT1}, 7")
e(f"s_add_u32 s{sOF}, s{sT1}, {FL_O}")
e(f"s_mov_b32 s{sFB}, 0")
e(f"s_mov_b32 s{sBARN}, 0xa")
e(f"v_mov_b32 v{vSAME}, {MISC}")
sPF, sOL, sOS, vPO = 100, 101, 79, 184
e(f"s_lshl_b32 s{sT0}, s{sTB}, 3")
e(f"s_lshl_b32 s{sT1}, s{sW}, 1")
e(f"s_add_u32 s{sT0}, s{sT0}, s{sT1}")
e(f"s_lshl_b32 s{sT0}, s{sT0}, 9")
e(f"s_add_u32 s{sPF}, s{sT0}, {FL_O}")
e(f"s_lshl_b32 s{sT2}, s{sTB}, 16")
e(f"s_lshl_b32 s{sOL}, s{sW}, 13")
e(f"s_add_u32 s{sT2}, s{sT2}, s{sOL}")
e(f"s_add_u32 s{sOS}, s{sT2}, {WS_O}")
e(f"v_and_b32 v8, 7, v{vL}")
e(f"v_lshlrev_b32 v{vPO}, 7, v8")
for i in range(16): e(f"v_mov_b32 v{OA+i}, 0")
for i in range(16): e(f"v_mov_b32 v{OB+i}, 0")
for i in range(4): e(f"v_mov_b32 v{V1+4+i}, 0")
if opt['qloop']:
    for i in range(16): e(f"v_mov_b32 v{SA+i}, 0")
e(f"v_mov_b32 v{vK}, v2")
e(f"v_mov_b32 v{vV}, v{vV0}")
if opt['dftpf']:
    cm("sequence-DFT rows the aux waves read later (pulled towards L2 from inside the loop):")
    cm("wave 0: cos rows t1s + 32l; wave 1: sin rows 2048 - that; waves 2, 3: cos / sin rows 64 (l & 31)")
    R_DP, vDP = R_XA, 187
    e(f"s_bitcmp1_b32 s{sW}, 0")
    e(f"s_cselect_b64 {sr(R_DP,2)}, {sr(P_SIM,2)}, {sr(P_SRE,2)}")
    e(f"s_and_b32 s{R_DP+1}, s{R_DP+1}, 0xffff")
    e(f"s_mov_b32 s{R_DP+2}, 0x800000")
    e(f"v_lshlrev_b32 v8, 5, v{vL}")
    e(f"v_add_u32 v8, s{sTB}, v8               ; t1s = tb")
    e("v_sub_u32 v9, 0x800, v8")
    e("v_and_b32 v9, 0x7ff, v9")
    e(f"v_lshlrev_b32 v10, 6, v{vL}")
    e("v_and_b32 v10, 0x7ff, v10")
    e(f"s_cmp_eq_u32 s{sW}, 1")
    e("s_cselect_b64 vcc, -1, 0")
    e("v_cndmask_b32 v8, v8, v9, vcc")
    e(f"s_cmp_ge_u32 s{sW}, 2")
    e("s_cselect_b64 vcc, -1, 0")
    e("v_cndmask_b32 v8, v8, v10, vcc")
    e(f"v_lshlrev_b32 v{vDP}, 12, v8")
if opt['preo']:
    cm("output lines this workgroup writes at the end (touched from inside the loop, values unused):")
    cm("waves 0, 2: rows 64tb + l, columns of hg; waves 1, 3: rows tb + 32l (mirrored for hg >= 4), spectral columns of hg")
    vOP, sOP = 186, 30
    srd(R_OUT, P_OUT, 4194304)
    e(f"v_lshlrev_b32 v8, 5, v{vL}")
    e(f"v_add_u32 v8, s{sTB}, v8")
    e("v_sub_u32 v9, 0x800, v8")
    e("v_and_b32 v9, 0x7ff, v9")
    e(f"s_cmp_ge_u32 s{sHG}, 4")
    e("s_cselect_b64 vcc, -1, 0")
    e("v_cndmask_b32 v8, v8, v9, vcc")
    e(f"s_lshl_b32 s{sT0}, s{sTB}, 6")
    e(f"v_add_u32 v9, s{sT0}, v{vL}")
    e(f"s_bitcmp1_b32 s{sW}, 0")
    e("s_cselect_b64 vcc, -1, 0")
    e(f"s_cselect_b32 s{sOP}, 0x400, 0")
    e("v_cndmask_b32 v8, v9, v8, vcc")
    e(f"v_lshlrev_b32 v{vOP}, 11, v8")
    e(f"s_lshl_b32 s{sT0}, s{sHG}, 7")
    e(f"s_add_u32 s{sOP}, s{sOP}, s{sT0}")
e(f"s_mov_b32 s{sT0}, {hex(f2u(0.25*1.4426950408889634))}")
warm("L_padq", "L_padq_ret")
e("s_waitcnt vmcnt(0)")
stamp(8)
e("s_barrier")
stamp(10)
pad_begin("L_padq")
def qload(ks):
    b = FB + 8*(ks % 4)
    e(f"ds_read_b64_tr_b16 {vr(b,2)}, v{vWA} offset:{ks*2048}")
    e(f"ds_read_b64_tr_b16 {vr(b+2,2)}, v{vWA} offset:{ks*2048+512}")
    e(f"ds_read_b128 {vr(b+4,4)}, v{vXA} offset:{ks*32}")
for ks in range(3): qload(ks)
if opt['qloop']:
    cm("4 trips of 8 k-steps; the last trip's look-ahead reads land in unused registers")
    e(f"s_mov_b32 s{sIT}, 0")
    lab("L_qloop")
    for ks in range(8):
        b = FB + 8*(ks % 4)
        qload(ks + 3); e("s_waitcnt lgkmcnt(9)")
        e(f"v_mfma_f32_32x32x16_bf16 {vr(SA,16)}, {vr(b,4)}, {vr(b+4,4)}, {vr(SA,16)}")
        if ks == 7:
            e(f"v_add_u32 v{vWA}, 0x4000, v{vWA}")
            e(f"v_add_u32 v{vXA}, 0x100, v{vXA}")
        if ks == 6:
            e(f"s_add_u32 s{sIT}, s{sIT}, 1")
            e(f"s_cmp_lt_u32 s{sIT}, 4")
    e("s_cbranch_scc1 L_qloop")
    e("s_waitcnt lgkmcnt(0)")
else:
    for ks in range(32):
        b = FB + 8*(ks % 4)
        if ks + 3 < 32:
            qload(ks + 3); e("s_waitcnt lgkmcnt(9)")
        else:
            e(f"s_waitcnt lgkmcnt({3*(31-ks)})")
        c = "0" if ks == 0 else vr(SA, 16)
        e(f"v_mfma_f32_32x32x16_bf16 {vr(SA,16)}, {vr(b,4)}, {vr(b+4,4)}, {c}")
stamp(9)
nop(8 if opt['qloop'] else 12)
for i in range(16): e(f"v_mul_f32 v{SA+i}, s{sT0}, v{SA+i}")
for i in range(8): e(f"v_cvt_pk_bf16_f32 v{QA+i}, v{SA+2*i}, v{SA+2*i+1}")
if opt['prioA']: e(f"s_setprio {opt['prioA']}")
stamp(2)
if opt['attpf']:
    cm("after BA: pull this workgroup's 1/32 share of what its XCD reads later towards L2 (one dword per 128-B line)")
    cm("wave 0: x_B rows 64j + 8xcd + (0..7); waves 1, 2: hidden cos / sin rows 8j..8j+7; wave 3: wo rows 16j..16j+15")
    R_PF = R_WQ
    e(f"s_cmp_eq_u32 s{sW}, 1")
    e(f"s_cselect_b64 {sr(R_PF,2)}, {sr(P_HRE,2)}, {sr(P_HIM,2)}")
    e(f"s_lshl_b32 s{sT2}, s{sJ}, 13")
    e(f"s_cmp_eq_u32 s{sW}, 3")
    e(f"s_cselect_b64 {sr(R_PF,2)}, {sr(P_WO,2)}, {sr(R_PF,2)}")
    e(f"s_cselect_b32 s{sT3}, s{sT2}, 0")
    e(f"s_add_u32 s{sT2}, s{sT2}, s{sT3}")
    e(f"s_lshl_b32 s{sT3}, s{sJ}, 16")
    e(f"s_lshl_b32 s{sT1}, s{sXCD}, 13")
    e(f"s_add_u32 s{sT3}, s{sT3}, s{sT1}")
    e(f"s_cmp_eq_u32 s{sW}, 0")
    e(f"s_cselect_b64 {sr(R_PF,2)}, {sr(P_XB,2)}, {sr(R_PF,2)}")
    e(f"s_cselect_b32 s{sT2}, s{sT3}, s{sT2}")
    e(f"s_cselect_b32 s{R_PF+2}, 0x200000, s{R_PF+2}")
    e(f"s_and_b32 s{R_PF+1}, s{R_PF+1}, 0xffff")
    e(f"s_add_u32 s{sT3}, s{sT2}, 8192")
    e(f"v_lshlrev_b32 v6, 7, v{vL}")
if opt['baat']:
    lab("L_baat")
    e(f"s_memrealtime {sr(sX,2)}")
    e("s_waitcnt lgkmcnt(0)")
    e(f"s_sub_u32 s{sX}, s{sX}, s3")
    e(f"s_cmp_lt_u32 s{sX}, {opt['baat']}")
    e("s_cbranch_scc1 L_baat")
e("s_barrier")
stamp(3)
PFLOAD = True
MT = opt['mt']
cm(f"stand-in for the row max: max over the first {MT} key tile(s) (checked after the loop; fallback = true max)")
e(f"ds_read_b128 {vr(K0,4)}, v{vK}")
e(f"ds_read_b128 {vr(K1,4)}, v{vK} offset:2048")
KX = FB
for t in range(2, MT): e(f"ds_read_b128 {vr(KX+4*(t-2),4)}, v{vK} offset:{2048*t}")
e(f"ds_read_b128 {vr(V0,4)}, v{vV} offset:1024")
e(f"ds_read_b128 {vr(V0+4,4)}, v{vV} offset:1536")
def max16(dst, s, acc=None):
    if acc is None:
        e(f"v_max3_f32 v{dst}, v{s}, v{s+1}, v{s+2}"); i = 3
        while i + 1 < 16:
            e(f"v_max3_f32 v{dst}, v{dst}, v{s+i}, v{s+i+1}"); i += 2
        e(f"v_max_f32 v{dst}, v{dst}, v{s+15}")
    else:
        for i in range(0, 16, 2): e(f"v_max3_f32 v{dst}, v{dst}, v{s+i}, v{s+i+1}")
nrd = 4 + max(0, MT - 2)
e(f"s_waitcnt lgkmcnt({nrd - 1})")
e(f"v_mfma_f32_32x32x16_bf16 {vr(SA,16)}, {vr(K0,4)}, {vr(QA,4)}, 0")
e(f"v_mfma_f32_32x32x16_bf16 {vr(SB,16)}, {vr(K0,4)}, {vr(QB,4)}, 0")
if MT == 1:
    nop(11)
    max16(4, SA); max16(5, SB)
else:
    kreg = [K0, K1] + [KX + 4*t for t in range(2)]
    bufs = [(SA, SB), (CA, CB)]
    e(f"s_waitcnt lgkmcnt({nrd - 2})")
    e(f"v_mfma_f32_32x32x16_bf16 {vr(CA,16)}, {vr(K1,4)}, {vr(QA,4)}, 0")
    e(f"v_mfma_f32_32x32x16_bf16 {vr(CB,16)}, {vr(K1,4)}, {vr(QB,4)}, 0")
    e("s_waitcnt lgkmcnt(2)")
    nop(7)
    for t in range(MT):
        a, b = bufs[t % 2]
        max16(4, a, None if t == 0 else 1)
        if t + 2 < MT: e(f"v_mfma_f32_32x32x16_bf16 {vr(a,16)}, {vr(kreg[t+2],4)}, {vr(QA,4)}, 0")
        max16(5, b, None if t == 0 else 1)
        if t + 2 < MT: e(f"v_mfma_f32_32x32x16_bf16 {vr(b,16)}, {vr(kreg[t+2],4)}, {vr(QB,4)}, 0")
lab("L_setmax")
cm(f"v4 / v5 = per-lane max for tiles A / B; combine the two half-waves, C = -(max + {opt['shift']})")
e("v_mov_b32 v6, v4")
e("v_mov_b32 v7, v5")
e(f"s_mov_b32 s{sIT}, 0")
e("s_nop 0")
e("v_permlane32_swap_b32 v4, v6")
e("v_permlane32_swap_b32 v5, v7")
e("v_max_f32 v4, v4, v6")
e("v_max_f32 v5, v5, v7")
for i in range(16): e(f"v_sub_f32 v{CA+i}, {hex(f2u(-float(opt['shift'])))}, v4")
e(f"v_sub_f32 v{CB}, {hex(f2u(-float(opt['shift'])))}, v5")
e("s_waitcnt lgkmcnt(0)")
e(f"v_mfma_f32_32x32x16_bf16 {vr(SA,16)}, {vr(K0,4)}, {vr(QA,4)}, {vr(CA,16)}")
for i in range(1, 16): e(f"v_mov_b32 v{CB+i}, v{CB}")
for i in range(8): e(f"v_mov_b32 v{SB+8+i}, 0")
def SM(o, a, b): e(f"v_smfmac_f32_32x32x32_bf16 {vr(o,16)}, {vr(a,4)}, {vr(b,8)}, v{vIDX}")
def QK(d, k, q, c): e(f"v_mfma_f32_32x32x16_bf16 {vr(d,16)}, {vr(k,4)}, {vr(q,4)}, {vr(c,16)}")
def EX(s, a, b):
    for i in range(a, b): e(f"v_exp_f32 v{s+i}, v{s+i}")
pad_end("L_padq", "L_padq_ret")
stamp(13)
L.append(".p2align 6")
lab("L_att_loop")
for u in range(4):
    kc, kn = (K0, K1) if u % 2 == 0 else (K1, K0)
    vc, vp = (V0, V1) if u % 2 == 0 else (V1, V0)
    voffs = ((u + 1) % 4) * 2048 + 1024
    koffs = ((u + 2) % 4) * 2048
    p0, p1, p2 = (4, 7, 10) if opt['cluster'] else (2, 5, 10)
    EX(SA, 0, p0)
    SM(OB, vp + 4, SB + 8)
    e(f"s_waitcnt lgkmcnt({2 if u == 1 and opt['csync'] else 1})")
    EX(SA, p0, p1)
    QK(SB, kc, QB, CB)
    e(f"ds_read_b128 {vr(vp,4)}, v{vV} offset:{voffs}")
    EX(SA, p1, p2)
    SM(OA, vc, SA)
    e(f"ds_read_b128 {vr(vp+4,4)}, v{vV} offset:{voffs+512}")
    EX(SA, p2, 16)
    EX(SB, 0, p0)
    SM(OA, vc + 4, SA + 8)
    e("s_waitcnt lgkmcnt(2)")
    if u == 1:
        pass
    EX(SB, p0, p1)
    QK(SA, kn, QA, CA)
    e(f"ds_read_b128 {vr(kc,4)}, v{vK} offset:{koffs}")
    EX(SB, p1, p2)
    SM(OB, vc, SB)
    if u == 1:
        e(f"s_bitcmp1_b32 s{sBARN}, s{sIT}")
        e("s_cbranch_scc1 L_sync")
        lab("L_nobar")
        e(f"v_add_u32 v{vK}, 0x2000, v{vK}")
    if u == 2:
        e(f"v_add_u32 v{vV}, v{vINC}, v{vV}")
    if u == 3:
        e(f"s_add_u32 s{sIT}, s{sIT}, 1")
        e(f"s_cmp_lt_u32 s{sIT}, 16")
    if u == 0 and opt['csync']: e(f"ds_read_b64 v[4:5], v{vSAME} offset:{C_G1}")
    elif u == 0 and opt['cluster']: e("s_nop 0")
    EX(SB, p2, 16)
e("s_cbranch_scc1 L_att_loop")
if opt['lwarm']: e("s_cbranch_execz L_lwarm_ret           ; only the instruction-cache warm-up pass has EXEC = 0")
stamp(18)
pad_begin("L_padt")
e(f"s_mov_b32 s{sT0}, {hex(f2u(2.0**100) if not opt['force_fb'] else f2u(2.0**-30))}")
e(f"v_rcp_f32 v4, v{OA+8}")
SM(OB, V1 + 4, SB + 8)
e(f"ds_read_b32 v7, v{vSAME} offset:{C_SAME}")
e(f"ds_read_b64 v[8:9], v{vSAME} offset:{C_TAG}")
cm("run-time check of the stand-in: l*2^64 must be finite and <= 2^100, else redo with the true row max")
e(f"v_cmp_nle_f32_e64 vcc, v{OA+8}, s{sT0}")
for i in range(8): e(f"v_mul_f32 v{SA+i}, v4, v{OA+i}")
for i in range(4): e(f"v_cvt_pk_bf16_f32 v{SA+i}, v{SA+2*i}, v{SA+2*i+1}")
sSAME = 99
e("s_waitcnt lgkmcnt(0)")
e(f"v_readfirstlane_b32 s{sSAME}, v7")
e(f"v_rcp_f32 v5, v{OB+8}")
e(f"v_cmp_nle_f32_e64 {sr(sX,2)}, v{OB+8}, s{sT0}")
cm("plain stores only when every workgroup of this token block reported the same XCD; else write-through")
e(f"s_cmp_eq_u32 s{sSAME}, 0")
e("s_cbranch_scc1 L_ostA_wt")
OM = " sc1" if opt['omode'] >= 2 else ""
e(f"buffer_store_dwordx4 {vr(SA,4)}, v2, {sr(R_WS,4)}, s{sOD} offen{OM}")
lab("L_ostA_done")
for i in range(8): e(f"v_mul_f32 v{SB+i}, v5, v{OB+i}")
e(f"s_or_b64 vcc, vcc, {sr(sX,2)}")
for i in range(4): e(f"v_cvt_pk_bf16_f32 v{SA+4+i}, v{SB+2*i}, v{SB+2*i+1}")
e("s_cmp_eq_u64 vcc, 0")
e("s_cbranch_scc0 L_fallback")
lab("L_att_done")
e(f"s_cmp_eq_u32 s{sSAME}, 0")
e("s_cbranch_scc1 L_ost_wt")
e(f"buffer_store_dwordx4 {vr(SA+4,4)}, v2, {sr(R_WS,4)}, s{sOD} offen offset:1024{OM}")
stamp(6)
e(f"v_readfirstlane_b32 s{sNON}, v8")
e(f"v_readfirstlane_b32 s{sNON+1}, v9")
e("s_mov_b64 exec, 1")
e("s_waitcnt vmcnt(0)")
e(f"buffer_store_dwordx2 v[8:9], off, {sr(R_WS,4)}, s{sOF}")
if opt['omode'] == 3: e(f"buffer_store_dwordx2 v[8:9], off, {sr(R_WS,4)}, s{sOF} sc1")
lab("L_ost_done")
e("s_mov_b64 exec, -1")
stamp(5)
e("s_barrier")
stamp(4)
cm("gather the O tile of this token block: wave w takes producers 2w, 2w+1, in four steps of two heads")
poll("L_pollO", 1, vPO, 10, [sPF])
stamp(11)
for st in range(4):
    for th in range(2):
        e(f"s_add_u32 m0, s{sOL}, {2048*st + 32768*th}")
        e(f"s_add_u32 s{sT1}, s{sOS}, {2048*st + 32768*th}")
        for i in range(2): e(f"buffer_load_dwordx4 v2, {sr(R_WS,4)}, s{sT1} offen offset:{1024*i} sc1 lds")
pad_end("L_padt", "L_pado_0")
for st in range(4):
    e(f"s_waitcnt vmcnt({12 - 4*st})")
    if st == 0: stamp(12)
    e(f"s_barrier                             ; B8.{st}: heads 8w + {2*st}, {2*st+1} of every wave landed")
stamp_dump()
e("s_endpgm")
lab("L_ostA_wt")
e(f"buffer_store_dwordx4 {vr(SA,4)}, v2, {sr(R_WS,4)}, s{sOD} offen sc1")
e("s_branch L_ostA_done")
lab("L_ost_wt")
e(f"buffer_store_dwordx4 {vr(SA+4,4)}, v2, {sr(R_WS,4)}, s{sOD} offen offset:1024 sc1")
stamp(6)
e(f"v_readfirstlane_b32 s{sNON}, v8")
e(f"v_readfirstlane_b32 s{sNON+1}, v9")
e("s_mov_b64 exec, 1")
e("s_waitcnt vmcnt(0)")
e(f"buffer_store_dwordx2 v[8:9], off, {sr(R_WS,4)}, s{sOF} sc1")
e("s_branch L_ost_done")
lab("L_sync")
e(f"s_cmp_eq_u32 s{sIT}, 1")
e("s_cbranch_scc0 L_sync3")
stamp(14)
if opt['csync']:
    e(f"v_readfirstlane_b32 s{sT4}, v4")
    e("s_nop 0")
    e(f"s_cmp_ge_u32 s{sT4}, {FOUR}")
    e("s_cbranch_scc1 L_nobar") if not opt['stamps'] else e("s_cbranch_scc1 L_wg1_done")
lds_wait("L_wg1", C_G1, FOUR, 4)
stamp(15)
e("s_branch L_nobar")
lab("L_sync3")
if opt['dftpf']: e(f"buffer_load_dword v185, v{vDP}, {sr(R_DP,4)}, 0 offen")
if opt['preo']:
    e(f"s_cmp_lt_u32 s{sW}, 2")
    e("s_cbranch_scc0 L_nopo")
    e(f"buffer_load_dword v188, v{vOP}, {sr(R_OUT,4)}, s{sOP} offen{' sc1' if opt['preo'] == 1 else ''}")
    lab("L_nopo")
stamp(16)
if opt['csync']:
    e(f"v_readfirstlane_b32 s{sT4}, v5")
    e("s_nop 0")
    e(f"s_cmp_ge_u32 s{sT4}, {FOUR}")
    e("s_cbranch_scc1 L_nobar") if not opt['stamps'] else e("s_cbranch_scc1 L_wkvl_done")
lds_wait("L_wkvl", C_KVL, FOUR, 4)
stamp(17)
e("s_branch L_nobar")
lab("L_fallback")
e(f"s_cmp_eq_u32 s{sFB}, 0")
e("s_cbranch_scc0 L_att_done")
cm("fallback: exact row max over all 64 key tiles, then repeat the main loop")
e(f"s_mov_b32 s{sFB}, 1")
e(f"s_mov_b32 s{sBARN}, 0")
e(f"v_mov_b32 v4, 0xff800000")
e(f"v_mov_b32 v5, 0xff800000")
e(f"v_mov_b32 v{vK}, v2")
e(f"s_mov_b32 s{sIT}, 0")
lab("L_fb_loop")
e(f"ds_read_b128 {vr(K0,4)}, v{vK}")
e("s_waitcnt lgkmcnt(0)")
e(f"v_mfma_f32_32x32x16_bf16 {vr(SA,16)}, {vr(K0,4)}, {vr(QA,4)}, 0")
e(f"v_mfma_f32_32x32x16_bf16 {vr(SB,16)}, {vr(K0,4)}, {vr(QB,4)}, 0")
e(f"v_add_u32 v{vK}, 0x800, v{vK}")
nop(11)
max16(4, SA, 1); max16(5, SB, 1)
e(f"s_add_u32 s{sIT}, s{sIT}, 1")
e(f"s_cmp_lt_u32 s{sIT}, 64")
e("s_cbranch_scc1 L_fb_loop")
e(f"v_mov_b32 v{vK}, v2")
e(f"v_mov_b32 v{vV}, v{vV0}")
for i in range(16): e(f"v_mov_b32 v{OA+i}, 0")
for i in range(16): e(f"v_mov_b32 v{OB+i}, 0")
for i in range(4): e(f"v_mov_b32 v{V1+4+i}, 0")
e(f"ds_read_b128 {vr(K0,4)}, v{vK}")
e(f"ds_read_b128 {vr(K1,4)}, v{vK} offset:2048")
e(f"ds_read_b128 {vr(V0,4)}, v{vV} offset:1024")
e(f"ds_read_b128 {vr(V0+4,4)}, v{vV} offset:1536")
e("s_branch L_setmax")

lab("L_aux")
BUF = 16
BP = 144
FR = 176
ACC = 192
D1, D2 = 208, 224
if not opt['first']: aux_first()
KV0 = len(L)
e(f"v_mov_b32 v14, {MISC+C_CR}")
if opt['bytef']: e(f"v_add_u32 v14, s{sA}, v14")
e(f"v_mov_b32 v15, 1")
cm("K / V projection of 16 tokens: aux wave 0")
e(f"s_cmp_eq_u32 s{sA}, 0")
e("s_cbranch_scc0 L_np")
e(f"v_and_b32 v3, 15, v{vL}")
e(f"v_lshrrev_b32 v4, 4, v{vL}           ; q")
e(f"s_lshl_b32 s{sT0}, s{sTHP}, 4")
e(f"v_add_u32 v5, s{sT0}, v3")
e(f"v_mul_u32_u24 v5, {XROW}, v5")
e("v_lshl_add_u32 v5, v4, 4, v5")
e(f"v_add_u32 v5, {X_OFF}, v5")
e(f"v_bfe_u32 v6, v{vL}, 2, 2            ; r")
e("v_lshl_add_u32 v6, v4, 3, v6")
e("v_lshlrev_b32 v6, 5, v6")
e(f"v_and_b32 v7, 3, v{vL}               ; cc")
sB = sT3
e(f"s_and_b32 s{sB}, s{sTHP}, 1            ; b")
e(f"s_lshr_b32 s{sT0}, s{sTHP}, 1")
e(f"s_lshl_b32 s{sT2}, s{sTB}, 1")
e(f"s_add_u32 s{sT2}, s{sT2}, s{sT0}")
sKF, sKD = 97, 96
e(f"s_lshl_b32 s{sT1}, s{sT2}, 1")
e(f"s_and_b32 s{sT0}, s{sHG}, 1")
e(f"s_add_u32 s{sT1}, s{sT1}, s{sT0}")
e(f"s_lshl_b32 s{sT1}, s{sT1}, 1")
e(f"s_add_u32 s{sT1}, s{sT1}, s{sB}")
e(f"s_lshl_b32 s{sT1}, s{sT1}, 7")
e(f"s_add_u32 s{sKF}, s{sT1}, {FL_KV}")
e(f"s_lshl_b32 s{sKD}, s{sT2}, 11")
e("v_and_b32 v9, 1, v4")
e("v_lshlrev_b32 v9, 3, v9")
e("v_lshl_add_u32 v9, v3, 4, v9          ; n*16 + (q&1)*8")
e("v_lshrrev_b32 v8, 1, v4")
e(f"s_mov_b32 s{sDRY}, {1 if opt['dry'] else 0}")
if opt['pre']:
    cm("touch the lines this wave will publish (tile and flag), so the write-through stores find them resident")
    e(f"v_and_b32 v12, 15, v{vL}")
    e("v_lshlrev_b32 v12, 7, v12")
    e(f"buffer_load_dword v201, v12, {sr(R_WS,4)}, s{sKD} offen sc1")
    e(f"buffer_load_dword v202, off, {sr(R_WS,4)}, s{sKF} sc1")
def kvchain(isV):
    D = opt['kvd']
    def mf(k2):
        b2 = BUF + 8*k2
        a, bb = (b2+4, b2) if isV else (b2, b2+4)
        e(f"v_mfma_f32_16x16x32_bf16 {vr(ACC,4)}, {vr(a,4)}, {vr(bb,4)}, {'0' if k2==0 else vr(ACC,4)}")
    for ks in range(16):
        b = BUF + 8*ks
        e(f"ds_read_b64_tr_b16 {vr(b,2)}, v6 offset:{ks*1024}")
        e(f"ds_read_b64_tr_b16 {vr(b+2,2)}, v6 offset:{ks*1024+128}")
        e(f"ds_read_b128 {vr(b+4,4)}, v5 offset:{ks*64}")
        if ks >= D:
            e(f"s_waitcnt lgkmcnt({3*D})"); mf(ks - D)
    for k2 in range(16 - D, 16):
        e(f"s_waitcnt lgkmcnt({3*(15-k2)})"); mf(k2)
def kv_wait(tagname):
    e(f"s_waitcnt vmcnt({2 if opt['pre'] else 0})")
    stamp(1)
    e("s_mov_b64 exec, 1")
    e("ds_write_b8 v14, v15" if opt['bytef'] else "ds_add_u32 v14, v15")
    e("s_mov_b64 exec, -1")
    lds_wait(tagname + "_w", C_CR, FOUR, 10, sleep=1)
def kv_b1(tagname):
    if not opt['dry']: kv_wait(tagname)
    lab(tagname)
def kv_b2(tagname):
    if opt['dry']:
        e(f"s_cmp_eq_u32 s{sDRY}, 0")
        e(f"s_cbranch_scc1 {tagname}_go")
        e(f"s_mov_b32 s{sDRY}, 0")
        kv_wait(tagname)
        e(f"s_branch {tagname}")
        lab(tagname + "_go")
e(f"s_bitcmp1_b32 s{sHG}, 0")
e("s_cbranch_scc1 L_prodV")
cm("K: (q>>1)*512 + (16b+n)*16 + (q&1)*8")
e("v_lshl_add_u32 v6, v7, 3, v6")
e("v_lshl_add_u32 v8, v8, 9, v9")
e(f"s_lshl_b32 s{sT1}, s{sB}, 8")
e(f"s_add_u32 s{sKD}, s{sKD}, s{sT1}")
kv_b1("L_chK"); kvchain(False); kv_b2("L_chK")
nop(6 if opt['dry'] else 8)
e("s_branch L_prodS")
lab("L_prodV")
cm("V: 1024 + b*512 + (q>>1)*256 + n*16 + (q&1)*8")
e("v_lshl_add_u32 v8, v8, 8, v9")
e("v_and_b32 v9, 1, v7")
e("v_lshl_add_u32 v6, v9, 4, v6")
e("v_lshrrev_b32 v9, 1, v7")
e("v_lshl_add_u32 v6, v9, 3, v6")
e(f"s_lshl_b32 s{sT1}, s{sB}, 9")
e(f"s_add_u32 s{sKD}, s{sKD}, s{sT1}")
e(f"s_add_u32 s{sKD}, s{sKD}, 1024")
kv_b1("L_chV"); kvchain(True); kv_b2("L_chV")
e(f"s_mov_b32 s{sT0}, {hex(f2u(2.0**VSCALE))}")
nop(6 if opt['dry'] else 8)
for i in range(4): e(f"v_mul_f32 v{ACC+i}, s{sT0}, v{ACC+i}")
lab("L_prodS")
e(f"v_cvt_pk_bf16_f32 v10, v{ACC}, v{ACC+1}")
e(f"v_cvt_pk_bf16_f32 v11, v{ACC+2}, v{ACC+3}")
e(f"buffer_store_dwordx2 v[10:11], v8, {sr(R_WS,4)}, s{sKD} offen sc1")
stamp(14)
e("ds_add_u32 v14, v15 offset:%d             ; this wave is done with the weight region" % (C_KV - C_CR + 65536) if False else f"v_mov_b32 v13, {MISC+C_KV}")
e("s_mov_b64 exec, 1")
e("ds_write_b32 v13, v15")
e("s_mov_b64 exec, -1")
tag_from_lds("L_tagp", 4)
e(f"v_mov_b32 v6, s{sNON}")
e(f"v_mov_b32 v7, s{sNON+1}")
e("s_mov_b64 exec, 1")
e("s_waitcnt vmcnt(0)")
e(f"buffer_store_dwordx2 v[6:7], off, {sr(R_WS,4)}, s{sKF} sc1")
e("s_mov_b64 exec, -1")
stamp(15)
if opt['pa']: e("s_branch L_tagged0")
else:
    e(f"s_mov_b32 s{sRET}, 1")
    e("s_branch L_tagged")
lab("L_np")
e("s_waitcnt vmcnt(0)")
stamp(1)
e("s_mov_b64 exec, 1")
e("ds_write_b8 v14, v15" if opt['bytef'] else "ds_add_u32 v14, v15")
e("s_mov_b64 exec, -1")
if opt['codepf']:
    cm("aux wave 2 pulls this kernel's code towards L2 (reads only)")
    e(f"s_cmp_eq_u32 s{sA}, 2")
    e("s_cbranch_scc0 L_nopf")
    e(f"s_getpc_b64 {sr(sX,2)}")
    lab("L_pc")
    e(f"v_lshlrev_b32 v4, 7, v{vL}")
    e(f"s_sub_u32 s{sX}, s{sX}, L_pc-{NAME}_kernel")
    e(f"s_subb_u32 s{sX+1}, s{sX+1}, 0")
    e(f"v_mov_b32 v5, s{sX+1}")
    e(f"v_add_co_u32 v4, vcc, s{sX}, v4")
    e("s_nop 1")
    e("v_addc_co_u32 v5, vcc, 0, v5, vcc")
    e("CODEPF")
    lab("L_nopf")
if opt['lwarm']:
    cm("aux wave 1 walks once through the attention loop with every lane off (LDS and register traffic only) to warm the instruction cache")
    e(f"s_cmp_eq_u32 s{sA}, 1")
    e("s_cbranch_scc0 L_nolw")
    e(f"s_mov_b32 s{sIT}, 15")
    e(f"s_mov_b32 s{sBARN}, 0")
    e("s_setprio 0")
    e("s_mov_b64 exec, 0")
    e("s_branch L_att_loop")
    lab("L_lwarm_ret")
    e("s_mov_b64 exec, -1")
    e(f"s_setprio {opt['prioX']}")
    lab("L_nolw")
e(f"s_cmp_eq_u32 s{sA}, 3")
e("s_cbranch_scc0 L_tagged0")
cm("aux wave 3 fetches this launch's hand-off tag (bounded spin) and posts it in LDS")
e(f"s_mov_b32 s{sSPIN}, {SPIN}")
lab("L_tag")
e(f"buffer_load_dwordx2 v[14:15], off, {sr(R_DBG,4)}, 0 sc1")
e(f"s_sub_u32 s{sSPIN}, s{sSPIN}, 1")
e(f"s_cmp_eq_u32 s{sSPIN}, 0")
e("s_cbranch_scc1 L_tag_done")
e("s_waitcnt vmcnt(0)")
e("v_cmp_eq_u32 vcc, 0, v14")
e("s_nop 0")
e("s_cmp_eq_u64 vcc, 0")
e("s_cbranch_scc0 L_tag")
lab("L_tag_done")
e("s_waitcnt vmcnt(0)")
e(f"v_mov_b32 v12, {MISC+C_TAG}")
e("ds_write_b64 v12, v[14:15]")
cm("report this workgroup's XCD id (tag | id)")
e(f"s_getreg_b32 s{sT2}, hwreg(HW_REG_XCC_ID, 0, 4)")
e(f"s_lshl_b32 s{sT1}, s2, 7")
e(f"s_add_u32 s{sT1}, s{sT1}, {FL_X}")
e(f"v_or_b32 v14, s{sT2}, v14")
e("s_mov_b64 exec, 1")
e(f"buffer_store_dwordx2 v[14:15], off, {sr(R_WS,4)}, s{sT1} sc1")
e("s_mov_b64 exec, -1")
import re
def ren(m):
    n = int(m.group(1)); return f"v{208+n}" if 3 <= n <= 15 else m.group(0)
def ren2(m):
    a, b = int(m.group(1)), int(m.group(2)); return f"v[{208+a}:{208+b}]" if 3 <= a <= 15 else m.group(0)
for k in range(KV0, len(L)):
    L[k] = re.sub(r"v\[(\d+):(\d+)\]", ren2, re.sub(r"\bv(\d+)\b", ren, L[k]))
e(f"s_mov_b32 s{sRET}, 0") if False else None
lab("L_tagged0")
e(f"s_mov_b32 s{sRET}, 0")
e("s_branch L_addr")
lab("L_tagged")
stamp(2)
tag_from_lds("L_tagx", 8)
cm("the weight region is reused only after the projection wave is done with it")
lds_wait("L_wkv", C_KV, 1, 8, sleep=opt['fs'])
cm("key tiles in rotated order (own XCD's tiles first); wave a covers tiles 8g + 2a, 8g + 2a + 1: flags 32g + 8a + (0..7)")
vCNT = 248
sKG, sKL, sKS, sKP = 97, 85, 88, 96
e(f"v_and_b32 v{ACC+2}, 7, v{vL}")
e(f"v_lshlrev_b32 v{ACC+2}, 7, v{ACC+2}")
e(f"s_lshl_b32 s{sKP}, s{sA}, 10")
e(f"s_add_u32 s{sKP}, s{sKP}, {FL_KV}")
e(f"s_lshl_b32 s{sT1}, s{sXCD}, 12")
e(f"s_add_u32 s{sT1}, s{sT1}, s{sKP}")
e(f"s_lshl_b32 s{sKL}, s{sA}, 12")
e(f"s_lshl_b32 s{sKG}, s{sXCD}, 14")
e("s_barrier                             ; B2")
stamp(16)
poll("L_pollK0", 1, ACC+2, 8, [sT1])
stamp(3)
def kvdma(G):
    e(f"s_add_u32 m0, s{sKL}, {16384*G}")
    e(f"s_add_u32 s{sKS}, s{sKG}, s{sKL}")
    for i in range(4): e(f"buffer_load_dwordx4 v2, {sr(R_WS,4)}, s{sKS} offen offset:{1024*i} sc1 lds")
    if G < 7:
        e(f"s_add_u32 s{sKG}, s{sKG}, 16384")
        e(f"s_and_b32 s{sKG}, s{sKG}, 0x1ffff")
kvdma(0)
if opt['prepoll']:
    cm("one early look at the flags of all other key tiles; its latency overlaps the first tiles' landing")
    e(f"v_lshrrev_b32 v{ACC+4}, 3, v{vL}")
    e(f"v_lshlrev_b32 v{ACC+4}, 12, v{ACC+4}")
    e(f"v_add_u32 v{ACC+4}, v{ACC+4}, v{ACC+2}")
    e(f"buffer_load_dwordx2 {vr(ACC+6,2)}, v{ACC+4}, {sr(R_WS,4)}, s{sKP} offen sc1")
e(f"s_cmp_eq_u32 s{sRET}, 1")
e("s_cbranch_scc0 L_addr_2")
lab("L_addr")
srd(R_SRE, P_SRE, 8388608)
srd(R_SIM, P_SIM, 8388608)
srd(R_XB, P_XB, 2097152)
srd(R_WO, P_WO, 524288)
srd(R_OUT, P_OUT, 4194304)
sT1S, sEB, sTT, sS2, sCB = 98, 99, 100, 101, 79
R_HRE, R_HIM = R_XA, R_W
e(f"s_and_b32 s{sT0}, s{sJ}, 3")
e(f"s_lshl_b32 s{sT1S}, s{sXCD}, 2")
e(f"s_add_u32 s{sT1S}, s{sT1S}, s{sT0}       ; t1s")
e(f"s_lshr_b32 s{sT0}, s{sJ}, 2")
e(f"s_lshl_b32 s{sT0}, s{sT0}, 1")
e(f"s_lshr_b32 s{sEB}, s{sA}, 1")
e(f"s_add_u32 s{sEB}, s{sEB}, s{sT0}         ; eb")
e(f"s_and_b32 s{sTT}, s{sA}, 1               ; tt")
e(f"s_and_b32 s{sT0}, s{sJ}, 3")
e(f"s_lshl_b32 s{sT0}, s{sT0}, 1")
e(f"s_lshl_b32 s{sS2}, s{sXCD}, 3")
e(f"s_add_u32 s{sS2}, s{sS2}, s{sT0}")
e(f"s_add_u32 s{sS2}, s{sS2}, s{sTT}         ; s2 = 8 xcd + 2 (j&3) + (a&1)")
e(f"s_mov_b32 s{sCB}, s{sEB}                 ; cb = 2 (j>>2) + (a>>1)")
srd(R_HRE, P_HRE, 524288)
srd(R_HIM, P_HIM, 524288)
e(f"v_and_b32 v3, 31, v{vL}                ; n")
e(f"v_lshrrev_b32 v4, 5, v{vL}             ; h")
e(f"s_lshl_b32 s{sT0}, s{sTT}, 5")
e(f"v_add_u32 v5, s{sT0}, v3")
e("v_lshlrev_b32 v5, 5, v5")
e(f"v_add_u32 v13, s{sT1S}, v5")
vG0, vG1, vRX, vRW = 240, 242, 244, 246
vDRE, vDIM = 251, 252
vB2A, vB2O, vHA, vWOD, vWOT, vOF, vOUT, vPH, vPK, vF = 4, 3, 15, 14, 0, 5, 6, 7, 12, 13
cm("B1 staging, loader side: wave a fills block a (0,1: x_B rows of s2, s2+1; 2,3: DFT rows of cb, cb+1),")
cm("16 rows x 64 B per load, row r -> rho = 8*bit2 + 4*bit3 + (r&3), 16-B chunk (l&3) ^ ((l>>4)&3)")
e(f"v_bfe_u32 v5, v{vL}, 2, 2")
e(f"v_bfe_u32 v6, v{vL}, 4, 1")
e("v_lshl_add_u32 v5, v6, 3, v5")
e("v_lshl_add_u32 v5, v4, 2, v5            ; rho")
e(f"v_lshrrev_b32 v6, 4, v{vL}")
e(f"v_xor_b32 v6, v6, v{vL}")
e("v_and_b32 v6, 3, v6")
e("v_lshlrev_b32 v6, 4, v6                 ; chunk * 16")
e(f"s_and_b32 s{sT0}, s{sS2}, -2")
e(f"s_add_u32 s{sT0}, s{sT0}, s{sA}")
e(f"s_lshl_b32 s{sT0}, s{sT0}, 10")
e(f"s_and_b32 s{sT1}, s{sCB}, -2")
e(f"s_add_u32 s{sT1}, s{sT1}, s{sTT}")
e(f"s_lshl_b32 s{sT1}, s{sT1}, 14")
e(f"s_add_u32 s{sT2}, s{sT0}, 0x100000")
e(f"s_cmp_lt_u32 s{sA}, 2")
e(f"s_cselect_b32 s{sT3}, 16, 10")
e(f"s_cselect_b32 s{sT0}, s{sT0}, s{sT1}")
e(f"s_cselect_b32 s{sT2}, s{sT2}, s{sT1}")
e(f"s_cselect_b64 {sr(sX,2)}, {sr(P_XB,2)}, {sr(P_HRE,2)}")
e(f"s_cselect_b64 {sr(sST,2)}, {sr(P_XB,2)}, {sr(P_HIM,2)}")
e(f"v_lshlrev_b32 v5, s{sT3}, v5")
e("v_add_u32 v5, v5, v6")
e(f"v_add_u32 v7, s{sT0}, v5")
e(f"v_mov_b32 v{vG0+1}, s{sX+1}")
e(f"v_add_co_u32 v{vG0}, vcc, s{sX}, v7")
e(f"v_add_u32 v7, s{sT2}, v5")
e(f"v_mov_b32 v{vG1+1}, s{sST+1}")
e(f"v_addc_co_u32 v{vG0+1}, vcc, 0, v{vG0+1}, vcc")
e(f"v_add_co_u32 v{vG1}, vcc, s{sST}, v7")
e(f"s_lshl_b32 s{sT1}, s{sT1}, 2")
e(f"s_add_u32 s{sT1}, s{sT1}, s{sA}")
e(f"v_addc_co_u32 v{vG1+1}, vcc, 0, v{vG1+1}, vcc")
e(f"s_cmp_eq_u32 s{sT1}, 2")
e("s_cbranch_scc0 L_nospec0")
cm("cb = 0: the im slot of e = 0 (lanes 0..3 of the second load) carries cos row 256")
e("s_mov_b64 exec, 15")
e("v_add_u32 v7, 0x40000, v6")
e(f"v_mov_b32 v{vG1+1}, s{P_HRE+1}")
e(f"v_add_co_u32 v{vG1}, vcc, s{P_HRE}, v7")
e("s_nop 1")
e(f"v_addc_co_u32 v{vG1+1}, vcc, 0, v{vG1+1}, vcc")
e("s_mov_b64 exec, -1")
lab("L_nospec0")
cm("reader side: row m, chunk (2s+h) ^ ((m>>2)&3)")
e("v_bfe_u32 v5, v3, 2, 2")
e("v_xor_b32 v5, v5, v4")
e("v_lshlrev_b32 v5, 4, v5")
e("v_lshl_add_u32 v5, v3, 6, v5")
e(f"s_lshl_b32 s{sT0}, s{sTT}, 11")
e(f"s_add_u32 s{sT0}, s{sT0}, {STG}")
e(f"v_add_u32 v{vRX}, s{sT0}, v5")
e(f"v_xor_b32 v{vRX+1}, 32, v{vRX}")
e(f"s_lshr_b32 s{sT0}, s{sA}, 1")
e(f"s_lshl_b32 s{sT0}, s{sT0}, 11")
e(f"s_add_u32 s{sT0}, s{sT0}, {STG + 4096}")
e(f"v_add_u32 v{vRW}, s{sT0}, v5")
e(f"v_xor_b32 v{vRW+1}, 32, v{vRW}")
vHW, vHW1, vHR, vHS = 250, 253, BUF, BUF + 1
cm("H regrouping: write row t1, chunk (2h+i) ^ ((t1>>2)&3); read lane-linear; store row l>>2, chunk (l&3) ^ ((l>>4)&3)")
e(f"s_lshl_b32 s{sT0}, s{sA}, 11")
e(f"s_add_u32 s{sT0}, s{sT0}, {STG}")
e("v_bfe_u32 v5, v3, 2, 2")
e("v_lshlrev_b32 v7, 1, v4")
e("v_xor_b32 v5, v5, v7")
e("v_lshlrev_b32 v5, 4, v5")
e("v_lshl_add_u32 v5, v3, 6, v5")
e(f"v_add_u32 v{vHW}, s{sT0}, v5")
e(f"v_xor_b32 v{vHW1}, 16, v{vHW}")
e(f"v_add_u32 v{BUF}, s{sT0}, v2")
e(f"v_lshrrev_b32 v5, 2, v{vL}")
e(f"v_mul_u32_u24 v5, {64*HROW}, v5")
e(f"v_add_u32 v{BUF+1}, v5, v6")
cm("e = 256 store address: t1*64*HROW")
e(f"v_mul_u32_u24 v8, {64*HROW}, v3")
e(f"v_lshl_add_u32 v{vHA}, v4, 5, v8")
cm("wo: DMA source offset and transposing read: row 8h+r, 16-B chunk 4cbk + 2(cc&1) + g, byte 8(cc>>1)")
e(f"v_lshrrev_b32 v8, 3, v{vL}")
e(f"v_and_b32 v9, 7, v{vL}")
e(f"v_bfe_u32 v10, v{vL}, 4, 1")
e("v_lshlrev_b32 v10, 2, v10")
e("v_xor_b32 v9, v9, v10")
e("v_lshlrev_b32 v9, 4, v9")
e(f"v_lshl_add_u32 v{vWOD}, v8, 10, v9")
e(f"v_bfe_u32 v9, v{vL}, 2, 2")
e("v_lshl_add_u32 v9, v4, 3, v9")
e("v_lshlrev_b32 v9, 7, v9")
e(f"v_and_b32 v10, 1, v{vL}")
e(f"v_bfe_u32 v11, v{vL}, 4, 1")
e("v_lshl_add_u32 v10, v10, 1, v11")
e(f"s_lshr_b32 s{sT0}, s{sA}, 1")
e(f"s_lshl_b32 s{sT0}, s{sT0}, 2")
e(f"v_add_u32 v10, s{sT0}, v10")
e(f"v_bfe_u32 v11, v{vL}, 3, 1")
e("v_lshlrev_b32 v11, 2, v11")
e("v_xor_b32 v10, v10, v11")
e("v_lshl_add_u32 v9, v10, 4, v9")
e(f"v_bfe_u32 v11, v{vL}, 1, 1")
e("v_lshl_add_u32 v9, v11, 3, v9")
e(f"v_add_u32 v{vWOT}, {STG}, v9")
cm("output projection: out offset, O fragment address")
e(f"s_lshl_b32 s{sT3}, s{sTB}, 1")
e(f"s_and_b32 s{sT4}, s{sA}, 1")
e(f"s_add_u32 s{sT3}, s{sT3}, s{sT4}")
e(f"s_lshl_b32 s{sT3}, s{sT3}, 5")
e(f"v_add_u32 v8, s{sT3}, v3")
e("v_lshlrev_b32 v8, 11, v8")
e(f"v_lshl_add_u32 v{vOUT}, v4, 5, v8")
e(f"s_lshl_b32 s{sT3}, s{sT4}, 15")
e(f"v_add_u32 v{vOF}, s{sT3}, v2")
e(f"v_lshlrev_b32 v{vPH}, 7, v{vL}")

cm("B2 A rows: e(m) = 32eb + col(m) (eb<8) or 512 - that; col(m) = 16*b2 + 4*(m>>3) + (m&3)")
e("v_and_b32 v8, 3, v3")
e("v_bfe_u32 v9, v3, 2, 1")
e("v_lshl_add_u32 v8, v9, 4, v8")
e("v_lshrrev_b32 v9, 3, v3")
e("v_lshl_add_u32 v8, v9, 2, v8")
e(f"s_lshl_b32 s{sT0}, s{sEB}, 5")
e(f"v_add_u32 v8, s{sT0}, v8")
e("v_sub_u32 v9, 0x200, v8")
e("v_sub_u32 v10, 0x800, v13")
e("v_and_b32 v10, 0x7ff, v10               ; (2048 - ts) & 2047")
e(f"s_cmp_lt_u32 s{sEB}, 8")
e("s_cselect_b64 vcc, 0, -1")
e("v_cndmask_b32 v8, v8, v9, vcc")
e("v_cndmask_b32 v11, v13, v10, vcc")
e("v_lshlrev_b32 v10, 12, v10")
e(f"v_lshl_add_u32 v{vDIM}, v4, 6, v10")
e("v_lshlrev_b32 v10, 12, v13")
e(f"v_lshl_add_u32 v{vDRE}, v4, 6, v10")
e("v_lshlrev_b32 v10, 18, v3")
e(f"v_lshl_add_u32 v{vF}, v4, 4, v10")
e(f"v_lshrrev_b32 v10, 3, v{vL}")
e("v_lshlrev_b32 v10, 5, v10")
e(f"v_and_b32 v9, 7, v{vL}")
e("v_add_u32 v10, v10, v9")
e(f"v_lshlrev_b32 v{vPK}, 7, v10             ; K/V flags 32g + (0..7)")
e("v_lshlrev_b32 v11, 11, v11")
e(f"v_lshl_add_u32 v{vB2O}, v4, 5, v11")
e(f"v_mul_u32_u24 v9, {32*HROW}, v4")
e(f"v_lshl_add_u32 v{vB2A}, v8, 2, v9")
e(f"s_cmp_eq_u32 s{sRET}, 0")
e(f"s_mov_b32 s{sRET}, 2")
e("s_cbranch_scc1 L_tagged")
lab("L_addr_2")
e(f"v_mov_b32 v{vCNT}, {MISC+C_G1}")
vCB = 11 if False else 249
if opt['bytef']: e(f"v_add_u32 v{vCNT+1}, s{sA}, v{vCNT}")
e(f"v_mov_b32 v{vCNT+1}, 1") if not opt['bytef'] else None
e("s_waitcnt vmcnt(0)")
stamp(18)
if opt['prepoll']:
    e(f"v_cmp_ne_u64 vcc, {sr(sNON,2)}, {vr(ACC+6,2)}")
e("s_barrier")
if opt['prepoll']:
    e("s_cmp_eq_u64 vcc, 0")
    e("s_cbranch_scc1 L_kv_all")
poll("L_pollKV", 1, vPK, 8, [sKP], sleep=1)
lab("L_kv_all")
stamp(4)
e("s_setprio 0")
LOW[0] = True
for G in range(1, 3): kvdma(G)
stamp(23)
e("s_waitcnt vmcnt(4)")
stamp(24)
e(f"s_mov_b64 exec, {hex(1 << (1)) if opt['bytef'] else 1}          ; lane {1} stores its lane id")
e(f"ds_write_b8 v{vCNT+1}, v{vL} offset:{0}" if opt['bytef'] else f"ds_add_u32 v{vCNT}, v{vCNT+1} offset:{0}")
e("s_mov_b64 exec, -1")
for G in range(3, 8): kvdma(G)
XF, WF = D1, D1 + 8
cm("pull this workgroup's 1/32 share of what its XCD reads for the spectral part and of wo towards L2")
e(f"s_lshl_b32 s{sT0}, s{sJ}, 13")
e(f"s_cmp_eq_u32 s{sA}, 1")
e("s_cbranch_scc1 L_pf1")
e(f"s_cmp_eq_u32 s{sA}, 2")
e("s_cbranch_scc1 L_pf2")
e(f"s_cmp_eq_u32 s{sA}, 3")
e("s_cbranch_scc1 L_pf3")
e(f"s_lshl_b32 s{sT0}, s{sJ}, 16")
e(f"s_lshl_b32 s{sT1}, s{sXCD}, 13")
e(f"s_add_u32 s{sT0}, s{sT0}, s{sT1}")
e(f"buffer_load_dword v{D2+8}, v{vPH}, {sr(R_XB,4)}, s{sT0} offen")
e("s_branch L_pf4")
lab("L_pf1")
e(f"buffer_load_dword v{D2+8}, v{vPH}, {sr(R_HRE,4)}, s{sT0} offen")
e("s_branch L_pf4")
lab("L_pf2")
e(f"buffer_load_dword v{D2+8}, v{vPH}, {sr(R_HIM,4)}, s{sT0} offen")
e("s_branch L_pf4")
lab("L_pf3")
e(f"s_lshl_b32 s{sT0}, s{sJ}, 14")
e(f"buffer_load_dword v{D2+8}, v{vPH}, {sr(R_WO,4)}, s{sT0} offen")
lab("L_pf4")
sSL, sWOS, sWOB = 30, 31, 96
e(f"s_lshl_b32 s{sSL}, s{sA}, 11")
e(f"s_add_u32 s{sSL}, s{sSL}, {STG}")
e(f"s_lshl_b32 s{sWOS}, s{sHG}, 7")
e(f"s_lshl_b32 s{sT1}, s{sA}, 14")
e(f"s_add_u32 s{sWOB}, s{sWOS}, s{sT1}")
e(f"s_lshr_b32 s{sT1}, s{sA}, 1")
e(f"s_lshl_b32 s{sT1}, s{sT1}, 6")
e(f"s_add_u32 s{sWOS}, s{sWOS}, s{sT1}")
VM = []
def st_dma(n):
    if n >= 24: return
    for i in range(2):
        if n < 16:
            e(f"s_add_u32 m0, s{sSL}, {8192*(n%3) + 1024*i - 64*n}")
            e("s_nop 0")
            e(f"global_load_lds_dwordx4 {vr(vG0 + 2*i, 2)}, off offset:{64*n}" if not opt['abl'] & 2 else "s_nop 0")
        else:
            e(f"s_add_u32 m0, s{sSL}, {8192*(n%3) + 1024*i}")
            e(f"s_add_u32 s{sT1}, s{sWOB}, {65536*(n-16) + 8192*i}")
            e(f"buffer_load_dwordx4 v{vWOD}, {sr(R_WO,4)}, s{sT1} offen lds")
        VM.append(('st', n))
def st_sync(n, between=None):
    last = max(k for k, t in enumerate(VM) if t == ('st', n))
    e(f"s_waitcnt vmcnt({len(VM) - 1 - last}) lgkmcnt(0)")
    e(f"s_mov_b64 exec, {hex(1 << (n + 1)) if opt['bytef'] else 1}          ; lane {n + 1} stores its lane id")
    e(f"ds_write_b8 v{vCNT+1}, v{vL} offset:{C_ST - C_G1}" if opt['bytef'] else f"ds_add_u32 v{vCNT}, v{vCNT+1} offset:{C_ST - C_G1}")
    e("s_mov_b64 exec, -1")
    if between: between()
    e(f"s_mov_b32 s{sSPIN}, {SPIN*8}")
    lab(f"L_st{n}")
    e(f"ds_read_b32 v8, v{vCNT} offset:{C_ST - C_G1}")
    e(f"s_sub_u32 s{sSPIN}, s{sSPIN}, 1")
    e(f"s_cbranch_scc1 L_st{n}_done")
    e("s_waitcnt lgkmcnt(0)")
    if (opt['sp'] if n < 16 else opt['spw']): e("s_setprio 2")
    e(f"v_readfirstlane_b32 s{sT4}, v8")
    e("s_setprio 0")
    if opt['bytef']:
        e(f"s_or_b32 s{sT4}, s{sT4}, 0x80808080")
        e(f"s_sub_u32 s{sT4}, s{sT4}, {hex(0x01010101*(n+1))}")
        e(f"s_and_b32 s{sT4}, s{sT4}, 0x80808080")
        e(f"s_cmp_eq_u32 s{sT4}, 0x80808080")
    else: e(f"s_cmp_ge_u32 s{sT4}, {4*(n+1 - (16 if opt['nob'] else 0))}")
    if opt['ss']:
        e(f"s_cbranch_scc1 L_st{n}_done")
        e(f"s_sleep {opt['ss']}")
        e(f"s_branch L_st{n}")
    else: e(f"s_cbranch_scc0 L_st{n}")
    lab(f"L_st{n}_done")
if not opt['nob']: st_dma(0); st_dma(1)
stamp(17)
e("s_waitcnt vmcnt(5)                    ; younger: one pull, two stages" if not opt['nob'] else "s_waitcnt vmcnt(0)")
e(f"s_mov_b64 exec, {hex(1 << (1)) if opt['bytef'] else 1}          ; lane {1} stores its lane id")
e(f"ds_write_b8 v{vCNT+1}, v{vL} offset:{4}" if opt['bytef'] else f"ds_add_u32 v{vCNT}, v{vCNT+1} offset:{4}")
e("s_mov_b64 exec, -1")
e(f"s_cmp_eq_u32 s{sA}, 3")
e("s_cbranch_scc0 L_pf5")
e(f"s_add_u32 s{sT0}, s{sT0}, 8192")
e(f"buffer_load_dword v{D2+9}, v{vPH}, {sr(R_WO,4)}, s{sT0} offen     ; not counted below: only makes waits stricter")
lab("L_pf5")
stamp(21)
RAW = BP
def b1mfma(n):
    for s_ in range(2 if not opt['nomf'] else 0):
        e(f"v_mfma_f32_32x32x16_bf16 {vr(ACC,16)}, {vr(XF+4*s_,4)}, {vr(WF+4*s_,4)}, {'0' if n==0 and s_==0 else vr(ACC,16)}")
if opt['nob']:
    e("s_branch L_nob1")
NOB0 = len(L)
for n in range(16 if not opt['nob'] else 0):
    st_sync(n, (lambda: b1mfma(n - 1)) if n else None)
    if n + 2 < 16: st_dma(n + 2)
    for s_ in range(2 if not opt['abl'] & 1 else 0):
        e(f"ds_read_b128 {vr(XF+4*s_,4)}, v{vRX+s_} offset:{8192*(n%3)}")
        e(f"ds_read_b128 {vr(WF+4*s_,4)}, v{vRW+s_} offset:{8192*(n%3)}")
    if n == opt['fst']:
        for kb in range(2): e(f"buffer_load_dwordx4 {vr(FR+4*kb,4)}, v{vF}, {sr(R_SRE,4)}, 0 offen offset:{32*kb}")
        for kb in range(2): e(f"buffer_load_dwordx4 {vr(FR+8+4*kb,4)}, v{vF}, {sr(R_SIM,4)}, 0 offen offset:{32*kb}")
        VM += [('F', 0)]*4
e("s_waitcnt lgkmcnt(0)")
b1mfma(15)
stamp(22)
e(f"s_mul_i32 s{sT0}, s{sS2}, {HROW}")
e(f"s_lshl_b32 s{sT1}, s{sCB}, 6")
e(f"s_add_u32 s{sT0}, s{sT0}, s{sT1}")
e(f"s_add_u32 s{sT0}, s{sT0}, {WS_H}")
nop(7)
vZ = D2 + 8 if False else BP
def boost(on):
    e(f"s_setprio {2 if on else 0}"); LOW[0] = not on
boost(opt['eb'] & 1)
for i in range(8): e(f"v_cvt_pk_bf16_f32 v{vZ+i}, v{ACC+2*i}, v{ACC+2*i+1}")
boost(0)
nop(1)
e(f"v_mfma_f32_32x32x16_bf16 {vr(D1,16)}, {vr(vZ,4)}, {vr(FR,4)}, 0")
e(f"v_mfma_f32_32x32x16_bf16 {vr(D2,16)}, {vr(vZ,4)}, {vr(FR+8,4)}, 0")
e(f"v_mfma_f32_32x32x16_bf16 {vr(D1,16)}, {vr(vZ+4,4)}, {vr(FR+4,4)}, {vr(D1,16)}")
e(f"v_mfma_f32_32x32x16_bf16 {vr(D2,16)}, {vr(vZ+4,4)}, {vr(FR+12,4)}, {vr(D2,16)}")
nop(11)
boost(1)
for r in range(8):
    e(f"v_sub_f32 v{ACC+r}, v{D1+r}, v{D2+8+r}")
    e(f"v_add_f32 v{ACC+8+r}, v{D2+r}, v{D1+8+r}")
e(f"s_cmp_eq_u32 s{sCB}, 0")
e("s_cbranch_scc0 L_nospecial")
cm("columns e = 0 and e = 256 (both purely real rows): lanes 0..31, register 0")
e("s_mov_b32 exec_hi, 0")
e(f"v_mov_b32 v{ACC}, v{D1}")
e(f"v_mov_b32 v{ACC+8}, v{D2}")
e(f"v_cvt_pk_bf16_f32 v8, v{D1+8}, v{D2+8}")
e(f"buffer_store_dword v8, v{vHA}, {sr(R_WS,4)}, s{sT0} offen offset:1024 sc1")
e("s_mov_b64 exec, -1")
lab("L_nospecial")
for r in range(8): e(f"v_cvt_pk_bf16_f32 v{D1+r}, v{ACC+r}, v{ACC+8+r}")
boost(0)
cm("lane (t1, h) holds 32 B of row t1: regroup through LDS so that 4 adjacent lanes store one 64-B run")
e(f"ds_write_b128 v{vHW}, {vr(D1,4)} offset:8192")
e(f"ds_write_b128 v{vHW1}, {vr(D1+4,4)} offset:8192")
e("s_waitcnt lgkmcnt(0)")
e(f"ds_read_b128 {vr(D1+8,4)}, v{vHR} offset:8192")
e(f"ds_read_b128 {vr(D1+12,4)}, v{vHR} offset:9216")
e(f"s_add_u32 s{sT1}, s{sT0}, {16*64*HROW}")
e("s_waitcnt lgkmcnt(0)")
e(f"buffer_store_dwordx4 {vr(D1+8,4)}, v{vHS}, {sr(R_WS,4)}, s{sT0} offen sc1")
e(f"buffer_store_dwordx4 {vr(D1+12,4)}, v{vHS}, {sr(R_WS,4)}, s{sT1} offen sc1")
if opt['nob']: lab("L_nob1")
if not opt['nowo']: st_dma(16); st_dma(17)
if opt['nob']: e("s_branch L_nob2")
def rawloads():
    global VM
    cm("rows of the sequence DFT matrices for B2")
    for i in range(4): e(f"buffer_load_dwordx4 {vr(RAW+4*i,4)}, v{vDRE}, {sr(R_SRE,4)}, 0 offen offset:{16*i}")
    for i in range(4): e(f"buffer_load_dwordx4 {vr(RAW+16+4*i,4)}, v{vDIM}, {sr(R_SIM,4)}, 0 offen offset:{16*i}")
    VM += [('raw', 0)]*8
if not opt['rawlate']: rawloads()
e(f"s_lshl_b32 s{sT1}, s2, 7")
e(f"s_add_u32 s{sT1}, s{sT1}, {FL_H}")
stamp(19)
e(f"s_waitcnt vmcnt({4 if opt['rawlate'] else 12})")
stamp(20)
boost(1)
signal("L_sigH", C_H, 3, sT1, 8)
stamp(5)
def bploc(o): return FR + o if o < 16 else (RAW + o - 16 if o < 24 else RAW + 16 + o - 24)
def perms():
    e(f"s_mov_b32 s{sT2}, 0x05040100")
    e(f"s_mov_b32 s{sT3}, 0x07060302")
    for i in range(16):
        e(f"v_perm_b32 v{bploc(2*i)}, v{RAW+16+i}, v{RAW+i}, s{sT2}")
        e(f"v_perm_b32 v{bploc(2*i+1)}, v{RAW+16+i}, v{RAW+i}, s{sT3}")
if not opt['b2tail']: perms()
boost(0)
if opt['rawlate'] and not opt['abl'] & 4: rawloads()
if opt['nob']: lab("L_nob2")
def wo_stage(n):
    if opt['nowo']: return
    st_sync(n)
    st_dma(n + 2)
    for k in range(4):
        ks = 4*(n - 16) + k
        e(f"ds_read_b64_tr_b16 {vr(BUF+4*ks,2)}, v{vWOT} offset:{8192*(n%3) + 2048*k}")
        e(f"ds_read_b64_tr_b16 {vr(BUF+4*ks+2,2)}, v{vWOT} offset:{8192*(n%3) + 2048*k + 512}")
for n in range(16, 16 + opt['wsplit']): wo_stage(n)
stamp(6)
boost(1)
if opt['pre']:
    cm("aux wave 2 touches the O lines this workgroup will write and the 8 flags of its token block")
    e(f"s_cmp_eq_u32 s{sA}, 2")
    e("s_cbranch_scc0 L_nopre")
    e(f"v_lshrrev_b32 v8, 5, v{vL}")
    e(f"v_and_b32 v9, 31, v{vL}")
    e("v_lshlrev_b32 v9, 7, v9")
    e("v_lshl_add_u32 v8, v8, 15, v9")
    e(f"s_lshl_b32 s{sT0}, s{sTB}, 16")
    e(f"s_lshl_b32 s{sT1}, s{sHG}, 12")
    e(f"s_add_u32 s{sT0}, s{sT0}, s{sT1}")
    e(f"s_add_u32 s{sT0}, s{sT0}, {WS_O}")
    e(f"buffer_load_dword v10, v8, {sr(R_WS,4)}, s{sT0} offen sc1")
    e(f"v_and_b32 v9, 0xf80, v{vPH}")
    e(f"s_lshl_b32 s{sT0}, s{sTB}, 12")
    e(f"s_add_u32 s{sT0}, s{sT0}, {FL_O}")
    e(f"buffer_load_dword v11, v9, {sr(R_WS,4)}, s{sT0} offen sc1")
    e("s_waitcnt vmcnt(0)")
    lab("L_nopre")
cm("aux wave 1: XCD ids of the 8 workgroups of this token block: ids 32*hg + (id & 31)")
e(f"s_cmp_eq_u32 s{sA}, 1")
e("s_cbranch_scc0 L_nosame")
e(f"v_and_b32 v8, 7, v{vL}")
e("v_lshlrev_b32 v8, 12, v8")
e(f"s_and_b32 s{sT0}, s2, 31")
e(f"s_lshl_b32 s{sT0}, s{sT0}, 7")
e(f"s_add_u32 s{sT0}, s{sT0}, {FL_X}")
e(f"buffer_load_dwordx2 v[10:11], v8, {sr(R_WS,4)}, s{sT0} offen sc1")
e(f"s_getreg_b32 s{sX}, hwreg(HW_REG_XCC_ID, 0, 4)")
e(f"s_or_b32 s{sX}, s{sX}, s{sNON}")
e(f"s_mov_b32 s{sX+1}, s{sNON+1}")
e(f"v_mov_b32 v9, {MISC+C_SAME}")
e("s_waitcnt vmcnt(0)")
e(f"v_cmp_ne_u64 vcc, {sr(sX,2)}, v[10:11]")
e("s_nop 0")
e("s_cmp_eq_u64 vcc, 0")
e(f"s_cselect_b32 s{sT0}, {1 if opt['fast'] else 0}, 0")
e(f"v_mov_b32 v11, s{sT0}")
e("ds_write_b32 v9, v11")
lab("L_nosame")
if opt['nob'] or opt['abl'] & 4: e("s_branch L_b2done")
cm("B2: wait for the H rows it reads: column groups ebg (direct) or 7-ebg and (8-ebg)&3 (mirrored)")
e(f"s_cmp_eq_u32 s{sA}, 0")
e("s_cbranch_scc0 L_hwait")
e(f"s_lshr_b32 s{sT2}, s{sJ}, 2              ; ebg")
e(f"s_sub_u32 s{sT0}, 7, s{sT2}")
e(f"s_sub_u32 s{sT1}, 8, s{sT2}")
e(f"s_and_b32 s{sT1}, s{sT1}, 3")
e(f"s_cmp_lt_u32 s{sT2}, 4")
e(f"s_cselect_b32 s{sT0}, s{sT2}, s{sT0}")
e(f"s_cselect_b32 s{sT1}, s{sT2}, s{sT1}")
e(f"s_lshl_b32 s{sT0}, s{sT0}, 13")
e(f"s_lshl_b32 s{sT1}, s{sT1}, 13")
e(f"s_add_u32 s{sT0}, s{sT0}, {FL_H}")
e(f"s_add_u32 s{sT1}, s{sT1}, {FL_H}")
poll("L_pollH", 2, vPH, 8, [sT0, sT1], sleep=8)
e(f"v_mov_b32 v10, {MISC+C_HOK}")
e("v_mov_b32 v11, 1")
e("ds_write_b32 v10, v11")
e("s_branch L_hok")
lab("L_hwait")
lds_wait("L_hw", C_HOK, 1, 10, sleep=8)
lab("L_hok")
boost(0)
stamp(7)
e(f"s_mul_i32 s{sT0}, s{sT1S}, {64*HROW}")
e(f"s_add_u32 s{sT0}, s{sT0}, {WS_H}")
AF = 208
for kb in range(8):
    for w in range(4): e(f"buffer_load_dword v{AF+4*kb+w}, v{vB2A}, {sr(R_WS,4)}, s{sT0} offen offset:{w*HROW} sc1")
    if kb < 7: e(f"s_add_u32 s{sT0}, s{sT0}, {4*HROW}")
VM += [('A', 0)]*32
sB2 = 88
def b2compute(low):
    e(f"s_lshl_b32 s{sB2}, s{sEB}, 6")
    e(f"s_add_u32 s{sB2}, s{sB2}, 1024")
    for kb in range(8):
        if low: e(f"s_waitcnt vmcnt({28-4*kb})")
        e(f"v_mfma_f32_32x32x16_bf16 {vr(ACC,16)}, {vr(AF+4*kb,4)}, {vr(bploc(4*kb),4)}, {'0' if kb==0 else vr(ACC,16)}")
    nop(11 if low else 12)
    if low: boost(1)
    for i in range(8): e(f"v_cvt_pk_bf16_f32 v{AF+8+i}, v{ACC+2*i}, v{ACC+2*i+1}")
    if low: b2store()
vRG, vS0, vS1, vO0 = 240, 241, 242, 243
def regroup(src, dst):
    e(f"ds_write_b128 v{vHW}, {vr(src,4)} offset:8192")
    e(f"ds_write_b128 v{vHW1}, {vr(src+4,4)} offset:8192")
    e("s_waitcnt lgkmcnt(0)")
    e(f"ds_read_b128 {vr(dst,4)}, v{vRG} offset:8192")
    e(f"ds_read_b128 {vr(dst+4,4)}, v{vRG} offset:9216")
def rg_addr():
    e(f"v_add_u32 v{vRG}, s{sSL}, v2")
    e(f"v_lshrrev_b32 v8, 4, v{vL}")
    e(f"v_xor_b32 v8, v8, v{vL}")
    e("v_and_b32 v8, 3, v8")
    e("v_lshlrev_b32 v8, 4, v8                 ; chunk * 16")
    e(f"v_lshrrev_b32 v9, 2, v{vL}              ; r")
    e(f"s_lshl_b32 s{sT3}, s{sTB}, 1")
    e(f"s_add_u32 s{sT3}, s{sT3}, s{sTT}")
    e(f"s_lshl_b32 s{sT3}, s{sT3}, 5")
    e(f"v_add_u32 v10, s{sT3}, v9")
    e("v_lshlrev_b32 v10, 11, v10")
    e(f"v_add_u32 v{vO0}, v10, v8")
    e(f"s_lshl_b32 s{sT3}, s{sTT}, 10")
    e(f"s_add_u32 s{sT3}, s{sT3}, s{sT1S}")
    e(f"v_lshl_add_u32 v9, v9, 5, s{sT3}         ; ts")
    e("v_add_u32 v10, 0x200, v9")
    e("v_sub_u32 v11, 0x800, v9")
    e("v_and_b32 v11, 0x7ff, v11")
    e(f"v_sub_u32 v{vS1}, 0x800, v10")
    e(f"s_cmp_lt_u32 s{sEB}, 8")
    e("s_cselect_b64 vcc, 0, -1")
    e("v_cndmask_b32 v9, v9, v11, vcc")
    e(f"v_cndmask_b32 v10, v10, v{vS1}, vcc")
    e(f"v_lshl_add_u32 v{vS0}, v9, 11, v8")
    e(f"v_lshl_add_u32 v{vS1}, v10, 11, v8")
def b2store():
    if opt['rg'] & 1:
        e(f"buffer_store_dwordx4 {vr(AF+16,4)}, v{vS0}, {sr(R_OUT,4)}, s{sB2} offen{OSC}")
        e(f"buffer_store_dwordx4 {vr(AF+20,4)}, v{vS1}, {sr(R_OUT,4)}, s{sB2} offen{OSC}")
        return
    e(f"buffer_store_dwordx4 {vr(AF+8,4)}, v{vB2O}, {sr(R_OUT,4)}, s{sB2} offen{OSC}")
    e(f"buffer_store_dwordx4 {vr(AF+12,4)}, v{vB2O}, {sr(R_OUT,4)}, s{sB2} offen offset:16{OSC}")
if not opt['b2tail']: b2compute(True)
lab("L_b2done")
boost(0)
stamp(8)
for n in range(16 + opt['wsplit'], 24): wo_stage(n)
e("s_waitcnt vmcnt(0) lgkmcnt(0)")
if opt['b2s']:
    boost(1)
    perms()
    rg_addr()
    boost(0)
    e(f"s_lshl_b32 s{sB2}, s{sEB}, 6")
    e(f"s_add_u32 s{sB2}, s{sB2}, 1024")
    for kb in range(8):
        e(f"v_mfma_f32_32x32x16_bf16 {vr(ACC,16)}, {vr(AF+4*kb,4)}, {vr(bploc(4*kb),4)}, {'0' if kb==0 else vr(ACC,16)}")
    nop(11)
    boost(1)
    for i in range(8): e(f"v_cvt_pk_bf16_f32 v{AF+8+i}, v{ACC+2*i}, v{ACC+2*i+1}")
    boost(0)
    regroup(AF+8, AF+16)
    e("s_waitcnt lgkmcnt(0)")
    sc = " sc1" if opt['b2s'] == 1 else ""
    e(f"buffer_store_dwordx4 {vr(AF+16,4)}, v{vS0}, {sr(R_OUT,4)}, s{sB2} offen{sc}")
    e(f"buffer_store_dwordx4 {vr(AF+20,4)}, v{vS1}, {sr(R_OUT,4)}, s{sB2} offen{sc}")
stamp(10)
warm("L_padt", "L_pado_ret")
cm("tail: the attention waves bring the O tile -> LDS 0..")
e("s_barrier                             ; B7")
LOW[0] = False
stamp(9)
if opt['b2tail'] and not opt['nob'] and not opt['abl'] & 20 and not opt['b2s']:
    cm("second spectral stage: operands are in registers, the matrix pipe is free until the O tile lands")
    perms()
    if opt['rg']: rg_addr()
    b2compute(False)
    if opt['rg'] & 1:
        regroup(AF+8, AF+16)
        e("s_waitcnt lgkmcnt(0)")
e(f"s_mov_b32 s{sT0}, s{sWOS}")
stamp(11)
e("s_barrier                             ; B8a")
pad_begin("L_pado")
OF = 144
korder = [h for st in range(4) for h in range(32) if (h % 8) // 2 == st]
PD = opt['opd']
def ofrag(n): e(f"ds_read_b128 {vr(OF+4*(n%8),4)}, v{vOF} offset:{1024*korder[n]}")
for n in range(PD): ofrag(n)
if opt['b2at'] == 0 and opt['b2tail'] and not opt['nob'] and not opt['abl'] & 28 and not opt['b2s']: b2store()
for n in range(32):
    if n + PD in (8, 16, 24):
        e(f"s_barrier                             ; B8.{(n+PD)//8}")
        if n + PD == opt['b2at'] and opt['b2tail'] and not opt['nob'] and not opt['abl'] & 28 and not opt['b2s']: b2store()
    if n + PD < 32:
        ofrag(n + PD)
        e(f"s_waitcnt lgkmcnt({PD})")
    else:
        e(f"s_waitcnt lgkmcnt({31-n})")
    e(f"v_mfma_f32_32x32x16_bf16 {vr(ACC,16)}, {vr(BUF+4*korder[n],4)}, {vr(OF+4*(n%8),4)}, {'0' if n==0 else vr(ACC,16)}")
nop(12)
for i in range(8): e(f"v_cvt_pk_bf16_f32 v{D1+i}, v{ACC+2*i}, v{ACC+2*i+1}")
if opt['rg'] & 2:
    regroup(D1, D1+8)
    e(f"s_add_u32 s{sT1}, s{sT0}, {16*2048}")
    e("s_waitcnt lgkmcnt(1)")
    e(f"buffer_store_dwordx4 {vr(D1+8,4)}, v{vO0}, {sr(R_OUT,4)}, s{sT0} offen{OSC}")
    e("s_waitcnt lgkmcnt(0)")
    e(f"buffer_store_dwordx4 {vr(D1+12,4)}, v{vO0}, {sr(R_OUT,4)}, s{sT1} offen{OSC}")
else:
    e(f"buffer_store_dwordx4 {vr(D1,4)}, v{vOUT}, {sr(R_OUT,4)}, s{sT0} offen{OSC}")
    e(f"buffer_store_dwordx4 {vr(D1+4,4)}, v{vOUT}, {sr(R_OUT,4)}, s{sT0} offen offset:16{OSC}")
pad_end("L_pado", "L_pado_ret")
if opt['dbgt']:
    e(f"s_cmp_lt_u32 s2, 6")
    e("s_cbranch_scc0 L_end")
    e(f"s_cmp_eq_u32 s{sW}, 4")
    e("s_cbranch_scc0 L_end")
    e("s_waitcnt vmcnt(0)")
    e(f"s_memrealtime {sr(sST,2)}")
    e("s_waitcnt lgkmcnt(0)")
    e(f"v_mov_b32 v4, s{sST}")
    e(f"s_lshl_b32 s{sT0}, s2, 2")
    e(f"s_add_u32 s{sT0}, s{sT0}, 40")
    e("s_mov_b64 exec, 1")
    e(f"buffer_store_dword v4, off, {sr(R_DBG,4)}, s{sT0}")
if opt['endat']:
    lab("L_endat")
    e(f"s_memrealtime {sr(sX,2)}")
    e("s_waitcnt lgkmcnt(0)")
    e(f"s_sub_u32 s{sX}, s{sX}, s3")
    e(f"s_cmp_lt_u32 s{sX}, {opt['endat']}")
    e("s_cbranch_scc1 L_endat")
stamp(12)
if opt['stamps']: e("s_waitcnt vmcnt(0)")
stamp(13)
stamp_dump()
lab("L_end")
e("s_endpgm")
lab("L_codeend")
L.append(f""".section .rodata,"a"
.p2align 6
.amdhsa_kernel {NAME}_kernel
  .amdhsa_next_free_vgpr 256
  .amdhsa_next_free_sgpr 102
  .amdhsa_accum_offset 256
  .amdhsa_group_segment_fixed_size 0
  .amdhsa_kernarg_size 104
  .amdhsa_user_sgpr_count 2
  .amdhsa_user_sgpr_kernarg_segment_ptr 1
  .amdhsa_system_sgpr_workgroup_id_x 1
.end_amdhsa_kernel""")

def finish(lines, ncode):
    out = []
    for l in lines:
        if l.strip() == "CODEPF":
            for i in range(ncode // 8192):
                out.append(f"    global_load_dword v200, v[212:213], off")
                out.append(f"    v_add_co_u32 v212, vcc, 0x2000, v212")
                out.append(f"    s_nop 1")
                out.append(f"    v_addc_co_u32 v213, vcc, 0, v213, vcc")
            rem = (ncode % 8192) // 128
            if rem:
                out.append(f"    v_cmp_gt_u32 vcc, {rem}, v{vL}")
                out.append(f"    s_nop 0")
                out.append(f"    s_and_saveexec_b64 {sr(sX,2)}, vcc")
                out.append(f"    global_load_dword v200, v[212:213], off")
                out.append(f"    s_mov_b64 exec, -1")
        else: out.append(l)
    return "\n".join(out) + "\n"
import subprocess, os, hazcheck
ncode = 16384
for _ in range(3):
    txt = finish(L, ncode)
    open("_g.s", "w").write(txt)
    r = subprocess.run(["clang", "-x", "assembler", "-target", "amdgcn-amd-amdhsa", "-mcpu=gfx950", "-c", "_g.s", "-o", "_g.o"], capture_output=True, text=True)
    if r.returncode: print(r.stderr[:3000]); sys.exit(1)
    sz = subprocess.run(["llvm-objdump", "-h", "_g.o"], capture_output=True, text=True).stdout
    n = [int(x.split()[2], 16) for x in sz.splitlines() if " .text " in x][0]
    if n // 128 * 128 == ncode: break
    ncode = n // 128 * 128
open(sys.argv[1], "w").write(txt)
print(hazcheck.check(txt), "hazards; code bytes", n)
```

```python
import sys, struct
NAME = "concat_heads__grouped_kv_mqa__spectral_fnet__prompt"
opt = dict(stamps=0, prioA=1, prioX=2, boost=1, force_fb=0, dbgt=0, dry=0, codepf=0, shift=102, outsc1=0, cluster=1, fast=1, nob=0, l2pf=0, wo1=4, hold=1, pre=1, pads=0, dxcc=-1, dus=300, endat=0, omode=1, b2tail=1, kvd=3, h1=1, h2=4, fs=3, ntc=9, nowo=0, nodsw=0, nomf=0, sp=1, ss=1, wsplit=8, attpf=0, rawlate=1, dftpf=1, fst=6, spw=0, eb=1, qloop=0, padt=0, opd=4, b2at=8, abl=0, preo=0, rg=0, prepoll=0, lwarm=0, csync=0, bytef=0, first=1, b2s=0, mt=1, win=8, win2=8, pa=0)
for a in sys.argv[2:]:
    k, v = a.split('='); opt[k] = int(v)

L = []
DOC = '''; ---------------------------------------------------------------------------------------------------------------
; One persistent launch, 256 workgroups (one per CU) x 8 waves.  Workgroup id -> xcd = id & 7 (locality hint only),
;       S^T = K Q^T + C by MFMA (C = -(stand-in max + shift), scale folded into Q), v_exp_f32 in place, and
;       P V by the 2:4 sparse MFMA whose index picks the upper halves of the fp32 registers (bf16 by truncation);
;       a row of constants in the V operand yields the row sum.  The stand-in max is checked after the loop and
;   waves 4..7 ("aux"): K or V projection of 16 tokens, K/V streaming into LDS, the spectral part
; Hand-offs between workgroups go through d_ws: data stores, s_waitcnt, then a flag (one 128-B line each) holding
; flags from stale ones.  Stores are write-through (sc1) unless all workgroups of the hand-off reported the same XCD;
; ---------------------------------------------------------------------------------------------------------------'''
def e(s=""): L.append("    " + s)
def lab(s): L.append(s + ":")
def cm(s): L.append("    ; " + s)
def vr(a, n): return f"v[{a}:{a+n-1}]" if n > 1 else f"v{a}"
def sr(a, n): return f"s[{a}:{a+n-1}]" if n > 1 else f"s{a}"
def nop(n):
    while n > 0:
        k = min(n, 16); e(f"s_nop {k-1}"); n -= k
def f2u(x): return struct.unpack('<I', struct.pack('<f', x))[0]
OSC = " sc1" if opt['outsc1'] else ""

W_OFF = 0
X_OFF, XROW = 16384, 1040
WQ_OFF = 82944
ONES_OFF = 155648
MISC = ONES_OFF + 1024
STG = 131072
LDS_BYTES = 163840
C_KV, C_H, C_O, C_TAG, C_HOK, C_SAME, C_CR, C_QA, C_QB, C_G1, C_KVL, C_ST = 0, 4, 8, 16, 24, 28, 32, 36, 40, 44, 48, 52
WS_KV, WS_O, WS_H, WS_FL = 0, 0x40000, 0x240000, 0x480000
FL_KV, FL_H, FL_X, FL_O = WS_FL, WS_FL + 0x8000, WS_FL + 0x10000, WS_FL + 0x20000
WS_STAMP = 0x4C0000
WS_SIZE = 0x560000
HROW = 1152
FOUR = 0x01010101 if opt['bytef'] else 4
SPIN = 400000
VSCALE = 64
P_XA, P_WQ, P_WK, P_WV, P_WO, P_XB, P_SRE, P_SIM = 4, 6, 8, 10, 12, 14, 16, 18
P_HRE, P_HIM, P_OUT, P_DBG, P_WS = 20, 22, 24, 26, 28
R_XA, R_WQ, R_W, R_WS, R_WO, R_XB, R_SRE, R_SIM, R_OUT, R_DBG = 32, 36, 40, 44, 48, 52, 56, 60, 64, 68
sW, sXCD, sJ, sTB, sHG, sTHP, sA = 72, 73, 74, 75, 76, 77, 78
sT0, sT1, sT2, sT3, sT4 = 80, 81, 82, 83, 84
sDRY = 85
sNON = 86
sIT, sINC, sFB, sSPIN = 88, 89, 90, 91
sX = 92
sST = 94
sBARN = 96
sRET = 90

def srd(r, p, size):
    e(f"s_mov_b32 s{r}, s{p}")
    e(f"s_and_b32 s{r+1}, s{p+1}, 0xffff")
    e(f"s_mov_b32 s{r+2}, {hex(size)}")
    e(f"s_mov_b32 s{r+3}, 0x20000")

LOW = [False]
vL = 1
def stamp(idx):
    if not opt['stamps']: return
    e(f"s_memrealtime {sr(sST,2)}")
    e(f"s_memtime {sr(sX,2)}")
    e("s_waitcnt lgkmcnt(0)")
    if LOW[0]: e("s_setprio 2")
    e(f"v_writelane_b32 v254, s{sST}, {idx}")
    e(f"v_writelane_b32 v255, s{sX}, {idx}")
    if LOW[0]: e("s_setprio 0")
def stamp_dump():
    if not opt['stamps']: return
    e(f"s_lshl_b32 s{sST}, s2, 3")
    e(f"s_add_u32 s{sST}, s{sST}, s{sW}")
    e(f"s_lshl_b32 s{sST}, s{sST}, 8")
    e(f"s_add_u32 s{sST}, s{sST}, {WS_STAMP}")
    e(f"v_lshlrev_b32 v253, 3, v{vL}")
    e("s_mov_b32 exec_hi, 0")
    e(f"buffer_store_dwordx2 v[254:255], v253, {sr(R_WS,4)}, s{sST} offen")

PADS = {}
def pad_begin(name): PADS[name] = len(L)
def isize(l):
    t = l.strip()
    if not t or t.startswith((';', '.')) or t.endswith(':'): return 0
    t = t.split(';')[0]
    mn = t.split()[0]
    if mn.startswith(('buffer_', 'global_', 'ds_', 'v_mfma', 'v_smfmac', 's_load', 's_mem')): return 8
    if mn.startswith('v_') and (mn.endswith('_e64') or mn in ('v_lshl_add_u32', 'v_bfe_u32', 'v_perm_b32', 'v_max3_f32', 'v_cvt_pk_bf16_f32', 'v_writelane_b32', 'v_mul_u32_u24', 'v_cmp_ne_u64')): return 8
    import re as _r
    for o in _r.findall(r'(?<![\w\[:])(-?0x[0-9a-f]+|-?\d+)(?![\w\]:])', (t.split(None, 1) + [''])[1]):
        v = int(o, 0)
        if not mn.startswith(('s_waitcnt', 's_nop', 's_sleep', 's_setprio')) and not -16 <= v <= 64: return 8
    return 4
def pad_end(name, ret):
    a = PADS[name]
    if not (opt['pads'] if name == "L_padq" else opt['padt']):
        L.insert(a, f"{name}_0:"); L.insert(a + 1, f"    s_cbranch_execz {ret}"); return
    body = L[a:]; del L[a:]
    n = 0; acc = 0
    L.append(f"{name}_0:"); L.append(f"    s_cbranch_execz {name}_1")
    for l in body:
        z = isize(l)
        prev = L[-1].strip()
        if acc + z > 56 and not prev.startswith(('s_mov_b32 m0', 's_add_u32 m0')):
            n += 1; L.append(f"{name}_{n}:"); L.append(f"    s_cbranch_execz {name}_{n+1}"); acc = 0
        L.append(l); acc += z
    n += 1
    L.append(f"{name}_{n}:"); L.append(f"    s_cbranch_execz {ret}")
def warm(name, ret):
    e("s_mov_b64 exec, 0")
    e(f"s_branch {name}_0")
    lab(ret)
    e("s_mov_b64 exec, -1")

def dma(voff, srdr, soff, ldsaddr_s, extra=""):
    e(f"s_mov_b32 m0, s{ldsaddr_s}")
    e("s_nop 0")
    e(f"buffer_load_dwordx4 v{voff}, {sr(srdr,4)}, s{soff} offen {extra}lds")
def dma_run(n, voff, srdr, soff, lds_s, dsrc, dlds, extra=""):
    for i in range(n):
        e(f"s_mov_b32 m0, s{lds_s}")
        if i < n - 1: e(f"s_add_u32 s{lds_s}, s{lds_s}, {dlds}")
        else: e("s_nop 0")
        e(f"buffer_load_dwordx4 v{voff}, {sr(srdr,4)}, s{soff} offen {extra}lds")
        if i < n - 1: e(f"s_add_u32 s{soff}, s{soff}, {dsrc}")

def poll(name, nloads, voff, dst, soffs, sleep=0):
    e(f"s_mov_b32 s{sSPIN}, {SPIN}")
    lab(name)
    for i in range(nloads):
        e(f"buffer_load_dwordx2 {vr(dst+2*i,2)}, v{voff}, {sr(R_WS,4)}, s{soffs[i]} offen sc1")
    e(f"s_sub_u32 s{sSPIN}, s{sSPIN}, 1")
    e(f"s_cmp_eq_u32 s{sSPIN}, 0")
    e(f"s_cbranch_scc1 {name}_done")
    e("s_waitcnt vmcnt(0)")
    e(f"v_cmp_ne_u64 vcc, {sr(sNON,2)}, {vr(dst,2)}")
    for i in range(1, nloads):
        e(f"v_cmp_ne_u64 {sr(sX,2)}, {sr(sNON,2)}, {vr(dst+2*i,2)}")
        e("s_nop 0")
        e(f"s_or_b64 vcc, vcc, {sr(sX,2)}")
    e("s_nop 0")
    e("s_cmp_eq_u64 vcc, 0")
    if sleep:
        e(f"s_cbranch_scc1 {name}_done")
        e(f"s_sleep {sleep}")
        e(f"s_branch {name}")
    else:
        e(f"s_cbranch_scc0 {name}")
    lab(name + "_done")
    e("s_waitcnt vmcnt(0)")

def lds_wait(name, off, value, tmp, sleep=0):
    e(f"s_mov_b32 s{sSPIN}, {SPIN*8}")
    e(f"v_mov_b32 v{tmp}, {MISC + off}")
    lab(name)
    e(f"ds_read_b32 v{tmp+1}, v{tmp}")
    e(f"s_sub_u32 s{sSPIN}, s{sSPIN}, 1")
    e(f"s_cmp_eq_u32 s{sSPIN}, 0")
    e(f"s_cbranch_scc1 {name}_done")
    e("s_waitcnt lgkmcnt(0)")
    e(f"v_readfirstlane_b32 s{sT4}, v{tmp+1}")
    e("s_nop 0")
    e(f"s_cmp_ge_u32 s{sT4}, {value}")
    if sleep:
        e(f"s_cbranch_scc1 {name}_done")
        e(f"s_sleep {sleep}")
        e(f"s_branch {name}")
    else:
        e(f"s_cbranch_scc0 {name}")
    lab(name + "_done")
    e("s_waitcnt lgkmcnt(0)")
def lds_add(off, tmp):
    e(f"v_mov_b32 v{tmp}, {MISC + off}")
    e(f"v_mov_b32 v{tmp+1}, 1")
    e("s_mov_b64 exec, 1")
    e(f"ds_add_u32 v{tmp}, v{tmp+1}")
    e("s_mov_b64 exec, -1")
def tag_from_lds(name, tmp):
    e(f"s_mov_b32 s{sSPIN}, {SPIN*8}")
    e(f"v_mov_b32 v{tmp}, {MISC+C_TAG}")
    lab(name)
    e(f"ds_read_b64 {vr(tmp+2,2)}, v{tmp}")
    e(f"s_sub_u32 s{sSPIN}, s{sSPIN}, 1")
    e(f"s_cmp_eq_u32 s{sSPIN}, 0")
    e(f"s_cbranch_scc1 {name}_done")
    e("s_waitcnt lgkmcnt(0)")
    e(f"v_readfirstlane_b32 s{sNON}, v{tmp+2}")
    e(f"v_readfirstlane_b32 s{sNON+1}, v{tmp+3}")
    e(f"s_cmp_lg_u32 s{sNON}, 0")
    e(f"s_cbranch_scc1 {name}_done")
    e(f"s_sleep {opt['fs']}")
    e(f"s_branch {name}")
    lab(name + "_done")
    e("s_waitcnt lgkmcnt(0)")

def signal(name, ctr_off, last, flag_soff_s, tmp, lo=None, plain_if=None):
    e(f"v_mov_b32 v{tmp}, {MISC + ctr_off}")
    e(f"v_mov_b32 v{tmp+1}, 1")
    e(f"s_mov_b64 exec, 1")
    e(f"ds_add_rtn_u32 v{tmp+1}, v{tmp}, v{tmp+1}")
    e(f"v_mov_b32 v{tmp+2}, s{sNON if lo is None else lo}")
    e(f"v_mov_b32 v{tmp+3}, s{sNON+1}")
    e("s_waitcnt lgkmcnt(0)")
    e(f"v_readfirstlane_b32 s{sT4}, v{tmp+1}")
    e("s_nop 0")
    e(f"s_cmp_eq_u32 s{sT4}, {last}")
    e(f"s_cbranch_scc0 {name}_nf")
    if plain_if is not None:
        e(f"s_cmp_eq_u32 s{plain_if}, 0")
        e(f"s_cbranch_scc1 {name}_wt")
        e(f"buffer_store_dwordx2 {vr(tmp+2,2)}, off, {sr(R_WS,4)}, s{flag_soff_s}")
        if opt['omode'] < 2: e(f"s_branch {name}_nf")
        lab(name + "_wt")
    e(f"buffer_store_dwordx2 {vr(tmp+2,2)}, off, {sr(R_WS,4)}, s{flag_soff_s} sc1")
    lab(name + "_nf")
    e("s_mov_b64 exec, -1")

hdr = open(f"cdna_kernels/{NAME}.s.ref").read().split("; Override launch")[0]
L.append(hdr.rstrip())
L.append(f"; @launch grid=(256,1,1) block=(512,1,1) lds={LDS_BYTES}")
L.append('.amdgcn_target "amdgcn-amd-amdhsa--gfx950"')
L.append(DOC)
L.append(".text")
L.append(f".globl {NAME}_kernel")
L.append(".p2align 8")
L.append(f".type {NAME}_kernel,@function")
lab(f"{NAME}_kernel")
e("s_cmp_ge_u32 s2, 256")
e("s_cbranch_scc1 L_end")
e("s_load_dwordx16 s[4:19], s[0:1], 0")
e("s_load_dwordx8 s[20:27], s[0:1], 64")
e("s_load_dwordx2 s[28:29], s[0:1], 96")
e(f"s_memrealtime {sr(sNON,2)}")
if opt['endat']:
    e("s_waitcnt lgkmcnt(0)")
    e(f"s_mov_b32 s30, s{sNON}")
if opt['dxcc'] >= 0:
    e(f"s_getreg_b32 s{sT0}, hwreg(HW_REG_XCC_ID, 0, 4)")
    e(f"s_cmp_eq_u32 s{sT0}, {opt['dxcc']}") if opt['dxcc'] < 8 else e(f"s_cmp_eq_u32 s{sT0}, s{sT0}")
    e("s_cbranch_scc0 L_nodelay")
    e("s_waitcnt lgkmcnt(0)")
    lab("L_delay")
    e(f"s_memrealtime {sr(sX,2)}")
    e("s_waitcnt lgkmcnt(0)")
    e(f"s_sub_u32 s{sX}, s{sX}, s{sNON}")
    e(f"s_cmp_lt_u32 s{sX}, {opt['dus']}")
    e("s_cbranch_scc1 L_delay")
    lab("L_nodelay")
e("v_lshrrev_b32 v2, 6, v0")
e(f"v_and_b32 v{vL}, 63, v0")
e(f"v_readfirstlane_b32 s{sW}, v2")
e(f"s_and_b32 s{sXCD}, s2, 7")
e(f"s_lshr_b32 s{sJ}, s2, 3")
e(f"s_and_b32 s{sT0}, s{sJ}, 3")
e(f"s_lshl_b32 s{sTB}, s{sXCD}, 2")
e(f"s_add_u32 s{sTB}, s{sTB}, s{sT0}")
e(f"s_lshr_b32 s{sHG}, s{sJ}, 2")
e(f"s_lshr_b32 s{sTHP}, s{sHG}, 1")
e(f"s_and_b32 s{sA}, s{sW}, 3")
e(f"v_lshlrev_b32 v2, 4, v{vL}          ; v2 = lane*16")
cm("LDS init while the kernel arguments load: ones / zeros window (even 16-B chunks 2^64, odd chunks 0), counters")
ONE = (127 + VSCALE) << 7
e("v_lshrrev_b32 v5, 3, v0")
e("v_cmp_ne_u32 vcc, 8, v5")
e("v_and_b32 v4, 1, v0")
e("v_add_u32 v4, -1, v4")
e(f"v_and_b32 v4, {hex(ONE << 16 | ONE)}, v4")
e("v_cndmask_b32 v4, 0, v4, vcc")
e(f"v_lshlrev_b32 v3, 4, v0")
e("v_mov_b32 v5, v4")
e("v_mov_b32 v6, v4")
e("v_mov_b32 v7, v4")
e(f"v_add_u32 v3, {ONES_OFF}, v3")
e("ds_write_b128 v3, v[4:7]")
e(f"s_mov_b32 s{R_XA+2}, 0x200000")
e(f"s_mov_b32 s{R_XA+3}, 0x20000")
def aux_first():
    if opt['prioX']: e(f"s_setprio {opt['prioX']}")
    cm("critical loads: projection weight (wk for even hg, wv for odd), x rows 16*blk + 4a + i")
    e(f"s_lshl_b32 s{sT0}, s{sTHP}, 4")
    e(f"s_lshl_b32 s{sT1}, s{sA}, 2")
    e(f"s_add_u32 s{sT0}, s{sT0}, s{sT1}")
    e(f"s_mul_i32 s{sT1}, s{sT0}, {XROW}")
    e(f"s_add_u32 s{sT1}, s{sT1}, {X_OFF}")
    e(f"s_lshl_b32 s{sT2}, s{sTB}, 6")
    e(f"s_add_u32 s{sT2}, s{sT2}, s{sT0}")
    e(f"s_lshl_b32 s{sT2}, s{sT2}, 10")
    e(f"s_lshl_b32 s{sT3}, s{sA}, 12")
    e(f"s_mov_b32 s{R_W+2}, 16384")
    e(f"s_mov_b32 s{R_W+3}, 0x20000")
    e(f"s_mov_b32 m0, s{sT3}")
    e(f"s_bitcmp1_b32 s{sHG}, 0")
    e("s_waitcnt lgkmcnt(0)")
    e(f"s_cselect_b32 s{R_W}, s{P_WV}, s{P_WK}")
    e(f"s_cselect_b32 s{R_W+1}, s{P_WV+1}, s{P_WK+1}")
    e(f"s_and_b32 s{R_W+1}, s{R_W+1}, 0xffff")
    e(f"s_mov_b32 s{R_XA}, s{P_XA}")
    e(f"s_and_b32 s{R_XA+1}, s{P_XA+1}, 0xffff")
    srd(R_DBG, P_DBG, 256)
    cm("workgroup 0, aux wave 3 publishes this launch's hand-off tag")
    e(f"s_or_b32 s{sNON}, s{sNON}, 16")
    e(f"s_and_b32 s{sNON}, s{sNON}, -16")
    e(f"s_lshl_b32 s{sT0}, s2, 3")
    e(f"s_add_u32 s{sT0}, s{sT0}, s{sW}")
    e(f"s_cmp_eq_u32 s{sT0}, 7")
    e("s_cbranch_scc0 L_notag")
    e(f"v_mov_b32 v4, s{sNON}")
    e(f"v_mov_b32 v5, s{sNON+1}")
    e("s_mov_b64 exec, 1")
    e(f"buffer_store_dwordx2 v[4:5], off, {sr(R_DBG,4)}, 0 sc1")
    e("s_mov_b64 exec, -1")
    lab("L_notag")
    NT = lambda b: "nt " if opt['ntc'] >> b & 1 else ""
    for i in range(4): e(f"buffer_load_dwordx4 v2, {sr(R_W,4)}, s{sT3} offen offset:{1024*i} {NT(1)}lds")
    dma_run(4, 2, R_XA, sT2, sT1, 1024, XROW, NT(0))
    stamp(0)
    srd(R_WS, P_WS, WS_SIZE)
    if opt['dbgt']:
        e(f"s_cmp_lt_u32 s2, 8")
        e("s_cbranch_scc0 L_nodbg0")
        e(f"s_cmp_eq_u32 s{sW}, 6")
        e("s_cbranch_scc0 L_nodbg0")
        e(f"v_mov_b32 v4, s{sNON}")
        e(f"s_lshl_b32 s{sT0}, s2, 2")
        e(f"s_add_u32 s{sT0}, s{sT0}, 8")
        e("s_mov_b64 exec, 1")
        e(f"buffer_store_dword v4, off, {sr(R_DBG,4)}, s{sT0}")
        e("s_mov_b64 exec, -1")
        lab("L_nodbg0")
    e("s_barrier                             ; B1")
if opt['first']:
    cm("the aux waves' first loads are the longest dependency chain: their code directly follows the entry")
    e(f"s_cmp_lt_u32 s{sW}, 4")
    e("s_cbranch_scc1 L_att0")
    aux_first()
    e("s_branch L_aux")
    lab("L_att0")
else:
    e(f"s_cmp_ge_u32 s{sW}, 4")
    e("s_cbranch_scc1 L_aux")

cm("wq slice (8 rows x 128 B per load, 16-B chunks swizzled by row bit 1); quarter tb&3 first: distinct among its 4 sharers")
e(f"v_lshrrev_b32 v3, 3, v{vL}          ; r")
e(f"v_and_b32 v4, 7, v{vL}")
e(f"v_bfe_u32 v5, v{vL}, 4, 1           ; (r>>1)&1")
e("v_lshlrev_b32 v5, 2, v5")
e("v_xor_b32 v4, v4, v5")
e("v_lshlrev_b32 v4, 4, v4")
e("v_lshl_add_u32 v13, v3, 10, v4")
e(f"s_mov_b32 s{R_WQ+2}, 0x80000")
e(f"s_mov_b32 s{R_WQ+3}, 0x20000")
def wq_addr(q):
    e(f"s_add_u32 s{sT0}, s{sJ}, {q}")
    e(f"s_and_b32 s{sT0}, s{sT0}, 3")
    e(f"s_lshl_b32 s{sT0}, s{sT0}, 2")
    e(f"s_add_u32 s{sT0}, s{sT0}, s{sW}")
    e(f"s_lshl_b32 s{sT2}, s{sT0}, 15")
    e(f"s_lshl_b32 s{sT1}, s{sHG}, 7")
    e(f"s_add_u32 s{sT2}, s{sT2}, s{sT1}")
    e(f"s_lshl_b32 s{sT1}, s{sT0}, 12")
    e(f"s_add_u32 s{sT1}, s{sT1}, {WQ_OFF}")
wq_addr(0)
e("s_waitcnt lgkmcnt(0)")
e(f"s_mov_b32 s{R_WQ}, s{P_WQ}")
e(f"s_and_b32 s{R_WQ+1}, s{P_WQ+1}, 0xffff")
e(f"s_mov_b32 s{R_XA}, s{P_XA}")
e(f"s_and_b32 s{R_XA+1}, s{P_XA+1}, 0xffff")
stamp(0)
e("s_barrier")
NT = lambda b: "nt " if opt['ntc'] >> b & 1 else ""
dma_run(4, 13, R_WQ, sT2, sT1, 8192, 1024, NT(2))
cm("the 48 rows of the x tile the aux waves do not load: blocks blk+1, blk+2, blk+3 (mod 4), 4 rows per wave each")
def x_addr(d):
    e(f"s_add_u32 s{sT0}, s{sTHP}, {d}")
    e(f"s_and_b32 s{sT0}, s{sT0}, 3")
    e(f"s_lshl_b32 s{sT0}, s{sT0}, 2")
    e(f"s_add_u32 s{sT0}, s{sT0}, s{sW}")
    e(f"s_lshl_b32 s{sT0}, s{sT0}, 2          ; first row")
    e(f"s_mul_i32 s{sT1}, s{sT0}, {XROW}")
    e(f"s_add_u32 s{sT1}, s{sT1}, {X_OFF}")
    e(f"s_lshl_b32 s{sT2}, s{sTB}, 6")
    e(f"s_add_u32 s{sT2}, s{sT2}, s{sT0}")
    e(f"s_lshl_b32 s{sT2}, s{sT2}, 10")
def hold(name, ctr, val):
    lds_wait(name, ctr, val, 8, sleep=opt['fs'])
seq = [('x', 1), ('x', 2), ('x', 3), ('q', 1), ('q', 2), ('q', 3)]
for n, (kind, d) in enumerate(seq):
    (x_addr if kind == 'x' else wq_addr)(d)
    if opt['win']:
        W = opt['win'] if n < 2 else opt['win2']
        if 4*(n + 2) > W: e(f"s_waitcnt vmcnt({W - 4})")
    else:
        if n == opt['h1']: hold("L_hold1", C_CR, FOUR)
        if n == opt['h2']: hold("L_hold2", C_KV, 1)
    if kind == 'x': dma_run(4, 2, R_XA, sT2, sT1, 1024, XROW, NT(3))
    else: dma_run(4, 13, R_WQ, sT2, sT1, 8192, 1024, NT(4))
stamp(7)
srd(R_WS, P_WS, WS_SIZE)
SA, SB, OA, OB, CA, CB = 16, 32, 48, 64, 80, 96
QA, QB, K0, K1, V0, V1 = 112, 116, 120, 124, 128, 136
vIDX, vK, vV = 144, 145, 146
vINC, vV0, vSAME = 147, 150, 151
vXA, vWA = 148, 149
FB = 152
cm("Q-projection addresses")
e(f"s_and_b32 s{sT0}, s{sW}, 1            ; th")
e(f"s_lshr_b32 s{sT1}, s{sW}, 1           ; hp")
e(f"v_and_b32 v3, 31, v{vL}")
e(f"s_lshl_b32 s{sT2}, s{sT0}, 5")
e(f"v_add_u32 v3, s{sT2}, v3")
e(f"v_mul_u32_u24 v3, {XROW}, v3")
e(f"v_lshrrev_b32 v4, 5, v{vL}           ; h")
e(f"v_lshl_add_u32 v14, v4, 4, v3")
e(f"v_bfe_u32 v5, v{vL}, 2, 2            ; r")
e("v_lshl_add_u32 v6, v4, 3, v5          ; 8h + r")
e("v_lshlrev_b32 v6, 7, v6")
e(f"v_bfe_u32 v7, v{vL}, 4, 1            ; g")
e(f"v_and_b32 v8, 1, v{vL}")
e("v_lshl_add_u32 v7, v7, 1, v8          ; 2g + (cc&1)")
e(f"s_lshl_b32 s{sT2}, s{sT1}, 2")
e(f"v_add_u32 v7, s{sT2}, v7")
e(f"v_bfe_u32 v8, v{vL}, 3, 1            ; (r>>1)&1")
e("v_lshlrev_b32 v8, 2, v8")
e("v_xor_b32 v7, v7, v8")
e("v_lshl_add_u32 v6, v7, 4, v6")
e(f"v_bfe_u32 v8, v{vL}, 1, 1")
e("v_lshl_add_u32 v6, v8, 3, v6")
e(f"v_add_u32 v{vWA}, {WQ_OFF}, v6")
e(f"v_add_u32 v{vXA}, {X_OFF}, v14")
cm("attention LDS addresses; V: rows 0..15 -> tile data, lanes 16,20 -> 2^64, other lanes -> 0")
e(f"v_mov_b32 v{vIDX}, 0xdddddddd")
e(f"v_bfe_u32 v5, v{vL}, 4, 1")
e(f"v_xor_b32 v5, 1, v5                   ; 1 for V rows, 0 for the constant lanes")
e(f"v_lshlrev_b32 v{vINC}, 13, v5")
e(f"v_and_b32 v8, 15, v{vL}")
e("v_lshlrev_b32 v9, 8, v4")
e("v_lshl_add_u32 v8, v8, 4, v9")
e(f"v_and_b32 v9, 31, v{vL}")
e("v_add_u32 v10, -20, v9")
e("v_cmp_gt_u32 vcc, 8, v10")
e("v_and_b32 v9, 11, v9")
e("v_min_u32 v9, 1, v9")
e("v_cndmask_b32 v10, 0, 64, vcc")
e(f"v_cmp_eq_u32 vcc, 1, v5")
e("v_lshl_add_u32 v9, v9, 4, v10")
e(f"v_add_u32 v9, {ONES_OFF - 1024}, v9")
e(f"v_cndmask_b32 v{vV0}, v9, v8, vcc")
cm("O fragment destination and flag slot")
sOD, sOF = 97, 98
e(f"s_and_b32 s{sT0}, s{sW}, 1")
e(f"s_lshl_b32 s{sT1}, s{sTB}, 1")
e(f"s_add_u32 s{sT0}, s{sT0}, s{sT1}")
e(f"s_lshl_b32 s{sT0}, s{sT0}, 5          ; (tb*2+th)*32")
e(f"s_lshl_b32 s{sT1}, s{sHG}, 2")
e(f"s_add_u32 s{sT0}, s{sT0}, s{sT1}")
e(f"s_and_b32 s{sT1}, s{sW}, 2")
e(f"s_add_u32 s{sT0}, s{sT0}, s{sT1}")
e(f"s_lshl_b32 s{sT0}, s{sT0}, 10")
e(f"s_add_u32 s{sOD}, s{sT0}, {WS_O}")
e(f"s_lshl_b32 s{sT1}, s{sTB}, 3")
e(f"s_add_u32 s{sT1}, s{sT1}, s{sHG}")
e(f"s_lshl_b32 s{sT1}, s{sT1}, 2")
e(f"s_add_u32 s{sT1}, s{sT1}, s{sW}")
e(f"s_lshl_b32 s{sT1}, s{sT1}, 7")
e(f"s_add_u32 s{sOF}, s{sT1}, {FL_O}")
e(f"s_mov_b32 s{sFB}, 0")
e(f"s_mov_b32 s{sBARN}, 0xa")
e(f"v_mov_b32 v{vSAME}, {MISC}")
sPF, sOL, sOS, vPO = 100, 101, 79, 184
e(f"s_lshl_b32 s{sT0}, s{sTB}, 3")
e(f"s_lshl_b32 s{sT1}, s{sW}, 1")
e(f"s_add_u32 s{sT0}, s{sT0}, s{sT1}")
e(f"s_lshl_b32 s{sT0}, s{sT0}, 9")
e(f"s_add_u32 s{sPF}, s{sT0}, {FL_O}")
e(f"s_lshl_b32 s{sT2}, s{sTB}, 16")
e(f"s_lshl_b32 s{sOL}, s{sW}, 13")
e(f"s_add_u32 s{sT2}, s{sT2}, s{sOL}")
e(f"s_add_u32 s{sOS}, s{sT2}, {WS_O}")
e(f"v_and_b32 v8, 7, v{vL}")
e(f"v_lshlrev_b32 v{vPO}, 7, v8")
for i in range(16): e(f"v_mov_b32 v{OA+i}, 0")
for i in range(16): e(f"v_mov_b32 v{OB+i}, 0")
for i in range(4): e(f"v_mov_b32 v{V1+4+i}, 0")
if opt['qloop']:
    for i in range(16): e(f"v_mov_b32 v{SA+i}, 0")
e(f"v_mov_b32 v{vK}, v2")
e(f"v_mov_b32 v{vV}, v{vV0}")
if opt['dftpf']:
    cm("sequence-DFT rows the aux waves read later (pulled towards L2 from inside the loop):")
    cm("wave 0: cos rows t1s + 32l; wave 1: sin rows 2048 - that; waves 2, 3: cos / sin rows 64 (l & 31)")
    R_DP, vDP = R_XA, 187
    e(f"s_bitcmp1_b32 s{sW}, 0")
    e(f"s_cselect_b64 {sr(R_DP,2)}, {sr(P_SIM,2)}, {sr(P_SRE,2)}")
    e(f"s_and_b32 s{R_DP+1}, s{R_DP+1}, 0xffff")
    e(f"s_mov_b32 s{R_DP+2}, 0x800000")
    e(f"v_lshlrev_b32 v8, 5, v{vL}")
    e(f"v_add_u32 v8, s{sTB}, v8               ; t1s = tb")
    e("v_sub_u32 v9, 0x800, v8")
    e("v_and_b32 v9, 0x7ff, v9")
    e(f"v_lshlrev_b32 v10, 6, v{vL}")
    e("v_and_b32 v10, 0x7ff, v10")
    e(f"s_cmp_eq_u32 s{sW}, 1")
    e("s_cselect_b64 vcc, -1, 0")
    e("v_cndmask_b32 v8, v8, v9, vcc")
    e(f"s_cmp_ge_u32 s{sW}, 2")
    e("s_cselect_b64 vcc, -1, 0")
    e("v_cndmask_b32 v8, v8, v10, vcc")
    e(f"v_lshlrev_b32 v{vDP}, 12, v8")
if opt['preo']:
    cm("output lines this workgroup writes at the end (touched from inside the loop, values unused):")
    cm("waves 0, 2: rows 64tb + l, columns of hg; waves 1, 3: rows tb + 32l (mirrored for hg >= 4), spectral columns of hg")
    vOP, sOP = 186, 30
    srd(R_OUT, P_OUT, 4194304)
    e(f"v_lshlrev_b32 v8, 5, v{vL}")
    e(f"v_add_u32 v8, s{sTB}, v8")
    e("v_sub_u32 v9, 0x800, v8")
    e("v_and_b32 v9, 0x7ff, v9")
    e(f"s_cmp_ge_u32 s{sHG}, 4")
    e("s_cselect_b64 vcc, -1, 0")
    e("v_cndmask_b32 v8, v8, v9, vcc")
    e(f"s_lshl_b32 s{sT0}, s{sTB}, 6")
    e(f"v_add_u32 v9, s{sT0}, v{vL}")
    e(f"s_bitcmp1_b32 s{sW}, 0")
    e("s_cselect_b64 vcc, -1, 0")
    e(f"s_cselect_b32 s{sOP}, 0x400, 0")
    e("v_cndmask_b32 v8, v9, v8, vcc")
    e(f"v_lshlrev_b32 v{vOP}, 11, v8")
    e(f"s_lshl_b32 s{sT0}, s{sHG}, 7")
    e(f"s_add_u32 s{sOP}, s{sOP}, s{sT0}")
e(f"s_mov_b32 s{sT0}, {hex(f2u(0.25*1.4426950408889634))}")
warm("L_padq", "L_padq_ret")
e("s_waitcnt vmcnt(0)")
stamp(8)
e("s_barrier")
stamp(10)
pad_begin("L_padq")
def qload(ks):
    b = FB + 8*(ks % 4)
    e(f"ds_read_b64_tr_b16 {vr(b,2)}, v{vWA} offset:{ks*2048}")
    e(f"ds_read_b64_tr_b16 {vr(b+2,2)}, v{vWA} offset:{ks*2048+512}")
    e(f"ds_read_b128 {vr(b+4,4)}, v{vXA} offset:{ks*32}")
for ks in range(3): qload(ks)
if opt['qloop']:
    cm("4 trips of 8 k-steps; the last trip's look-ahead reads land in unused registers")
    e(f"s_mov_b32 s{sIT}, 0")
    lab("L_qloop")
    for ks in range(8):
        b = FB + 8*(ks % 4)
        qload(ks + 3); e("s_waitcnt lgkmcnt(9)")
        e(f"v_mfma_f32_32x32x16_bf16 {vr(SA,16)}, {vr(b,4)}, {vr(b+4,4)}, {vr(SA,16)}")
        if ks == 7:
            e(f"v_add_u32 v{vWA}, 0x4000, v{vWA}")
            e(f"v_add_u32 v{vXA}, 0x100, v{vXA}")
        if ks == 6:
            e(f"s_add_u32 s{sIT}, s{sIT}, 1")
            e(f"s_cmp_lt_u32 s{sIT}, 4")
    e("s_cbranch_scc1 L_qloop")
    e("s_waitcnt lgkmcnt(0)")
else:
    for ks in range(32):
        b = FB + 8*(ks % 4)
        if ks + 3 < 32:
            qload(ks + 3); e("s_waitcnt lgkmcnt(9)")
        else:
            e(f"s_waitcnt lgkmcnt({3*(31-ks)})")
        c = "0" if ks == 0 else vr(SA, 16)
        e(f"v_mfma_f32_32x32x16_bf16 {vr(SA,16)}, {vr(b,4)}, {vr(b+4,4)}, {c}")
stamp(9)
nop(8 if opt['qloop'] else 12)
for i in range(16): e(f"v_mul_f32 v{SA+i}, s{sT0}, v{SA+i}")
for i in range(8): e(f"v_cvt_pk_bf16_f32 v{QA+i}, v{SA+2*i}, v{SA+2*i+1}")
if opt['prioA']: e(f"s_setprio {opt['prioA']}")
stamp(2)
if opt['attpf']:
    cm("after BA: pull this workgroup's 1/32 share of what its XCD reads later towards L2 (one dword per 128-B line)")
    cm("wave 0: x_B rows 64j + 8xcd + (0..7); waves 1, 2: hidden cos / sin rows 8j..8j+7; wave 3: wo rows 16j..16j+15")
    R_PF = R_WQ
    e(f"s_cmp_eq_u32 s{sW}, 1")
    e(f"s_cselect_b64 {sr(R_PF,2)}, {sr(P_HRE,2)}, {sr(P_HIM,2)}")
    e(f"s_lshl_b32 s{sT2}, s{sJ}, 13")
    e(f"s_cmp_eq_u32 s{sW}, 3")
    e(f"s_cselect_b64 {sr(R_PF,2)}, {sr(P_WO,2)}, {sr(R_PF,2)}")
    e(f"s_cselect_b32 s{sT3}, s{sT2}, 0")
    e(f"s_add_u32 s{sT2}, s{sT2}, s{sT3}")
    e(f"s_lshl_b32 s{sT3}, s{sJ}, 16")
    e(f"s_lshl_b32 s{sT1}, s{sXCD}, 13")
    e(f"s_add_u32 s{sT3}, s{sT3}, s{sT1}")
    e(f"s_cmp_eq_u32 s{sW}, 0")
    e(f"s_cselect_b64 {sr(R_PF,2)}, {sr(P_XB,2)}, {sr(R_PF,2)}")
    e(f"s_cselect_b32 s{sT2}, s{sT3}, s{sT2}")
    e(f"s_cselect_b32 s{R_PF+2}, 0x200000, s{R_PF+2}")
    e(f"s_and_b32 s{R_PF+1}, s{R_PF+1}, 0xffff")
    e(f"s_add_u32 s{sT3}, s{sT2}, 8192")
    e(f"v_lshlrev_b32 v6, 7, v{vL}")
e("s_barrier")
stamp(3)
PFLOAD = True
MT = opt['mt']
cm(f"stand-in for the row max: max over the first {MT} key tile(s) (checked after the loop; fallback = true max)")
e(f"ds_read_b128 {vr(K0,4)}, v{vK}")
e(f"ds_read_b128 {vr(K1,4)}, v{vK} offset:2048")
KX = FB
for t in range(2, MT): e(f"ds_read_b128 {vr(KX+4*(t-2),4)}, v{vK} offset:{2048*t}")
e(f"ds_read_b128 {vr(V0,4)}, v{vV} offset:1024")
e(f"ds_read_b128 {vr(V0+4,4)}, v{vV} offset:1536")
def max16(dst, s, acc=None):
    if acc is None:
        e(f"v_max3_f32 v{dst}, v{s}, v{s+1}, v{s+2}"); i = 3
        while i + 1 < 16:
            e(f"v_max3_f32 v{dst}, v{dst}, v{s+i}, v{s+i+1}"); i += 2
        e(f"v_max_f32 v{dst}, v{dst}, v{s+15}")
    else:
        for i in range(0, 16, 2): e(f"v_max3_f32 v{dst}, v{dst}, v{s+i}, v{s+i+1}")
nrd = 4 + max(0, MT - 2)
e(f"s_waitcnt lgkmcnt({nrd - 1})")
e(f"v_mfma_f32_32x32x16_bf16 {vr(SA,16)}, {vr(K0,4)}, {vr(QA,4)}, 0")
e(f"v_mfma_f32_32x32x16_bf16 {vr(SB,16)}, {vr(K0,4)}, {vr(QB,4)}, 0")
if MT == 1:
    nop(11)
    max16(4, SA); max16(5, SB)
else:
    kreg = [K0, K1] + [KX + 4*t for t in range(2)]
    bufs = [(SA, SB), (CA, CB)]
    e(f"s_waitcnt lgkmcnt({nrd - 2})")
    e(f"v_mfma_f32_32x32x16_bf16 {vr(CA,16)}, {vr(K1,4)}, {vr(QA,4)}, 0")
    e(f"v_mfma_f32_32x32x16_bf16 {vr(CB,16)}, {vr(K1,4)}, {vr(QB,4)}, 0")
    e("s_waitcnt lgkmcnt(2)")
    nop(7)
    for t in range(MT):
        a, b = bufs[t % 2]
        max16(4, a, None if t == 0 else 1)
        if t + 2 < MT: e(f"v_mfma_f32_32x32x16_bf16 {vr(a,16)}, {vr(kreg[t+2],4)}, {vr(QA,4)}, 0")
        max16(5, b, None if t == 0 else 1)
        if t + 2 < MT: e(f"v_mfma_f32_32x32x16_bf16 {vr(b,16)}, {vr(kreg[t+2],4)}, {vr(QB,4)}, 0")
lab("L_setmax")
cm(f"v4 / v5 = per-lane max for tiles A / B; combine the two half-waves, C = -(max + {opt['shift']})")
e("v_mov_b32 v6, v4")
e("v_mov_b32 v7, v5")
e(f"s_mov_b32 s{sIT}, 0")
e("s_nop 0")
e("v_permlane32_swap_b32 v4, v6")
e("v_permlane32_swap_b32 v5, v7")
e("v_max_f32 v4, v4, v6")
e("v_max_f32 v5, v5, v7")
for i in range(16): e(f"v_sub_f32 v{CA+i}, {hex(f2u(-float(opt['shift'])))}, v4")
e(f"v_sub_f32 v{CB}, {hex(f2u(-float(opt['shift'])))}, v5")
e("s_waitcnt lgkmcnt(0)")
e(f"v_mfma_f32_32x32x16_bf16 {vr(SA,16)}, {vr(K0,4)}, {vr(QA,4)}, {vr(CA,16)}")
for i in range(1, 16): e(f"v_mov_b32 v{CB+i}, v{CB}")
for i in range(8): e(f"v_mov_b32 v{SB+8+i}, 0")
def SM(o, a, b): e(f"v_smfmac_f32_32x32x32_bf16 {vr(o,16)}, {vr(a,4)}, {vr(b,8)}, v{vIDX}")
def QK(d, k, q, c): e(f"v_mfma_f32_32x32x16_bf16 {vr(d,16)}, {vr(k,4)}, {vr(q,4)}, {vr(c,16)}")
def EX(s, a, b):
    for i in range(a, b): e(f"v_exp_f32 v{s+i}, v{s+i}")
pad_end("L_padq", "L_padq_ret")
stamp(13)
L.append(".p2align 6")
lab("L_att_loop")
for u in range(4):
    kc, kn = (K0, K1) if u % 2 == 0 else (K1, K0)
    vc, vp = (V0, V1) if u % 2 == 0 else (V1, V0)
    voffs = ((u + 1) % 4) * 2048 + 1024
    koffs = ((u + 2) % 4) * 2048
    p0, p1, p2 = (4, 7, 10) if opt['cluster'] else (2, 5, 10)
    EX(SA, 0, p0)
    SM(OB, vp + 4, SB + 8)
    e(f"s_waitcnt lgkmcnt({2 if u == 1 and opt['csync'] else 1})")
    EX(SA, p0, p1)
    QK(SB, kc, QB, CB)
    e(f"ds_read_b128 {vr(vp,4)}, v{vV} offset:{voffs}")
    EX(SA, p1, p2)
    SM(OA, vc, SA)
    e(f"ds_read_b128 {vr(vp+4,4)}, v{vV} offset:{voffs+512}")
    EX(SA, p2, 16)
    EX(SB, 0, p0)
    SM(OA, vc + 4, SA + 8)
    e("s_waitcnt lgkmcnt(2)")
    if u == 1:
        pass
    EX(SB, p0, p1)
    QK(SA, kn, QA, CA)
    e(f"ds_read_b128 {vr(kc,4)}, v{vK} offset:{koffs}")
    EX(SB, p1, p2)
    SM(OB, vc, SB)
    if u == 1:
        e(f"s_bitcmp1_b32 s{sBARN}, s{sIT}")
        e("s_cbranch_scc1 L_sync")
        lab("L_nobar")
        e(f"v_add_u32 v{vK}, 0x2000, v{vK}")
    if u == 2:
        e(f"v_add_u32 v{vV}, v{vINC}, v{vV}")
    if u == 3:
        e(f"s_add_u32 s{sIT}, s{sIT}, 1")
        e(f"s_cmp_lt_u32 s{sIT}, 16")
    if u == 0 and opt['csync']: e(f"ds_read_b64 v[4:5], v{vSAME} offset:{C_G1}")
    elif u == 0 and opt['cluster']: e("s_nop 0")
    EX(SB, p2, 16)
e("s_cbranch_scc1 L_att_loop")
if opt['lwarm']: e("s_cbranch_execz L_lwarm_ret           ; only the instruction-cache warm-up pass has EXEC = 0")
stamp(18)
pad_begin("L_padt")
e(f"s_mov_b32 s{sT0}, {hex(f2u(2.0**100) if not opt['force_fb'] else f2u(2.0**-30))}")
e(f"v_rcp_f32 v4, v{OA+8}")
SM(OB, V1 + 4, SB + 8)
e(f"ds_read_b32 v7, v{vSAME} offset:{C_SAME}")
e(f"ds_read_b64 v[8:9], v{vSAME} offset:{C_TAG}")
cm("run-time check of the stand-in: l*2^64 must be finite and <= 2^100, else redo with the true row max")
e(f"v_cmp_nle_f32_e64 vcc, v{OA+8}, s{sT0}")
for i in range(8): e(f"v_mul_f32 v{SA+i}, v4, v{OA+i}")
for i in range(4): e(f"v_cvt_pk_bf16_f32 v{SA+i}, v{SA+2*i}, v{SA+2*i+1}")
sSAME = 99
e("s_waitcnt lgkmcnt(0)")
e(f"v_readfirstlane_b32 s{sSAME}, v7")
e(f"v_rcp_f32 v5, v{OB+8}")
e(f"v_cmp_nle_f32_e64 {sr(sX,2)}, v{OB+8}, s{sT0}")
cm("plain stores only when every workgroup of this token block reported the same XCD; else write-through")
e(f"s_cmp_eq_u32 s{sSAME}, 0")
e("s_cbranch_scc1 L_ostA_wt")
OM = " sc1" if opt['omode'] >= 2 else ""
e(f"buffer_store_dwordx4 {vr(SA,4)}, v2, {sr(R_WS,4)}, s{sOD} offen{OM}")
lab("L_ostA_done")
for i in range(8): e(f"v_mul_f32 v{SB+i}, v5, v{OB+i}")
e(f"s_or_b64 vcc, vcc, {sr(sX,2)}")
for i in range(4): e(f"v_cvt_pk_bf16_f32 v{SA+4+i}, v{SB+2*i}, v{SB+2*i+1}")
e("s_cmp_eq_u64 vcc, 0")
e("s_cbranch_scc0 L_fallback")
lab("L_att_done")
e(f"s_cmp_eq_u32 s{sSAME}, 0")
e("s_cbranch_scc1 L_ost_wt")
e(f"buffer_store_dwordx4 {vr(SA+4,4)}, v2, {sr(R_WS,4)}, s{sOD} offen offset:1024{OM}")
stamp(6)
e(f"v_readfirstlane_b32 s{sNON}, v8")
e(f"v_readfirstlane_b32 s{sNON+1}, v9")
e("s_mov_b64 exec, 1")
e("s_waitcnt vmcnt(0)")
e(f"buffer_store_dwordx2 v[8:9], off, {sr(R_WS,4)}, s{sOF}")
if opt['omode'] == 3: e(f"buffer_store_dwordx2 v[8:9], off, {sr(R_WS,4)}, s{sOF} sc1")
lab("L_ost_done")
e("s_mov_b64 exec, -1")
stamp(5)
e("s_barrier")
stamp(4)
cm("gather the O tile of this token block: wave w takes producers 2w, 2w+1, in four steps of two heads")
poll("L_pollO", 1, vPO, 10, [sPF])
stamp(11)
for st in range(4):
    for th in range(2):
        e(f"s_add_u32 m0, s{sOL}, {2048*st + 32768*th}")
        e(f"s_add_u32 s{sT1}, s{sOS}, {2048*st + 32768*th}")
        for i in range(2): e(f"buffer_load_dwordx4 v2, {sr(R_WS,4)}, s{sT1} offen offset:{1024*i} sc1 lds")
pad_end("L_padt", "L_pado_0")
for st in range(4):
    e(f"s_waitcnt vmcnt({12 - 4*st})")
    if st == 0: stamp(12)
    e(f"s_barrier                             ; B8.{st}: heads 8w + {2*st}, {2*st+1} of every wave landed")
stamp_dump()
e("s_endpgm")
lab("L_ostA_wt")
e(f"buffer_store_dwordx4 {vr(SA,4)}, v2, {sr(R_WS,4)}, s{sOD} offen sc1")
e("s_branch L_ostA_done")
lab("L_ost_wt")
e(f"buffer_store_dwordx4 {vr(SA+4,4)}, v2, {sr(R_WS,4)}, s{sOD} offen offset:1024 sc1")
stamp(6)
e(f"v_readfirstlane_b32 s{sNON}, v8")
e(f"v_readfirstlane_b32 s{sNON+1}, v9")
e("s_mov_b64 exec, 1")
e("s_waitcnt vmcnt(0)")
e(f"buffer_store_dwordx2 v[8:9], off, {sr(R_WS,4)}, s{sOF} sc1")
e("s_branch L_ost_done")
lab("L_sync")
e(f"s_cmp_eq_u32 s{sIT}, 1")
e("s_cbranch_scc0 L_sync3")
stamp(14)
if opt['csync']:
    e(f"v_readfirstlane_b32 s{sT4}, v4")
    e("s_nop 0")
    e(f"s_cmp_ge_u32 s{sT4}, {FOUR}")
    e("s_cbranch_scc1 L_nobar") if not opt['stamps'] else e("s_cbranch_scc1 L_wg1_done")
lds_wait("L_wg1", C_G1, FOUR, 4)
stamp(15)
e("s_branch L_nobar")
lab("L_sync3")
if opt['dftpf']: e(f"buffer_load_dword v185, v{vDP}, {sr(R_DP,4)}, 0 offen")
if opt['preo']:
    e(f"s_cmp_lt_u32 s{sW}, 2")
    e("s_cbranch_scc0 L_nopo")
    e(f"buffer_load_dword v188, v{vOP}, {sr(R_OUT,4)}, s{sOP} offen{' sc1' if opt['preo'] == 1 else ''}")
    lab("L_nopo")
stamp(16)
if opt['csync']:
    e(f"v_readfirstlane_b32 s{sT4}, v5")
    e("s_nop 0")
    e(f"s_cmp_ge_u32 s{sT4}, {FOUR}")
    e("s_cbranch_scc1 L_nobar") if not opt['stamps'] else e("s_cbranch_scc1 L_wkvl_done")
lds_wait("L_wkvl", C_KVL, FOUR, 4)
stamp(17)
e("s_branch L_nobar")
lab("L_fallback")
e(f"s_cmp_eq_u32 s{sFB}, 0")
e("s_cbranch_scc0 L_att_done")
cm("fallback: exact row max over all 64 key tiles, then repeat the main loop")
e(f"s_mov_b32 s{sFB}, 1")
e(f"s_mov_b32 s{sBARN}, 0")
e(f"v_mov_b32 v4, 0xff800000")
e(f"v_mov_b32 v5, 0xff800000")
e(f"v_mov_b32 v{vK}, v2")
e(f"s_mov_b32 s{sIT}, 0")
lab("L_fb_loop")
e(f"ds_read_b128 {vr(K0,4)}, v{vK}")
e("s_waitcnt lgkmcnt(0)")
e(f"v_mfma_f32_32x32x16_bf16 {vr(SA,16)}, {vr(K0,4)}, {vr(QA,4)}, 0")
e(f"v_mfma_f32_32x32x16_bf16 {vr(SB,16)}, {vr(K0,4)}, {vr(QB,4)}, 0")
e(f"v_add_u32 v{vK}, 0x800, v{vK}")
nop(11)
max16(4, SA, 1); max16(5, SB, 1)
e(f"s_add_u32 s{sIT}, s{sIT}, 1")
e(f"s_cmp_lt_u32 s{sIT}, 64")
e("s_cbranch_scc1 L_fb_loop")
e(f"v_mov_b32 v{vK}, v2")
e(f"v_mov_b32 v{vV}, v{vV0}")
for i in range(16): e(f"v_mov_b32 v{OA+i}, 0")
for i in range(16): e(f"v_mov_b32 v{OB+i}, 0")
for i in range(4): e(f"v_mov_b32 v{V1+4+i}, 0")
e(f"ds_read_b128 {vr(K0,4)}, v{vK}")
e(f"ds_read_b128 {vr(K1,4)}, v{vK} offset:2048")
e(f"ds_read_b128 {vr(V0,4)}, v{vV} offset:1024")
e(f"ds_read_b128 {vr(V0+4,4)}, v{vV} offset:1536")
e("s_branch L_setmax")

lab("L_aux")
BUF = 16
BP = 144
FR = 176
ACC = 192
D1, D2 = 208, 224
if not opt['first']: aux_first()
KV0 = len(L)
e(f"v_mov_b32 v14, {MISC+C_CR}")
if opt['bytef']: e(f"v_add_u32 v14, s{sA}, v14")
e(f"v_mov_b32 v15, 1")
cm("K / V projection of 16 tokens: aux wave 0")
e(f"s_cmp_eq_u32 s{sA}, 0")
e("s_cbranch_scc0 L_np")
e(f"v_and_b32 v3, 15, v{vL}")
e(f"v_lshrrev_b32 v4, 4, v{vL}           ; q")
e(f"s_lshl_b32 s{sT0}, s{sTHP}, 4")
e(f"v_add_u32 v5, s{sT0}, v3")
e(f"v_mul_u32_u24 v5, {XROW}, v5")
e("v_lshl_add_u32 v5, v4, 4, v5")
e(f"v_add_u32 v5, {X_OFF}, v5")
e(f"v_bfe_u32 v6, v{vL}, 2, 2            ; r")
e("v_lshl_add_u32 v6, v4, 3, v6")
e("v_lshlrev_b32 v6, 5, v6")
e(f"v_and_b32 v7, 3, v{vL}               ; cc")
sB = sT3
e(f"s_and_b32 s{sB}, s{sTHP}, 1            ; b")
e(f"s_lshr_b32 s{sT0}, s{sTHP}, 1")
e(f"s_lshl_b32 s{sT2}, s{sTB}, 1")
e(f"s_add_u32 s{sT2}, s{sT2}, s{sT0}")
sKF, sKD = 97, 96
e(f"s_lshl_b32 s{sT1}, s{sT2}, 1")
e(f"s_and_b32 s{sT0}, s{sHG}, 1")
e(f"s_add_u32 s{sT1}, s{sT1}, s{sT0}")
e(f"s_lshl_b32 s{sT1}, s{sT1}, 1")
e(f"s_add_u32 s{sT1}, s{sT1}, s{sB}")
e(f"s_lshl_b32 s{sT1}, s{sT1}, 7")
e(f"s_add_u32 s{sKF}, s{sT1}, {FL_KV}")
e(f"s_lshl_b32 s{sKD}, s{sT2}, 11")
e("v_and_b32 v9, 1, v4")
e("v_lshlrev_b32 v9, 3, v9")
e("v_lshl_add_u32 v9, v3, 4, v9          ; n*16 + (q&1)*8")
e("v_lshrrev_b32 v8, 1, v4")
e(f"s_mov_b32 s{sDRY}, {1 if opt['dry'] else 0}")
if opt['pre']:
    cm("touch the lines this wave will publish (tile and flag), so the write-through stores find them resident")
    e(f"v_and_b32 v12, 15, v{vL}")
    e("v_lshlrev_b32 v12, 7, v12")
    e(f"buffer_load_dword v201, v12, {sr(R_WS,4)}, s{sKD} offen sc1")
    e(f"buffer_load_dword v202, off, {sr(R_WS,4)}, s{sKF} sc1")
def kvchain(isV):
    D = opt['kvd']
    def mf(k2):
        b2 = BUF + 8*k2
        a, bb = (b2+4, b2) if isV else (b2, b2+4)
        e(f"v_mfma_f32_16x16x32_bf16 {vr(ACC,4)}, {vr(a,4)}, {vr(bb,4)}, {'0' if k2==0 else vr(ACC,4)}")
    for ks in range(16):
        b = BUF + 8*ks
        e(f"ds_read_b64_tr_b16 {vr(b,2)}, v6 offset:{ks*1024}")
        e(f"ds_read_b64_tr_b16 {vr(b+2,2)}, v6 offset:{ks*1024+128}")
        e(f"ds_read_b128 {vr(b+4,4)}, v5 offset:{ks*64}")
        if ks >= D:
            e(f"s_waitcnt lgkmcnt({3*D})"); mf(ks - D)
    for k2 in range(16 - D, 16):
        e(f"s_waitcnt lgkmcnt({3*(15-k2)})"); mf(k2)
def kv_wait(tagname):
    e(f"s_waitcnt vmcnt({2 if opt['pre'] else 0})")
    stamp(1)
    e("s_mov_b64 exec, 1")
    e("ds_write_b8 v14, v15" if opt['bytef'] else "ds_add_u32 v14, v15")
    e("s_mov_b64 exec, -1")
    lds_wait(tagname + "_w", C_CR, FOUR, 10, sleep=1)
def kv_b1(tagname):
    if not opt['dry']: kv_wait(tagname)
    lab(tagname)
def kv_b2(tagname):
    if opt['dry']:
        e(f"s_cmp_eq_u32 s{sDRY}, 0")
        e(f"s_cbranch_scc1 {tagname}_go")
        e(f"s_mov_b32 s{sDRY}, 0")
        kv_wait(tagname)
        e(f"s_branch {tagname}")
        lab(tagname + "_go")
e(f"s_bitcmp1_b32 s{sHG}, 0")
e("s_cbranch_scc1 L_prodV")
cm("K: (q>>1)*512 + (16b+n)*16 + (q&1)*8")
e("v_lshl_add_u32 v6, v7, 3, v6")
e("v_lshl_add_u32 v8, v8, 9, v9")
e(f"s_lshl_b32 s{sT1}, s{sB}, 8")
e(f"s_add_u32 s{sKD}, s{sKD}, s{sT1}")
kv_b1("L_chK"); kvchain(False); kv_b2("L_chK")
nop(6 if opt['dry'] else 8)
e("s_branch L_prodS")
lab("L_prodV")
cm("V: 1024 + b*512 + (q>>1)*256 + n*16 + (q&1)*8")
e("v_lshl_add_u32 v8, v8, 8, v9")
e("v_and_b32 v9, 1, v7")
e("v_lshl_add_u32 v6, v9, 4, v6")
e("v_lshrrev_b32 v9, 1, v7")
e("v_lshl_add_u32 v6, v9, 3, v6")
e(f"s_lshl_b32 s{sT1}, s{sB}, 9")
e(f"s_add_u32 s{sKD}, s{sKD}, s{sT1}")
e(f"s_add_u32 s{sKD}, s{sKD}, 1024")
kv_b1("L_chV"); kvchain(True); kv_b2("L_chV")
e(f"s_mov_b32 s{sT0}, {hex(f2u(2.0**VSCALE))}")
nop(6 if opt['dry'] else 8)
for i in range(4): e(f"v_mul_f32 v{ACC+i}, s{sT0}, v{ACC+i}")
lab("L_prodS")
e(f"v_cvt_pk_bf16_f32 v10, v{ACC}, v{ACC+1}")
e(f"v_cvt_pk_bf16_f32 v11, v{ACC+2}, v{ACC+3}")
e(f"buffer_store_dwordx2 v[10:11], v8, {sr(R_WS,4)}, s{sKD} offen sc1")
stamp(14)
e("ds_add_u32 v14, v15 offset:%d             ; this wave is done with the weight region" % (C_KV - C_CR + 65536) if False else f"v_mov_b32 v13, {MISC+C_KV}")
e("s_mov_b64 exec, 1")
e("ds_write_b32 v13, v15")
e("s_mov_b64 exec, -1")
tag_from_lds("L_tagp", 4)
e(f"v_mov_b32 v6, s{sNON}")
e(f"v_mov_b32 v7, s{sNON+1}")
e("s_mov_b64 exec, 1")
e("s_waitcnt vmcnt(0)")
e(f"buffer_store_dwordx2 v[6:7], off, {sr(R_WS,4)}, s{sKF} sc1")
e("s_mov_b64 exec, -1")
stamp(15)
if opt['pa']: e("s_branch L_tagged0")
else:
    e(f"s_mov_b32 s{sRET}, 1")
    e("s_branch L_tagged")
lab("L_np")
e("s_waitcnt vmcnt(0)")
stamp(1)
e("s_mov_b64 exec, 1")
e("ds_write_b8 v14, v15" if opt['bytef'] else "ds_add_u32 v14, v15")
e("s_mov_b64 exec, -1")
if opt['codepf']:
    cm("aux wave 2 pulls this kernel's code towards L2 (reads only)")
    e(f"s_cmp_eq_u32 s{sA}, 2")
    e("s_cbranch_scc0 L_nopf")
    e(f"s_getpc_b64 {sr(sX,2)}")
    lab("L_pc")
    e(f"v_lshlrev_b32 v4, 7, v{vL}")
    e(f"s_sub_u32 s{sX}, s{sX}, L_pc-{NAME}_kernel")
    e(f"s_subb_u32 s{sX+1}, s{sX+1}, 0")
    e(f"v_mov_b32 v5, s{sX+1}")
    e(f"v_add_co_u32 v4, vcc, s{sX}, v4")
    e("s_nop 1")
    e("v_addc_co_u32 v5, vcc, 0, v5, vcc")
    e("CODEPF")
    lab("L_nopf")
if opt['lwarm']:
    cm("aux wave 1 walks once through the attention loop with every lane off (LDS and register traffic only) to warm the instruction cache")
    e(f"s_cmp_eq_u32 s{sA}, 1")
    e("s_cbranch_scc0 L_nolw")
    e(f"s_mov_b32 s{sIT}, 15")
    e(f"s_mov_b32 s{sBARN}, 0")
    e("s_setprio 0")
    e("s_mov_b64 exec, 0")
    e("s_branch L_att_loop")
    lab("L_lwarm_ret")
    e("s_mov_b64 exec, -1")
    e(f"s_setprio {opt['prioX']}")
    lab("L_nolw")
e(f"s_cmp_eq_u32 s{sA}, 3")
e("s_cbranch_scc0 L_tagged0")
cm("aux wave 3 fetches this launch's hand-off tag (bounded spin) and posts it in LDS")
e(f"s_mov_b32 s{sSPIN}, {SPIN}")
lab("L_tag")
e(f"buffer_load_dwordx2 v[14:15], off, {sr(R_DBG,4)}, 0 sc1")
e(f"s_sub_u32 s{sSPIN}, s{sSPIN}, 1")
e(f"s_cmp_eq_u32 s{sSPIN}, 0")
e("s_cbranch_scc1 L_tag_done")
e("s_waitcnt vmcnt(0)")
e("v_cmp_eq_u32 vcc, 0, v14")
e("s_nop 0")
e("s_cmp_eq_u64 vcc, 0")
e("s_cbranch_scc0 L_tag")
lab("L_tag_done")
e("s_waitcnt vmcnt(0)")
e(f"v_mov_b32 v12, {MISC+C_TAG}")
e("ds_write_b64 v12, v[14:15]")
cm("report this workgroup's XCD id (tag | id)")
e(f"s_getreg_b32 s{sT2}, hwreg(HW_REG_XCC_ID, 0, 4)")
e(f"s_lshl_b32 s{sT1}, s2, 7")
e(f"s_add_u32 s{sT1}, s{sT1}, {FL_X}")
e(f"v_or_b32 v14, s{sT2}, v14")
e("s_mov_b64 exec, 1")
e(f"buffer_store_dwordx2 v[14:15], off, {sr(R_WS,4)}, s{sT1} sc1")
e("s_mov_b64 exec, -1")
import re
def ren(m):
    n = int(m.group(1)); return f"v{208+n}" if 3 <= n <= 15 else m.group(0)
def ren2(m):
    a, b = int(m.group(1)), int(m.group(2)); return f"v[{208+a}:{208+b}]" if 3 <= a <= 15 else m.group(0)
for k in range(KV0, len(L)):
    L[k] = re.sub(r"v\[(\d+):(\d+)\]", ren2, re.sub(r"\bv(\d+)\b", ren, L[k]))
e(f"s_mov_b32 s{sRET}, 0") if False else None
lab("L_tagged0")
e(f"s_mov_b32 s{sRET}, 0")
e("s_branch L_addr")
lab("L_tagged")
stamp(2)
tag_from_lds("L_tagx", 8)
cm("the weight region is reused only after the projection wave is done with it")
lds_wait("L_wkv", C_KV, 1, 8, sleep=opt['fs'])
cm("key tiles in rotated order (own XCD's tiles first); wave a covers tiles 8g + 2a, 8g + 2a + 1: flags 32g + 8a + (0..7)")
vCNT = 248
sKG, sKL, sKS, sKP = 97, 85, 88, 96
e(f"v_and_b32 v{ACC+2}, 7, v{vL}")
e(f"v_lshlrev_b32 v{ACC+2}, 7, v{ACC+2}")
e(f"s_lshl_b32 s{sKP}, s{sA}, 10")
e(f"s_add_u32 s{sKP}, s{sKP}, {FL_KV}")
e(f"s_lshl_b32 s{sT1}, s{sXCD}, 12")
e(f"s_add_u32 s{sT1}, s{sT1}, s{sKP}")
e(f"s_lshl_b32 s{sKL}, s{sA}, 12")
e(f"s_lshl_b32 s{sKG}, s{sXCD}, 14")
e("s_barrier                             ; B2")
stamp(16)
poll("L_pollK0", 1, ACC+2, 8, [sT1])
stamp(3)
def kvdma(G):
    e(f"s_add_u32 m0, s{sKL}, {16384*G}")
    e(f"s_add_u32 s{sKS}, s{sKG}, s{sKL}")
    for i in range(4): e(f"buffer_load_dwordx4 v2, {sr(R_WS,4)}, s{sKS} offen offset:{1024*i} sc1 lds")
    if G < 7:
        e(f"s_add_u32 s{sKG}, s{sKG}, 16384")
        e(f"s_and_b32 s{sKG}, s{sKG}, 0x1ffff")
kvdma(0)
if opt['prepoll']:
    cm("one early look at the flags of all other key tiles; its latency overlaps the first tiles' landing")
    e(f"v_lshrrev_b32 v{ACC+4}, 3, v{vL}")
    e(f"v_lshlrev_b32 v{ACC+4}, 12, v{ACC+4}")
    e(f"v_add_u32 v{ACC+4}, v{ACC+4}, v{ACC+2}")
    e(f"buffer_load_dwordx2 {vr(ACC+6,2)}, v{ACC+4}, {sr(R_WS,4)}, s{sKP} offen sc1")
e(f"s_cmp_eq_u32 s{sRET}, 1")
e("s_cbranch_scc0 L_addr_2")
lab("L_addr")
srd(R_SRE, P_SRE, 8388608)
srd(R_SIM, P_SIM, 8388608)
srd(R_XB, P_XB, 2097152)
srd(R_WO, P_WO, 524288)
srd(R_OUT, P_OUT, 4194304)
sT1S, sEB, sTT, sS2, sCB = 98, 99, 100, 101, 79
R_HRE, R_HIM = R_XA, R_W
e(f"s_and_b32 s{sT0}, s{sJ}, 3")
e(f"s_lshl_b32 s{sT1S}, s{sXCD}, 2")
e(f"s_add_u32 s{sT1S}, s{sT1S}, s{sT0}       ; t1s")
e(f"s_lshr_b32 s{sT0}, s{sJ}, 2")
e(f"s_lshl_b32 s{sT0}, s{sT0}, 1")
e(f"s_lshr_b32 s{sEB}, s{sA}, 1")
e(f"s_add_u32 s{sEB}, s{sEB}, s{sT0}         ; eb")
e(f"s_and_b32 s{sTT}, s{sA}, 1               ; tt")
e(f"s_and_b32 s{sT0}, s{sJ}, 3")
e(f"s_lshl_b32 s{sT0}, s{sT0}, 1")
e(f"s_lshl_b32 s{sS2}, s{sXCD}, 3")
e(f"s_add_u32 s{sS2}, s{sS2}, s{sT0}")
e(f"s_add_u32 s{sS2}, s{sS2}, s{sTT}         ; s2 = 8 xcd + 2 (j&3) + (a&1)")
e(f"s_mov_b32 s{sCB}, s{sEB}                 ; cb = 2 (j>>2) + (a>>1)")
srd(R_HRE, P_HRE, 524288)
srd(R_HIM, P_HIM, 524288)
e(f"v_and_b32 v3, 31, v{vL}                ; n")
e(f"v_lshrrev_b32 v4, 5, v{vL}             ; h")
e(f"s_lshl_b32 s{sT0}, s{sTT}, 5")
e(f"v_add_u32 v5, s{sT0}, v3")
e("v_lshlrev_b32 v5, 5, v5")
e(f"v_add_u32 v13, s{sT1S}, v5")
vG0, vG1, vRX, vRW = 240, 242, 244, 246
vDRE, vDIM = 251, 252
vB2A, vB2O, vHA, vWOD, vWOT, vOF, vOUT, vPH, vPK, vF = 4, 3, 15, 14, 0, 5, 6, 7, 12, 13
cm("B1 staging, loader side: wave a fills block a (0,1: x_B rows of s2, s2+1; 2,3: DFT rows of cb, cb+1),")
cm("16 rows x 64 B per load, row r -> rho = 8*bit2 + 4*bit3 + (r&3), 16-B chunk (l&3) ^ ((l>>4)&3)")
e(f"v_bfe_u32 v5, v{vL}, 2, 2")
e(f"v_bfe_u32 v6, v{vL}, 4, 1")
e("v_lshl_add_u32 v5, v6, 3, v5")
e("v_lshl_add_u32 v5, v4, 2, v5            ; rho")
e(f"v_lshrrev_b32 v6, 4, v{vL}")
e(f"v_xor_b32 v6, v6, v{vL}")
e("v_and_b32 v6, 3, v6")
e("v_lshlrev_b32 v6, 4, v6                 ; chunk * 16")
e(f"s_and_b32 s{sT0}, s{sS2}, -2")
e(f"s_add_u32 s{sT0}, s{sT0}, s{sA}")
e(f"s_lshl_b32 s{sT0}, s{sT0}, 10")
e(f"s_and_b32 s{sT1}, s{sCB}, -2")
e(f"s_add_u32 s{sT1}, s{sT1}, s{sTT}")
e(f"s_lshl_b32 s{sT1}, s{sT1}, 14")
e(f"s_add_u32 s{sT2}, s{sT0}, 0x100000")
e(f"s_cmp_lt_u32 s{sA}, 2")
e(f"s_cselect_b32 s{sT3}, 16, 10")
e(f"s_cselect_b32 s{sT0}, s{sT0}, s{sT1}")
e(f"s_cselect_b32 s{sT2}, s{sT2}, s{sT1}")
e(f"s_cselect_b64 {sr(sX,2)}, {sr(P_XB,2)}, {sr(P_HRE,2)}")
e(f"s_cselect_b64 {sr(sST,2)}, {sr(P_XB,2)}, {sr(P_HIM,2)}")
e(f"v_lshlrev_b32 v5, s{sT3}, v5")
e("v_add_u32 v5, v5, v6")
e(f"v_add_u32 v7, s{sT0}, v5")
e(f"v_mov_b32 v{vG0+1}, s{sX+1}")
e(f"v_add_co_u32 v{vG0}, vcc, s{sX}, v7")
e(f"v_add_u32 v7, s{sT2}, v5")
e(f"v_mov_b32 v{vG1+1}, s{sST+1}")
e(f"v_addc_co_u32 v{vG0+1}, vcc, 0, v{vG0+1}, vcc")
e(f"v_add_co_u32 v{vG1}, vcc, s{sST}, v7")
e(f"s_lshl_b32 s{sT1}, s{sT1}, 2")
e(f"s_add_u32 s{sT1}, s{sT1}, s{sA}")
e(f"v_addc_co_u32 v{vG1+1}, vcc, 0, v{vG1+1}, vcc")
e(f"s_cmp_eq_u32 s{sT1}, 2")
e("s_cbranch_scc0 L_nospec0")
cm("cb = 0: the im slot of e = 0 (lanes 0..3 of the second load) carries cos row 256")
e("s_mov_b64 exec, 15")
e("v_add_u32 v7, 0x40000, v6")
e(f"v_mov_b32 v{vG1+1}, s{P_HRE+1}")
e(f"v_add_co_u32 v{vG1}, vcc, s{P_HRE}, v7")
e("s_nop 1")
e(f"v_addc_co_u32 v{vG1+1}, vcc, 0, v{vG1+1}, vcc")
e("s_mov_b64 exec, -1")
lab("L_nospec0")
cm("reader side: row m, chunk (2s+h) ^ ((m>>2)&3)")
e("v_bfe_u32 v5, v3, 2, 2")
e("v_xor_b32 v5, v5, v4")
e("v_lshlrev_b32 v5, 4, v5")
e("v_lshl_add_u32 v5, v3, 6, v5")
e(f"s_lshl_b32 s{sT0}, s{sTT}, 11")
e(f"s_add_u32 s{sT0}, s{sT0}, {STG}")
e(f"v_add_u32 v{vRX}, s{sT0}, v5")
e(f"v_xor_b32 v{vRX+1}, 32, v{vRX}")
e(f"s_lshr_b32 s{sT0}, s{sA}, 1")
e(f"s_lshl_b32 s{sT0}, s{sT0}, 11")
e(f"s_add_u32 s{sT0}, s{sT0}, {STG + 4096}")
e(f"v_add_u32 v{vRW}, s{sT0}, v5")
e(f"v_xor_b32 v{vRW+1}, 32, v{vRW}")
vHW, vHW1, vHR, vHS = 250, 253, BUF, BUF + 1
cm("H regrouping: write row t1, chunk (2h+i) ^ ((t1>>2)&3); read lane-linear; store row l>>2, chunk (l&3) ^ ((l>>4)&3)")
e(f"s_lshl_b32 s{sT0}, s{sA}, 11")
e(f"s_add_u32 s{sT0}, s{sT0}, {STG}")
e("v_bfe_u32 v5, v3, 2, 2")
e("v_lshlrev_b32 v7, 1, v4")
e("v_xor_b32 v5, v5, v7")
e("v_lshlrev_b32 v5, 4, v5")
e("v_lshl_add_u32 v5, v3, 6, v5")
e(f"v_add_u32 v{vHW}, s{sT0}, v5")
e(f"v_xor_b32 v{vHW1}, 16, v{vHW}")
e(f"v_add_u32 v{BUF}, s{sT0}, v2")
e(f"v_lshrrev_b32 v5, 2, v{vL}")
e(f"v_mul_u32_u24 v5, {64*HROW}, v5")
e(f"v_add_u32 v{BUF+1}, v5, v6")
cm("e = 256 store address: t1*64*HROW")
e(f"v_mul_u32_u24 v8, {64*HROW}, v3")
e(f"v_lshl_add_u32 v{vHA}, v4, 5, v8")
cm("wo: DMA source offset and transposing read: row 8h+r, 16-B chunk 4cbk + 2(cc&1) + g, byte 8(cc>>1)")
e(f"v_lshrrev_b32 v8, 3, v{vL}")
e(f"v_and_b32 v9, 7, v{vL}")
e(f"v_bfe_u32 v10, v{vL}, 4, 1")
e("v_lshlrev_b32 v10, 2, v10")
e("v_xor_b32 v9, v9, v10")
e("v_lshlrev_b32 v9, 4, v9")
e(f"v_lshl_add_u32 v{vWOD}, v8, 10, v9")
e(f"v_bfe_u32 v9, v{vL}, 2, 2")
e("v_lshl_add_u32 v9, v4, 3, v9")
e("v_lshlrev_b32 v9, 7, v9")
e(f"v_and_b32 v10, 1, v{vL}")
e(f"v_bfe_u32 v11, v{vL}, 4, 1")
e("v_lshl_add_u32 v10, v10, 1, v11")
e(f"s_lshr_b32 s{sT0}, s{sA}, 1")
e(f"s_lshl_b32 s{sT0}, s{sT0}, 2")
e(f"v_add_u32 v10, s{sT0}, v10")
e(f"v_bfe_u32 v11, v{vL}, 3, 1")
e("v_lshlrev_b32 v11, 2, v11")
e("v_xor_b32 v10, v10, v11")
e("v_lshl_add_u32 v9, v10, 4, v9")
e(f"v_bfe_u32 v11, v{vL}, 1, 1")
e("v_lshl_add_u32 v9, v11, 3, v9")
e(f"v_add_u32 v{vWOT}, {STG}, v9")
cm("output projection: out offset, O fragment address")
e(f"s_lshl_b32 s{sT3}, s{sTB}, 1")
e(f"s_and_b32 s{sT4}, s{sA}, 1")
e(f"s_add_u32 s{sT3}, s{sT3}, s{sT4}")
e(f"s_lshl_b32 s{sT3}, s{sT3}, 5")
e(f"v_add_u32 v8, s{sT3}, v3")
e("v_lshlrev_b32 v8, 11, v8")
e(f"v_lshl_add_u32 v{vOUT}, v4, 5, v8")
e(f"s_lshl_b32 s{sT3}, s{sT4}, 15")
e(f"v_add_u32 v{vOF}, s{sT3}, v2")
e(f"v_lshlrev_b32 v{vPH}, 7, v{vL}")

cm("B2 A rows: e(m) = 32eb + col(m) (eb<8) or 512 - that; col(m) = 16*b2 + 4*(m>>3) + (m&3)")
e("v_and_b32 v8, 3, v3")
e("v_bfe_u32 v9, v3, 2, 1")
e("v_lshl_add_u32 v8, v9, 4, v8")
e("v_lshrrev_b32 v9, 3, v3")
e("v_lshl_add_u32 v8, v9, 2, v8")
e(f"s_lshl_b32 s{sT0}, s{sEB}, 5")
e(f"v_add_u32 v8, s{sT0}, v8")
e("v_sub_u32 v9, 0x200, v8")
e("v_sub_u32 v10, 0x800, v13")
e("v_and_b32 v10, 0x7ff, v10               ; (2048 - ts) & 2047")
e(f"s_cmp_lt_u32 s{sEB}, 8")
e("s_cselect_b64 vcc, 0, -1")
e("v_cndmask_b32 v8, v8, v9, vcc")
e("v_cndmask_b32 v11, v13, v10, vcc")
e("v_lshlrev_b32 v10, 12, v10")
e(f"v_lshl_add_u32 v{vDIM}, v4, 6, v10")
e("v_lshlrev_b32 v10, 12, v13")
e(f"v_lshl_add_u32 v{vDRE}, v4, 6, v10")
e("v_lshlrev_b32 v10, 18, v3")
e(f"v_lshl_add_u32 v{vF}, v4, 4, v10")
e(f"v_lshrrev_b32 v10, 3, v{vL}")
e("v_lshlrev_b32 v10, 5, v10")
e(f"v_and_b32 v9, 7, v{vL}")
e("v_add_u32 v10, v10, v9")
e(f"v_lshlrev_b32 v{vPK}, 7, v10             ; K/V flags 32g + (0..7)")
e("v_lshlrev_b32 v11, 11, v11")
e(f"v_lshl_add_u32 v{vB2O}, v4, 5, v11")
e(f"v_mul_u32_u24 v9, {32*HROW}, v4")
e(f"v_lshl_add_u32 v{vB2A}, v8, 2, v9")
e(f"s_cmp_eq_u32 s{sRET}, 0")
e(f"s_mov_b32 s{sRET}, 2")
e("s_cbranch_scc1 L_tagged")
lab("L_addr_2")
e(f"v_mov_b32 v{vCNT}, {MISC+C_G1}")
vCB = 11 if False else 249
if opt['bytef']: e(f"v_add_u32 v{vCNT+1}, s{sA}, v{vCNT}")
e(f"v_mov_b32 v{vCNT+1}, 1") if not opt['bytef'] else None
e("s_waitcnt vmcnt(0)")
stamp(18)
if opt['prepoll']:
    e(f"v_cmp_ne_u64 vcc, {sr(sNON,2)}, {vr(ACC+6,2)}")
e("s_barrier")
if opt['prepoll']:
    e("s_cmp_eq_u64 vcc, 0")
    e("s_cbranch_scc1 L_kv_all")
poll("L_pollKV", 1, vPK, 8, [sKP], sleep=1)
lab("L_kv_all")
stamp(4)
e("s_setprio 0")
LOW[0] = True
for G in range(1, 3): kvdma(G)
stamp(23)
e("s_waitcnt vmcnt(4)")
stamp(24)
e(f"s_mov_b64 exec, {hex(1 << (1)) if opt['bytef'] else 1}          ; lane {1} stores its lane id")
e(f"ds_write_b8 v{vCNT+1}, v{vL} offset:{0}" if opt['bytef'] else f"ds_add_u32 v{vCNT}, v{vCNT+1} offset:{0}")
e("s_mov_b64 exec, -1")
for G in range(3, 8): kvdma(G)
XF, WF = D1, D1 + 8
cm("pull this workgroup's 1/32 share of what its XCD reads for the spectral part and of wo towards L2")
e(f"s_lshl_b32 s{sT0}, s{sJ}, 13")
e(f"s_cmp_eq_u32 s{sA}, 1")
e("s_cbranch_scc1 L_pf1")
e(f"s_cmp_eq_u32 s{sA}, 2")
e("s_cbranch_scc1 L_pf2")
e(f"s_cmp_eq_u32 s{sA}, 3")
e("s_cbranch_scc1 L_pf3")
e(f"s_lshl_b32 s{sT0}, s{sJ}, 16")
e(f"s_lshl_b32 s{sT1}, s{sXCD}, 13")
e(f"s_add_u32 s{sT0}, s{sT0}, s{sT1}")
e(f"buffer_load_dword v{D2+8}, v{vPH}, {sr(R_XB,4)}, s{sT0} offen")
e("s_branch L_pf4")
lab("L_pf1")
e(f"buffer_load_dword v{D2+8}, v{vPH}, {sr(R_HRE,4)}, s{sT0} offen")
e("s_branch L_pf4")
lab("L_pf2")
e(f"buffer_load_dword v{D2+8}, v{vPH}, {sr(R_HIM,4)}, s{sT0} offen")
e("s_branch L_pf4")
lab("L_pf3")
e(f"s_lshl_b32 s{sT0}, s{sJ}, 14")
e(f"buffer_load_dword v{D2+8}, v{vPH}, {sr(R_WO,4)}, s{sT0} offen")
lab("L_pf4")
sSL, sWOS, sWOB = 30, 31, 96
e(f"s_lshl_b32 s{sSL}, s{sA}, 11")
e(f"s_add_u32 s{sSL}, s{sSL}, {STG}")
e(f"s_lshl_b32 s{sWOS}, s{sHG}, 7")
e(f"s_lshl_b32 s{sT1}, s{sA}, 14")
e(f"s_add_u32 s{sWOB}, s{sWOS}, s{sT1}")
e(f"s_lshr_b32 s{sT1}, s{sA}, 1")
e(f"s_lshl_b32 s{sT1}, s{sT1}, 6")
e(f"s_add_u32 s{sWOS}, s{sWOS}, s{sT1}")
VM = []
def st_dma(n):
    if n >= 24: return
    for i in range(2):
        if n < 16:
            e(f"s_add_u32 m0, s{sSL}, {8192*(n%3) + 1024*i - 64*n}")
            e("s_nop 0")
            e(f"global_load_lds_dwordx4 {vr(vG0 + 2*i, 2)}, off offset:{64*n}" if not opt['abl'] & 2 else "s_nop 0")
        else:
            e(f"s_add_u32 m0, s{sSL}, {8192*(n%3) + 1024*i}")
            e(f"s_add_u32 s{sT1}, s{sWOB}, {65536*(n-16) + 8192*i}")
            e(f"buffer_load_dwordx4 v{vWOD}, {sr(R_WO,4)}, s{sT1} offen lds")
        VM.append(('st', n))
def st_sync(n, between=None):
    last = max(k for k, t in enumerate(VM) if t == ('st', n))
    e(f"s_waitcnt vmcnt({len(VM) - 1 - last}) lgkmcnt(0)")
    e(f"s_mov_b64 exec, {hex(1 << (n + 1)) if opt['bytef'] else 1}          ; lane {n + 1} stores its lane id")
    e(f"ds_write_b8 v{vCNT+1}, v{vL} offset:{C_ST - C_G1}" if opt['bytef'] else f"ds_add_u32 v{vCNT}, v{vCNT+1} offset:{C_ST - C_G1}")
    e("s_mov_b64 exec, -1")
    if between: between()
    e(f"s_mov_b32 s{sSPIN}, {SPIN*8}")
    lab(f"L_st{n}")
    e(f"ds_read_b32 v8, v{vCNT} offset:{C_ST - C_G1}")
    e(f"s_sub_u32 s{sSPIN}, s{sSPIN}, 1")
    e(f"s_cbranch_scc1 L_st{n}_done")
    e("s_waitcnt lgkmcnt(0)")
    if (opt['sp'] if n < 16 else opt['spw']): e("s_setprio 2")
    e(f"v_readfirstlane_b32 s{sT4}, v8")
    e("s_setprio 0")
    if opt['bytef']:
        e(f"s_or_b32 s{sT4}, s{sT4}, 0x80808080")
        e(f"s_sub_u32 s{sT4}, s{sT4}, {hex(0x01010101*(n+1))}")
        e(f"s_and_b32 s{sT4}, s{sT4}, 0x80808080")
        e(f"s_cmp_eq_u32 s{sT4}, 0x80808080")
    else: e(f"s_cmp_ge_u32 s{sT4}, {4*(n+1 - (16 if opt['nob'] else 0))}")
    if opt['ss']:
        e(f"s_cbranch_scc1 L_st{n}_done")
        e(f"s_sleep {opt['ss']}")
        e(f"s_branch L_st{n}")
    else: e(f"s_cbranch_scc0 L_st{n}")
    lab(f"L_st{n}_done")
if not opt['nob']: st_dma(0); st_dma(1)
stamp(17)
e("s_waitcnt vmcnt(5)                    ; younger: one pull, two stages" if not opt['nob'] else "s_waitcnt vmcnt(0)")
e(f"s_mov_b64 exec, {hex(1 << (1)) if opt['bytef'] else 1}          ; lane {1} stores its lane id")
e(f"ds_write_b8 v{vCNT+1}, v{vL} offset:{4}" if opt['bytef'] else f"ds_add_u32 v{vCNT}, v{vCNT+1} offset:{4}")
e("s_mov_b64 exec, -1")
e(f"s_cmp_eq_u32 s{sA}, 3")
e("s_cbranch_scc0 L_pf5")
e(f"s_add_u32 s{sT0}, s{sT0}, 8192")
e(f"buffer_load_dword v{D2+9}, v{vPH}, {sr(R_WO,4)}, s{sT0} offen     ; not counted below: only makes waits stricter")
lab("L_pf5")
stamp(21)
RAW = BP
def b1mfma(n):
    for s_ in range(2 if not opt['nomf'] else 0):
        e(f"v_mfma_f32_32x32x16_bf16 {vr(ACC,16)}, {vr(XF+4*s_,4)}, {vr(WF+4*s_,4)}, {'0' if n==0 and s_==0 else vr(ACC,16)}")
if opt['nob']:
    e("s_branch L_nob1")
NOB0 = len(L)
for n in range(16 if not opt['nob'] else 0):
    st_sync(n, (lambda: b1mfma(n - 1)) if n else None)
    if n + 2 < 16: st_dma(n + 2)
    for s_ in range(2 if not opt['abl'] & 1 else 0):
        e(f"ds_read_b128 {vr(XF+4*s_,4)}, v{vRX+s_} offset:{8192*(n%3)}")
        e(f"ds_read_b128 {vr(WF+4*s_,4)}, v{vRW+s_} offset:{8192*(n%3)}")
    if n == opt['fst']:
        for kb in range(2): e(f"buffer_load_dwordx4 {vr(FR+4*kb,4)}, v{vF}, {sr(R_SRE,4)}, 0 offen offset:{32*kb}")
        for kb in range(2): e(f"buffer_load_dwordx4 {vr(FR+8+4*kb,4)}, v{vF}, {sr(R_SIM,4)}, 0 offen offset:{32*kb}")
        VM += [('F', 0)]*4
e("s_waitcnt lgkmcnt(0)")
b1mfma(15)
stamp(22)
e(f"s_mul_i32 s{sT0}, s{sS2}, {HROW}")
e(f"s_lshl_b32 s{sT1}, s{sCB}, 6")
e(f"s_add_u32 s{sT0}, s{sT0}, s{sT1}")
e(f"s_add_u32 s{sT0}, s{sT0}, {WS_H}")
nop(7)
vZ = D2 + 8 if False else BP
def boost(on):
    e(f"s_setprio {2 if on else 0}"); LOW[0] = not on
boost(opt['eb'] & 1)
for i in range(8): e(f"v_cvt_pk_bf16_f32 v{vZ+i}, v{ACC+2*i}, v{ACC+2*i+1}")
boost(0)
nop(1)
e(f"v_mfma_f32_32x32x16_bf16 {vr(D1,16)}, {vr(vZ,4)}, {vr(FR,4)}, 0")
e(f"v_mfma_f32_32x32x16_bf16 {vr(D2,16)}, {vr(vZ,4)}, {vr(FR+8,4)}, 0")
e(f"v_mfma_f32_32x32x16_bf16 {vr(D1,16)}, {vr(vZ+4,4)}, {vr(FR+4,4)}, {vr(D1,16)}")
e(f"v_mfma_f32_32x32x16_bf16 {vr(D2,16)}, {vr(vZ+4,4)}, {vr(FR+12,4)}, {vr(D2,16)}")
nop(11)
boost(1)
for r in range(8):
    e(f"v_sub_f32 v{ACC+r}, v{D1+r}, v{D2+8+r}")
    e(f"v_add_f32 v{ACC+8+r}, v{D2+r}, v{D1+8+r}")
e(f"s_cmp_eq_u32 s{sCB}, 0")
e("s_cbranch_scc0 L_nospecial")
cm("columns e = 0 and e = 256 (both purely real rows): lanes 0..31, register 0")
e("s_mov_b32 exec_hi, 0")
e(f"v_mov_b32 v{ACC}, v{D1}")
e(f"v_mov_b32 v{ACC+8}, v{D2}")
e(f"v_cvt_pk_bf16_f32 v8, v{D1+8}, v{D2+8}")
e(f"buffer_store_dword v8, v{vHA}, {sr(R_WS,4)}, s{sT0} offen offset:1024 sc1")
e("s_mov_b64 exec, -1")
lab("L_nospecial")
for r in range(8): e(f"v_cvt_pk_bf16_f32 v{D1+r}, v{ACC+r}, v{ACC+8+r}")
boost(0)
cm("lane (t1, h) holds 32 B of row t1: regroup through LDS so that 4 adjacent lanes store one 64-B run")
e(f"ds_write_b128 v{vHW}, {vr(D1,4)} offset:8192")
e(f"ds_write_b128 v{vHW1}, {vr(D1+4,4)} offset:8192")
e("s_waitcnt lgkmcnt(0)")
e(f"ds_read_b128 {vr(D1+8,4)}, v{vHR} offset:8192")
e(f"ds_read_b128 {vr(D1+12,4)}, v{vHR} offset:9216")
e(f"s_add_u32 s{sT1}, s{sT0}, {16*64*HROW}")
e("s_waitcnt lgkmcnt(0)")
e(f"buffer_store_dwordx4 {vr(D1+8,4)}, v{vHS}, {sr(R_WS,4)}, s{sT0} offen sc1")
e(f"buffer_store_dwordx4 {vr(D1+12,4)}, v{vHS}, {sr(R_WS,4)}, s{sT1} offen sc1")
if opt['nob']: lab("L_nob1")
if not opt['nowo']: st_dma(16); st_dma(17)
if opt['nob']: e("s_branch L_nob2")
def rawloads():
    global VM
    cm("rows of the sequence DFT matrices for B2")
    for i in range(4): e(f"buffer_load_dwordx4 {vr(RAW+4*i,4)}, v{vDRE}, {sr(R_SRE,4)}, 0 offen offset:{16*i}")
    for i in range(4): e(f"buffer_load_dwordx4 {vr(RAW+16+4*i,4)}, v{vDIM}, {sr(R_SIM,4)}, 0 offen offset:{16*i}")
    VM += [('raw', 0)]*8
if not opt['rawlate']: rawloads()
e(f"s_lshl_b32 s{sT1}, s2, 7")
e(f"s_add_u32 s{sT1}, s{sT1}, {FL_H}")
stamp(19)
e(f"s_waitcnt vmcnt({4 if opt['rawlate'] else 12})")
stamp(20)
boost(1)
signal("L_sigH", C_H, 3, sT1, 8)
stamp(5)
def bploc(o): return FR + o if o < 16 else (RAW + o - 16 if o < 24 else RAW + 16 + o - 24)
def perms():
    e(f"s_mov_b32 s{sT2}, 0x05040100")
    e(f"s_mov_b32 s{sT3}, 0x07060302")
    for i in range(16):
        e(f"v_perm_b32 v{bploc(2*i)}, v{RAW+16+i}, v{RAW+i}, s{sT2}")
        e(f"v_perm_b32 v{bploc(2*i+1)}, v{RAW+16+i}, v{RAW+i}, s{sT3}")
if not opt['b2tail']: perms()
boost(0)
if opt['rawlate'] and not opt['abl'] & 4: rawloads()
if opt['nob']: lab("L_nob2")
def wo_stage(n):
    if opt['nowo']: return
    st_sync(n)
    st_dma(n + 2)
    for k in range(4):
        ks = 4*(n - 16) + k
        e(f"ds_read_b64_tr_b16 {vr(BUF+4*ks,2)}, v{vWOT} offset:{8192*(n%3) + 2048*k}")
        e(f"ds_read_b64_tr_b16 {vr(BUF+4*ks+2,2)}, v{vWOT} offset:{8192*(n%3) + 2048*k + 512}")
for n in range(16, 16 + opt['wsplit']): wo_stage(n)
stamp(6)
boost(1)
if opt['pre']:
    cm("aux wave 2 touches the O lines this workgroup will write and the 8 flags of its token block")
    e(f"s_cmp_eq_u32 s{sA}, 2")
    e("s_cbranch_scc0 L_nopre")
    e(f"v_lshrrev_b32 v8, 5, v{vL}")
    e(f"v_and_b32 v9, 31, v{vL}")
    e("v_lshlrev_b32 v9, 7, v9")
    e("v_lshl_add_u32 v8, v8, 15, v9")
    e(f"s_lshl_b32 s{sT0}, s{sTB}, 16")
    e(f"s_lshl_b32 s{sT1}, s{sHG}, 12")
    e(f"s_add_u32 s{sT0}, s{sT0}, s{sT1}")
    e(f"s_add_u32 s{sT0}, s{sT0}, {WS_O}")
    e(f"buffer_load_dword v10, v8, {sr(R_WS,4)}, s{sT0} offen sc1")
    e(f"v_and_b32 v9, 0xf80, v{vPH}")
    e(f"s_lshl_b32 s{sT0}, s{sTB}, 12")
    e(f"s_add_u32 s{sT0}, s{sT0}, {FL_O}")
    e(f"buffer_load_dword v11, v9, {sr(R_WS,4)}, s{sT0} offen sc1")
    e("s_waitcnt vmcnt(0)")
    lab("L_nopre")
cm("aux wave 1: XCD ids of the 8 workgroups of this token block: ids 32*hg + (id & 31)")
e(f"s_cmp_eq_u32 s{sA}, 1")
e("s_cbranch_scc0 L_nosame")
e(f"v_and_b32 v8, 7, v{vL}")
e("v_lshlrev_b32 v8, 12, v8")
e(f"s_and_b32 s{sT0}, s2, 31")
e(f"s_lshl_b32 s{sT0}, s{sT0}, 7")
e(f"s_add_u32 s{sT0}, s{sT0}, {FL_X}")
e(f"buffer_load_dwordx2 v[10:11], v8, {sr(R_WS,4)}, s{sT0} offen sc1")
e(f"s_getreg_b32 s{sX}, hwreg(HW_REG_XCC_ID, 0, 4)")
e(f"s_or_b32 s{sX}, s{sX}, s{sNON}")
e(f"s_mov_b32 s{sX+1}, s{sNON+1}")
e(f"v_mov_b32 v9, {MISC+C_SAME}")
e("s_waitcnt vmcnt(0)")
e(f"v_cmp_ne_u64 vcc, {sr(sX,2)}, v[10:11]")
e("s_nop 0")
e("s_cmp_eq_u64 vcc, 0")
e(f"s_cselect_b32 s{sT0}, {1 if opt['fast'] else 0}, 0")
e(f"v_mov_b32 v11, s{sT0}")
e("ds_write_b32 v9, v11")
lab("L_nosame")
if opt['nob'] or opt['abl'] & 4: e("s_branch L_b2done")
cm("B2: wait for the H rows it reads: column groups ebg (direct) or 7-ebg and (8-ebg)&3 (mirrored)")
e(f"s_cmp_eq_u32 s{sA}, 0")
e("s_cbranch_scc0 L_hwait")
e(f"s_lshr_b32 s{sT2}, s{sJ}, 2              ; ebg")
e(f"s_sub_u32 s{sT0}, 7, s{sT2}")
e(f"s_sub_u32 s{sT1}, 8, s{sT2}")
e(f"s_and_b32 s{sT1}, s{sT1}, 3")
e(f"s_cmp_lt_u32 s{sT2}, 4")
e(f"s_cselect_b32 s{sT0}, s{sT2}, s{sT0}")
e(f"s_cselect_b32 s{sT1}, s{sT2}, s{sT1}")
e(f"s_lshl_b32 s{sT0}, s{sT0}, 13")
e(f"s_lshl_b32 s{sT1}, s{sT1}, 13")
e(f"s_add_u32 s{sT0}, s{sT0}, {FL_H}")
e(f"s_add_u32 s{sT1}, s{sT1}, {FL_H}")
poll("L_pollH", 2, vPH, 8, [sT0, sT1], sleep=8)
e(f"v_mov_b32 v10, {MISC+C_HOK}")
e("v_mov_b32 v11, 1")
e("ds_write_b32 v10, v11")
e("s_branch L_hok")
lab("L_hwait")
lds_wait("L_hw", C_HOK, 1, 10, sleep=8)
lab("L_hok")
boost(0)
stamp(7)
e(f"s_mul_i32 s{sT0}, s{sT1S}, {64*HROW}")
e(f"s_add_u32 s{sT0}, s{sT0}, {WS_H}")
AF = 208
for kb in range(8):
    for w in range(4): e(f"buffer_load_dword v{AF+4*kb+w}, v{vB2A}, {sr(R_WS,4)}, s{sT0} offen offset:{w*HROW} sc1")
    if kb < 7: e(f"s_add_u32 s{sT0}, s{sT0}, {4*HROW}")
VM += [('A', 0)]*32
sB2 = 88
def b2compute(low):
    e(f"s_lshl_b32 s{sB2}, s{sEB}, 6")
    e(f"s_add_u32 s{sB2}, s{sB2}, 1024")
    for kb in range(8):
        if low: e(f"s_waitcnt vmcnt({28-4*kb})")
        e(f"v_mfma_f32_32x32x16_bf16 {vr(ACC,16)}, {vr(AF+4*kb,4)}, {vr(bploc(4*kb),4)}, {'0' if kb==0 else vr(ACC,16)}")
    nop(11 if low else 12)
    if low: boost(1)
    for i in range(8): e(f"v_cvt_pk_bf16_f32 v{AF+8+i}, v{ACC+2*i}, v{ACC+2*i+1}")
    if low: b2store()
vRG, vS0, vS1, vO0 = 240, 241, 242, 243
def regroup(src, dst):
    e(f"ds_write_b128 v{vHW}, {vr(src,4)} offset:8192")
    e(f"ds_write_b128 v{vHW1}, {vr(src+4,4)} offset:8192")
    e("s_waitcnt lgkmcnt(0)")
    e(f"ds_read_b128 {vr(dst,4)}, v{vRG} offset:8192")
    e(f"ds_read_b128 {vr(dst+4,4)}, v{vRG} offset:9216")
def rg_addr():
    e(f"v_add_u32 v{vRG}, s{sSL}, v2")
    e(f"v_lshrrev_b32 v8, 4, v{vL}")
    e(f"v_xor_b32 v8, v8, v{vL}")
    e("v_and_b32 v8, 3, v8")
    e("v_lshlrev_b32 v8, 4, v8                 ; chunk * 16")
    e(f"v_lshrrev_b32 v9, 2, v{vL}              ; r")
    e(f"s_lshl_b32 s{sT3}, s{sTB}, 1")
    e(f"s_add_u32 s{sT3}, s{sT3}, s{sTT}")
    e(f"s_lshl_b32 s{sT3}, s{sT3}, 5")
    e(f"v_add_u32 v10, s{sT3}, v9")
    e("v_lshlrev_b32 v10, 11, v10")
    e(f"v_add_u32 v{vO0}, v10, v8")
    e(f"s_lshl_b32 s{sT3}, s{sTT}, 10")
    e(f"s_add_u32 s{sT3}, s{sT3}, s{sT1S}")
    e(f"v_lshl_add_u32 v9, v9, 5, s{sT3}         ; ts")
    e("v_add_u32 v10, 0x200, v9")
    e("v_sub_u32 v11, 0x800, v9")
    e("v_and_b32 v11, 0x7ff, v11")
    e(f"v_sub_u32 v{vS1}, 0x800, v10")
    e(f"s_cmp_lt_u32 s{sEB}, 8")
    e("s_cselect_b64 vcc, 0, -1")
    e("v_cndmask_b32 v9, v9, v11, vcc")
    e(f"v_cndmask_b32 v10, v10, v{vS1}, vcc")
    e(f"v_lshl_add_u32 v{vS0}, v9, 11, v8")
    e(f"v_lshl_add_u32 v{vS1}, v10, 11, v8")
def b2store():
    if opt['rg'] & 1:
        e(f"buffer_store_dwordx4 {vr(AF+16,4)}, v{vS0}, {sr(R_OUT,4)}, s{sB2} offen{OSC}")
        e(f"buffer_store_dwordx4 {vr(AF+20,4)}, v{vS1}, {sr(R_OUT,4)}, s{sB2} offen{OSC}")
        return
    e(f"buffer_store_dwordx4 {vr(AF+8,4)}, v{vB2O}, {sr(R_OUT,4)}, s{sB2} offen{OSC}")
    e(f"buffer_store_dwordx4 {vr(AF+12,4)}, v{vB2O}, {sr(R_OUT,4)}, s{sB2} offen offset:16{OSC}")
if not opt['b2tail']: b2compute(True)
lab("L_b2done")
boost(0)
stamp(8)
for n in range(16 + opt['wsplit'], 24): wo_stage(n)
e("s_waitcnt vmcnt(0) lgkmcnt(0)")
if opt['b2s']:
    boost(1)
    perms()
    rg_addr()
    boost(0)
    e(f"s_lshl_b32 s{sB2}, s{sEB}, 6")
    e(f"s_add_u32 s{sB2}, s{sB2}, 1024")
    for kb in range(8):
        e(f"v_mfma_f32_32x32x16_bf16 {vr(ACC,16)}, {vr(AF+4*kb,4)}, {vr(bploc(4*kb),4)}, {'0' if kb==0 else vr(ACC,16)}")
    nop(11)
    boost(1)
    for i in range(8): e(f"v_cvt_pk_bf16_f32 v{AF+8+i}, v{ACC+2*i}, v{ACC+2*i+1}")
    boost(0)
    regroup(AF+8, AF+16)
    e("s_waitcnt lgkmcnt(0)")
    sc = " sc1" if opt['b2s'] == 1 else ""
    e(f"buffer_store_dwordx4 {vr(AF+16,4)}, v{vS0}, {sr(R_OUT,4)}, s{sB2} offen{sc}")
    e(f"buffer_store_dwordx4 {vr(AF+20,4)}, v{vS1}, {sr(R_OUT,4)}, s{sB2} offen{sc}")
stamp(10)
warm("L_padt", "L_pado_ret")
cm("tail: the attention waves bring the O tile -> LDS 0..")
e("s_barrier                             ; B7")
LOW[0] = False
stamp(9)
if opt['b2tail'] and not opt['nob'] and not opt['abl'] & 20 and not opt['b2s']:
    cm("second spectral stage: operands are in registers, the matrix pipe is free until the O tile lands")
    perms()
    if opt['rg']: rg_addr()
    b2compute(False)
    if opt['rg'] & 1:
        regroup(AF+8, AF+16)
        e("s_waitcnt lgkmcnt(0)")
e(f"s_mov_b32 s{sT0}, s{sWOS}")
stamp(11)
e("s_barrier                             ; B8a")
pad_begin("L_pado")
OF = 144
korder = [h for st in range(4) for h in range(32) if (h % 8) // 2 == st]
PD = opt['opd']
def ofrag(n): e(f"ds_read_b128 {vr(OF+4*(n%8),4)}, v{vOF} offset:{1024*korder[n]}")
for n in range(PD): ofrag(n)
if opt['b2at'] == 0 and opt['b2tail'] and not opt['nob'] and not opt['abl'] & 28 and not opt['b2s']: b2store()
for n in range(32):
    if n + PD in (8, 16, 24):
        e(f"s_barrier                             ; B8.{(n+PD)//8}")
        if n + PD == opt['b2at'] and opt['b2tail'] and not opt['nob'] and not opt['abl'] & 28 and not opt['b2s']: b2store()
    if n + PD < 32:
        ofrag(n + PD)
        e(f"s_waitcnt lgkmcnt({PD})")
    else:
        e(f"s_waitcnt lgkmcnt({31-n})")
    e(f"v_mfma_f32_32x32x16_bf16 {vr(ACC,16)}, {vr(BUF+4*korder[n],4)}, {vr(OF+4*(n%8),4)}, {'0' if n==0 else vr(ACC,16)}")
nop(12)
for i in range(8): e(f"v_cvt_pk_bf16_f32 v{D1+i}, v{ACC+2*i}, v{ACC+2*i+1}")
if opt['rg'] & 2:
    regroup(D1, D1+8)
    e(f"s_add_u32 s{sT1}, s{sT0}, {16*2048}")
    e("s_waitcnt lgkmcnt(1)")
    e(f"buffer_store_dwordx4 {vr(D1+8,4)}, v{vO0}, {sr(R_OUT,4)}, s{sT0} offen{OSC}")
    e("s_waitcnt lgkmcnt(0)")
    e(f"buffer_store_dwordx4 {vr(D1+12,4)}, v{vO0}, {sr(R_OUT,4)}, s{sT1} offen{OSC}")
else:
    e(f"buffer_store_dwordx4 {vr(D1,4)}, v{vOUT}, {sr(R_OUT,4)}, s{sT0} offen{OSC}")
    e(f"buffer_store_dwordx4 {vr(D1+4,4)}, v{vOUT}, {sr(R_OUT,4)}, s{sT0} offen offset:16{OSC}")
pad_end("L_pado", "L_pado_ret")
if opt['dbgt']:
    e(f"s_cmp_lt_u32 s2, 6")
    e("s_cbranch_scc0 L_end")
    e(f"s_cmp_eq_u32 s{sW}, 4")
    e("s_cbranch_scc0 L_end")
    e("s_waitcnt vmcnt(0)")
    e(f"s_memrealtime {sr(sST,2)}")
    e("s_waitcnt lgkmcnt(0)")
    e(f"v_mov_b32 v4, s{sST}")
    e(f"s_lshl_b32 s{sT0}, s2, 2")
    e(f"s_add_u32 s{sT0}, s{sT0}, 40")
    e("s_mov_b64 exec, 1")
    e(f"buffer_store_dword v4, off, {sr(R_DBG,4)}, s{sT0}")
if opt['endat']:
    lab("L_endat")
    e(f"s_memrealtime {sr(sX,2)}")
    e("s_waitcnt lgkmcnt(0)")
    e(f"s_sub_u32 s{sX}, s{sX}, s30")
    e(f"s_cmp_lt_u32 s{sX}, {opt['endat']}")
    e("s_cbranch_scc1 L_endat")
stamp(12)
if opt['stamps']: e("s_waitcnt vmcnt(0)")
stamp(13)
stamp_dump()
lab("L_end")
e("s_endpgm")
lab("L_codeend")
L.append(f""".section .rodata,"a"
.p2align 6
.amdhsa_kernel {NAME}_kernel
  .amdhsa_next_free_vgpr 256
  .amdhsa_next_free_sgpr 102
  .amdhsa_accum_offset 256
  .amdhsa_group_segment_fixed_size 0
  .amdhsa_kernarg_size 104
  .amdhsa_user_sgpr_count 2
  .amdhsa_user_sgpr_kernarg_segment_ptr 1
  .amdhsa_system_sgpr_workgroup_id_x 1
.end_amdhsa_kernel""")

def finish(lines, ncode):
    out = []
    for l in lines:
        if l.strip() == "CODEPF":
            for i in range(ncode // 8192):
                out.append(f"    global_load_dword v200, v[212:213], off")
                out.append(f"    v_add_co_u32 v212, vcc, 0x2000, v212")
                out.append(f"    s_nop 1")
                out.append(f"    v_addc_co_u32 v213, vcc, 0, v213, vcc")
            rem = (ncode % 8192) // 128
            if rem:
                out.append(f"    v_cmp_gt_u32 vcc, {rem}, v{vL}")
                out.append(f"    s_nop 0")
                out.append(f"    s_and_saveexec_b64 {sr(sX,2)}, vcc")
                out.append(f"    global_load_dword v200, v[212:213], off")
                out.append(f"    s_mov_b64 exec, -1")
        else: out.append(l)
    return "\n".join(out) + "\n"
import subprocess, os, hazcheck
ncode = 16384
for _ in range(3):
    txt = finish(L, ncode)
    open("_g.s", "w").write(txt)
    r = subprocess.run(["clang", "-x", "assembler", "-target", "amdgcn-amd-amdhsa", "-mcpu=gfx950", "-c", "_g.s", "-o", "_g.o"], capture_output=True, text=True)
    if r.returncode: print(r.stderr[:3000]); sys.exit(1)
    sz = subprocess.run(["llvm-objdump", "-h", "_g.o"], capture_output=True, text=True).stdout
    n = [int(x.split()[2], 16) for x in sz.splitlines() if " .text " in x][0]
    if n // 128 * 128 == ncode: break
    ncode = n // 128 * 128
open(sys.argv[1], "w").write(txt)
print(hazcheck.check(txt), "hazards; code bytes", n)
```

```python
import sys, struct
NAME = "concat_heads__grouped_kv_mqa__spectral_fnet__prompt"
opt = dict(stamps=0, prioA=1, prioX=2, boost=1, force_fb=0, dbgt=0, dry=0, codepf=0, shift=102, outsc1=0, cluster=1, fast=1, nob=0, l2pf=0, wo1=4, hold=1, pre=1, pads=0, dxcc=-1, dus=300, endat=0, omode=1, b2tail=1, kvd=3, h1=1, h2=4, fs=3, ntc=9, nowo=0, nodsw=0, nomf=0, sp=1, ss=1, wsplit=8, attpf=0, rawlate=1, dftpf=1, fst=6, spw=0, eb=1, qloop=0, padt=0, opd=4, b2at=8, abl=0, preo=0, rg=0, prepoll=0, lwarm=0, csync=0, bytef=0, first=1, b2s=0, mt=1, win=8, win2=8, pa=0, baat=0, stall=0)
for a in sys.argv[2:]:
    k, v = a.split('='); opt[k] = int(v)

L = []
DOC = '''; ---------------------------------------------------------------------------------------------------------------
; One persistent launch, 256 workgroups (one per CU) x 8 waves.  Workgroup id -> xcd = id & 7 (locality hint only),
;       S^T = K Q^T + C by MFMA (C = -(stand-in max + shift), scale folded into Q), v_exp_f32 in place, and
;       P V by the 2:4 sparse MFMA whose index picks the upper halves of the fp32 registers (bf16 by truncation);
;       a row of constants in the V operand yields the row sum.  The stand-in max is checked after the loop and
;   waves 4..7 ("aux"): K or V projection of 16 tokens, K/V streaming into LDS, the spectral part
; Hand-offs between workgroups go through d_ws: data stores, s_waitcnt, then a flag (one 128-B line each) holding
; flags from stale ones.  Stores are write-through (sc1) unless all workgroups of the hand-off reported the same XCD;
; ---------------------------------------------------------------------------------------------------------------'''
def e(s=""): L.append("    " + s)
def lab(s): L.append(s + ":")
def cm(s): L.append("    ; " + s)
def vr(a, n): return f"v[{a}:{a+n-1}]" if n > 1 else f"v{a}"
def sr(a, n): return f"s[{a}:{a+n-1}]" if n > 1 else f"s{a}"
def nop(n):
    while n > 0:
        k = min(n, 16); e(f"s_nop {k-1}"); n -= k
def f2u(x): return struct.unpack('<I', struct.pack('<f', x))[0]
OSC = " sc1" if opt['outsc1'] else ""

W_OFF = 0
X_OFF, XROW = 16384, 1040
WQ_OFF = 82944
ONES_OFF = 155648
MISC = ONES_OFF + 1024
STG = 131072
LDS_BYTES = 163840
C_KV, C_H, C_O, C_TAG, C_HOK, C_SAME, C_CR, C_QA, C_QB, C_G1, C_KVL, C_ST = 0, 4, 8, 16, 24, 28, 32, 36, 40, 44, 48, 52
WS_KV, WS_O, WS_H, WS_FL = 0, 0x40000, 0x240000, 0x480000
FL_KV, FL_H, FL_X, FL_O = WS_FL, WS_FL + 0x8000, WS_FL + 0x10000, WS_FL + 0x20000
WS_STAMP = 0x4C0000
WS_SIZE = 0x560000
HROW = 1152
FOUR = 0x01010101 if opt['bytef'] else 4
SPIN = 400000
VSCALE = 64
P_XA, P_WQ, P_WK, P_WV, P_WO, P_XB, P_SRE, P_SIM = 4, 6, 8, 10, 12, 14, 16, 18
P_HRE, P_HIM, P_OUT, P_DBG, P_WS = 20, 22, 24, 26, 28
R_XA, R_WQ, R_W, R_WS, R_WO, R_XB, R_SRE, R_SIM, R_OUT, R_DBG = 32, 36, 40, 44, 48, 52, 56, 60, 64, 68
sW, sXCD, sJ, sTB, sHG, sTHP, sA = 72, 73, 74, 75, 76, 77, 78
sT0, sT1, sT2, sT3, sT4 = 80, 81, 82, 83, 84
sDRY = 85
sNON = 86
sIT, sINC, sFB, sSPIN = 88, 89, 90, 91
sX = 92
sST = 94
sBARN = 96
sRET = 90

def srd(r, p, size):
    e(f"s_mov_b32 s{r}, s{p}")
    e(f"s_and_b32 s{r+1}, s{p+1}, 0xffff")
    e(f"s_mov_b32 s{r+2}, {hex(size)}")
    e(f"s_mov_b32 s{r+3}, 0x20000")

LOW = [False]
vL = 1
def stamp(idx):
    if not opt['stamps']: return
    e(f"s_memrealtime {sr(sST,2)}")
    e(f"s_memtime {sr(sX,2)}")
    e("s_waitcnt lgkmcnt(0)")
    if LOW[0]: e("s_setprio 2")
    e(f"v_writelane_b32 v254, s{sST}, {idx}")
    e(f"v_writelane_b32 v255, s{sX}, {idx}")
    if LOW[0]: e("s_setprio 0")
def stamp_dump():
    if not opt['stamps']: return
    e(f"s_lshl_b32 s{sST}, s2, 3")
    e(f"s_add_u32 s{sST}, s{sST}, s{sW}")
    e(f"s_lshl_b32 s{sST}, s{sST}, 8")
    e(f"s_add_u32 s{sST}, s{sST}, {WS_STAMP}")
    e(f"v_lshlrev_b32 v253, 3, v{vL}")
    e("s_mov_b32 exec_hi, 0")
    e(f"buffer_store_dwordx2 v[254:255], v253, {sr(R_WS,4)}, s{sST} offen")

PADS = {}
def pad_begin(name): PADS[name] = len(L)
def isize(l):
    t = l.strip()
    if not t or t.startswith((';', '.')) or t.endswith(':'): return 0
    t = t.split(';')[0]
    mn = t.split()[0]
    if mn.startswith(('buffer_', 'global_', 'ds_', 'v_mfma', 'v_smfmac', 's_load', 's_mem')): return 8
    if mn.startswith('v_') and (mn.endswith('_e64') or mn in ('v_lshl_add_u32', 'v_bfe_u32', 'v_perm_b32', 'v_max3_f32', 'v_cvt_pk_bf16_f32', 'v_writelane_b32', 'v_mul_u32_u24', 'v_cmp_ne_u64')): return 8
    import re as _r
    for o in _r.findall(r'(?<![\w\[:])(-?0x[0-9a-f]+|-?\d+)(?![\w\]:])', (t.split(None, 1) + [''])[1]):
        v = int(o, 0)
        if not mn.startswith(('s_waitcnt', 's_nop', 's_sleep', 's_setprio')) and not -16 <= v <= 64: return 8
    return 4
def pad_end(name, ret):
    a = PADS[name]
    if not (opt['pads'] if name == "L_padq" else opt['padt']):
        L.insert(a, f"{name}_0:"); L.insert(a + 1, f"    s_cbranch_execz {ret}"); return
    body = L[a:]; del L[a:]
    n = 0; acc = 0
    L.append(f"{name}_0:"); L.append(f"    s_cbranch_execz {name}_1")
    for l in body:
        z = isize(l)
        prev = L[-1].strip()
        if acc + z > 56 and not prev.startswith(('s_mov_b32 m0', 's_add_u32 m0')):
            n += 1; L.append(f"{name}_{n}:"); L.append(f"    s_cbranch_execz {name}_{n+1}"); acc = 0
        L.append(l); acc += z
    n += 1
    L.append(f"{name}_{n}:"); L.append(f"    s_cbranch_execz {ret}")
def warm(name, ret):
    e("s_mov_b64 exec, 0")
    e(f"s_branch {name}_0")
    lab(ret)
    e("s_mov_b64 exec, -1")

def dma(voff, srdr, soff, ldsaddr_s, extra=""):
    e(f"s_mov_b32 m0, s{ldsaddr_s}")
    e("s_nop 0")
    e(f"buffer_load_dwordx4 v{voff}, {sr(srdr,4)}, s{soff} offen {extra}lds")
def dma_run(n, voff, srdr, soff, lds_s, dsrc, dlds, extra=""):
    for i in range(n):
        e(f"s_mov_b32 m0, s{lds_s}")
        if i < n - 1: e(f"s_add_u32 s{lds_s}, s{lds_s}, {dlds}")
        else: e("s_nop 0")
        e(f"buffer_load_dwordx4 v{voff}, {sr(srdr,4)}, s{soff} offen {extra}lds")
        if i < n - 1: e(f"s_add_u32 s{soff}, s{soff}, {dsrc}")

def poll(name, nloads, voff, dst, soffs, sleep=0):
    e(f"s_mov_b32 s{sSPIN}, {SPIN}")
    lab(name)
    for i in range(nloads):
        e(f"buffer_load_dwordx2 {vr(dst+2*i,2)}, v{voff}, {sr(R_WS,4)}, s{soffs[i]} offen sc1")
    e(f"s_sub_u32 s{sSPIN}, s{sSPIN}, 1")
    e(f"s_cmp_eq_u32 s{sSPIN}, 0")
    e(f"s_cbranch_scc1 {name}_done")
    e("s_waitcnt vmcnt(0)")
    e(f"v_cmp_ne_u64 vcc, {sr(sNON,2)}, {vr(dst,2)}")
    for i in range(1, nloads):
        e(f"v_cmp_ne_u64 {sr(sX,2)}, {sr(sNON,2)}, {vr(dst+2*i,2)}")
        e("s_nop 0")
        e(f"s_or_b64 vcc, vcc, {sr(sX,2)}")
    e("s_nop 0")
    e("s_cmp_eq_u64 vcc, 0")
    if sleep:
        e(f"s_cbranch_scc1 {name}_done")
        e(f"s_sleep {sleep}")
        e(f"s_branch {name}")
    else:
        e(f"s_cbranch_scc0 {name}")
    lab(name + "_done")
    e("s_waitcnt vmcnt(0)")

def lds_wait(name, off, value, tmp, sleep=0):
    e(f"s_mov_b32 s{sSPIN}, {SPIN*8}")
    e(f"v_mov_b32 v{tmp}, {MISC + off}")
    lab(name)
    e(f"ds_read_b32 v{tmp+1}, v{tmp}")
    e(f"s_sub_u32 s{sSPIN}, s{sSPIN}, 1")
    e(f"s_cmp_eq_u32 s{sSPIN}, 0")
    e(f"s_cbranch_scc1 {name}_done")
    e("s_waitcnt lgkmcnt(0)")
    e(f"v_readfirstlane_b32 s{sT4}, v{tmp+1}")
    e("s_nop 0")
    e(f"s_cmp_ge_u32 s{sT4}, {value}")
    if sleep:
        e(f"s_cbranch_scc1 {name}_done")
        e(f"s_sleep {sleep}")
        e(f"s_branch {name}")
    else:
        e(f"s_cbranch_scc0 {name}")
    lab(name + "_done")
    e("s_waitcnt lgkmcnt(0)")
def lds_add(off, tmp):
    e(f"v_mov_b32 v{tmp}, {MISC + off}")
    e(f"v_mov_b32 v{tmp+1}, 1")
    e("s_mov_b64 exec, 1")
    e(f"ds_add_u32 v{tmp}, v{tmp+1}")
    e("s_mov_b64 exec, -1")
def tag_from_lds(name, tmp):
    e(f"s_mov_b32 s{sSPIN}, {SPIN*8}")
    e(f"v_mov_b32 v{tmp}, {MISC+C_TAG}")
    lab(name)
    e(f"ds_read_b64 {vr(tmp+2,2)}, v{tmp}")
    e(f"s_sub_u32 s{sSPIN}, s{sSPIN}, 1")
    e(f"s_cmp_eq_u32 s{sSPIN}, 0")
    e(f"s_cbranch_scc1 {name}_done")
    e("s_waitcnt lgkmcnt(0)")
    e(f"v_readfirstlane_b32 s{sNON}, v{tmp+2}")
    e(f"v_readfirstlane_b32 s{sNON+1}, v{tmp+3}")
    e(f"s_cmp_lg_u32 s{sNON}, 0")
    e(f"s_cbranch_scc1 {name}_done")
    e(f"s_sleep {opt['fs']}")
    e(f"s_branch {name}")
    lab(name + "_done")
    e("s_waitcnt lgkmcnt(0)")

def signal(name, ctr_off, last, flag_soff_s, tmp, lo=None, plain_if=None):
    e(f"v_mov_b32 v{tmp}, {MISC + ctr_off}")
    e(f"v_mov_b32 v{tmp+1}, 1")
    e(f"s_mov_b64 exec, 1")
    e(f"ds_add_rtn_u32 v{tmp+1}, v{tmp}, v{tmp+1}")
    e(f"v_mov_b32 v{tmp+2}, s{sNON if lo is None else lo}")
    e(f"v_mov_b32 v{tmp+3}, s{sNON+1}")
    e("s_waitcnt lgkmcnt(0)")
    e(f"v_readfirstlane_b32 s{sT4}, v{tmp+1}")
    e("s_nop 0")
    e(f"s_cmp_eq_u32 s{sT4}, {last}")
    e(f"s_cbranch_scc0 {name}_nf")
    if plain_if is not None:
        e(f"s_cmp_eq_u32 s{plain_if}, 0")
        e(f"s_cbranch_scc1 {name}_wt")
        e(f"buffer_store_dwordx2 {vr(tmp+2,2)}, off, {sr(R_WS,4)}, s{flag_soff_s}")
        if opt['omode'] < 2: e(f"s_branch {name}_nf")
        lab(name + "_wt")
    e(f"buffer_store_dwordx2 {vr(tmp+2,2)}, off, {sr(R_WS,4)}, s{flag_soff_s} sc1")
    lab(name + "_nf")
    e("s_mov_b64 exec, -1")

hdr = open(f"cdna_kernels/{NAME}.s.ref").read().split("; Override launch")[0]
L.append(hdr.rstrip())
L.append(f"; @launch grid=(256,1,1) block=(512,1,1) lds={LDS_BYTES}")
L.append('.amdgcn_target "amdgcn-amd-amdhsa--gfx950"')
L.append(DOC)
L.append(".text")
L.append(f".globl {NAME}_kernel")
L.append(".p2align 8")
L.append(f".type {NAME}_kernel,@function")
lab(f"{NAME}_kernel")
e("s_cmp_ge_u32 s2, 256")
e("s_cbranch_scc1 L_end")
e("s_load_dwordx16 s[4:19], s[0:1], 0")
e("s_load_dwordx8 s[20:27], s[0:1], 64")
e("s_load_dwordx2 s[28:29], s[0:1], 96")
e(f"s_memrealtime {sr(sNON,2)}")
if opt['endat'] or opt['baat']:
    e("s_waitcnt lgkmcnt(0)")
    e(f"s_mov_b32 s3, s{sNON}")
if opt['dxcc'] >= 0:
    e(f"s_getreg_b32 s{sT0}, hwreg(HW_REG_XCC_ID, 0, 4)")
    e(f"s_cmp_eq_u32 s{sT0}, {opt['dxcc']}") if opt['dxcc'] < 8 else e(f"s_cmp_eq_u32 s{sT0}, s{sT0}")
    e("s_cbranch_scc0 L_nodelay")
    e("s_waitcnt lgkmcnt(0)")
    lab("L_delay")
    e(f"s_memrealtime {sr(sX,2)}")
    e("s_waitcnt lgkmcnt(0)")
    e(f"s_sub_u32 s{sX}, s{sX}, s{sNON}")
    e(f"s_cmp_lt_u32 s{sX}, {opt['dus']}")
    e("s_cbranch_scc1 L_delay")
    lab("L_nodelay")
e("v_lshrrev_b32 v2, 6, v0")
e(f"v_and_b32 v{vL}, 63, v0")
e(f"v_readfirstlane_b32 s{sW}, v2")
e(f"s_and_b32 s{sXCD}, s2, 7")
e(f"s_lshr_b32 s{sJ}, s2, 3")
e(f"s_and_b32 s{sT0}, s{sJ}, 3")
e(f"s_lshl_b32 s{sTB}, s{sXCD}, 2")
e(f"s_add_u32 s{sTB}, s{sTB}, s{sT0}")
e(f"s_lshr_b32 s{sHG}, s{sJ}, 2")
e(f"s_lshr_b32 s{sTHP}, s{sHG}, 1")
e(f"s_and_b32 s{sA}, s{sW}, 3")
e(f"v_lshlrev_b32 v2, 4, v{vL}          ; v2 = lane*16")
cm("LDS init while the kernel arguments load: ones / zeros window (even 16-B chunks 2^64, odd chunks 0), counters")
ONE = (127 + VSCALE) << 7
e("v_lshrrev_b32 v5, 3, v0")
e("v_cmp_ne_u32 vcc, 8, v5")
e("v_and_b32 v4, 1, v0")
e("v_add_u32 v4, -1, v4")
e(f"v_and_b32 v4, {hex(ONE << 16 | ONE)}, v4")
e("v_cndmask_b32 v4, 0, v4, vcc")
e(f"v_lshlrev_b32 v3, 4, v0")
e("v_mov_b32 v5, v4")
e("v_mov_b32 v6, v4")
e("v_mov_b32 v7, v4")
e(f"v_add_u32 v3, {ONES_OFF}, v3")
e("ds_write_b128 v3, v[4:7]")
e(f"s_mov_b32 s{R_XA+2}, 0x200000")
e(f"s_mov_b32 s{R_XA+3}, 0x20000")
def aux_first():
    if opt['prioX']: e(f"s_setprio {opt['prioX']}")
    cm("critical loads: projection weight (wk for even hg, wv for odd), x rows 16*blk + 4a + i")
    e(f"s_lshl_b32 s{sT0}, s{sTHP}, 4")
    e(f"s_lshl_b32 s{sT1}, s{sA}, 2")
    e(f"s_add_u32 s{sT0}, s{sT0}, s{sT1}")
    e(f"s_mul_i32 s{sT1}, s{sT0}, {XROW}")
    e(f"s_add_u32 s{sT1}, s{sT1}, {X_OFF}")
    e(f"s_lshl_b32 s{sT2}, s{sTB}, 6")
    e(f"s_add_u32 s{sT2}, s{sT2}, s{sT0}")
    e(f"s_lshl_b32 s{sT2}, s{sT2}, 10")
    e(f"s_lshl_b32 s{sT3}, s{sA}, 12")
    e(f"s_mov_b32 s{R_W+2}, 16384")
    e(f"s_mov_b32 s{R_W+3}, 0x20000")
    e(f"s_mov_b32 m0, s{sT3}")
    e(f"s_bitcmp1_b32 s{sHG}, 0")
    e("s_waitcnt lgkmcnt(0)")
    e(f"s_cselect_b32 s{R_W}, s{P_WV}, s{P_WK}")
    e(f"s_cselect_b32 s{R_W+1}, s{P_WV+1}, s{P_WK+1}")
    e(f"s_and_b32 s{R_W+1}, s{R_W+1}, 0xffff")
    e(f"s_mov_b32 s{R_XA}, s{P_XA}")
    e(f"s_and_b32 s{R_XA+1}, s{P_XA+1}, 0xffff")
    srd(R_DBG, P_DBG, 256)
    cm("workgroup 0, aux wave 3 publishes this launch's hand-off tag")
    e(f"s_or_b32 s{sNON}, s{sNON}, 16")
    e(f"s_and_b32 s{sNON}, s{sNON}, -16")
    e(f"s_lshl_b32 s{sT0}, s2, 3")
    e(f"s_add_u32 s{sT0}, s{sT0}, s{sW}")
    e(f"s_cmp_eq_u32 s{sT0}, 7")
    e("s_cbranch_scc0 L_notag")
    e(f"v_mov_b32 v4, s{sNON}")
    e(f"v_mov_b32 v5, s{sNON+1}")
    e("s_mov_b64 exec, 1")
    e(f"buffer_store_dwordx2 v[4:5], off, {sr(R_DBG,4)}, 0 sc1")
    e("s_mov_b64 exec, -1")
    lab("L_notag")
    NT = lambda b: "nt " if opt['ntc'] >> b & 1 else ""
    for i in range(4): e(f"buffer_load_dwordx4 v2, {sr(R_W,4)}, s{sT3} offen offset:{1024*i} {NT(1)}lds")
    dma_run(4, 2, R_XA, sT2, sT1, 1024, XROW, NT(0))
    stamp(0)
    srd(R_WS, P_WS, WS_SIZE)
    if opt['dbgt']:
        e(f"s_cmp_lt_u32 s2, 8")
        e("s_cbranch_scc0 L_nodbg0")
        e(f"s_cmp_eq_u32 s{sW}, 6")
        e("s_cbranch_scc0 L_nodbg0")
        e(f"v_mov_b32 v4, s{sNON}")
        e(f"s_lshl_b32 s{sT0}, s2, 2")
        e(f"s_add_u32 s{sT0}, s{sT0}, 8")
        e("s_mov_b64 exec, 1")
        e(f"buffer_store_dword v4, off, {sr(R_DBG,4)}, s{sT0}")
        e("s_mov_b64 exec, -1")
        lab("L_nodbg0")
    e("s_barrier                             ; B1")
if opt['first']:
    cm("the aux waves' first loads are the longest dependency chain: their code directly follows the entry")
    e(f"s_cmp_lt_u32 s{sW}, 4")
    e("s_cbranch_scc1 L_att0")
    aux_first()
    e("s_branch L_aux")
    lab("L_att0")
else:
    e(f"s_cmp_ge_u32 s{sW}, 4")
    e("s_cbranch_scc1 L_aux")

cm("wq slice (8 rows x 128 B per load, 16-B chunks swizzled by row bit 1); quarter tb&3 first: distinct among its 4 sharers")
e(f"v_lshrrev_b32 v3, 3, v{vL}          ; r")
e(f"v_and_b32 v4, 7, v{vL}")
e(f"v_bfe_u32 v5, v{vL}, 4, 1           ; (r>>1)&1")
e("v_lshlrev_b32 v5, 2, v5")
e("v_xor_b32 v4, v4, v5")
e("v_lshlrev_b32 v4, 4, v4")
e("v_lshl_add_u32 v13, v3, 10, v4")
e(f"s_mov_b32 s{R_WQ+2}, 0x80000")
e(f"s_mov_b32 s{R_WQ+3}, 0x20000")
def wq_addr(q):
    e(f"s_add_u32 s{sT0}, s{sJ}, {q}")
    e(f"s_and_b32 s{sT0}, s{sT0}, 3")
    e(f"s_lshl_b32 s{sT0}, s{sT0}, 2")
    e(f"s_add_u32 s{sT0}, s{sT0}, s{sW}")
    e(f"s_lshl_b32 s{sT2}, s{sT0}, 15")
    e(f"s_lshl_b32 s{sT1}, s{sHG}, 7")
    e(f"s_add_u32 s{sT2}, s{sT2}, s{sT1}")
    e(f"s_lshl_b32 s{sT1}, s{sT0}, 12")
    e(f"s_add_u32 s{sT1}, s{sT1}, {WQ_OFF}")
wq_addr(0)
e("s_waitcnt lgkmcnt(0)")
e(f"s_mov_b32 s{R_WQ}, s{P_WQ}")
e(f"s_and_b32 s{R_WQ+1}, s{P_WQ+1}, 0xffff")
e(f"s_mov_b32 s{R_XA}, s{P_XA}")
e(f"s_and_b32 s{R_XA+1}, s{P_XA+1}, 0xffff")
stamp(0)
e("s_barrier")
NT = lambda b: "nt " if opt['ntc'] >> b & 1 else ""
dma_run(4, 13, R_WQ, sT2, sT1, 8192, 1024, NT(2))
cm("the 48 rows of the x tile the aux waves do not load: blocks blk+1, blk+2, blk+3 (mod 4), 4 rows per wave each")
def x_addr(d):
    e(f"s_add_u32 s{sT0}, s{sTHP}, {d}")
    e(f"s_and_b32 s{sT0}, s{sT0}, 3")
    e(f"s_lshl_b32 s{sT0}, s{sT0}, 2")
    e(f"s_add_u32 s{sT0}, s{sT0}, s{sW}")
    e(f"s_lshl_b32 s{sT0}, s{sT0}, 2          ; first row")
    e(f"s_mul_i32 s{sT1}, s{sT0}, {XROW}")
    e(f"s_add_u32 s{sT1}, s{sT1}, {X_OFF}")
    e(f"s_lshl_b32 s{sT2}, s{sTB}, 6")
    e(f"s_add_u32 s{sT2}, s{sT2}, s{sT0}")
    e(f"s_lshl_b32 s{sT2}, s{sT2}, 10")
def hold(name, ctr, val):
    lds_wait(name, ctr, val, 8, sleep=opt['fs'])
seq = [('x', 1), ('x', 2), ('x', 3), ('q', 1), ('q', 2), ('q', 3)]
for n, (kind, d) in enumerate(seq):
    (x_addr if kind == 'x' else wq_addr)(d)
    if opt['win']:
        W = opt['win'] if n < 2 else opt['win2']
        if 4*(n + 2) > W: e(f"s_waitcnt vmcnt({W - 4})")
    else:
        if n == opt['h1']: hold("L_hold1", C_CR, FOUR)
        if n == opt['h2']: hold("L_hold2", C_KV, 1)
    if kind == 'x': dma_run(4, 2, R_XA, sT2, sT1, 1024, XROW, NT(3))
    else: dma_run(4, 13, R_WQ, sT2, sT1, 8192, 1024, NT(4))
stamp(7)
srd(R_WS, P_WS, WS_SIZE)
SA, SB, OA, OB, CA, CB = 16, 32, 48, 64, 80, 96
QA, QB, K0, K1, V0, V1 = 112, 116, 120, 124, 128, 136
vIDX, vK, vV = 144, 145, 146
vINC, vV0, vSAME = 147, 150, 151
vXA, vWA = 148, 149
FB = 152
cm("Q-projection addresses")
e(f"s_and_b32 s{sT0}, s{sW}, 1            ; th")
e(f"s_lshr_b32 s{sT1}, s{sW}, 1           ; hp")
e(f"v_and_b32 v3, 31, v{vL}")
e(f"s_lshl_b32 s{sT2}, s{sT0}, 5")
e(f"v_add_u32 v3, s{sT2}, v3")
e(f"v_mul_u32_u24 v3, {XROW}, v3")
e(f"v_lshrrev_b32 v4, 5, v{vL}           ; h")
e(f"v_lshl_add_u32 v14, v4, 4, v3")
e(f"v_bfe_u32 v5, v{vL}, 2, 2            ; r")
e("v_lshl_add_u32 v6, v4, 3, v5          ; 8h + r")
e("v_lshlrev_b32 v6, 7, v6")
e(f"v_bfe_u32 v7, v{vL}, 4, 1            ; g")
e(f"v_and_b32 v8, 1, v{vL}")
e("v_lshl_add_u32 v7, v7, 1, v8          ; 2g + (cc&1)")
e(f"s_lshl_b32 s{sT2}, s{sT1}, 2")
e(f"v_add_u32 v7, s{sT2}, v7")
e(f"v_bfe_u32 v8, v{vL}, 3, 1            ; (r>>1)&1")
e("v_lshlrev_b32 v8, 2, v8")
e("v_xor_b32 v7, v7, v8")
e("v_lshl_add_u32 v6, v7, 4, v6")
e(f"v_bfe_u32 v8, v{vL}, 1, 1")
e("v_lshl_add_u32 v6, v8, 3, v6")
e(f"v_add_u32 v{vWA}, {WQ_OFF}, v6")
e(f"v_add_u32 v{vXA}, {X_OFF}, v14")
cm("attention LDS addresses; V: rows 0..15 -> tile data, lanes 16,20 -> 2^64, other lanes -> 0")
e(f"v_mov_b32 v{vIDX}, 0xdddddddd")
e(f"v_bfe_u32 v5, v{vL}, 4, 1")
e(f"v_xor_b32 v5, 1, v5                   ; 1 for V rows, 0 for the constant lanes")
e(f"v_lshlrev_b32 v{vINC}, 13, v5")
e(f"v_and_b32 v8, 15, v{vL}")
e("v_lshlrev_b32 v9, 8, v4")
e("v_lshl_add_u32 v8, v8, 4, v9")
e(f"v_and_b32 v9, 31, v{vL}")
e("v_add_u32 v10, -20, v9")
e("v_cmp_gt_u32 vcc, 8, v10")
e("v_and_b32 v9, 11, v9")
e("v_min_u32 v9, 1, v9")
e("v_cndmask_b32 v10, 0, 64, vcc")
e(f"v_cmp_eq_u32 vcc, 1, v5")
e("v_lshl_add_u32 v9, v9, 4, v10")
e(f"v_add_u32 v9, {ONES_OFF - 1024}, v9")
e(f"v_cndmask_b32 v{vV0}, v9, v8, vcc")
cm("O fragment destination and flag slot")
sOD, sOF = 97, 98
e(f"s_and_b32 s{sT0}, s{sW}, 1")
e(f"s_lshl_b32 s{sT1}, s{sTB}, 1")
e(f"s_add_u32 s{sT0}, s{sT0}, s{sT1}")
e(f"s_lshl_b32 s{sT0}, s{sT0}, 5          ; (tb*2+th)*32")
e(f"s_lshl_b32 s{sT1}, s{sHG}, 2")
e(f"s_add_u32 s{sT0}, s{sT0}, s{sT1}")
e(f"s_and_b32 s{sT1}, s{sW}, 2")
e(f"s_add_u32 s{sT0}, s{sT0}, s{sT1}")
e(f"s_lshl_b32 s{sT0}, s{sT0}, 10")
e(f"s_add_u32 s{sOD}, s{sT0}, {WS_O}")
e(f"s_lshl_b32 s{sT1}, s{sTB}, 3")
e(f"s_add_u32 s{sT1}, s{sT1}, s{sHG}")
e(f"s_lshl_b32 s{sT1}, s{sT1}, 2")
e(f"s_add_u32 s{sT1}, s{sT1}, s{sW}")
e(f"s_lshl_b32 s{sT1}, s{sT1}, 7")
e(f"s_add_u32 s{sOF}, s{sT1}, {FL_O}")
e(f"s_mov_b32 s{sFB}, 0")
e(f"s_mov_b32 s{sBARN}, 0xa")
e(f"v_mov_b32 v{vSAME}, {MISC}")
sPF, sOL, sOS, vPO = 100, 101, 79, 184
e(f"s_lshl_b32 s{sT0}, s{sTB}, 3")
e(f"s_lshl_b32 s{sT1}, s{sW}, 1")
e(f"s_add_u32 s{sT0}, s{sT0}, s{sT1}")
e(f"s_lshl_b32 s{sT0}, s{sT0}, 9")
e(f"s_add_u32 s{sPF}, s{sT0}, {FL_O}")
e(f"s_lshl_b32 s{sT2}, s{sTB}, 16")
e(f"s_lshl_b32 s{sOL}, s{sW}, 13")
e(f"s_add_u32 s{sT2}, s{sT2}, s{sOL}")
e(f"s_add_u32 s{sOS}, s{sT2}, {WS_O}")
e(f"v_and_b32 v8, 7, v{vL}")
e(f"v_lshlrev_b32 v{vPO}, 7, v8")
for i in range(16): e(f"v_mov_b32 v{OA+i}, 0")
for i in range(16): e(f"v_mov_b32 v{OB+i}, 0")
for i in range(4): e(f"v_mov_b32 v{V1+4+i}, 0")
if opt['qloop']:
    for i in range(16): e(f"v_mov_b32 v{SA+i}, 0")
e(f"v_mov_b32 v{vK}, v2")
e(f"v_mov_b32 v{vV}, v{vV0}")
if opt['dftpf']:
    cm("sequence-DFT rows the aux waves read later (pulled towards L2 from inside the loop):")
    cm("wave 0: cos rows t1s + 32l; wave 1: sin rows 2048 - that; waves 2, 3: cos / sin rows 64 (l & 31)")
    R_DP, vDP = R_XA, 187
    e(f"s_bitcmp1_b32 s{sW}, 0")
    e(f"s_cselect_b64 {sr(R_DP,2)}, {sr(P_SIM,2)}, {sr(P_SRE,2)}")
    e(f"s_and_b32 s{R_DP+1}, s{R_DP+1}, 0xffff")
    e(f"s_mov_b32 s{R_DP+2}, 0x800000")
    e(f"v_lshlrev_b32 v8, 5, v{vL}")
    e(f"v_add_u32 v8, s{sTB}, v8               ; t1s = tb")
    e("v_sub_u32 v9, 0x800, v8")
    e("v_and_b32 v9, 0x7ff, v9")
    e(f"v_lshlrev_b32 v10, 6, v{vL}")
    e("v_and_b32 v10, 0x7ff, v10")
    e(f"s_cmp_eq_u32 s{sW}, 1")
    e("s_cselect_b64 vcc, -1, 0")
    e("v_cndmask_b32 v8, v8, v9, vcc")
    e(f"s_cmp_ge_u32 s{sW}, 2")
    e("s_cselect_b64 vcc, -1, 0")
    e("v_cndmask_b32 v8, v8, v10, vcc")
    e(f"v_lshlrev_b32 v{vDP}, 12, v8")
if opt['preo']:
    cm("output lines this workgroup writes at the end (touched from inside the loop, values unused):")
    cm("waves 0, 2: rows 64tb + l, columns of hg; waves 1, 3: rows tb + 32l (mirrored for hg >= 4), spectral columns of hg")
    vOP, sOP = 186, 30
    srd(R_OUT, P_OUT, 4194304)
    e(f"v_lshlrev_b32 v8, 5, v{vL}")
    e(f"v_add_u32 v8, s{sTB}, v8")
    e("v_sub_u32 v9, 0x800, v8")
    e("v_and_b32 v9, 0x7ff, v9")
    e(f"s_cmp_ge_u32 s{sHG}, 4")
    e("s_cselect_b64 vcc, -1, 0")
    e("v_cndmask_b32 v8, v8, v9, vcc")
    e(f"s_lshl_b32 s{sT0}, s{sTB}, 6")
    e(f"v_add_u32 v9, s{sT0}, v{vL}")
    e(f"s_bitcmp1_b32 s{sW}, 0")
    e("s_cselect_b64 vcc, -1, 0")
    e(f"s_cselect_b32 s{sOP}, 0x400, 0")
    e("v_cndmask_b32 v8, v9, v8, vcc")
    e(f"v_lshlrev_b32 v{vOP}, 11, v8")
    e(f"s_lshl_b32 s{sT0}, s{sHG}, 7")
    e(f"s_add_u32 s{sOP}, s{sOP}, s{sT0}")
e(f"s_mov_b32 s{sT0}, {hex(f2u(0.25*1.4426950408889634))}")
warm("L_padq", "L_padq_ret")
e("s_waitcnt vmcnt(0)")
stamp(8)
e("s_barrier")
stamp(10)
pad_begin("L_padq")
def qload(ks):
    b = FB + 8*(ks % 4)
    e(f"ds_read_b64_tr_b16 {vr(b,2)}, v{vWA} offset:{ks*2048}")
    e(f"ds_read_b64_tr_b16 {vr(b+2,2)}, v{vWA} offset:{ks*2048+512}")
    e(f"ds_read_b128 {vr(b+4,4)}, v{vXA} offset:{ks*32}")
for ks in range(3): qload(ks)
if opt['qloop']:
    cm("4 trips of 8 k-steps; the last trip's look-ahead reads land in unused registers")
    e(f"s_mov_b32 s{sIT}, 0")
    lab("L_qloop")
    for ks in range(8):
        b = FB + 8*(ks % 4)
        qload(ks + 3); e("s_waitcnt lgkmcnt(9)")
        e(f"v_mfma_f32_32x32x16_bf16 {vr(SA,16)}, {vr(b,4)}, {vr(b+4,4)}, {vr(SA,16)}")
        if ks == 7:
            e(f"v_add_u32 v{vWA}, 0x4000, v{vWA}")
            e(f"v_add_u32 v{vXA}, 0x100, v{vXA}")
        if ks == 6:
            e(f"s_add_u32 s{sIT}, s{sIT}, 1")
            e(f"s_cmp_lt_u32 s{sIT}, 4")
    e("s_cbranch_scc1 L_qloop")
    e("s_waitcnt lgkmcnt(0)")
else:
    for ks in range(32):
        b = FB + 8*(ks % 4)
        if ks + 3 < 32:
            qload(ks + 3); e("s_waitcnt lgkmcnt(9)")
        else:
            e(f"s_waitcnt lgkmcnt({3*(31-ks)})")
        c = "0" if ks == 0 else vr(SA, 16)
        e(f"v_mfma_f32_32x32x16_bf16 {vr(SA,16)}, {vr(b,4)}, {vr(b+4,4)}, {c}")
stamp(9)
nop(8 if opt['qloop'] else 12)
for i in range(16): e(f"v_mul_f32 v{SA+i}, s{sT0}, v{SA+i}")
for i in range(8): e(f"v_cvt_pk_bf16_f32 v{QA+i}, v{SA+2*i}, v{SA+2*i+1}")
if opt['prioA']: e(f"s_setprio {opt['prioA']}")
stamp(2)
if opt['attpf']:
    cm("after BA: pull this workgroup's 1/32 share of what its XCD reads later towards L2 (one dword per 128-B line)")
    cm("wave 0: x_B rows 64j + 8xcd + (0..7); waves 1, 2: hidden cos / sin rows 8j..8j+7; wave 3: wo rows 16j..16j+15")
    R_PF = R_WQ
    e(f"s_cmp_eq_u32 s{sW}, 1")
    e(f"s_cselect_b64 {sr(R_PF,2)}, {sr(P_HRE,2)}, {sr(P_HIM,2)}")
    e(f"s_lshl_b32 s{sT2}, s{sJ}, 13")
    e(f"s_cmp_eq_u32 s{sW}, 3")
    e(f"s_cselect_b64 {sr(R_PF,2)}, {sr(P_WO,2)}, {sr(R_PF,2)}")
    e(f"s_cselect_b32 s{sT3}, s{sT2}, 0")
    e(f"s_add_u32 s{sT2}, s{sT2}, s{sT3}")
    e(f"s_lshl_b32 s{sT3}, s{sJ}, 16")
    e(f"s_lshl_b32 s{sT1}, s{sXCD}, 13")
    e(f"s_add_u32 s{sT3}, s{sT3}, s{sT1}")
    e(f"s_cmp_eq_u32 s{sW}, 0")
    e(f"s_cselect_b64 {sr(R_PF,2)}, {sr(P_XB,2)}, {sr(R_PF,2)}")
    e(f"s_cselect_b32 s{sT2}, s{sT3}, s{sT2}")
    e(f"s_cselect_b32 s{R_PF+2}, 0x200000, s{R_PF+2}")
    e(f"s_and_b32 s{R_PF+1}, s{R_PF+1}, 0xffff")
    e(f"s_add_u32 s{sT3}, s{sT2}, 8192")
    e(f"v_lshlrev_b32 v6, 7, v{vL}")
if opt['baat']:
    lab("L_baat")
    e(f"s_memrealtime {sr(sX,2)}")
    e("s_waitcnt lgkmcnt(0)")
    e(f"s_sub_u32 s{sX}, s{sX}, s3")
    e(f"s_cmp_lt_u32 s{sX}, {opt['baat']}")
    e("s_cbranch_scc1 L_baat")
e("s_barrier")
stamp(3)
PFLOAD = True
MT = opt['mt']
cm(f"stand-in for the row max: max over the first {MT} key tile(s) (checked after the loop; fallback = true max)")
e(f"ds_read_b128 {vr(K0,4)}, v{vK}")
e(f"ds_read_b128 {vr(K1,4)}, v{vK} offset:2048")
KX = FB
for t in range(2, MT): e(f"ds_read_b128 {vr(KX+4*(t-2),4)}, v{vK} offset:{2048*t}")
e(f"ds_read_b128 {vr(V0,4)}, v{vV} offset:1024")
e(f"ds_read_b128 {vr(V0+4,4)}, v{vV} offset:1536")
def max16(dst, s, acc=None):
    if acc is None:
        e(f"v_max3_f32 v{dst}, v{s}, v{s+1}, v{s+2}"); i = 3
        while i + 1 < 16:
            e(f"v_max3_f32 v{dst}, v{dst}, v{s+i}, v{s+i+1}"); i += 2
        e(f"v_max_f32 v{dst}, v{dst}, v{s+15}")
    else:
        for i in range(0, 16, 2): e(f"v_max3_f32 v{dst}, v{dst}, v{s+i}, v{s+i+1}")
nrd = 4 + max(0, MT - 2)
e(f"s_waitcnt lgkmcnt({nrd - 1})")
e(f"v_mfma_f32_32x32x16_bf16 {vr(SA,16)}, {vr(K0,4)}, {vr(QA,4)}, 0")
e(f"v_mfma_f32_32x32x16_bf16 {vr(SB,16)}, {vr(K0,4)}, {vr(QB,4)}, 0")
if MT == 1:
    nop(11)
    max16(4, SA); max16(5, SB)
else:
    kreg = [K0, K1] + [KX + 4*t for t in range(2)]
    bufs = [(SA, SB), (CA, CB)]
    e(f"s_waitcnt lgkmcnt({nrd - 2})")
    e(f"v_mfma_f32_32x32x16_bf16 {vr(CA,16)}, {vr(K1,4)}, {vr(QA,4)}, 0")
    e(f"v_mfma_f32_32x32x16_bf16 {vr(CB,16)}, {vr(K1,4)}, {vr(QB,4)}, 0")
    e("s_waitcnt lgkmcnt(2)")
    nop(7)
    for t in range(MT):
        a, b = bufs[t % 2]
        max16(4, a, None if t == 0 else 1)
        if t + 2 < MT: e(f"v_mfma_f32_32x32x16_bf16 {vr(a,16)}, {vr(kreg[t+2],4)}, {vr(QA,4)}, 0")
        max16(5, b, None if t == 0 else 1)
        if t + 2 < MT: e(f"v_mfma_f32_32x32x16_bf16 {vr(b,16)}, {vr(kreg[t+2],4)}, {vr(QB,4)}, 0")
lab("L_setmax")
cm(f"v4 / v5 = per-lane max for tiles A / B; combine the two half-waves, C = -(max + {opt['shift']})")
e("v_mov_b32 v6, v4")
e("v_mov_b32 v7, v5")
e(f"s_mov_b32 s{sIT}, 0")
e("s_nop 0")
e("v_permlane32_swap_b32 v4, v6")
e("v_permlane32_swap_b32 v5, v7")
e("v_max_f32 v4, v4, v6")
e("v_max_f32 v5, v5, v7")
for i in range(16): e(f"v_sub_f32 v{CA+i}, {hex(f2u(-float(opt['shift'])))}, v4")
e(f"v_sub_f32 v{CB}, {hex(f2u(-float(opt['shift'])))}, v5")
e("s_waitcnt lgkmcnt(0)")
e(f"v_mfma_f32_32x32x16_bf16 {vr(SA,16)}, {vr(K0,4)}, {vr(QA,4)}, {vr(CA,16)}")
for i in range(1, 16): e(f"v_mov_b32 v{CB+i}, v{CB}")
for i in range(8): e(f"v_mov_b32 v{SB+8+i}, 0")
def SM(o, a, b): e(f"v_smfmac_f32_32x32x32_bf16 {vr(o,16)}, {vr(a,4)}, {vr(b,8)}, v{vIDX}")
def QK(d, k, q, c): e(f"v_mfma_f32_32x32x16_bf16 {vr(d,16)}, {vr(k,4)}, {vr(q,4)}, {vr(c,16)}")
def EX(s, a, b):
    for i in range(a, b): e(f"v_exp_f32 v{s+i}, v{s+i}")
pad_end("L_padq", "L_padq_ret")
stamp(13)
L.append(".p2align 6")
lab("L_att_loop")
for u in range(4):
    kc, kn = (K0, K1) if u % 2 == 0 else (K1, K0)
    vc, vp = (V0, V1) if u % 2 == 0 else (V1, V0)
    voffs = ((u + 1) % 4) * 2048 + 1024
    koffs = ((u + 2) % 4) * 2048
    p0, p1, p2 = (4, 7, 10) if opt['cluster'] else (2, 5, 10)
    EX(SA, 0, p0)
    SM(OB, vp + 4, SB + 8)
    e(f"s_waitcnt lgkmcnt({2 if u == 1 and opt['csync'] else 1})")
    EX(SA, p0, p1)
    QK(SB, kc, QB, CB)
    e(f"ds_read_b128 {vr(vp,4)}, v{vV} offset:{voffs}")
    EX(SA, p1, p2)
    SM(OA, vc, SA)
    e(f"ds_read_b128 {vr(vp+4,4)}, v{vV} offset:{voffs+512}")
    EX(SA, p2, 16)
    EX(SB, 0, p0)
    SM(OA, vc + 4, SA + 8)
    e("s_waitcnt lgkmcnt(2)")
    if u == 1:
        pass
    EX(SB, p0, p1)
    QK(SA, kn, QA, CA)
    e(f"ds_read_b128 {vr(kc,4)}, v{vK} offset:{koffs}")
    EX(SB, p1, p2)
    SM(OB, vc, SB)
    if u == 1:
        e(f"s_bitcmp1_b32 s{sBARN}, s{sIT}")
        e("s_cbranch_scc1 L_sync")
        lab("L_nobar")
        e(f"v_add_u32 v{vK}, 0x2000, v{vK}")
    if u == 2:
        e(f"v_add_u32 v{vV}, v{vINC}, v{vV}")
    if u == 3:
        e(f"s_add_u32 s{sIT}, s{sIT}, 1")
        e(f"s_cmp_lt_u32 s{sIT}, 16")
    if u == 0 and opt['csync']: e(f"ds_read_b64 v[4:5], v{vSAME} offset:{C_G1}")
    elif u == 0 and opt['cluster']: e("s_nop 0")
    EX(SB, p2, 16)
e("s_cbranch_scc1 L_att_loop")
if opt['lwarm']: e("s_cbranch_execz L_lwarm_ret           ; only the instruction-cache warm-up pass has EXEC = 0")
stamp(18)
pad_begin("L_padt")
e(f"s_mov_b32 s{sT0}, {hex(f2u(2.0**100) if not opt['force_fb'] else f2u(2.0**-30))}")
e(f"v_rcp_f32 v4, v{OA+8}")
SM(OB, V1 + 4, SB + 8)
e(f"ds_read_b32 v7, v{vSAME} offset:{C_SAME}")
e(f"ds_read_b64 v[8:9], v{vSAME} offset:{C_TAG}")
cm("run-time check of the stand-in: l*2^64 must be finite and <= 2^100, else redo with the true row max")
e(f"v_cmp_nle_f32_e64 vcc, v{OA+8}, s{sT0}")
for i in range(8): e(f"v_mul_f32 v{SA+i}, v4, v{OA+i}")
for i in range(4): e(f"v_cvt_pk_bf16_f32 v{SA+i}, v{SA+2*i}, v{SA+2*i+1}")
sSAME = 99
e("s_waitcnt lgkmcnt(0)")
e(f"v_readfirstlane_b32 s{sSAME}, v7")
e(f"v_rcp_f32 v5, v{OB+8}")
e(f"v_cmp_nle_f32_e64 {sr(sX,2)}, v{OB+8}, s{sT0}")
cm("plain stores only when every workgroup of this token block reported the same XCD; else write-through")
e(f"s_cmp_eq_u32 s{sSAME}, 0")
e("s_cbranch_scc1 L_ostA_wt")
OM = " sc1" if opt['omode'] >= 2 else ""
e(f"buffer_store_dwordx4 {vr(SA,4)}, v2, {sr(R_WS,4)}, s{sOD} offen{OM}")
lab("L_ostA_done")
for i in range(8): e(f"v_mul_f32 v{SB+i}, v5, v{OB+i}")
e(f"s_or_b64 vcc, vcc, {sr(sX,2)}")
for i in range(4): e(f"v_cvt_pk_bf16_f32 v{SA+4+i}, v{SB+2*i}, v{SB+2*i+1}")
e("s_cmp_eq_u64 vcc, 0")
e("s_cbranch_scc0 L_fallback")
lab("L_att_done")
e(f"s_cmp_eq_u32 s{sSAME}, 0")
e("s_cbranch_scc1 L_ost_wt")
e(f"buffer_store_dwordx4 {vr(SA+4,4)}, v2, {sr(R_WS,4)}, s{sOD} offen offset:1024{OM}")
stamp(6)
e(f"v_readfirstlane_b32 s{sNON}, v8")
e(f"v_readfirstlane_b32 s{sNON+1}, v9")
e("s_mov_b64 exec, 1")
e("s_waitcnt vmcnt(0)")
e(f"buffer_store_dwordx2 v[8:9], off, {sr(R_WS,4)}, s{sOF}")
if opt['omode'] == 3: e(f"buffer_store_dwordx2 v[8:9], off, {sr(R_WS,4)}, s{sOF} sc1")
lab("L_ost_done")
e("s_mov_b64 exec, -1")
stamp(5)
e("s_barrier")
stamp(4)
cm("gather the O tile of this token block: wave w takes producers 2w, 2w+1, in four steps of two heads")
poll("L_pollO", 1, vPO, 10, [sPF])
stamp(11)
for st in range(4):
    for th in range(2):
        e(f"s_add_u32 m0, s{sOL}, {2048*st + 32768*th}")
        e(f"s_add_u32 s{sT1}, s{sOS}, {2048*st + 32768*th}")
        for i in range(2): e(f"buffer_load_dwordx4 v2, {sr(R_WS,4)}, s{sT1} offen offset:{1024*i} sc1 lds")
pad_end("L_padt", "L_pado_0")
for st in range(4):
    e(f"s_waitcnt vmcnt({12 - 4*st})")
    if st == 0: stamp(12)
    e(f"s_barrier                             ; B8.{st}: heads 8w + {2*st}, {2*st+1} of every wave landed")
stamp_dump()
e("s_endpgm")
lab("L_ostA_wt")
e(f"buffer_store_dwordx4 {vr(SA,4)}, v2, {sr(R_WS,4)}, s{sOD} offen sc1")
e("s_branch L_ostA_done")
lab("L_ost_wt")
e(f"buffer_store_dwordx4 {vr(SA+4,4)}, v2, {sr(R_WS,4)}, s{sOD} offen offset:1024 sc1")
stamp(6)
e(f"v_readfirstlane_b32 s{sNON}, v8")
e(f"v_readfirstlane_b32 s{sNON+1}, v9")
e("s_mov_b64 exec, 1")
e("s_waitcnt vmcnt(0)")
e(f"buffer_store_dwordx2 v[8:9], off, {sr(R_WS,4)}, s{sOF} sc1")
e("s_branch L_ost_done")
lab("L_sync")
e(f"s_cmp_eq_u32 s{sIT}, 1")
e("s_cbranch_scc0 L_sync3")
stamp(14)
if opt['csync']:
    e(f"v_readfirstlane_b32 s{sT4}, v4")
    e("s_nop 0")
    e(f"s_cmp_ge_u32 s{sT4}, {FOUR}")
    e("s_cbranch_scc1 L_nobar") if not opt['stamps'] else e("s_cbranch_scc1 L_wg1_done")
lds_wait("L_wg1", C_G1, FOUR, 4)
stamp(15)
e("s_branch L_nobar")
lab("L_sync3")
if opt['stall']: e(f"s_sleep {opt['stall']}")
if opt['dftpf']: e(f"buffer_load_dword v185, v{vDP}, {sr(R_DP,4)}, 0 offen")
if opt['preo']:
    e(f"s_cmp_lt_u32 s{sW}, 2")
    e("s_cbranch_scc0 L_nopo")
    e(f"buffer_load_dword v188, v{vOP}, {sr(R_OUT,4)}, s{sOP} offen{' sc1' if opt['preo'] == 1 else ''}")
    lab("L_nopo")
stamp(16)
if opt['csync']:
    e(f"v_readfirstlane_b32 s{sT4}, v5")
    e("s_nop 0")
    e(f"s_cmp_ge_u32 s{sT4}, {FOUR}")
    e("s_cbranch_scc1 L_nobar") if not opt['stamps'] else e("s_cbranch_scc1 L_wkvl_done")
lds_wait("L_wkvl", C_KVL, FOUR, 4)
stamp(17)
e("s_branch L_nobar")
lab("L_fallback")
e(f"s_cmp_eq_u32 s{sFB}, 0")
e("s_cbranch_scc0 L_att_done")
cm("fallback: exact row max over all 64 key tiles, then repeat the main loop")
e(f"s_mov_b32 s{sFB}, 1")
e(f"s_mov_b32 s{sBARN}, 0")
e(f"v_mov_b32 v4, 0xff800000")
e(f"v_mov_b32 v5, 0xff800000")
e(f"v_mov_b32 v{vK}, v2")
e(f"s_mov_b32 s{sIT}, 0")
lab("L_fb_loop")
e(f"ds_read_b128 {vr(K0,4)}, v{vK}")
e("s_waitcnt lgkmcnt(0)")
e(f"v_mfma_f32_32x32x16_bf16 {vr(SA,16)}, {vr(K0,4)}, {vr(QA,4)}, 0")
e(f"v_mfma_f32_32x32x16_bf16 {vr(SB,16)}, {vr(K0,4)}, {vr(QB,4)}, 0")
e(f"v_add_u32 v{vK}, 0x800, v{vK}")
nop(11)
max16(4, SA, 1); max16(5, SB, 1)
e(f"s_add_u32 s{sIT}, s{sIT}, 1")
e(f"s_cmp_lt_u32 s{sIT}, 64")
e("s_cbranch_scc1 L_fb_loop")
e(f"v_mov_b32 v{vK}, v2")
e(f"v_mov_b32 v{vV}, v{vV0}")
for i in range(16): e(f"v_mov_b32 v{OA+i}, 0")
for i in range(16): e(f"v_mov_b32 v{OB+i}, 0")
for i in range(4): e(f"v_mov_b32 v{V1+4+i}, 0")
e(f"ds_read_b128 {vr(K0,4)}, v{vK}")
e(f"ds_read_b128 {vr(K1,4)}, v{vK} offset:2048")
e(f"ds_read_b128 {vr(V0,4)}, v{vV} offset:1024")
e(f"ds_read_b128 {vr(V0+4,4)}, v{vV} offset:1536")
e("s_branch L_setmax")

lab("L_aux")
BUF = 16
BP = 144
FR = 176
ACC = 192
D1, D2 = 208, 224
if not opt['first']: aux_first()
KV0 = len(L)
e(f"v_mov_b32 v14, {MISC+C_CR}")
if opt['bytef']: e(f"v_add_u32 v14, s{sA}, v14")
e(f"v_mov_b32 v15, 1")
cm("K / V projection of 16 tokens: aux wave 0")
e(f"s_cmp_eq_u32 s{sA}, 0")
e("s_cbranch_scc0 L_np")
e(f"v_and_b32 v3, 15, v{vL}")
e(f"v_lshrrev_b32 v4, 4, v{vL}           ; q")
e(f"s_lshl_b32 s{sT0}, s{sTHP}, 4")
e(f"v_add_u32 v5, s{sT0}, v3")
e(f"v_mul_u32_u24 v5, {XROW}, v5")
e("v_lshl_add_u32 v5, v4, 4, v5")
e(f"v_add_u32 v5, {X_OFF}, v5")
e(f"v_bfe_u32 v6, v{vL}, 2, 2            ; r")
e("v_lshl_add_u32 v6, v4, 3, v6")
e("v_lshlrev_b32 v6, 5, v6")
e(f"v_and_b32 v7, 3, v{vL}               ; cc")
sB = sT3
e(f"s_and_b32 s{sB}, s{sTHP}, 1            ; b")
e(f"s_lshr_b32 s{sT0}, s{sTHP}, 1")
e(f"s_lshl_b32 s{sT2}, s{sTB}, 1")
e(f"s_add_u32 s{sT2}, s{sT2}, s{sT0}")
sKF, sKD = 97, 96
e(f"s_lshl_b32 s{sT1}, s{sT2}, 1")
e(f"s_and_b32 s{sT0}, s{sHG}, 1")
e(f"s_add_u32 s{sT1}, s{sT1}, s{sT0}")
e(f"s_lshl_b32 s{sT1}, s{sT1}, 1")
e(f"s_add_u32 s{sT1}, s{sT1}, s{sB}")
e(f"s_lshl_b32 s{sT1}, s{sT1}, 7")
e(f"s_add_u32 s{sKF}, s{sT1}, {FL_KV}")
e(f"s_lshl_b32 s{sKD}, s{sT2}, 11")
e("v_and_b32 v9, 1, v4")
e("v_lshlrev_b32 v9, 3, v9")
e("v_lshl_add_u32 v9, v3, 4, v9          ; n*16 + (q&1)*8")
e("v_lshrrev_b32 v8, 1, v4")
e(f"s_mov_b32 s{sDRY}, {1 if opt['dry'] else 0}")
if opt['pre']:
    cm("touch the lines this wave will publish (tile and flag), so the write-through stores find them resident")
    e(f"v_and_b32 v12, 15, v{vL}")
    e("v_lshlrev_b32 v12, 7, v12")
    e(f"buffer_load_dword v201, v12, {sr(R_WS,4)}, s{sKD} offen sc1")
    e(f"buffer_load_dword v202, off, {sr(R_WS,4)}, s{sKF} sc1")
def kvchain(isV):
    D = opt['kvd']
    def mf(k2):
        b2 = BUF + 8*k2
        a, bb = (b2+4, b2) if isV else (b2, b2+4)
        e(f"v_mfma_f32_16x16x32_bf16 {vr(ACC,4)}, {vr(a,4)}, {vr(bb,4)}, {'0' if k2==0 else vr(ACC,4)}")
    for ks in range(16):
        b = BUF + 8*ks
        e(f"ds_read_b64_tr_b16 {vr(b,2)}, v6 offset:{ks*1024}")
        e(f"ds_read_b64_tr_b16 {vr(b+2,2)}, v6 offset:{ks*1024+128}")
        e(f"ds_read_b128 {vr(b+4,4)}, v5 offset:{ks*64}")
        if ks >= D:
            e(f"s_waitcnt lgkmcnt({3*D})"); mf(ks - D)
    for k2 in range(16 - D, 16):
        e(f"s_waitcnt lgkmcnt({3*(15-k2)})"); mf(k2)
def kv_wait(tagname):
    e(f"s_waitcnt vmcnt({2 if opt['pre'] else 0})")
    stamp(1)
    e("s_mov_b64 exec, 1")
    e("ds_write_b8 v14, v15" if opt['bytef'] else "ds_add_u32 v14, v15")
    e("s_mov_b64 exec, -1")
    lds_wait(tagname + "_w", C_CR, FOUR, 10, sleep=1)
def kv_b1(tagname):
    if not opt['dry']: kv_wait(tagname)
    lab(tagname)
def kv_b2(tagname):
    if opt['dry']:
        e(f"s_cmp_eq_u32 s{sDRY}, 0")
        e(f"s_cbranch_scc1 {tagname}_go")
        e(f"s_mov_b32 s{sDRY}, 0")
        kv_wait(tagname)
        e(f"s_branch {tagname}")
        lab(tagname + "_go")
e(f"s_bitcmp1_b32 s{sHG}, 0")
e("s_cbranch_scc1 L_prodV")
cm("K: (q>>1)*512 + (16b+n)*16 + (q&1)*8")
e("v_lshl_add_u32 v6, v7, 3, v6")
e("v_lshl_add_u32 v8, v8, 9, v9")
e(f"s_lshl_b32 s{sT1}, s{sB}, 8")
e(f"s_add_u32 s{sKD}, s{sKD}, s{sT1}")
kv_b1("L_chK"); kvchain(False); kv_b2("L_chK")
nop(6 if opt['dry'] else 8)
e("s_branch L_prodS")
lab("L_prodV")
cm("V: 1024 + b*512 + (q>>1)*256 + n*16 + (q&1)*8")
e("v_lshl_add_u32 v8, v8, 8, v9")
e("v_and_b32 v9, 1, v7")
e("v_lshl_add_u32 v6, v9, 4, v6")
e("v_lshrrev_b32 v9, 1, v7")
e("v_lshl_add_u32 v6, v9, 3, v6")
e(f"s_lshl_b32 s{sT1}, s{sB}, 9")
e(f"s_add_u32 s{sKD}, s{sKD}, s{sT1}")
e(f"s_add_u32 s{sKD}, s{sKD}, 1024")
kv_b1("L_chV"); kvchain(True); kv_b2("L_chV")
e(f"s_mov_b32 s{sT0}, {hex(f2u(2.0**VSCALE))}")
nop(6 if opt['dry'] else 8)
for i in range(4): e(f"v_mul_f32 v{ACC+i}, s{sT0}, v{ACC+i}")
lab("L_prodS")
e(f"v_cvt_pk_bf16_f32 v10, v{ACC}, v{ACC+1}")
e(f"v_cvt_pk_bf16_f32 v11, v{ACC+2}, v{ACC+3}")
e(f"buffer_store_dwordx2 v[10:11], v8, {sr(R_WS,4)}, s{sKD} offen sc1")
stamp(14)
e("ds_add_u32 v14, v15 offset:%d             ; this wave is done with the weight region" % (C_KV - C_CR + 65536) if False else f"v_mov_b32 v13, {MISC+C_KV}")
e("s_mov_b64 exec, 1")
e("ds_write_b32 v13, v15")
e("s_mov_b64 exec, -1")
tag_from_lds("L_tagp", 4)
e(f"v_mov_b32 v6, s{sNON}")
e(f"v_mov_b32 v7, s{sNON+1}")
e("s_mov_b64 exec, 1")
e("s_waitcnt vmcnt(0)")
e(f"buffer_store_dwordx2 v[6:7], off, {sr(R_WS,4)}, s{sKF} sc1")
e("s_mov_b64 exec, -1")
stamp(15)
if opt['pa']: e("s_branch L_tagged0")
else:
    e(f"s_mov_b32 s{sRET}, 1")
    e("s_branch L_tagged")
lab("L_np")
e("s_waitcnt vmcnt(0)")
stamp(1)
e("s_mov_b64 exec, 1")
e("ds_write_b8 v14, v15" if opt['bytef'] else "ds_add_u32 v14, v15")
e("s_mov_b64 exec, -1")
if opt['codepf']:
    cm("aux wave 2 pulls this kernel's code towards L2 (reads only)")
    e(f"s_cmp_eq_u32 s{sA}, 2")
    e("s_cbranch_scc0 L_nopf")
    e(f"s_getpc_b64 {sr(sX,2)}")
    lab("L_pc")
    e(f"v_lshlrev_b32 v4, 7, v{vL}")
    e(f"s_sub_u32 s{sX}, s{sX}, L_pc-{NAME}_kernel")
    e(f"s_subb_u32 s{sX+1}, s{sX+1}, 0")
    e(f"v_mov_b32 v5, s{sX+1}")
    e(f"v_add_co_u32 v4, vcc, s{sX}, v4")
    e("s_nop 1")
    e("v_addc_co_u32 v5, vcc, 0, v5, vcc")
    e("CODEPF")
    lab("L_nopf")
if opt['lwarm']:
    cm("aux wave 1 walks once through the attention loop with every lane off (LDS and register traffic only) to warm the instruction cache")
    e(f"s_cmp_eq_u32 s{sA}, 1")
    e("s_cbranch_scc0 L_nolw")
    e(f"s_mov_b32 s{sIT}, 15")
    e(f"s_mov_b32 s{sBARN}, 0")
    e("s_setprio 0")
    e("s_mov_b64 exec, 0")
    e("s_branch L_att_loop")
    lab("L_lwarm_ret")
    e("s_mov_b64 exec, -1")
    e(f"s_setprio {opt['prioX']}")
    lab("L_nolw")
e(f"s_cmp_eq_u32 s{sA}, 3")
e("s_cbranch_scc0 L_tagged0")
cm("aux wave 3 fetches this launch's hand-off tag (bounded spin) and posts it in LDS")
e(f"s_mov_b32 s{sSPIN}, {SPIN}")
lab("L_tag")
e(f"buffer_load_dwordx2 v[14:15], off, {sr(R_DBG,4)}, 0 sc1")
e(f"s_sub_u32 s{sSPIN}, s{sSPIN}, 1")
e(f"s_cmp_eq_u32 s{sSPIN}, 0")
e("s_cbranch_scc1 L_tag_done")
e("s_waitcnt vmcnt(0)")
e("v_cmp_eq_u32 vcc, 0, v14")
e("s_nop 0")
e("s_cmp_eq_u64 vcc, 0")
e("s_cbranch_scc0 L_tag")
lab("L_tag_done")
e("s_waitcnt vmcnt(0)")
e(f"v_mov_b32 v12, {MISC+C_TAG}")
e("ds_write_b64 v12, v[14:15]")
cm("report this workgroup's XCD id (tag | id)")
e(f"s_getreg_b32 s{sT2}, hwreg(HW_REG_XCC_ID, 0, 4)")
e(f"s_lshl_b32 s{sT1}, s2, 7")
e(f"s_add_u32 s{sT1}, s{sT1}, {FL_X}")
e(f"v_or_b32 v14, s{sT2}, v14")
e("s_mov_b64 exec, 1")
e(f"buffer_store_dwordx2 v[14:15], off, {sr(R_WS,4)}, s{sT1} sc1")
e("s_mov_b64 exec, -1")
import re
def ren(m):
    n = int(m.group(1)); return f"v{208+n}" if 3 <= n <= 15 else m.group(0)
def ren2(m):
    a, b = int(m.group(1)), int(m.group(2)); return f"v[{208+a}:{208+b}]" if 3 <= a <= 15 else m.group(0)
for k in range(KV0, len(L)):
    L[k] = re.sub(r"v\[(\d+):(\d+)\]", ren2, re.sub(r"\bv(\d+)\b", ren, L[k]))
e(f"s_mov_b32 s{sRET}, 0") if False else None
lab("L_tagged0")
e(f"s_mov_b32 s{sRET}, 0")
e("s_branch L_addr")
lab("L_tagged")
stamp(2)
tag_from_lds("L_tagx", 8)
cm("the weight region is reused only after the projection wave is done with it")
lds_wait("L_wkv", C_KV, 1, 8, sleep=opt['fs'])
cm("key tiles in rotated order (own XCD's tiles first); wave a covers tiles 8g + 2a, 8g + 2a + 1: flags 32g + 8a + (0..7)")
vCNT = 248
sKG, sKL, sKS, sKP = 97, 85, 88, 96
e(f"v_and_b32 v{ACC+2}, 7, v{vL}")
e(f"v_lshlrev_b32 v{ACC+2}, 7, v{ACC+2}")
e(f"s_lshl_b32 s{sKP}, s{sA}, 10")
e(f"s_add_u32 s{sKP}, s{sKP}, {FL_KV}")
e(f"s_lshl_b32 s{sT1}, s{sXCD}, 12")
e(f"s_add_u32 s{sT1}, s{sT1}, s{sKP}")
e(f"s_lshl_b32 s{sKL}, s{sA}, 12")
e(f"s_lshl_b32 s{sKG}, s{sXCD}, 14")
e("s_barrier                             ; B2")
stamp(16)
poll("L_pollK0", 1, ACC+2, 8, [sT1])
stamp(3)
def kvdma(G):
    e(f"s_add_u32 m0, s{sKL}, {16384*G}")
    e(f"s_add_u32 s{sKS}, s{sKG}, s{sKL}")
    for i in range(4): e(f"buffer_load_dwordx4 v2, {sr(R_WS,4)}, s{sKS} offen offset:{1024*i} sc1 lds")
    if G < 7:
        e(f"s_add_u32 s{sKG}, s{sKG}, 16384")
        e(f"s_and_b32 s{sKG}, s{sKG}, 0x1ffff")
kvdma(0)
if opt['prepoll']:
    cm("one early look at the flags of all other key tiles; its latency overlaps the first tiles' landing")
    e(f"v_lshrrev_b32 v{ACC+4}, 3, v{vL}")
    e(f"v_lshlrev_b32 v{ACC+4}, 12, v{ACC+4}")
    e(f"v_add_u32 v{ACC+4}, v{ACC+4}, v{ACC+2}")
    e(f"buffer_load_dwordx2 {vr(ACC+6,2)}, v{ACC+4}, {sr(R_WS,4)}, s{sKP} offen sc1")
e(f"s_cmp_eq_u32 s{sRET}, 1")
e("s_cbranch_scc0 L_addr_2")
lab("L_addr")
srd(R_SRE, P_SRE, 8388608)
srd(R_SIM, P_SIM, 8388608)
srd(R_XB, P_XB, 2097152)
srd(R_WO, P_WO, 524288)
srd(R_OUT, P_OUT, 4194304)
sT1S, sEB, sTT, sS2, sCB = 98, 99, 100, 101, 79
R_HRE, R_HIM = R_XA, R_W
e(f"s_and_b32 s{sT0}, s{sJ}, 3")
e(f"s_lshl_b32 s{sT1S}, s{sXCD}, 2")
e(f"s_add_u32 s{sT1S}, s{sT1S}, s{sT0}       ; t1s")
e(f"s_lshr_b32 s{sT0}, s{sJ}, 2")
e(f"s_lshl_b32 s{sT0}, s{sT0}, 1")
e(f"s_lshr_b32 s{sEB}, s{sA}, 1")
e(f"s_add_u32 s{sEB}, s{sEB}, s{sT0}         ; eb")
e(f"s_and_b32 s{sTT}, s{sA}, 1               ; tt")
e(f"s_and_b32 s{sT0}, s{sJ}, 3")
e(f"s_lshl_b32 s{sT0}, s{sT0}, 1")
e(f"s_lshl_b32 s{sS2}, s{sXCD}, 3")
e(f"s_add_u32 s{sS2}, s{sS2}, s{sT0}")
e(f"s_add_u32 s{sS2}, s{sS2}, s{sTT}         ; s2 = 8 xcd + 2 (j&3) + (a&1)")
e(f"s_mov_b32 s{sCB}, s{sEB}                 ; cb = 2 (j>>2) + (a>>1)")
srd(R_HRE, P_HRE, 524288)
srd(R_HIM, P_HIM, 524288)
e(f"v_and_b32 v3, 31, v{vL}                ; n")
e(f"v_lshrrev_b32 v4, 5, v{vL}             ; h")
e(f"s_lshl_b32 s{sT0}, s{sTT}, 5")
e(f"v_add_u32 v5, s{sT0}, v3")
e("v_lshlrev_b32 v5, 5, v5")
e(f"v_add_u32 v13, s{sT1S}, v5")
vG0, vG1, vRX, vRW = 240, 242, 244, 246
vDRE, vDIM = 251, 252
vB2A, vB2O, vHA, vWOD, vWOT, vOF, vOUT, vPH, vPK, vF = 4, 3, 15, 14, 0, 5, 6, 7, 12, 13
cm("B1 staging, loader side: wave a fills block a (0,1: x_B rows of s2, s2+1; 2,3: DFT rows of cb, cb+1),")
cm("16 rows x 64 B per load, row r -> rho = 8*bit2 + 4*bit3 + (r&3), 16-B chunk (l&3) ^ ((l>>4)&3)")
e(f"v_bfe_u32 v5, v{vL}, 2, 2")
e(f"v_bfe_u32 v6, v{vL}, 4, 1")
e("v_lshl_add_u32 v5, v6, 3, v5")
e("v_lshl_add_u32 v5, v4, 2, v5            ; rho")
e(f"v_lshrrev_b32 v6, 4, v{vL}")
e(f"v_xor_b32 v6, v6, v{vL}")
e("v_and_b32 v6, 3, v6")
e("v_lshlrev_b32 v6, 4, v6                 ; chunk * 16")
e(f"s_and_b32 s{sT0}, s{sS2}, -2")
e(f"s_add_u32 s{sT0}, s{sT0}, s{sA}")
e(f"s_lshl_b32 s{sT0}, s{sT0}, 10")
e(f"s_and_b32 s{sT1}, s{sCB}, -2")
e(f"s_add_u32 s{sT1}, s{sT1}, s{sTT}")
e(f"s_lshl_b32 s{sT1}, s{sT1}, 14")
e(f"s_add_u32 s{sT2}, s{sT0}, 0x100000")
e(f"s_cmp_lt_u32 s{sA}, 2")
e(f"s_cselect_b32 s{sT3}, 16, 10")
e(f"s_cselect_b32 s{sT0}, s{sT0}, s{sT1}")
e(f"s_cselect_b32 s{sT2}, s{sT2}, s{sT1}")
e(f"s_cselect_b64 {sr(sX,2)}, {sr(P_XB,2)}, {sr(P_HRE,2)}")
e(f"s_cselect_b64 {sr(sST,2)}, {sr(P_XB,2)}, {sr(P_HIM,2)}")
e(f"v_lshlrev_b32 v5, s{sT3}, v5")
e("v_add_u32 v5, v5, v6")
e(f"v_add_u32 v7, s{sT0}, v5")
e(f"v_mov_b32 v{vG0+1}, s{sX+1}")
e(f"v_add_co_u32 v{vG0}, vcc, s{sX}, v7")
e(f"v_add_u32 v7, s{sT2}, v5")
e(f"v_mov_b32 v{vG1+1}, s{sST+1}")
e(f"v_addc_co_u32 v{vG0+1}, vcc, 0, v{vG0+1}, vcc")
e(f"v_add_co_u32 v{vG1}, vcc, s{sST}, v7")
e(f"s_lshl_b32 s{sT1}, s{sT1}, 2")
e(f"s_add_u32 s{sT1}, s{sT1}, s{sA}")
e(f"v_addc_co_u32 v{vG1+1}, vcc, 0, v{vG1+1}, vcc")
e(f"s_cmp_eq_u32 s{sT1}, 2")
e("s_cbranch_scc0 L_nospec0")
cm("cb = 0: the im slot of e = 0 (lanes 0..3 of the second load) carries cos row 256")
e("s_mov_b64 exec, 15")
e("v_add_u32 v7, 0x40000, v6")
e(f"v_mov_b32 v{vG1+1}, s{P_HRE+1}")
e(f"v_add_co_u32 v{vG1}, vcc, s{P_HRE}, v7")
e("s_nop 1")
e(f"v_addc_co_u32 v{vG1+1}, vcc, 0, v{vG1+1}, vcc")
e("s_mov_b64 exec, -1")
lab("L_nospec0")
cm("reader side: row m, chunk (2s+h) ^ ((m>>2)&3)")
e("v_bfe_u32 v5, v3, 2, 2")
e("v_xor_b32 v5, v5, v4")
e("v_lshlrev_b32 v5, 4, v5")
e("v_lshl_add_u32 v5, v3, 6, v5")
e(f"s_lshl_b32 s{sT0}, s{sTT}, 11")
e(f"s_add_u32 s{sT0}, s{sT0}, {STG}")
e(f"v_add_u32 v{vRX}, s{sT0}, v5")
e(f"v_xor_b32 v{vRX+1}, 32, v{vRX}")
e(f"s_lshr_b32 s{sT0}, s{sA}, 1")
e(f"s_lshl_b32 s{sT0}, s{sT0}, 11")
e(f"s_add_u32 s{sT0}, s{sT0}, {STG + 4096}")
e(f"v_add_u32 v{vRW}, s{sT0}, v5")
e(f"v_xor_b32 v{vRW+1}, 32, v{vRW}")
vHW, vHW1, vHR, vHS = 250, 253, BUF, BUF + 1
cm("H regrouping: write row t1, chunk (2h+i) ^ ((t1>>2)&3); read lane-linear; store row l>>2, chunk (l&3) ^ ((l>>4)&3)")
e(f"s_lshl_b32 s{sT0}, s{sA}, 11")
e(f"s_add_u32 s{sT0}, s{sT0}, {STG}")
e("v_bfe_u32 v5, v3, 2, 2")
e("v_lshlrev_b32 v7, 1, v4")
e("v_xor_b32 v5, v5, v7")
e("v_lshlrev_b32 v5, 4, v5")
e("v_lshl_add_u32 v5, v3, 6, v5")
e(f"v_add_u32 v{vHW}, s{sT0}, v5")
e(f"v_xor_b32 v{vHW1}, 16, v{vHW}")
e(f"v_add_u32 v{BUF}, s{sT0}, v2")
e(f"v_lshrrev_b32 v5, 2, v{vL}")
e(f"v_mul_u32_u24 v5, {64*HROW}, v5")
e(f"v_add_u32 v{BUF+1}, v5, v6")
cm("e = 256 store address: t1*64*HROW")
e(f"v_mul_u32_u24 v8, {64*HROW}, v3")
e(f"v_lshl_add_u32 v{vHA}, v4, 5, v8")
cm("wo: DMA source offset and transposing read: row 8h+r, 16-B chunk 4cbk + 2(cc&1) + g, byte 8(cc>>1)")
e(f"v_lshrrev_b32 v8, 3, v{vL}")
e(f"v_and_b32 v9, 7, v{vL}")
e(f"v_bfe_u32 v10, v{vL}, 4, 1")
e("v_lshlrev_b32 v10, 2, v10")
e("v_xor_b32 v9, v9, v10")
e("v_lshlrev_b32 v9, 4, v9")
e(f"v_lshl_add_u32 v{vWOD}, v8, 10, v9")
e(f"v_bfe_u32 v9, v{vL}, 2, 2")
e("v_lshl_add_u32 v9, v4, 3, v9")
e("v_lshlrev_b32 v9, 7, v9")
e(f"v_and_b32 v10, 1, v{vL}")
e(f"v_bfe_u32 v11, v{vL}, 4, 1")
e("v_lshl_add_u32 v10, v10, 1, v11")
e(f"s_lshr_b32 s{sT0}, s{sA}, 1")
e(f"s_lshl_b32 s{sT0}, s{sT0}, 2")
e(f"v_add_u32 v10, s{sT0}, v10")
e(f"v_bfe_u32 v11, v{vL}, 3, 1")
e("v_lshlrev_b32 v11, 2, v11")
e("v_xor_b32 v10, v10, v11")
e("v_lshl_add_u32 v9, v10, 4, v9")
e(f"v_bfe_u32 v11, v{vL}, 1, 1")
e("v_lshl_add_u32 v9, v11, 3, v9")
e(f"v_add_u32 v{vWOT}, {STG}, v9")
cm("output projection: out offset, O fragment address")
e(f"s_lshl_b32 s{sT3}, s{sTB}, 1")
e(f"s_and_b32 s{sT4}, s{sA}, 1")
e(f"s_add_u32 s{sT3}, s{sT3}, s{sT4}")
e(f"s_lshl_b32 s{sT3}, s{sT3}, 5")
e(f"v_add_u32 v8, s{sT3}, v3")
e("v_lshlrev_b32 v8, 11, v8")
e(f"v_lshl_add_u32 v{vOUT}, v4, 5, v8")
e(f"s_lshl_b32 s{sT3}, s{sT4}, 15")
e(f"v_add_u32 v{vOF}, s{sT3}, v2")
e(f"v_lshlrev_b32 v{vPH}, 7, v{vL}")

cm("B2 A rows: e(m) = 32eb + col(m) (eb<8) or 512 - that; col(m) = 16*b2 + 4*(m>>3) + (m&3)")
e("v_and_b32 v8, 3, v3")
e("v_bfe_u32 v9, v3, 2, 1")
e("v_lshl_add_u32 v8, v9, 4, v8")
e("v_lshrrev_b32 v9, 3, v3")
e("v_lshl_add_u32 v8, v9, 2, v8")
e(f"s_lshl_b32 s{sT0}, s{sEB}, 5")
e(f"v_add_u32 v8, s{sT0}, v8")
e("v_sub_u32 v9, 0x200, v8")
e("v_sub_u32 v10, 0x800, v13")
e("v_and_b32 v10, 0x7ff, v10               ; (2048 - ts) & 2047")
e(f"s_cmp_lt_u32 s{sEB}, 8")
e("s_cselect_b64 vcc, 0, -1")
e("v_cndmask_b32 v8, v8, v9, vcc")
e("v_cndmask_b32 v11, v13, v10, vcc")
e("v_lshlrev_b32 v10, 12, v10")
e(f"v_lshl_add_u32 v{vDIM}, v4, 6, v10")
e("v_lshlrev_b32 v10, 12, v13")
e(f"v_lshl_add_u32 v{vDRE}, v4, 6, v10")
e("v_lshlrev_b32 v10, 18, v3")
e(f"v_lshl_add_u32 v{vF}, v4, 4, v10")
e(f"v_lshrrev_b32 v10, 3, v{vL}")
e("v_lshlrev_b32 v10, 5, v10")
e(f"v_and_b32 v9, 7, v{vL}")
e("v_add_u32 v10, v10, v9")
e(f"v_lshlrev_b32 v{vPK}, 7, v10             ; K/V flags 32g + (0..7)")
e("v_lshlrev_b32 v11, 11, v11")
e(f"v_lshl_add_u32 v{vB2O}, v4, 5, v11")
e(f"v_mul_u32_u24 v9, {32*HROW}, v4")
e(f"v_lshl_add_u32 v{vB2A}, v8, 2, v9")
e(f"s_cmp_eq_u32 s{sRET}, 0")
e(f"s_mov_b32 s{sRET}, 2")
e("s_cbranch_scc1 L_tagged")
lab("L_addr_2")
e(f"v_mov_b32 v{vCNT}, {MISC+C_G1}")
vCB = 11 if False else 249
if opt['bytef']: e(f"v_add_u32 v{vCNT+1}, s{sA}, v{vCNT}")
e(f"v_mov_b32 v{vCNT+1}, 1") if not opt['bytef'] else None
e("s_waitcnt vmcnt(0)")
stamp(18)
if opt['prepoll']:
    e(f"v_cmp_ne_u64 vcc, {sr(sNON,2)}, {vr(ACC+6,2)}")
e("s_barrier")
if opt['prepoll']:
    e("s_cmp_eq_u64 vcc, 0")
    e("s_cbranch_scc1 L_kv_all")
poll("L_pollKV", 1, vPK, 8, [sKP], sleep=1)
lab("L_kv_all")
stamp(4)
e("s_setprio 0")
LOW[0] = True
for G in range(1, 3): kvdma(G)
stamp(23)
e("s_waitcnt vmcnt(4)")
stamp(24)
e(f"s_mov_b64 exec, {hex(1 << (1)) if opt['bytef'] else 1}          ; lane {1} stores its lane id")
e(f"ds_write_b8 v{vCNT+1}, v{vL} offset:{0}" if opt['bytef'] else f"ds_add_u32 v{vCNT}, v{vCNT+1} offset:{0}")
e("s_mov_b64 exec, -1")
for G in range(3, 8): kvdma(G)
XF, WF = D1, D1 + 8
cm("pull this workgroup's 1/32 share of what its XCD reads for the spectral part and of wo towards L2")
e(f"s_lshl_b32 s{sT0}, s{sJ}, 13")
e(f"s_cmp_eq_u32 s{sA}, 1")
e("s_cbranch_scc1 L_pf1")
e(f"s_cmp_eq_u32 s{sA}, 2")
e("s_cbranch_scc1 L_pf2")
e(f"s_cmp_eq_u32 s{sA}, 3")
e("s_cbranch_scc1 L_pf3")
e(f"s_lshl_b32 s{sT0}, s{sJ}, 16")
e(f"s_lshl_b32 s{sT1}, s{sXCD}, 13")
e(f"s_add_u32 s{sT0}, s{sT0}, s{sT1}")
e(f"buffer_load_dword v{D2+8}, v{vPH}, {sr(R_XB,4)}, s{sT0} offen")
e("s_branch L_pf4")
lab("L_pf1")
e(f"buffer_load_dword v{D2+8}, v{vPH}, {sr(R_HRE,4)}, s{sT0} offen")
e("s_branch L_pf4")
lab("L_pf2")
e(f"buffer_load_dword v{D2+8}, v{vPH}, {sr(R_HIM,4)}, s{sT0} offen")
e("s_branch L_pf4")
lab("L_pf3")
e(f"s_lshl_b32 s{sT0}, s{sJ}, 14")
e(f"buffer_load_dword v{D2+8}, v{vPH}, {sr(R_WO,4)}, s{sT0} offen")
lab("L_pf4")
sSL, sWOS, sWOB = 30, 31, 96
e(f"s_lshl_b32 s{sSL}, s{sA}, 11")
e(f"s_add_u32 s{sSL}, s{sSL}, {STG}")
e(f"s_lshl_b32 s{sWOS}, s{sHG}, 7")
e(f"s_lshl_b32 s{sT1}, s{sA}, 14")
e(f"s_add_u32 s{sWOB}, s{sWOS}, s{sT1}")
e(f"s_lshr_b32 s{sT1}, s{sA}, 1")
e(f"s_lshl_b32 s{sT1}, s{sT1}, 6")
e(f"s_add_u32 s{sWOS}, s{sWOS}, s{sT1}")
VM = []
def st_dma(n):
    if n >= 24: return
    for i in range(2):
        if n < 16:
            e(f"s_add_u32 m0, s{sSL}, {8192*(n%3) + 1024*i - 64*n}")
            e("s_nop 0")
            e(f"global_load_lds_dwordx4 {vr(vG0 + 2*i, 2)}, off offset:{64*n}" if not opt['abl'] & 2 else "s_nop 0")
        else:
            e(f"s_add_u32 m0, s{sSL}, {8192*(n%3) + 1024*i}")
            e(f"s_add_u32 s{sT1}, s{sWOB}, {65536*(n-16) + 8192*i}")
            e(f"buffer_load_dwordx4 v{vWOD}, {sr(R_WO,4)}, s{sT1} offen lds")
        VM.append(('st', n))
def st_sync(n, between=None):
    last = max(k for k, t in enumerate(VM) if t == ('st', n))
    e(f"s_waitcnt vmcnt({len(VM) - 1 - last}) lgkmcnt(0)")
    e(f"s_mov_b64 exec, {hex(1 << (n + 1)) if opt['bytef'] else 1}          ; lane {n + 1} stores its lane id")
    e(f"ds_write_b8 v{vCNT+1}, v{vL} offset:{C_ST - C_G1}" if opt['bytef'] else f"ds_add_u32 v{vCNT}, v{vCNT+1} offset:{C_ST - C_G1}")
    e("s_mov_b64 exec, -1")
    if between: between()
    e(f"s_mov_b32 s{sSPIN}, {SPIN*8}")
    lab(f"L_st{n}")
    e(f"ds_read_b32 v8, v{vCNT} offset:{C_ST - C_G1}")
    e(f"s_sub_u32 s{sSPIN}, s{sSPIN}, 1")
    e(f"s_cbranch_scc1 L_st{n}_done")
    e("s_waitcnt lgkmcnt(0)")
    if (opt['sp'] if n < 16 else opt['spw']): e("s_setprio 2")
    e(f"v_readfirstlane_b32 s{sT4}, v8")
    e("s_setprio 0")
    if opt['bytef']:
        e(f"s_or_b32 s{sT4}, s{sT4}, 0x80808080")
        e(f"s_sub_u32 s{sT4}, s{sT4}, {hex(0x01010101*(n+1))}")
        e(f"s_and_b32 s{sT4}, s{sT4}, 0x80808080")
        e(f"s_cmp_eq_u32 s{sT4}, 0x80808080")
    else: e(f"s_cmp_ge_u32 s{sT4}, {4*(n+1 - (16 if opt['nob'] else 0))}")
    if opt['ss']:
        e(f"s_cbranch_scc1 L_st{n}_done")
        e(f"s_sleep {opt['ss']}")
        e(f"s_branch L_st{n}")
    else: e(f"s_cbranch_scc0 L_st{n}")
    lab(f"L_st{n}_done")
if not opt['nob']: st_dma(0); st_dma(1)
stamp(17)
e("s_waitcnt vmcnt(5)                    ; younger: one pull, two stages" if not opt['nob'] else "s_waitcnt vmcnt(0)")
e(f"s_mov_b64 exec, {hex(1 << (1)) if opt['bytef'] else 1}          ; lane {1} stores its lane id")
e(f"ds_write_b8 v{vCNT+1}, v{vL} offset:{4}" if opt['bytef'] else f"ds_add_u32 v{vCNT}, v{vCNT+1} offset:{4}")
e("s_mov_b64 exec, -1")
e(f"s_cmp_eq_u32 s{sA}, 3")
e("s_cbranch_scc0 L_pf5")
e(f"s_add_u32 s{sT0}, s{sT0}, 8192")
e(f"buffer_load_dword v{D2+9}, v{vPH}, {sr(R_WO,4)}, s{sT0} offen     ; not counted below: only makes waits stricter")
lab("L_pf5")
stamp(21)
RAW = BP
def b1mfma(n):
    for s_ in range(2 if not opt['nomf'] else 0):
        e(f"v_mfma_f32_32x32x16_bf16 {vr(ACC,16)}, {vr(XF+4*s_,4)}, {vr(WF+4*s_,4)}, {'0' if n==0 and s_==0 else vr(ACC,16)}")
if opt['nob']:
    e("s_branch L_nob1")
NOB0 = len(L)
for n in range(16 if not opt['nob'] else 0):
    st_sync(n, (lambda: b1mfma(n - 1)) if n else None)
    if n + 2 < 16: st_dma(n + 2)
    for s_ in range(2 if not opt['abl'] & 1 else 0):
        e(f"ds_read_b128 {vr(XF+4*s_,4)}, v{vRX+s_} offset:{8192*(n%3)}")
        e(f"ds_read_b128 {vr(WF+4*s_,4)}, v{vRW+s_} offset:{8192*(n%3)}")
    if n == opt['fst']:
        for kb in range(2): e(f"buffer_load_dwordx4 {vr(FR+4*kb,4)}, v{vF}, {sr(R_SRE,4)}, 0 offen offset:{32*kb}")
        for kb in range(2): e(f"buffer_load_dwordx4 {vr(FR+8+4*kb,4)}, v{vF}, {sr(R_SIM,4)}, 0 offen offset:{32*kb}")
        VM += [('F', 0)]*4
e("s_waitcnt lgkmcnt(0)")
b1mfma(15)
stamp(22)
e(f"s_mul_i32 s{sT0}, s{sS2}, {HROW}")
e(f"s_lshl_b32 s{sT1}, s{sCB}, 6")
e(f"s_add_u32 s{sT0}, s{sT0}, s{sT1}")
e(f"s_add_u32 s{sT0}, s{sT0}, {WS_H}")
nop(7)
vZ = D2 + 8 if False else BP
def boost(on):
    e(f"s_setprio {2 if on else 0}"); LOW[0] = not on
boost(opt['eb'] & 1)
for i in range(8): e(f"v_cvt_pk_bf16_f32 v{vZ+i}, v{ACC+2*i}, v{ACC+2*i+1}")
boost(0)
nop(1)
e(f"v_mfma_f32_32x32x16_bf16 {vr(D1,16)}, {vr(vZ,4)}, {vr(FR,4)}, 0")
e(f"v_mfma_f32_32x32x16_bf16 {vr(D2,16)}, {vr(vZ,4)}, {vr(FR+8,4)}, 0")
e(f"v_mfma_f32_32x32x16_bf16 {vr(D1,16)}, {vr(vZ+4,4)}, {vr(FR+4,4)}, {vr(D1,16)}")
e(f"v_mfma_f32_32x32x16_bf16 {vr(D2,16)}, {vr(vZ+4,4)}, {vr(FR+12,4)}, {vr(D2,16)}")
nop(11)
boost(1)
for r in range(8):
    e(f"v_sub_f32 v{ACC+r}, v{D1+r}, v{D2+8+r}")
    e(f"v_add_f32 v{ACC+8+r}, v{D2+r}, v{D1+8+r}")
e(f"s_cmp_eq_u32 s{sCB}, 0")
e("s_cbranch_scc0 L_nospecial")
cm("columns e = 0 and e = 256 (both purely real rows): lanes 0..31, register 0")
e("s_mov_b32 exec_hi, 0")
e(f"v_mov_b32 v{ACC}, v{D1}")
e(f"v_mov_b32 v{ACC+8}, v{D2}")
e(f"v_cvt_pk_bf16_f32 v8, v{D1+8}, v{D2+8}")
e(f"buffer_store_dword v8, v{vHA}, {sr(R_WS,4)}, s{sT0} offen offset:1024 sc1")
e("s_mov_b64 exec, -1")
lab("L_nospecial")
for r in range(8): e(f"v_cvt_pk_bf16_f32 v{D1+r}, v{ACC+r}, v{ACC+8+r}")
boost(0)
cm("lane (t1, h) holds 32 B of row t1: regroup through LDS so that 4 adjacent lanes store one 64-B run")
e(f"ds_write_b128 v{vHW}, {vr(D1,4)} offset:8192")
e(f"ds_write_b128 v{vHW1}, {vr(D1+4,4)} offset:8192")
e("s_waitcnt lgkmcnt(0)")
e(f"ds_read_b128 {vr(D1+8,4)}, v{vHR} offset:8192")
e(f"ds_read_b128 {vr(D1+12,4)}, v{vHR} offset:9216")
e(f"s_add_u32 s{sT1}, s{sT0}, {16*64*HROW}")
e("s_waitcnt lgkmcnt(0)")
e(f"buffer_store_dwordx4 {vr(D1+8,4)}, v{vHS}, {sr(R_WS,4)}, s{sT0} offen sc1")
e(f"buffer_store_dwordx4 {vr(D1+12,4)}, v{vHS}, {sr(R_WS,4)}, s{sT1} offen sc1")
if opt['nob']: lab("L_nob1")
if not opt['nowo']: st_dma(16); st_dma(17)
if opt['nob']: e("s_branch L_nob2")
def rawloads():
    global VM
    cm("rows of the sequence DFT matrices for B2")
    for i in range(4): e(f"buffer_load_dwordx4 {vr(RAW+4*i,4)}, v{vDRE}, {sr(R_SRE,4)}, 0 offen offset:{16*i}")
    for i in range(4): e(f"buffer_load_dwordx4 {vr(RAW+16+4*i,4)}, v{vDIM}, {sr(R_SIM,4)}, 0 offen offset:{16*i}")
    VM += [('raw', 0)]*8
if not opt['rawlate']: rawloads()
e(f"s_lshl_b32 s{sT1}, s2, 7")
e(f"s_add_u32 s{sT1}, s{sT1}, {FL_H}")
stamp(19)
e(f"s_waitcnt vmcnt({4 if opt['rawlate'] else 12})")
stamp(20)
boost(1)
signal("L_sigH", C_H, 3, sT1, 8)
stamp(5)
def bploc(o): return FR + o if o < 16 else (RAW + o - 16 if o < 24 else RAW + 16 + o - 24)
def perms():
    e(f"s_mov_b32 s{sT2}, 0x05040100")
    e(f"s_mov_b32 s{sT3}, 0x07060302")
    for i in range(16):
        e(f"v_perm_b32 v{bploc(2*i)}, v{RAW+16+i}, v{RAW+i}, s{sT2}")
        e(f"v_perm_b32 v{bploc(2*i+1)}, v{RAW+16+i}, v{RAW+i}, s{sT3}")
if not opt['b2tail']: perms()
boost(0)
if opt['rawlate'] and not opt['abl'] & 4: rawloads()
if opt['nob']: lab("L_nob2")
def wo_stage(n):
    if opt['nowo']: return
    st_sync(n)
    st_dma(n + 2)
    for k in range(4):
        ks = 4*(n - 16) + k
        e(f"ds_read_b64_tr_b16 {vr(BUF+4*ks,2)}, v{vWOT} offset:{8192*(n%3) + 2048*k}")
        e(f"ds_read_b64_tr_b16 {vr(BUF+4*ks+2,2)}, v{vWOT} offset:{8192*(n%3) + 2048*k + 512}")
for n in range(16, 16 + opt['wsplit']): wo_stage(n)
stamp(6)
boost(1)
if opt['pre']:
    cm("aux wave 2 touches the O lines this workgroup will write and the 8 flags of its token block")
    e(f"s_cmp_eq_u32 s{sA}, 2")
    e("s_cbranch_scc0 L_nopre")
    e(f"v_lshrrev_b32 v8, 5, v{vL}")
    e(f"v_and_b32 v9, 31, v{vL}")
    e("v_lshlrev_b32 v9, 7, v9")
    e("v_lshl_add_u32 v8, v8, 15, v9")
    e(f"s_lshl_b32 s{sT0}, s{sTB}, 16")
    e(f"s_lshl_b32 s{sT1}, s{sHG}, 12")
    e(f"s_add_u32 s{sT0}, s{sT0}, s{sT1}")
    e(f"s_add_u32 s{sT0}, s{sT0}, {WS_O}")
    e(f"buffer_load_dword v10, v8, {sr(R_WS,4)}, s{sT0} offen sc1")
    e(f"v_and_b32 v9, 0xf80, v{vPH}")
    e(f"s_lshl_b32 s{sT0}, s{sTB}, 12")
    e(f"s_add_u32 s{sT0}, s{sT0}, {FL_O}")
    e(f"buffer_load_dword v11, v9, {sr(R_WS,4)}, s{sT0} offen sc1")
    e("s_waitcnt vmcnt(0)")
    lab("L_nopre")
cm("aux wave 1: XCD ids of the 8 workgroups of this token block: ids 32*hg + (id & 31)")
e(f"s_cmp_eq_u32 s{sA}, 1")
e("s_cbranch_scc0 L_nosame")
e(f"v_and_b32 v8, 7, v{vL}")
e("v_lshlrev_b32 v8, 12, v8")
e(f"s_and_b32 s{sT0}, s2, 31")
e(f"s_lshl_b32 s{sT0}, s{sT0}, 7")
e(f"s_add_u32 s{sT0}, s{sT0}, {FL_X}")
e(f"buffer_load_dwordx2 v[10:11], v8, {sr(R_WS,4)}, s{sT0} offen sc1")
e(f"s_getreg_b32 s{sX}, hwreg(HW_REG_XCC_ID, 0, 4)")
e(f"s_or_b32 s{sX}, s{sX}, s{sNON}")
e(f"s_mov_b32 s{sX+1}, s{sNON+1}")
e(f"v_mov_b32 v9, {MISC+C_SAME}")
e("s_waitcnt vmcnt(0)")
e(f"v_cmp_ne_u64 vcc, {sr(sX,2)}, v[10:11]")
e("s_nop 0")
e("s_cmp_eq_u64 vcc, 0")
e(f"s_cselect_b32 s{sT0}, {1 if opt['fast'] else 0}, 0")
e(f"v_mov_b32 v11, s{sT0}")
e("ds_write_b32 v9, v11")
lab("L_nosame")
if opt['nob'] or opt['abl'] & 4: e("s_branch L_b2done")
cm("B2: wait for the H rows it reads: column groups ebg (direct) or 7-ebg and (8-ebg)&3 (mirrored)")
e(f"s_cmp_eq_u32 s{sA}, 0")
e("s_cbranch_scc0 L_hwait")
e(f"s_lshr_b32 s{sT2}, s{sJ}, 2              ; ebg")
e(f"s_sub_u32 s{sT0}, 7, s{sT2}")
e(f"s_sub_u32 s{sT1}, 8, s{sT2}")
e(f"s_and_b32 s{sT1}, s{sT1}, 3")
e(f"s_cmp_lt_u32 s{sT2}, 4")
e(f"s_cselect_b32 s{sT0}, s{sT2}, s{sT0}")
e(f"s_cselect_b32 s{sT1}, s{sT2}, s{sT1}")
e(f"s_lshl_b32 s{sT0}, s{sT0}, 13")
e(f"s_lshl_b32 s{sT1}, s{sT1}, 13")
e(f"s_add_u32 s{sT0}, s{sT0}, {FL_H}")
e(f"s_add_u32 s{sT1}, s{sT1}, {FL_H}")
poll("L_pollH", 2, vPH, 8, [sT0, sT1], sleep=8)
e(f"v_mov_b32 v10, {MISC+C_HOK}")
e("v_mov_b32 v11, 1")
e("ds_write_b32 v10, v11")
e("s_branch L_hok")
lab("L_hwait")
lds_wait("L_hw", C_HOK, 1, 10, sleep=8)
lab("L_hok")
boost(0)
stamp(7)
e(f"s_mul_i32 s{sT0}, s{sT1S}, {64*HROW}")
e(f"s_add_u32 s{sT0}, s{sT0}, {WS_H}")
AF = 208
for kb in range(8):
    for w in range(4): e(f"buffer_load_dword v{AF+4*kb+w}, v{vB2A}, {sr(R_WS,4)}, s{sT0} offen offset:{w*HROW} sc1")
    if kb < 7: e(f"s_add_u32 s{sT0}, s{sT0}, {4*HROW}")
VM += [('A', 0)]*32
sB2 = 88
def b2compute(low):
    e(f"s_lshl_b32 s{sB2}, s{sEB}, 6")
    e(f"s_add_u32 s{sB2}, s{sB2}, 1024")
    for kb in range(8):
        if low: e(f"s_waitcnt vmcnt({28-4*kb})")
        e(f"v_mfma_f32_32x32x16_bf16 {vr(ACC,16)}, {vr(AF+4*kb,4)}, {vr(bploc(4*kb),4)}, {'0' if kb==0 else vr(ACC,16)}")
    nop(11 if low else 12)
    if low: boost(1)
    for i in range(8): e(f"v_cvt_pk_bf16_f32 v{AF+8+i}, v{ACC+2*i}, v{ACC+2*i+1}")
    if low: b2store()
vRG, vS0, vS1, vO0 = 240, 241, 242, 243
def regroup(src, dst):
    e(f"ds_write_b128 v{vHW}, {vr(src,4)} offset:8192")
    e(f"ds_write_b128 v{vHW1}, {vr(src+4,4)} offset:8192")
    e("s_waitcnt lgkmcnt(0)")
    e(f"ds_read_b128 {vr(dst,4)}, v{vRG} offset:8192")
    e(f"ds_read_b128 {vr(dst+4,4)}, v{vRG} offset:9216")
def rg_addr():
    e(f"v_add_u32 v{vRG}, s{sSL}, v2")
    e(f"v_lshrrev_b32 v8, 4, v{vL}")
    e(f"v_xor_b32 v8, v8, v{vL}")
    e("v_and_b32 v8, 3, v8")
    e("v_lshlrev_b32 v8, 4, v8                 ; chunk * 16")
    e(f"v_lshrrev_b32 v9, 2, v{vL}              ; r")
    e(f"s_lshl_b32 s{sT3}, s{sTB}, 1")
    e(f"s_add_u32 s{sT3}, s{sT3}, s{sTT}")
    e(f"s_lshl_b32 s{sT3}, s{sT3}, 5")
    e(f"v_add_u32 v10, s{sT3}, v9")
    e("v_lshlrev_b32 v10, 11, v10")
    e(f"v_add_u32 v{vO0}, v10, v8")
    e(f"s_lshl_b32 s{sT3}, s{sTT}, 10")
    e(f"s_add_u32 s{sT3}, s{sT3}, s{sT1S}")
    e(f"v_lshl_add_u32 v9, v9, 5, s{sT3}         ; ts")
    e("v_add_u32 v10, 0x200, v9")
    e("v_sub_u32 v11, 0x800, v9")
    e("v_and_b32 v11, 0x7ff, v11")
    e(f"v_sub_u32 v{vS1}, 0x800, v10")
    e(f"s_cmp_lt_u32 s{sEB}, 8")
    e("s_cselect_b64 vcc, 0, -1")
    e("v_cndmask_b32 v9, v9, v11, vcc")
    e(f"v_cndmask_b32 v10, v10, v{vS1}, vcc")
    e(f"v_lshl_add_u32 v{vS0}, v9, 11, v8")
    e(f"v_lshl_add_u32 v{vS1}, v10, 11, v8")
def b2store():
    if opt['rg'] & 1:
        e(f"buffer_store_dwordx4 {vr(AF+16,4)}, v{vS0}, {sr(R_OUT,4)}, s{sB2} offen{OSC}")
        e(f"buffer_store_dwordx4 {vr(AF+20,4)}, v{vS1}, {sr(R_OUT,4)}, s{sB2} offen{OSC}")
        return
    e(f"buffer_store_dwordx4 {vr(AF+8,4)}, v{vB2O}, {sr(R_OUT,4)}, s{sB2} offen{OSC}")
    e(f"buffer_store_dwordx4 {vr(AF+12,4)}, v{vB2O}, {sr(R_OUT,4)}, s{sB2} offen offset:16{OSC}")
if not opt['b2tail']: b2compute(True)
lab("L_b2done")
boost(0)
stamp(8)
for n in range(16 + opt['wsplit'], 24): wo_stage(n)
e("s_waitcnt vmcnt(0) lgkmcnt(0)")
if opt['b2s']:
    boost(1)
    perms()
    rg_addr()
    boost(0)
    e(f"s_lshl_b32 s{sB2}, s{sEB}, 6")
    e(f"s_add_u32 s{sB2}, s{sB2}, 1024")
    for kb in range(8):
        e(f"v_mfma_f32_32x32x16_bf16 {vr(ACC,16)}, {vr(AF+4*kb,4)}, {vr(bploc(4*kb),4)}, {'0' if kb==0 else vr(ACC,16)}")
    nop(11)
    boost(1)
    for i in range(8): e(f"v_cvt_pk_bf16_f32 v{AF+8+i}, v{ACC+2*i}, v{ACC+2*i+1}")
    boost(0)
    regroup(AF+8, AF+16)
    e("s_waitcnt lgkmcnt(0)")
    sc = " sc1" if opt['b2s'] == 1 else ""
    e(f"buffer_store_dwordx4 {vr(AF+16,4)}, v{vS0}, {sr(R_OUT,4)}, s{sB2} offen{sc}")
    e(f"buffer_store_dwordx4 {vr(AF+20,4)}, v{vS1}, {sr(R_OUT,4)}, s{sB2} offen{sc}")
stamp(10)
warm("L_padt", "L_pado_ret")
cm("tail: the attention waves bring the O tile -> LDS 0..")
e("s_barrier                             ; B7")
LOW[0] = False
stamp(9)
if opt['b2tail'] and not opt['nob'] and not opt['abl'] & 20 and not opt['b2s']:
    cm("second spectral stage: operands are in registers, the matrix pipe is free until the O tile lands")
    perms()
    if opt['rg']: rg_addr()
    b2compute(False)
    if opt['rg'] & 1:
        regroup(AF+8, AF+16)
        e("s_waitcnt lgkmcnt(0)")
e(f"s_mov_b32 s{sT0}, s{sWOS}")
stamp(11)
e("s_barrier                             ; B8a")
pad_begin("L_pado")
OF = 144
korder = [h for st in range(4) for h in range(32) if (h % 8) // 2 == st]
PD = opt['opd']
def ofrag(n): e(f"ds_read_b128 {vr(OF+4*(n%8),4)}, v{vOF} offset:{1024*korder[n]}")
for n in range(PD): ofrag(n)
if opt['b2at'] == 0 and opt['b2tail'] and not opt['nob'] and not opt['abl'] & 28 and not opt['b2s']: b2store()
for n in range(32):
    if n + PD in (8, 16, 24):
        e(f"s_barrier                             ; B8.{(n+PD)//8}")
        if n + PD == opt['b2at'] and opt['b2tail'] and not opt['nob'] and not opt['abl'] & 28 and not opt['b2s']: b2store()
    if n + PD < 32:
        ofrag(n + PD)
        e(f"s_waitcnt lgkmcnt({PD})")
    else:
        e(f"s_waitcnt lgkmcnt({31-n})")
    e(f"v_mfma_f32_32x32x16_bf16 {vr(ACC,16)}, {vr(BUF+4*korder[n],4)}, {vr(OF+4*(n%8),4)}, {'0' if n==0 else vr(ACC,16)}")
nop(12)
for i in range(8): e(f"v_cvt_pk_bf16_f32 v{D1+i}, v{ACC+2*i}, v{ACC+2*i+1}")
if opt['rg'] & 2:
    regroup(D1, D1+8)
    e(f"s_add_u32 s{sT1}, s{sT0}, {16*2048}")
    e("s_waitcnt lgkmcnt(1)")
    e(f"buffer_store_dwordx4 {vr(D1+8,4)}, v{vO0}, {sr(R_OUT,4)}, s{sT0} offen{OSC}")
    e("s_waitcnt lgkmcnt(0)")
    e(f"buffer_store_dwordx4 {vr(D1+12,4)}, v{vO0}, {sr(R_OUT,4)}, s{sT1} offen{OSC}")
else:
    e(f"buffer_store_dwordx4 {vr(D1,4)}, v{vOUT}, {sr(R_OUT,4)}, s{sT0} offen{OSC}")
    e(f"buffer_store_dwordx4 {vr(D1+4,4)}, v{vOUT}, {sr(R_OUT,4)}, s{sT0} offen offset:16{OSC}")
pad_end("L_pado", "L_pado_ret")
if opt['dbgt']:
    e(f"s_cmp_lt_u32 s2, 6")
    e("s_cbranch_scc0 L_end")
    e(f"s_cmp_eq_u32 s{sW}, 4")
    e("s_cbranch_scc0 L_end")
    e("s_waitcnt vmcnt(0)")
    e(f"s_memrealtime {sr(sST,2)}")
    e("s_waitcnt lgkmcnt(0)")
    e(f"v_mov_b32 v4, s{sST}")
    e(f"s_lshl_b32 s{sT0}, s2, 2")
    e(f"s_add_u32 s{sT0}, s{sT0}, 40")
    e("s_mov_b64 exec, 1")
    e(f"buffer_store_dword v4, off, {sr(R_DBG,4)}, s{sT0}")
if opt['endat']:
    lab("L_endat")
    e(f"s_memrealtime {sr(sX,2)}")
    e("s_waitcnt lgkmcnt(0)")
    e(f"s_sub_u32 s{sX}, s{sX}, s3")
    e(f"s_cmp_lt_u32 s{sX}, {opt['endat']}")
    e("s_cbranch_scc1 L_endat")
stamp(12)
if opt['stamps']: e("s_waitcnt vmcnt(0)")
stamp(13)
stamp_dump()
lab("L_end")
e("s_endpgm")
lab("L_codeend")
L.append(f""".section .rodata,"a"
.p2align 6
.amdhsa_kernel {NAME}_kernel
  .amdhsa_next_free_vgpr 256
  .amdhsa_next_free_sgpr 102
  .amdhsa_accum_offset 256
  .amdhsa_group_segment_fixed_size 0
  .amdhsa_kernarg_size 104
  .amdhsa_user_sgpr_count 2
  .amdhsa_user_sgpr_kernarg_segment_ptr 1
  .amdhsa_system_sgpr_workgroup_id_x 1
.end_amdhsa_kernel""")

def finish(lines, ncode):
    out = []
    for l in lines:
        if l.strip() == "CODEPF":
            for i in range(ncode // 8192):
                out.append(f"    global_load_dword v200, v[212:213], off")
                out.append(f"    v_add_co_u32 v212, vcc, 0x2000, v212")
                out.append(f"    s_nop 1")
                out.append(f"    v_addc_co_u32 v213, vcc, 0, v213, vcc")
            rem = (ncode % 8192) // 128
            if rem:
                out.append(f"    v_cmp_gt_u32 vcc, {rem}, v{vL}")
                out.append(f"    s_nop 0")
                out.append(f"    s_and_saveexec_b64 {sr(sX,2)}, vcc")
                out.append(f"    global_load_dword v200, v[212:213], off")
                out.append(f"    s_mov_b64 exec, -1")
        else: out.append(l)
    return "\n".join(out) + "\n"
import subprocess, os, hazcheck
ncode = 16384
for _ in range(3):
    txt = finish(L, ncode)
    open("_g.s", "w").write(txt)
    r = subprocess.run(["clang", "-x", "assembler", "-target", "amdgcn-amd-amdhsa", "-mcpu=gfx950", "-c", "_g.s", "-o", "_g.o"], capture_output=True, text=True)
    if r.returncode: print(r.stderr[:3000]); sys.exit(1)
    sz = subprocess.run(["llvm-objdump", "-h", "_g.o"], capture_output=True, text=True).stdout
    n = [int(x.split()[2], 16) for x in sz.splitlines() if " .text " in x][0]
    if n // 128 * 128 == ncode: break
    ncode = n // 128 * 128
open(sys.argv[1], "w").write(txt)
print(hazcheck.check(txt), "hazards; code bytes", n)
```

```python
import sys, struct
NAME = "concat_heads__grouped_kv_mqa__spectral_fnet__prompt"
opt = dict(stamps=0, prioA=1, prioX=2, boost=1, force_fb=0, dbgt=0, dry=0, codepf=0, shift=102, outsc1=0, cluster=1, fast=1, nob=0, l2pf=0, wo1=4, hold=1, pre=1, pads=0, dxcc=-1, dus=300, endat=0, omode=1, b2tail=1, kvd=3, h1=1, h2=4, fs=3, ntc=9, nowo=0, nodsw=0, nomf=0, sp=1, ss=1, wsplit=8, attpf=0, rawlate=1, dftpf=1, fst=6, spw=0, eb=1, qloop=0, padt=0, opd=4, b2at=8, abl=0, preo=0, rg=0, prepoll=0, lwarm=0, csync=0, bytef=0, first=1, b2s=0, mt=1, win=8, win2=8, pa=0, baat=0, stall=0, resc=2)
for a in sys.argv[2:]:
    k, v = a.split('='); opt[k] = int(v)

L = []
DOC = '''; ---------------------------------------------------------------------------------------------------------------
; One persistent launch, 256 workgroups (one per CU) x 8 waves.  Workgroup id -> xcd = id & 7 (locality hint only),
;       S^T = K Q^T + C by MFMA (C = -(stand-in max + shift), scale folded into Q), v_exp_f32 in place, and
;       P V by the 2:4 sparse MFMA whose index picks the upper halves of the fp32 registers (bf16 by truncation);
;       a row of constants in the V operand yields the row sum.  The stand-in max is checked after the loop and
;   waves 4..7 ("aux"): K or V projection of 16 tokens, K/V streaming into LDS, the spectral part
; Hand-offs between workgroups go through d_ws: data stores, s_waitcnt, then a flag (one 128-B line each) holding
; flags from stale ones.  Stores are write-through (sc1) unless all workgroups of the hand-off reported the same XCD;
; ---------------------------------------------------------------------------------------------------------------'''
def e(s=""): L.append("    " + s)
def lab(s): L.append(s + ":")
def cm(s): L.append("    ; " + s)
def vr(a, n): return f"v[{a}:{a+n-1}]" if n > 1 else f"v{a}"
def sr(a, n): return f"s[{a}:{a+n-1}]" if n > 1 else f"s{a}"
def nop(n):
    while n > 0:
        k = min(n, 16); e(f"s_nop {k-1}"); n -= k
def f2u(x): return struct.unpack('<I', struct.pack('<f', x))[0]
OSC = " sc1" if opt['outsc1'] else ""

W_OFF = 0
X_OFF, XROW = 16384, 1040
WQ_OFF = 82944
ONES_OFF = 155648
MISC = ONES_OFF + 1024
STG = 131072
LDS_BYTES = 163840
C_KV, C_H, C_O, C_TAG, C_HOK, C_SAME, C_CR, C_QA, C_QB, C_G1, C_KVL, C_ST = 0, 4, 8, 16, 24, 28, 32, 36, 40, 44, 48, 52
WS_KV, WS_O, WS_H, WS_FL = 0, 0x40000, 0x240000, 0x480000
FL_KV, FL_H, FL_X, FL_O = WS_FL, WS_FL + 0x8000, WS_FL + 0x10000, WS_FL + 0x20000
WS_STAMP = 0x4C0000
WS_SIZE = 0x560000
HROW = 1152
FOUR = 0x01010101 if opt['bytef'] else 4
SPIN = 400000
VSCALE = 64
P_XA, P_WQ, P_WK, P_WV, P_WO, P_XB, P_SRE, P_SIM = 4, 6, 8, 10, 12, 14, 16, 18
P_HRE, P_HIM, P_OUT, P_DBG, P_WS = 20, 22, 24, 26, 28
R_XA, R_WQ, R_W, R_WS, R_WO, R_XB, R_SRE, R_SIM, R_OUT, R_DBG = 32, 36, 40, 44, 48, 52, 56, 60, 64, 68
sW, sXCD, sJ, sTB, sHG, sTHP, sA = 72, 73, 74, 75, 76, 77, 78
sT0, sT1, sT2, sT3, sT4 = 80, 81, 82, 83, 84
sDRY = 85
sNON = 86
sIT, sINC, sFB, sSPIN = 88, 89, 90, 91
sX = 92
sST = 94
sBARN = 96
sRET = 90

def srd(r, p, size):
    e(f"s_mov_b32 s{r}, s{p}")
    e(f"s_and_b32 s{r+1}, s{p+1}, 0xffff")
    e(f"s_mov_b32 s{r+2}, {hex(size)}")
    e(f"s_mov_b32 s{r+3}, 0x20000")

LOW = [False]
vL = 1
def stamp(idx):
    if not opt['stamps']: return
    e(f"s_memrealtime {sr(sST,2)}")
    e(f"s_memtime {sr(sX,2)}")
    e("s_waitcnt lgkmcnt(0)")
    if LOW[0]: e("s_setprio 2")
    e(f"v_writelane_b32 v254, s{sST}, {idx}")
    e(f"v_writelane_b32 v255, s{sX}, {idx}")
    if LOW[0]: e("s_setprio 0")
def stamp_dump():
    if not opt['stamps']: return
    e(f"s_lshl_b32 s{sST}, s2, 3")
    e(f"s_add_u32 s{sST}, s{sST}, s{sW}")
    e(f"s_lshl_b32 s{sST}, s{sST}, 8")
    e(f"s_add_u32 s{sST}, s{sST}, {WS_STAMP}")
    e(f"v_lshlrev_b32 v253, 3, v{vL}")
    e("s_mov_b32 exec_hi, 0")
    e(f"buffer_store_dwordx2 v[254:255], v253, {sr(R_WS,4)}, s{sST} offen")

PADS = {}
def pad_begin(name): PADS[name] = len(L)
def isize(l):
    t = l.strip()
    if not t or t.startswith((';', '.')) or t.endswith(':'): return 0
    t = t.split(';')[0]
    mn = t.split()[0]
    if mn.startswith(('buffer_', 'global_', 'ds_', 'v_mfma', 'v_smfmac', 's_load', 's_mem')): return 8
    if mn.startswith('v_') and (mn.endswith('_e64') or mn in ('v_lshl_add_u32', 'v_bfe_u32', 'v_perm_b32', 'v_max3_f32', 'v_cvt_pk_bf16_f32', 'v_writelane_b32', 'v_mul_u32_u24', 'v_cmp_ne_u64')): return 8
    import re as _r
    for o in _r.findall(r'(?<![\w\[:])(-?0x[0-9a-f]+|-?\d+)(?![\w\]:])', (t.split(None, 1) + [''])[1]):
        v = int(o, 0)
        if not mn.startswith(('s_waitcnt', 's_nop', 's_sleep', 's_setprio')) and not -16 <= v <= 64: return 8
    return 4
def pad_end(name, ret):
    a = PADS[name]
    if not (opt['pads'] if name == "L_padq" else opt['padt']):
        L.insert(a, f"{name}_0:"); L.insert(a + 1, f"    s_cbranch_execz {ret}"); return
    body = L[a:]; del L[a:]
    n = 0; acc = 0
    L.append(f"{name}_0:"); L.append(f"    s_cbranch_execz {name}_1")
    for l in body:
        z = isize(l)
        prev = L[-1].strip()
        if acc + z > 56 and not prev.startswith(('s_mov_b32 m0', 's_add_u32 m0')):
            n += 1; L.append(f"{name}_{n}:"); L.append(f"    s_cbranch_execz {name}_{n+1}"); acc = 0
        L.append(l); acc += z
    n += 1
    L.append(f"{name}_{n}:"); L.append(f"    s_cbranch_execz {ret}")
def warm(name, ret):
    e("s_mov_b64 exec, 0")
    e(f"s_branch {name}_0")
    lab(ret)
    e("s_mov_b64 exec, -1")

def dma(voff, srdr, soff, ldsaddr_s, extra=""):
    e(f"s_mov_b32 m0, s{ldsaddr_s}")
    e("s_nop 0")
    e(f"buffer_load_dwordx4 v{voff}, {sr(srdr,4)}, s{soff} offen {extra}lds")
def dma_run(n, voff, srdr, soff, lds_s, dsrc, dlds, extra=""):
    for i in range(n):
        e(f"s_mov_b32 m0, s{lds_s}")
        if i < n - 1: e(f"s_add_u32 s{lds_s}, s{lds_s}, {dlds}")
        else: e("s_nop 0")
        e(f"buffer_load_dwordx4 v{voff}, {sr(srdr,4)}, s{soff} offen {extra}lds")
        if i < n - 1: e(f"s_add_u32 s{soff}, s{soff}, {dsrc}")

def poll(name, nloads, voff, dst, soffs, sleep=0):
    e(f"s_mov_b32 s{sSPIN}, {SPIN}")
    lab(name)
    for i in range(nloads):
        e(f"buffer_load_dwordx2 {vr(dst+2*i,2)}, v{voff}, {sr(R_WS,4)}, s{soffs[i]} offen sc1")
    e(f"s_sub_u32 s{sSPIN}, s{sSPIN}, 1")
    e(f"s_cmp_eq_u32 s{sSPIN}, 0")
    e(f"s_cbranch_scc1 {name}_done")
    e("s_waitcnt vmcnt(0)")
    e(f"v_cmp_ne_u64 vcc, {sr(sNON,2)}, {vr(dst,2)}")
    for i in range(1, nloads):
        e(f"v_cmp_ne_u64 {sr(sX,2)}, {sr(sNON,2)}, {vr(dst+2*i,2)}")
        e("s_nop 0")
        e(f"s_or_b64 vcc, vcc, {sr(sX,2)}")
    e("s_nop 0")
    e("s_cmp_eq_u64 vcc, 0")
    if sleep:
        e(f"s_cbranch_scc1 {name}_done")
        e(f"s_sleep {sleep}")
        e(f"s_branch {name}")
    else:
        e(f"s_cbranch_scc0 {name}")
    lab(name + "_done")
    e("s_waitcnt vmcnt(0)")

def lds_wait(name, off, value, tmp, sleep=0):
    e(f"s_mov_b32 s{sSPIN}, {SPIN*8}")
    e(f"v_mov_b32 v{tmp}, {MISC + off}")
    lab(name)
    e(f"ds_read_b32 v{tmp+1}, v{tmp}")
    e(f"s_sub_u32 s{sSPIN}, s{sSPIN}, 1")
    e(f"s_cmp_eq_u32 s{sSPIN}, 0")
    e(f"s_cbranch_scc1 {name}_done")
    e("s_waitcnt lgkmcnt(0)")
    e(f"v_readfirstlane_b32 s{sT4}, v{tmp+1}")
    e("s_nop 0")
    e(f"s_cmp_ge_u32 s{sT4}, {value}")
    if sleep:
        e(f"s_cbranch_scc1 {name}_done")
        e(f"s_sleep {sleep}")
        e(f"s_branch {name}")
    else:
        e(f"s_cbranch_scc0 {name}")
    lab(name + "_done")
    e("s_waitcnt lgkmcnt(0)")
def lds_add(off, tmp):
    e(f"v_mov_b32 v{tmp}, {MISC + off}")
    e(f"v_mov_b32 v{tmp+1}, 1")
    e("s_mov_b64 exec, 1")
    e(f"ds_add_u32 v{tmp}, v{tmp+1}")
    e("s_mov_b64 exec, -1")
def tag_from_lds(name, tmp):
    e(f"s_mov_b32 s{sSPIN}, {SPIN*8}")
    e(f"v_mov_b32 v{tmp}, {MISC+C_TAG}")
    lab(name)
    e(f"ds_read_b64 {vr(tmp+2,2)}, v{tmp}")
    e(f"s_sub_u32 s{sSPIN}, s{sSPIN}, 1")
    e(f"s_cmp_eq_u32 s{sSPIN}, 0")
    e(f"s_cbranch_scc1 {name}_done")
    e("s_waitcnt lgkmcnt(0)")
    e(f"v_readfirstlane_b32 s{sNON}, v{tmp+2}")
    e(f"v_readfirstlane_b32 s{sNON+1}, v{tmp+3}")
    e(f"s_cmp_lg_u32 s{sNON}, 0")
    e(f"s_cbranch_scc1 {name}_done")
    e(f"s_sleep {opt['fs']}")
    e(f"s_branch {name}")
    lab(name + "_done")
    e("s_waitcnt lgkmcnt(0)")

def signal(name, ctr_off, last, flag_soff_s, tmp, lo=None, plain_if=None):
    e(f"v_mov_b32 v{tmp}, {MISC + ctr_off}")
    e(f"v_mov_b32 v{tmp+1}, 1")
    e(f"s_mov_b64 exec, 1")
    e(f"ds_add_rtn_u32 v{tmp+1}, v{tmp}, v{tmp+1}")
    e(f"v_mov_b32 v{tmp+2}, s{sNON if lo is None else lo}")
    e(f"v_mov_b32 v{tmp+3}, s{sNON+1}")
    e("s_waitcnt lgkmcnt(0)")
    e(f"v_readfirstlane_b32 s{sT4}, v{tmp+1}")
    e("s_nop 0")
    e(f"s_cmp_eq_u32 s{sT4}, {last}")
    e(f"s_cbranch_scc0 {name}_nf")
    if plain_if is not None:
        e(f"s_cmp_eq_u32 s{plain_if}, 0")
        e(f"s_cbranch_scc1 {name}_wt")
        e(f"buffer_store_dwordx2 {vr(tmp+2,2)}, off, {sr(R_WS,4)}, s{flag_soff_s}")
        if opt['omode'] < 2: e(f"s_branch {name}_nf")
        lab(name + "_wt")
    e(f"buffer_store_dwordx2 {vr(tmp+2,2)}, off, {sr(R_WS,4)}, s{flag_soff_s} sc1")
    lab(name + "_nf")
    e("s_mov_b64 exec, -1")

hdr = open(f"cdna_kernels/{NAME}.s.ref").read().split("; Override launch")[0]
L.append(hdr.rstrip())
L.append(f"; @launch grid=(256,1,1) block=(512,1,1) lds={LDS_BYTES}")
L.append('.amdgcn_target "amdgcn-amd-amdhsa--gfx950"')
L.append(DOC)
L.append(".text")
L.append(f".globl {NAME}_kernel")
L.append(".p2align 8")
L.append(f".type {NAME}_kernel,@function")
lab(f"{NAME}_kernel")
e("s_cmp_ge_u32 s2, 256")
e("s_cbranch_scc1 L_end")
e("s_load_dwordx16 s[4:19], s[0:1], 0")
e("s_load_dwordx8 s[20:27], s[0:1], 64")
e("s_load_dwordx2 s[28:29], s[0:1], 96")
e(f"s_memrealtime {sr(sNON,2)}")
if opt['endat'] or opt['baat']:
    e("s_waitcnt lgkmcnt(0)")
    e(f"s_mov_b32 s3, s{sNON}")
if opt['dxcc'] >= 0:
    e(f"s_getreg_b32 s{sT0}, hwreg(HW_REG_XCC_ID, 0, 4)")
    e(f"s_cmp_eq_u32 s{sT0}, {opt['dxcc']}") if opt['dxcc'] < 8 else e(f"s_cmp_eq_u32 s{sT0}, s{sT0}")
    e("s_cbranch_scc0 L_nodelay")
    e("s_waitcnt lgkmcnt(0)")
    lab("L_delay")
    e(f"s_memrealtime {sr(sX,2)}")
    e("s_waitcnt lgkmcnt(0)")
    e(f"s_sub_u32 s{sX}, s{sX}, s{sNON}")
    e(f"s_cmp_lt_u32 s{sX}, {opt['dus']}")
    e("s_cbranch_scc1 L_delay")
    lab("L_nodelay")
e("v_lshrrev_b32 v2, 6, v0")
e(f"v_and_b32 v{vL}, 63, v0")
e(f"v_readfirstlane_b32 s{sW}, v2")
e(f"s_and_b32 s{sXCD}, s2, 7")
e(f"s_lshr_b32 s{sJ}, s2, 3")
e(f"s_and_b32 s{sT0}, s{sJ}, 3")
e(f"s_lshl_b32 s{sTB}, s{sXCD}, 2")
e(f"s_add_u32 s{sTB}, s{sTB}, s{sT0}")
e(f"s_lshr_b32 s{sHG}, s{sJ}, 2")
e(f"s_lshr_b32 s{sTHP}, s{sHG}, 1")
e(f"s_and_b32 s{sA}, s{sW}, 3")
e(f"v_lshlrev_b32 v2, 4, v{vL}          ; v2 = lane*16")
cm("LDS init while the kernel arguments load: ones / zeros window (even 16-B chunks 2^64, odd chunks 0), counters")
ONE = (127 + VSCALE) << 7
e("v_lshrrev_b32 v5, 3, v0")
e("v_cmp_ne_u32 vcc, 8, v5")
e("v_and_b32 v4, 1, v0")
e("v_add_u32 v4, -1, v4")
e(f"v_and_b32 v4, {hex(ONE << 16 | ONE)}, v4")
e("v_cndmask_b32 v4, 0, v4, vcc")
e(f"v_lshlrev_b32 v3, 4, v0")
e("v_mov_b32 v5, v4")
e("v_mov_b32 v6, v4")
e("v_mov_b32 v7, v4")
e(f"v_add_u32 v3, {ONES_OFF}, v3")
e("ds_write_b128 v3, v[4:7]")
e(f"s_mov_b32 s{R_XA+2}, 0x200000")
e(f"s_mov_b32 s{R_XA+3}, 0x20000")
def aux_first():
    if opt['prioX']: e(f"s_setprio {opt['prioX']}")
    cm("critical loads: projection weight (wk for even hg, wv for odd), x rows 16*blk + 4a + i")
    e(f"s_lshl_b32 s{sT0}, s{sTHP}, 4")
    e(f"s_lshl_b32 s{sT1}, s{sA}, 2")
    e(f"s_add_u32 s{sT0}, s{sT0}, s{sT1}")
    e(f"s_mul_i32 s{sT1}, s{sT0}, {XROW}")
    e(f"s_add_u32 s{sT1}, s{sT1}, {X_OFF}")
    e(f"s_lshl_b32 s{sT2}, s{sTB}, 6")
    e(f"s_add_u32 s{sT2}, s{sT2}, s{sT0}")
    e(f"s_lshl_b32 s{sT2}, s{sT2}, 10")
    e(f"s_lshl_b32 s{sT3}, s{sA}, 12")
    e(f"s_mov_b32 s{R_W+2}, 16384")
    e(f"s_mov_b32 s{R_W+3}, 0x20000")
    e(f"s_mov_b32 m0, s{sT3}")
    e(f"s_bitcmp1_b32 s{sHG}, 0")
    e("s_waitcnt lgkmcnt(0)")
    e(f"s_cselect_b32 s{R_W}, s{P_WV}, s{P_WK}")
    e(f"s_cselect_b32 s{R_W+1}, s{P_WV+1}, s{P_WK+1}")
    e(f"s_and_b32 s{R_W+1}, s{R_W+1}, 0xffff")
    e(f"s_mov_b32 s{R_XA}, s{P_XA}")
    e(f"s_and_b32 s{R_XA+1}, s{P_XA+1}, 0xffff")
    srd(R_DBG, P_DBG, 256)
    cm("workgroup 0, aux wave 3 publishes this launch's hand-off tag")
    e(f"s_or_b32 s{sNON}, s{sNON}, 16")
    e(f"s_and_b32 s{sNON}, s{sNON}, -16")
    e(f"s_lshl_b32 s{sT0}, s2, 3")
    e(f"s_add_u32 s{sT0}, s{sT0}, s{sW}")
    e(f"s_cmp_eq_u32 s{sT0}, 7")
    e("s_cbranch_scc0 L_notag")
    e(f"v_mov_b32 v4, s{sNON}")
    e(f"v_mov_b32 v5, s{sNON+1}")
    e("s_mov_b64 exec, 1")
    e(f"buffer_store_dwordx2 v[4:5], off, {sr(R_DBG,4)}, 0 sc1")
    e("s_mov_b64 exec, -1")
    lab("L_notag")
    NT = lambda b: "nt " if opt['ntc'] >> b & 1 else ""
    for i in range(4): e(f"buffer_load_dwordx4 v2, {sr(R_W,4)}, s{sT3} offen offset:{1024*i} {NT(1)}lds")
    dma_run(4, 2, R_XA, sT2, sT1, 1024, XROW, NT(0))
    stamp(0)
    srd(R_WS, P_WS, WS_SIZE)
    if opt['dbgt']:
        e(f"s_cmp_lt_u32 s2, 8")
        e("s_cbranch_scc0 L_nodbg0")
        e(f"s_cmp_eq_u32 s{sW}, 6")
        e("s_cbranch_scc0 L_nodbg0")
        e(f"v_mov_b32 v4, s{sNON}")
        e(f"s_lshl_b32 s{sT0}, s2, 2")
        e(f"s_add_u32 s{sT0}, s{sT0}, 8")
        e("s_mov_b64 exec, 1")
        e(f"buffer_store_dword v4, off, {sr(R_DBG,4)}, s{sT0}")
        e("s_mov_b64 exec, -1")
        lab("L_nodbg0")
    e("s_barrier                             ; B1")
if opt['first']:
    cm("the aux waves' first loads are the longest dependency chain: their code directly follows the entry")
    e(f"s_cmp_lt_u32 s{sW}, 4")
    e("s_cbranch_scc1 L_att0")
    aux_first()
    e("s_branch L_aux")
    lab("L_att0")
else:
    e(f"s_cmp_ge_u32 s{sW}, 4")
    e("s_cbranch_scc1 L_aux")

cm("wq slice (8 rows x 128 B per load, 16-B chunks swizzled by row bit 1); quarter tb&3 first: distinct among its 4 sharers")
e(f"v_lshrrev_b32 v3, 3, v{vL}          ; r")
e(f"v_and_b32 v4, 7, v{vL}")
e(f"v_bfe_u32 v5, v{vL}, 4, 1           ; (r>>1)&1")
e("v_lshlrev_b32 v5, 2, v5")
e("v_xor_b32 v4, v4, v5")
e("v_lshlrev_b32 v4, 4, v4")
e("v_lshl_add_u32 v13, v3, 10, v4")
e(f"s_mov_b32 s{R_WQ+2}, 0x80000")
e(f"s_mov_b32 s{R_WQ+3}, 0x20000")
def wq_addr(q):
    e(f"s_add_u32 s{sT0}, s{sJ}, {q}")
    e(f"s_and_b32 s{sT0}, s{sT0}, 3")
    e(f"s_lshl_b32 s{sT0}, s{sT0}, 2")
    e(f"s_add_u32 s{sT0}, s{sT0}, s{sW}")
    e(f"s_lshl_b32 s{sT2}, s{sT0}, 15")
    e(f"s_lshl_b32 s{sT1}, s{sHG}, 7")
    e(f"s_add_u32 s{sT2}, s{sT2}, s{sT1}")
    e(f"s_lshl_b32 s{sT1}, s{sT0}, 12")
    e(f"s_add_u32 s{sT1}, s{sT1}, {WQ_OFF}")
wq_addr(0)
e("s_waitcnt lgkmcnt(0)")
e(f"s_mov_b32 s{R_WQ}, s{P_WQ}")
e(f"s_and_b32 s{R_WQ+1}, s{P_WQ+1}, 0xffff")
e(f"s_mov_b32 s{R_XA}, s{P_XA}")
e(f"s_and_b32 s{R_XA+1}, s{P_XA+1}, 0xffff")
stamp(0)
e("s_barrier")
NT = lambda b: "nt " if opt['ntc'] >> b & 1 else ""
dma_run(4, 13, R_WQ, sT2, sT1, 8192, 1024, NT(2))
cm("the 48 rows of the x tile the aux waves do not load: blocks blk+1, blk+2, blk+3 (mod 4), 4 rows per wave each")
def x_addr(d):
    e(f"s_add_u32 s{sT0}, s{sTHP}, {d}")
    e(f"s_and_b32 s{sT0}, s{sT0}, 3")
    e(f"s_lshl_b32 s{sT0}, s{sT0}, 2")
    e(f"s_add_u32 s{sT0}, s{sT0}, s{sW}")
    e(f"s_lshl_b32 s{sT0}, s{sT0}, 2          ; first row")
    e(f"s_mul_i32 s{sT1}, s{sT0}, {XROW}")
    e(f"s_add_u32 s{sT1}, s{sT1}, {X_OFF}")
    e(f"s_lshl_b32 s{sT2}, s{sTB}, 6")
    e(f"s_add_u32 s{sT2}, s{sT2}, s{sT0}")
    e(f"s_lshl_b32 s{sT2}, s{sT2}, 10")
def hold(name, ctr, val):
    lds_wait(name, ctr, val, 8, sleep=opt['fs'])
seq = [('x', 1), ('x', 2), ('x', 3), ('q', 1), ('q', 2), ('q', 3)]
for n, (kind, d) in enumerate(seq):
    (x_addr if kind == 'x' else wq_addr)(d)
    if opt['win']:
        W = opt['win'] if n < 2 else opt['win2']
        if 4*(n + 2) > W: e(f"s_waitcnt vmcnt({W - 4})")
    else:
        if n == opt['h1']: hold("L_hold1", C_CR, FOUR)
        if n == opt['h2']: hold("L_hold2", C_KV, 1)
    if kind == 'x': dma_run(4, 2, R_XA, sT2, sT1, 1024, XROW, NT(3))
    else: dma_run(4, 13, R_WQ, sT2, sT1, 8192, 1024, NT(4))
stamp(7)
srd(R_WS, P_WS, WS_SIZE)
SA, SB, OA, OB, CA, CB = 16, 32, 48, 64, 80, 96
QA, QB, K0, K1, V0, V1 = 112, 116, 120, 124, 128, 136
vIDX, vK, vV = 144, 145, 146
vINC, vV0, vSAME = 147, 150, 151
vXA, vWA = 148, 149
FB = 152
cm("Q-projection addresses")
e(f"s_and_b32 s{sT0}, s{sW}, 1            ; th")
e(f"s_lshr_b32 s{sT1}, s{sW}, 1           ; hp")
e(f"v_and_b32 v3, 31, v{vL}")
e(f"s_lshl_b32 s{sT2}, s{sT0}, 5")
e(f"v_add_u32 v3, s{sT2}, v3")
e(f"v_mul_u32_u24 v3, {XROW}, v3")
e(f"v_lshrrev_b32 v4, 5, v{vL}           ; h")
e(f"v_lshl_add_u32 v14, v4, 4, v3")
e(f"v_bfe_u32 v5, v{vL}, 2, 2            ; r")
e("v_lshl_add_u32 v6, v4, 3, v5          ; 8h + r")
e("v_lshlrev_b32 v6, 7, v6")
e(f"v_bfe_u32 v7, v{vL}, 4, 1            ; g")
e(f"v_and_b32 v8, 1, v{vL}")
e("v_lshl_add_u32 v7, v7, 1, v8          ; 2g + (cc&1)")
e(f"s_lshl_b32 s{sT2}, s{sT1}, 2")
e(f"v_add_u32 v7, s{sT2}, v7")
e(f"v_bfe_u32 v8, v{vL}, 3, 1            ; (r>>1)&1")
e("v_lshlrev_b32 v8, 2, v8")
e("v_xor_b32 v7, v7, v8")
e("v_lshl_add_u32 v6, v7, 4, v6")
e(f"v_bfe_u32 v8, v{vL}, 1, 1")
e("v_lshl_add_u32 v6, v8, 3, v6")
e(f"v_add_u32 v{vWA}, {WQ_OFF}, v6")
e(f"v_add_u32 v{vXA}, {X_OFF}, v14")
cm("attention LDS addresses; V: rows 0..15 -> tile data, lanes 16,20 -> 2^64, other lanes -> 0")
e(f"v_mov_b32 v{vIDX}, 0xdddddddd")
e(f"v_bfe_u32 v5, v{vL}, 4, 1")
e(f"v_xor_b32 v5, 1, v5                   ; 1 for V rows, 0 for the constant lanes")
e(f"v_lshlrev_b32 v{vINC}, 13, v5")
e(f"v_and_b32 v8, 15, v{vL}")
e("v_lshlrev_b32 v9, 8, v4")
e("v_lshl_add_u32 v8, v8, 4, v9")
e(f"v_and_b32 v9, 31, v{vL}")
e("v_add_u32 v10, -20, v9")
e("v_cmp_gt_u32 vcc, 8, v10")
e("v_and_b32 v9, 11, v9")
e("v_min_u32 v9, 1, v9")
e("v_cndmask_b32 v10, 0, 64, vcc")
e(f"v_cmp_eq_u32 vcc, 1, v5")
e("v_lshl_add_u32 v9, v9, 4, v10")
e(f"v_add_u32 v9, {ONES_OFF - 1024}, v9")
e(f"v_cndmask_b32 v{vV0}, v9, v8, vcc")
cm("O fragment destination and flag slot")
sOD, sOF = 97, 98
e(f"s_and_b32 s{sT0}, s{sW}, 1")
e(f"s_lshl_b32 s{sT1}, s{sTB}, 1")
e(f"s_add_u32 s{sT0}, s{sT0}, s{sT1}")
e(f"s_lshl_b32 s{sT0}, s{sT0}, 5          ; (tb*2+th)*32")
e(f"s_lshl_b32 s{sT1}, s{sHG}, 2")
e(f"s_add_u32 s{sT0}, s{sT0}, s{sT1}")
e(f"s_and_b32 s{sT1}, s{sW}, 2")
e(f"s_add_u32 s{sT0}, s{sT0}, s{sT1}")
e(f"s_lshl_b32 s{sT0}, s{sT0}, 10")
e(f"s_add_u32 s{sOD}, s{sT0}, {WS_O}")
e(f"s_lshl_b32 s{sT1}, s{sTB}, 3")
e(f"s_add_u32 s{sT1}, s{sT1}, s{sHG}")
e(f"s_lshl_b32 s{sT1}, s{sT1}, 2")
e(f"s_add_u32 s{sT1}, s{sT1}, s{sW}")
e(f"s_lshl_b32 s{sT1}, s{sT1}, 7")
e(f"s_add_u32 s{sOF}, s{sT1}, {FL_O}")
e(f"s_mov_b32 s{sFB}, 0")
e(f"s_mov_b32 s{sBARN}, 0xa")
e(f"v_mov_b32 v{vSAME}, {MISC}")
sPF, sOL, sOS, vPO = 100, 101, 79, 184
e(f"s_lshl_b32 s{sT0}, s{sTB}, 3")
e(f"s_lshl_b32 s{sT1}, s{sW}, 1")
e(f"s_add_u32 s{sT0}, s{sT0}, s{sT1}")
e(f"s_lshl_b32 s{sT0}, s{sT0}, 9")
e(f"s_add_u32 s{sPF}, s{sT0}, {FL_O}")
e(f"s_lshl_b32 s{sT2}, s{sTB}, 16")
e(f"s_lshl_b32 s{sOL}, s{sW}, 13")
e(f"s_add_u32 s{sT2}, s{sT2}, s{sOL}")
e(f"s_add_u32 s{sOS}, s{sT2}, {WS_O}")
e(f"v_and_b32 v8, 7, v{vL}")
e(f"v_lshlrev_b32 v{vPO}, 7, v8")
for i in range(16): e(f"v_mov_b32 v{OA+i}, 0")
for i in range(16): e(f"v_mov_b32 v{OB+i}, 0")
for i in range(4): e(f"v_mov_b32 v{V1+4+i}, 0")
if opt['qloop']:
    for i in range(16): e(f"v_mov_b32 v{SA+i}, 0")
e(f"v_mov_b32 v{vK}, v2")
e(f"v_mov_b32 v{vV}, v{vV0}")
if opt['dftpf']:
    cm("sequence-DFT rows the aux waves read later (pulled towards L2 from inside the loop):")
    cm("wave 0: cos rows t1s + 32l; wave 1: sin rows 2048 - that; waves 2, 3: cos / sin rows 64 (l & 31)")
    R_DP, vDP = R_XA, 187
    e(f"s_bitcmp1_b32 s{sW}, 0")
    e(f"s_cselect_b64 {sr(R_DP,2)}, {sr(P_SIM,2)}, {sr(P_SRE,2)}")
    e(f"s_and_b32 s{R_DP+1}, s{R_DP+1}, 0xffff")
    e(f"s_mov_b32 s{R_DP+2}, 0x800000")
    e(f"v_lshlrev_b32 v8, 5, v{vL}")
    e(f"v_add_u32 v8, s{sTB}, v8               ; t1s = tb")
    e("v_sub_u32 v9, 0x800, v8")
    e("v_and_b32 v9, 0x7ff, v9")
    e(f"v_lshlrev_b32 v10, 6, v{vL}")
    e("v_and_b32 v10, 0x7ff, v10")
    e(f"s_cmp_eq_u32 s{sW}, 1")
    e("s_cselect_b64 vcc, -1, 0")
    e("v_cndmask_b32 v8, v8, v9, vcc")
    e(f"s_cmp_ge_u32 s{sW}, 2")
    e("s_cselect_b64 vcc, -1, 0")
    e("v_cndmask_b32 v8, v8, v10, vcc")
    e(f"v_lshlrev_b32 v{vDP}, 12, v8")
if opt['preo']:
    cm("output lines this workgroup writes at the end (touched from inside the loop, values unused):")
    cm("waves 0, 2: rows 64tb + l, columns of hg; waves 1, 3: rows tb + 32l (mirrored for hg >= 4), spectral columns of hg")
    vOP, sOP = 186, 30
    srd(R_OUT, P_OUT, 4194304)
    e(f"v_lshlrev_b32 v8, 5, v{vL}")
    e(f"v_add_u32 v8, s{sTB}, v8")
    e("v_sub_u32 v9, 0x800, v8")
    e("v_and_b32 v9, 0x7ff, v9")
    e(f"s_cmp_ge_u32 s{sHG}, 4")
    e("s_cselect_b64 vcc, -1, 0")
    e("v_cndmask_b32 v8, v8, v9, vcc")
    e(f"s_lshl_b32 s{sT0}, s{sTB}, 6")
    e(f"v_add_u32 v9, s{sT0}, v{vL}")
    e(f"s_bitcmp1_b32 s{sW}, 0")
    e("s_cselect_b64 vcc, -1, 0")
    e(f"s_cselect_b32 s{sOP}, 0x400, 0")
    e("v_cndmask_b32 v8, v9, v8, vcc")
    e(f"v_lshlrev_b32 v{vOP}, 11, v8")
    e(f"s_lshl_b32 s{sT0}, s{sHG}, 7")
    e(f"s_add_u32 s{sOP}, s{sOP}, s{sT0}")
e(f"s_mov_b32 s{sT0}, {hex(f2u(0.25*1.4426950408889634))}")
warm("L_padq", "L_padq_ret")
e("s_waitcnt vmcnt(0)")
stamp(8)
e("s_barrier")
stamp(10)
pad_begin("L_padq")
def qload(ks):
    b = FB + 8*(ks % 4)
    e(f"ds_read_b64_tr_b16 {vr(b,2)}, v{vWA} offset:{ks*2048}")
    e(f"ds_read_b64_tr_b16 {vr(b+2,2)}, v{vWA} offset:{ks*2048+512}")
    e(f"ds_read_b128 {vr(b+4,4)}, v{vXA} offset:{ks*32}")
for ks in range(3): qload(ks)
if opt['qloop']:
    cm("4 trips of 8 k-steps; the last trip's look-ahead reads land in unused registers")
    e(f"s_mov_b32 s{sIT}, 0")
    lab("L_qloop")
    for ks in range(8):
        b = FB + 8*(ks % 4)
        qload(ks + 3); e("s_waitcnt lgkmcnt(9)")
        e(f"v_mfma_f32_32x32x16_bf16 {vr(SA,16)}, {vr(b,4)}, {vr(b+4,4)}, {vr(SA,16)}")
        if ks == 7:
            e(f"v_add_u32 v{vWA}, 0x4000, v{vWA}")
            e(f"v_add_u32 v{vXA}, 0x100, v{vXA}")
        if ks == 6:
            e(f"s_add_u32 s{sIT}, s{sIT}, 1")
            e(f"s_cmp_lt_u32 s{sIT}, 4")
    e("s_cbranch_scc1 L_qloop")
    e("s_waitcnt lgkmcnt(0)")
else:
    for ks in range(32):
        b = FB + 8*(ks % 4)
        if ks + 3 < 32:
            qload(ks + 3); e("s_waitcnt lgkmcnt(9)")
        else:
            e(f"s_waitcnt lgkmcnt({3*(31-ks)})")
        c = "0" if ks == 0 else vr(SA, 16)
        e(f"v_mfma_f32_32x32x16_bf16 {vr(SA,16)}, {vr(b,4)}, {vr(b+4,4)}, {c}")
stamp(9)
nop(8 if opt['qloop'] else 12)
for i in range(16): e(f"v_mul_f32 v{SA+i}, s{sT0}, v{SA+i}")
for i in range(8): e(f"v_cvt_pk_bf16_f32 v{QA+i}, v{SA+2*i}, v{SA+2*i+1}")
if opt['prioA']: e(f"s_setprio {opt['prioA']}")
stamp(2)
if opt['attpf']:
    cm("after BA: pull this workgroup's 1/32 share of what its XCD reads later towards L2 (one dword per 128-B line)")
    cm("wave 0: x_B rows 64j + 8xcd + (0..7); waves 1, 2: hidden cos / sin rows 8j..8j+7; wave 3: wo rows 16j..16j+15")
    R_PF = R_WQ
    e(f"s_cmp_eq_u32 s{sW}, 1")
    e(f"s_cselect_b64 {sr(R_PF,2)}, {sr(P_HRE,2)}, {sr(P_HIM,2)}")
    e(f"s_lshl_b32 s{sT2}, s{sJ}, 13")
    e(f"s_cmp_eq_u32 s{sW}, 3")
    e(f"s_cselect_b64 {sr(R_PF,2)}, {sr(P_WO,2)}, {sr(R_PF,2)}")
    e(f"s_cselect_b32 s{sT3}, s{sT2}, 0")
    e(f"s_add_u32 s{sT2}, s{sT2}, s{sT3}")
    e(f"s_lshl_b32 s{sT3}, s{sJ}, 16")
    e(f"s_lshl_b32 s{sT1}, s{sXCD}, 13")
    e(f"s_add_u32 s{sT3}, s{sT3}, s{sT1}")
    e(f"s_cmp_eq_u32 s{sW}, 0")
    e(f"s_cselect_b64 {sr(R_PF,2)}, {sr(P_XB,2)}, {sr(R_PF,2)}")
    e(f"s_cselect_b32 s{sT2}, s{sT3}, s{sT2}")
    e(f"s_cselect_b32 s{R_PF+2}, 0x200000, s{R_PF+2}")
    e(f"s_and_b32 s{R_PF+1}, s{R_PF+1}, 0xffff")
    e(f"s_add_u32 s{sT3}, s{sT2}, 8192")
    e(f"v_lshlrev_b32 v6, 7, v{vL}")
if opt['baat']:
    lab("L_baat")
    e(f"s_memrealtime {sr(sX,2)}")
    e("s_waitcnt lgkmcnt(0)")
    e(f"s_sub_u32 s{sX}, s{sX}, s3")
    e(f"s_cmp_lt_u32 s{sX}, {opt['baat']}")
    e("s_cbranch_scc1 L_baat")
e("s_barrier")
stamp(3)
PFLOAD = True
MT = opt['mt']
cm(f"stand-in for the row max: max over the first {MT} key tile(s) (checked after the loop; fallback = true max)")
e(f"ds_read_b128 {vr(K0,4)}, v{vK}")
e(f"ds_read_b128 {vr(K1,4)}, v{vK} offset:2048")
KX = FB
for t in range(2, MT): e(f"ds_read_b128 {vr(KX+4*(t-2),4)}, v{vK} offset:{2048*t}")
e(f"ds_read_b128 {vr(V0,4)}, v{vV} offset:1024")
e(f"ds_read_b128 {vr(V0+4,4)}, v{vV} offset:1536")
def max16(dst, s, acc=None):
    if acc is None:
        e(f"v_max3_f32 v{dst}, v{s}, v{s+1}, v{s+2}"); i = 3
        while i + 1 < 16:
            e(f"v_max3_f32 v{dst}, v{dst}, v{s+i}, v{s+i+1}"); i += 2
        e(f"v_max_f32 v{dst}, v{dst}, v{s+15}")
    else:
        for i in range(0, 16, 2): e(f"v_max3_f32 v{dst}, v{dst}, v{s+i}, v{s+i+1}")
nrd = 4 + max(0, MT - 2)
e(f"s_waitcnt lgkmcnt({nrd - 1})")
e(f"v_mfma_f32_32x32x16_bf16 {vr(SA,16)}, {vr(K0,4)}, {vr(QA,4)}, 0")
e(f"v_mfma_f32_32x32x16_bf16 {vr(SB,16)}, {vr(K0,4)}, {vr(QB,4)}, 0")
if MT == 1:
    nop(11)
    max16(4, SA); max16(5, SB)
else:
    kreg = [K0, K1] + [KX + 4*t for t in range(2)]
    bufs = [(SA, SB), (CA, CB)]
    e(f"s_waitcnt lgkmcnt({nrd - 2})")
    e(f"v_mfma_f32_32x32x16_bf16 {vr(CA,16)}, {vr(K1,4)}, {vr(QA,4)}, 0")
    e(f"v_mfma_f32_32x32x16_bf16 {vr(CB,16)}, {vr(K1,4)}, {vr(QB,4)}, 0")
    e("s_waitcnt lgkmcnt(2)")
    nop(7)
    for t in range(MT):
        a, b = bufs[t % 2]
        max16(4, a, None if t == 0 else 1)
        if t + 2 < MT: e(f"v_mfma_f32_32x32x16_bf16 {vr(a,16)}, {vr(kreg[t+2],4)}, {vr(QA,4)}, 0")
        max16(5, b, None if t == 0 else 1)
        if t + 2 < MT: e(f"v_mfma_f32_32x32x16_bf16 {vr(b,16)}, {vr(kreg[t+2],4)}, {vr(QB,4)}, 0")
lab("L_setmax")
cm(f"v4 / v5 = per-lane max for tiles A / B; combine the two half-waves, C = -(max + {opt['shift']})")
e("v_mov_b32 v6, v4")
e("v_mov_b32 v7, v5")
e(f"s_mov_b32 s{sIT}, 0")
e("s_nop 0")
e("v_permlane32_swap_b32 v4, v6")
e("v_permlane32_swap_b32 v5, v7")
e("v_max_f32 v4, v4, v6")
e("v_max_f32 v5, v5, v7")
for i in range(16): e(f"v_sub_f32 v{CA+i}, {hex(f2u(-float(opt['shift'])))}, v4")
e(f"v_sub_f32 v{CB}, {hex(f2u(-float(opt['shift'])))}, v5")
e("s_waitcnt lgkmcnt(0)")
e(f"v_mfma_f32_32x32x16_bf16 {vr(SA,16)}, {vr(K0,4)}, {vr(QA,4)}, {vr(CA,16)}")
for i in range(1, 16): e(f"v_mov_b32 v{CB+i}, v{CB}")
for i in range(8): e(f"v_mov_b32 v{SB+8+i}, 0")
def SM(o, a, b): e(f"v_smfmac_f32_32x32x32_bf16 {vr(o,16)}, {vr(a,4)}, {vr(b,8)}, v{vIDX}")
def QK(d, k, q, c): e(f"v_mfma_f32_32x32x16_bf16 {vr(d,16)}, {vr(k,4)}, {vr(q,4)}, {vr(c,16)}")
def EX(s, a, b):
    for i in range(a, b): e(f"v_exp_f32 v{s+i}, v{s+i}")
pad_end("L_padq", "L_padq_ret")
stamp(13)
L.append(".p2align 6")
lab("L_att_loop")
for u in range(4):
    kc, kn = (K0, K1) if u % 2 == 0 else (K1, K0)
    vc, vp = (V0, V1) if u % 2 == 0 else (V1, V0)
    voffs = ((u + 1) % 4) * 2048 + 1024
    koffs = ((u + 2) % 4) * 2048
    p0, p1, p2 = (4, 7, 10) if opt['cluster'] else (2, 5, 10)
    EX(SA, 0, p0)
    SM(OB, vp + 4, SB + 8)
    e(f"s_waitcnt lgkmcnt({2 if u == 1 and opt['csync'] else 1})")
    EX(SA, p0, p1)
    QK(SB, kc, QB, CB)
    e(f"ds_read_b128 {vr(vp,4)}, v{vV} offset:{voffs}")
    EX(SA, p1, p2)
    SM(OA, vc, SA)
    e(f"ds_read_b128 {vr(vp+4,4)}, v{vV} offset:{voffs+512}")
    EX(SA, p2, 16)
    EX(SB, 0, p0)
    SM(OA, vc + 4, SA + 8)
    e("s_waitcnt lgkmcnt(2)")
    if u == 1:
        pass
    EX(SB, p0, p1)
    QK(SA, kn, QA, CA)
    e(f"ds_read_b128 {vr(kc,4)}, v{vK} offset:{koffs}")
    EX(SB, p1, p2)
    SM(OB, vc, SB)
    if u == 1:
        e(f"s_bitcmp1_b32 s{sBARN}, s{sIT}")
        e("s_cbranch_scc1 L_sync")
        lab("L_nobar")
        e(f"v_add_u32 v{vK}, 0x2000, v{vK}")
    if u == 2:
        e(f"v_add_u32 v{vV}, v{vINC}, v{vV}")
    if u == 3:
        e(f"s_add_u32 s{sIT}, s{sIT}, 1")
        e(f"s_cmp_lt_u32 s{sIT}, 16")
    if u == 0 and opt['csync']: e(f"ds_read_b64 v[4:5], v{vSAME} offset:{C_G1}")
    elif u == 0 and opt['cluster']: e("s_nop 0")
    EX(SB, p2, 16)
e("s_cbranch_scc1 L_att_loop")
if opt['lwarm']: e("s_cbranch_execz L_lwarm_ret           ; only the instruction-cache warm-up pass has EXEC = 0")
stamp(18)
pad_begin("L_padt")
e(f"s_mov_b32 s{sT0}, {hex(f2u(2.0**100) if not opt['force_fb'] else f2u(2.0**-30))}")
e(f"v_rcp_f32 v4, v{OA+8}")
SM(OB, V1 + 4, SB + 8)
e(f"ds_read_b32 v7, v{vSAME} offset:{C_SAME}")
e(f"ds_read_b64 v[8:9], v{vSAME} offset:{C_TAG}")
cm("run-time check of the stand-in: l*2^64 must be finite and <= 2^100, else redo with the true row max")
e(f"v_cmp_nle_f32_e64 vcc, v{OA+8}, s{sT0}")
for i in range(8): e(f"v_mul_f32 v{SA+i}, v4, v{OA+i}")
for i in range(4): e(f"v_cvt_pk_bf16_f32 v{SA+i}, v{SA+2*i}, v{SA+2*i+1}")
sSAME = 99
e("s_waitcnt lgkmcnt(0)")
e(f"v_readfirstlane_b32 s{sSAME}, v7")
e(f"v_rcp_f32 v5, v{OB+8}")
e(f"v_cmp_nle_f32_e64 {sr(sX,2)}, v{OB+8}, s{sT0}")
cm("plain stores only when every workgroup of this token block reported the same XCD; else write-through")
e(f"s_cmp_eq_u32 s{sSAME}, 0")
e("s_cbranch_scc1 L_ostA_wt")
OM = " sc1" if opt['omode'] >= 2 else ""
e(f"buffer_store_dwordx4 {vr(SA,4)}, v2, {sr(R_WS,4)}, s{sOD} offen{OM}")
lab("L_ostA_done")
for i in range(8): e(f"v_mul_f32 v{SB+i}, v5, v{OB+i}")
e(f"s_or_b64 vcc, vcc, {sr(sX,2)}")
for i in range(4): e(f"v_cvt_pk_bf16_f32 v{SA+4+i}, v{SB+2*i}, v{SB+2*i+1}")
e("s_cmp_eq_u64 vcc, 0")
e("s_cbranch_scc0 L_fallback")
lab("L_att_done")
e(f"s_cmp_eq_u32 s{sSAME}, 0")
e("s_cbranch_scc1 L_ost_wt")
e(f"buffer_store_dwordx4 {vr(SA+4,4)}, v2, {sr(R_WS,4)}, s{sOD} offen offset:1024{OM}")
stamp(6)
e(f"v_readfirstlane_b32 s{sNON}, v8")
e(f"v_readfirstlane_b32 s{sNON+1}, v9")
e("s_mov_b64 exec, 1")
e("s_waitcnt vmcnt(0)")
e(f"buffer_store_dwordx2 v[8:9], off, {sr(R_WS,4)}, s{sOF}")
if opt['omode'] == 3: e(f"buffer_store_dwordx2 v[8:9], off, {sr(R_WS,4)}, s{sOF} sc1")
lab("L_ost_done")
e("s_mov_b64 exec, -1")
stamp(5)
e("s_barrier")
stamp(4)
cm("gather the O tile of this token block: wave w takes producers 2w, 2w+1, in four steps of two heads")
poll("L_pollO", 1, vPO, 10, [sPF])
stamp(11)
for st in range(4):
    for th in range(2):
        e(f"s_add_u32 m0, s{sOL}, {2048*st + 32768*th}")
        e(f"s_add_u32 s{sT1}, s{sOS}, {2048*st + 32768*th}")
        for i in range(2): e(f"buffer_load_dwordx4 v2, {sr(R_WS,4)}, s{sT1} offen offset:{1024*i} sc1 lds")
pad_end("L_padt", "L_pado_0")
for st in range(4):
    e(f"s_waitcnt vmcnt({12 - 4*st})")
    if st == 0: stamp(12)
    e(f"s_barrier                             ; B8.{st}: heads 8w + {2*st}, {2*st+1} of every wave landed")
stamp_dump()
e("s_endpgm")
lab("L_ostA_wt")
e(f"buffer_store_dwordx4 {vr(SA,4)}, v2, {sr(R_WS,4)}, s{sOD} offen sc1")
e("s_branch L_ostA_done")
lab("L_ost_wt")
e(f"buffer_store_dwordx4 {vr(SA+4,4)}, v2, {sr(R_WS,4)}, s{sOD} offen offset:1024 sc1")
stamp(6)
e(f"v_readfirstlane_b32 s{sNON}, v8")
e(f"v_readfirstlane_b32 s{sNON+1}, v9")
e("s_mov_b64 exec, 1")
e("s_waitcnt vmcnt(0)")
e(f"buffer_store_dwordx2 v[8:9], off, {sr(R_WS,4)}, s{sOF} sc1")
e("s_branch L_ost_done")
def rescale():
    E0 = VSCALE - opt['shift']
    p2 = 10
    cm("v6/v7 = delta (>= 0) as float, v8/v10 = 2^-delta for tiles A / B")
    for t, (O, d, f, tmp) in enumerate(((OA, 6, 8, 12), (OB, 10, 14, 13))):
        if t == 1: nop(1)
        e(f"v_frexp_exp_i32_f32 v{tmp}, v{O+8}")
        e(f"v_add_u32 v{tmp}, {-1 - E0}, v{tmp}")
        e(f"v_med3_i32 v{tmp}, v{tmp}, 0, s{sT3}")
        e(f"v_cvt_f32_i32 v{d}, v{tmp}")
        e(f"v_sub_u32 v{tmp}, 0, v{tmp}")
        e(f"v_ldexp_f32 v{f}, 1.0, v{tmp}")
        if t == 0:
            for r in range(0, 10, 2): e(f"v_pk_mul_f32 {vr(O+r,2)}, {vr(O+r,2)}, {vr(f,2)} op_sel_hi:[1,0]")
    for r in range(0, 10, 2): e(f"v_pk_mul_f32 {vr(OB+r,2)}, {vr(OB+r,2)}, {vr(14,2)} op_sel_hi:[1,0]")
    e(f"v_pk_mul_f32 {vr(SB+8,2)}, {vr(SB+8,2)}, {vr(14,2)} op_sel_hi:[1,0]")
    sub = lambda r, d: e(f"v_pk_add_f32 {vr(r,2)}, {vr(r,2)}, {vr(d,2)} op_sel_hi:[1,0] neg_lo:[0,1] neg_hi:[0,1]")
    for r in range(p2, 16, 2): sub(SB + r, 10)
    for r in range(0, 16, 2): sub(SA + r, 6)
    for r in range(0, 16, 2): sub(CA + r, 6)
    for r in range(0, 16, 2): sub(CB + r, 10)
lab("L_sync")
e(f"s_cmp_eq_u32 s{sIT}, 1")
e("s_cbranch_scc0 L_sync3")
stamp(14)
if opt['csync']:
    e(f"v_readfirstlane_b32 s{sT4}, v4")
    e("s_nop 0")
    e(f"s_cmp_ge_u32 s{sT4}, {FOUR}")
    e("s_cbranch_scc1 L_nobar") if not opt['stamps'] else e("s_cbranch_scc1 L_wg1_done")
lds_wait("L_wg1", C_G1, FOUR, 4)
stamp(15)
if opt['resc'] & 1:
    e(f"s_mov_b32 s{sT3}, 120")
    rescale()
e("s_branch L_nobar")
lab("L_sync3")
if opt['stall']: e(f"s_sleep {opt['stall']}")
if opt['dftpf']: e(f"buffer_load_dword v185, v{vDP}, {sr(R_DP,4)}, 0 offen")
if opt['preo']:
    e(f"s_cmp_lt_u32 s{sW}, 2")
    e("s_cbranch_scc0 L_nopo")
    e(f"buffer_load_dword v188, v{vOP}, {sr(R_OUT,4)}, s{sOP} offen{' sc1' if opt['preo'] == 1 else ''}")
    lab("L_nopo")
stamp(16)
if opt['csync']:
    e(f"v_readfirstlane_b32 s{sT4}, v5")
    e("s_nop 0")
    e(f"s_cmp_ge_u32 s{sT4}, {FOUR}")
    e("s_cbranch_scc1 L_nobar") if not opt['stamps'] else e("s_cbranch_scc1 L_wkvl_done")
lds_wait("L_wkvl", C_KVL, FOUR, 4)
stamp(17)
if opt['resc'] & 2:
    e(f"s_mov_b32 s{sT3}, 120")
    rescale()
e("s_branch L_nobar")
lab("L_fallback")
e(f"s_cmp_eq_u32 s{sFB}, 0")
e("s_cbranch_scc0 L_att_done")
cm("fallback: exact row max over all 64 key tiles, then repeat the main loop")
e(f"s_mov_b32 s{sFB}, 1")
e(f"s_mov_b32 s{sBARN}, 0")
e(f"v_mov_b32 v4, 0xff800000")
e(f"v_mov_b32 v5, 0xff800000")
e(f"v_mov_b32 v{vK}, v2")
e(f"s_mov_b32 s{sIT}, 0")
lab("L_fb_loop")
e(f"ds_read_b128 {vr(K0,4)}, v{vK}")
e("s_waitcnt lgkmcnt(0)")
e(f"v_mfma_f32_32x32x16_bf16 {vr(SA,16)}, {vr(K0,4)}, {vr(QA,4)}, 0")
e(f"v_mfma_f32_32x32x16_bf16 {vr(SB,16)}, {vr(K0,4)}, {vr(QB,4)}, 0")
e(f"v_add_u32 v{vK}, 0x800, v{vK}")
nop(11)
max16(4, SA, 1); max16(5, SB, 1)
e(f"s_add_u32 s{sIT}, s{sIT}, 1")
e(f"s_cmp_lt_u32 s{sIT}, 64")
e("s_cbranch_scc1 L_fb_loop")
e(f"v_mov_b32 v{vK}, v2")
e(f"v_mov_b32 v{vV}, v{vV0}")
for i in range(16): e(f"v_mov_b32 v{OA+i}, 0")
for i in range(16): e(f"v_mov_b32 v{OB+i}, 0")
for i in range(4): e(f"v_mov_b32 v{V1+4+i}, 0")
e(f"ds_read_b128 {vr(K0,4)}, v{vK}")
e(f"ds_read_b128 {vr(K1,4)}, v{vK} offset:2048")
e(f"ds_read_b128 {vr(V0,4)}, v{vV} offset:1024")
e(f"ds_read_b128 {vr(V0+4,4)}, v{vV} offset:1536")
e("s_branch L_setmax")

lab("L_aux")
BUF = 16
BP = 144
FR = 176
ACC = 192
D1, D2 = 208, 224
if not opt['first']: aux_first()
KV0 = len(L)
e(f"v_mov_b32 v14, {MISC+C_CR}")
if opt['bytef']: e(f"v_add_u32 v14, s{sA}, v14")
e(f"v_mov_b32 v15, 1")
cm("K / V projection of 16 tokens: aux wave 0")
e(f"s_cmp_eq_u32 s{sA}, 0")
e("s_cbranch_scc0 L_np")
e(f"v_and_b32 v3, 15, v{vL}")
e(f"v_lshrrev_b32 v4, 4, v{vL}           ; q")
e(f"s_lshl_b32 s{sT0}, s{sTHP}, 4")
e(f"v_add_u32 v5, s{sT0}, v3")
e(f"v_mul_u32_u24 v5, {XROW}, v5")
e("v_lshl_add_u32 v5, v4, 4, v5")
e(f"v_add_u32 v5, {X_OFF}, v5")
e(f"v_bfe_u32 v6, v{vL}, 2, 2            ; r")
e("v_lshl_add_u32 v6, v4, 3, v6")
e("v_lshlrev_b32 v6, 5, v6")
e(f"v_and_b32 v7, 3, v{vL}               ; cc")
sB = sT3
e(f"s_and_b32 s{sB}, s{sTHP}, 1            ; b")
e(f"s_lshr_b32 s{sT0}, s{sTHP}, 1")
e(f"s_lshl_b32 s{sT2}, s{sTB}, 1")
e(f"s_add_u32 s{sT2}, s{sT2}, s{sT0}")
sKF, sKD = 97, 96
e(f"s_lshl_b32 s{sT1}, s{sT2}, 1")
e(f"s_and_b32 s{sT0}, s{sHG}, 1")
e(f"s_add_u32 s{sT1}, s{sT1}, s{sT0}")
e(f"s_lshl_b32 s{sT1}, s{sT1}, 1")
e(f"s_add_u32 s{sT1}, s{sT1}, s{sB}")
e(f"s_lshl_b32 s{sT1}, s{sT1}, 7")
e(f"s_add_u32 s{sKF}, s{sT1}, {FL_KV}")
e(f"s_lshl_b32 s{sKD}, s{sT2}, 11")
e("v_and_b32 v9, 1, v4")
e("v_lshlrev_b32 v9, 3, v9")
e("v_lshl_add_u32 v9, v3, 4, v9          ; n*16 + (q&1)*8")
e("v_lshrrev_b32 v8, 1, v4")
e(f"s_mov_b32 s{sDRY}, {1 if opt['dry'] else 0}")
if opt['pre']:
    cm("touch the lines this wave will publish (tile and flag), so the write-through stores find them resident")
    e(f"v_and_b32 v12, 15, v{vL}")
    e("v_lshlrev_b32 v12, 7, v12")
    e(f"buffer_load_dword v201, v12, {sr(R_WS,4)}, s{sKD} offen sc1")
    e(f"buffer_load_dword v202, off, {sr(R_WS,4)}, s{sKF} sc1")
def kvchain(isV):
    D = opt['kvd']
    def mf(k2):
        b2 = BUF + 8*k2
        a, bb = (b2+4, b2) if isV else (b2, b2+4)
        e(f"v_mfma_f32_16x16x32_bf16 {vr(ACC,4)}, {vr(a,4)}, {vr(bb,4)}, {'0' if k2==0 else vr(ACC,4)}")
    for ks in range(16):
        b = BUF + 8*ks
        e(f"ds_read_b64_tr_b16 {vr(b,2)}, v6 offset:{ks*1024}")
        e(f"ds_read_b64_tr_b16 {vr(b+2,2)}, v6 offset:{ks*1024+128}")
        e(f"ds_read_b128 {vr(b+4,4)}, v5 offset:{ks*64}")
        if ks >= D:
            e(f"s_waitcnt lgkmcnt({3*D})"); mf(ks - D)
    for k2 in range(16 - D, 16):
        e(f"s_waitcnt lgkmcnt({3*(15-k2)})"); mf(k2)
def kv_wait(tagname):
    e(f"s_waitcnt vmcnt({2 if opt['pre'] else 0})")
    stamp(1)
    e("s_mov_b64 exec, 1")
    e("ds_write_b8 v14, v15" if opt['bytef'] else "ds_add_u32 v14, v15")
    e("s_mov_b64 exec, -1")
    lds_wait(tagname + "_w", C_CR, FOUR, 10, sleep=1)
def kv_b1(tagname):
    if not opt['dry']: kv_wait(tagname)
    lab(tagname)
def kv_b2(tagname):
    if opt['dry']:
        e(f"s_cmp_eq_u32 s{sDRY}, 0")
        e(f"s_cbranch_scc1 {tagname}_go")
        e(f"s_mov_b32 s{sDRY}, 0")
        kv_wait(tagname)
        e(f"s_branch {tagname}")
        lab(tagname + "_go")
e(f"s_bitcmp1_b32 s{sHG}, 0")
e("s_cbranch_scc1 L_prodV")
cm("K: (q>>1)*512 + (16b+n)*16 + (q&1)*8")
e("v_lshl_add_u32 v6, v7, 3, v6")
e("v_lshl_add_u32 v8, v8, 9, v9")
e(f"s_lshl_b32 s{sT1}, s{sB}, 8")
e(f"s_add_u32 s{sKD}, s{sKD}, s{sT1}")
kv_b1("L_chK"); kvchain(False); kv_b2("L_chK")
nop(6 if opt['dry'] else 8)
e("s_branch L_prodS")
lab("L_prodV")
cm("V: 1024 + b*512 + (q>>1)*256 + n*16 + (q&1)*8")
e("v_lshl_add_u32 v8, v8, 8, v9")
e("v_and_b32 v9, 1, v7")
e("v_lshl_add_u32 v6, v9, 4, v6")
e("v_lshrrev_b32 v9, 1, v7")
e("v_lshl_add_u32 v6, v9, 3, v6")
e(f"s_lshl_b32 s{sT1}, s{sB}, 9")
e(f"s_add_u32 s{sKD}, s{sKD}, s{sT1}")
e(f"s_add_u32 s{sKD}, s{sKD}, 1024")
kv_b1("L_chV"); kvchain(True); kv_b2("L_chV")
e(f"s_mov_b32 s{sT0}, {hex(f2u(2.0**VSCALE))}")
nop(6 if opt['dry'] else 8)
for i in range(4): e(f"v_mul_f32 v{ACC+i}, s{sT0}, v{ACC+i}")
lab("L_prodS")
e(f"v_cvt_pk_bf16_f32 v10, v{ACC}, v{ACC+1}")
e(f"v_cvt_pk_bf16_f32 v11, v{ACC+2}, v{ACC+3}")
e(f"buffer_store_dwordx2 v[10:11], v8, {sr(R_WS,4)}, s{sKD} offen sc1")
stamp(14)
e("ds_add_u32 v14, v15 offset:%d             ; this wave is done with the weight region" % (C_KV - C_CR + 65536) if False else f"v_mov_b32 v13, {MISC+C_KV}")
e("s_mov_b64 exec, 1")
e("ds_write_b32 v13, v15")
e("s_mov_b64 exec, -1")
tag_from_lds("L_tagp", 4)
e(f"v_mov_b32 v6, s{sNON}")
e(f"v_mov_b32 v7, s{sNON+1}")
e("s_mov_b64 exec, 1")
e("s_waitcnt vmcnt(0)")
e(f"buffer_store_dwordx2 v[6:7], off, {sr(R_WS,4)}, s{sKF} sc1")
e("s_mov_b64 exec, -1")
stamp(15)
if opt['pa']: e("s_branch L_tagged0")
else:
    e(f"s_mov_b32 s{sRET}, 1")
    e("s_branch L_tagged")
lab("L_np")
e("s_waitcnt vmcnt(0)")
stamp(1)
e("s_mov_b64 exec, 1")
e("ds_write_b8 v14, v15" if opt['bytef'] else "ds_add_u32 v14, v15")
e("s_mov_b64 exec, -1")
if opt['codepf']:
    cm("aux wave 2 pulls this kernel's code towards L2 (reads only)")
    e(f"s_cmp_eq_u32 s{sA}, 2")
    e("s_cbranch_scc0 L_nopf")
    e(f"s_getpc_b64 {sr(sX,2)}")
    lab("L_pc")
    e(f"v_lshlrev_b32 v4, 7, v{vL}")
    e(f"s_sub_u32 s{sX}, s{sX}, L_pc-{NAME}_kernel")
    e(f"s_subb_u32 s{sX+1}, s{sX+1}, 0")
    e(f"v_mov_b32 v5, s{sX+1}")
    e(f"v_add_co_u32 v4, vcc, s{sX}, v4")
    e("s_nop 1")
    e("v_addc_co_u32 v5, vcc, 0, v5, vcc")
    e("CODEPF")
    lab("L_nopf")
if opt['lwarm']:
    cm("aux wave 1 walks once through the attention loop with every lane off (LDS and register traffic only) to warm the instruction cache")
    e(f"s_cmp_eq_u32 s{sA}, 1")
    e("s_cbranch_scc0 L_nolw")
    e(f"s_mov_b32 s{sIT}, 15")
    e(f"s_mov_b32 s{sBARN}, 0")
    e("s_setprio 0")
    e("s_mov_b64 exec, 0")
    e("s_branch L_att_loop")
    lab("L_lwarm_ret")
    e("s_mov_b64 exec, -1")
    e(f"s_setprio {opt['prioX']}")
    lab("L_nolw")
e(f"s_cmp_eq_u32 s{sA}, 3")
e("s_cbranch_scc0 L_tagged0")
cm("aux wave 3 fetches this launch's hand-off tag (bounded spin) and posts it in LDS")
e(f"s_mov_b32 s{sSPIN}, {SPIN}")
lab("L_tag")
e(f"buffer_load_dwordx2 v[14:15], off, {sr(R_DBG,4)}, 0 sc1")
e(f"s_sub_u32 s{sSPIN}, s{sSPIN}, 1")
e(f"s_cmp_eq_u32 s{sSPIN}, 0")
e("s_cbranch_scc1 L_tag_done")
e("s_waitcnt vmcnt(0)")
e("v_cmp_eq_u32 vcc, 0, v14")
e("s_nop 0")
e("s_cmp_eq_u64 vcc, 0")
e("s_cbranch_scc0 L_tag")
lab("L_tag_done")
e("s_waitcnt vmcnt(0)")
e(f"v_mov_b32 v12, {MISC+C_TAG}")
e("ds_write_b64 v12, v[14:15]")
cm("report this workgroup's XCD id (tag | id)")
e(f"s_getreg_b32 s{sT2}, hwreg(HW_REG_XCC_ID, 0, 4)")
e(f"s_lshl_b32 s{sT1}, s2, 7")
e(f"s_add_u32 s{sT1}, s{sT1}, {FL_X}")
e(f"v_or_b32 v14, s{sT2}, v14")
e("s_mov_b64 exec, 1")
e(f"buffer_store_dwordx2 v[14:15], off, {sr(R_WS,4)}, s{sT1} sc1")
e("s_mov_b64 exec, -1")
import re
def ren(m):
    n = int(m.group(1)); return f"v{208+n}" if 3 <= n <= 15 else m.group(0)
def ren2(m):
    a, b = int(m.group(1)), int(m.group(2)); return f"v[{208+a}:{208+b}]" if 3 <= a <= 15 else m.group(0)
for k in range(KV0, len(L)):
    L[k] = re.sub(r"v\[(\d+):(\d+)\]", ren2, re.sub(r"\bv(\d+)\b", ren, L[k]))
e(f"s_mov_b32 s{sRET}, 0") if False else None
lab("L_tagged0")
e(f"s_mov_b32 s{sRET}, 0")
e("s_branch L_addr")
lab("L_tagged")
stamp(2)
tag_from_lds("L_tagx", 8)
cm("the weight region is reused only after the projection wave is done with it")
lds_wait("L_wkv", C_KV, 1, 8, sleep=opt['fs'])
cm("key tiles in rotated order (own XCD's tiles first); wave a covers tiles 8g + 2a, 8g + 2a + 1: flags 32g + 8a + (0..7)")
vCNT = 248
sKG, sKL, sKS, sKP = 97, 85, 88, 96
e(f"v_and_b32 v{ACC+2}, 7, v{vL}")
e(f"v_lshlrev_b32 v{ACC+2}, 7, v{ACC+2}")
e(f"s_lshl_b32 s{sKP}, s{sA}, 10")
e(f"s_add_u32 s{sKP}, s{sKP}, {FL_KV}")
e(f"s_lshl_b32 s{sT1}, s{sXCD}, 12")
e(f"s_add_u32 s{sT1}, s{sT1}, s{sKP}")
e(f"s_lshl_b32 s{sKL}, s{sA}, 12")
e(f"s_lshl_b32 s{sKG}, s{sXCD}, 14")
e("s_barrier                             ; B2")
stamp(16)
poll("L_pollK0", 1, ACC+2, 8, [sT1])
stamp(3)
def kvdma(G):
    e(f"s_add_u32 m0, s{sKL}, {16384*G}")
    e(f"s_add_u32 s{sKS}, s{sKG}, s{sKL}")
    for i in range(4): e(f"buffer_load_dwordx4 v2, {sr(R_WS,4)}, s{sKS} offen offset:{1024*i} sc1 lds")
    if G < 7:
        e(f"s_add_u32 s{sKG}, s{sKG}, 16384")
        e(f"s_and_b32 s{sKG}, s{sKG}, 0x1ffff")
kvdma(0)
if opt['prepoll']:
    cm("one early look at the flags of all other key tiles; its latency overlaps the first tiles' landing")
    e(f"v_lshrrev_b32 v{ACC+4}, 3, v{vL}")
    e(f"v_lshlrev_b32 v{ACC+4}, 12, v{ACC+4}")
    e(f"v_add_u32 v{ACC+4}, v{ACC+4}, v{ACC+2}")
    e(f"buffer_load_dwordx2 {vr(ACC+6,2)}, v{ACC+4}, {sr(R_WS,4)}, s{sKP} offen sc1")
e(f"s_cmp_eq_u32 s{sRET}, 1")
e("s_cbranch_scc0 L_addr_2")
lab("L_addr")
srd(R_SRE, P_SRE, 8388608)
srd(R_SIM, P_SIM, 8388608)
srd(R_XB, P_XB, 2097152)
srd(R_WO, P_WO, 524288)
srd(R_OUT, P_OUT, 4194304)
sT1S, sEB, sTT, sS2, sCB = 98, 99, 100, 101, 79
R_HRE, R_HIM = R_XA, R_W
e(f"s_and_b32 s{sT0}, s{sJ}, 3")
e(f"s_lshl_b32 s{sT1S}, s{sXCD}, 2")
e(f"s_add_u32 s{sT1S}, s{sT1S}, s{sT0}       ; t1s")
e(f"s_lshr_b32 s{sT0}, s{sJ}, 2")
e(f"s_lshl_b32 s{sT0}, s{sT0}, 1")
e(f"s_lshr_b32 s{sEB}, s{sA}, 1")
e(f"s_add_u32 s{sEB}, s{sEB}, s{sT0}         ; eb")
e(f"s_and_b32 s{sTT}, s{sA}, 1               ; tt")
e(f"s_and_b32 s{sT0}, s{sJ}, 3")
e(f"s_lshl_b32 s{sT0}, s{sT0}, 1")
e(f"s_lshl_b32 s{sS2}, s{sXCD}, 3")
e(f"s_add_u32 s{sS2}, s{sS2}, s{sT0}")
e(f"s_add_u32 s{sS2}, s{sS2}, s{sTT}         ; s2 = 8 xcd + 2 (j&3) + (a&1)")
e(f"s_mov_b32 s{sCB}, s{sEB}                 ; cb = 2 (j>>2) + (a>>1)")
srd(R_HRE, P_HRE, 524288)
srd(R_HIM, P_HIM, 524288)
e(f"v_and_b32 v3, 31, v{vL}                ; n")
e(f"v_lshrrev_b32 v4, 5, v{vL}             ; h")
e(f"s_lshl_b32 s{sT0}, s{sTT}, 5")
e(f"v_add_u32 v5, s{sT0}, v3")
e("v_lshlrev_b32 v5, 5, v5")
e(f"v_add_u32 v13, s{sT1S}, v5")
vG0, vG1, vRX, vRW = 240, 242, 244, 246
vDRE, vDIM = 251, 252
vB2A, vB2O, vHA, vWOD, vWOT, vOF, vOUT, vPH, vPK, vF = 4, 3, 15, 14, 0, 5, 6, 7, 12, 13
cm("B1 staging, loader side: wave a fills block a (0,1: x_B rows of s2, s2+1; 2,3: DFT rows of cb, cb+1),")
cm("16 rows x 64 B per load, row r -> rho = 8*bit2 + 4*bit3 + (r&3), 16-B chunk (l&3) ^ ((l>>4)&3)")
e(f"v_bfe_u32 v5, v{vL}, 2, 2")
e(f"v_bfe_u32 v6, v{vL}, 4, 1")
e("v_lshl_add_u32 v5, v6, 3, v5")
e("v_lshl_add_u32 v5, v4, 2, v5            ; rho")
e(f"v_lshrrev_b32 v6, 4, v{vL}")
e(f"v_xor_b32 v6, v6, v{vL}")
e("v_and_b32 v6, 3, v6")
e("v_lshlrev_b32 v6, 4, v6                 ; chunk * 16")
e(f"s_and_b32 s{sT0}, s{sS2}, -2")
e(f"s_add_u32 s{sT0}, s{sT0}, s{sA}")
e(f"s_lshl_b32 s{sT0}, s{sT0}, 10")
e(f"s_and_b32 s{sT1}, s{sCB}, -2")
e(f"s_add_u32 s{sT1}, s{sT1}, s{sTT}")
e(f"s_lshl_b32 s{sT1}, s{sT1}, 14")
e(f"s_add_u32 s{sT2}, s{sT0}, 0x100000")
e(f"s_cmp_lt_u32 s{sA}, 2")
e(f"s_cselect_b32 s{sT3}, 16, 10")
e(f"s_cselect_b32 s{sT0}, s{sT0}, s{sT1}")
e(f"s_cselect_b32 s{sT2}, s{sT2}, s{sT1}")
e(f"s_cselect_b64 {sr(sX,2)}, {sr(P_XB,2)}, {sr(P_HRE,2)}")
e(f"s_cselect_b64 {sr(sST,2)}, {sr(P_XB,2)}, {sr(P_HIM,2)}")
e(f"v_lshlrev_b32 v5, s{sT3}, v5")
e("v_add_u32 v5, v5, v6")
e(f"v_add_u32 v7, s{sT0}, v5")
e(f"v_mov_b32 v{vG0+1}, s{sX+1}")
e(f"v_add_co_u32 v{vG0}, vcc, s{sX}, v7")
e(f"v_add_u32 v7, s{sT2}, v5")
e(f"v_mov_b32 v{vG1+1}, s{sST+1}")
e(f"v_addc_co_u32 v{vG0+1}, vcc, 0, v{vG0+1}, vcc")
e(f"v_add_co_u32 v{vG1}, vcc, s{sST}, v7")
e(f"s_lshl_b32 s{sT1}, s{sT1}, 2")
e(f"s_add_u32 s{sT1}, s{sT1}, s{sA}")
e(f"v_addc_co_u32 v{vG1+1}, vcc, 0, v{vG1+1}, vcc")
e(f"s_cmp_eq_u32 s{sT1}, 2")
e("s_cbranch_scc0 L_nospec0")
cm("cb = 0: the im slot of e = 0 (lanes 0..3 of the second load) carries cos row 256")
e("s_mov_b64 exec, 15")
e("v_add_u32 v7, 0x40000, v6")
e(f"v_mov_b32 v{vG1+1}, s{P_HRE+1}")
e(f"v_add_co_u32 v{vG1}, vcc, s{P_HRE}, v7")
e("s_nop 1")
e(f"v_addc_co_u32 v{vG1+1}, vcc, 0, v{vG1+1}, vcc")
e("s_mov_b64 exec, -1")
lab("L_nospec0")
cm("reader side: row m, chunk (2s+h) ^ ((m>>2)&3)")
e("v_bfe_u32 v5, v3, 2, 2")
e("v_xor_b32 v5, v5, v4")
e("v_lshlrev_b32 v5, 4, v5")
e("v_lshl_add_u32 v5, v3, 6, v5")
e(f"s_lshl_b32 s{sT0}, s{sTT}, 11")
e(f"s_add_u32 s{sT0}, s{sT0}, {STG}")
e(f"v_add_u32 v{vRX}, s{sT0}, v5")
e(f"v_xor_b32 v{vRX+1}, 32, v{vRX}")
e(f"s_lshr_b32 s{sT0}, s{sA}, 1")
e(f"s_lshl_b32 s{sT0}, s{sT0}, 11")
e(f"s_add_u32 s{sT0}, s{sT0}, {STG + 4096}")
e(f"v_add_u32 v{vRW}, s{sT0}, v5")
e(f"v_xor_b32 v{vRW+1}, 32, v{vRW}")
vHW, vHW1, vHR, vHS = 250, 253, BUF, BUF + 1
cm("H regrouping: write row t1, chunk (2h+i) ^ ((t1>>2)&3); read lane-linear; store row l>>2, chunk (l&3) ^ ((l>>4)&3)")
e(f"s_lshl_b32 s{sT0}, s{sA}, 11")
e(f"s_add_u32 s{sT0}, s{sT0}, {STG}")
e("v_bfe_u32 v5, v3, 2, 2")
e("v_lshlrev_b32 v7, 1, v4")
e("v_xor_b32 v5, v5, v7")
e("v_lshlrev_b32 v5, 4, v5")
e("v_lshl_add_u32 v5, v3, 6, v5")
e(f"v_add_u32 v{vHW}, s{sT0}, v5")
e(f"v_xor_b32 v{vHW1}, 16, v{vHW}")
e(f"v_add_u32 v{BUF}, s{sT0}, v2")
e(f"v_lshrrev_b32 v5, 2, v{vL}")
e(f"v_mul_u32_u24 v5, {64*HROW}, v5")
e(f"v_add_u32 v{BUF+1}, v5, v6")
cm("e = 256 store address: t1*64*HROW")
e(f"v_mul_u32_u24 v8, {64*HROW}, v3")
e(f"v_lshl_add_u32 v{vHA}, v4, 5, v8")
cm("wo: DMA source offset and transposing read: row 8h+r, 16-B chunk 4cbk + 2(cc&1) + g, byte 8(cc>>1)")
e(f"v_lshrrev_b32 v8, 3, v{vL}")
e(f"v_and_b32 v9, 7, v{vL}")
e(f"v_bfe_u32 v10, v{vL}, 4, 1")
e("v_lshlrev_b32 v10, 2, v10")
e("v_xor_b32 v9, v9, v10")
e("v_lshlrev_b32 v9, 4, v9")
e(f"v_lshl_add_u32 v{vWOD}, v8, 10, v9")
e(f"v_bfe_u32 v9, v{vL}, 2, 2")
e("v_lshl_add_u32 v9, v4, 3, v9")
e("v_lshlrev_b32 v9, 7, v9")
e(f"v_and_b32 v10, 1, v{vL}")
e(f"v_bfe_u32 v11, v{vL}, 4, 1")
e("v_lshl_add_u32 v10, v10, 1, v11")
e(f"s_lshr_b32 s{sT0}, s{sA}, 1")
e(f"s_lshl_b32 s{sT0}, s{sT0}, 2")
e(f"v_add_u32 v10, s{sT0}, v10")
e(f"v_bfe_u32 v11, v{vL}, 3, 1")
e("v_lshlrev_b32 v11, 2, v11")
e("v_xor_b32 v10, v10, v11")
e("v_lshl_add_u32 v9, v10, 4, v9")
e(f"v_bfe_u32 v11, v{vL}, 1, 1")
e("v_lshl_add_u32 v9, v11, 3, v9")
e(f"v_add_u32 v{vWOT}, {STG}, v9")
cm("output projection: out offset, O fragment address")
e(f"s_lshl_b32 s{sT3}, s{sTB}, 1")
e(f"s_and_b32 s{sT4}, s{sA}, 1")
e(f"s_add_u32 s{sT3}, s{sT3}, s{sT4}")
e(f"s_lshl_b32 s{sT3}, s{sT3}, 5")
e(f"v_add_u32 v8, s{sT3}, v3")
e("v_lshlrev_b32 v8, 11, v8")
e(f"v_lshl_add_u32 v{vOUT}, v4, 5, v8")
e(f"s_lshl_b32 s{sT3}, s{sT4}, 15")
e(f"v_add_u32 v{vOF}, s{sT3}, v2")
e(f"v_lshlrev_b32 v{vPH}, 7, v{vL}")

cm("B2 A rows: e(m) = 32eb + col(m) (eb<8) or 512 - that; col(m) = 16*b2 + 4*(m>>3) + (m&3)")
e("v_and_b32 v8, 3, v3")
e("v_bfe_u32 v9, v3, 2, 1")
e("v_lshl_add_u32 v8, v9, 4, v8")
e("v_lshrrev_b32 v9, 3, v3")
e("v_lshl_add_u32 v8, v9, 2, v8")
e(f"s_lshl_b32 s{sT0}, s{sEB}, 5")
e(f"v_add_u32 v8, s{sT0}, v8")
e("v_sub_u32 v9, 0x200, v8")
e("v_sub_u32 v10, 0x800, v13")
e("v_and_b32 v10, 0x7ff, v10               ; (2048 - ts) & 2047")
e(f"s_cmp_lt_u32 s{sEB}, 8")
e("s_cselect_b64 vcc, 0, -1")
e("v_cndmask_b32 v8, v8, v9, vcc")
e("v_cndmask_b32 v11, v13, v10, vcc")
e("v_lshlrev_b32 v10, 12, v10")
e(f"v_lshl_add_u32 v{vDIM}, v4, 6, v10")
e("v_lshlrev_b32 v10, 12, v13")
e(f"v_lshl_add_u32 v{vDRE}, v4, 6, v10")
e("v_lshlrev_b32 v10, 18, v3")
e(f"v_lshl_add_u32 v{vF}, v4, 4, v10")
e(f"v_lshrrev_b32 v10, 3, v{vL}")
e("v_lshlrev_b32 v10, 5, v10")
e(f"v_and_b32 v9, 7, v{vL}")
e("v_add_u32 v10, v10, v9")
e(f"v_lshlrev_b32 v{vPK}, 7, v10             ; K/V flags 32g + (0..7)")
e("v_lshlrev_b32 v11, 11, v11")
e(f"v_lshl_add_u32 v{vB2O}, v4, 5, v11")
e(f"v_mul_u32_u24 v9, {32*HROW}, v4")
e(f"v_lshl_add_u32 v{vB2A}, v8, 2, v9")
e(f"s_cmp_eq_u32 s{sRET}, 0")
e(f"s_mov_b32 s{sRET}, 2")
e("s_cbranch_scc1 L_tagged")
lab("L_addr_2")
e(f"v_mov_b32 v{vCNT}, {MISC+C_G1}")
vCB = 11 if False else 249
if opt['bytef']: e(f"v_add_u32 v{vCNT+1}, s{sA}, v{vCNT}")
e(f"v_mov_b32 v{vCNT+1}, 1") if not opt['bytef'] else None
e("s_waitcnt vmcnt(0)")
stamp(18)
if opt['prepoll']:
    e(f"v_cmp_ne_u64 vcc, {sr(sNON,2)}, {vr(ACC+6,2)}")
e("s_barrier")
if opt['prepoll']:
    e("s_cmp_eq_u64 vcc, 0")
    e("s_cbranch_scc1 L_kv_all")
poll("L_pollKV", 1, vPK, 8, [sKP], sleep=1)
lab("L_kv_all")
stamp(4)
e("s_setprio 0")
LOW[0] = True
for G in range(1, 3): kvdma(G)
stamp(23)
e("s_waitcnt vmcnt(4)")
stamp(24)
e(f"s_mov_b64 exec, {hex(1 << (1)) if opt['bytef'] else 1}          ; lane {1} stores its lane id")
e(f"ds_write_b8 v{vCNT+1}, v{vL} offset:{0}" if opt['bytef'] else f"ds_add_u32 v{vCNT}, v{vCNT+1} offset:{0}")
e("s_mov_b64 exec, -1")
for G in range(3, 8): kvdma(G)
XF, WF = D1, D1 + 8
cm("pull this workgroup's 1/32 share of what its XCD reads for the spectral part and of wo towards L2")
e(f"s_lshl_b32 s{sT0}, s{sJ}, 13")
e(f"s_cmp_eq_u32 s{sA}, 1")
e("s_cbranch_scc1 L_pf1")
e(f"s_cmp_eq_u32 s{sA}, 2")
e("s_cbranch_scc1 L_pf2")
e(f"s_cmp_eq_u32 s{sA}, 3")
e("s_cbranch_scc1 L_pf3")
e(f"s_lshl_b32 s{sT0}, s{sJ}, 16")
e(f"s_lshl_b32 s{sT1}, s{sXCD}, 13")
e(f"s_add_u32 s{sT0}, s{sT0}, s{sT1}")
e(f"buffer_load_dword v{D2+8}, v{vPH}, {sr(R_XB,4)}, s{sT0} offen")
e("s_branch L_pf4")
lab("L_pf1")
e(f"buffer_load_dword v{D2+8}, v{vPH}, {sr(R_HRE,4)}, s{sT0} offen")
e("s_branch L_pf4")
lab("L_pf2")
e(f"buffer_load_dword v{D2+8}, v{vPH}, {sr(R_HIM,4)}, s{sT0} offen")
e("s_branch L_pf4")
lab("L_pf3")
e(f"s_lshl_b32 s{sT0}, s{sJ}, 14")
e(f"buffer_load_dword v{D2+8}, v{vPH}, {sr(R_WO,4)}, s{sT0} offen")
lab("L_pf4")
sSL, sWOS, sWOB = 30, 31, 96
e(f"s_lshl_b32 s{sSL}, s{sA}, 11")
e(f"s_add_u32 s{sSL}, s{sSL}, {STG}")
e(f"s_lshl_b32 s{sWOS}, s{sHG}, 7")
e(f"s_lshl_b32 s{sT1}, s{sA}, 14")
e(f"s_add_u32 s{sWOB}, s{sWOS}, s{sT1}")
e(f"s_lshr_b32 s{sT1}, s{sA}, 1")
e(f"s_lshl_b32 s{sT1}, s{sT1}, 6")
e(f"s_add_u32 s{sWOS}, s{sWOS}, s{sT1}")
VM = []
def st_dma(n):
    if n >= 24: return
    for i in range(2):
        if n < 16:
            e(f"s_add_u32 m0, s{sSL}, {8192*(n%3) + 1024*i - 64*n}")
            e("s_nop 0")
            e(f"global_load_lds_dwordx4 {vr(vG0 + 2*i, 2)}, off offset:{64*n}" if not opt['abl'] & 2 else "s_nop 0")
        else:
            e(f"s_add_u32 m0, s{sSL}, {8192*(n%3) + 1024*i}")
            e(f"s_add_u32 s{sT1}, s{sWOB}, {65536*(n-16) + 8192*i}")
            e(f"buffer_load_dwordx4 v{vWOD}, {sr(R_WO,4)}, s{sT1} offen lds")
        VM.append(('st', n))
def st_sync(n, between=None):
    last = max(k for k, t in enumerate(VM) if t == ('st', n))
    e(f"s_waitcnt vmcnt({len(VM) - 1 - last}) lgkmcnt(0)")
    e(f"s_mov_b64 exec, {hex(1 << (n + 1)) if opt['bytef'] else 1}          ; lane {n + 1} stores its lane id")
    e(f"ds_write_b8 v{vCNT+1}, v{vL} offset:{C_ST - C_G1}" if opt['bytef'] else f"ds_add_u32 v{vCNT}, v{vCNT+1} offset:{C_ST - C_G1}")
    e("s_mov_b64 exec, -1")
    if between: between()
    e(f"s_mov_b32 s{sSPIN}, {SPIN*8}")
    lab(f"L_st{n}")
    e(f"ds_read_b32 v8, v{vCNT} offset:{C_ST - C_G1}")
    e(f"s_sub_u32 s{sSPIN}, s{sSPIN}, 1")
    e(f"s_cbranch_scc1 L_st{n}_done")
    e("s_waitcnt lgkmcnt(0)")
    if (opt['sp'] if n < 16 else opt['spw']): e("s_setprio 2")
    e(f"v_readfirstlane_b32 s{sT4}, v8")
    e("s_setprio 0")
    if opt['bytef']:
        e(f"s_or_b32 s{sT4}, s{sT4}, 0x80808080")
        e(f"s_sub_u32 s{sT4}, s{sT4}, {hex(0x01010101*(n+1))}")
        e(f"s_and_b32 s{sT4}, s{sT4}, 0x80808080")
        e(f"s_cmp_eq_u32 s{sT4}, 0x80808080")
    else: e(f"s_cmp_ge_u32 s{sT4}, {4*(n+1 - (16 if opt['nob'] else 0))}")
    if opt['ss']:
        e(f"s_cbranch_scc1 L_st{n}_done")
        e(f"s_sleep {opt['ss']}")
        e(f"s_branch L_st{n}")
    else: e(f"s_cbranch_scc0 L_st{n}")
    lab(f"L_st{n}_done")
if not opt['nob']: st_dma(0); st_dma(1)
stamp(17)
e("s_waitcnt vmcnt(5)                    ; younger: one pull, two stages" if not opt['nob'] else "s_waitcnt vmcnt(0)")
e(f"s_mov_b64 exec, {hex(1 << (1)) if opt['bytef'] else 1}          ; lane {1} stores its lane id")
e(f"ds_write_b8 v{vCNT+1}, v{vL} offset:{4}" if opt['bytef'] else f"ds_add_u32 v{vCNT}, v{vCNT+1} offset:{4}")
e("s_mov_b64 exec, -1")
e(f"s_cmp_eq_u32 s{sA}, 3")
e("s_cbranch_scc0 L_pf5")
e(f"s_add_u32 s{sT0}, s{sT0}, 8192")
e(f"buffer_load_dword v{D2+9}, v{vPH}, {sr(R_WO,4)}, s{sT0} offen     ; not counted below: only makes waits stricter")
lab("L_pf5")
stamp(21)
RAW = BP
def b1mfma(n):
    for s_ in range(2 if not opt['nomf'] else 0):
        e(f"v_mfma_f32_32x32x16_bf16 {vr(ACC,16)}, {vr(XF+4*s_,4)}, {vr(WF+4*s_,4)}, {'0' if n==0 and s_==0 else vr(ACC,16)}")
if opt['nob']:
    e("s_branch L_nob1")
NOB0 = len(L)
for n in range(16 if not opt['nob'] else 0):
    st_sync(n, (lambda: b1mfma(n - 1)) if n else None)
    if n + 2 < 16: st_dma(n + 2)
    for s_ in range(2 if not opt['abl'] & 1 else 0):
        e(f"ds_read_b128 {vr(XF+4*s_,4)}, v{vRX+s_} offset:{8192*(n%3)}")
        e(f"ds_read_b128 {vr(WF+4*s_,4)}, v{vRW+s_} offset:{8192*(n%3)}")
    if n == opt['fst']:
        for kb in range(2): e(f"buffer_load_dwordx4 {vr(FR+4*kb,4)}, v{vF}, {sr(R_SRE,4)}, 0 offen offset:{32*kb}")
        for kb in range(2): e(f"buffer_load_dwordx4 {vr(FR+8+4*kb,4)}, v{vF}, {sr(R_SIM,4)}, 0 offen offset:{32*kb}")
        VM += [('F', 0)]*4
e("s_waitcnt lgkmcnt(0)")
b1mfma(15)
stamp(22)
e(f"s_mul_i32 s{sT0}, s{sS2}, {HROW}")
e(f"s_lshl_b32 s{sT1}, s{sCB}, 6")
e(f"s_add_u32 s{sT0}, s{sT0}, s{sT1}")
e(f"s_add_u32 s{sT0}, s{sT0}, {WS_H}")
nop(7)
vZ = D2 + 8 if False else BP
def boost(on):
    e(f"s_setprio {2 if on else 0}"); LOW[0] = not on
boost(opt['eb'] & 1)
for i in range(8): e(f"v_cvt_pk_bf16_f32 v{vZ+i}, v{ACC+2*i}, v{ACC+2*i+1}")
boost(0)
nop(1)
e(f"v_mfma_f32_32x32x16_bf16 {vr(D1,16)}, {vr(vZ,4)}, {vr(FR,4)}, 0")
e(f"v_mfma_f32_32x32x16_bf16 {vr(D2,16)}, {vr(vZ,4)}, {vr(FR+8,4)}, 0")
e(f"v_mfma_f32_32x32x16_bf16 {vr(D1,16)}, {vr(vZ+4,4)}, {vr(FR+4,4)}, {vr(D1,16)}")
e(f"v_mfma_f32_32x32x16_bf16 {vr(D2,16)}, {vr(vZ+4,4)}, {vr(FR+12,4)}, {vr(D2,16)}")
nop(11)
boost(1)
for r in range(8):
    e(f"v_sub_f32 v{ACC+r}, v{D1+r}, v{D2+8+r}")
    e(f"v_add_f32 v{ACC+8+r}, v{D2+r}, v{D1+8+r}")
e(f"s_cmp_eq_u32 s{sCB}, 0")
e("s_cbranch_scc0 L_nospecial")
cm("columns e = 0 and e = 256 (both purely real rows): lanes 0..31, register 0")
e("s_mov_b32 exec_hi, 0")
e(f"v_mov_b32 v{ACC}, v{D1}")
e(f"v_mov_b32 v{ACC+8}, v{D2}")
e(f"v_cvt_pk_bf16_f32 v8, v{D1+8}, v{D2+8}")
e(f"buffer_store_dword v8, v{vHA}, {sr(R_WS,4)}, s{sT0} offen offset:1024 sc1")
e("s_mov_b64 exec, -1")
lab("L_nospecial")
for r in range(8): e(f"v_cvt_pk_bf16_f32 v{D1+r}, v{ACC+r}, v{ACC+8+r}")
boost(0)
cm("lane (t1, h) holds 32 B of row t1: regroup through LDS so that 4 adjacent lanes store one 64-B run")
e(f"ds_write_b128 v{vHW}, {vr(D1,4)} offset:8192")
e(f"ds_write_b128 v{vHW1}, {vr(D1+4,4)} offset:8192")
e("s_waitcnt lgkmcnt(0)")
e(f"ds_read_b128 {vr(D1+8,4)}, v{vHR} offset:8192")
e(f"ds_read_b128 {vr(D1+12,4)}, v{vHR} offset:9216")
e(f"s_add_u32 s{sT1}, s{sT0}, {16*64*HROW}")
e("s_waitcnt lgkmcnt(0)")
e(f"buffer_store_dwordx4 {vr(D1+8,4)}, v{vHS}, {sr(R_WS,4)}, s{sT0} offen sc1")
e(f"buffer_store_dwordx4 {vr(D1+12,4)}, v{vHS}, {sr(R_WS,4)}, s{sT1} offen sc1")
if opt['nob']: lab("L_nob1")
if not opt['nowo']: st_dma(16); st_dma(17)
if opt['nob']: e("s_branch L_nob2")
def rawloads():
    global VM
    cm("rows of the sequence DFT matrices for B2")
    for i in range(4): e(f"buffer_load_dwordx4 {vr(RAW+4*i,4)}, v{vDRE}, {sr(R_SRE,4)}, 0 offen offset:{16*i}")
    for i in range(4): e(f"buffer_load_dwordx4 {vr(RAW+16+4*i,4)}, v{vDIM}, {sr(R_SIM,4)}, 0 offen offset:{16*i}")
    VM += [('raw', 0)]*8
if not opt['rawlate']: rawloads()
e(f"s_lshl_b32 s{sT1}, s2, 7")
e(f"s_add_u32 s{sT1}, s{sT1}, {FL_H}")
stamp(19)
e(f"s_waitcnt vmcnt({4 if opt['rawlate'] else 12})")
stamp(20)
boost(1)
signal("L_sigH", C_H, 3, sT1, 8)
stamp(5)
def bploc(o): return FR + o if o < 16 else (RAW + o - 16 if o < 24 else RAW + 16 + o - 24)
def perms():
    e(f"s_mov_b32 s{sT2}, 0x05040100")
    e(f"s_mov_b32 s{sT3}, 0x07060302")
    for i in range(16):
        e(f"v_perm_b32 v{bploc(2*i)}, v{RAW+16+i}, v{RAW+i}, s{sT2}")
        e(f"v_perm_b32 v{bploc(2*i+1)}, v{RAW+16+i}, v{RAW+i}, s{sT3}")
if not opt['b2tail']: perms()
boost(0)
if opt['rawlate'] and not opt['abl'] & 4: rawloads()
if opt['nob']: lab("L_nob2")
def wo_stage(n):
    if opt['nowo']: return
    st_sync(n)
    st_dma(n + 2)
    for k in range(4):
        ks = 4*(n - 16) + k
        e(f"ds_read_b64_tr_b16 {vr(BUF+4*ks,2)}, v{vWOT} offset:{8192*(n%3) + 2048*k}")
        e(f"ds_read_b64_tr_b16 {vr(BUF+4*ks+2,2)}, v{vWOT} offset:{8192*(n%3) + 2048*k + 512}")
for n in range(16, 16 + opt['wsplit']): wo_stage(n)
stamp(6)
boost(1)
if opt['pre']:
    cm("aux wave 2 touches the O lines this workgroup will write and the 8 flags of its token block")
    e(f"s_cmp_eq_u32 s{sA}, 2")
    e("s_cbranch_scc0 L_nopre")
    e(f"v_lshrrev_b32 v8, 5, v{vL}")
    e(f"v_and_b32 v9, 31, v{vL}")
    e("v_lshlrev_b32 v9, 7, v9")
    e("v_lshl_add_u32 v8, v8, 15, v9")
    e(f"s_lshl_b32 s{sT0}, s{sTB}, 16")
    e(f"s_lshl_b32 s{sT1}, s{sHG}, 12")
    e(f"s_add_u32 s{sT0}, s{sT0}, s{sT1}")
    e(f"s_add_u32 s{sT0}, s{sT0}, {WS_O}")
    e(f"buffer_load_dword v10, v8, {sr(R_WS,4)}, s{sT0} offen sc1")
    e(f"v_and_b32 v9, 0xf80, v{vPH}")
    e(f"s_lshl_b32 s{sT0}, s{sTB}, 12")
    e(f"s_add_u32 s{sT0}, s{sT0}, {FL_O}")
    e(f"buffer_load_dword v11, v9, {sr(R_WS,4)}, s{sT0} offen sc1")
    e("s_waitcnt vmcnt(0)")
    lab("L_nopre")
cm("aux wave 1: XCD ids of the 8 workgroups of this token block: ids 32*hg + (id & 31)")
e(f"s_cmp_eq_u32 s{sA}, 1")
e("s_cbranch_scc0 L_nosame")
e(f"v_and_b32 v8, 7, v{vL}")
e("v_lshlrev_b32 v8, 12, v8")
e(f"s_and_b32 s{sT0}, s2, 31")
e(f"s_lshl_b32 s{sT0}, s{sT0}, 7")
e(f"s_add_u32 s{sT0}, s{sT0}, {FL_X}")
e(f"buffer_load_dwordx2 v[10:11], v8, {sr(R_WS,4)}, s{sT0} offen sc1")
e(f"s_getreg_b32 s{sX}, hwreg(HW_REG_XCC_ID, 0, 4)")
e(f"s_or_b32 s{sX}, s{sX}, s{sNON}")
e(f"s_mov_b32 s{sX+1}, s{sNON+1}")
e(f"v_mov_b32 v9, {MISC+C_SAME}")
e("s_waitcnt vmcnt(0)")
e(f"v_cmp_ne_u64 vcc, {sr(sX,2)}, v[10:11]")
e("s_nop 0")
e("s_cmp_eq_u64 vcc, 0")
e(f"s_cselect_b32 s{sT0}, {1 if opt['fast'] else 0}, 0")
e(f"v_mov_b32 v11, s{sT0}")
e("ds_write_b32 v9, v11")
lab("L_nosame")
if opt['nob'] or opt['abl'] & 4: e("s_branch L_b2done")
cm("B2: wait for the H rows it reads: column groups ebg (direct) or 7-ebg and (8-ebg)&3 (mirrored)")
e(f"s_cmp_eq_u32 s{sA}, 0")
e("s_cbranch_scc0 L_hwait")
e(f"s_lshr_b32 s{sT2}, s{sJ}, 2              ; ebg")
e(f"s_sub_u32 s{sT0}, 7, s{sT2}")
e(f"s_sub_u32 s{sT1}, 8, s{sT2}")
e(f"s_and_b32 s{sT1}, s{sT1}, 3")
e(f"s_cmp_lt_u32 s{sT2}, 4")
e(f"s_cselect_b32 s{sT0}, s{sT2}, s{sT0}")
e(f"s_cselect_b32 s{sT1}, s{sT2}, s{sT1}")
e(f"s_lshl_b32 s{sT0}, s{sT0}, 13")
e(f"s_lshl_b32 s{sT1}, s{sT1}, 13")
e(f"s_add_u32 s{sT0}, s{sT0}, {FL_H}")
e(f"s_add_u32 s{sT1}, s{sT1}, {FL_H}")
poll("L_pollH", 2, vPH, 8, [sT0, sT1], sleep=8)
e(f"v_mov_b32 v10, {MISC+C_HOK}")
e("v_mov_b32 v11, 1")
e("ds_write_b32 v10, v11")
e("s_branch L_hok")
lab("L_hwait")
lds_wait("L_hw", C_HOK, 1, 10, sleep=8)
lab("L_hok")
boost(0)
stamp(7)
e(f"s_mul_i32 s{sT0}, s{sT1S}, {64*HROW}")
e(f"s_add_u32 s{sT0}, s{sT0}, {WS_H}")
AF = 208
for kb in range(8):
    for w in range(4): e(f"buffer_load_dword v{AF+4*kb+w}, v{vB2A}, {sr(R_WS,4)}, s{sT0} offen offset:{w*HROW} sc1")
    if kb < 7: e(f"s_add_u32 s{sT0}, s{sT0}, {4*HROW}")
VM += [('A', 0)]*32
sB2 = 88
def b2compute(low):
    e(f"s_lshl_b32 s{sB2}, s{sEB}, 6")
    e(f"s_add_u32 s{sB2}, s{sB2}, 1024")
    for kb in range(8):
        if low: e(f"s_waitcnt vmcnt({28-4*kb})")
        e(f"v_mfma_f32_32x32x16_bf16 {vr(ACC,16)}, {vr(AF+4*kb,4)}, {vr(bploc(4*kb),4)}, {'0' if kb==0 else vr(ACC,16)}")
    nop(11 if low else 12)
    if low: boost(1)
    for i in range(8): e(f"v_cvt_pk_bf16_f32 v{AF+8+i}, v{ACC+2*i}, v{ACC+2*i+1}")
    if low: b2store()
vRG, vS0, vS1, vO0 = 240, 241, 242, 243
def regroup(src, dst):
    e(f"ds_write_b128 v{vHW}, {vr(src,4)} offset:8192")
    e(f"ds_write_b128 v{vHW1}, {vr(src+4,4)} offset:8192")
    e("s_waitcnt lgkmcnt(0)")
    e(f"ds_read_b128 {vr(dst,4)}, v{vRG} offset:8192")
    e(f"ds_read_b128 {vr(dst+4,4)}, v{vRG} offset:9216")
def rg_addr():
    e(f"v_add_u32 v{vRG}, s{sSL}, v2")
    e(f"v_lshrrev_b32 v8, 4, v{vL}")
    e(f"v_xor_b32 v8, v8, v{vL}")
    e("v_and_b32 v8, 3, v8")
    e("v_lshlrev_b32 v8, 4, v8                 ; chunk * 16")
    e(f"v_lshrrev_b32 v9, 2, v{vL}              ; r")
    e(f"s_lshl_b32 s{sT3}, s{sTB}, 1")
    e(f"s_add_u32 s{sT3}, s{sT3}, s{sTT}")
    e(f"s_lshl_b32 s{sT3}, s{sT3}, 5")
    e(f"v_add_u32 v10, s{sT3}, v9")
    e("v_lshlrev_b32 v10, 11, v10")
    e(f"v_add_u32 v{vO0}, v10, v8")
    e(f"s_lshl_b32 s{sT3}, s{sTT}, 10")
    e(f"s_add_u32 s{sT3}, s{sT3}, s{sT1S}")
    e(f"v_lshl_add_u32 v9, v9, 5, s{sT3}         ; ts")
    e("v_add_u32 v10, 0x200, v9")
    e("v_sub_u32 v11, 0x800, v9")
    e("v_and_b32 v11, 0x7ff, v11")
    e(f"v_sub_u32 v{vS1}, 0x800, v10")
    e(f"s_cmp_lt_u32 s{sEB}, 8")
    e("s_cselect_b64 vcc, 0, -1")
    e("v_cndmask_b32 v9, v9, v11, vcc")
    e(f"v_cndmask_b32 v10, v10, v{vS1}, vcc")
    e(f"v_lshl_add_u32 v{vS0}, v9, 11, v8")
    e(f"v_lshl_add_u32 v{vS1}, v10, 11, v8")
def b2store():
    if opt['rg'] & 1:
        e(f"buffer_store_dwordx4 {vr(AF+16,4)}, v{vS0}, {sr(R_OUT,4)}, s{sB2} offen{OSC}")
        e(f"buffer_store_dwordx4 {vr(AF+20,4)}, v{vS1}, {sr(R_OUT,4)}, s{sB2} offen{OSC}")
        return
    e(f"buffer_store_dwordx4 {vr(AF+8,4)}, v{vB2O}, {sr(R_OUT,4)}, s{sB2} offen{OSC}")
    e(f"buffer_store_dwordx4 {vr(AF+12,4)}, v{vB2O}, {sr(R_OUT,4)}, s{sB2} offen offset:16{OSC}")
if not opt['b2tail']: b2compute(True)
lab("L_b2done")
boost(0)
stamp(8)
for n in range(16 + opt['wsplit'], 24): wo_stage(n)
e("s_waitcnt vmcnt(0) lgkmcnt(0)")
if opt['b2s']:
    boost(1)
    perms()
    rg_addr()
    boost(0)
    e(f"s_lshl_b32 s{sB2}, s{sEB}, 6")
    e(f"s_add_u32 s{sB2}, s{sB2}, 1024")
    for kb in range(8):
        e(f"v_mfma_f32_32x32x16_bf16 {vr(ACC,16)}, {vr(AF+4*kb,4)}, {vr(bploc(4*kb),4)}, {'0' if kb==0 else vr(ACC,16)}")
    nop(11)
    boost(1)
    for i in range(8): e(f"v_cvt_pk_bf16_f32 v{AF+8+i}, v{ACC+2*i}, v{ACC+2*i+1}")
    boost(0)
    regroup(AF+8, AF+16)
    e("s_waitcnt lgkmcnt(0)")
    sc = " sc1" if opt['b2s'] == 1 else ""
    e(f"buffer_store_dwordx4 {vr(AF+16,4)}, v{vS0}, {sr(R_OUT,4)}, s{sB2} offen{sc}")
    e(f"buffer_store_dwordx4 {vr(AF+20,4)}, v{vS1}, {sr(R_OUT,4)}, s{sB2} offen{sc}")
stamp(10)
warm("L_padt", "L_pado_ret")
cm("tail: the attention waves bring the O tile -> LDS 0..")
e("s_barrier                             ; B7")
LOW[0] = False
stamp(9)
if opt['b2tail'] and not opt['nob'] and not opt['abl'] & 20 and not opt['b2s']:
    cm("second spectral stage: operands are in registers, the matrix pipe is free until the O tile lands")
    perms()
    if opt['rg']: rg_addr()
    b2compute(False)
    if opt['rg'] & 1:
        regroup(AF+8, AF+16)
        e("s_waitcnt lgkmcnt(0)")
e(f"s_mov_b32 s{sT0}, s{sWOS}")
stamp(11)
e("s_barrier                             ; B8a")
pad_begin("L_pado")
OF = 144
korder = [h for st in range(4) for h in range(32) if (h % 8) // 2 == st]
PD = opt['opd']
def ofrag(n): e(f"ds_read_b128 {vr(OF+4*(n%8),4)}, v{vOF} offset:{1024*korder[n]}")
for n in range(PD): ofrag(n)
if opt['b2at'] == 0 and opt['b2tail'] and not opt['nob'] and not opt['abl'] & 28 and not opt['b2s']: b2store()
for n in range(32):
    if n + PD in (8, 16, 24):
        e(f"s_barrier                             ; B8.{(n+PD)//8}")
        if n + PD == opt['b2at'] and opt['b2tail'] and not opt['nob'] and not opt['abl'] & 28 and not opt['b2s']: b2store()
    if n + PD < 32:
        ofrag(n + PD)
        e(f"s_waitcnt lgkmcnt({PD})")
    else:
        e(f"s_waitcnt lgkmcnt({31-n})")
    e(f"v_mfma_f32_32x32x16_bf16 {vr(ACC,16)}, {vr(BUF+4*korder[n],4)}, {vr(OF+4*(n%8),4)}, {'0' if n==0 else vr(ACC,16)}")
nop(12)
for i in range(8): e(f"v_cvt_pk_bf16_f32 v{D1+i}, v{ACC+2*i}, v{ACC+2*i+1}")
if opt['rg'] & 2:
    regroup(D1, D1+8)
    e(f"s_add_u32 s{sT1}, s{sT0}, {16*2048}")
    e("s_waitcnt lgkmcnt(1)")
    e(f"buffer_store_dwordx4 {vr(D1+8,4)}, v{vO0}, {sr(R_OUT,4)}, s{sT0} offen{OSC}")
    e("s_waitcnt lgkmcnt(0)")
    e(f"buffer_store_dwordx4 {vr(D1+12,4)}, v{vO0}, {sr(R_OUT,4)}, s{sT1} offen{OSC}")
else:
    e(f"buffer_store_dwordx4 {vr(D1,4)}, v{vOUT}, {sr(R_OUT,4)}, s{sT0} offen{OSC}")
    e(f"buffer_store_dwordx4 {vr(D1+4,4)}, v{vOUT}, {sr(R_OUT,4)}, s{sT0} offen offset:16{OSC}")
pad_end("L_pado", "L_pado_ret")
if opt['dbgt']:
    e(f"s_cmp_lt_u32 s2, 6")
    e("s_cbranch_scc0 L_end")
    e(f"s_cmp_eq_u32 s{sW}, 4")
    e("s_cbranch_scc0 L_end")
    e("s_waitcnt vmcnt(0)")
    e(f"s_memrealtime {sr(sST,2)}")
    e("s_waitcnt lgkmcnt(0)")
    e(f"v_mov_b32 v4, s{sST}")
    e(f"s_lshl_b32 s{sT0}, s2, 2")
    e(f"s_add_u32 s{sT0}, s{sT0}, 40")
    e("s_mov_b64 exec, 1")
    e(f"buffer_store_dword v4, off, {sr(R_DBG,4)}, s{sT0}")
if opt['endat']:
    lab("L_endat")
    e(f"s_memrealtime {sr(sX,2)}")
    e("s_waitcnt lgkmcnt(0)")
    e(f"s_sub_u32 s{sX}, s{sX}, s3")
    e(f"s_cmp_lt_u32 s{sX}, {opt['endat']}")
    e("s_cbranch_scc1 L_endat")
stamp(12)
if opt['stamps']: e("s_waitcnt vmcnt(0)")
stamp(13)
stamp_dump()
lab("L_end")
e("s_endpgm")
lab("L_codeend")
L.append(f""".section .rodata,"a"
.p2align 6
.amdhsa_kernel {NAME}_kernel
  .amdhsa_next_free_vgpr 256
  .amdhsa_next_free_sgpr 102
  .amdhsa_accum_offset 256
  .amdhsa_group_segment_fixed_size 0
  .amdhsa_kernarg_size 104
  .amdhsa_user_sgpr_count 2
  .amdhsa_user_sgpr_kernarg_segment_ptr 1
  .amdhsa_system_sgpr_workgroup_id_x 1
.end_amdhsa_kernel""")

def finish(lines, ncode):
    out = []
    for l in lines:
        if l.strip() == "CODEPF":
            for i in range(ncode // 8192):
                out.append(f"    global_load_dword v200, v[212:213], off")
                out.append(f"    v_add_co_u32 v212, vcc, 0x2000, v212")
                out.append(f"    s_nop 1")
                out.append(f"    v_addc_co_u32 v213, vcc, 0, v213, vcc")
            rem = (ncode % 8192) // 128
            if rem:
                out.append(f"    v_cmp_gt_u32 vcc, {rem}, v{vL}")
                out.append(f"    s_nop 0")
                out.append(f"    s_and_saveexec_b64 {sr(sX,2)}, vcc")
                out.append(f"    global_load_dword v200, v[212:213], off")
                out.append(f"    s_mov_b64 exec, -1")
        else: out.append(l)
    return "\n".join(out) + "\n"
import subprocess, os, hazcheck
ncode = 16384
for _ in range(3):
    txt = finish(L, ncode)
    open("_g.s", "w").write(txt)
    r = subprocess.run(["clang", "-x", "assembler", "-target", "amdgcn-amd-amdhsa", "-mcpu=gfx950", "-c", "_g.s", "-o", "_g.o"], capture_output=True, text=True)
    if r.returncode: print(r.stderr[:3000]); sys.exit(1)
    sz = subprocess.run(["llvm-objdump", "-h", "_g.o"], capture_output=True, text=True).stdout
    n = [int(x.split()[2], 16) for x in sz.splitlines() if " .text " in x][0]
    if n // 128 * 128 == ncode: break
    ncode = n // 128 * 128
open(sys.argv[1], "w").write(txt)
print(hazcheck.check(txt), "hazards; code bytes", n)
```

```python
import sys, struct
NAME = "concat_heads__grouped_kv_mqa__spectral_fnet__prompt"
opt = dict(stamps=0, prioA=1, prioX=2, boost=1, force_fb=0, dbgt=0, dry=0, codepf=0, shift=102, outsc1=0, cluster=1, fast=1, nob=0, l2pf=0, wo1=4, hold=1, pre=1, pads=0, dxcc=-1, dus=300, endat=0, omode=1, b2tail=1, kvd=3, h1=1, h2=4, fs=3, ntc=9, nowo=0, nodsw=0, nomf=0, sp=1, ss=1, wsplit=8, attpf=0, rawlate=1, dftpf=1, fst=6, spw=0, eb=1, qloop=0, padt=0, opd=4, b2at=8, abl=0, preo=0, rg=0, prepoll=0, lwarm=0, csync=0, bytef=0, first=1, b2s=0, mt=1, win=8, win2=8, pa=0, baat=0, stall=0, resc=2, vmask=0, r2=0)
for a in sys.argv[2:]:
    k, v = a.split('='); opt[k] = int(v)

L = []
DOC = '''; ---------------------------------------------------------------------------------------------------------------
; One persistent launch, 256 workgroups (one per CU) x 8 waves.  Workgroup id -> xcd = id & 7 (locality hint only),
;       S^T = K Q^T + C by MFMA (C = -(stand-in max + shift), scale folded into Q), v_exp_f32 in place, and
;       P V by the 2:4 sparse MFMA whose index picks the upper halves of the fp32 registers (bf16 by truncation);
;       a row of constants in the V operand yields the row sum.  After 14 key tiles the reference is raised by a
;   waves 4..7 ("aux"): K or V projection of 16 tokens, K/V streaming into LDS, the spectral part
; Hand-offs between workgroups go through d_ws: data stores, s_waitcnt, then a flag (one 128-B line each) holding
; flags from stale ones.  Stores are write-through (sc1) unless all workgroups of the hand-off reported the same XCD;
; ---------------------------------------------------------------------------------------------------------------'''
def e(s=""): L.append("    " + s)
def lab(s): L.append(s + ":")
def cm(s): L.append("    ; " + s)
def vr(a, n): return f"v[{a}:{a+n-1}]" if n > 1 else f"v{a}"
def sr(a, n): return f"s[{a}:{a+n-1}]" if n > 1 else f"s{a}"
def nop(n):
    while n > 0:
        k = min(n, 16); e(f"s_nop {k-1}"); n -= k
def f2u(x): return struct.unpack('<I', struct.pack('<f', x))[0]
OSC = " sc1" if opt['outsc1'] else ""

W_OFF = 0
X_OFF, XROW = 16384, 1040
WQ_OFF = 82944
ONES_OFF = 155648
MISC = ONES_OFF + 1024
STG = 131072
LDS_BYTES = 163840
C_KV, C_H, C_O, C_TAG, C_HOK, C_SAME, C_CR, C_QA, C_QB, C_G1, C_KVL, C_ST = 0, 4, 8, 16, 24, 28, 32, 36, 40, 44, 48, 52
WS_KV, WS_O, WS_H, WS_FL = 0, 0x40000, 0x240000, 0x480000
FL_KV, FL_H, FL_X, FL_O = WS_FL, WS_FL + 0x8000, WS_FL + 0x10000, WS_FL + 0x20000
WS_STAMP = 0x4C0000
WS_SIZE = 0x560000
HROW = 1152
FOUR = 0x01010101 if opt['bytef'] else 4
SPIN = 400000
VSCALE = 64
P_XA, P_WQ, P_WK, P_WV, P_WO, P_XB, P_SRE, P_SIM = 4, 6, 8, 10, 12, 14, 16, 18
P_HRE, P_HIM, P_OUT, P_DBG, P_WS = 20, 22, 24, 26, 28
R_XA, R_WQ, R_W, R_WS, R_WO, R_XB, R_SRE, R_SIM, R_OUT, R_DBG = 32, 36, 40, 44, 48, 52, 56, 60, 64, 68
sW, sXCD, sJ, sTB, sHG, sTHP, sA = 72, 73, 74, 75, 76, 77, 78
sT0, sT1, sT2, sT3, sT4 = 80, 81, 82, 83, 84
sDRY = 85
sNON = 86
sIT, sINC, sFB, sSPIN = 88, 89, 90, 91
sX = 92
sST = 94
sBARN = 96
sRET = 90

def srd(r, p, size):
    e(f"s_mov_b32 s{r}, s{p}")
    e(f"s_and_b32 s{r+1}, s{p+1}, 0xffff")
    e(f"s_mov_b32 s{r+2}, {hex(size)}")
    e(f"s_mov_b32 s{r+3}, 0x20000")

LOW = [False]
vL = 1
def stamp(idx):
    if not opt['stamps']: return
    e(f"s_memrealtime {sr(sST,2)}")
    e(f"s_memtime {sr(sX,2)}")
    e("s_waitcnt lgkmcnt(0)")
    if LOW[0]: e("s_setprio 2")
    e(f"v_writelane_b32 v254, s{sST}, {idx}")
    e(f"v_writelane_b32 v255, s{sX}, {idx}")
    if LOW[0]: e("s_setprio 0")
def stamp_dump():
    if not opt['stamps']: return
    e(f"s_lshl_b32 s{sST}, s2, 3")
    e(f"s_add_u32 s{sST}, s{sST}, s{sW}")
    e(f"s_lshl_b32 s{sST}, s{sST}, 8")
    e(f"s_add_u32 s{sST}, s{sST}, {WS_STAMP}")
    e(f"v_lshlrev_b32 v253, 3, v{vL}")
    e("s_mov_b32 exec_hi, 0")
    e(f"buffer_store_dwordx2 v[254:255], v253, {sr(R_WS,4)}, s{sST} offen")

PADS = {}
def pad_begin(name): PADS[name] = len(L)
def isize(l):
    t = l.strip()
    if not t or t.startswith((';', '.')) or t.endswith(':'): return 0
    t = t.split(';')[0]
    mn = t.split()[0]
    if mn.startswith(('buffer_', 'global_', 'ds_', 'v_mfma', 'v_smfmac', 's_load', 's_mem')): return 8
    if mn.startswith('v_') and (mn.endswith('_e64') or mn in ('v_lshl_add_u32', 'v_bfe_u32', 'v_perm_b32', 'v_max3_f32', 'v_cvt_pk_bf16_f32', 'v_writelane_b32', 'v_mul_u32_u24', 'v_cmp_ne_u64')): return 8
    import re as _r
    for o in _r.findall(r'(?<![\w\[:])(-?0x[0-9a-f]+|-?\d+)(?![\w\]:])', (t.split(None, 1) + [''])[1]):
        v = int(o, 0)
        if not mn.startswith(('s_waitcnt', 's_nop', 's_sleep', 's_setprio')) and not -16 <= v <= 64: return 8
    return 4
def pad_end(name, ret):
    a = PADS[name]
    if not (opt['pads'] if name == "L_padq" else opt['padt']):
        L.insert(a, f"{name}_0:"); L.insert(a + 1, f"    s_cbranch_execz {ret}"); return
    body = L[a:]; del L[a:]
    n = 0; acc = 0
    L.append(f"{name}_0:"); L.append(f"    s_cbranch_execz {name}_1")
    for l in body:
        z = isize(l)
        prev = L[-1].strip()
        if acc + z > 56 and not prev.startswith(('s_mov_b32 m0', 's_add_u32 m0')):
            n += 1; L.append(f"{name}_{n}:"); L.append(f"    s_cbranch_execz {name}_{n+1}"); acc = 0
        L.append(l); acc += z
    n += 1
    L.append(f"{name}_{n}:"); L.append(f"    s_cbranch_execz {ret}")
def warm(name, ret):
    e("s_mov_b64 exec, 0")
    e(f"s_branch {name}_0")
    lab(ret)
    e("s_mov_b64 exec, -1")

def dma(voff, srdr, soff, ldsaddr_s, extra=""):
    e(f"s_mov_b32 m0, s{ldsaddr_s}")
    e("s_nop 0")
    e(f"buffer_load_dwordx4 v{voff}, {sr(srdr,4)}, s{soff} offen {extra}lds")
def dma_run(n, voff, srdr, soff, lds_s, dsrc, dlds, extra=""):
    for i in range(n):
        e(f"s_mov_b32 m0, s{lds_s}")
        if i < n - 1: e(f"s_add_u32 s{lds_s}, s{lds_s}, {dlds}")
        else: e("s_nop 0")
        e(f"buffer_load_dwordx4 v{voff}, {sr(srdr,4)}, s{soff} offen {extra}lds")
        if i < n - 1: e(f"s_add_u32 s{soff}, s{soff}, {dsrc}")

def poll(name, nloads, voff, dst, soffs, sleep=0):
    e(f"s_mov_b32 s{sSPIN}, {SPIN}")
    lab(name)
    for i in range(nloads):
        e(f"buffer_load_dwordx2 {vr(dst+2*i,2)}, v{voff}, {sr(R_WS,4)}, s{soffs[i]} offen sc1")
    e(f"s_sub_u32 s{sSPIN}, s{sSPIN}, 1")
    e(f"s_cmp_eq_u32 s{sSPIN}, 0")
    e(f"s_cbranch_scc1 {name}_done")
    e("s_waitcnt vmcnt(0)")
    e(f"v_cmp_ne_u64 vcc, {sr(sNON,2)}, {vr(dst,2)}")
    for i in range(1, nloads):
        e(f"v_cmp_ne_u64 {sr(sX,2)}, {sr(sNON,2)}, {vr(dst+2*i,2)}")
        e("s_nop 0")
        e(f"s_or_b64 vcc, vcc, {sr(sX,2)}")
    e("s_nop 0")
    e("s_cmp_eq_u64 vcc, 0")
    if sleep:
        e(f"s_cbranch_scc1 {name}_done")
        e(f"s_sleep {sleep}")
        e(f"s_branch {name}")
    else:
        e(f"s_cbranch_scc0 {name}")
    lab(name + "_done")
    e("s_waitcnt vmcnt(0)")

def lds_wait(name, off, value, tmp, sleep=0):
    e(f"s_mov_b32 s{sSPIN}, {SPIN*8}")
    e(f"v_mov_b32 v{tmp}, {MISC + off}")
    lab(name)
    e(f"ds_read_b32 v{tmp+1}, v{tmp}")
    e(f"s_sub_u32 s{sSPIN}, s{sSPIN}, 1")
    e(f"s_cmp_eq_u32 s{sSPIN}, 0")
    e(f"s_cbranch_scc1 {name}_done")
    e("s_waitcnt lgkmcnt(0)")
    e(f"v_readfirstlane_b32 s{sT4}, v{tmp+1}")
    e("s_nop 0")
    e(f"s_cmp_ge_u32 s{sT4}, {value}")
    if sleep:
        e(f"s_cbranch_scc1 {name}_done")
        e(f"s_sleep {sleep}")
        e(f"s_branch {name}")
    else:
        e(f"s_cbranch_scc0 {name}")
    lab(name + "_done")
    e("s_waitcnt lgkmcnt(0)")
def lds_add(off, tmp):
    e(f"v_mov_b32 v{tmp}, {MISC + off}")
    e(f"v_mov_b32 v{tmp+1}, 1")
    e("s_mov_b64 exec, 1")
    e(f"ds_add_u32 v{tmp}, v{tmp+1}")
    e("s_mov_b64 exec, -1")
def tag_from_lds(name, tmp):
    e(f"s_mov_b32 s{sSPIN}, {SPIN*8}")
    e(f"v_mov_b32 v{tmp}, {MISC+C_TAG}")
    lab(name)
    e(f"ds_read_b64 {vr(tmp+2,2)}, v{tmp}")
    e(f"s_sub_u32 s{sSPIN}, s{sSPIN}, 1")
    e(f"s_cmp_eq_u32 s{sSPIN}, 0")
    e(f"s_cbranch_scc1 {name}_done")
    e("s_waitcnt lgkmcnt(0)")
    e(f"v_readfirstlane_b32 s{sNON}, v{tmp+2}")
    e(f"v_readfirstlane_b32 s{sNON+1}, v{tmp+3}")
    e(f"s_cmp_lg_u32 s{sNON}, 0")
    e(f"s_cbranch_scc1 {name}_done")
    e(f"s_sleep {opt['fs']}")
    e(f"s_branch {name}")
    lab(name + "_done")
    e("s_waitcnt lgkmcnt(0)")

def signal(name, ctr_off, last, flag_soff_s, tmp, lo=None, plain_if=None):
    e(f"v_mov_b32 v{tmp}, {MISC + ctr_off}")
    e(f"v_mov_b32 v{tmp+1}, 1")
    e(f"s_mov_b64 exec, 1")
    e(f"ds_add_rtn_u32 v{tmp+1}, v{tmp}, v{tmp+1}")
    e(f"v_mov_b32 v{tmp+2}, s{sNON if lo is None else lo}")
    e(f"v_mov_b32 v{tmp+3}, s{sNON+1}")
    e("s_waitcnt lgkmcnt(0)")
    e(f"v_readfirstlane_b32 s{sT4}, v{tmp+1}")
    e("s_nop 0")
    e(f"s_cmp_eq_u32 s{sT4}, {last}")
    e(f"s_cbranch_scc0 {name}_nf")
    if plain_if is not None:
        e(f"s_cmp_eq_u32 s{plain_if}, 0")
        e(f"s_cbranch_scc1 {name}_wt")
        e(f"buffer_store_dwordx2 {vr(tmp+2,2)}, off, {sr(R_WS,4)}, s{flag_soff_s}")
        if opt['omode'] < 2: e(f"s_branch {name}_nf")
        lab(name + "_wt")
    e(f"buffer_store_dwordx2 {vr(tmp+2,2)}, off, {sr(R_WS,4)}, s{flag_soff_s} sc1")
    lab(name + "_nf")
    e("s_mov_b64 exec, -1")

hdr = open(f"cdna_kernels/{NAME}.s.ref").read().split("; Override launch")[0]
L.append(hdr.rstrip())
L.append(f"; @launch grid=(256,1,1) block=(512,1,1) lds={LDS_BYTES}")
L.append('.amdgcn_target "amdgcn-amd-amdhsa--gfx950"')
L.append(DOC)
L.append(".text")
L.append(f".globl {NAME}_kernel")
L.append(".p2align 8")
L.append(f".type {NAME}_kernel,@function")
lab(f"{NAME}_kernel")
e("s_cmp_ge_u32 s2, 256")
e("s_cbranch_scc1 L_end")
e("s_load_dwordx16 s[4:19], s[0:1], 0")
e("s_load_dwordx8 s[20:27], s[0:1], 64")
e("s_load_dwordx2 s[28:29], s[0:1], 96")
e(f"s_memrealtime {sr(sNON,2)}")
if opt['endat'] or opt['baat']:
    e("s_waitcnt lgkmcnt(0)")
    e(f"s_mov_b32 s3, s{sNON}")
if opt['dxcc'] >= 0:
    e(f"s_getreg_b32 s{sT0}, hwreg(HW_REG_XCC_ID, 0, 4)")
    e(f"s_cmp_eq_u32 s{sT0}, {opt['dxcc']}") if opt['dxcc'] < 8 else e(f"s_cmp_eq_u32 s{sT0}, s{sT0}")
    e("s_cbranch_scc0 L_nodelay")
    e("s_waitcnt lgkmcnt(0)")
    lab("L_delay")
    e(f"s_memrealtime {sr(sX,2)}")
    e("s_waitcnt lgkmcnt(0)")
    e(f"s_sub_u32 s{sX}, s{sX}, s{sNON}")
    e(f"s_cmp_lt_u32 s{sX}, {opt['dus']}")
    e("s_cbranch_scc1 L_delay")
    lab("L_nodelay")
e("v_lshrrev_b32 v2, 6, v0")
e(f"v_and_b32 v{vL}, 63, v0")
e(f"v_readfirstlane_b32 s{sW}, v2")
e(f"s_and_b32 s{sXCD}, s2, 7")
e(f"s_lshr_b32 s{sJ}, s2, 3")
e(f"s_and_b32 s{sT0}, s{sJ}, 3")
e(f"s_lshl_b32 s{sTB}, s{sXCD}, 2")
e(f"s_add_u32 s{sTB}, s{sTB}, s{sT0}")
e(f"s_lshr_b32 s{sHG}, s{sJ}, 2")
e(f"s_lshr_b32 s{sTHP}, s{sHG}, 1")
e(f"s_and_b32 s{sA}, s{sW}, 3")
e(f"v_lshlrev_b32 v2, 4, v{vL}          ; v2 = lane*16")
cm("LDS init while the kernel arguments load: ones / zeros window (even 16-B chunks 2^64, odd chunks 0), counters")
ONE = (127 + VSCALE) << 7
e("v_lshrrev_b32 v5, 3, v0")
e("v_cmp_ne_u32 vcc, 8, v5")
e("v_and_b32 v4, 1, v0")
e("v_add_u32 v4, -1, v4")
e(f"v_and_b32 v4, {hex(ONE << 16 | ONE)}, v4")
e("v_cndmask_b32 v4, 0, v4, vcc")
e(f"v_lshlrev_b32 v3, 4, v0")
e("v_mov_b32 v5, v4")
e("v_mov_b32 v6, v4")
e("v_mov_b32 v7, v4")
e(f"v_add_u32 v3, {ONES_OFF}, v3")
e("ds_write_b128 v3, v[4:7]")
e(f"s_mov_b32 s{R_XA+2}, 0x200000")
e(f"s_mov_b32 s{R_XA+3}, 0x20000")
def aux_first():
    if opt['prioX']: e(f"s_setprio {opt['prioX']}")
    cm("critical loads: projection weight (wk for even hg, wv for odd), x rows 16*blk + 4a + i")
    e(f"s_lshl_b32 s{sT0}, s{sTHP}, 4")
    e(f"s_lshl_b32 s{sT1}, s{sA}, 2")
    e(f"s_add_u32 s{sT0}, s{sT0}, s{sT1}")
    e(f"s_mul_i32 s{sT1}, s{sT0}, {XROW}")
    e(f"s_add_u32 s{sT1}, s{sT1}, {X_OFF}")
    e(f"s_lshl_b32 s{sT2}, s{sTB}, 6")
    e(f"s_add_u32 s{sT2}, s{sT2}, s{sT0}")
    e(f"s_lshl_b32 s{sT2}, s{sT2}, 10")
    e(f"s_lshl_b32 s{sT3}, s{sA}, 12")
    e(f"s_mov_b32 s{R_W+2}, 16384")
    e(f"s_mov_b32 s{R_W+3}, 0x20000")
    e(f"s_mov_b32 m0, s{sT3}")
    e(f"s_bitcmp1_b32 s{sHG}, 0")
    e("s_waitcnt lgkmcnt(0)")
    e(f"s_cselect_b32 s{R_W}, s{P_WV}, s{P_WK}")
    e(f"s_cselect_b32 s{R_W+1}, s{P_WV+1}, s{P_WK+1}")
    e(f"s_and_b32 s{R_W+1}, s{R_W+1}, 0xffff")
    e(f"s_mov_b32 s{R_XA}, s{P_XA}")
    e(f"s_and_b32 s{R_XA+1}, s{P_XA+1}, 0xffff")
    srd(R_DBG, P_DBG, 256)
    cm("workgroup 0, aux wave 3 publishes this launch's hand-off tag")
    e(f"s_or_b32 s{sNON}, s{sNON}, 16")
    e(f"s_and_b32 s{sNON}, s{sNON}, -16")
    e(f"s_lshl_b32 s{sT0}, s2, 3")
    e(f"s_add_u32 s{sT0}, s{sT0}, s{sW}")
    e(f"s_cmp_eq_u32 s{sT0}, 7")
    e("s_cbranch_scc0 L_notag")
    e(f"v_mov_b32 v4, s{sNON}")
    e(f"v_mov_b32 v5, s{sNON+1}")
    e("s_mov_b64 exec, 1")
    e(f"buffer_store_dwordx2 v[4:5], off, {sr(R_DBG,4)}, 0 sc1")
    e("s_mov_b64 exec, -1")
    lab("L_notag")
    NT = lambda b: "nt " if opt['ntc'] >> b & 1 else ""
    for i in range(4): e(f"buffer_load_dwordx4 v2, {sr(R_W,4)}, s{sT3} offen offset:{1024*i} {NT(1)}lds")
    dma_run(4, 2, R_XA, sT2, sT1, 1024, XROW, NT(0))
    stamp(0)
    srd(R_WS, P_WS, WS_SIZE)
    if opt['dbgt']:
        e(f"s_cmp_lt_u32 s2, 8")
        e("s_cbranch_scc0 L_nodbg0")
        e(f"s_cmp_eq_u32 s{sW}, 6")
        e("s_cbranch_scc0 L_nodbg0")
        e(f"v_mov_b32 v4, s{sNON}")
        e(f"s_lshl_b32 s{sT0}, s2, 2")
        e(f"s_add_u32 s{sT0}, s{sT0}, 8")
        e("s_mov_b64 exec, 1")
        e(f"buffer_store_dword v4, off, {sr(R_DBG,4)}, s{sT0}")
        e("s_mov_b64 exec, -1")
        lab("L_nodbg0")
    e("s_barrier                             ; B1")
if opt['first']:
    cm("the aux waves' first loads are the longest dependency chain: their code directly follows the entry")
    e(f"s_cmp_lt_u32 s{sW}, 4")
    e("s_cbranch_scc1 L_att0")
    aux_first()
    e("s_branch L_aux")
    lab("L_att0")
else:
    e(f"s_cmp_ge_u32 s{sW}, 4")
    e("s_cbranch_scc1 L_aux")

cm("wq slice (8 rows x 128 B per load, 16-B chunks swizzled by row bit 1); quarter tb&3 first: distinct among its 4 sharers")
e(f"v_lshrrev_b32 v3, 3, v{vL}          ; r")
e(f"v_and_b32 v4, 7, v{vL}")
e(f"v_bfe_u32 v5, v{vL}, 4, 1           ; (r>>1)&1")
e("v_lshlrev_b32 v5, 2, v5")
e("v_xor_b32 v4, v4, v5")
e("v_lshlrev_b32 v4, 4, v4")
e("v_lshl_add_u32 v13, v3, 10, v4")
e(f"s_mov_b32 s{R_WQ+2}, 0x80000")
e(f"s_mov_b32 s{R_WQ+3}, 0x20000")
def wq_addr(q):
    e(f"s_add_u32 s{sT0}, s{sJ}, {q}")
    e(f"s_and_b32 s{sT0}, s{sT0}, 3")
    e(f"s_lshl_b32 s{sT0}, s{sT0}, 2")
    e(f"s_add_u32 s{sT0}, s{sT0}, s{sW}")
    e(f"s_lshl_b32 s{sT2}, s{sT0}, 15")
    e(f"s_lshl_b32 s{sT1}, s{sHG}, 7")
    e(f"s_add_u32 s{sT2}, s{sT2}, s{sT1}")
    e(f"s_lshl_b32 s{sT1}, s{sT0}, 12")
    e(f"s_add_u32 s{sT1}, s{sT1}, {WQ_OFF}")
wq_addr(0)
e("s_waitcnt lgkmcnt(0)")
e(f"s_mov_b32 s{R_WQ}, s{P_WQ}")
e(f"s_and_b32 s{R_WQ+1}, s{P_WQ+1}, 0xffff")
e(f"s_mov_b32 s{R_XA}, s{P_XA}")
e(f"s_and_b32 s{R_XA+1}, s{P_XA+1}, 0xffff")
stamp(0)
e("s_barrier")
NT = lambda b: "nt " if opt['ntc'] >> b & 1 else ""
dma_run(4, 13, R_WQ, sT2, sT1, 8192, 1024, NT(2))
cm("the 48 rows of the x tile the aux waves do not load: blocks blk+1, blk+2, blk+3 (mod 4), 4 rows per wave each")
def x_addr(d):
    e(f"s_add_u32 s{sT0}, s{sTHP}, {d}")
    e(f"s_and_b32 s{sT0}, s{sT0}, 3")
    e(f"s_lshl_b32 s{sT0}, s{sT0}, 2")
    e(f"s_add_u32 s{sT0}, s{sT0}, s{sW}")
    e(f"s_lshl_b32 s{sT0}, s{sT0}, 2          ; first row")
    e(f"s_mul_i32 s{sT1}, s{sT0}, {XROW}")
    e(f"s_add_u32 s{sT1}, s{sT1}, {X_OFF}")
    e(f"s_lshl_b32 s{sT2}, s{sTB}, 6")
    e(f"s_add_u32 s{sT2}, s{sT2}, s{sT0}")
    e(f"s_lshl_b32 s{sT2}, s{sT2}, 10")
def hold(name, ctr, val):
    lds_wait(name, ctr, val, 8, sleep=opt['fs'])
seq = [('x', 1), ('x', 2), ('x', 3), ('q', 1), ('q', 2), ('q', 3)]
for n, (kind, d) in enumerate(seq):
    (x_addr if kind == 'x' else wq_addr)(d)
    if opt['win']:
        W = opt['win'] if n < 2 else opt['win2']
        if 4*(n + 2) > W: e(f"s_waitcnt vmcnt({W - 4})")
    else:
        if n == opt['h1']: hold("L_hold1", C_CR, FOUR)
        if n == opt['h2']: hold("L_hold2", C_KV, 1)
    if kind == 'x': dma_run(4, 2, R_XA, sT2, sT1, 1024, XROW, NT(3))
    else: dma_run(4, 13, R_WQ, sT2, sT1, 8192, 1024, NT(4))
stamp(7)
srd(R_WS, P_WS, WS_SIZE)
SA, SB, OA, OB, CA, CB = 16, 32, 48, 64, 80, 96
QA, QB, K0, K1, V0, V1 = 112, 116, 120, 124, 128, 136
vIDX, vK, vV = 144, 145, 146
vINC, vV0, vSAME = 147, 150, 151
vXA, vWA = 148, 149
FB = 152
cm("Q-projection addresses")
e(f"s_and_b32 s{sT0}, s{sW}, 1            ; th")
e(f"s_lshr_b32 s{sT1}, s{sW}, 1           ; hp")
e(f"v_and_b32 v3, 31, v{vL}")
e(f"s_lshl_b32 s{sT2}, s{sT0}, 5")
e(f"v_add_u32 v3, s{sT2}, v3")
e(f"v_mul_u32_u24 v3, {XROW}, v3")
e(f"v_lshrrev_b32 v4, 5, v{vL}           ; h")
e(f"v_lshl_add_u32 v14, v4, 4, v3")
e(f"v_bfe_u32 v5, v{vL}, 2, 2            ; r")
e("v_lshl_add_u32 v6, v4, 3, v5          ; 8h + r")
e("v_lshlrev_b32 v6, 7, v6")
e(f"v_bfe_u32 v7, v{vL}, 4, 1            ; g")
e(f"v_and_b32 v8, 1, v{vL}")
e("v_lshl_add_u32 v7, v7, 1, v8          ; 2g + (cc&1)")
e(f"s_lshl_b32 s{sT2}, s{sT1}, 2")
e(f"v_add_u32 v7, s{sT2}, v7")
e(f"v_bfe_u32 v8, v{vL}, 3, 1            ; (r>>1)&1")
e("v_lshlrev_b32 v8, 2, v8")
e("v_xor_b32 v7, v7, v8")
e("v_lshl_add_u32 v6, v7, 4, v6")
e(f"v_bfe_u32 v8, v{vL}, 1, 1")
e("v_lshl_add_u32 v6, v8, 3, v6")
e(f"v_add_u32 v{vWA}, {WQ_OFF}, v6")
e(f"v_add_u32 v{vXA}, {X_OFF}, v14")
cm("attention LDS addresses; V: rows 0..15 -> tile data, lanes 16,20 -> 2^64, other lanes -> 0")
e(f"v_mov_b32 v{vIDX}, 0xdddddddd")
e(f"v_bfe_u32 v5, v{vL}, 4, 1")
e(f"v_xor_b32 v5, 1, v5                   ; 1 for V rows, 0 for the constant lanes")
e(f"v_lshlrev_b32 v{vINC}, 13, v5")
e(f"v_and_b32 v8, 15, v{vL}")
e("v_lshlrev_b32 v9, 8, v4")
e("v_lshl_add_u32 v8, v8, 4, v9")
e(f"v_and_b32 v9, 31, v{vL}")
e("v_add_u32 v10, -20, v9")
e("v_cmp_gt_u32 vcc, 8, v10")
e("v_and_b32 v9, 11, v9")
e("v_min_u32 v9, 1, v9")
e("v_cndmask_b32 v10, 0, 64, vcc")
e(f"v_cmp_eq_u32 vcc, 1, v5")
e("v_lshl_add_u32 v9, v9, 4, v10")
e(f"v_add_u32 v9, {ONES_OFF - 1024}, v9")
e(f"v_cndmask_b32 v{vV0}, v9, v8, vcc")
cm("O fragment destination and flag slot")
sOD, sOF = 97, 98
e(f"s_and_b32 s{sT0}, s{sW}, 1")
e(f"s_lshl_b32 s{sT1}, s{sTB}, 1")
e(f"s_add_u32 s{sT0}, s{sT0}, s{sT1}")
e(f"s_lshl_b32 s{sT0}, s{sT0}, 5          ; (tb*2+th)*32")
e(f"s_lshl_b32 s{sT1}, s{sHG}, 2")
e(f"s_add_u32 s{sT0}, s{sT0}, s{sT1}")
e(f"s_and_b32 s{sT1}, s{sW}, 2")
e(f"s_add_u32 s{sT0}, s{sT0}, s{sT1}")
e(f"s_lshl_b32 s{sT0}, s{sT0}, 10")
e(f"s_add_u32 s{sOD}, s{sT0}, {WS_O}")
e(f"s_lshl_b32 s{sT1}, s{sTB}, 3")
e(f"s_add_u32 s{sT1}, s{sT1}, s{sHG}")
e(f"s_lshl_b32 s{sT1}, s{sT1}, 2")
e(f"s_add_u32 s{sT1}, s{sT1}, s{sW}")
e(f"s_lshl_b32 s{sT1}, s{sT1}, 7")
e(f"s_add_u32 s{sOF}, s{sT1}, {FL_O}")
e(f"s_mov_b32 s{sFB}, 0")
e(f"s_mov_b32 s{sBARN}, {hex(0xa | (1 << opt['r2'] if opt['r2'] else 0))}")
e(f"v_mov_b32 v{vSAME}, {MISC}")
sPF, sOL, sOS, vPO = 100, 101, 79, 184
e(f"s_lshl_b32 s{sT0}, s{sTB}, 3")
e(f"s_lshl_b32 s{sT1}, s{sW}, 1")
e(f"s_add_u32 s{sT0}, s{sT0}, s{sT1}")
e(f"s_lshl_b32 s{sT0}, s{sT0}, 9")
e(f"s_add_u32 s{sPF}, s{sT0}, {FL_O}")
e(f"s_lshl_b32 s{sT2}, s{sTB}, 16")
e(f"s_lshl_b32 s{sOL}, s{sW}, 13")
e(f"s_add_u32 s{sT2}, s{sT2}, s{sOL}")
e(f"s_add_u32 s{sOS}, s{sT2}, {WS_O}")
e(f"v_and_b32 v8, 7, v{vL}")
e(f"v_lshlrev_b32 v{vPO}, 7, v8")
for i in range(16): e(f"v_mov_b32 v{OA+i}, 0")
for i in range(16): e(f"v_mov_b32 v{OB+i}, 0")
for i in range(4): e(f"v_mov_b32 v{V1+4+i}, 0")
if opt['qloop']:
    for i in range(16): e(f"v_mov_b32 v{SA+i}, 0")
e(f"v_mov_b32 v{vK}, v2")
e(f"v_mov_b32 v{vV}, v{vV0}")
if opt['dftpf']:
    cm("sequence-DFT rows the aux waves read later (pulled towards L2 from inside the loop):")
    cm("wave 0: cos rows t1s + 32l; wave 1: sin rows 2048 - that; waves 2, 3: cos / sin rows 64 (l & 31)")
    R_DP, vDP = R_XA, 187
    e(f"s_bitcmp1_b32 s{sW}, 0")
    e(f"s_cselect_b64 {sr(R_DP,2)}, {sr(P_SIM,2)}, {sr(P_SRE,2)}")
    e(f"s_and_b32 s{R_DP+1}, s{R_DP+1}, 0xffff")
    e(f"s_mov_b32 s{R_DP+2}, 0x800000")
    e(f"v_lshlrev_b32 v8, 5, v{vL}")
    e(f"v_add_u32 v8, s{sTB}, v8               ; t1s = tb")
    e("v_sub_u32 v9, 0x800, v8")
    e("v_and_b32 v9, 0x7ff, v9")
    e(f"v_lshlrev_b32 v10, 6, v{vL}")
    e("v_and_b32 v10, 0x7ff, v10")
    e(f"s_cmp_eq_u32 s{sW}, 1")
    e("s_cselect_b64 vcc, -1, 0")
    e("v_cndmask_b32 v8, v8, v9, vcc")
    e(f"s_cmp_ge_u32 s{sW}, 2")
    e("s_cselect_b64 vcc, -1, 0")
    e("v_cndmask_b32 v8, v8, v10, vcc")
    e(f"v_lshlrev_b32 v{vDP}, 12, v8")
if opt['preo']:
    cm("output lines this workgroup writes at the end (touched from inside the loop, values unused):")
    cm("waves 0, 2: rows 64tb + l, columns of hg; waves 1, 3: rows tb + 32l (mirrored for hg >= 4), spectral columns of hg")
    vOP, sOP = 186, 30
    srd(R_OUT, P_OUT, 4194304)
    e(f"v_lshlrev_b32 v8, 5, v{vL}")
    e(f"v_add_u32 v8, s{sTB}, v8")
    e("v_sub_u32 v9, 0x800, v8")
    e("v_and_b32 v9, 0x7ff, v9")
    e(f"s_cmp_ge_u32 s{sHG}, 4")
    e("s_cselect_b64 vcc, -1, 0")
    e("v_cndmask_b32 v8, v8, v9, vcc")
    e(f"s_lshl_b32 s{sT0}, s{sTB}, 6")
    e(f"v_add_u32 v9, s{sT0}, v{vL}")
    e(f"s_bitcmp1_b32 s{sW}, 0")
    e("s_cselect_b64 vcc, -1, 0")
    e(f"s_cselect_b32 s{sOP}, 0x400, 0")
    e("v_cndmask_b32 v8, v9, v8, vcc")
    e(f"v_lshlrev_b32 v{vOP}, 11, v8")
    e(f"s_lshl_b32 s{sT0}, s{sHG}, 7")
    e(f"s_add_u32 s{sOP}, s{sOP}, s{sT0}")
e(f"s_mov_b32 s{sT0}, {hex(f2u(0.25*1.4426950408889634))}")
warm("L_padq", "L_padq_ret")
e("s_waitcnt vmcnt(0)")
stamp(8)
e("s_barrier")
stamp(10)
pad_begin("L_padq")
def qload(ks):
    b = FB + 8*(ks % 4)
    e(f"ds_read_b64_tr_b16 {vr(b,2)}, v{vWA} offset:{ks*2048}")
    e(f"ds_read_b64_tr_b16 {vr(b+2,2)}, v{vWA} offset:{ks*2048+512}")
    e(f"ds_read_b128 {vr(b+4,4)}, v{vXA} offset:{ks*32}")
for ks in range(3): qload(ks)
if opt['qloop']:
    cm("4 trips of 8 k-steps; the last trip's look-ahead reads land in unused registers")
    e(f"s_mov_b32 s{sIT}, 0")
    lab("L_qloop")
    for ks in range(8):
        b = FB + 8*(ks % 4)
        qload(ks + 3); e("s_waitcnt lgkmcnt(9)")
        e(f"v_mfma_f32_32x32x16_bf16 {vr(SA,16)}, {vr(b,4)}, {vr(b+4,4)}, {vr(SA,16)}")
        if ks == 7:
            e(f"v_add_u32 v{vWA}, 0x4000, v{vWA}")
            e(f"v_add_u32 v{vXA}, 0x100, v{vXA}")
        if ks == 6:
            e(f"s_add_u32 s{sIT}, s{sIT}, 1")
            e(f"s_cmp_lt_u32 s{sIT}, 4")
    e("s_cbranch_scc1 L_qloop")
    e("s_waitcnt lgkmcnt(0)")
else:
    for ks in range(32):
        b = FB + 8*(ks % 4)
        if ks + 3 < 32:
            qload(ks + 3); e("s_waitcnt lgkmcnt(9)")
        else:
            e(f"s_waitcnt lgkmcnt({3*(31-ks)})")
        c = "0" if ks == 0 else vr(SA, 16)
        e(f"v_mfma_f32_32x32x16_bf16 {vr(SA,16)}, {vr(b,4)}, {vr(b+4,4)}, {c}")
stamp(9)
nop(8 if opt['qloop'] else 12)
for i in range(16): e(f"v_mul_f32 v{SA+i}, s{sT0}, v{SA+i}")
for i in range(8): e(f"v_cvt_pk_bf16_f32 v{QA+i}, v{SA+2*i}, v{SA+2*i+1}")
if opt['prioA']: e(f"s_setprio {opt['prioA']}")
stamp(2)
if opt['attpf']:
    cm("after BA: pull this workgroup's 1/32 share of what its XCD reads later towards L2 (one dword per 128-B line)")
    cm("wave 0: x_B rows 64j + 8xcd + (0..7); waves 1, 2: hidden cos / sin rows 8j..8j+7; wave 3: wo rows 16j..16j+15")
    R_PF = R_WQ
    e(f"s_cmp_eq_u32 s{sW}, 1")
    e(f"s_cselect_b64 {sr(R_PF,2)}, {sr(P_HRE,2)}, {sr(P_HIM,2)}")
    e(f"s_lshl_b32 s{sT2}, s{sJ}, 13")
    e(f"s_cmp_eq_u32 s{sW}, 3")
    e(f"s_cselect_b64 {sr(R_PF,2)}, {sr(P_WO,2)}, {sr(R_PF,2)}")
    e(f"s_cselect_b32 s{sT3}, s{sT2}, 0")
    e(f"s_add_u32 s{sT2}, s{sT2}, s{sT3}")
    e(f"s_lshl_b32 s{sT3}, s{sJ}, 16")
    e(f"s_lshl_b32 s{sT1}, s{sXCD}, 13")
    e(f"s_add_u32 s{sT3}, s{sT3}, s{sT1}")
    e(f"s_cmp_eq_u32 s{sW}, 0")
    e(f"s_cselect_b64 {sr(R_PF,2)}, {sr(P_XB,2)}, {sr(R_PF,2)}")
    e(f"s_cselect_b32 s{sT2}, s{sT3}, s{sT2}")
    e(f"s_cselect_b32 s{R_PF+2}, 0x200000, s{R_PF+2}")
    e(f"s_and_b32 s{R_PF+1}, s{R_PF+1}, 0xffff")
    e(f"s_add_u32 s{sT3}, s{sT2}, 8192")
    e(f"v_lshlrev_b32 v6, 7, v{vL}")
if opt['baat']:
    lab("L_baat")
    e(f"s_memrealtime {sr(sX,2)}")
    e("s_waitcnt lgkmcnt(0)")
    e(f"s_sub_u32 s{sX}, s{sX}, s3")
    e(f"s_cmp_lt_u32 s{sX}, {opt['baat']}")
    e("s_cbranch_scc1 L_baat")
e("s_barrier")
stamp(3)
PFLOAD = True
MT = opt['mt']
cm(f"stand-in for the row max: max over the first {MT} key tile(s) (checked after the loop; fallback = true max)")
e(f"ds_read_b128 {vr(K0,4)}, v{vK}")
e(f"ds_read_b128 {vr(K1,4)}, v{vK} offset:2048")
KX = FB
for t in range(2, MT): e(f"ds_read_b128 {vr(KX+4*(t-2),4)}, v{vK} offset:{2048*t}")
e(f"ds_read_b128 {vr(V0,4)}, v{vV} offset:1024")
e(f"ds_read_b128 {vr(V0+4,4)}, v{vV} offset:1536")
def max16(dst, s, acc=None):
    if acc is None:
        e(f"v_max3_f32 v{dst}, v{s}, v{s+1}, v{s+2}"); i = 3
        while i + 1 < 16:
            e(f"v_max3_f32 v{dst}, v{dst}, v{s+i}, v{s+i+1}"); i += 2
        e(f"v_max_f32 v{dst}, v{dst}, v{s+15}")
    else:
        for i in range(0, 16, 2): e(f"v_max3_f32 v{dst}, v{dst}, v{s+i}, v{s+i+1}")
nrd = 4 + max(0, MT - 2)
e(f"s_waitcnt lgkmcnt({nrd - 1})")
e(f"v_mfma_f32_32x32x16_bf16 {vr(SA,16)}, {vr(K0,4)}, {vr(QA,4)}, 0")
e(f"v_mfma_f32_32x32x16_bf16 {vr(SB,16)}, {vr(K0,4)}, {vr(QB,4)}, 0")
if MT == 1:
    nop(11)
    max16(4, SA); max16(5, SB)
else:
    kreg = [K0, K1] + [KX + 4*t for t in range(2)]
    bufs = [(SA, SB), (CA, CB)]
    e(f"s_waitcnt lgkmcnt({nrd - 2})")
    e(f"v_mfma_f32_32x32x16_bf16 {vr(CA,16)}, {vr(K1,4)}, {vr(QA,4)}, 0")
    e(f"v_mfma_f32_32x32x16_bf16 {vr(CB,16)}, {vr(K1,4)}, {vr(QB,4)}, 0")
    e("s_waitcnt lgkmcnt(2)")
    nop(7)
    for t in range(MT):
        a, b = bufs[t % 2]
        max16(4, a, None if t == 0 else 1)
        if t + 2 < MT: e(f"v_mfma_f32_32x32x16_bf16 {vr(a,16)}, {vr(kreg[t+2],4)}, {vr(QA,4)}, 0")
        max16(5, b, None if t == 0 else 1)
        if t + 2 < MT: e(f"v_mfma_f32_32x32x16_bf16 {vr(b,16)}, {vr(kreg[t+2],4)}, {vr(QB,4)}, 0")
lab("L_setmax")
cm(f"v4 / v5 = per-lane max for tiles A / B; combine the two half-waves, C = -(max + {opt['shift']})")
e("v_mov_b32 v6, v4")
e("v_mov_b32 v7, v5")
e(f"s_mov_b32 s{sIT}, 0")
e("s_nop 0")
e("v_permlane32_swap_b32 v4, v6")
e("v_permlane32_swap_b32 v5, v7")
e("v_max_f32 v4, v4, v6")
e("v_max_f32 v5, v5, v7")
for i in range(16): e(f"v_sub_f32 v{CA+i}, {hex(f2u(-float(opt['shift'])))}, v4")
e(f"v_sub_f32 v{CB}, {hex(f2u(-float(opt['shift'])))}, v5")
e("s_waitcnt lgkmcnt(0)")
if opt['vmask']:
    e("s_mov_b32 s30, 0xffff")
    e("s_mov_b32 s31, 0xffff")
    for i in range(8): e(f"v_mov_b32 v{V1+i}, v{V0+i}")
e(f"v_mfma_f32_32x32x16_bf16 {vr(SA,16)}, {vr(K0,4)}, {vr(QA,4)}, {vr(CA,16)}")
for i in range(1, 16): e(f"v_mov_b32 v{CB+i}, v{CB}")
for i in range(8): e(f"v_mov_b32 v{SB+8+i}, 0")
def SM(o, a, b): e(f"v_smfmac_f32_32x32x32_bf16 {vr(o,16)}, {vr(a,4)}, {vr(b,8)}, v{vIDX}")
def QK(d, k, q, c): e(f"v_mfma_f32_32x32x16_bf16 {vr(d,16)}, {vr(k,4)}, {vr(q,4)}, {vr(c,16)}")
def EX(s, a, b):
    for i in range(a, b): e(f"v_exp_f32 v{s+i}, v{s+i}")
pad_end("L_padq", "L_padq_ret")
stamp(13)
L.append(".p2align 6")
lab("L_att_loop")
for u in range(4):
    kc, kn = (K0, K1) if u % 2 == 0 else (K1, K0)
    vc, vp = (V0, V1) if u % 2 == 0 else (V1, V0)
    voffs = ((u + 1) % 4) * 2048 + 1024
    koffs = ((u + 2) % 4) * 2048
    p0, p1, p2 = (4, 7, 10) if opt['cluster'] else (2, 5, 10)
    EX(SA, 0, p0)
    SM(OB, vp + 4, SB + 8)
    e(f"s_waitcnt lgkmcnt({2 if u == 1 and opt['csync'] else 1})")
    EX(SA, p0, p1)
    QK(SB, kc, QB, CB)
    if opt['vmask']: e(f"s_mov_b64 exec, {sr(30,2)}")
    e(f"ds_read_b128 {vr(vp,4)}, v{vV} offset:{voffs}")
    if opt['vmask']: e("s_mov_b64 exec, -1")
    EX(SA, p1, p2)
    SM(OA, vc, SA)
    if opt['vmask']: e(f"s_mov_b64 exec, {sr(30,2)}")
    e(f"ds_read_b128 {vr(vp+4,4)}, v{vV} offset:{voffs+512}")
    if opt['vmask']: e("s_mov_b64 exec, -1")
    EX(SA, p2, 16)
    EX(SB, 0, p0)
    SM(OA, vc + 4, SA + 8)
    e("s_waitcnt lgkmcnt(2)")
    if u == 1:
        pass
    EX(SB, p0, p1)
    QK(SA, kn, QA, CA)
    e(f"ds_read_b128 {vr(kc,4)}, v{vK} offset:{koffs}")
    EX(SB, p1, p2)
    SM(OB, vc, SB)
    if u == 1:
        e(f"s_bitcmp1_b32 s{sBARN}, s{sIT}")
        e("s_cbranch_scc1 L_sync")
        lab("L_nobar")
        e(f"v_add_u32 v{vK}, 0x2000, v{vK}")
    if u == 2:
        e(f"v_add_u32 v{vV}, v{vINC}, v{vV}")
    if u == 3:
        e(f"s_add_u32 s{sIT}, s{sIT}, 1")
        e(f"s_cmp_lt_u32 s{sIT}, 16")
    if u == 0 and opt['csync']: e(f"ds_read_b64 v[4:5], v{vSAME} offset:{C_G1}")
    elif u == 0 and opt['cluster']: e("s_nop 0")
    EX(SB, p2, 16)
e("s_cbranch_scc1 L_att_loop")
if opt['lwarm']: e("s_cbranch_execz L_lwarm_ret           ; only the instruction-cache warm-up pass has EXEC = 0")
stamp(18)
pad_begin("L_padt")
e(f"s_mov_b32 s{sT0}, {hex(f2u(2.0**100) if not opt['force_fb'] else f2u(2.0**-30))}")
e(f"v_rcp_f32 v4, v{OA+8}")
SM(OB, V1 + 4, SB + 8)
e(f"ds_read_b32 v7, v{vSAME} offset:{C_SAME}")
e(f"ds_read_b64 v[8:9], v{vSAME} offset:{C_TAG}")
cm("run-time check of the stand-in: l*2^64 must be finite and <= 2^100, else redo with the true row max")
e(f"v_cmp_nle_f32_e64 vcc, v{OA+8}, s{sT0}")
for i in range(8): e(f"v_mul_f32 v{SA+i}, v4, v{OA+i}")
for i in range(4): e(f"v_cvt_pk_bf16_f32 v{SA+i}, v{SA+2*i}, v{SA+2*i+1}")
sSAME = 99
e("s_waitcnt lgkmcnt(0)")
e(f"v_readfirstlane_b32 s{sSAME}, v7")
e(f"v_rcp_f32 v5, v{OB+8}")
e(f"v_cmp_nle_f32_e64 {sr(sX,2)}, v{OB+8}, s{sT0}")
cm("plain stores only when every workgroup of this token block reported the same XCD; else write-through")
e(f"s_cmp_eq_u32 s{sSAME}, 0")
e("s_cbranch_scc1 L_ostA_wt")
OM = " sc1" if opt['omode'] >= 2 else ""
e(f"buffer_store_dwordx4 {vr(SA,4)}, v2, {sr(R_WS,4)}, s{sOD} offen{OM}")
lab("L_ostA_done")
for i in range(8): e(f"v_mul_f32 v{SB+i}, v5, v{OB+i}")
e(f"s_or_b64 vcc, vcc, {sr(sX,2)}")
for i in range(4): e(f"v_cvt_pk_bf16_f32 v{SA+4+i}, v{SB+2*i}, v{SB+2*i+1}")
e("s_cmp_eq_u64 vcc, 0")
e("s_cbranch_scc0 L_fallback")
lab("L_att_done")
e(f"s_cmp_eq_u32 s{sSAME}, 0")
e("s_cbranch_scc1 L_ost_wt")
e(f"buffer_store_dwordx4 {vr(SA+4,4)}, v2, {sr(R_WS,4)}, s{sOD} offen offset:1024{OM}")
stamp(6)
e(f"v_readfirstlane_b32 s{sNON}, v8")
e(f"v_readfirstlane_b32 s{sNON+1}, v9")
e("s_mov_b64 exec, 1")
e("s_waitcnt vmcnt(0)")
e(f"buffer_store_dwordx2 v[8:9], off, {sr(R_WS,4)}, s{sOF}")
if opt['omode'] == 3: e(f"buffer_store_dwordx2 v[8:9], off, {sr(R_WS,4)}, s{sOF} sc1")
lab("L_ost_done")
e("s_mov_b64 exec, -1")
stamp(5)
e("s_barrier")
stamp(4)
cm("gather the O tile of this token block: wave w takes producers 2w, 2w+1, in four steps of two heads")
poll("L_pollO", 1, vPO, 10, [sPF])
stamp(11)
for st in range(4):
    for th in range(2):
        e(f"s_add_u32 m0, s{sOL}, {2048*st + 32768*th}")
        e(f"s_add_u32 s{sT1}, s{sOS}, {2048*st + 32768*th}")
        for i in range(2): e(f"buffer_load_dwordx4 v2, {sr(R_WS,4)}, s{sT1} offen offset:{1024*i} sc1 lds")
pad_end("L_padt", "L_pado_0")
for st in range(4):
    e(f"s_waitcnt vmcnt({12 - 4*st})")
    if st == 0: stamp(12)
    e(f"s_barrier                             ; B8.{st}: heads 8w + {2*st}, {2*st+1} of every wave landed")
stamp_dump()
e("s_endpgm")
lab("L_ostA_wt")
e(f"buffer_store_dwordx4 {vr(SA,4)}, v2, {sr(R_WS,4)}, s{sOD} offen sc1")
e("s_branch L_ostA_done")
lab("L_ost_wt")
e(f"buffer_store_dwordx4 {vr(SA+4,4)}, v2, {sr(R_WS,4)}, s{sOD} offen offset:1024 sc1")
stamp(6)
e(f"v_readfirstlane_b32 s{sNON}, v8")
e(f"v_readfirstlane_b32 s{sNON+1}, v9")
e("s_mov_b64 exec, 1")
e("s_waitcnt vmcnt(0)")
e(f"buffer_store_dwordx2 v[8:9], off, {sr(R_WS,4)}, s{sOF} sc1")
e("s_branch L_ost_done")
def rescale():
    E0 = VSCALE - opt['shift']
    p2 = 10
    cm("raise the softmax reference to the row sum so far: v6 / v10 = delta (>= 0), v8 / v14 = 2^-delta for tiles A / B")
    for t, (O, d, f, tmp) in enumerate(((OA, 6, 8, 12), (OB, 10, 14, 13))):
        if t == 1: nop(1)
        e(f"v_frexp_exp_i32_f32 v{tmp}, v{O+8}")
        e(f"v_add_u32 v{tmp}, {-1 - E0}, v{tmp}")
        e(f"v_med3_i32 v{tmp}, v{tmp}, 0, s{sT3}")
        e(f"v_cvt_f32_i32 v{d}, v{tmp}")
        e(f"v_sub_u32 v{tmp}, 0, v{tmp}")
        e(f"v_ldexp_f32 v{f}, 1.0, v{tmp}")
        if t == 0:
            for r in range(0, 10, 2): e(f"v_pk_mul_f32 {vr(O+r,2)}, {vr(O+r,2)}, {vr(f,2)} op_sel_hi:[1,0]")
    for r in range(0, 10, 2): e(f"v_pk_mul_f32 {vr(OB+r,2)}, {vr(OB+r,2)}, {vr(14,2)} op_sel_hi:[1,0]")
    e(f"v_pk_mul_f32 {vr(SB+8,2)}, {vr(SB+8,2)}, {vr(14,2)} op_sel_hi:[1,0]")
    sub = lambda r, d: e(f"v_pk_add_f32 {vr(r,2)}, {vr(r,2)}, {vr(d,2)} op_sel_hi:[1,0] neg_lo:[0,1] neg_hi:[0,1]")
    for r in range(p2, 16, 2): sub(SB + r, 10)
    for r in range(0, 16, 2): sub(SA + r, 6)
    for r in range(0, 16, 2): sub(CA + r, 6)
    for r in range(0, 16, 2): sub(CB + r, 10)
lab("L_sync")
e(f"s_cmp_eq_u32 s{sIT}, 1")
e("s_cbranch_scc0 L_sync3")
stamp(14)
if opt['csync']:
    e(f"v_readfirstlane_b32 s{sT4}, v4")
    e("s_nop 0")
    e(f"s_cmp_ge_u32 s{sT4}, {FOUR}")
    e("s_cbranch_scc1 L_nobar") if not opt['stamps'] else e("s_cbranch_scc1 L_wg1_done")
lds_wait("L_wg1", C_G1, FOUR, 4)
stamp(15)
if opt['resc'] & 1:
    e(f"s_mov_b32 s{sT3}, 120")
    rescale()
e("s_branch L_nobar")
lab("L_sync3")
if opt['stall']: e(f"s_sleep {opt['stall']}")
if opt['dftpf']: e(f"buffer_load_dword v185, v{vDP}, {sr(R_DP,4)}, 0 offen")
if opt['preo']:
    e(f"s_cmp_lt_u32 s{sW}, 2")
    e("s_cbranch_scc0 L_nopo")
    e(f"buffer_load_dword v188, v{vOP}, {sr(R_OUT,4)}, s{sOP} offen{' sc1' if opt['preo'] == 1 else ''}")
    lab("L_nopo")
stamp(16)
if opt['csync']:
    e(f"v_readfirstlane_b32 s{sT4}, v5")
    e("s_nop 0")
    e(f"s_cmp_ge_u32 s{sT4}, {FOUR}")
    e("s_cbranch_scc1 L_nobar") if not opt['stamps'] else e("s_cbranch_scc1 L_wkvl_done")
lds_wait("L_wkvl", C_KVL, FOUR, 4)
stamp(17)
if opt['resc'] & 2:
    e(f"s_mov_b32 s{sT3}, 120")
    rescale()
e("s_branch L_nobar")
lab("L_fallback")
e(f"s_cmp_eq_u32 s{sFB}, 0")
e("s_cbranch_scc0 L_att_done")
cm("fallback: exact row max over all 64 key tiles, then repeat the main loop")
e(f"s_mov_b32 s{sFB}, 1")
e(f"s_mov_b32 s{sBARN}, 0")
e(f"v_mov_b32 v4, 0xff800000")
e(f"v_mov_b32 v5, 0xff800000")
e(f"v_mov_b32 v{vK}, v2")
e(f"s_mov_b32 s{sIT}, 0")
lab("L_fb_loop")
e(f"ds_read_b128 {vr(K0,4)}, v{vK}")
e("s_waitcnt lgkmcnt(0)")
e(f"v_mfma_f32_32x32x16_bf16 {vr(SA,16)}, {vr(K0,4)}, {vr(QA,4)}, 0")
e(f"v_mfma_f32_32x32x16_bf16 {vr(SB,16)}, {vr(K0,4)}, {vr(QB,4)}, 0")
e(f"v_add_u32 v{vK}, 0x800, v{vK}")
nop(11)
max16(4, SA, 1); max16(5, SB, 1)
e(f"s_add_u32 s{sIT}, s{sIT}, 1")
e(f"s_cmp_lt_u32 s{sIT}, 64")
e("s_cbranch_scc1 L_fb_loop")
e(f"v_mov_b32 v{vK}, v2")
e(f"v_mov_b32 v{vV}, v{vV0}")
for i in range(16): e(f"v_mov_b32 v{OA+i}, 0")
for i in range(16): e(f"v_mov_b32 v{OB+i}, 0")
for i in range(4): e(f"v_mov_b32 v{V1+4+i}, 0")
e(f"ds_read_b128 {vr(K0,4)}, v{vK}")
e(f"ds_read_b128 {vr(K1,4)}, v{vK} offset:2048")
e(f"ds_read_b128 {vr(V0,4)}, v{vV} offset:1024")
e(f"ds_read_b128 {vr(V0+4,4)}, v{vV} offset:1536")
e("s_branch L_setmax")

lab("L_aux")
BUF = 16
BP = 144
FR = 176
ACC = 192
D1, D2 = 208, 224
if not opt['first']: aux_first()
KV0 = len(L)
e(f"v_mov_b32 v14, {MISC+C_CR}")
if opt['bytef']: e(f"v_add_u32 v14, s{sA}, v14")
e(f"v_mov_b32 v15, 1")
cm("K / V projection of 16 tokens: aux wave 0")
e(f"s_cmp_eq_u32 s{sA}, 0")
e("s_cbranch_scc0 L_np")
e(f"v_and_b32 v3, 15, v{vL}")
e(f"v_lshrrev_b32 v4, 4, v{vL}           ; q")
e(f"s_lshl_b32 s{sT0}, s{sTHP}, 4")
e(f"v_add_u32 v5, s{sT0}, v3")
e(f"v_mul_u32_u24 v5, {XROW}, v5")
e("v_lshl_add_u32 v5, v4, 4, v5")
e(f"v_add_u32 v5, {X_OFF}, v5")
e(f"v_bfe_u32 v6, v{vL}, 2, 2            ; r")
e("v_lshl_add_u32 v6, v4, 3, v6")
e("v_lshlrev_b32 v6, 5, v6")
e(f"v_and_b32 v7, 3, v{vL}               ; cc")
sB = sT3
e(f"s_and_b32 s{sB}, s{sTHP}, 1            ; b")
e(f"s_lshr_b32 s{sT0}, s{sTHP}, 1")
e(f"s_lshl_b32 s{sT2}, s{sTB}, 1")
e(f"s_add_u32 s{sT2}, s{sT2}, s{sT0}")
sKF, sKD = 97, 96
e(f"s_lshl_b32 s{sT1}, s{sT2}, 1")
e(f"s_and_b32 s{sT0}, s{sHG}, 1")
e(f"s_add_u32 s{sT1}, s{sT1}, s{sT0}")
e(f"s_lshl_b32 s{sT1}, s{sT1}, 1")
e(f"s_add_u32 s{sT1}, s{sT1}, s{sB}")
e(f"s_lshl_b32 s{sT1}, s{sT1}, 7")
e(f"s_add_u32 s{sKF}, s{sT1}, {FL_KV}")
e(f"s_lshl_b32 s{sKD}, s{sT2}, 11")
e("v_and_b32 v9, 1, v4")
e("v_lshlrev_b32 v9, 3, v9")
e("v_lshl_add_u32 v9, v3, 4, v9          ; n*16 + (q&1)*8")
e("v_lshrrev_b32 v8, 1, v4")
e(f"s_mov_b32 s{sDRY}, {1 if opt['dry'] else 0}")
if opt['pre']:
    cm("touch the lines this wave will publish (tile and flag), so the write-through stores find them resident")
    e(f"v_and_b32 v12, 15, v{vL}")
    e("v_lshlrev_b32 v12, 7, v12")
    e(f"buffer_load_dword v201, v12, {sr(R_WS,4)}, s{sKD} offen sc1")
    e(f"buffer_load_dword v202, off, {sr(R_WS,4)}, s{sKF} sc1")
def kvchain(isV):
    D = opt['kvd']
    def mf(k2):
        b2 = BUF + 8*k2
        a, bb = (b2+4, b2) if isV else (b2, b2+4)
        e(f"v_mfma_f32_16x16x32_bf16 {vr(ACC,4)}, {vr(a,4)}, {vr(bb,4)}, {'0' if k2==0 else vr(ACC,4)}")
    for ks in range(16):
        b = BUF + 8*ks
        e(f"ds_read_b64_tr_b16 {vr(b,2)}, v6 offset:{ks*1024}")
        e(f"ds_read_b64_tr_b16 {vr(b+2,2)}, v6 offset:{ks*1024+128}")
        e(f"ds_read_b128 {vr(b+4,4)}, v5 offset:{ks*64}")
        if ks >= D:
            e(f"s_waitcnt lgkmcnt({3*D})"); mf(ks - D)
    for k2 in range(16 - D, 16):
        e(f"s_waitcnt lgkmcnt({3*(15-k2)})"); mf(k2)
def kv_wait(tagname):
    e(f"s_waitcnt vmcnt({2 if opt['pre'] else 0})")
    stamp(1)
    e("s_mov_b64 exec, 1")
    e("ds_write_b8 v14, v15" if opt['bytef'] else "ds_add_u32 v14, v15")
    e("s_mov_b64 exec, -1")
    lds_wait(tagname + "_w", C_CR, FOUR, 10, sleep=1)
def kv_b1(tagname):
    if not opt['dry']: kv_wait(tagname)
    lab(tagname)
def kv_b2(tagname):
    if opt['dry']:
        e(f"s_cmp_eq_u32 s{sDRY}, 0")
        e(f"s_cbranch_scc1 {tagname}_go")
        e(f"s_mov_b32 s{sDRY}, 0")
        kv_wait(tagname)
        e(f"s_branch {tagname}")
        lab(tagname + "_go")
e(f"s_bitcmp1_b32 s{sHG}, 0")
e("s_cbranch_scc1 L_prodV")
cm("K: (q>>1)*512 + (16b+n)*16 + (q&1)*8")
e("v_lshl_add_u32 v6, v7, 3, v6")
e("v_lshl_add_u32 v8, v8, 9, v9")
e(f"s_lshl_b32 s{sT1}, s{sB}, 8")
e(f"s_add_u32 s{sKD}, s{sKD}, s{sT1}")
kv_b1("L_chK"); kvchain(False); kv_b2("L_chK")
nop(6 if opt['dry'] else 8)
e("s_branch L_prodS")
lab("L_prodV")
cm("V: 1024 + b*512 + (q>>1)*256 + n*16 + (q&1)*8")
e("v_lshl_add_u32 v8, v8, 8, v9")
e("v_and_b32 v9, 1, v7")
e("v_lshl_add_u32 v6, v9, 4, v6")
e("v_lshrrev_b32 v9, 1, v7")
e("v_lshl_add_u32 v6, v9, 3, v6")
e(f"s_lshl_b32 s{sT1}, s{sB}, 9")
e(f"s_add_u32 s{sKD}, s{sKD}, s{sT1}")
e(f"s_add_u32 s{sKD}, s{sKD}, 1024")
kv_b1("L_chV"); kvchain(True); kv_b2("L_chV")
e(f"s_mov_b32 s{sT0}, {hex(f2u(2.0**VSCALE))}")
nop(6 if opt['dry'] else 8)
for i in range(4): e(f"v_mul_f32 v{ACC+i}, s{sT0}, v{ACC+i}")
lab("L_prodS")
e(f"v_cvt_pk_bf16_f32 v10, v{ACC}, v{ACC+1}")
e(f"v_cvt_pk_bf16_f32 v11, v{ACC+2}, v{ACC+3}")
e(f"buffer_store_dwordx2 v[10:11], v8, {sr(R_WS,4)}, s{sKD} offen sc1")
stamp(14)
e("ds_add_u32 v14, v15 offset:%d             ; this wave is done with the weight region" % (C_KV - C_CR + 65536) if False else f"v_mov_b32 v13, {MISC+C_KV}")
e("s_mov_b64 exec, 1")
e("ds_write_b32 v13, v15")
e("s_mov_b64 exec, -1")
tag_from_lds("L_tagp", 4)
e(f"v_mov_b32 v6, s{sNON}")
e(f"v_mov_b32 v7, s{sNON+1}")
e("s_mov_b64 exec, 1")
e("s_waitcnt vmcnt(0)")
e(f"buffer_store_dwordx2 v[6:7], off, {sr(R_WS,4)}, s{sKF} sc1")
e("s_mov_b64 exec, -1")
stamp(15)
if opt['pa']: e("s_branch L_tagged0")
else:
    e(f"s_mov_b32 s{sRET}, 1")
    e("s_branch L_tagged")
lab("L_np")
e("s_waitcnt vmcnt(0)")
stamp(1)
e("s_mov_b64 exec, 1")
e("ds_write_b8 v14, v15" if opt['bytef'] else "ds_add_u32 v14, v15")
e("s_mov_b64 exec, -1")
if opt['codepf']:
    cm("aux wave 2 pulls this kernel's code towards L2 (reads only)")
    e(f"s_cmp_eq_u32 s{sA}, 2")
    e("s_cbranch_scc0 L_nopf")
    e(f"s_getpc_b64 {sr(sX,2)}")
    lab("L_pc")
    e(f"v_lshlrev_b32 v4, 7, v{vL}")
    e(f"s_sub_u32 s{sX}, s{sX}, L_pc-{NAME}_kernel")
    e(f"s_subb_u32 s{sX+1}, s{sX+1}, 0")
    e(f"v_mov_b32 v5, s{sX+1}")
    e(f"v_add_co_u32 v4, vcc, s{sX}, v4")
    e("s_nop 1")
    e("v_addc_co_u32 v5, vcc, 0, v5, vcc")
    e("CODEPF")
    lab("L_nopf")
if opt['lwarm']:
    cm("aux wave 1 walks once through the attention loop with every lane off (LDS and register traffic only) to warm the instruction cache")
    e(f"s_cmp_eq_u32 s{sA}, 1")
    e("s_cbranch_scc0 L_nolw")
    e(f"s_mov_b32 s{sIT}, 15")
    e(f"s_mov_b32 s{sBARN}, 0")
    e("s_setprio 0")
    e("s_mov_b64 exec, 0")
    e("s_branch L_att_loop")
    lab("L_lwarm_ret")
    e("s_mov_b64 exec, -1")
    e(f"s_setprio {opt['prioX']}")
    lab("L_nolw")
e(f"s_cmp_eq_u32 s{sA}, 3")
e("s_cbranch_scc0 L_tagged0")
cm("aux wave 3 fetches this launch's hand-off tag (bounded spin) and posts it in LDS")
e(f"s_mov_b32 s{sSPIN}, {SPIN}")
lab("L_tag")
e(f"buffer_load_dwordx2 v[14:15], off, {sr(R_DBG,4)}, 0 sc1")
e(f"s_sub_u32 s{sSPIN}, s{sSPIN}, 1")
e(f"s_cmp_eq_u32 s{sSPIN}, 0")
e("s_cbranch_scc1 L_tag_done")
e("s_waitcnt vmcnt(0)")
e("v_cmp_eq_u32 vcc, 0, v14")
e("s_nop 0")
e("s_cmp_eq_u64 vcc, 0")
e("s_cbranch_scc0 L_tag")
lab("L_tag_done")
e("s_waitcnt vmcnt(0)")
e(f"v_mov_b32 v12, {MISC+C_TAG}")
e("ds_write_b64 v12, v[14:15]")
cm("report this workgroup's XCD id (tag | id)")
e(f"s_getreg_b32 s{sT2}, hwreg(HW_REG_XCC_ID, 0, 4)")
e(f"s_lshl_b32 s{sT1}, s2, 7")
e(f"s_add_u32 s{sT1}, s{sT1}, {FL_X}")
e(f"v_or_b32 v14, s{sT2}, v14")
e("s_mov_b64 exec, 1")
e(f"buffer_store_dwordx2 v[14:15], off, {sr(R_WS,4)}, s{sT1} sc1")
e("s_mov_b64 exec, -1")
import re
def ren(m):
    n = int(m.group(1)); return f"v{208+n}" if 3 <= n <= 15 else m.group(0)
def ren2(m):
    a, b = int(m.group(1)), int(m.group(2)); return f"v[{208+a}:{208+b}]" if 3 <= a <= 15 else m.group(0)
for k in range(KV0, len(L)):
    L[k] = re.sub(r"v\[(\d+):(\d+)\]", ren2, re.sub(r"\bv(\d+)\b", ren, L[k]))
e(f"s_mov_b32 s{sRET}, 0") if False else None
lab("L_tagged0")
e(f"s_mov_b32 s{sRET}, 0")
e("s_branch L_addr")
lab("L_tagged")
stamp(2)
tag_from_lds("L_tagx", 8)
cm("the weight region is reused only after the projection wave is done with it")
lds_wait("L_wkv", C_KV, 1, 8, sleep=opt['fs'])
cm("key tiles in rotated order (own XCD's tiles first); wave a covers tiles 8g + 2a, 8g + 2a + 1: flags 32g + 8a + (0..7)")
vCNT = 248
sKG, sKL, sKS, sKP = 97, 85, 88, 96
e(f"v_and_b32 v{ACC+2}, 7, v{vL}")
e(f"v_lshlrev_b32 v{ACC+2}, 7, v{ACC+2}")
e(f"s_lshl_b32 s{sKP}, s{sA}, 10")
e(f"s_add_u32 s{sKP}, s{sKP}, {FL_KV}")
e(f"s_lshl_b32 s{sT1}, s{sXCD}, 12")
e(f"s_add_u32 s{sT1}, s{sT1}, s{sKP}")
e(f"s_lshl_b32 s{sKL}, s{sA}, 12")
e(f"s_lshl_b32 s{sKG}, s{sXCD}, 14")
e("s_barrier                             ; B2")
stamp(16)
poll("L_pollK0", 1, ACC+2, 8, [sT1])
stamp(3)
def kvdma(G):
    e(f"s_add_u32 m0, s{sKL}, {16384*G}")
    e(f"s_add_u32 s{sKS}, s{sKG}, s{sKL}")
    for i in range(4): e(f"buffer_load_dwordx4 v2, {sr(R_WS,4)}, s{sKS} offen offset:{1024*i} sc1 lds")
    if G < 7:
        e(f"s_add_u32 s{sKG}, s{sKG}, 16384")
        e(f"s_and_b32 s{sKG}, s{sKG}, 0x1ffff")
kvdma(0)
if opt['prepoll']:
    cm("one early look at the flags of all other key tiles; its latency overlaps the first tiles' landing")
    e(f"v_lshrrev_b32 v{ACC+4}, 3, v{vL}")
    e(f"v_lshlrev_b32 v{ACC+4}, 12, v{ACC+4}")
    e(f"v_add_u32 v{ACC+4}, v{ACC+4}, v{ACC+2}")
    e(f"buffer_load_dwordx2 {vr(ACC+6,2)}, v{ACC+4}, {sr(R_WS,4)}, s{sKP} offen sc1")
e(f"s_cmp_eq_u32 s{sRET}, 1")
e("s_cbranch_scc0 L_addr_2")
lab("L_addr")
srd(R_SRE, P_SRE, 8388608)
srd(R_SIM, P_SIM, 8388608)
srd(R_XB, P_XB, 2097152)
srd(R_WO, P_WO, 524288)
srd(R_OUT, P_OUT, 4194304)
sT1S, sEB, sTT, sS2, sCB = 98, 99, 100, 101, 79
R_HRE, R_HIM = R_XA, R_W
e(f"s_and_b32 s{sT0}, s{sJ}, 3")
e(f"s_lshl_b32 s{sT1S}, s{sXCD}, 2")
e(f"s_add_u32 s{sT1S}, s{sT1S}, s{sT0}       ; t1s")
e(f"s_lshr_b32 s{sT0}, s{sJ}, 2")
e(f"s_lshl_b32 s{sT0}, s{sT0}, 1")
e(f"s_lshr_b32 s{sEB}, s{sA}, 1")
e(f"s_add_u32 s{sEB}, s{sEB}, s{sT0}         ; eb")
e(f"s_and_b32 s{sTT}, s{sA}, 1               ; tt")
e(f"s_and_b32 s{sT0}, s{sJ}, 3")
e(f"s_lshl_b32 s{sT0}, s{sT0}, 1")
e(f"s_lshl_b32 s{sS2}, s{sXCD}, 3")
e(f"s_add_u32 s{sS2}, s{sS2}, s{sT0}")
e(f"s_add_u32 s{sS2}, s{sS2}, s{sTT}         ; s2 = 8 xcd + 2 (j&3) + (a&1)")
e(f"s_mov_b32 s{sCB}, s{sEB}                 ; cb = 2 (j>>2) + (a>>1)")
srd(R_HRE, P_HRE, 524288)
srd(R_HIM, P_HIM, 524288)
e(f"v_and_b32 v3, 31, v{vL}                ; n")
e(f"v_lshrrev_b32 v4, 5, v{vL}             ; h")
e(f"s_lshl_b32 s{sT0}, s{sTT}, 5")
e(f"v_add_u32 v5, s{sT0}, v3")
e("v_lshlrev_b32 v5, 5, v5")
e(f"v_add_u32 v13, s{sT1S}, v5")
vG0, vG1, vRX, vRW = 240, 242, 244, 246
vDRE, vDIM = 251, 252
vB2A, vB2O, vHA, vWOD, vWOT, vOF, vOUT, vPH, vPK, vF = 4, 3, 15, 14, 0, 5, 6, 7, 12, 13
cm("B1 staging, loader side: wave a fills block a (0,1: x_B rows of s2, s2+1; 2,3: DFT rows of cb, cb+1),")
cm("16 rows x 64 B per load, row r -> rho = 8*bit2 + 4*bit3 + (r&3), 16-B chunk (l&3) ^ ((l>>4)&3)")
e(f"v_bfe_u32 v5, v{vL}, 2, 2")
e(f"v_bfe_u32 v6, v{vL}, 4, 1")
e("v_lshl_add_u32 v5, v6, 3, v5")
e("v_lshl_add_u32 v5, v4, 2, v5            ; rho")
e(f"v_lshrrev_b32 v6, 4, v{vL}")
e(f"v_xor_b32 v6, v6, v{vL}")
e("v_and_b32 v6, 3, v6")
e("v_lshlrev_b32 v6, 4, v6                 ; chunk * 16")
e(f"s_and_b32 s{sT0}, s{sS2}, -2")
e(f"s_add_u32 s{sT0}, s{sT0}, s{sA}")
e(f"s_lshl_b32 s{sT0}, s{sT0}, 10")
e(f"s_and_b32 s{sT1}, s{sCB}, -2")
e(f"s_add_u32 s{sT1}, s{sT1}, s{sTT}")
e(f"s_lshl_b32 s{sT1}, s{sT1}, 14")
e(f"s_add_u32 s{sT2}, s{sT0}, 0x100000")
e(f"s_cmp_lt_u32 s{sA}, 2")
e(f"s_cselect_b32 s{sT3}, 16, 10")
e(f"s_cselect_b32 s{sT0}, s{sT0}, s{sT1}")
e(f"s_cselect_b32 s{sT2}, s{sT2}, s{sT1}")
e(f"s_cselect_b64 {sr(sX,2)}, {sr(P_XB,2)}, {sr(P_HRE,2)}")
e(f"s_cselect_b64 {sr(sST,2)}, {sr(P_XB,2)}, {sr(P_HIM,2)}")
e(f"v_lshlrev_b32 v5, s{sT3}, v5")
e("v_add_u32 v5, v5, v6")
e(f"v_add_u32 v7, s{sT0}, v5")
e(f"v_mov_b32 v{vG0+1}, s{sX+1}")
e(f"v_add_co_u32 v{vG0}, vcc, s{sX}, v7")
e(f"v_add_u32 v7, s{sT2}, v5")
e(f"v_mov_b32 v{vG1+1}, s{sST+1}")
e(f"v_addc_co_u32 v{vG0+1}, vcc, 0, v{vG0+1}, vcc")
e(f"v_add_co_u32 v{vG1}, vcc, s{sST}, v7")
e(f"s_lshl_b32 s{sT1}, s{sT1}, 2")
e(f"s_add_u32 s{sT1}, s{sT1}, s{sA}")
e(f"v_addc_co_u32 v{vG1+1}, vcc, 0, v{vG1+1}, vcc")
e(f"s_cmp_eq_u32 s{sT1}, 2")
e("s_cbranch_scc0 L_nospec0")
cm("cb = 0: the im slot of e = 0 (lanes 0..3 of the second load) carries cos row 256")
e("s_mov_b64 exec, 15")
e("v_add_u32 v7, 0x40000, v6")
e(f"v_mov_b32 v{vG1+1}, s{P_HRE+1}")
e(f"v_add_co_u32 v{vG1}, vcc, s{P_HRE}, v7")
e("s_nop 1")
e(f"v_addc_co_u32 v{vG1+1}, vcc, 0, v{vG1+1}, vcc")
e("s_mov_b64 exec, -1")
lab("L_nospec0")
cm("reader side: row m, chunk (2s+h) ^ ((m>>2)&3)")
e("v_bfe_u32 v5, v3, 2, 2")
e("v_xor_b32 v5, v5, v4")
e("v_lshlrev_b32 v5, 4, v5")
e("v_lshl_add_u32 v5, v3, 6, v5")
e(f"s_lshl_b32 s{sT0}, s{sTT}, 11")
e(f"s_add_u32 s{sT0}, s{sT0}, {STG}")
e(f"v_add_u32 v{vRX}, s{sT0}, v5")
e(f"v_xor_b32 v{vRX+1}, 32, v{vRX}")
e(f"s_lshr_b32 s{sT0}, s{sA}, 1")
e(f"s_lshl_b32 s{sT0}, s{sT0}, 11")
e(f"s_add_u32 s{sT0}, s{sT0}, {STG + 4096}")
e(f"v_add_u32 v{vRW}, s{sT0}, v5")
e(f"v_xor_b32 v{vRW+1}, 32, v{vRW}")
vHW, vHW1, vHR, vHS = 250, 253, BUF, BUF + 1
cm("H regrouping: write row t1, chunk (2h+i) ^ ((t1>>2)&3); read lane-linear; store row l>>2, chunk (l&3) ^ ((l>>4)&3)")
e(f"s_lshl_b32 s{sT0}, s{sA}, 11")
e(f"s_add_u32 s{sT0}, s{sT0}, {STG}")
e("v_bfe_u32 v5, v3, 2, 2")
e("v_lshlrev_b32 v7, 1, v4")
e("v_xor_b32 v5, v5, v7")
e("v_lshlrev_b32 v5, 4, v5")
e("v_lshl_add_u32 v5, v3, 6, v5")
e(f"v_add_u32 v{vHW}, s{sT0}, v5")
e(f"v_xor_b32 v{vHW1}, 16, v{vHW}")
e(f"v_add_u32 v{BUF}, s{sT0}, v2")
e(f"v_lshrrev_b32 v5, 2, v{vL}")
e(f"v_mul_u32_u24 v5, {64*HROW}, v5")
e(f"v_add_u32 v{BUF+1}, v5, v6")
cm("e = 256 store address: t1*64*HROW")
e(f"v_mul_u32_u24 v8, {64*HROW}, v3")
e(f"v_lshl_add_u32 v{vHA}, v4, 5, v8")
cm("wo: DMA source offset and transposing read: row 8h+r, 16-B chunk 4cbk + 2(cc&1) + g, byte 8(cc>>1)")
e(f"v_lshrrev_b32 v8, 3, v{vL}")
e(f"v_and_b32 v9, 7, v{vL}")
e(f"v_bfe_u32 v10, v{vL}, 4, 1")
e("v_lshlrev_b32 v10, 2, v10")
e("v_xor_b32 v9, v9, v10")
e("v_lshlrev_b32 v9, 4, v9")
e(f"v_lshl_add_u32 v{vWOD}, v8, 10, v9")
e(f"v_bfe_u32 v9, v{vL}, 2, 2")
e("v_lshl_add_u32 v9, v4, 3, v9")
e("v_lshlrev_b32 v9, 7, v9")
e(f"v_and_b32 v10, 1, v{vL}")
e(f"v_bfe_u32 v11, v{vL}, 4, 1")
e("v_lshl_add_u32 v10, v10, 1, v11")
e(f"s_lshr_b32 s{sT0}, s{sA}, 1")
e(f"s_lshl_b32 s{sT0}, s{sT0}, 2")
e(f"v_add_u32 v10, s{sT0}, v10")
e(f"v_bfe_u32 v11, v{vL}, 3, 1")
e("v_lshlrev_b32 v11, 2, v11")
e("v_xor_b32 v10, v10, v11")
e("v_lshl_add_u32 v9, v10, 4, v9")
e(f"v_bfe_u32 v11, v{vL}, 1, 1")
e("v_lshl_add_u32 v9, v11, 3, v9")
e(f"v_add_u32 v{vWOT}, {STG}, v9")
cm("output projection: out offset, O fragment address")
e(f"s_lshl_b32 s{sT3}, s{sTB}, 1")
e(f"s_and_b32 s{sT4}, s{sA}, 1")
e(f"s_add_u32 s{sT3}, s{sT3}, s{sT4}")
e(f"s_lshl_b32 s{sT3}, s{sT3}, 5")
e(f"v_add_u32 v8, s{sT3}, v3")
e("v_lshlrev_b32 v8, 11, v8")
e(f"v_lshl_add_u32 v{vOUT}, v4, 5, v8")
e(f"s_lshl_b32 s{sT3}, s{sT4}, 15")
e(f"v_add_u32 v{vOF}, s{sT3}, v2")
e(f"v_lshlrev_b32 v{vPH}, 7, v{vL}")

cm("B2 A rows: e(m) = 32eb + col(m) (eb<8) or 512 - that; col(m) = 16*b2 + 4*(m>>3) + (m&3)")
e("v_and_b32 v8, 3, v3")
e("v_bfe_u32 v9, v3, 2, 1")
e("v_lshl_add_u32 v8, v9, 4, v8")
e("v_lshrrev_b32 v9, 3, v3")
e("v_lshl_add_u32 v8, v9, 2, v8")
e(f"s_lshl_b32 s{sT0}, s{sEB}, 5")
e(f"v_add_u32 v8, s{sT0}, v8")
e("v_sub_u32 v9, 0x200, v8")
e("v_sub_u32 v10, 0x800, v13")
e("v_and_b32 v10, 0x7ff, v10               ; (2048 - ts) & 2047")
e(f"s_cmp_lt_u32 s{sEB}, 8")
e("s_cselect_b64 vcc, 0, -1")
e("v_cndmask_b32 v8, v8, v9, vcc")
e("v_cndmask_b32 v11, v13, v10, vcc")
e("v_lshlrev_b32 v10, 12, v10")
e(f"v_lshl_add_u32 v{vDIM}, v4, 6, v10")
e("v_lshlrev_b32 v10, 12, v13")
e(f"v_lshl_add_u32 v{vDRE}, v4, 6, v10")
e("v_lshlrev_b32 v10, 18, v3")
e(f"v_lshl_add_u32 v{vF}, v4, 4, v10")
e(f"v_lshrrev_b32 v10, 3, v{vL}")
e("v_lshlrev_b32 v10, 5, v10")
e(f"v_and_b32 v9, 7, v{vL}")
e("v_add_u32 v10, v10, v9")
e(f"v_lshlrev_b32 v{vPK}, 7, v10             ; K/V flags 32g + (0..7)")
e("v_lshlrev_b32 v11, 11, v11")
e(f"v_lshl_add_u32 v{vB2O}, v4, 5, v11")
e(f"v_mul_u32_u24 v9, {32*HROW}, v4")
e(f"v_lshl_add_u32 v{vB2A}, v8, 2, v9")
e(f"s_cmp_eq_u32 s{sRET}, 0")
e(f"s_mov_b32 s{sRET}, 2")
e("s_cbranch_scc1 L_tagged")
lab("L_addr_2")
e(f"v_mov_b32 v{vCNT}, {MISC+C_G1}")
vCB = 11 if False else 249
if opt['bytef']: e(f"v_add_u32 v{vCNT+1}, s{sA}, v{vCNT}")
e(f"v_mov_b32 v{vCNT+1}, 1") if not opt['bytef'] else None
e("s_waitcnt vmcnt(0)")
stamp(18)
if opt['prepoll']:
    e(f"v_cmp_ne_u64 vcc, {sr(sNON,2)}, {vr(ACC+6,2)}")
e("s_barrier")
if opt['prepoll']:
    e("s_cmp_eq_u64 vcc, 0")
    e("s_cbranch_scc1 L_kv_all")
poll("L_pollKV", 1, vPK, 8, [sKP], sleep=1)
lab("L_kv_all")
stamp(4)
e("s_setprio 0")
LOW[0] = True
for G in range(1, 3): kvdma(G)
stamp(23)
e("s_waitcnt vmcnt(4)")
stamp(24)
e(f"s_mov_b64 exec, {hex(1 << (1)) if opt['bytef'] else 1}          ; lane {1} stores its lane id")
e(f"ds_write_b8 v{vCNT+1}, v{vL} offset:{0}" if opt['bytef'] else f"ds_add_u32 v{vCNT}, v{vCNT+1} offset:{0}")
e("s_mov_b64 exec, -1")
for G in range(3, 8): kvdma(G)
XF, WF = D1, D1 + 8
cm("pull this workgroup's 1/32 share of what its XCD reads for the spectral part and of wo towards L2")
e(f"s_lshl_b32 s{sT0}, s{sJ}, 13")
e(f"s_cmp_eq_u32 s{sA}, 1")
e("s_cbranch_scc1 L_pf1")
e(f"s_cmp_eq_u32 s{sA}, 2")
e("s_cbranch_scc1 L_pf2")
e(f"s_cmp_eq_u32 s{sA}, 3")
e("s_cbranch_scc1 L_pf3")
e(f"s_lshl_b32 s{sT0}, s{sJ}, 16")
e(f"s_lshl_b32 s{sT1}, s{sXCD}, 13")
e(f"s_add_u32 s{sT0}, s{sT0}, s{sT1}")
e(f"buffer_load_dword v{D2+8}, v{vPH}, {sr(R_XB,4)}, s{sT0} offen")
e("s_branch L_pf4")
lab("L_pf1")
e(f"buffer_load_dword v{D2+8}, v{vPH}, {sr(R_HRE,4)}, s{sT0} offen")
e("s_branch L_pf4")
lab("L_pf2")
e(f"buffer_load_dword v{D2+8}, v{vPH}, {sr(R_HIM,4)}, s{sT0} offen")
e("s_branch L_pf4")
lab("L_pf3")
e(f"s_lshl_b32 s{sT0}, s{sJ}, 14")
e(f"buffer_load_dword v{D2+8}, v{vPH}, {sr(R_WO,4)}, s{sT0} offen")
lab("L_pf4")
sSL, sWOS, sWOB = 30, 31, 96
e(f"s_lshl_b32 s{sSL}, s{sA}, 11")
e(f"s_add_u32 s{sSL}, s{sSL}, {STG}")
e(f"s_lshl_b32 s{sWOS}, s{sHG}, 7")
e(f"s_lshl_b32 s{sT1}, s{sA}, 14")
e(f"s_add_u32 s{sWOB}, s{sWOS}, s{sT1}")
e(f"s_lshr_b32 s{sT1}, s{sA}, 1")
e(f"s_lshl_b32 s{sT1}, s{sT1}, 6")
e(f"s_add_u32 s{sWOS}, s{sWOS}, s{sT1}")
VM = []
def st_dma(n):
    if n >= 24: return
    for i in range(2):
        if n < 16:
            e(f"s_add_u32 m0, s{sSL}, {8192*(n%3) + 1024*i - 64*n}")
            e("s_nop 0")
            e(f"global_load_lds_dwordx4 {vr(vG0 + 2*i, 2)}, off offset:{64*n}" if not opt['abl'] & 2 else "s_nop 0")
        else:
            e(f"s_add_u32 m0, s{sSL}, {8192*(n%3) + 1024*i}")
            e(f"s_add_u32 s{sT1}, s{sWOB}, {65536*(n-16) + 8192*i}")
            e(f"buffer_load_dwordx4 v{vWOD}, {sr(R_WO,4)}, s{sT1} offen lds")
        VM.append(('st', n))
def st_sync(n, between=None):
    last = max(k for k, t in enumerate(VM) if t == ('st', n))
    e(f"s_waitcnt vmcnt({len(VM) - 1 - last}) lgkmcnt(0)")
    e(f"s_mov_b64 exec, {hex(1 << (n + 1)) if opt['bytef'] else 1}          ; lane {n + 1} stores its lane id")
    e(f"ds_write_b8 v{vCNT+1}, v{vL} offset:{C_ST - C_G1}" if opt['bytef'] else f"ds_add_u32 v{vCNT}, v{vCNT+1} offset:{C_ST - C_G1}")
    e("s_mov_b64 exec, -1")
    if between: between()
    e(f"s_mov_b32 s{sSPIN}, {SPIN*8}")
    lab(f"L_st{n}")
    e(f"ds_read_b32 v8, v{vCNT} offset:{C_ST - C_G1}")
    e(f"s_sub_u32 s{sSPIN}, s{sSPIN}, 1")
    e(f"s_cbranch_scc1 L_st{n}_done")
    e("s_waitcnt lgkmcnt(0)")
    if (opt['sp'] if n < 16 else opt['spw']): e("s_setprio 2")
    e(f"v_readfirstlane_b32 s{sT4}, v8")
    e("s_setprio 0")
    if opt['bytef']:
        e(f"s_or_b32 s{sT4}, s{sT4}, 0x80808080")
        e(f"s_sub_u32 s{sT4}, s{sT4}, {hex(0x01010101*(n+1))}")
        e(f"s_and_b32 s{sT4}, s{sT4}, 0x80808080")
        e(f"s_cmp_eq_u32 s{sT4}, 0x80808080")
    else: e(f"s_cmp_ge_u32 s{sT4}, {4*(n+1 - (16 if opt['nob'] else 0))}")
    if opt['ss']:
        e(f"s_cbranch_scc1 L_st{n}_done")
        e(f"s_sleep {opt['ss']}")
        e(f"s_branch L_st{n}")
    else: e(f"s_cbranch_scc0 L_st{n}")
    lab(f"L_st{n}_done")
if not opt['nob']: st_dma(0); st_dma(1)
stamp(17)
e("s_waitcnt vmcnt(5)                    ; younger: one pull, two stages" if not opt['nob'] else "s_waitcnt vmcnt(0)")
e(f"s_mov_b64 exec, {hex(1 << (1)) if opt['bytef'] else 1}          ; lane {1} stores its lane id")
e(f"ds_write_b8 v{vCNT+1}, v{vL} offset:{4}" if opt['bytef'] else f"ds_add_u32 v{vCNT}, v{vCNT+1} offset:{4}")
e("s_mov_b64 exec, -1")
e(f"s_cmp_eq_u32 s{sA}, 3")
e("s_cbranch_scc0 L_pf5")
e(f"s_add_u32 s{sT0}, s{sT0}, 8192")
e(f"buffer_load_dword v{D2+9}, v{vPH}, {sr(R_WO,4)}, s{sT0} offen     ; not counted below: only makes waits stricter")
lab("L_pf5")
stamp(21)
RAW = BP
def b1mfma(n):
    for s_ in range(2 if not opt['nomf'] else 0):
        e(f"v_mfma_f32_32x32x16_bf16 {vr(ACC,16)}, {vr(XF+4*s_,4)}, {vr(WF+4*s_,4)}, {'0' if n==0 and s_==0 else vr(ACC,16)}")
if opt['nob']:
    e("s_branch L_nob1")
NOB0 = len(L)
for n in range(16 if not opt['nob'] else 0):
    st_sync(n, (lambda: b1mfma(n - 1)) if n else None)
    if n + 2 < 16: st_dma(n + 2)
    for s_ in range(2 if not opt['abl'] & 1 else 0):
        e(f"ds_read_b128 {vr(XF+4*s_,4)}, v{vRX+s_} offset:{8192*(n%3)}")
        e(f"ds_read_b128 {vr(WF+4*s_,4)}, v{vRW+s_} offset:{8192*(n%3)}")
    if n == opt['fst']:
        for kb in range(2): e(f"buffer_load_dwordx4 {vr(FR+4*kb,4)}, v{vF}, {sr(R_SRE,4)}, 0 offen offset:{32*kb}")
        for kb in range(2): e(f"buffer_load_dwordx4 {vr(FR+8+4*kb,4)}, v{vF}, {sr(R_SIM,4)}, 0 offen offset:{32*kb}")
        VM += [('F', 0)]*4
e("s_waitcnt lgkmcnt(0)")
b1mfma(15)
stamp(22)
e(f"s_mul_i32 s{sT0}, s{sS2}, {HROW}")
e(f"s_lshl_b32 s{sT1}, s{sCB}, 6")
e(f"s_add_u32 s{sT0}, s{sT0}, s{sT1}")
e(f"s_add_u32 s{sT0}, s{sT0}, {WS_H}")
nop(7)
vZ = D2 + 8 if False else BP
def boost(on):
    e(f"s_setprio {2 if on else 0}"); LOW[0] = not on
boost(opt['eb'] & 1)
for i in range(8): e(f"v_cvt_pk_bf16_f32 v{vZ+i}, v{ACC+2*i}, v{ACC+2*i+1}")
boost(0)
nop(1)
e(f"v_mfma_f32_32x32x16_bf16 {vr(D1,16)}, {vr(vZ,4)}, {vr(FR,4)}, 0")
e(f"v_mfma_f32_32x32x16_bf16 {vr(D2,16)}, {vr(vZ,4)}, {vr(FR+8,4)}, 0")
e(f"v_mfma_f32_32x32x16_bf16 {vr(D1,16)}, {vr(vZ+4,4)}, {vr(FR+4,4)}, {vr(D1,16)}")
e(f"v_mfma_f32_32x32x16_bf16 {vr(D2,16)}, {vr(vZ+4,4)}, {vr(FR+12,4)}, {vr(D2,16)}")
nop(11)
boost(1)
for r in range(8):
    e(f"v_sub_f32 v{ACC+r}, v{D1+r}, v{D2+8+r}")
    e(f"v_add_f32 v{ACC+8+r}, v{D2+r}, v{D1+8+r}")
e(f"s_cmp_eq_u32 s{sCB}, 0")
e("s_cbranch_scc0 L_nospecial")
cm("columns e = 0 and e = 256 (both purely real rows): lanes 0..31, register 0")
e("s_mov_b32 exec_hi, 0")
e(f"v_mov_b32 v{ACC}, v{D1}")
e(f"v_mov_b32 v{ACC+8}, v{D2}")
e(f"v_cvt_pk_bf16_f32 v8, v{D1+8}, v{D2+8}")
e(f"buffer_store_dword v8, v{vHA}, {sr(R_WS,4)}, s{sT0} offen offset:1024 sc1")
e("s_mov_b64 exec, -1")
lab("L_nospecial")
for r in range(8): e(f"v_cvt_pk_bf16_f32 v{D1+r}, v{ACC+r}, v{ACC+8+r}")
boost(0)
cm("lane (t1, h) holds 32 B of row t1: regroup through LDS so that 4 adjacent lanes store one 64-B run")
e(f"ds_write_b128 v{vHW}, {vr(D1,4)} offset:8192")
e(f"ds_write_b128 v{vHW1}, {vr(D1+4,4)} offset:8192")
e("s_waitcnt lgkmcnt(0)")
e(f"ds_read_b128 {vr(D1+8,4)}, v{vHR} offset:8192")
e(f"ds_read_b128 {vr(D1+12,4)}, v{vHR} offset:9216")
e(f"s_add_u32 s{sT1}, s{sT0}, {16*64*HROW}")
e("s_waitcnt lgkmcnt(0)")
e(f"buffer_store_dwordx4 {vr(D1+8,4)}, v{vHS}, {sr(R_WS,4)}, s{sT0} offen sc1")
e(f"buffer_store_dwordx4 {vr(D1+12,4)}, v{vHS}, {sr(R_WS,4)}, s{sT1} offen sc1")
if opt['nob']: lab("L_nob1")
if not opt['nowo']: st_dma(16); st_dma(17)
if opt['nob']: e("s_branch L_nob2")
def rawloads():
    global VM
    cm("rows of the sequence DFT matrices for B2")
    for i in range(4): e(f"buffer_load_dwordx4 {vr(RAW+4*i,4)}, v{vDRE}, {sr(R_SRE,4)}, 0 offen offset:{16*i}")
    for i in range(4): e(f"buffer_load_dwordx4 {vr(RAW+16+4*i,4)}, v{vDIM}, {sr(R_SIM,4)}, 0 offen offset:{16*i}")
    VM += [('raw', 0)]*8
if not opt['rawlate']: rawloads()
e(f"s_lshl_b32 s{sT1}, s2, 7")
e(f"s_add_u32 s{sT1}, s{sT1}, {FL_H}")
stamp(19)
e(f"s_waitcnt vmcnt({4 if opt['rawlate'] else 12})")
stamp(20)
boost(1)
signal("L_sigH", C_H, 3, sT1, 8)
stamp(5)
def bploc(o): return FR + o if o < 16 else (RAW + o - 16 if o < 24 else RAW + 16 + o - 24)
def perms():
    e(f"s_mov_b32 s{sT2}, 0x05040100")
    e(f"s_mov_b32 s{sT3}, 0x07060302")
    for i in range(16):
        e(f"v_perm_b32 v{bploc(2*i)}, v{RAW+16+i}, v{RAW+i}, s{sT2}")
        e(f"v_perm_b32 v{bploc(2*i+1)}, v{RAW+16+i}, v{RAW+i}, s{sT3}")
if not opt['b2tail']: perms()
boost(0)
if opt['rawlate'] and not opt['abl'] & 4: rawloads()
if opt['nob']: lab("L_nob2")
def wo_stage(n):
    if opt['nowo']: return
    st_sync(n)
    st_dma(n + 2)
    for k in range(4):
        ks = 4*(n - 16) + k
        e(f"ds_read_b64_tr_b16 {vr(BUF+4*ks,2)}, v{vWOT} offset:{8192*(n%3) + 2048*k}")
        e(f"ds_read_b64_tr_b16 {vr(BUF+4*ks+2,2)}, v{vWOT} offset:{8192*(n%3) + 2048*k + 512}")
for n in range(16, 16 + opt['wsplit']): wo_stage(n)
stamp(6)
boost(1)
if opt['pre']:
    cm("aux wave 2 touches the O lines this workgroup will write and the 8 flags of its token block")
    e(f"s_cmp_eq_u32 s{sA}, 2")
    e("s_cbranch_scc0 L_nopre")
    e(f"v_lshrrev_b32 v8, 5, v{vL}")
    e(f"v_and_b32 v9, 31, v{vL}")
    e("v_lshlrev_b32 v9, 7, v9")
    e("v_lshl_add_u32 v8, v8, 15, v9")
    e(f"s_lshl_b32 s{sT0}, s{sTB}, 16")
    e(f"s_lshl_b32 s{sT1}, s{sHG}, 12")
    e(f"s_add_u32 s{sT0}, s{sT0}, s{sT1}")
    e(f"s_add_u32 s{sT0}, s{sT0}, {WS_O}")
    e(f"buffer_load_dword v10, v8, {sr(R_WS,4)}, s{sT0} offen sc1")
    e(f"v_and_b32 v9, 0xf80, v{vPH}")
    e(f"s_lshl_b32 s{sT0}, s{sTB}, 12")
    e(f"s_add_u32 s{sT0}, s{sT0}, {FL_O}")
    e(f"buffer_load_dword v11, v9, {sr(R_WS,4)}, s{sT0} offen sc1")
    e("s_waitcnt vmcnt(0)")
    lab("L_nopre")
cm("aux wave 1: XCD ids of the 8 workgroups of this token block: ids 32*hg + (id & 31)")
e(f"s_cmp_eq_u32 s{sA}, 1")
e("s_cbranch_scc0 L_nosame")
e(f"v_and_b32 v8, 7, v{vL}")
e("v_lshlrev_b32 v8, 12, v8")
e(f"s_and_b32 s{sT0}, s2, 31")
e(f"s_lshl_b32 s{sT0}, s{sT0}, 7")
e(f"s_add_u32 s{sT0}, s{sT0}, {FL_X}")
e(f"buffer_load_dwordx2 v[10:11], v8, {sr(R_WS,4)}, s{sT0} offen sc1")
e(f"s_getreg_b32 s{sX}, hwreg(HW_REG_XCC_ID, 0, 4)")
e(f"s_or_b32 s{sX}, s{sX}, s{sNON}")
e(f"s_mov_b32 s{sX+1}, s{sNON+1}")
e(f"v_mov_b32 v9, {MISC+C_SAME}")
e("s_waitcnt vmcnt(0)")
e(f"v_cmp_ne_u64 vcc, {sr(sX,2)}, v[10:11]")
e("s_nop 0")
e("s_cmp_eq_u64 vcc, 0")
e(f"s_cselect_b32 s{sT0}, {1 if opt['fast'] else 0}, 0")
e(f"v_mov_b32 v11, s{sT0}")
e("ds_write_b32 v9, v11")
lab("L_nosame")
if opt['nob'] or opt['abl'] & 4: e("s_branch L_b2done")
cm("B2: wait for the H rows it reads: column groups ebg (direct) or 7-ebg and (8-ebg)&3 (mirrored)")
e(f"s_cmp_eq_u32 s{sA}, 0")
e("s_cbranch_scc0 L_hwait")
e(f"s_lshr_b32 s{sT2}, s{sJ}, 2              ; ebg")
e(f"s_sub_u32 s{sT0}, 7, s{sT2}")
e(f"s_sub_u32 s{sT1}, 8, s{sT2}")
e(f"s_and_b32 s{sT1}, s{sT1}, 3")
e(f"s_cmp_lt_u32 s{sT2}, 4")
e(f"s_cselect_b32 s{sT0}, s{sT2}, s{sT0}")
e(f"s_cselect_b32 s{sT1}, s{sT2}, s{sT1}")
e(f"s_lshl_b32 s{sT0}, s{sT0}, 13")
e(f"s_lshl_b32 s{sT1}, s{sT1}, 13")
e(f"s_add_u32 s{sT0}, s{sT0}, {FL_H}")
e(f"s_add_u32 s{sT1}, s{sT1}, {FL_H}")
poll("L_pollH", 2, vPH, 8, [sT0, sT1], sleep=8)
e(f"v_mov_b32 v10, {MISC+C_HOK}")
e("v_mov_b32 v11, 1")
e("ds_write_b32 v10, v11")
e("s_branch L_hok")
lab("L_hwait")
lds_wait("L_hw", C_HOK, 1, 10, sleep=8)
lab("L_hok")
boost(0)
stamp(7)
e(f"s_mul_i32 s{sT0}, s{sT1S}, {64*HROW}")
e(f"s_add_u32 s{sT0}, s{sT0}, {WS_H}")
AF = 208
for kb in range(8):
    for w in range(4): e(f"buffer_load_dword v{AF+4*kb+w}, v{vB2A}, {sr(R_WS,4)}, s{sT0} offen offset:{w*HROW} sc1")
    if kb < 7: e(f"s_add_u32 s{sT0}, s{sT0}, {4*HROW}")
VM += [('A', 0)]*32
sB2 = 88
def b2compute(low):
    e(f"s_lshl_b32 s{sB2}, s{sEB}, 6")
    e(f"s_add_u32 s{sB2}, s{sB2}, 1024")
    for kb in range(8):
        if low: e(f"s_waitcnt vmcnt({28-4*kb})")
        e(f"v_mfma_f32_32x32x16_bf16 {vr(ACC,16)}, {vr(AF+4*kb,4)}, {vr(bploc(4*kb),4)}, {'0' if kb==0 else vr(ACC,16)}")
    nop(11 if low else 12)
    if low: boost(1)
    for i in range(8): e(f"v_cvt_pk_bf16_f32 v{AF+8+i}, v{ACC+2*i}, v{ACC+2*i+1}")
    if low: b2store()
vRG, vS0, vS1, vO0 = 240, 241, 242, 243
def regroup(src, dst):
    e(f"ds_write_b128 v{vHW}, {vr(src,4)} offset:8192")
    e(f"ds_write_b128 v{vHW1}, {vr(src+4,4)} offset:8192")
    e("s_waitcnt lgkmcnt(0)")
    e(f"ds_read_b128 {vr(dst,4)}, v{vRG} offset:8192")
    e(f"ds_read_b128 {vr(dst+4,4)}, v{vRG} offset:9216")
def rg_addr():
    e(f"v_add_u32 v{vRG}, s{sSL}, v2")
    e(f"v_lshrrev_b32 v8, 4, v{vL}")
    e(f"v_xor_b32 v8, v8, v{vL}")
    e("v_and_b32 v8, 3, v8")
    e("v_lshlrev_b32 v8, 4, v8                 ; chunk * 16")
    e(f"v_lshrrev_b32 v9, 2, v{vL}              ; r")
    e(f"s_lshl_b32 s{sT3}, s{sTB}, 1")
    e(f"s_add_u32 s{sT3}, s{sT3}, s{sTT}")
    e(f"s_lshl_b32 s{sT3}, s{sT3}, 5")
    e(f"v_add_u32 v10, s{sT3}, v9")
    e("v_lshlrev_b32 v10, 11, v10")
    e(f"v_add_u32 v{vO0}, v10, v8")
    e(f"s_lshl_b32 s{sT3}, s{sTT}, 10")
    e(f"s_add_u32 s{sT3}, s{sT3}, s{sT1S}")
    e(f"v_lshl_add_u32 v9, v9, 5, s{sT3}         ; ts")
    e("v_add_u32 v10, 0x200, v9")
    e("v_sub_u32 v11, 0x800, v9")
    e("v_and_b32 v11, 0x7ff, v11")
    e(f"v_sub_u32 v{vS1}, 0x800, v10")
    e(f"s_cmp_lt_u32 s{sEB}, 8")
    e("s_cselect_b64 vcc, 0, -1")
    e("v_cndmask_b32 v9, v9, v11, vcc")
    e(f"v_cndmask_b32 v10, v10, v{vS1}, vcc")
    e(f"v_lshl_add_u32 v{vS0}, v9, 11, v8")
    e(f"v_lshl_add_u32 v{vS1}, v10, 11, v8")
def b2store():
    if opt['rg'] & 1:
        e(f"buffer_store_dwordx4 {vr(AF+16,4)}, v{vS0}, {sr(R_OUT,4)}, s{sB2} offen{OSC}")
        e(f"buffer_store_dwordx4 {vr(AF+20,4)}, v{vS1}, {sr(R_OUT,4)}, s{sB2} offen{OSC}")
        return
    e(f"buffer_store_dwordx4 {vr(AF+8,4)}, v{vB2O}, {sr(R_OUT,4)}, s{sB2} offen{OSC}")
    e(f"buffer_store_dwordx4 {vr(AF+12,4)}, v{vB2O}, {sr(R_OUT,4)}, s{sB2} offen offset:16{OSC}")
if not opt['b2tail']: b2compute(True)
lab("L_b2done")
boost(0)
stamp(8)
for n in range(16 + opt['wsplit'], 24): wo_stage(n)
e("s_waitcnt vmcnt(0) lgkmcnt(0)")
if opt['b2s']:
    boost(1)
    perms()
    rg_addr()
    boost(0)
    e(f"s_lshl_b32 s{sB2}, s{sEB}, 6")
    e(f"s_add_u32 s{sB2}, s{sB2}, 1024")
    for kb in range(8):
        e(f"v_mfma_f32_32x32x16_bf16 {vr(ACC,16)}, {vr(AF+4*kb,4)}, {vr(bploc(4*kb),4)}, {'0' if kb==0 else vr(ACC,16)}")
    nop(11)
    boost(1)
    for i in range(8): e(f"v_cvt_pk_bf16_f32 v{AF+8+i}, v{ACC+2*i}, v{ACC+2*i+1}")
    boost(0)
    regroup(AF+8, AF+16)
    e("s_waitcnt lgkmcnt(0)")
    sc = " sc1" if opt['b2s'] == 1 else ""
    e(f"buffer_store_dwordx4 {vr(AF+16,4)}, v{vS0}, {sr(R_OUT,4)}, s{sB2} offen{sc}")
    e(f"buffer_store_dwordx4 {vr(AF+20,4)}, v{vS1}, {sr(R_OUT,4)}, s{sB2} offen{sc}")
stamp(10)
warm("L_padt", "L_pado_ret")
cm("tail: the attention waves bring the O tile -> LDS 0..")
e("s_barrier                             ; B7")
LOW[0] = False
stamp(9)
if opt['b2tail'] and not opt['nob'] and not opt['abl'] & 20 and not opt['b2s']:
    cm("second spectral stage: operands are in registers, the matrix pipe is free until the O tile lands")
    perms()
    if opt['rg']: rg_addr()
    b2compute(False)
    if opt['rg'] & 1:
        regroup(AF+8, AF+16)
        e("s_waitcnt lgkmcnt(0)")
e(f"s_mov_b32 s{sT0}, s{sWOS}")
stamp(11)
e("s_barrier                             ; B8a")
pad_begin("L_pado")
OF = 144
korder = [h for st in range(4) for h in range(32) if (h % 8) // 2 == st]
PD = opt['opd']
def ofrag(n): e(f"ds_read_b128 {vr(OF+4*(n%8),4)}, v{vOF} offset:{1024*korder[n]}")
for n in range(PD): ofrag(n)
if opt['b2at'] == 0 and opt['b2tail'] and not opt['nob'] and not opt['abl'] & 28 and not opt['b2s']: b2store()
for n in range(32):
    if n + PD in (8, 16, 24):
        e(f"s_barrier                             ; B8.{(n+PD)//8}")
        if n + PD == opt['b2at'] and opt['b2tail'] and not opt['nob'] and not opt['abl'] & 28 and not opt['b2s']: b2store()
    if n + PD < 32:
        ofrag(n + PD)
        e(f"s_waitcnt lgkmcnt({PD})")
    else:
        e(f"s_waitcnt lgkmcnt({31-n})")
    e(f"v_mfma_f32_32x32x16_bf16 {vr(ACC,16)}, {vr(BUF+4*korder[n],4)}, {vr(OF+4*(n%8),4)}, {'0' if n==0 else vr(ACC,16)}")
nop(12)
for i in range(8): e(f"v_cvt_pk_bf16_f32 v{D1+i}, v{ACC+2*i}, v{ACC+2*i+1}")
if opt['rg'] & 2:
    regroup(D1, D1+8)
    e(f"s_add_u32 s{sT1}, s{sT0}, {16*2048}")
    e("s_waitcnt lgkmcnt(1)")
    e(f"buffer_store_dwordx4 {vr(D1+8,4)}, v{vO0}, {sr(R_OUT,4)}, s{sT0} offen{OSC}")
    e("s_waitcnt lgkmcnt(0)")
    e(f"buffer_store_dwordx4 {vr(D1+12,4)}, v{vO0}, {sr(R_OUT,4)}, s{sT1} offen{OSC}")
else:
    e(f"buffer_store_dwordx4 {vr(D1,4)}, v{vOUT}, {sr(R_OUT,4)}, s{sT0} offen{OSC}")
    e(f"buffer_store_dwordx4 {vr(D1+4,4)}, v{vOUT}, {sr(R_OUT,4)}, s{sT0} offen offset:16{OSC}")
pad_end("L_pado", "L_pado_ret")
if opt['dbgt']:
    e(f"s_cmp_lt_u32 s2, 6")
    e("s_cbranch_scc0 L_end")
    e(f"s_cmp_eq_u32 s{sW}, 4")
    e("s_cbranch_scc0 L_end")
    e("s_waitcnt vmcnt(0)")
    e(f"s_memrealtime {sr(sST,2)}")
    e("s_waitcnt lgkmcnt(0)")
    e(f"v_mov_b32 v4, s{sST}")
    e(f"s_lshl_b32 s{sT0}, s2, 2")
    e(f"s_add_u32 s{sT0}, s{sT0}, 40")
    e("s_mov_b64 exec, 1")
    e(f"buffer_store_dword v4, off, {sr(R_DBG,4)}, s{sT0}")
if opt['endat']:
    lab("L_endat")
    e(f"s_memrealtime {sr(sX,2)}")
    e("s_waitcnt lgkmcnt(0)")
    e(f"s_sub_u32 s{sX}, s{sX}, s3")
    e(f"s_cmp_lt_u32 s{sX}, {opt['endat']}")
    e("s_cbranch_scc1 L_endat")
stamp(12)
if opt['stamps']: e("s_waitcnt vmcnt(0)")
stamp(13)
stamp_dump()
lab("L_end")
e("s_endpgm")
lab("L_codeend")
L.append(f""".section .rodata,"a"
.p2align 6
.amdhsa_kernel {NAME}_kernel
  .amdhsa_next_free_vgpr 256
  .amdhsa_next_free_sgpr 102
  .amdhsa_accum_offset 256
  .amdhsa_group_segment_fixed_size 0
  .amdhsa_kernarg_size 104
  .amdhsa_user_sgpr_count 2
  .amdhsa_user_sgpr_kernarg_segment_ptr 1
  .amdhsa_system_sgpr_workgroup_id_x 1
.end_amdhsa_kernel""")

def finish(lines, ncode):
    out = []
    for l in lines:
        if l.strip() == "CODEPF":
            for i in range(ncode // 8192):
                out.append(f"    global_load_dword v200, v[212:213], off")
                out.append(f"    v_add_co_u32 v212, vcc, 0x2000, v212")
                out.append(f"    s_nop 1")
                out.append(f"    v_addc_co_u32 v213, vcc, 0, v213, vcc")
            rem = (ncode % 8192) // 128
            if rem:
                out.append(f"    v_cmp_gt_u32 vcc, {rem}, v{vL}")
                out.append(f"    s_nop 0")
                out.append(f"    s_and_saveexec_b64 {sr(sX,2)}, vcc")
                out.append(f"    global_load_dword v200, v[212:213], off")
                out.append(f"    s_mov_b64 exec, -1")
        else: out.append(l)
    return "\n".join(out) + "\n"
import subprocess, os, hazcheck
ncode = 16384
for _ in range(3):
    txt = finish(L, ncode)
    open("_g.s", "w").write(txt)
    r = subprocess.run(["clang", "-x", "assembler", "-target", "amdgcn-amd-amdhsa", "-mcpu=gfx950", "-c", "_g.s", "-o", "_g.o"], capture_output=True, text=True)
    if r.returncode: print(r.stderr[:3000]); sys.exit(1)
    sz = subprocess.run(["llvm-objdump", "-h", "_g.o"], capture_output=True, text=True).stdout
    n = [int(x.split()[2], 16) for x in sz.splitlines() if " .text " in x][0]
    if n // 128 * 128 == ncode: break
    ncode = n // 128 * 128
open(sys.argv[1], "w").write(txt)
print(hazcheck.check(txt), "hazards; code bytes", n)
```

```python
import sys, struct
NAME = "concat_heads__grouped_kv_mqa__spectral_fnet__prompt"
opt = dict(stamps=0, prioA=1, prioX=2, boost=1, force_fb=0, dbgt=0, dry=0, codepf=0, shift=102, outsc1=0, cluster=1, fast=1, nob=0, l2pf=0, wo1=4, hold=1, pre=1, pads=0, dxcc=-1, dus=300, endat=0, omode=1, b2tail=1, kvd=3, h1=1, h2=4, fs=3, ntc=9, nowo=0, nodsw=0, nomf=0, sp=1, ss=1, wsplit=8, attpf=0, rawlate=1, dftpf=1, fst=6, spw=0, eb=1, qloop=0, padt=0, opd=4, b2at=8, abl=0, preo=0, rg=0, prepoll=0, lwarm=0, csync=0, bytef=0, first=1, b2s=0, mt=1, win=8, win2=8, pa=0, baat=0, stall=0, resc=2, vmask=0, r2=0, pp=0)
for a in sys.argv[2:]:
    k, v = a.split('='); opt[k] = int(v)

L = []
DOC = '''; ---------------------------------------------------------------------------------------------------------------
; One persistent launch, 256 workgroups (one per CU) x 8 waves.  Workgroup id -> xcd = id & 7 (locality hint only),
;       S^T = K Q^T + C by MFMA (C = -(stand-in max + shift), scale folded into Q), v_exp_f32 in place, and
;       P V by the 2:4 sparse MFMA whose index picks the upper halves of the fp32 registers (bf16 by truncation);
;       a row of constants in the V operand yields the row sum.  After 14 key tiles the reference is raised by a
;   waves 4..7 ("aux"): K or V projection of 16 tokens, K/V streaming into LDS, the spectral part
; Hand-offs between workgroups go through d_ws: data stores, s_waitcnt, then a flag (one 128-B line each) holding
; flags from stale ones.  Stores are write-through (sc1) unless all workgroups of the hand-off reported the same XCD;
; ---------------------------------------------------------------------------------------------------------------'''
def e(s=""): L.append("    " + s)
def lab(s): L.append(s + ":")
def cm(s): L.append("    ; " + s)
def vr(a, n): return f"v[{a}:{a+n-1}]" if n > 1 else f"v{a}"
def sr(a, n): return f"s[{a}:{a+n-1}]" if n > 1 else f"s{a}"
def nop(n):
    while n > 0:
        k = min(n, 16); e(f"s_nop {k-1}"); n -= k
def f2u(x): return struct.unpack('<I', struct.pack('<f', x))[0]
OSC = " sc1" if opt['outsc1'] else ""

W_OFF = 0
X_OFF, XROW = 16384, 1040
WQ_OFF = 82944
ONES_OFF = 155648
MISC = ONES_OFF + 1024
STG = 131072
LDS_BYTES = 163840
C_KV, C_H, C_O, C_TAG, C_HOK, C_SAME, C_CR, C_QA, C_QB, C_G1, C_KVL, C_ST = 0, 4, 8, 16, 24, 28, 32, 36, 40, 44, 48, 52
WS_KV, WS_O, WS_H, WS_FL = 0, 0x40000, 0x240000, 0x480000
FL_KV, FL_H, FL_X, FL_O = WS_FL, WS_FL + 0x8000, WS_FL + 0x10000, WS_FL + 0x20000
WS_STAMP = 0x4C0000
WS_SIZE = 0x560000
HROW = 1152
FOUR = 0x01010101 if opt['bytef'] else 4
SPIN = 400000
VSCALE = 64
P_XA, P_WQ, P_WK, P_WV, P_WO, P_XB, P_SRE, P_SIM = 4, 6, 8, 10, 12, 14, 16, 18
P_HRE, P_HIM, P_OUT, P_DBG, P_WS = 20, 22, 24, 26, 28
R_XA, R_WQ, R_W, R_WS, R_WO, R_XB, R_SRE, R_SIM, R_OUT, R_DBG = 32, 36, 40, 44, 48, 52, 56, 60, 64, 68
sW, sXCD, sJ, sTB, sHG, sTHP, sA = 72, 73, 74, 75, 76, 77, 78
sT0, sT1, sT2, sT3, sT4 = 80, 81, 82, 83, 84
sDRY = 85
sNON = 86
sIT, sINC, sFB, sSPIN = 88, 89, 90, 91
sX = 92
sST = 94
sBARN = 96
sRET = 90

def srd(r, p, size):
    e(f"s_mov_b32 s{r}, s{p}")
    e(f"s_and_b32 s{r+1}, s{p+1}, 0xffff")
    e(f"s_mov_b32 s{r+2}, {hex(size)}")
    e(f"s_mov_b32 s{r+3}, 0x20000")

LOW = [False]
vL = 1
def stamp(idx):
    if not opt['stamps']: return
    e(f"s_memrealtime {sr(sST,2)}")
    e(f"s_memtime {sr(sX,2)}")
    e("s_waitcnt lgkmcnt(0)")
    if LOW[0]: e("s_setprio 2")
    e(f"v_writelane_b32 v254, s{sST}, {idx}")
    e(f"v_writelane_b32 v255, s{sX}, {idx}")
    if LOW[0]: e("s_setprio 0")
def stamp_dump():
    if not opt['stamps']: return
    e(f"s_lshl_b32 s{sST}, s2, 3")
    e(f"s_add_u32 s{sST}, s{sST}, s{sW}")
    e(f"s_lshl_b32 s{sST}, s{sST}, 8")
    e(f"s_add_u32 s{sST}, s{sST}, {WS_STAMP}")
    e(f"v_lshlrev_b32 v253, 3, v{vL}")
    e("s_mov_b32 exec_hi, 0")
    e(f"buffer_store_dwordx2 v[254:255], v253, {sr(R_WS,4)}, s{sST} offen")

PADS = {}
def pad_begin(name): PADS[name] = len(L)
def isize(l):
    t = l.strip()
    if not t or t.startswith((';', '.')) or t.endswith(':'): return 0
    t = t.split(';')[0]
    mn = t.split()[0]
    if mn.startswith(('buffer_', 'global_', 'ds_', 'v_mfma', 'v_smfmac', 's_load', 's_mem')): return 8
    if mn.startswith('v_') and (mn.endswith('_e64') or mn in ('v_lshl_add_u32', 'v_bfe_u32', 'v_perm_b32', 'v_max3_f32', 'v_cvt_pk_bf16_f32', 'v_writelane_b32', 'v_mul_u32_u24', 'v_cmp_ne_u64')): return 8
    import re as _r
    for o in _r.findall(r'(?<![\w\[:])(-?0x[0-9a-f]+|-?\d+)(?![\w\]:])', (t.split(None, 1) + [''])[1]):
        v = int(o, 0)
        if not mn.startswith(('s_waitcnt', 's_nop', 's_sleep', 's_setprio')) and not -16 <= v <= 64: return 8
    return 4
def pad_end(name, ret):
    a = PADS[name]
    if not (opt['pads'] if name == "L_padq" else opt['padt']):
        return
    body = L[a:]; del L[a:]
    n = 0; acc = 0
    L.append(f"{name}_0:"); L.append(f"    s_cbranch_execz {name}_1")
    for l in body:
        z = isize(l)
        prev = L[-1].strip()
        if acc + z > 56 and not prev.startswith(('s_mov_b32 m0', 's_add_u32 m0')):
            n += 1; L.append(f"{name}_{n}:"); L.append(f"    s_cbranch_execz {name}_{n+1}"); acc = 0
        L.append(l); acc += z
    n += 1
    L.append(f"{name}_{n}:"); L.append(f"    s_cbranch_execz {ret}")
def warm(name, ret):
    if not (opt['pads'] if name == "L_padq" else opt['padt']): return
    e("s_mov_b64 exec, 0")
    e(f"s_branch {name}_0")
    lab(ret)
    e("s_mov_b64 exec, -1")

def dma(voff, srdr, soff, ldsaddr_s, extra=""):
    e(f"s_mov_b32 m0, s{ldsaddr_s}")
    e("s_nop 0")
    e(f"buffer_load_dwordx4 v{voff}, {sr(srdr,4)}, s{soff} offen {extra}lds")
def dma_run(n, voff, srdr, soff, lds_s, dsrc, dlds, extra=""):
    for i in range(n):
        e(f"s_mov_b32 m0, s{lds_s}")
        if i < n - 1: e(f"s_add_u32 s{lds_s}, s{lds_s}, {dlds}")
        else: e("s_nop 0")
        e(f"buffer_load_dwordx4 v{voff}, {sr(srdr,4)}, s{soff} offen {extra}lds")
        if i < n - 1: e(f"s_add_u32 s{soff}, s{soff}, {dsrc}")

def poll(name, nloads, voff, dst, soffs, sleep=0):
    e(f"s_mov_b32 s{sSPIN}, {SPIN}")
    lab(name)
    for i in range(nloads):
        e(f"buffer_load_dwordx2 {vr(dst+2*i,2)}, v{voff}, {sr(R_WS,4)}, s{soffs[i]} offen sc1")
    e(f"s_sub_u32 s{sSPIN}, s{sSPIN}, 1")
    e(f"s_cmp_eq_u32 s{sSPIN}, 0")
    e(f"s_cbranch_scc1 {name}_done")
    e("s_waitcnt vmcnt(0)")
    e(f"v_cmp_ne_u64 vcc, {sr(sNON,2)}, {vr(dst,2)}")
    for i in range(1, nloads):
        e(f"v_cmp_ne_u64 {sr(sX,2)}, {sr(sNON,2)}, {vr(dst+2*i,2)}")
        e("s_nop 0")
        e(f"s_or_b64 vcc, vcc, {sr(sX,2)}")
    e("s_nop 0")
    e("s_cmp_eq_u64 vcc, 0")
    if sleep:
        e(f"s_cbranch_scc1 {name}_done")
        e(f"s_sleep {sleep}")
        e(f"s_branch {name}")
    else:
        e(f"s_cbranch_scc0 {name}")
    lab(name + "_done")
    e("s_waitcnt vmcnt(0)")

def poll2(name, voff, dst, soff):
    ld = lambda d: e(f"buffer_load_dwordx2 {vr(d,2)}, v{voff}, {sr(R_WS,4)}, s{soff} offen sc1")
    e(f"s_mov_b32 s{sSPIN}, {SPIN}")
    ld(dst)
    e("s_sleep 2")
    lab(name)
    for a, b in ((dst + 2, dst), (dst, dst + 2)):
        ld(a)
        e("s_waitcnt vmcnt(1)")
        e(f"v_cmp_ne_u64 vcc, {sr(sNON,2)}, {vr(b,2)}")
        e(f"s_sub_u32 s{sSPIN}, s{sSPIN}, 1")
        e(f"s_cbranch_scc1 {name}_done")
        e("s_cmp_eq_u64 vcc, 0")
        if a == dst: e(f"s_cbranch_scc0 {name}")
        else: e(f"s_cbranch_scc1 {name}_done")
    lab(name + "_done")

def lds_wait(name, off, value, tmp, sleep=0):
    e(f"s_mov_b32 s{sSPIN}, {SPIN*8}")
    e(f"v_mov_b32 v{tmp}, {MISC + off}")
    lab(name)
    e(f"ds_read_b32 v{tmp+1}, v{tmp}")
    e(f"s_sub_u32 s{sSPIN}, s{sSPIN}, 1")
    e(f"s_cmp_eq_u32 s{sSPIN}, 0")
    e(f"s_cbranch_scc1 {name}_done")
    e("s_waitcnt lgkmcnt(0)")
    e(f"v_readfirstlane_b32 s{sT4}, v{tmp+1}")
    e("s_nop 0")
    e(f"s_cmp_ge_u32 s{sT4}, {value}")
    if sleep:
        e(f"s_cbranch_scc1 {name}_done")
        e(f"s_sleep {sleep}")
        e(f"s_branch {name}")
    else:
        e(f"s_cbranch_scc0 {name}")
    lab(name + "_done")
    e("s_waitcnt lgkmcnt(0)")
def lds_add(off, tmp):
    e(f"v_mov_b32 v{tmp}, {MISC + off}")
    e(f"v_mov_b32 v{tmp+1}, 1")
    e("s_mov_b64 exec, 1")
    e(f"ds_add_u32 v{tmp}, v{tmp+1}")
    e("s_mov_b64 exec, -1")
def tag_from_lds(name, tmp):
    e(f"s_mov_b32 s{sSPIN}, {SPIN*8}")
    e(f"v_mov_b32 v{tmp}, {MISC+C_TAG}")
    lab(name)
    e(f"ds_read_b64 {vr(tmp+2,2)}, v{tmp}")
    e(f"s_sub_u32 s{sSPIN}, s{sSPIN}, 1")
    e(f"s_cmp_eq_u32 s{sSPIN}, 0")
    e(f"s_cbranch_scc1 {name}_done")
    e("s_waitcnt lgkmcnt(0)")
    e(f"v_readfirstlane_b32 s{sNON}, v{tmp+2}")
    e(f"v_readfirstlane_b32 s{sNON+1}, v{tmp+3}")
    e(f"s_cmp_lg_u32 s{sNON}, 0")
    e(f"s_cbranch_scc1 {name}_done")
    e(f"s_sleep {opt['fs']}")
    e(f"s_branch {name}")
    lab(name + "_done")
    e("s_waitcnt lgkmcnt(0)")

def signal(name, ctr_off, last, flag_soff_s, tmp, lo=None, plain_if=None):
    e(f"v_mov_b32 v{tmp}, {MISC + ctr_off}")
    e(f"v_mov_b32 v{tmp+1}, 1")
    e(f"s_mov_b64 exec, 1")
    e(f"ds_add_rtn_u32 v{tmp+1}, v{tmp}, v{tmp+1}")
    e(f"v_mov_b32 v{tmp+2}, s{sNON if lo is None else lo}")
    e(f"v_mov_b32 v{tmp+3}, s{sNON+1}")
    e("s_waitcnt lgkmcnt(0)")
    e(f"v_readfirstlane_b32 s{sT4}, v{tmp+1}")
    e("s_nop 0")
    e(f"s_cmp_eq_u32 s{sT4}, {last}")
    e(f"s_cbranch_scc0 {name}_nf")
    if plain_if is not None:
        e(f"s_cmp_eq_u32 s{plain_if}, 0")
        e(f"s_cbranch_scc1 {name}_wt")
        e(f"buffer_store_dwordx2 {vr(tmp+2,2)}, off, {sr(R_WS,4)}, s{flag_soff_s}")
        if opt['omode'] < 2: e(f"s_branch {name}_nf")
        lab(name + "_wt")
    e(f"buffer_store_dwordx2 {vr(tmp+2,2)}, off, {sr(R_WS,4)}, s{flag_soff_s} sc1")
    lab(name + "_nf")
    e("s_mov_b64 exec, -1")

hdr = open(f"cdna_kernels/{NAME}.s.ref").read().split("; Override launch")[0]
L.append(hdr.rstrip())
L.append(f"; @launch grid=(256,1,1) block=(512,1,1) lds={LDS_BYTES}")
L.append('.amdgcn_target "amdgcn-amd-amdhsa--gfx950"')
L.append(DOC)
L.append(".text")
L.append(f".globl {NAME}_kernel")
L.append(".p2align 8")
L.append(f".type {NAME}_kernel,@function")
lab(f"{NAME}_kernel")
e("s_cmp_ge_u32 s2, 256")
e("s_cbranch_scc1 L_end")
e("s_load_dwordx16 s[4:19], s[0:1], 0")
e("s_load_dwordx8 s[20:27], s[0:1], 64")
e("s_load_dwordx2 s[28:29], s[0:1], 96")
e(f"s_memrealtime {sr(sNON,2)}")
if opt['endat'] or opt['baat']:
    e("s_waitcnt lgkmcnt(0)")
    e(f"s_mov_b32 s3, s{sNON}")
if opt['dxcc'] >= 0:
    e(f"s_getreg_b32 s{sT0}, hwreg(HW_REG_XCC_ID, 0, 4)")
    e(f"s_cmp_eq_u32 s{sT0}, {opt['dxcc']}") if opt['dxcc'] < 8 else e(f"s_cmp_eq_u32 s{sT0}, s{sT0}")
    e("s_cbranch_scc0 L_nodelay")
    e("s_waitcnt lgkmcnt(0)")
    lab("L_delay")
    e(f"s_memrealtime {sr(sX,2)}")
    e("s_waitcnt lgkmcnt(0)")
    e(f"s_sub_u32 s{sX}, s{sX}, s{sNON}")
    e(f"s_cmp_lt_u32 s{sX}, {opt['dus']}")
    e("s_cbranch_scc1 L_delay")
    lab("L_nodelay")
e("v_lshrrev_b32 v2, 6, v0")
e(f"v_and_b32 v{vL}, 63, v0")
e(f"v_readfirstlane_b32 s{sW}, v2")
e(f"s_and_b32 s{sXCD}, s2, 7")
e(f"s_lshr_b32 s{sJ}, s2, 3")
e(f"s_and_b32 s{sT0}, s{sJ}, 3")
e(f"s_lshl_b32 s{sTB}, s{sXCD}, 2")
e(f"s_add_u32 s{sTB}, s{sTB}, s{sT0}")
e(f"s_lshr_b32 s{sHG}, s{sJ}, 2")
e(f"s_lshr_b32 s{sTHP}, s{sHG}, 1")
e(f"s_and_b32 s{sA}, s{sW}, 3")
e(f"v_lshlrev_b32 v2, 4, v{vL}          ; v2 = lane*16")
cm("LDS init while the kernel arguments load: ones / zeros window (even 16-B chunks 2^64, odd chunks 0), counters")
ONE = (127 + VSCALE) << 7
e("v_lshrrev_b32 v5, 3, v0")
e("v_cmp_ne_u32 vcc, 8, v5")
e("v_and_b32 v4, 1, v0")
e("v_add_u32 v4, -1, v4")
e(f"v_and_b32 v4, {hex(ONE << 16 | ONE)}, v4")
e("v_cndmask_b32 v4, 0, v4, vcc")
e(f"v_lshlrev_b32 v3, 4, v0")
e("v_mov_b32 v5, v4")
e("v_mov_b32 v6, v4")
e("v_mov_b32 v7, v4")
e(f"v_add_u32 v3, {ONES_OFF}, v3")
e("ds_write_b128 v3, v[4:7]")
e(f"s_mov_b32 s{R_XA+2}, 0x200000")
e(f"s_mov_b32 s{R_XA+3}, 0x20000")
def aux_first():
    if opt['prioX']: e(f"s_setprio {opt['prioX']}")
    cm("critical loads: projection weight (wk for even hg, wv for odd), x rows 16*blk + 4a + i")
    e(f"s_lshl_b32 s{sT0}, s{sTHP}, 4")
    e(f"s_lshl_b32 s{sT1}, s{sA}, 2")
    e(f"s_add_u32 s{sT0}, s{sT0}, s{sT1}")
    e(f"s_mul_i32 s{sT1}, s{sT0}, {XROW}")
    e(f"s_add_u32 s{sT1}, s{sT1}, {X_OFF}")
    e(f"s_lshl_b32 s{sT2}, s{sTB}, 6")
    e(f"s_add_u32 s{sT2}, s{sT2}, s{sT0}")
    e(f"s_lshl_b32 s{sT2}, s{sT2}, 10")
    e(f"s_lshl_b32 s{sT3}, s{sA}, 12")
    e(f"s_mov_b32 s{R_W+2}, 16384")
    e(f"s_mov_b32 s{R_W+3}, 0x20000")
    e(f"s_mov_b32 m0, s{sT3}")
    e(f"s_bitcmp1_b32 s{sHG}, 0")
    e("s_waitcnt lgkmcnt(0)")
    e(f"s_cselect_b32 s{R_W}, s{P_WV}, s{P_WK}")
    e(f"s_cselect_b32 s{R_W+1}, s{P_WV+1}, s{P_WK+1}")
    e(f"s_and_b32 s{R_W+1}, s{R_W+1}, 0xffff")
    e(f"s_mov_b32 s{R_XA}, s{P_XA}")
    e(f"s_and_b32 s{R_XA+1}, s{P_XA+1}, 0xffff")
    srd(R_DBG, P_DBG, 256)
    cm("workgroup 0, aux wave 3 publishes this launch's hand-off tag")
    e(f"s_or_b32 s{sNON}, s{sNON}, 16")
    e(f"s_and_b32 s{sNON}, s{sNON}, -16")
    e(f"s_lshl_b32 s{sT0}, s2, 3")
    e(f"s_add_u32 s{sT0}, s{sT0}, s{sW}")
    e(f"s_cmp_eq_u32 s{sT0}, 7")
    e("s_cbranch_scc0 L_notag")
    e(f"v_mov_b32 v4, s{sNON}")
    e(f"v_mov_b32 v5, s{sNON+1}")
    e("s_mov_b64 exec, 1")
    e(f"buffer_store_dwordx2 v[4:5], off, {sr(R_DBG,4)}, 0 sc1")
    e("s_mov_b64 exec, -1")
    lab("L_notag")
    NT = lambda b: "nt " if opt['ntc'] >> b & 1 else ""
    for i in range(4): e(f"buffer_load_dwordx4 v2, {sr(R_W,4)}, s{sT3} offen offset:{1024*i} {NT(1)}lds")
    dma_run(4, 2, R_XA, sT2, sT1, 1024, XROW, NT(0))
    stamp(0)
    srd(R_WS, P_WS, WS_SIZE)
    if opt['dbgt']:
        e(f"s_cmp_lt_u32 s2, 8")
        e("s_cbranch_scc0 L_nodbg0")
        e(f"s_cmp_eq_u32 s{sW}, 6")
        e("s_cbranch_scc0 L_nodbg0")
        e(f"v_mov_b32 v4, s{sNON}")
        e(f"s_lshl_b32 s{sT0}, s2, 2")
        e(f"s_add_u32 s{sT0}, s{sT0}, 8")
        e("s_mov_b64 exec, 1")
        e(f"buffer_store_dword v4, off, {sr(R_DBG,4)}, s{sT0}")
        e("s_mov_b64 exec, -1")
        lab("L_nodbg0")
    e("s_barrier                             ; B1")
if opt['first']:
    cm("the aux waves' first loads are the longest dependency chain: their code directly follows the entry")
    e(f"s_cmp_lt_u32 s{sW}, 4")
    e("s_cbranch_scc1 L_att0")
    aux_first()
    e("s_branch L_aux")
    lab("L_att0")
else:
    e(f"s_cmp_ge_u32 s{sW}, 4")
    e("s_cbranch_scc1 L_aux")

cm("wq slice (8 rows x 128 B per load, 16-B chunks swizzled by row bit 1); quarter tb&3 first: distinct among its 4 sharers")
e(f"v_lshrrev_b32 v3, 3, v{vL}          ; r")
e(f"v_and_b32 v4, 7, v{vL}")
e(f"v_bfe_u32 v5, v{vL}, 4, 1           ; (r>>1)&1")
e("v_lshlrev_b32 v5, 2, v5")
e("v_xor_b32 v4, v4, v5")
e("v_lshlrev_b32 v4, 4, v4")
e("v_lshl_add_u32 v13, v3, 10, v4")
e(f"s_mov_b32 s{R_WQ+2}, 0x80000")
e(f"s_mov_b32 s{R_WQ+3}, 0x20000")
def wq_addr(q):
    e(f"s_add_u32 s{sT0}, s{sJ}, {q}")
    e(f"s_and_b32 s{sT0}, s{sT0}, 3")
    e(f"s_lshl_b32 s{sT0}, s{sT0}, 2")
    e(f"s_add_u32 s{sT0}, s{sT0}, s{sW}")
    e(f"s_lshl_b32 s{sT2}, s{sT0}, 15")
    e(f"s_lshl_b32 s{sT1}, s{sHG}, 7")
    e(f"s_add_u32 s{sT2}, s{sT2}, s{sT1}")
    e(f"s_lshl_b32 s{sT1}, s{sT0}, 12")
    e(f"s_add_u32 s{sT1}, s{sT1}, {WQ_OFF}")
wq_addr(0)
e("s_waitcnt lgkmcnt(0)")
e(f"s_mov_b32 s{R_WQ}, s{P_WQ}")
e(f"s_and_b32 s{R_WQ+1}, s{P_WQ+1}, 0xffff")
e(f"s_mov_b32 s{R_XA}, s{P_XA}")
e(f"s_and_b32 s{R_XA+1}, s{P_XA+1}, 0xffff")
stamp(0)
e("s_barrier")
NT = lambda b: "nt " if opt['ntc'] >> b & 1 else ""
dma_run(4, 13, R_WQ, sT2, sT1, 8192, 1024, NT(2))
cm("the 48 rows of the x tile the aux waves do not load: blocks blk+1, blk+2, blk+3 (mod 4), 4 rows per wave each")
def x_addr(d):
    e(f"s_add_u32 s{sT0}, s{sTHP}, {d}")
    e(f"s_and_b32 s{sT0}, s{sT0}, 3")
    e(f"s_lshl_b32 s{sT0}, s{sT0}, 2")
    e(f"s_add_u32 s{sT0}, s{sT0}, s{sW}")
    e(f"s_lshl_b32 s{sT0}, s{sT0}, 2          ; first row")
    e(f"s_mul_i32 s{sT1}, s{sT0}, {XROW}")
    e(f"s_add_u32 s{sT1}, s{sT1}, {X_OFF}")
    e(f"s_lshl_b32 s{sT2}, s{sTB}, 6")
    e(f"s_add_u32 s{sT2}, s{sT2}, s{sT0}")
    e(f"s_lshl_b32 s{sT2}, s{sT2}, 10")
def hold(name, ctr, val):
    lds_wait(name, ctr, val, 8, sleep=opt['fs'])
seq = [('x', 1), ('x', 2), ('x', 3), ('q', 1), ('q', 2), ('q', 3)]
for n, (kind, d) in enumerate(seq):
    (x_addr if kind == 'x' else wq_addr)(d)
    if opt['win']:
        W = opt['win'] if n < 2 else opt['win2']
        if 4*(n + 2) > W: e(f"s_waitcnt vmcnt({W - 4})")
    else:
        if n == opt['h1']: hold("L_hold1", C_CR, FOUR)
        if n == opt['h2']: hold("L_hold2", C_KV, 1)
    if kind == 'x': dma_run(4, 2, R_XA, sT2, sT1, 1024, XROW, NT(3))
    else: dma_run(4, 13, R_WQ, sT2, sT1, 8192, 1024, NT(4))
stamp(7)
srd(R_WS, P_WS, WS_SIZE)
SA, SB, OA, OB, CA, CB = 16, 32, 48, 64, 80, 96
QA, QB, K0, K1, V0, V1 = 112, 116, 120, 124, 128, 136
vIDX, vK, vV = 144, 145, 146
vINC, vV0, vSAME = 147, 150, 151
vXA, vWA = 148, 149
FB = 152
cm("Q-projection addresses")
e(f"s_and_b32 s{sT0}, s{sW}, 1            ; th")
e(f"s_lshr_b32 s{sT1}, s{sW}, 1           ; hp")
e(f"v_and_b32 v3, 31, v{vL}")
e(f"s_lshl_b32 s{sT2}, s{sT0}, 5")
e(f"v_add_u32 v3, s{sT2}, v3")
e(f"v_mul_u32_u24 v3, {XROW}, v3")
e(f"v_lshrrev_b32 v4, 5, v{vL}           ; h")
e(f"v_lshl_add_u32 v14, v4, 4, v3")
e(f"v_bfe_u32 v5, v{vL}, 2, 2            ; r")
e("v_lshl_add_u32 v6, v4, 3, v5          ; 8h + r")
e("v_lshlrev_b32 v6, 7, v6")
e(f"v_bfe_u32 v7, v{vL}, 4, 1            ; g")
e(f"v_and_b32 v8, 1, v{vL}")
e("v_lshl_add_u32 v7, v7, 1, v8          ; 2g + (cc&1)")
e(f"s_lshl_b32 s{sT2}, s{sT1}, 2")
e(f"v_add_u32 v7, s{sT2}, v7")
e(f"v_bfe_u32 v8, v{vL}, 3, 1            ; (r>>1)&1")
e("v_lshlrev_b32 v8, 2, v8")
e("v_xor_b32 v7, v7, v8")
e("v_lshl_add_u32 v6, v7, 4, v6")
e(f"v_bfe_u32 v8, v{vL}, 1, 1")
e("v_lshl_add_u32 v6, v8, 3, v6")
e(f"v_add_u32 v{vWA}, {WQ_OFF}, v6")
e(f"v_add_u32 v{vXA}, {X_OFF}, v14")
cm("attention LDS addresses; V: rows 0..15 -> tile data, lanes 16,20 -> 2^64, other lanes -> 0")
e(f"v_mov_b32 v{vIDX}, 0xdddddddd")
e(f"v_bfe_u32 v5, v{vL}, 4, 1")
e(f"v_xor_b32 v5, 1, v5                   ; 1 for V rows, 0 for the constant lanes")
e(f"v_lshlrev_b32 v{vINC}, 13, v5")
e(f"v_and_b32 v8, 15, v{vL}")
e("v_lshlrev_b32 v9, 8, v4")
e("v_lshl_add_u32 v8, v8, 4, v9")
e(f"v_and_b32 v9, 31, v{vL}")
e("v_add_u32 v10, -20, v9")
e("v_cmp_gt_u32 vcc, 8, v10")
e("v_and_b32 v9, 11, v9")
e("v_min_u32 v9, 1, v9")
e("v_cndmask_b32 v10, 0, 64, vcc")
e(f"v_cmp_eq_u32 vcc, 1, v5")
e("v_lshl_add_u32 v9, v9, 4, v10")
e(f"v_add_u32 v9, {ONES_OFF - 1024}, v9")
e(f"v_cndmask_b32 v{vV0}, v9, v8, vcc")
cm("O fragment destination and flag slot")
sOD, sOF = 97, 98
e(f"s_and_b32 s{sT0}, s{sW}, 1")
e(f"s_lshl_b32 s{sT1}, s{sTB}, 1")
e(f"s_add_u32 s{sT0}, s{sT0}, s{sT1}")
e(f"s_lshl_b32 s{sT0}, s{sT0}, 5          ; (tb*2+th)*32")
e(f"s_lshl_b32 s{sT1}, s{sHG}, 2")
e(f"s_add_u32 s{sT0}, s{sT0}, s{sT1}")
e(f"s_and_b32 s{sT1}, s{sW}, 2")
e(f"s_add_u32 s{sT0}, s{sT0}, s{sT1}")
e(f"s_lshl_b32 s{sT0}, s{sT0}, 10")
e(f"s_add_u32 s{sOD}, s{sT0}, {WS_O}")
e(f"s_lshl_b32 s{sT1}, s{sTB}, 3")
e(f"s_add_u32 s{sT1}, s{sT1}, s{sHG}")
e(f"s_lshl_b32 s{sT1}, s{sT1}, 2")
e(f"s_add_u32 s{sT1}, s{sT1}, s{sW}")
e(f"s_lshl_b32 s{sT1}, s{sT1}, 7")
e(f"s_add_u32 s{sOF}, s{sT1}, {FL_O}")
e(f"s_mov_b32 s{sFB}, 0")
e(f"s_mov_b32 s{sBARN}, {hex(0xa | (1 << opt['r2'] if opt['r2'] else 0))}")
e(f"v_mov_b32 v{vSAME}, {MISC}")
sPF, sOL, sOS, vPO = 100, 101, 79, 184
e(f"s_lshl_b32 s{sT0}, s{sTB}, 3")
e(f"s_lshl_b32 s{sT1}, s{sW}, 1")
e(f"s_add_u32 s{sT0}, s{sT0}, s{sT1}")
e(f"s_lshl_b32 s{sT0}, s{sT0}, 9")
e(f"s_add_u32 s{sPF}, s{sT0}, {FL_O}")
e(f"s_lshl_b32 s{sT2}, s{sTB}, 16")
e(f"s_lshl_b32 s{sOL}, s{sW}, 13")
e(f"s_add_u32 s{sT2}, s{sT2}, s{sOL}")
e(f"s_add_u32 s{sOS}, s{sT2}, {WS_O}")
e(f"v_and_b32 v8, 7, v{vL}")
e(f"v_lshlrev_b32 v{vPO}, 7, v8")
for i in range(16): e(f"v_mov_b32 v{OA+i}, 0")
for i in range(16): e(f"v_mov_b32 v{OB+i}, 0")
for i in range(4): e(f"v_mov_b32 v{V1+4+i}, 0")
if opt['qloop']:
    for i in range(16): e(f"v_mov_b32 v{SA+i}, 0")
e(f"v_mov_b32 v{vK}, v2")
e(f"v_mov_b32 v{vV}, v{vV0}")
if opt['dftpf']:
    cm("sequence-DFT rows the aux waves read later (pulled towards L2 from inside the loop):")
    cm("wave 0: cos rows t1s + 32l; wave 1: sin rows 2048 - that; waves 2, 3: cos / sin rows 64 (l & 31)")
    R_DP, vDP = R_XA, 187
    e(f"s_bitcmp1_b32 s{sW}, 0")
    e(f"s_cselect_b64 {sr(R_DP,2)}, {sr(P_SIM,2)}, {sr(P_SRE,2)}")
    e(f"s_and_b32 s{R_DP+1}, s{R_DP+1}, 0xffff")
    e(f"s_mov_b32 s{R_DP+2}, 0x800000")
    e(f"v_lshlrev_b32 v8, 5, v{vL}")
    e(f"v_add_u32 v8, s{sTB}, v8               ; t1s = tb")
    e("v_sub_u32 v9, 0x800, v8")
    e("v_and_b32 v9, 0x7ff, v9")
    e(f"v_lshlrev_b32 v10, 6, v{vL}")
    e("v_and_b32 v10, 0x7ff, v10")
    e(f"s_cmp_eq_u32 s{sW}, 1")
    e("s_cselect_b64 vcc, -1, 0")
    e("v_cndmask_b32 v8, v8, v9, vcc")
    e(f"s_cmp_ge_u32 s{sW}, 2")
    e("s_cselect_b64 vcc, -1, 0")
    e("v_cndmask_b32 v8, v8, v10, vcc")
    e(f"v_lshlrev_b32 v{vDP}, 12, v8")
if opt['preo']:
    cm("output lines this workgroup writes at the end (touched from inside the loop, values unused):")
    cm("waves 0, 2: rows 64tb + l, columns of hg; waves 1, 3: rows tb + 32l (mirrored for hg >= 4), spectral columns of hg")
    vOP, sOP = 186, 30
    srd(R_OUT, P_OUT, 4194304)
    e(f"v_lshlrev_b32 v8, 5, v{vL}")
    e(f"v_add_u32 v8, s{sTB}, v8")
    e("v_sub_u32 v9, 0x800, v8")
    e("v_and_b32 v9, 0x7ff, v9")
    e(f"s_cmp_ge_u32 s{sHG}, 4")
    e("s_cselect_b64 vcc, -1, 0")
    e("v_cndmask_b32 v8, v8, v9, vcc")
    e(f"s_lshl_b32 s{sT0}, s{sTB}, 6")
    e(f"v_add_u32 v9, s{sT0}, v{vL}")
    e(f"s_bitcmp1_b32 s{sW}, 0")
    e("s_cselect_b64 vcc, -1, 0")
    e(f"s_cselect_b32 s{sOP}, 0x400, 0")
    e("v_cndmask_b32 v8, v9, v8, vcc")
    e(f"v_lshlrev_b32 v{vOP}, 11, v8")
    e(f"s_lshl_b32 s{sT0}, s{sHG}, 7")
    e(f"s_add_u32 s{sOP}, s{sOP}, s{sT0}")
e(f"s_mov_b32 s{sT0}, {hex(f2u(0.25*1.4426950408889634))}")
warm("L_padq", "L_padq_ret")
e("s_waitcnt vmcnt(0)")
stamp(8)
e("s_barrier")
stamp(10)
pad_begin("L_padq")
def qload(ks):
    b = FB + 8*(ks % 4)
    e(f"ds_read_b64_tr_b16 {vr(b,2)}, v{vWA} offset:{ks*2048}")
    e(f"ds_read_b64_tr_b16 {vr(b+2,2)}, v{vWA} offset:{ks*2048+512}")
    e(f"ds_read_b128 {vr(b+4,4)}, v{vXA} offset:{ks*32}")
for ks in range(3): qload(ks)
if opt['qloop']:
    cm("4 trips of 8 k-steps; the last trip's look-ahead reads land in unused registers")
    e(f"s_mov_b32 s{sIT}, 0")
    lab("L_qloop")
    for ks in range(8):
        b = FB + 8*(ks % 4)
        qload(ks + 3); e("s_waitcnt lgkmcnt(9)")
        e(f"v_mfma_f32_32x32x16_bf16 {vr(SA,16)}, {vr(b,4)}, {vr(b+4,4)}, {vr(SA,16)}")
        if ks == 7:
            e(f"v_add_u32 v{vWA}, 0x4000, v{vWA}")
            e(f"v_add_u32 v{vXA}, 0x100, v{vXA}")
        if ks == 6:
            e(f"s_add_u32 s{sIT}, s{sIT}, 1")
            e(f"s_cmp_lt_u32 s{sIT}, 4")
    e("s_cbranch_scc1 L_qloop")
    e("s_waitcnt lgkmcnt(0)")
else:
    for ks in range(32):
        b = FB + 8*(ks % 4)
        if ks + 3 < 32:
            qload(ks + 3); e("s_waitcnt lgkmcnt(9)")
        else:
            e(f"s_waitcnt lgkmcnt({3*(31-ks)})")
        c = "0" if ks == 0 else vr(SA, 16)
        e(f"v_mfma_f32_32x32x16_bf16 {vr(SA,16)}, {vr(b,4)}, {vr(b+4,4)}, {c}")
stamp(9)
nop(8 if opt['qloop'] else 12)
for i in range(16): e(f"v_mul_f32 v{SA+i}, s{sT0}, v{SA+i}")
for i in range(8): e(f"v_cvt_pk_bf16_f32 v{QA+i}, v{SA+2*i}, v{SA+2*i+1}")
if opt['prioA']: e(f"s_setprio {opt['prioA']}")
stamp(2)
if opt['attpf']:
    cm("after BA: pull this workgroup's 1/32 share of what its XCD reads later towards L2 (one dword per 128-B line)")
    cm("wave 0: x_B rows 64j + 8xcd + (0..7); waves 1, 2: hidden cos / sin rows 8j..8j+7; wave 3: wo rows 16j..16j+15")
    R_PF = R_WQ
    e(f"s_cmp_eq_u32 s{sW}, 1")
    e(f"s_cselect_b64 {sr(R_PF,2)}, {sr(P_HRE,2)}, {sr(P_HIM,2)}")
    e(f"s_lshl_b32 s{sT2}, s{sJ}, 13")
    e(f"s_cmp_eq_u32 s{sW}, 3")
    e(f"s_cselect_b64 {sr(R_PF,2)}, {sr(P_WO,2)}, {sr(R_PF,2)}")
    e(f"s_cselect_b32 s{sT3}, s{sT2}, 0")
    e(f"s_add_u32 s{sT2}, s{sT2}, s{sT3}")
    e(f"s_lshl_b32 s{sT3}, s{sJ}, 16")
    e(f"s_lshl_b32 s{sT1}, s{sXCD}, 13")
    e(f"s_add_u32 s{sT3}, s{sT3}, s{sT1}")
    e(f"s_cmp_eq_u32 s{sW}, 0")
    e(f"s_cselect_b64 {sr(R_PF,2)}, {sr(P_XB,2)}, {sr(R_PF,2)}")
    e(f"s_cselect_b32 s{sT2}, s{sT3}, s{sT2}")
    e(f"s_cselect_b32 s{R_PF+2}, 0x200000, s{R_PF+2}")
    e(f"s_and_b32 s{R_PF+1}, s{R_PF+1}, 0xffff")
    e(f"s_add_u32 s{sT3}, s{sT2}, 8192")
    e(f"v_lshlrev_b32 v6, 7, v{vL}")
if opt['baat']:
    lab("L_baat")
    e(f"s_memrealtime {sr(sX,2)}")
    e("s_waitcnt lgkmcnt(0)")
    e(f"s_sub_u32 s{sX}, s{sX}, s3")
    e(f"s_cmp_lt_u32 s{sX}, {opt['baat']}")
    e("s_cbranch_scc1 L_baat")
e("s_barrier")
stamp(3)
PFLOAD = True
MT = opt['mt']
cm(f"stand-in for the row max: max over the first {MT} key tile(s) (checked after the loop; fallback = true max)")
e(f"ds_read_b128 {vr(K0,4)}, v{vK}")
e(f"ds_read_b128 {vr(K1,4)}, v{vK} offset:2048")
KX = FB
for t in range(2, MT): e(f"ds_read_b128 {vr(KX+4*(t-2),4)}, v{vK} offset:{2048*t}")
e(f"ds_read_b128 {vr(V0,4)}, v{vV} offset:1024")
e(f"ds_read_b128 {vr(V0+4,4)}, v{vV} offset:1536")
def max16(dst, s, acc=None):
    if acc is None:
        e(f"v_max3_f32 v{dst}, v{s}, v{s+1}, v{s+2}"); i = 3
        while i + 1 < 16:
            e(f"v_max3_f32 v{dst}, v{dst}, v{s+i}, v{s+i+1}"); i += 2
        e(f"v_max_f32 v{dst}, v{dst}, v{s+15}")
    else:
        for i in range(0, 16, 2): e(f"v_max3_f32 v{dst}, v{dst}, v{s+i}, v{s+i+1}")
nrd = 4 + max(0, MT - 2)
e(f"s_waitcnt lgkmcnt({nrd - 1})")
e(f"v_mfma_f32_32x32x16_bf16 {vr(SA,16)}, {vr(K0,4)}, {vr(QA,4)}, 0")
e(f"v_mfma_f32_32x32x16_bf16 {vr(SB,16)}, {vr(K0,4)}, {vr(QB,4)}, 0")
if MT == 1:
    nop(11)
    max16(4, SA); max16(5, SB)
else:
    kreg = [K0, K1] + [KX + 4*t for t in range(2)]
    bufs = [(SA, SB), (CA, CB)]
    e(f"s_waitcnt lgkmcnt({nrd - 2})")
    e(f"v_mfma_f32_32x32x16_bf16 {vr(CA,16)}, {vr(K1,4)}, {vr(QA,4)}, 0")
    e(f"v_mfma_f32_32x32x16_bf16 {vr(CB,16)}, {vr(K1,4)}, {vr(QB,4)}, 0")
    e("s_waitcnt lgkmcnt(2)")
    nop(7)
    for t in range(MT):
        a, b = bufs[t % 2]
        max16(4, a, None if t == 0 else 1)
        if t + 2 < MT: e(f"v_mfma_f32_32x32x16_bf16 {vr(a,16)}, {vr(kreg[t+2],4)}, {vr(QA,4)}, 0")
        max16(5, b, None if t == 0 else 1)
        if t + 2 < MT: e(f"v_mfma_f32_32x32x16_bf16 {vr(b,16)}, {vr(kreg[t+2],4)}, {vr(QB,4)}, 0")
lab("L_setmax")
cm(f"v4 / v5 = per-lane max for tiles A / B; combine the two half-waves, C = -(max + {opt['shift']})")
e("v_mov_b32 v6, v4")
e("v_mov_b32 v7, v5")
e(f"s_mov_b32 s{sIT}, 0")
e("s_nop 0")
e("v_permlane32_swap_b32 v4, v6")
e("v_permlane32_swap_b32 v5, v7")
e("v_max_f32 v4, v4, v6")
e("v_max_f32 v5, v5, v7")
for i in range(16): e(f"v_sub_f32 v{CA+i}, {hex(f2u(-float(opt['shift'])))}, v4")
e(f"v_sub_f32 v{CB}, {hex(f2u(-float(opt['shift'])))}, v5")
e("s_waitcnt lgkmcnt(0)")
if opt['vmask']:
    e("s_mov_b32 s30, 0xffff")
    e("s_mov_b32 s31, 0xffff")
    for i in range(8): e(f"v_mov_b32 v{V1+i}, v{V0+i}")
e(f"v_mfma_f32_32x32x16_bf16 {vr(SA,16)}, {vr(K0,4)}, {vr(QA,4)}, {vr(CA,16)}")
for i in range(1, 16): e(f"v_mov_b32 v{CB+i}, v{CB}")
for i in range(8): e(f"v_mov_b32 v{SB+8+i}, 0")
def SM(o, a, b): e(f"v_smfmac_f32_32x32x32_bf16 {vr(o,16)}, {vr(a,4)}, {vr(b,8)}, v{vIDX}")
def QK(d, k, q, c): e(f"v_mfma_f32_32x32x16_bf16 {vr(d,16)}, {vr(k,4)}, {vr(q,4)}, {vr(c,16)}")
def EX(s, a, b):
    for i in range(a, b): e(f"v_exp_f32 v{s+i}, v{s+i}")
pad_end("L_padq", "L_padq_ret")
stamp(13)
L.append(".p2align 6")
lab("L_att_loop")
for u in range(4):
    kc, kn = (K0, K1) if u % 2 == 0 else (K1, K0)
    vc, vp = (V0, V1) if u % 2 == 0 else (V1, V0)
    voffs = ((u + 1) % 4) * 2048 + 1024
    koffs = ((u + 2) % 4) * 2048
    p0, p1, p2 = (4, 7, 10) if opt['cluster'] else (2, 5, 10)
    EX(SA, 0, p0)
    SM(OB, vp + 4, SB + 8)
    e(f"s_waitcnt lgkmcnt({2 if u == 1 and opt['csync'] else 1})")
    EX(SA, p0, p1)
    QK(SB, kc, QB, CB)
    if opt['vmask']: e(f"s_mov_b64 exec, {sr(30,2)}")
    e(f"ds_read_b128 {vr(vp,4)}, v{vV} offset:{voffs}")
    if opt['vmask']: e("s_mov_b64 exec, -1")
    EX(SA, p1, p2)
    SM(OA, vc, SA)
    if opt['vmask']: e(f"s_mov_b64 exec, {sr(30,2)}")
    e(f"ds_read_b128 {vr(vp+4,4)}, v{vV} offset:{voffs+512}")
    if opt['vmask']: e("s_mov_b64 exec, -1")
    EX(SA, p2, 16)
    EX(SB, 0, p0)
    SM(OA, vc + 4, SA + 8)
    e("s_waitcnt lgkmcnt(2)")
    if u == 1:
        pass
    EX(SB, p0, p1)
    QK(SA, kn, QA, CA)
    e(f"ds_read_b128 {vr(kc,4)}, v{vK} offset:{koffs}")
    EX(SB, p1, p2)
    SM(OB, vc, SB)
    if u == 1:
        e(f"s_bitcmp1_b32 s{sBARN}, s{sIT}")
        e("s_cbranch_scc1 L_sync")
        lab("L_nobar")
        e(f"v_add_u32 v{vK}, 0x2000, v{vK}")
    if u == 2:
        e(f"v_add_u32 v{vV}, v{vINC}, v{vV}")
    if u == 3:
        e(f"s_add_u32 s{sIT}, s{sIT}, 1")
        e(f"s_cmp_lt_u32 s{sIT}, 16")
    if u == 0 and opt['csync']: e(f"ds_read_b64 v[4:5], v{vSAME} offset:{C_G1}")
    elif u == 0 and opt['cluster']: e("s_nop 0")
    EX(SB, p2, 16)
e("s_cbranch_scc1 L_att_loop")
if opt['lwarm']: e("s_cbranch_execz L_lwarm_ret           ; only the instruction-cache warm-up pass has EXEC = 0")
stamp(18)
pad_begin("L_padt")
e(f"s_mov_b32 s{sT0}, {hex(f2u(2.0**100) if not opt['force_fb'] else f2u(2.0**-30))}")
e(f"v_rcp_f32 v4, v{OA+8}")
SM(OB, V1 + 4, SB + 8)
e(f"ds_read_b32 v7, v{vSAME} offset:{C_SAME}")
e(f"ds_read_b64 v[8:9], v{vSAME} offset:{C_TAG}")
cm("run-time check of the stand-in: l*2^64 must be finite and <= 2^100, else redo with the true row max")
e(f"v_cmp_nle_f32_e64 vcc, v{OA+8}, s{sT0}")
for i in range(8): e(f"v_mul_f32 v{SA+i}, v4, v{OA+i}")
for i in range(4): e(f"v_cvt_pk_bf16_f32 v{SA+i}, v{SA+2*i}, v{SA+2*i+1}")
sSAME = 99
e("s_waitcnt lgkmcnt(0)")
e(f"v_readfirstlane_b32 s{sSAME}, v7")
e(f"v_rcp_f32 v5, v{OB+8}")
e(f"v_cmp_nle_f32_e64 {sr(sX,2)}, v{OB+8}, s{sT0}")
cm("plain stores only when every workgroup of this token block reported the same XCD; else write-through")
e(f"s_cmp_eq_u32 s{sSAME}, 0")
e("s_cbranch_scc1 L_ostA_wt")
OM = " sc1" if opt['omode'] >= 2 else ""
e(f"buffer_store_dwordx4 {vr(SA,4)}, v2, {sr(R_WS,4)}, s{sOD} offen{OM}")
lab("L_ostA_done")
for i in range(8): e(f"v_mul_f32 v{SB+i}, v5, v{OB+i}")
e(f"s_or_b64 vcc, vcc, {sr(sX,2)}")
for i in range(4): e(f"v_cvt_pk_bf16_f32 v{SA+4+i}, v{SB+2*i}, v{SB+2*i+1}")
e("s_cmp_eq_u64 vcc, 0")
e("s_cbranch_scc0 L_fallback")
lab("L_att_done")
e(f"s_cmp_eq_u32 s{sSAME}, 0")
e("s_cbranch_scc1 L_ost_wt")
e(f"buffer_store_dwordx4 {vr(SA+4,4)}, v2, {sr(R_WS,4)}, s{sOD} offen offset:1024{OM}")
stamp(6)
e(f"v_readfirstlane_b32 s{sNON}, v8")
e(f"v_readfirstlane_b32 s{sNON+1}, v9")
e("s_mov_b64 exec, 1")
e("s_waitcnt vmcnt(0)")
e(f"buffer_store_dwordx2 v[8:9], off, {sr(R_WS,4)}, s{sOF}")
if opt['omode'] == 3: e(f"buffer_store_dwordx2 v[8:9], off, {sr(R_WS,4)}, s{sOF} sc1")
lab("L_ost_done")
e("s_mov_b64 exec, -1")
stamp(5)
e("s_barrier")
stamp(4)
cm("gather the O tile of this token block: wave w takes producers 2w, 2w+1, in four steps of two heads")
poll2("L_pollO", vPO, 10, sPF) if opt['pp'] & 1 else poll("L_pollO", 1, vPO, 10, [sPF])
stamp(11)
for st in range(4):
    for th in range(2):
        e(f"s_add_u32 m0, s{sOL}, {2048*st + 32768*th}")
        e(f"s_add_u32 s{sT1}, s{sOS}, {2048*st + 32768*th}")
        for i in range(2): e(f"buffer_load_dwordx4 v2, {sr(R_WS,4)}, s{sT1} offen offset:{1024*i} sc1 lds")
pad_end("L_padt", "L_pado_0")
for st in range(4):
    e(f"s_waitcnt vmcnt({12 - 4*st})")
    if st == 0: stamp(12)
    e(f"s_barrier                             ; B8.{st}: heads 8w + {2*st}, {2*st+1} of every wave landed")
stamp_dump()
e("s_endpgm")
lab("L_ostA_wt")
e(f"buffer_store_dwordx4 {vr(SA,4)}, v2, {sr(R_WS,4)}, s{sOD} offen sc1")
e("s_branch L_ostA_done")
lab("L_ost_wt")
e(f"buffer_store_dwordx4 {vr(SA+4,4)}, v2, {sr(R_WS,4)}, s{sOD} offen offset:1024 sc1")
stamp(6)
e(f"v_readfirstlane_b32 s{sNON}, v8")
e(f"v_readfirstlane_b32 s{sNON+1}, v9")
e("s_mov_b64 exec, 1")
e("s_waitcnt vmcnt(0)")
e(f"buffer_store_dwordx2 v[8:9], off, {sr(R_WS,4)}, s{sOF} sc1")
e("s_branch L_ost_done")
def rescale():
    E0 = VSCALE - opt['shift']
    p2 = 10
    cm("raise the softmax reference to the row sum so far: v6 / v10 = delta (>= 0), v8 / v14 = 2^-delta for tiles A / B")
    for t, (O, d, f, tmp) in enumerate(((OA, 6, 8, 12), (OB, 10, 14, 13))):
        if t == 1: nop(1)
        e(f"v_frexp_exp_i32_f32 v{tmp}, v{O+8}")
        e(f"v_add_u32 v{tmp}, {-1 - E0}, v{tmp}")
        e(f"v_med3_i32 v{tmp}, v{tmp}, 0, s{sT3}")
        e(f"v_cvt_f32_i32 v{d}, v{tmp}")
        e(f"v_sub_u32 v{tmp}, 0, v{tmp}")
        e(f"v_ldexp_f32 v{f}, 1.0, v{tmp}")
        if t == 0:
            for r in range(0, 10, 2): e(f"v_pk_mul_f32 {vr(O+r,2)}, {vr(O+r,2)}, {vr(f,2)} op_sel_hi:[1,0]")
    for r in range(0, 10, 2): e(f"v_pk_mul_f32 {vr(OB+r,2)}, {vr(OB+r,2)}, {vr(14,2)} op_sel_hi:[1,0]")
    e(f"v_pk_mul_f32 {vr(SB+8,2)}, {vr(SB+8,2)}, {vr(14,2)} op_sel_hi:[1,0]")
    sub = lambda r, d: e(f"v_pk_add_f32 {vr(r,2)}, {vr(r,2)}, {vr(d,2)} op_sel_hi:[1,0] neg_lo:[0,1] neg_hi:[0,1]")
    for r in range(p2, 16, 2): sub(SB + r, 10)
    for r in range(0, 16, 2): sub(SA + r, 6)
    for r in range(0, 16, 2): sub(CA + r, 6)
    for r in range(0, 16, 2): sub(CB + r, 10)
lab("L_sync")
e(f"s_cmp_eq_u32 s{sIT}, 1")
e("s_cbranch_scc0 L_sync3")
stamp(14)
if opt['csync']:
    e(f"v_readfirstlane_b32 s{sT4}, v4")
    e("s_nop 0")
    e(f"s_cmp_ge_u32 s{sT4}, {FOUR}")
    e("s_cbranch_scc1 L_nobar") if not opt['stamps'] else e("s_cbranch_scc1 L_wg1_done")
lds_wait("L_wg1", C_G1, FOUR, 4)
stamp(15)
if opt['resc'] & 1:
    e(f"s_mov_b32 s{sT3}, 120")
    rescale()
e("s_branch L_nobar")
lab("L_sync3")
if opt['stall']: e(f"s_sleep {opt['stall']}")
if opt['dftpf']: e(f"buffer_load_dword v185, v{vDP}, {sr(R_DP,4)}, 0 offen")
if opt['preo']:
    e(f"s_cmp_lt_u32 s{sW}, 2")
    e("s_cbranch_scc0 L_nopo")
    e(f"buffer_load_dword v188, v{vOP}, {sr(R_OUT,4)}, s{sOP} offen{' sc1' if opt['preo'] == 1 else ''}")
    lab("L_nopo")
stamp(16)
if opt['csync']:
    e(f"v_readfirstlane_b32 s{sT4}, v5")
    e("s_nop 0")
    e(f"s_cmp_ge_u32 s{sT4}, {FOUR}")
    e("s_cbranch_scc1 L_nobar") if not opt['stamps'] else e("s_cbranch_scc1 L_wkvl_done")
lds_wait("L_wkvl", C_KVL, FOUR, 4)
stamp(17)
if opt['resc'] & 2:
    e(f"s_mov_b32 s{sT3}, 120")
    rescale()
e("s_branch L_nobar")
lab("L_fallback")
e(f"s_cmp_eq_u32 s{sFB}, 0")
e("s_cbranch_scc0 L_att_done")
cm("fallback: exact row max over all 64 key tiles, then repeat the main loop")
e(f"s_mov_b32 s{sFB}, 1")
e(f"s_mov_b32 s{sBARN}, 0")
e(f"v_mov_b32 v4, 0xff800000")
e(f"v_mov_b32 v5, 0xff800000")
e(f"v_mov_b32 v{vK}, v2")
e(f"s_mov_b32 s{sIT}, 0")
lab("L_fb_loop")
e(f"ds_read_b128 {vr(K0,4)}, v{vK}")
e("s_waitcnt lgkmcnt(0)")
e(f"v_mfma_f32_32x32x16_bf16 {vr(SA,16)}, {vr(K0,4)}, {vr(QA,4)}, 0")
e(f"v_mfma_f32_32x32x16_bf16 {vr(SB,16)}, {vr(K0,4)}, {vr(QB,4)}, 0")
e(f"v_add_u32 v{vK}, 0x800, v{vK}")
nop(11)
max16(4, SA, 1); max16(5, SB, 1)
e(f"s_add_u32 s{sIT}, s{sIT}, 1")
e(f"s_cmp_lt_u32 s{sIT}, 64")
e("s_cbranch_scc1 L_fb_loop")
e(f"v_mov_b32 v{vK}, v2")
e(f"v_mov_b32 v{vV}, v{vV0}")
for i in range(16): e(f"v_mov_b32 v{OA+i}, 0")
for i in range(16): e(f"v_mov_b32 v{OB+i}, 0")
for i in range(4): e(f"v_mov_b32 v{V1+4+i}, 0")
e(f"ds_read_b128 {vr(K0,4)}, v{vK}")
e(f"ds_read_b128 {vr(K1,4)}, v{vK} offset:2048")
e(f"ds_read_b128 {vr(V0,4)}, v{vV} offset:1024")
e(f"ds_read_b128 {vr(V0+4,4)}, v{vV} offset:1536")
e("s_branch L_setmax")

lab("L_aux")
BUF = 16
BP = 144
FR = 176
ACC = 192
D1, D2 = 208, 224
if not opt['first']: aux_first()
KV0 = len(L)
e(f"v_mov_b32 v14, {MISC+C_CR}")
if opt['bytef']: e(f"v_add_u32 v14, s{sA}, v14")
e(f"v_mov_b32 v15, 1")
cm("K / V projection of 16 tokens: aux wave 0")
e(f"s_cmp_eq_u32 s{sA}, 0")
e("s_cbranch_scc0 L_np")
e(f"v_and_b32 v3, 15, v{vL}")
e(f"v_lshrrev_b32 v4, 4, v{vL}           ; q")
e(f"s_lshl_b32 s{sT0}, s{sTHP}, 4")
e(f"v_add_u32 v5, s{sT0}, v3")
e(f"v_mul_u32_u24 v5, {XROW}, v5")
e("v_lshl_add_u32 v5, v4, 4, v5")
e(f"v_add_u32 v5, {X_OFF}, v5")
e(f"v_bfe_u32 v6, v{vL}, 2, 2            ; r")
e("v_lshl_add_u32 v6, v4, 3, v6")
e("v_lshlrev_b32 v6, 5, v6")
e(f"v_and_b32 v7, 3, v{vL}               ; cc")
sB = sT3
e(f"s_and_b32 s{sB}, s{sTHP}, 1            ; b")
e(f"s_lshr_b32 s{sT0}, s{sTHP}, 1")
e(f"s_lshl_b32 s{sT2}, s{sTB}, 1")
e(f"s_add_u32 s{sT2}, s{sT2}, s{sT0}")
sKF, sKD = 97, 96
e(f"s_lshl_b32 s{sT1}, s{sT2}, 1")
e(f"s_and_b32 s{sT0}, s{sHG}, 1")
e(f"s_add_u32 s{sT1}, s{sT1}, s{sT0}")
e(f"s_lshl_b32 s{sT1}, s{sT1}, 1")
e(f"s_add_u32 s{sT1}, s{sT1}, s{sB}")
e(f"s_lshl_b32 s{sT1}, s{sT1}, 7")
e(f"s_add_u32 s{sKF}, s{sT1}, {FL_KV}")
e(f"s_lshl_b32 s{sKD}, s{sT2}, 11")
e("v_and_b32 v9, 1, v4")
e("v_lshlrev_b32 v9, 3, v9")
e("v_lshl_add_u32 v9, v3, 4, v9          ; n*16 + (q&1)*8")
e("v_lshrrev_b32 v8, 1, v4")
e(f"s_mov_b32 s{sDRY}, {1 if opt['dry'] else 0}")
if opt['pre']:
    cm("touch the lines of the key tile and the flag this wave will publish, so the write-through stores find them resident")
    e(f"v_and_b32 v12, 15, v{vL}")
    e("v_lshlrev_b32 v12, 7, v12")
    e(f"buffer_load_dword v201, v12, {sr(R_WS,4)}, s{sKD} offen sc1")
    e(f"buffer_load_dword v202, off, {sr(R_WS,4)}, s{sKF} sc1")
def kvchain(isV):
    D = opt['kvd']
    def mf(k2):
        b2 = BUF + 8*k2
        a, bb = (b2+4, b2) if isV else (b2, b2+4)
        e(f"v_mfma_f32_16x16x32_bf16 {vr(ACC,4)}, {vr(a,4)}, {vr(bb,4)}, {'0' if k2==0 else vr(ACC,4)}")
    for ks in range(16):
        b = BUF + 8*ks
        e(f"ds_read_b64_tr_b16 {vr(b,2)}, v6 offset:{ks*1024}")
        e(f"ds_read_b64_tr_b16 {vr(b+2,2)}, v6 offset:{ks*1024+128}")
        e(f"ds_read_b128 {vr(b+4,4)}, v5 offset:{ks*64}")
        if ks >= D:
            e(f"s_waitcnt lgkmcnt({3*D})"); mf(ks - D)
    for k2 in range(16 - D, 16):
        e(f"s_waitcnt lgkmcnt({3*(15-k2)})"); mf(k2)
def kv_wait(tagname):
    e(f"s_waitcnt vmcnt({2 if opt['pre'] else 0})")
    stamp(1)
    e("s_mov_b64 exec, 1")
    e("ds_write_b8 v14, v15" if opt['bytef'] else "ds_add_u32 v14, v15")
    e("s_mov_b64 exec, -1")
    lds_wait(tagname + "_w", C_CR, FOUR, 10, sleep=1)
def kv_b1(tagname):
    if not opt['dry']: kv_wait(tagname)
    lab(tagname)
def kv_b2(tagname):
    if opt['dry']:
        e(f"s_cmp_eq_u32 s{sDRY}, 0")
        e(f"s_cbranch_scc1 {tagname}_go")
        e(f"s_mov_b32 s{sDRY}, 0")
        kv_wait(tagname)
        e(f"s_branch {tagname}")
        lab(tagname + "_go")
e(f"s_bitcmp1_b32 s{sHG}, 0")
e("s_cbranch_scc1 L_prodV")
cm("K: (q>>1)*512 + (16b+n)*16 + (q&1)*8")
e("v_lshl_add_u32 v6, v7, 3, v6")
e("v_lshl_add_u32 v8, v8, 9, v9")
e(f"s_lshl_b32 s{sT1}, s{sB}, 8")
e(f"s_add_u32 s{sKD}, s{sKD}, s{sT1}")
kv_b1("L_chK"); kvchain(False); kv_b2("L_chK")
nop(6 if opt['dry'] else 8)
e("s_branch L_prodS")
lab("L_prodV")
cm("V: 1024 + b*512 + (q>>1)*256 + n*16 + (q&1)*8")
e("v_lshl_add_u32 v8, v8, 8, v9")
e("v_and_b32 v9, 1, v7")
e("v_lshl_add_u32 v6, v9, 4, v6")
e("v_lshrrev_b32 v9, 1, v7")
e("v_lshl_add_u32 v6, v9, 3, v6")
e(f"s_lshl_b32 s{sT1}, s{sB}, 9")
e(f"s_add_u32 s{sKD}, s{sKD}, s{sT1}")
e(f"s_add_u32 s{sKD}, s{sKD}, 1024")
kv_b1("L_chV"); kvchain(True); kv_b2("L_chV")
e(f"s_mov_b32 s{sT0}, {hex(f2u(2.0**VSCALE))}")
nop(6 if opt['dry'] else 8)
for i in range(4): e(f"v_mul_f32 v{ACC+i}, s{sT0}, v{ACC+i}")
lab("L_prodS")
e(f"v_cvt_pk_bf16_f32 v10, v{ACC}, v{ACC+1}")
e(f"v_cvt_pk_bf16_f32 v11, v{ACC+2}, v{ACC+3}")
e(f"buffer_store_dwordx2 v[10:11], v8, {sr(R_WS,4)}, s{sKD} offen sc1")
stamp(14)
e("ds_add_u32 v14, v15 offset:%d             ; this wave is done with the weight region" % (C_KV - C_CR + 65536) if False else f"v_mov_b32 v13, {MISC+C_KV}")
e("s_mov_b64 exec, 1")
e("ds_write_b32 v13, v15")
e("s_mov_b64 exec, -1")
tag_from_lds("L_tagp", 4)
e(f"v_mov_b32 v6, s{sNON}")
e(f"v_mov_b32 v7, s{sNON+1}")
e("s_mov_b64 exec, 1")
e("s_waitcnt vmcnt(0)")
e(f"buffer_store_dwordx2 v[6:7], off, {sr(R_WS,4)}, s{sKF} sc1")
e("s_mov_b64 exec, -1")
stamp(15)
if opt['pa']: e("s_branch L_tagged0")
else:
    e(f"s_mov_b32 s{sRET}, 1")
    e("s_branch L_tagged")
lab("L_np")
e("s_waitcnt vmcnt(0)")
stamp(1)
e("s_mov_b64 exec, 1")
e("ds_write_b8 v14, v15" if opt['bytef'] else "ds_add_u32 v14, v15")
e("s_mov_b64 exec, -1")
if opt['codepf']:
    cm("aux wave 2 pulls this kernel's code towards L2 (reads only)")
    e(f"s_cmp_eq_u32 s{sA}, 2")
    e("s_cbranch_scc0 L_nopf")
    e(f"s_getpc_b64 {sr(sX,2)}")
    lab("L_pc")
    e(f"v_lshlrev_b32 v4, 7, v{vL}")
    e(f"s_sub_u32 s{sX}, s{sX}, L_pc-{NAME}_kernel")
    e(f"s_subb_u32 s{sX+1}, s{sX+1}, 0")
    e(f"v_mov_b32 v5, s{sX+1}")
    e(f"v_add_co_u32 v4, vcc, s{sX}, v4")
    e("s_nop 1")
    e("v_addc_co_u32 v5, vcc, 0, v5, vcc")
    e("CODEPF")
    lab("L_nopf")
if opt['lwarm']:
    cm("aux wave 1 walks once through the attention loop with every lane off (LDS and register traffic only) to warm the instruction cache")
    e(f"s_cmp_eq_u32 s{sA}, 1")
    e("s_cbranch_scc0 L_nolw")
    e(f"s_mov_b32 s{sIT}, 15")
    e(f"s_mov_b32 s{sBARN}, 0")
    e("s_setprio 0")
    e("s_mov_b64 exec, 0")
    e("s_branch L_att_loop")
    lab("L_lwarm_ret")
    e("s_mov_b64 exec, -1")
    e(f"s_setprio {opt['prioX']}")
    lab("L_nolw")
e(f"s_cmp_eq_u32 s{sA}, 3")
e("s_cbranch_scc0 L_tagged0")
cm("aux wave 3 fetches this launch's hand-off tag (bounded spin) and posts it in LDS")
e(f"s_mov_b32 s{sSPIN}, {SPIN}")
lab("L_tag")
e(f"buffer_load_dwordx2 v[14:15], off, {sr(R_DBG,4)}, 0 sc1")
e(f"s_sub_u32 s{sSPIN}, s{sSPIN}, 1")
e(f"s_cmp_eq_u32 s{sSPIN}, 0")
e("s_cbranch_scc1 L_tag_done")
e("s_waitcnt vmcnt(0)")
e("v_cmp_eq_u32 vcc, 0, v14")
e("s_nop 0")
e("s_cmp_eq_u64 vcc, 0")
e("s_cbranch_scc0 L_tag")
lab("L_tag_done")
e("s_waitcnt vmcnt(0)")
e(f"v_mov_b32 v12, {MISC+C_TAG}")
e("ds_write_b64 v12, v[14:15]")
cm("report this workgroup's XCD id (tag | id)")
e(f"s_getreg_b32 s{sT2}, hwreg(HW_REG_XCC_ID, 0, 4)")
e(f"s_lshl_b32 s{sT1}, s2, 7")
e(f"s_add_u32 s{sT1}, s{sT1}, {FL_X}")
e(f"v_or_b32 v14, s{sT2}, v14")
e("s_mov_b64 exec, 1")
e(f"buffer_store_dwordx2 v[14:15], off, {sr(R_WS,4)}, s{sT1} sc1")
e("s_mov_b64 exec, -1")
import re
def ren(m):
    n = int(m.group(1)); return f"v{208+n}" if 3 <= n <= 15 else m.group(0)
def ren2(m):
    a, b = int(m.group(1)), int(m.group(2)); return f"v[{208+a}:{208+b}]" if 3 <= a <= 15 else m.group(0)
for k in range(KV0, len(L)):
    L[k] = re.sub(r"v\[(\d+):(\d+)\]", ren2, re.sub(r"\bv(\d+)\b", ren, L[k]))
e(f"s_mov_b32 s{sRET}, 0") if False else None
lab("L_tagged0")
e(f"s_mov_b32 s{sRET}, 0")
e("s_branch L_addr")
lab("L_tagged")
stamp(2)
tag_from_lds("L_tagx", 8)
cm("the weight region is reused only after the projection wave is done with it")
lds_wait("L_wkv", C_KV, 1, 8, sleep=opt['fs'])
cm("key tiles in rotated order (own XCD's tiles first); wave a covers tiles 8g + 2a, 8g + 2a + 1: flags 32g + 8a + (0..7)")
vCNT = 248
sKG, sKL, sKS, sKP = 97, 85, 88, 96
e(f"v_and_b32 v{ACC+2}, 7, v{vL}")
e(f"v_lshlrev_b32 v{ACC+2}, 7, v{ACC+2}")
e(f"s_lshl_b32 s{sKP}, s{sA}, 10")
e(f"s_add_u32 s{sKP}, s{sKP}, {FL_KV}")
e(f"s_lshl_b32 s{sT1}, s{sXCD}, 12")
e(f"s_add_u32 s{sT1}, s{sT1}, s{sKP}")
e(f"s_lshl_b32 s{sKL}, s{sA}, 12")
e(f"s_lshl_b32 s{sKG}, s{sXCD}, 14")
e("s_barrier                             ; B2")
stamp(16)
poll2("L_pollK0", ACC+2, ACC+8, sT1) if opt['pp'] & 2 else poll("L_pollK0", 1, ACC+2, 8, [sT1])
stamp(3)
def kvdma(G):
    e(f"s_add_u32 m0, s{sKL}, {16384*G}")
    e(f"s_add_u32 s{sKS}, s{sKG}, s{sKL}")
    for i in range(4): e(f"buffer_load_dwordx4 v2, {sr(R_WS,4)}, s{sKS} offen offset:{1024*i} sc1 lds")
    if G < 7:
        e(f"s_add_u32 s{sKG}, s{sKG}, 16384")
        e(f"s_and_b32 s{sKG}, s{sKG}, 0x1ffff")
kvdma(0)
if opt['prepoll']:
    cm("one early look at the flags of all other key tiles; its latency overlaps the first tiles' landing")
    e(f"v_lshrrev_b32 v{ACC+4}, 3, v{vL}")
    e(f"v_lshlrev_b32 v{ACC+4}, 12, v{ACC+4}")
    e(f"v_add_u32 v{ACC+4}, v{ACC+4}, v{ACC+2}")
    e(f"buffer_load_dwordx2 {vr(ACC+6,2)}, v{ACC+4}, {sr(R_WS,4)}, s{sKP} offen sc1")
e(f"s_cmp_eq_u32 s{sRET}, 1")
e("s_cbranch_scc0 L_addr_2")
lab("L_addr")
srd(R_SRE, P_SRE, 8388608)
srd(R_SIM, P_SIM, 8388608)
srd(R_XB, P_XB, 2097152)
srd(R_WO, P_WO, 524288)
srd(R_OUT, P_OUT, 4194304)
sT1S, sEB, sTT, sS2, sCB = 98, 99, 100, 101, 79
R_HRE, R_HIM = R_XA, R_W
e(f"s_and_b32 s{sT0}, s{sJ}, 3")
e(f"s_lshl_b32 s{sT1S}, s{sXCD}, 2")
e(f"s_add_u32 s{sT1S}, s{sT1S}, s{sT0}       ; t1s")
e(f"s_lshr_b32 s{sT0}, s{sJ}, 2")
e(f"s_lshl_b32 s{sT0}, s{sT0}, 1")
e(f"s_lshr_b32 s{sEB}, s{sA}, 1")
e(f"s_add_u32 s{sEB}, s{sEB}, s{sT0}         ; eb")
e(f"s_and_b32 s{sTT}, s{sA}, 1               ; tt")
e(f"s_and_b32 s{sT0}, s{sJ}, 3")
e(f"s_lshl_b32 s{sT0}, s{sT0}, 1")
e(f"s_lshl_b32 s{sS2}, s{sXCD}, 3")
e(f"s_add_u32 s{sS2}, s{sS2}, s{sT0}")
e(f"s_add_u32 s{sS2}, s{sS2}, s{sTT}         ; s2 = 8 xcd + 2 (j&3) + (a&1)")
e(f"s_mov_b32 s{sCB}, s{sEB}                 ; cb = 2 (j>>2) + (a>>1)")
srd(R_HRE, P_HRE, 524288)
srd(R_HIM, P_HIM, 524288)
e(f"v_and_b32 v3, 31, v{vL}                ; n")
e(f"v_lshrrev_b32 v4, 5, v{vL}             ; h")
e(f"s_lshl_b32 s{sT0}, s{sTT}, 5")
e(f"v_add_u32 v5, s{sT0}, v3")
e("v_lshlrev_b32 v5, 5, v5")
e(f"v_add_u32 v13, s{sT1S}, v5")
vG0, vG1, vRX, vRW = 240, 242, 244, 246
vDRE, vDIM = 251, 252
vB2A, vB2O, vHA, vWOD, vWOT, vOF, vOUT, vPH, vPK, vF = 4, 3, 15, 14, 0, 5, 6, 7, 12, 13
cm("B1 staging, loader side: wave a fills block a (0,1: x_B rows of s2, s2+1; 2,3: DFT rows of cb, cb+1),")
cm("16 rows x 64 B per load, row r -> rho = 8*bit2 + 4*bit3 + (r&3), 16-B chunk (l&3) ^ ((l>>4)&3)")
e(f"v_bfe_u32 v5, v{vL}, 2, 2")
e(f"v_bfe_u32 v6, v{vL}, 4, 1")
e("v_lshl_add_u32 v5, v6, 3, v5")
e("v_lshl_add_u32 v5, v4, 2, v5            ; rho")
e(f"v_lshrrev_b32 v6, 4, v{vL}")
e(f"v_xor_b32 v6, v6, v{vL}")
e("v_and_b32 v6, 3, v6")
e("v_lshlrev_b32 v6, 4, v6                 ; chunk * 16")
e(f"s_and_b32 s{sT0}, s{sS2}, -2")
e(f"s_add_u32 s{sT0}, s{sT0}, s{sA}")
e(f"s_lshl_b32 s{sT0}, s{sT0}, 10")
e(f"s_and_b32 s{sT1}, s{sCB}, -2")
e(f"s_add_u32 s{sT1}, s{sT1}, s{sTT}")
e(f"s_lshl_b32 s{sT1}, s{sT1}, 14")
e(f"s_add_u32 s{sT2}, s{sT0}, 0x100000")
e(f"s_cmp_lt_u32 s{sA}, 2")
e(f"s_cselect_b32 s{sT3}, 16, 10")
e(f"s_cselect_b32 s{sT0}, s{sT0}, s{sT1}")
e(f"s_cselect_b32 s{sT2}, s{sT2}, s{sT1}")
e(f"s_cselect_b64 {sr(sX,2)}, {sr(P_XB,2)}, {sr(P_HRE,2)}")
e(f"s_cselect_b64 {sr(sST,2)}, {sr(P_XB,2)}, {sr(P_HIM,2)}")
e(f"v_lshlrev_b32 v5, s{sT3}, v5")
e("v_add_u32 v5, v5, v6")
e(f"v_add_u32 v7, s{sT0}, v5")
e(f"v_mov_b32 v{vG0+1}, s{sX+1}")
e(f"v_add_co_u32 v{vG0}, vcc, s{sX}, v7")
e(f"v_add_u32 v7, s{sT2}, v5")
e(f"v_mov_b32 v{vG1+1}, s{sST+1}")
e(f"v_addc_co_u32 v{vG0+1}, vcc, 0, v{vG0+1}, vcc")
e(f"v_add_co_u32 v{vG1}, vcc, s{sST}, v7")
e(f"s_lshl_b32 s{sT1}, s{sT1}, 2")
e(f"s_add_u32 s{sT1}, s{sT1}, s{sA}")
e(f"v_addc_co_u32 v{vG1+1}, vcc, 0, v{vG1+1}, vcc")
e(f"s_cmp_eq_u32 s{sT1}, 2")
e("s_cbranch_scc0 L_nospec0")
cm("cb = 0: the im slot of e = 0 (lanes 0..3 of the second load) carries cos row 256")
e("s_mov_b64 exec, 15")
e("v_add_u32 v7, 0x40000, v6")
e(f"v_mov_b32 v{vG1+1}, s{P_HRE+1}")
e(f"v_add_co_u32 v{vG1}, vcc, s{P_HRE}, v7")
e("s_nop 1")
e(f"v_addc_co_u32 v{vG1+1}, vcc, 0, v{vG1+1}, vcc")
e("s_mov_b64 exec, -1")
lab("L_nospec0")
cm("reader side: row m, chunk (2s+h) ^ ((m>>2)&3)")
e("v_bfe_u32 v5, v3, 2, 2")
e("v_xor_b32 v5, v5, v4")
e("v_lshlrev_b32 v5, 4, v5")
e("v_lshl_add_u32 v5, v3, 6, v5")
e(f"s_lshl_b32 s{sT0}, s{sTT}, 11")
e(f"s_add_u32 s{sT0}, s{sT0}, {STG}")
e(f"v_add_u32 v{vRX}, s{sT0}, v5")
e(f"v_xor_b32 v{vRX+1}, 32, v{vRX}")
e(f"s_lshr_b32 s{sT0}, s{sA}, 1")
e(f"s_lshl_b32 s{sT0}, s{sT0}, 11")
e(f"s_add_u32 s{sT0}, s{sT0}, {STG + 4096}")
e(f"v_add_u32 v{vRW}, s{sT0}, v5")
e(f"v_xor_b32 v{vRW+1}, 32, v{vRW}")
vHW, vHW1, vHR, vHS = 250, 253, BUF, BUF + 1
cm("H regrouping: write row t1, chunk (2h+i) ^ ((t1>>2)&3); read lane-linear; store row l>>2, chunk (l&3) ^ ((l>>4)&3)")
e(f"s_lshl_b32 s{sT0}, s{sA}, 11")
e(f"s_add_u32 s{sT0}, s{sT0}, {STG}")
e("v_bfe_u32 v5, v3, 2, 2")
e("v_lshlrev_b32 v7, 1, v4")
e("v_xor_b32 v5, v5, v7")
e("v_lshlrev_b32 v5, 4, v5")
e("v_lshl_add_u32 v5, v3, 6, v5")
e(f"v_add_u32 v{vHW}, s{sT0}, v5")
e(f"v_xor_b32 v{vHW1}, 16, v{vHW}")
e(f"v_add_u32 v{BUF}, s{sT0}, v2")
e(f"v_lshrrev_b32 v5, 2, v{vL}")
e(f"v_mul_u32_u24 v5, {64*HROW}, v5")
e(f"v_add_u32 v{BUF+1}, v5, v6")
cm("e = 256 store address: t1*64*HROW")
e(f"v_mul_u32_u24 v8, {64*HROW}, v3")
e(f"v_lshl_add_u32 v{vHA}, v4, 5, v8")
cm("wo: DMA source offset and transposing read: row 8h+r, 16-B chunk 4cbk + 2(cc&1) + g, byte 8(cc>>1)")
e(f"v_lshrrev_b32 v8, 3, v{vL}")
e(f"v_and_b32 v9, 7, v{vL}")
e(f"v_bfe_u32 v10, v{vL}, 4, 1")
e("v_lshlrev_b32 v10, 2, v10")
e("v_xor_b32 v9, v9, v10")
e("v_lshlrev_b32 v9, 4, v9")
e(f"v_lshl_add_u32 v{vWOD}, v8, 10, v9")
e(f"v_bfe_u32 v9, v{vL}, 2, 2")
e("v_lshl_add_u32 v9, v4, 3, v9")
e("v_lshlrev_b32 v9, 7, v9")
e(f"v_and_b32 v10, 1, v{vL}")
e(f"v_bfe_u32 v11, v{vL}, 4, 1")
e("v_lshl_add_u32 v10, v10, 1, v11")
e(f"s_lshr_b32 s{sT0}, s{sA}, 1")
e(f"s_lshl_b32 s{sT0}, s{sT0}, 2")
e(f"v_add_u32 v10, s{sT0}, v10")
e(f"v_bfe_u32 v11, v{vL}, 3, 1")
e("v_lshlrev_b32 v11, 2, v11")
e("v_xor_b32 v10, v10, v11")
e("v_lshl_add_u32 v9, v10, 4, v9")
e(f"v_bfe_u32 v11, v{vL}, 1, 1")
e("v_lshl_add_u32 v9, v11, 3, v9")
e(f"v_add_u32 v{vWOT}, {STG}, v9")
cm("output projection: out offset, O fragment address")
e(f"s_lshl_b32 s{sT3}, s{sTB}, 1")
e(f"s_and_b32 s{sT4}, s{sA}, 1")
e(f"s_add_u32 s{sT3}, s{sT3}, s{sT4}")
e(f"s_lshl_b32 s{sT3}, s{sT3}, 5")
e(f"v_add_u32 v8, s{sT3}, v3")
e("v_lshlrev_b32 v8, 11, v8")
e(f"v_lshl_add_u32 v{vOUT}, v4, 5, v8")
e(f"s_lshl_b32 s{sT3}, s{sT4}, 15")
e(f"v_add_u32 v{vOF}, s{sT3}, v2")
e(f"v_lshlrev_b32 v{vPH}, 7, v{vL}")

cm("B2 A rows: e(m) = 32eb + col(m) (eb<8) or 512 - that; col(m) = 16*b2 + 4*(m>>3) + (m&3)")
e("v_and_b32 v8, 3, v3")
e("v_bfe_u32 v9, v3, 2, 1")
e("v_lshl_add_u32 v8, v9, 4, v8")
e("v_lshrrev_b32 v9, 3, v3")
e("v_lshl_add_u32 v8, v9, 2, v8")
e(f"s_lshl_b32 s{sT0}, s{sEB}, 5")
e(f"v_add_u32 v8, s{sT0}, v8")
e("v_sub_u32 v9, 0x200, v8")
e("v_sub_u32 v10, 0x800, v13")
e("v_and_b32 v10, 0x7ff, v10               ; (2048 - ts) & 2047")
e(f"s_cmp_lt_u32 s{sEB}, 8")
e("s_cselect_b64 vcc, 0, -1")
e("v_cndmask_b32 v8, v8, v9, vcc")
e("v_cndmask_b32 v11, v13, v10, vcc")
e("v_lshlrev_b32 v10, 12, v10")
e(f"v_lshl_add_u32 v{vDIM}, v4, 6, v10")
e("v_lshlrev_b32 v10, 12, v13")
e(f"v_lshl_add_u32 v{vDRE}, v4, 6, v10")
e("v_lshlrev_b32 v10, 18, v3")
e(f"v_lshl_add_u32 v{vF}, v4, 4, v10")
e(f"v_lshrrev_b32 v10, 3, v{vL}")
e("v_lshlrev_b32 v10, 5, v10")
e(f"v_and_b32 v9, 7, v{vL}")
e("v_add_u32 v10, v10, v9")
e(f"v_lshlrev_b32 v{vPK}, 7, v10             ; K/V flags 32g + (0..7)")
e("v_lshlrev_b32 v11, 11, v11")
e(f"v_lshl_add_u32 v{vB2O}, v4, 5, v11")
e(f"v_mul_u32_u24 v9, {32*HROW}, v4")
e(f"v_lshl_add_u32 v{vB2A}, v8, 2, v9")
e(f"s_cmp_eq_u32 s{sRET}, 0")
e(f"s_mov_b32 s{sRET}, 2")
e("s_cbranch_scc1 L_tagged")
lab("L_addr_2")
e(f"v_mov_b32 v{vCNT}, {MISC+C_G1}")
vCB = 11 if False else 249
if opt['bytef']: e(f"v_add_u32 v{vCNT+1}, s{sA}, v{vCNT}")
e(f"v_mov_b32 v{vCNT+1}, 1") if not opt['bytef'] else None
e("s_waitcnt vmcnt(0)")
stamp(18)
if opt['prepoll']:
    e(f"v_cmp_ne_u64 vcc, {sr(sNON,2)}, {vr(ACC+6,2)}")
e("s_barrier")
if opt['prepoll']:
    e("s_cmp_eq_u64 vcc, 0")
    e("s_cbranch_scc1 L_kv_all")
poll("L_pollKV", 1, vPK, 8, [sKP], sleep=1)
lab("L_kv_all")
stamp(4)
e("s_setprio 0")
LOW[0] = True
for G in range(1, 3): kvdma(G)
stamp(23)
e("s_waitcnt vmcnt(4)")
stamp(24)
e(f"s_mov_b64 exec, {hex(1 << (1)) if opt['bytef'] else 1}")
e(f"ds_write_b8 v{vCNT+1}, v{vL} offset:{0}" if opt['bytef'] else f"ds_add_u32 v{vCNT}, v{vCNT+1} offset:{0}")
e("s_mov_b64 exec, -1")
for G in range(3, 8): kvdma(G)
XF, WF = D1, D1 + 8
cm("pull this workgroup's 1/32 share of what its XCD reads for the spectral part and of wo towards L2")
e(f"s_lshl_b32 s{sT0}, s{sJ}, 13")
e(f"s_cmp_eq_u32 s{sA}, 1")
e("s_cbranch_scc1 L_pf1")
e(f"s_cmp_eq_u32 s{sA}, 2")
e("s_cbranch_scc1 L_pf2")
e(f"s_cmp_eq_u32 s{sA}, 3")
e("s_cbranch_scc1 L_pf3")
e(f"s_lshl_b32 s{sT0}, s{sJ}, 16")
e(f"s_lshl_b32 s{sT1}, s{sXCD}, 13")
e(f"s_add_u32 s{sT0}, s{sT0}, s{sT1}")
e(f"buffer_load_dword v{D2+8}, v{vPH}, {sr(R_XB,4)}, s{sT0} offen")
e("s_branch L_pf4")
lab("L_pf1")
e(f"buffer_load_dword v{D2+8}, v{vPH}, {sr(R_HRE,4)}, s{sT0} offen")
e("s_branch L_pf4")
lab("L_pf2")
e(f"buffer_load_dword v{D2+8}, v{vPH}, {sr(R_HIM,4)}, s{sT0} offen")
e("s_branch L_pf4")
lab("L_pf3")
e(f"s_lshl_b32 s{sT0}, s{sJ}, 14")
e(f"buffer_load_dword v{D2+8}, v{vPH}, {sr(R_WO,4)}, s{sT0} offen")
lab("L_pf4")
sSL, sWOS, sWOB = 30, 31, 96
e(f"s_lshl_b32 s{sSL}, s{sA}, 11")
e(f"s_add_u32 s{sSL}, s{sSL}, {STG}")
e(f"s_lshl_b32 s{sWOS}, s{sHG}, 7")
e(f"s_lshl_b32 s{sT1}, s{sA}, 14")
e(f"s_add_u32 s{sWOB}, s{sWOS}, s{sT1}")
e(f"s_lshr_b32 s{sT1}, s{sA}, 1")
e(f"s_lshl_b32 s{sT1}, s{sT1}, 6")
e(f"s_add_u32 s{sWOS}, s{sWOS}, s{sT1}")
VM = []
def st_dma(n):
    if n >= 24: return
    for i in range(2):
        if n < 16:
            e(f"s_add_u32 m0, s{sSL}, {8192*(n%3) + 1024*i - 64*n}")
            e("s_nop 0")
            e(f"global_load_lds_dwordx4 {vr(vG0 + 2*i, 2)}, off offset:{64*n}" if not opt['abl'] & 2 else "s_nop 0")
        else:
            e(f"s_add_u32 m0, s{sSL}, {8192*(n%3) + 1024*i}")
            e(f"s_add_u32 s{sT1}, s{sWOB}, {65536*(n-16) + 8192*i}")
            e(f"buffer_load_dwordx4 v{vWOD}, {sr(R_WO,4)}, s{sT1} offen lds")
        VM.append(('st', n))
def st_sync(n, between=None):
    last = max(k for k, t in enumerate(VM) if t == ('st', n))
    e(f"s_waitcnt vmcnt({len(VM) - 1 - last}) lgkmcnt(0)")
    e(f"s_mov_b64 exec, {hex(1 << (n + 1)) if opt['bytef'] else 1}")
    e(f"ds_write_b8 v{vCNT+1}, v{vL} offset:{C_ST - C_G1}" if opt['bytef'] else f"ds_add_u32 v{vCNT}, v{vCNT+1} offset:{C_ST - C_G1}")
    e("s_mov_b64 exec, -1")
    if between: between()
    e(f"s_mov_b32 s{sSPIN}, {SPIN*8}")
    lab(f"L_st{n}")
    e(f"ds_read_b32 v8, v{vCNT} offset:{C_ST - C_G1}")
    e(f"s_sub_u32 s{sSPIN}, s{sSPIN}, 1")
    e(f"s_cbranch_scc1 L_st{n}_done")
    e("s_waitcnt lgkmcnt(0)")
    if (opt['sp'] if n < 16 else opt['spw']): e("s_setprio 2")
    e(f"v_readfirstlane_b32 s{sT4}, v8")
    e("s_setprio 0")
    if opt['bytef']:
        e(f"s_or_b32 s{sT4}, s{sT4}, 0x80808080")
        e(f"s_sub_u32 s{sT4}, s{sT4}, {hex(0x01010101*(n+1))}")
        e(f"s_and_b32 s{sT4}, s{sT4}, 0x80808080")
        e(f"s_cmp_eq_u32 s{sT4}, 0x80808080")
    else: e(f"s_cmp_ge_u32 s{sT4}, {4*(n+1 - (16 if opt['nob'] else 0))}")
    if opt['ss']:
        e(f"s_cbranch_scc1 L_st{n}_done")
        e(f"s_sleep {opt['ss']}")
        e(f"s_branch L_st{n}")
    else: e(f"s_cbranch_scc0 L_st{n}")
    lab(f"L_st{n}_done")
if not opt['nob']: st_dma(0); st_dma(1)
stamp(17)
e("s_waitcnt vmcnt(5)                    ; younger: one pull, two stages" if not opt['nob'] else "s_waitcnt vmcnt(0)")
e(f"s_mov_b64 exec, {hex(1 << (1)) if opt['bytef'] else 1}")
e(f"ds_write_b8 v{vCNT+1}, v{vL} offset:{4}" if opt['bytef'] else f"ds_add_u32 v{vCNT}, v{vCNT+1} offset:{4}")
e("s_mov_b64 exec, -1")
e(f"s_cmp_eq_u32 s{sA}, 3")
e("s_cbranch_scc0 L_pf5")
e(f"s_add_u32 s{sT0}, s{sT0}, 8192")
e(f"buffer_load_dword v{D2+9}, v{vPH}, {sr(R_WO,4)}, s{sT0} offen     ; not counted below: only makes waits stricter")
lab("L_pf5")
stamp(21)
RAW = BP
def b1mfma(n):
    for s_ in range(2 if not opt['nomf'] else 0):
        e(f"v_mfma_f32_32x32x16_bf16 {vr(ACC,16)}, {vr(XF+4*s_,4)}, {vr(WF+4*s_,4)}, {'0' if n==0 and s_==0 else vr(ACC,16)}")
if opt['nob']:
    e("s_branch L_nob1")
NOB0 = len(L)
for n in range(16 if not opt['nob'] else 0):
    st_sync(n, (lambda: b1mfma(n - 1)) if n else None)
    if n + 2 < 16: st_dma(n + 2)
    for s_ in range(2 if not opt['abl'] & 1 else 0):
        e(f"ds_read_b128 {vr(XF+4*s_,4)}, v{vRX+s_} offset:{8192*(n%3)}")
        e(f"ds_read_b128 {vr(WF+4*s_,4)}, v{vRW+s_} offset:{8192*(n%3)}")
    if n == opt['fst']:
        for kb in range(2): e(f"buffer_load_dwordx4 {vr(FR+4*kb,4)}, v{vF}, {sr(R_SRE,4)}, 0 offen offset:{32*kb}")
        for kb in range(2): e(f"buffer_load_dwordx4 {vr(FR+8+4*kb,4)}, v{vF}, {sr(R_SIM,4)}, 0 offen offset:{32*kb}")
        VM += [('F', 0)]*4
e("s_waitcnt lgkmcnt(0)")
b1mfma(15)
stamp(22)
e(f"s_mul_i32 s{sT0}, s{sS2}, {HROW}")
e(f"s_lshl_b32 s{sT1}, s{sCB}, 6")
e(f"s_add_u32 s{sT0}, s{sT0}, s{sT1}")
e(f"s_add_u32 s{sT0}, s{sT0}, {WS_H}")
nop(7)
vZ = D2 + 8 if False else BP
def boost(on):
    e(f"s_setprio {2 if on else 0}"); LOW[0] = not on
boost(opt['eb'] & 1)
for i in range(8): e(f"v_cvt_pk_bf16_f32 v{vZ+i}, v{ACC+2*i}, v{ACC+2*i+1}")
boost(0)
nop(1)
e(f"v_mfma_f32_32x32x16_bf16 {vr(D1,16)}, {vr(vZ,4)}, {vr(FR,4)}, 0")
e(f"v_mfma_f32_32x32x16_bf16 {vr(D2,16)}, {vr(vZ,4)}, {vr(FR+8,4)}, 0")
e(f"v_mfma_f32_32x32x16_bf16 {vr(D1,16)}, {vr(vZ+4,4)}, {vr(FR+4,4)}, {vr(D1,16)}")
e(f"v_mfma_f32_32x32x16_bf16 {vr(D2,16)}, {vr(vZ+4,4)}, {vr(FR+12,4)}, {vr(D2,16)}")
nop(11)
boost(1)
for r in range(8):
    e(f"v_sub_f32 v{ACC+r}, v{D1+r}, v{D2+8+r}")
    e(f"v_add_f32 v{ACC+8+r}, v{D2+r}, v{D1+8+r}")
e(f"s_cmp_eq_u32 s{sCB}, 0")
e("s_cbranch_scc0 L_nospecial")
cm("columns e = 0 and e = 256 (both purely real rows): lanes 0..31, register 0")
e("s_mov_b32 exec_hi, 0")
e(f"v_mov_b32 v{ACC}, v{D1}")
e(f"v_mov_b32 v{ACC+8}, v{D2}")
e(f"v_cvt_pk_bf16_f32 v8, v{D1+8}, v{D2+8}")
e(f"buffer_store_dword v8, v{vHA}, {sr(R_WS,4)}, s{sT0} offen offset:1024 sc1")
e("s_mov_b64 exec, -1")
lab("L_nospecial")
for r in range(8): e(f"v_cvt_pk_bf16_f32 v{D1+r}, v{ACC+r}, v{ACC+8+r}")
boost(0)
cm("lane (t1, h) holds 32 B of row t1: regroup through LDS so that 4 adjacent lanes store one 64-B run")
e(f"ds_write_b128 v{vHW}, {vr(D1,4)} offset:8192")
e(f"ds_write_b128 v{vHW1}, {vr(D1+4,4)} offset:8192")
e("s_waitcnt lgkmcnt(0)")
e(f"ds_read_b128 {vr(D1+8,4)}, v{vHR} offset:8192")
e(f"ds_read_b128 {vr(D1+12,4)}, v{vHR} offset:9216")
e(f"s_add_u32 s{sT1}, s{sT0}, {16*64*HROW}")
e("s_waitcnt lgkmcnt(0)")
e(f"buffer_store_dwordx4 {vr(D1+8,4)}, v{vHS}, {sr(R_WS,4)}, s{sT0} offen sc1")
e(f"buffer_store_dwordx4 {vr(D1+12,4)}, v{vHS}, {sr(R_WS,4)}, s{sT1} offen sc1")
if opt['nob']: lab("L_nob1")
if not opt['nowo']: st_dma(16); st_dma(17)
if opt['nob']: e("s_branch L_nob2")
def rawloads():
    global VM
    cm("rows of the sequence DFT matrices for B2")
    for i in range(4): e(f"buffer_load_dwordx4 {vr(RAW+4*i,4)}, v{vDRE}, {sr(R_SRE,4)}, 0 offen offset:{16*i}")
    for i in range(4): e(f"buffer_load_dwordx4 {vr(RAW+16+4*i,4)}, v{vDIM}, {sr(R_SIM,4)}, 0 offen offset:{16*i}")
    VM += [('raw', 0)]*8
if not opt['rawlate']: rawloads()
e(f"s_lshl_b32 s{sT1}, s2, 7")
e(f"s_add_u32 s{sT1}, s{sT1}, {FL_H}")
stamp(19)
e(f"s_waitcnt vmcnt({4 if opt['rawlate'] else 12})")
stamp(20)
boost(1)
signal("L_sigH", C_H, 3, sT1, 8)
stamp(5)
def bploc(o): return FR + o if o < 16 else (RAW + o - 16 if o < 24 else RAW + 16 + o - 24)
def perms():
    e(f"s_mov_b32 s{sT2}, 0x05040100")
    e(f"s_mov_b32 s{sT3}, 0x07060302")
    for i in range(16):
        e(f"v_perm_b32 v{bploc(2*i)}, v{RAW+16+i}, v{RAW+i}, s{sT2}")
        e(f"v_perm_b32 v{bploc(2*i+1)}, v{RAW+16+i}, v{RAW+i}, s{sT3}")
if not opt['b2tail']: perms()
boost(0)
if opt['rawlate'] and not opt['abl'] & 4: rawloads()
if opt['nob']: lab("L_nob2")
def wo_stage(n):
    if opt['nowo']: return
    st_sync(n)
    st_dma(n + 2)
    for k in range(4):
        ks = 4*(n - 16) + k
        e(f"ds_read_b64_tr_b16 {vr(BUF+4*ks,2)}, v{vWOT} offset:{8192*(n%3) + 2048*k}")
        e(f"ds_read_b64_tr_b16 {vr(BUF+4*ks+2,2)}, v{vWOT} offset:{8192*(n%3) + 2048*k + 512}")
for n in range(16, 16 + opt['wsplit']): wo_stage(n)
stamp(6)
boost(1)
if opt['pre']:
    cm("aux wave 2 touches the O lines this workgroup will write and the 8 flags of its token block")
    e(f"s_cmp_eq_u32 s{sA}, 2")
    e("s_cbranch_scc0 L_nopre")
    e(f"v_lshrrev_b32 v8, 5, v{vL}")
    e(f"v_and_b32 v9, 31, v{vL}")
    e("v_lshlrev_b32 v9, 7, v9")
    e("v_lshl_add_u32 v8, v8, 15, v9")
    e(f"s_lshl_b32 s{sT0}, s{sTB}, 16")
    e(f"s_lshl_b32 s{sT1}, s{sHG}, 12")
    e(f"s_add_u32 s{sT0}, s{sT0}, s{sT1}")
    e(f"s_add_u32 s{sT0}, s{sT0}, {WS_O}")
    e(f"buffer_load_dword v10, v8, {sr(R_WS,4)}, s{sT0} offen sc1")
    e(f"v_and_b32 v9, 0xf80, v{vPH}")
    e(f"s_lshl_b32 s{sT0}, s{sTB}, 12")
    e(f"s_add_u32 s{sT0}, s{sT0}, {FL_O}")
    e(f"buffer_load_dword v11, v9, {sr(R_WS,4)}, s{sT0} offen sc1")
    e("s_waitcnt vmcnt(0)")
    lab("L_nopre")
cm("aux wave 1: XCD ids of the 8 workgroups of this token block: ids 32*hg + (id & 31)")
e(f"s_cmp_eq_u32 s{sA}, 1")
e("s_cbranch_scc0 L_nosame")
e(f"v_and_b32 v8, 7, v{vL}")
e("v_lshlrev_b32 v8, 12, v8")
e(f"s_and_b32 s{sT0}, s2, 31")
e(f"s_lshl_b32 s{sT0}, s{sT0}, 7")
e(f"s_add_u32 s{sT0}, s{sT0}, {FL_X}")
e(f"buffer_load_dwordx2 v[10:11], v8, {sr(R_WS,4)}, s{sT0} offen sc1")
e(f"s_getreg_b32 s{sX}, hwreg(HW_REG_XCC_ID, 0, 4)")
e(f"s_or_b32 s{sX}, s{sX}, s{sNON}")
e(f"s_mov_b32 s{sX+1}, s{sNON+1}")
e(f"v_mov_b32 v9, {MISC+C_SAME}")
e("s_waitcnt vmcnt(0)")
e(f"v_cmp_ne_u64 vcc, {sr(sX,2)}, v[10:11]")
e("s_nop 0")
e("s_cmp_eq_u64 vcc, 0")
e(f"s_cselect_b32 s{sT0}, {1 if opt['fast'] else 0}, 0")
e(f"v_mov_b32 v11, s{sT0}")
e("ds_write_b32 v9, v11")
lab("L_nosame")
if opt['nob'] or opt['abl'] & 4: e("s_branch L_b2done")
cm("B2: wait for the H rows it reads: column groups ebg (direct) or 7-ebg and (8-ebg)&3 (mirrored)")
e(f"s_cmp_eq_u32 s{sA}, 0")
e("s_cbranch_scc0 L_hwait")
e(f"s_lshr_b32 s{sT2}, s{sJ}, 2              ; ebg")
e(f"s_sub_u32 s{sT0}, 7, s{sT2}")
e(f"s_sub_u32 s{sT1}, 8, s{sT2}")
e(f"s_and_b32 s{sT1}, s{sT1}, 3")
e(f"s_cmp_lt_u32 s{sT2}, 4")
e(f"s_cselect_b32 s{sT0}, s{sT2}, s{sT0}")
e(f"s_cselect_b32 s{sT1}, s{sT2}, s{sT1}")
e(f"s_lshl_b32 s{sT0}, s{sT0}, 13")
e(f"s_lshl_b32 s{sT1}, s{sT1}, 13")
e(f"s_add_u32 s{sT0}, s{sT0}, {FL_H}")
e(f"s_add_u32 s{sT1}, s{sT1}, {FL_H}")
poll("L_pollH", 2, vPH, 8, [sT0, sT1], sleep=8)
e(f"v_mov_b32 v10, {MISC+C_HOK}")
e("v_mov_b32 v11, 1")
e("ds_write_b32 v10, v11")
e("s_branch L_hok")
lab("L_hwait")
lds_wait("L_hw", C_HOK, 1, 10, sleep=8)
lab("L_hok")
boost(0)
stamp(7)
e(f"s_mul_i32 s{sT0}, s{sT1S}, {64*HROW}")
e(f"s_add_u32 s{sT0}, s{sT0}, {WS_H}")
AF = 208
for kb in range(8):
    for w in range(4): e(f"buffer_load_dword v{AF+4*kb+w}, v{vB2A}, {sr(R_WS,4)}, s{sT0} offen offset:{w*HROW} sc1")
    if kb < 7: e(f"s_add_u32 s{sT0}, s{sT0}, {4*HROW}")
VM += [('A', 0)]*32
sB2 = 88
def b2compute(low):
    e(f"s_lshl_b32 s{sB2}, s{sEB}, 6")
    e(f"s_add_u32 s{sB2}, s{sB2}, 1024")
    for kb in range(8):
        if low: e(f"s_waitcnt vmcnt({28-4*kb})")
        e(f"v_mfma_f32_32x32x16_bf16 {vr(ACC,16)}, {vr(AF+4*kb,4)}, {vr(bploc(4*kb),4)}, {'0' if kb==0 else vr(ACC,16)}")
    nop(11 if low else 12)
    if low: boost(1)
    for i in range(8): e(f"v_cvt_pk_bf16_f32 v{AF+8+i}, v{ACC+2*i}, v{ACC+2*i+1}")
    if low: b2store()
vRG, vS0, vS1, vO0 = 240, 241, 242, 243
def regroup(src, dst):
    e(f"ds_write_b128 v{vHW}, {vr(src,4)} offset:8192")
    e(f"ds_write_b128 v{vHW1}, {vr(src+4,4)} offset:8192")
    e("s_waitcnt lgkmcnt(0)")
    e(f"ds_read_b128 {vr(dst,4)}, v{vRG} offset:8192")
    e(f"ds_read_b128 {vr(dst+4,4)}, v{vRG} offset:9216")
def rg_addr():
    e(f"v_add_u32 v{vRG}, s{sSL}, v2")
    e(f"v_lshrrev_b32 v8, 4, v{vL}")
    e(f"v_xor_b32 v8, v8, v{vL}")
    e("v_and_b32 v8, 3, v8")
    e("v_lshlrev_b32 v8, 4, v8                 ; chunk * 16")
    e(f"v_lshrrev_b32 v9, 2, v{vL}              ; r")
    e(f"s_lshl_b32 s{sT3}, s{sTB}, 1")
    e(f"s_add_u32 s{sT3}, s{sT3}, s{sTT}")
    e(f"s_lshl_b32 s{sT3}, s{sT3}, 5")
    e(f"v_add_u32 v10, s{sT3}, v9")
    e("v_lshlrev_b32 v10, 11, v10")
    e(f"v_add_u32 v{vO0}, v10, v8")
    e(f"s_lshl_b32 s{sT3}, s{sTT}, 10")
    e(f"s_add_u32 s{sT3}, s{sT3}, s{sT1S}")
    e(f"v_lshl_add_u32 v9, v9, 5, s{sT3}         ; ts")
    e("v_add_u32 v10, 0x200, v9")
    e("v_sub_u32 v11, 0x800, v9")
    e("v_and_b32 v11, 0x7ff, v11")
    e(f"v_sub_u32 v{vS1}, 0x800, v10")
    e(f"s_cmp_lt_u32 s{sEB}, 8")
    e("s_cselect_b64 vcc, 0, -1")
    e("v_cndmask_b32 v9, v9, v11, vcc")
    e(f"v_cndmask_b32 v10, v10, v{vS1}, vcc")
    e(f"v_lshl_add_u32 v{vS0}, v9, 11, v8")
    e(f"v_lshl_add_u32 v{vS1}, v10, 11, v8")
def b2store():
    if opt['rg'] & 1:
        e(f"buffer_store_dwordx4 {vr(AF+16,4)}, v{vS0}, {sr(R_OUT,4)}, s{sB2} offen{OSC}")
        e(f"buffer_store_dwordx4 {vr(AF+20,4)}, v{vS1}, {sr(R_OUT,4)}, s{sB2} offen{OSC}")
        return
    e(f"buffer_store_dwordx4 {vr(AF+8,4)}, v{vB2O}, {sr(R_OUT,4)}, s{sB2} offen{OSC}")
    e(f"buffer_store_dwordx4 {vr(AF+12,4)}, v{vB2O}, {sr(R_OUT,4)}, s{sB2} offen offset:16{OSC}")
if not opt['b2tail']: b2compute(True)
lab("L_b2done")
boost(0)
stamp(8)
for n in range(16 + opt['wsplit'], 24): wo_stage(n)
e("s_waitcnt vmcnt(0) lgkmcnt(0)")
if opt['b2s']:
    boost(1)
    perms()
    rg_addr()
    boost(0)
    e(f"s_lshl_b32 s{sB2}, s{sEB}, 6")
    e(f"s_add_u32 s{sB2}, s{sB2}, 1024")
    for kb in range(8):
        e(f"v_mfma_f32_32x32x16_bf16 {vr(ACC,16)}, {vr(AF+4*kb,4)}, {vr(bploc(4*kb),4)}, {'0' if kb==0 else vr(ACC,16)}")
    nop(11)
    boost(1)
    for i in range(8): e(f"v_cvt_pk_bf16_f32 v{AF+8+i}, v{ACC+2*i}, v{ACC+2*i+1}")
    boost(0)
    regroup(AF+8, AF+16)
    e("s_waitcnt lgkmcnt(0)")
    sc = " sc1" if opt['b2s'] == 1 else ""
    e(f"buffer_store_dwordx4 {vr(AF+16,4)}, v{vS0}, {sr(R_OUT,4)}, s{sB2} offen{sc}")
    e(f"buffer_store_dwordx4 {vr(AF+20,4)}, v{vS1}, {sr(R_OUT,4)}, s{sB2} offen{sc}")
stamp(10)
warm("L_padt", "L_pado_ret")
cm("tail: the attention waves bring the O tile -> LDS 0..")
e("s_barrier                             ; B7")
LOW[0] = False
stamp(9)
if opt['b2tail'] and not opt['nob'] and not opt['abl'] & 20 and not opt['b2s']:
    cm("second spectral stage: operands are in registers, the matrix pipe is free until the O tile lands")
    perms()
    if opt['rg']: rg_addr()
    b2compute(False)
    if opt['rg'] & 1:
        regroup(AF+8, AF+16)
        e("s_waitcnt lgkmcnt(0)")
e(f"s_mov_b32 s{sT0}, s{sWOS}")
stamp(11)
e("s_barrier                             ; B8a")
pad_begin("L_pado")
OF = 144
korder = [h for st in range(4) for h in range(32) if (h % 8) // 2 == st]
PD = opt['opd']
def ofrag(n): e(f"ds_read_b128 {vr(OF+4*(n%8),4)}, v{vOF} offset:{1024*korder[n]}")
for n in range(PD): ofrag(n)
if opt['b2at'] == 0 and opt['b2tail'] and not opt['nob'] and not opt['abl'] & 28 and not opt['b2s']: b2store()
for n in range(32):
    if n + PD in (8, 16, 24):
        e(f"s_barrier                             ; B8.{(n+PD)//8}")
        if n + PD == opt['b2at'] and opt['b2tail'] and not opt['nob'] and not opt['abl'] & 28 and not opt['b2s']: b2store()
    if n + PD < 32:
        ofrag(n + PD)
        e(f"s_waitcnt lgkmcnt({PD})")
    else:
        e(f"s_waitcnt lgkmcnt({31-n})")
    e(f"v_mfma_f32_32x32x16_bf16 {vr(ACC,16)}, {vr(BUF+4*korder[n],4)}, {vr(OF+4*(n%8),4)}, {'0' if n==0 else vr(ACC,16)}")
nop(12)
for i in range(8): e(f"v_cvt_pk_bf16_f32 v{D1+i}, v{ACC+2*i}, v{ACC+2*i+1}")
if opt['rg'] & 2:
    regroup(D1, D1+8)
    e(f"s_add_u32 s{sT1}, s{sT0}, {16*2048}")
    e("s_waitcnt lgkmcnt(1)")
    e(f"buffer_store_dwordx4 {vr(D1+8,4)}, v{vO0}, {sr(R_OUT,4)}, s{sT0} offen{OSC}")
    e("s_waitcnt lgkmcnt(0)")
    e(f"buffer_store_dwordx4 {vr(D1+12,4)}, v{vO0}, {sr(R_OUT,4)}, s{sT1} offen{OSC}")
else:
    e(f"buffer_store_dwordx4 {vr(D1,4)}, v{vOUT}, {sr(R_OUT,4)}, s{sT0} offen{OSC}")
    e(f"buffer_store_dwordx4 {vr(D1+4,4)}, v{vOUT}, {sr(R_OUT,4)}, s{sT0} offen offset:16{OSC}")
pad_end("L_pado", "L_pado_ret")
if opt['dbgt']:
    e(f"s_cmp_lt_u32 s2, 6")
    e("s_cbranch_scc0 L_end")
    e(f"s_cmp_eq_u32 s{sW}, 4")
    e("s_cbranch_scc0 L_end")
    e("s_waitcnt vmcnt(0)")
    e(f"s_memrealtime {sr(sST,2)}")
    e("s_waitcnt lgkmcnt(0)")
    e(f"v_mov_b32 v4, s{sST}")
    e(f"s_lshl_b32 s{sT0}, s2, 2")
    e(f"s_add_u32 s{sT0}, s{sT0}, 40")
    e("s_mov_b64 exec, 1")
    e(f"buffer_store_dword v4, off, {sr(R_DBG,4)}, s{sT0}")
if opt['endat']:
    lab("L_endat")
    e(f"s_memrealtime {sr(sX,2)}")
    e("s_waitcnt lgkmcnt(0)")
    e(f"s_sub_u32 s{sX}, s{sX}, s3")
    e(f"s_cmp_lt_u32 s{sX}, {opt['endat']}")
    e("s_cbranch_scc1 L_endat")
stamp(12)
if opt['stamps']: e("s_waitcnt vmcnt(0)")
stamp(13)
stamp_dump()
lab("L_end")
e("s_endpgm")
lab("L_codeend")
L.append(f""".section .rodata,"a"
.p2align 6
.amdhsa_kernel {NAME}_kernel
  .amdhsa_next_free_vgpr 256
  .amdhsa_next_free_sgpr 102
  .amdhsa_accum_offset 256
  .amdhsa_group_segment_fixed_size 0
  .amdhsa_kernarg_size 104
  .amdhsa_user_sgpr_count 2
  .amdhsa_user_sgpr_kernarg_segment_ptr 1
  .amdhsa_system_sgpr_workgroup_id_x 1
.end_amdhsa_kernel""")

def finish(lines, ncode):
    out = []
    for l in lines:
        if l.strip() == "CODEPF":
            for i in range(ncode // 8192):
                out.append(f"    global_load_dword v200, v[212:213], off")
                out.append(f"    v_add_co_u32 v212, vcc, 0x2000, v212")
                out.append(f"    s_nop 1")
                out.append(f"    v_addc_co_u32 v213, vcc, 0, v213, vcc")
            rem = (ncode % 8192) // 128
            if rem:
                out.append(f"    v_cmp_gt_u32 vcc, {rem}, v{vL}")
                out.append(f"    s_nop 0")
                out.append(f"    s_and_saveexec_b64 {sr(sX,2)}, vcc")
                out.append(f"    global_load_dword v200, v[212:213], off")
                out.append(f"    s_mov_b64 exec, -1")
        else: out.append(l)
    return "\n".join(out) + "\n"
import subprocess, os, hazcheck
ncode = 16384
for _ in range(3):
    txt = finish(L, ncode)
    open("_g.s", "w").write(txt)
    r = subprocess.run(["clang", "-x", "assembler", "-target", "amdgcn-amd-amdhsa", "-mcpu=gfx950", "-c", "_g.s", "-o", "_g.o"], capture_output=True, text=True)
    if r.returncode: print(r.stderr[:3000]); sys.exit(1)
    sz = subprocess.run(["llvm-objdump", "-h", "_g.o"], capture_output=True, text=True).stdout
    n = [int(x.split()[2], 16) for x in sz.splitlines() if " .text " in x][0]
    if n // 128 * 128 == ncode: break
    ncode = n // 128 * 128
open(sys.argv[1], "w").write(txt)
print(hazcheck.check(txt), "hazards; code bytes", n)
```

```python
import sys, struct
NAME = "concat_heads__grouped_kv_mqa__spectral_fnet__prompt"
opt = dict(w3late=0, alow=0, stamps=0, prioA=1, prioX=2, boost=1, force_fb=0, dbgt=0, dry=0, codepf=0, shift=102, outsc1=0, cluster=1, fast=1, nob=0, l2pf=0, wo1=4, hold=1, pre=1, pads=0, dxcc=-1, dus=300, endat=0, omode=1, b2tail=1, kvd=3, h1=1, h2=4, fs=3, ntc=9, nowo=0, nodsw=0, nomf=0, sp=1, ss=1, wsplit=8, attpf=0, rawlate=1, dftpf=1, fst=6, spw=0, eb=1, qloop=0, padt=0, opd=4, b2at=8, abl=0, preo=0, rg=0, prepoll=0, lwarm=0, csync=0, bytef=0, first=1, b2s=0, mt=1, win=8, win2=8, pa=0, baat=0, stall=0, resc=2, vmask=0, r2=0, pp=0)
for a in sys.argv[2:]:
    k, v = a.split('='); opt[k] = int(v)

L = []
DOC = '''; ---------------------------------------------------------------------------------------------------------------
; One persistent launch, 256 workgroups (one per CU) x 8 waves.  Workgroup id -> xcd = id & 7 (locality hint only),
;       S^T = K Q^T + C by MFMA (C = -(stand-in max + shift), scale folded into Q), v_exp_f32 in place, and
;       P V by the 2:4 sparse MFMA whose index picks the upper halves of the fp32 registers (bf16 by truncation);
;       a row of constants in the V operand yields the row sum.  After 14 key tiles the reference is raised by a
;   waves 4..7 ("aux"): K or V projection of 16 tokens, K/V streaming into LDS, the spectral part
; Hand-offs between workgroups go through d_ws: data stores, s_waitcnt, then a flag (one 128-B line each) holding
; flags from stale ones.  Stores are write-through (sc1) unless all workgroups of the hand-off reported the same XCD;
; ---------------------------------------------------------------------------------------------------------------'''
def e(s=""): L.append("    " + s)
def lab(s): L.append(s + ":")
def cm(s): L.append("    ; " + s)
def vr(a, n): return f"v[{a}:{a+n-1}]" if n > 1 else f"v{a}"
def sr(a, n): return f"s[{a}:{a+n-1}]" if n > 1 else f"s{a}"
def nop(n):
    while n > 0:
        k = min(n, 16); e(f"s_nop {k-1}"); n -= k
def f2u(x): return struct.unpack('<I', struct.pack('<f', x))[0]
OSC = " sc1" if opt['outsc1'] else ""

W_OFF = 0
X_OFF, XROW = 16384, 1040
WQ_OFF = 82944
ONES_OFF = 155648
MISC = ONES_OFF + 1024
STG = 131072
LDS_BYTES = 163840
C_KV, C_H, C_O, C_TAG, C_HOK, C_SAME, C_CR, C_QA, C_QB, C_G1, C_KVL, C_ST = 0, 4, 8, 16, 24, 28, 32, 36, 40, 44, 48, 52
WS_KV, WS_O, WS_H, WS_FL = 0, 0x40000, 0x240000, 0x480000
FL_KV, FL_H, FL_X, FL_O = WS_FL, WS_FL + 0x8000, WS_FL + 0x10000, WS_FL + 0x20000
WS_STAMP = 0x4C0000
WS_SIZE = 0x560000
HROW = 1152
FOUR = 0x01010101 if opt['bytef'] else 4
SPIN = 400000
VSCALE = 64
P_XA, P_WQ, P_WK, P_WV, P_WO, P_XB, P_SRE, P_SIM = 4, 6, 8, 10, 12, 14, 16, 18
P_HRE, P_HIM, P_OUT, P_DBG, P_WS = 20, 22, 24, 26, 28
R_XA, R_WQ, R_W, R_WS, R_WO, R_XB, R_SRE, R_SIM, R_OUT, R_DBG = 32, 36, 40, 44, 48, 52, 56, 60, 64, 68
sW, sXCD, sJ, sTB, sHG, sTHP, sA = 72, 73, 74, 75, 76, 77, 78
sT0, sT1, sT2, sT3, sT4 = 80, 81, 82, 83, 84
sDRY = 85
sNON = 86
sIT, sINC, sFB, sSPIN = 88, 89, 90, 91
sX = 92
sST = 94
sBARN = 96
sRET = 90

def srd(r, p, size):
    e(f"s_mov_b32 s{r}, s{p}")
    e(f"s_and_b32 s{r+1}, s{p+1}, 0xffff")
    e(f"s_mov_b32 s{r+2}, {hex(size)}")
    e(f"s_mov_b32 s{r+3}, 0x20000")

LOW = [False]
vL = 1
def stamp(idx):
    if not opt['stamps']: return
    e(f"s_memrealtime {sr(sST,2)}")
    e(f"s_memtime {sr(sX,2)}")
    e("s_waitcnt lgkmcnt(0)")
    if LOW[0]: e("s_setprio 2")
    e(f"v_writelane_b32 v254, s{sST}, {idx}")
    e(f"v_writelane_b32 v255, s{sX}, {idx}")
    if LOW[0]: e("s_setprio 0")
def stamp_dump():
    if not opt['stamps']: return
    e(f"s_lshl_b32 s{sST}, s2, 3")
    e(f"s_add_u32 s{sST}, s{sST}, s{sW}")
    e(f"s_lshl_b32 s{sST}, s{sST}, 8")
    e(f"s_add_u32 s{sST}, s{sST}, {WS_STAMP}")
    e(f"v_lshlrev_b32 v253, 3, v{vL}")
    e("s_mov_b32 exec_hi, 0")
    e(f"buffer_store_dwordx2 v[254:255], v253, {sr(R_WS,4)}, s{sST} offen")

PADS = {}
def pad_begin(name): PADS[name] = len(L)
def isize(l):
    t = l.strip()
    if not t or t.startswith((';', '.')) or t.endswith(':'): return 0
    t = t.split(';')[0]
    mn = t.split()[0]
    if mn.startswith(('buffer_', 'global_', 'ds_', 'v_mfma', 'v_smfmac', 's_load', 's_mem')): return 8
    if mn.startswith('v_') and (mn.endswith('_e64') or mn in ('v_lshl_add_u32', 'v_bfe_u32', 'v_perm_b32', 'v_max3_f32', 'v_cvt_pk_bf16_f32', 'v_writelane_b32', 'v_mul_u32_u24', 'v_cmp_ne_u64')): return 8
    import re as _r
    for o in _r.findall(r'(?<![\w\[:])(-?0x[0-9a-f]+|-?\d+)(?![\w\]:])', (t.split(None, 1) + [''])[1]):
        v = int(o, 0)
        if not mn.startswith(('s_waitcnt', 's_nop', 's_sleep', 's_setprio')) and not -16 <= v <= 64: return 8
    return 4
def pad_end(name, ret):
    a = PADS[name]
    if not (opt['pads'] if name == "L_padq" else opt['padt']):
        return
    body = L[a:]; del L[a:]
    n = 0; acc = 0
    L.append(f"{name}_0:"); L.append(f"    s_cbranch_execz {name}_1")
    for l in body:
        z = isize(l)
        prev = L[-1].strip()
        if acc + z > 56 and not prev.startswith(('s_mov_b32 m0', 's_add_u32 m0')):
            n += 1; L.append(f"{name}_{n}:"); L.append(f"    s_cbranch_execz {name}_{n+1}"); acc = 0
        L.append(l); acc += z
    n += 1
    L.append(f"{name}_{n}:"); L.append(f"    s_cbranch_execz {ret}")
def warm(name, ret):
    if not (opt['pads'] if name == "L_padq" else opt['padt']): return
    e("s_mov_b64 exec, 0")
    e(f"s_branch {name}_0")
    lab(ret)
    e("s_mov_b64 exec, -1")

def dma(voff, srdr, soff, ldsaddr_s, extra=""):
    e(f"s_mov_b32 m0, s{ldsaddr_s}")
    e("s_nop 0")
    e(f"buffer_load_dwordx4 v{voff}, {sr(srdr,4)}, s{soff} offen {extra}lds")
def dma_run(n, voff, srdr, soff, lds_s, dsrc, dlds, extra=""):
    for i in range(n):
        e(f"s_mov_b32 m0, s{lds_s}")
        if i < n - 1: e(f"s_add_u32 s{lds_s}, s{lds_s}, {dlds}")
        else: e("s_nop 0")
        e(f"buffer_load_dwordx4 v{voff}, {sr(srdr,4)}, s{soff} offen {extra}lds")
        if i < n - 1: e(f"s_add_u32 s{soff}, s{soff}, {dsrc}")

def poll(name, nloads, voff, dst, soffs, sleep=0):
    e(f"s_mov_b32 s{sSPIN}, {SPIN}")
    lab(name)
    for i in range(nloads):
        e(f"buffer_load_dwordx2 {vr(dst+2*i,2)}, v{voff}, {sr(R_WS,4)}, s{soffs[i]} offen sc1")
    e(f"s_sub_u32 s{sSPIN}, s{sSPIN}, 1")
    e(f"s_cmp_eq_u32 s{sSPIN}, 0")
    e(f"s_cbranch_scc1 {name}_done")
    e("s_waitcnt vmcnt(0)")
    e(f"v_cmp_ne_u64 vcc, {sr(sNON,2)}, {vr(dst,2)}")
    for i in range(1, nloads):
        e(f"v_cmp_ne_u64 {sr(sX,2)}, {sr(sNON,2)}, {vr(dst+2*i,2)}")
        e("s_nop 0")
        e(f"s_or_b64 vcc, vcc, {sr(sX,2)}")
    e("s_nop 0")
    e("s_cmp_eq_u64 vcc, 0")
    if sleep:
        e(f"s_cbranch_scc1 {name}_done")
        e(f"s_sleep {sleep}")
        e(f"s_branch {name}")
    else:
        e(f"s_cbranch_scc0 {name}")
    lab(name + "_done")
    e("s_waitcnt vmcnt(0)")

def poll2(name, voff, dst, soff):
    ld = lambda d: e(f"buffer_load_dwordx2 {vr(d,2)}, v{voff}, {sr(R_WS,4)}, s{soff} offen sc1")
    e(f"s_mov_b32 s{sSPIN}, {SPIN}")
    ld(dst)
    e("s_sleep 2")
    lab(name)
    for a, b in ((dst + 2, dst), (dst, dst + 2)):
        ld(a)
        e("s_waitcnt vmcnt(1)")
        e(f"v_cmp_ne_u64 vcc, {sr(sNON,2)}, {vr(b,2)}")
        e(f"s_sub_u32 s{sSPIN}, s{sSPIN}, 1")
        e(f"s_cbranch_scc1 {name}_done")
        e("s_cmp_eq_u64 vcc, 0")
        if a == dst: e(f"s_cbranch_scc0 {name}")
        else: e(f"s_cbranch_scc1 {name}_done")
    lab(name + "_done")

def lds_wait(name, off, value, tmp, sleep=0):
    e(f"s_mov_b32 s{sSPIN}, {SPIN*8}")
    e(f"v_mov_b32 v{tmp}, {MISC + off}")
    lab(name)
    e(f"ds_read_b32 v{tmp+1}, v{tmp}")
    e(f"s_sub_u32 s{sSPIN}, s{sSPIN}, 1")
    e(f"s_cmp_eq_u32 s{sSPIN}, 0")
    e(f"s_cbranch_scc1 {name}_done")
    e("s_waitcnt lgkmcnt(0)")
    e(f"v_readfirstlane_b32 s{sT4}, v{tmp+1}")
    e("s_nop 0")
    e(f"s_cmp_ge_u32 s{sT4}, {value}")
    if sleep:
        e(f"s_cbranch_scc1 {name}_done")
        e(f"s_sleep {sleep}")
        e(f"s_branch {name}")
    else:
        e(f"s_cbranch_scc0 {name}")
    lab(name + "_done")
    e("s_waitcnt lgkmcnt(0)")
def lds_add(off, tmp):
    e(f"v_mov_b32 v{tmp}, {MISC + off}")
    e(f"v_mov_b32 v{tmp+1}, 1")
    e("s_mov_b64 exec, 1")
    e(f"ds_add_u32 v{tmp}, v{tmp+1}")
    e("s_mov_b64 exec, -1")
def tag_from_lds(name, tmp):
    e(f"s_mov_b32 s{sSPIN}, {SPIN*8}")
    e(f"v_mov_b32 v{tmp}, {MISC+C_TAG}")
    lab(name)
    e(f"ds_read_b64 {vr(tmp+2,2)}, v{tmp}")
    e(f"s_sub_u32 s{sSPIN}, s{sSPIN}, 1")
    e(f"s_cmp_eq_u32 s{sSPIN}, 0")
    e(f"s_cbranch_scc1 {name}_done")
    e("s_waitcnt lgkmcnt(0)")
    e(f"v_readfirstlane_b32 s{sNON}, v{tmp+2}")
    e(f"v_readfirstlane_b32 s{sNON+1}, v{tmp+3}")
    e(f"s_cmp_lg_u32 s{sNON}, 0")
    e(f"s_cbranch_scc1 {name}_done")
    e(f"s_sleep {opt['fs']}")
    e(f"s_branch {name}")
    lab(name + "_done")
    e("s_waitcnt lgkmcnt(0)")

def signal(name, ctr_off, last, flag_soff_s, tmp, lo=None, plain_if=None):
    e(f"v_mov_b32 v{tmp}, {MISC + ctr_off}")
    e(f"v_mov_b32 v{tmp+1}, 1")
    e(f"s_mov_b64 exec, 1")
    e(f"ds_add_rtn_u32 v{tmp+1}, v{tmp}, v{tmp+1}")
    e(f"v_mov_b32 v{tmp+2}, s{sNON if lo is None else lo}")
    e(f"v_mov_b32 v{tmp+3}, s{sNON+1}")
    e("s_waitcnt lgkmcnt(0)")
    e(f"v_readfirstlane_b32 s{sT4}, v{tmp+1}")
    e("s_nop 0")
    e(f"s_cmp_eq_u32 s{sT4}, {last}")
    e(f"s_cbranch_scc0 {name}_nf")
    if plain_if is not None:
        e(f"s_cmp_eq_u32 s{plain_if}, 0")
        e(f"s_cbranch_scc1 {name}_wt")
        e(f"buffer_store_dwordx2 {vr(tmp+2,2)}, off, {sr(R_WS,4)}, s{flag_soff_s}")
        if opt['omode'] < 2: e(f"s_branch {name}_nf")
        lab(name + "_wt")
    e(f"buffer_store_dwordx2 {vr(tmp+2,2)}, off, {sr(R_WS,4)}, s{flag_soff_s} sc1")
    lab(name + "_nf")
    e("s_mov_b64 exec, -1")

hdr = open(f"cdna_kernels/{NAME}.s.ref").read().split("; Override launch")[0]
L.append(hdr.rstrip())
L.append(f"; @launch grid=(256,1,1) block=(512,1,1) lds={LDS_BYTES}")
L.append('.amdgcn_target "amdgcn-amd-amdhsa--gfx950"')
L.append(DOC)
L.append(".text")
L.append(f".globl {NAME}_kernel")
L.append(".p2align 8")
L.append(f".type {NAME}_kernel,@function")
lab(f"{NAME}_kernel")
e("s_cmp_ge_u32 s2, 256")
e("s_cbranch_scc1 L_end")
e("s_load_dwordx16 s[4:19], s[0:1], 0")
e("s_load_dwordx8 s[20:27], s[0:1], 64")
e("s_load_dwordx2 s[28:29], s[0:1], 96")
e(f"s_memrealtime {sr(sNON,2)}")
if opt['endat'] or opt['baat']:
    e("s_waitcnt lgkmcnt(0)")
    e(f"s_mov_b32 s3, s{sNON}")
if opt['dxcc'] >= 0:
    e(f"s_getreg_b32 s{sT0}, hwreg(HW_REG_XCC_ID, 0, 4)")
    e(f"s_cmp_eq_u32 s{sT0}, {opt['dxcc']}") if opt['dxcc'] < 8 else e(f"s_cmp_eq_u32 s{sT0}, s{sT0}")
    e("s_cbranch_scc0 L_nodelay")
    e("s_waitcnt lgkmcnt(0)")
    lab("L_delay")
    e(f"s_memrealtime {sr(sX,2)}")
    e("s_waitcnt lgkmcnt(0)")
    e(f"s_sub_u32 s{sX}, s{sX}, s{sNON}")
    e(f"s_cmp_lt_u32 s{sX}, {opt['dus']}")
    e("s_cbranch_scc1 L_delay")
    lab("L_nodelay")
e("v_lshrrev_b32 v2, 6, v0")
e(f"v_and_b32 v{vL}, 63, v0")
e(f"v_readfirstlane_b32 s{sW}, v2")
e(f"s_and_b32 s{sXCD}, s2, 7")
e(f"s_lshr_b32 s{sJ}, s2, 3")
e(f"s_and_b32 s{sT0}, s{sJ}, 3")
e(f"s_lshl_b32 s{sTB}, s{sXCD}, 2")
e(f"s_add_u32 s{sTB}, s{sTB}, s{sT0}")
e(f"s_lshr_b32 s{sHG}, s{sJ}, 2")
e(f"s_lshr_b32 s{sTHP}, s{sHG}, 1")
e(f"s_and_b32 s{sA}, s{sW}, 3")
e(f"v_lshlrev_b32 v2, 4, v{vL}          ; v2 = lane*16")
cm("LDS init while the kernel arguments load: ones / zeros window (even 16-B chunks 2^64, odd chunks 0), counters")
ONE = (127 + VSCALE) << 7
e("v_lshrrev_b32 v5, 3, v0")
e("v_cmp_ne_u32 vcc, 8, v5")
e("v_and_b32 v4, 1, v0")
e("v_add_u32 v4, -1, v4")
e(f"v_and_b32 v4, {hex(ONE << 16 | ONE)}, v4")
e("v_cndmask_b32 v4, 0, v4, vcc")
e(f"v_lshlrev_b32 v3, 4, v0")
e("v_mov_b32 v5, v4")
e("v_mov_b32 v6, v4")
e("v_mov_b32 v7, v4")
e(f"v_add_u32 v3, {ONES_OFF}, v3")
e("ds_write_b128 v3, v[4:7]")
e(f"s_mov_b32 s{R_XA+2}, 0x200000")
e(f"s_mov_b32 s{R_XA+3}, 0x20000")
def aux_first():
    if opt['prioX']: e(f"s_setprio {opt['prioX']}")
    cm("critical loads: projection weight (wk for even hg, wv for odd), x rows 16*blk + 4a + i")
    e(f"s_lshl_b32 s{sT0}, s{sTHP}, 4")
    e(f"s_lshl_b32 s{sT1}, s{sA}, 2")
    e(f"s_add_u32 s{sT0}, s{sT0}, s{sT1}")
    e(f"s_mul_i32 s{sT1}, s{sT0}, {XROW}")
    e(f"s_add_u32 s{sT1}, s{sT1}, {X_OFF}")
    e(f"s_lshl_b32 s{sT2}, s{sTB}, 6")
    e(f"s_add_u32 s{sT2}, s{sT2}, s{sT0}")
    e(f"s_lshl_b32 s{sT2}, s{sT2}, 10")
    e(f"s_lshl_b32 s{sT3}, s{sA}, 12")
    e(f"s_mov_b32 s{R_W+2}, 16384")
    e(f"s_mov_b32 s{R_W+3}, 0x20000")
    e(f"s_mov_b32 m0, s{sT3}")
    e(f"s_bitcmp1_b32 s{sHG}, 0")
    e("s_waitcnt lgkmcnt(0)")
    e(f"s_cselect_b32 s{R_W}, s{P_WV}, s{P_WK}")
    e(f"s_cselect_b32 s{R_W+1}, s{P_WV+1}, s{P_WK+1}")
    e(f"s_and_b32 s{R_W+1}, s{R_W+1}, 0xffff")
    e(f"s_mov_b32 s{R_XA}, s{P_XA}")
    e(f"s_and_b32 s{R_XA+1}, s{P_XA+1}, 0xffff")
    srd(R_DBG, P_DBG, 256)
    cm("workgroup 0, aux wave 3 publishes this launch's hand-off tag")
    e(f"s_or_b32 s{sNON}, s{sNON}, 16")
    e(f"s_and_b32 s{sNON}, s{sNON}, -16")
    e(f"s_lshl_b32 s{sT0}, s2, 3")
    e(f"s_add_u32 s{sT0}, s{sT0}, s{sW}")
    e(f"s_cmp_eq_u32 s{sT0}, 7")
    e("s_cbranch_scc0 L_notag")
    e(f"v_mov_b32 v4, s{sNON}")
    e(f"v_mov_b32 v5, s{sNON+1}")
    e("s_mov_b64 exec, 1")
    e(f"buffer_store_dwordx2 v[4:5], off, {sr(R_DBG,4)}, 0 sc1")
    e("s_mov_b64 exec, -1")
    lab("L_notag")
    NT = lambda b: "nt " if opt['ntc'] >> b & 1 else ""
    for i in range(4): e(f"buffer_load_dwordx4 v2, {sr(R_W,4)}, s{sT3} offen offset:{1024*i} {NT(1)}lds")
    dma_run(4, 2, R_XA, sT2, sT1, 1024, XROW, NT(0))
    stamp(0)
    srd(R_WS, P_WS, WS_SIZE)
    if opt['dbgt']:
        e(f"s_cmp_lt_u32 s2, 8")
        e("s_cbranch_scc0 L_nodbg0")
        e(f"s_cmp_eq_u32 s{sW}, 6")
        e("s_cbranch_scc0 L_nodbg0")
        e(f"v_mov_b32 v4, s{sNON}")
        e(f"s_lshl_b32 s{sT0}, s2, 2")
        e(f"s_add_u32 s{sT0}, s{sT0}, 8")
        e("s_mov_b64 exec, 1")
        e(f"buffer_store_dword v4, off, {sr(R_DBG,4)}, s{sT0}")
        e("s_mov_b64 exec, -1")
        lab("L_nodbg0")
    e("s_barrier                             ; B1")
if opt['first']:
    cm("the aux waves' first loads are the longest dependency chain: their code directly follows the entry")
    e(f"s_cmp_lt_u32 s{sW}, 4")
    e("s_cbranch_scc1 L_att0")
    aux_first()
    e("s_branch L_aux")
    lab("L_att0")
else:
    e(f"s_cmp_ge_u32 s{sW}, 4")
    e("s_cbranch_scc1 L_aux")

cm("wq slice (8 rows x 128 B per load, 16-B chunks swizzled by row bit 1); quarter tb&3 first: distinct among its 4 sharers")
e(f"v_lshrrev_b32 v3, 3, v{vL}          ; r")
e(f"v_and_b32 v4, 7, v{vL}")
e(f"v_bfe_u32 v5, v{vL}, 4, 1           ; (r>>1)&1")
e("v_lshlrev_b32 v5, 2, v5")
e("v_xor_b32 v4, v4, v5")
e("v_lshlrev_b32 v4, 4, v4")
e("v_lshl_add_u32 v13, v3, 10, v4")
e(f"s_mov_b32 s{R_WQ+2}, 0x80000")
e(f"s_mov_b32 s{R_WQ+3}, 0x20000")
def wq_addr(q):
    e(f"s_add_u32 s{sT0}, s{sJ}, {q}")
    e(f"s_and_b32 s{sT0}, s{sT0}, 3")
    e(f"s_lshl_b32 s{sT0}, s{sT0}, 2")
    e(f"s_add_u32 s{sT0}, s{sT0}, s{sW}")
    e(f"s_lshl_b32 s{sT2}, s{sT0}, 15")
    e(f"s_lshl_b32 s{sT1}, s{sHG}, 7")
    e(f"s_add_u32 s{sT2}, s{sT2}, s{sT1}")
    e(f"s_lshl_b32 s{sT1}, s{sT0}, 12")
    e(f"s_add_u32 s{sT1}, s{sT1}, {WQ_OFF}")
wq_addr(0)
e("s_waitcnt lgkmcnt(0)")
e(f"s_mov_b32 s{R_WQ}, s{P_WQ}")
e(f"s_and_b32 s{R_WQ+1}, s{P_WQ+1}, 0xffff")
e(f"s_mov_b32 s{R_XA}, s{P_XA}")
e(f"s_and_b32 s{R_XA+1}, s{P_XA+1}, 0xffff")
stamp(0)
e("s_barrier")
NT = lambda b: "nt " if opt['ntc'] >> b & 1 else ""
dma_run(4, 13, R_WQ, sT2, sT1, 8192, 1024, NT(2))
cm("the 48 rows of the x tile the aux waves do not load: blocks blk+1, blk+2, blk+3 (mod 4), 4 rows per wave each")
def x_addr(d):
    e(f"s_add_u32 s{sT0}, s{sTHP}, {d}")
    e(f"s_and_b32 s{sT0}, s{sT0}, 3")
    e(f"s_lshl_b32 s{sT0}, s{sT0}, 2")
    e(f"s_add_u32 s{sT0}, s{sT0}, s{sW}")
    e(f"s_lshl_b32 s{sT0}, s{sT0}, 2          ; first row")
    e(f"s_mul_i32 s{sT1}, s{sT0}, {XROW}")
    e(f"s_add_u32 s{sT1}, s{sT1}, {X_OFF}")
    e(f"s_lshl_b32 s{sT2}, s{sTB}, 6")
    e(f"s_add_u32 s{sT2}, s{sT2}, s{sT0}")
    e(f"s_lshl_b32 s{sT2}, s{sT2}, 10")
def hold(name, ctr, val):
    lds_wait(name, ctr, val, 8, sleep=opt['fs'])
seq = [('x', 1), ('x', 2), ('x', 3), ('q', 1), ('q', 2), ('q', 3)]
for n, (kind, d) in enumerate(seq):
    (x_addr if kind == 'x' else wq_addr)(d)
    if opt['win']:
        W = opt['win'] if n < 2 else opt['win2']
        if 4*(n + 2) > W: e(f"s_waitcnt vmcnt({W - 4})")
    else:
        if n == opt['h1']: hold("L_hold1", C_CR, FOUR)
        if n == opt['h2']: hold("L_hold2", C_KV, 1)
    if kind == 'x': dma_run(4, 2, R_XA, sT2, sT1, 1024, XROW, NT(3))
    else: dma_run(4, 13, R_WQ, sT2, sT1, 8192, 1024, NT(4))
stamp(7)
srd(R_WS, P_WS, WS_SIZE)
SA, SB, OA, OB, CA, CB = 16, 32, 48, 64, 80, 96
QA, QB, K0, K1, V0, V1 = 112, 116, 120, 124, 128, 136
vIDX, vK, vV = 144, 145, 146
vINC, vV0, vSAME = 147, 150, 151
vXA, vWA = 148, 149
FB = 152
cm("Q-projection addresses")
e(f"s_and_b32 s{sT0}, s{sW}, 1            ; th")
e(f"s_lshr_b32 s{sT1}, s{sW}, 1           ; hp")
e(f"v_and_b32 v3, 31, v{vL}")
e(f"s_lshl_b32 s{sT2}, s{sT0}, 5")
e(f"v_add_u32 v3, s{sT2}, v3")
e(f"v_mul_u32_u24 v3, {XROW}, v3")
e(f"v_lshrrev_b32 v4, 5, v{vL}           ; h")
e(f"v_lshl_add_u32 v14, v4, 4, v3")
e(f"v_bfe_u32 v5, v{vL}, 2, 2            ; r")
e("v_lshl_add_u32 v6, v4, 3, v5          ; 8h + r")
e("v_lshlrev_b32 v6, 7, v6")
e(f"v_bfe_u32 v7, v{vL}, 4, 1            ; g")
e(f"v_and_b32 v8, 1, v{vL}")
e("v_lshl_add_u32 v7, v7, 1, v8          ; 2g + (cc&1)")
e(f"s_lshl_b32 s{sT2}, s{sT1}, 2")
e(f"v_add_u32 v7, s{sT2}, v7")
e(f"v_bfe_u32 v8, v{vL}, 3, 1            ; (r>>1)&1")
e("v_lshlrev_b32 v8, 2, v8")
e("v_xor_b32 v7, v7, v8")
e("v_lshl_add_u32 v6, v7, 4, v6")
e(f"v_bfe_u32 v8, v{vL}, 1, 1")
e("v_lshl_add_u32 v6, v8, 3, v6")
e(f"v_add_u32 v{vWA}, {WQ_OFF}, v6")
e(f"v_add_u32 v{vXA}, {X_OFF}, v14")
cm("attention LDS addresses; V: rows 0..15 -> tile data, lanes 16,20 -> 2^64, other lanes -> 0")
e(f"v_mov_b32 v{vIDX}, 0xdddddddd")
e(f"v_bfe_u32 v5, v{vL}, 4, 1")
e(f"v_xor_b32 v5, 1, v5                   ; 1 for V rows, 0 for the constant lanes")
e(f"v_lshlrev_b32 v{vINC}, 13, v5")
e(f"v_and_b32 v8, 15, v{vL}")
e("v_lshlrev_b32 v9, 8, v4")
e("v_lshl_add_u32 v8, v8, 4, v9")
e(f"v_and_b32 v9, 31, v{vL}")
e("v_add_u32 v10, -20, v9")
e("v_cmp_gt_u32 vcc, 8, v10")
e("v_and_b32 v9, 11, v9")
e("v_min_u32 v9, 1, v9")
e("v_cndmask_b32 v10, 0, 64, vcc")
e(f"v_cmp_eq_u32 vcc, 1, v5")
e("v_lshl_add_u32 v9, v9, 4, v10")
e(f"v_add_u32 v9, {ONES_OFF - 1024}, v9")
e(f"v_cndmask_b32 v{vV0}, v9, v8, vcc")
cm("O fragment destination and flag slot")
sOD, sOF = 97, 98
e(f"s_and_b32 s{sT0}, s{sW}, 1")
e(f"s_lshl_b32 s{sT1}, s{sTB}, 1")
e(f"s_add_u32 s{sT0}, s{sT0}, s{sT1}")
e(f"s_lshl_b32 s{sT0}, s{sT0}, 5          ; (tb*2+th)*32")
e(f"s_lshl_b32 s{sT1}, s{sHG}, 2")
e(f"s_add_u32 s{sT0}, s{sT0}, s{sT1}")
e(f"s_and_b32 s{sT1}, s{sW}, 2")
e(f"s_add_u32 s{sT0}, s{sT0}, s{sT1}")
e(f"s_lshl_b32 s{sT0}, s{sT0}, 10")
e(f"s_add_u32 s{sOD}, s{sT0}, {WS_O}")
e(f"s_lshl_b32 s{sT1}, s{sTB}, 3")
e(f"s_add_u32 s{sT1}, s{sT1}, s{sHG}")
e(f"s_lshl_b32 s{sT1}, s{sT1}, 2")
e(f"s_add_u32 s{sT1}, s{sT1}, s{sW}")
e(f"s_lshl_b32 s{sT1}, s{sT1}, 7")
e(f"s_add_u32 s{sOF}, s{sT1}, {FL_O}")
e(f"s_mov_b32 s{sFB}, 0")
e(f"s_mov_b32 s{sBARN}, {hex(0xa | (1 << opt['r2'] if opt['r2'] else 0))}")
e(f"v_mov_b32 v{vSAME}, {MISC}")
sPF, sOL, sOS, vPO = 100, 101, 79, 184
e(f"s_lshl_b32 s{sT0}, s{sTB}, 3")
e(f"s_lshl_b32 s{sT1}, s{sW}, 1")
e(f"s_add_u32 s{sT0}, s{sT0}, s{sT1}")
e(f"s_lshl_b32 s{sT0}, s{sT0}, 9")
e(f"s_add_u32 s{sPF}, s{sT0}, {FL_O}")
e(f"s_lshl_b32 s{sT2}, s{sTB}, 16")
e(f"s_lshl_b32 s{sOL}, s{sW}, 13")
e(f"s_add_u32 s{sT2}, s{sT2}, s{sOL}")
e(f"s_add_u32 s{sOS}, s{sT2}, {WS_O}")
e(f"v_and_b32 v8, 7, v{vL}")
e(f"v_lshlrev_b32 v{vPO}, 7, v8")
for i in range(16): e(f"v_mov_b32 v{OA+i}, 0")
for i in range(16): e(f"v_mov_b32 v{OB+i}, 0")
for i in range(4): e(f"v_mov_b32 v{V1+4+i}, 0")
if opt['qloop']:
    for i in range(16): e(f"v_mov_b32 v{SA+i}, 0")
e(f"v_mov_b32 v{vK}, v2")
e(f"v_mov_b32 v{vV}, v{vV0}")
if opt['dftpf']:
    cm("sequence-DFT rows the aux waves read later (pulled towards L2 from inside the loop):")
    cm("wave 0: cos rows t1s + 32l; wave 1: sin rows 2048 - that; waves 2, 3: cos / sin rows 64 (l & 31)")
    R_DP, vDP = R_XA, 187
    e(f"s_bitcmp1_b32 s{sW}, 0")
    e(f"s_cselect_b64 {sr(R_DP,2)}, {sr(P_SIM,2)}, {sr(P_SRE,2)}")
    e(f"s_and_b32 s{R_DP+1}, s{R_DP+1}, 0xffff")
    e(f"s_mov_b32 s{R_DP+2}, 0x800000")
    e(f"v_lshlrev_b32 v8, 5, v{vL}")
    e(f"v_add_u32 v8, s{sTB}, v8               ; t1s = tb")
    e("v_sub_u32 v9, 0x800, v8")
    e("v_and_b32 v9, 0x7ff, v9")
    e(f"v_lshlrev_b32 v10, 6, v{vL}")
    e("v_and_b32 v10, 0x7ff, v10")
    e(f"s_cmp_eq_u32 s{sW}, 1")
    e("s_cselect_b64 vcc, -1, 0")
    e("v_cndmask_b32 v8, v8, v9, vcc")
    e(f"s_cmp_ge_u32 s{sW}, 2")
    e("s_cselect_b64 vcc, -1, 0")
    e("v_cndmask_b32 v8, v8, v10, vcc")
    e(f"v_lshlrev_b32 v{vDP}, 12, v8")
if opt['preo']:
    cm("output lines this workgroup writes at the end (touched from inside the loop, values unused):")
    cm("waves 0, 2: rows 64tb + l, columns of hg; waves 1, 3: rows tb + 32l (mirrored for hg >= 4), spectral columns of hg")
    vOP, sOP = 186, 30
    srd(R_OUT, P_OUT, 4194304)
    e(f"v_lshlrev_b32 v8, 5, v{vL}")
    e(f"v_add_u32 v8, s{sTB}, v8")
    e("v_sub_u32 v9, 0x800, v8")
    e("v_and_b32 v9, 0x7ff, v9")
    e(f"s_cmp_ge_u32 s{sHG}, 4")
    e("s_cselect_b64 vcc, -1, 0")
    e("v_cndmask_b32 v8, v8, v9, vcc")
    e(f"s_lshl_b32 s{sT0}, s{sTB}, 6")
    e(f"v_add_u32 v9, s{sT0}, v{vL}")
    e(f"s_bitcmp1_b32 s{sW}, 0")
    e("s_cselect_b64 vcc, -1, 0")
    e(f"s_cselect_b32 s{sOP}, 0x400, 0")
    e("v_cndmask_b32 v8, v9, v8, vcc")
    e(f"v_lshlrev_b32 v{vOP}, 11, v8")
    e(f"s_lshl_b32 s{sT0}, s{sHG}, 7")
    e(f"s_add_u32 s{sOP}, s{sOP}, s{sT0}")
e(f"s_mov_b32 s{sT0}, {hex(f2u(0.25*1.4426950408889634))}")
warm("L_padq", "L_padq_ret")
e("s_waitcnt vmcnt(0)")
stamp(8)
e("s_barrier")
stamp(10)
pad_begin("L_padq")
def qload(ks):
    b = FB + 8*(ks % 4)
    e(f"ds_read_b64_tr_b16 {vr(b,2)}, v{vWA} offset:{ks*2048}")
    e(f"ds_read_b64_tr_b16 {vr(b+2,2)}, v{vWA} offset:{ks*2048+512}")
    e(f"ds_read_b128 {vr(b+4,4)}, v{vXA} offset:{ks*32}")
for ks in range(3): qload(ks)
if opt['qloop']:
    cm("4 trips of 8 k-steps; the last trip's look-ahead reads land in unused registers")
    e(f"s_mov_b32 s{sIT}, 0")
    lab("L_qloop")
    for ks in range(8):
        b = FB + 8*(ks % 4)
        qload(ks + 3); e("s_waitcnt lgkmcnt(9)")
        e(f"v_mfma_f32_32x32x16_bf16 {vr(SA,16)}, {vr(b,4)}, {vr(b+4,4)}, {vr(SA,16)}")
        if ks == 7:
            e(f"v_add_u32 v{vWA}, 0x4000, v{vWA}")
            e(f"v_add_u32 v{vXA}, 0x100, v{vXA}")
        if ks == 6:
            e(f"s_add_u32 s{sIT}, s{sIT}, 1")
            e(f"s_cmp_lt_u32 s{sIT}, 4")
    e("s_cbranch_scc1 L_qloop")
    e("s_waitcnt lgkmcnt(0)")
else:
    for ks in range(32):
        b = FB + 8*(ks % 4)
        if ks + 3 < 32:
            qload(ks + 3); e("s_waitcnt lgkmcnt(9)")
        else:
            e(f"s_waitcnt lgkmcnt({3*(31-ks)})")
        c = "0" if ks == 0 else vr(SA, 16)
        e(f"v_mfma_f32_32x32x16_bf16 {vr(SA,16)}, {vr(b,4)}, {vr(b+4,4)}, {c}")
stamp(9)
nop(8 if opt['qloop'] else 12)
for i in range(16): e(f"v_mul_f32 v{SA+i}, s{sT0}, v{SA+i}")
for i in range(8): e(f"v_cvt_pk_bf16_f32 v{QA+i}, v{SA+2*i}, v{SA+2*i+1}")
if opt['prioA']: e(f"s_setprio {opt['prioA']}")
stamp(2)
if opt['attpf']:
    cm("after BA: pull this workgroup's 1/32 share of what its XCD reads later towards L2 (one dword per 128-B line)")
    cm("wave 0: x_B rows 64j + 8xcd + (0..7); waves 1, 2: hidden cos / sin rows 8j..8j+7; wave 3: wo rows 16j..16j+15")
    R_PF = R_WQ
    e(f"s_cmp_eq_u32 s{sW}, 1")
    e(f"s_cselect_b64 {sr(R_PF,2)}, {sr(P_HRE,2)}, {sr(P_HIM,2)}")
    e(f"s_lshl_b32 s{sT2}, s{sJ}, 13")
    e(f"s_cmp_eq_u32 s{sW}, 3")
    e(f"s_cselect_b64 {sr(R_PF,2)}, {sr(P_WO,2)}, {sr(R_PF,2)}")
    e(f"s_cselect_b32 s{sT3}, s{sT2}, 0")
    e(f"s_add_u32 s{sT2}, s{sT2}, s{sT3}")
    e(f"s_lshl_b32 s{sT3}, s{sJ}, 16")
    e(f"s_lshl_b32 s{sT1}, s{sXCD}, 13")
    e(f"s_add_u32 s{sT3}, s{sT3}, s{sT1}")
    e(f"s_cmp_eq_u32 s{sW}, 0")
    e(f"s_cselect_b64 {sr(R_PF,2)}, {sr(P_XB,2)}, {sr(R_PF,2)}")
    e(f"s_cselect_b32 s{sT2}, s{sT3}, s{sT2}")
    e(f"s_cselect_b32 s{R_PF+2}, 0x200000, s{R_PF+2}")
    e(f"s_and_b32 s{R_PF+1}, s{R_PF+1}, 0xffff")
    e(f"s_add_u32 s{sT3}, s{sT2}, 8192")
    e(f"v_lshlrev_b32 v6, 7, v{vL}")
if opt['baat']:
    lab("L_baat")
    e(f"s_memrealtime {sr(sX,2)}")
    e("s_waitcnt lgkmcnt(0)")
    e(f"s_sub_u32 s{sX}, s{sX}, s3")
    e(f"s_cmp_lt_u32 s{sX}, {opt['baat']}")
    e("s_cbranch_scc1 L_baat")
e("s_barrier")
stamp(3)
PFLOAD = True
MT = opt['mt']
cm(f"stand-in for the row max: max over the first {MT} key tile(s) (checked after the loop; fallback = true max)")
e(f"ds_read_b128 {vr(K0,4)}, v{vK}")
e(f"ds_read_b128 {vr(K1,4)}, v{vK} offset:2048")
KX = FB
for t in range(2, MT): e(f"ds_read_b128 {vr(KX+4*(t-2),4)}, v{vK} offset:{2048*t}")
e(f"ds_read_b128 {vr(V0,4)}, v{vV} offset:1024")
e(f"ds_read_b128 {vr(V0+4,4)}, v{vV} offset:1536")
def max16(dst, s, acc=None):
    if acc is None:
        e(f"v_max3_f32 v{dst}, v{s}, v{s+1}, v{s+2}"); i = 3
        while i + 1 < 16:
            e(f"v_max3_f32 v{dst}, v{dst}, v{s+i}, v{s+i+1}"); i += 2
        e(f"v_max_f32 v{dst}, v{dst}, v{s+15}")
    else:
        for i in range(0, 16, 2): e(f"v_max3_f32 v{dst}, v{dst}, v{s+i}, v{s+i+1}")
nrd = 4 + max(0, MT - 2)
e(f"s_waitcnt lgkmcnt({nrd - 1})")
e(f"v_mfma_f32_32x32x16_bf16 {vr(SA,16)}, {vr(K0,4)}, {vr(QA,4)}, 0")
e(f"v_mfma_f32_32x32x16_bf16 {vr(SB,16)}, {vr(K0,4)}, {vr(QB,4)}, 0")
if MT == 1:
    nop(11)
    max16(4, SA); max16(5, SB)
else:
    kreg = [K0, K1] + [KX + 4*t for t in range(2)]
    bufs = [(SA, SB), (CA, CB)]
    e(f"s_waitcnt lgkmcnt({nrd - 2})")
    e(f"v_mfma_f32_32x32x16_bf16 {vr(CA,16)}, {vr(K1,4)}, {vr(QA,4)}, 0")
    e(f"v_mfma_f32_32x32x16_bf16 {vr(CB,16)}, {vr(K1,4)}, {vr(QB,4)}, 0")
    e("s_waitcnt lgkmcnt(2)")
    nop(7)
    for t in range(MT):
        a, b = bufs[t % 2]
        max16(4, a, None if t == 0 else 1)
        if t + 2 < MT: e(f"v_mfma_f32_32x32x16_bf16 {vr(a,16)}, {vr(kreg[t+2],4)}, {vr(QA,4)}, 0")
        max16(5, b, None if t == 0 else 1)
        if t + 2 < MT: e(f"v_mfma_f32_32x32x16_bf16 {vr(b,16)}, {vr(kreg[t+2],4)}, {vr(QB,4)}, 0")
lab("L_setmax")
cm(f"v4 / v5 = per-lane max for tiles A / B; combine the two half-waves, C = -(max + {opt['shift']})")
e("v_mov_b32 v6, v4")
e("v_mov_b32 v7, v5")
e(f"s_mov_b32 s{sIT}, 0")
e("s_nop 0")
e("v_permlane32_swap_b32 v4, v6")
e("v_permlane32_swap_b32 v5, v7")
e("v_max_f32 v4, v4, v6")
e("v_max_f32 v5, v5, v7")
for i in range(16): e(f"v_sub_f32 v{CA+i}, {hex(f2u(-float(opt['shift'])))}, v4")
e(f"v_sub_f32 v{CB}, {hex(f2u(-float(opt['shift'])))}, v5")
e("s_waitcnt lgkmcnt(0)")
if opt['vmask']:
    e("s_mov_b32 s30, 0xffff")
    e("s_mov_b32 s31, 0xffff")
    for i in range(8): e(f"v_mov_b32 v{V1+i}, v{V0+i}")
e(f"v_mfma_f32_32x32x16_bf16 {vr(SA,16)}, {vr(K0,4)}, {vr(QA,4)}, {vr(CA,16)}")
for i in range(1, 16): e(f"v_mov_b32 v{CB+i}, v{CB}")
for i in range(8): e(f"v_mov_b32 v{SB+8+i}, 0")
def SM(o, a, b): e(f"v_smfmac_f32_32x32x32_bf16 {vr(o,16)}, {vr(a,4)}, {vr(b,8)}, v{vIDX}")
def QK(d, k, q, c): e(f"v_mfma_f32_32x32x16_bf16 {vr(d,16)}, {vr(k,4)}, {vr(q,4)}, {vr(c,16)}")
def EX(s, a, b):
    for i in range(a, b): e(f"v_exp_f32 v{s+i}, v{s+i}")
pad_end("L_padq", "L_padq_ret")
stamp(13)
L.append(".p2align 6")
lab("L_att_loop")
for u in range(4):
    kc, kn = (K0, K1) if u % 2 == 0 else (K1, K0)
    vc, vp = (V0, V1) if u % 2 == 0 else (V1, V0)
    voffs = ((u + 1) % 4) * 2048 + 1024
    koffs = ((u + 2) % 4) * 2048
    p0, p1, p2 = (4, 7, 10) if opt['cluster'] else (2, 5, 10)
    EX(SA, 0, p0)
    SM(OB, vp + 4, SB + 8)
    e(f"s_waitcnt lgkmcnt({2 if u == 1 and opt['csync'] else 1})")
    EX(SA, p0, p1)
    QK(SB, kc, QB, CB)
    if opt['vmask']: e(f"s_mov_b64 exec, {sr(30,2)}")
    e(f"ds_read_b128 {vr(vp,4)}, v{vV} offset:{voffs}")
    if opt['vmask']: e("s_mov_b64 exec, -1")
    EX(SA, p1, p2)
    SM(OA, vc, SA)
    if opt['vmask']: e(f"s_mov_b64 exec, {sr(30,2)}")
    e(f"ds_read_b128 {vr(vp+4,4)}, v{vV} offset:{voffs+512}")
    if opt['vmask']: e("s_mov_b64 exec, -1")
    EX(SA, p2, 16)
    EX(SB, 0, p0)
    SM(OA, vc + 4, SA + 8)
    e("s_waitcnt lgkmcnt(2)")
    if u == 1:
        pass
    EX(SB, p0, p1)
    QK(SA, kn, QA, CA)
    e(f"ds_read_b128 {vr(kc,4)}, v{vK} offset:{koffs}")
    EX(SB, p1, p2)
    SM(OB, vc, SB)
    if u == 1:
        e(f"s_bitcmp1_b32 s{sBARN}, s{sIT}")
        e("s_cbranch_scc1 L_sync")
        lab("L_nobar")
        e(f"v_add_u32 v{vK}, 0x2000, v{vK}")
    if u == 2:
        e(f"v_add_u32 v{vV}, v{vINC}, v{vV}")
    if u == 3:
        e(f"s_add_u32 s{sIT}, s{sIT}, 1")
        e(f"s_cmp_lt_u32 s{sIT}, 16")
    if u == 0 and opt['csync']: e(f"ds_read_b64 v[4:5], v{vSAME} offset:{C_G1}")
    elif u == 0 and opt['cluster']: e("s_nop 0")
    EX(SB, p2, 16)
e("s_cbranch_scc1 L_att_loop")
if opt['lwarm']: e("s_cbranch_execz L_lwarm_ret           ; only the instruction-cache warm-up pass has EXEC = 0")
stamp(18)
pad_begin("L_padt")
e(f"s_mov_b32 s{sT0}, {hex(f2u(2.0**100) if not opt['force_fb'] else f2u(2.0**-30))}")
e(f"v_rcp_f32 v4, v{OA+8}")
SM(OB, V1 + 4, SB + 8)
e(f"ds_read_b32 v7, v{vSAME} offset:{C_SAME}")
e(f"ds_read_b64 v[8:9], v{vSAME} offset:{C_TAG}")
cm("run-time check of the stand-in: l*2^64 must be finite and <= 2^100, else redo with the true row max")
e(f"v_cmp_nle_f32_e64 vcc, v{OA+8}, s{sT0}")
for i in range(8): e(f"v_mul_f32 v{SA+i}, v4, v{OA+i}")
for i in range(4): e(f"v_cvt_pk_bf16_f32 v{SA+i}, v{SA+2*i}, v{SA+2*i+1}")
sSAME = 99
e("s_waitcnt lgkmcnt(0)")
e(f"v_readfirstlane_b32 s{sSAME}, v7")
e(f"v_rcp_f32 v5, v{OB+8}")
e(f"v_cmp_nle_f32_e64 {sr(sX,2)}, v{OB+8}, s{sT0}")
cm("plain stores only when every workgroup of this token block reported the same XCD; else write-through")
e(f"s_cmp_eq_u32 s{sSAME}, 0")
e("s_cbranch_scc1 L_ostA_wt")
OM = " sc1" if opt['omode'] >= 2 else ""
e(f"buffer_store_dwordx4 {vr(SA,4)}, v2, {sr(R_WS,4)}, s{sOD} offen{OM}")
lab("L_ostA_done")
for i in range(8): e(f"v_mul_f32 v{SB+i}, v5, v{OB+i}")
e(f"s_or_b64 vcc, vcc, {sr(sX,2)}")
for i in range(4): e(f"v_cvt_pk_bf16_f32 v{SA+4+i}, v{SB+2*i}, v{SB+2*i+1}")
e("s_cmp_eq_u64 vcc, 0")
e("s_cbranch_scc0 L_fallback")
lab("L_att_done")
e(f"s_cmp_eq_u32 s{sSAME}, 0")
e("s_cbranch_scc1 L_ost_wt")
e(f"buffer_store_dwordx4 {vr(SA+4,4)}, v2, {sr(R_WS,4)}, s{sOD} offen offset:1024{OM}")
stamp(6)
e(f"v_readfirstlane_b32 s{sNON}, v8")
e(f"v_readfirstlane_b32 s{sNON+1}, v9")
e("s_mov_b64 exec, 1")
e("s_waitcnt vmcnt(0)")
e(f"buffer_store_dwordx2 v[8:9], off, {sr(R_WS,4)}, s{sOF}")
if opt['omode'] == 3: e(f"buffer_store_dwordx2 v[8:9], off, {sr(R_WS,4)}, s{sOF} sc1")
lab("L_ost_done")
e("s_mov_b64 exec, -1")
stamp(5)
e("s_barrier")
stamp(4)
cm("gather the O tile of this token block: wave w takes producers 2w, 2w+1, in four steps of two heads")
poll2("L_pollO", vPO, 10, sPF) if opt['pp'] & 1 else poll("L_pollO", 1, vPO, 10, [sPF])
stamp(11)
for st in range(4):
    for th in range(2):
        e(f"s_add_u32 m0, s{sOL}, {2048*st + 32768*th}")
        e(f"s_add_u32 s{sT1}, s{sOS}, {2048*st + 32768*th}")
        for i in range(2): e(f"buffer_load_dwordx4 v2, {sr(R_WS,4)}, s{sT1} offen offset:{1024*i} sc1 lds")
pad_end("L_padt", "L_pado_0")
for st in range(4):
    e(f"s_waitcnt vmcnt({12 - 4*st})")
    if st == 0: stamp(12)
    e(f"s_barrier                             ; B8.{st}: heads 8w + {2*st}, {2*st+1} of every wave landed")
stamp_dump()
e("s_endpgm")
lab("L_ostA_wt")
e(f"buffer_store_dwordx4 {vr(SA,4)}, v2, {sr(R_WS,4)}, s{sOD} offen sc1")
e("s_branch L_ostA_done")
lab("L_ost_wt")
e(f"buffer_store_dwordx4 {vr(SA+4,4)}, v2, {sr(R_WS,4)}, s{sOD} offen offset:1024 sc1")
stamp(6)
e(f"v_readfirstlane_b32 s{sNON}, v8")
e(f"v_readfirstlane_b32 s{sNON+1}, v9")
e("s_mov_b64 exec, 1")
e("s_waitcnt vmcnt(0)")
e(f"buffer_store_dwordx2 v[8:9], off, {sr(R_WS,4)}, s{sOF} sc1")
e("s_branch L_ost_done")
def rescale():
    E0 = VSCALE - opt['shift']
    p2 = 10
    cm("raise the softmax reference to the row sum so far: v6 / v10 = delta (>= 0), v8 / v14 = 2^-delta for tiles A / B")
    for t, (O, d, f, tmp) in enumerate(((OA, 6, 8, 12), (OB, 10, 14, 13))):
        if t == 1: nop(1)
        e(f"v_frexp_exp_i32_f32 v{tmp}, v{O+8}")
        e(f"v_add_u32 v{tmp}, {-1 - E0}, v{tmp}")
        e(f"v_med3_i32 v{tmp}, v{tmp}, 0, s{sT3}")
        e(f"v_cvt_f32_i32 v{d}, v{tmp}")
        e(f"v_sub_u32 v{tmp}, 0, v{tmp}")
        e(f"v_ldexp_f32 v{f}, 1.0, v{tmp}")
        if t == 0:
            for r in range(0, 10, 2): e(f"v_pk_mul_f32 {vr(O+r,2)}, {vr(O+r,2)}, {vr(f,2)} op_sel_hi:[1,0]")
    for r in range(0, 10, 2): e(f"v_pk_mul_f32 {vr(OB+r,2)}, {vr(OB+r,2)}, {vr(14,2)} op_sel_hi:[1,0]")
    e(f"v_pk_mul_f32 {vr(SB+8,2)}, {vr(SB+8,2)}, {vr(14,2)} op_sel_hi:[1,0]")
    sub = lambda r, d: e(f"v_pk_add_f32 {vr(r,2)}, {vr(r,2)}, {vr(d,2)} op_sel_hi:[1,0] neg_lo:[0,1] neg_hi:[0,1]")
    for r in range(p2, 16, 2): sub(SB + r, 10)
    for r in range(0, 16, 2): sub(SA + r, 6)
    for r in range(0, 16, 2): sub(CA + r, 6)
    for r in range(0, 16, 2): sub(CB + r, 10)
lab("L_sync")
e(f"s_cmp_eq_u32 s{sIT}, 1")
e("s_cbranch_scc0 L_sync3")
stamp(14)
if opt['csync']:
    e(f"v_readfirstlane_b32 s{sT4}, v4")
    e("s_nop 0")
    e(f"s_cmp_ge_u32 s{sT4}, {FOUR}")
    e("s_cbranch_scc1 L_nobar") if not opt['stamps'] else e("s_cbranch_scc1 L_wg1_done")
lds_wait("L_wg1", C_G1, FOUR, 4)
stamp(15)
if opt['resc'] & 1:
    e(f"s_mov_b32 s{sT3}, 120")
    rescale()
e("s_branch L_nobar")
lab("L_sync3")
if opt['stall']: e(f"s_sleep {opt['stall']}")
if opt['dftpf']: e(f"buffer_load_dword v185, v{vDP}, {sr(R_DP,4)}, 0 offen")
if opt['preo']:
    e(f"s_cmp_lt_u32 s{sW}, 2")
    e("s_cbranch_scc0 L_nopo")
    e(f"buffer_load_dword v188, v{vOP}, {sr(R_OUT,4)}, s{sOP} offen{' sc1' if opt['preo'] == 1 else ''}")
    lab("L_nopo")
stamp(16)
if opt['csync']:
    e(f"v_readfirstlane_b32 s{sT4}, v5")
    e("s_nop 0")
    e(f"s_cmp_ge_u32 s{sT4}, {FOUR}")
    e("s_cbranch_scc1 L_nobar") if not opt['stamps'] else e("s_cbranch_scc1 L_wkvl_done")
lds_wait("L_wkvl", C_KVL, FOUR, 4)
stamp(17)
if opt['resc'] & 2:
    e(f"s_mov_b32 s{sT3}, 120")
    rescale()
e("s_branch L_nobar")
lab("L_fallback")
e(f"s_cmp_eq_u32 s{sFB}, 0")
e("s_cbranch_scc0 L_att_done")
cm("fallback: exact row max over all 64 key tiles, then repeat the main loop")
e(f"s_mov_b32 s{sFB}, 1")
e(f"s_mov_b32 s{sBARN}, 0")
e(f"v_mov_b32 v4, 0xff800000")
e(f"v_mov_b32 v5, 0xff800000")
e(f"v_mov_b32 v{vK}, v2")
e(f"s_mov_b32 s{sIT}, 0")
lab("L_fb_loop")
e(f"ds_read_b128 {vr(K0,4)}, v{vK}")
e("s_waitcnt lgkmcnt(0)")
e(f"v_mfma_f32_32x32x16_bf16 {vr(SA,16)}, {vr(K0,4)}, {vr(QA,4)}, 0")
e(f"v_mfma_f32_32x32x16_bf16 {vr(SB,16)}, {vr(K0,4)}, {vr(QB,4)}, 0")
e(f"v_add_u32 v{vK}, 0x800, v{vK}")
nop(11)
max16(4, SA, 1); max16(5, SB, 1)
e(f"s_add_u32 s{sIT}, s{sIT}, 1")
e(f"s_cmp_lt_u32 s{sIT}, 64")
e("s_cbranch_scc1 L_fb_loop")
e(f"v_mov_b32 v{vK}, v2")
e(f"v_mov_b32 v{vV}, v{vV0}")
for i in range(16): e(f"v_mov_b32 v{OA+i}, 0")
for i in range(16): e(f"v_mov_b32 v{OB+i}, 0")
for i in range(4): e(f"v_mov_b32 v{V1+4+i}, 0")
e(f"ds_read_b128 {vr(K0,4)}, v{vK}")
e(f"ds_read_b128 {vr(K1,4)}, v{vK} offset:2048")
e(f"ds_read_b128 {vr(V0,4)}, v{vV} offset:1024")
e(f"ds_read_b128 {vr(V0+4,4)}, v{vV} offset:1536")
e("s_branch L_setmax")

lab("L_aux")
BUF = 16
BP = 144
FR = 176
ACC = 192
D1, D2 = 208, 224
if not opt['first']: aux_first()
KV0 = len(L)
e(f"v_mov_b32 v14, {MISC+C_CR}")
if opt['bytef']: e(f"v_add_u32 v14, s{sA}, v14")
e(f"v_mov_b32 v15, 1")
cm("K / V projection of 16 tokens: aux wave 0")
e(f"s_cmp_eq_u32 s{sA}, 0")
e("s_cbranch_scc0 L_np")
e(f"v_and_b32 v3, 15, v{vL}")
e(f"v_lshrrev_b32 v4, 4, v{vL}           ; q")
e(f"s_lshl_b32 s{sT0}, s{sTHP}, 4")
e(f"v_add_u32 v5, s{sT0}, v3")
e(f"v_mul_u32_u24 v5, {XROW}, v5")
e("v_lshl_add_u32 v5, v4, 4, v5")
e(f"v_add_u32 v5, {X_OFF}, v5")
e(f"v_bfe_u32 v6, v{vL}, 2, 2            ; r")
e("v_lshl_add_u32 v6, v4, 3, v6")
e("v_lshlrev_b32 v6, 5, v6")
e(f"v_and_b32 v7, 3, v{vL}               ; cc")
sB = sT3
e(f"s_and_b32 s{sB}, s{sTHP}, 1            ; b")
e(f"s_lshr_b32 s{sT0}, s{sTHP}, 1")
e(f"s_lshl_b32 s{sT2}, s{sTB}, 1")
e(f"s_add_u32 s{sT2}, s{sT2}, s{sT0}")
sKF, sKD = 97, 96
e(f"s_lshl_b32 s{sT1}, s{sT2}, 1")
e(f"s_and_b32 s{sT0}, s{sHG}, 1")
e(f"s_add_u32 s{sT1}, s{sT1}, s{sT0}")
e(f"s_lshl_b32 s{sT1}, s{sT1}, 1")
e(f"s_add_u32 s{sT1}, s{sT1}, s{sB}")
e(f"s_lshl_b32 s{sT1}, s{sT1}, 7")
e(f"s_add_u32 s{sKF}, s{sT1}, {FL_KV}")
e(f"s_lshl_b32 s{sKD}, s{sT2}, 11")
e("v_and_b32 v9, 1, v4")
e("v_lshlrev_b32 v9, 3, v9")
e("v_lshl_add_u32 v9, v3, 4, v9          ; n*16 + (q&1)*8")
e("v_lshrrev_b32 v8, 1, v4")
e(f"s_mov_b32 s{sDRY}, {1 if opt['dry'] else 0}")
if opt['pre']:
    cm("touch the lines of the key tile and the flag this wave will publish, so the write-through stores find them resident")
    e(f"v_and_b32 v12, 15, v{vL}")
    e("v_lshlrev_b32 v12, 7, v12")
    e(f"buffer_load_dword v201, v12, {sr(R_WS,4)}, s{sKD} offen sc1")
    e(f"buffer_load_dword v202, off, {sr(R_WS,4)}, s{sKF} sc1")
def kvchain(isV):
    D = opt['kvd']
    def mf(k2):
        b2 = BUF + 8*k2
        a, bb = (b2+4, b2) if isV else (b2, b2+4)
        e(f"v_mfma_f32_16x16x32_bf16 {vr(ACC,4)}, {vr(a,4)}, {vr(bb,4)}, {'0' if k2==0 else vr(ACC,4)}")
    for ks in range(16):
        b = BUF + 8*ks
        e(f"ds_read_b64_tr_b16 {vr(b,2)}, v6 offset:{ks*1024}")
        e(f"ds_read_b64_tr_b16 {vr(b+2,2)}, v6 offset:{ks*1024+128}")
        e(f"ds_read_b128 {vr(b+4,4)}, v5 offset:{ks*64}")
        if ks >= D:
            e(f"s_waitcnt lgkmcnt({3*D})"); mf(ks - D)
    for k2 in range(16 - D, 16):
        e(f"s_waitcnt lgkmcnt({3*(15-k2)})"); mf(k2)
def kv_wait(tagname):
    e(f"s_waitcnt vmcnt({2 if opt['pre'] else 0})")
    stamp(1)
    e("s_mov_b64 exec, 1")
    e("ds_write_b8 v14, v15" if opt['bytef'] else "ds_add_u32 v14, v15")
    e("s_mov_b64 exec, -1")
    lds_wait(tagname + "_w", C_CR, FOUR, 10, sleep=1)
def kv_b1(tagname):
    if not opt['dry']: kv_wait(tagname)
    lab(tagname)
def kv_b2(tagname):
    if opt['dry']:
        e(f"s_cmp_eq_u32 s{sDRY}, 0")
        e(f"s_cbranch_scc1 {tagname}_go")
        e(f"s_mov_b32 s{sDRY}, 0")
        kv_wait(tagname)
        e(f"s_branch {tagname}")
        lab(tagname + "_go")
e(f"s_bitcmp1_b32 s{sHG}, 0")
e("s_cbranch_scc1 L_prodV")
cm("K: (q>>1)*512 + (16b+n)*16 + (q&1)*8")
e("v_lshl_add_u32 v6, v7, 3, v6")
e("v_lshl_add_u32 v8, v8, 9, v9")
e(f"s_lshl_b32 s{sT1}, s{sB}, 8")
e(f"s_add_u32 s{sKD}, s{sKD}, s{sT1}")
kv_b1("L_chK"); kvchain(False); kv_b2("L_chK")
nop(6 if opt['dry'] else 8)
e("s_branch L_prodS")
lab("L_prodV")
cm("V: 1024 + b*512 + (q>>1)*256 + n*16 + (q&1)*8")
e("v_lshl_add_u32 v8, v8, 8, v9")
e("v_and_b32 v9, 1, v7")
e("v_lshl_add_u32 v6, v9, 4, v6")
e("v_lshrrev_b32 v9, 1, v7")
e("v_lshl_add_u32 v6, v9, 3, v6")
e(f"s_lshl_b32 s{sT1}, s{sB}, 9")
e(f"s_add_u32 s{sKD}, s{sKD}, s{sT1}")
e(f"s_add_u32 s{sKD}, s{sKD}, 1024")
kv_b1("L_chV"); kvchain(True); kv_b2("L_chV")
e(f"s_mov_b32 s{sT0}, {hex(f2u(2.0**VSCALE))}")
nop(6 if opt['dry'] else 8)
for i in range(4): e(f"v_mul_f32 v{ACC+i}, s{sT0}, v{ACC+i}")
lab("L_prodS")
e(f"v_cvt_pk_bf16_f32 v10, v{ACC}, v{ACC+1}")
e(f"v_cvt_pk_bf16_f32 v11, v{ACC+2}, v{ACC+3}")
e(f"buffer_store_dwordx2 v[10:11], v8, {sr(R_WS,4)}, s{sKD} offen sc1")
stamp(14)
e("ds_add_u32 v14, v15 offset:%d             ; this wave is done with the weight region" % (C_KV - C_CR + 65536) if False else f"v_mov_b32 v13, {MISC+C_KV}")
e("s_mov_b64 exec, 1")
e("ds_write_b32 v13, v15")
e("s_mov_b64 exec, -1")
tag_from_lds("L_tagp", 4)
e(f"v_mov_b32 v6, s{sNON}")
e(f"v_mov_b32 v7, s{sNON+1}")
e("s_mov_b64 exec, 1")
e("s_waitcnt vmcnt(0)")
e(f"buffer_store_dwordx2 v[6:7], off, {sr(R_WS,4)}, s{sKF} sc1")
e("s_mov_b64 exec, -1")
stamp(15)
if opt['pa']: e("s_branch L_tagged0")
else:
    e(f"s_mov_b32 s{sRET}, 1")
    e("s_branch L_tagged")
lab("L_np")
e("s_waitcnt vmcnt(0)")
stamp(1)
e("s_mov_b64 exec, 1")
e("ds_write_b8 v14, v15" if opt['bytef'] else "ds_add_u32 v14, v15")
e("s_mov_b64 exec, -1")
if opt['codepf']:
    cm("aux wave 2 pulls this kernel's code towards L2 (reads only)")
    e(f"s_cmp_eq_u32 s{sA}, 2")
    e("s_cbranch_scc0 L_nopf")
    e(f"s_getpc_b64 {sr(sX,2)}")
    lab("L_pc")
    e(f"v_lshlrev_b32 v4, 7, v{vL}")
    e(f"s_sub_u32 s{sX}, s{sX}, L_pc-{NAME}_kernel")
    e(f"s_subb_u32 s{sX+1}, s{sX+1}, 0")
    e(f"v_mov_b32 v5, s{sX+1}")
    e(f"v_add_co_u32 v4, vcc, s{sX}, v4")
    e("s_nop 1")
    e("v_addc_co_u32 v5, vcc, 0, v5, vcc")
    e("CODEPF")
    lab("L_nopf")
if opt['lwarm']:
    cm("aux wave 1 walks once through the attention loop with every lane off (LDS and register traffic only) to warm the instruction cache")
    e(f"s_cmp_eq_u32 s{sA}, 1")
    e("s_cbranch_scc0 L_nolw")
    e(f"s_mov_b32 s{sIT}, 15")
    e(f"s_mov_b32 s{sBARN}, 0")
    e("s_setprio 0")
    e("s_mov_b64 exec, 0")
    e("s_branch L_att_loop")
    lab("L_lwarm_ret")
    e("s_mov_b64 exec, -1")
    e(f"s_setprio {opt['prioX']}")
    lab("L_nolw")
e(f"s_cmp_eq_u32 s{sA}, 3")
e("s_cbranch_scc0 L_tagged0")
cm("aux wave 3 fetches this launch's hand-off tag (bounded spin) and posts it in LDS")
e(f"s_mov_b32 s{sSPIN}, {SPIN}")
lab("L_tag")
e(f"buffer_load_dwordx2 v[14:15], off, {sr(R_DBG,4)}, 0 sc1")
e(f"s_sub_u32 s{sSPIN}, s{sSPIN}, 1")
e(f"s_cmp_eq_u32 s{sSPIN}, 0")
e("s_cbranch_scc1 L_tag_done")
e("s_waitcnt vmcnt(0)")
e("v_cmp_eq_u32 vcc, 0, v14")
e("s_nop 0")
e("s_cmp_eq_u64 vcc, 0")
e("s_cbranch_scc0 L_tag")
lab("L_tag_done")
e("s_waitcnt vmcnt(0)")
e(f"v_mov_b32 v12, {MISC+C_TAG}")
e("ds_write_b64 v12, v[14:15]")
cm("report this workgroup's XCD id (tag | id)")
e(f"s_getreg_b32 s{sT2}, hwreg(HW_REG_XCC_ID, 0, 4)")
e(f"s_lshl_b32 s{sT1}, s2, 7")
e(f"s_add_u32 s{sT1}, s{sT1}, {FL_X}")
e(f"v_or_b32 v14, s{sT2}, v14")
e("s_mov_b64 exec, 1")
e(f"buffer_store_dwordx2 v[14:15], off, {sr(R_WS,4)}, s{sT1} sc1")
e("s_mov_b64 exec, -1")
import re
def ren(m):
    n = int(m.group(1)); return f"v{208+n}" if 3 <= n <= 15 else m.group(0)
def ren2(m):
    a, b = int(m.group(1)), int(m.group(2)); return f"v[{208+a}:{208+b}]" if 3 <= a <= 15 else m.group(0)
for k in range(KV0, len(L)):
    L[k] = re.sub(r"v\[(\d+):(\d+)\]", ren2, re.sub(r"\bv(\d+)\b", ren, L[k]))
if opt['w3late']:
    e(f"s_mov_b32 s{sRET}, 1                  ; like the projection wave: addresses later, behind the first key tiles")
    e("s_branch L_tagged")
lab("L_tagged0")
e(f"s_mov_b32 s{sRET}, 0")
e("s_branch L_addr")
lab("L_tagged")
stamp(2)
tag_from_lds("L_tagx", 8)
cm("the weight region is reused only after the projection wave is done with it")
lds_wait("L_wkv", C_KV, 1, 8, sleep=opt['fs'])
cm("key tiles in rotated order (own XCD's tiles first); wave a covers tiles 8g + 2a, 8g + 2a + 1: flags 32g + 8a + (0..7)")
vCNT = 248
sKG, sKL, sKS, sKP = 97, 85, 88, 96
e(f"v_and_b32 v{ACC+2}, 7, v{vL}")
e(f"v_lshlrev_b32 v{ACC+2}, 7, v{ACC+2}")
e(f"s_lshl_b32 s{sKP}, s{sA}, 10")
e(f"s_add_u32 s{sKP}, s{sKP}, {FL_KV}")
e(f"s_lshl_b32 s{sT1}, s{sXCD}, 12")
e(f"s_add_u32 s{sT1}, s{sT1}, s{sKP}")
e(f"s_lshl_b32 s{sKL}, s{sA}, 12")
e(f"s_lshl_b32 s{sKG}, s{sXCD}, 14")
e("s_barrier                             ; B2")
stamp(16)
poll2("L_pollK0", ACC+2, ACC+8, sT1) if opt['pp'] & 2 else poll("L_pollK0", 1, ACC+2, 8, [sT1])
stamp(3)
def kvdma(G):
    e(f"s_add_u32 m0, s{sKL}, {16384*G}")
    e(f"s_add_u32 s{sKS}, s{sKG}, s{sKL}")
    for i in range(4): e(f"buffer_load_dwordx4 v2, {sr(R_WS,4)}, s{sKS} offen offset:{1024*i} sc1 lds")
    if G < 7:
        e(f"s_add_u32 s{sKG}, s{sKG}, 16384")
        e(f"s_and_b32 s{sKG}, s{sKG}, 0x1ffff")
kvdma(0)
if opt['prepoll']:
    cm("one early look at the flags of all other key tiles; its latency overlaps the first tiles' landing")
    e(f"v_lshrrev_b32 v{ACC+4}, 3, v{vL}")
    e(f"v_lshlrev_b32 v{ACC+4}, 12, v{ACC+4}")
    e(f"v_add_u32 v{ACC+4}, v{ACC+4}, v{ACC+2}")
    e(f"buffer_load_dwordx2 {vr(ACC+6,2)}, v{ACC+4}, {sr(R_WS,4)}, s{sKP} offen sc1")
e(f"s_cmp_eq_u32 s{sRET}, 1")
e("s_cbranch_scc0 L_addr_2")
if opt['alow']: e("s_setprio 0")
lab("L_addr")
srd(R_SRE, P_SRE, 8388608)
srd(R_SIM, P_SIM, 8388608)
srd(R_XB, P_XB, 2097152)
srd(R_WO, P_WO, 524288)
srd(R_OUT, P_OUT, 4194304)
sT1S, sEB, sTT, sS2, sCB = 98, 99, 100, 101, 79
R_HRE, R_HIM = R_XA, R_W
e(f"s_and_b32 s{sT0}, s{sJ}, 3")
e(f"s_lshl_b32 s{sT1S}, s{sXCD}, 2")
e(f"s_add_u32 s{sT1S}, s{sT1S}, s{sT0}       ; t1s")
e(f"s_lshr_b32 s{sT0}, s{sJ}, 2")
e(f"s_lshl_b32 s{sT0}, s{sT0}, 1")
e(f"s_lshr_b32 s{sEB}, s{sA}, 1")
e(f"s_add_u32 s{sEB}, s{sEB}, s{sT0}         ; eb")
e(f"s_and_b32 s{sTT}, s{sA}, 1               ; tt")
e(f"s_and_b32 s{sT0}, s{sJ}, 3")
e(f"s_lshl_b32 s{sT0}, s{sT0}, 1")
e(f"s_lshl_b32 s{sS2}, s{sXCD}, 3")
e(f"s_add_u32 s{sS2}, s{sS2}, s{sT0}")
e(f"s_add_u32 s{sS2}, s{sS2}, s{sTT}         ; s2 = 8 xcd + 2 (j&3) + (a&1)")
e(f"s_mov_b32 s{sCB}, s{sEB}                 ; cb = 2 (j>>2) + (a>>1)")
srd(R_HRE, P_HRE, 524288)
srd(R_HIM, P_HIM, 524288)
e(f"v_and_b32 v3, 31, v{vL}                ; n")
e(f"v_lshrrev_b32 v4, 5, v{vL}             ; h")
e(f"s_lshl_b32 s{sT0}, s{sTT}, 5")
e(f"v_add_u32 v5, s{sT0}, v3")
e("v_lshlrev_b32 v5, 5, v5")
e(f"v_add_u32 v13, s{sT1S}, v5")
vG0, vG1, vRX, vRW = 240, 242, 244, 246
vDRE, vDIM = 251, 252
vB2A, vB2O, vHA, vWOD, vWOT, vOF, vOUT, vPH, vPK, vF = 4, 3, 15, 14, 0, 5, 6, 7, 12, 13
cm("B1 staging, loader side: wave a fills block a (0,1: x_B rows of s2, s2+1; 2,3: DFT rows of cb, cb+1),")
cm("16 rows x 64 B per load, row r -> rho = 8*bit2 + 4*bit3 + (r&3), 16-B chunk (l&3) ^ ((l>>4)&3)")
e(f"v_bfe_u32 v5, v{vL}, 2, 2")
e(f"v_bfe_u32 v6, v{vL}, 4, 1")
e("v_lshl_add_u32 v5, v6, 3, v5")
e("v_lshl_add_u32 v5, v4, 2, v5            ; rho")
e(f"v_lshrrev_b32 v6, 4, v{vL}")
e(f"v_xor_b32 v6, v6, v{vL}")
e("v_and_b32 v6, 3, v6")
e("v_lshlrev_b32 v6, 4, v6                 ; chunk * 16")
e(f"s_and_b32 s{sT0}, s{sS2}, -2")
e(f"s_add_u32 s{sT0}, s{sT0}, s{sA}")
e(f"s_lshl_b32 s{sT0}, s{sT0}, 10")
e(f"s_and_b32 s{sT1}, s{sCB}, -2")
e(f"s_add_u32 s{sT1}, s{sT1}, s{sTT}")
e(f"s_lshl_b32 s{sT1}, s{sT1}, 14")
e(f"s_add_u32 s{sT2}, s{sT0}, 0x100000")
e(f"s_cmp_lt_u32 s{sA}, 2")
e(f"s_cselect_b32 s{sT3}, 16, 10")
e(f"s_cselect_b32 s{sT0}, s{sT0}, s{sT1}")
e(f"s_cselect_b32 s{sT2}, s{sT2}, s{sT1}")
e(f"s_cselect_b64 {sr(sX,2)}, {sr(P_XB,2)}, {sr(P_HRE,2)}")
e(f"s_cselect_b64 {sr(sST,2)}, {sr(P_XB,2)}, {sr(P_HIM,2)}")
e(f"v_lshlrev_b32 v5, s{sT3}, v5")
e("v_add_u32 v5, v5, v6")
e(f"v_add_u32 v7, s{sT0}, v5")
e(f"v_mov_b32 v{vG0+1}, s{sX+1}")
e(f"v_add_co_u32 v{vG0}, vcc, s{sX}, v7")
e(f"v_add_u32 v7, s{sT2}, v5")
e(f"v_mov_b32 v{vG1+1}, s{sST+1}")
e(f"v_addc_co_u32 v{vG0+1}, vcc, 0, v{vG0+1}, vcc")
e(f"v_add_co_u32 v{vG1}, vcc, s{sST}, v7")
e(f"s_lshl_b32 s{sT1}, s{sT1}, 2")
e(f"s_add_u32 s{sT1}, s{sT1}, s{sA}")
e(f"v_addc_co_u32 v{vG1+1}, vcc, 0, v{vG1+1}, vcc")
e(f"s_cmp_eq_u32 s{sT1}, 2")
e("s_cbranch_scc0 L_nospec0")
cm("cb = 0: the im slot of e = 0 (lanes 0..3 of the second load) carries cos row 256")
e("s_mov_b64 exec, 15")
e("v_add_u32 v7, 0x40000, v6")
e(f"v_mov_b32 v{vG1+1}, s{P_HRE+1}")
e(f"v_add_co_u32 v{vG1}, vcc, s{P_HRE}, v7")
e("s_nop 1")
e(f"v_addc_co_u32 v{vG1+1}, vcc, 0, v{vG1+1}, vcc")
e("s_mov_b64 exec, -1")
lab("L_nospec0")
cm("reader side: row m, chunk (2s+h) ^ ((m>>2)&3)")
e("v_bfe_u32 v5, v3, 2, 2")
e("v_xor_b32 v5, v5, v4")
e("v_lshlrev_b32 v5, 4, v5")
e("v_lshl_add_u32 v5, v3, 6, v5")
e(f"s_lshl_b32 s{sT0}, s{sTT}, 11")
e(f"s_add_u32 s{sT0}, s{sT0}, {STG}")
e(f"v_add_u32 v{vRX}, s{sT0}, v5")
e(f"v_xor_b32 v{vRX+1}, 32, v{vRX}")
e(f"s_lshr_b32 s{sT0}, s{sA}, 1")
e(f"s_lshl_b32 s{sT0}, s{sT0}, 11")
e(f"s_add_u32 s{sT0}, s{sT0}, {STG + 4096}")
e(f"v_add_u32 v{vRW}, s{sT0}, v5")
e(f"v_xor_b32 v{vRW+1}, 32, v{vRW}")
vHW, vHW1, vHR, vHS = 250, 253, BUF, BUF + 1
cm("H regrouping: write row t1, chunk (2h+i) ^ ((t1>>2)&3); read lane-linear; store row l>>2, chunk (l&3) ^ ((l>>4)&3)")
e(f"s_lshl_b32 s{sT0}, s{sA}, 11")
e(f"s_add_u32 s{sT0}, s{sT0}, {STG}")
e("v_bfe_u32 v5, v3, 2, 2")
e("v_lshlrev_b32 v7, 1, v4")
e("v_xor_b32 v5, v5, v7")
e("v_lshlrev_b32 v5, 4, v5")
e("v_lshl_add_u32 v5, v3, 6, v5")
e(f"v_add_u32 v{vHW}, s{sT0}, v5")
e(f"v_xor_b32 v{vHW1}, 16, v{vHW}")
e(f"v_add_u32 v{BUF}, s{sT0}, v2")
e(f"v_lshrrev_b32 v5, 2, v{vL}")
e(f"v_mul_u32_u24 v5, {64*HROW}, v5")
e(f"v_add_u32 v{BUF+1}, v5, v6")
cm("e = 256 store address: t1*64*HROW")
e(f"v_mul_u32_u24 v8, {64*HROW}, v3")
e(f"v_lshl_add_u32 v{vHA}, v4, 5, v8")
cm("wo: DMA source offset and transposing read: row 8h+r, 16-B chunk 4cbk + 2(cc&1) + g, byte 8(cc>>1)")
e(f"v_lshrrev_b32 v8, 3, v{vL}")
e(f"v_and_b32 v9, 7, v{vL}")
e(f"v_bfe_u32 v10, v{vL}, 4, 1")
e("v_lshlrev_b32 v10, 2, v10")
e("v_xor_b32 v9, v9, v10")
e("v_lshlrev_b32 v9, 4, v9")
e(f"v_lshl_add_u32 v{vWOD}, v8, 10, v9")
e(f"v_bfe_u32 v9, v{vL}, 2, 2")
e("v_lshl_add_u32 v9, v4, 3, v9")
e("v_lshlrev_b32 v9, 7, v9")
e(f"v_and_b32 v10, 1, v{vL}")
e(f"v_bfe_u32 v11, v{vL}, 4, 1")
e("v_lshl_add_u32 v10, v10, 1, v11")
e(f"s_lshr_b32 s{sT0}, s{sA}, 1")
e(f"s_lshl_b32 s{sT0}, s{sT0}, 2")
e(f"v_add_u32 v10, s{sT0}, v10")
e(f"v_bfe_u32 v11, v{vL}, 3, 1")
e("v_lshlrev_b32 v11, 2, v11")
e("v_xor_b32 v10, v10, v11")
e("v_lshl_add_u32 v9, v10, 4, v9")
e(f"v_bfe_u32 v11, v{vL}, 1, 1")
e("v_lshl_add_u32 v9, v11, 3, v9")
e(f"v_add_u32 v{vWOT}, {STG}, v9")
cm("output projection: out offset, O fragment address")
e(f"s_lshl_b32 s{sT3}, s{sTB}, 1")
e(f"s_and_b32 s{sT4}, s{sA}, 1")
e(f"s_add_u32 s{sT3}, s{sT3}, s{sT4}")
e(f"s_lshl_b32 s{sT3}, s{sT3}, 5")
e(f"v_add_u32 v8, s{sT3}, v3")
e("v_lshlrev_b32 v8, 11, v8")
e(f"v_lshl_add_u32 v{vOUT}, v4, 5, v8")
e(f"s_lshl_b32 s{sT3}, s{sT4}, 15")
e(f"v_add_u32 v{vOF}, s{sT3}, v2")
e(f"v_lshlrev_b32 v{vPH}, 7, v{vL}")

cm("B2 A rows: e(m) = 32eb + col(m) (eb<8) or 512 - that; col(m) = 16*b2 + 4*(m>>3) + (m&3)")
e("v_and_b32 v8, 3, v3")
e("v_bfe_u32 v9, v3, 2, 1")
e("v_lshl_add_u32 v8, v9, 4, v8")
e("v_lshrrev_b32 v9, 3, v3")
e("v_lshl_add_u32 v8, v9, 2, v8")
e(f"s_lshl_b32 s{sT0}, s{sEB}, 5")
e(f"v_add_u32 v8, s{sT0}, v8")
e("v_sub_u32 v9, 0x200, v8")
e("v_sub_u32 v10, 0x800, v13")
e("v_and_b32 v10, 0x7ff, v10               ; (2048 - ts) & 2047")
e(f"s_cmp_lt_u32 s{sEB}, 8")
e("s_cselect_b64 vcc, 0, -1")
e("v_cndmask_b32 v8, v8, v9, vcc")
e("v_cndmask_b32 v11, v13, v10, vcc")
e("v_lshlrev_b32 v10, 12, v10")
e(f"v_lshl_add_u32 v{vDIM}, v4, 6, v10")
e("v_lshlrev_b32 v10, 12, v13")
e(f"v_lshl_add_u32 v{vDRE}, v4, 6, v10")
e("v_lshlrev_b32 v10, 18, v3")
e(f"v_lshl_add_u32 v{vF}, v4, 4, v10")
e(f"v_lshrrev_b32 v10, 3, v{vL}")
e("v_lshlrev_b32 v10, 5, v10")
e(f"v_and_b32 v9, 7, v{vL}")
e("v_add_u32 v10, v10, v9")
e(f"v_lshlrev_b32 v{vPK}, 7, v10             ; K/V flags 32g + (0..7)")
e("v_lshlrev_b32 v11, 11, v11")
e(f"v_lshl_add_u32 v{vB2O}, v4, 5, v11")
e(f"v_mul_u32_u24 v9, {32*HROW}, v4")
e(f"v_lshl_add_u32 v{vB2A}, v8, 2, v9")
e(f"s_cmp_eq_u32 s{sRET}, 0")
e(f"s_mov_b32 s{sRET}, 2")
e("s_cbranch_scc1 L_tagged")
lab("L_addr_2")
if opt['alow']: e(f"s_setprio {opt['prioX']}")
e(f"v_mov_b32 v{vCNT}, {MISC+C_G1}")
vCB = 11 if False else 249
if opt['bytef']: e(f"v_add_u32 v{vCNT+1}, s{sA}, v{vCNT}")
e(f"v_mov_b32 v{vCNT+1}, 1") if not opt['bytef'] else None
e("s_waitcnt vmcnt(0)")
stamp(18)
if opt['prepoll']:
    e(f"v_cmp_ne_u64 vcc, {sr(sNON,2)}, {vr(ACC+6,2)}")
e("s_barrier")
if opt['prepoll']:
    e("s_cmp_eq_u64 vcc, 0")
    e("s_cbranch_scc1 L_kv_all")
poll("L_pollKV", 1, vPK, 8, [sKP], sleep=1)
lab("L_kv_all")
stamp(4)
e("s_setprio 0")
LOW[0] = True
for G in range(1, 3): kvdma(G)
stamp(23)
e("s_waitcnt vmcnt(4)")
stamp(24)
e(f"s_mov_b64 exec, {hex(1 << (1)) if opt['bytef'] else 1}")
e(f"ds_write_b8 v{vCNT+1}, v{vL} offset:{0}" if opt['bytef'] else f"ds_add_u32 v{vCNT}, v{vCNT+1} offset:{0}")
e("s_mov_b64 exec, -1")
for G in range(3, 8): kvdma(G)
XF, WF = D1, D1 + 8
cm("pull this workgroup's 1/32 share of what its XCD reads for the spectral part and of wo towards L2")
e(f"s_lshl_b32 s{sT0}, s{sJ}, 13")
e(f"s_cmp_eq_u32 s{sA}, 1")
e("s_cbranch_scc1 L_pf1")
e(f"s_cmp_eq_u32 s{sA}, 2")
e("s_cbranch_scc1 L_pf2")
e(f"s_cmp_eq_u32 s{sA}, 3")
e("s_cbranch_scc1 L_pf3")
e(f"s_lshl_b32 s{sT0}, s{sJ}, 16")
e(f"s_lshl_b32 s{sT1}, s{sXCD}, 13")
e(f"s_add_u32 s{sT0}, s{sT0}, s{sT1}")
e(f"buffer_load_dword v{D2+8}, v{vPH}, {sr(R_XB,4)}, s{sT0} offen")
e("s_branch L_pf4")
lab("L_pf1")
e(f"buffer_load_dword v{D2+8}, v{vPH}, {sr(R_HRE,4)}, s{sT0} offen")
e("s_branch L_pf4")
lab("L_pf2")
e(f"buffer_load_dword v{D2+8}, v{vPH}, {sr(R_HIM,4)}, s{sT0} offen")
e("s_branch L_pf4")
lab("L_pf3")
e(f"s_lshl_b32 s{sT0}, s{sJ}, 14")
e(f"buffer_load_dword v{D2+8}, v{vPH}, {sr(R_WO,4)}, s{sT0} offen")
lab("L_pf4")
sSL, sWOS, sWOB = 30, 31, 96
e(f"s_lshl_b32 s{sSL}, s{sA}, 11")
e(f"s_add_u32 s{sSL}, s{sSL}, {STG}")
e(f"s_lshl_b32 s{sWOS}, s{sHG}, 7")
e(f"s_lshl_b32 s{sT1}, s{sA}, 14")
e(f"s_add_u32 s{sWOB}, s{sWOS}, s{sT1}")
e(f"s_lshr_b32 s{sT1}, s{sA}, 1")
e(f"s_lshl_b32 s{sT1}, s{sT1}, 6")
e(f"s_add_u32 s{sWOS}, s{sWOS}, s{sT1}")
VM = []
def st_dma(n):
    if n >= 24: return
    for i in range(2):
        if n < 16:
            e(f"s_add_u32 m0, s{sSL}, {8192*(n%3) + 1024*i - 64*n}")
            e("s_nop 0")
            e(f"global_load_lds_dwordx4 {vr(vG0 + 2*i, 2)}, off offset:{64*n}" if not opt['abl'] & 2 else "s_nop 0")
        else:
            e(f"s_add_u32 m0, s{sSL}, {8192*(n%3) + 1024*i}")
            e(f"s_add_u32 s{sT1}, s{sWOB}, {65536*(n-16) + 8192*i}")
            e(f"buffer_load_dwordx4 v{vWOD}, {sr(R_WO,4)}, s{sT1} offen lds")
        VM.append(('st', n))
def st_sync(n, between=None):
    last = max(k for k, t in enumerate(VM) if t == ('st', n))
    e(f"s_waitcnt vmcnt({len(VM) - 1 - last}) lgkmcnt(0)")
    e(f"s_mov_b64 exec, {hex(1 << (n + 1)) if opt['bytef'] else 1}")
    e(f"ds_write_b8 v{vCNT+1}, v{vL} offset:{C_ST - C_G1}" if opt['bytef'] else f"ds_add_u32 v{vCNT}, v{vCNT+1} offset:{C_ST - C_G1}")
    e("s_mov_b64 exec, -1")
    if between: between()
    e(f"s_mov_b32 s{sSPIN}, {SPIN*8}")
    lab(f"L_st{n}")
    e(f"ds_read_b32 v8, v{vCNT} offset:{C_ST - C_G1}")
    e(f"s_sub_u32 s{sSPIN}, s{sSPIN}, 1")
    e(f"s_cbranch_scc1 L_st{n}_done")
    e("s_waitcnt lgkmcnt(0)")
    if (opt['sp'] if n < 16 else opt['spw']): e("s_setprio 2")
    e(f"v_readfirstlane_b32 s{sT4}, v8")
    e("s_setprio 0")
    if opt['bytef']:
        e(f"s_or_b32 s{sT4}, s{sT4}, 0x80808080")
        e(f"s_sub_u32 s{sT4}, s{sT4}, {hex(0x01010101*(n+1))}")
        e(f"s_and_b32 s{sT4}, s{sT4}, 0x80808080")
        e(f"s_cmp_eq_u32 s{sT4}, 0x80808080")
    else: e(f"s_cmp_ge_u32 s{sT4}, {4*(n+1 - (16 if opt['nob'] else 0))}")
    if opt['ss']:
        e(f"s_cbranch_scc1 L_st{n}_done")
        e(f"s_sleep {opt['ss']}")
        e(f"s_branch L_st{n}")
    else: e(f"s_cbranch_scc0 L_st{n}")
    lab(f"L_st{n}_done")
if not opt['nob']: st_dma(0); st_dma(1)
stamp(17)
e("s_waitcnt vmcnt(5)                    ; younger: one pull, two stages" if not opt['nob'] else "s_waitcnt vmcnt(0)")
e(f"s_mov_b64 exec, {hex(1 << (1)) if opt['bytef'] else 1}")
e(f"ds_write_b8 v{vCNT+1}, v{vL} offset:{4}" if opt['bytef'] else f"ds_add_u32 v{vCNT}, v{vCNT+1} offset:{4}")
e("s_mov_b64 exec, -1")
e(f"s_cmp_eq_u32 s{sA}, 3")
e("s_cbranch_scc0 L_pf5")
e(f"s_add_u32 s{sT0}, s{sT0}, 8192")
e(f"buffer_load_dword v{D2+9}, v{vPH}, {sr(R_WO,4)}, s{sT0} offen     ; not counted below: only makes waits stricter")
lab("L_pf5")
stamp(21)
RAW = BP
def b1mfma(n):
    for s_ in range(2 if not opt['nomf'] else 0):
        e(f"v_mfma_f32_32x32x16_bf16 {vr(ACC,16)}, {vr(XF+4*s_,4)}, {vr(WF+4*s_,4)}, {'0' if n==0 and s_==0 else vr(ACC,16)}")
if opt['nob']:
    e("s_branch L_nob1")
NOB0 = len(L)
for n in range(16 if not opt['nob'] else 0):
    st_sync(n, (lambda: b1mfma(n - 1)) if n else None)
    if n + 2 < 16: st_dma(n + 2)
    for s_ in range(2 if not opt['abl'] & 1 else 0):
        e(f"ds_read_b128 {vr(XF+4*s_,4)}, v{vRX+s_} offset:{8192*(n%3)}")
        e(f"ds_read_b128 {vr(WF+4*s_,4)}, v{vRW+s_} offset:{8192*(n%3)}")
    if n == opt['fst']:
        for kb in range(2): e(f"buffer_load_dwordx4 {vr(FR+4*kb,4)}, v{vF}, {sr(R_SRE,4)}, 0 offen offset:{32*kb}")
        for kb in range(2): e(f"buffer_load_dwordx4 {vr(FR+8+4*kb,4)}, v{vF}, {sr(R_SIM,4)}, 0 offen offset:{32*kb}")
        VM += [('F', 0)]*4
e("s_waitcnt lgkmcnt(0)")
b1mfma(15)
stamp(22)
e(f"s_mul_i32 s{sT0}, s{sS2}, {HROW}")
e(f"s_lshl_b32 s{sT1}, s{sCB}, 6")
e(f"s_add_u32 s{sT0}, s{sT0}, s{sT1}")
e(f"s_add_u32 s{sT0}, s{sT0}, {WS_H}")
nop(7)
vZ = D2 + 8 if False else BP
def boost(on):
    e(f"s_setprio {2 if on else 0}"); LOW[0] = not on
boost(opt['eb'] & 1)
for i in range(8): e(f"v_cvt_pk_bf16_f32 v{vZ+i}, v{ACC+2*i}, v{ACC+2*i+1}")
boost(0)
nop(1)
e(f"v_mfma_f32_32x32x16_bf16 {vr(D1,16)}, {vr(vZ,4)}, {vr(FR,4)}, 0")
e(f"v_mfma_f32_32x32x16_bf16 {vr(D2,16)}, {vr(vZ,4)}, {vr(FR+8,4)}, 0")
e(f"v_mfma_f32_32x32x16_bf16 {vr(D1,16)}, {vr(vZ+4,4)}, {vr(FR+4,4)}, {vr(D1,16)}")
e(f"v_mfma_f32_32x32x16_bf16 {vr(D2,16)}, {vr(vZ+4,4)}, {vr(FR+12,4)}, {vr(D2,16)}")
nop(11)
boost(1)
for r in range(8):
    e(f"v_sub_f32 v{ACC+r}, v{D1+r}, v{D2+8+r}")
    e(f"v_add_f32 v{ACC+8+r}, v{D2+r}, v{D1+8+r}")
e(f"s_cmp_eq_u32 s{sCB}, 0")
e("s_cbranch_scc0 L_nospecial")
cm("columns e = 0 and e = 256 (both purely real rows): lanes 0..31, register 0")
e("s_mov_b32 exec_hi, 0")
e(f"v_mov_b32 v{ACC}, v{D1}")
e(f"v_mov_b32 v{ACC+8}, v{D2}")
e(f"v_cvt_pk_bf16_f32 v8, v{D1+8}, v{D2+8}")
e(f"buffer_store_dword v8, v{vHA}, {sr(R_WS,4)}, s{sT0} offen offset:1024 sc1")
e("s_mov_b64 exec, -1")
lab("L_nospecial")
for r in range(8): e(f"v_cvt_pk_bf16_f32 v{D1+r}, v{ACC+r}, v{ACC+8+r}")
boost(0)
cm("lane (t1, h) holds 32 B of row t1: regroup through LDS so that 4 adjacent lanes store one 64-B run")
e(f"ds_write_b128 v{vHW}, {vr(D1,4)} offset:8192")
e(f"ds_write_b128 v{vHW1}, {vr(D1+4,4)} offset:8192")
e("s_waitcnt lgkmcnt(0)")
e(f"ds_read_b128 {vr(D1+8,4)}, v{vHR} offset:8192")
e(f"ds_read_b128 {vr(D1+12,4)}, v{vHR} offset:9216")
e(f"s_add_u32 s{sT1}, s{sT0}, {16*64*HROW}")
e("s_waitcnt lgkmcnt(0)")
e(f"buffer_store_dwordx4 {vr(D1+8,4)}, v{vHS}, {sr(R_WS,4)}, s{sT0} offen sc1")
e(f"buffer_store_dwordx4 {vr(D1+12,4)}, v{vHS}, {sr(R_WS,4)}, s{sT1} offen sc1")
if opt['nob']: lab("L_nob1")
if not opt['nowo']: st_dma(16); st_dma(17)
if opt['nob']: e("s_branch L_nob2")
def rawloads():
    global VM
    cm("rows of the sequence DFT matrices for B2")
    for i in range(4): e(f"buffer_load_dwordx4 {vr(RAW+4*i,4)}, v{vDRE}, {sr(R_SRE,4)}, 0 offen offset:{16*i}")
    for i in range(4): e(f"buffer_load_dwordx4 {vr(RAW+16+4*i,4)}, v{vDIM}, {sr(R_SIM,4)}, 0 offen offset:{16*i}")
    VM += [('raw', 0)]*8
if not opt['rawlate']: rawloads()
e(f"s_lshl_b32 s{sT1}, s2, 7")
e(f"s_add_u32 s{sT1}, s{sT1}, {FL_H}")
stamp(19)
e(f"s_waitcnt vmcnt({4 if opt['rawlate'] else 12})")
stamp(20)
boost(1)
signal("L_sigH", C_H, 3, sT1, 8)
stamp(5)
def bploc(o): return FR + o if o < 16 else (RAW + o - 16 if o < 24 else RAW + 16 + o - 24)
def perms():
    e(f"s_mov_b32 s{sT2}, 0x05040100")
    e(f"s_mov_b32 s{sT3}, 0x07060302")
    for i in range(16):
        e(f"v_perm_b32 v{bploc(2*i)}, v{RAW+16+i}, v{RAW+i}, s{sT2}")
        e(f"v_perm_b32 v{bploc(2*i+1)}, v{RAW+16+i}, v{RAW+i}, s{sT3}")
if not opt['b2tail']: perms()
boost(0)
if opt['rawlate'] and not opt['abl'] & 4: rawloads()
if opt['nob']: lab("L_nob2")
def wo_stage(n):
    if opt['nowo']: return
    st_sync(n)
    st_dma(n + 2)
    for k in range(4):
        ks = 4*(n - 16) + k
        e(f"ds_read_b64_tr_b16 {vr(BUF+4*ks,2)}, v{vWOT} offset:{8192*(n%3) + 2048*k}")
        e(f"ds_read_b64_tr_b16 {vr(BUF+4*ks+2,2)}, v{vWOT} offset:{8192*(n%3) + 2048*k + 512}")
for n in range(16, 16 + opt['wsplit']): wo_stage(n)
stamp(6)
boost(1)
if opt['pre']:
    cm("aux wave 2 touches the O lines this workgroup will write and the 8 flags of its token block")
    e(f"s_cmp_eq_u32 s{sA}, 2")
    e("s_cbranch_scc0 L_nopre")
    e(f"v_lshrrev_b32 v8, 5, v{vL}")
    e(f"v_and_b32 v9, 31, v{vL}")
    e("v_lshlrev_b32 v9, 7, v9")
    e("v_lshl_add_u32 v8, v8, 15, v9")
    e(f"s_lshl_b32 s{sT0}, s{sTB}, 16")
    e(f"s_lshl_b32 s{sT1}, s{sHG}, 12")
    e(f"s_add_u32 s{sT0}, s{sT0}, s{sT1}")
    e(f"s_add_u32 s{sT0}, s{sT0}, {WS_O}")
    e(f"buffer_load_dword v10, v8, {sr(R_WS,4)}, s{sT0} offen sc1")
    e(f"v_and_b32 v9, 0xf80, v{vPH}")
    e(f"s_lshl_b32 s{sT0}, s{sTB}, 12")
    e(f"s_add_u32 s{sT0}, s{sT0}, {FL_O}")
    e(f"buffer_load_dword v11, v9, {sr(R_WS,4)}, s{sT0} offen sc1")
    e("s_waitcnt vmcnt(0)")
    lab("L_nopre")
cm("aux wave 1: XCD ids of the 8 workgroups of this token block: ids 32*hg + (id & 31)")
e(f"s_cmp_eq_u32 s{sA}, 1")
e("s_cbranch_scc0 L_nosame")
e(f"v_and_b32 v8, 7, v{vL}")
e("v_lshlrev_b32 v8, 12, v8")
e(f"s_and_b32 s{sT0}, s2, 31")
e(f"s_lshl_b32 s{sT0}, s{sT0}, 7")
e(f"s_add_u32 s{sT0}, s{sT0}, {FL_X}")
e(f"buffer_load_dwordx2 v[10:11], v8, {sr(R_WS,4)}, s{sT0} offen sc1")
e(f"s_getreg_b32 s{sX}, hwreg(HW_REG_XCC_ID, 0, 4)")
e(f"s_or_b32 s{sX}, s{sX}, s{sNON}")
e(f"s_mov_b32 s{sX+1}, s{sNON+1}")
e(f"v_mov_b32 v9, {MISC+C_SAME}")
e("s_waitcnt vmcnt(0)")
e(f"v_cmp_ne_u64 vcc, {sr(sX,2)}, v[10:11]")
e("s_nop 0")
e("s_cmp_eq_u64 vcc, 0")
e(f"s_cselect_b32 s{sT0}, {1 if opt['fast'] else 0}, 0")
e(f"v_mov_b32 v11, s{sT0}")
e("ds_write_b32 v9, v11")
lab("L_nosame")
if opt['nob'] or opt['abl'] & 4: e("s_branch L_b2done")
cm("B2: wait for the H rows it reads: column groups ebg (direct) or 7-ebg and (8-ebg)&3 (mirrored)")
e(f"s_cmp_eq_u32 s{sA}, 0")
e("s_cbranch_scc0 L_hwait")
e(f"s_lshr_b32 s{sT2}, s{sJ}, 2              ; ebg")
e(f"s_sub_u32 s{sT0}, 7, s{sT2}")
e(f"s_sub_u32 s{sT1}, 8, s{sT2}")
e(f"s_and_b32 s{sT1}, s{sT1}, 3")
e(f"s_cmp_lt_u32 s{sT2}, 4")
e(f"s_cselect_b32 s{sT0}, s{sT2}, s{sT0}")
e(f"s_cselect_b32 s{sT1}, s{sT2}, s{sT1}")
e(f"s_lshl_b32 s{sT0}, s{sT0}, 13")
e(f"s_lshl_b32 s{sT1}, s{sT1}, 13")
e(f"s_add_u32 s{sT0}, s{sT0}, {FL_H}")
e(f"s_add_u32 s{sT1}, s{sT1}, {FL_H}")
poll("L_pollH", 2, vPH, 8, [sT0, sT1], sleep=8)
e(f"v_mov_b32 v10, {MISC+C_HOK}")
e("v_mov_b32 v11, 1")
e("ds_write_b32 v10, v11")
e("s_branch L_hok")
lab("L_hwait")
lds_wait("L_hw", C_HOK, 1, 10, sleep=8)
lab("L_hok")
boost(0)
stamp(7)
e(f"s_mul_i32 s{sT0}, s{sT1S}, {64*HROW}")
e(f"s_add_u32 s{sT0}, s{sT0}, {WS_H}")
AF = 208
for kb in range(8):
    for w in range(4): e(f"buffer_load_dword v{AF+4*kb+w}, v{vB2A}, {sr(R_WS,4)}, s{sT0} offen offset:{w*HROW} sc1")
    if kb < 7: e(f"s_add_u32 s{sT0}, s{sT0}, {4*HROW}")
VM += [('A', 0)]*32
sB2 = 88
def b2compute(low):
    e(f"s_lshl_b32 s{sB2}, s{sEB}, 6")
    e(f"s_add_u32 s{sB2}, s{sB2}, 1024")
    for kb in range(8):
        if low: e(f"s_waitcnt vmcnt({28-4*kb})")
        e(f"v_mfma_f32_32x32x16_bf16 {vr(ACC,16)}, {vr(AF+4*kb,4)}, {vr(bploc(4*kb),4)}, {'0' if kb==0 else vr(ACC,16)}")
    nop(11 if low else 12)
    if low: boost(1)
    for i in range(8): e(f"v_cvt_pk_bf16_f32 v{AF+8+i}, v{ACC+2*i}, v{ACC+2*i+1}")
    if low: b2store()
vRG, vS0, vS1, vO0 = 240, 241, 242, 243
def regroup(src, dst):
    e(f"ds_write_b128 v{vHW}, {vr(src,4)} offset:8192")
    e(f"ds_write_b128 v{vHW1}, {vr(src+4,4)} offset:8192")
    e("s_waitcnt lgkmcnt(0)")
    e(f"ds_read_b128 {vr(dst,4)}, v{vRG} offset:8192")
    e(f"ds_read_b128 {vr(dst+4,4)}, v{vRG} offset:9216")
def rg_addr():
    e(f"v_add_u32 v{vRG}, s{sSL}, v2")
    e(f"v_lshrrev_b32 v8, 4, v{vL}")
    e(f"v_xor_b32 v8, v8, v{vL}")
    e("v_and_b32 v8, 3, v8")
    e("v_lshlrev_b32 v8, 4, v8                 ; chunk * 16")
    e(f"v_lshrrev_b32 v9, 2, v{vL}              ; r")
    e(f"s_lshl_b32 s{sT3}, s{sTB}, 1")
    e(f"s_add_u32 s{sT3}, s{sT3}, s{sTT}")
    e(f"s_lshl_b32 s{sT3}, s{sT3}, 5")
    e(f"v_add_u32 v10, s{sT3}, v9")
    e("v_lshlrev_b32 v10, 11, v10")
    e(f"v_add_u32 v{vO0}, v10, v8")
    e(f"s_lshl_b32 s{sT3}, s{sTT}, 10")
    e(f"s_add_u32 s{sT3}, s{sT3}, s{sT1S}")
    e(f"v_lshl_add_u32 v9, v9, 5, s{sT3}         ; ts")
    e("v_add_u32 v10, 0x200, v9")
    e("v_sub_u32 v11, 0x800, v9")
    e("v_and_b32 v11, 0x7ff, v11")
    e(f"v_sub_u32 v{vS1}, 0x800, v10")
    e(f"s_cmp_lt_u32 s{sEB}, 8")
    e("s_cselect_b64 vcc, 0, -1")
    e("v_cndmask_b32 v9, v9, v11, vcc")
    e(f"v_cndmask_b32 v10, v10, v{vS1}, vcc")
    e(f"v_lshl_add_u32 v{vS0}, v9, 11, v8")
    e(f"v_lshl_add_u32 v{vS1}, v10, 11, v8")
def b2store():
    if opt['rg'] & 1:
        e(f"buffer_store_dwordx4 {vr(AF+16,4)}, v{vS0}, {sr(R_OUT,4)}, s{sB2} offen{OSC}")
        e(f"buffer_store_dwordx4 {vr(AF+20,4)}, v{vS1}, {sr(R_OUT,4)}, s{sB2} offen{OSC}")
        return
    e(f"buffer_store_dwordx4 {vr(AF+8,4)}, v{vB2O}, {sr(R_OUT,4)}, s{sB2} offen{OSC}")
    e(f"buffer_store_dwordx4 {vr(AF+12,4)}, v{vB2O}, {sr(R_OUT,4)}, s{sB2} offen offset:16{OSC}")
if not opt['b2tail']: b2compute(True)
lab("L_b2done")
boost(0)
stamp(8)
for n in range(16 + opt['wsplit'], 24): wo_stage(n)
e("s_waitcnt vmcnt(0) lgkmcnt(0)")
if opt['b2s']:
    boost(1)
    perms()
    rg_addr()
    boost(0)
    e(f"s_lshl_b32 s{sB2}, s{sEB}, 6")
    e(f"s_add_u32 s{sB2}, s{sB2}, 1024")
    for kb in range(8):
        e(f"v_mfma_f32_32x32x16_bf16 {vr(ACC,16)}, {vr(AF+4*kb,4)}, {vr(bploc(4*kb),4)}, {'0' if kb==0 else vr(ACC,16)}")
    nop(11)
    boost(1)
    for i in range(8): e(f"v_cvt_pk_bf16_f32 v{AF+8+i}, v{ACC+2*i}, v{ACC+2*i+1}")
    boost(0)
    regroup(AF+8, AF+16)
    e("s_waitcnt lgkmcnt(0)")
    sc = " sc1" if opt['b2s'] == 1 else ""
    e(f"buffer_store_dwordx4 {vr(AF+16,4)}, v{vS0}, {sr(R_OUT,4)}, s{sB2} offen{sc}")
    e(f"buffer_store_dwordx4 {vr(AF+20,4)}, v{vS1}, {sr(R_OUT,4)}, s{sB2} offen{sc}")
stamp(10)
warm("L_padt", "L_pado_ret")
cm("tail: the attention waves bring the O tile -> LDS 0..")
e("s_barrier                             ; B7")
LOW[0] = False
stamp(9)
if opt['b2tail'] and not opt['nob'] and not opt['abl'] & 20 and not opt['b2s']:
    cm("second spectral stage: operands are in registers, the matrix pipe is free until the O tile lands")
    perms()
    if opt['rg']: rg_addr()
    b2compute(False)
    if opt['rg'] & 1:
        regroup(AF+8, AF+16)
        e("s_waitcnt lgkmcnt(0)")
e(f"s_mov_b32 s{sT0}, s{sWOS}")
stamp(11)
e("s_barrier                             ; B8a")
pad_begin("L_pado")
OF = 144
korder = [h for st in range(4) for h in range(32) if (h % 8) // 2 == st]
PD = opt['opd']
def ofrag(n): e(f"ds_read_b128 {vr(OF+4*(n%8),4)}, v{vOF} offset:{1024*korder[n]}")
for n in range(PD): ofrag(n)
if opt['b2at'] == 0 and opt['b2tail'] and not opt['nob'] and not opt['abl'] & 28 and not opt['b2s']: b2store()
for n in range(32):
    if n + PD in (8, 16, 24):
        e(f"s_barrier                             ; B8.{(n+PD)//8}")
        if n + PD == opt['b2at'] and opt['b2tail'] and not opt['nob'] and not opt['abl'] & 28 and not opt['b2s']: b2store()
    if n + PD < 32:
        ofrag(n + PD)
        e(f"s_waitcnt lgkmcnt({PD})")
    else:
        e(f"s_waitcnt lgkmcnt({31-n})")
    e(f"v_mfma_f32_32x32x16_bf16 {vr(ACC,16)}, {vr(BUF+4*korder[n],4)}, {vr(OF+4*(n%8),4)}, {'0' if n==0 else vr(ACC,16)}")
nop(12)
for i in range(8): e(f"v_cvt_pk_bf16_f32 v{D1+i}, v{ACC+2*i}, v{ACC+2*i+1}")
if opt['rg'] & 2:
    regroup(D1, D1+8)
    e(f"s_add_u32 s{sT1}, s{sT0}, {16*2048}")
    e("s_waitcnt lgkmcnt(1)")
    e(f"buffer_store_dwordx4 {vr(D1+8,4)}, v{vO0}, {sr(R_OUT,4)}, s{sT0} offen{OSC}")
    e("s_waitcnt lgkmcnt(0)")
    e(f"buffer_store_dwordx4 {vr(D1+12,4)}, v{vO0}, {sr(R_OUT,4)}, s{sT1} offen{OSC}")
else:
    e(f"buffer_store_dwordx4 {vr(D1,4)}, v{vOUT}, {sr(R_OUT,4)}, s{sT0} offen{OSC}")
    e(f"buffer_store_dwordx4 {vr(D1+4,4)}, v{vOUT}, {sr(R_OUT,4)}, s{sT0} offen offset:16{OSC}")
pad_end("L_pado", "L_pado_ret")
if opt['dbgt']:
    e(f"s_cmp_lt_u32 s2, 6")
    e("s_cbranch_scc0 L_end")
    e(f"s_cmp_eq_u32 s{sW}, 4")
    e("s_cbranch_scc0 L_end")
    e("s_waitcnt vmcnt(0)")
    e(f"s_memrealtime {sr(sST,2)}")
    e("s_waitcnt lgkmcnt(0)")
    e(f"v_mov_b32 v4, s{sST}")
    e(f"s_lshl_b32 s{sT0}, s2, 2")
    e(f"s_add_u32 s{sT0}, s{sT0}, 40")
    e("s_mov_b64 exec, 1")
    e(f"buffer_store_dword v4, off, {sr(R_DBG,4)}, s{sT0}")
if opt['endat']:
    lab("L_endat")
    e(f"s_memrealtime {sr(sX,2)}")
    e("s_waitcnt lgkmcnt(0)")
    e(f"s_sub_u32 s{sX}, s{sX}, s3")
    e(f"s_cmp_lt_u32 s{sX}, {opt['endat']}")
    e("s_cbranch_scc1 L_endat")
stamp(12)
if opt['stamps']: e("s_waitcnt vmcnt(0)")
stamp(13)
stamp_dump()
lab("L_end")
e("s_endpgm")
lab("L_codeend")
L.append(f""".section .rodata,"a"
.p2align 6
.amdhsa_kernel {NAME}_kernel
  .amdhsa_next_free_vgpr 256
  .amdhsa_next_free_sgpr 102
  .amdhsa_accum_offset 256
  .amdhsa_group_segment_fixed_size 0
  .amdhsa_kernarg_size 104
  .amdhsa_user_sgpr_count 2
  .amdhsa_user_sgpr_kernarg_segment_ptr 1
  .amdhsa_system_sgpr_workgroup_id_x 1
.end_amdhsa_kernel""")

def finish(lines, ncode):
    out = []
    for l in lines:
        if l.strip() == "CODEPF":
            for i in range(ncode // 8192):
                out.append(f"    global_load_dword v200, v[212:213], off")
                out.append(f"    v_add_co_u32 v212, vcc, 0x2000, v212")
                out.append(f"    s_nop 1")
                out.append(f"    v_addc_co_u32 v213, vcc, 0, v213, vcc")
            rem = (ncode % 8192) // 128
            if rem:
                out.append(f"    v_cmp_gt_u32 vcc, {rem}, v{vL}")
                out.append(f"    s_nop 0")
                out.append(f"    s_and_saveexec_b64 {sr(sX,2)}, vcc")
                out.append(f"    global_load_dword v200, v[212:213], off")
                out.append(f"    s_mov_b64 exec, -1")
        else: out.append(l)
    return "\n".join(out) + "\n"
import subprocess, os, hazcheck
ncode = 16384
for _ in range(3):
    txt = finish(L, ncode)
    open("_g.s", "w").write(txt)
    r = subprocess.run(["clang", "-x", "assembler", "-target", "amdgcn-amd-amdhsa", "-mcpu=gfx950", "-c", "_g.s", "-o", "_g.o"], capture_output=True, text=True)
    if r.returncode: print(r.stderr[:3000]); sys.exit(1)
    sz = subprocess.run(["llvm-objdump", "-h", "_g.o"], capture_output=True, text=True).stdout
    n = [int(x.split()[2], 16) for x in sz.splitlines() if " .text " in x][0]
    if n // 128 * 128 == ncode: break
    ncode = n // 128 * 128
open(sys.argv[1], "w").write(txt)
print(hazcheck.check(txt), "hazards; code bytes", n)
```

```python
import sys, struct
NAME = "concat_heads__grouped_kv_mqa__spectral_fnet__prompt"
opt = dict(w3late=0, alow=1, stamps=0, prioA=1, prioX=2, boost=1, force_fb=0, dbgt=0, dry=0, codepf=0, shift=102, outsc1=0, cluster=1, fast=1, nob=0, l2pf=0, wo1=4, hold=1, pre=1, pads=0, dxcc=-1, dus=300, endat=0, omode=1, b2tail=1, kvd=3, h1=1, h2=4, fs=3, ntc=9, nowo=0, nodsw=0, nomf=0, sp=0, ss=1, wsplit=8, attpf=0, rawlate=1, dftpf=1, fst=3, spw=0, eb=12, qloop=0, padt=0, opd=4, b2at=8, abl=0, preo=0, rg=0, prepoll=0, lwarm=0, csync=0, bytef=0, first=1, b2s=0, mt=1, win=8, win2=8, pa=0, baat=0)
for a in sys.argv[2:]:
    k, v = a.split('='); opt[k] = int(v)

L = []
DOC = '''; ---------------------------------------------------------------------------------------------------------------
; One persistent launch, 256 workgroups (one per CU) x 8 waves.  Workgroup id -> xcd = id & 7 (locality hint only),
;       S^T = K Q^T + C by MFMA (C = -(stand-in max + shift), scale folded into Q), v_exp_f32 in place, and
;       P V by the 2:4 sparse MFMA whose index picks the upper halves of the fp32 registers (bf16 by truncation);
;       a row of constants in the V operand yields the row sum.  The stand-in max is checked after the loop and
;   waves 4..7 ("aux"): K or V projection of 16 tokens, K/V streaming into LDS, the spectral part
; Hand-offs between workgroups go through d_ws: data stores, s_waitcnt, then a flag (one 128-B line each) holding
; flags from stale ones.  Stores are write-through (sc1) unless all workgroups of the hand-off reported the same XCD;
; ---------------------------------------------------------------------------------------------------------------'''
def e(s=""): L.append("    " + s)
def lab(s): L.append(s + ":")
def cm(s): L.append("    ; " + s)
def vr(a, n): return f"v[{a}:{a+n-1}]" if n > 1 else f"v{a}"
def sr(a, n): return f"s[{a}:{a+n-1}]" if n > 1 else f"s{a}"
def nop(n):
    while n > 0:
        k = min(n, 16); e(f"s_nop {k-1}"); n -= k
def f2u(x): return struct.unpack('<I', struct.pack('<f', x))[0]
OSC = " sc1" if opt['outsc1'] else ""

W_OFF = 0
X_OFF, XROW = 16384, 1040
WQ_OFF = 82944
ONES_OFF = 155648
MISC = ONES_OFF + 1024
STG = 131072
LDS_BYTES = 163840
C_KV, C_H, C_O, C_TAG, C_HOK, C_SAME, C_CR, C_QA, C_QB, C_G1, C_KVL, C_ST = 0, 4, 8, 16, 24, 28, 32, 36, 40, 44, 48, 52
WS_KV, WS_O, WS_H, WS_FL = 0, 0x40000, 0x240000, 0x480000
FL_KV, FL_H, FL_X, FL_O = WS_FL, WS_FL + 0x8000, WS_FL + 0x10000, WS_FL + 0x20000
WS_STAMP = 0x4C0000
WS_SIZE = 0x560000
HROW = 1152
FOUR = 0x01010101 if opt['bytef'] else 4
SPIN = 400000
VSCALE = 64
P_XA, P_WQ, P_WK, P_WV, P_WO, P_XB, P_SRE, P_SIM = 4, 6, 8, 10, 12, 14, 16, 18
P_HRE, P_HIM, P_OUT, P_DBG, P_WS = 20, 22, 24, 26, 28
R_XA, R_WQ, R_W, R_WS, R_WO, R_XB, R_SRE, R_SIM, R_OUT, R_DBG = 32, 36, 40, 44, 48, 52, 56, 60, 64, 68
sW, sXCD, sJ, sTB, sHG, sTHP, sA = 72, 73, 74, 75, 76, 77, 78
sT0, sT1, sT2, sT3, sT4 = 80, 81, 82, 83, 84
sDRY = 85
sNON = 86
sIT, sINC, sFB, sSPIN = 88, 89, 90, 91
sX = 92
sST = 94
sBARN = 96
sRET = 90

def srd(r, p, size):
    e(f"s_mov_b32 s{r}, s{p}")
    e(f"s_and_b32 s{r+1}, s{p+1}, 0xffff")
    e(f"s_mov_b32 s{r+2}, {hex(size)}")
    e(f"s_mov_b32 s{r+3}, 0x20000")

LOW = [False]
vL = 1
def stamp(idx):
    if not opt['stamps']: return
    e(f"s_memrealtime {sr(sST,2)}")
    e(f"s_memtime {sr(sX,2)}")
    e("s_waitcnt lgkmcnt(0)")
    if LOW[0]: e("s_setprio 2")
    e(f"v_writelane_b32 v254, s{sST}, {idx}")
    e(f"v_writelane_b32 v255, s{sX}, {idx}")
    if LOW[0]: e("s_setprio 0")
def stamp_dump():
    if not opt['stamps']: return
    e(f"s_lshl_b32 s{sST}, s2, 3")
    e(f"s_add_u32 s{sST}, s{sST}, s{sW}")
    e(f"s_lshl_b32 s{sST}, s{sST}, 8")
    e(f"s_add_u32 s{sST}, s{sST}, {WS_STAMP}")
    e(f"v_lshlrev_b32 v253, 3, v{vL}")
    e("s_mov_b32 exec_hi, 0")
    e(f"buffer_store_dwordx2 v[254:255], v253, {sr(R_WS,4)}, s{sST} offen")

PADS = {}
def pad_begin(name): PADS[name] = len(L)
def isize(l):
    t = l.strip()
    if not t or t.startswith((';', '.')) or t.endswith(':'): return 0
    t = t.split(';')[0]
    mn = t.split()[0]
    if mn.startswith(('buffer_', 'global_', 'ds_', 'v_mfma', 'v_smfmac', 's_load', 's_mem')): return 8
    if mn.startswith('v_') and (mn.endswith('_e64') or mn in ('v_lshl_add_u32', 'v_bfe_u32', 'v_perm_b32', 'v_max3_f32', 'v_cvt_pk_bf16_f32', 'v_writelane_b32', 'v_mul_u32_u24', 'v_cmp_ne_u64')): return 8
    import re as _r
    for o in _r.findall(r'(?<![\w\[:])(-?0x[0-9a-f]+|-?\d+)(?![\w\]:])', (t.split(None, 1) + [''])[1]):
        v = int(o, 0)
        if not mn.startswith(('s_waitcnt', 's_nop', 's_sleep', 's_setprio')) and not -16 <= v <= 64: return 8
    return 4
def pad_end(name, ret):
    a = PADS[name]
    if not (opt['pads'] if name == "L_padq" else opt['padt']):
        return
    body = L[a:]; del L[a:]
    n = 0; acc = 0
    L.append(f"{name}_0:"); L.append(f"    s_cbranch_execz {name}_1")
    for l in body:
        z = isize(l)
        prev = L[-1].strip()
        if acc + z > 56 and not prev.startswith(('s_mov_b32 m0', 's_add_u32 m0')):
            n += 1; L.append(f"{name}_{n}:"); L.append(f"    s_cbranch_execz {name}_{n+1}"); acc = 0
        L.append(l); acc += z
    n += 1
    L.append(f"{name}_{n}:"); L.append(f"    s_cbranch_execz {ret}")
def warm(name, ret):
    if not (opt['pads'] if name == "L_padq" else opt['padt']): return
    e("s_mov_b64 exec, 0")
    e(f"s_branch {name}_0")
    lab(ret)
    e("s_mov_b64 exec, -1")

def dma(voff, srdr, soff, ldsaddr_s, extra=""):
    e(f"s_mov_b32 m0, s{ldsaddr_s}")
    e("s_nop 0")
    e(f"buffer_load_dwordx4 v{voff}, {sr(srdr,4)}, s{soff} offen {extra}lds")
def dma_run(n, voff, srdr, soff, lds_s, dsrc, dlds, extra=""):
    for i in range(n):
        e(f"s_mov_b32 m0, s{lds_s}")
        if i < n - 1: e(f"s_add_u32 s{lds_s}, s{lds_s}, {dlds}")
        else: e("s_nop 0")
        e(f"buffer_load_dwordx4 v{voff}, {sr(srdr,4)}, s{soff} offen {extra}lds")
        if i < n - 1: e(f"s_add_u32 s{soff}, s{soff}, {dsrc}")

def poll(name, nloads, voff, dst, soffs, sleep=0):
    e(f"s_mov_b32 s{sSPIN}, {SPIN}")
    lab(name)
    for i in range(nloads):
        e(f"buffer_load_dwordx2 {vr(dst+2*i,2)}, v{voff}, {sr(R_WS,4)}, s{soffs[i]} offen sc1")
    e(f"s_sub_u32 s{sSPIN}, s{sSPIN}, 1")
    e(f"s_cmp_eq_u32 s{sSPIN}, 0")
    e(f"s_cbranch_scc1 {name}_done")
    e("s_waitcnt vmcnt(0)")
    e(f"v_cmp_ne_u64 vcc, {sr(sNON,2)}, {vr(dst,2)}")
    for i in range(1, nloads):
        e(f"v_cmp_ne_u64 {sr(sX,2)}, {sr(sNON,2)}, {vr(dst+2*i,2)}")
        e("s_nop 0")
        e(f"s_or_b64 vcc, vcc, {sr(sX,2)}")
    e("s_nop 0")
    e("s_cmp_eq_u64 vcc, 0")
    if sleep:
        e(f"s_cbranch_scc1 {name}_done")
        e(f"s_sleep {sleep}")
        e(f"s_branch {name}")
    else:
        e(f"s_cbranch_scc0 {name}")
    lab(name + "_done")
    e("s_waitcnt vmcnt(0)")

def lds_wait(name, off, value, tmp, sleep=0):
    e(f"s_mov_b32 s{sSPIN}, {SPIN*8}")
    e(f"v_mov_b32 v{tmp}, {MISC + off}")
    lab(name)
    e(f"ds_read_b32 v{tmp+1}, v{tmp}")
    e(f"s_sub_u32 s{sSPIN}, s{sSPIN}, 1")
    e(f"s_cmp_eq_u32 s{sSPIN}, 0")
    e(f"s_cbranch_scc1 {name}_done")
    e("s_waitcnt lgkmcnt(0)")
    e(f"v_readfirstlane_b32 s{sT4}, v{tmp+1}")
    e("s_nop 0")
    e(f"s_cmp_ge_u32 s{sT4}, {value}")
    if sleep:
        e(f"s_cbranch_scc1 {name}_done")
        e(f"s_sleep {sleep}")
        e(f"s_branch {name}")
    else:
        e(f"s_cbranch_scc0 {name}")
    lab(name + "_done")
    e("s_waitcnt lgkmcnt(0)")
def lds_add(off, tmp):
    e(f"v_mov_b32 v{tmp}, {MISC + off}")
    e(f"v_mov_b32 v{tmp+1}, 1")
    e("s_mov_b64 exec, 1")
    e(f"ds_add_u32 v{tmp}, v{tmp+1}")
    e("s_mov_b64 exec, -1")
def tag_from_lds(name, tmp):
    e(f"s_mov_b32 s{sSPIN}, {SPIN*8}")
    e(f"v_mov_b32 v{tmp}, {MISC+C_TAG}")
    lab(name)
    e(f"ds_read_b64 {vr(tmp+2,2)}, v{tmp}")
    e(f"s_sub_u32 s{sSPIN}, s{sSPIN}, 1")
    e(f"s_cmp_eq_u32 s{sSPIN}, 0")
    e(f"s_cbranch_scc1 {name}_done")
    e("s_waitcnt lgkmcnt(0)")
    e(f"v_readfirstlane_b32 s{sNON}, v{tmp+2}")
    e(f"v_readfirstlane_b32 s{sNON+1}, v{tmp+3}")
    e(f"s_cmp_lg_u32 s{sNON}, 0")
    e(f"s_cbranch_scc1 {name}_done")
    e(f"s_sleep {opt['fs']}")
    e(f"s_branch {name}")
    lab(name + "_done")
    e("s_waitcnt lgkmcnt(0)")

def signal(name, ctr_off, last, flag_soff_s, tmp, lo=None, plain_if=None):
    e(f"v_mov_b32 v{tmp}, {MISC + ctr_off}")
    e(f"v_mov_b32 v{tmp+1}, 1")
    e(f"s_mov_b64 exec, 1")
    e(f"ds_add_rtn_u32 v{tmp+1}, v{tmp}, v{tmp+1}")
    e(f"v_mov_b32 v{tmp+2}, s{sNON if lo is None else lo}")
    e(f"v_mov_b32 v{tmp+3}, s{sNON+1}")
    e("s_waitcnt lgkmcnt(0)")
    e(f"v_readfirstlane_b32 s{sT4}, v{tmp+1}")
    e("s_nop 0")
    e(f"s_cmp_eq_u32 s{sT4}, {last}")
    e(f"s_cbranch_scc0 {name}_nf")
    if plain_if is not None:
        e(f"s_cmp_eq_u32 s{plain_if}, 0")
        e(f"s_cbranch_scc1 {name}_wt")
        e(f"buffer_store_dwordx2 {vr(tmp+2,2)}, off, {sr(R_WS,4)}, s{flag_soff_s}")
        if opt['omode'] < 2: e(f"s_branch {name}_nf")
        lab(name + "_wt")
    e(f"buffer_store_dwordx2 {vr(tmp+2,2)}, off, {sr(R_WS,4)}, s{flag_soff_s} sc1")
    lab(name + "_nf")
    e("s_mov_b64 exec, -1")

hdr = open(f"cdna_kernels/{NAME}.s.ref").read().split("; Override launch")[0]
L.append(hdr.rstrip())
L.append(f"; @launch grid=(256,1,1) block=(512,1,1) lds={LDS_BYTES}")
L.append('.amdgcn_target "amdgcn-amd-amdhsa--gfx950"')
L.append(DOC)
L.append(".text")
L.append(f".globl {NAME}_kernel")
L.append(".p2align 8")
L.append(f".type {NAME}_kernel,@function")
lab(f"{NAME}_kernel")
e("s_cmp_ge_u32 s2, 256")
e("s_cbranch_scc1 L_end")
e("s_load_dwordx16 s[4:19], s[0:1], 0")
e("s_load_dwordx8 s[20:27], s[0:1], 64")
e("s_load_dwordx2 s[28:29], s[0:1], 96")
e(f"s_memrealtime {sr(sNON,2)}")
if opt['endat'] or opt['baat']:
    e("s_waitcnt lgkmcnt(0)")
    e(f"s_mov_b32 s3, s{sNON}")
if opt['dxcc'] >= 0:
    e(f"s_getreg_b32 s{sT0}, hwreg(HW_REG_XCC_ID, 0, 4)")
    e(f"s_cmp_eq_u32 s{sT0}, {opt['dxcc']}") if opt['dxcc'] < 8 else e(f"s_cmp_eq_u32 s{sT0}, s{sT0}")
    e("s_cbranch_scc0 L_nodelay")
    e("s_waitcnt lgkmcnt(0)")
    lab("L_delay")
    e(f"s_memrealtime {sr(sX,2)}")
    e("s_waitcnt lgkmcnt(0)")
    e(f"s_sub_u32 s{sX}, s{sX}, s{sNON}")
    e(f"s_cmp_lt_u32 s{sX}, {opt['dus']}")
    e("s_cbranch_scc1 L_delay")
    lab("L_nodelay")
e("v_lshrrev_b32 v2, 6, v0")
e(f"v_and_b32 v{vL}, 63, v0")
e(f"v_readfirstlane_b32 s{sW}, v2")
e(f"s_and_b32 s{sXCD}, s2, 7")
e(f"s_lshr_b32 s{sJ}, s2, 3")
e(f"s_and_b32 s{sT0}, s{sJ}, 3")
e(f"s_lshl_b32 s{sTB}, s{sXCD}, 2")
e(f"s_add_u32 s{sTB}, s{sTB}, s{sT0}")
e(f"s_lshr_b32 s{sHG}, s{sJ}, 2")
e(f"s_lshr_b32 s{sTHP}, s{sHG}, 1")
e(f"s_and_b32 s{sA}, s{sW}, 3")
e(f"v_lshlrev_b32 v2, 4, v{vL}          ; v2 = lane*16")
cm("LDS init while the kernel arguments load: ones / zeros window (even 16-B chunks 2^64, odd chunks 0), counters")
ONE = (127 + VSCALE) << 7
e("v_lshrrev_b32 v5, 3, v0")
e("v_cmp_ne_u32 vcc, 8, v5")
e("v_and_b32 v4, 1, v0")
e("v_add_u32 v4, -1, v4")
e(f"v_and_b32 v4, {hex(ONE << 16 | ONE)}, v4")
e("v_cndmask_b32 v4, 0, v4, vcc")
e(f"v_lshlrev_b32 v3, 4, v0")
e("v_mov_b32 v5, v4")
e("v_mov_b32 v6, v4")
e("v_mov_b32 v7, v4")
e(f"v_add_u32 v3, {ONES_OFF}, v3")
e("ds_write_b128 v3, v[4:7]")
e(f"s_mov_b32 s{R_XA+2}, 0x200000")
e(f"s_mov_b32 s{R_XA+3}, 0x20000")
def aux_first():
    if opt['prioX']: e(f"s_setprio {opt['prioX']}")
    cm("critical loads: projection weight (wk for even hg, wv for odd), x rows 16*blk + 4a + i")
    e(f"s_lshl_b32 s{sT0}, s{sTHP}, 4")
    e(f"s_lshl_b32 s{sT1}, s{sA}, 2")
    e(f"s_add_u32 s{sT0}, s{sT0}, s{sT1}")
    e(f"s_mul_i32 s{sT1}, s{sT0}, {XROW}")
    e(f"s_add_u32 s{sT1}, s{sT1}, {X_OFF}")
    e(f"s_lshl_b32 s{sT2}, s{sTB}, 6")
    e(f"s_add_u32 s{sT2}, s{sT2}, s{sT0}")
    e(f"s_lshl_b32 s{sT2}, s{sT2}, 10")
    e(f"s_lshl_b32 s{sT3}, s{sA}, 12")
    e(f"s_mov_b32 s{R_W+2}, 16384")
    e(f"s_mov_b32 s{R_W+3}, 0x20000")
    e(f"s_mov_b32 m0, s{sT3}")
    e(f"s_bitcmp1_b32 s{sHG}, 0")
    e("s_waitcnt lgkmcnt(0)")
    e(f"s_cselect_b32 s{R_W}, s{P_WV}, s{P_WK}")
    e(f"s_cselect_b32 s{R_W+1}, s{P_WV+1}, s{P_WK+1}")
    e(f"s_and_b32 s{R_W+1}, s{R_W+1}, 0xffff")
    e(f"s_mov_b32 s{R_XA}, s{P_XA}")
    e(f"s_and_b32 s{R_XA+1}, s{P_XA+1}, 0xffff")
    srd(R_DBG, P_DBG, 256)
    cm("workgroup 0, aux wave 3 publishes this launch's hand-off tag")
    e(f"s_or_b32 s{sNON}, s{sNON}, 16")
    e(f"s_and_b32 s{sNON}, s{sNON}, -16")
    e(f"s_lshl_b32 s{sT0}, s2, 3")
    e(f"s_add_u32 s{sT0}, s{sT0}, s{sW}")
    e(f"s_cmp_eq_u32 s{sT0}, 7")
    e("s_cbranch_scc0 L_notag")
    e(f"v_mov_b32 v4, s{sNON}")
    e(f"v_mov_b32 v5, s{sNON+1}")
    e("s_mov_b64 exec, 1")
    e(f"buffer_store_dwordx2 v[4:5], off, {sr(R_DBG,4)}, 0 sc1")
    e("s_mov_b64 exec, -1")
    lab("L_notag")
    NT = lambda b: "nt " if opt['ntc'] >> b & 1 else ""
    for i in range(4): e(f"buffer_load_dwordx4 v2, {sr(R_W,4)}, s{sT3} offen offset:{1024*i} {NT(1)}lds")
    dma_run(4, 2, R_XA, sT2, sT1, 1024, XROW, NT(0))
    stamp(0)
    srd(R_WS, P_WS, WS_SIZE)
    if opt['dbgt']:
        e(f"s_cmp_lt_u32 s2, 8")
        e("s_cbranch_scc0 L_nodbg0")
        e(f"s_cmp_eq_u32 s{sW}, 6")
        e("s_cbranch_scc0 L_nodbg0")
        e(f"v_mov_b32 v4, s{sNON}")
        e(f"s_lshl_b32 s{sT0}, s2, 2")
        e(f"s_add_u32 s{sT0}, s{sT0}, 8")
        e("s_mov_b64 exec, 1")
        e(f"buffer_store_dword v4, off, {sr(R_DBG,4)}, s{sT0}")
        e("s_mov_b64 exec, -1")
        lab("L_nodbg0")
    e("s_barrier                             ; B1")
if opt['first']:
    cm("the aux waves' first loads are the longest dependency chain: their code directly follows the entry")
    e(f"s_cmp_lt_u32 s{sW}, 4")
    e("s_cbranch_scc1 L_att0")
    aux_first()
    e("s_branch L_aux")
    lab("L_att0")
else:
    e(f"s_cmp_ge_u32 s{sW}, 4")
    e("s_cbranch_scc1 L_aux")

cm("wq slice (8 rows x 128 B per load, 16-B chunks swizzled by row bit 1); quarter tb&3 first: distinct among its 4 sharers")
e(f"v_lshrrev_b32 v3, 3, v{vL}          ; r")
e(f"v_and_b32 v4, 7, v{vL}")
e(f"v_bfe_u32 v5, v{vL}, 4, 1           ; (r>>1)&1")
e("v_lshlrev_b32 v5, 2, v5")
e("v_xor_b32 v4, v4, v5")
e("v_lshlrev_b32 v4, 4, v4")
e("v_lshl_add_u32 v13, v3, 10, v4")
e(f"s_mov_b32 s{R_WQ+2}, 0x80000")
e(f"s_mov_b32 s{R_WQ+3}, 0x20000")
def wq_addr(q):
    e(f"s_add_u32 s{sT0}, s{sJ}, {q}")
    e(f"s_and_b32 s{sT0}, s{sT0}, 3")
    e(f"s_lshl_b32 s{sT0}, s{sT0}, 2")
    e(f"s_add_u32 s{sT0}, s{sT0}, s{sW}")
    e(f"s_lshl_b32 s{sT2}, s{sT0}, 15")
    e(f"s_lshl_b32 s{sT1}, s{sHG}, 7")
    e(f"s_add_u32 s{sT2}, s{sT2}, s{sT1}")
    e(f"s_lshl_b32 s{sT1}, s{sT0}, 12")
    e(f"s_add_u32 s{sT1}, s{sT1}, {WQ_OFF}")
wq_addr(0)
e("s_waitcnt lgkmcnt(0)")
e(f"s_mov_b32 s{R_WQ}, s{P_WQ}")
e(f"s_and_b32 s{R_WQ+1}, s{P_WQ+1}, 0xffff")
e(f"s_mov_b32 s{R_XA}, s{P_XA}")
e(f"s_and_b32 s{R_XA+1}, s{P_XA+1}, 0xffff")
stamp(0)
e("s_barrier")
NT = lambda b: "nt " if opt['ntc'] >> b & 1 else ""
dma_run(4, 13, R_WQ, sT2, sT1, 8192, 1024, NT(2))
cm("the 48 rows of the x tile the aux waves do not load: blocks blk+1, blk+2, blk+3 (mod 4), 4 rows per wave each")
def x_addr(d):
    e(f"s_add_u32 s{sT0}, s{sTHP}, {d}")
    e(f"s_and_b32 s{sT0}, s{sT0}, 3")
    e(f"s_lshl_b32 s{sT0}, s{sT0}, 2")
    e(f"s_add_u32 s{sT0}, s{sT0}, s{sW}")
    e(f"s_lshl_b32 s{sT0}, s{sT0}, 2          ; first row")
    e(f"s_mul_i32 s{sT1}, s{sT0}, {XROW}")
    e(f"s_add_u32 s{sT1}, s{sT1}, {X_OFF}")
    e(f"s_lshl_b32 s{sT2}, s{sTB}, 6")
    e(f"s_add_u32 s{sT2}, s{sT2}, s{sT0}")
    e(f"s_lshl_b32 s{sT2}, s{sT2}, 10")
def hold(name, ctr, val):
    lds_wait(name, ctr, val, 8, sleep=opt['fs'])
seq = [('x', 1), ('x', 2), ('x', 3), ('q', 1), ('q', 2), ('q', 3)]
for n, (kind, d) in enumerate(seq):
    (x_addr if kind == 'x' else wq_addr)(d)
    if opt['win']:
        W = opt['win'] if n < 2 else opt['win2']
        if 4*(n + 2) > W: e(f"s_waitcnt vmcnt({W - 4})")
    else:
        if n == opt['h1']: hold("L_hold1", C_CR, FOUR)
        if n == opt['h2']: hold("L_hold2", C_KV, 1)
    if kind == 'x': dma_run(4, 2, R_XA, sT2, sT1, 1024, XROW, NT(3))
    else: dma_run(4, 13, R_WQ, sT2, sT1, 8192, 1024, NT(4))
stamp(7)
srd(R_WS, P_WS, WS_SIZE)
SA, SB, OA, OB, CA, CB = 16, 32, 48, 64, 80, 96
QA, QB, K0, K1, V0, V1 = 112, 116, 120, 124, 128, 136
vIDX, vK, vV = 144, 145, 146
vINC, vV0, vSAME = 147, 150, 151
vXA, vWA = 148, 149
FB = 152
cm("Q-projection addresses")
e(f"s_and_b32 s{sT0}, s{sW}, 1            ; th")
e(f"s_lshr_b32 s{sT1}, s{sW}, 1           ; hp")
e(f"v_and_b32 v3, 31, v{vL}")
e(f"s_lshl_b32 s{sT2}, s{sT0}, 5")
e(f"v_add_u32 v3, s{sT2}, v3")
e(f"v_mul_u32_u24 v3, {XROW}, v3")
e(f"v_lshrrev_b32 v4, 5, v{vL}           ; h")
e(f"v_lshl_add_u32 v14, v4, 4, v3")
e(f"v_bfe_u32 v5, v{vL}, 2, 2            ; r")
e("v_lshl_add_u32 v6, v4, 3, v5          ; 8h + r")
e("v_lshlrev_b32 v6, 7, v6")
e(f"v_bfe_u32 v7, v{vL}, 4, 1            ; g")
e(f"v_and_b32 v8, 1, v{vL}")
e("v_lshl_add_u32 v7, v7, 1, v8          ; 2g + (cc&1)")
e(f"s_lshl_b32 s{sT2}, s{sT1}, 2")
e(f"v_add_u32 v7, s{sT2}, v7")
e(f"v_bfe_u32 v8, v{vL}, 3, 1            ; (r>>1)&1")
e("v_lshlrev_b32 v8, 2, v8")
e("v_xor_b32 v7, v7, v8")
e("v_lshl_add_u32 v6, v7, 4, v6")
e(f"v_bfe_u32 v8, v{vL}, 1, 1")
e("v_lshl_add_u32 v6, v8, 3, v6")
e(f"v_add_u32 v{vWA}, {WQ_OFF}, v6")
e(f"v_add_u32 v{vXA}, {X_OFF}, v14")
cm("attention LDS addresses; V: rows 0..15 -> tile data, lanes 16,20 -> 2^64, other lanes -> 0")
e(f"v_mov_b32 v{vIDX}, 0xdddddddd")
e(f"v_bfe_u32 v5, v{vL}, 4, 1")
e(f"v_xor_b32 v5, 1, v5                   ; 1 for V rows, 0 for the constant lanes")
e(f"v_lshlrev_b32 v{vINC}, 13, v5")
e(f"v_and_b32 v8, 15, v{vL}")
e("v_lshlrev_b32 v9, 8, v4")
e("v_lshl_add_u32 v8, v8, 4, v9")
e(f"v_and_b32 v9, 31, v{vL}")
e("v_add_u32 v10, -20, v9")
e("v_cmp_gt_u32 vcc, 8, v10")
e("v_and_b32 v9, 11, v9")
e("v_min_u32 v9, 1, v9")
e("v_cndmask_b32 v10, 0, 64, vcc")
e(f"v_cmp_eq_u32 vcc, 1, v5")
e("v_lshl_add_u32 v9, v9, 4, v10")
e(f"v_add_u32 v9, {ONES_OFF - 1024}, v9")
e(f"v_cndmask_b32 v{vV0}, v9, v8, vcc")
cm("O fragment destination and flag slot")
sOD, sOF = 97, 98
e(f"s_and_b32 s{sT0}, s{sW}, 1")
e(f"s_lshl_b32 s{sT1}, s{sTB}, 1")
e(f"s_add_u32 s{sT0}, s{sT0}, s{sT1}")
e(f"s_lshl_b32 s{sT0}, s{sT0}, 5          ; (tb*2+th)*32")
e(f"s_lshl_b32 s{sT1}, s{sHG}, 2")
e(f"s_add_u32 s{sT0}, s{sT0}, s{sT1}")
e(f"s_and_b32 s{sT1}, s{sW}, 2")
e(f"s_add_u32 s{sT0}, s{sT0}, s{sT1}")
e(f"s_lshl_b32 s{sT0}, s{sT0}, 10")
e(f"s_add_u32 s{sOD}, s{sT0}, {WS_O}")
e(f"s_lshl_b32 s{sT1}, s{sTB}, 3")
e(f"s_add_u32 s{sT1}, s{sT1}, s{sHG}")
e(f"s_lshl_b32 s{sT1}, s{sT1}, 2")
e(f"s_add_u32 s{sT1}, s{sT1}, s{sW}")
e(f"s_lshl_b32 s{sT1}, s{sT1}, 7")
e(f"s_add_u32 s{sOF}, s{sT1}, {FL_O}")
e(f"s_mov_b32 s{sFB}, 0")
e(f"s_mov_b32 s{sBARN}, 0xa")
e(f"v_mov_b32 v{vSAME}, {MISC}")
sPF, sOL, sOS, vPO = 100, 101, 79, 184
e(f"s_lshl_b32 s{sT0}, s{sTB}, 3")
e(f"s_lshl_b32 s{sT1}, s{sW}, 1")
e(f"s_add_u32 s{sT0}, s{sT0}, s{sT1}")
e(f"s_lshl_b32 s{sT0}, s{sT0}, 9")
e(f"s_add_u32 s{sPF}, s{sT0}, {FL_O}")
e(f"s_lshl_b32 s{sT2}, s{sTB}, 16")
e(f"s_lshl_b32 s{sOL}, s{sW}, 13")
e(f"s_add_u32 s{sT2}, s{sT2}, s{sOL}")
e(f"s_add_u32 s{sOS}, s{sT2}, {WS_O}")
e(f"v_and_b32 v8, 7, v{vL}")
e(f"v_lshlrev_b32 v{vPO}, 7, v8")
for i in range(16): e(f"v_mov_b32 v{OA+i}, 0")
for i in range(16): e(f"v_mov_b32 v{OB+i}, 0")
for i in range(4): e(f"v_mov_b32 v{V1+4+i}, 0")
if opt['qloop']:
    for i in range(16): e(f"v_mov_b32 v{SA+i}, 0")
e(f"v_mov_b32 v{vK}, v2")
e(f"v_mov_b32 v{vV}, v{vV0}")
if opt['dftpf']:
    cm("sequence-DFT rows the aux waves read later (pulled towards L2 from inside the loop):")
    cm("wave 0: cos rows t1s + 32l; wave 1: sin rows 2048 - that; waves 2, 3: cos / sin rows 64 (l & 31)")
    R_DP, vDP = R_XA, 187
    e(f"s_bitcmp1_b32 s{sW}, 0")
    e(f"s_cselect_b64 {sr(R_DP,2)}, {sr(P_SIM,2)}, {sr(P_SRE,2)}")
    e(f"s_and_b32 s{R_DP+1}, s{R_DP+1}, 0xffff")
    e(f"s_mov_b32 s{R_DP+2}, 0x800000")
    e(f"v_lshlrev_b32 v8, 5, v{vL}")
    e(f"v_add_u32 v8, s{sTB}, v8               ; t1s = tb")
    e("v_sub_u32 v9, 0x800, v8")
    e("v_and_b32 v9, 0x7ff, v9")
    e(f"v_lshlrev_b32 v10, 6, v{vL}")
    e("v_and_b32 v10, 0x7ff, v10")
    e(f"s_cmp_eq_u32 s{sW}, 1")
    e("s_cselect_b64 vcc, -1, 0")
    e("v_cndmask_b32 v8, v8, v9, vcc")
    e(f"s_cmp_ge_u32 s{sW}, 2")
    e("s_cselect_b64 vcc, -1, 0")
    e("v_cndmask_b32 v8, v8, v10, vcc")
    e(f"v_lshlrev_b32 v{vDP}, 12, v8")
if opt['preo']:
    cm("output lines this workgroup writes at the end (touched from inside the loop, values unused):")
    cm("waves 0, 2: rows 64tb + l, columns of hg; waves 1, 3: rows tb + 32l (mirrored for hg >= 4), spectral columns of hg")
    vOP, sOP = 186, 30
    srd(R_OUT, P_OUT, 4194304)
    e(f"v_lshlrev_b32 v8, 5, v{vL}")
    e(f"v_add_u32 v8, s{sTB}, v8")
    e("v_sub_u32 v9, 0x800, v8")
    e("v_and_b32 v9, 0x7ff, v9")
    e(f"s_cmp_ge_u32 s{sHG}, 4")
    e("s_cselect_b64 vcc, -1, 0")
    e("v_cndmask_b32 v8, v8, v9, vcc")
    e(f"s_lshl_b32 s{sT0}, s{sTB}, 6")
    e(f"v_add_u32 v9, s{sT0}, v{vL}")
    e(f"s_bitcmp1_b32 s{sW}, 0")
    e("s_cselect_b64 vcc, -1, 0")
    e(f"s_cselect_b32 s{sOP}, 0x400, 0")
    e("v_cndmask_b32 v8, v9, v8, vcc")
    e(f"v_lshlrev_b32 v{vOP}, 11, v8")
    e(f"s_lshl_b32 s{sT0}, s{sHG}, 7")
    e(f"s_add_u32 s{sOP}, s{sOP}, s{sT0}")
e(f"s_mov_b32 s{sT0}, {hex(f2u(0.25*1.4426950408889634))}")
warm("L_padq", "L_padq_ret")
e("s_waitcnt vmcnt(0)")
stamp(8)
e("s_barrier")
stamp(10)
pad_begin("L_padq")
def qload(ks):
    b = FB + 8*(ks % 4)
    e(f"ds_read_b64_tr_b16 {vr(b,2)}, v{vWA} offset:{ks*2048}")
    e(f"ds_read_b64_tr_b16 {vr(b+2,2)}, v{vWA} offset:{ks*2048+512}")
    e(f"ds_read_b128 {vr(b+4,4)}, v{vXA} offset:{ks*32}")
for ks in range(3): qload(ks)
if opt['qloop']:
    cm("4 trips of 8 k-steps; the last trip's look-ahead reads land in unused registers")
    e(f"s_mov_b32 s{sIT}, 0")
    lab("L_qloop")
    for ks in range(8):
        b = FB + 8*(ks % 4)
        qload(ks + 3); e("s_waitcnt lgkmcnt(9)")
        e(f"v_mfma_f32_32x32x16_bf16 {vr(SA,16)}, {vr(b,4)}, {vr(b+4,4)}, {vr(SA,16)}")
        if ks == 7:
            e(f"v_add_u32 v{vWA}, 0x4000, v{vWA}")
            e(f"v_add_u32 v{vXA}, 0x100, v{vXA}")
        if ks == 6:
            e(f"s_add_u32 s{sIT}, s{sIT}, 1")
            e(f"s_cmp_lt_u32 s{sIT}, 4")
    e("s_cbranch_scc1 L_qloop")
    e("s_waitcnt lgkmcnt(0)")
else:
    for ks in range(32):
        b = FB + 8*(ks % 4)
        if ks + 3 < 32:
            qload(ks + 3); e("s_waitcnt lgkmcnt(9)")
        else:
            e(f"s_waitcnt lgkmcnt({3*(31-ks)})")
        c = "0" if ks == 0 else vr(SA, 16)
        e(f"v_mfma_f32_32x32x16_bf16 {vr(SA,16)}, {vr(b,4)}, {vr(b+4,4)}, {c}")
stamp(9)
nop(8 if opt['qloop'] else 12)
for i in range(16): e(f"v_mul_f32 v{SA+i}, s{sT0}, v{SA+i}")
for i in range(8): e(f"v_cvt_pk_bf16_f32 v{QA+i}, v{SA+2*i}, v{SA+2*i+1}")
if opt['prioA']: e(f"s_setprio {opt['prioA']}")
stamp(2)
if opt['attpf']:
    cm("after BA: pull this workgroup's 1/32 share of what its XCD reads later towards L2 (one dword per 128-B line)")
    cm("wave 0: x_B rows 64j + 8xcd + (0..7); waves 1, 2: hidden cos / sin rows 8j..8j+7; wave 3: wo rows 16j..16j+15")
    R_PF = R_WQ
    e(f"s_cmp_eq_u32 s{sW}, 1")
    e(f"s_cselect_b64 {sr(R_PF,2)}, {sr(P_HRE,2)}, {sr(P_HIM,2)}")
    e(f"s_lshl_b32 s{sT2}, s{sJ}, 13")
    e(f"s_cmp_eq_u32 s{sW}, 3")
    e(f"s_cselect_b64 {sr(R_PF,2)}, {sr(P_WO,2)}, {sr(R_PF,2)}")
    e(f"s_cselect_b32 s{sT3}, s{sT2}, 0")
    e(f"s_add_u32 s{sT2}, s{sT2}, s{sT3}")
    e(f"s_lshl_b32 s{sT3}, s{sJ}, 16")
    e(f"s_lshl_b32 s{sT1}, s{sXCD}, 13")
    e(f"s_add_u32 s{sT3}, s{sT3}, s{sT1}")
    e(f"s_cmp_eq_u32 s{sW}, 0")
    e(f"s_cselect_b64 {sr(R_PF,2)}, {sr(P_XB,2)}, {sr(R_PF,2)}")
    e(f"s_cselect_b32 s{sT2}, s{sT3}, s{sT2}")
    e(f"s_cselect_b32 s{R_PF+2}, 0x200000, s{R_PF+2}")
    e(f"s_and_b32 s{R_PF+1}, s{R_PF+1}, 0xffff")
    e(f"s_add_u32 s{sT3}, s{sT2}, 8192")
    e(f"v_lshlrev_b32 v6, 7, v{vL}")
if opt['baat']:
    lab("L_baat")
    e(f"s_memrealtime {sr(sX,2)}")
    e("s_waitcnt lgkmcnt(0)")
    e(f"s_sub_u32 s{sX}, s{sX}, s3")
    e(f"s_cmp_lt_u32 s{sX}, {opt['baat']}")
    e("s_cbranch_scc1 L_baat")
e("s_barrier")
stamp(3)
PFLOAD = True
MT = opt['mt']
cm(f"stand-in for the row max: max over the first {MT} key tile(s) (checked after the loop; fallback = true max)")
e(f"ds_read_b128 {vr(K0,4)}, v{vK}")
e(f"ds_read_b128 {vr(K1,4)}, v{vK} offset:2048")
KX = FB
for t in range(2, MT): e(f"ds_read_b128 {vr(KX+4*(t-2),4)}, v{vK} offset:{2048*t}")
e(f"ds_read_b128 {vr(V0,4)}, v{vV} offset:1024")
e(f"ds_read_b128 {vr(V0+4,4)}, v{vV} offset:1536")
def max16(dst, s, acc=None):
    if acc is None:
        e(f"v_max3_f32 v{dst}, v{s}, v{s+1}, v{s+2}"); i = 3
        while i + 1 < 16:
            e(f"v_max3_f32 v{dst}, v{dst}, v{s+i}, v{s+i+1}"); i += 2
        e(f"v_max_f32 v{dst}, v{dst}, v{s+15}")
    else:
        for i in range(0, 16, 2): e(f"v_max3_f32 v{dst}, v{dst}, v{s+i}, v{s+i+1}")
nrd = 4 + max(0, MT - 2)
e(f"s_waitcnt lgkmcnt({nrd - 1})")
e(f"v_mfma_f32_32x32x16_bf16 {vr(SA,16)}, {vr(K0,4)}, {vr(QA,4)}, 0")
e(f"v_mfma_f32_32x32x16_bf16 {vr(SB,16)}, {vr(K0,4)}, {vr(QB,4)}, 0")
if MT == 1:
    nop(11)
    max16(4, SA); max16(5, SB)
else:
    kreg = [K0, K1] + [KX + 4*t for t in range(2)]
    bufs = [(SA, SB), (CA, CB)]
    e(f"s_waitcnt lgkmcnt({nrd - 2})")
    e(f"v_mfma_f32_32x32x16_bf16 {vr(CA,16)}, {vr(K1,4)}, {vr(QA,4)}, 0")
    e(f"v_mfma_f32_32x32x16_bf16 {vr(CB,16)}, {vr(K1,4)}, {vr(QB,4)}, 0")
    e("s_waitcnt lgkmcnt(2)")
    nop(7)
    for t in range(MT):
        a, b = bufs[t % 2]
        max16(4, a, None if t == 0 else 1)
        if t + 2 < MT: e(f"v_mfma_f32_32x32x16_bf16 {vr(a,16)}, {vr(kreg[t+2],4)}, {vr(QA,4)}, 0")
        max16(5, b, None if t == 0 else 1)
        if t + 2 < MT: e(f"v_mfma_f32_32x32x16_bf16 {vr(b,16)}, {vr(kreg[t+2],4)}, {vr(QB,4)}, 0")
lab("L_setmax")
cm(f"v4 / v5 = per-lane max for tiles A / B; combine the two half-waves, C = -(max + {opt['shift']})")
e("v_mov_b32 v6, v4")
e("v_mov_b32 v7, v5")
e(f"s_mov_b32 s{sIT}, 0")
e("s_nop 0")
e("v_permlane32_swap_b32 v4, v6")
e("v_permlane32_swap_b32 v5, v7")
e("v_max_f32 v4, v4, v6")
e("v_max_f32 v5, v5, v7")
for i in range(16): e(f"v_sub_f32 v{CA+i}, {hex(f2u(-float(opt['shift'])))}, v4")
e(f"v_sub_f32 v{CB}, {hex(f2u(-float(opt['shift'])))}, v5")
e("s_waitcnt lgkmcnt(0)")
e(f"v_mfma_f32_32x32x16_bf16 {vr(SA,16)}, {vr(K0,4)}, {vr(QA,4)}, {vr(CA,16)}")
for i in range(1, 16): e(f"v_mov_b32 v{CB+i}, v{CB}")
for i in range(8): e(f"v_mov_b32 v{SB+8+i}, 0")
def SM(o, a, b): e(f"v_smfmac_f32_32x32x32_bf16 {vr(o,16)}, {vr(a,4)}, {vr(b,8)}, v{vIDX}")
def QK(d, k, q, c): e(f"v_mfma_f32_32x32x16_bf16 {vr(d,16)}, {vr(k,4)}, {vr(q,4)}, {vr(c,16)}")
def EX(s, a, b):
    for i in range(a, b): e(f"v_exp_f32 v{s+i}, v{s+i}")
pad_end("L_padq", "L_padq_ret")
stamp(13)
L.append(".p2align 6")
lab("L_att_loop")
for u in range(4):
    kc, kn = (K0, K1) if u % 2 == 0 else (K1, K0)
    vc, vp = (V0, V1) if u % 2 == 0 else (V1, V0)
    voffs = ((u + 1) % 4) * 2048 + 1024
    koffs = ((u + 2) % 4) * 2048
    p0, p1, p2 = (4, 7, 10) if opt['cluster'] else (2, 5, 10)
    EX(SA, 0, p0)
    SM(OB, vp + 4, SB + 8)
    e(f"s_waitcnt lgkmcnt({2 if u == 1 and opt['csync'] else 1})")
    EX(SA, p0, p1)
    QK(SB, kc, QB, CB)
    e(f"ds_read_b128 {vr(vp,4)}, v{vV} offset:{voffs}")
    EX(SA, p1, p2)
    SM(OA, vc, SA)
    e(f"ds_read_b128 {vr(vp+4,4)}, v{vV} offset:{voffs+512}")
    EX(SA, p2, 16)
    EX(SB, 0, p0)
    SM(OA, vc + 4, SA + 8)
    e("s_waitcnt lgkmcnt(2)")
    if u == 1:
        pass
    EX(SB, p0, p1)
    QK(SA, kn, QA, CA)
    e(f"ds_read_b128 {vr(kc,4)}, v{vK} offset:{koffs}")
    EX(SB, p1, p2)
    SM(OB, vc, SB)
    if u == 1:
        e(f"s_bitcmp1_b32 s{sBARN}, s{sIT}")
        e("s_cbranch_scc1 L_sync")
        lab("L_nobar")
        e(f"v_add_u32 v{vK}, 0x2000, v{vK}")
    if u == 2:
        e(f"v_add_u32 v{vV}, v{vINC}, v{vV}")
    if u == 3:
        e(f"s_add_u32 s{sIT}, s{sIT}, 1")
        e(f"s_cmp_lt_u32 s{sIT}, 16")
    if u == 0 and opt['csync']: e(f"ds_read_b64 v[4:5], v{vSAME} offset:{C_G1}")
    elif u == 0 and opt['cluster']: e("s_nop 0")
    EX(SB, p2, 16)
e("s_cbranch_scc1 L_att_loop")
if opt['lwarm']: e("s_cbranch_execz L_lwarm_ret           ; only the instruction-cache warm-up pass has EXEC = 0")
stamp(18)
pad_begin("L_padt")
e(f"s_mov_b32 s{sT0}, {hex(f2u(2.0**100) if not opt['force_fb'] else f2u(2.0**-30))}")
e(f"v_rcp_f32 v4, v{OA+8}")
SM(OB, V1 + 4, SB + 8)
e(f"ds_read_b32 v7, v{vSAME} offset:{C_SAME}")
e(f"ds_read_b64 v[8:9], v{vSAME} offset:{C_TAG}")
cm("run-time check of the stand-in: l*2^64 must be finite and <= 2^100, else redo with the true row max")
e(f"v_cmp_nle_f32_e64 vcc, v{OA+8}, s{sT0}")
for i in range(8): e(f"v_mul_f32 v{SA+i}, v4, v{OA+i}")
for i in range(4): e(f"v_cvt_pk_bf16_f32 v{SA+i}, v{SA+2*i}, v{SA+2*i+1}")
sSAME = 99
e("s_waitcnt lgkmcnt(0)")
e(f"v_readfirstlane_b32 s{sSAME}, v7")
e(f"v_rcp_f32 v5, v{OB+8}")
e(f"v_cmp_nle_f32_e64 {sr(sX,2)}, v{OB+8}, s{sT0}")
cm("plain stores only when every workgroup of this token block reported the same XCD; else write-through")
e(f"s_cmp_eq_u32 s{sSAME}, 0")
e("s_cbranch_scc1 L_ostA_wt")
OM = " sc1" if opt['omode'] >= 2 else ""
e(f"buffer_store_dwordx4 {vr(SA,4)}, v2, {sr(R_WS,4)}, s{sOD} offen{OM}")
lab("L_ostA_done")
for i in range(8): e(f"v_mul_f32 v{SB+i}, v5, v{OB+i}")
e(f"s_or_b64 vcc, vcc, {sr(sX,2)}")
for i in range(4): e(f"v_cvt_pk_bf16_f32 v{SA+4+i}, v{SB+2*i}, v{SB+2*i+1}")
e("s_cmp_eq_u64 vcc, 0")
e("s_cbranch_scc0 L_fallback")
lab("L_att_done")
e(f"s_cmp_eq_u32 s{sSAME}, 0")
e("s_cbranch_scc1 L_ost_wt")
e(f"buffer_store_dwordx4 {vr(SA+4,4)}, v2, {sr(R_WS,4)}, s{sOD} offen offset:1024{OM}")
stamp(6)
e(f"v_readfirstlane_b32 s{sNON}, v8")
e(f"v_readfirstlane_b32 s{sNON+1}, v9")
e("s_mov_b64 exec, 1")
e("s_waitcnt vmcnt(0)")
e(f"buffer_store_dwordx2 v[8:9], off, {sr(R_WS,4)}, s{sOF}")
if opt['omode'] == 3: e(f"buffer_store_dwordx2 v[8:9], off, {sr(R_WS,4)}, s{sOF} sc1")
lab("L_ost_done")
e("s_mov_b64 exec, -1")
stamp(5)
e("s_barrier")
stamp(4)
cm("gather the O tile of this token block: wave w takes producers 2w, 2w+1, in four steps of two heads")
poll("L_pollO", 1, vPO, 10, [sPF])
stamp(11)
for st in range(4):
    for th in range(2):
        e(f"s_add_u32 m0, s{sOL}, {2048*st + 32768*th}")
        e(f"s_add_u32 s{sT1}, s{sOS}, {2048*st + 32768*th}")
        for i in range(2): e(f"buffer_load_dwordx4 v2, {sr(R_WS,4)}, s{sT1} offen offset:{1024*i} sc1 lds")
pad_end("L_padt", "L_pado_0")
for st in range(4):
    e(f"s_waitcnt vmcnt({12 - 4*st})")
    if st == 0: stamp(12)
    e(f"s_barrier                             ; B8.{st}: heads 8w + {2*st}, {2*st+1} of every wave landed")
stamp_dump()
e("s_endpgm")
lab("L_ostA_wt")
e(f"buffer_store_dwordx4 {vr(SA,4)}, v2, {sr(R_WS,4)}, s{sOD} offen sc1")
e("s_branch L_ostA_done")
lab("L_ost_wt")
e(f"buffer_store_dwordx4 {vr(SA+4,4)}, v2, {sr(R_WS,4)}, s{sOD} offen offset:1024 sc1")
stamp(6)
e(f"v_readfirstlane_b32 s{sNON}, v8")
e(f"v_readfirstlane_b32 s{sNON+1}, v9")
e("s_mov_b64 exec, 1")
e("s_waitcnt vmcnt(0)")
e(f"buffer_store_dwordx2 v[8:9], off, {sr(R_WS,4)}, s{sOF} sc1")
e("s_branch L_ost_done")
def rescale():
    E0 = VSCALE - opt['shift']
    p2 = 10
    cm("raise the softmax reference to the row sum so far: v6 / v10 = delta (>= 0), v8 / v14 = 2^-delta for tiles A / B")
    for t, (O, d, f, tmp) in enumerate(((OA, 6, 8, 12), (OB, 10, 14, 13))):
        if t == 1: nop(1)
        e(f"v_frexp_exp_i32_f32 v{tmp}, v{O+8}")
        e(f"v_add_u32 v{tmp}, {-1 - E0}, v{tmp}")
        e(f"v_med3_i32 v{tmp}, v{tmp}, 0, s{sT3}")
        e(f"v_cvt_f32_i32 v{d}, v{tmp}")
        e(f"v_sub_u32 v{tmp}, 0, v{tmp}")
        e(f"v_ldexp_f32 v{f}, 1.0, v{tmp}")
        if t == 0:
            for r in range(0, 10, 2): e(f"v_pk_mul_f32 {vr(O+r,2)}, {vr(O+r,2)}, {vr(f,2)} op_sel_hi:[1,0]")
    for r in range(0, 10, 2): e(f"v_pk_mul_f32 {vr(OB+r,2)}, {vr(OB+r,2)}, {vr(14,2)} op_sel_hi:[1,0]")
    e(f"v_pk_mul_f32 {vr(SB+8,2)}, {vr(SB+8,2)}, {vr(14,2)} op_sel_hi:[1,0]")
    sub = lambda r, d: e(f"v_pk_add_f32 {vr(r,2)}, {vr(r,2)}, {vr(d,2)} op_sel_hi:[1,0] neg_lo:[0,1] neg_hi:[0,1]")
    for r in range(p2, 16, 2): sub(SB + r, 10)
    for r in range(0, 16, 2): sub(SA + r, 6)
    for r in range(0, 16, 2): sub(CA + r, 6)
    for r in range(0, 16, 2): sub(CB + r, 10)
lab("L_sync")
e(f"s_cmp_eq_u32 s{sIT}, 1")
e("s_cbranch_scc0 L_sync3")
stamp(14)
if opt['csync']:
    e(f"v_readfirstlane_b32 s{sT4}, v4")
    e("s_nop 0")
    e(f"s_cmp_ge_u32 s{sT4}, {FOUR}")
    e("s_cbranch_scc1 L_nobar") if not opt['stamps'] else e("s_cbranch_scc1 L_wg1_done")
lds_wait("L_wg1", C_G1, FOUR, 4)
stamp(15)
e("s_branch L_nobar")
lab("L_sync3")
if opt['dftpf']: e(f"buffer_load_dword v185, v{vDP}, {sr(R_DP,4)}, 0 offen")
if opt['preo']:
    e(f"s_cmp_lt_u32 s{sW}, 2")
    e("s_cbranch_scc0 L_nopo")
    e(f"buffer_load_dword v188, v{vOP}, {sr(R_OUT,4)}, s{sOP} offen{' sc1' if opt['preo'] == 1 else ''}")
    lab("L_nopo")
stamp(16)
if opt['csync']:
    e(f"v_readfirstlane_b32 s{sT4}, v5")
    e("s_nop 0")
    e(f"s_cmp_ge_u32 s{sT4}, {FOUR}")
    e("s_cbranch_scc1 L_nobar") if not opt['stamps'] else e("s_cbranch_scc1 L_wkvl_done")
lds_wait("L_wkvl", C_KVL, FOUR, 4)
stamp(17)
e(f"s_mov_b32 s{sT3}, 120")
rescale()
e("s_branch L_nobar")
lab("L_fallback")
e(f"s_cmp_eq_u32 s{sFB}, 0")
e("s_cbranch_scc0 L_att_done")
cm("fallback: exact row max over all 64 key tiles, then repeat the main loop")
e(f"s_mov_b32 s{sFB}, 1")
e(f"s_mov_b32 s{sBARN}, 0")
e(f"v_mov_b32 v4, 0xff800000")
e(f"v_mov_b32 v5, 0xff800000")
e(f"v_mov_b32 v{vK}, v2")
e(f"s_mov_b32 s{sIT}, 0")
lab("L_fb_loop")
e(f"ds_read_b128 {vr(K0,4)}, v{vK}")
e("s_waitcnt lgkmcnt(0)")
e(f"v_mfma_f32_32x32x16_bf16 {vr(SA,16)}, {vr(K0,4)}, {vr(QA,4)}, 0")
e(f"v_mfma_f32_32x32x16_bf16 {vr(SB,16)}, {vr(K0,4)}, {vr(QB,4)}, 0")
e(f"v_add_u32 v{vK}, 0x800, v{vK}")
nop(11)
max16(4, SA, 1); max16(5, SB, 1)
e(f"s_add_u32 s{sIT}, s{sIT}, 1")
e(f"s_cmp_lt_u32 s{sIT}, 64")
e("s_cbranch_scc1 L_fb_loop")
e(f"v_mov_b32 v{vK}, v2")
e(f"v_mov_b32 v{vV}, v{vV0}")
for i in range(16): e(f"v_mov_b32 v{OA+i}, 0")
for i in range(16): e(f"v_mov_b32 v{OB+i}, 0")
for i in range(4): e(f"v_mov_b32 v{V1+4+i}, 0")
e(f"ds_read_b128 {vr(K0,4)}, v{vK}")
e(f"ds_read_b128 {vr(K1,4)}, v{vK} offset:2048")
e(f"ds_read_b128 {vr(V0,4)}, v{vV} offset:1024")
e(f"ds_read_b128 {vr(V0+4,4)}, v{vV} offset:1536")
e("s_branch L_setmax")

lab("L_aux")
BUF = 16
BP = 144
FR = 176
ACC = 192
D1, D2 = 208, 224
if not opt['first']: aux_first()
KV0 = len(L)
e(f"v_mov_b32 v14, {MISC+C_CR}")
if opt['bytef']: e(f"v_add_u32 v14, s{sA}, v14")
e(f"v_mov_b32 v15, 1")
cm("K / V projection of 16 tokens: aux wave 0")
e(f"s_cmp_eq_u32 s{sA}, 0")
e("s_cbranch_scc0 L_np")
e(f"v_and_b32 v3, 15, v{vL}")
e(f"v_lshrrev_b32 v4, 4, v{vL}           ; q")
e(f"s_lshl_b32 s{sT0}, s{sTHP}, 4")
e(f"v_add_u32 v5, s{sT0}, v3")
e(f"v_mul_u32_u24 v5, {XROW}, v5")
e("v_lshl_add_u32 v5, v4, 4, v5")
e(f"v_add_u32 v5, {X_OFF}, v5")
e(f"v_bfe_u32 v6, v{vL}, 2, 2            ; r")
e("v_lshl_add_u32 v6, v4, 3, v6")
e("v_lshlrev_b32 v6, 5, v6")
e(f"v_and_b32 v7, 3, v{vL}               ; cc")
sB = sT3
e(f"s_and_b32 s{sB}, s{sTHP}, 1            ; b")
e(f"s_lshr_b32 s{sT0}, s{sTHP}, 1")
e(f"s_lshl_b32 s{sT2}, s{sTB}, 1")
e(f"s_add_u32 s{sT2}, s{sT2}, s{sT0}")
sKF, sKD = 97, 96
e(f"s_lshl_b32 s{sT1}, s{sT2}, 1")
e(f"s_and_b32 s{sT0}, s{sHG}, 1")
e(f"s_add_u32 s{sT1}, s{sT1}, s{sT0}")
e(f"s_lshl_b32 s{sT1}, s{sT1}, 1")
e(f"s_add_u32 s{sT1}, s{sT1}, s{sB}")
e(f"s_lshl_b32 s{sT1}, s{sT1}, 7")
e(f"s_add_u32 s{sKF}, s{sT1}, {FL_KV}")
e(f"s_lshl_b32 s{sKD}, s{sT2}, 11")
e("v_and_b32 v9, 1, v4")
e("v_lshlrev_b32 v9, 3, v9")
e("v_lshl_add_u32 v9, v3, 4, v9          ; n*16 + (q&1)*8")
e("v_lshrrev_b32 v8, 1, v4")
e(f"s_mov_b32 s{sDRY}, {1 if opt['dry'] else 0}")
if opt['pre']:
    cm("touch the lines this wave will publish (tile and flag), so the write-through stores find them resident")
    e(f"v_and_b32 v12, 15, v{vL}")
    e("v_lshlrev_b32 v12, 7, v12")
    e(f"buffer_load_dword v201, v12, {sr(R_WS,4)}, s{sKD} offen sc1")
    e(f"buffer_load_dword v202, off, {sr(R_WS,4)}, s{sKF} sc1")
def kvchain(isV):
    D = opt['kvd']
    def mf(k2):
        b2 = BUF + 8*k2
        a, bb = (b2+4, b2) if isV else (b2, b2+4)
        e(f"v_mfma_f32_16x16x32_bf16 {vr(ACC,4)}, {vr(a,4)}, {vr(bb,4)}, {'0' if k2==0 else vr(ACC,4)}")
    for ks in range(16):
        b = BUF + 8*ks
        e(f"ds_read_b64_tr_b16 {vr(b,2)}, v6 offset:{ks*1024}")
        e(f"ds_read_b64_tr_b16 {vr(b+2,2)}, v6 offset:{ks*1024+128}")
        e(f"ds_read_b128 {vr(b+4,4)}, v5 offset:{ks*64}")
        if ks >= D:
            e(f"s_waitcnt lgkmcnt({3*D})"); mf(ks - D)
    for k2 in range(16 - D, 16):
        e(f"s_waitcnt lgkmcnt({3*(15-k2)})"); mf(k2)
def kv_wait(tagname):
    e(f"s_waitcnt vmcnt({2 if opt['pre'] else 0})")
    stamp(1)
    e("s_mov_b64 exec, 1")
    e("ds_write_b8 v14, v15" if opt['bytef'] else "ds_add_u32 v14, v15")
    e("s_mov_b64 exec, -1")
    lds_wait(tagname + "_w", C_CR, FOUR, 10, sleep=1)
def kv_b1(tagname):
    if not opt['dry']: kv_wait(tagname)
    lab(tagname)
def kv_b2(tagname):
    if opt['dry']:
        e(f"s_cmp_eq_u32 s{sDRY}, 0")
        e(f"s_cbranch_scc1 {tagname}_go")
        e(f"s_mov_b32 s{sDRY}, 0")
        kv_wait(tagname)
        e(f"s_branch {tagname}")
        lab(tagname + "_go")
e(f"s_bitcmp1_b32 s{sHG}, 0")
e("s_cbranch_scc1 L_prodV")
cm("K: (q>>1)*512 + (16b+n)*16 + (q&1)*8")
e("v_lshl_add_u32 v6, v7, 3, v6")
e("v_lshl_add_u32 v8, v8, 9, v9")
e(f"s_lshl_b32 s{sT1}, s{sB}, 8")
e(f"s_add_u32 s{sKD}, s{sKD}, s{sT1}")
kv_b1("L_chK"); kvchain(False); kv_b2("L_chK")
nop(6 if opt['dry'] else 8)
e("s_branch L_prodS")
lab("L_prodV")
cm("V: 1024 + b*512 + (q>>1)*256 + n*16 + (q&1)*8")
e("v_lshl_add_u32 v8, v8, 8, v9")
e("v_and_b32 v9, 1, v7")
e("v_lshl_add_u32 v6, v9, 4, v6")
e("v_lshrrev_b32 v9, 1, v7")
e("v_lshl_add_u32 v6, v9, 3, v6")
e(f"s_lshl_b32 s{sT1}, s{sB}, 9")
e(f"s_add_u32 s{sKD}, s{sKD}, s{sT1}")
e(f"s_add_u32 s{sKD}, s{sKD}, 1024")
kv_b1("L_chV"); kvchain(True); kv_b2("L_chV")
e(f"s_mov_b32 s{sT0}, {hex(f2u(2.0**VSCALE))}")
nop(6 if opt['dry'] else 8)
for i in range(4): e(f"v_mul_f32 v{ACC+i}, s{sT0}, v{ACC+i}")
lab("L_prodS")
e(f"v_cvt_pk_bf16_f32 v10, v{ACC}, v{ACC+1}")
e(f"v_cvt_pk_bf16_f32 v11, v{ACC+2}, v{ACC+3}")
e(f"buffer_store_dwordx2 v[10:11], v8, {sr(R_WS,4)}, s{sKD} offen sc1")
stamp(14)
e("ds_add_u32 v14, v15 offset:%d             ; this wave is done with the weight region" % (C_KV - C_CR + 65536) if False else f"v_mov_b32 v13, {MISC+C_KV}")
e("s_mov_b64 exec, 1")
e("ds_write_b32 v13, v15")
e("s_mov_b64 exec, -1")
tag_from_lds("L_tagp", 4)
e(f"v_mov_b32 v6, s{sNON}")
e(f"v_mov_b32 v7, s{sNON+1}")
e("s_mov_b64 exec, 1")
e("s_waitcnt vmcnt(0)")
e(f"buffer_store_dwordx2 v[6:7], off, {sr(R_WS,4)}, s{sKF} sc1")
e("s_mov_b64 exec, -1")
stamp(15)
if opt['pa']: e("s_branch L_tagged0")
else:
    e(f"s_mov_b32 s{sRET}, 1")
    e("s_branch L_tagged")
lab("L_np")
e("s_waitcnt vmcnt(0)")
stamp(1)
e("s_mov_b64 exec, 1")
e("ds_write_b8 v14, v15" if opt['bytef'] else "ds_add_u32 v14, v15")
e("s_mov_b64 exec, -1")
if opt['codepf']:
    cm("aux wave 2 pulls this kernel's code towards L2 (reads only)")
    e(f"s_cmp_eq_u32 s{sA}, 2")
    e("s_cbranch_scc0 L_nopf")
    e(f"s_getpc_b64 {sr(sX,2)}")
    lab("L_pc")
    e(f"v_lshlrev_b32 v4, 7, v{vL}")
    e(f"s_sub_u32 s{sX}, s{sX}, L_pc-{NAME}_kernel")
    e(f"s_subb_u32 s{sX+1}, s{sX+1}, 0")
    e(f"v_mov_b32 v5, s{sX+1}")
    e(f"v_add_co_u32 v4, vcc, s{sX}, v4")
    e("s_nop 1")
    e("v_addc_co_u32 v5, vcc, 0, v5, vcc")
    e("CODEPF")
    lab("L_nopf")
if opt['lwarm']:
    cm("aux wave 1 walks once through the attention loop with every lane off (LDS and register traffic only) to warm the instruction cache")
    e(f"s_cmp_eq_u32 s{sA}, 1")
    e("s_cbranch_scc0 L_nolw")
    e(f"s_mov_b32 s{sIT}, 15")
    e(f"s_mov_b32 s{sBARN}, 0")
    e("s_setprio 0")
    e("s_mov_b64 exec, 0")
    e("s_branch L_att_loop")
    lab("L_lwarm_ret")
    e("s_mov_b64 exec, -1")
    e(f"s_setprio {opt['prioX']}")
    lab("L_nolw")
e(f"s_cmp_eq_u32 s{sA}, 3")
e("s_cbranch_scc0 L_tagged0")
cm("aux wave 3 fetches this launch's hand-off tag (bounded spin) and posts it in LDS")
e(f"s_mov_b32 s{sSPIN}, {SPIN}")
lab("L_tag")
e(f"buffer_load_dwordx2 v[14:15], off, {sr(R_DBG,4)}, 0 sc1")
e(f"s_sub_u32 s{sSPIN}, s{sSPIN}, 1")
e(f"s_cmp_eq_u32 s{sSPIN}, 0")
e("s_cbranch_scc1 L_tag_done")
e("s_waitcnt vmcnt(0)")
e("v_cmp_eq_u32 vcc, 0, v14")
e("s_nop 0")
e("s_cmp_eq_u64 vcc, 0")
e("s_cbranch_scc0 L_tag")
lab("L_tag_done")
e("s_waitcnt vmcnt(0)")
e(f"v_mov_b32 v12, {MISC+C_TAG}")
e("ds_write_b64 v12, v[14:15]")
cm("report this workgroup's XCD id (tag | id)")
e(f"s_getreg_b32 s{sT2}, hwreg(HW_REG_XCC_ID, 0, 4)")
e(f"s_lshl_b32 s{sT1}, s2, 7")
e(f"s_add_u32 s{sT1}, s{sT1}, {FL_X}")
e(f"v_or_b32 v14, s{sT2}, v14")
e("s_mov_b64 exec, 1")
e(f"buffer_store_dwordx2 v[14:15], off, {sr(R_WS,4)}, s{sT1} sc1")
e("s_mov_b64 exec, -1")
import re
def ren(m):
    n = int(m.group(1)); return f"v{208+n}" if 3 <= n <= 15 else m.group(0)
def ren2(m):
    a, b = int(m.group(1)), int(m.group(2)); return f"v[{208+a}:{208+b}]" if 3 <= a <= 15 else m.group(0)
for k in range(KV0, len(L)):
    L[k] = re.sub(r"v\[(\d+):(\d+)\]", ren2, re.sub(r"\bv(\d+)\b", ren, L[k]))
if opt['w3late']:
    e(f"s_mov_b32 s{sRET}, 1                  ; like the projection wave: addresses later, behind the first key tiles")
    e("s_branch L_tagged")
lab("L_tagged0")
e(f"s_mov_b32 s{sRET}, 0")
e("s_branch L_addr")
lab("L_tagged")
stamp(2)
tag_from_lds("L_tagx", 8)
cm("the weight region is reused only after the projection wave is done with it")
lds_wait("L_wkv", C_KV, 1, 8, sleep=opt['fs'])
cm("key tiles in rotated order (own XCD's tiles first); wave a covers tiles 8g + 2a, 8g + 2a + 1: flags 32g + 8a + (0..7)")
vCNT = 248
sKG, sKL, sKS, sKP = 97, 85, 88, 96
e(f"v_and_b32 v{ACC+2}, 7, v{vL}")
e(f"v_lshlrev_b32 v{ACC+2}, 7, v{ACC+2}")
e(f"s_lshl_b32 s{sKP}, s{sA}, 10")
e(f"s_add_u32 s{sKP}, s{sKP}, {FL_KV}")
e(f"s_lshl_b32 s{sT1}, s{sXCD}, 12")
e(f"s_add_u32 s{sT1}, s{sT1}, s{sKP}")
e(f"s_lshl_b32 s{sKL}, s{sA}, 12")
e(f"s_lshl_b32 s{sKG}, s{sXCD}, 14")
e("s_barrier                             ; B2")
stamp(16)
poll("L_pollK0", 1, ACC+2, 8, [sT1])
stamp(3)
def kvdma(G):
    e(f"s_add_u32 m0, s{sKL}, {16384*G}")
    e(f"s_add_u32 s{sKS}, s{sKG}, s{sKL}")
    for i in range(4): e(f"buffer_load_dwordx4 v2, {sr(R_WS,4)}, s{sKS} offen offset:{1024*i} sc1 lds")
    if G < 7:
        e(f"s_add_u32 s{sKG}, s{sKG}, 16384")
        e(f"s_and_b32 s{sKG}, s{sKG}, 0x1ffff")
kvdma(0)
if opt['prepoll']:
    cm("one early look at the flags of all other key tiles; its latency overlaps the first tiles' landing")
    e(f"v_lshrrev_b32 v{ACC+4}, 3, v{vL}")
    e(f"v_lshlrev_b32 v{ACC+4}, 12, v{ACC+4}")
    e(f"v_add_u32 v{ACC+4}, v{ACC+4}, v{ACC+2}")
    e(f"buffer_load_dwordx2 {vr(ACC+6,2)}, v{ACC+4}, {sr(R_WS,4)}, s{sKP} offen sc1")
e(f"s_cmp_eq_u32 s{sRET}, 1")
e("s_cbranch_scc0 L_addr_2")
if opt['alow']: e("s_setprio 0")
lab("L_addr")
srd(R_SRE, P_SRE, 8388608)
srd(R_SIM, P_SIM, 8388608)
srd(R_XB, P_XB, 2097152)
srd(R_WO, P_WO, 524288)
srd(R_OUT, P_OUT, 4194304)
sT1S, sEB, sTT, sS2, sCB = 98, 99, 100, 101, 79
R_HRE, R_HIM = R_XA, R_W
e(f"s_and_b32 s{sT0}, s{sJ}, 3")
e(f"s_lshl_b32 s{sT1S}, s{sXCD}, 2")
e(f"s_add_u32 s{sT1S}, s{sT1S}, s{sT0}       ; t1s")
e(f"s_lshr_b32 s{sT0}, s{sJ}, 2")
e(f"s_lshl_b32 s{sT0}, s{sT0}, 1")
e(f"s_lshr_b32 s{sEB}, s{sA}, 1")
e(f"s_add_u32 s{sEB}, s{sEB}, s{sT0}         ; eb")
e(f"s_and_b32 s{sTT}, s{sA}, 1               ; tt")
e(f"s_and_b32 s{sT0}, s{sJ}, 7")
e(f"s_lshl_b32 s{sS2}, s{sXCD}, 3")
e(f"s_add_u32 s{sS2}, s{sS2}, s{sT0}         ; s2 = 8 xcd + (j&7)")
e(f"s_lshr_b32 s{sT0}, s{sJ}, 3")
e(f"s_lshl_b32 s{sT0}, s{sT0}, 1")
e(f"s_lshr_b32 s{sCB}, s{sA}, 1")
e(f"s_add_u32 s{sCB}, s{sCB}, s{sT0}")
srd(R_HRE, P_HRE, 524288)
srd(R_HIM, P_HIM, 524288)
e(f"v_and_b32 v3, 31, v{vL}                ; n")
e(f"v_lshrrev_b32 v4, 5, v{vL}             ; h")
e(f"s_lshl_b32 s{sT0}, s{sTT}, 5")
e(f"v_add_u32 v5, s{sT0}, v3")
e("v_lshlrev_b32 v5, 5, v5")
e(f"v_add_u32 v13, s{sT1S}, v5")
vG0, vG1, vRW = 240, 242, 246
vDRE, vDIM = 251, 252
vB2A, vB2O, vHA, vWOD, vWOT, vOF, vOUT, vPH, vPK, vF = 4, 3, 15, 14, 0, 5, 6, 7, 12, 13
vHW, vHW1 = 250, 253
vHR, vHS0, vHS1, vPW, vZW, vZR, vEX, vEP, vIDXB, vRB, TW = BUF, BUF+1, BUF+2, BUF+3, BUF+4, BUF+5, BUF+6, BUF+7, BUF+8, BUF+12, BUF+16
cm("B1 = radix-2 split of the hidden DFT: wave (u = a>>1, par = a&1) transforms the even / odd samples with the")
cm("256-point rows; the sparse MFMA index picks the samples of that parity out of the raw x rows")
cm("loader side: waves 0,1 x_B rows 16a.. (8 rows x 128 B per load); waves 2,3 DFT rows of cb (16 rows x 64 B per load)")
e(f"v_lshrrev_b32 v6, 4, v{vL}")
e(f"v_xor_b32 v6, v6, v{vL}")
e("v_and_b32 v7, 7, v6")
e("v_and_b32 v6, 3, v6")
e("v_lshlrev_b32 v6, 4, v6                 ; ((l&3) ^ ((l>>4)&3)) * 16")
e(f"s_cmp_lt_u32 s{sA}, 2")
e("s_cbranch_scc0 L_ldW")
e(f"v_lshrrev_b32 v5, 3, v{vL}")
e("v_lshlrev_b32 v5, 16, v5")
e("v_lshl_add_u32 v5, v7, 4, v5            ; row*65536 + ((l&7) ^ (l>>4))*16")
e(f"s_lshl_b32 s{sT0}, s{sA}, 20")
e(f"s_lshl_b32 s{sT1}, s{sS2}, 10")
e(f"s_add_u32 s{sT0}, s{sT0}, s{sT1}")
e(f"v_add_u32 v{vG0}, s{sT0}, v5")
e(f"v_xor_b32 v5, 64, v{vG0}")
e(f"v_add_u32 v{vG1}, 0x80000, v5")
e(f"v_mov_b32 v{vG0+1}, 0")
e(f"v_mov_b32 v{vG1+1}, 0")
e("s_branch L_ldE")
lab("L_ldW")
e(f"v_bfe_u32 v5, v{vL}, 2, 2")
e(f"v_bfe_u32 v7, v{vL}, 4, 1")
e("v_lshl_add_u32 v5, v7, 3, v5")
e("v_lshl_add_u32 v5, v4, 2, v5")
e("v_lshl_add_u32 v5, v5, 11, v6           ; row 2e")
e(f"s_and_b32 s{sT1}, s{sCB}, -2")
e(f"s_add_u32 s{sT1}, s{sT1}, s{sTT}")
e(f"s_lshl_b32 s{sT0}, s{sT1}, 15")
e(f"v_add_u32 v7, s{sT0}, v5")
e(f"v_mov_b32 v{vG0+1}, s{P_HRE+1}")
e(f"v_add_co_u32 v{vG0}, vcc, s{P_HRE}, v7")
e(f"v_mov_b32 v{vG1+1}, s{P_HIM+1}")
e("s_nop 0")
e(f"v_addc_co_u32 v{vG0+1}, vcc, 0, v{vG0+1}, vcc")
e(f"v_add_co_u32 v{vG1}, vcc, s{P_HIM}, v7")
e(f"s_cmp_eq_u32 s{sT1}, 0")
e("s_nop 0")
e(f"v_addc_co_u32 v{vG1+1}, vcc, 0, v{vG1+1}, vcc")
e("s_cbranch_scc0 L_ldE")
cm("cb = 0: the im slot of e = 0 (lanes 0..3 of the second load) carries the cos row of e = 128")
e("s_mov_b64 exec, 15")
e("v_add_u32 v7, 0x40000, v6")
e(f"v_mov_b32 v{vG1+1}, s{P_HRE+1}")
e(f"v_add_co_u32 v{vG1}, vcc, s{P_HRE}, v7")
e("s_nop 1")
e(f"v_addc_co_u32 v{vG1+1}, vcc, 0, v{vG1+1}, vcc")
e("s_mov_b64 exec, -1")
lab("L_ldE")
cm("reader side: x row n, chunk c ^ ((n>>1)&7); DFT row m, chunk (2k+h) ^ ((m>>2)&3)")
e("v_bfe_u32 v5, v3, 1, 3")
e("v_xor_b32 v5, v5, v4")
e("v_lshlrev_b32 v5, 4, v5")
e("v_lshl_add_u32 v5, v3, 7, v5")
e(f"v_add_u32 v{vRB}, {STG}, v5")
for k in range(1, 4): e(f"v_xor_b32 v{vRB+k}, {32*k}, v{vRB}")
e("v_bfe_u32 v5, v3, 2, 2")
e("v_xor_b32 v5, v5, v4")
e("v_lshlrev_b32 v5, 4, v5")
e("v_lshl_add_u32 v5, v3, 6, v5")
e(f"s_lshr_b32 s{sT0}, s{sA}, 1")
e(f"s_lshl_b32 s{sT0}, s{sT0}, 11")
e(f"s_add_u32 s{sT0}, s{sT0}, {STG + 4096}")
e(f"v_add_u32 v{vRW}, s{sT0}, v5")
e(f"v_xor_b32 v{vRW+1}, 32, v{vRW}")
e(f"s_cmp_eq_u32 s{sTT}, 0")
e(f"s_cselect_b32 s{sT0}, 0x88888888, s{sT0}")
e(f"s_cmp_eq_u32 s{sTT}, 1")
e(f"s_cselect_b32 s{sT0}, 0xdddddddd, s{sT0}")
e(f"v_mov_b32 v{vIDXB}, s{sT0}")
cm("private 4 KB (buffers 0 / 2): transposition of the half transform, then the even/odd exchange")
e(f"s_lshr_b32 s{sT0}, s{sA}, 1")
e(f"s_lshl_b32 s{sT0}, s{sT0}, 14")
e(f"s_lshl_b32 s{sT1}, s{sTT}, 12")
e(f"s_add_u32 s{sT0}, s{sT0}, {STG}")
e(f"s_add_u32 s{sT1}, s{sT1}, s{sT0}")
e("v_lshlrev_b32 v5, 6, v3")
e("v_lshl_add_u32 v5, v4, 4, v5")
e(f"v_add_u32 v{vZW}, s{sT1}, v5")
e(f"v_bfe_u32 v5, v{vL}, 2, 2")
e("v_lshl_add_u32 v5, v4, 3, v5")
e("v_lshlrev_b32 v5, 6, v5")
e(f"v_bfe_u32 v7, v{vL}, 4, 1")
e("v_lshl_add_u32 v5, v7, 5, v5")
e(f"v_and_b32 v7, 1, v{vL}")
e("v_lshl_add_u32 v5, v7, 4, v5")
e(f"v_bfe_u32 v7, v{vL}, 1, 1")
e("v_lshl_add_u32 v5, v7, 3, v5")
e(f"v_add_u32 v{vZR}, s{sT1}, v5")
e(f"v_add_u32 v{vEX}, s{sT1}, v2")
e(f"v_xor_b32 v{vEP}, 0x1000, v{vEX}")
cm("twiddles W512^e, e = 16cb + 8h + r (odd waves)")
e(f"s_cmp_eq_u32 s{sTT}, 1")
e("s_cbranch_scc0 L_notw")
e(f"s_lshl_b32 s{sT0}, s{sCB}, 4")
e(f"v_lshl_add_u32 v5, v4, 3, s{sT0}")
e("v_cvt_f32_u32 v5, v5")
e(f"v_mul_f32 v5, {hex(f2u(1/512))}, v5")
for r in range(8):
    e(f"v_cos_f32 v{TW+r}, v5")
    e(f"v_sin_f32 v{TW+8+r}, v5")
    if r < 7: e(f"v_add_f32 v5, {hex(f2u(1/512))}, v5")
lab("L_notw")
cm("H regrouping: write row t1, chunk (2h+i) ^ ((t1>>2)&3); read lane-linear; store row l>>2 (negated for the odd wave)")
e(f"s_lshl_b32 s{sT0}, s{sA}, 11")
e(f"s_add_u32 s{sT0}, s{sT0}, {STG}")
e("v_bfe_u32 v5, v3, 2, 2")
e("v_lshlrev_b32 v7, 1, v4")
e("v_xor_b32 v5, v5, v7")
e("v_lshlrev_b32 v5, 4, v5")
e("v_lshl_add_u32 v5, v3, 6, v5")
e(f"v_add_u32 v{vHW}, s{sT0}, v5")
e(f"v_xor_b32 v{vHW1}, 16, v{vHW}")
e(f"v_add_u32 v{vHR}, s{sT0}, v2")
e(f"v_lshrrev_b32 v5, 2, v{vL}")
e("v_add_u32 v7, 16, v5")
e("v_sub_u32 v8, 32, v5")
e("v_and_b32 v8, 31, v8")
e("v_sub_u32 v9, 16, v5")
e(f"s_cmp_eq_u32 s{sTT}, 0")
e("s_cselect_b64 vcc, 0, -1")
e("v_cndmask_b32 v5, v5, v8, vcc")
e("v_cndmask_b32 v7, v7, v9, vcc")
e(f"v_mul_u32_u24 v5, {64*HROW}, v5")
e(f"v_mul_u32_u24 v7, {64*HROW}, v7")
e(f"v_add_u32 v{vHS0}, v5, v6")
e(f"v_add_u32 v{vHS1}, v7, v6")
cm("e = 128 store address: t1*64*HROW; L2 pull pattern of the 256-point rows")
e(f"v_mul_u32_u24 v{vHA}, {64*HROW}, v3")
e(f"v_bfe_u32 v5, v{vL}, 2, 2")
e(f"v_and_b32 v7, 3, v{vL}")
e("v_lshlrev_b32 v7, 7, v7")
e(f"v_lshl_add_u32 v{vPW}, v5, 11, v7")
cm("wo: DMA source offset and transposing read: row 8h+r, 16-B chunk 4cbk + 2(cc&1) + g, byte 8(cc>>1)")
e(f"v_lshrrev_b32 v8, 3, v{vL}")
e(f"v_and_b32 v9, 7, v{vL}")
e(f"v_bfe_u32 v10, v{vL}, 4, 1")
e("v_lshlrev_b32 v10, 2, v10")
e("v_xor_b32 v9, v9, v10")
e("v_lshlrev_b32 v9, 4, v9")
e(f"v_lshl_add_u32 v{vWOD}, v8, 10, v9")
e(f"v_bfe_u32 v9, v{vL}, 2, 2")
e("v_lshl_add_u32 v9, v4, 3, v9")
e("v_lshlrev_b32 v9, 7, v9")
e(f"v_and_b32 v10, 1, v{vL}")
e(f"v_bfe_u32 v11, v{vL}, 4, 1")
e("v_lshl_add_u32 v10, v10, 1, v11")
e(f"s_lshr_b32 s{sT0}, s{sA}, 1")
e(f"s_lshl_b32 s{sT0}, s{sT0}, 2")
e(f"v_add_u32 v10, s{sT0}, v10")
e(f"v_bfe_u32 v11, v{vL}, 3, 1")
e("v_lshlrev_b32 v11, 2, v11")
e("v_xor_b32 v10, v10, v11")
e("v_lshl_add_u32 v9, v10, 4, v9")
e(f"v_bfe_u32 v11, v{vL}, 1, 1")
e("v_lshl_add_u32 v9, v11, 3, v9")
e(f"v_add_u32 v{vWOT}, {STG}, v9")
cm("output projection: out offset, O fragment address")
e(f"s_lshl_b32 s{sT3}, s{sTB}, 1")
e(f"s_and_b32 s{sT4}, s{sA}, 1")
e(f"s_add_u32 s{sT3}, s{sT3}, s{sT4}")
e(f"s_lshl_b32 s{sT3}, s{sT3}, 5")
e(f"v_add_u32 v8, s{sT3}, v3")
e("v_lshlrev_b32 v8, 11, v8")
e(f"v_lshl_add_u32 v{vOUT}, v4, 5, v8")
e(f"s_lshl_b32 s{sT3}, s{sT4}, 15")
e(f"v_add_u32 v{vOF}, s{sT3}, v2")
e(f"v_lshlrev_b32 v{vPH}, 7, v{vL}")

cm("B2 A rows: e(m) = 32eb + col(m) (eb<8) or 512 - that; col(m) = 16*b2 + 4*(m>>3) + (m&3)")
e("v_and_b32 v8, 3, v3")
e("v_bfe_u32 v9, v3, 2, 1")
e("v_lshl_add_u32 v8, v9, 4, v8")
e("v_lshrrev_b32 v9, 3, v3")
e("v_lshl_add_u32 v8, v9, 2, v8")
e(f"s_lshl_b32 s{sT0}, s{sEB}, 5")
e(f"v_add_u32 v8, s{sT0}, v8")
e("v_sub_u32 v9, 0x200, v8")
e("v_sub_u32 v10, 0x800, v13")
e("v_and_b32 v10, 0x7ff, v10               ; (2048 - ts) & 2047")
e(f"s_cmp_lt_u32 s{sEB}, 8")
e("s_cselect_b64 vcc, 0, -1")
e("v_cndmask_b32 v8, v8, v9, vcc")
e("v_cndmask_b32 v11, v13, v10, vcc")
e("v_cmp_gt_u32 vcc, 0x80, v8")
e("v_sub_u32 v9, 0x180, v8")
e("s_nop 0")
e("v_cndmask_b32 v8, v9, v8, vcc             ; H row = [e < 128 | 256 - e' | 128]")
e("v_lshlrev_b32 v10, 12, v10")
e(f"v_lshl_add_u32 v{vDIM}, v4, 6, v10")
e("v_lshlrev_b32 v10, 12, v13")
e(f"v_lshl_add_u32 v{vDRE}, v4, 6, v10")
e("v_lshlrev_b32 v10, 18, v3")
e(f"v_lshl_add_u32 v{vF}, v4, 4, v10")
e(f"v_lshrrev_b32 v10, 3, v{vL}")
e("v_lshlrev_b32 v10, 5, v10")
e(f"v_and_b32 v9, 7, v{vL}")
e("v_add_u32 v10, v10, v9")
e(f"v_lshlrev_b32 v{vPK}, 7, v10             ; K/V flags 32g + (0..7)")
e("v_lshlrev_b32 v11, 11, v11")
e(f"v_lshl_add_u32 v{vB2O}, v4, 5, v11")
e(f"v_mul_u32_u24 v9, {32*HROW}, v4")
e(f"v_lshl_add_u32 v{vB2A}, v8, 2, v9")
e(f"s_cmp_eq_u32 s{sRET}, 0")
e(f"s_mov_b32 s{sRET}, 2")
e("s_cbranch_scc1 L_tagged")
lab("L_addr_2")
if opt['alow']: e(f"s_setprio {opt['prioX']}")
for i in range(16): e(f"v_mov_b32 v{ACC+i}, 0")
e(f"v_mov_b32 v{vCNT}, {MISC+C_G1}")
vCB = 11 if False else 249
if opt['bytef']: e(f"v_add_u32 v{vCNT+1}, s{sA}, v{vCNT}")
e(f"v_mov_b32 v{vCNT+1}, 1") if not opt['bytef'] else None
e("s_waitcnt vmcnt(0)")
stamp(18)
if opt['prepoll']:
    e(f"v_cmp_ne_u64 vcc, {sr(sNON,2)}, {vr(ACC+6,2)}")
e("s_barrier")
if opt['prepoll']:
    e("s_cmp_eq_u64 vcc, 0")
    e("s_cbranch_scc1 L_kv_all")
poll("L_pollKV", 1, vPK, 8, [sKP], sleep=1)
lab("L_kv_all")
stamp(4)
e("s_setprio 0")
LOW[0] = True
for G in range(1, 3): kvdma(G)
stamp(23)
e("s_waitcnt vmcnt(4)")
stamp(24)
e(f"s_mov_b64 exec, {hex(1 << (1)) if opt['bytef'] else 1}          ; lane {1} stores its lane id")
e(f"ds_write_b8 v{vCNT+1}, v{vL} offset:{0}" if opt['bytef'] else f"ds_add_u32 v{vCNT}, v{vCNT+1} offset:{0}")
e("s_mov_b64 exec, -1")
for G in range(3, 8): kvdma(G)
XF, WF = D1, D1 + 8
cm("pull this workgroup's 1/32 share of what its XCD reads for the spectral part and of wo towards L2")
e(f"s_lshl_b32 s{sT0}, s{sJ}, 13")
e(f"s_cmp_eq_u32 s{sA}, 1")
e("s_cbranch_scc1 L_pf1")
e(f"s_cmp_eq_u32 s{sA}, 2")
e("s_cbranch_scc1 L_pf2")
e(f"s_cmp_eq_u32 s{sA}, 3")
e("s_cbranch_scc1 L_pf3")
e(f"s_lshl_b32 s{sT0}, s{sJ}, 16")
e(f"s_lshl_b32 s{sT1}, s{sXCD}, 13")
e(f"s_add_u32 s{sT0}, s{sT0}, s{sT1}")
e(f"buffer_load_dword v{D2+8}, v{vPH}, {sr(R_XB,4)}, s{sT0} offen")
e("s_branch L_pf4")
lab("L_pf1")
e(f"buffer_load_dword v{D2+8}, v{vPW}, {sr(R_HRE,4)}, s{sT0} offen")
e("s_branch L_pf4")
lab("L_pf2")
e(f"buffer_load_dword v{D2+8}, v{vPW}, {sr(R_HIM,4)}, s{sT0} offen")
e("s_branch L_pf4")
lab("L_pf3")
e(f"s_lshl_b32 s{sT0}, s{sJ}, 14")
e(f"buffer_load_dword v{D2+8}, v{vPH}, {sr(R_WO,4)}, s{sT0} offen")
lab("L_pf4")
sSL, sWOS, sWOB = 30, 31, 96
e(f"s_lshl_b32 s{sSL}, s{sA}, 11")
e(f"s_add_u32 s{sSL}, s{sSL}, {STG}")
e(f"s_lshl_b32 s{sWOS}, s{sHG}, 7")
e(f"s_lshl_b32 s{sT1}, s{sA}, 14")
e(f"s_add_u32 s{sWOB}, s{sWOS}, s{sT1}")
e(f"s_lshr_b32 s{sT1}, s{sA}, 1")
e(f"s_lshl_b32 s{sT1}, s{sT1}, 6")
e(f"s_add_u32 s{sWOS}, s{sWOS}, s{sT1}")
VM = []
NB = 8
def buf(n): return n % 3 if n < NB else (n - NB) % 3
def st_dma(n):
    if n > NB + 8: return
    if n < NB:
        e(f"s_cmp_lt_u32 s{sA}, 2")
        e(f"s_cbranch_scc0 L_dW{n}")
        for i in range(2):
            e(f"s_add_u32 m0, s{sSL}, {8192*buf(n) + 1024*i - 128*n}")
            e("s_nop 0")
            e(f"buffer_load_dwordx4 v{vG0 + 2*i}, {sr(R_XB,4)}, 0 offen offset:{128*n} lds")
        e(f"s_branch L_dE{n}")
        lab(f"L_dW{n}")
        for i in range(2):
            e(f"s_add_u32 m0, s{sSL}, {8192*buf(n) + 1024*i - 64*n}")
            e("s_nop 0")
            e(f"global_load_lds_dwordx4 {vr(vG0 + 2*i, 2)}, off offset:{64*n}")
        lab(f"L_dE{n}")
    else:
        for i in range(2):
            e(f"s_add_u32 m0, s{sSL}, {8192*buf(n) + 1024*i}")
            e(f"s_add_u32 s{sT1}, s{sWOB}, {65536*(n-NB-1) + 8192*i}")
            e(f"buffer_load_dwordx4 v{vWOD}, {sr(R_WO,4)}, s{sT1} offen lds")
    VM.extend([('st', n)]*2)
def st_sync(n, between=None):
    if n == NB: e("s_waitcnt lgkmcnt(0)")
    else:
        last = max(k for k, t in enumerate(VM) if t == ('st', n))
        e(f"s_waitcnt vmcnt({len(VM) - 1 - last}) lgkmcnt(0)")
    e(f"s_mov_b64 exec, {hex(1 << (n + 1)) if opt['bytef'] else 1}          ; lane {n + 1} stores its lane id")
    e(f"ds_write_b8 v{vCNT+1}, v{vL} offset:{C_ST - C_G1}" if opt['bytef'] else f"ds_add_u32 v{vCNT}, v{vCNT+1} offset:{C_ST - C_G1}")
    e("s_mov_b64 exec, -1")
    if between: between()
    e(f"s_mov_b32 s{sSPIN}, {SPIN*8}")
    lab(f"L_st{n}")
    e(f"ds_read_b32 v8, v{vCNT} offset:{C_ST - C_G1}")
    e(f"s_sub_u32 s{sSPIN}, s{sSPIN}, 1")
    e(f"s_cbranch_scc1 L_st{n}_done")
    e("s_waitcnt lgkmcnt(0)")
    if (opt['sp'] if n <= NB else opt['spw']): e("s_setprio 2")
    e(f"v_readfirstlane_b32 s{sT4}, v8")
    e("s_setprio 0")
    if opt['bytef']:
        e(f"s_or_b32 s{sT4}, s{sT4}, 0x80808080")
        e(f"s_sub_u32 s{sT4}, s{sT4}, {hex(0x01010101*(n+1))}")
        e(f"s_and_b32 s{sT4}, s{sT4}, 0x80808080")
        e(f"s_cmp_eq_u32 s{sT4}, 0x80808080")
    else: e(f"s_cmp_ge_u32 s{sT4}, {4*(n+1 - (16 if opt['nob'] else 0))}")
    if opt['ss']:
        e(f"s_cbranch_scc1 L_st{n}_done")
        e(f"s_sleep {opt['ss']}")
        e(f"s_branch L_st{n}")
    else: e(f"s_cbranch_scc0 L_st{n}")
    lab(f"L_st{n}_done")
if not opt['nob']: st_dma(0); st_dma(1)
stamp(17)
e("s_waitcnt vmcnt(5)                    ; younger: one pull, two stages" if not opt['nob'] else "s_waitcnt vmcnt(0)")
e(f"s_mov_b64 exec, {hex(1 << (1)) if opt['bytef'] else 1}          ; lane {1} stores its lane id")
e(f"ds_write_b8 v{vCNT+1}, v{vL} offset:{4}" if opt['bytef'] else f"ds_add_u32 v{vCNT}, v{vCNT+1} offset:{4}")
e("s_mov_b64 exec, -1")
e(f"s_cmp_eq_u32 s{sA}, 3")
e("s_cbranch_scc0 L_pf5")
e(f"s_add_u32 s{sT0}, s{sT0}, 8192")
e(f"buffer_load_dword v{D2+9}, v{vPH}, {sr(R_WO,4)}, s{sT0} offen     ; not counted below: only makes waits stricter")
lab("L_pf5")
stamp(21)
RAW = BP
XB_, WA_ = D1, D2
def b1mfma(n):
    for k in range(2):
        e(f"v_smfmac_f32_32x32x32_bf16 {vr(ACC,16)}, {vr(WA_+4*k,4)}, {vr(XB_+8*k,8)}, v{vIDXB}")
for n in range(NB):
    st_sync(n, (lambda: b1mfma(n - 1)) if n else None)
    if n + 2 < NB: st_dma(n + 2)
    for k in range(2):
        e(f"ds_read_b128 {vr(XB_+8*k,4)}, v{vRB+2*k} offset:{8192*buf(n)}")
        e(f"ds_read_b128 {vr(XB_+8*k+4,4)}, v{vRB+2*k+1} offset:{8192*buf(n)}")
        e(f"ds_read_b128 {vr(WA_+4*k,4)}, v{vRW+k} offset:{8192*buf(n)}")
    if n == opt['fst']:
        for kb in range(2): e(f"buffer_load_dwordx4 {vr(FR+4*kb,4)}, v{vF}, {sr(R_SRE,4)}, 0 offen offset:{32*kb}")
        for kb in range(2): e(f"buffer_load_dwordx4 {vr(FR+8+4*kb,4)}, v{vF}, {sr(R_SIM,4)}, 0 offen offset:{32*kb}")
        VM += [('F', 0)]*4
e("s_waitcnt lgkmcnt(0)")
b1mfma(NB - 1)
stamp(22)
e(f"s_mul_i32 s{sT0}, s{sS2}, {HROW}")
e(f"s_add_u32 s{sT0}, s{sT0}, {WS_H}")
e(f"s_lshl_b32 s{sT1}, s{sCB}, 6")
e(f"s_lshl_b32 s{sT2}, s{sTT}, 9")
e(f"s_add_u32 s{sT1}, s{sT1}, s{sT2}")
sHB = 29 + 60
e(f"s_add_u32 s{sHB}, s{sT0}, s{sT1}")
nop(5)
def boost(on):
    e(f"s_setprio {2 if on else 0}"); LOW[0] = not on
boost(opt['eb'] & 1)
vZ = BP
for i in range(8): e(f"v_cvt_pk_bf16_f32 v{vZ+i}, v{ACC+2*i}, v{ACC+2*i+1}")
boost(0)
cm("lane = row s1: transpose to lane = column through the private area")
e(f"ds_write_b128 v{vZW}, {vr(vZ,4)}")
e(f"ds_write_b128 v{vZW}, {vr(vZ+4,4)} offset:32")
e("s_waitcnt vmcnt(0) lgkmcnt(0)")
for kb in range(2):
    e(f"ds_read_b64_tr_b16 {vr(vZ+8+4*kb,2)}, v{vZR} offset:{1024*kb}")
    e(f"ds_read_b64_tr_b16 {vr(vZ+8+4*kb+2,2)}, v{vZR} offset:{1024*kb+256}")
e("s_waitcnt lgkmcnt(0)")
e(f"v_mfma_f32_32x32x16_bf16 {vr(D1,16)}, {vr(vZ+8,4)}, {vr(FR,4)}, 0")
e(f"v_mfma_f32_32x32x16_bf16 {vr(D2,16)}, {vr(vZ+8,4)}, {vr(FR+8,4)}, 0")
e(f"v_mfma_f32_32x32x16_bf16 {vr(D1,16)}, {vr(vZ+12,4)}, {vr(FR+4,4)}, {vr(D1,16)}")
e(f"v_mfma_f32_32x32x16_bf16 {vr(D2,16)}, {vr(vZ+12,4)}, {vr(FR+12,4)}, {vr(D2,16)}")
nop(11)
boost(opt['eb'] >> 2 & 1)
for r in range(8):
    e(f"v_sub_f32 v{ACC+r}, v{D1+r}, v{D2+8+r}")
    e(f"v_add_f32 v{ACC+8+r}, v{D2+r}, v{D1+8+r}")
boost(opt['eb'] >> 3 & 1)
SPC = ONES_OFF + 3072
e(f"s_cmp_eq_u32 s{sCB}, 0")
e("s_cbranch_scc0 L_nospecial")
cm("e = 0 and e = 128 are purely real columns of the half transforms: lanes 0..31, register 0")
e("s_mov_b32 exec_hi, 0")
e(f"v_mov_b32 v{ACC}, v{D1}")
e(f"v_mov_b32 v{ACC+8}, v{D2}")
e(f"v_mov_b32 v{vZ}, v{D1+8}")
e(f"v_mov_b32 v{vZ+1}, v{D2+8}")
e(f"v_lshlrev_b32 v8, 3, v{vL}")
e(f"v_add_u32 v8, {SPC}, v8")
e(f"s_cmp_eq_u32 s{sTT}, 1")
e("s_cbranch_scc0 L_sp1")
e(f"ds_write_b64 v8, {vr(vZ,2)}")
lab("L_sp1")
e(f"v_mov_b32 v{vZ+2}, v8")
e("s_mov_b64 exec, -1")
lab("L_nospecial")
e(f"s_cmp_eq_u32 s{sTT}, 1")
e("s_cbranch_scc0 L_even1")
cm("odd wave: G = W512^e * H_odd, W512^e = cos - i sin")
for r in range(8):
    e(f"v_mul_f32 v{D1+r}, v{TW+r}, v{ACC+r}")
    e(f"v_mul_f32 v{D1+8+r}, v{TW+r}, v{ACC+8+r}")
for r in range(8):
    e(f"v_fmac_f32 v{D1+r}, v{TW+8+r}, v{ACC+8+r}")
    e(f"v_fma_f32 v{ACC+8+r}, -v{TW+8+r}, v{ACC+r}, v{D1+8+r}")
for r in range(8): e(f"v_mov_b32 v{ACC+r}, v{D1+r}") if False else None
boost(0)
for i in range(2): e(f"ds_write_b128 v{vEX}, {vr(D1+4*i,4)} offset:{1024*i}")
for i in range(2): e(f"ds_write_b128 v{vEX}, {vr(ACC+8+4*i,4)} offset:{2048+1024*i}")
e("s_branch L_ex1")
lab("L_even1")
boost(0)
for i in range(4): e(f"ds_write_b128 v{vEX}, {vr(ACC+4*i,4)} offset:{1024*i}")
lab("L_ex1")
st_sync(NB)
for i in range(4): e(f"ds_read_b128 {vr(D2+4*i,4)}, v{vEP} offset:{1024*i}")
e(f"s_cmp_eq_u32 s{sTT}, 1")
e("s_cbranch_scc1 L_odd2")
cm("even wave: H[e] = H_even + G")
e(f"s_cmp_eq_u32 s{sCB}, 0")
e("s_cbranch_scc0 L_nosp2")
e("s_mov_b32 exec_hi, 0")
e(f"ds_read_b64 v[8:9], v{vZ+2}")
e("s_waitcnt lgkmcnt(0)")
boost(1)
e(f"v_add_f32 v{vZ}, v{vZ}, v9")
e(f"v_sub_f32 v{vZ+1}, v{vZ+1}, v8")
e(f"v_cvt_pk_bf16_f32 v8, v{vZ}, v{vZ+1}")
e(f"buffer_store_dword v8, v{vHA}, {sr(R_WS,4)}, s{sT0} offen offset:1024 sc1")
e("s_mov_b64 exec, -1")
lab("L_nosp2")
e("s_waitcnt lgkmcnt(0)")
boost(opt['eb'] >> 1 & 1)
for r in range(16): e(f"v_add_f32 v{D2+r}, v{ACC+r}, v{D2+r}")
boost(1)
for r in range(8): e(f"v_cvt_pk_bf16_f32 v{D1+r}, v{D2+r}, v{D2+8+r}")
e("s_branch L_ex2")
lab("L_odd2")
cm("odd wave: H[256 - e] at row -t1 = conj(H_even - G)")
e("s_waitcnt lgkmcnt(0)")
boost(opt['eb'] >> 1 & 1)
for r in range(8):
    e(f"v_sub_f32 v{D2+r}, v{D2+r}, v{D1+r}")
    e(f"v_sub_f32 v{D2+8+r}, v{ACC+8+r}, v{D2+8+r}")
boost(1)
for r in range(8): e(f"v_cvt_pk_bf16_f32 v{D1+r}, v{D2+r}, v{D2+8+r}")
lab("L_ex2")
boost(0)
cm("lane (t1, h) holds 32 B of row t1: regroup through LDS so that 4 adjacent lanes store one 64-B run")
e(f"ds_write_b128 v{vHW}, {vr(D1,4)} offset:8192")
e(f"ds_write_b128 v{vHW1}, {vr(D1+4,4)} offset:8192")
e("s_waitcnt lgkmcnt(0)")
e(f"ds_read_b128 {vr(D1+8,4)}, v{vHR} offset:8192")
e(f"ds_read_b128 {vr(D1+12,4)}, v{vHR} offset:9216")
e("s_waitcnt lgkmcnt(0)")
e(f"buffer_store_dwordx4 {vr(D1+8,4)}, v{vHS0}, {sr(R_WS,4)}, s{sHB} offen sc1")
e(f"buffer_store_dwordx4 {vr(D1+12,4)}, v{vHS1}, {sr(R_WS,4)}, s{sHB} offen sc1")
st_dma(NB + 1)
def rawloads():
    global VM
    cm("rows of the sequence DFT matrices for B2")
    for i in range(4): e(f"buffer_load_dwordx4 {vr(RAW+4*i,4)}, v{vDRE}, {sr(R_SRE,4)}, 0 offen offset:{16*i}")
    for i in range(4): e(f"buffer_load_dwordx4 {vr(RAW+16+4*i,4)}, v{vDIM}, {sr(R_SIM,4)}, 0 offen offset:{16*i}")
    VM += [('raw', 0)]*8
if not opt['rawlate']: rawloads()
e(f"s_lshl_b32 s{sT1}, s2, 7")
e(f"s_add_u32 s{sT1}, s{sT1}, {FL_H}")
stamp(19)
e(f"s_waitcnt vmcnt({2 if opt['rawlate'] else 10})")
stamp(20)
boost(1)
signal("L_sigH", C_H, 3, sT1, 8)
stamp(5)
def bploc(o): return FR + o if o < 16 else (RAW + o - 16 if o < 24 else RAW + 16 + o - 24)
def perms():
    e(f"s_mov_b32 s{sT2}, 0x05040100")
    e(f"s_mov_b32 s{sT3}, 0x07060302")
    for i in range(16):
        e(f"v_perm_b32 v{bploc(2*i)}, v{RAW+16+i}, v{RAW+i}, s{sT2}")
        e(f"v_perm_b32 v{bploc(2*i+1)}, v{RAW+16+i}, v{RAW+i}, s{sT3}")
if not opt['b2tail']: perms()
boost(0)
if opt['rawlate'] and not opt['abl'] & 4: rawloads()
if opt['nob']: lab("L_nob2")
def wo_stage(n):
    st_sync(n)
    if n == NB + 1: st_dma(n + 1)
    st_dma(n + 2)
    for k in range(4):
        ks = 4*(n - NB - 1) + k
        e(f"ds_read_b64_tr_b16 {vr(BUF+4*ks,2)}, v{vWOT} offset:{8192*buf(n) + 2048*k}")
        e(f"ds_read_b64_tr_b16 {vr(BUF+4*ks+2,2)}, v{vWOT} offset:{8192*buf(n) + 2048*k + 512}")
for n in range(NB + 1, NB + 9): wo_stage(n)
stamp(6)
boost(1)
if opt['pre']:
    cm("aux wave 2 touches the O lines this workgroup will write and the 8 flags of its token block")
    e(f"s_cmp_eq_u32 s{sA}, 2")
    e("s_cbranch_scc0 L_nopre")
    e(f"v_lshrrev_b32 v8, 5, v{vL}")
    e(f"v_and_b32 v9, 31, v{vL}")
    e("v_lshlrev_b32 v9, 7, v9")
    e("v_lshl_add_u32 v8, v8, 15, v9")
    e(f"s_lshl_b32 s{sT0}, s{sTB}, 16")
    e(f"s_lshl_b32 s{sT1}, s{sHG}, 12")
    e(f"s_add_u32 s{sT0}, s{sT0}, s{sT1}")
    e(f"s_add_u32 s{sT0}, s{sT0}, {WS_O}")
    e(f"buffer_load_dword v10, v8, {sr(R_WS,4)}, s{sT0} offen sc1")
    e(f"v_and_b32 v9, 0xf80, v{vPH}")
    e(f"s_lshl_b32 s{sT0}, s{sTB}, 12")
    e(f"s_add_u32 s{sT0}, s{sT0}, {FL_O}")
    e(f"buffer_load_dword v11, v9, {sr(R_WS,4)}, s{sT0} offen sc1")
    e("s_waitcnt vmcnt(0)")
    lab("L_nopre")
cm("aux wave 1: XCD ids of the 8 workgroups of this token block: ids 32*hg + (id & 31)")
e(f"s_cmp_eq_u32 s{sA}, 1")
e("s_cbranch_scc0 L_nosame")
e(f"v_and_b32 v8, 7, v{vL}")
e("v_lshlrev_b32 v8, 12, v8")
e(f"s_and_b32 s{sT0}, s2, 31")
e(f"s_lshl_b32 s{sT0}, s{sT0}, 7")
e(f"s_add_u32 s{sT0}, s{sT0}, {FL_X}")
e(f"buffer_load_dwordx2 v[10:11], v8, {sr(R_WS,4)}, s{sT0} offen sc1")
e(f"s_getreg_b32 s{sX}, hwreg(HW_REG_XCC_ID, 0, 4)")
e(f"s_or_b32 s{sX}, s{sX}, s{sNON}")
e(f"s_mov_b32 s{sX+1}, s{sNON+1}")
e(f"v_mov_b32 v9, {MISC+C_SAME}")
e("s_waitcnt vmcnt(0)")
e(f"v_cmp_ne_u64 vcc, {sr(sX,2)}, v[10:11]")
e("s_nop 0")
e("s_cmp_eq_u64 vcc, 0")
e(f"s_cselect_b32 s{sT0}, {1 if opt['fast'] else 0}, 0")
e(f"v_mov_b32 v11, s{sT0}")
e("ds_write_b32 v9, v11")
lab("L_nosame")
if opt['nob'] or opt['abl'] & 4: e("s_branch L_b2done")
cm("B2: wait for every workgroup's H rows")
e(f"s_cmp_eq_u32 s{sA}, 0")
e("s_cbranch_scc0 L_hwait")
for i in range(4): e(f"s_mov_b32 s{sT0+i}, {FL_H + 8192*i}")
poll("L_pollH", 4, vPH, ACC, [sT0, sT0+1, sT0+2, sT0+3], sleep=8)
e(f"v_mov_b32 v10, {MISC+C_HOK}")
e("v_mov_b32 v11, 1")
e("ds_write_b32 v10, v11")
e("s_branch L_hok")
lab("L_hwait")
lds_wait("L_hw", C_HOK, 1, 10, sleep=8)
lab("L_hok")
boost(0)
stamp(7)
e(f"s_mul_i32 s{sT0}, s{sT1S}, {64*HROW}")
e(f"s_add_u32 s{sT0}, s{sT0}, {WS_H}")
AF = 208
for kb in range(8):
    for w in range(4): e(f"buffer_load_dword v{AF+4*kb+w}, v{vB2A}, {sr(R_WS,4)}, s{sT0} offen offset:{w*HROW} sc1")
    if kb < 7: e(f"s_add_u32 s{sT0}, s{sT0}, {4*HROW}")
VM += [('A', 0)]*32
sB2 = 88
def b2compute(low):
    e(f"s_lshl_b32 s{sB2}, s{sEB}, 6")
    e(f"s_add_u32 s{sB2}, s{sB2}, 1024")
    for kb in range(8):
        if low: e(f"s_waitcnt vmcnt({28-4*kb})")
        e(f"v_mfma_f32_32x32x16_bf16 {vr(ACC,16)}, {vr(AF+4*kb,4)}, {vr(bploc(4*kb),4)}, {'0' if kb==0 else vr(ACC,16)}")
    nop(11 if low else 12)
    if low: boost(1)
    for i in range(8): e(f"v_cvt_pk_bf16_f32 v{AF+8+i}, v{ACC+2*i}, v{ACC+2*i+1}")
    if low: b2store()
vRG, vS0, vS1, vO0 = 240, 241, 242, 243
def regroup(src, dst):
    e(f"ds_write_b128 v{vHW}, {vr(src,4)} offset:8192")
    e(f"ds_write_b128 v{vHW1}, {vr(src+4,4)} offset:8192")
    e("s_waitcnt lgkmcnt(0)")
    e(f"ds_read_b128 {vr(dst,4)}, v{vRG} offset:8192")
    e(f"ds_read_b128 {vr(dst+4,4)}, v{vRG} offset:9216")
def rg_addr():
    e(f"v_add_u32 v{vRG}, s{sSL}, v2")
    e(f"v_lshrrev_b32 v8, 4, v{vL}")
    e(f"v_xor_b32 v8, v8, v{vL}")
    e("v_and_b32 v8, 3, v8")
    e("v_lshlrev_b32 v8, 4, v8                 ; chunk * 16")
    e(f"v_lshrrev_b32 v9, 2, v{vL}              ; r")
    e(f"s_lshl_b32 s{sT3}, s{sTB}, 1")
    e(f"s_add_u32 s{sT3}, s{sT3}, s{sTT}")
    e(f"s_lshl_b32 s{sT3}, s{sT3}, 5")
    e(f"v_add_u32 v10, s{sT3}, v9")
    e("v_lshlrev_b32 v10, 11, v10")
    e(f"v_add_u32 v{vO0}, v10, v8")
    e(f"s_lshl_b32 s{sT3}, s{sTT}, 10")
    e(f"s_add_u32 s{sT3}, s{sT3}, s{sT1S}")
    e(f"v_lshl_add_u32 v9, v9, 5, s{sT3}         ; ts")
    e("v_add_u32 v10, 0x200, v9")
    e("v_sub_u32 v11, 0x800, v9")
    e("v_and_b32 v11, 0x7ff, v11")
    e(f"v_sub_u32 v{vS1}, 0x800, v10")
    e(f"s_cmp_lt_u32 s{sEB}, 8")
    e("s_cselect_b64 vcc, 0, -1")
    e("v_cndmask_b32 v9, v9, v11, vcc")
    e(f"v_cndmask_b32 v10, v10, v{vS1}, vcc")
    e(f"v_lshl_add_u32 v{vS0}, v9, 11, v8")
    e(f"v_lshl_add_u32 v{vS1}, v10, 11, v8")
def b2store():
    if opt['rg'] & 1:
        e(f"buffer_store_dwordx4 {vr(AF+16,4)}, v{vS0}, {sr(R_OUT,4)}, s{sB2} offen{OSC}")
        e(f"buffer_store_dwordx4 {vr(AF+20,4)}, v{vS1}, {sr(R_OUT,4)}, s{sB2} offen{OSC}")
        return
    e(f"buffer_store_dwordx4 {vr(AF+8,4)}, v{vB2O}, {sr(R_OUT,4)}, s{sB2} offen{OSC}")
    e(f"buffer_store_dwordx4 {vr(AF+12,4)}, v{vB2O}, {sr(R_OUT,4)}, s{sB2} offen offset:16{OSC}")
if not opt['b2tail']: b2compute(True)
lab("L_b2done")
boost(0)
stamp(8)
e("s_waitcnt vmcnt(0) lgkmcnt(0)")
if opt['b2s']:
    boost(1)
    perms()
    rg_addr()
    boost(0)
    e(f"s_lshl_b32 s{sB2}, s{sEB}, 6")
    e(f"s_add_u32 s{sB2}, s{sB2}, 1024")
    for kb in range(8):
        e(f"v_mfma_f32_32x32x16_bf16 {vr(ACC,16)}, {vr(AF+4*kb,4)}, {vr(bploc(4*kb),4)}, {'0' if kb==0 else vr(ACC,16)}")
    nop(11)
    boost(1)
    for i in range(8): e(f"v_cvt_pk_bf16_f32 v{AF+8+i}, v{ACC+2*i}, v{ACC+2*i+1}")
    boost(0)
    regroup(AF+8, AF+16)
    e("s_waitcnt lgkmcnt(0)")
    sc = " sc1" if opt['b2s'] == 1 else ""
    e(f"buffer_store_dwordx4 {vr(AF+16,4)}, v{vS0}, {sr(R_OUT,4)}, s{sB2} offen{sc}")
    e(f"buffer_store_dwordx4 {vr(AF+20,4)}, v{vS1}, {sr(R_OUT,4)}, s{sB2} offen{sc}")
stamp(10)
warm("L_padt", "L_pado_ret")
cm("tail: the attention waves bring the O tile -> LDS 0..")
e("s_barrier                             ; B7")
LOW[0] = False
stamp(9)
if opt['b2tail'] and not opt['nob'] and not opt['abl'] & 20 and not opt['b2s']:
    cm("second spectral stage: operands are in registers, the matrix pipe is free until the O tile lands")
    perms()
    if opt['rg']: rg_addr()
    b2compute(False)
    if opt['rg'] & 1:
        regroup(AF+8, AF+16)
        e("s_waitcnt lgkmcnt(0)")
e(f"s_mov_b32 s{sT0}, s{sWOS}")
stamp(11)
e("s_barrier                             ; B8a")
pad_begin("L_pado")
OF = 144
korder = [h for st in range(4) for h in range(32) if (h % 8) // 2 == st]
PD = opt['opd']
def ofrag(n): e(f"ds_read_b128 {vr(OF+4*(n%8),4)}, v{vOF} offset:{1024*korder[n]}")
for n in range(PD): ofrag(n)
if opt['b2at'] == 0 and opt['b2tail'] and not opt['nob'] and not opt['abl'] & 28 and not opt['b2s']: b2store()
for n in range(32):
    if n + PD in (8, 16, 24):
        e(f"s_barrier                             ; B8.{(n+PD)//8}")
        if n + PD == opt['b2at'] and opt['b2tail'] and not opt['nob'] and not opt['abl'] & 28 and not opt['b2s']: b2store()
    if n + PD < 32:
        ofrag(n + PD)
        e(f"s_waitcnt lgkmcnt({PD})")
    else:
        e(f"s_waitcnt lgkmcnt({31-n})")
    e(f"v_mfma_f32_32x32x16_bf16 {vr(ACC,16)}, {vr(BUF+4*korder[n],4)}, {vr(OF+4*(n%8),4)}, {'0' if n==0 else vr(ACC,16)}")
nop(12)
for i in range(8): e(f"v_cvt_pk_bf16_f32 v{D1+i}, v{ACC+2*i}, v{ACC+2*i+1}")
if opt['rg'] & 2:
    regroup(D1, D1+8)
    e(f"s_add_u32 s{sT1}, s{sT0}, {16*2048}")
    e("s_waitcnt lgkmcnt(1)")
    e(f"buffer_store_dwordx4 {vr(D1+8,4)}, v{vO0}, {sr(R_OUT,4)}, s{sT0} offen{OSC}")
    e("s_waitcnt lgkmcnt(0)")
    e(f"buffer_store_dwordx4 {vr(D1+12,4)}, v{vO0}, {sr(R_OUT,4)}, s{sT1} offen{OSC}")
else:
    e(f"buffer_store_dwordx4 {vr(D1,4)}, v{vOUT}, {sr(R_OUT,4)}, s{sT0} offen{OSC}")
    e(f"buffer_store_dwordx4 {vr(D1+4,4)}, v{vOUT}, {sr(R_OUT,4)}, s{sT0} offen offset:16{OSC}")
pad_end("L_pado", "L_pado_ret")
if opt['dbgt']:
    e(f"s_cmp_lt_u32 s2, 6")
    e("s_cbranch_scc0 L_end")
    e(f"s_cmp_eq_u32 s{sW}, 4")
    e("s_cbranch_scc0 L_end")
    e("s_waitcnt vmcnt(0)")
    e(f"s_memrealtime {sr(sST,2)}")
    e("s_waitcnt lgkmcnt(0)")
    e(f"v_mov_b32 v4, s{sST}")
    e(f"s_lshl_b32 s{sT0}, s2, 2")
    e(f"s_add_u32 s{sT0}, s{sT0}, 40")
    e("s_mov_b64 exec, 1")
    e(f"buffer_store_dword v4, off, {sr(R_DBG,4)}, s{sT0}")
if opt['endat']:
    lab("L_endat")
    e(f"s_memrealtime {sr(sX,2)}")
    e("s_waitcnt lgkmcnt(0)")
    e(f"s_sub_u32 s{sX}, s{sX}, s3")
    e(f"s_cmp_lt_u32 s{sX}, {opt['endat']}")
    e("s_cbranch_scc1 L_endat")
stamp(12)
if opt['stamps']: e("s_waitcnt vmcnt(0)")
stamp(13)
stamp_dump()
lab("L_end")
e("s_endpgm")
lab("L_codeend")
L.append(f""".section .rodata,"a"
.p2align 6
.amdhsa_kernel {NAME}_kernel
  .amdhsa_next_free_vgpr 256
  .amdhsa_next_free_sgpr 102
  .amdhsa_accum_offset 256
  .amdhsa_group_segment_fixed_size 0
  .amdhsa_kernarg_size 104
  .amdhsa_user_sgpr_count 2
  .amdhsa_user_sgpr_kernarg_segment_ptr 1
  .amdhsa_system_sgpr_workgroup_id_x 1
.end_amdhsa_kernel""")

def finish(lines, ncode):
    out = []
    for l in lines:
        if l.strip() == "CODEPF":
            for i in range(ncode // 8192):
                out.append(f"    global_load_dword v200, v[212:213], off")
                out.append(f"    v_add_co_u32 v212, vcc, 0x2000, v212")
                out.append(f"    s_nop 1")
                out.append(f"    v_addc_co_u32 v213, vcc, 0, v213, vcc")
            rem = (ncode % 8192) // 128
            if rem:
                out.append(f"    v_cmp_gt_u32 vcc, {rem}, v{vL}")
                out.append(f"    s_nop 0")
                out.append(f"    s_and_saveexec_b64 {sr(sX,2)}, vcc")
                out.append(f"    global_load_dword v200, v[212:213], off")
                out.append(f"    s_mov_b64 exec, -1")
        else: out.append(l)
    return "\n".join(out) + "\n"
import subprocess, os, hazcheck
ncode = 16384
for _ in range(3):
    txt = finish(L, ncode)
    open("_g.s", "w").write(txt)
    r = subprocess.run(["clang", "-x", "assembler", "-target", "amdgcn-amd-amdhsa", "-mcpu=gfx950", "-c", "_g.s", "-o", "_g.o"], capture_output=True, text=True)
    if r.returncode: print(r.stderr[:3000]); sys.exit(1)
    sz = subprocess.run(["llvm-objdump", "-h", "_g.o"], capture_output=True, text=True).stdout
    n = [int(x.split()[2], 16) for x in sz.splitlines() if " .text " in x][0]
    if n // 128 * 128 == ncode: break
    ncode = n // 128 * 128
open(sys.argv[1], "w").write(txt)
print(hazcheck.check(txt), "hazards; code bytes", n)
```
